```python
import torch

def _softmax(x, axis=-1):
    return torch.softmax(x, dim=axis)
def _gelu(x):
    return torch.nn.functional.gelu(x, approximate="tanh")
def _silu(x):
    return torch.nn.functional.silu(x)
def _sigmoid(x):
    return torch.sigmoid(x)
def _layernorm(x, axis=-1, eps=1e-5):
    m = x.mean(dim=axis, keepdim=True)
    v = x.var(dim=axis, keepdim=True, unbiased=False)
    return (x - m) / torch.sqrt(v + eps)
def _scatter_add(tgt, idx, src, axis=0):
    return tgt.clone().index_add_(axis, idx, src)
def _segment_sum(src, seg, n):
    out = torch.zeros((n,) + src.shape[1:], dtype=src.dtype)
    return out.index_add_(0, seg, src)
def _pad(x, pw):
    flat = tuple(v for pair in reversed(pw) for v in pair)
    return torch.nn.functional.pad(x, flat)

kernel_name = 'standalone__dense_activation_silu__prompt'

def setup_inputs():

    _w = (lambda a: (lambda t: t.to(torch.bfloat16) if t.is_floating_point() else t)(torch.as_tensor(a)))
    B, S, D, F = 1, 2048, 640, 1536
    return {
        "x": _w((lambda *s: torch.randn(*s, dtype=torch.bfloat16) * 0.1)(B, S, D)),
        "w1": _w((lambda *s: torch.randn(*s, dtype=torch.bfloat16) * 3.2)(D, F) * (D ** -0.5)),
        "w2": _w((lambda *s: torch.randn(*s, dtype=torch.bfloat16) * 3.2)(F, D) * (F ** -0.5)),
    }

def reference(x, w1, w2):
    h = torch.einsum("bsd,df->bsf", x, w1)
    h = _silu(h)
    out = torch.einsum("bsf,fd->bsd", h, w2)
    return out
```

```python
import sys
NAME = "standalone__dense_activation_silu__prompt_kernel"
opt = dict(stamps=0, dup=1, rot=1, rot2=1, pf=1, outaux="", pollpos=10, pre=3, map=2, w2aux="", xaux="", w1aux="")
for a in sys.argv[2:]:
    k, v = a.split("=")
    opt[k] = int(v) if v.lstrip("-").isdigit() else v.replace("_", " ")
O = []
def e(s): O.append(s)
NST = [0]
def stamp(rt=False):
    if not opt["stamps"]: return
    i = NST[0]; NST[0] += 1
    e(f"s_memrealtime s[{72+2*i}:{73+2*i}]" if rt else f"s_memtime s[{72+2*i}:{73+2*i}]")

class Q:
    def __init__(s, name, mx): s.name = name; s.mx = mx; s.q = []
    def issue(s, tag): s.q.append(tag)
    def wait(s, tag):
        if tag not in s.q: return
        i = len(s.q) - 1 - s.q[::-1].index(tag)
        n = len(s.q) - 1 - i
        assert n <= s.mx, (s.name, n)
        e(f"s_waitcnt {s.name}({n})")
        s.q = s.q[i+1:]
    def drain(s):
        e(f"s_waitcnt {s.name}(0)"); s.q = []
VM = Q("vmcnt", 63); LG = Q("lgkmcnt", 15)

FL = 0x600000; EP = 0x608000; HREC = 0x610000
SPARE = 98304
sX, sW1, sW2, sOUT, sH = 16, 20, 24, 28, 32
sW, sMT, sFT, sKS, sXO, sWO, sSLOT, sM0, sCNT, sT0, sT1, sE, sTAG = 36, 37, 38, 39, 40, 41, 42, 43, 44, 45, 46, 47, 48
sXB, sWB, sRD, sHS, sFLG, sPOL, sW2B, sOWN, sM1, sM2, sROT = 49, 50, 51, 52, 53, 54, 55, 56, 57, 58, 59
sSIG = 60
sOB = 3; sEPO = 14; sSPIN = 15
vL16 = 1; vW2 = 2
vTA1, vTA2, vOUT, vOUT2 = 7, 8, 9, 10
vPOLL = 12
vRW = 11; vRR = 14
vHB = 17
vT = 21
vDX = 24; vDW = 26
vBA = 32; vBX = 34
vCA = 36; vCX = 38
vTM = 40
vACC1 = 64; vAF = 112; vBF = 160; vS = 176
vH = 64; vACC2 = 24
def srd(r): return f"s[{r}:{r+3}]"
def vr(r, n): return f"v[{r}:{r+n-1}]"
def ar(r, n): return f"a[{r}:{r+n-1}]"

e("s_cmp_ge_u32 s2, 256")
e("s_cbranch_scc1 L_end")
stamp(True); stamp()
e("s_load_dwordx8 s[4:11], s[0:1], 0")
e("s_load_dwordx2 s[12:13], s[0:1], 40")
e(f"v_and_b32 v{vTM}, 63, v0")
e(f"v_lshrrev_b32 v{vTM+1}, 6, v0")
e(f"v_lshlrev_b32 v{vL16}, 4, v{vTM}")
e(f"v_readfirstlane_b32 s{sW}, v{vTM+1}")
if opt["pf"]:
    e("s_getpc_b64 s[14:15]")
    e("L_pc:")
    e(f"s_lshr_b32 s{sT0}, s2, 3")
    e(f"s_and_b32 s{sT0}, s{sT0}, 3")
    e(f"s_lshl_b32 s{sT0}, s{sT0}, 12")
    e(f"v_lshl_add_u32 v{vTM+2}, v0, 4, s{sT0}")
    e(f"v_min_u32 v{vTM+2}, L_end-L_pc-16, v{vTM+2}")
    e(f"global_load_dwordx4 v[252:255], v{vTM+2}, s[14:15]")
    VM.issue("pf")
fa = opt["map"]
e(f"s_and_b32 s{sT0}, s2, 7")
e(f"s_lshr_b32 s{sT1}, s2, 3")
e(f"s_and_b32 s{sFT}, s{sT1}, {(1<<fa)-1}")
e(f"s_lshr_b32 s{sMT}, s{sT1}, {fa}")
if opt["rot"]:
    e(f"s_mul_i32 s{sKS}, s{sMT}, 10")
    e(f"s_lshr_b32 s{sKS}, s{sKS}, {5-fa}")
    e(f"s_mul_i32 s{sT1}, s{sFT}, 10")
    e(f"s_lshr_b32 s{sT1}, s{sT1}, {fa}")
    e(f"s_add_u32 s{sKS}, s{sKS}, s{sT1}")
    e(f"s_cmp_ge_u32 s{sKS}, 10")
    e(f"s_cselect_b32 s{sT1}, 10, 0")
    e(f"s_sub_u32 s{sKS}, s{sKS}, s{sT1}")
else:
    e(f"s_mov_b32 s{sKS}, 0")
if opt["rot2"]:
    e(f"s_mul_i32 s{sROT}, s{sMT}, 12")
    e(f"s_lshr_b32 s{sROT}, s{sROT}, {5-fa}")
else:
    e(f"s_mov_b32 s{sROT}, 0")
e(f"s_and_b32 s{sT1}, s{sT0}, {(8>>fa)-1}")
e(f"s_lshl_b32 s{sT1}, s{sT1}, {fa}")
e(f"s_add_u32 s{sFT}, s{sFT}, s{sT1}")
e(f"s_lshr_b32 s{sT1}, s{sT0}, {3-fa}")
e(f"s_lshl_b32 s{sT1}, s{sT1}, {5-fa}")
e(f"s_add_u32 s{sMT}, s{sMT}, s{sT1}")
e(f"s_mul_i32 s{sXB}, s{sMT}, 81920")
e(f"s_mul_i32 s{sWB}, s{sFT}, 384")
L, Wv = vTM, vTM+1
t0, t1, t2, t3 = vTM+3, vTM+4, vTM+5, vTM+6
e(f"v_lshrrev_b32 v{t0}, 3, v{L}")
e(f"v_lshl_add_u32 v{t0}, v{Wv}, 4, v{t0}")
e(f"v_mul_u32_u24 v{t0}, 1280, v{t0}")
e(f"v_and_b32 v{t1}, 7, v{L}")
e(f"v_lshrrev_b32 v{t2}, 4, v{L}")
e(f"v_xor_b32 v{t1}, v{t1}, v{t2}")
e(f"v_lshl_add_u32 v{vDX}, v{t1}, 4, v{t0}")
e(f"v_xor_b32 v{t1}, 4, v{t1}")
e(f"v_lshl_add_u32 v{vDX+1}, v{t1}, 4, v{t0}")
e(f"v_add_u32 v{vDX+1}, {8*1280-1024}, v{vDX+1}")
e(f"v_mul_u32_u24 v{t3}, {16*3072}, v{Wv}")
for i in range(6):
    imm = (i % 4) * 1024
    e(f"v_add_u32 v{t0}, {64*i}, v{L}")
    e(f"v_mul_u32_u24 v{t1}, 2731, v{t0}")
    e(f"v_lshrrev_b32 v{t1}, 16, v{t1}")
    e(f"v_mul_u32_u24 v{t2}, 24, v{t1}")
    e(f"v_sub_u32 v{t0}, v{t0}, v{t2}")
    e(f"v_and_b32 v{t2}, 2, v{t1}")
    e(f"v_xor_b32 v{t0}, v{t0}, v{t2}")
    e(f"v_lshrrev_b32 v{t2}, 1, v{t1}")
    e(f"v_and_b32 v{t2}, 4, v{t2}")
    e(f"v_xor_b32 v{t0}, v{t0}, v{t2}")
    e(f"v_mul_u32_u24 v{t1}, 3072, v{t1}")
    e(f"v_lshl_add_u32 v{t0}, v{t0}, 4, v{t1}")
    if imm: e(f"v_subrev_u32 v{t0}, {imm}, v{t0}")
    e(f"v_add_u32 v{vDW+i}, v{t0}, v{t3}")
e(f"s_lshl_b32 s{sM0}, s{sW}, 13")
e("s_waitcnt lgkmcnt(0)")
for r, p, n in ((sX, 4, 2621440), (sW1, 6, 1966080), (sW2, 8, 1966080), (sOUT, 10, 2621440), (sH, 12, HREC)):
    e(f"s_mov_b32 s{r}, s{p}"); e(f"s_mov_b32 s{r+1}, s{p+1}"); e(f"s_mov_b32 s{r+2}, {n}"); e(f"s_mov_b32 s{r+3}, 0x20000")
stamp()

def stage_offsets():
    e(f"s_lshl_b32 s{sXO}, s{sKS}, 7")
    e(f"s_add_u32 s{sXO}, s{sXO}, s{sXB}")
    e(f"s_mul_i32 s{sWO}, s{sKS}, {64*3072}")
    e(f"s_add_u32 s{sWO}, s{sWO}, s{sWB}")
    e(f"s_add_u32 s{sKS}, s{sKS}, 1")
    e(f"s_cmp_ge_u32 s{sKS}, 10")
    e(f"s_cselect_b32 s{sKS}, 0, s{sKS}")
def dma_ops(tag):
    ops = []
    def mk(i):
        def f():
            if i == 0: e(f"s_add_u32 m0, s{sM0}, 6144"); e("s_nop 0")
            if i == 2: e(f"s_mov_b32 m0, s{sM0}"); e("s_nop 0")
            if i == 6: e(f"s_add_u32 m0, s{sM0}, 4096"); e("s_nop 0")
            if i < 2:
                e(f"buffer_load_dwordx4 v{vDX+i}, {srd(sX)}, s{sXO} offen offset:{i*1024} {opt['xaux']} lds")
            else:
                j = i - 2
                e(f"buffer_load_dwordx4 v{vDW+j}, {srd(sW1)}, s{sWO} offen offset:{(j%4)*1024} {opt['w1aux']} lds")
            VM.issue(tag)
        return f
    return [mk(i) for i in range(8)]
def adv_m0():
    e(f"s_add_u32 s{sM0}, s{sM0}, 32768")
    e(f"s_cmp_ge_u32 s{sM0}, {SPARE}")
    e(f"s_cselect_b32 s{sT0}, {SPARE}, 0")
    e(f"s_sub_u32 s{sM0}, s{sM0}, s{sT0}")

for st in range(2):
    stage_offsets()
    for f in dma_ops(f"st{st}"): f()
    adv_m0()
stamp()
e(f"s_lshl_b32 s{sEPO}, s{sMT}, 7")
e(f"s_add_u32 s{sEPO}, s{sEPO}, {EP}")
e(f"s_load_dword s{sE}, s[12:13], s{sEPO}")
G, R, C = t0, t1, t2
e(f"v_lshrrev_b32 v{G}, 4, v{L}")
e(f"v_bfe_u32 v{R}, v{L}, 2, 2")
e(f"v_and_b32 v{C}, 3, v{L}")
u0, u1, u2 = vTM+7, vTM+8, vTM+9
e(f"v_lshrrev_b32 v{u0}, 1, v{G}")
e(f"v_lshlrev_b32 v{u0}, 13, v{u0}")
e(f"v_and_b32 v{u1}, 1, v{G}")
e(f"v_lshl_add_u32 v{u2}, v{u1}, 3, v{R}")
e(f"v_mul_u32_u24 v{u2}, 384, v{u2}")
e(f"v_add_u32 v{u0}, v{u0}, v{u2}")
e(f"v_lshl_add_u32 v{u0}, v{C}, 3, v{u0}")
e(f"v_lshrrev_b32 v{u2}, 1, v{R}")
e(f"v_lshl_add_u32 v{u2}, v{u1}, 1, v{u2}")
e(f"v_and_b32 v{u1}, 1, v{Wv}")
e(f"v_lshlrev_b32 v{u1}, 1, v{u1}")
e(f"v_xor_b32 v{u2}, v{u2}, v{u1}")
e(f"v_lshl_add_u32 v{vBA}, v{u2}, 5, v{u0}")
e(f"v_xor_b32 v{u2}, 1, v{u2}")
e(f"v_lshl_add_u32 v{vBA+1}, v{u2}, 5, v{u0}")
e(f"v_and_b32 v{u0}, 15, v{L}")
e(f"v_lshrrev_b32 v{u1}, 1, v{u0}")
e(f"v_xor_b32 v{u1}, v{u1}, v{G}")
e(f"v_lshlrev_b32 v{u2}, 7, v{u0}")
e(f"v_lshrrev_b32 v{vBX}, 1, v{Wv}")
e(f"v_lshlrev_b32 v{vBX}, 14, v{vBX}")
e(f"v_add_u32 v{u2}, v{u2}, v{vBX}")
e(f"v_add_u32 v{u2}, 6144, v{u2}")
e(f"v_lshl_add_u32 v{vBX}, v{u1}, 4, v{u2}")
e(f"v_xor_b32 v{u1}, 4, v{u1}")
e(f"v_lshl_add_u32 v{vBX+1}, v{u1}, 4, v{u2}")
for i in range(2):
    e(f"v_mov_b32 v{vCA+i}, v{vBA+i}"); e(f"v_mov_b32 v{vCX+i}, v{vBX+i}")
e(f"s_mov_b32 s{sRD}, 0")
e(f"v_mul_u32_u24 v{u0}, 1280, v{u0}")
e(f"v_lshl_add_u32 v{vOUT}, v{G}, 4, v{u0}")
e(f"v_and_b32 v{u1}, 1, v{G}")
e(f"v_lshl_add_u32 v{u0}, v{u1}, 4, v{u0}")
e(f"v_lshrrev_b32 v{u1}, 1, v{G}")
e(f"v_lshl_add_u32 v{vOUT2}, v{u1}, 3, v{u0}")
e(f"v_lshl_add_u32 v{u0}, v{G}, 2, v{R}")
e(f"v_mul_u32_u24 v{u0}, 160, v{u0}")
e(f"v_and_b32 v{u1}, 1, v{C}")
e(f"v_lshl_add_u32 v{u0}, v{u1}, 4, v{u0}")
e(f"v_lshrrev_b32 v{u1}, 1, v{C}")
e(f"v_lshl_add_u32 v{u0}, v{u1}, 3, v{u0}")
e(f"s_lshl_b32 s{sM1}, s{sW}, 14")
e(f"s_add_u32 s{sM1}, s{sM1}, {SPARE}")
e(f"s_mul_i32 s{sM2}, s{sW}, 24576")
e(f"v_add_u32 v{vTA1}, s{sM1}, v{u0}")
e(f"v_add_u32 v{vTA2}, s{sM2}, v{u0}")
e(f"v_add_u32 v{vRW}, s{sM1}, v{vL16}")
for p in range(3):
    e(f"s_sub_u32 s{sT0}, s{sW}, {1+p}")
    e(f"s_and_b32 s{sT0}, s{sT0}, 3")
    e(f"s_lshl_b32 s{sT0}, s{sT0}, 14")
    e(f"s_add_u32 s{sT0}, s{sT0}, {SPARE + p*5120}")
    e(f"v_add_u32 v{vRR+p}, s{sT0}, v{vL16}")
for i in range(5):
    imm = (i % 4) * 1024
    e(f"v_add_u32 v{u0}, {64*i}, v{L}")
    e(f"v_mul_u32_u24 v{u1}, 6554, v{u0}")
    e(f"v_lshrrev_b32 v{u1}, 16, v{u1}")
    e(f"v_mul_u32_u24 v{u2}, 10, v{u1}")
    e(f"v_sub_u32 v{u0}, v{u0}, v{u2}")
    e(f"v_mul_u32_u24 v{u1}, 1280, v{u1}")
    e(f"v_lshl_add_u32 v{vW2+i}, v{u0}, 4, v{u1}")
    if imm: e(f"v_subrev_u32 v{vW2+i}, {imm}, v{vW2+i}")
e(f"s_mul_i32 s{sW2B}, s{sW}, {384*1280}")
e(f"s_mul_i32 s{sT0}, s{sFT}, 160")
e(f"s_add_u32 s{sW2B}, s{sW2B}, s{sT0}")
for n in range(12):
    e(f"s_lshl_b32 s{sSIG+n}, s{sROT}, 10")
    if n < 11:
        e(f"s_add_u32 s{sROT}, s{sROT}, 1")
        e(f"s_cmp_ge_u32 s{sROT}, 12")
        e(f"s_cselect_b32 s{sROT}, 0, s{sROT}")
e(f"s_add_u32 s{sOWN}, s{sW}, s{sFT}")
e(f"s_and_b32 s{sOWN}, s{sOWN}, 3")
e(f"s_lshl_b32 s{sT1}, s{sMT}, 2")
e(f"s_add_u32 s{sT1}, s{sT1}, s{sW}")
e(f"s_lshl_b32 s{sPOL}, s{sT1}, 7")
e(f"s_add_u32 s{sPOL}, s{sPOL}, {FL}")
e(f"s_lshl_b32 s{sT1}, s{sT1}, 2")
for p in range(4):
    e(f"s_add_u32 s{sT0}, s{sOWN}, {1+p}")
    e(f"s_and_b32 s{sT0}, s{sT0}, 3")
    e(f"s_add_u32 s{sT0}, s{sT0}, s{sT1}")
    e(f"s_mul_i32 s{sT0}, s{sT0}, 12288")
    e(f"v_add_u32 v{vHB+p}, s{sT0}, v{vL16}")
e(f"s_lshl_b32 s{sOB}, s{sMT}, 2")
e(f"s_add_u32 s{sOB}, s{sOB}, s{sOWN}")
e(f"s_mul_i32 s{sOB}, s{sOB}, {16*1280}")
e(f"s_mul_i32 s{sT0}, s{sFT}, 160")
e(f"s_add_u32 s{sOB}, s{sOB}, s{sT0}")
e(f"s_lshl_b32 s{sT0}, s{sMT}, 2")
e(f"s_lshr_b32 s{sT1}, s{sFT}, 1")
e(f"s_add_u32 s{sT0}, s{sT0}, s{sT1}")
e(f"s_lshl_b32 s{sFLG}, s{sT0}, 7")
e(f"s_lshl_b32 s{sT0}, s{sT0}, 2")
e(f"s_and_b32 s{sT1}, s{sW}, 2")
e(f"s_add_u32 s{sT0}, s{sT0}, s{sT1}")
e(f"s_mul_i32 s{sHS}, s{sT0}, 12288")
e(f"s_and_b32 s{sT0}, s{sFT}, 1")
e(f"s_lshl_b32 s{sT1}, s{sT0}, 2")
e(f"s_add_u32 s{sFLG}, s{sFLG}, s{sT1}")
e(f"s_add_u32 s{sFLG}, s{sFLG}, {FL}")
e(f"s_mul_i32 s{sT0}, s{sT0}, 6")
e(f"s_and_b32 s{sT1}, s{sW}, 1")
e(f"s_add_u32 s{sT0}, s{sT0}, s{sT1}")
e(f"s_lshl_b32 s{sT0}, s{sT0}, 10")
e(f"s_add_u32 s{sHS}, s{sHS}, s{sT0}")
e(f"s_cmp_eq_u32 s{sW}, 0")
e(f"s_cselect_b32 s{sFLG}, s{sFLG}, {HREC}")
for i in range(48): e(f"v_mov_b32 v{vACC1+i}, 0")
e(f"s_mov_b32 s{sCNT}, 8")

SLOT = {0: (1, 0), 1: (1, 5120), 2: (1, 10240), 3: (2, 0), 4: (2, 5120), 5: (2, 10240), 6: (2, 15360),
        7: (1, 0), 8: (1, 5120), 9: (1, 10240), 10: (2, 0), 11: (2, 5120)}
def w2_ops(n):
    reg, off = SLOT[n]; sb = sM1 if reg == 1 else sM2
    def mk(i):
        def f():
            if i == 0:
                e(f"s_mul_i32 s{sWO}, s{sSIG+n}, 40")
                e(f"s_add_u32 m0, s{sb}, {off}")
                e(f"s_add_u32 s{sWO}, s{sWO}, s{sW2B}")
            if i == 4: e(f"s_add_u32 m0, s{sb}, {off+4096}"); e("s_nop 0")
            e(f"buffer_load_dwordx4 v{vW2+i}, {srd(sW2)}, s{sWO} offen offset:{(i%4)*1024} {opt['w2aux']} lds")
            VM.issue(f"w2_{n}")
        return f
    return [mk(i) for i in range(5)]
def w2_tr(n):
    reg, off = SLOT[n]; va = vTA1 if reg == 1 else vTA2
    VM.wait(f"w2_{n}")
    for j in range(5):
        for t in range(2):
            e(f"ds_read_b64_tr_b16 {ar(n*20+4*j+2*t, 2)}, v{va} offset:{off + t*2560 + j*32}")
            LG.issue(f"tr{n}")

def acc1(ii, q, a): return vACC1 + ((ii*3 + q)*2 + a)*4
def stage_body(fill, last=False):
    fill = list(fill)
    def rdB(ks, ii):
        e(f"ds_read_b128 {vr(vBF + (ks*2+ii)*4, 4)}, v{vCX+ks} offset:{ii*8192}"); LG.issue(f"B{ks}{ii}")
    def rdA(ks, q, a):
        for t in range(2):
            e(f"ds_read_b64_tr_b16 {vr(vAF + ks*24 + (q*2+a)*4 + 2*t, 2)}, v{vCA+a} offset:{ks*16384 + t*1536 + q*128}")
            LG.issue(f"A{ks}{q}{a}")
    rdB(0, 0); rdB(0, 1)
    for q in range(3):
        for a in range(2): rdA(0, q, a)
    for _ in range(2):
        if fill: fill.pop(0)()
    for ks in range(2):
        n = 0
        for q in range(3):
            for a in range(2):
                LG.wait(f"A{ks}{q}{a}")
                if last and ks == 1 and n == 5:
                    e("s_barrier")
                for ii in range(2):
                    e(f"v_mfma_f32_16x16x32_bf16 {vr(acc1(ii,q,a),4)}, {vr(vAF + ks*24 + (q*2+a)*4, 4)}, {vr(vBF + (ks*2+ii)*4, 4)}, {vr(acc1(ii,q,a),4)}")
                if ks == 0:
                    if n == 0: rdB(1, 0); rdB(1, 1)
                    rdA(1, q, a)
                if fill and (ks == 1 or n % 2 == 1): fill.pop(0)()
                n += 1
    while fill: fill.pop(0)()
def adv_rd():
    e(f"s_add_u32 s{sRD}, s{sRD}, 32768")
    e(f"s_cmp_ge_u32 s{sRD}, {SPARE}")
    e(f"s_cselect_b32 s{sRD}, 0, s{sRD}")
    for i in range(2):
        e(f"v_add_u32 v{vCA+i}, s{sRD}, v{vBA+i}"); e(f"v_add_u32 v{vCX+i}, s{sRD}, v{vBX+i}")

stamp()
e("L_p1:")
e("s_waitcnt vmcnt(8)")
e("s_barrier")
stage_offsets()
VM.q = ["a"]*8
stage_body(dma_ops("b"))
adv_m0(); adv_rd()
e(f"s_sub_u32 s{sCNT}, s{sCNT}, 1")
e(f"s_cmp_lg_u32 s{sCNT}, 0")
e("s_cbranch_scc1 L_p1")
VM.q = ["st8"]*8 + ["st9"]*8
PRE = opt["pre"]
VM.wait("st8"); e("s_barrier")
stage_body(w2_ops(0) if PRE >= 1 else [])
adv_rd()
VM.wait("st9"); e("s_barrier")
stamp()
fl = []
for n in range(1, PRE): fl += w2_ops(n)
stage_body(fl, last=True)
stamp()
e(f"s_mul_i32 s{sTAG}, s{sE}, 0x9E3779B1")
e(f"s_add_u32 s{sTAG}, s{sTAG}, 0x7F4A7C15")
e(f"s_mov_b32 s{sT1}, 0xbfb8aa3b")
e("s_nop 4")
blocks = [(ii, q) for q in range(3) for ii in range(2)]
for bi, (ii, q) in enumerate(blocks):
    a0 = acc1(ii, q, 0)
    tt = vS + (bi % 2) * 8
    pk = vAF + bi * 4
    for r in range(8): e(f"v_mul_f32 v{tt+r}, s{sT1}, v{a0+r}")
    for r in range(8): e(f"v_exp_f32 v{tt+r}, v{tt+r}")
    for r in range(8): e(f"v_add_f32 v{tt+r}, 1.0, v{tt+r}")
    for r in range(8): e(f"v_rcp_f32 v{tt+r}, v{tt+r}")
    for r in range(8): e(f"v_mul_f32 v{tt+r}, v{a0+r}, v{tt+r}")
    for r in range(4): e(f"v_cvt_pk_bf16_f32 v{pk+r}, v{tt+2*r}, v{tt+2*r+1}")
    e(f"s_add_u32 s{sT0}, s{sHS}, {ii*12288 + q*2048}")
    e(f"buffer_store_dwordx4 {vr(pk,4)}, v{vL16}, {srd(sH)}, s{sT0} offen sc1"); VM.issue("hst")
if opt["dup"]:
    for bi, (ii, q) in enumerate(blocks):
        pk = vAF + bi * 4
        e(f"s_add_u32 s{sT0}, s{sHS}, {ii*12288 + q*2048}")
        e(f"buffer_store_dwordx4 {vr(pk,4)}, v{vL16}, {srd(sH)}, s{sT0} offen"); VM.issue("hdup")
stamp()
for n in range(PRE, 7):
    for f in w2_ops(n): f()
for n in range(min(PRE, 3)): w2_tr(n)
if PRE >= 3:
    LG.drain()
    for n in range(7, 10):
        for f in w2_ops(n): f()
e(f"v_mov_b32 v{vT}, s{sTAG}")
VM.wait("hst")
e("s_barrier")
e("s_mov_b64 exec, 1")
e(f"buffer_store_dword v{vT}, off, {srd(sH)}, s{sFLG} sc1"); VM.issue("flag")
e("s_mov_b64 exec, -1")
stamp()
if PRE < 3:
    for n in range(PRE, 3): w2_tr(n)
    LG.drain()
    for n in range(7, 10):
        for f in w2_ops(n): f()
w2_tr(3); w2_tr(4); LG.drain()
def poll():
    e(f"buffer_load_dwordx2 {vr(vPOLL,2)}, off, {srd(sH)}, s{sPOL} sc1"); VM.issue("poll")
PP = opt["pollpos"]
for n in (10, 11):
    if PP == n: poll()
    for f in w2_ops(n): f()
if PP == 12: poll()
for n in range(5, 10): w2_tr(n)
if PP > 10: w2_tr(10)
if PP > 11: w2_tr(11)
VM.wait("poll")
stamp()
e(f"s_mov_b32 s{sSPIN}, 20000")
e("L_poll:")
e(f"v_readfirstlane_b32 s{sT0}, v{vPOLL}")
e(f"v_readfirstlane_b32 s{sT1}, v{vPOLL+1}")
e(f"s_cmp_eq_u32 s{sT0}, s{sTAG}")
e(f"s_cselect_b32 s{sT0}, s{sT1}, 0")
e(f"s_cselect_b32 s{sT1}, s{sTAG}, 1")
e(f"s_cmp_eq_u32 s{sT0}, s{sT1}")
e("s_cbranch_scc1 L_go")
e(f"s_sub_u32 s{sSPIN}, s{sSPIN}, 1")
e(f"s_cmp_eq_u32 s{sSPIN}, 0")
e("s_cbranch_scc1 L_go")
e(f"buffer_load_dwordx2 {vr(vPOLL,2)}, off, {srd(sH)}, s{sPOL} sc1")
e("s_waitcnt vmcnt(0)")
e("s_branch L_poll")
e("L_go:")
stamp()
for p in range(4):
    for n in range(12):
        e(f"buffer_load_dwordx4 {vr(vH + (p*12+n)*4, 4)}, v{vHB+p}, {srd(sH)}, s{sSIG+n} offen sc1"); VM.issue(f"h{p}_{n}")
if PP <= 10: w2_tr(10)
if PP <= 11: w2_tr(11)
LG.drain()
stamp()
for p in range(4):
    ac = vACC2 + (p % 2) * 20
    for n in range(12):
        VM.wait(f"h{p}_{n}")
        for j in range(5):
            c = "0" if n == 0 else vr(ac+4*j, 4)
            e(f"v_mfma_f32_16x16x32_bf16 {vr(ac+4*j,4)}, {ar(n*20+4*j,4)}, {vr(vH+(p*12+n)*4,4)}, {c}")
        if p > 0 and n == 1:
            pa = vACC2 + ((p-1) % 2) * 20
            for j in range(5):
                e(f"ds_write_b128 v{vRW}, {vr(pa+4*j,4)} offset:{(p-1)*5120 + j*1024}"); LG.issue("red")
        if p == 3 and n == 4:
            LG.drain(); e("s_barrier")
            for pp in range(3):
                for j in range(5):
                    e(f"ds_read_b128 {vr(vH + (pp*5+j)*4, 4)}, v{vRR+pp} offset:{j*1024}"); LG.issue("rr")
        if p == 3 and n == 8:
            LG.drain()
            for i in range(20): e(f"v_add_f32 v{vH+i}, v{vH+i}, v{vH+20+i}")
        if p == 3 and n == 9:
            for i in range(20): e(f"v_add_f32 v{vH+i}, v{vH+i}, v{vH+40+i}")
stamp()
ac = vACC2 + 20
e("s_nop 3")
for j in range(5):
    for r in range(4): e(f"v_add_f32 v{vH+4*j+r}, v{vH+4*j+r}, v{ac+4*j+r}")
pk = vH + 64
for j in range(5):
    for r in range(2): e(f"v_cvt_pk_bf16_f32 v{pk+2*j+r}, v{vH+4*j+2*r}, v{vH+4*j+2*r+1}")
e("s_nop 1")
for b in range(2):
    e(f"v_permlane32_swap_b32 v{pk+4*b}, v{pk+4*b+2}")
    e(f"v_permlane32_swap_b32 v{pk+4*b+1}, v{pk+4*b+3}")
for b in range(2):
    e(f"buffer_store_dwordx4 {vr(pk+4*b,4)}, v{vOUT}, {srd(sOUT)}, s{sOB} offen offset:{64*b} {opt['outaux']}")
e(f"buffer_store_dwordx2 {vr(pk+8,2)}, v{vOUT2}, {srd(sOUT)}, s{sOB} offen offset:128 {opt['outaux']}")
e(f"s_or_b32 s{sT0}, s{sW}, s{sFT}")
e(f"s_cmp_lg_u32 s{sT0}, 0")
e("s_cbranch_scc1 L_nobump")
e(f"s_add_u32 s{sE}, s{sE}, 1")
e(f"v_mov_b32 v{vT}, s{sE}")
e("s_mov_b64 exec, 1")
e(f"buffer_store_dword v{vT}, off, {srd(sH)}, s{sEPO}")
e("s_mov_b64 exec, -1")
e("L_nobump:")
if opt["stamps"]:
    e("s_waitcnt vmcnt(0)")
    stamp(); stamp(True)
    ns = NST[0]
    assert 72 + 2*ns <= 102
    e("s_waitcnt lgkmcnt(0)")
    e(f"s_cmp_lg_u32 s{sW}, {opt['stamps']-1}")
    e("s_cbranch_scc1 L_end")
    e("s_mov_b64 exec, 1")
    e(f"s_mul_i32 s{sT0}, s2, {ns*8}")
    e(f"s_add_u32 s{sT0}, s{sT0}, 0x8000000")
    e(f"v_mov_b32 v{vT}, s{sT0}")
    for i in range(ns):
        e(f"v_mov_b32 v24, s{72+2*i}"); e(f"v_mov_b32 v25, s{73+2*i}")
        e(f"global_store_dwordx2 v{vT}, v[24:25], s[12:13] offset:{i*8}"); e("s_nop 1")
    sys.stderr.write(f"nstamps {ns}\n")
e("L_end:")

hdr = f"""; FFN out = silu(x @ w1) @ w2, one launch, 256 workgroups (one per CU).
; @launch grid=(256,1,1) block=(256,1,1) lds=163840
.amdgcn_target "amdgcn-amd-amdhsa--gfx950"
.text
.globl {NAME}
.p2align 8
.type {NAME},@function
{NAME}:
"""
ftr = f"""s_endpgm
.section .rodata,"a"
.p2align 6
.amdhsa_kernel {NAME}
  .amdhsa_next_free_vgpr 512
  .amdhsa_next_free_sgpr 102
  .amdhsa_accum_offset 256
  .amdhsa_group_segment_fixed_size 0
  .amdhsa_kernarg_size 48
  .amdhsa_user_sgpr_count 2
  .amdhsa_user_sgpr_kernarg_segment_ptr 1
  .amdhsa_system_sgpr_workgroup_id_x 1
.end_amdhsa_kernel
"""
body = "\n".join(("" if l.endswith(":") else "    ") + l.rstrip() for l in O)
open(sys.argv[1], "w").write(hdr + body + "\n" + ftr)
```

```python
import sys
NAME = "standalone__dense_activation_silu__prompt_kernel"
opt = dict(stamps=0, rot=1, rot2=1, pf=1, outaux="", map=2, raux="nt", xaux="", w1aux="",
           sa=0, ma=5, sb=0, mb=10, mx=0, n8=8, n9=6, nb=2, post=8, pollq=8, hpre=8, sep=0)
for a in sys.argv[2:]:
    k, v = a.split("=")
    assert k in opt, k
    opt[k] = int(v) if v.lstrip("-").isdigit() else v.replace("_", " ")
O = []
def e(s): O.append(s)
NST = [0]
def stamp(rt=False):
    if not opt["stamps"]: return
    i = NST[0]; NST[0] += 1
    e(f"s_memrealtime s[{72+2*i}:{73+2*i}]" if rt else f"s_memtime s[{72+2*i}:{73+2*i}]")

class Q:
    def __init__(s, name, mx): s.name = name; s.mx = mx; s.q = []
    def issue(s, tag): s.q.append(tag)
    def wait(s, tag):
        if tag not in s.q: return
        i = len(s.q) - 1 - s.q[::-1].index(tag)
        n = min(len(s.q) - 1 - i, s.mx)
        e(f"s_waitcnt {s.name}({n})")
        s.q = s.q[len(s.q)-n:] if n else []
    def drain(s):
        e(f"s_waitcnt {s.name}(0)"); s.q = []
VM = Q("vmcnt", 63); LG = Q("lgkmcnt", 15)

FL = 0x600000; EP = 0x608000; RFL = 0x610000; W2F = 0x620000; HREC = 0x800000
RED = 98304; RB = 98304; CNT = 159744
sX, sW1, sW2, sOUT, sH = 16, 20, 24, 28, 32
(sW, sMT, sFT, sKX, sKW, sXB, sWB, sXE, sM0, sT0, sT1, sE, sTAG, sHS, sHS2, sFLG, sPOL, sW2B, sOWN, sROT,
 sRS, sRD, sWO, sL2E) = range(36, 60)
sSIG = 60
sOB = 3; sRFL = 14; sSPIN = 15
vL16 = 1; vL16b = 2; vOUT = 3; vOUT2 = 4; vRW = 5; vRP = 6; vHS = 7
vPOLL = 8
vRR = 10
vHB = 13
vT = 17
vCN = 20; vONE = 21
vDX = 24; vDW = 26; vDR = 32
vA = 34; vB = 36
vRA = 44
vTM = 46
vACC1 = 64; vAF = 112; vBF = 160; vS = 176; vRF = 192
vH = 64; vACC2 = 24
def srd(r): return f"s[{r}:{r+3}]"
def vr(r, n): return f"v[{r}:{r+n-1}]"
def ar(r, n): return f"a[{r}:{r+n-1}]"
def capture(fn):
    global O
    sv = O; O = []; fn(); r = O; O = sv; return r

e("s_cmp_ge_u32 s2, 256")
e("s_cbranch_scc1 L_end")
stamp(True); stamp()
e("s_load_dwordx8 s[4:11], s[0:1], 0")
e("s_load_dwordx2 s[12:13], s[0:1], 40")
L, Wv = vTM, vTM+1
t0, t1, t2, t3 = vTM+2, vTM+3, vTM+4, vTM+5
e(f"v_and_b32 v{L}, 63, v0")
e(f"v_lshrrev_b32 v{Wv}, 6, v0")
e(f"v_lshlrev_b32 v{vL16}, 4, v{L}")
e(f"v_readfirstlane_b32 s{sW}, v{Wv}")
if opt["pf"]:
    e("s_getpc_b64 s[14:15]")
    e("L_pc:")
    e(f"s_lshr_b32 s{sT0}, s2, 3")
    e(f"s_and_b32 s{sT0}, s{sT0}, 3")
    e(f"s_lshl_b32 s{sT0}, s{sT0}, 12")
    e(f"v_lshl_add_u32 v{t0}, v0, 4, s{sT0}")
    e(f"v_min_u32 v{t0}, L_end-L_pc-16, v{t0}")
    e(f"global_load_dwordx4 v[252:255], v{t0}, s[14:15]")
    VM.issue("pf")
fa = opt["map"]
e(f"s_and_b32 s{sT0}, s2, 7")
e(f"s_lshr_b32 s{sT1}, s2, 3")
e(f"s_and_b32 s{sFT}, s{sT1}, {(1<<fa)-1}")
e(f"s_lshr_b32 s{sMT}, s{sT1}, {fa}")
if opt["rot"]:
    e(f"s_lshr_b32 s{sKX}, s{sMT}, {opt['sa']}")
    e(f"s_mul_i32 s{sKX}, s{sKX}, {opt['ma']}")
    e(f"s_lshr_b32 s{sT1}, s{sFT}, {opt['sb']}")
    e(f"s_mul_i32 s{sT1}, s{sT1}, {opt['mb']}")
    e(f"s_add_u32 s{sKX}, s{sKX}, s{sT1}")
    if opt['mx']:
        e(f"s_mul_i32 s{sT1}, s{sT0}, {opt['mx']}")
        e(f"s_add_u32 s{sKX}, s{sKX}, s{sT1}")
    e(f"s_lshr_b32 s{sKX}, s{sKX}, 2")
    e(f"s_mul_i32 s{sT1}, s{sKX}, 205")
    e(f"s_lshr_b32 s{sT1}, s{sT1}, 11")
    e(f"s_mul_i32 s{sT1}, s{sT1}, 10")
    e(f"s_sub_u32 s{sKX}, s{sKX}, s{sT1}")
else:
    e(f"s_mov_b32 s{sKX}, 0")
if opt["rot2"]:
    e(f"s_mul_i32 s{sROT}, s{sMT}, 12")
    e(f"s_lshr_b32 s{sROT}, s{sROT}, {5-fa}")
else:
    e(f"s_mov_b32 s{sROT}, 0")
e(f"s_and_b32 s{sT1}, s{sT0}, {(8>>fa)-1}")
e(f"s_lshl_b32 s{sT1}, s{sT1}, {fa}")
e(f"s_add_u32 s{sFT}, s{sFT}, s{sT1}")
e(f"s_lshr_b32 s{sT1}, s{sT0}, {3-fa}")
e(f"s_lshl_b32 s{sT1}, s{sT1}, {5-fa}")
e(f"s_add_u32 s{sMT}, s{sMT}, s{sT1}")
e(f"s_mul_i32 s{sXB}, s{sMT}, 81920")
e(f"s_mul_i32 s{sWB}, s{sFT}, 384")
e(f"s_add_u32 s{sXE}, s{sXB}, 1280")
e(f"s_mul_i32 s{sKW}, s{sKX}, {64*3072}")
e(f"s_add_u32 s{sKW}, s{sKW}, s{sWB}")
e(f"s_lshl_b32 s{sKX}, s{sKX}, 7")
e(f"s_add_u32 s{sKX}, s{sKX}, s{sXB}")
e(f"s_and_b32 s{sT0}, s2, 63")
e(f"s_mul_i32 s{sT1}, s{sT0}, 205")
e(f"s_lshr_b32 s{sT1}, s{sT1}, 10")
e(f"s_mul_i32 s{sRS}, s{sT1}, 5")
e(f"s_sub_u32 s{sRS}, s{sT0}, s{sRS}")
e(f"s_lshr_b32 s{sRD}, s2, 6")
e(f"s_mul_i32 s{sRD}, s{sRD}, 12")
e(f"s_add_u32 s{sT1}, s{sT1}, s{sRD}")
e(f"s_mul_i32 s{sT1}, s{sT1}, 40960")
e(f"s_lshl_b32 s{sRD}, s{sRS}, 13")
e(f"s_add_u32 s{sRD}, s{sRD}, s{sT1}")
e(f"s_lshl_b32 s{sRS}, s{sRS}, 8")
e(f"s_add_u32 s{sRS}, s{sRS}, s{sT1}")
e(f"s_lshl_b32 s{sT1}, s{sW}, 11")
e(f"s_add_u32 s{sRD}, s{sRD}, s{sT1}")
e(f"s_add_u32 s{sRD}, s{sRD}, {W2F}")
e(f"s_cmp_lt_u32 s{sT0}, 60")
e(f"s_cselect_b32 s{sRS}, s{sRS}, 1966080")
e(f"s_cselect_b32 s{sRD}, s{sRD}, {HREC}")
G = vTM+6
e(f"v_lshrrev_b32 v{G}, 4, v{L}")
e(f"v_lshl_add_u32 v{t0}, v{Wv}, 3, v{G}")
e(f"v_mul_u32_u24 v{t0}, 1280, v{t0}")
e(f"v_and_b32 v{t1}, 15, v{L}")
e(f"v_lshlrev_b32 v{t2}, 1, v{G}")
e(f"v_xor_b32 v{t1}, v{t1}, v{t2}")
e(f"v_lshl_add_u32 v{vDR}, v{t1}, 4, v{t0}")
e(f"v_xor_b32 v{t1}, 8, v{t1}")
e(f"v_lshl_add_u32 v{vDR+1}, v{t1}, 4, v{t0}")
e(f"v_add_u32 v{vDR+1}, {4*1280-1024}, v{vDR+1}")
e(f"v_lshrrev_b32 v{t0}, 3, v{L}")
e(f"v_lshl_add_u32 v{t0}, v{Wv}, 4, v{t0}")
e(f"v_mul_u32_u24 v{t0}, 1280, v{t0}")
e(f"v_and_b32 v{t1}, 7, v{L}")
e(f"v_xor_b32 v{t1}, v{t1}, v{G}")
e(f"v_lshl_add_u32 v{vDX}, v{t1}, 4, v{t0}")
e(f"v_xor_b32 v{t1}, 4, v{t1}")
e(f"v_lshl_add_u32 v{vDX+1}, v{t1}, 4, v{t0}")
e(f"v_add_u32 v{vDX+1}, {8*1280-1024}, v{vDX+1}")
e(f"v_mul_u32_u24 v{t3}, {16*3072}, v{Wv}")
for i in range(3):
    if i: e(f"v_add_u32 v{t0}, {64*i}, v{L}")
    src = t0 if i else L
    e(f"v_mul_u32_u24 v{t1}, 2731, v{src}")
    e(f"v_lshrrev_b32 v{t1}, 16, v{t1}")
    e(f"v_mul_u32_u24 v{t2}, 24, v{t1}")
    e(f"v_sub_u32 v{t0}, v{src}, v{t2}")
    e(f"v_and_b32 v{t2}, 2, v{t1}")
    e(f"v_lshlrev_b32 v{t2}, 1, v{t2}")
    e(f"v_xor_b32 v{t0}, v{t0}, v{t2}")
    e(f"v_mul_u32_u24 v{t1}, 3072, v{t1}")
    e(f"v_lshl_add_u32 v{t0}, v{t0}, 4, v{t1}")
    e(f"v_add_u32 v{t0}, v{t0}, v{t3}")
    if i: e(f"v_subrev_u32 v{vDW+i}, {i*1024}, v{t0}")
    else: e(f"v_mov_b32 v{vDW}, v{t0}")
    e(f"v_add_u32 v{vDW+3+i}, {8*3072 - ((i+3)%4)*1024}, v{t0}")
e(f"s_lshl_b32 s{sM0}, s{sW}, 13")
e(f"s_mov_b32 s{sSPIN}, {EP}")
e(f"s_lshl_b32 s{sT0}, s{sW}, 11")
e(f"s_add_u32 m0, s{sT0}, {RB}")
for r, n in ((sX, 2621440), (sW1, 1966080), (sW2, 1966080), (sOUT, 2621440), (sH, HREC)):
    e(f"s_mov_b32 s{r+2}, {n}"); e(f"s_mov_b32 s{r+3}, 0x20000")
e("s_waitcnt lgkmcnt(0)")
for r, p in ((sW2, 8), (sX, 4), (sW1, 6), (sOUT, 10), (sH, 12)):
    e(f"s_mov_b64 s[{r}:{r+1}], s[{p}:{p+1}]")
stamp()
for i in range(2):
    e(f"buffer_load_dwordx4 v{vDR+i}, {srd(sW2)}, s{sRS} offen offset:{i*1024} {opt['raux']} lds"); VM.issue("rld")
e(f"s_load_dword s{sE}, s[12:13], s{sSPIN}")

def adv_k():
    e(f"s_add_u32 s{sKX}, s{sKX}, 128")
    e(f"s_add_u32 s{sKW}, s{sKW}, {64*3072}")
    e(f"s_cmp_eq_u32 s{sKX}, s{sXE}")
    e(f"s_cselect_b32 s{sKX}, s{sXB}, s{sKX}")
    e(f"s_cselect_b32 s{sKW}, s{sWB}, s{sKW}")
def dma_ops(st):
    base = (st % 3) * 32768
    def mk(i):
        def f():
            if i == 0: e(f"s_add_u32 m0, s{sM0}, {base+6144}"); e("s_nop 0")
            if i < 2:
                e(f"buffer_load_dwordx4 v{vDX+i}, {srd(sX)}, s{sKX} offen offset:{i*1024} {opt['xaux']} lds")
            else:
                j = i - 2
                e(f"buffer_load_dwordx4 v{vDW+j}, {srd(sW1)}, s{sKW} offen offset:{(j%4)*1024} {opt['w1aux']} lds")
            VM.issue(f"st{st}")
            if i == 1: e(f"s_add_u32 m0, s{sM0}, {base}"); e("s_nop 0")
            if i == 5: e(f"s_add_u32 m0, s{sM0}, {base+4096}"); e("s_nop 0")
            if i == 7 and st < 9: adv_k()
        return f
    return [mk(i) for i in range(8)]

def setup2():
    R, C = t0, t1
    u0, u1, u2 = vTM+7, vTM+8, vTM+9
    e(f"v_bfe_u32 v{R}, v{L}, 2, 2")
    e(f"v_and_b32 v{C}, 3, v{L}")
    e(f"v_lshrrev_b32 v{u0}, 1, v{G}")
    e(f"v_lshl_add_u32 v{u0}, v{u0}, 3, v{R}")
    e(f"v_mul_u32_u24 v{u0}, 384, v{u0}")
    e(f"v_lshrrev_b32 v{u1}, 1, v{R}")
    e(f"v_xor_b32 v{u1}, v{u1}, v{Wv}")
    e(f"v_and_b32 v{u1}, 1, v{u1}")
    e(f"v_lshl_add_u32 v{u0}, v{u1}, 6, v{u0}")
    e(f"v_and_b32 v{u1}, 1, v{G}")
    e(f"v_lshl_add_u32 v{u0}, v{u1}, 5, v{u0}")
    e(f"v_lshl_add_u32 v{vA}, v{C}, 3, v{u0}")
    e(f"v_add_u32 v{vA+1}, 65536, v{vA}")
    e(f"v_and_b32 v{u0}, 2, v{Wv}")
    e(f"v_add_u32 v{u0}, v{u0}, v{u1}")
    e(f"v_lshlrev_b32 v{u0}, 13, v{u0}")
    e(f"v_and_b32 v{u2}, 15, v{L}")
    e(f"v_lshl_add_u32 v{u0}, v{u2}, 7, v{u0}")
    e(f"v_add_u32 v{u0}, 6144, v{u0}")
    e(f"v_lshrrev_b32 v{u1}, 1, v{u2}")
    e(f"v_lshrrev_b32 v{t2}, 5, v{L}")
    e(f"v_xor_b32 v{u1}, v{u1}, v{t2}")
    e(f"v_lshl_add_u32 v{vB}, v{u1}, 4, v{u0}")
    for k in range(1, 4): e(f"v_xor_b32 v{vB+k}, {32*k}, v{vB}")
    for k in range(4): e(f"v_add_u32 v{vB+4+k}, 65536, v{vB+k}")
    e(f"v_and_b32 v{u1}, 1, v{G}")
    e(f"v_lshl_add_u32 v{u1}, v{u1}, 2, v{R}")
    e(f"v_lshlrev_b32 v{u0}, 12, v{t2}")
    e(f"v_lshl_add_u32 v{u0}, v{u1}, 8, v{u0}")
    e(f"v_lshlrev_b32 v{t3}, 1, v{Wv}")
    e(f"v_xor_b32 v{u1}, v{u1}, v{t3}")
    e(f"v_lshl_add_u32 v{u0}, v{u1}, 5, v{u0}")
    e(f"v_and_b32 v{u1}, 1, v{C}")
    e(f"v_lshl_add_u32 v{u0}, v{u1}, 4, v{u0}")
    e(f"v_lshrrev_b32 v{u1}, 1, v{C}")
    e(f"v_lshl_add_u32 v{u0}, v{u1}, 3, v{u0}")
    e(f"v_add_u32 v{vRA}, {RB}, v{u0}")
    e(f"v_xor_b32 v{vRA+1}, 32, v{vRA}")
    e(f"v_mov_b32 v{vCN}, {CNT}")
    e(f"v_mov_b32 v{vONE}, 0")
    e(f"ds_write_b32 v{vCN}, v{vONE}"); LG.issue("cnt")
    for i in range(48): e(f"v_mov_b32 v{vACC1+i}, 0")
    e(f"v_mov_b32 v{vONE}, 1")
    e(f"v_and_b32 v{u1}, 1, v{G}")
    e(f"v_mul_u32_u24 v{u0}, 12288, v{u1}")
    e(f"v_lshl_add_u32 v{u0}, v{t2}, 8, v{u0}")
    e(f"v_lshl_add_u32 v{vHS}, v{u2}, 4, v{u0}")
    e(f"v_mul_u32_u24 v{u0}, 1280, v{u2}")
    e(f"v_lshl_add_u32 v{vOUT}, v{G}, 4, v{u0}")
    e(f"v_lshl_add_u32 v{u0}, v{u1}, 4, v{u0}")
    e(f"v_lshl_add_u32 v{vOUT2}, v{t2}, 3, v{u0}")
    e(f"v_add_u32 v{vL16b}, 4096, v{vL16}")
    e(f"v_lshlrev_b32 v{vRP}, 2, v0")
    e(f"s_mul_i32 s{sT0}, s{sW}, 15360")
    e(f"s_add_u32 s{sT0}, s{sT0}, {RED}")
    e(f"v_add_u32 v{vRW}, s{sT0}, v{vL16}")
    for p in range(3):
        e(f"s_sub_u32 s{sT0}, s{sW}, {1+p}")
        e(f"s_and_b32 s{sT0}, s{sT0}, 3")
        e(f"s_mul_i32 s{sT0}, s{sT0}, 15360")
        e(f"s_add_u32 s{sT0}, s{sT0}, {RED + p*5120}")
        e(f"v_add_u32 v{vRR+p}, s{sT0}, v{vL16}")
    e(f"s_mul_i32 s{sW2B}, s{sW}, {12*40960}")
    e(f"s_mul_i32 s{sT0}, s{sFT}, 5120")
    e(f"s_add_u32 s{sW2B}, s{sW2B}, s{sT0}")
    e(f"s_add_u32 s{sW2B}, s{sW2B}, {W2F}")
    for n in range(12):
        e(f"s_lshl_b32 s{sSIG+n}, s{sROT}, 10")
        if n < 11:
            e(f"s_add_u32 s{sROT}, s{sROT}, 1")
            e(f"s_cmp_ge_u32 s{sROT}, 12")
            e(f"s_cselect_b32 s{sROT}, 0, s{sROT}")
    e(f"s_add_u32 s{sOWN}, s{sW}, s{sFT}")
    e(f"s_and_b32 s{sOWN}, s{sOWN}, 3")
    e(f"s_lshl_b32 s{sT1}, s{sMT}, 2")
    e(f"s_add_u32 s{sT1}, s{sT1}, s{sW}")
    e(f"s_lshl_b32 s{sPOL}, s{sT1}, 7")
    e(f"s_add_u32 s{sPOL}, s{sPOL}, {FL}")
    e(f"s_lshl_b32 s{sT1}, s{sT1}, 2")
    for p in range(4):
        e(f"s_add_u32 s{sT0}, s{sOWN}, {1+p}")
        e(f"s_and_b32 s{sT0}, s{sT0}, 3")
        e(f"s_add_u32 s{sT0}, s{sT0}, s{sT1}")
        e(f"s_mul_i32 s{sT0}, s{sT0}, 12288")
        e(f"v_add_u32 v{vHB+p}, s{sT0}, v{vL16}")
    e(f"s_lshl_b32 s{sOB}, s{sMT}, 2")
    e(f"s_add_u32 s{sOB}, s{sOB}, s{sOWN}")
    e(f"s_mul_i32 s{sOB}, s{sOB}, {16*1280}")
    e(f"s_mul_i32 s{sT0}, s{sFT}, 160")
    e(f"s_add_u32 s{sOB}, s{sOB}, s{sT0}")
    e(f"s_lshl_b32 s{sT0}, s{sMT}, 2")
    e(f"s_lshr_b32 s{sT1}, s{sFT}, 1")
    e(f"s_add_u32 s{sT0}, s{sT0}, s{sT1}")
    e(f"s_lshl_b32 s{sFLG}, s{sT0}, 7")
    e(f"s_lshl_b32 s{sT0}, s{sT0}, 2")
    e(f"s_and_b32 s{sT1}, s{sW}, 2")
    e(f"s_add_u32 s{sT0}, s{sT0}, s{sT1}")
    e(f"s_mul_i32 s{sHS}, s{sT0}, 12288")
    e(f"s_and_b32 s{sT0}, s{sFT}, 1")
    e(f"s_lshl_b32 s{sT1}, s{sT0}, 2")
    e(f"s_add_u32 s{sFLG}, s{sFLG}, s{sT1}")
    e(f"s_add_u32 s{sFLG}, s{sFLG}, {FL}")
    e(f"s_mul_i32 s{sT0}, s{sT0}, 6")
    e(f"s_and_b32 s{sT1}, s{sW}, 1")
    e(f"s_add_u32 s{sT0}, s{sT0}, s{sT1}")
    e(f"s_lshl_b32 s{sT0}, s{sT0}, 10")
    e(f"s_add_u32 s{sHS}, s{sHS}, s{sT0}")
    e(f"s_add_u32 s{sHS2}, s{sHS}, 4096")
    e(f"s_lshl_b32 s{sRFL}, s2, 2")
    e(f"s_add_u32 s{sRFL}, s{sRFL}, {RFL}")
    e(f"s_mov_b32 s{sL2E}, 0xbfb8aa3b")
S2 = capture(setup2)
groups = []
for l in S2:
    if l.startswith("s_cselect") or (groups and groups[-1][-1].startswith("s_cmp")): groups[-1].append(l)
    else: groups.append([l])
first = dma_ops(0) + dma_ops(1)
NF0 = 4
for f in first[:NF0]: f()
rest = first[NF0:]
per = (len(groups) + len(rest) - 1) // len(rest)
head = len(groups) // 2
for g in groups[:head]: O.extend(g)
groups = groups[head:]
per = (len(groups) + len(rest) - 1) // len(rest)
for f in rest:
    f()
    for g in groups[:per]: O.extend(g)
    groups = groups[per:]
assert not groups
stamp()

def w2_ops():
    ops = []
    for n in range(12):
        for j in range(5):
            def f(n=n, j=j):
                if j == 0:
                    e(f"s_mul_i32 s{sWO}, s{sSIG+n}, 40")
                    e(f"s_add_u32 s{sWO}, s{sWO}, s{sW2B}")
                va = vL16 if j < 4 else vL16b
                e(f"buffer_load_dwordx4 {ar(n*20+4*j, 4)}, v{va}, {srd(sH)}, s{sWO} offen offset:{(j%4)*1024} sc1")
                VM.issue("w2")
            ops.append(f)
    return ops
W2L = w2_ops()
def take(n):
    r = W2L[:n]; del W2L[:n]; return r

def rd_ops(st, half):
    slot = st % 3
    sb = (slot % 2) * 32768 if slot < 2 else 0
    hi = 1 if slot == 2 else 0
    ops = []
    for kk in range(2):
        ks = 2*half + kk
        def b(ks=ks, kk=kk):
            e(f"ds_read_b128 {vr(vBF + (half*2+kk)*4, 4)}, v{vB + 4*hi + ks} offset:{sb}"); LG.issue(f"B{ks}")
        ops.append(b)
        for q in range(3):
            for t in range(2):
                def a(ks=ks, kk=kk, q=q, t=t):
                    e(f"ds_read_b64_tr_b16 {vr(vAF + half*24 + (kk*3+q)*4 + 2*t, 2)}, v{vA+hi} offset:{sb + ks*8192 + t*1536 + q*128}")
                    LG.issue(f"A{ks}{q}")
                ops.append(a)
    return ops
def mfma1(half, kk, q):
    ks = 2*half + kk
    LG.wait(f"A{ks}{q}")
    e(f"v_mfma_f32_32x32x16_bf16 {vr(vACC1+16*q,16)}, {vr(vAF + half*24 + (kk*3+q)*4, 4)}, {vr(vBF + (half*2+kk)*4, 4)}, {vr(vACC1+16*q,16)}")
def half_body(mf_half, rds, fill):
    rds = list(rds); fill = list(fill)
    for i in range(6):
        if mf_half is not None: mfma1(mf_half, i // 3, i % 3)
        left = 6 - i
        for _ in range((len(rds) + left - 1) // left if i else min(len(rds), 4)):
            if rds: rds.pop(0)()
        for _ in range((len(fill) + left - 1) // left):
            if fill: fill.pop(0)()
    assert not rds and not fill

def r_reads():
    for ee in range(2):
        for t in range(2):
            e(f"ds_read_b64_tr_b16 {vr(vRF + 4*ee + 2*t, 2)}, v{vRA+ee} offset:{t*2048}"); LG.issue("rrd")
def r_stores():
    LG.wait("rrd")
    for ee in range(2):
        e(f"buffer_store_dwordx4 {vr(vRF+4*ee,4)}, v{vL16}, {srd(sH)}, s{sRD} offen offset:{ee*1024} sc1"); VM.issue("rst")
def flag_store(off, label):
    e(f"v_mov_b32 v{vT}, s{sTAG}")
    e("s_mov_b64 exec, 1")
    e(f"buffer_store_dword v{vT}, off, {srd(sH)}, s{off} sc1")
    e("s_mov_b64 exec, -1")
    e(f"{label}:")
def r_poll():
    e(f"s_mov_b32 s{sT0}, {RFL}")
    e(f"buffer_load_dword v{vPOLL}, v{vRP}, {srd(sH)}, s{sT0} offen sc1"); VM.issue("rpoll")

for st in range(10):
    VM.wait(f"st{st}")
    if st == 2: VM.wait("rst")
    if st == 8: VM.wait("rpoll")
    LG.drain()
    e("s_barrier")
    if st == 9: stamp()
    if st == 2:
        e(f"s_mul_i32 s{sTAG}, s{sE}, 0x9E3779B1")
        e(f"s_add_u32 s{sTAG}, s{sTAG}, 0x7F4A7C15")
        e(f"s_cmp_lg_u32 s{sW}, 0")
        e("s_cbranch_scc1 L_norf")
        flag_store(sRFL, "L_norf")
    if st == 8:
        e(f"s_mov_b32 s{sSPIN}, 20000")
        e("L_rpoll:")
        e(f"v_cmp_ne_u32 vcc, s{sTAG}, v{vPOLL}")
        e("s_cmp_eq_u64 vcc, 0")
        e("s_cbranch_scc1 L_rgo")
        e(f"s_sub_u32 s{sSPIN}, s{sSPIN}, 1")
        e(f"s_cmp_eq_u32 s{sSPIN}, 0")
        e("s_cbranch_scc1 L_rgo")
        e(f"s_mov_b32 s{sT0}, {RFL}")
        e(f"buffer_load_dword v{vPOLL}, v{vRP}, {srd(sH)}, s{sT0} offen sc1")
        e("s_waitcnt vmcnt(0)")
        e("s_branch L_rpoll")
        e("L_rgo:")
    if st < 8: fill = dma_ops(st + 2)
    else: fill = take(opt["n8"] if st == 8 else opt["n9"])
    if st == 7: fill = [r_poll] + fill
    h = (len(fill) + 1) // 2
    f0, f1 = fill[:h], fill[h:]
    if st == 0:
        f0 = [r_reads] + f0; f1 = [r_stores] + f1
    half_body(1 if st else None, rd_ops(st, 0), f0)
    half_body(0, rd_ops(st, 1), f1)
stamp()
def silu_block(q, g2):
    a0 = vACC1 + 16*q + 8*g2
    bi = 2*q + g2
    tt = vS + (bi % 2) * 8
    pk = vRF + bi * 4
    ops = []
    for r in range(8): ops.append(f"v_mul_f32 v{tt+r}, s{sL2E}, v{a0+r}")
    for r in range(8): ops.append(f"v_exp_f32 v{tt+r}, v{tt+r}")
    for r in range(8): ops.append(f"v_add_f32 v{tt+r}, 1.0, v{tt+r}")
    for r in range(8): ops.append(f"v_rcp_f32 v{tt+r}, v{tt+r}")
    for r in range(8): ops.append(f"v_mul_f32 v{tt+r}, v{a0+r}, v{tt+r}")
    for r in range(4): ops.append(f"v_cvt_pk_bf16_f32 v{pk+r}, v{tt+2*r}, v{tt+2*r+1}")
    fill = take(opt["nb"])
    step = len(ops) // (len(fill) + 1) if fill else 0
    for i, l in enumerate(ops):
        e(l)
        if fill and step and (i + 1) % step == 0: fill.pop(0)()
    for f in fill: f()
    so = sHS if q < 2 else sHS2
    e(f"buffer_store_dwordx4 {vr(pk,4)}, v{vHS}, {srd(sH)}, s{so} offen offset:{g2*512 + (q%2)*2048} sc1"); VM.issue("hst")
for q in range(3):
    for kk in range(2): mfma1(1, kk, q)
e("s_nop 7")
for q in range(3):
    for g2 in range(2): silu_block(q, g2)
stamp()
for f in take(opt["post"]): f()
VM.wait("hst")
e("s_mov_b64 exec, 1")
e(f"ds_add_rtn_u32 v{vT+1}, v{vCN}, v{vONE}")
e("s_mov_b64 exec, -1")
for f in take(2): f()
e("s_waitcnt lgkmcnt(0)")
e(f"v_readfirstlane_b32 s{sT0}, v{vT+1}")
e(f"s_cmp_lg_u32 s{sT0}, 3")
e("s_cbranch_scc1 L_nohf")
flag_store(sFLG, "L_nohf")
stamp()
for f in take(max(0, len(W2L) - opt["pollq"])): f()
e(f"buffer_load_dwordx2 {vr(vPOLL,2)}, off, {srd(sH)}, s{sPOL} sc1"); VM.issue("poll")
for f in take(len(W2L)): f()
VM.wait("poll")
stamp()
e(f"s_mov_b32 s{sSPIN}, 20000")
e("L_poll:")
e(f"v_readfirstlane_b32 s{sT0}, v{vPOLL}")
e(f"v_readfirstlane_b32 s{sT1}, v{vPOLL+1}")
e(f"s_cmp_eq_u32 s{sT0}, s{sTAG}")
e(f"s_cselect_b32 s{sT0}, s{sT1}, 0")
e(f"s_cselect_b32 s{sT1}, s{sTAG}, 1")
e(f"s_cmp_eq_u32 s{sT0}, s{sT1}")
e("s_cbranch_scc1 L_go")
e(f"s_sub_u32 s{sSPIN}, s{sSPIN}, 1")
e(f"s_cmp_eq_u32 s{sSPIN}, 0")
e("s_cbranch_scc1 L_go")
e(f"buffer_load_dwordx2 {vr(vPOLL,2)}, off, {srd(sH)}, s{sPOL} sc1")
e("s_waitcnt vmcnt(0)")
e("s_branch L_poll")
e("L_go:")
stamp()
HL = [(p, n) for p in range(4) for n in range(12)]
def hload():
    if HL:
        p, n = HL.pop(0)
        e(f"buffer_load_dwordx4 {vr(vH + (p*12+n)*4, 4)}, v{vHB+p}, {srd(sH)}, s{sSIG+n} offen sc1"); VM.issue(f"h{p}_{n}")
for _ in range(opt["hpre"]): hload()
stamp()
for p in range(4):
    ac = vACC2 + (p % 2) * 20
    for n in range(12):
        VM.wait(f"h{p}_{n}")
        for j in range(5):
            c = "0" if n == 0 else vr(ac+4*j, 4)
            e(f"v_mfma_f32_16x16x32_bf16 {vr(ac+4*j,4)}, {ar(n*20+4*j,4)}, {vr(vH+(p*12+n)*4,4)}, {c}")
            if j == 1: hload()
            if p > 0 and n >= 2 and n < 7 and j == 3:
                pa = vACC2 + ((p-1) % 2) * 20; jj = n - 2
                e(f"ds_write_b128 v{vRW}, {vr(pa+4*jj,4)} offset:{(p-1)*5120 + jj*1024}"); LG.issue("red")
        if p == 3 and n == 7:
            LG.drain(); e("s_barrier")
            for pp in range(3):
                for j in range(5):
                    e(f"ds_read_b128 {vr(vH + (pp*5+j)*4, 4)}, v{vRR+pp} offset:{j*1024}"); LG.issue("rr")
        if p == 3 and n == 9:
            LG.drain()
            for i in range(20): e(f"v_add_f32 v{vH+i}, v{vH+i}, v{vH+20+i}")
        if p == 3 and n == 10:
            for i in range(20): e(f"v_add_f32 v{vH+i}, v{vH+i}, v{vH+40+i}")
stamp()
ac = vACC2 + 20
e("s_nop 3")
for j in range(5):
    for r in range(4): e(f"v_add_f32 v{vH+4*j+r}, v{vH+4*j+r}, v{ac+4*j+r}")
pk = vH + 64
for j in range(5):
    for r in range(2): e(f"v_cvt_pk_bf16_f32 v{pk+2*j+r}, v{vH+4*j+2*r}, v{vH+4*j+2*r+1}")
e("s_nop 1")
for b in range(2):
    e(f"v_permlane32_swap_b32 v{pk+4*b}, v{pk+4*b+2}")
    e(f"v_permlane32_swap_b32 v{pk+4*b+1}, v{pk+4*b+3}")
for b in range(2):
    e(f"buffer_store_dwordx4 {vr(pk+4*b,4)}, v{vOUT}, {srd(sOUT)}, s{sOB} offen offset:{64*b} {opt['outaux']}")
e(f"buffer_store_dwordx2 {vr(pk+8,2)}, v{vOUT2}, {srd(sOUT)}, s{sOB} offen offset:128 {opt['outaux']}")
e(f"s_or_b32 s{sT0}, s{sW}, s2")
e(f"s_cmp_lg_u32 s{sT0}, 0")
e("s_cbranch_scc1 L_nobump")
e(f"s_add_u32 s{sE}, s{sE}, 1")
e(f"v_mov_b32 v{vT}, s{sE}")
e(f"s_mov_b32 s{sT0}, {EP}")
e("s_mov_b64 exec, 1")
e(f"buffer_store_dword v{vT}, off, {srd(sH)}, s{sT0}")
e("s_mov_b64 exec, -1")
e("L_nobump:")
if opt["stamps"]:
    e("s_waitcnt vmcnt(0)")
    stamp(); stamp(True)
    ns = NST[0]
    assert 72 + 2*ns <= 102
    e("s_waitcnt lgkmcnt(0)")
    e(f"s_cmp_lg_u32 s{sW}, {opt['stamps']-1}")
    e("s_cbranch_scc1 L_end")
    e("s_mov_b64 exec, 1")
    e(f"s_mul_i32 s{sT0}, s2, {ns*8}")
    e(f"s_add_u32 s{sT0}, s{sT0}, 0x8000000")
    e(f"v_mov_b32 v{vT}, s{sT0}")
    for i in range(ns):
        e(f"v_mov_b32 v24, s{72+2*i}"); e(f"v_mov_b32 v25, s{73+2*i}")
        e(f"global_store_dwordx2 v{vT}, v[24:25], s[12:13] offset:{i*8}"); e("s_nop 1")
    sys.stderr.write(f"nstamps {ns}\n")
e("L_end:")

hdr = f"""; FFN out = silu(x @ w1) @ w2, one launch, 256 workgroups (one per CU).
; @launch grid=(256,1,1) block=(256,1,1) lds=163840
.amdgcn_target "amdgcn-amd-amdhsa--gfx950"
.text
.globl {NAME}
.p2align 8
.type {NAME},@function
{NAME}:
"""
ftr = f"""s_endpgm
.section .rodata,"a"
.p2align 6
.amdhsa_kernel {NAME}
  .amdhsa_next_free_vgpr 512
  .amdhsa_next_free_sgpr 102
  .amdhsa_accum_offset 256
  .amdhsa_group_segment_fixed_size 0
  .amdhsa_kernarg_size 48
  .amdhsa_user_sgpr_count 2
  .amdhsa_user_sgpr_kernarg_segment_ptr 1
  .amdhsa_system_sgpr_workgroup_id_x 1
.end_amdhsa_kernel
"""
body = "\n".join(("" if l.endswith(":") else "    ") + l.rstrip() for l in O)
open(sys.argv[1], "w").write(hdr + body + "\n" + ftr)
```

```python
import sys
NAME = "standalone__dense_activation_silu__prompt_kernel"
opt = dict(stamps=0, rot=1, rot2=1, pf=1, outaux="", map=2, raux="", xaux="", w1aux="",
           sa=0, ma=10, sb=0, mb=10, mx=0, n8=8, n9=8, nb=0, post=0, pollq=8, hpre=8, sep=0, sts=0, rpos=0, rls=0, rjs=2, rpp=0, rps=7, rck=0, nopoll=0, rfs=4, sl=0, head=50, nf0=4, pre3=0, rt=0, own2=1, ntst=10, mid=2, xlin=0, nor=0)
for a in sys.argv[2:]:
    k, v = a.split("=")
    assert k in opt, k
    opt[k] = int(v) if v.lstrip("-").isdigit() else v.replace("_", " ")
O = []
def e(s): O.append(s)
NST = [0]
def stamp(rt=False, k=0):
    if not opt["stamps"]: return
    if not rt and NST[0] > 1 and k != opt["sts"] and k != -1: return
    i = NST[0]; NST[0] += 1
    e(f"s_memrealtime s[{72+2*i}:{73+2*i}]" if rt or opt["rt"] else f"s_memtime s[{72+2*i}:{73+2*i}]")

class Q:
    def __init__(s, name, mx): s.name = name; s.mx = mx; s.q = []
    def issue(s, tag): s.q.append(tag)
    def wait(s, tag):
        if tag not in s.q: return
        i = len(s.q) - 1 - s.q[::-1].index(tag)
        n = min(len(s.q) - 1 - i, s.mx)
        e(f"s_waitcnt {s.name}({n})")
        s.q = s.q[len(s.q)-n:] if n else []
    def drain(s):
        e(f"s_waitcnt {s.name}(0)"); s.q = []
VM = Q("vmcnt", 63); LG = Q("lgkmcnt", 15)

FL = 0x600000; EP = 0x608000; RFL = 0x610000; W2F = 0x620000; HREC = 0x800000
RED = 98304; RB = 98304; CNT = 159744
sX, sW1, sW2, sOUT, sH = 16, 20, 24, 28, 32
(sW, sMT, sFT, sKX, sKW, sXB, sWB, sXE, sM0, sT0, sT1, sE, sTAG, sHS, sHS2, sFLG, sPOL, sW2B, sOWN, sROT,
 sRS, sRD, sWO, sL2E) = range(36, 60)
sSIG = 60
sOB = 3; sRFL = 14; sSPIN = 15
vL16 = 1; vL16b = 2; vOUT = 3; vOUT2 = 4; vRW = 5; vRP = 6; vHS = 7
vPOLL = 8; vL4 = 9; vPA = 19
vRR = 10
vHB = 13
vT = 17
vCN = 20; vONE = 21; vAV = 22; vAC = 23
vDX = 24; vDW = 26; vDR = 32
vA = 34; vB = 36
vRA = 44
vTM = 46
vACC1 = 64; vAF = 112; vBF = 160; vS = 176; vRF = 192
vH = 64; vACC2 = 24
def srd(r): return f"s[{r}:{r+3}]"
def vr(r, n): return f"v[{r}:{r+n-1}]"
def ar(r, n): return f"a[{r}:{r+n-1}]"
def capture(fn):
    global O
    sv = O; O = []; fn(); r = O; O = sv; return r

e("s_cmp_ge_u32 s2, 256")
e("s_cbranch_scc1 L_end")
stamp(True); stamp()
e("s_load_dwordx8 s[4:11], s[0:1], 0")
e("s_load_dwordx2 s[12:13], s[0:1], 40")
L, Wv = vTM, vTM+1
t0, t1, t2, t3 = vTM+2, vTM+3, vTM+4, vTM+5
e(f"v_and_b32 v{L}, 63, v0")
e(f"v_lshrrev_b32 v{Wv}, 6, v0")
e(f"v_lshlrev_b32 v{vL16}, 4, v{L}")
e(f"v_readfirstlane_b32 s{sW}, v{Wv}")
if opt["pf"]:
    e("s_getpc_b64 s[14:15]")
    e("L_pc:")
    e(f"s_lshr_b32 s{sT0}, s2, 3")
    e(f"s_and_b32 s{sT0}, s{sT0}, 3")
    e(f"s_lshl_b32 s{sT0}, s{sT0}, 12")
    e(f"v_lshl_add_u32 v{t0}, v0, 4, s{sT0}")
    e(f"v_min_u32 v{t0}, L_end-L_pc-16, v{t0}")
    e(f"global_load_dwordx4 v[252:255], v{t0}, s[14:15]")
    VM.issue("pf")
fa = opt["map"]
e(f"s_and_b32 s{sT0}, s2, 7")
e(f"s_lshr_b32 s{sT1}, s2, 3")
e(f"s_and_b32 s{sFT}, s{sT1}, {(1<<fa)-1}")
e(f"s_lshr_b32 s{sMT}, s{sT1}, {fa}")
if opt["rot"]:
    e(f"s_lshr_b32 s{sKX}, s{sMT}, {opt['sa']}")
    e(f"s_mul_i32 s{sKX}, s{sKX}, {opt['ma']}")
    e(f"s_lshr_b32 s{sT1}, s{sFT}, {opt['sb']}")
    e(f"s_mul_i32 s{sT1}, s{sT1}, {opt['mb']}")
    e(f"s_add_u32 s{sKX}, s{sKX}, s{sT1}")
    if opt['mx']:
        e(f"s_mul_i32 s{sT1}, s{sT0}, {opt['mx']}")
        e(f"s_add_u32 s{sKX}, s{sKX}, s{sT1}")
    e(f"s_lshr_b32 s{sKX}, s{sKX}, 2")
    e(f"s_mul_i32 s{sT1}, s{sKX}, 205")
    e(f"s_lshr_b32 s{sT1}, s{sT1}, 11")
    e(f"s_mul_i32 s{sT1}, s{sT1}, 10")
    e(f"s_sub_u32 s{sKX}, s{sKX}, s{sT1}")
else:
    e(f"s_mov_b32 s{sKX}, 0")
if opt["rot2"] == 2:
    e(f"s_and_b32 s{sROT}, s{sMT}, 3")
    e(f"s_mul_i32 s{sROT}, s{sROT}, 3")
elif opt["rot2"]:
    e(f"s_mul_i32 s{sROT}, s{sMT}, 12")
    e(f"s_lshr_b32 s{sROT}, s{sROT}, {5-fa}")
else:
    e(f"s_mov_b32 s{sROT}, 0")
e(f"s_and_b32 s{sT1}, s{sT0}, {(8>>fa)-1}")
e(f"s_lshl_b32 s{sT1}, s{sT1}, {fa}")
e(f"s_add_u32 s{sFT}, s{sFT}, s{sT1}")
e(f"s_lshr_b32 s{sT1}, s{sT0}, {3-fa}")
e(f"s_lshl_b32 s{sT1}, s{sT1}, {5-fa}")
e(f"s_add_u32 s{sMT}, s{sMT}, s{sT1}")
e(f"s_mul_i32 s{sXB}, s{sMT}, 81920")
e(f"s_mul_i32 s{sWB}, s{sFT}, 384")
e(f"s_add_u32 s{sXE}, s{sXB}, 1280")
e(f"s_mul_i32 s{sKW}, s{sKX}, {64*3072}")
e(f"s_add_u32 s{sKW}, s{sKW}, s{sWB}")
e(f"s_lshl_b32 s{sKX}, s{sKX}, 7")
e(f"s_add_u32 s{sKX}, s{sKX}, s{sXB}")
G = vTM+6
e(f"v_lshrrev_b32 v{G}, 4, v{L}")
e(f"v_lshrrev_b32 v{t0}, 3, v{L}")
e(f"v_lshl_add_u32 v{t0}, v{Wv}, 4, v{t0}")
e(f"v_mul_u32_u24 v{t0}, 1280, v{t0}")
e(f"v_and_b32 v{t1}, 7, v{L}")
e(f"v_xor_b32 v{t1}, v{t1}, v{G}")
e(f"v_lshl_add_u32 v{vDX}, v{t1}, 4, v{t0}")
e(f"v_xor_b32 v{t1}, 4, v{t1}")
e(f"v_lshl_add_u32 v{vDX+1}, v{t1}, 4, v{t0}")
e(f"v_add_u32 v{vDX+1}, {8*1280-1024}, v{vDX+1}")
if opt["xlin"]:
    e(f"v_lshl_add_u32 v{vDX}, v{Wv}, 11, v{vL16}")
    e(f"v_mov_b32 v{vDX+1}, v{vDX}")
    e(f"s_and_b32 s{sT0}, s{sFT}, 3")
    e(f"s_mul_i32 s{sT0}, s{sT0}, {opt['xlin']}")
    e(f"s_lshr_b32 s{sT0}, s{sT0}, 2")
    e(f"s_lshl_b32 s100, s{sT0}, 13")
    e(f"s_add_u32 s100, s100, s{sXB}")
    e(f"s_add_u32 s101, s{sXB}, 81920")
e(f"v_mul_u32_u24 v{t3}, {16*3072}, v{Wv}")
for i in range(3):
    if i: e(f"v_add_u32 v{t0}, {64*i}, v{L}")
    src = t0 if i else L
    e(f"v_mul_u32_u24 v{t1}, 2731, v{src}")
    e(f"v_lshrrev_b32 v{t1}, 16, v{t1}")
    e(f"v_mul_u32_u24 v{t2}, 24, v{t1}")
    e(f"v_sub_u32 v{t0}, v{src}, v{t2}")
    e(f"v_and_b32 v{t2}, 2, v{t1}")
    e(f"v_lshlrev_b32 v{t2}, 1, v{t2}")
    e(f"v_xor_b32 v{t0}, v{t0}, v{t2}")
    e(f"v_mul_u32_u24 v{t1}, 3072, v{t1}")
    e(f"v_lshl_add_u32 v{t0}, v{t0}, 4, v{t1}")
    e(f"v_add_u32 v{t0}, v{t0}, v{t3}")
    if i: e(f"v_subrev_u32 v{vDW+i}, {i*1024}, v{t0}")
    else: e(f"v_mov_b32 v{vDW}, v{t0}")
    e(f"v_add_u32 v{vDW+3+i}, {8*3072 - ((i+3)%4)*1024}, v{t0}")
e(f"s_lshl_b32 s{sM0}, s{sW}, 13")
e(f"s_mov_b32 s{sSPIN}, {EP}")
for r, n in ((sX, 2621440), (sW1, 1966080), (sW2, 1966080), (sOUT, 2621440), (sH, HREC)):
    e(f"s_mov_b32 s{r+2}, {n}"); e(f"s_mov_b32 s{r+3}, 0x20000")
e("s_waitcnt lgkmcnt(0)")
for r, p in ((sW2, 8), (sX, 4), (sW1, 6), (sOUT, 10), (sH, 12)):
    e(f"s_mov_b64 s[{r}:{r+1}], s[{p}:{p+1}]")
stamp()
e(f"s_load_dword s{sE}, s[12:13], s{sSPIN}")

def adv_k():
    if opt["xlin"]:
        e(f"s_add_u32 s100, s100, 8192")
        e(f"s_cmp_eq_u32 s100, s101")
        e(f"s_cselect_b32 s100, s{sXB}, s100")
    e(f"s_add_u32 s{sKX}, s{sKX}, 128")
    e(f"s_add_u32 s{sKW}, s{sKW}, {64*3072}")
    e(f"s_cmp_eq_u32 s{sKX}, s{sXE}")
    e(f"s_cselect_b32 s{sKX}, s{sXB}, s{sKX}")
    e(f"s_cselect_b32 s{sKW}, s{sWB}, s{sKW}")
def dma_ops(st):
    base = (st % 3) * 32768
    def mk(i):
        def f():
            if i == 0: e(f"s_add_u32 m0, s{sM0}, {base+6144}"); e("s_nop 0")
            if i < 2:
                e(f"buffer_load_dwordx4 v{vDX+i}, {srd(sX)}, s{100 if opt['xlin'] else sKX} offen offset:{i*1024} {opt['xaux'] if st < opt['ntst'] else ''} lds")
            else:
                j = i - 2
                e(f"buffer_load_dwordx4 v{vDW+j}, {srd(sW1)}, s{sKW} offen offset:{(j%4)*1024} {opt['w1aux'] if st < opt['ntst'] else ''} lds")
            VM.issue(f"st{st}")
            if i == 1: e(f"s_add_u32 m0, s{sM0}, {base}"); e("s_nop 0")
            if i == 5: e(f"s_add_u32 m0, s{sM0}, {base+4096}"); e("s_nop 0")
            if i == 7 and st < 9: adv_k()
        return f
    return [mk(i) for i in range(8)]

def setup2():
    R, C = t0, t1
    u0, u1, u2 = vTM+7, vTM+8, vTM+9
    e(f"s_and_b32 s{sT0}, s2, 63")
    e(f"s_mul_i32 s{sT1}, s{sT0}, 205")
    e(f"s_lshr_b32 s{sT1}, s{sT1}, 10")
    e(f"s_mul_i32 s{sRS}, s{sT1}, 5")
    e(f"s_sub_u32 s{sRS}, s{sT0}, s{sRS}")
    e(f"s_lshr_b32 s{sRD}, s2, 6")
    e(f"s_mul_i32 s{sRFL}, s{sRD}, 5")
    e(f"s_add_u32 s{sRFL}, s{sRFL}, s{sRS}")
    e(f"s_lshl_b32 s{sRFL}, s{sRFL}, 4")
    e(f"s_add_u32 s{sRFL}, s{sRFL}, s{sT1}")
    e(f"s_lshl_b32 s{sRFL}, s{sRFL}, 7")
    e(f"s_mul_i32 s{sRD}, s{sRD}, 12")
    e(f"s_add_u32 s{sT1}, s{sT1}, s{sRD}")
    e(f"s_mul_i32 s{sT1}, s{sT1}, 40960")
    e(f"s_lshl_b32 s{sRD}, s{sRS}, 13")
    e(f"s_add_u32 s{sRD}, s{sRD}, s{sT1}")
    e(f"s_lshl_b32 s{sRS}, s{sRS}, 8")
    e(f"s_add_u32 s{sRS}, s{sRS}, s{sT1}")
    e(f"s_lshl_b32 s{sT1}, s{sW}, 11")
    e(f"s_add_u32 s{sRD}, s{sRD}, s{sT1}")
    e(f"s_add_u32 s{sRD}, s{sRD}, {W2F}")
    e(f"s_cmp_lt_u32 s{sT0}, {0 if opt['nor'] else 60}")
    e(f"s_cselect_b32 s{sRS}, s{sRS}, 1966080")
    e(f"s_cselect_b32 s{sRD}, s{sRD}, {HREC}")
    e(f"v_lshl_add_u32 v{t0}, v{Wv}, 3, v{G}")
    e(f"v_mul_u32_u24 v{t0}, 1280, v{t0}")
    e(f"v_and_b32 v{t1}, 15, v{L}")
    e(f"v_lshlrev_b32 v{t2}, 1, v{G}")
    e(f"v_xor_b32 v{t1}, v{t1}, v{t2}")
    e(f"v_lshl_add_u32 v{vDR}, v{t1}, 4, v{t0}")
    e(f"v_xor_b32 v{t1}, 8, v{t1}")
    e(f"v_lshl_add_u32 v{vDR+1}, v{t1}, 4, v{t0}")
    e(f"v_add_u32 v{vDR+1}, {4*1280-1024}, v{vDR+1}")
    e(f"v_bfe_u32 v{R}, v{L}, 2, 2")
    e(f"v_and_b32 v{C}, 3, v{L}")
    e(f"v_lshrrev_b32 v{u0}, 1, v{G}")
    e(f"v_lshl_add_u32 v{u0}, v{u0}, 3, v{R}")
    e(f"v_mul_u32_u24 v{u0}, 384, v{u0}")
    e(f"v_lshrrev_b32 v{u1}, 1, v{R}")
    e(f"v_xor_b32 v{u1}, v{u1}, v{Wv}")
    e(f"v_and_b32 v{u1}, 1, v{u1}")
    e(f"v_lshl_add_u32 v{u0}, v{u1}, 6, v{u0}")
    e(f"v_and_b32 v{u1}, 1, v{G}")
    e(f"v_lshl_add_u32 v{u0}, v{u1}, 5, v{u0}")
    e(f"v_lshl_add_u32 v{vA}, v{C}, 3, v{u0}")
    e(f"v_add_u32 v{vA+1}, 65536, v{vA}")
    e(f"v_and_b32 v{u0}, 2, v{Wv}")
    e(f"v_add_u32 v{u0}, v{u0}, v{u1}")
    e(f"v_lshlrev_b32 v{u0}, 13, v{u0}")
    e(f"v_and_b32 v{u2}, 15, v{L}")
    e(f"v_lshl_add_u32 v{u0}, v{u2}, 7, v{u0}")
    e(f"v_add_u32 v{u0}, 6144, v{u0}")
    e(f"v_lshrrev_b32 v{u1}, 1, v{u2}")
    e(f"v_lshrrev_b32 v{t2}, 5, v{L}")
    e(f"v_xor_b32 v{u1}, v{u1}, v{t2}")
    e(f"v_lshl_add_u32 v{vB}, v{u1}, 4, v{u0}")
    for k in range(1, 4): e(f"v_xor_b32 v{vB+k}, {32*k}, v{vB}")
    for k in range(4): e(f"v_add_u32 v{vB+4+k}, 65536, v{vB+k}")
    e(f"v_and_b32 v{u1}, 1, v{G}")
    e(f"v_lshl_add_u32 v{u1}, v{u1}, 2, v{R}")
    e(f"v_lshlrev_b32 v{u0}, 12, v{t2}")
    e(f"v_lshl_add_u32 v{u0}, v{u1}, 8, v{u0}")
    e(f"v_lshlrev_b32 v{t3}, 1, v{Wv}")
    e(f"v_xor_b32 v{u1}, v{u1}, v{t3}")
    e(f"v_lshl_add_u32 v{u0}, v{u1}, 5, v{u0}")
    e(f"v_and_b32 v{u1}, 1, v{C}")
    e(f"v_lshl_add_u32 v{u0}, v{u1}, 4, v{u0}")
    e(f"v_lshrrev_b32 v{u1}, 1, v{C}")
    e(f"v_lshl_add_u32 v{u0}, v{u1}, 3, v{u0}")
    e(f"v_add_u32 v{vRA}, {RB}, v{u0}")
    e(f"v_xor_b32 v{vRA+1}, 32, v{vRA}")
    e(f"v_mov_b32 v{vCN}, {CNT}")
    e(f"v_mov_b32 v{vONE}, 0")
    e(f"ds_write_b32 v{vCN}, v{vONE}"); LG.issue("cnt")
    for i in range(48): e(f"v_mov_b32 v{vACC1+i}, 0")
    e(f"v_mov_b32 v{vONE}, 1")
    e(f"v_and_b32 v{u1}, 1, v{G}")
    e(f"v_mul_u32_u24 v{u0}, 12288, v{u1}")
    e(f"v_lshl_add_u32 v{u0}, v{t2}, 8, v{u0}")
    e(f"v_lshl_add_u32 v{vHS}, v{u2}, 4, v{u0}")
    e(f"v_mul_u32_u24 v{u0}, 1280, v{u2}")
    e(f"v_lshl_add_u32 v{vOUT}, v{G}, 4, v{u0}")
    e(f"v_lshl_add_u32 v{u0}, v{u1}, 4, v{u0}")
    e(f"v_lshl_add_u32 v{vOUT2}, v{t2}, 3, v{u0}")
    e(f"v_add_u32 v{vL16b}, 4096, v{vL16}")
    e(f"s_mul_i32 s{sT0}, s{sFT}, 5")
    e(f"v_lshl_add_u32 v{u0}, v{u1}, 2, s{sT0}")
    e(f"v_lshrrev_b32 v{u0}, 3, v{u0}")
    e(f"v_mad_u32_u24 v{u0}, v{Wv}, 5, v{u0}")
    e(f"v_min_u32 v{vRP}, 11, v{u2}")
    e(f"v_lshlrev_b32 v{vRP}, 7, v{vRP}")
    e(f"v_lshl_add_u32 v{vRP}, v{u0}, 11, v{vRP}")
    e(f"v_lshlrev_b32 v{vL4}, 2, v{L}")
    e(f"v_lshlrev_b32 v{vPA}, 7, v{u1}")
    e(f"v_mul_u32_u24 v{u0}, 205, v{L}")
    e(f"v_lshrrev_b32 v{u0}, 10, v{u0}")
    e(f"v_sub_u32 v{vAC}, v{Wv}, v{u0}")
    e(f"v_mad_i32_i24 v{vAC}, v{vAC}, 5, v{L}")
    e(f"v_lshlrev_b32 v{vAC}, 11, v{vAC}")
    e(f"v_lshl_add_u32 v{vAC}, v{u0}, 7, v{vAC}")
    e(f"s_mul_i32 s{sT0}, s{sW}, 15360")
    e(f"s_add_u32 s{sT0}, s{sT0}, {RED}")
    e(f"v_add_u32 v{vRW}, s{sT0}, v{vL16}")
    for p in range(3):
        e(f"s_sub_u32 s{sT0}, s{sW}, {1+p}")
        e(f"s_and_b32 s{sT0}, s{sT0}, 3")
        e(f"s_mul_i32 s{sT0}, s{sT0}, 15360")
        e(f"s_add_u32 s{sT0}, s{sT0}, {RED + p*5120}")
        e(f"v_add_u32 v{vRR+p}, s{sT0}, v{vL16}")
    e(f"s_mul_i32 s{sW2B}, s{sW}, {12*40960}")
    e(f"s_mul_i32 s{sT0}, s{sFT}, 5120")
    e(f"s_add_u32 s{sW2B}, s{sW2B}, s{sT0}")
    e(f"s_add_u32 s{sW2B}, s{sW2B}, {W2F}")
    for n in range(12):
        e(f"s_lshl_b32 s{sSIG+n}, s{sROT}, 10")
        if n < 11:
            e(f"s_add_u32 s{sROT}, s{sROT}, 1")
            e(f"s_cmp_ge_u32 s{sROT}, 12")
            e(f"s_cselect_b32 s{sROT}, 0, s{sROT}")
    if opt["own2"]:
        e(f"s_lshl_b32 s{sOWN}, s{sFT}, 1")
        e(f"s_add_u32 s{sOWN}, s{sW}, s{sOWN}")
    else: e(f"s_add_u32 s{sOWN}, s{sW}, s{sFT}")
    e(f"s_and_b32 s{sOWN}, s{sOWN}, 3")
    e(f"s_lshl_b32 s{sT1}, s{sMT}, 2")
    e(f"s_add_u32 s{sT1}, s{sT1}, s{sW}")
    e(f"s_lshl_b32 s{sPOL}, s{sT1}, 8")
    e(f"s_add_u32 s{sPOL}, s{sPOL}, {FL}")
    e(f"s_lshl_b32 s{sT1}, s{sT1}, 2")
    for p in range(4):
        e(f"s_add_u32 s{sT0}, s{sOWN}, {1+p}")
        e(f"s_and_b32 s{sT0}, s{sT0}, 3")
        e(f"s_add_u32 s{sT0}, s{sT0}, s{sT1}")
        e(f"s_mul_i32 s{sT0}, s{sT0}, 12288")
        e(f"v_add_u32 v{vHB+p}, s{sT0}, v{vL16}")
    e(f"s_lshl_b32 s{sOB}, s{sMT}, 2")
    e(f"s_add_u32 s{sOB}, s{sOB}, s{sOWN}")
    e(f"s_mul_i32 s{sOB}, s{sOB}, {16*1280}")
    e(f"s_mul_i32 s{sT0}, s{sFT}, 160")
    e(f"s_add_u32 s{sOB}, s{sOB}, s{sT0}")
    e(f"s_lshl_b32 s{sT0}, s{sMT}, 2")
    e(f"s_lshr_b32 s{sT1}, s{sFT}, 1")
    e(f"s_add_u32 s{sT0}, s{sT0}, s{sT1}")
    e(f"s_lshl_b32 s{sFLG}, s{sT0}, 8")
    e(f"s_lshl_b32 s{sT0}, s{sT0}, 2")
    e(f"s_and_b32 s{sT1}, s{sW}, 2")
    e(f"s_add_u32 s{sT0}, s{sT0}, s{sT1}")
    e(f"s_mul_i32 s{sHS}, s{sT0}, 12288")
    e(f"s_and_b32 s{sT0}, s{sFT}, 1")
    e(f"s_lshl_b32 s{sT1}, s{sT0}, 7")
    e(f"s_add_u32 s{sFLG}, s{sFLG}, s{sT1}")
    e(f"s_add_u32 s{sFLG}, s{sFLG}, {FL}")
    e(f"s_mul_i32 s{sT0}, s{sT0}, 6")
    e(f"s_and_b32 s{sT1}, s{sW}, 1")
    e(f"s_add_u32 s{sT0}, s{sT0}, s{sT1}")
    e(f"s_lshl_b32 s{sT0}, s{sT0}, 10")
    e(f"s_add_u32 s{sHS}, s{sHS}, s{sT0}")
    e(f"s_add_u32 s{sHS2}, s{sHS}, 4096")
    e(f"s_add_u32 s{sRFL}, s{sRFL}, {RFL}")
    e(f"s_cmp_eq_u32 s{sW}, 0")
    e(f"s_cselect_b32 s{sRFL}, s{sRFL}, {HREC}")
    e(f"s_mov_b32 s{sL2E}, 0xbfb8aa3b")
def r_loads():
    e(f"s_lshr_b32 m0, s{sM0}, 2")
    e(f"s_add_u32 m0, m0, {RB}")
    e("s_nop 0")
    for i in range(2):
        e(f"buffer_load_dwordx4 v{vDR+i}, {srd(sW2)}, s{sRS} offen offset:{i*1024} {opt['raux']} lds"); VM.issue("rld")
def r_reads():
    for ee in range(2):
        for t in range(2):
            e(f"ds_read_b64_tr_b16 {vr(vRF + 4*ee + 2*t, 2)}, v{vRA+ee} offset:{t*2048}"); LG.issue("rrd")
def r_stores():
    LG.wait("rrd")
    for ee in range(2):
        e(f"buffer_store_dwordx4 {vr(vRF+4*ee,4)}, v{vL16}, {srd(sH)}, s{sRD} offen offset:{ee*1024} sc1"); VM.issue("rst")
S2 = capture(setup2)
groups = []
for l in S2:
    if l.startswith("s_cselect") or (groups and groups[-1][-1].startswith("s_cmp")): groups[-1].append(l)
    else: groups.append([l])
first = dma_ops(0) + dma_ops(1) + (dma_ops(2) if opt["pre3"] else [])
if opt["rls"] < 0: first.append(r_loads)
NF0 = opt["nf0"]
for f in first[:NF0]: f()
rest = first[NF0:]
per = (len(groups) + len(rest) - 1) // len(rest)
head = len(groups) * opt["head"] // 100
for g in groups[:head]: O.extend(g)
groups = groups[head:]
per = (len(groups) + len(rest) - 1) // len(rest)
for f in rest:
    f()
    for g in groups[:per]: O.extend(g)
    groups = groups[per:]
assert not groups
stamp()

def w2_ops():
    ops = []
    for n in range(12):
        for j in range(5):
            def f(n=n, j=j):
                if j == 0:
                    e(f"s_mul_i32 s{sWO}, s{sSIG+n}, 40")
                    e(f"s_add_u32 s{sWO}, s{sWO}, s{sW2B}")
                va = vL16 if j < 4 else vL16b
                e(f"buffer_load_dwordx4 {ar(n*20+4*j, 4)}, v{va}, {srd(sH)}, s{sWO} offen offset:{(j%4)*1024} sc1")
                VM.issue("w2")
            ops.append(f)
    return ops
W2L = w2_ops()
def take(n):
    r = W2L[:n]; del W2L[:n]; return r

def rd_ops(st, half):
    slot = st % 3
    sb = (slot % 2) * 32768 if slot < 2 else 0
    hi = 1 if slot == 2 else 0
    ops = []
    for kk in range(2):
        ks = 2*half + kk
        def b(ks=ks, kk=kk):
            e(f"ds_read_b128 {vr(vBF + (half*2+kk)*4, 4)}, v{vB + 4*hi + ks} offset:{sb}"); LG.issue(f"B{ks}")
        ops.append(b)
        for q in range(3):
            for t in range(2):
                def a(ks=ks, kk=kk, q=q, t=t):
                    e(f"ds_read_b64_tr_b16 {vr(vAF + half*24 + (kk*3+q)*4 + 2*t, 2)}, v{vA+hi} offset:{sb + ks*8192 + t*1536 + q*128}")
                    LG.issue(f"A{ks}{q}")
                ops.append(a)
    return ops
def mfma1(half, kk, q):
    ks = 2*half + kk
    LG.wait(f"A{ks}{q}")
    e(f"v_mfma_f32_32x32x16_bf16 {vr(vACC1+16*q,16)}, {vr(vAF + half*24 + (kk*3+q)*4, 4)}, {vr(vBF + (half*2+kk)*4, 4)}, {vr(vACC1+16*q,16)}")
def half_body(mf_half, rds, fill):
    rds = list(rds); fill = list(fill)
    for i in range(6):
        if mf_half is not None: mfma1(mf_half, i // 3, i % 3)
        left = 6 - i
        for _ in range((len(rds) + left - 1) // left if i else min(len(rds), 4)):
            if rds: rds.pop(0)()
        for _ in range((len(fill) + left - 1) // left):
            if fill: fill.pop(0)()
    assert not rds and not fill

def flag_store(off):
    e(f"v_mov_b32 v{vT}, s{sTAG}")
    e("s_mov_b32 exec_hi, 0")
    e(f"buffer_store_dword v{vT}, v{vL4}, {srd(sH)}, s{off} offen sc1"); VM.issue("flag")
    e("s_mov_b32 exec_hi, -1")
def r_poll():
    e(f"s_mov_b32 s{sT0}, {RFL}")
    e(f"buffer_load_dword v{vPOLL}, v{vRP}, {srd(sH)}, s{sT0} offen sc1"); VM.issue("rpoll")

def spin_check(lab, vv, va, tag, so=None, fake=False):
    VM.wait(tag)
    e(f"s_mov_b32 s{sSPIN}, 20000")
    e(f"L_{lab}:")
    e(f"v_cmp_ne_u32 vcc, s{sTAG}, v{vv}")
    e("s_cmp_eq_u64 vcc, 0" if not fake else "s_cmp_eq_u32 s2, s2")
    e(f"s_cbranch_scc1 L_{lab}_go")
    e(f"s_sub_u32 s{sSPIN}, s{sSPIN}, 1")
    e(f"s_cmp_eq_u32 s{sSPIN}, 0")
    e(f"s_cbranch_scc1 L_{lab}_go")
    if so is None: e(f"s_mov_b32 s{sT0}, {RFL}")
    e(f"buffer_load_dword v{vv}, v{va}, {srd(sH)}, s{sT0 if so is None else so} offen sc1")
    e("s_waitcnt vmcnt(0)")
    e(f"s_branch L_{lab}")
    e(f"L_{lab}_go:")
def r_check(): spin_check("rp", vPOLL, vRP, "rpoll")

for st in range(10):
    VM.wait(f"st{st}")
    if st == opt["rjs"]: VM.wait("rld")
    if st == opt["rfs"]: VM.wait("rst")
    LG.drain()
    e("s_barrier")
    if st == 9: stamp()
    stamp(k=1)
    if st >= 8: stamp(k=4)
    if st == opt["rfs"]:
        e(f"s_mul_i32 s{sTAG}, s{sE}, 0x9E3779B1")
        e(f"s_add_u32 s{sTAG}, s{sTAG}, 0x7F4A7C15")
        flag_store(sRFL)
    if (st == 8 and opt["rck"] == 0) or (st == 9 and opt["rck"] == 2): r_check()
    if st == 0 and opt["pre3"]: fill = []
    elif st < 8: fill = dma_ops(st + 2)
    else: fill = take(opt["n8"] if st == 8 else opt["n9"])
    if st == opt["rls"]: fill = [r_loads] + fill if opt["rpos"] == 0 else fill + [r_loads]
    if st == opt["rjs"]: fill = [r_reads] + fill + [r_stores]
    if st == opt["rps"]: fill.insert(opt["rpp"], r_poll)
    h = (len(fill) + 1) // 2
    f0, f1 = fill[:h], fill[h:]
    if st == 8 and opt["rck"] == 1:
        k = 1 if opt["rps"] == 8 else 0
        f0, f1 = fill[:k], [r_check] + fill[k:]
    half_body(1 if st else None, rd_ops(st, 0), f0)
    half_body(0, rd_ops(st, 1), f1)
stamp()
PEND = []
def silu_block(q, g2):
    a0 = vACC1 + 16*q + 8*g2
    bi = 2*q + g2
    tt = vS + (bi % 2) * 8
    pk = vRF + bi * 4
    ops = []
    for r in range(8): ops.append(f"v_mul_f32 v{tt+r}, s{sL2E}, v{a0+r}")
    for r in range(8): ops.append(f"v_exp_f32 v{tt+r}, v{tt+r}")
    for r in range(8): ops.append(f"v_add_f32 v{tt+r}, 1.0, v{tt+r}")
    for r in range(8): ops.append(f"v_rcp_f32 v{tt+r}, v{tt+r}")
    for r in range(8): ops.append(f"v_mul_f32 v{tt+r}, v{a0+r}, v{tt+r}")
    for r in range(4): ops.append(f"v_cvt_pk_bf16_f32 v{pk+r}, v{tt+2*r}, v{tt+2*r+1}")
    nbs = str(opt["nb"]).lstrip("x")
    fill = take(int(nbs[bi] if len(nbs) > 1 else nbs))
    step = len(ops) // (len(fill) + 1) if fill else 0
    for i, l in enumerate(ops):
        e(l)
        if fill and step and (i + 1) % step == 0: fill.pop(0)()
    for f in fill: f()
    so = sHS if q < 2 else sHS2
    def st_():
        e(f"buffer_store_dwordx4 {vr(pk,4)}, v{vHS}, {srd(sH)}, s{so} offen offset:{g2*512 + (q%2)*2048} sc1"); VM.issue("hst")
    PEND.append(st_)
    if bi >= opt["sl"]:
        while PEND: PEND.pop(0)()
for q in range(3):
    for kk in range(2): mfma1(1, kk, q)
e("s_nop 7")
stamp(k=4)
if opt["sts"] == 4: VM.drain(); stamp(k=4)
for q in range(3):
    for g2 in range(2): silu_block(q, g2)
stamp(); stamp(k=4)
for f in take(opt["post"]): f()
VM.wait("hst")
stamp(k=4)
if opt["sts"] == 4: VM.drain(); stamp(k=4)
e("s_mov_b64 exec, 1")
e(f"ds_add_rtn_u32 v{vT+1}, v{vCN}, v{vONE}")
e("s_mov_b64 exec, -1")
for f in take(opt["mid"]): f()
e("s_waitcnt lgkmcnt(0)")
e(f"v_readfirstlane_b32 s{sT0}, v{vT+1}")
e(f"s_cmp_eq_u32 s{sT0}, {3 if opt['nopoll'] < 2 else 9}")
e(f"s_cselect_b32 s{sFLG}, s{sFLG}, {HREC}")
if opt["nopoll"] == 3: e(f"s_mov_b32 s{sPOL}, {HREC}")
flag_store(sFLG)
stamp(); stamp(k=3)
for f in take(max(0, len(W2L) - opt["pollq"])): f()
stamp(k=3)
if opt["sts"] == 3: VM.drain(); stamp(k=3)
if opt["sts"] == 4: stamp(k=4); VM.drain(); stamp(k=4)
e(f"buffer_load_dword v{vPOLL}, v{vPA}, {srd(sH)}, s{sPOL} offen sc1"); VM.issue("poll")
for f in take(len(W2L)): f()
stamp(k=3)
VM.wait("poll")
stamp(k=3)
stamp()
spin_check("hp", vPOLL, vPA, "poll", sPOL, opt["nopoll"])
stamp(); stamp(k=2); stamp(k=3)
e("s_cmp_eq_u32 s2, 0")
e(f"s_cselect_b32 s{sT0}, {RFL}, s{sH+2}")
e(f"buffer_load_dword v{vAV}, v{vAC}, {srd(sH)}, s{sT0} offen sc1"); VM.issue("allc")
HL = [(p, n) for p in range(4) for n in range(12)]
def hload():
    if HL:
        p, n = HL.pop(0)
        e(f"buffer_load_dwordx4 {vr(vH + (p*12+n)*4, 4)}, v{vHB+p}, {srd(sH)}, s{sSIG+n} offen sc1"); VM.issue(f"h{p}_{n}")
for _ in range(opt["hpre"]): hload()
stamp()
for p in range(4):
    ac = vACC2 + (p % 2) * 20
    for n in range(12):
        VM.wait(f"h{p}_{n}")
        if n == 0 or (n == 6 and p < 3): stamp(k=2)
        if n == 0: stamp(k=3)
        for j in range(5):
            c = "0" if n == 0 else vr(ac+4*j, 4)
            e(f"v_mfma_f32_16x16x32_bf16 {vr(ac+4*j,4)}, {ar(n*20+4*j,4)}, {vr(vH+(p*12+n)*4,4)}, {c}")
            if j == 1: hload()
            if p > 0 and n >= 2 and n < 7 and j == 3:
                pa = vACC2 + ((p-1) % 2) * 20; jj = n - 2
                e(f"ds_write_b128 v{vRW}, {vr(pa+4*jj,4)} offset:{(p-1)*5120 + jj*1024}"); LG.issue("red")
        if p == 3 and n == 7:
            e("s_cmp_lg_u32 s2, 0")
            e("s_cbranch_scc1 L_ac_go")
            assert "allc" not in VM.q
            spin_check("ac", vAV, vAC, "allc")
            stamp(k=2)
            LG.drain(); e("s_barrier")
            stamp(k=2)
            for pp in range(3):
                for j in range(5):
                    e(f"ds_read_b128 {vr(vH + (pp*5+j)*4, 4)}, v{vRR+pp} offset:{j*1024}"); LG.issue("rr")
        if p == 3 and n == 9:
            LG.drain()
            for i in range(20): e(f"v_add_f32 v{vH+i}, v{vH+i}, v{vH+20+i}")
        if p == 3 and n == 10:
            for i in range(20): e(f"v_add_f32 v{vH+i}, v{vH+i}, v{vH+40+i}")
stamp(); stamp(k=2)
ac = vACC2 + 20
e("s_nop 3")
for j in range(5):
    for r in range(4): e(f"v_add_f32 v{vH+4*j+r}, v{vH+4*j+r}, v{ac+4*j+r}")
pk = vH + 64
for j in range(5):
    for r in range(2): e(f"v_cvt_pk_bf16_f32 v{pk+2*j+r}, v{vH+4*j+2*r}, v{vH+4*j+2*r+1}")
e("s_nop 1")
for b in range(2):
    e(f"v_permlane32_swap_b32 v{pk+4*b}, v{pk+4*b+2}")
    e(f"v_permlane32_swap_b32 v{pk+4*b+1}, v{pk+4*b+3}")
for b in range(2):
    e(f"buffer_store_dwordx4 {vr(pk+4*b,4)}, v{vOUT}, {srd(sOUT)}, s{sOB} offen offset:{64*b} {opt['outaux']}")
e(f"buffer_store_dwordx2 {vr(pk+8,2)}, v{vOUT2}, {srd(sOUT)}, s{sOB} offen offset:128 {opt['outaux']}")
e(f"s_or_b32 s{sT0}, s{sW}, s2")
e(f"s_cmp_lg_u32 s{sT0}, 0")
e("s_cbranch_scc1 L_nobump")
e(f"s_add_u32 s{sE}, s{sE}, 1")
e(f"v_mov_b32 v{vT}, s{sE}")
e(f"s_mov_b32 s{sT0}, {EP}")
e("s_mov_b64 exec, 1")
e(f"buffer_store_dword v{vT}, off, {srd(sH)}, s{sT0}")
e("s_mov_b64 exec, -1")
e("L_nobump:")
if opt["stamps"]:
    e("s_waitcnt vmcnt(0)")
    stamp(k=-1); stamp(True)
    ns = NST[0]
    assert 72 + 2*ns <= 102
    e("s_waitcnt lgkmcnt(0)")
    if opt["rt"]:
        e(f"s_lshl_b32 s{sT0}, s2, 2")
        e(f"s_add_u32 s{sT0}, s{sT0}, s{sW}")
        e(f"s_mul_i32 s{sT0}, s{sT0}, {ns*8}")
    else:
        e(f"s_cmp_lg_u32 s{sW}, {opt['stamps']-1}")
        e("s_cbranch_scc1 L_end")
        e(f"s_mul_i32 s{sT0}, s2, {ns*8}")
    e("s_mov_b64 exec, 1")
    e(f"s_add_u32 s{sT0}, s{sT0}, 0x8000000")
    e(f"v_mov_b32 v{vT}, s{sT0}")
    for i in range(ns):
        e(f"v_mov_b32 v24, s{72+2*i}"); e(f"v_mov_b32 v25, s{73+2*i}")
        e(f"global_store_dwordx2 v{vT}, v[24:25], s[12:13] offset:{i*8}"); e("s_nop 1")
    sys.stderr.write(f"nstamps {ns}\n")
e("L_end:")

hdr = f"""; FFN out = silu(x @ w1) @ w2, one launch, 256 workgroups (one per CU).
; @launch grid=(256,1,1) block=(256,1,1) lds=163840
.amdgcn_target "amdgcn-amd-amdhsa--gfx950"
.text
.globl {NAME}
.p2align 8
.type {NAME},@function
{NAME}:
"""
ftr = f"""s_endpgm
.section .rodata,"a"
.p2align 6
.amdhsa_kernel {NAME}
  .amdhsa_next_free_vgpr 512
  .amdhsa_next_free_sgpr 102
  .amdhsa_accum_offset 256
  .amdhsa_group_segment_fixed_size 0
  .amdhsa_kernarg_size 48
  .amdhsa_user_sgpr_count 2
  .amdhsa_user_sgpr_kernarg_segment_ptr 1
  .amdhsa_system_sgpr_workgroup_id_x 1
.end_amdhsa_kernel
"""
body = "\n".join(("" if l.endswith(":") else "    ") + l.rstrip() for l in O)
open(sys.argv[1], "w").write(hdr + body + "\n" + ftr)
```

```python
import sys
NAME = "standalone__dense_activation_silu__prompt_kernel"
opt = dict(stamps=0, rot=1, rot2=1, pf=1, outaux="", map=2, raux="nt", xaux="", haux="sc1", hsaux="sc1", hs2="", wb=0, pk=1, pt=0, fst=0, tab="x037", nost=0, novalu=0, nomf2=0, noh=0, hj=1, w2aux="sc1", w1aux="",
           sa=0, ma=10, sb=0, mb=10, mx=0, n8=8, n9=8, nb=0, post=0, pollq=8, hpre=8, sep=0, sts=0, rpos=0, rls=0, rjs=2, rpp=0, rps=7, rck=0, nopoll=0, rfs=4, sl=0, head=50, nf0=4, pre3=0, rt=0, own2=1, ntst=10, mid=2, xlin=0, nor=0)
for a in sys.argv[2:]:
    k, v = a.split("=")
    assert k in opt, k
    opt[k] = int(v) if v.lstrip("-").isdigit() else v.replace("_", " ")
O = []
def e(s): O.append(s)
NST = [0]
def stamp(rt=False, k=0):
    if not opt["stamps"]: return
    if not rt and NST[0] > 1 and k != opt["sts"] and k != -1: return
    i = NST[0]; NST[0] += 1
    e(f"s_memrealtime s[{72+2*i}:{73+2*i}]" if rt or opt["rt"] else f"s_memtime s[{72+2*i}:{73+2*i}]")

class Q:
    def __init__(s, name, mx): s.name = name; s.mx = mx; s.q = []
    def issue(s, tag): s.q.append(tag)
    def wait(s, tag):
        if tag not in s.q: return
        i = len(s.q) - 1 - s.q[::-1].index(tag)
        n = min(len(s.q) - 1 - i, s.mx)
        e(f"s_waitcnt {s.name}({n})")
        s.q = s.q[len(s.q)-n:] if n else []
    def drain(s):
        e(f"s_waitcnt {s.name}(0)"); s.q = []
VM = Q("vmcnt", 63); LG = Q("lgkmcnt", 15)

FL = 0x600000; EP = 0x608000; RFL = 0x610000; W2F = 0x620000; HREC = 0x800000
RED = 98304; RB = 98304; CNT = 159744
sX, sW1, sW2, sOUT, sH = 16, 20, 24, 28, 32
(sW, sMT, sFT, sKX, sKW, sXB, sWB, sXE, sM0, sT0, sT1, sE, sTAG, sHS, sHS2, sFLG, sPOL, sW2B, sOWN, sROT,
 sRS, sRD, sWO, sL2E) = range(36, 60)
sSIG = 60
sPK = 4; sOB = 3; sRFL = 14; sSPIN = 15
vL16 = 1; vL16b = 2; vOUT = 3; vOUT2 = 4; vRW = 5; vRP = 6; vHS = 7
vPOLL = 8; vL4 = 9; vPA = 19
vRR = 10
vHB = 13
vT = 17
vCN = 20; vONE = 21; vAV = 22; vAC = 23
vDX = 24; vDW = 26; vDR = 32
vA = 34; vB = 36
vRA = 44
vTM = 46
vACC1 = 64; vAF = 112; vBF = 160; vS = 176; vRF = 192
vH = 64; vACC2 = 24
def srd(r): return f"s[{r}:{r+3}]"
def vr(r, n): return f"v[{r}:{r+n-1}]"
def ar(r, n): return f"a[{r}:{r+n-1}]"
def capture(fn):
    global O
    sv = O; O = []; fn(); r = O; O = sv; return r

e("s_cmp_ge_u32 s2, 256")
e("s_cbranch_scc1 L_end")
stamp(True); stamp()
e("s_load_dwordx8 s[4:11], s[0:1], 0")
e("s_load_dwordx2 s[12:13], s[0:1], 40")
L, Wv = vTM, vTM+1
t0, t1, t2, t3 = vTM+2, vTM+3, vTM+4, vTM+5
e(f"v_and_b32 v{L}, 63, v0")
e(f"v_lshrrev_b32 v{Wv}, 6, v0")
e(f"v_lshlrev_b32 v{vL16}, 4, v{L}")
e(f"v_readfirstlane_b32 s{sW}, v{Wv}")
if opt["pf"]:
    e("s_getpc_b64 s[14:15]")
    e("L_pc:")
    e(f"s_lshr_b32 s{sT0}, s2, 3")
    e(f"s_and_b32 s{sT0}, s{sT0}, 3")
    e(f"s_lshl_b32 s{sT0}, s{sT0}, 12")
    e(f"v_lshl_add_u32 v{t0}, v0, 4, s{sT0}")
    e(f"v_min_u32 v{t0}, L_end-L_pc-16, v{t0}")
    e(f"global_load_dwordx4 v[252:255], v{t0}, s[14:15]")
    VM.issue("pf")
fa = opt["map"]
e(f"s_and_b32 s{sT0}, s2, 7")
e(f"s_lshr_b32 s{sT1}, s2, 3")
e(f"s_and_b32 s{sFT}, s{sT1}, {(1<<fa)-1}")
e(f"s_lshr_b32 s{sMT}, s{sT1}, {fa}")
if opt["rot"] == 3:
    tb = str(opt["tab"]).lstrip("x")
    tv = sum(int(c) << (4*i) for i, c in enumerate((tb * 16)[:16]))
    e(f"s_mul_i32 s{sKX}, s{sMT}, {opt['ma']}")
    e(f"s_mul_i32 s{sT1}, s{sFT}, {opt['mb']}")
    e(f"s_add_u32 s{sKX}, s{sKX}, s{sT1}")
    e(f"s_lshl_b32 s{sKX}, s{sKX}, 2")
    e(f"s_mov_b32 s{sSIG}, {tv & 0xffffffff}")
    e(f"s_mov_b32 s{sSIG+1}, {tv >> 32}")
    e(f"s_lshr_b64 s[{sSIG}:{sSIG+1}], s[{sSIG}:{sSIG+1}], s{sKX}")
    e(f"s_and_b32 s{sKX}, s{sSIG}, 15")
elif opt["rot"]:
    e(f"s_lshr_b32 s{sKX}, s{sMT}, {opt['sa']}")
    e(f"s_mul_i32 s{sKX}, s{sKX}, {opt['ma']}")
    e(f"s_lshr_b32 s{sT1}, s{sFT}, {opt['sb']}")
    e(f"s_mul_i32 s{sT1}, s{sT1}, {opt['mb']}")
    e(f"s_add_u32 s{sKX}, s{sKX}, s{sT1}")
    if opt['mx']:
        e(f"s_mul_i32 s{sT1}, s{sT0}, {opt['mx']}")
        e(f"s_add_u32 s{sKX}, s{sKX}, s{sT1}")
    e(f"s_lshr_b32 s{sKX}, s{sKX}, 2")
    e(f"s_mul_i32 s{sT1}, s{sKX}, 205")
    e(f"s_lshr_b32 s{sT1}, s{sT1}, 11")
    e(f"s_mul_i32 s{sT1}, s{sT1}, 10")
    e(f"s_sub_u32 s{sKX}, s{sKX}, s{sT1}")
else:
    e(f"s_mov_b32 s{sKX}, 0")
if opt["rot2"] == 2:
    e(f"s_and_b32 s{sROT}, s{sMT}, 3")
    e(f"s_mul_i32 s{sROT}, s{sROT}, 3")
elif opt["rot2"]:
    e(f"s_mul_i32 s{sROT}, s{sMT}, 12")
    e(f"s_lshr_b32 s{sROT}, s{sROT}, {5-fa}")
else:
    e(f"s_mov_b32 s{sROT}, 0")
e(f"s_and_b32 s{sT1}, s{sT0}, {(8>>fa)-1}")
e(f"s_lshl_b32 s{sT1}, s{sT1}, {fa}")
e(f"s_add_u32 s{sFT}, s{sFT}, s{sT1}")
e(f"s_lshr_b32 s{sT1}, s{sT0}, {3-fa}")
e(f"s_lshl_b32 s{sT1}, s{sT1}, {5-fa}")
e(f"s_add_u32 s{sMT}, s{sMT}, s{sT1}")
e(f"s_mul_i32 s{sXB}, s{sMT}, 81920")
e(f"s_mul_i32 s{sWB}, s{sFT}, 384")
e(f"s_add_u32 s{sXE}, s{sXB}, 1280")
e(f"s_mul_i32 s{sKW}, s{sKX}, {64*3072}")
e(f"s_add_u32 s{sKW}, s{sKW}, s{sWB}")
e(f"s_lshl_b32 s{sKX}, s{sKX}, 7")
e(f"s_add_u32 s{sKX}, s{sKX}, s{sXB}")
G = vTM+6
e(f"v_lshrrev_b32 v{G}, 4, v{L}")
e(f"v_lshrrev_b32 v{t0}, 3, v{L}")
e(f"v_lshl_add_u32 v{t0}, v{Wv}, 4, v{t0}")
e(f"v_mul_u32_u24 v{t0}, 1280, v{t0}")
e(f"v_and_b32 v{t1}, 7, v{L}")
e(f"v_xor_b32 v{t1}, v{t1}, v{G}")
e(f"v_lshl_add_u32 v{vDX}, v{t1}, 4, v{t0}")
e(f"v_xor_b32 v{t1}, 4, v{t1}")
e(f"v_lshl_add_u32 v{vDX+1}, v{t1}, 4, v{t0}")
e(f"v_add_u32 v{vDX+1}, {8*1280-1024}, v{vDX+1}")
if opt["xlin"]:
    e(f"v_lshl_add_u32 v{vDX}, v{Wv}, 11, v{vL16}")
    e(f"v_mov_b32 v{vDX+1}, v{vDX}")
    e(f"s_and_b32 s{sT0}, s{sFT}, 3")
    e(f"s_mul_i32 s{sT0}, s{sT0}, {opt['xlin']}")
    e(f"s_lshr_b32 s{sT0}, s{sT0}, 2")
    e(f"s_lshl_b32 s100, s{sT0}, 13")
    e(f"s_add_u32 s100, s100, s{sXB}")
    e(f"s_add_u32 s101, s{sXB}, 81920")
e(f"v_mul_u32_u24 v{t3}, {16*3072}, v{Wv}")
for i in range(3):
    if i: e(f"v_add_u32 v{t0}, {64*i}, v{L}")
    src = t0 if i else L
    e(f"v_mul_u32_u24 v{t1}, 2731, v{src}")
    e(f"v_lshrrev_b32 v{t1}, 16, v{t1}")
    e(f"v_mul_u32_u24 v{t2}, 24, v{t1}")
    e(f"v_sub_u32 v{t0}, v{src}, v{t2}")
    e(f"v_and_b32 v{t2}, 2, v{t1}")
    e(f"v_lshlrev_b32 v{t2}, 1, v{t2}")
    e(f"v_xor_b32 v{t0}, v{t0}, v{t2}")
    e(f"v_mul_u32_u24 v{t1}, 3072, v{t1}")
    e(f"v_lshl_add_u32 v{t0}, v{t0}, 4, v{t1}")
    e(f"v_add_u32 v{t0}, v{t0}, v{t3}")
    if i: e(f"v_subrev_u32 v{vDW+i}, {i*1024}, v{t0}")
    else: e(f"v_mov_b32 v{vDW}, v{t0}")
    e(f"v_add_u32 v{vDW+3+i}, {8*3072 - ((i+3)%4)*1024}, v{t0}")
e(f"s_lshl_b32 s{sM0}, s{sW}, 13")
e(f"s_mov_b32 s{sSPIN}, {EP}")
for r, n in ((sX, 2621440), (sW1, 1966080), (sW2, 1966080), (sOUT, 2621440), (sH, HREC)):
    e(f"s_mov_b32 s{r+2}, {n}"); e(f"s_mov_b32 s{r+3}, 0x20000")
e("s_waitcnt lgkmcnt(0)")
for r, p in ((sW2, 8), (sX, 4), (sW1, 6), (sOUT, 10), (sH, 12)):
    e(f"s_mov_b64 s[{r}:{r+1}], s[{p}:{p+1}]")
stamp()
e(f"s_load_dword s{sE}, s[12:13], s{sSPIN}")

def adv_k():
    if opt["xlin"]:
        e(f"s_add_u32 s100, s100, 8192")
        e(f"s_cmp_eq_u32 s100, s101")
        e(f"s_cselect_b32 s100, s{sXB}, s100")
    e(f"s_add_u32 s{sKX}, s{sKX}, 128")
    e(f"s_add_u32 s{sKW}, s{sKW}, {64*3072}")
    e(f"s_cmp_eq_u32 s{sKX}, s{sXE}")
    e(f"s_cselect_b32 s{sKX}, s{sXB}, s{sKX}")
    e(f"s_cselect_b32 s{sKW}, s{sWB}, s{sKW}")
def dma_ops(st):
    base = (st % 3) * 32768
    def mk(i):
        def f():
            if i == 0: e(f"s_add_u32 m0, s{sM0}, {base+6144}"); e("s_nop 0")
            if i < 2:
                e(f"buffer_load_dwordx4 v{vDX+i}, {srd(sX)}, s{100 if opt['xlin'] else sKX} offen offset:{i*1024} {opt['xaux'] if st < opt['ntst'] else ''} lds")
            else:
                j = i - 2
                e(f"buffer_load_dwordx4 v{vDW+j}, {srd(sW1)}, s{sKW} offen offset:{(j%4)*1024} {opt['w1aux'] if st < opt['ntst'] else ''} lds")
            VM.issue(f"st{st}")
            if i == 1: e(f"s_add_u32 m0, s{sM0}, {base}"); e("s_nop 0")
            if i == 5: e(f"s_add_u32 m0, s{sM0}, {base+4096}"); e("s_nop 0")
            if i == 7 and st < 9: adv_k()
        return f
    return [mk(i) for i in range(8)]

def setup2():
    R, C = t0, t1
    u0, u1, u2 = vTM+7, vTM+8, vTM+9
    e(f"s_and_b32 s{sT0}, s2, 63")
    e(f"s_mul_i32 s{sT1}, s{sT0}, 205")
    e(f"s_lshr_b32 s{sT1}, s{sT1}, 10")
    e(f"s_mul_i32 s{sRS}, s{sT1}, 5")
    e(f"s_sub_u32 s{sRS}, s{sT0}, s{sRS}")
    e(f"s_lshr_b32 s{sRD}, s2, 6")
    e(f"s_mul_i32 s{sRFL}, s{sRD}, 5")
    e(f"s_add_u32 s{sRFL}, s{sRFL}, s{sRS}")
    e(f"s_lshl_b32 s{sRFL}, s{sRFL}, 4")
    e(f"s_add_u32 s{sRFL}, s{sRFL}, s{sT1}")
    e(f"s_lshl_b32 s{sRFL}, s{sRFL}, 7")
    e(f"s_mul_i32 s{sRD}, s{sRD}, 12")
    e(f"s_add_u32 s{sT1}, s{sT1}, s{sRD}")
    e(f"s_mul_i32 s{sT1}, s{sT1}, 40960")
    e(f"s_lshl_b32 s{sRD}, s{sRS}, 13")
    e(f"s_add_u32 s{sRD}, s{sRD}, s{sT1}")
    e(f"s_lshl_b32 s{sRS}, s{sRS}, 8")
    e(f"s_add_u32 s{sRS}, s{sRS}, s{sT1}")
    e(f"s_lshl_b32 s{sT1}, s{sW}, 11")
    e(f"s_add_u32 s{sRD}, s{sRD}, s{sT1}")
    e(f"s_add_u32 s{sRD}, s{sRD}, {W2F}")
    e(f"s_cmp_lt_u32 s{sT0}, {0 if opt['nor'] else 60}")
    e(f"s_cselect_b32 s{sRS}, s{sRS}, 1966080")
    e(f"s_cselect_b32 s{sRD}, s{sRD}, {HREC}")
    if opt["pt"] & 1:
        e(f"s_min_u32 s{sT1}, s{sRS}, {1966080-4}")
        e(f"s_load_dword s6, s[8:9], s{sT1}")
    if opt["pt"] & 2:
        e(f"s_mul_i32 s{sT1}, s{sMT}, {64*3072}")
        e(f"s_load_dword s6, s[12:13], s{sT1}")
    if opt["pt"] & 4:
        e(f"s_load_dword s6, s[10:11], s{sXB}")
    if opt["pt"] & 8:
        e(f"s_load_dword s6, s[12:13], s{sRD}")
    e(f"v_lshl_add_u32 v{t0}, v{Wv}, 3, v{G}")
    e(f"v_mul_u32_u24 v{t0}, 1280, v{t0}")
    e(f"v_and_b32 v{t1}, 15, v{L}")
    e(f"v_lshlrev_b32 v{t2}, 1, v{G}")
    e(f"v_xor_b32 v{t1}, v{t1}, v{t2}")
    e(f"v_lshl_add_u32 v{vDR}, v{t1}, 4, v{t0}")
    e(f"v_xor_b32 v{t1}, 8, v{t1}")
    e(f"v_lshl_add_u32 v{vDR+1}, v{t1}, 4, v{t0}")
    e(f"v_add_u32 v{vDR+1}, {4*1280-1024}, v{vDR+1}")
    e(f"v_bfe_u32 v{R}, v{L}, 2, 2")
    e(f"v_and_b32 v{C}, 3, v{L}")
    e(f"v_lshrrev_b32 v{u0}, 1, v{G}")
    e(f"v_lshl_add_u32 v{u0}, v{u0}, 3, v{R}")
    e(f"v_mul_u32_u24 v{u0}, 384, v{u0}")
    e(f"v_lshrrev_b32 v{u1}, 1, v{R}")
    e(f"v_xor_b32 v{u1}, v{u1}, v{Wv}")
    e(f"v_and_b32 v{u1}, 1, v{u1}")
    e(f"v_lshl_add_u32 v{u0}, v{u1}, 6, v{u0}")
    e(f"v_and_b32 v{u1}, 1, v{G}")
    e(f"v_lshl_add_u32 v{u0}, v{u1}, 5, v{u0}")
    e(f"v_lshl_add_u32 v{vA}, v{C}, 3, v{u0}")
    e(f"v_add_u32 v{vA+1}, 65536, v{vA}")
    e(f"v_and_b32 v{u0}, 2, v{Wv}")
    e(f"v_add_u32 v{u0}, v{u0}, v{u1}")
    e(f"v_lshlrev_b32 v{u0}, 13, v{u0}")
    e(f"v_and_b32 v{u2}, 15, v{L}")
    e(f"v_lshl_add_u32 v{u0}, v{u2}, 7, v{u0}")
    e(f"v_add_u32 v{u0}, 6144, v{u0}")
    e(f"v_lshrrev_b32 v{u1}, 1, v{u2}")
    e(f"v_lshrrev_b32 v{t2}, 5, v{L}")
    e(f"v_xor_b32 v{u1}, v{u1}, v{t2}")
    e(f"v_lshl_add_u32 v{vB}, v{u1}, 4, v{u0}")
    for k in range(1, 4): e(f"v_xor_b32 v{vB+k}, {32*k}, v{vB}")
    for k in range(4): e(f"v_add_u32 v{vB+4+k}, 65536, v{vB+k}")
    e(f"v_and_b32 v{u1}, 1, v{G}")
    e(f"v_lshl_add_u32 v{u1}, v{u1}, 2, v{R}")
    e(f"v_lshlrev_b32 v{u0}, 12, v{t2}")
    e(f"v_lshl_add_u32 v{u0}, v{u1}, 8, v{u0}")
    e(f"v_lshlrev_b32 v{t3}, 1, v{Wv}")
    e(f"v_xor_b32 v{u1}, v{u1}, v{t3}")
    e(f"v_lshl_add_u32 v{u0}, v{u1}, 5, v{u0}")
    e(f"v_and_b32 v{u1}, 1, v{C}")
    e(f"v_lshl_add_u32 v{u0}, v{u1}, 4, v{u0}")
    e(f"v_lshrrev_b32 v{u1}, 1, v{C}")
    e(f"v_lshl_add_u32 v{u0}, v{u1}, 3, v{u0}")
    e(f"v_add_u32 v{vRA}, {RB}, v{u0}")
    e(f"v_xor_b32 v{vRA+1}, 32, v{vRA}")
    e(f"v_mov_b32 v{vCN}, {CNT}")
    e(f"v_mov_b32 v{vONE}, 0")
    e(f"ds_write_b32 v{vCN}, v{vONE}"); LG.issue("cnt")
    for i in range(48): e(f"v_mov_b32 v{vACC1+i}, 0")
    e(f"v_mov_b32 v{vONE}, 1")
    e(f"v_and_b32 v{u1}, 1, v{G}")
    e(f"v_mul_u32_u24 v{u0}, 12288, v{u1}")
    e(f"v_lshl_add_u32 v{u0}, v{t2}, 8, v{u0}")
    e(f"v_lshl_add_u32 v{vHS}, v{u2}, 4, v{u0}")
    e(f"v_mul_u32_u24 v{u0}, 1280, v{u2}")
    e(f"v_lshl_add_u32 v{vOUT}, v{G}, 4, v{u0}")
    e(f"v_lshl_add_u32 v{u0}, v{u1}, 4, v{u0}")
    e(f"v_lshl_add_u32 v{vOUT2}, v{t2}, 3, v{u0}")
    e(f"v_add_u32 v{vL16b}, 4096, v{vL16}")
    e(f"s_mul_i32 s{sT0}, s{sFT}, 5")
    e(f"v_lshl_add_u32 v{u0}, v{u1}, 2, s{sT0}")
    e(f"v_lshrrev_b32 v{u0}, 3, v{u0}")
    e(f"v_mad_u32_u24 v{u0}, v{Wv}, 5, v{u0}")
    e(f"v_min_u32 v{vRP}, 11, v{u2}")
    e(f"v_lshlrev_b32 v{vRP}, 7, v{vRP}")
    e(f"v_lshl_add_u32 v{vRP}, v{u0}, 11, v{vRP}")
    e(f"v_lshlrev_b32 v{vL4}, 2, v{L}")
    e(f"v_lshlrev_b32 v{vPA}, 7, v{u1}")
    e(f"v_mul_u32_u24 v{u0}, 205, v{L}")
    e(f"v_lshrrev_b32 v{u0}, 10, v{u0}")
    e(f"v_sub_u32 v{vAC}, v{Wv}, v{u0}")
    e(f"v_mad_i32_i24 v{vAC}, v{vAC}, 5, v{L}")
    e(f"v_lshlrev_b32 v{vAC}, 11, v{vAC}")
    e(f"v_lshl_add_u32 v{vAC}, v{u0}, 7, v{vAC}")
    e(f"s_mul_i32 s{sT0}, s{sW}, 15360")
    e(f"s_add_u32 s{sT0}, s{sT0}, {RED}")
    e(f"v_add_u32 v{vRW}, s{sT0}, v{vL16}")
    for p in range(3):
        e(f"s_sub_u32 s{sT0}, s{sW}, {1+p}")
        e(f"s_and_b32 s{sT0}, s{sT0}, 3")
        e(f"s_mul_i32 s{sT0}, s{sT0}, 15360")
        e(f"s_add_u32 s{sT0}, s{sT0}, {RED + p*5120}")
        e(f"v_add_u32 v{vRR+p}, s{sT0}, v{vL16}")
    e(f"s_mul_i32 s{sW2B}, s{sW}, {12*40960}")
    e(f"s_mul_i32 s{sT0}, s{sFT}, 5120")
    e(f"s_add_u32 s{sW2B}, s{sW2B}, s{sT0}")
    e(f"s_add_u32 s{sW2B}, s{sW2B}, {W2F}")
    for n in range(12):
        e(f"s_lshl_b32 s{sSIG+n}, s{sROT}, 10")
        if n < 11:
            e(f"s_add_u32 s{sROT}, s{sROT}, 1")
            e(f"s_cmp_ge_u32 s{sROT}, 12")
            e(f"s_cselect_b32 s{sROT}, 0, s{sROT}")
    if opt["own2"]:
        e(f"s_lshl_b32 s{sOWN}, s{sFT}, 1")
        e(f"s_add_u32 s{sOWN}, s{sW}, s{sOWN}")
    else: e(f"s_add_u32 s{sOWN}, s{sW}, s{sFT}")
    e(f"s_and_b32 s{sOWN}, s{sOWN}, 3")
    e(f"s_lshl_b32 s{sT1}, s{sMT}, 2")
    e(f"s_add_u32 s{sT1}, s{sT1}, s{sW}")
    e(f"s_lshl_b32 s{sPOL}, s{sT1}, 8")
    e(f"s_add_u32 s{sPOL}, s{sPOL}, {FL}")
    e(f"s_lshl_b32 s{sT1}, s{sT1}, 2")
    for p in range(4):
        e(f"s_add_u32 s{sT0}, s{sOWN}, {1+p}")
        e(f"s_and_b32 s{sT0}, s{sT0}, 3")
        e(f"s_add_u32 s{sT0}, s{sT0}, s{sT1}")
        e(f"s_mul_i32 s{sT0}, s{sT0}, 12288")
        e(f"v_add_u32 v{vHB+p}, s{sT0}, v{vL16}")
    e(f"s_lshl_b32 s{sOB}, s{sMT}, 2")
    e(f"s_add_u32 s{sOB}, s{sOB}, s{sOWN}")
    e(f"s_mul_i32 s{sOB}, s{sOB}, {16*1280}")
    e(f"s_mul_i32 s{sT0}, s{sFT}, 160")
    e(f"s_add_u32 s{sOB}, s{sOB}, s{sT0}")
    e(f"s_lshl_b32 s{sT0}, s{sMT}, 2")
    e(f"s_lshr_b32 s{sT1}, s{sFT}, 1")
    e(f"s_add_u32 s{sT0}, s{sT0}, s{sT1}")
    e(f"s_lshl_b32 s{sFLG}, s{sT0}, 8")
    e(f"s_lshl_b32 s{sT0}, s{sT0}, 2")
    e(f"s_and_b32 s{sT1}, s{sW}, 2")
    e(f"s_add_u32 s{sT0}, s{sT0}, s{sT1}")
    e(f"s_mul_i32 s{sHS}, s{sT0}, 12288")
    e(f"s_and_b32 s{sT0}, s{sFT}, 1")
    e(f"s_lshl_b32 s{sT1}, s{sT0}, 7")
    e(f"s_add_u32 s{sFLG}, s{sFLG}, s{sT1}")
    e(f"s_add_u32 s{sFLG}, s{sFLG}, {FL}")
    e(f"s_mul_i32 s{sT0}, s{sT0}, 6")
    e(f"s_and_b32 s{sT1}, s{sW}, 1")
    e(f"s_add_u32 s{sT0}, s{sT0}, s{sT1}")
    e(f"s_lshl_b32 s{sT0}, s{sT0}, 10")
    e(f"s_add_u32 s{sHS}, s{sHS}, s{sT0}")
    e(f"s_add_u32 s{sHS2}, s{sHS}, 4096")
    e(f"s_add_u32 s{sRFL}, s{sRFL}, {RFL}")
    e(f"s_cmp_eq_u32 s{sW}, 0")
    e(f"s_cselect_b32 s{sRFL}, s{sRFL}, {HREC}")
    e(f"s_mov_b32 s{sL2E}, 0xbfb8aa3b")
    if opt["pk"]:
        e(f"s_mov_b32 s{sPK}, 0xbfb8aa3b"); e(f"s_mov_b32 s{sPK+1}, 0xbfb8aa3b")
def r_loads():
    e(f"s_lshr_b32 m0, s{sM0}, 2")
    e(f"s_add_u32 m0, m0, {RB}")
    e("s_nop 0")
    for i in range(2):
        e(f"buffer_load_dwordx4 v{vDR+i}, {srd(sW2)}, s{sRS} offen offset:{i*1024} {opt['raux']} lds"); VM.issue("rld")
def r_reads():
    for ee in range(2):
        for t in range(2):
            e(f"ds_read_b64_tr_b16 {vr(vRF + 4*ee + 2*t, 2)}, v{vRA+ee} offset:{t*2048}"); LG.issue("rrd")
def r_stores():
    LG.wait("rrd")
    for ee in range(2):
        e(f"buffer_store_dwordx4 {vr(vRF+4*ee,4)}, v{vL16}, {srd(sH)}, s{sRD} offen offset:{ee*1024} sc1"); VM.issue("rst")
S2 = capture(setup2)
groups = []
for l in S2:
    if l.startswith("s_cselect") or (groups and groups[-1][-1].startswith("s_cmp")): groups[-1].append(l)
    else: groups.append([l])
first = dma_ops(0) + dma_ops(1) + (dma_ops(2) if opt["pre3"] else [])
if opt["rls"] < 0: first.append(r_loads)
NF0 = opt["nf0"]
for f in first[:NF0]: f()
if opt["fst"]:
    e(f"s_waitcnt vmcnt({NF0-1})"); stamp(k=5)
    e(f"s_waitcnt vmcnt({NF0-3})"); stamp(k=5)
rest = first[NF0:]
per = (len(groups) + len(rest) - 1) // len(rest)
head = len(groups) * opt["head"] // 100
for g in groups[:head]: O.extend(g)
groups = groups[head:]
per = (len(groups) + len(rest) - 1) // len(rest)
for f in rest:
    f()
    for g in groups[:per]: O.extend(g)
    groups = groups[per:]
assert not groups
stamp()

def w2_ops():
    ops = []
    for n in range(12):
        for j in range(5):
            def f(n=n, j=j):
                if j == 0:
                    e(f"s_mul_i32 s{sWO}, s{sSIG+n}, 40")
                    e(f"s_add_u32 s{sWO}, s{sWO}, s{sW2B}")
                va = vL16 if j < 4 else vL16b
                e(f"buffer_load_dwordx4 {ar(n*20+4*j, 4)}, v{va}, {srd(sH)}, s{sWO} offen offset:{(j%4)*1024} {opt['w2aux'].replace('-','')}")
                VM.issue("w2")
            ops.append(f)
    return ops
W2L = w2_ops()
def take(n):
    r = W2L[:n]; del W2L[:n]; return r

def rd_ops(st, half):
    slot = st % 3
    sb = (slot % 2) * 32768 if slot < 2 else 0
    hi = 1 if slot == 2 else 0
    ops = []
    for kk in range(2):
        ks = 2*half + kk
        def b(ks=ks, kk=kk):
            e(f"ds_read_b128 {vr(vBF + (half*2+kk)*4, 4)}, v{vB + 4*hi + ks} offset:{sb}"); LG.issue(f"B{ks}")
        ops.append(b)
        for q in range(3):
            for t in range(2):
                def a(ks=ks, kk=kk, q=q, t=t):
                    e(f"ds_read_b64_tr_b16 {vr(vAF + half*24 + (kk*3+q)*4 + 2*t, 2)}, v{vA+hi} offset:{sb + ks*8192 + t*1536 + q*128}")
                    LG.issue(f"A{ks}{q}")
                ops.append(a)
    return ops
def mfma1(half, kk, q):
    ks = 2*half + kk
    LG.wait(f"A{ks}{q}")
    e(f"v_mfma_f32_32x32x16_bf16 {vr(vACC1+16*q,16)}, {vr(vAF + half*24 + (kk*3+q)*4, 4)}, {vr(vBF + (half*2+kk)*4, 4)}, {vr(vACC1+16*q,16)}")
def half_body(mf_half, rds, fill):
    rds = list(rds); fill = list(fill)
    for i in range(6):
        if mf_half is not None: mfma1(mf_half, i // 3, i % 3)
        left = 6 - i
        for _ in range((len(rds) + left - 1) // left if i else min(len(rds), 4)):
            if rds: rds.pop(0)()
        for _ in range((len(fill) + left - 1) // left):
            if fill: fill.pop(0)()
    assert not rds and not fill

def flag_store(off):
    e(f"v_mov_b32 v{vT}, s{sTAG}")
    e("s_mov_b32 exec_hi, 0")
    e(f"buffer_store_dword v{vT}, v{vL4}, {srd(sH)}, s{off} offen sc1"); VM.issue("flag")
    e("s_mov_b32 exec_hi, -1")
def r_poll():
    e(f"s_mov_b32 s{sT0}, {RFL}")
    e(f"buffer_load_dword v{vPOLL}, v{vRP}, {srd(sH)}, s{sT0} offen sc1"); VM.issue("rpoll")

def spin_check(lab, vv, va, tag, so=None, fake=False):
    VM.wait(tag)
    e(f"s_mov_b32 s{sSPIN}, 20000")
    e(f"L_{lab}:")
    e(f"v_cmp_ne_u32 vcc, s{sTAG}, v{vv}")
    e("s_cmp_eq_u64 vcc, 0" if not fake else "s_cmp_eq_u32 s2, s2")
    e(f"s_cbranch_scc1 L_{lab}_go")
    e(f"s_sub_u32 s{sSPIN}, s{sSPIN}, 1")
    e(f"s_cmp_eq_u32 s{sSPIN}, 0")
    e(f"s_cbranch_scc1 L_{lab}_go")
    if so is None: e(f"s_mov_b32 s{sT0}, {RFL}")
    e(f"buffer_load_dword v{vv}, v{va}, {srd(sH)}, s{sT0 if so is None else so} offen sc1")
    e("s_waitcnt vmcnt(0)")
    e(f"s_branch L_{lab}")
    e(f"L_{lab}_go:")
def r_check(): spin_check("rp", vPOLL, vRP, "rpoll")

for st in range(10):
    VM.wait(f"st{st}")
    if st == opt["rjs"]: VM.wait("rld")
    if st == opt["rfs"]: VM.wait("rst")
    LG.drain()
    e("s_barrier")
    if st == 9: stamp()
    stamp(k=1)
    if st >= 8: stamp(k=4)
    if st == opt["rfs"]:
        e(f"s_mul_i32 s{sTAG}, s{sE}, 0x9E3779B1")
        e(f"s_add_u32 s{sTAG}, s{sTAG}, 0x7F4A7C15")
        flag_store(sRFL)
    if (st == 8 and opt["rck"] == 0) or (st == 9 and opt["rck"] == 2): r_check()
    if st == 0 and opt["pre3"]: fill = []
    elif st < 8: fill = dma_ops(st + 2)
    else: fill = take(opt["n8"] if st == 8 else opt["n9"])
    if st == opt["rls"]: fill = [r_loads] + fill if opt["rpos"] == 0 else fill + [r_loads]
    if st == opt["rjs"]: fill = [r_reads] + fill + [r_stores]
    if st == opt["rps"]: fill.insert(opt["rpp"], r_poll)
    h = (len(fill) + 1) // 2
    f0, f1 = fill[:h], fill[h:]
    if st == 8 and opt["rck"] == 1:
        k = 1 if opt["rps"] == 8 else 0
        f0, f1 = fill[:k], [r_check] + fill[k:]
    half_body(1 if st else None, rd_ops(st, 0), f0)
    half_body(0, rd_ops(st, 1), f1)
stamp()
PEND = []
def silu_block(q, g2):
    a0 = vACC1 + 16*q + 8*g2
    bi = 2*q + g2
    tt = vS + (bi % 2) * 8
    pk = vRF + bi * 4
    ops = []
    if opt["pk"]:
        for r in range(0, 8, 2): ops.append(f"v_pk_mul_f32 {vr(tt+r,2)}, {vr(a0+r,2)}, s[{sPK}:{sPK+1}]")
        for r in range(8): ops.append(f"v_exp_f32 v{tt+r}, v{tt+r}")
        for r in range(0, 8, 2): ops.append(f"v_pk_add_f32 {vr(tt+r,2)}, {vr(tt+r,2)}, 1.0 op_sel_hi:[1,0]")
        for r in range(8): ops.append(f"v_rcp_f32 v{tt+r}, v{tt+r}")
        for r in range(0, 8, 2): ops.append(f"v_pk_mul_f32 {vr(tt+r,2)}, {vr(a0+r,2)}, {vr(tt+r,2)}")
    else:
        for r in range(8): ops.append(f"v_mul_f32 v{tt+r}, s{sL2E}, v{a0+r}")
        for r in range(8): ops.append(f"v_exp_f32 v{tt+r}, v{tt+r}")
        for r in range(8): ops.append(f"v_add_f32 v{tt+r}, 1.0, v{tt+r}")
        for r in range(8): ops.append(f"v_rcp_f32 v{tt+r}, v{tt+r}")
        for r in range(8): ops.append(f"v_mul_f32 v{tt+r}, v{a0+r}, v{tt+r}")
    for r in range(4): ops.append(f"v_cvt_pk_bf16_f32 v{pk+r}, v{tt+2*r}, v{tt+2*r+1}")
    nbs = str(opt["nb"]).lstrip("x")
    fill = take(int(nbs[bi] if len(nbs) > 1 else nbs))
    step = len(ops) // (len(fill) + 1) if fill else 0
    for i, l in enumerate(ops):
        if not opt["novalu"]: e(l)
        if fill and step and (i + 1) % step == 0: fill.pop(0)()
    for f in fill: f()
    so = sHS if q < 2 else sHS2
    def st_():
        if opt["nost"]: return
        e(f"buffer_store_dwordx4 {vr(pk,4)}, v{vHS}, {srd(sH)}, s{so} offen offset:{g2*512 + (q%2)*2048} {opt['hsaux'].replace('-','')}"); VM.issue("hst")
        if opt["hs2"]:
            e(f"buffer_store_dwordx4 {vr(pk,4)}, v{vHS}, {srd(sH)}, s{so} offen offset:{g2*512 + (q%2)*2048} {opt['hs2'].replace('-','')}"); VM.issue("hst")
    PEND.append(st_)
    if bi >= opt["sl"]:
        while PEND: PEND.pop(0)()
for q in range(3):
    for kk in range(2): mfma1(1, kk, q)
e("s_nop 7")
stamp(k=4)
if opt["sts"] == 4: VM.drain(); stamp(k=4)
for q in range(3):
    for g2 in range(2): silu_block(q, g2)
stamp(); stamp(k=4)
for f in take(opt["post"]): f()
if opt["wb"]:
    VM.wait("hst")
    e("buffer_wbl2 sc1"); VM.issue("hst")
VM.wait("hst")
stamp(k=4)
if opt["sts"] == 4: VM.drain(); stamp(k=4)
e("s_mov_b64 exec, 1")
e(f"ds_add_rtn_u32 v{vT+1}, v{vCN}, v{vONE}")
e("s_mov_b64 exec, -1")
for f in take(opt["mid"]): f()
e("s_waitcnt lgkmcnt(0)")
e(f"v_readfirstlane_b32 s{sT0}, v{vT+1}")
e(f"s_cmp_eq_u32 s{sT0}, {3 if opt['nopoll'] < 2 else 9}")
e(f"s_cselect_b32 s{sFLG}, s{sFLG}, {HREC}")
if opt["nopoll"] == 3: e(f"s_mov_b32 s{sPOL}, {HREC}")
flag_store(sFLG)
stamp(); stamp(k=3)
for f in take(max(0, len(W2L) - opt["pollq"])): f()
stamp(k=3)
if opt["sts"] == 3: VM.drain(); stamp(k=3)
if opt["sts"] == 4: stamp(k=4); VM.drain(); stamp(k=4)
e(f"buffer_load_dword v{vPOLL}, v{vPA}, {srd(sH)}, s{sPOL} offen sc1"); VM.issue("poll")
for f in take(len(W2L)): f()
stamp(k=3)
VM.wait("poll")
stamp(k=3)
stamp()
spin_check("hp", vPOLL, vPA, "poll", sPOL, opt["nopoll"])
stamp(); stamp(k=2); stamp(k=3)
e("s_cmp_eq_u32 s2, 0")
e(f"s_cselect_b32 s{sT0}, {RFL}, s{sH+2}")
e(f"buffer_load_dword v{vAV}, v{vAC}, {srd(sH)}, s{sT0} offen sc1"); VM.issue("allc")
HL = [(p, n) for p in range(4) for n in range(12)]
def hload():
    if HL:
        p, n = HL.pop(0)
        if opt["noh"] and (p*12+n) % opt["noh"]: return
        e(f"buffer_load_dwordx4 {vr(vH + (p*12+n)*4, 4)}, v{vHB+p}, {srd(sH)}, s{sSIG+n} offen {opt['haux'].replace('-','')}"); VM.issue(f"h{p}_{n}")
for _ in range(opt["hpre"]): hload()
stamp()
for p in range(4):
    ac = vACC2 + (p % 2) * 20
    for n in range(12):
        VM.wait(f"h{p}_{n}")
        if n == 0 or (n == 6 and p < 3): stamp(k=2)
        if n == 0: stamp(k=3)
        for j in range(5):
            c = "0" if n == 0 else vr(ac+4*j, 4)
            if j >= opt["nomf2"]: e(f"v_mfma_f32_16x16x32_bf16 {vr(ac+4*j,4)}, {ar(n*20+4*j,4)}, {vr(vH+(p*12+n)*4,4)}, {c}")
            if j == opt["hj"]: hload()
            if p > 0 and n >= 2 and n < 7 and j == 3:
                pa = vACC2 + ((p-1) % 2) * 20; jj = n - 2
                e(f"ds_write_b128 v{vRW}, {vr(pa+4*jj,4)} offset:{(p-1)*5120 + jj*1024}"); LG.issue("red")
        if p == 3 and n == 7:
            e("s_cmp_lg_u32 s2, 0")
            e("s_cbranch_scc1 L_ac_go")
            assert "allc" not in VM.q
            spin_check("ac", vAV, vAC, "allc")
            stamp(k=2)
            LG.drain(); e("s_barrier")
            stamp(k=2)
            for pp in range(3):
                for j in range(5):
                    e(f"ds_read_b128 {vr(vH + (pp*5+j)*4, 4)}, v{vRR+pp} offset:{j*1024}"); LG.issue("rr")
        if p == 3 and n == 9:
            LG.drain()
            for i in range(20): e(f"v_add_f32 v{vH+i}, v{vH+i}, v{vH+20+i}")
        if p == 3 and n == 10:
            for i in range(20): e(f"v_add_f32 v{vH+i}, v{vH+i}, v{vH+40+i}")
stamp(); stamp(k=2)
ac = vACC2 + 20
e("s_nop 3")
for j in range(5):
    for r in range(4): e(f"v_add_f32 v{vH+4*j+r}, v{vH+4*j+r}, v{ac+4*j+r}")
pk = vH + 64
for j in range(5):
    for r in range(2): e(f"v_cvt_pk_bf16_f32 v{pk+2*j+r}, v{vH+4*j+2*r}, v{vH+4*j+2*r+1}")
e("s_nop 1")
for b in range(2):
    e(f"v_permlane32_swap_b32 v{pk+4*b}, v{pk+4*b+2}")
    e(f"v_permlane32_swap_b32 v{pk+4*b+1}, v{pk+4*b+3}")
for b in range(2):
    e(f"buffer_store_dwordx4 {vr(pk+4*b,4)}, v{vOUT}, {srd(sOUT)}, s{sOB} offen offset:{64*b} {opt['outaux']}")
e(f"buffer_store_dwordx2 {vr(pk+8,2)}, v{vOUT2}, {srd(sOUT)}, s{sOB} offen offset:128 {opt['outaux']}")
e(f"s_or_b32 s{sT0}, s{sW}, s2")
e(f"s_cmp_lg_u32 s{sT0}, 0")
e("s_cbranch_scc1 L_nobump")
e(f"s_add_u32 s{sE}, s{sE}, 1")
e(f"v_mov_b32 v{vT}, s{sE}")
e(f"s_mov_b32 s{sT0}, {EP}")
e("s_mov_b64 exec, 1")
e(f"buffer_store_dword v{vT}, off, {srd(sH)}, s{sT0}")
e("s_mov_b64 exec, -1")
e("L_nobump:")
if opt["stamps"]:
    e("s_waitcnt vmcnt(0)")
    stamp(k=-1); stamp(True)
    ns = NST[0]
    assert 72 + 2*ns <= 102
    e("s_waitcnt lgkmcnt(0)")
    if opt["rt"]:
        e(f"s_lshl_b32 s{sT0}, s2, 2")
        e(f"s_add_u32 s{sT0}, s{sT0}, s{sW}")
        e(f"s_mul_i32 s{sT0}, s{sT0}, {ns*8}")
    else:
        e(f"s_cmp_lg_u32 s{sW}, {opt['stamps']-1}")
        e("s_cbranch_scc1 L_end")
        e(f"s_mul_i32 s{sT0}, s2, {ns*8}")
    e("s_mov_b64 exec, 1")
    e(f"s_add_u32 s{sT0}, s{sT0}, 0x8000000")
    e(f"v_mov_b32 v{vT}, s{sT0}")
    for i in range(ns):
        e(f"v_mov_b32 v24, s{72+2*i}"); e(f"v_mov_b32 v25, s{73+2*i}")
        e(f"global_store_dwordx2 v{vT}, v[24:25], s[12:13] offset:{i*8}"); e("s_nop 1")
    sys.stderr.write(f"nstamps {ns}\n")
e("L_end:")

hdr = f"""; FFN out = silu(x @ w1) @ w2, one launch, 256 workgroups (one per CU).
; @launch grid=(256,1,1) block=(256,1,1) lds=163840
.amdgcn_target "amdgcn-amd-amdhsa--gfx950"
.text
.globl {NAME}
.p2align 8
.type {NAME},@function
{NAME}:
"""
ftr = f"""s_endpgm
.section .rodata,"a"
.p2align 6
.amdhsa_kernel {NAME}
  .amdhsa_next_free_vgpr 512
  .amdhsa_next_free_sgpr 102
  .amdhsa_accum_offset 256
  .amdhsa_group_segment_fixed_size 0
  .amdhsa_kernarg_size 48
  .amdhsa_user_sgpr_count 2
  .amdhsa_user_sgpr_kernarg_segment_ptr 1
  .amdhsa_system_sgpr_workgroup_id_x 1
.end_amdhsa_kernel
"""
body = "\n".join(("" if l.endswith(":") else "    ") + l.rstrip() for l in O)
open(sys.argv[1], "w").write(hdr + body + "\n" + ftr)
```

```python
import sys
NAME = "standalone__dense_activation_silu__prompt_kernel"
opt = dict(stamps=0, rot=1, rot2=1, pf=1, outaux="", map=2, raux="nt", xaux="", haux="sc1", hsaux="sc1", hs2="", wb=0, wso=0, sp=0, spg="", nord=0, nomf1=0, norp=0, pk=1, tail=1, b1=4, b2=4, madd=8, pt=0, fst=0, tab="x037", nost=0, novalu=0, nomf2=0, noh=0, hj=1, w2aux="sc1", w1aux="",
           sa=0, ma=10, sb=0, mb=10, mx=0, n8=8, n9=8, nb=0, post=0, pollq=8, hpre=8, sep=0, sts=0, rpos=0, rls=0, rjs=2, rpp=0, rps=7, rck=0, nopoll=0, rfs=4, sl=0, head=50, nf0=4, pre3=0, rt=0, own2=1, ntst=10, mid=2, xlin=0, nor=0)
for a in sys.argv[2:]:
    k, v = a.split("=")
    assert k in opt, k
    opt[k] = int(v) if v.lstrip("-").isdigit() else v.replace("_", " ")
O = []
def e(s): O.append(s)
NST = [0]
def stamp(rt=False, k=0):
    if not opt["stamps"]: return
    if not rt and NST[0] > 1 and k != opt["sts"] and k != -1: return
    i = NST[0]; NST[0] += 1
    e(f"s_memrealtime s[{72+2*i}:{73+2*i}]" if rt or opt["rt"] else f"s_memtime s[{72+2*i}:{73+2*i}]")

class Q:
    def __init__(s, name, mx): s.name = name; s.mx = mx; s.q = []
    def issue(s, tag): s.q.append(tag)
    def wait(s, tag):
        if tag not in s.q: return
        i = len(s.q) - 1 - s.q[::-1].index(tag)
        n = min(len(s.q) - 1 - i, s.mx)
        e(f"s_waitcnt {s.name}({n})")
        s.q = s.q[len(s.q)-n:] if n else []
    def drain(s):
        e(f"s_waitcnt {s.name}(0)"); s.q = []
VM = Q("vmcnt", 63); LG = Q("lgkmcnt", 15)

FL = 0x600000; EP = 0x608000; RFL = 0x610000; W2F = 0x620000; HREC = 0x800000
RED = 98304; RB = 98304; CNT = 159744
sX, sW1, sW2, sOUT, sH = 16, 20, 24, 28, 32
(sW, sMT, sFT, sKX, sKW, sXB, sWB, sXE, sM0, sT0, sT1, sE, sTAG, sHS, sHS2, sFLG, sPOL, sW2B, sOWN, sROT,
 sRS, sRD, sWO, sL2E) = range(36, 60)
sSIG = 60
sPK = 4; sOB = 3; sRFL = 14; sSPIN = 15
vL16 = 1; vL16b = 2; vOUT = 3; vOUT2 = 4; vRW = 5; vRP = 6; vHS = 7
vPOLL = 8; vL4 = 9; vPA = 19
vRR = 10
vHB = 13
vT = 17
vCN = 20; vONE = 21; vAV = 22; vAC = 23
vDX = 24; vDW = 26; vDR = 32
vA = 34; vB = 36
vRA = 44
vTM = 46
vACC1 = 64; vAF = 112; vBF = 160; vS = 176; vRF = 192
vH = 64; vACC2 = 24
def srd(r): return f"s[{r}:{r+3}]"
def vr(r, n): return f"v[{r}:{r+n-1}]"
def ar(r, n): return f"a[{r}:{r+n-1}]"
def capture(fn):
    global O
    sv = O; O = []; fn(); r = O; O = sv; return r

e("s_cmp_ge_u32 s2, 256")
e("s_cbranch_scc1 L_end")
stamp(True); stamp()
e("s_load_dwordx8 s[4:11], s[0:1], 0")
e("s_load_dwordx2 s[12:13], s[0:1], 40")
L, Wv = vTM, vTM+1
t0, t1, t2, t3 = vTM+2, vTM+3, vTM+4, vTM+5
e(f"v_and_b32 v{L}, 63, v0")
e(f"v_lshrrev_b32 v{Wv}, 6, v0")
e(f"v_lshlrev_b32 v{vL16}, 4, v{L}")
e(f"v_readfirstlane_b32 s{sW}, v{Wv}")
if opt["pf"]:
    e("s_getpc_b64 s[14:15]")
    e("L_pc:")
    e(f"s_lshr_b32 s{sT0}, s2, 3")
    e(f"s_and_b32 s{sT0}, s{sT0}, 3")
    e(f"s_lshl_b32 s{sT0}, s{sT0}, 12")
    e(f"v_lshl_add_u32 v{t0}, v0, 4, s{sT0}")
    e(f"v_min_u32 v{t0}, L_end-L_pc-16, v{t0}")
    e(f"global_load_dwordx4 v[252:255], v{t0}, s[14:15]")
    VM.issue("pf")
fa = opt["map"]
e(f"s_and_b32 s{sT0}, s2, 7")
e(f"s_lshr_b32 s{sT1}, s2, 3")
e(f"s_and_b32 s{sFT}, s{sT1}, {(1<<fa)-1}")
e(f"s_lshr_b32 s{sMT}, s{sT1}, {fa}")
if opt["rot"] == 3:
    tb = str(opt["tab"]).lstrip("x")
    tv = sum(int(c) << (4*i) for i, c in enumerate((tb * 16)[:16]))
    e(f"s_mul_i32 s{sKX}, s{sMT}, {opt['ma']}")
    e(f"s_mul_i32 s{sT1}, s{sFT}, {opt['mb']}")
    e(f"s_add_u32 s{sKX}, s{sKX}, s{sT1}")
    e(f"s_lshl_b32 s{sKX}, s{sKX}, 2")
    e(f"s_mov_b32 s{sSIG}, {tv & 0xffffffff}")
    e(f"s_mov_b32 s{sSIG+1}, {tv >> 32}")
    e(f"s_lshr_b64 s[{sSIG}:{sSIG+1}], s[{sSIG}:{sSIG+1}], s{sKX}")
    e(f"s_and_b32 s{sKX}, s{sSIG}, 15")
elif opt["rot"]:
    e(f"s_lshr_b32 s{sKX}, s{sMT}, {opt['sa']}")
    e(f"s_mul_i32 s{sKX}, s{sKX}, {opt['ma']}")
    e(f"s_lshr_b32 s{sT1}, s{sFT}, {opt['sb']}")
    e(f"s_mul_i32 s{sT1}, s{sT1}, {opt['mb']}")
    e(f"s_add_u32 s{sKX}, s{sKX}, s{sT1}")
    if opt['mx']:
        e(f"s_mul_i32 s{sT1}, s{sT0}, {opt['mx']}")
        e(f"s_add_u32 s{sKX}, s{sKX}, s{sT1}")
    e(f"s_lshr_b32 s{sKX}, s{sKX}, 2")
    e(f"s_mul_i32 s{sT1}, s{sKX}, 205")
    e(f"s_lshr_b32 s{sT1}, s{sT1}, 11")
    e(f"s_mul_i32 s{sT1}, s{sT1}, 10")
    e(f"s_sub_u32 s{sKX}, s{sKX}, s{sT1}")
else:
    e(f"s_mov_b32 s{sKX}, 0")
if opt["rot2"] == 2:
    e(f"s_and_b32 s{sROT}, s{sMT}, 3")
    e(f"s_mul_i32 s{sROT}, s{sROT}, 3")
elif opt["rot2"]:
    e(f"s_mul_i32 s{sROT}, s{sMT}, 12")
    e(f"s_lshr_b32 s{sROT}, s{sROT}, {5-fa}")
else:
    e(f"s_mov_b32 s{sROT}, 0")
e(f"s_and_b32 s{sT1}, s{sT0}, {(8>>fa)-1}")
e(f"s_lshl_b32 s{sT1}, s{sT1}, {fa}")
e(f"s_add_u32 s{sFT}, s{sFT}, s{sT1}")
e(f"s_lshr_b32 s{sT1}, s{sT0}, {3-fa}")
e(f"s_lshl_b32 s{sT1}, s{sT1}, {5-fa}")
e(f"s_add_u32 s{sMT}, s{sMT}, s{sT1}")
e(f"s_mul_i32 s{sXB}, s{sMT}, 81920")
e(f"s_mul_i32 s{sWB}, s{sFT}, 384")
e(f"s_add_u32 s{sXE}, s{sXB}, 1280")
e(f"s_mul_i32 s{sKW}, s{sKX}, {64*3072}")
e(f"s_add_u32 s{sKW}, s{sKW}, s{sWB}")
e(f"s_lshl_b32 s{sKX}, s{sKX}, 7")
e(f"s_add_u32 s{sKX}, s{sKX}, s{sXB}")
G = vTM+6
e(f"v_lshrrev_b32 v{G}, 4, v{L}")
e(f"v_lshrrev_b32 v{t0}, 3, v{L}")
e(f"v_lshl_add_u32 v{t0}, v{Wv}, 4, v{t0}")
e(f"v_mul_u32_u24 v{t0}, 1280, v{t0}")
e(f"v_and_b32 v{t1}, 7, v{L}")
e(f"v_xor_b32 v{t1}, v{t1}, v{G}")
e(f"v_lshl_add_u32 v{vDX}, v{t1}, 4, v{t0}")
e(f"v_xor_b32 v{t1}, 4, v{t1}")
e(f"v_lshl_add_u32 v{vDX+1}, v{t1}, 4, v{t0}")
e(f"v_add_u32 v{vDX+1}, {8*1280-1024}, v{vDX+1}")
if opt["xlin"]:
    e(f"v_lshl_add_u32 v{vDX}, v{Wv}, 11, v{vL16}")
    e(f"v_mov_b32 v{vDX+1}, v{vDX}")
    e(f"s_and_b32 s{sT0}, s{sFT}, 3")
    e(f"s_mul_i32 s{sT0}, s{sT0}, {opt['xlin']}")
    e(f"s_lshr_b32 s{sT0}, s{sT0}, 2")
    e(f"s_lshl_b32 s100, s{sT0}, 13")
    e(f"s_add_u32 s100, s100, s{sXB}")
    e(f"s_add_u32 s101, s{sXB}, 81920")
e(f"v_mul_u32_u24 v{t3}, {16*3072}, v{Wv}")
for i in range(3):
    if i: e(f"v_add_u32 v{t0}, {64*i}, v{L}")
    src = t0 if i else L
    e(f"v_mul_u32_u24 v{t1}, 2731, v{src}")
    e(f"v_lshrrev_b32 v{t1}, 16, v{t1}")
    e(f"v_mul_u32_u24 v{t2}, 24, v{t1}")
    e(f"v_sub_u32 v{t0}, v{src}, v{t2}")
    e(f"v_and_b32 v{t2}, 2, v{t1}")
    e(f"v_lshlrev_b32 v{t2}, 1, v{t2}")
    e(f"v_xor_b32 v{t0}, v{t0}, v{t2}")
    e(f"v_mul_u32_u24 v{t1}, 3072, v{t1}")
    e(f"v_lshl_add_u32 v{t0}, v{t0}, 4, v{t1}")
    e(f"v_add_u32 v{t0}, v{t0}, v{t3}")
    if i: e(f"v_subrev_u32 v{vDW+i}, {i*1024}, v{t0}")
    else: e(f"v_mov_b32 v{vDW}, v{t0}")
    e(f"v_add_u32 v{vDW+3+i}, {8*3072 - ((i+3)%4)*1024}, v{t0}")
e(f"s_lshl_b32 s{sM0}, s{sW}, 13")
e(f"s_mov_b32 s{sSPIN}, {EP}")
for r, n in ((sX, 2621440), (sW1, 1966080), (sW2, 1966080), (sOUT, 2621440), (sH, HREC)):
    e(f"s_mov_b32 s{r+2}, {n}"); e(f"s_mov_b32 s{r+3}, 0x20000")
e("s_waitcnt lgkmcnt(0)")
if opt["wso"]:
    e(f"s_add_u32 s12, s12, {opt['wso'] << 20}"); e("s_addc_u32 s13, s13, 0")
for r, p in ((sW2, 8), (sX, 4), (sW1, 6), (sOUT, 10), (sH, 12)):
    e(f"s_mov_b64 s[{r}:{r+1}], s[{p}:{p+1}]")
stamp()
e(f"s_load_dword s{sE}, s[12:13], s{sSPIN}")

def adv_k():
    if opt["xlin"]:
        e(f"s_add_u32 s100, s100, 8192")
        e(f"s_cmp_eq_u32 s100, s101")
        e(f"s_cselect_b32 s100, s{sXB}, s100")
    e(f"s_add_u32 s{sKX}, s{sKX}, 128")
    e(f"s_add_u32 s{sKW}, s{sKW}, {64*3072}")
    e(f"s_cmp_eq_u32 s{sKX}, s{sXE}")
    e(f"s_cselect_b32 s{sKX}, s{sXB}, s{sKX}")
    e(f"s_cselect_b32 s{sKW}, s{sWB}, s{sKW}")
def dma_ops(st):
    base = (st % 3) * 32768
    def mk(i):
        def f():
            if i == 0: e(f"s_add_u32 m0, s{sM0}, {base+6144}"); e("s_nop 0")
            if i < 2:
                e(f"buffer_load_dwordx4 v{vDX+i}, {srd(sX)}, s{100 if opt['xlin'] else sKX} offen offset:{i*1024} {opt['xaux'] if st < opt['ntst'] else ''} lds")
            else:
                j = i - 2
                e(f"buffer_load_dwordx4 v{vDW+j}, {srd(sW1)}, s{sKW} offen offset:{(j%4)*1024} {opt['w1aux'] if st < opt['ntst'] else ''} lds")
            VM.issue(f"st{st}")
            if i == 1: e(f"s_add_u32 m0, s{sM0}, {base}"); e("s_nop 0")
            if i == 5: e(f"s_add_u32 m0, s{sM0}, {base+4096}"); e("s_nop 0")
            if i == 7 and st < 9: adv_k()
        return f
    return [mk(i) for i in range(8)]

def setup2():
    R, C = t0, t1
    u0, u1, u2 = vTM+7, vTM+8, vTM+9
    e(f"s_and_b32 s{sT0}, s2, 63")
    e(f"s_mul_i32 s{sT1}, s{sT0}, 205")
    e(f"s_lshr_b32 s{sT1}, s{sT1}, 10")
    e(f"s_mul_i32 s{sRS}, s{sT1}, 5")
    e(f"s_sub_u32 s{sRS}, s{sT0}, s{sRS}")
    e(f"s_lshr_b32 s{sRD}, s2, 6")
    e(f"s_mul_i32 s{sRFL}, s{sRD}, 5")
    e(f"s_add_u32 s{sRFL}, s{sRFL}, s{sRS}")
    e(f"s_lshl_b32 s{sRFL}, s{sRFL}, 4")
    e(f"s_add_u32 s{sRFL}, s{sRFL}, s{sT1}")
    e(f"s_lshl_b32 s{sRFL}, s{sRFL}, 7")
    e(f"s_mul_i32 s{sRD}, s{sRD}, 12")
    e(f"s_add_u32 s{sT1}, s{sT1}, s{sRD}")
    e(f"s_mul_i32 s{sT1}, s{sT1}, 40960")
    e(f"s_lshl_b32 s{sRD}, s{sRS}, 13")
    e(f"s_add_u32 s{sRD}, s{sRD}, s{sT1}")
    e(f"s_lshl_b32 s{sRS}, s{sRS}, 8")
    e(f"s_add_u32 s{sRS}, s{sRS}, s{sT1}")
    e(f"s_lshl_b32 s{sT1}, s{sW}, 11")
    e(f"s_add_u32 s{sRD}, s{sRD}, s{sT1}")
    e(f"s_add_u32 s{sRD}, s{sRD}, {W2F}")
    e(f"s_cmp_lt_u32 s{sT0}, {0 if opt['nor'] else 60}")
    e(f"s_cselect_b32 s{sRS}, s{sRS}, 1966080")
    e(f"s_cselect_b32 s{sRD}, s{sRD}, {HREC}")
    if opt["pt"] & 1:
        e(f"s_min_u32 s{sT1}, s{sRS}, {1966080-4}")
        e(f"s_load_dword s6, s[8:9], s{sT1}")
    if opt["pt"] & 2:
        e(f"s_mul_i32 s{sT1}, s{sMT}, {64*3072}")
        e(f"s_load_dword s6, s[12:13], s{sT1}")
    if opt["pt"] & 4:
        e(f"s_load_dword s6, s[10:11], s{sXB}")
    if opt["pt"] & 8:
        e(f"s_load_dword s6, s[12:13], s{sRD}")
    e(f"v_lshl_add_u32 v{t0}, v{Wv}, 3, v{G}")
    e(f"v_mul_u32_u24 v{t0}, 1280, v{t0}")
    e(f"v_and_b32 v{t1}, 15, v{L}")
    e(f"v_lshlrev_b32 v{t2}, 1, v{G}")
    e(f"v_xor_b32 v{t1}, v{t1}, v{t2}")
    e(f"v_lshl_add_u32 v{vDR}, v{t1}, 4, v{t0}")
    e(f"v_xor_b32 v{t1}, 8, v{t1}")
    e(f"v_lshl_add_u32 v{vDR+1}, v{t1}, 4, v{t0}")
    e(f"v_add_u32 v{vDR+1}, {4*1280-1024}, v{vDR+1}")
    e(f"v_bfe_u32 v{R}, v{L}, 2, 2")
    e(f"v_and_b32 v{C}, 3, v{L}")
    e(f"v_lshrrev_b32 v{u0}, 1, v{G}")
    e(f"v_lshl_add_u32 v{u0}, v{u0}, 3, v{R}")
    e(f"v_mul_u32_u24 v{u0}, 384, v{u0}")
    e(f"v_lshrrev_b32 v{u1}, 1, v{R}")
    e(f"v_xor_b32 v{u1}, v{u1}, v{Wv}")
    e(f"v_and_b32 v{u1}, 1, v{u1}")
    e(f"v_lshl_add_u32 v{u0}, v{u1}, 6, v{u0}")
    e(f"v_and_b32 v{u1}, 1, v{G}")
    e(f"v_lshl_add_u32 v{u0}, v{u1}, 5, v{u0}")
    e(f"v_lshl_add_u32 v{vA}, v{C}, 3, v{u0}")
    e(f"v_add_u32 v{vA+1}, 65536, v{vA}")
    e(f"v_and_b32 v{u0}, 2, v{Wv}")
    e(f"v_add_u32 v{u0}, v{u0}, v{u1}")
    e(f"v_lshlrev_b32 v{u0}, 13, v{u0}")
    e(f"v_and_b32 v{u2}, 15, v{L}")
    e(f"v_lshl_add_u32 v{u0}, v{u2}, 7, v{u0}")
    e(f"v_add_u32 v{u0}, 6144, v{u0}")
    e(f"v_lshrrev_b32 v{u1}, 1, v{u2}")
    e(f"v_lshrrev_b32 v{t2}, 5, v{L}")
    e(f"v_xor_b32 v{u1}, v{u1}, v{t2}")
    e(f"v_lshl_add_u32 v{vB}, v{u1}, 4, v{u0}")
    for k in range(1, 4): e(f"v_xor_b32 v{vB+k}, {32*k}, v{vB}")
    for k in range(4): e(f"v_add_u32 v{vB+4+k}, 65536, v{vB+k}")
    e(f"v_and_b32 v{u1}, 1, v{G}")
    e(f"v_lshl_add_u32 v{u1}, v{u1}, 2, v{R}")
    e(f"v_lshlrev_b32 v{u0}, 12, v{t2}")
    e(f"v_lshl_add_u32 v{u0}, v{u1}, 8, v{u0}")
    e(f"v_lshlrev_b32 v{t3}, 1, v{Wv}")
    e(f"v_xor_b32 v{u1}, v{u1}, v{t3}")
    e(f"v_lshl_add_u32 v{u0}, v{u1}, 5, v{u0}")
    e(f"v_and_b32 v{u1}, 1, v{C}")
    e(f"v_lshl_add_u32 v{u0}, v{u1}, 4, v{u0}")
    e(f"v_lshrrev_b32 v{u1}, 1, v{C}")
    e(f"v_lshl_add_u32 v{u0}, v{u1}, 3, v{u0}")
    e(f"v_add_u32 v{vRA}, {RB}, v{u0}")
    e(f"v_xor_b32 v{vRA+1}, 32, v{vRA}")
    e(f"v_mov_b32 v{vCN}, {CNT}")
    e(f"v_mov_b32 v{vONE}, 0")
    e(f"ds_write_b32 v{vCN}, v{vONE}"); LG.issue("cnt")
    for i in range(48): e(f"v_mov_b32 v{vACC1+i}, 0")
    e(f"v_mov_b32 v{vONE}, 1")
    e(f"v_and_b32 v{u1}, 1, v{G}")
    e(f"v_mul_u32_u24 v{u0}, 12288, v{u1}")
    e(f"v_lshl_add_u32 v{u0}, v{t2}, 8, v{u0}")
    e(f"v_lshl_add_u32 v{vHS}, v{u2}, 4, v{u0}")
    e(f"v_mul_u32_u24 v{u0}, 1280, v{u2}")
    e(f"v_lshl_add_u32 v{vOUT}, v{G}, 4, v{u0}")
    e(f"v_lshl_add_u32 v{u0}, v{u1}, 4, v{u0}")
    e(f"v_lshl_add_u32 v{vOUT2}, v{t2}, 3, v{u0}")
    e(f"v_add_u32 v{vL16b}, 4096, v{vL16}")
    e(f"s_mul_i32 s{sT0}, s{sFT}, 5")
    e(f"v_lshl_add_u32 v{u0}, v{u1}, 2, s{sT0}")
    e(f"v_lshrrev_b32 v{u0}, 3, v{u0}")
    e(f"v_mad_u32_u24 v{u0}, v{Wv}, 5, v{u0}")
    e(f"v_min_u32 v{vRP}, 11, v{u2}")
    e(f"v_lshlrev_b32 v{vRP}, 7, v{vRP}")
    e(f"v_lshl_add_u32 v{vRP}, v{u0}, 11, v{vRP}")
    e(f"v_lshlrev_b32 v{vL4}, 2, v{L}")
    e(f"v_lshlrev_b32 v{vPA}, 7, v{u1}")
    e(f"v_mul_u32_u24 v{u0}, 205, v{L}")
    e(f"v_lshrrev_b32 v{u0}, 10, v{u0}")
    e(f"v_sub_u32 v{vAC}, v{Wv}, v{u0}")
    e(f"v_mad_i32_i24 v{vAC}, v{vAC}, 5, v{L}")
    e(f"v_lshlrev_b32 v{vAC}, 11, v{vAC}")
    e(f"v_lshl_add_u32 v{vAC}, v{u0}, 7, v{vAC}")
    e(f"s_mul_i32 s{sT0}, s{sW}, 15360")
    e(f"s_add_u32 s{sT0}, s{sT0}, {RED}")
    e(f"v_add_u32 v{vRW}, s{sT0}, v{vL16}")
    for p in range(3):
        e(f"s_sub_u32 s{sT0}, s{sW}, {1+p}")
        e(f"s_and_b32 s{sT0}, s{sT0}, 3")
        e(f"s_mul_i32 s{sT0}, s{sT0}, 15360")
        e(f"s_add_u32 s{sT0}, s{sT0}, {RED + p*5120}")
        e(f"v_add_u32 v{vRR+p}, s{sT0}, v{vL16}")
    e(f"s_mul_i32 s{sW2B}, s{sW}, {12*40960}")
    e(f"s_mul_i32 s{sT0}, s{sFT}, 5120")
    e(f"s_add_u32 s{sW2B}, s{sW2B}, s{sT0}")
    e(f"s_add_u32 s{sW2B}, s{sW2B}, {W2F}")
    for n in range(12):
        e(f"s_lshl_b32 s{sSIG+n}, s{sROT}, 10")
        if n < 11:
            e(f"s_add_u32 s{sROT}, s{sROT}, 1")
            e(f"s_cmp_ge_u32 s{sROT}, 12")
            e(f"s_cselect_b32 s{sROT}, 0, s{sROT}")
    if opt["own2"]:
        e(f"s_lshl_b32 s{sOWN}, s{sFT}, 1")
        e(f"s_add_u32 s{sOWN}, s{sW}, s{sOWN}")
    else: e(f"s_add_u32 s{sOWN}, s{sW}, s{sFT}")
    e(f"s_and_b32 s{sOWN}, s{sOWN}, 3")
    e(f"s_lshl_b32 s{sT1}, s{sMT}, 2")
    e(f"s_add_u32 s{sT1}, s{sT1}, s{sW}")
    e(f"s_lshl_b32 s{sPOL}, s{sT1}, 8")
    e(f"s_add_u32 s{sPOL}, s{sPOL}, {FL}")
    e(f"s_lshl_b32 s{sT1}, s{sT1}, 2")
    for p in range(4):
        e(f"s_add_u32 s{sT0}, s{sOWN}, {1+p}")
        e(f"s_and_b32 s{sT0}, s{sT0}, 3")
        e(f"s_add_u32 s{sT0}, s{sT0}, s{sT1}")
        e(f"s_mul_i32 s{sT0}, s{sT0}, 12288")
        e(f"v_add_u32 v{vHB+p}, s{sT0}, v{vL16}")
    e(f"s_lshl_b32 s{sOB}, s{sMT}, 2")
    e(f"s_add_u32 s{sOB}, s{sOB}, s{sOWN}")
    e(f"s_mul_i32 s{sOB}, s{sOB}, {16*1280}")
    e(f"s_mul_i32 s{sT0}, s{sFT}, 160")
    e(f"s_add_u32 s{sOB}, s{sOB}, s{sT0}")
    e(f"s_lshl_b32 s{sT0}, s{sMT}, 2")
    e(f"s_lshr_b32 s{sT1}, s{sFT}, 1")
    e(f"s_add_u32 s{sT0}, s{sT0}, s{sT1}")
    e(f"s_lshl_b32 s{sFLG}, s{sT0}, 8")
    e(f"s_lshl_b32 s{sT0}, s{sT0}, 2")
    e(f"s_and_b32 s{sT1}, s{sW}, 2")
    e(f"s_add_u32 s{sT0}, s{sT0}, s{sT1}")
    e(f"s_mul_i32 s{sHS}, s{sT0}, 12288")
    e(f"s_and_b32 s{sT0}, s{sFT}, 1")
    e(f"s_lshl_b32 s{sT1}, s{sT0}, 7")
    e(f"s_add_u32 s{sFLG}, s{sFLG}, s{sT1}")
    e(f"s_add_u32 s{sFLG}, s{sFLG}, {FL}")
    e(f"s_mul_i32 s{sT0}, s{sT0}, 6")
    e(f"s_and_b32 s{sT1}, s{sW}, 1")
    e(f"s_add_u32 s{sT0}, s{sT0}, s{sT1}")
    e(f"s_lshl_b32 s{sT0}, s{sT0}, 10")
    e(f"s_add_u32 s{sHS}, s{sHS}, s{sT0}")
    e(f"s_add_u32 s{sHS2}, s{sHS}, 4096")
    e(f"s_add_u32 s{sRFL}, s{sRFL}, {RFL}")
    e(f"s_cmp_eq_u32 s{sW}, 0")
    e(f"s_cselect_b32 s{sRFL}, s{sRFL}, {HREC}")
    e(f"s_mov_b32 s{sL2E}, 0xbfb8aa3b")
    if opt["pk"]:
        e(f"s_mov_b32 s{sPK}, 0xbfb8aa3b"); e(f"s_mov_b32 s{sPK+1}, 0xbfb8aa3b")
def r_loads():
    e(f"s_lshr_b32 m0, s{sM0}, 2")
    e(f"s_add_u32 m0, m0, {RB}")
    e("s_nop 0")
    for i in range(2):
        e(f"buffer_load_dwordx4 v{vDR+i}, {srd(sW2)}, s{sRS} offen offset:{i*1024} {opt['raux']} lds"); VM.issue("rld")
def r_reads():
    for ee in range(2):
        for t in range(2):
            e(f"ds_read_b64_tr_b16 {vr(vRF + 4*ee + 2*t, 2)}, v{vRA+ee} offset:{t*2048}"); LG.issue("rrd")
def r_stores():
    LG.wait("rrd")
    for ee in range(2):
        e(f"buffer_store_dwordx4 {vr(vRF+4*ee,4)}, v{vL16}, {srd(sH)}, s{sRD} offen offset:{ee*1024} sc1"); VM.issue("rst")
S2 = capture(setup2)
groups = []
for l in S2:
    if l.startswith("s_cselect") or (groups and groups[-1][-1].startswith("s_cmp")): groups[-1].append(l)
    else: groups.append([l])
first = dma_ops(0) + dma_ops(1) + (dma_ops(2) if opt["pre3"] else [])
if opt["rls"] < 0: first.append(r_loads)
NF0 = opt["nf0"]
for f in first[:NF0]: f()
if opt["fst"]:
    e(f"s_waitcnt vmcnt({NF0-1})"); stamp(k=5)
    e(f"s_waitcnt vmcnt({NF0-3})"); stamp(k=5)
rest = first[NF0:]
per = (len(groups) + len(rest) - 1) // len(rest)
head = len(groups) * opt["head"] // 100
for g in groups[:head]: O.extend(g)
groups = groups[head:]
per = (len(groups) + len(rest) - 1) // len(rest)
for f in rest:
    f()
    for g in groups[:per]: O.extend(g)
    groups = groups[per:]
assert not groups
stamp()

def w2_ops():
    ops = []
    for n in range(12):
        for j in range(5):
            def f(n=n, j=j):
                if j == 0:
                    e(f"s_mul_i32 s{sWO}, s{sSIG+n}, 40")
                    e(f"s_add_u32 s{sWO}, s{sWO}, s{sW2B}")
                va = vL16 if j < 4 else vL16b
                e(f"buffer_load_dwordx4 {ar(n*20+4*j, 4)}, v{va}, {srd(sH)}, s{sWO} offen offset:{(j%4)*1024} {opt['w2aux'].replace('-','')}")
                VM.issue("w2")
            ops.append(f)
    return ops
W2L = w2_ops()
def take(n):
    r = W2L[:n]; del W2L[:n]; return r

def rd_ops(st, half):
    slot = st % 3
    sb = (slot % 2) * 32768 if slot < 2 else 0
    hi = 1 if slot == 2 else 0
    ops = []
    if opt["nord"]: return ops
    for kk in range(2):
        ks = 2*half + kk
        def b(ks=ks, kk=kk):
            e(f"ds_read_b128 {vr(vBF + (half*2+kk)*4, 4)}, v{vB + 4*hi + ks} offset:{sb}"); LG.issue(f"B{ks}")
        ops.append(b)
        for q in range(3):
            for t in range(2):
                def a(ks=ks, kk=kk, q=q, t=t):
                    e(f"ds_read_b64_tr_b16 {vr(vAF + half*24 + (kk*3+q)*4 + 2*t, 2)}, v{vA+hi} offset:{sb + ks*8192 + t*1536 + q*128}")
                    LG.issue(f"A{ks}{q}")
                ops.append(a)
    return ops
def mfma1(half, kk, q):
    ks = 2*half + kk
    LG.wait(f"A{ks}{q}")
    if opt["nomf1"]: return
    e(f"v_mfma_f32_32x32x16_bf16 {vr(vACC1+16*q,16)}, {vr(vAF + half*24 + (kk*3+q)*4, 4)}, {vr(vBF + (half*2+kk)*4, 4)}, {vr(vACC1+16*q,16)}")
def half_body(mf_half, rds, fill):
    rds = list(rds); fill = list(fill)
    for i in range(6):
        if mf_half is not None: mfma1(mf_half, i // 3, i % 3)
        left = 6 - i
        for _ in range((len(rds) + left - 1) // left if i else min(len(rds), 4)):
            if rds: rds.pop(0)()
        for _ in range((len(fill) + left - 1) // left):
            if fill: fill.pop(0)()
    assert not rds and not fill

def flag_store(off):
    e(f"v_mov_b32 v{vT}, s{sTAG}")
    e("s_mov_b32 exec_hi, 0")
    e(f"buffer_store_dword v{vT}, v{vL4}, {srd(sH)}, s{off} offen sc1"); VM.issue("flag")
    e("s_mov_b32 exec_hi, -1")
def r_poll():
    e(f"s_mov_b32 s{sT0}, {HREC if opt['norp'] else RFL}")
    e(f"buffer_load_dword v{vPOLL}, v{vRP}, {srd(sH)}, s{sT0} offen sc1"); VM.issue("rpoll")

def spin_check(lab, vv, va, tag, so=None, fake=False):
    VM.wait(tag)
    e(f"s_mov_b32 s{sSPIN}, 20000")
    e(f"L_{lab}:")
    e(f"v_cmp_ne_u32 vcc, s{sTAG}, v{vv}")
    e("s_cmp_eq_u64 vcc, 0" if not fake else "s_cmp_eq_u32 s2, s2")
    e(f"s_cbranch_scc1 L_{lab}_go")
    e(f"s_sub_u32 s{sSPIN}, s{sSPIN}, 1")
    e(f"s_cmp_eq_u32 s{sSPIN}, 0")
    e(f"s_cbranch_scc1 L_{lab}_go")
    if so is None: e(f"s_mov_b32 s{sT0}, {RFL}")
    e(f"buffer_load_dword v{vv}, v{va}, {srd(sH)}, s{sT0 if so is None else so} offen sc1")
    e("s_waitcnt vmcnt(0)")
    e(f"s_branch L_{lab}")
    e(f"L_{lab}_go:")
def r_check(): spin_check("rp", vPOLL, vRP, "rpoll", None, opt["norp"])

for st in range(10):
    VM.wait(f"st{st}")
    if st == opt["rjs"]: VM.wait("rld")
    if st == opt["rfs"]: VM.wait("rst")
    LG.drain()
    e("s_barrier")
    if st == 9: stamp()
    stamp(k=1)
    if st >= 8: stamp(k=4)
    if st == opt["rfs"]:
        e(f"s_mul_i32 s{sTAG}, s{sE}, 0x9E3779B1")
        e(f"s_add_u32 s{sTAG}, s{sTAG}, 0x7F4A7C15")
        flag_store(sRFL)
    if (st == 8 and opt["rck"] == 0) or (st == 9 and opt["rck"] == 2): r_check()
    if st == 0 and opt["pre3"]: fill = []
    elif st < 8: fill = dma_ops(st + 2)
    else: fill = take(opt["n8"] if st == 8 else opt["n9"])
    if st == opt["rls"]: fill = [r_loads] + fill if opt["rpos"] == 0 else fill + [r_loads]
    if st == opt["rjs"]: fill = [r_reads] + fill + [r_stores]
    if st == opt["rps"]: fill.insert(opt["rpp"], r_poll)
    h = (len(fill) + 1) // 2
    f0, f1 = fill[:h], fill[h:]
    if st == 8 and opt["rck"] == 1:
        k = 1 if opt["rps"] == 8 else 0
        f0, f1 = fill[:k], [r_check] + fill[k:]
    half_body(1 if st else None, rd_ops(st, 0), f0)
    half_body(0, rd_ops(st, 1), f1)
stamp()
PEND = []
def silu_block(q, g2):
    a0 = vACC1 + 16*q + 8*g2
    bi = 2*q + g2
    tt = vS + (bi % 2) * 8
    pk = vRF + bi * 4
    ops = []
    if opt["pk"]:
        for r in range(0, 8, 2): ops.append(f"v_pk_mul_f32 {vr(tt+r,2)}, {vr(a0+r,2)}, s[{sPK}:{sPK+1}]")
        for r in range(8): ops.append(f"v_exp_f32 v{tt+r}, v{tt+r}")
        for r in range(0, 8, 2): ops.append(f"v_pk_add_f32 {vr(tt+r,2)}, {vr(tt+r,2)}, 1.0 op_sel_hi:[1,0]")
        for r in range(8): ops.append(f"v_rcp_f32 v{tt+r}, v{tt+r}")
        for r in range(0, 8, 2): ops.append(f"v_pk_mul_f32 {vr(tt+r,2)}, {vr(a0+r,2)}, {vr(tt+r,2)}")
    else:
        for r in range(8): ops.append(f"v_mul_f32 v{tt+r}, s{sL2E}, v{a0+r}")
        for r in range(8): ops.append(f"v_exp_f32 v{tt+r}, v{tt+r}")
        for r in range(8): ops.append(f"v_add_f32 v{tt+r}, 1.0, v{tt+r}")
        for r in range(8): ops.append(f"v_rcp_f32 v{tt+r}, v{tt+r}")
        for r in range(8): ops.append(f"v_mul_f32 v{tt+r}, v{a0+r}, v{tt+r}")
    for r in range(4): ops.append(f"v_cvt_pk_bf16_f32 v{pk+r}, v{tt+2*r}, v{tt+2*r+1}")
    nbs = str(opt["nb"]).lstrip("x")
    fill = take(int(nbs[bi] if len(nbs) > 1 else nbs))
    step = len(ops) // (len(fill) + 1) if fill else 0
    for i, l in enumerate(ops):
        if not opt["novalu"]: e(l)
        if fill and step and (i + 1) % step == 0: fill.pop(0)()
    for f in fill: f()
    so = sHS if q < 2 else sHS2
    def st_():
        if opt["nost"]: return
        e(f"buffer_store_dwordx4 {vr(pk,4)}, v{vHS}, {srd(sH)}, s{so} offen offset:{g2*512 + (q%2)*2048} {opt['hsaux'].replace('-','')}"); VM.issue("hst")
        if opt["hs2"]:
            e(f"buffer_store_dwordx4 {vr(pk,4)}, v{vHS}, {srd(sH)}, s{so} offen offset:{g2*512 + (q%2)*2048} {opt['hs2'].replace('-','')}"); VM.issue("hst")
    PEND.append(st_)
    if bi >= opt["sl"]:
        while PEND: PEND.pop(0)()
for q in range(3):
    for kk in range(2): mfma1(1, kk, q)
e("s_nop 7")
stamp(k=4)
if opt["sts"] == 4: VM.drain(); stamp(k=4)
for q in range(3):
    for g2 in range(2): silu_block(q, g2)
stamp(); stamp(k=4)
for f in take(opt["post"]): f()
if opt["wb"]:
    VM.wait("hst")
    e("buffer_wbl2 sc1"); VM.issue("hst")
VM.wait("hst")
stamp(k=4)
if opt["sts"] == 4: VM.drain(); stamp(k=4)
e("s_mov_b64 exec, 1")
e(f"ds_add_rtn_u32 v{vT+1}, v{vCN}, v{vONE}")
e("s_mov_b64 exec, -1")
for f in take(opt["mid"]): f()
e("s_waitcnt lgkmcnt(0)")
e(f"v_readfirstlane_b32 s{sT0}, v{vT+1}")
e(f"s_cmp_eq_u32 s{sT0}, {3 if opt['nopoll'] < 2 else 9}")
e(f"s_cselect_b32 s{sFLG}, s{sFLG}, {HREC}")
if opt["nopoll"] == 3: e(f"s_mov_b32 s{sPOL}, {HREC}")
flag_store(sFLG)
stamp(); stamp(k=3)
for f in take(max(0, len(W2L) - opt["pollq"])): f()
stamp(k=3)
if opt["sts"] == 3: VM.drain(); stamp(k=3)
if opt["sts"] == 4: stamp(k=4); VM.drain(); stamp(k=4)
if opt["sp"]:
    e(f"s_load_dword s6, s[12:13], s{sPOL} {opt['spg']}")
    e(f"s_add_u32 s{sT0}, s{sPOL}, 128")
    e(f"s_load_dword s7, s[12:13], s{sT0} {opt['spg']}")
    for f in take(len(W2L)): f()
    stamp(k=3)
    e("s_waitcnt lgkmcnt(0)")
    stamp(k=3)
    stamp()
    e(f"s_cmp_eq_u32 s6, s{sTAG}")
    e(f"s_cselect_b32 s6, s7, s6")
    e(f"s_cmp_eq_u32 s6, s{sTAG}")
    e("s_cbranch_scc1 L_hp_go")
    e(f"v_mov_b32 v{vPOLL}, s6")
    spin_check("hp", vPOLL, vPA, "poll", sPOL, opt["nopoll"])
else:
    e(f"buffer_load_dword v{vPOLL}, v{vPA}, {srd(sH)}, s{sPOL} offen sc1"); VM.issue("poll")
    for f in take(len(W2L)): f()
    stamp(k=3)
    VM.wait("poll")
    stamp(k=3)
    stamp()
    spin_check("hp", vPOLL, vPA, "poll", sPOL, opt["nopoll"])
stamp(); stamp(k=2); stamp(k=3)
e("s_cmp_eq_u32 s2, 0")
e(f"s_cselect_b32 s{sT0}, {RFL}, s{sH+2}")
e(f"buffer_load_dword v{vAV}, v{vAC}, {srd(sH)}, s{sT0} offen sc1"); VM.issue("allc")
HL = [(p, n) for p in range(4) for n in range(12)]
def hload():
    if HL:
        p, n = HL.pop(0)
        if opt["noh"] and (p*12+n) % opt["noh"]: return
        e(f"buffer_load_dwordx4 {vr(vH + (p*12+n)*4, 4)}, v{vHB+p}, {srd(sH)}, s{sSIG+n} offen {opt['haux'].replace('-','')}"); VM.issue(f"h{p}_{n}")
for _ in range(opt["hpre"]): hload()
stamp()
def allc_check():
    e("s_cmp_lg_u32 s2, 0")
    e("s_cbranch_scc1 L_ac_go")
    assert "allc" not in VM.q
    spin_check("ac", vAV, vAC, "allc")
def phase2_new():
    B1, B2, MA = opt["b1"], opt["b2"], opt["madd"]
    for p in range(4):
        ac = vACC2 + (p % 2) * 20
        pa = vACC2 + ((p-1) % 2) * 20
        slots = {(n, j): [] for n in range(12) for j in range(5)}
        if p > 0:
            for jj, pos in enumerate([(1, 0), (1, 2), (1, 4), (2, 1), (2, 3)]):
                def w(jj=jj):
                    e(f"ds_write_b128 v{vRW}, {vr(pa+4*jj,4)} offset:{(p-1)*5120 + jj*1024}"); LG.issue("red")
                slots[pos].append(w)
        def rd(pp, j, dst):
            def f():
                e(f"ds_read_b128 {vr(dst, 4)}, v{vRR+pp} offset:{j*1024}"); LG.issue(f"rr{pp}{j}")
            return f
        if p == 2:
            k = 0
            for j in range(5):
                for pp in range(2):
                    slots[(B1 + k // 5, k % 5)].append(rd(pp, j, vH + pp*20 + 4*j)); k += 1
            assert B1 + 3 <= 8
            for i in range(20):
                def a(i=i):
                    LG.wait(f"rr1{i//4}")
                    e(f"v_add_f32 v{pa+i}, v{vH+i}, v{vH+20+i}")
                slots[(8 + i // 5, i % 5)].append(a)
        if p == 3:
            for j in range(5): slots[(B2, j)].append(rd(2, j, vH + 4*j))
        for n in range(12):
            if (p == 2 and n == B1) or (p == 3 and n == B2):
                if p == 3: allc_check(); stamp(k=2)
                LG.drain(); e("s_barrier")
                if p == 3: stamp(k=2)
            VM.wait(f"h{p}_{n}")
            if n == 0 or (n == 6 and p < 3): stamp(k=2)
            def madd(j):
                LG.wait(f"rr2{j}")
                for r in range(4): e(f"v_add_f32 v{ac+4*j+r}, v{ac+4*j+r}, v{vH+4*j+r}")
            mid = p == 3 and n == MA
            if mid: e("s_nop 3"); madd(0)
            for j in range(5):
                c = "0" if n == 0 and p < 3 else vr(ac+4*j, 4)
                if mid:
                    if j < 4: madd(j+1)
                    else: e("s_nop 0")
                e(f"v_mfma_f32_16x16x32_bf16 {vr(ac+4*j,4)}, {ar(n*20+4*j,4)}, {vr(vH+(p*12+n)*4,4)}, {c}")
                if j == opt["hj"]: hload()
                for f in slots[(n, j)]: f()
    stamp(); stamp(k=2)
    ac = vACC2 + 20
    pk = vH + 64
    def cvt(j):
        for r in range(2): e(f"v_cvt_pk_bf16_f32 v{pk+2*j+r}, v{ac+4*j+2*r}, v{ac+4*j+2*r+1}")
    def swp(b):
        e(f"v_permlane32_swap_b32 v{pk+4*b}, v{pk+4*b+2}")
        e(f"v_permlane32_swap_b32 v{pk+4*b+1}, v{pk+4*b+3}")
        e(f"buffer_store_dwordx4 {vr(pk+4*b,4)}, v{vOUT}, {srd(sOUT)}, s{sOB} offen offset:{64*b} {opt['outaux']}")
    e("s_nop 3")
    cvt(0); cvt(1); cvt(2); swp(0); cvt(3); cvt(4); swp(1)
    e(f"buffer_store_dwordx2 {vr(pk+8,2)}, v{vOUT2}, {srd(sOUT)}, s{sOB} offen offset:128 {opt['outaux']}")
def phase2_old():
    for p in range(4):
        ac = vACC2 + (p % 2) * 20
        for n in range(12):
            VM.wait(f"h{p}_{n}")
            if n == 0 or (n == 6 and p < 3): stamp(k=2)
            if n == 0: stamp(k=3)
            for j in range(5):
                c = "0" if n == 0 else vr(ac+4*j, 4)
                if j >= opt["nomf2"]: e(f"v_mfma_f32_16x16x32_bf16 {vr(ac+4*j,4)}, {ar(n*20+4*j,4)}, {vr(vH+(p*12+n)*4,4)}, {c}")
                if j == opt["hj"]: hload()
                if p > 0 and n >= 2 and n < 7 and j == 3:
                    pa = vACC2 + ((p-1) % 2) * 20; jj = n - 2
                    e(f"ds_write_b128 v{vRW}, {vr(pa+4*jj,4)} offset:{(p-1)*5120 + jj*1024}"); LG.issue("red")
            if p == 3 and n == 7:
                e("s_cmp_lg_u32 s2, 0")
                e("s_cbranch_scc1 L_ac_go")
                assert "allc" not in VM.q
                spin_check("ac", vAV, vAC, "allc")
                stamp(k=2)
                LG.drain(); e("s_barrier")
                stamp(k=2)
                for pp in range(3):
                    for j in range(5):
                        e(f"ds_read_b128 {vr(vH + (pp*5+j)*4, 4)}, v{vRR+pp} offset:{j*1024}"); LG.issue("rr")
            if p == 3 and n == 9:
                LG.drain()
                for i in range(20): e(f"v_add_f32 v{vH+i}, v{vH+i}, v{vH+20+i}")
            if p == 3 and n == 10:
                for i in range(20): e(f"v_add_f32 v{vH+i}, v{vH+i}, v{vH+40+i}")
    stamp(); stamp(k=2)
    ac = vACC2 + 20
    e("s_nop 3")
    for j in range(5):
        for r in range(4): e(f"v_add_f32 v{vH+4*j+r}, v{vH+4*j+r}, v{ac+4*j+r}")
    pk = vH + 64
    for j in range(5):
        for r in range(2): e(f"v_cvt_pk_bf16_f32 v{pk+2*j+r}, v{vH+4*j+2*r}, v{vH+4*j+2*r+1}")
    e("s_nop 1")
    for b in range(2):
        e(f"v_permlane32_swap_b32 v{pk+4*b}, v{pk+4*b+2}")
        e(f"v_permlane32_swap_b32 v{pk+4*b+1}, v{pk+4*b+3}")
    for b in range(2):
        e(f"buffer_store_dwordx4 {vr(pk+4*b,4)}, v{vOUT}, {srd(sOUT)}, s{sOB} offen offset:{64*b} {opt['outaux']}")
    e(f"buffer_store_dwordx2 {vr(pk+8,2)}, v{vOUT2}, {srd(sOUT)}, s{sOB} offen offset:128 {opt['outaux']}")
if opt["tail"]: phase2_new()
else: phase2_old()
e(f"s_or_b32 s{sT0}, s{sW}, s2")
e(f"s_cmp_lg_u32 s{sT0}, 0")
e("s_cbranch_scc1 L_nobump")
e(f"s_add_u32 s{sE}, s{sE}, 1")
e(f"v_mov_b32 v{vT}, s{sE}")
e(f"s_mov_b32 s{sT0}, {EP}")
e("s_mov_b64 exec, 1")
e(f"buffer_store_dword v{vT}, off, {srd(sH)}, s{sT0}")
e("s_mov_b64 exec, -1")
e("L_nobump:")
if opt["stamps"]:
    e("s_waitcnt vmcnt(0)")
    stamp(k=-1); stamp(True)
    ns = NST[0]
    assert 72 + 2*ns <= 102
    e("s_waitcnt lgkmcnt(0)")
    if opt["rt"]:
        e(f"s_lshl_b32 s{sT0}, s2, 2")
        e(f"s_add_u32 s{sT0}, s{sT0}, s{sW}")
        e(f"s_mul_i32 s{sT0}, s{sT0}, {ns*8}")
    else:
        e(f"s_cmp_lg_u32 s{sW}, {opt['stamps']-1}")
        e("s_cbranch_scc1 L_end")
        e(f"s_mul_i32 s{sT0}, s2, {ns*8}")
    e("s_mov_b64 exec, 1")
    e(f"s_add_u32 s{sT0}, s{sT0}, {0x8000000 - (opt['wso'] << 20)}")
    e(f"v_mov_b32 v{vT}, s{sT0}")
    for i in range(ns):
        e(f"v_mov_b32 v24, s{72+2*i}"); e(f"v_mov_b32 v25, s{73+2*i}")
        e(f"global_store_dwordx2 v{vT}, v[24:25], s[12:13] offset:{i*8}"); e("s_nop 1")
    sys.stderr.write(f"nstamps {ns}\n")
e("L_end:")

hdr = f"""; FFN out = silu(x @ w1) @ w2, one launch, 256 workgroups (one per CU).
; @launch grid=(256,1,1) block=(256,1,1) lds=163840
.amdgcn_target "amdgcn-amd-amdhsa--gfx950"
.text
.globl {NAME}
.p2align 8
.type {NAME},@function
{NAME}:
"""
ftr = f"""s_endpgm
.section .rodata,"a"
.p2align 6
.amdhsa_kernel {NAME}
  .amdhsa_next_free_vgpr 512
  .amdhsa_next_free_sgpr 102
  .amdhsa_accum_offset 256
  .amdhsa_group_segment_fixed_size 0
  .amdhsa_kernarg_size 48
  .amdhsa_user_sgpr_count 2
  .amdhsa_user_sgpr_kernarg_segment_ptr 1
  .amdhsa_system_sgpr_workgroup_id_x 1
.end_amdhsa_kernel
"""
body = "\n".join(("" if l.endswith(":") else "    ") + l.rstrip() for l in O)
open(sys.argv[1], "w").write(hdr + body + "\n" + ftr)
```

```python
import sys
NAME = "standalone__dense_activation_silu__prompt_kernel"
opt = dict(m16=0, rtm=0, po="", rsaux="sc1", emu="", emv=1, fs=128, dw=8, eq=0, ec=4, epre=16, eil="h12w9", pfm=3, stamps=0, rot=1, rot2=1, pf=1, outaux="", map=2, raux="nt", xaux="", haux="sc1", hsaux="sc1", hs2="", wb=0, wso=0, sp=0, spg="", nord=0, nomf1=0, norp=0, pk=1, tail=1, b1=4, b2=4, madd=8, pt=0, fst=0, tab="x037", nost=0, novalu=0, nomf2=0, noh=0, hj=1, w2aux="sc1", w1aux="",
           sa=0, ma=10, sb=0, mb=10, mx=0, n8=8, n9=8, nb=0, post=0, pollq=8, hpre=8, sep=0, sts=0, rpos=0, rls=0, rjs=2, rpp=0, rps=7, rck=0, nopoll=0, rfs=4, sl=0, head=50, nf0=4, pre3=0, rt=0, own2=1, ntst=10, mid=2, xlin=0, nor=0)
for a in sys.argv[2:]:
    k, v = a.split("=")
    assert k in opt, k
    opt[k] = int(v) if v.lstrip("-").isdigit() else v.replace("_", " ")
O = []
def e(s): O.append(s)
NST = [0]
def stamp(rt=False, k=0):
    if not opt["stamps"]: return
    if not rt and NST[0] > 1 and k != opt["sts"] and k != -1: return
    i = NST[0]; NST[0] += 1
    e(f"s_memrealtime s[{72+2*i}:{73+2*i}]" if rt or opt["rt"] or opt["rtm"] else f"s_memtime s[{72+2*i}:{73+2*i}]")

class Q:
    def __init__(s, name, mx): s.name = name; s.mx = mx; s.q = []
    def issue(s, tag): s.q.append(tag)
    def wait(s, tag):
        if tag not in s.q: return
        i = len(s.q) - 1 - s.q[::-1].index(tag)
        n = min(len(s.q) - 1 - i, s.mx)
        e(f"s_waitcnt {s.name}({n})")
        s.q = s.q[len(s.q)-n:] if n else []
    def drain(s):
        e(f"s_waitcnt {s.name}(0)"); s.q = []
VM = Q("vmcnt", 63); LG = Q("lgkmcnt", 15)

FL = 0x600000; EP = 0x608000; RFL = 0x610000; W2F = 0x620000; HREC = 0x800000
FS = opt["fs"]
if FS > 128: FL = 0x800000; HREC = FL + 256 * FS
RED = 98304; RB = 98304; CNT = 159744
sX, sW1, sW2, sOUT, sH = 16, 20, 24, 28, 32
(sW, sMT, sFT, sKX, sKW, sXB, sWB, sXE, sM0, sT0, sT1, sE, sTAG, sHS, sHS2, sFLG, sPOL, sW2B, sOWN, sROT,
 sRS, sRD, sWO, sL2E) = range(36, 60)
sSIG = 60
sPK = 4; sOB = 3; sRFL = 14; sSPIN = 15
vL16 = 1; vL16b = 2; vOUT = 3; vOUT2 = 4; vRW = 5; vRP = 6; vHS = 7
vPOLL = 8; vL4 = 9; vPA = 19
vRR = 10
vHB = 13
vT = 17
vCN = 20; vONE = 21; vAV = 22; vAC = 23
vDX = 24; vDW = 26; vDR = 32
vA = 34; vB = 36
vRA = 44
vTM = 46
vACC1 = 64; vAF = 112; vBF = 160; vS = 176; vRF = 192
vH = 64; vACC2 = 24
def srd(r): return f"s[{r}:{r+3}]"
def vr(r, n): return f"v[{r}:{r+n-1}]"
def ar(r, n): return f"a[{r}:{r+n-1}]"
def capture(fn):
    global O
    sv = O; O = []; fn(); r = O; O = sv; return r

e("s_cmp_ge_u32 s2, 256")
e("s_cbranch_scc1 L_end")
stamp(True); stamp()
e("s_load_dwordx8 s[4:11], s[0:1], 0")
e("s_load_dwordx2 s[12:13], s[0:1], 40")
L, Wv = vTM, vTM+1
t0, t1, t2, t3 = vTM+2, vTM+3, vTM+4, vTM+5
e(f"v_and_b32 v{L}, 63, v0")
e(f"v_lshrrev_b32 v{Wv}, 6, v0")
e(f"v_lshlrev_b32 v{vL16}, 4, v{L}")
e(f"v_readfirstlane_b32 s{sW}, v{Wv}")
if opt["pf"]:
    e("s_getpc_b64 s[14:15]")
    e("L_pc:")
    e(f"s_lshr_b32 s{sT0}, s2, 3")
    e(f"s_and_b32 s{sT0}, s{sT0}, {opt['pfm']}")
    e(f"s_lshl_b32 s{sT0}, s{sT0}, 12")
    e(f"v_lshl_add_u32 v{t0}, v0, 4, s{sT0}")
    e(f"v_min_u32 v{t0}, L_end-L_pc-16, v{t0}")
    e(f"global_load_dwordx4 v[252:255], v{t0}, s[14:15]")
    VM.issue("pf")
fa = opt["map"]
e(f"s_and_b32 s{sT0}, s2, 7")
e(f"s_lshr_b32 s{sT1}, s2, 3")
e(f"s_and_b32 s{sFT}, s{sT1}, {(1<<fa)-1}")
e(f"s_lshr_b32 s{sMT}, s{sT1}, {fa}")
if opt["rot"] == 3:
    tb = str(opt["tab"]).lstrip("x")
    tv = sum(int(c) << (4*i) for i, c in enumerate((tb * 16)[:16]))
    e(f"s_mul_i32 s{sKX}, s{sMT}, {opt['ma']}")
    e(f"s_mul_i32 s{sT1}, s{sFT}, {opt['mb']}")
    e(f"s_add_u32 s{sKX}, s{sKX}, s{sT1}")
    e(f"s_lshl_b32 s{sKX}, s{sKX}, 2")
    e(f"s_mov_b32 s{sSIG}, {tv & 0xffffffff}")
    e(f"s_mov_b32 s{sSIG+1}, {tv >> 32}")
    e(f"s_lshr_b64 s[{sSIG}:{sSIG+1}], s[{sSIG}:{sSIG+1}], s{sKX}")
    e(f"s_and_b32 s{sKX}, s{sSIG}, 15")
elif opt["rot"]:
    e(f"s_lshr_b32 s{sKX}, s{sMT}, {opt['sa']}")
    e(f"s_mul_i32 s{sKX}, s{sKX}, {opt['ma']}")
    e(f"s_lshr_b32 s{sT1}, s{sFT}, {opt['sb']}")
    e(f"s_mul_i32 s{sT1}, s{sT1}, {opt['mb']}")
    e(f"s_add_u32 s{sKX}, s{sKX}, s{sT1}")
    if opt['mx']:
        e(f"s_mul_i32 s{sT1}, s{sT0}, {opt['mx']}")
        e(f"s_add_u32 s{sKX}, s{sKX}, s{sT1}")
    e(f"s_lshr_b32 s{sKX}, s{sKX}, 2")
    e(f"s_mul_i32 s{sT1}, s{sKX}, 205")
    e(f"s_lshr_b32 s{sT1}, s{sT1}, 11")
    e(f"s_mul_i32 s{sT1}, s{sT1}, 10")
    e(f"s_sub_u32 s{sKX}, s{sKX}, s{sT1}")
else:
    e(f"s_mov_b32 s{sKX}, 0")
if opt["rot2"] == 2:
    e(f"s_and_b32 s{sROT}, s{sMT}, 3")
    e(f"s_mul_i32 s{sROT}, s{sROT}, 3")
elif opt["rot2"]:
    e(f"s_mul_i32 s{sROT}, s{sMT}, 12")
    e(f"s_lshr_b32 s{sROT}, s{sROT}, {5-fa}")
else:
    e(f"s_mov_b32 s{sROT}, 0")
e(f"s_and_b32 s{sT1}, s{sT0}, {(8>>fa)-1}")
e(f"s_lshl_b32 s{sT1}, s{sT1}, {fa}")
e(f"s_add_u32 s{sFT}, s{sFT}, s{sT1}")
e(f"s_lshr_b32 s{sT1}, s{sT0}, {3-fa}")
e(f"s_lshl_b32 s{sT1}, s{sT1}, {5-fa}")
e(f"s_add_u32 s{sMT}, s{sMT}, s{sT1}")
e(f"s_mul_i32 s{sXB}, s{sMT}, 81920")
e(f"s_mul_i32 s{sWB}, s{sFT}, 384")
e(f"s_add_u32 s{sXE}, s{sXB}, 1280")
e(f"s_mul_i32 s{sKW}, s{sKX}, {64*3072}")
e(f"s_add_u32 s{sKW}, s{sKW}, s{sWB}")
e(f"s_lshl_b32 s{sKX}, s{sKX}, 7")
e(f"s_add_u32 s{sKX}, s{sKX}, s{sXB}")
G = vTM+6
e(f"v_lshrrev_b32 v{G}, 4, v{L}")
e(f"v_lshrrev_b32 v{t0}, 3, v{L}")
e(f"v_lshl_add_u32 v{t0}, v{Wv}, 4, v{t0}")
e(f"v_mul_u32_u24 v{t0}, 1280, v{t0}")
e(f"v_and_b32 v{t1}, 7, v{L}")
e(f"v_xor_b32 v{t1}, v{t1}, v{G}")
e(f"v_lshl_add_u32 v{vDX}, v{t1}, 4, v{t0}")
e(f"v_xor_b32 v{t1}, 4, v{t1}")
e(f"v_lshl_add_u32 v{vDX+1}, v{t1}, 4, v{t0}")
e(f"v_add_u32 v{vDX+1}, {8*1280-1024}, v{vDX+1}")
if opt["xlin"]:
    e(f"v_lshl_add_u32 v{vDX}, v{Wv}, 11, v{vL16}")
    e(f"v_mov_b32 v{vDX+1}, v{vDX}")
    e(f"s_and_b32 s{sT0}, s{sFT}, 3")
    e(f"s_mul_i32 s{sT0}, s{sT0}, {opt['xlin']}")
    e(f"s_lshr_b32 s{sT0}, s{sT0}, 2")
    e(f"s_lshl_b32 s100, s{sT0}, 13")
    e(f"s_add_u32 s100, s100, s{sXB}")
    e(f"s_add_u32 s101, s{sXB}, 81920")
e(f"v_mul_u32_u24 v{t3}, {16*3072}, v{Wv}")
for i in range(3):
    if i: e(f"v_add_u32 v{t0}, {64*i}, v{L}")
    src = t0 if i else L
    e(f"v_mul_u32_u24 v{t1}, 2731, v{src}")
    e(f"v_lshrrev_b32 v{t1}, 16, v{t1}")
    e(f"v_mul_u32_u24 v{t2}, 24, v{t1}")
    e(f"v_sub_u32 v{t0}, v{src}, v{t2}")
    e(f"v_and_b32 v{t2}, 2, v{t1}")
    e(f"v_lshlrev_b32 v{t2}, 1, v{t2}")
    e(f"v_xor_b32 v{t0}, v{t0}, v{t2}")
    e(f"v_mul_u32_u24 v{t1}, 3072, v{t1}")
    e(f"v_lshl_add_u32 v{t0}, v{t0}, 4, v{t1}")
    e(f"v_add_u32 v{t0}, v{t0}, v{t3}")
    if i: e(f"v_subrev_u32 v{vDW+i}, {i*1024}, v{t0}")
    else: e(f"v_mov_b32 v{vDW}, v{t0}")
    e(f"v_add_u32 v{vDW+3+i}, {8*3072 - ((i+3)%4)*1024}, v{t0}")
e(f"s_lshl_b32 s{sM0}, s{sW}, 13")
e(f"s_mov_b32 s{sSPIN}, {EP}")
for r, n in ((sX, 2621440), (sW1, 1966080), (sW2, 1966080), (sOUT, 2621440), (sH, HREC)):
    e(f"s_mov_b32 s{r+2}, {n}"); e(f"s_mov_b32 s{r+3}, 0x20000")
e("s_waitcnt lgkmcnt(0)")
if opt["wso"]:
    e(f"s_add_u32 s12, s12, {opt['wso'] << 20}"); e("s_addc_u32 s13, s13, 0")
for r, p in ((sW2, 8), (sX, 4), (sW1, 6), (sOUT, 10), (sH, 12)):
    e(f"s_mov_b64 s[{r}:{r+1}], s[{p}:{p+1}]")
stamp()
e(f"s_load_dword s{sE}, s[12:13], s{sSPIN}")

def adv_k():
    if opt["xlin"]:
        e(f"s_add_u32 s100, s100, 8192")
        e(f"s_cmp_eq_u32 s100, s101")
        e(f"s_cselect_b32 s100, s{sXB}, s100")
    e(f"s_add_u32 s{sKX}, s{sKX}, 128")
    e(f"s_add_u32 s{sKW}, s{sKW}, {64*3072}")
    e(f"s_cmp_eq_u32 s{sKX}, s{sXE}")
    e(f"s_cselect_b32 s{sKX}, s{sXB}, s{sKX}")
    e(f"s_cselect_b32 s{sKW}, s{sWB}, s{sKW}")
def dma_ops(st):
    base = (st % 3) * 32768
    def mk(i):
        def f():
            if i == 0: e(f"s_add_u32 m0, s{sM0}, {base+6144}"); e("s_nop 0")
            if i < 2:
                e(f"buffer_load_dwordx4 v{vDX+i}, {srd(sX)}, s{100 if opt['xlin'] else sKX} offen offset:{i*1024} {opt['xaux'] if st < opt['ntst'] else ''} lds")
            else:
                j = i - 2
                e(f"buffer_load_dwordx4 v{vDW+j}, {srd(sW1)}, s{sKW} offen offset:{(j%4)*1024} {opt['w1aux'] if st < opt['ntst'] else ''} lds")
            VM.issue(f"st{st}")
            if i == 1: e(f"s_add_u32 m0, s{sM0}, {base}"); e("s_nop 0")
            if i == 5: e(f"s_add_u32 m0, s{sM0}, {base+4096}"); e("s_nop 0")
            if i == 7 and st < 9: adv_k()
        return f
    return [mk(i) for i in range(8)]

def setup2():
    R, C = t0, t1
    u0, u1, u2 = vTM+7, vTM+8, vTM+9
    e(f"s_and_b32 s{sT0}, s2, 63")
    e(f"s_mul_i32 s{sT1}, s{sT0}, 205")
    e(f"s_lshr_b32 s{sT1}, s{sT1}, 10")
    e(f"s_mul_i32 s{sRS}, s{sT1}, 5")
    e(f"s_sub_u32 s{sRS}, s{sT0}, s{sRS}")
    e(f"s_lshr_b32 s{sRD}, s2, 6")
    e(f"s_mul_i32 s{sRFL}, s{sRD}, 5")
    e(f"s_add_u32 s{sRFL}, s{sRFL}, s{sRS}")
    e(f"s_lshl_b32 s{sRFL}, s{sRFL}, 4")
    e(f"s_add_u32 s{sRFL}, s{sRFL}, s{sT1}")
    e(f"s_lshl_b32 s{sRFL}, s{sRFL}, 7")
    e(f"s_mul_i32 s{sRD}, s{sRD}, 12")
    e(f"s_add_u32 s{sT1}, s{sT1}, s{sRD}")
    e(f"s_mul_i32 s{sT1}, s{sT1}, 40960")
    e(f"s_lshl_b32 s{sRD}, s{sRS}, 13")
    e(f"s_add_u32 s{sRD}, s{sRD}, s{sT1}")
    e(f"s_lshl_b32 s{sRS}, s{sRS}, 8")
    e(f"s_add_u32 s{sRS}, s{sRS}, s{sT1}")
    e(f"s_lshl_b32 s{sT1}, s{sW}, 11")
    e(f"s_add_u32 s{sRD}, s{sRD}, s{sT1}")
    e(f"s_add_u32 s{sRD}, s{sRD}, {W2F}")
    e(f"s_cmp_lt_u32 s{sT0}, {0 if opt['nor'] else 60}")
    e(f"s_cselect_b32 s{sRS}, s{sRS}, 1966080")
    e(f"s_cselect_b32 s{sRD}, s{sRD}, {HREC}")
    if opt["pt"] & 1:
        e(f"s_min_u32 s{sT1}, s{sRS}, {1966080-4}")
        e(f"s_load_dword s6, s[8:9], s{sT1}")
    if opt["pt"] & 2:
        e(f"s_mul_i32 s{sT1}, s{sMT}, {64*3072}")
        e(f"s_load_dword s6, s[12:13], s{sT1}")
    if opt["pt"] & 4:
        e(f"s_load_dword s6, s[10:11], s{sXB}")
    if opt["pt"] & 8:
        e(f"s_load_dword s6, s[12:13], s{sRD}")
    e(f"v_lshl_add_u32 v{t0}, v{Wv}, 3, v{G}")
    e(f"v_mul_u32_u24 v{t0}, 1280, v{t0}")
    e(f"v_and_b32 v{t1}, 15, v{L}")
    e(f"v_lshlrev_b32 v{t2}, 1, v{G}")
    e(f"v_xor_b32 v{t1}, v{t1}, v{t2}")
    e(f"v_lshl_add_u32 v{vDR}, v{t1}, 4, v{t0}")
    e(f"v_xor_b32 v{t1}, 8, v{t1}")
    e(f"v_lshl_add_u32 v{vDR+1}, v{t1}, 4, v{t0}")
    e(f"v_add_u32 v{vDR+1}, {4*1280-1024}, v{vDR+1}")
    e(f"v_bfe_u32 v{R}, v{L}, 2, 2")
    e(f"v_and_b32 v{C}, 3, v{L}")
    e(f"v_lshrrev_b32 v{u0}, 1, v{G}")
    e(f"v_lshl_add_u32 v{u0}, v{u0}, 3, v{R}")
    e(f"v_mul_u32_u24 v{u0}, 384, v{u0}")
    e(f"v_lshrrev_b32 v{u1}, 1, v{R}")
    e(f"v_xor_b32 v{u1}, v{u1}, v{Wv}")
    e(f"v_and_b32 v{u1}, 1, v{u1}")
    e(f"v_lshl_add_u32 v{u0}, v{u1}, 6, v{u0}")
    e(f"v_and_b32 v{u1}, 1, v{G}")
    e(f"v_lshl_add_u32 v{u0}, v{u1}, 5, v{u0}")
    e(f"v_lshl_add_u32 v{vA}, v{C}, 3, v{u0}")
    e(f"v_add_u32 v{vA+1}, 65536, v{vA}")
    e(f"v_and_b32 v{u0}, 2, v{Wv}")
    e(f"v_add_u32 v{u0}, v{u0}, v{u1}")
    e(f"v_lshlrev_b32 v{u0}, 13, v{u0}")
    e(f"v_and_b32 v{u2}, 15, v{L}")
    e(f"v_lshl_add_u32 v{u0}, v{u2}, 7, v{u0}")
    e(f"v_add_u32 v{u0}, 6144, v{u0}")
    e(f"v_lshrrev_b32 v{u1}, 1, v{u2}")
    e(f"v_lshrrev_b32 v{t2}, 5, v{L}")
    e(f"v_xor_b32 v{u1}, v{u1}, v{t2}")
    e(f"v_lshl_add_u32 v{vB}, v{u1}, 4, v{u0}")
    for k in range(1, 4): e(f"v_xor_b32 v{vB+k}, {32*k}, v{vB}")
    for k in range(4): e(f"v_add_u32 v{vB+4+k}, 65536, v{vB+k}")
    e(f"v_and_b32 v{u1}, 1, v{G}")
    e(f"v_lshl_add_u32 v{u1}, v{u1}, 2, v{R}")
    e(f"v_lshlrev_b32 v{u0}, 12, v{t2}")
    e(f"v_lshl_add_u32 v{u0}, v{u1}, 8, v{u0}")
    e(f"v_lshlrev_b32 v{t3}, 1, v{Wv}")
    e(f"v_xor_b32 v{u1}, v{u1}, v{t3}")
    e(f"v_lshl_add_u32 v{u0}, v{u1}, 5, v{u0}")
    e(f"v_and_b32 v{u1}, 1, v{C}")
    e(f"v_lshl_add_u32 v{u0}, v{u1}, 4, v{u0}")
    e(f"v_lshrrev_b32 v{u1}, 1, v{C}")
    e(f"v_lshl_add_u32 v{u0}, v{u1}, 3, v{u0}")
    e(f"v_add_u32 v{vRA}, {RB}, v{u0}")
    e(f"v_xor_b32 v{vRA+1}, 32, v{vRA}")
    e(f"v_mov_b32 v{vCN}, {CNT}")
    e(f"v_mov_b32 v{vONE}, 0")
    e(f"ds_write_b32 v{vCN}, v{vONE}"); LG.issue("cnt")
    for i in range(48): e(f"v_mov_b32 v{vACC1+i}, 0")
    e(f"v_mov_b32 v{vONE}, 1")
    e(f"v_and_b32 v{u1}, 1, v{G}")
    e(f"v_mul_u32_u24 v{u0}, 12288, v{u1}")
    e(f"v_lshl_add_u32 v{u0}, v{t2}, 8, v{u0}")
    e(f"v_lshl_add_u32 v{vHS}, v{u2}, 4, v{u0}")
    e(f"v_mul_u32_u24 v{u0}, 1280, v{u2}")
    e(f"v_lshl_add_u32 v{vOUT}, v{G}, 4, v{u0}")
    e(f"v_lshl_add_u32 v{u0}, v{u1}, 4, v{u0}")
    e(f"v_lshl_add_u32 v{vOUT2}, v{t2}, 3, v{u0}")
    e(f"v_add_u32 v{vL16b}, 4096, v{vL16}")
    e(f"s_mul_i32 s{sT0}, s{sFT}, 5")
    e(f"v_lshl_add_u32 v{u0}, v{u1}, 2, s{sT0}")
    e(f"v_lshrrev_b32 v{u0}, 3, v{u0}")
    e(f"v_mad_u32_u24 v{u0}, v{Wv}, 5, v{u0}")
    e(f"v_min_u32 v{vRP}, 11, v{u2}")
    e(f"v_lshlrev_b32 v{vRP}, 7, v{vRP}")
    e(f"v_lshl_add_u32 v{vRP}, v{u0}, 11, v{vRP}")
    e(f"v_lshlrev_b32 v{vL4}, 2, v{L}")
    e(f"v_mul_u32_u24 v{vPA}, {FS}, v{u1}")
    e(f"v_mul_u32_u24 v{u0}, 205, v{L}")
    e(f"v_lshrrev_b32 v{u0}, 10, v{u0}")
    e(f"v_sub_u32 v{vAC}, v{Wv}, v{u0}")
    e(f"v_mad_i32_i24 v{vAC}, v{vAC}, 5, v{L}")
    e(f"v_lshlrev_b32 v{vAC}, 11, v{vAC}")
    e(f"v_lshl_add_u32 v{vAC}, v{u0}, 7, v{vAC}")
    e(f"s_mul_i32 s{sT0}, s{sW}, 15360")
    e(f"s_add_u32 s{sT0}, s{sT0}, {RED}")
    e(f"v_add_u32 v{vRW}, s{sT0}, v{vL16}")
    for p in range(3):
        e(f"s_sub_u32 s{sT0}, s{sW}, {1+p}")
        e(f"s_and_b32 s{sT0}, s{sT0}, 3")
        e(f"s_mul_i32 s{sT0}, s{sT0}, 15360")
        e(f"s_add_u32 s{sT0}, s{sT0}, {RED + p*5120}")
        e(f"v_add_u32 v{vRR+p}, s{sT0}, v{vL16}")
    e(f"s_mul_i32 s{sW2B}, s{sW}, {12*40960}")
    e(f"s_mul_i32 s{sT0}, s{sFT}, 5120")
    e(f"s_add_u32 s{sW2B}, s{sW2B}, s{sT0}")
    e(f"s_add_u32 s{sW2B}, s{sW2B}, {W2F}")
    for n in range(12):
        e(f"s_lshl_b32 s{sSIG+n}, s{sROT}, 10")
        if n < 11:
            e(f"s_add_u32 s{sROT}, s{sROT}, 1")
            e(f"s_cmp_ge_u32 s{sROT}, 12")
            e(f"s_cselect_b32 s{sROT}, 0, s{sROT}")
    if opt["own2"]:
        e(f"s_lshl_b32 s{sOWN}, s{sFT}, 1")
        e(f"s_add_u32 s{sOWN}, s{sW}, s{sOWN}")
    else: e(f"s_add_u32 s{sOWN}, s{sW}, s{sFT}")
    e(f"s_and_b32 s{sOWN}, s{sOWN}, 3")
    e(f"s_lshl_b32 s{sT1}, s{sMT}, 2")
    e(f"s_add_u32 s{sT1}, s{sT1}, s{sW}")
    e(f"s_mul_i32 s{sPOL}, s{sT1}, {2*FS}")
    e(f"s_add_u32 s{sPOL}, s{sPOL}, {FL}")
    e(f"s_lshl_b32 s{sT1}, s{sT1}, 2")
    for p in range(4):
        e(f"s_add_u32 s{sT0}, s{sOWN}, {1+p}")
        e(f"s_and_b32 s{sT0}, s{sT0}, 3")
        e(f"s_add_u32 s{sT0}, s{sT0}, s{sT1}")
        e(f"s_mul_i32 s{sT0}, s{sT0}, 12288")
        e(f"v_add_u32 v{vHB+p}, s{sT0}, v{vL16}")
    e(f"s_lshl_b32 s{sOB}, s{sMT}, 2")
    e(f"s_add_u32 s{sOB}, s{sOB}, s{sOWN}")
    e(f"s_mul_i32 s{sOB}, s{sOB}, {16*1280}")
    e(f"s_mul_i32 s{sT0}, s{sFT}, 160")
    e(f"s_add_u32 s{sOB}, s{sOB}, s{sT0}")
    e(f"s_lshl_b32 s{sT0}, s{sMT}, 2")
    e(f"s_lshr_b32 s{sT1}, s{sFT}, 1")
    e(f"s_add_u32 s{sT0}, s{sT0}, s{sT1}")
    e(f"s_mul_i32 s{sFLG}, s{sT0}, {2*FS}")
    e(f"s_lshl_b32 s{sT0}, s{sT0}, 2")
    e(f"s_and_b32 s{sT1}, s{sW}, 2")
    e(f"s_add_u32 s{sT0}, s{sT0}, s{sT1}")
    e(f"s_mul_i32 s{sHS}, s{sT0}, 12288")
    e(f"s_and_b32 s{sT0}, s{sFT}, 1")
    e(f"s_mul_i32 s{sT1}, s{sT0}, {FS}")
    e(f"s_add_u32 s{sFLG}, s{sFLG}, s{sT1}")
    e(f"s_add_u32 s{sFLG}, s{sFLG}, {FL}")
    e(f"s_mul_i32 s{sT0}, s{sT0}, 6")
    e(f"s_and_b32 s{sT1}, s{sW}, 1")
    e(f"s_add_u32 s{sT0}, s{sT0}, s{sT1}")
    e(f"s_lshl_b32 s{sT0}, s{sT0}, 10")
    e(f"s_add_u32 s{sHS}, s{sHS}, s{sT0}")
    e(f"s_add_u32 s{sHS2}, s{sHS}, 4096")
    e(f"s_add_u32 s{sRFL}, s{sRFL}, {RFL}")
    e(f"s_cmp_eq_u32 s{sW}, 0")
    e(f"s_cselect_b32 s{sRFL}, s{sRFL}, {HREC}")
    e(f"s_mov_b32 s{sL2E}, 0xbfb8aa3b")
    if opt["pk"]:
        e(f"s_mov_b32 s{sPK}, 0xbfb8aa3b"); e(f"s_mov_b32 s{sPK+1}, 0xbfb8aa3b")
def r_loads():
    e(f"s_lshr_b32 m0, s{sM0}, 2")
    e(f"s_add_u32 m0, m0, {RB}")
    e("s_nop 0")
    for i in range(2):
        e(f"buffer_load_dwordx4 v{vDR+i}, {srd(sW2)}, s{sRS} offen offset:{i*1024} {opt['raux']} lds"); VM.issue("rld")
def r_reads():
    for ee in range(2):
        for t in range(2):
            e(f"ds_read_b64_tr_b16 {vr(vRF + 4*ee + 2*t, 2)}, v{vRA+ee} offset:{t*2048}"); LG.issue("rrd")
def r_stores():
    LG.wait("rrd")
    for ee in range(2):
        e(f"buffer_store_dwordx4 {vr(vRF+4*ee,4)}, v{vL16}, {srd(sH)}, s{sRD} offen offset:{ee*1024} {opt['rsaux']}"); VM.issue("rst")
S2 = capture(setup2)
groups = []
for l in S2:
    if l.startswith("s_cselect") or (groups and groups[-1][-1].startswith("s_cmp")): groups[-1].append(l)
    else: groups.append([l])
ST0 = []
def pre_order(spec):
    kx, kw = (sKX, 6, 8), (sKW, 7, 9)
    def nxt(i):
        a, b = (i + 1) % 3, i
        e(f"s_add_u32 s{kx[a]}, s{kx[b]}, 128")
        e(f"s_add_u32 s{kw[a]}, s{kw[b]}, {64*3072}")
        e(f"s_cmp_eq_u32 s{kx[a]}, s{sXE}")
        e(f"s_cselect_b32 s{kx[a]}, s{sXB}, s{kx[a]}")
        e(f"s_cselect_b32 s{kw[a]}, s{sWB}, s{kw[a]}")
    ops = []
    for ch in spec:
        if ch in "abc":
            st = "abc".index(ch)
            for i in range(2):
                def f(st=st, i=i):
                    if i == 0: e(f"s_add_u32 m0, s{sM0}, {st*32768+6144}"); e("s_nop 0")
                    e(f"buffer_load_dwordx4 v{vDX+i}, {srd(sX)}, s{kx[st]} offen offset:{i*1024} {opt['xaux']} lds"); VM.issue(f"st{st}")
                    if st == 0 and i == 1: nxt(0); nxt(1)
                ops.append(f)
        elif ch in "ABC":
            st = "ABC".index(ch)
            for j in range(6):
                def f(st=st, j=j):
                    if j % 4 == 0: e(f"s_add_u32 m0, s{sM0}, {st*32768+j*1024}"); e("s_nop 0")
                    e(f"buffer_load_dwordx4 v{vDW+j}, {srd(sW1)}, s{kw[st]} offen offset:{(j%4)*1024} {opt['w1aux']} lds"); VM.issue(f"st{st}")
                ops.append(f)
        elif ch == "R": ops.append(r_loads)
        elif ch == ".": ops.append(None)
        elif ch == "P":
            def f():
                e(f"s_bfe_u32 s10, s{sMT}, 0x10002")
                e(f"s_mul_i32 s10, s10, 320")
                e(f"s_and_b32 s11, s{sMT}, 3")
                e(f"s_lshl_b32 s11, s11, 4")
                e(f"s_add_u32 s10, s10, s11")
                e(f"s_mul_i32 s11, s{sW}, 12")
                e(f"s_sub_u32 s10, s10, s11")
                e(f"s_add_u32 s10, s10, 256")
                e(f"s_mul_i32 s10, s10, 3072")
                e(f"s_add_u32 s10, s10, s{sWB}")
                e(f"buffer_load_dwordx4 v[244:247], v{vDW}, {srd(sW1)}, s10 offen"); VM.issue("pp")
                e("s_mov_b32 exec_hi, 0")
                e(f"buffer_load_dwordx4 v[248:251], v{vDW+1}, {srd(sW1)}, s10 offen offset:1024"); VM.issue("pp")
                e("s_mov_b32 exec_hi, -1")
            ops.append(f)
    assert spec[0] == "a" and all(c in spec for c in "abcABC")
    last = ops[-1]
    def fin(): last(); nxt(2)
    ops[-1] = fin
    return ops
if opt["po"]:
    first = pre_order(opt["po"]); opt["pre3"] = 1
    if None in first:
        k = first.index(None); first, ST0 = first[:k], first[k+1:]
    if "R" in opt["po"]: opt["rls"] = -1
else:
    first = dma_ops(0) + dma_ops(1) + (dma_ops(2) if opt["pre3"] else [])
    if opt["rls"] < 0: first.append(r_loads)
NF0 = opt["nf0"]
for f in first[:NF0]: f()
if opt["fst"]:
    e(f"s_waitcnt vmcnt({NF0-1})"); stamp(k=5)
    e(f"s_waitcnt vmcnt({NF0-3})"); stamp(k=5)
rest = first[NF0:]
per = (len(groups) + len(rest) - 1) // len(rest)
head = len(groups) * opt["head"] // 100
for g in groups[:head]: O.extend(g)
groups = groups[head:]
per = (len(groups) + len(rest) - 1) // len(rest)
for f in rest:
    f()
    for g in groups[:per]: O.extend(g)
    groups = groups[per:]
assert not groups
stamp()

def w2_ops():
    ops = []
    for n in range(12):
        for j in range(5):
            def f(n=n, j=j):
                if j == 0:
                    e(f"s_mul_i32 s{sWO}, s{sSIG+n}, 40")
                    e(f"s_add_u32 s{sWO}, s{sWO}, s{sW2B}")
                va = vL16 if j < 4 else vL16b
                e(f"buffer_load_dwordx4 {ar(n*20+4*j, 4)}, v{va}, {srd(sH)}, s{sWO} offen offset:{(j%4)*1024} {opt['w2aux'].replace('-','')}")
                VM.issue(f"w{n}")
            ops.append(f)
    return ops
W2L = w2_ops()
def take(n):
    r = W2L[:n]; del W2L[:n]; return r

def rd_ops(st, half):
    slot = st % 3
    sb = (slot % 2) * 32768 if slot < 2 else 0
    hi = 1 if slot == 2 else 0
    ops = []
    if opt["nord"]: return ops
    for kk in range(2):
        ks = 2*half + kk
        def b(ks=ks, kk=kk):
            e(f"ds_read_b128 {vr(vBF + (half*2+kk)*4, 4)}, v{vB + 4*hi + ks} offset:{sb}"); LG.issue(f"B{ks}")
        ops.append(b)
        for q in range(3):
            for t in range(2):
                def a(ks=ks, kk=kk, q=q, t=t):
                    e(f"ds_read_b64_tr_b16 {vr(vAF + half*24 + (kk*3+q)*4 + 2*t, 2)}, v{vA+hi} offset:{sb + ks*8192 + t*1536 + q*128}")
                    LG.issue(f"A{ks}{q}")
                ops.append(a)
    return ops
def i16(kk, q): return kk == 1
def mfma1(half, kk, q):
    ks = 2*half + kk
    LG.wait(f"A{ks}{q}")
    if opt["nomf1"]: return
    if opt["m16"]:
        for z in range(2):
            c = vr(vACC1+16*q+8*kk+4*z, 4)
            e(f"v_mfma_f32_16x16x32_bf16 {c}, {vr(vAF + half*24 + (kk*3+q)*4, 4)}, {vr(vBF + (half*2+(kk^z if i16(kk, q) else kk))*4, 4)}, {c}")
        return
    e(f"v_mfma_f32_32x32x16_bf16 {vr(vACC1+16*q,16)}, {vr(vAF + half*24 + (kk*3+q)*4, 4)}, {vr(vBF + (half*2+kk)*4, 4)}, {vr(vACC1+16*q,16)}")
def half_body(mf_half, rds, fill):
    rds = list(rds); fill = list(fill)
    for i in range(6):
        if mf_half is not None: mfma1(mf_half, i // 3, i % 3)
        left = 6 - i
        for _ in range((len(rds) + left - 1) // left if i else min(len(rds), 4)):
            if rds: rds.pop(0)()
        for _ in range((len(fill) + left - 1) // left):
            if fill: fill.pop(0)()
    assert not rds and not fill

def flag_store(off):
    e(f"v_mov_b32 v{vT}, s{sTAG}")
    e("s_mov_b32 exec_hi, 0")
    e(f"buffer_store_dword v{vT}, v{vL4}, {srd(sH)}, s{off} offen sc1"); VM.issue("flag")
    e("s_mov_b32 exec_hi, -1")
def r_poll():
    e(f"s_mov_b32 s{sT0}, {HREC if opt['norp'] else RFL}")
    e(f"buffer_load_dword v{vPOLL}, v{vRP}, {srd(sH)}, s{sT0} offen sc1"); VM.issue("rpoll")

def spin_check(lab, vv, va, tag, so=None, fake=False):
    VM.wait(tag)
    e(f"s_mov_b32 s{sSPIN}, 20000")
    e(f"L_{lab}:")
    e(f"v_cmp_ne_u32 vcc, s{sTAG}, v{vv}")
    e("s_cmp_eq_u64 vcc, 0" if not fake else "s_cmp_eq_u32 s2, s2")
    e(f"s_cbranch_scc1 L_{lab}_go")
    e(f"s_sub_u32 s{sSPIN}, s{sSPIN}, 1")
    e(f"s_cmp_eq_u32 s{sSPIN}, 0")
    e(f"s_cbranch_scc1 L_{lab}_go")
    if so is None: e(f"s_mov_b32 s{sT0}, {RFL}")
    e(f"buffer_load_dword v{vv}, v{va}, {srd(sH)}, s{sT0 if so is None else so} offen sc1")
    e("s_waitcnt vmcnt(0)")
    e(f"s_branch L_{lab}")
    e(f"L_{lab}_go:")
def r_check(): spin_check("rp", vPOLL, vRP, "rpoll", None, opt["norp"])

EMU = [int(c) for c in str(opt["emu"]).lstrip("x")]
def emu_ops(bi):
    q, g2 = bi // 2, bi % 2
    a0 = 216; tt = vS + (bi % 2) * 8; pk = vRF + 8 + bi * 4
    ops = []
    if opt["emv"]:
        for r in range(0, 8, 2): ops.append(f"v_pk_mul_f32 {vr(tt+r,2)}, {vr(a0+r,2)}, s[{sPK}:{sPK+1}]")
        for r in range(8): ops.append(f"v_exp_f32 v{tt+r}, v{tt+r}")
        for r in range(0, 8, 2): ops.append(f"v_pk_add_f32 {vr(tt+r,2)}, {vr(tt+r,2)}, 1.0 op_sel_hi:[1,0]")
        for r in range(8): ops.append(f"v_rcp_f32 v{tt+r}, v{tt+r}")
        for r in range(0, 8, 2): ops.append(f"v_pk_mul_f32 {vr(tt+r,2)}, {vr(a0+r,2)}, {vr(tt+r,2)}")
        for r in range(4): ops.append(f"v_cvt_pk_bf16_f32 v{pk+r}, v{tt+2*r}, v{tt+2*r+1}")
    fs = [(lambda l=l: e(l)) for l in ops]
    def st_():
        e(f"buffer_store_dwordx4 {vr(pk,4)}, v{vHS}, {srd(sH)}, s{sHS} offen offset:{g2*512 + (q%2)*2048} sc1"); VM.issue("hst")
    return fs + [st_]
def merge(a, b):
    r = []; a = list(a); b = list(b); na, nb_ = len(a), len(b)
    while a or b:
        if a and (not b or len(a) * nb_ >= len(b) * na): r.append(a.pop(0))
        else: r.append(b.pop(0))
    return r
if EMU:
    for r in range(8): e(f"v_cvt_f32_u32 v{216+r}, v{vL16}"); e(f"v_mul_f32 v{216+r}, 0x3a000000, v{216+r}")
for st in range(10):
    VM.wait(f"st{st}")
    if st == opt["rjs"]: VM.wait("rld")
    if st == opt["rfs"]: VM.wait("rst")
    LG.drain()
    e("s_barrier")
    if st == 9: stamp()
    stamp(k=1)
    if st >= 8: stamp(k=4)
    if st == opt["rfs"]:
        e(f"s_mul_i32 s{sTAG}, s{sE}, 0x9E3779B1")
        e(f"s_add_u32 s{sTAG}, s{sTAG}, 0x7F4A7C15")
        flag_store(sRFL)
    if (st == 8 and opt["rck"] == 0) or (st == 9 and opt["rck"] == 2): r_check()
    if st == 0 and opt["pre3"]: fill = list(ST0)
    elif st < 8: fill = dma_ops(st + 2)
    else: fill = take(opt["n8"] if st == 8 else opt["n9"])
    if st == opt["rls"]: fill = [r_loads] + fill if opt["rpos"] == 0 else fill + [r_loads]
    if st == opt["rjs"]: fill = [r_reads] + fill + [r_stores]
    if st == opt["rps"]: fill.insert(opt["rpp"], r_poll)
    ex = []
    for bi, es in enumerate(EMU):
        if es == st: ex += emu_ops(bi)
    if ex: fill = merge(fill, ex)
    h = (len(fill) + 1) // 2
    f0, f1 = fill[:h], fill[h:]
    if st == 8 and opt["rck"] == 1:
        k = 1 if opt["rps"] == 8 else 0
        f0, f1 = fill[:k], [r_check] + fill[k:]
    half_body(1 if st else None, rd_ops(st, 0), f0)
    half_body(0, rd_ops(st, 1), f1)
stamp()
PEND = []
def silu_block(q, g2):
    a0 = vACC1 + 16*q + 8*g2
    bi = 2*q + g2
    tt = vS + (bi % 2) * 8
    pk = vRF + bi * 4
    ops = []
    if opt["pk"]:
        for r in range(0, 8, 2): ops.append(f"v_pk_mul_f32 {vr(tt+r,2)}, {vr(a0+r,2)}, s[{sPK}:{sPK+1}]")
        for r in range(8): ops.append(f"v_exp_f32 v{tt+r}, v{tt+r}")
        for r in range(0, 8, 2): ops.append(f"v_pk_add_f32 {vr(tt+r,2)}, {vr(tt+r,2)}, 1.0 op_sel_hi:[1,0]")
        for r in range(8): ops.append(f"v_rcp_f32 v{tt+r}, v{tt+r}")
        for r in range(0, 8, 2): ops.append(f"v_pk_mul_f32 {vr(tt+r,2)}, {vr(a0+r,2)}, {vr(tt+r,2)}")
    else:
        for r in range(8): ops.append(f"v_mul_f32 v{tt+r}, s{sL2E}, v{a0+r}")
        for r in range(8): ops.append(f"v_exp_f32 v{tt+r}, v{tt+r}")
        for r in range(8): ops.append(f"v_add_f32 v{tt+r}, 1.0, v{tt+r}")
        for r in range(8): ops.append(f"v_rcp_f32 v{tt+r}, v{tt+r}")
        for r in range(8): ops.append(f"v_mul_f32 v{tt+r}, v{a0+r}, v{tt+r}")
    for r in range(4): ops.append(f"v_cvt_pk_bf16_f32 v{pk+r}, v{tt+2*r}, v{tt+2*r+1}")
    nbs = str(opt["nb"]).lstrip("x")
    fill = take(int(nbs[bi] if len(nbs) > 1 else nbs))
    step = len(ops) // (len(fill) + 1) if fill else 0
    for i, l in enumerate(ops):
        if not opt["novalu"]: e(l)
        if fill and step and (i + 1) % step == 0: fill.pop(0)()
    for f in fill: f()
    so = sHS if q < 2 else sHS2
    def st_():
        if opt["nost"]: return
        e(f"buffer_store_dwordx4 {vr(pk,4)}, v{vHS}, {srd(sH)}, s{so} offen offset:{g2*512 + (q%2)*2048} {opt['hsaux'].replace('-','')}"); VM.issue("hst")
        if opt["hs2"]:
            e(f"buffer_store_dwordx4 {vr(pk,4)}, v{vHS}, {srd(sH)}, s{so} offen offset:{g2*512 + (q%2)*2048} {opt['hs2'].replace('-','')}"); VM.issue("hst")
    PEND.append(st_)
    if bi >= opt["sl"]:
        while PEND: PEND.pop(0)()
for q in range(3):
    for kk in range(2): mfma1(1, kk, q)
e("s_nop 7")
stamp(k=4)
if opt["sts"] == 4: VM.drain(); stamp(k=4)
for q in range(3):
    for g2 in range(2):
        if 2*q + g2 >= len(EMU): silu_block(q, g2)
stamp(); stamp(k=4)
for f in take(opt["post"]): f()
if opt["wb"]:
    VM.wait("hst")
    e("buffer_wbl2 sc1"); VM.issue("hst")
VM.wait("hst")
stamp(k=4)
if opt["sts"] == 4: VM.drain(); stamp(k=4)
e("s_mov_b64 exec, 1")
e(f"ds_add_rtn_u32 v{vT+1}, v{vCN}, v{vONE}")
e("s_mov_b64 exec, -1")
for f in take(opt["mid"]): f()
e("s_waitcnt lgkmcnt(0)")
e(f"v_readfirstlane_b32 s{sT0}, v{vT+1}")
e(f"s_cmp_eq_u32 s{sT0}, {3 if opt['nopoll'] < 2 else 9}")
e(f"s_cselect_b32 s{sFLG}, s{sFLG}, {HREC}")
if opt["nopoll"] == 3: e(f"s_mov_b32 s{sPOL}, {HREC}")
flag_store(sFLG)
stamp(); stamp(k=3)
HL = [(p, n) for p in range(4) for n in range(12)]
def hload():
    if HL:
        p, n = HL.pop(0)
        if opt["noh"] and (p*12+n) % opt["noh"]: return
        e(f"buffer_load_dwordx4 {vr(vH + (p*12+n)*4, 4)}, v{vHB+p}, {srd(sH)}, s{sSIG+n} offen {opt['haux'].replace('-','')}"); VM.issue(f"h{p}_{n}")
def mark(v):
    if not opt["stamps"] or opt["sts"]: return
    i = NST[0]; NST[0] += 1
    e(f"s_add_u32 s{72+2*i}, s74, {v}"); e(f"s_addc_u32 s{73+2*i}, s75, 0")
def allc_load():
    e("s_cmp_eq_u32 s2, 0")
    e(f"s_cselect_b32 s{sT0}, {RFL}, s{sH+2}")
    e(f"buffer_load_dword v{vAV}, v{vAC}, {srd(sH)}, s{sT0} offen sc1"); VM.issue("allc")
def p0_block(ML, pre):
    ML = list(ML)
    for f in ML[:pre]: f()
    del ML[:pre]
    stamp()
    for n in range(12):
        assert (0, n) not in HL and not any(getattr(f, "__defaults__", None) and f.__defaults__[0] == n for f in ML), n
        late = max((f"h0_{n}", f"w{n}"), key=lambda t: len(VM.q) - 1 - VM.q[::-1].index(t) if t in VM.q else -1)
        VM.wait(late)
        if n == 0 or n == 6: stamp(k=2)
        cnt = (len(ML) + 11 - n) // (12 - n)
        pos = {1: [opt["hj"]], 2: [1, 3], 3: [0, 2, 4], 4: [0, 1, 2, 3], 5: [0, 1, 2, 3, 4], 0: []}[cnt]
        for j in range(5):
            c = "0" if n == 0 else vr(vACC2+4*j, 4)
            e(f"v_mfma_f32_16x16x32_bf16 {vr(vACC2+4*j,4)}, {ar(n*20+4*j,4)}, {vr(vH+n*4,4)}, {c}")
            if j in pos: ML.pop(0)()
    assert not ML and not W2L
def late_path():
    if opt["sts"] == 6:
        stamp(k=6)
        i = 0
        while len(W2L) > opt["pollq"]:
            take(1)[0](); i += 1
            if i % 4 == 0 and i >= opt["dw"]:
                e(f"s_waitcnt vmcnt({opt['dw']})"); stamp(k=6)
    for f in take(max(0, len(W2L) - opt["pollq"])): f()
    stamp(k=3)
    if opt["sts"] == 3: VM.drain(); stamp(k=3)
    if opt["sts"] == 4: stamp(k=4); VM.drain(); stamp(k=4)
    if opt["sp"]:
        e(f"s_load_dword s6, s[12:13], s{sPOL} {opt['spg']}")
        e(f"s_add_u32 s{sT0}, s{sPOL}, 128")
        e(f"s_load_dword s7, s[12:13], s{sT0} {opt['spg']}")
        for f in take(len(W2L)): f()
        stamp(k=3)
        e("s_waitcnt lgkmcnt(0)")
        stamp(k=3)
        stamp()
        e(f"s_cmp_eq_u32 s6, s{sTAG}")
        e(f"s_cselect_b32 s6, s7, s6")
        e(f"s_cmp_eq_u32 s6, s{sTAG}")
        e("s_cbranch_scc1 L_hp_go")
        e(f"v_mov_b32 v{vPOLL}, s6")
        spin_check("hp", vPOLL, vPA, "poll", sPOL, opt["nopoll"])
    else:
        e(f"buffer_load_dword v{vPOLL}, v{vPA}, {srd(sH)}, s{sPOL} offen sc1"); VM.issue("poll")
        for f in take(len(W2L)): f()
        stamp(k=3)
        VM.wait("poll")
        stamp(k=3)
        stamp()
        spin_check("hp", vPOLL, vPA, "poll", sPOL, opt["nopoll"])
    stamp(); stamp(k=2); stamp(k=3)
    mark(1000)
    allc_load()
    p0_block([hload] * (opt["hpre"] + 12), opt["hpre"])
LATE = []
if opt["eq"]:
    import re
    for f in take(len(W2L) - opt["eq"]): f()
    e(f"buffer_load_dword v{vPOLL}, v{vPA}, {srd(sH)}, s{sPOL} offen sc1"); VM.issue("poll")
    for f in take(opt["ec"]): f()
    VM.wait("poll")
    e(f"v_cmp_ne_u32 vcc, s{sTAG}, v{vPOLL}")
    e("s_cmp_eq_u64 vcc, 0" if not opt["nopoll"] else "s_cmp_eq_u32 s2, s2")
    e("s_cbranch_scc0 L_late")
    sv = (list(VM.q), list(W2L), list(HL), NST[0])
    LATE = ["L_late:"] + capture(late_path) + ["s_branch L_p1"]
    endq, endn = list(VM.q), NST[0]
    VM.q, W2L[:], HL[:], NST[0] = sv
    stamp(); stamp(); stamp(k=2); mark(0)
    allc_load()
    m = re.match(r"h(\d+)w(\d+)", opt["eil"])
    ML = []; nh = 12; ws = take(len(W2L))
    while nh or ws:
        k = min(nh, int(m.group(1))); ML += [hload] * k; nh -= k
        k = int(m.group(2)); ML += ws[:k]; del ws[:k]
    ML += [hload] * opt["hpre"]
    p0_block(ML, opt["epre"])
    assert NST[0] == endn, (NST[0], endn)
    k = min(len(VM.q), len(endq))
    assert VM.q[-k:] == endq[-k:] and all(t.startswith("h1") for t in VM.q + endq), (VM.q, endq)
    if len(endq) > len(VM.q): VM.q = endq
    e("L_p1:")
else:
    late_path()
def allc_check():
    e("s_cmp_lg_u32 s2, 0")
    e("s_cbranch_scc1 L_ac_go")
    assert "allc" not in VM.q
    spin_check("ac", vAV, vAC, "allc")
def phase2_new():
    B1, B2, MA = opt["b1"], opt["b2"], opt["madd"]
    for p in range(1, 4):
        ac = vACC2 + (p % 2) * 20
        pa = vACC2 + ((p-1) % 2) * 20
        slots = {(n, j): [] for n in range(12) for j in range(5)}
        if p > 0:
            for jj, pos in enumerate([(1, 0), (1, 2), (1, 4), (2, 1), (2, 3)]):
                def w(jj=jj):
                    e(f"ds_write_b128 v{vRW}, {vr(pa+4*jj,4)} offset:{(p-1)*5120 + jj*1024}"); LG.issue("red")
                slots[pos].append(w)
        def rd(pp, j, dst):
            def f():
                e(f"ds_read_b128 {vr(dst, 4)}, v{vRR+pp} offset:{j*1024}"); LG.issue(f"rr{pp}{j}")
            return f
        if p == 2:
            k = 0
            for j in range(5):
                for pp in range(2):
                    slots[(B1 + k // 5, k % 5)].append(rd(pp, j, vH + pp*20 + 4*j)); k += 1
            assert B1 + 3 <= 8
            for i in range(20):
                def a(i=i):
                    LG.wait(f"rr1{i//4}")
                    e(f"v_add_f32 v{pa+i}, v{vH+i}, v{vH+20+i}")
                slots[(8 + i // 5, i % 5)].append(a)
        if p == 3:
            for j in range(5): slots[(B2, j)].append(rd(2, j, vH + 4*j))
        for n in range(12):
            if (p == 2 and n == B1) or (p == 3 and n == B2):
                if p == 3: allc_check(); stamp(k=2)
                LG.drain(); e("s_barrier")
                if p == 3: stamp(k=2)
            VM.wait(f"h{p}_{n}")
            if n == 0 or (n == 6 and p < 3): stamp(k=2)
            def madd(j):
                LG.wait(f"rr2{j}")
                for r in range(4): e(f"v_add_f32 v{ac+4*j+r}, v{ac+4*j+r}, v{vH+4*j+r}")
            mid = p == 3 and n == MA
            if mid: e("s_nop 3"); madd(0)
            for j in range(5):
                c = "0" if n == 0 and p < 3 else vr(ac+4*j, 4)
                if mid:
                    if j < 4: madd(j+1)
                    else: e("s_nop 0")
                e(f"v_mfma_f32_16x16x32_bf16 {vr(ac+4*j,4)}, {ar(n*20+4*j,4)}, {vr(vH+(p*12+n)*4,4)}, {c}")
                if j == opt["hj"]: hload()
                for f in slots[(n, j)]: f()
    stamp(); stamp(k=2)
    ac = vACC2 + 20
    pk = vH + 64
    def cvt(j):
        for r in range(2): e(f"v_cvt_pk_bf16_f32 v{pk+2*j+r}, v{ac+4*j+2*r}, v{ac+4*j+2*r+1}")
    def swp(b):
        e(f"v_permlane32_swap_b32 v{pk+4*b}, v{pk+4*b+2}")
        e(f"v_permlane32_swap_b32 v{pk+4*b+1}, v{pk+4*b+3}")
        e(f"buffer_store_dwordx4 {vr(pk+4*b,4)}, v{vOUT}, {srd(sOUT)}, s{sOB} offen offset:{64*b} {opt['outaux']}")
    e("s_nop 3")
    cvt(0); cvt(1); cvt(2); swp(0); cvt(3); cvt(4); swp(1)
    e(f"buffer_store_dwordx2 {vr(pk+8,2)}, v{vOUT2}, {srd(sOUT)}, s{sOB} offen offset:128 {opt['outaux']}")
def phase2_old():
    for p in range(4):
        ac = vACC2 + (p % 2) * 20
        for n in range(12):
            VM.wait(f"h{p}_{n}")
            if n == 0 or (n == 6 and p < 3): stamp(k=2)
            if n == 0: stamp(k=3)
            for j in range(5):
                c = "0" if n == 0 else vr(ac+4*j, 4)
                if j >= opt["nomf2"]: e(f"v_mfma_f32_16x16x32_bf16 {vr(ac+4*j,4)}, {ar(n*20+4*j,4)}, {vr(vH+(p*12+n)*4,4)}, {c}")
                if j == opt["hj"]: hload()
                if p > 0 and n >= 2 and n < 7 and j == 3:
                    pa = vACC2 + ((p-1) % 2) * 20; jj = n - 2
                    e(f"ds_write_b128 v{vRW}, {vr(pa+4*jj,4)} offset:{(p-1)*5120 + jj*1024}"); LG.issue("red")
            if p == 3 and n == 7:
                e("s_cmp_lg_u32 s2, 0")
                e("s_cbranch_scc1 L_ac_go")
                assert "allc" not in VM.q
                spin_check("ac", vAV, vAC, "allc")
                stamp(k=2)
                LG.drain(); e("s_barrier")
                stamp(k=2)
                for pp in range(3):
                    for j in range(5):
                        e(f"ds_read_b128 {vr(vH + (pp*5+j)*4, 4)}, v{vRR+pp} offset:{j*1024}"); LG.issue("rr")
            if p == 3 and n == 9:
                LG.drain()
                for i in range(20): e(f"v_add_f32 v{vH+i}, v{vH+i}, v{vH+20+i}")
            if p == 3 and n == 10:
                for i in range(20): e(f"v_add_f32 v{vH+i}, v{vH+i}, v{vH+40+i}")
    stamp(); stamp(k=2)
    ac = vACC2 + 20
    e("s_nop 3")
    for j in range(5):
        for r in range(4): e(f"v_add_f32 v{vH+4*j+r}, v{vH+4*j+r}, v{ac+4*j+r}")
    pk = vH + 64
    for j in range(5):
        for r in range(2): e(f"v_cvt_pk_bf16_f32 v{pk+2*j+r}, v{vH+4*j+2*r}, v{vH+4*j+2*r+1}")
    e("s_nop 1")
    for b in range(2):
        e(f"v_permlane32_swap_b32 v{pk+4*b}, v{pk+4*b+2}")
        e(f"v_permlane32_swap_b32 v{pk+4*b+1}, v{pk+4*b+3}")
    for b in range(2):
        e(f"buffer_store_dwordx4 {vr(pk+4*b,4)}, v{vOUT}, {srd(sOUT)}, s{sOB} offen offset:{64*b} {opt['outaux']}")
    e(f"buffer_store_dwordx2 {vr(pk+8,2)}, v{vOUT2}, {srd(sOUT)}, s{sOB} offen offset:128 {opt['outaux']}")
assert opt["tail"]
phase2_new()
e(f"s_or_b32 s{sT0}, s{sW}, s2")
e(f"s_cmp_lg_u32 s{sT0}, 0")
e("s_cbranch_scc1 L_nobump")
e(f"s_add_u32 s{sE}, s{sE}, 1")
e(f"v_mov_b32 v{vT}, s{sE}")
e(f"s_mov_b32 s{sT0}, {EP}")
e("s_mov_b64 exec, 1")
e(f"buffer_store_dword v{vT}, off, {srd(sH)}, s{sT0}")
e("s_mov_b64 exec, -1")
e("L_nobump:")
if opt["stamps"]:
    e("s_waitcnt vmcnt(0)")
    stamp(k=-1); stamp(True)
    ns = NST[0]
    assert 72 + 2*ns <= 102
    e("s_waitcnt lgkmcnt(0)")
    if opt["rt"]:
        e(f"s_lshl_b32 s{sT0}, s2, 2")
        e(f"s_add_u32 s{sT0}, s{sT0}, s{sW}")
        e(f"s_mul_i32 s{sT0}, s{sT0}, {ns*8}")
    else:
        e(f"s_cmp_lg_u32 s{sW}, {opt['stamps']-1}")
        e("s_cbranch_scc1 L_end")
        e(f"s_mul_i32 s{sT0}, s2, {ns*8}")
    e("s_mov_b64 exec, 1")
    e(f"s_add_u32 s{sT0}, s{sT0}, {0x8000000 - (opt['wso'] << 20)}")
    e(f"v_mov_b32 v{vT}, s{sT0}")
    for i in range(ns):
        e(f"v_mov_b32 v24, s{72+2*i}"); e(f"v_mov_b32 v25, s{73+2*i}")
        e(f"global_store_dwordx2 v{vT}, v[24:25], s[12:13] offset:{i*8}"); e("s_nop 1")
    sys.stderr.write(f"nstamps {ns}\n")
if LATE:
    e("s_endpgm")
    O.extend(LATE)
e("L_end:")

hdr = f"""; FFN out = silu(x @ w1) @ w2, one launch, 256 workgroups (one per CU).
; @launch grid=(256,1,1) block=(256,1,1) lds=163840
.amdgcn_target "amdgcn-amd-amdhsa--gfx950"
.text
.globl {NAME}
.p2align 8
.type {NAME},@function
{NAME}:
"""
ftr = f"""s_endpgm
.section .rodata,"a"
.p2align 6
.amdhsa_kernel {NAME}
  .amdhsa_next_free_vgpr 512
  .amdhsa_next_free_sgpr 102
  .amdhsa_accum_offset 256
  .amdhsa_group_segment_fixed_size 0
  .amdhsa_kernarg_size 48
  .amdhsa_user_sgpr_count 2
  .amdhsa_user_sgpr_kernarg_segment_ptr 1
  .amdhsa_system_sgpr_workgroup_id_x 1
.end_amdhsa_kernel
"""
body = "\n".join(("" if l.endswith(":") else "    ") + l.rstrip() for l in O)
open(sys.argv[1], "w").write(hdr + body + "\n" + ftr)
```

```python
import sys
NAME = "standalone__dense_activation_silu__prompt_kernel"
opt = dict(pae=-1, wsk=0, afs=0, ab=0, afp=0, pa=20, pb=6, wr=1, owna=0, rb=4, skipw=0, m16=0, rtm=0, po="", rsaux="sc1", emu="", emv=1, fs=128, dw=8, eq=0, ec=4, epre=16, eil="h12w9", pfm=3, stamps=0, rot=1, rot2=1, pf=1, outaux="", map=2, raux="nt", xaux="", haux="sc1", hsaux="sc1", hs2="", wb=0, wso=0, sp=0, spg="", nord=0, nomf1=0, norp=0, pk=1, tail=1, b1=4, b2=4, madd=8, pt=0, fst=0, tab="x037", nost=0, novalu=0, nomf2=0, noh=0, hj=1, w2aux="sc1", w1aux="",
           sa=0, ma=10, sb=0, mb=10, mx=0, n8=8, n9=8, nb=0, post=0, pollq=8, hpre=8, sep=0, sts=0, rpos=0, rls=0, rjs=2, rpp=0, rps=7, rck=0, nopoll=0, rfs=4, sl=0, head=50, nf0=4, pre3=0, rt=0, own2=1, ntst=10, mid=2, xlin=0, nor=0)
for a in sys.argv[2:]:
    k, v = a.split("=")
    assert k in opt, k
    opt[k] = int(v) if v.lstrip("-").isdigit() else v.replace("_", " ")
O = []
def e(s): O.append(s)
NST = [0]
def stamp(rt=False, k=0):
    if not opt["stamps"]: return
    if not rt and NST[0] > 1 and k != opt["sts"] and k != -1: return
    i = NST[0]; NST[0] += 1
    e(f"s_memrealtime s[{72+2*i}:{73+2*i}]" if rt or opt["rt"] or opt["rtm"] else f"s_memtime s[{72+2*i}:{73+2*i}]")

class Q:
    def __init__(s, name, mx): s.name = name; s.mx = mx; s.q = []
    def issue(s, tag): s.q.append(tag)
    def wait(s, tag):
        if tag not in s.q: return
        i = len(s.q) - 1 - s.q[::-1].index(tag)
        n = min(len(s.q) - 1 - i, s.mx)
        e(f"s_waitcnt {s.name}({n})")
        s.q = s.q[len(s.q)-n:] if n else []
    def drain(s):
        e(f"s_waitcnt {s.name}(0)"); s.q = []
VM = Q("vmcnt", 63); LG = Q("lgkmcnt", 15)

FL = 0x600000; EP = 0x608000; RFL = 0x610000; W2F = 0x620000; HREC = 0x800000
FS = opt["fs"]
if FS > 128: FL = 0x800000; HREC = FL + 256 * FS
FLB = 0x200000
if opt["ab"]: HREC = 0x808000
RED = 98304; RB = 98304; CNT = 159744
sX, sW1, sW2, sOUT, sH = 16, 20, 24, 28, 32
(sW, sMT, sFT, sKX, sKW, sXB, sWB, sXE, sM0, sT0, sT1, sE, sTAG, sHS, sHS2, sFLG, sPOL, sW2B, sOWN, sROT,
 sRS, sRD, sWO, sL2E) = range(36, 60)
sSIG = 60
sPK = 4; sOB = 3; sRFL = 14; sSPIN = 15
vL16 = 1; vL16b = 2; vOUT = 3; vOUT2 = 4; vRW = 5; vRP = 6; vHS = 7
vPOLL = 8; vL4 = 9; vPA = 19
vRR = 10
vHB = 13
vT = 17
vCN = 20; vONE = 21; vAV = 22; vAC = 23
vDX = 24; vDW = 26; vDR = 32
vA = 34; vB = 36
vRA = 44
vTM = 46
vACC1 = 64; vAF = 112; vBF = 160; vS = 176; vRF = 192
vH = 64; vACC2 = 24
def srd(r): return f"s[{r}:{r+3}]"
def vr(r, n): return f"v[{r}:{r+n-1}]"
def ar(r, n): return f"a[{r}:{r+n-1}]"
def capture(fn):
    global O
    sv = O; O = []; fn(); r = O; O = sv; return r

e("s_cmp_ge_u32 s2, 256")
e("s_cbranch_scc1 L_end")
stamp(True); stamp()
e("s_load_dwordx8 s[4:11], s[0:1], 0")
e("s_load_dwordx2 s[12:13], s[0:1], 40")
L, Wv = vTM, vTM+1
t0, t1, t2, t3 = vTM+2, vTM+3, vTM+4, vTM+5
e(f"v_and_b32 v{L}, 63, v0")
e(f"v_lshrrev_b32 v{Wv}, 6, v0")
e(f"v_lshlrev_b32 v{vL16}, 4, v{L}")
e(f"v_readfirstlane_b32 s{sW}, v{Wv}")
if opt["pf"]:
    e("s_getpc_b64 s[14:15]")
    e("L_pc:")
    e(f"s_lshr_b32 s{sT0}, s2, 3")
    e(f"s_and_b32 s{sT0}, s{sT0}, {opt['pfm']}")
    e(f"s_lshl_b32 s{sT0}, s{sT0}, 12")
    e(f"v_lshl_add_u32 v{t0}, v0, 4, s{sT0}")
    e(f"v_min_u32 v{t0}, L_end-L_pc-16, v{t0}")
    e(f"global_load_dwordx4 v[252:255], v{t0}, s[14:15]")
    VM.issue("pf")
fa = opt["map"]
e(f"s_and_b32 s{sT0}, s2, 7")
e(f"s_lshr_b32 s{sT1}, s2, 3")
e(f"s_and_b32 s{sFT}, s{sT1}, {(1<<fa)-1}")
e(f"s_lshr_b32 s{sMT}, s{sT1}, {fa}")
if opt["rot"] == 3:
    tb = str(opt["tab"]).lstrip("x")
    tv = sum(int(c) << (4*i) for i, c in enumerate((tb * 16)[:16]))
    e(f"s_mul_i32 s{sKX}, s{sMT}, {opt['ma']}")
    e(f"s_mul_i32 s{sT1}, s{sFT}, {opt['mb']}")
    e(f"s_add_u32 s{sKX}, s{sKX}, s{sT1}")
    e(f"s_lshl_b32 s{sKX}, s{sKX}, 2")
    e(f"s_mov_b32 s{sSIG}, {tv & 0xffffffff}")
    e(f"s_mov_b32 s{sSIG+1}, {tv >> 32}")
    e(f"s_lshr_b64 s[{sSIG}:{sSIG+1}], s[{sSIG}:{sSIG+1}], s{sKX}")
    e(f"s_and_b32 s{sKX}, s{sSIG}, 15")
elif opt["rot"]:
    e(f"s_lshr_b32 s{sKX}, s{sMT}, {opt['sa']}")
    e(f"s_mul_i32 s{sKX}, s{sKX}, {opt['ma']}")
    e(f"s_lshr_b32 s{sT1}, s{sFT}, {opt['sb']}")
    e(f"s_mul_i32 s{sT1}, s{sT1}, {opt['mb']}")
    e(f"s_add_u32 s{sKX}, s{sKX}, s{sT1}")
    if opt['mx']:
        e(f"s_mul_i32 s{sT1}, s{sT0}, {opt['mx']}")
        e(f"s_add_u32 s{sKX}, s{sKX}, s{sT1}")
    e(f"s_lshr_b32 s{sKX}, s{sKX}, 2")
    e(f"s_mul_i32 s{sT1}, s{sKX}, 205")
    e(f"s_lshr_b32 s{sT1}, s{sT1}, 11")
    e(f"s_mul_i32 s{sT1}, s{sT1}, 10")
    e(f"s_sub_u32 s{sKX}, s{sKX}, s{sT1}")
else:
    e(f"s_mov_b32 s{sKX}, 0")
if opt["ab"]:
    e(f"s_lshl_b32 s{sROT}, s{sMT}, 2")
elif opt["rot2"] == 2:
    e(f"s_and_b32 s{sROT}, s{sMT}, 3")
    e(f"s_mul_i32 s{sROT}, s{sROT}, 3")
elif opt["rot2"]:
    e(f"s_mul_i32 s{sROT}, s{sMT}, 12")
    e(f"s_lshr_b32 s{sROT}, s{sROT}, {5-fa}")
else:
    e(f"s_mov_b32 s{sROT}, 0")
e(f"s_and_b32 s{sT1}, s{sT0}, {(8>>fa)-1}")
e(f"s_lshl_b32 s{sT1}, s{sT1}, {fa}")
e(f"s_add_u32 s{sFT}, s{sFT}, s{sT1}")
e(f"s_lshr_b32 s{sT1}, s{sT0}, {3-fa}")
e(f"s_lshl_b32 s{sT1}, s{sT1}, {5-fa}")
e(f"s_add_u32 s{sMT}, s{sMT}, s{sT1}")
e(f"s_mul_i32 s{sXB}, s{sMT}, 81920")
e(f"s_mul_i32 s{sWB}, s{sFT}, 384")
e(f"s_add_u32 s{sXE}, s{sXB}, 1280")
e(f"s_mul_i32 s{sKW}, s{sKX}, {64*3072}")
e(f"s_add_u32 s{sKW}, s{sKW}, s{sWB}")
e(f"s_lshl_b32 s{sKX}, s{sKX}, 7")
e(f"s_add_u32 s{sKX}, s{sKX}, s{sXB}")
G = vTM+6
e(f"v_lshrrev_b32 v{G}, 4, v{L}")
e(f"v_lshrrev_b32 v{t0}, 3, v{L}")
e(f"v_lshl_add_u32 v{t0}, v{Wv}, 4, v{t0}")
e(f"v_mul_u32_u24 v{t0}, 1280, v{t0}")
e(f"v_and_b32 v{t1}, 7, v{L}")
e(f"v_xor_b32 v{t1}, v{t1}, v{G}")
e(f"v_lshl_add_u32 v{vDX}, v{t1}, 4, v{t0}")
e(f"v_xor_b32 v{t1}, 4, v{t1}")
e(f"v_lshl_add_u32 v{vDX+1}, v{t1}, 4, v{t0}")
e(f"v_add_u32 v{vDX+1}, {8*1280-1024}, v{vDX+1}")
if opt["xlin"]:
    e(f"v_lshl_add_u32 v{vDX}, v{Wv}, 11, v{vL16}")
    e(f"v_mov_b32 v{vDX+1}, v{vDX}")
    e(f"s_and_b32 s{sT0}, s{sFT}, 3")
    e(f"s_mul_i32 s{sT0}, s{sT0}, {opt['xlin']}")
    e(f"s_lshr_b32 s{sT0}, s{sT0}, 2")
    e(f"s_lshl_b32 s100, s{sT0}, 13")
    e(f"s_add_u32 s100, s100, s{sXB}")
    e(f"s_add_u32 s101, s{sXB}, 81920")
e(f"v_mul_u32_u24 v{t3}, {16*3072}, v{Wv}")
for i in range(3):
    if i: e(f"v_add_u32 v{t0}, {64*i}, v{L}")
    src = t0 if i else L
    e(f"v_mul_u32_u24 v{t1}, 2731, v{src}")
    e(f"v_lshrrev_b32 v{t1}, 16, v{t1}")
    e(f"v_mul_u32_u24 v{t2}, 24, v{t1}")
    e(f"v_sub_u32 v{t0}, v{src}, v{t2}")
    e(f"v_and_b32 v{t2}, 2, v{t1}")
    e(f"v_lshlrev_b32 v{t2}, 1, v{t2}")
    e(f"v_xor_b32 v{t0}, v{t0}, v{t2}")
    e(f"v_mul_u32_u24 v{t1}, 3072, v{t1}")
    e(f"v_lshl_add_u32 v{t0}, v{t0}, 4, v{t1}")
    e(f"v_add_u32 v{t0}, v{t0}, v{t3}")
    if i: e(f"v_subrev_u32 v{vDW+i}, {i*1024}, v{t0}")
    else: e(f"v_mov_b32 v{vDW}, v{t0}")
    e(f"v_add_u32 v{vDW+3+i}, {8*3072 - ((i+3)%4)*1024}, v{t0}")
e(f"s_lshl_b32 s{sM0}, s{sW}, 13")
e(f"s_mov_b32 s{sSPIN}, {EP}")
for r, n in ((sX, 2621440), (sW1, 1966080), (sW2, 1966080), (sOUT, 2621440), (sH, HREC)):
    e(f"s_mov_b32 s{r+2}, {n}"); e(f"s_mov_b32 s{r+3}, 0x20000")
e("s_waitcnt lgkmcnt(0)")
if opt["wso"]:
    e(f"s_add_u32 s12, s12, {opt['wso'] << 20}"); e("s_addc_u32 s13, s13, 0")
for r, p in ((sW2, 8), (sX, 4), (sW1, 6), (sOUT, 10), (sH, 12)):
    e(f"s_mov_b64 s[{r}:{r+1}], s[{p}:{p+1}]")
stamp()
e(f"s_load_dword s{sE}, s[12:13], s{sSPIN}")

def adv_k():
    if opt["xlin"]:
        e(f"s_add_u32 s100, s100, 8192")
        e(f"s_cmp_eq_u32 s100, s101")
        e(f"s_cselect_b32 s100, s{sXB}, s100")
    e(f"s_add_u32 s{sKX}, s{sKX}, 128")
    e(f"s_add_u32 s{sKW}, s{sKW}, {64*3072}")
    e(f"s_cmp_eq_u32 s{sKX}, s{sXE}")
    e(f"s_cselect_b32 s{sKX}, s{sXB}, s{sKX}")
    e(f"s_cselect_b32 s{sKW}, s{sWB}, s{sKW}")
def dma_ops(st):
    base = (st % 3) * 32768
    def mk(i):
        def f():
            if i == 0: e(f"s_add_u32 m0, s{sM0}, {base+6144}"); e("s_nop 0")
            if i < 2:
                e(f"buffer_load_dwordx4 v{vDX+i}, {srd(sX)}, s{100 if opt['xlin'] else sKX} offen offset:{i*1024} {opt['xaux'] if st < opt['ntst'] else ''} lds")
            else:
                j = i - 2
                e(f"buffer_load_dwordx4 v{vDW+j}, {srd(sW1)}, s{sKW} offen offset:{(j%4)*1024} {opt['w1aux'] if st < opt['ntst'] else ''} lds")
            VM.issue(f"st{st}")
            if i == 1: e(f"s_add_u32 m0, s{sM0}, {base}"); e("s_nop 0")
            if i == 5: e(f"s_add_u32 m0, s{sM0}, {base+4096}"); e("s_nop 0")
            if i == 7 and st < 9: adv_k()
        return f
    return [mk(i) for i in range(8)]

def setup2():
    R, C = t0, t1
    u0, u1, u2 = vTM+7, vTM+8, vTM+9
    e(f"s_and_b32 s{sT0}, s2, 63")
    e(f"s_mul_i32 s{sT1}, s{sT0}, 205")
    e(f"s_lshr_b32 s{sT1}, s{sT1}, 10")
    e(f"s_mul_i32 s{sRS}, s{sT1}, 5")
    e(f"s_sub_u32 s{sRS}, s{sT0}, s{sRS}")
    e(f"s_lshr_b32 s{sRD}, s2, 6")
    e(f"s_mul_i32 s{sRFL}, s{sRD}, 5")
    e(f"s_add_u32 s{sRFL}, s{sRFL}, s{sRS}")
    e(f"s_lshl_b32 s{sRFL}, s{sRFL}, 4")
    e(f"s_add_u32 s{sRFL}, s{sRFL}, s{sT1}")
    e(f"s_lshl_b32 s{sRFL}, s{sRFL}, 7")
    e(f"s_mul_i32 s{sRD}, s{sRD}, 12")
    e(f"s_add_u32 s{sT1}, s{sT1}, s{sRD}")
    e(f"s_mul_i32 s{sT1}, s{sT1}, 40960")
    e(f"s_lshl_b32 s{sRD}, s{sRS}, 13")
    e(f"s_add_u32 s{sRD}, s{sRD}, s{sT1}")
    e(f"s_lshl_b32 s{sRS}, s{sRS}, 8")
    e(f"s_add_u32 s{sRS}, s{sRS}, s{sT1}")
    e(f"s_lshl_b32 s{sT1}, s{sW}, 11")
    e(f"s_add_u32 s{sRD}, s{sRD}, s{sT1}")
    e(f"s_add_u32 s{sRD}, s{sRD}, {W2F}")
    e(f"s_cmp_lt_u32 s{sT0}, {0 if opt['nor'] else 60}")
    e(f"s_cselect_b32 s{sRS}, s{sRS}, 1966080")
    e(f"s_cselect_b32 s{sRD}, s{sRD}, {HREC}")
    if opt["pt"] & 1:
        e(f"s_min_u32 s{sT1}, s{sRS}, {1966080-4}")
        e(f"s_load_dword s6, s[8:9], s{sT1}")
    if opt["pt"] & 2:
        e(f"s_mul_i32 s{sT1}, s{sMT}, {64*3072}")
        e(f"s_load_dword s6, s[12:13], s{sT1}")
    if opt["pt"] & 4:
        e(f"s_load_dword s6, s[10:11], s{sXB}")
    if opt["pt"] & 8:
        e(f"s_load_dword s6, s[12:13], s{sRD}")
    e(f"v_lshl_add_u32 v{t0}, v{Wv}, 3, v{G}")
    e(f"v_mul_u32_u24 v{t0}, 1280, v{t0}")
    e(f"v_and_b32 v{t1}, 15, v{L}")
    e(f"v_lshlrev_b32 v{t2}, 1, v{G}")
    e(f"v_xor_b32 v{t1}, v{t1}, v{t2}")
    e(f"v_lshl_add_u32 v{vDR}, v{t1}, 4, v{t0}")
    e(f"v_xor_b32 v{t1}, 8, v{t1}")
    e(f"v_lshl_add_u32 v{vDR+1}, v{t1}, 4, v{t0}")
    e(f"v_add_u32 v{vDR+1}, {4*1280-1024}, v{vDR+1}")
    e(f"v_bfe_u32 v{R}, v{L}, 2, 2")
    e(f"v_and_b32 v{C}, 3, v{L}")
    e(f"v_lshrrev_b32 v{u0}, 1, v{G}")
    e(f"v_lshl_add_u32 v{u0}, v{u0}, 3, v{R}")
    e(f"v_mul_u32_u24 v{u0}, 384, v{u0}")
    e(f"v_lshrrev_b32 v{u1}, 1, v{R}")
    e(f"v_xor_b32 v{u1}, v{u1}, v{Wv}")
    e(f"v_and_b32 v{u1}, 1, v{u1}")
    e(f"v_lshl_add_u32 v{u0}, v{u1}, 6, v{u0}")
    e(f"v_and_b32 v{u1}, 1, v{G}")
    e(f"v_lshl_add_u32 v{u0}, v{u1}, 5, v{u0}")
    e(f"v_lshl_add_u32 v{vA}, v{C}, 3, v{u0}")
    e(f"v_add_u32 v{vA+1}, 65536, v{vA}")
    e(f"v_and_b32 v{u0}, 2, v{Wv}")
    e(f"v_add_u32 v{u0}, v{u0}, v{u1}")
    e(f"v_lshlrev_b32 v{u0}, 13, v{u0}")
    e(f"v_and_b32 v{u2}, 15, v{L}")
    e(f"v_lshl_add_u32 v{u0}, v{u2}, 7, v{u0}")
    e(f"v_add_u32 v{u0}, 6144, v{u0}")
    e(f"v_lshrrev_b32 v{u1}, 1, v{u2}")
    e(f"v_lshrrev_b32 v{t2}, 5, v{L}")
    e(f"v_xor_b32 v{u1}, v{u1}, v{t2}")
    e(f"v_lshl_add_u32 v{vB}, v{u1}, 4, v{u0}")
    for k in range(1, 4): e(f"v_xor_b32 v{vB+k}, {32*k}, v{vB}")
    for k in range(4): e(f"v_add_u32 v{vB+4+k}, 65536, v{vB+k}")
    e(f"v_and_b32 v{u1}, 1, v{G}")
    e(f"v_lshl_add_u32 v{u1}, v{u1}, 2, v{R}")
    e(f"v_lshlrev_b32 v{u0}, 12, v{t2}")
    e(f"v_lshl_add_u32 v{u0}, v{u1}, 8, v{u0}")
    e(f"v_lshlrev_b32 v{t3}, 1, v{Wv}")
    e(f"v_xor_b32 v{u1}, v{u1}, v{t3}")
    e(f"v_lshl_add_u32 v{u0}, v{u1}, 5, v{u0}")
    e(f"v_and_b32 v{u1}, 1, v{C}")
    e(f"v_lshl_add_u32 v{u0}, v{u1}, 4, v{u0}")
    e(f"v_lshrrev_b32 v{u1}, 1, v{C}")
    e(f"v_lshl_add_u32 v{u0}, v{u1}, 3, v{u0}")
    e(f"v_add_u32 v{vRA}, {RB}, v{u0}")
    e(f"v_xor_b32 v{vRA+1}, 32, v{vRA}")
    e(f"v_mov_b32 v{vCN}, {CNT}")
    e(f"v_mov_b32 v{vONE}, 0")
    e(f"ds_write_b32 v{vCN}, v{vONE}"); LG.issue("cnt")
    if opt["ab"]: e(f"ds_write_b32 v{vCN}, v{vONE} offset:4"); LG.issue("cnt")
    for i in range(48): e(f"v_mov_b32 v{vACC1+i}, 0")
    e(f"v_mov_b32 v{vONE}, 1")
    e(f"v_and_b32 v{u1}, 1, v{G}")
    e(f"v_mul_u32_u24 v{u0}, 12288, v{u1}")
    e(f"v_lshl_add_u32 v{u0}, v{t2}, 8, v{u0}")
    e(f"v_lshl_add_u32 v{vHS}, v{u2}, 4, v{u0}")
    e(f"v_mul_u32_u24 v{u0}, 1280, v{u2}")
    e(f"v_lshl_add_u32 v{vOUT}, v{G}, 4, v{u0}")
    e(f"v_lshl_add_u32 v{u0}, v{u1}, 4, v{u0}")
    e(f"v_lshl_add_u32 v{vOUT2}, v{t2}, 3, v{u0}")
    e(f"v_add_u32 v{vL16b}, 4096, v{vL16}")
    e(f"s_mul_i32 s{sT0}, s{sFT}, 5")
    e(f"v_lshl_add_u32 v{u0}, v{u1}, 2, s{sT0}")
    e(f"v_lshrrev_b32 v{u0}, 3, v{u0}")
    e(f"v_mad_u32_u24 v{u0}, v{Wv}, 5, v{u0}")
    e(f"v_min_u32 v{vRP}, 11, v{u2}")
    e(f"v_lshlrev_b32 v{vRP}, 7, v{vRP}")
    e(f"v_lshl_add_u32 v{vRP}, v{u0}, 11, v{vRP}")
    e(f"v_lshlrev_b32 v{vL4}, 2, v{L}")
    e(f"v_mul_u32_u24 v{vPA}, {FS}, v{u1}")
    e(f"v_mul_u32_u24 v{u0}, 205, v{L}")
    e(f"v_lshrrev_b32 v{u0}, 10, v{u0}")
    e(f"v_sub_u32 v{vAC}, v{Wv}, v{u0}")
    e(f"v_mad_i32_i24 v{vAC}, v{vAC}, 5, v{L}")
    e(f"v_lshlrev_b32 v{vAC}, 11, v{vAC}")
    e(f"v_lshl_add_u32 v{vAC}, v{u0}, 7, v{vAC}")
    e(f"s_mul_i32 s{sT0}, s{sW}, 15360")
    e(f"s_add_u32 s{sT0}, s{sT0}, {RED}")
    e(f"v_add_u32 v{vRW}, s{sT0}, v{vL16}")
    for p in range(3):
        e(f"s_sub_u32 s{sT0}, s{sW}, {1+p}")
        e(f"s_and_b32 s{sT0}, s{sT0}, 3")
        e(f"s_mul_i32 s{sT0}, s{sT0}, 15360")
        e(f"s_add_u32 s{sT0}, s{sT0}, {RED + p*5120}")
        e(f"v_add_u32 v{vRR+p}, s{sT0}, v{vL16}")
    e(f"s_mul_i32 s{sW2B}, s{sW}, {12*40960}")
    e(f"s_mul_i32 s{sT0}, s{sFT}, 5120")
    e(f"s_add_u32 s{sW2B}, s{sW2B}, s{sT0}")
    e(f"s_add_u32 s{sW2B}, s{sW2B}, {W2F}")
    if opt["ab"]:
        e(f"s_mov_b32 s{sSIG+6}, 0x98763210"); e(f"s_mov_b32 s{sSIG+7}, 0x98763210")
        e(f"s_lshr_b64 s[{sSIG+6}:{sSIG+7}], s[{sSIG+6}:{sSIG+7}], s{sROT}")
        e(f"s_mov_b32 s{sSIG+7}, s{sSIG+6}")
        e(f"s_and_b32 s{sROT}, s{sROT}, 12")
        e(f"s_lshr_b32 s{sSIG+11}, 0xba54ba54, s{sROT}")
        for n in range(12):
            src = sSIG+7 if n < 8 else sSIG+11
            e(f"s_bfe_u32 s{sSIG+n}, s{src}, {0x40000 + 4*(n%8)}")
            e(f"s_lshl_b32 s{sSIG+n}, s{sSIG+n}, 10")
    for n in range(12 if not opt["ab"] else 0):
        e(f"s_lshl_b32 s{sSIG+n}, s{sROT}, 10")
        if n < 11:
            e(f"s_add_u32 s{sROT}, s{sROT}, 1")
            e(f"s_cmp_ge_u32 s{sROT}, 12")
            e(f"s_cselect_b32 s{sROT}, 0, s{sROT}")
    if opt["own2"] == 2:
        e(f"s_mov_b32 s{sOWN}, s{sW}")
    elif opt["own2"] == 3:
        e(f"s_and_b32 s{sOWN}, s{sFT}, 1")
        e(f"s_add_u32 s{sOWN}, s{sW}, s{sOWN}")
    elif opt["own2"]:
        e(f"s_lshl_b32 s{sOWN}, s{sFT}, 1")
        e(f"s_add_u32 s{sOWN}, s{sW}, s{sOWN}")
    else: e(f"s_add_u32 s{sOWN}, s{sW}, s{sFT}")
    e(f"s_and_b32 s{sOWN}, s{sOWN}, 3")
    e(f"s_lshl_b32 s{sT1}, s{sMT}, 2")
    e(f"s_add_u32 s{sT1}, s{sT1}, s{sW}")
    e(f"s_mul_i32 s{sPOL}, s{sT1}, {2*FS}")
    e(f"s_add_u32 s{sPOL}, s{sPOL}, {FL}")
    e(f"s_lshl_b32 s{sT1}, s{sT1}, 2")
    for p in range(4):
        e(f"s_add_u32 s{sT0}, s{sOWN}, {1+p}")
        e(f"s_and_b32 s{sT0}, s{sT0}, 3")
        e(f"s_add_u32 s{sT0}, s{sT0}, s{sT1}")
        e(f"s_mul_i32 s{sT0}, s{sT0}, 12288")
        e(f"v_add_u32 v{vHB+p}, s{sT0}, v{vL16}")
    e(f"s_lshl_b32 s{sOB}, s{sMT}, 2")
    e(f"s_add_u32 s{sOB}, s{sOB}, s{sOWN}")
    e(f"s_mul_i32 s{sOB}, s{sOB}, {16*1280}")
    e(f"s_mul_i32 s{sT0}, s{sFT}, 160")
    e(f"s_add_u32 s{sOB}, s{sOB}, s{sT0}")
    e(f"s_lshl_b32 s{sT0}, s{sMT}, 2")
    e(f"s_lshr_b32 s{sT1}, s{sFT}, 1")
    e(f"s_add_u32 s{sT0}, s{sT0}, s{sT1}")
    e(f"s_mul_i32 s{sFLG}, s{sT0}, {2*FS}")
    e(f"s_lshl_b32 s{sT0}, s{sT0}, 2")
    e(f"s_and_b32 s{sT1}, s{sW}, 2")
    e(f"s_add_u32 s{sT0}, s{sT0}, s{sT1}")
    e(f"s_mul_i32 s{sHS}, s{sT0}, 12288")
    e(f"s_and_b32 s{sT0}, s{sFT}, 1")
    e(f"s_mul_i32 s{sT1}, s{sT0}, {FS}")
    e(f"s_add_u32 s{sFLG}, s{sFLG}, s{sT1}")
    e(f"s_add_u32 s{sFLG}, s{sFLG}, {FL}")
    e(f"s_mul_i32 s{sT0}, s{sT0}, 6")
    e(f"s_and_b32 s{sT1}, s{sW}, 1")
    e(f"s_add_u32 s{sT0}, s{sT0}, s{sT1}")
    e(f"s_lshl_b32 s{sT0}, s{sT0}, 10")
    e(f"s_add_u32 s{sHS}, s{sHS}, s{sT0}")
    e(f"s_add_u32 s{sHS2}, s{sHS}, 4096")
    e(f"s_add_u32 s{sRFL}, s{sRFL}, {RFL}")
    e(f"s_cmp_eq_u32 s{sW}, 0")
    e(f"s_cselect_b32 s{sRFL}, s{sRFL}, {HREC}")
    e(f"s_mov_b32 s{sL2E}, 0xbfb8aa3b")
    if opt["pk"]:
        e(f"s_mov_b32 s{sPK}, 0xbfb8aa3b"); e(f"s_mov_b32 s{sPK+1}, 0xbfb8aa3b")
def r_loads():
    e(f"s_lshr_b32 m0, s{sM0}, 2")
    e(f"s_add_u32 m0, m0, {RB}")
    e("s_nop 0")
    for i in range(2):
        e(f"buffer_load_dwordx4 v{vDR+i}, {srd(sW2)}, s{sRS} offen offset:{i*1024} {opt['raux']} lds"); VM.issue("rld")
def r_reads():
    for ee in range(2):
        for t in range(2):
            e(f"ds_read_b64_tr_b16 {vr(vRF + 4*ee + 2*t, 2)}, v{vRA+ee} offset:{t*2048}"); LG.issue("rrd")
def r_stores():
    LG.wait("rrd")
    for ee in range(2):
        e(f"buffer_store_dwordx4 {vr(vRF+4*ee,4)}, v{vL16}, {srd(sH)}, s{sRD} offen offset:{ee*1024} {opt['rsaux']}"); VM.issue("rst")
S2 = capture(setup2)
groups = []
for l in S2:
    if l.startswith("s_cselect") or (groups and groups[-1][-1].startswith("s_cmp")): groups[-1].append(l)
    else: groups.append([l])
ST0 = []
def pre_order(spec):
    kx, kw = (sKX, 6, 8), (sKW, 7, 9)
    def nxt(i):
        a, b = (i + 1) % 3, i
        e(f"s_add_u32 s{kx[a]}, s{kx[b]}, 128")
        e(f"s_add_u32 s{kw[a]}, s{kw[b]}, {64*3072}")
        e(f"s_cmp_eq_u32 s{kx[a]}, s{sXE}")
        e(f"s_cselect_b32 s{kx[a]}, s{sXB}, s{kx[a]}")
        e(f"s_cselect_b32 s{kw[a]}, s{sWB}, s{kw[a]}")
    ops = []
    for ch in spec:
        if ch in "abc":
            st = "abc".index(ch)
            for i in range(2):
                def f(st=st, i=i):
                    if i == 0: e(f"s_add_u32 m0, s{sM0}, {st*32768+6144}"); e("s_nop 0")
                    e(f"buffer_load_dwordx4 v{vDX+i}, {srd(sX)}, s{kx[st]} offen offset:{i*1024} {opt['xaux']} lds"); VM.issue(f"st{st}")
                    if st == 0 and i == 1: nxt(0); nxt(1)
                ops.append(f)
        elif ch in "ABC":
            st = "ABC".index(ch)
            for j in range(6):
                def f(st=st, j=j):
                    if j % 4 == 0: e(f"s_add_u32 m0, s{sM0}, {st*32768+j*1024}"); e("s_nop 0")
                    e(f"buffer_load_dwordx4 v{vDW+j}, {srd(sW1)}, s{kw[st]} offen offset:{(j%4)*1024} {opt['w1aux']} lds"); VM.issue(f"st{st}")
                ops.append(f)
        elif ch == "R": ops.append(r_loads)
        elif ch == ".": ops.append(None)
        elif ch == "P":
            def f():
                e(f"s_bfe_u32 s10, s{sMT}, 0x10002")
                e(f"s_mul_i32 s10, s10, 320")
                e(f"s_and_b32 s11, s{sMT}, 3")
                e(f"s_lshl_b32 s11, s11, 4")
                e(f"s_add_u32 s10, s10, s11")
                e(f"s_mul_i32 s11, s{sW}, 12")
                e(f"s_sub_u32 s10, s10, s11")
                e(f"s_add_u32 s10, s10, 256")
                e(f"s_mul_i32 s10, s10, 3072")
                e(f"s_add_u32 s10, s10, s{sWB}")
                e(f"buffer_load_dwordx4 v[244:247], v{vDW}, {srd(sW1)}, s10 offen"); VM.issue("pp")
                e("s_mov_b32 exec_hi, 0")
                e(f"buffer_load_dwordx4 v[248:251], v{vDW+1}, {srd(sW1)}, s10 offen offset:1024"); VM.issue("pp")
                e("s_mov_b32 exec_hi, -1")
            ops.append(f)
    assert spec[0] == "a" and all(c in spec for c in "abcABC")
    last = ops[-1]
    def fin(): last(); nxt(2)
    ops[-1] = fin
    return ops
if opt["po"]:
    first = pre_order(opt["po"]); opt["pre3"] = 1
    if None in first:
        k = first.index(None); first, ST0 = first[:k], first[k+1:]
    if "R" in opt["po"]: opt["rls"] = -1
else:
    first = dma_ops(0) + dma_ops(1) + (dma_ops(2) if opt["pre3"] else [])
    if opt["rls"] < 0: first.append(r_loads)
NF0 = opt["nf0"]
for f in first[:NF0]: f()
if opt["fst"]:
    e(f"s_waitcnt vmcnt({NF0-1})"); stamp(k=5)
    e(f"s_waitcnt vmcnt({NF0-3})"); stamp(k=5)
rest = first[NF0:]
per = (len(groups) + len(rest) - 1) // len(rest)
head = len(groups) * opt["head"] // 100
for g in groups[:head]: O.extend(g)
groups = groups[head:]
per = (len(groups) + len(rest) - 1) // len(rest)
for f in rest:
    f()
    for g in groups[:per]: O.extend(g)
    groups = groups[per:]
assert not groups
stamp()

def w2_ops():
    ops = []
    for n in range(12):
        for j in range(5):
            def f(n=n, j=j):
                if j == 0:
                    e(f"s_mul_i32 s{sWO}, s{sSIG+n}, 40")
                    e(f"s_add_u32 s{sWO}, s{sWO}, s{sW2B}")
                va = vL16 if j < 4 else vL16b
                e(f"buffer_load_dwordx4 {ar(n*20+4*j, 4)}, v{va}, {srd(sH)}, s{sWO} offen offset:{(j%4)*1024} {opt['w2aux'].replace('-','')}")
                VM.issue(f"w{n}")
            ops.append(f)
    return ops
W2L = w2_ops()
def take(n):
    r = W2L[:n]; del W2L[:n]; return r

def rd_ops(st, half):
    slot = st % 3
    sb = (slot % 2) * 32768 if slot < 2 else 0
    hi = 1 if slot == 2 else 0
    ops = []
    if opt["nord"]: return ops
    for kk in range(2):
        ks = 2*half + kk
        def b(ks=ks, kk=kk):
            e(f"ds_read_b128 {vr(vBF + (half*2+kk)*4, 4)}, v{vB + 4*hi + ks} offset:{sb}"); LG.issue(f"B{ks}")
        ops.append(b)
        for q in range(3):
            for t in range(2):
                def a(ks=ks, kk=kk, q=q, t=t):
                    e(f"ds_read_b64_tr_b16 {vr(vAF + half*24 + (kk*3+q)*4 + 2*t, 2)}, v{vA+hi} offset:{sb + ks*8192 + t*1536 + q*128}")
                    LG.issue(f"A{ks}{q}")
                ops.append(a)
    return ops
def i16(kk, q): return kk == 1
def mfma1(half, kk, q):
    ks = 2*half + kk
    LG.wait(f"A{ks}{q}")
    if opt["nomf1"]: return
    if opt["m16"]:
        for z in range(2):
            c = vr(vACC1+16*q+8*kk+4*z, 4)
            e(f"v_mfma_f32_16x16x32_bf16 {c}, {vr(vAF + half*24 + (kk*3+q)*4, 4)}, {vr(vBF + (half*2+(kk^z if i16(kk, q) else kk))*4, 4)}, {c}")
        return
    e(f"v_mfma_f32_32x32x16_bf16 {vr(vACC1+16*q,16)}, {vr(vAF + half*24 + (kk*3+q)*4, 4)}, {vr(vBF + (half*2+kk)*4, 4)}, {vr(vACC1+16*q,16)}")
def half_body(mf_half, rds, fill):
    rds = list(rds); fill = list(fill)
    for i in range(6):
        if mf_half is not None: mfma1(mf_half, i // 3, i % 3)
        left = 6 - i
        for _ in range((len(rds) + left - 1) // left if i else min(len(rds), 4)):
            if rds: rds.pop(0)()
        for _ in range((len(fill) + left - 1) // left):
            if fill: fill.pop(0)()
    assert not rds and not fill

def flag_store(off):
    e(f"v_mov_b32 v{vT}, s{sTAG}")
    e("s_mov_b32 exec_hi, 0")
    e(f"buffer_store_dword v{vT}, v{vL4}, {srd(sH)}, s{off} offen sc1"); VM.issue("flag")
    e("s_mov_b32 exec_hi, -1")
def r_poll():
    e(f"s_mov_b32 s{sT0}, {HREC if opt['norp'] else RFL}")
    e(f"buffer_load_dword v{vPOLL}, v{vRP}, {srd(sH)}, s{sT0} offen sc1"); VM.issue("rpoll")

def spin_check(lab, vv, va, tag, so=None, fake=False):
    VM.wait(tag)
    e(f"s_mov_b32 s{sSPIN}, 20000")
    e(f"L_{lab}:")
    e(f"v_cmp_ne_u32 vcc, s{sTAG}, v{vv}")
    e("s_cmp_eq_u64 vcc, 0" if not fake else "s_cmp_eq_u32 s2, s2")
    e(f"s_cbranch_scc1 L_{lab}_go")
    e(f"s_sub_u32 s{sSPIN}, s{sSPIN}, 1")
    e(f"s_cmp_eq_u32 s{sSPIN}, 0")
    e(f"s_cbranch_scc1 L_{lab}_go")
    if so is None: e(f"s_mov_b32 s{sT0}, {RFL}")
    e(f"buffer_load_dword v{vv}, v{va}, {srd(sH)}, s{sT0 if so is None else so} offen sc1")
    e("s_waitcnt vmcnt(0)")
    e(f"s_branch L_{lab}")
    e(f"L_{lab}_go:")
def r_check(): spin_check("rp", vPOLL, vRP, "rpoll", None, opt["norp"])

EMU = [int(c) for c in str(opt["emu"]).lstrip("x")]
def emu_ops(bi):
    q, g2 = bi // 2, bi % 2
    a0 = 216; tt = vS + (bi % 2) * 8; pk = vRF + 8 + bi * 4
    ops = []
    if opt["emv"]:
        for r in range(0, 8, 2): ops.append(f"v_pk_mul_f32 {vr(tt+r,2)}, {vr(a0+r,2)}, s[{sPK}:{sPK+1}]")
        for r in range(8): ops.append(f"v_exp_f32 v{tt+r}, v{tt+r}")
        for r in range(0, 8, 2): ops.append(f"v_pk_add_f32 {vr(tt+r,2)}, {vr(tt+r,2)}, 1.0 op_sel_hi:[1,0]")
        for r in range(8): ops.append(f"v_rcp_f32 v{tt+r}, v{tt+r}")
        for r in range(0, 8, 2): ops.append(f"v_pk_mul_f32 {vr(tt+r,2)}, {vr(a0+r,2)}, {vr(tt+r,2)}")
        for r in range(4): ops.append(f"v_cvt_pk_bf16_f32 v{pk+r}, v{tt+2*r}, v{tt+2*r+1}")
    fs = [(lambda l=l: e(l)) for l in ops]
    def st_():
        e(f"buffer_store_dwordx4 {vr(pk,4)}, v{vHS}, {srd(sH)}, s{sHS} offen offset:{g2*512 + (q%2)*2048} sc1"); VM.issue("hstA" if opt["ab"] else "hst")
    return fs + [st_]
def merge(a, b):
    r = []; a = list(a); b = list(b); na, nb_ = len(a), len(b)
    while a or b:
        if a and (not b or len(a) * nb_ >= len(b) * na): r.append(a.pop(0))
        else: r.append(b.pop(0))
    return r
if EMU:
    for r in range(8): e(f"v_cvt_f32_u32 v{216+r}, v{vL16}"); e(f"v_mul_f32 v{216+r}, 0x3a000000, v{216+r}")
for st in range(10):
    VM.wait(f"st{st}")
    if st == opt["rjs"]: VM.wait("rld")
    if st == opt["rfs"]: VM.wait("rst")
    if st == opt["afs"] and st: VM.wait("hstA")
    LG.drain()
    e("s_barrier")
    if st == opt["afs"] and st:
        e(f"s_cmp_eq_u32 s{sW}, 0")
        e(f"s_cselect_b32 s{sT1}, s{sFLG}, {HREC}")
        flag_store(sT1); stamp(k=7)
    if st == 9: stamp()
    stamp(k=1)
    if st >= 8: stamp(k=4)
    if st == opt["rfs"]:
        e(f"s_mul_i32 s{sTAG}, s{sE}, 0x9E3779B1")
        e(f"s_add_u32 s{sTAG}, s{sTAG}, 0x7F4A7C15")
        flag_store(sRFL)
    if (st == 8 and opt["rck"] == 0) or (st == 9 and opt["rck"] == 2): r_check()
    if st == 0 and opt["pre3"]: fill = list(ST0)
    elif st < 8: fill = dma_ops(st + 2)
    else: fill = take(opt["n8"] if st == 8 else opt["n9"])
    if st == opt["rls"]: fill = [r_loads] + fill if opt["rpos"] == 0 else fill + [r_loads]
    if st == opt["rjs"]: fill = [r_reads] + fill + [r_stores]
    if st == opt["rps"]: fill.insert(opt["rpp"], r_poll)
    ex = []
    for bi, es in enumerate(EMU):
        if es == st: ex += emu_ops(bi)
    if ex: fill = merge(fill, ex)
    h = (len(fill) + 1) // 2
    f0, f1 = fill[:h], fill[h:]
    if st == 8 and opt["rck"] == 1:
        k = 1 if opt["rps"] == 8 else 0
        f0, f1 = fill[:k], [r_check] + fill[k:]
    half_body(1 if st else None, rd_ops(st, 0), f0)
    half_body(0, rd_ops(st, 1), f1)
stamp()
PEND = []
def silu_block(q, g2):
    a0 = vACC1 + 16*q + 8*g2
    bi = 2*q + g2
    tt = vS + (bi % 2) * 8
    pk = vRF + bi * 4
    ops = []
    if opt["pk"]:
        for r in range(0, 8, 2): ops.append(f"v_pk_mul_f32 {vr(tt+r,2)}, {vr(a0+r,2)}, s[{sPK}:{sPK+1}]")
        for r in range(8): ops.append(f"v_exp_f32 v{tt+r}, v{tt+r}")
        for r in range(0, 8, 2): ops.append(f"v_pk_add_f32 {vr(tt+r,2)}, {vr(tt+r,2)}, 1.0 op_sel_hi:[1,0]")
        for r in range(8): ops.append(f"v_rcp_f32 v{tt+r}, v{tt+r}")
        for r in range(0, 8, 2): ops.append(f"v_pk_mul_f32 {vr(tt+r,2)}, {vr(a0+r,2)}, {vr(tt+r,2)}")
    else:
        for r in range(8): ops.append(f"v_mul_f32 v{tt+r}, s{sL2E}, v{a0+r}")
        for r in range(8): ops.append(f"v_exp_f32 v{tt+r}, v{tt+r}")
        for r in range(8): ops.append(f"v_add_f32 v{tt+r}, 1.0, v{tt+r}")
        for r in range(8): ops.append(f"v_rcp_f32 v{tt+r}, v{tt+r}")
        for r in range(8): ops.append(f"v_mul_f32 v{tt+r}, v{a0+r}, v{tt+r}")
    for r in range(4): ops.append(f"v_cvt_pk_bf16_f32 v{pk+r}, v{tt+2*r}, v{tt+2*r+1}")
    nbs = str(opt["nb"]).lstrip("x")
    fill = take(int(nbs[bi] if len(nbs) > 1 else nbs))
    step = len(ops) // (len(fill) + 1) if fill else 0
    for i, l in enumerate(ops):
        if not opt["novalu"]: e(l)
        if fill and step and (i + 1) % step == 0: fill.pop(0)()
    for f in fill: f()
    so = sHS if q < 2 else sHS2
    def st_():
        if opt["nost"]: return
        e(f"buffer_store_dwordx4 {vr(pk,4)}, v{vHS}, {srd(sH)}, s{so} offen offset:{g2*512 + (q%2)*2048} {opt['hsaux'].replace('-','')}"); VM.issue("hstA" if opt["ab"] and q < 2 else "hst")
        if opt["hs2"]:
            e(f"buffer_store_dwordx4 {vr(pk,4)}, v{vHS}, {srd(sH)}, s{so} offen offset:{g2*512 + (q%2)*2048} {opt['hs2'].replace('-','')}"); VM.issue("hst")
    PEND.append(st_)
    if bi >= opt["sl"]:
        while PEND: PEND.pop(0)()
for q in range(3):
    for kk in range(2): mfma1(1, kk, q)
e("s_nop 7")
stamp(k=4)
if opt["sts"] == 4: VM.drain(); stamp(k=4)
def cnt_add(tag, off):
    VM.wait(tag)
    e("s_mov_b64 exec, 1")
    e(f"ds_add_rtn_u32 v{vT+1}, v{vCN}, v{vONE} offset:{off}")
    e("s_mov_b64 exec, -1")
def cnt_flag(add):
    e("s_waitcnt lgkmcnt(0)"); LG.q = []
    e(f"v_readfirstlane_b32 s{sT0}, v{vT+1}")
    e(f"s_add_u32 s{sT1}, s{sFLG}, {add}")
    e(f"s_cmp_eq_u32 s{sT0}, 3")
    e(f"s_cselect_b32 s{sT1}, s{sT1}, {HREC}")
    flag_store(sT1)
for q in range(3):
    for g2 in range(2):
        bi = 2*q + g2
        if opt["ab"] and not opt["afs"] and bi == 4 + opt["afp"]: cnt_add("hstA", 0); stamp(k=7)
        if bi >= len(EMU): silu_block(q, g2)
        if opt["ab"] and not opt["afs"] and bi == 4 + opt["afp"]: cnt_flag(0); stamp(k=7)
stamp(); stamp(k=4)
for i, f in enumerate(take(opt["post"])):
    if i == opt["pae"]:
        e(f"buffer_load_dword v{vPOLL}, v{vPA}, {srd(sH)}, s{sPOL} offen sc1"); VM.issue("poll")
    f()
if opt["wb"]:
    VM.wait("hst")
    e("buffer_wbl2 sc1"); VM.issue("hst")
VM.wait("hst")
stamp(k=4)
if opt["sts"] == 4: VM.drain(); stamp(k=4)
e("s_mov_b64 exec, 1")
e(f"ds_add_rtn_u32 v{vT+1}, v{vCN}, v{vONE} offset:{4 if opt['ab'] else 0}")
e("s_mov_b64 exec, -1")
if opt["ab"]: e(f"s_add_u32 s{sFLG}, s{sFLG}, {FLB}")
for f in take(opt["mid"]): f()
e("s_waitcnt lgkmcnt(0)")
e(f"v_readfirstlane_b32 s{sT0}, v{vT+1}")
e(f"s_cmp_eq_u32 s{sT0}, {3 if opt['nopoll'] < 2 else 9}")
e(f"s_cselect_b32 s{sFLG}, s{sFLG}, {HREC}")
if opt["nopoll"] == 3: e(f"s_mov_b32 s{sPOL}, {HREC}")
flag_store(sFLG)
stamp(); stamp(k=3)
HL = [(p, n) for p in range(4) for n in range(12)]
def hload():
    if HL:
        p, n = HL.pop(0)
        if opt["noh"] and (p*12+n) % opt["noh"]: return
        e(f"buffer_load_dwordx4 {vr(vH + (p*12+n)*4, 4)}, v{vHB+p}, {srd(sH)}, s{sSIG+n} offen {opt['haux'].replace('-','')}"); VM.issue(f"h{p}_{n}")
def mark(v):
    if not opt["stamps"] or opt["sts"]: return
    i = NST[0]; NST[0] += 1
    e(f"s_add_u32 s{72+2*i}, s74, {v}"); e(f"s_addc_u32 s{73+2*i}, s75, 0")
def allc_load():
    e("s_cmp_eq_u32 s2, 0")
    e(f"s_cselect_b32 s{sT0}, {RFL}, s{sH+2}")
    e(f"buffer_load_dword v{vAV}, v{vAC}, {srd(sH)}, s{sT0} offen sc1"); VM.issue("allc")
def p0_block(ML, pre):
    ML = list(ML)
    for f in ML[:pre]: f()
    del ML[:pre]
    stamp()
    for n in range(12):
        assert (0, n) not in HL and not any(getattr(f, "__defaults__", None) and f.__defaults__[0] == n for f in ML), n
        late = max((f"h0_{n}", f"w{n}"), key=lambda t: len(VM.q) - 1 - VM.q[::-1].index(t) if t in VM.q else -1)
        VM.wait(late)
        if n == 0 or n == 6: stamp(k=2)
        cnt = (len(ML) + 11 - n) // (12 - n)
        pos = {1: [opt["hj"]], 2: [1, 3], 3: [0, 2, 4], 4: [0, 1, 2, 3], 5: [0, 1, 2, 3, 4], 0: []}[cnt]
        for j in range(5):
            c = "0" if n == 0 else vr(vACC2+4*j, 4)
            e(f"v_mfma_f32_16x16x32_bf16 {vr(vACC2+4*j,4)}, {ar(n*20+4*j,4)}, {vr(vH+n*4,4)}, {c}")
            if j in pos: ML.pop(0)()
    assert not ML and not W2L
def late_path():
    if opt['skipw']: del W2L[-opt['skipw']:]
    if opt["sts"] == 6:
        stamp(k=6)
        i = 0
        while len(W2L) > opt["pollq"]:
            take(1)[0](); i += 1
            if i % 4 == 0 and i >= opt["dw"]:
                e(f"s_waitcnt vmcnt({opt['dw']})"); stamp(k=6)
    for f in take(max(0, len(W2L) - opt["pollq"])): f()
    stamp(k=3)
    if opt["sts"] == 3: VM.drain(); stamp(k=3)
    if opt["sts"] == 4: stamp(k=4); VM.drain(); stamp(k=4)
    if opt["sp"]:
        e(f"s_load_dword s6, s[12:13], s{sPOL} {opt['spg']}")
        e(f"s_add_u32 s{sT0}, s{sPOL}, 128")
        e(f"s_load_dword s7, s[12:13], s{sT0} {opt['spg']}")
        for f in take(len(W2L)): f()
        stamp(k=3)
        e("s_waitcnt lgkmcnt(0)")
        stamp(k=3)
        stamp()
        e(f"s_cmp_eq_u32 s6, s{sTAG}")
        e(f"s_cselect_b32 s6, s7, s6")
        e(f"s_cmp_eq_u32 s6, s{sTAG}")
        e("s_cbranch_scc1 L_hp_go")
        e(f"v_mov_b32 v{vPOLL}, s6")
        spin_check("hp", vPOLL, vPA, "poll", sPOL, opt["nopoll"])
    else:
        e(f"buffer_load_dword v{vPOLL}, v{vPA}, {srd(sH)}, s{sPOL} offen sc1"); VM.issue("poll")
        for f in take(len(W2L)): f()
        stamp(k=3)
        VM.wait("poll")
        stamp(k=3)
        stamp()
        spin_check("hp", vPOLL, vPA, "poll", sPOL, opt["nopoll"])
    stamp(); stamp(k=2); stamp(k=3)
    mark(1000)
    allc_load()
    p0_block([hload] * (opt["hpre"] + 12), opt["hpre"])
LATE = []
if opt["eq"]:
    import re
    for f in take(len(W2L) - opt["eq"]): f()
    e(f"buffer_load_dword v{vPOLL}, v{vPA}, {srd(sH)}, s{sPOL} offen sc1"); VM.issue("poll")
    for f in take(opt["ec"]): f()
    VM.wait("poll")
    e(f"v_cmp_ne_u32 vcc, s{sTAG}, v{vPOLL}")
    e("s_cmp_eq_u64 vcc, 0" if not opt["nopoll"] else "s_cmp_eq_u32 s2, s2")
    e("s_cbranch_scc0 L_late")
    sv = (list(VM.q), list(W2L), list(HL), NST[0])
    LATE = ["L_late:"] + capture(late_path) + ["s_branch L_p1"]
    endq, endn = list(VM.q), NST[0]
    VM.q, W2L[:], HL[:], NST[0] = sv
    stamp(); stamp(); stamp(k=2); mark(0)
    allc_load()
    m = re.match(r"h(\d+)w(\d+)", opt["eil"])
    ML = []; nh = 12; ws = take(len(W2L))
    while nh or ws:
        k = min(nh, int(m.group(1))); ML += [hload] * k; nh -= k
        k = int(m.group(2)); ML += ws[:k]; del ws[:k]
    ML += [hload] * opt["hpre"]
    p0_block(ML, opt["epre"])
    assert NST[0] == endn, (NST[0], endn)
    k = min(len(VM.q), len(endq))
    assert VM.q[-k:] == endq[-k:] and all(t.startswith("h1") for t in VM.q + endq), (VM.q, endq)
    if len(endq) > len(VM.q): VM.q = endq
    e("L_p1:")
elif not opt["ab"]:
    late_path()
def allc_check():
    e("s_cmp_lg_u32 s2, 0")
    e("s_cbranch_scc1 L_ac_go")
    assert "allc" not in VM.q
    spin_check("ac", vAV, vAC, "allc")
def phase2_new():
    B1, B2, MA = opt["b1"], opt["b2"], opt["madd"]
    for p in range(1, 4):
        ac = vACC2 + (p % 2) * 20
        pa = vACC2 + ((p-1) % 2) * 20
        slots = {(n, j): [] for n in range(12) for j in range(5)}
        if p > 0:
            for jj, pos in enumerate([(1, 0), (1, 2), (1, 4), (2, 1), (2, 3)]):
                def w(jj=jj):
                    e(f"ds_write_b128 v{vRW}, {vr(pa+4*jj,4)} offset:{(p-1)*5120 + jj*1024}"); LG.issue("red")
                slots[pos].append(w)
        def rd(pp, j, dst):
            def f():
                e(f"ds_read_b128 {vr(dst, 4)}, v{vRR+pp} offset:{j*1024}"); LG.issue(f"rr{pp}{j}")
            return f
        if p == 2:
            k = 0
            for j in range(5):
                for pp in range(2):
                    slots[(B1 + k // 5, k % 5)].append(rd(pp, j, vH + pp*20 + 4*j)); k += 1
            assert B1 + 3 <= 8
            for i in range(20):
                def a(i=i):
                    LG.wait(f"rr1{i//4}")
                    e(f"v_add_f32 v{pa+i}, v{vH+i}, v{vH+20+i}")
                slots[(8 + i // 5, i % 5)].append(a)
        if p == 3:
            for j in range(5): slots[(B2, j)].append(rd(2, j, vH + 4*j))
        for n in range(12):
            if (p == 2 and n == B1) or (p == 3 and n == B2):
                if p == 3: allc_check(); stamp(k=2)
                LG.drain(); e("s_barrier")
                if p == 3: stamp(k=2)
            VM.wait(f"h{p}_{n}")
            if n == 0 or (n == 6 and p < 3): stamp(k=2)
            def madd(j):
                LG.wait(f"rr2{j}")
                for r in range(4): e(f"v_add_f32 v{ac+4*j+r}, v{ac+4*j+r}, v{vH+4*j+r}")
            mid = p == 3 and n == MA
            if mid: e("s_nop 3"); madd(0)
            for j in range(5):
                c = "0" if n == 0 and p < 3 else vr(ac+4*j, 4)
                if mid:
                    if j < 4: madd(j+1)
                    else: e("s_nop 0")
                e(f"v_mfma_f32_16x16x32_bf16 {vr(ac+4*j,4)}, {ar(n*20+4*j,4)}, {vr(vH+(p*12+n)*4,4)}, {c}")
                if j == opt["hj"]: hload()
                for f in slots[(n, j)]: f()
    stamp(); stamp(k=2)
    ac = vACC2 + 20
    pk = vH + 64
    def cvt(j):
        for r in range(2): e(f"v_cvt_pk_bf16_f32 v{pk+2*j+r}, v{ac+4*j+2*r}, v{ac+4*j+2*r+1}")
    def swp(b):
        e(f"v_permlane32_swap_b32 v{pk+4*b}, v{pk+4*b+2}")
        e(f"v_permlane32_swap_b32 v{pk+4*b+1}, v{pk+4*b+3}")
        e(f"buffer_store_dwordx4 {vr(pk+4*b,4)}, v{vOUT}, {srd(sOUT)}, s{sOB} offen offset:{64*b} {opt['outaux']}")
    e("s_nop 3")
    cvt(0); cvt(1); cvt(2); swp(0); cvt(3); cvt(4); swp(1)
    e(f"buffer_store_dwordx2 {vr(pk+8,2)}, v{vOUT2}, {srd(sOUT)}, s{sOB} offen offset:128 {opt['outaux']}")
def phase2_old():
    for p in range(4):
        ac = vACC2 + (p % 2) * 20
        for n in range(12):
            VM.wait(f"h{p}_{n}")
            if n == 0 or (n == 6 and p < 3): stamp(k=2)
            if n == 0: stamp(k=3)
            for j in range(5):
                c = "0" if n == 0 else vr(ac+4*j, 4)
                if j >= opt["nomf2"]: e(f"v_mfma_f32_16x16x32_bf16 {vr(ac+4*j,4)}, {ar(n*20+4*j,4)}, {vr(vH+(p*12+n)*4,4)}, {c}")
                if j == opt["hj"]: hload()
                if p > 0 and n >= 2 and n < 7 and j == 3:
                    pa = vACC2 + ((p-1) % 2) * 20; jj = n - 2
                    e(f"ds_write_b128 v{vRW}, {vr(pa+4*jj,4)} offset:{(p-1)*5120 + jj*1024}"); LG.issue("red")
            if p == 3 and n == 7:
                e("s_cmp_lg_u32 s2, 0")
                e("s_cbranch_scc1 L_ac_go")
                assert "allc" not in VM.q
                spin_check("ac", vAV, vAC, "allc")
                stamp(k=2)
                LG.drain(); e("s_barrier")
                stamp(k=2)
                for pp in range(3):
                    for j in range(5):
                        e(f"ds_read_b128 {vr(vH + (pp*5+j)*4, 4)}, v{vRR+pp} offset:{j*1024}"); LG.issue("rr")
            if p == 3 and n == 9:
                LG.drain()
                for i in range(20): e(f"v_add_f32 v{vH+i}, v{vH+i}, v{vH+20+i}")
            if p == 3 and n == 10:
                for i in range(20): e(f"v_add_f32 v{vH+i}, v{vH+i}, v{vH+40+i}")
    stamp(); stamp(k=2)
    ac = vACC2 + 20
    e("s_nop 3")
    for j in range(5):
        for r in range(4): e(f"v_add_f32 v{vH+4*j+r}, v{vH+4*j+r}, v{ac+4*j+r}")
    pk = vH + 64
    for j in range(5):
        for r in range(2): e(f"v_cvt_pk_bf16_f32 v{pk+2*j+r}, v{vH+4*j+2*r}, v{vH+4*j+2*r+1}")
    e("s_nop 1")
    for b in range(2):
        e(f"v_permlane32_swap_b32 v{pk+4*b}, v{pk+4*b+2}")
        e(f"v_permlane32_swap_b32 v{pk+4*b+1}, v{pk+4*b+3}")
    for b in range(2):
        e(f"buffer_store_dwordx4 {vr(pk+4*b,4)}, v{vOUT}, {srd(sOUT)}, s{sOB} offen offset:{64*b} {opt['outaux']}")
    e(f"buffer_store_dwordx2 {vr(pk+8,2)}, v{vOUT2}, {srd(sOUT)}, s{sOB} offen offset:128 {opt['outaux']}")
def phase2_ab():
    OA = opt["owna"]
    items = [(p, n) for p in range(3) for n in range(8)] + [(3, n) for n in range(OA)]
    NA = len(items)
    items += [(p, n) for p in range(3) for n in range(8, 12)] + [(3, n) for n in range(OA, 12)]
    NS = 36; vH2 = 112
    acc = lambda p, j: 24 + 20*p + 4*j
    hp = opt["hpre"]
    HI = list(range(48))
    def hl():
        if not HI: return
        i = HI.pop(0); p, n = items[i]
        if i == NA:
            spin_check("hpb", vPOLL, vPA, "pollB", sPOL, opt["nopoll"]); stamp(k=7)
        e(f"buffer_load_dwordx4 {vr(vH2 + (i % NS)*4, 4)}, v{vHB+p}, {srd(sH)}, s{sSIG+n} offen {opt['haux'].replace('-','')}"); VM.issue(f"h{i}")
    if opt["pae"] < 0:
        for f in take(max(0, len(W2L) - opt["pa"])): f()
        e(f"buffer_load_dword v{vPOLL}, v{vPA}, {srd(sH)}, s{sPOL} offen sc1"); VM.issue("poll")
        for f in take(opt["ec"]): f()
    VM.wait("poll")
    stamp(); stamp(k=7)
    spin_check("hp", vPOLL, vPA, "poll", sPOL, opt["nopoll"])
    stamp(); stamp(k=2); stamp(k=7)
    e(f"s_add_u32 s{sPOL}, s{sPOL}, {FLB}")
    allc_load()
    for _ in range(hp): hl()
    for f in take(opt["wsk"]): f()
    stamp()
    slots = {(i, j): [] for i in range(48) for j in range(5)}
    L3 = NA + 12
    for p in range(3):
        i0 = NA + 4*(p+1)
        for jj, (di, j) in enumerate([(1, 0), (1, 2), (1, 4), (2, 1), (2, 3)]):
            def w(jj=jj, p=p):
                e(f"ds_write_b128 v{vRW}, {vr(acc(p,jj),4)} offset:{p*5120 + jj*1024}"); LG.issue("red")
            slots[(i0 + di, j)].append(w)
    IB = L3 + opt["rb"]
    k = 0
    rest = 48 - IB
    assert rest >= 1
    rds = []
    for j in range(5):
        for pp in range(3):
            def f(pp=pp, j=j):
                e(f"ds_read_b128 {vr(acc(pp,j), 4)}, v{vRR+pp} offset:{j*1024}"); LG.issue(f"rr{j}")
            rds.append(f)
    per = 1 if rest >= 7 else 3
    for k, f in enumerate(rds): slots[(IB + k // per // 5, k // per % 5)].append(f)
    adds = []
    for j in range(5):
        for pp in (1, 2):
            for r in (0, 2):
                def a(j=j, pp=pp, r=r):
                    LG.wait(f"rr{j}")
                    e(f"v_pk_add_f32 {vr(acc(0,j)+r,2)}, {vr(acc(0,j)+r,2)}, {vr(acc(pp,j)+r,2)}")
                adds.append(a)
    MA = 47 if rest >= 7 else None
    if MA:
        a0 = (MA - 3) * 5 - 5
        for k, f in enumerate(adds): slots[((a0 + k) // 5, (a0 + k) % 5)].append(f)
    seen = set()
    for i, (p, n) in enumerate(items):
        if i == IB:
            allc_check(); stamp(k=2)
            LG.drain(); e("s_barrier")
            stamp(k=2)
        assert i not in HI and not any(f.__defaults__[0] == n for f in W2L), (i, n)
        late = max((f"h{i}", f"w{n}"), key=lambda t: len(VM.q) - 1 - VM.q[::-1].index(t) if t in VM.q else -1)
        VM.wait(late)
        if i % 8 == 0: stamp(k=2)
        def madd(j):
            for r in (0, 2): e(f"v_pk_add_f32 {vr(acc(3,j)+r,2)}, {vr(acc(3,j)+r,2)}, {vr(acc(0,j)+r,2)}")
        mid = i == MA
        if mid: e("s_nop 3"); madd(0)
        for j in range(5):
            c = vr(acc(p,j), 4) if p in seen else "0"
            if mid:
                if j < 4: madd(j+1)
                else: e("s_nop 1")
            e(f"v_mfma_f32_16x16x32_bf16 {vr(acc(p,j),4)}, {ar(n*20+4*j,4)}, {vr(vH2+(i % NS)*4,4)}, {c}")
            if j == opt["hj"]: hl()
            if j == 3 and i % opt["wr"] == 0:
                for f in take(1): f()
            if j == 4 and i == opt["pb"]:
                e(f"buffer_load_dword v{vPOLL}, v{vPA}, {srd(sH)}, s{sPOL} offen sc1"); VM.issue("pollB")
            for f in slots[(i, j)]: f()
        seen.add(p)
    stamp(); stamp(k=2); stamp(k=7)
    ac = acc(3, 0)
    pk = vH2 + 64
    if not MA:
        for f in adds: f()
        for j in range(5): madd(j)
    def cvt(j):
        for r in range(2): e(f"v_cvt_pk_bf16_f32 v{pk+2*j+r}, v{ac+4*j+2*r}, v{ac+4*j+2*r+1}")
    def swp(b):
        e(f"v_permlane32_swap_b32 v{pk+4*b}, v{pk+4*b+2}")
        e(f"v_permlane32_swap_b32 v{pk+4*b+1}, v{pk+4*b+3}")
        e(f"buffer_store_dwordx4 {vr(pk+4*b,4)}, v{vOUT}, {srd(sOUT)}, s{sOB} offen offset:{64*b} {opt['outaux']}")
    e("s_nop 3")
    cvt(0); cvt(1); cvt(2); swp(0); cvt(3); cvt(4); swp(1)
    e(f"buffer_store_dwordx2 {vr(pk+8,2)}, v{vOUT2}, {srd(sOUT)}, s{sOB} offen offset:128 {opt['outaux']}")
assert opt["tail"]
if opt["ab"]: phase2_ab()
else: phase2_new()
e(f"s_or_b32 s{sT0}, s{sW}, s2")
e(f"s_cmp_lg_u32 s{sT0}, 0")
e("s_cbranch_scc1 L_nobump")
e(f"s_add_u32 s{sE}, s{sE}, 1")
e(f"v_mov_b32 v{vT}, s{sE}")
e(f"s_mov_b32 s{sT0}, {EP}")
e("s_mov_b64 exec, 1")
e(f"buffer_store_dword v{vT}, off, {srd(sH)}, s{sT0}")
e("s_mov_b64 exec, -1")
e("L_nobump:")
if opt["stamps"]:
    e("s_waitcnt vmcnt(0)")
    stamp(k=-1); stamp(True)
    ns = NST[0]
    assert 72 + 2*ns <= 102
    e("s_waitcnt lgkmcnt(0)")
    if opt["rt"]:
        e(f"s_lshl_b32 s{sT0}, s2, 2")
        e(f"s_add_u32 s{sT0}, s{sT0}, s{sW}")
        e(f"s_mul_i32 s{sT0}, s{sT0}, {ns*8}")
    else:
        e(f"s_cmp_lg_u32 s{sW}, {opt['stamps']-1}")
        e("s_cbranch_scc1 L_end")
        e(f"s_mul_i32 s{sT0}, s2, {ns*8}")
    e("s_mov_b64 exec, 1")
    e(f"s_add_u32 s{sT0}, s{sT0}, {0x8000000 - (opt['wso'] << 20)}")
    e(f"v_mov_b32 v{vT}, s{sT0}")
    for i in range(ns):
        e(f"v_mov_b32 v24, s{72+2*i}"); e(f"v_mov_b32 v25, s{73+2*i}")
        e(f"global_store_dwordx2 v{vT}, v[24:25], s[12:13] offset:{i*8}"); e("s_nop 1")
    sys.stderr.write(f"nstamps {ns}\n")
if LATE:
    e("s_endpgm")
    O.extend(LATE)
e("L_end:")

hdr = f"""; FFN out = silu(x @ w1) @ w2, one launch, 256 workgroups (one per CU).
; @launch grid=(256,1,1) block=(256,1,1) lds=163840
.amdgcn_target "amdgcn-amd-amdhsa--gfx950"
.text
.globl {NAME}
.p2align 8
.type {NAME},@function
{NAME}:
"""
ftr = f"""s_endpgm
.section .rodata,"a"
.p2align 6
.amdhsa_kernel {NAME}
  .amdhsa_next_free_vgpr 512
  .amdhsa_next_free_sgpr 102
  .amdhsa_accum_offset 256
  .amdhsa_group_segment_fixed_size 0
  .amdhsa_kernarg_size 48
  .amdhsa_user_sgpr_count 2
  .amdhsa_user_sgpr_kernarg_segment_ptr 1
  .amdhsa_system_sgpr_workgroup_id_x 1
.end_amdhsa_kernel
"""
body = "\n".join(("" if l.endswith(":") else "    ") + l.rstrip() for l in O)
open(sys.argv[1], "w").write(hdr + body + "\n" + ftr)
```

```python
import sys
NAME = "standalone__dense_activation_silu__prompt_kernel"
opt = dict(dfw=0, ne=8, clr=-1, clrs='', spec=0, fw=12, wl=0, rsp=99, rrp=0, fb=0, tch=0, la=4, tp0=0, tpos=8, th=1, ns=3, n7=0, rcs=8, epk=1, fk=0, ost=0, pae=-1, wsk=0, afs=0, ab=0, afp=0, pa=20, pb=6, wr=1, owna=0, rb=4, skipw=0, m16=0, rtm=0, po="", rsaux="sc1", emu="", emv=1, fs=128, dw=8, eq=0, ec=4, epre=16, eil="h12w9", pfm=3, stamps=0, rot=1, rot2=1, pf=1, outaux="", map=2, raux="nt", xaux="", haux="sc1", hsaux="sc1", hs2="", wb=0, wso=0, sp=0, spg="", nord=0, nomf1=0, norp=0, pk=1, tail=1, b1=4, b2=4, madd=8, pt=0, fst=0, tab="x037", nost=0, novalu=0, nomf2=0, noh=0, hj=1, w2aux="sc1", w1aux="",
           sa=0, ma=10, sb=0, mb=10, mx=0, n8=8, n9=8, nb=0, post=0, pollq=8, hpre=8, sep=0, sts=0, rpos=0, rls=0, rjs=2, rpp=0, rps=7, rck=0, nopoll=0, rfs=4, sl=0, head=50, nf0=4, pre3=0, rt=0, own2=2, ntst=10, mid=2, xlin=0, nor=0)
for a in sys.argv[2:]:
    k, v = a.split("=")
    assert k in opt, k
    opt[k] = int(v) if v.lstrip("-").isdigit() else v.replace("_", " ")
O = []
def e(s): O.append(s)
NST = [0]
def stamp(rt=False, k=0):
    if not opt["stamps"]: return
    if not rt and NST[0] > 1 and k != opt["sts"] and k != -1: return
    i = NST[0]; NST[0] += 1
    e(f"s_memrealtime s[{72+2*i}:{73+2*i}]" if rt or opt["rt"] or opt["rtm"] else f"s_memtime s[{72+2*i}:{73+2*i}]")

class Q:
    def __init__(s, name, mx): s.name = name; s.mx = mx; s.q = []
    def issue(s, tag): s.q.append(tag)
    def wait(s, tag):
        if tag not in s.q: return
        i = len(s.q) - 1 - s.q[::-1].index(tag)
        n = min(len(s.q) - 1 - i, s.mx)
        e(f"s_waitcnt {s.name}({n})")
        s.q = s.q[len(s.q)-n:] if n else []
    def drain(s):
        e(f"s_waitcnt {s.name}(0)"); s.q = []
VM = Q("vmcnt", 63); LG = Q("lgkmcnt", 15)

FL = 0x600000; EP = 0x608000; RFL = 0x610000; W2F = 0x620000; HREC = 0x800000
if opt['spec']: FL = 0x800000; HREC = 0x820000
FS = opt["fs"]
if FS > 128: FL = 0x800000; HREC = FL + 256 * FS
FLB = 0x200000
if opt["ab"]: HREC = 0x808000
RED = 98304; RB = 98304 if opt['ns'] == 3 else 131072; CNT = 159744
NSL = opt['ns']
sX, sW1, sW2, sOUT, sH = 16, 20, 24, 28, 32
(sW, sMT, sFT, sKX, sKW, sXB, sWB, sXE, sM0, sT0, sT1, sE, sTAG, sHS, sHS2, sFLG, sPOL, sW2B, sOWN, sROT,
 sRS, sRD, sWO, sL2E) = range(36, 60)
sSIG = 60
sPK = 4; sOB = 3; sRFL = 14; sSPIN = 15
vL16 = 1; vL16b = 2; vOUT = 3; vOUT2 = 4; vRW = 5; vRP = 6; vHS = 7
vPOLL = 8; vL4 = 9; vPA = 19
vRR = 10
vHB = 13
vT = 17
vCN = 20; vONE = 21; vAV = 22; vAC = 23
vDX = 24; vDW = 26; vDR = 32
vA = 34; vB = 36
vRA = 44
vTM = 46
vACC1 = 64; vAF = 112; vBF = 160; vS = 176; vRF = 192
vH = 64; vACC2 = 24
def srd(r): return f"s[{r}:{r+3}]"
def vr(r, n): return f"v[{r}:{r+n-1}]"
def ar(r, n): return f"a[{r}:{r+n-1}]"
def capture(fn):
    global O
    sv = O; O = []; fn(); r = O; O = sv; return r

e("s_cmp_ge_u32 s2, 256")
e("s_cbranch_scc1 L_end")
stamp(True); stamp()
e("s_load_dwordx8 s[4:11], s[0:1], 0")
e("s_load_dwordx2 s[12:13], s[0:1], 40")
L, Wv = vTM, vTM+1
t0, t1, t2, t3 = vTM+2, vTM+3, vTM+4, vTM+5
e(f"v_and_b32 v{L}, 63, v0")
e(f"v_lshrrev_b32 v{Wv}, 6, v0")
e(f"v_lshlrev_b32 v{vL16}, 4, v{L}")
e(f"v_readfirstlane_b32 s{sW}, v{Wv}")
if opt["pf"]:
    e("s_getpc_b64 s[14:15]")
    e("L_pc:")
    e(f"s_lshr_b32 s{sT0}, s2, 3")
    e(f"s_and_b32 s{sT0}, s{sT0}, {opt['pfm']}")
    e(f"s_lshl_b32 s{sT0}, s{sT0}, 12")
    e(f"v_lshl_add_u32 v{t0}, v0, 4, s{sT0}")
    e(f"v_min_u32 v{t0}, L_end-L_pc-16, v{t0}")
    e(f"global_load_dwordx4 v[252:255], v{t0}, s[14:15]")
    VM.issue("pf")
fa = opt["map"]
e(f"s_and_b32 s{sT0}, s2, 7")
e(f"s_lshr_b32 s{sT1}, s2, 3")
e(f"s_and_b32 s{sFT}, s{sT1}, {(1<<fa)-1}")
e(f"s_lshr_b32 s{sMT}, s{sT1}, {fa}")
if opt["rot"] == 3:
    tb = str(opt["tab"]).lstrip("x")
    tv = sum(int(c) << (4*i) for i, c in enumerate((tb * 16)[:16]))
    e(f"s_mul_i32 s{sKX}, s{sMT}, {opt['ma']}")
    e(f"s_mul_i32 s{sT1}, s{sFT}, {opt['mb']}")
    e(f"s_add_u32 s{sKX}, s{sKX}, s{sT1}")
    e(f"s_lshl_b32 s{sKX}, s{sKX}, 2")
    e(f"s_mov_b32 s{sSIG}, {tv & 0xffffffff}")
    e(f"s_mov_b32 s{sSIG+1}, {tv >> 32}")
    e(f"s_lshr_b64 s[{sSIG}:{sSIG+1}], s[{sSIG}:{sSIG+1}], s{sKX}")
    e(f"s_and_b32 s{sKX}, s{sSIG}, 15")
elif opt["rot"]:
    e(f"s_lshr_b32 s{sKX}, s{sMT}, {opt['sa']}")
    e(f"s_mul_i32 s{sKX}, s{sKX}, {opt['ma']}")
    e(f"s_lshr_b32 s{sT1}, s{sFT}, {opt['sb']}")
    e(f"s_mul_i32 s{sT1}, s{sT1}, {opt['mb']}")
    e(f"s_add_u32 s{sKX}, s{sKX}, s{sT1}")
    if opt['mx']:
        e(f"s_mul_i32 s{sT1}, s{sT0}, {opt['mx']}")
        e(f"s_add_u32 s{sKX}, s{sKX}, s{sT1}")
    e(f"s_lshr_b32 s{sKX}, s{sKX}, 2")
    e(f"s_mul_i32 s{sT1}, s{sKX}, 205")
    e(f"s_lshr_b32 s{sT1}, s{sT1}, 11")
    e(f"s_mul_i32 s{sT1}, s{sT1}, 10")
    e(f"s_sub_u32 s{sKX}, s{sKX}, s{sT1}")
else:
    e(f"s_mov_b32 s{sKX}, 0")
if opt["ab"]:
    e(f"s_lshl_b32 s{sROT}, s{sMT}, 2")
elif opt["rot2"] == 3:
    e(f"s_and_b32 s{sROT}, s{sMT}, 1")
    e(f"s_mul_i32 s{sROT}, s{sROT}, 6")
elif opt["rot2"] == 4:
    e(f"s_lshr_b32 s{sROT}, s{sMT}, 1")
    e(f"s_mul_i32 s{sROT}, s{sROT}, 3")
elif opt["rot2"] == 5:
    e(f"s_and_b32 s{sROT}, s{sMT}, 3")
elif opt["rot2"] == 6:
    e(f"s_mul_i32 s{sROT}, s{sMT}, 3")
    e(f"s_lshr_b32 s{sROT}, s{sROT}, 3")
    e(f"s_lshl_b32 s{sROT}, s{sROT}, 2")
elif opt["rot2"] == 2:
    e(f"s_and_b32 s{sROT}, s{sMT}, 3")
    e(f"s_mul_i32 s{sROT}, s{sROT}, 3")
elif opt["rot2"]:
    e(f"s_mul_i32 s{sROT}, s{sMT}, 12")
    e(f"s_lshr_b32 s{sROT}, s{sROT}, {5-fa}")
else:
    e(f"s_mov_b32 s{sROT}, 0")
e(f"s_and_b32 s{sT1}, s{sT0}, {(8>>fa)-1}")
e(f"s_lshl_b32 s{sT1}, s{sT1}, {fa}")
e(f"s_add_u32 s{sFT}, s{sFT}, s{sT1}")
e(f"s_lshr_b32 s{sT1}, s{sT0}, {3-fa}")
e(f"s_lshl_b32 s{sT1}, s{sT1}, {5-fa}")
e(f"s_add_u32 s{sMT}, s{sMT}, s{sT1}")
e(f"s_mul_i32 s{sXB}, s{sMT}, 81920")
e(f"s_mul_i32 s{sWB}, s{sFT}, 384")
e(f"s_add_u32 s{sXE}, s{sXB}, 1280")
e(f"s_mul_i32 s{sKW}, s{sKX}, {64*3072}")
e(f"s_add_u32 s{sKW}, s{sKW}, s{sWB}")
e(f"s_lshl_b32 s{sKX}, s{sKX}, 7")
e(f"s_add_u32 s{sKX}, s{sKX}, s{sXB}")
G = vTM+6
e(f"v_lshrrev_b32 v{G}, 4, v{L}")
e(f"v_lshrrev_b32 v{t0}, 3, v{L}")
e(f"v_lshl_add_u32 v{t0}, v{Wv}, 4, v{t0}")
e(f"v_mul_u32_u24 v{t0}, 1280, v{t0}")
e(f"v_and_b32 v{t1}, 7, v{L}")
e(f"v_xor_b32 v{t1}, v{t1}, v{G}")
e(f"v_lshl_add_u32 v{vDX}, v{t1}, 4, v{t0}")
e(f"v_xor_b32 v{t1}, 4, v{t1}")
e(f"v_lshl_add_u32 v{vDX+1}, v{t1}, 4, v{t0}")
e(f"v_add_u32 v{vDX+1}, {8*1280-1024}, v{vDX+1}")
if opt["xlin"]:
    e(f"v_lshl_add_u32 v{vDX}, v{Wv}, 11, v{vL16}")
    e(f"v_mov_b32 v{vDX+1}, v{vDX}")
    e(f"s_and_b32 s{sT0}, s{sFT}, 3")
    e(f"s_mul_i32 s{sT0}, s{sT0}, {opt['xlin']}")
    e(f"s_lshr_b32 s{sT0}, s{sT0}, 2")
    e(f"s_lshl_b32 s100, s{sT0}, 13")
    e(f"s_add_u32 s100, s100, s{sXB}")
    e(f"s_add_u32 s101, s{sXB}, 81920")
e(f"v_mul_u32_u24 v{t3}, {16*3072}, v{Wv}")
for i in range(3):
    if i: e(f"v_add_u32 v{t0}, {64*i}, v{L}")
    src = t0 if i else L
    e(f"v_mul_u32_u24 v{t1}, 2731, v{src}")
    e(f"v_lshrrev_b32 v{t1}, 16, v{t1}")
    e(f"v_mul_u32_u24 v{t2}, 24, v{t1}")
    e(f"v_sub_u32 v{t0}, v{src}, v{t2}")
    e(f"v_and_b32 v{t2}, 2, v{t1}")
    e(f"v_lshlrev_b32 v{t2}, 1, v{t2}")
    e(f"v_xor_b32 v{t0}, v{t0}, v{t2}")
    e(f"v_mul_u32_u24 v{t1}, 3072, v{t1}")
    e(f"v_lshl_add_u32 v{t0}, v{t0}, 4, v{t1}")
    e(f"v_add_u32 v{t0}, v{t0}, v{t3}")
    if i: e(f"v_subrev_u32 v{vDW+i}, {i*1024}, v{t0}")
    else: e(f"v_mov_b32 v{vDW}, v{t0}")
    e(f"v_add_u32 v{vDW+3+i}, {8*3072 - ((i+3)%4)*1024}, v{t0}")
vTC = 250
if opt["tch"]:
    e(f"v_lshrrev_b32 v{t0}, 1, v{L}")
    e(f"v_mul_u32_u24 v{t1}, 1280, v{t0}")
    e(f"v_mul_u32_u24 v{t2}, 43, v{t0}")
    e(f"v_lshrrev_b32 v{t2}, 7, v{t2}")
    e(f"v_mul_u32_u24 v{t2}, {3072-384}, v{t2}")
    e(f"v_lshl_add_u32 v{t2}, v{t0}, 7, v{t2}")
    e(f"s_and_b32 s{sT0}, s{sFT}, 3")
    e(f"s_lshl_b32 s{sT0}, s{sT0}, 1")
    e(f"s_lshr_b32 s{sT1}, s{sW}, 1")
    e(f"s_add_u32 s{sT0}, s{sT0}, s{sT1}")
    e(f"s_mul_i32 s{sT0}, s{sT0}, {8*1280}")
    e(f"s_and_b32 s{sWO}, s{sMT}, 7")
    e(f"s_lshl_b32 s{sWO}, s{sWO}, 1")
    e(f"s_add_u32 s{sWO}, s{sWO}, s{sT1}")
    e(f"s_mul_i32 s{sWO}, s{sWO}, {4*3072}")
    e(f"s_add_u32 s{sT1}, s{sWB}, {640*3072}")
    e(f"s_bitcmp1_b32 s{sW}, 0")
    e(f"s_cselect_b64 vcc, -1, 0")
    e(f"v_cndmask_b32 v{vTC}, v{t1}, v{t2}, vcc")
    e(f"s_cselect_b32 s{sT0}, s{sWO}, s{sT0}")
    e(f"s_mov_b32 s{sWO}, {0xffff if opt['th'] else 0x5555}")
    e(f"s_cselect_b32 s{sWO}, {0xffffff if opt['th'] else 0x555555}, s{sWO}")
    e(f"s_cselect_b32 s{sHS}, s{sKW}, s{sKX}")
    e(f"s_movk_i32 s{sHS2}, 128")
    e(f"s_cselect_b32 s{sHS2}, {64*3072}, s{sHS2}")
    e(f"v_and_b32 v{t0}, 1, v{L}")
    e(f"v_lshl_add_u32 v{vTC}, v{t0}, 6, v{vTC}")
    e(f"v_add_u32 v{vTC}, s{sT0}, v{vTC}")
    e(f"s_cselect_b32 vcc_lo, s{sT1}, s{sXE}")
    e(f"s_cselect_b32 vcc_hi, s{sWB}, s{sXB}")
e(f"s_lshl_b32 s{sM0}, s{sW}, 13")
CLR = opt["clr"] >= 0 or opt["clrs"]
sCL = sHS
vNAN = 244
if CLR:
    e(f"s_lshl_b32 s{sT0}, s{sMT}, 2")
    e(f"s_lshr_b32 s{sT1}, s{sFT}, 1")
    e(f"s_add_u32 s{sT0}, s{sT0}, s{sT1}")
    e(f"s_lshl_b32 s{sT0}, s{sT0}, 2")
    e(f"s_add_u32 s{sT0}, s{sT0}, s{sW}")
    e(f"s_lshl_b32 s{sT0}, s{sT0}, 1")
    e(f"s_and_b32 s{sT1}, s{sFT}, 1")
    e(f"s_add_u32 s{sT0}, s{sT0}, s{sT1}")
    e(f"s_mul_i32 s{sT0}, s{sT0}, 6144")
    e(f"v_add_u32 v248, s{sT0}, v{vL16}")
    e(f"v_add_u32 v249, 3072, v248")
    for r in range(4): e(f"v_mov_b32 v{vNAN+r}, -1")
def clr_ops():
    def mk(i):
        def f():
            e(f"buffer_store_dwordx4 {vr(vNAN,4)}, v{248 + i//3}, {srd(sH)}, 0 offen offset:{(i%3)*1024} sc1"); VM.issue("clr")
        return f
    return [mk(i) for i in range(6)]
CLO = clr_ops()
e(f"s_mov_b32 s{sSPIN}, {EP}")
for r, n in ((sX, 2621440), (sW1, 1966080), (sW2, 1966080), (sOUT, 2621440), (sH, HREC)):
    e(f"s_mov_b32 s{r+2}, {n}"); e(f"s_mov_b32 s{r+3}, 0x20000")
e("s_waitcnt lgkmcnt(0)")
if opt["wso"]:
    e(f"s_add_u32 s12, s12, {opt['wso'] << 20}"); e("s_addc_u32 s13, s13, 0")
for r, p in ((sW2, 8), (sX, 4), (sW1, 6), (sOUT, 10), (sH, 12)):
    e(f"s_mov_b64 s[{r}:{r+1}], s[{p}:{p+1}]")
if opt["tch"]:
    e(f"s_bitcmp1_b32 s{sW}, 0")
    e(f"s_cselect_b64 s[8:9], s[6:7], s[4:5]")
    e(f"s_cselect_b32 s10, s{sW1+2}, s{sX+2}")
    e("s_mov_b32 s11, 0x20000")
    e(f"s_mov_b32 s6, s{sHS}")
    e(f"s_mov_b32 s7, s{sHS2}")
def touch():
    e("s_add_u32 s6, s6, s7")
    e("s_cmp_eq_u32 s6, vcc_lo")
    e("s_cselect_b32 s6, vcc_hi, s6")
    e(f"s_mov_b32 exec_lo, s{sWO}")
    e("s_mov_b32 exec_hi, 0")
    e(f"buffer_load_dword v251, v{vTC}, s[8:11], s6 offen"); VM.issue("tch")
    e("s_mov_b64 exec, -1")
stamp()
e(f"s_load_dword s{sE}, s[12:13], s{sSPIN}")

def adv_k():
    if opt["xlin"]:
        e(f"s_add_u32 s100, s100, 8192")
        e(f"s_cmp_eq_u32 s100, s101")
        e(f"s_cselect_b32 s100, s{sXB}, s100")
    e(f"s_add_u32 s{sKX}, s{sKX}, 128")
    e(f"s_add_u32 s{sKW}, s{sKW}, {64*3072}")
    e(f"s_cmp_eq_u32 s{sKX}, s{sXE}")
    e(f"s_cselect_b32 s{sKX}, s{sXB}, s{sKX}")
    e(f"s_cselect_b32 s{sKW}, s{sWB}, s{sKW}")
def dma_ops(st):
    base = (st % NSL) * 32768
    def mk(i):
        def f():
            if i == 0: e(f"s_add_u32 m0, s{sM0}, {base+6144}"); e("s_nop 0")
            if i < 2:
                e(f"buffer_load_dwordx4 v{vDX+i}, {srd(sX)}, s{100 if opt['xlin'] else sKX} offen offset:{i*1024} {opt['xaux'] if st < opt['ntst'] else ''} lds")
            else:
                j = i - 2
                e(f"buffer_load_dwordx4 v{vDW+j}, {srd(sW1)}, s{sKW} offen offset:{(j%4)*1024} {opt['w1aux'] if st < opt['ntst'] else ''} lds")
            VM.issue(f"st{st}")
            if i == 1: e(f"s_add_u32 m0, s{sM0}, {base}"); e("s_nop 0")
            if i == 5: e(f"s_add_u32 m0, s{sM0}, {base+4096}"); e("s_nop 0")
            if i == 7 and st < 9: adv_k()
        return f
    return [mk(i) for i in range(8)]

def setup2():
    R, C = t0, t1
    u0, u1, u2 = vTM+7, vTM+8, vTM+9
    e(f"s_and_b32 s{sT0}, s2, 63")
    e(f"s_mul_i32 s{sT1}, s{sT0}, 205")
    e(f"s_lshr_b32 s{sT1}, s{sT1}, 10")
    e(f"s_mul_i32 s{sRS}, s{sT1}, 5")
    e(f"s_sub_u32 s{sRS}, s{sT0}, s{sRS}")
    e(f"s_lshr_b32 s{sRD}, s2, 6")
    e(f"s_mul_i32 s{sRFL}, s{sRD}, 5")
    e(f"s_add_u32 s{sRFL}, s{sRFL}, s{sRS}")
    e(f"s_lshl_b32 s{sRFL}, s{sRFL}, 4")
    e(f"s_add_u32 s{sRFL}, s{sRFL}, s{sT1}")
    e(f"s_lshl_b32 s{sRFL}, s{sRFL}, 7")
    e(f"s_mul_i32 s{sRD}, s{sRD}, 12")
    e(f"s_add_u32 s{sT1}, s{sT1}, s{sRD}")
    e(f"s_mul_i32 s{sT1}, s{sT1}, 40960")
    e(f"s_lshl_b32 s{sRD}, s{sRS}, 13")
    e(f"s_add_u32 s{sRD}, s{sRD}, s{sT1}")
    e(f"s_lshl_b32 s{sRS}, s{sRS}, 8")
    e(f"s_add_u32 s{sRS}, s{sRS}, s{sT1}")
    e(f"s_lshl_b32 s{sT1}, s{sW}, 11")
    e(f"s_add_u32 s{sRD}, s{sRD}, s{sT1}")
    e(f"s_add_u32 s{sRD}, s{sRD}, {W2F}")
    e(f"s_cmp_lt_u32 s{sT0}, {0 if opt['nor'] else 60}")
    e(f"s_cselect_b32 s{sRS}, s{sRS}, 1966080")
    e(f"s_cselect_b32 s{sRD}, s{sRD}, {HREC}")
    if opt["pt"] & 1:
        e(f"s_min_u32 s{sT1}, s{sRS}, {1966080-4}")
        e(f"s_load_dword s6, s[8:9], s{sT1}")
    if opt["pt"] & 2:
        e(f"s_mul_i32 s{sT1}, s{sMT}, {64*3072}")
        e(f"s_load_dword s6, s[12:13], s{sT1}")
    if opt["pt"] & 4:
        e(f"s_load_dword s6, s[10:11], s{sXB}")
    if opt["pt"] & 8:
        e(f"s_load_dword s6, s[12:13], s{sRD}")
    e(f"v_lshl_add_u32 v{t0}, v{Wv}, 3, v{G}")
    e(f"v_mul_u32_u24 v{t0}, 1280, v{t0}")
    e(f"v_and_b32 v{t1}, 15, v{L}")
    e(f"v_lshlrev_b32 v{t2}, 1, v{G}")
    e(f"v_xor_b32 v{t1}, v{t1}, v{t2}")
    e(f"v_lshl_add_u32 v{vDR}, v{t1}, 4, v{t0}")
    e(f"v_xor_b32 v{t1}, 8, v{t1}")
    e(f"v_lshl_add_u32 v{vDR+1}, v{t1}, 4, v{t0}")
    e(f"v_add_u32 v{vDR+1}, {4*1280-1024}, v{vDR+1}")
    e(f"v_bfe_u32 v{R}, v{L}, 2, 2")
    e(f"v_and_b32 v{C}, 3, v{L}")
    e(f"v_lshrrev_b32 v{u0}, 1, v{G}")
    e(f"v_lshl_add_u32 v{u0}, v{u0}, 3, v{R}")
    e(f"v_mul_u32_u24 v{u0}, 384, v{u0}")
    e(f"v_lshrrev_b32 v{u1}, 1, v{R}")
    e(f"v_xor_b32 v{u1}, v{u1}, v{Wv}")
    e(f"v_and_b32 v{u1}, 1, v{u1}")
    e(f"v_lshl_add_u32 v{u0}, v{u1}, 6, v{u0}")
    e(f"v_and_b32 v{u1}, 1, v{G}")
    e(f"v_lshl_add_u32 v{u0}, v{u1}, 5, v{u0}")
    e(f"v_lshl_add_u32 v{vA}, v{C}, 3, v{u0}")
    e(f"v_add_u32 v{vA+1}, 65536, v{vA}")
    e(f"v_and_b32 v{u0}, 2, v{Wv}")
    e(f"v_add_u32 v{u0}, v{u0}, v{u1}")
    e(f"v_lshlrev_b32 v{u0}, 13, v{u0}")
    e(f"v_and_b32 v{u2}, 15, v{L}")
    e(f"v_lshl_add_u32 v{u0}, v{u2}, 7, v{u0}")
    e(f"v_add_u32 v{u0}, 6144, v{u0}")
    e(f"v_lshrrev_b32 v{u1}, 1, v{u2}")
    e(f"v_lshrrev_b32 v{t2}, 5, v{L}")
    e(f"v_xor_b32 v{u1}, v{u1}, v{t2}")
    e(f"v_lshl_add_u32 v{vB}, v{u1}, 4, v{u0}")
    for k in range(1, 4): e(f"v_xor_b32 v{vB+k}, {32*k}, v{vB}")
    for k in range(4): e(f"v_add_u32 v{vB+4+k}, 65536, v{vB+k}")
    e(f"v_and_b32 v{u1}, 1, v{G}")
    e(f"v_lshl_add_u32 v{u1}, v{u1}, 2, v{R}")
    e(f"v_lshlrev_b32 v{u0}, 12, v{t2}")
    e(f"v_lshl_add_u32 v{u0}, v{u1}, 8, v{u0}")
    e(f"v_lshlrev_b32 v{t3}, 1, v{Wv}")
    e(f"v_xor_b32 v{u1}, v{u1}, v{t3}")
    e(f"v_lshl_add_u32 v{u0}, v{u1}, 5, v{u0}")
    e(f"v_and_b32 v{u1}, 1, v{C}")
    e(f"v_lshl_add_u32 v{u0}, v{u1}, 4, v{u0}")
    e(f"v_lshrrev_b32 v{u1}, 1, v{C}")
    e(f"v_lshl_add_u32 v{u0}, v{u1}, 3, v{u0}")
    e(f"v_add_u32 v{vRA}, {RB}, v{u0}")
    e(f"v_xor_b32 v{vRA+1}, 32, v{vRA}")
    e(f"v_mov_b32 v{vCN}, {CNT}")
    e(f"v_mov_b32 v{vONE}, 0")
    e(f"ds_write_b32 v{vCN}, v{vONE}"); LG.issue("cnt")
    if opt["ab"]: e(f"ds_write_b32 v{vCN}, v{vONE} offset:4"); LG.issue("cnt")
    for i in range(48): e(f"v_mov_b32 v{vACC1+i}, 0")
    e(f"v_mov_b32 v{vONE}, 1")
    e(f"v_and_b32 v{u1}, 1, v{G}")
    e(f"v_mul_u32_u24 v{u0}, 12288, v{u1}")
    e(f"v_lshl_add_u32 v{u0}, v{t2}, 8, v{u0}")
    e(f"v_lshl_add_u32 v{vHS}, v{u2}, 4, v{u0}")
    e(f"v_mul_u32_u24 v{u0}, 1280, v{u2}")
    e(f"v_lshl_add_u32 v{vOUT}, v{G}, 4, v{u0}")
    e(f"v_lshl_add_u32 v{u0}, v{u1}, 4, v{u0}")
    e(f"v_lshl_add_u32 v{vOUT2}, v{t2}, 3, v{u0}")
    e(f"v_add_u32 v{vL16b}, 4096, v{vL16}")
    e(f"s_mul_i32 s{sT0}, s{sFT}, 5")
    e(f"v_lshl_add_u32 v{u0}, v{u1}, 2, s{sT0}")
    e(f"v_lshrrev_b32 v{u0}, 3, v{u0}")
    e(f"v_mad_u32_u24 v{u0}, v{Wv}, 5, v{u0}")
    e(f"v_min_u32 v{vRP}, 11, v{u2}")
    e(f"v_lshlrev_b32 v{vRP}, 7, v{vRP}")
    e(f"v_lshl_add_u32 v{vRP}, v{u0}, 11, v{vRP}")
    e(f"v_lshlrev_b32 v{vL4}, 2, v{L}")
    e(f"v_mul_u32_u24 v{vPA}, {FS}, v{u1}")
    e(f"v_mul_u32_u24 v{u0}, 205, v{L}")
    e(f"v_lshrrev_b32 v{u0}, 10, v{u0}")
    e(f"v_sub_u32 v{vAC}, v{Wv}, v{u0}")
    e(f"v_mad_i32_i24 v{vAC}, v{vAC}, 5, v{L}")
    e(f"v_lshlrev_b32 v{vAC}, 11, v{vAC}")
    e(f"v_lshl_add_u32 v{vAC}, v{u0}, 7, v{vAC}")
    e(f"s_mul_i32 s{sT0}, s{sW}, 15360")
    e(f"s_add_u32 s{sT0}, s{sT0}, {RED}")
    e(f"v_add_u32 v{vRW}, s{sT0}, v{vL16}")
    for p in range(3):
        e(f"s_sub_u32 s{sT0}, s{sW}, {1+p}")
        e(f"s_and_b32 s{sT0}, s{sT0}, 3")
        e(f"s_mul_i32 s{sT0}, s{sT0}, 15360")
        e(f"s_add_u32 s{sT0}, s{sT0}, {RED + p*5120}")
        e(f"v_add_u32 v{vRR+p}, s{sT0}, v{vL16}")
    e(f"s_mul_i32 s{sW2B}, s{sW}, {12*40960}")
    e(f"s_mul_i32 s{sT0}, s{sFT}, 5120")
    e(f"s_add_u32 s{sW2B}, s{sW2B}, s{sT0}")
    e(f"s_add_u32 s{sW2B}, s{sW2B}, {W2F}")
    if opt["ab"]:
        e(f"s_mov_b32 s{sSIG+6}, 0x98763210"); e(f"s_mov_b32 s{sSIG+7}, 0x98763210")
        e(f"s_lshr_b64 s[{sSIG+6}:{sSIG+7}], s[{sSIG+6}:{sSIG+7}], s{sROT}")
        e(f"s_mov_b32 s{sSIG+7}, s{sSIG+6}")
        e(f"s_and_b32 s{sROT}, s{sROT}, 12")
        e(f"s_lshr_b32 s{sSIG+11}, 0xba54ba54, s{sROT}")
        for n in range(12):
            src = sSIG+7 if n < 8 else sSIG+11
            e(f"s_bfe_u32 s{sSIG+n}, s{src}, {0x40000 + 4*(n%8)}")
            e(f"s_lshl_b32 s{sSIG+n}, s{sSIG+n}, 10")
    for n in range(12 if not opt["ab"] else 0):
        e(f"s_lshl_b32 s{sSIG+n}, s{sROT}, 10")
        if n < 11:
            e(f"s_add_u32 s{sROT}, s{sROT}, 1")
            e(f"s_cmp_ge_u32 s{sROT}, 12")
            e(f"s_cselect_b32 s{sROT}, 0, s{sROT}")
    if opt["own2"] == 2:
        e(f"s_mov_b32 s{sOWN}, s{sW}")
    elif opt["own2"] == 3:
        e(f"s_and_b32 s{sOWN}, s{sFT}, 1")
        e(f"s_add_u32 s{sOWN}, s{sW}, s{sOWN}")
    elif opt["own2"]:
        e(f"s_lshl_b32 s{sOWN}, s{sFT}, 1")
        e(f"s_add_u32 s{sOWN}, s{sW}, s{sOWN}")
    else: e(f"s_add_u32 s{sOWN}, s{sW}, s{sFT}")
    e(f"s_and_b32 s{sOWN}, s{sOWN}, 3")
    e(f"s_lshl_b32 s{sT1}, s{sMT}, 2")
    e(f"s_add_u32 s{sT1}, s{sT1}, s{sW}")
    e(f"s_mul_i32 s{sPOL}, s{sT1}, {2*FS}")
    e(f"s_add_u32 s{sPOL}, s{sPOL}, {FL}")
    e(f"s_lshl_b32 s{sT1}, s{sT1}, 2")
    for p in range(4):
        e(f"s_add_u32 s{sT0}, s{sOWN}, {1+p}")
        e(f"s_and_b32 s{sT0}, s{sT0}, 3")
        e(f"s_add_u32 s{sT0}, s{sT0}, s{sT1}")
        e(f"s_mul_i32 s{sT0}, s{sT0}, 12288")
        e(f"v_add_u32 v{vHB+p}, s{sT0}, v{vL16}")
    e(f"s_lshl_b32 s{sOB}, s{sMT}, 2")
    e(f"s_add_u32 s{sOB}, s{sOB}, s{sOWN}")
    e(f"s_mul_i32 s{sOB}, s{sOB}, {16*1280}")
    e(f"s_mul_i32 s{sT0}, s{sFT}, 160")
    e(f"s_add_u32 s{sOB}, s{sOB}, s{sT0}")
    if opt["ost"]:
        e(f"s_cmp_ge_u32 s{sW}, {opt['ost']}")
        e(f"s_cselect_b32 s{sOB}, s{sOB}, 2621440")
    e(f"s_lshl_b32 s{sT0}, s{sMT}, 2")
    e(f"s_lshr_b32 s{sT1}, s{sFT}, 1")
    e(f"s_add_u32 s{sT0}, s{sT0}, s{sT1}")
    e(f"s_mul_i32 s{sFLG}, s{sT0}, {2*FS}")
    e(f"s_lshl_b32 s{sT0}, s{sT0}, 2")
    e(f"s_and_b32 s{sT1}, s{sW}, 2")
    e(f"s_add_u32 s{sT0}, s{sT0}, s{sT1}")
    e(f"s_mul_i32 s{sHS}, s{sT0}, 12288")
    e(f"s_and_b32 s{sT0}, s{sFT}, 1")
    e(f"s_mul_i32 s{sT1}, s{sT0}, {FS}")
    e(f"s_add_u32 s{sFLG}, s{sFLG}, s{sT1}")
    e(f"s_add_u32 s{sFLG}, s{sFLG}, {FL}")
    e(f"s_mul_i32 s{sT0}, s{sT0}, 6")
    e(f"s_and_b32 s{sT1}, s{sW}, 1")
    e(f"s_add_u32 s{sT0}, s{sT0}, s{sT1}")
    e(f"s_lshl_b32 s{sT0}, s{sT0}, 10")
    e(f"s_add_u32 s{sHS}, s{sHS}, s{sT0}")
    e(f"s_add_u32 s{sHS2}, s{sHS}, 4096")
    e(f"s_add_u32 s{sRFL}, s{sRFL}, {RFL}")
    e(f"s_cmp_eq_u32 s{sW}, 0")
    e(f"s_cselect_b32 s{sRFL}, s{sRFL}, {HREC}")
    e(f"s_mov_b32 s{sL2E}, 0xbfb8aa3b")
    if opt["pk"]:
        e(f"s_mov_b32 s{sPK}, 0xbfb8aa3b"); e(f"s_mov_b32 s{sPK+1}, 0xbfb8aa3b")
def r_loads():
    e(f"s_lshr_b32 m0, s{sM0}, 2")
    e(f"s_add_u32 m0, m0, {RB}")
    e("s_nop 0")
    for i in range(2):
        e(f"buffer_load_dwordx4 v{vDR+i}, {srd(sW2)}, s{sRS} offen offset:{i*1024} {opt['raux']} lds"); VM.issue("rld")
def r_reads():
    for ee in range(2):
        for t in range(2):
            e(f"ds_read_b64_tr_b16 {vr(vRF + 4*ee + 2*t, 2)}, v{vRA+ee} offset:{t*2048}"); LG.issue("rrd")
def r_stores():
    LG.wait("rrd")
    for ee in range(2):
        e(f"buffer_store_dwordx4 {vr(vRF+4*ee,4)}, v{vL16}, {srd(sH)}, s{sRD} offen offset:{ee*1024} {opt['rsaux']}"); VM.issue("rst")
S2 = capture(setup2)
groups = []
for l in S2:
    if l.startswith("s_cselect") or (groups and groups[-1][-1].startswith("s_cmp")): groups[-1].append(l)
    else: groups.append([l])
ST0 = []
def pre_order(spec):
    kx, kw = (sKX, 6, 8), (sKW, 7, 9)
    def nxt(i):
        a, b = (i + 1) % 3, i
        e(f"s_add_u32 s{kx[a]}, s{kx[b]}, 128")
        e(f"s_add_u32 s{kw[a]}, s{kw[b]}, {64*3072}")
        e(f"s_cmp_eq_u32 s{kx[a]}, s{sXE}")
        e(f"s_cselect_b32 s{kx[a]}, s{sXB}, s{kx[a]}")
        e(f"s_cselect_b32 s{kw[a]}, s{sWB}, s{kw[a]}")
    ops = []
    for ch in spec:
        if ch in "abc":
            st = "abc".index(ch)
            for i in range(2):
                def f(st=st, i=i):
                    if i == 0: e(f"s_add_u32 m0, s{sM0}, {st*32768+6144}"); e("s_nop 0")
                    e(f"buffer_load_dwordx4 v{vDX+i}, {srd(sX)}, s{kx[st]} offen offset:{i*1024} {opt['xaux']} lds"); VM.issue(f"st{st}")
                    if st == 0 and i == 1: nxt(0); nxt(1)
                ops.append(f)
        elif ch in "ABC":
            st = "ABC".index(ch)
            for j in range(6):
                def f(st=st, j=j):
                    if j % 4 == 0: e(f"s_add_u32 m0, s{sM0}, {st*32768+j*1024}"); e("s_nop 0")
                    e(f"buffer_load_dwordx4 v{vDW+j}, {srd(sW1)}, s{kw[st]} offen offset:{(j%4)*1024} {opt['w1aux']} lds"); VM.issue(f"st{st}")
                ops.append(f)
        elif ch == "R": ops.append(r_loads)
        elif ch == ".": ops.append(None)
        elif ch == "P":
            def f():
                e(f"s_bfe_u32 s10, s{sMT}, 0x10002")
                e(f"s_mul_i32 s10, s10, 320")
                e(f"s_and_b32 s11, s{sMT}, 3")
                e(f"s_lshl_b32 s11, s11, 4")
                e(f"s_add_u32 s10, s10, s11")
                e(f"s_mul_i32 s11, s{sW}, 12")
                e(f"s_sub_u32 s10, s10, s11")
                e(f"s_add_u32 s10, s10, 256")
                e(f"s_mul_i32 s10, s10, 3072")
                e(f"s_add_u32 s10, s10, s{sWB}")
                e(f"buffer_load_dwordx4 v[244:247], v{vDW}, {srd(sW1)}, s10 offen"); VM.issue("pp")
                e("s_mov_b32 exec_hi, 0")
                e(f"buffer_load_dwordx4 v[248:251], v{vDW+1}, {srd(sW1)}, s10 offen offset:1024"); VM.issue("pp")
                e("s_mov_b32 exec_hi, -1")
            ops.append(f)
    assert spec[0] == "a" and all(c in spec for c in "abcABC")
    last = ops[-1]
    def fin(): last(); nxt(2)
    ops[-1] = fin
    return ops
if opt["po"]:
    first = pre_order(opt["po"]); opt["pre3"] = 1
    if None in first:
        k = first.index(None); first, ST0 = first[:k], first[k+1:]
    if "R" in opt["po"]: opt["rls"] = -1
else:
    first = dma_ops(0) + dma_ops(1) + (dma_ops(2) if opt["pre3"] else [])
    if opt["rls"] < 0: first.append(r_loads)
    if opt["tch"]: first[opt["tp0"]:opt["tp0"]] = [touch] * (opt["la"] - 1)
if opt["clr"] >= 0: first[opt["clr"]:opt["clr"]] = CLO
NF0 = opt["nf0"]
for f in first[:NF0]: f()
if opt["fst"]:
    e(f"s_waitcnt vmcnt({NF0-1})"); stamp(k=5)
    e(f"s_waitcnt vmcnt({NF0-3})"); stamp(k=5)
rest = first[NF0:]
per = (len(groups) + len(rest) - 1) // len(rest)
head = len(groups) * opt["head"] // 100
for g in groups[:head]: O.extend(g)
groups = groups[head:]
per = (len(groups) + len(rest) - 1) // len(rest)
for f in rest:
    f()
    for g in groups[:per]: O.extend(g)
    groups = groups[per:]
assert not groups
stamp()

def w2_ops():
    ops = []
    for n in range(12):
        for j in range(5):
            def f(n=n, j=j):
                if j == 0:
                    e(f"s_mul_i32 s{sWO}, s{sSIG+n}, 40")
                    e(f"s_add_u32 s{sWO}, s{sWO}, s{sW2B}")
                va = vL16 if j < 4 else vL16b
                e(f"buffer_load_dwordx4 {ar(n*20+4*j, 4)}, v{va}, {srd(sH)}, s{sWO} offen offset:{(j%4)*1024} {opt['w2aux'].replace('-','')}")
                VM.issue(f"w{n}")
            ops.append(f)
    return ops
W2L = w2_ops()
def take(n):
    r = W2L[:n]; del W2L[:n]; return r

def rd_ops(st, half):
    slot = st % NSL
    sb = (slot % 2) * 32768
    hi = slot // 2
    ops = []
    if opt["nord"]: return ops
    for kk in range(2):
        ks = 2*half + kk
        def b(ks=ks, kk=kk):
            e(f"ds_read_b128 {vr(vBF + (half*2+kk)*4, 4)}, v{vB + 4*hi + ks} offset:{sb}"); LG.issue(f"B{ks}")
        ops.append(b)
        for q in range(3):
            for t in range(2):
                def a(ks=ks, kk=kk, q=q, t=t):
                    e(f"ds_read_b64_tr_b16 {vr(vAF + half*24 + (kk*3+q)*4 + 2*t, 2)}, v{vA+hi} offset:{sb + ks*8192 + t*1536 + q*128}")
                    LG.issue(f"A{ks}{q}")
                ops.append(a)
    return ops
def i16(kk, q): return kk == 1
def mfma1(half, kk, q):
    ks = 2*half + kk
    LG.wait(f"A{ks}{q}")
    if opt["nomf1"]: return
    if opt["m16"]:
        for z in range(2):
            c = vr(vACC1+16*q+8*kk+4*z, 4)
            e(f"v_mfma_f32_16x16x32_bf16 {c}, {vr(vAF + half*24 + (kk*3+q)*4, 4)}, {vr(vBF + (half*2+(kk^z if i16(kk, q) else kk))*4, 4)}, {c}")
        return
    e(f"v_mfma_f32_32x32x16_bf16 {vr(vACC1+16*q,16)}, {vr(vAF + half*24 + (kk*3+q)*4, 4)}, {vr(vBF + (half*2+kk)*4, 4)}, {vr(vACC1+16*q,16)}")
def half_body(mf_half, rds, fill):
    rds = list(rds); fill = list(fill)
    for i in range(6):
        if mf_half is not None: mfma1(mf_half, i // 3, i % 3)
        left = 6 - i
        for _ in range((len(rds) + left - 1) // left if i else min(len(rds), 4)):
            if rds: rds.pop(0)()
        for _ in range((len(fill) + left - 1) // left):
            if fill: fill.pop(0)()
    assert not rds and not fill

def flag_store(off):
    fk = opt["fk"]
    if fk in (1, 3, 4):
        for r in range(4): e(f"v_mov_b32 v{vTM+12+r}, s{sTAG}")
        e(f"s_mov_b64 exec, {dict([(1,255),(3,1),(4,15)])[fk]}")
        e(f"buffer_store_dwordx4 {vr(vTM+12,4)}, v{vL16}, {srd(sH)}, s{off} offen sc1"); VM.issue("flag")
        e("s_mov_b64 exec, -1")
        return
    e(f"v_mov_b32 v{vT}, s{sTAG}")
    e("s_mov_b32 exec_hi, 0" if fk == 0 else "s_mov_b64 exec, 1")
    e(f"buffer_store_dword v{vT}, v{vL4}, {srd(sH)}, s{off} offen sc1"); VM.issue("flag")
    e("s_mov_b64 exec, -1")
def r_poll():
    e(f"s_mov_b32 s{sT0}, {HREC if opt['norp'] else RFL}")
    e(f"buffer_load_dword v{vPOLL}, v{vRP}, {srd(sH)}, s{sT0} offen sc1"); VM.issue("rpoll")

def spin_check(lab, vv, va, tag, so=None, fake=False):
    VM.wait(tag)
    e(f"s_mov_b32 s{sSPIN}, 20000")
    e(f"L_{lab}:")
    e(f"v_cmp_ne_u32 vcc, s{sTAG}, v{vv}")
    e("s_cmp_eq_u64 vcc, 0" if not fake else "s_cmp_eq_u32 s2, s2")
    e(f"s_cbranch_scc1 L_{lab}_go")
    e(f"s_sub_u32 s{sSPIN}, s{sSPIN}, 1")
    e(f"s_cmp_eq_u32 s{sSPIN}, 0")
    e(f"s_cbranch_scc1 L_{lab}_go")
    if so is None: e(f"s_mov_b32 s{sT0}, {RFL}")
    e(f"buffer_load_dword v{vv}, v{va}, {srd(sH)}, s{sT0 if so is None else so} offen sc1")
    e("s_waitcnt vmcnt(0)")
    e(f"s_branch L_{lab}")
    e(f"L_{lab}_go:")
def r_check(): spin_check("rp", vPOLL, vRP, "rpoll", None, opt["norp"])

EMU = [int(c) for c in str(opt["emu"]).lstrip("x")]
def emu_ops(bi):
    q, g2 = bi // 2, bi % 2
    a0 = 216; tt = vS + (bi % 2) * 8; pk = vRF + 8 + bi * 4
    ops = []
    if opt["emv"] and not opt["epk"]:
        for r in range(8): ops.append(f"v_mul_f32 v{tt+r}, s{sL2E}, v{a0+r}")
        for r in range(8): ops.append(f"v_exp_f32 v{tt+r}, v{tt+r}")
        for r in range(8): ops.append(f"v_add_f32 v{tt+r}, 1.0, v{tt+r}")
        for r in range(8): ops.append(f"v_rcp_f32 v{tt+r}, v{tt+r}")
        for r in range(8): ops.append(f"v_mul_f32 v{tt+r}, v{a0+r}, v{tt+r}")
        for r in range(4): ops.append(f"v_cvt_pk_bf16_f32 v{pk+r}, v{tt+2*r}, v{tt+2*r+1}")
    elif opt["emv"]:
        for r in range(0, 8, 2): ops.append(f"v_pk_mul_f32 {vr(tt+r,2)}, {vr(a0+r,2)}, s[{sPK}:{sPK+1}]")
        for r in range(8): ops.append(f"v_exp_f32 v{tt+r}, v{tt+r}")
        for r in range(0, 8, 2): ops.append(f"v_pk_add_f32 {vr(tt+r,2)}, {vr(tt+r,2)}, 1.0 op_sel_hi:[1,0]")
        for r in range(8): ops.append(f"v_rcp_f32 v{tt+r}, v{tt+r}")
        for r in range(0, 8, 2): ops.append(f"v_pk_mul_f32 {vr(tt+r,2)}, {vr(a0+r,2)}, {vr(tt+r,2)}")
        for r in range(4): ops.append(f"v_cvt_pk_bf16_f32 v{pk+r}, v{tt+2*r}, v{tt+2*r+1}")
    fs = [(lambda l=l: e(l)) for l in ops]
    def st_():
        e(f"buffer_store_dwordx4 {vr(pk,4)}, v{vHS}, {srd(sH)}, s{sHS} offen offset:{g2*512 + (q%2)*2048} sc1"); VM.issue("hstA" if opt["ab"] else "hst")
    return fs + [st_]
def merge(a, b):
    r = []; a = list(a); b = list(b); na, nb_ = len(a), len(b)
    while a or b:
        if a and (not b or len(a) * nb_ >= len(b) * na): r.append(a.pop(0))
        else: r.append(b.pop(0))
    return r
if EMU:
    for r in range(8): e(f"v_cvt_f32_u32 v{216+r}, v{vL16}"); e(f"v_mul_f32 v{216+r}, 0x3a000000, v{216+r}")
for st in range(10):
    VM.wait(f"st{st}")
    if st == opt["rjs"]: VM.wait("rld")
    if st == opt["rfs"]: VM.wait("rst"); VM.wait("clr")
    if st == opt["afs"] and st: VM.wait("hstA")
    LG.drain()
    e("s_barrier")
    if st == opt["afs"] and st:
        e(f"s_cmp_eq_u32 s{sW}, 0")
        e(f"s_cselect_b32 s{sT1}, s{sFLG}, {HREC}")
        flag_store(sT1); stamp(k=7)
    if st == 9: stamp()
    stamp(k=1)
    if st >= 8: stamp(k=4)
    if st == opt["rfs"]:
        e(f"s_mul_i32 s{sTAG}, s{sE}, 0x9E3779B1")
        e(f"s_add_u32 s{sTAG}, s{sTAG}, 0x7F4A7C15")
        flag_store(sRFL)
    if (st == opt["rcs"] and opt["rck"] == 0) or (st == 9 and opt["rck"] == 2): r_check()
    if NSL == 4:
        if st == 0: fill = ([] if opt["pre3"] else dma_ops(2)) + dma_ops(3)
        elif st < 7: fill = dma_ops(st + 3)
        else: fill = take(opt[f"n{st}"])
    elif st == 0 and opt["pre3"]: fill = list(ST0)
    elif st < 8: fill = dma_ops(st + 2)
    else: fill = take(opt["n8"] if st == 8 else opt["n9"])
    if opt["tch"] and st + opt["la"] < 10: fill.insert(opt["tpos"], touch)
    if st == opt["rls"]: fill = [r_loads] + fill if opt["rpos"] == 0 else fill + [r_loads]
    if st == opt["rjs"]:
        fill.insert(min(opt["rsp"], len(fill)), r_stores)
        fill = [r_reads] + fill
    if st == opt["rps"]: fill.insert(opt["rpp"], r_poll)
    ex = [CLO[i] for i, c in enumerate(str(opt["clrs"]).lstrip("x")) if int(c) == st]
    for bi, es in enumerate(EMU):
        if es == st: ex += emu_ops(bi)
    if ex: fill = merge(fill, ex)
    h = (len(fill) + 1) // 2
    f0, f1 = fill[:h], fill[h:]
    if st == 8 and opt["rck"] == 1:
        k = 1 if opt["rps"] == 8 else 0
        f0, f1 = fill[:k], [r_check] + fill[k:]
    half_body(1 if st else None, rd_ops(st, 0), f0)
    half_body(0, rd_ops(st, 1), f1)
stamp()
PEND = []
def silu_block(q, g2):
    a0 = vACC1 + 16*q + 8*g2
    bi = 2*q + g2
    tt = vS + (bi % 2) * 8
    pk = vRF + bi * 4
    ops = []
    if opt["pk"]:
        for r in range(0, 8, 2): ops.append(f"v_pk_mul_f32 {vr(tt+r,2)}, {vr(a0+r,2)}, s[{sPK}:{sPK+1}]")
        for r in range(8): ops.append(f"v_exp_f32 v{tt+r}, v{tt+r}")
        for r in range(0, 8, 2): ops.append(f"v_pk_add_f32 {vr(tt+r,2)}, {vr(tt+r,2)}, 1.0 op_sel_hi:[1,0]")
        for r in range(8): ops.append(f"v_rcp_f32 v{tt+r}, v{tt+r}")
        for r in range(0, 8, 2): ops.append(f"v_pk_mul_f32 {vr(tt+r,2)}, {vr(a0+r,2)}, {vr(tt+r,2)}")
    else:
        for r in range(8): ops.append(f"v_mul_f32 v{tt+r}, s{sL2E}, v{a0+r}")
        for r in range(8): ops.append(f"v_exp_f32 v{tt+r}, v{tt+r}")
        for r in range(8): ops.append(f"v_add_f32 v{tt+r}, 1.0, v{tt+r}")
        for r in range(8): ops.append(f"v_rcp_f32 v{tt+r}, v{tt+r}")
        for r in range(8): ops.append(f"v_mul_f32 v{tt+r}, v{a0+r}, v{tt+r}")
    for r in range(4): ops.append(f"v_cvt_pk_bf16_f32 v{pk+r}, v{tt+2*r}, v{tt+2*r+1}")
    nbs = str(opt["nb"]).lstrip("x")
    fill = take(int(nbs[bi] if len(nbs) > 1 else nbs))
    step = len(ops) // (len(fill) + 1) if fill else 0
    for i, l in enumerate(ops):
        if not opt["novalu"]: e(l)
        if fill and step and (i + 1) % step == 0: fill.pop(0)()
    for f in fill: f()
    so = sHS if q < 2 else sHS2
    def st_():
        if opt["nost"]: return
        e(f"buffer_store_dwordx4 {vr(pk,4)}, v{vHS}, {srd(sH)}, s{so} offen offset:{g2*512 + (q%2)*2048} {opt['hsaux'].replace('-','')}"); VM.issue("hstA" if opt["ab"] and q < 2 else "hst")
        if opt["hs2"]:
            e(f"buffer_store_dwordx4 {vr(pk,4)}, v{vHS}, {srd(sH)}, s{so} offen offset:{g2*512 + (q%2)*2048} {opt['hs2'].replace('-','')}"); VM.issue("hst")
    PEND.append(st_)
    if bi >= opt["sl"]:
        while PEND: PEND.pop(0)()
for q in range(3):
    for kk in range(2): mfma1(1, kk, q)
e("s_nop 7")
stamp(k=4)
if opt["sts"] == 4: VM.drain(); stamp(k=4)
def cnt_add(tag, off):
    VM.wait(tag)
    e("s_mov_b64 exec, 1")
    e(f"ds_add_rtn_u32 v{vT+1}, v{vCN}, v{vONE} offset:{off}")
    e("s_mov_b64 exec, -1")
def cnt_flag(add):
    e("s_waitcnt lgkmcnt(0)"); LG.q = []
    e(f"v_readfirstlane_b32 s{sT0}, v{vT+1}")
    e(f"s_add_u32 s{sT1}, s{sFLG}, {add}")
    e(f"s_cmp_eq_u32 s{sT0}, 3")
    e(f"s_cselect_b32 s{sT1}, s{sT1}, {HREC}")
    flag_store(sT1)
for q in range(3):
    for g2 in range(2):
        bi = 2*q + g2
        if opt["ab"] and not opt["afs"] and bi == 4 + opt["afp"]: cnt_add("hstA", 0); stamp(k=7)
        if bi >= len(EMU): silu_block(q, g2)
        if opt["ab"] and not opt["afs"] and bi == 4 + opt["afp"]: cnt_flag(0); stamp(k=7)
stamp(); stamp(k=4)
if not opt["spec"]:
    for i, f in enumerate(take(opt["post"])):
        if i == opt["pae"]:
            e(f"buffer_load_dword v{vPOLL}, v{vPA}, {srd(sH)}, s{sPOL} offen sc1"); VM.issue("poll")
        f()
    if opt["wb"]:
        VM.wait("hst")
        e("buffer_wbl2 sc1"); VM.issue("hst")
    VM.wait("hst")
    stamp(k=4)
    if opt["sts"] == 4: VM.drain(); stamp(k=4)
    if opt["fb"]:
        e(f"s_cmp_eq_u32 s{sW}, 0")
        e(f"s_cselect_b32 s{sFLG}, s{sFLG}, {HREC}")
        e("s_barrier")
    else:
        e("s_mov_b64 exec, 1")
        e(f"ds_add_rtn_u32 v{vT+1}, v{vCN}, v{vONE} offset:{4 if opt['ab'] else 0}")
        e("s_mov_b64 exec, -1")
        if opt["ab"]: e(f"s_add_u32 s{sFLG}, s{sFLG}, {FLB}")
        for f in take(opt["mid"]): f()
        e("s_waitcnt lgkmcnt(0)")
        e(f"v_readfirstlane_b32 s{sT0}, v{vT+1}")
        e(f"s_cmp_eq_u32 s{sT0}, {3 if opt['nopoll'] < 2 else 9}")
        e(f"s_cselect_b32 s{sFLG}, s{sFLG}, {HREC}")
    if opt["nopoll"] == 3: e(f"s_mov_b32 s{sPOL}, {HREC}")
    flag_store(sFLG)
    if opt["fb"] == 2: e("s_barrier")
    stamp(); stamp(k=3)
else:
    for f in take(opt["fw"]): f()
    VM.wait("hst")
    e(f"s_lshl_b32 s{sT0}, s{sW}, 15")
    e(f"s_add_u32 s{sFLG}, s{sFLG}, s{sT0}")
    flag_store(sFLG)
    stamp()
HL = [(p, n) for p in range(4) for n in range(12)]
def hload():
    if HL:
        p, n = HL.pop(0)
        if opt["noh"] and (p*12+n) % opt["noh"]: return
        e(f"buffer_load_dwordx4 {vr(vH + (p*12+n)*4, 4)}, v{vHB+p}, {srd(sH)}, s{sSIG+n} offen {opt['haux'].replace('-','')}"); VM.issue(f"h{p}_{n}")
def mark(v):
    if not opt["stamps"] or opt["sts"]: return
    i = NST[0]; NST[0] += 1
    e(f"s_add_u32 s{72+2*i}, s74, {v}"); e(f"s_addc_u32 s{73+2*i}, s75, 0")
def allc_load():
    e("s_cmp_eq_u32 s2, 0")
    e(f"s_cselect_b32 s{sT0}, {RFL}, s{sH+2}")
    e(f"buffer_load_dword v{vAV}, v{vAC}, {srd(sH)}, s{sT0} offen sc1"); VM.issue("allc")
def p0_block(ML, pre):
    ML = list(ML)
    for f in ML[:pre]: f()
    del ML[:pre]
    stamp()
    for n in range(12):
        assert (0, n) not in HL and not any(getattr(f, "__defaults__", None) and f.__defaults__[0] == n for f in ML), n
        late = max((f"h0_{n}", f"w{n}"), key=lambda t: len(VM.q) - 1 - VM.q[::-1].index(t) if t in VM.q else -1)
        VM.wait(late)
        if n == 0 or n == 6: stamp(k=2)
        cnt = (len(ML) + 11 - n) // (12 - n)
        pos = {1: [opt["hj"]], 2: [1, 3], 3: [0, 2, 4], 4: [0, 1, 2, 3], 5: [0, 1, 2, 3, 4], 0: []}[cnt]
        for j in range(5):
            c = "0" if n == 0 else vr(vACC2+4*j, 4)
            e(f"v_mfma_f32_16x16x32_bf16 {vr(vACC2+4*j,4)}, {ar(n*20+4*j,4)}, {vr(vH+n*4,4)}, {c}")
            if j in pos: ML.pop(0)()
    assert not ML and not W2L
def late_path():
    if opt['skipw']: del W2L[-opt['skipw']:]
    if opt["sts"] == 6:
        stamp(k=6)
        i = 0
        while len(W2L) > opt["pollq"]:
            take(1)[0](); i += 1
            if i % 4 == 0 and i >= opt["dw"]:
                e(f"s_waitcnt vmcnt({opt['dw']})"); stamp(k=6)
    for f in take(max(0, len(W2L) - opt["pollq"])): f()
    stamp(k=3)
    if opt["sts"] == 3: VM.drain(); stamp(k=3)
    if opt["sts"] == 4: stamp(k=4); VM.drain(); stamp(k=4)
    if opt["sp"]:
        e(f"s_load_dword s6, s[12:13], s{sPOL} {opt['spg']}")
        e(f"s_add_u32 s{sT0}, s{sPOL}, 128")
        e(f"s_load_dword s7, s[12:13], s{sT0} {opt['spg']}")
        for f in take(len(W2L)): f()
        stamp(k=3)
        e("s_waitcnt lgkmcnt(0)")
        stamp(k=3)
        stamp()
        e(f"s_cmp_eq_u32 s6, s{sTAG}")
        e(f"s_cselect_b32 s6, s7, s6")
        e(f"s_cmp_eq_u32 s6, s{sTAG}")
        e("s_cbranch_scc1 L_hp_go")
        e(f"v_mov_b32 v{vPOLL}, s6")
        spin_check("hp", vPOLL, vPA, "poll", sPOL, opt["nopoll"])
    else:
        e(f"buffer_load_dword v{vPOLL}, v{vPA}, {srd(sH)}, s{sPOL} offen sc1"); VM.issue("poll")
        for f in take(len(W2L)): f()
        stamp(k=3)
        VM.wait("poll")
        stamp(k=3)
        stamp()
        spin_check("hp", vPOLL, vPA, "poll", sPOL, opt["nopoll"])
    stamp(); stamp(k=2); stamp(k=3)
    mark(1000)
    allc_load()
    p0_block([hload] * (opt["hpre"] + 12), opt["hpre"])
LATE = []
if opt["eq"]:
    import re
    for f in take(len(W2L) - opt["eq"]): f()
    e(f"buffer_load_dword v{vPOLL}, v{vPA}, {srd(sH)}, s{sPOL} offen sc1"); VM.issue("poll")
    for f in take(opt["ec"]): f()
    VM.wait("poll")
    e(f"v_cmp_ne_u32 vcc, s{sTAG}, v{vPOLL}")
    e("s_cmp_eq_u64 vcc, 0" if not opt["nopoll"] else "s_cmp_eq_u32 s2, s2")
    e("s_cbranch_scc0 L_late")
    sv = (list(VM.q), list(W2L), list(HL), NST[0])
    LATE = ["L_late:"] + capture(late_path) + ["s_branch L_p1"]
    endq, endn = list(VM.q), NST[0]
    VM.q, W2L[:], HL[:], NST[0] = sv
    stamp(); stamp(); stamp(k=2); mark(0)
    allc_load()
    m = re.match(r"h(\d+)w(\d+)", opt["eil"])
    ML = []; nh = 12; ws = take(len(W2L))
    while nh or ws:
        k = min(nh, int(m.group(1))); ML += [hload] * k; nh -= k
        k = int(m.group(2)); ML += ws[:k]; del ws[:k]
    ML += [hload] * opt["hpre"]
    p0_block(ML, opt["epre"])
    assert NST[0] == endn, (NST[0], endn)
    k = min(len(VM.q), len(endq))
    assert VM.q[-k:] == endq[-k:] and all(t.startswith("h1") for t in VM.q + endq), (VM.q, endq)
    if len(endq) > len(VM.q): VM.q = endq
    e("L_p1:")
elif opt["spec"]:
    allc_load()
    for f in take(len(W2L) - opt["wl"]): f()
    stamp(); stamp(); stamp(k=2); mark(1000)
    ws = take(len(W2L))
    p0_block([hload] * opt["hpre"] + merge(ws, [hload] * 12) if ws else [hload] * (opt["hpre"] + 12), opt["hpre"])
elif not opt["ab"] and not opt["dfw"]:
    late_path()
def allc_check():
    e("s_cmp_lg_u32 s2, 0")
    e("s_cbranch_scc1 L_ac_go")
    assert "allc" not in VM.q
    spin_check("ac", vAV, vAC, "allc")
def phase2_new():
    B1, B2, MA = opt["b1"], opt["b2"], opt["madd"]
    for p in range(1, 4):
        ac = vACC2 + (p % 2) * 20
        pa = vACC2 + ((p-1) % 2) * 20
        slots = {(n, j): [] for n in range(12) for j in range(5)}
        if p > 0:
            for jj, pos in enumerate([(1, 0), (1, 2), (1, 4), (2, 1), (2, 3)]):
                def w(jj=jj):
                    e(f"ds_write_b128 v{vRW}, {vr(pa+4*jj,4)} offset:{(p-1)*5120 + jj*1024}"); LG.issue("red")
                slots[pos].append(w)
        def rd(pp, j, dst):
            def f():
                e(f"ds_read_b128 {vr(dst, 4)}, v{vRR+pp} offset:{j*1024}"); LG.issue(f"rr{pp}{j}")
            return f
        if p == 2:
            k = 0
            for j in range(5):
                for pp in range(2):
                    slots[(B1 + k // 5, k % 5)].append(rd(pp, j, vH + pp*20 + 4*j)); k += 1
            assert B1 + 3 <= 8
            for i in range(20):
                def a(i=i):
                    LG.wait(f"rr1{i//4}")
                    e(f"v_add_f32 v{pa+i}, v{vH+i}, v{vH+20+i}")
                slots[(8 + i // 5, i % 5)].append(a)
        if p == 3:
            for j in range(5): slots[(B2, j)].append(rd(2, j, vH + 4*j))
        for n in range(12):
            if (p == 2 and n == B1) or (p == 3 and n == B2):
                if p == 3: allc_check(); stamp(k=2)
                LG.drain(); e("s_barrier")
                if p == 3: stamp(k=2)
            VM.wait(f"h{p}_{n}")
            if n == 0 or (n == 6 and p < 3): stamp(k=2)
            def madd(j):
                LG.wait(f"rr2{j}")
                for r in range(4): e(f"v_add_f32 v{ac+4*j+r}, v{ac+4*j+r}, v{vH+4*j+r}")
            mid = p == 3 and n == MA
            if mid: e("s_nop 3"); madd(0)
            for j in range(5):
                c = "0" if n == 0 and p < 3 else vr(ac+4*j, 4)
                if mid:
                    if j < 4: madd(j+1)
                    else: e("s_nop 0")
                e(f"v_mfma_f32_16x16x32_bf16 {vr(ac+4*j,4)}, {ar(n*20+4*j,4)}, {vr(vH+(p*12+n)*4,4)}, {c}")
                if j == opt["hj"]: hload()
                for f in slots[(n, j)]: f()
    stamp(); stamp(k=2)
    ac = vACC2 + 20
    pk = vH + 64
    def cvt(j):
        for r in range(2): e(f"v_cvt_pk_bf16_f32 v{pk+2*j+r}, v{ac+4*j+2*r}, v{ac+4*j+2*r+1}")
    def swp(b):
        e(f"v_permlane32_swap_b32 v{pk+4*b}, v{pk+4*b+2}")
        e(f"v_permlane32_swap_b32 v{pk+4*b+1}, v{pk+4*b+3}")
        e(f"buffer_store_dwordx4 {vr(pk+4*b,4)}, v{vOUT}, {srd(sOUT)}, s{sOB} offen offset:{64*b} {opt['outaux']}")
    e("s_nop 3")
    cvt(0); cvt(1); cvt(2); swp(0); cvt(3); cvt(4); swp(1)
    e(f"buffer_store_dwordx2 {vr(pk+8,2)}, v{vOUT2}, {srd(sOUT)}, s{sOB} offen offset:128 {opt['outaux']}")
def phase2_old():
    for p in range(4):
        ac = vACC2 + (p % 2) * 20
        for n in range(12):
            VM.wait(f"h{p}_{n}")
            if n == 0 or (n == 6 and p < 3): stamp(k=2)
            if n == 0: stamp(k=3)
            for j in range(5):
                c = "0" if n == 0 else vr(ac+4*j, 4)
                if j >= opt["nomf2"]: e(f"v_mfma_f32_16x16x32_bf16 {vr(ac+4*j,4)}, {ar(n*20+4*j,4)}, {vr(vH+(p*12+n)*4,4)}, {c}")
                if j == opt["hj"]: hload()
                if p > 0 and n >= 2 and n < 7 and j == 3:
                    pa = vACC2 + ((p-1) % 2) * 20; jj = n - 2
                    e(f"ds_write_b128 v{vRW}, {vr(pa+4*jj,4)} offset:{(p-1)*5120 + jj*1024}"); LG.issue("red")
            if p == 3 and n == 7:
                e("s_cmp_lg_u32 s2, 0")
                e("s_cbranch_scc1 L_ac_go")
                assert "allc" not in VM.q
                spin_check("ac", vAV, vAC, "allc")
                stamp(k=2)
                LG.drain(); e("s_barrier")
                stamp(k=2)
                for pp in range(3):
                    for j in range(5):
                        e(f"ds_read_b128 {vr(vH + (pp*5+j)*4, 4)}, v{vRR+pp} offset:{j*1024}"); LG.issue("rr")
            if p == 3 and n == 9:
                LG.drain()
                for i in range(20): e(f"v_add_f32 v{vH+i}, v{vH+i}, v{vH+20+i}")
            if p == 3 and n == 10:
                for i in range(20): e(f"v_add_f32 v{vH+i}, v{vH+i}, v{vH+40+i}")
    stamp(); stamp(k=2)
    ac = vACC2 + 20
    e("s_nop 3")
    for j in range(5):
        for r in range(4): e(f"v_add_f32 v{vH+4*j+r}, v{vH+4*j+r}, v{ac+4*j+r}")
    pk = vH + 64
    for j in range(5):
        for r in range(2): e(f"v_cvt_pk_bf16_f32 v{pk+2*j+r}, v{vH+4*j+2*r}, v{vH+4*j+2*r+1}")
    e("s_nop 1")
    for b in range(2):
        e(f"v_permlane32_swap_b32 v{pk+4*b}, v{pk+4*b+2}")
        e(f"v_permlane32_swap_b32 v{pk+4*b+1}, v{pk+4*b+3}")
    for b in range(2):
        e(f"buffer_store_dwordx4 {vr(pk+4*b,4)}, v{vOUT}, {srd(sOUT)}, s{sOB} offen offset:{64*b} {opt['outaux']}")
    e(f"buffer_store_dwordx2 {vr(pk+8,2)}, v{vOUT2}, {srd(sOUT)}, s{sOB} offen offset:128 {opt['outaux']}")
def phase2_ab():
    OA = opt["owna"]
    NE = opt["ne"]; NL = 12 - NE
    items = [(p, n) for p in range(3) for n in range(NE)] + [(3, n) for n in range(OA)]
    NA = len(items)
    items += [(p, n) for p in range(3) for n in range(NE, 12)] + [(3, n) for n in range(OA, 12)]
    NS = 36; vH2 = 112
    acc = lambda p, j: 24 + 20*p + 4*j
    hp = opt["hpre"]
    HI = list(range(48))
    def hl():
        if not HI: return
        i = HI.pop(0); p, n = items[i]
        if i == NA and not opt["dfw"]:
            spin_check("hpb", vPOLL, vPA, "pollB", sPOL, opt["nopoll"]); stamp(k=7)
        e(f"buffer_load_dwordx4 {vr(vH2 + (i % NS)*4, 4)}, v{vHB+p}, {srd(sH)}, s{sSIG+n} offen {opt['haux'].replace('-','')}"); VM.issue(f"h{i}")
    if opt["pae"] < 0:
        for f in take(max(0, len(W2L) - opt["pa"])): f()
        e(f"buffer_load_dword v{vPOLL}, v{vPA}, {srd(sH)}, s{sPOL} offen sc1"); VM.issue("poll")
        for f in take(opt["ec"]): f()
    VM.wait("poll")
    stamp(); stamp(k=7)
    spin_check("hp", vPOLL, vPA, "poll", sPOL, opt["nopoll"])
    stamp(); stamp(k=2); stamp(k=7)
    e(f"s_add_u32 s{sPOL}, s{sPOL}, {FLB}")
    allc_load()
    for _ in range(hp): hl()
    for f in take(opt["wsk"]): f()
    stamp()
    slots = {(i, j): [] for i in range(48) for j in range(5)}
    L3 = NA + 3*NL
    for p in range(3):
        i0 = NA + NL*(p+1)
        for jj, (di, j) in enumerate([(1, 0), (1, 2), (1, 4), (2, 1), (2, 3)]):
            def w(jj=jj, p=p):
                e(f"ds_write_b128 v{vRW}, {vr(acc(p,jj),4)} offset:{p*5120 + jj*1024}"); LG.issue("red")
            slots[(i0 + di, j)].append(w)
    IB = L3 + opt["rb"]
    k = 0
    rest = 48 - IB
    assert rest >= 1
    rds = []
    for j in range(5):
        for pp in range(3):
            def f(pp=pp, j=j):
                e(f"ds_read_b128 {vr(acc(pp,j), 4)}, v{vRR+pp} offset:{j*1024}"); LG.issue(f"rr{j}")
            rds.append(f)
    per = 1 if rest >= 7 else 3
    for k, f in enumerate(rds): slots[(IB + k // per // 5, k // per % 5)].append(f)
    adds = []
    for j in range(5):
        for pp in (1, 2):
            for r in (0, 2):
                def a(j=j, pp=pp, r=r):
                    LG.wait(f"rr{j}")
                    if opt["epk"]: e(f"v_pk_add_f32 {vr(acc(0,j)+r,2)}, {vr(acc(0,j)+r,2)}, {vr(acc(pp,j)+r,2)}")
                    else:
                        for z in range(2): e(f"v_add_f32 v{acc(0,j)+r+z}, v{acc(0,j)+r+z}, v{acc(pp,j)+r+z}")
                adds.append(a)
    MA = 47 if rest >= 7 else None
    if MA:
        a0 = (MA - 3) * 5 - 5
        for k, f in enumerate(adds): slots[((a0 + k) // 5, (a0 + k) % 5)].append(f)
    seen = set()
    for i, (p, n) in enumerate(items):
        if i == IB:
            allc_check(); stamp(k=2)
            LG.drain(); e("s_barrier")
            stamp(k=2)
        assert i not in HI and not any(f.__defaults__[0] == n for f in W2L), (i, n)
        late = max((f"h{i}", f"w{n}"), key=lambda t: len(VM.q) - 1 - VM.q[::-1].index(t) if t in VM.q else -1)
        VM.wait(late)
        if i % 8 == 0: stamp(k=2)
        def madd(j):
            if opt["epk"]:
                for r in (0, 2): e(f"v_pk_add_f32 {vr(acc(3,j)+r,2)}, {vr(acc(3,j)+r,2)}, {vr(acc(0,j)+r,2)}")
            else:
                for r in range(4): e(f"v_add_f32 v{acc(3,j)+r}, v{acc(3,j)+r}, v{acc(0,j)+r}")
        mid = i == MA
        if mid: e("s_nop 3"); madd(0)
        for j in range(5):
            c = vr(acc(p,j), 4) if p in seen else "0"
            if mid:
                if j < 4: madd(j+1)
                else: e("s_nop 1")
            e(f"v_mfma_f32_16x16x32_bf16 {vr(acc(p,j),4)}, {ar(n*20+4*j,4)}, {vr(vH2+(i % NS)*4,4)}, {c}")
            if j == opt["hj"]: hl()
            if j == 3 and i % opt["wr"] == 0:
                for f in take(1): f()
            if j == 4 and i == opt["pb"] and not opt["dfw"]:
                e(f"buffer_load_dword v{vPOLL}, v{vPA}, {srd(sH)}, s{sPOL} offen sc1"); VM.issue("pollB")
            for f in slots[(i, j)]: f()
        seen.add(p)
    stamp(); stamp(k=2); stamp(k=7)
    ac = acc(3, 0)
    pk = vH2 + 64
    if not MA:
        for f in adds: f()
        for j in range(5): madd(j)
    def cvt(j):
        for r in range(2): e(f"v_cvt_pk_bf16_f32 v{pk+2*j+r}, v{ac+4*j+2*r}, v{ac+4*j+2*r+1}")
    def swp(b):
        e(f"v_permlane32_swap_b32 v{pk+4*b}, v{pk+4*b+2}")
        e(f"v_permlane32_swap_b32 v{pk+4*b+1}, v{pk+4*b+3}")
        e(f"buffer_store_dwordx4 {vr(pk+4*b,4)}, v{vOUT}, {srd(sOUT)}, s{sOB} offen offset:{64*b} {opt['outaux']}")
    e("s_nop 3")
    cvt(0); cvt(1); cvt(2); swp(0); cvt(3); cvt(4); swp(1)
    e(f"buffer_store_dwordx2 {vr(pk+8,2)}, v{vOUT2}, {srd(sOUT)}, s{sOB} offen offset:128 {opt['outaux']}")
assert opt["tail"]
if opt["ab"] or opt["dfw"]: phase2_ab()
else: phase2_new()
e(f"s_or_b32 s{sT0}, s{sW}, s2")
e(f"s_cmp_lg_u32 s{sT0}, 0")
e("s_cbranch_scc1 L_nobump")
e(f"s_add_u32 s{sE}, s{sE}, 1")
e(f"v_mov_b32 v{vT}, s{sE}")
e(f"s_mov_b32 s{sT0}, {EP}")
e("s_mov_b64 exec, 1")
e(f"buffer_store_dword v{vT}, off, {srd(sH)}, s{sT0}")
e("s_mov_b64 exec, -1")
e("L_nobump:")
if opt["stamps"]:
    e("s_waitcnt vmcnt(0)")
    stamp(k=-1); stamp(True)
    ns = NST[0]
    assert 72 + 2*ns <= 102
    e("s_waitcnt lgkmcnt(0)")
    if opt["rt"]:
        e(f"s_lshl_b32 s{sT0}, s2, 2")
        e(f"s_add_u32 s{sT0}, s{sT0}, s{sW}")
        e(f"s_mul_i32 s{sT0}, s{sT0}, {ns*8}")
    else:
        e(f"s_cmp_lg_u32 s{sW}, {opt['stamps']-1}")
        e("s_cbranch_scc1 L_end")
        e(f"s_mul_i32 s{sT0}, s2, {ns*8}")
    e("s_mov_b64 exec, 1")
    e(f"s_add_u32 s{sT0}, s{sT0}, {0x8000000 - (opt['wso'] << 20)}")
    e(f"v_mov_b32 v{vT}, s{sT0}")
    for i in range(ns):
        e(f"v_mov_b32 v24, s{72+2*i}"); e(f"v_mov_b32 v25, s{73+2*i}")
        e(f"global_store_dwordx2 v{vT}, v[24:25], s[12:13] offset:{i*8}"); e("s_nop 1")
    sys.stderr.write(f"nstamps {ns}\n")
if LATE:
    e("s_endpgm")
    O.extend(LATE)
e("L_end:")

hdr = f"""; FFN out = silu(x @ w1) @ w2, one launch, 256 workgroups (one per CU).
; @launch grid=(256,1,1) block=(256,1,1) lds=163840
.amdgcn_target "amdgcn-amd-amdhsa--gfx950"
.text
.globl {NAME}
.p2align 8
.type {NAME},@function
{NAME}:
"""
ftr = f"""s_endpgm
.section .rodata,"a"
.p2align 6
.amdhsa_kernel {NAME}
  .amdhsa_next_free_vgpr 512
  .amdhsa_next_free_sgpr 102
  .amdhsa_accum_offset 256
  .amdhsa_group_segment_fixed_size 0
  .amdhsa_kernarg_size 48
  .amdhsa_user_sgpr_count 2
  .amdhsa_user_sgpr_kernarg_segment_ptr 1
  .amdhsa_system_sgpr_workgroup_id_x 1
.end_amdhsa_kernel
"""
body = "\n".join(("" if l.endswith(":") else "    ") + l.rstrip() for l in O)
open(sys.argv[1], "w").write(hdr + body + "\n" + ftr)
```

```python
import sys
NAME = "standalone__dense_activation_silu__prompt_kernel"
opt = dict(w0p=0, own=0, omp=0, dfw=0, ne=8, clr=-1, clrs='', spec=0, fw=12, wl=0, rsp=99, rrp=0, fb=0, tch=0, la=4, tp0=0, tpos=8, th=1, ns=3, n7=0, rcs=8, epk=1, fk=0, ost=0, pae=-1, wsk=0, afs=0, ab=0, afp=0, pa=20, pb=6, wr=1, owna=0, rb=4, skipw=0, m16=0, rtm=0, po="", rsaux="sc1", emu="", emv=1, fs=128, dw=8, eq=0, ec=4, epre=16, eil="h12w9", pfm=3, stamps=0, rot=1, rot2=1, pf=1, outaux="", map=2, raux="nt", xaux="", haux="sc1", hsaux="sc1", hs2="", wb=0, wso=0, sp=0, spg="", nord=0, nomf1=0, norp=0, pk=1, tail=1, b1=4, b2=4, madd=8, pt=0, fst=0, tab="x037", nost=0, novalu=0, nomf2=0, noh=0, hj=1, w2aux="sc1", w1aux="",
           sa=0, ma=10, sb=0, mb=10, mx=0, n8=8, n9=8, nb=0, post=0, pollq=8, hpre=8, sep=0, sts=0, rpos=0, rls=0, rjs=2, rpp=0, rps=7, rck=0, nopoll=0, rfs=4, sl=0, head=50, nf0=4, pre3=0, rt=0, own2=2, ntst=10, mid=2, xlin=0, nor=0)
for a in sys.argv[2:]:
    k, v = a.split("=")
    assert k in opt, k
    opt[k] = int(v) if v.lstrip("-").isdigit() else v.replace("_", " ")
if opt["own"]: opt["dfw"] = 1; opt["ne"] = 12; assert opt["fb"] and opt["own2"] == 2
O = []
def e(s): O.append(s)
NST = [0]
def stamp(rt=False, k=0):
    if not opt["stamps"]: return
    if not rt and NST[0] > 1 and k != opt["sts"] and k != -1: return
    i = NST[0]; NST[0] += 1
    e(f"s_memrealtime s[{72+2*i}:{73+2*i}]" if rt or opt["rt"] or opt["rtm"] else f"s_memtime s[{72+2*i}:{73+2*i}]")

class Q:
    def __init__(s, name, mx): s.name = name; s.mx = mx; s.q = []
    def issue(s, tag): s.q.append(tag)
    def wait(s, tag):
        if tag not in s.q: return
        i = len(s.q) - 1 - s.q[::-1].index(tag)
        n = min(len(s.q) - 1 - i, s.mx)
        e(f"s_waitcnt {s.name}({n})")
        s.q = s.q[len(s.q)-n:] if n else []
    def drain(s):
        e(f"s_waitcnt {s.name}(0)"); s.q = []
VM = Q("vmcnt", 63); LG = Q("lgkmcnt", 15)

FL = 0x600000; EP = 0x608000; RFL = 0x610000; W2F = 0x620000; HREC = 0x800000
if opt['spec']: FL = 0x800000; HREC = 0x820000
FS = opt["fs"]
if FS > 128: FL = 0x800000; HREC = FL + 256 * FS
FLB = 0x200000
if opt["ab"]: HREC = 0x808000
RED = 98304; RB = 98304 if opt['ns'] == 3 else 131072; CNT = 159744
NSL = opt['ns']
sX, sW1, sW2, sOUT, sH = 16, 20, 24, 28, 32
(sW, sMT, sFT, sKX, sKW, sXB, sWB, sXE, sM0, sT0, sT1, sE, sTAG, sHS, sHS2, sFLG, sPOL, sW2B, sOWN, sROT,
 sRS, sRD, sWO, sL2E) = range(36, 60)
sSIG = 60
sPK = 4; sOB = 3; sRFL = 14; sSPIN = 15
vL16 = 1; vL16b = 2; vOUT = 3; vOUT2 = 4; vRW = 5; vRP = 6; vHS = 7
vPOLL = 8; vL4 = 9; vPA = 19
vRR = 10
vHB = 13
vT = 17
vCN = 20; vONE = 21; vAV = 22; vAC = 23
vDX = 24; vDW = 26; vDR = 32
vA = 34; vB = 36
vRA = 44
vTM = 46
vACC1 = 64; vAF = 112; vBF = 160; vS = 176; vRF = 192
vH = 64; vACC2 = 24; vOW = 240; OWN = 32768; sHS1 = 6
def srd(r): return f"s[{r}:{r+3}]"
def vr(r, n): return f"v[{r}:{r+n-1}]"
def ar(r, n): return f"a[{r}:{r+n-1}]"
def capture(fn):
    global O
    sv = O; O = []; fn(); r = O; O = sv; return r

e("s_cmp_ge_u32 s2, 256")
e("s_cbranch_scc1 L_end")
stamp(True); stamp()
e("s_load_dwordx8 s[4:11], s[0:1], 0")
e("s_load_dwordx2 s[12:13], s[0:1], 40")
L, Wv = vTM, vTM+1
t0, t1, t2, t3 = vTM+2, vTM+3, vTM+4, vTM+5
e(f"v_and_b32 v{L}, 63, v0")
e(f"v_lshrrev_b32 v{Wv}, 6, v0")
e(f"v_lshlrev_b32 v{vL16}, 4, v{L}")
e(f"v_readfirstlane_b32 s{sW}, v{Wv}")
if opt["pf"]:
    e("s_getpc_b64 s[14:15]")
    e("L_pc:")
    e(f"s_lshr_b32 s{sT0}, s2, 3")
    e(f"s_and_b32 s{sT0}, s{sT0}, {opt['pfm']}")
    e(f"s_lshl_b32 s{sT0}, s{sT0}, 12")
    e(f"v_lshl_add_u32 v{t0}, v0, 4, s{sT0}")
    e(f"v_min_u32 v{t0}, L_end-L_pc-16, v{t0}")
    e(f"global_load_dwordx4 v[252:255], v{t0}, s[14:15]")
    VM.issue("pf")
fa = opt["map"]
e(f"s_and_b32 s{sT0}, s2, 7")
e(f"s_lshr_b32 s{sT1}, s2, 3")
e(f"s_and_b32 s{sFT}, s{sT1}, {(1<<fa)-1}")
e(f"s_lshr_b32 s{sMT}, s{sT1}, {fa}")
if opt["rot"] == 3:
    tb = str(opt["tab"]).lstrip("x")
    tv = sum(int(c) << (4*i) for i, c in enumerate((tb * 16)[:16]))
    e(f"s_mul_i32 s{sKX}, s{sMT}, {opt['ma']}")
    e(f"s_mul_i32 s{sT1}, s{sFT}, {opt['mb']}")
    e(f"s_add_u32 s{sKX}, s{sKX}, s{sT1}")
    e(f"s_lshl_b32 s{sKX}, s{sKX}, 2")
    e(f"s_mov_b32 s{sSIG}, {tv & 0xffffffff}")
    e(f"s_mov_b32 s{sSIG+1}, {tv >> 32}")
    e(f"s_lshr_b64 s[{sSIG}:{sSIG+1}], s[{sSIG}:{sSIG+1}], s{sKX}")
    e(f"s_and_b32 s{sKX}, s{sSIG}, 15")
elif opt["rot"]:
    e(f"s_lshr_b32 s{sKX}, s{sMT}, {opt['sa']}")
    e(f"s_mul_i32 s{sKX}, s{sKX}, {opt['ma']}")
    e(f"s_lshr_b32 s{sT1}, s{sFT}, {opt['sb']}")
    e(f"s_mul_i32 s{sT1}, s{sT1}, {opt['mb']}")
    e(f"s_add_u32 s{sKX}, s{sKX}, s{sT1}")
    if opt['mx']:
        e(f"s_mul_i32 s{sT1}, s{sT0}, {opt['mx']}")
        e(f"s_add_u32 s{sKX}, s{sKX}, s{sT1}")
    e(f"s_lshr_b32 s{sKX}, s{sKX}, 2")
    e(f"s_mul_i32 s{sT1}, s{sKX}, 205")
    e(f"s_lshr_b32 s{sT1}, s{sT1}, 11")
    e(f"s_mul_i32 s{sT1}, s{sT1}, 10")
    e(f"s_sub_u32 s{sKX}, s{sKX}, s{sT1}")
else:
    e(f"s_mov_b32 s{sKX}, 0")
if opt["ab"]:
    e(f"s_lshl_b32 s{sROT}, s{sMT}, 2")
elif opt["rot2"] == 3:
    e(f"s_and_b32 s{sROT}, s{sMT}, 1")
    e(f"s_mul_i32 s{sROT}, s{sROT}, 6")
elif opt["rot2"] == 4:
    e(f"s_lshr_b32 s{sROT}, s{sMT}, 1")
    e(f"s_mul_i32 s{sROT}, s{sROT}, 3")
elif opt["rot2"] == 5:
    e(f"s_and_b32 s{sROT}, s{sMT}, 3")
elif opt["rot2"] == 6:
    e(f"s_mul_i32 s{sROT}, s{sMT}, 3")
    e(f"s_lshr_b32 s{sROT}, s{sROT}, 3")
    e(f"s_lshl_b32 s{sROT}, s{sROT}, 2")
elif opt["rot2"] == 2:
    e(f"s_and_b32 s{sROT}, s{sMT}, 3")
    e(f"s_mul_i32 s{sROT}, s{sROT}, 3")
elif opt["rot2"]:
    e(f"s_mul_i32 s{sROT}, s{sMT}, 12")
    e(f"s_lshr_b32 s{sROT}, s{sROT}, {5-fa}")
else:
    e(f"s_mov_b32 s{sROT}, 0")
e(f"s_and_b32 s{sT1}, s{sT0}, {(8>>fa)-1}")
e(f"s_lshl_b32 s{sT1}, s{sT1}, {fa}")
e(f"s_add_u32 s{sFT}, s{sFT}, s{sT1}")
e(f"s_lshr_b32 s{sT1}, s{sT0}, {3-fa}")
e(f"s_lshl_b32 s{sT1}, s{sT1}, {5-fa}")
e(f"s_add_u32 s{sMT}, s{sMT}, s{sT1}")
e(f"s_mul_i32 s{sXB}, s{sMT}, 81920")
e(f"s_mul_i32 s{sWB}, s{sFT}, 384")
e(f"s_add_u32 s{sXE}, s{sXB}, 1280")
e(f"s_mul_i32 s{sKW}, s{sKX}, {64*3072}")
e(f"s_add_u32 s{sKW}, s{sKW}, s{sWB}")
e(f"s_lshl_b32 s{sKX}, s{sKX}, 7")
e(f"s_add_u32 s{sKX}, s{sKX}, s{sXB}")
G = vTM+6
e(f"v_lshrrev_b32 v{G}, 4, v{L}")
e(f"v_lshrrev_b32 v{t0}, 3, v{L}")
e(f"v_lshl_add_u32 v{t0}, v{Wv}, 4, v{t0}")
e(f"v_mul_u32_u24 v{t0}, 1280, v{t0}")
e(f"v_and_b32 v{t1}, 7, v{L}")
e(f"v_xor_b32 v{t1}, v{t1}, v{G}")
e(f"v_lshl_add_u32 v{vDX}, v{t1}, 4, v{t0}")
e(f"v_xor_b32 v{t1}, 4, v{t1}")
e(f"v_lshl_add_u32 v{vDX+1}, v{t1}, 4, v{t0}")
e(f"v_add_u32 v{vDX+1}, {8*1280-1024}, v{vDX+1}")
if opt["xlin"]:
    e(f"v_lshl_add_u32 v{vDX}, v{Wv}, 11, v{vL16}")
    e(f"v_mov_b32 v{vDX+1}, v{vDX}")
    e(f"s_and_b32 s{sT0}, s{sFT}, 3")
    e(f"s_mul_i32 s{sT0}, s{sT0}, {opt['xlin']}")
    e(f"s_lshr_b32 s{sT0}, s{sT0}, 2")
    e(f"s_lshl_b32 s100, s{sT0}, 13")
    e(f"s_add_u32 s100, s100, s{sXB}")
    e(f"s_add_u32 s101, s{sXB}, 81920")
e(f"v_mul_u32_u24 v{t3}, {16*3072}, v{Wv}")
for i in range(3):
    if i: e(f"v_add_u32 v{t0}, {64*i}, v{L}")
    src = t0 if i else L
    e(f"v_mul_u32_u24 v{t1}, 2731, v{src}")
    e(f"v_lshrrev_b32 v{t1}, 16, v{t1}")
    e(f"v_mul_u32_u24 v{t2}, 24, v{t1}")
    e(f"v_sub_u32 v{t0}, v{src}, v{t2}")
    e(f"v_and_b32 v{t2}, 2, v{t1}")
    e(f"v_lshlrev_b32 v{t2}, 1, v{t2}")
    e(f"v_xor_b32 v{t0}, v{t0}, v{t2}")
    e(f"v_mul_u32_u24 v{t1}, 3072, v{t1}")
    e(f"v_lshl_add_u32 v{t0}, v{t0}, 4, v{t1}")
    e(f"v_add_u32 v{t0}, v{t0}, v{t3}")
    if i: e(f"v_subrev_u32 v{vDW+i}, {i*1024}, v{t0}")
    else: e(f"v_mov_b32 v{vDW}, v{t0}")
    e(f"v_add_u32 v{vDW+3+i}, {8*3072 - ((i+3)%4)*1024}, v{t0}")
vTC = 250
if opt["tch"]:
    e(f"v_lshrrev_b32 v{t0}, 1, v{L}")
    e(f"v_mul_u32_u24 v{t1}, 1280, v{t0}")
    e(f"v_mul_u32_u24 v{t2}, 43, v{t0}")
    e(f"v_lshrrev_b32 v{t2}, 7, v{t2}")
    e(f"v_mul_u32_u24 v{t2}, {3072-384}, v{t2}")
    e(f"v_lshl_add_u32 v{t2}, v{t0}, 7, v{t2}")
    e(f"s_and_b32 s{sT0}, s{sFT}, 3")
    e(f"s_lshl_b32 s{sT0}, s{sT0}, 1")
    e(f"s_lshr_b32 s{sT1}, s{sW}, 1")
    e(f"s_add_u32 s{sT0}, s{sT0}, s{sT1}")
    e(f"s_mul_i32 s{sT0}, s{sT0}, {8*1280}")
    e(f"s_and_b32 s{sWO}, s{sMT}, 7")
    e(f"s_lshl_b32 s{sWO}, s{sWO}, 1")
    e(f"s_add_u32 s{sWO}, s{sWO}, s{sT1}")
    e(f"s_mul_i32 s{sWO}, s{sWO}, {4*3072}")
    e(f"s_add_u32 s{sT1}, s{sWB}, {640*3072}")
    e(f"s_bitcmp1_b32 s{sW}, 0")
    e(f"s_cselect_b64 vcc, -1, 0")
    e(f"v_cndmask_b32 v{vTC}, v{t1}, v{t2}, vcc")
    e(f"s_cselect_b32 s{sT0}, s{sWO}, s{sT0}")
    e(f"s_mov_b32 s{sWO}, {0xffff if opt['th'] else 0x5555}")
    e(f"s_cselect_b32 s{sWO}, {0xffffff if opt['th'] else 0x555555}, s{sWO}")
    e(f"s_cselect_b32 s{sHS}, s{sKW}, s{sKX}")
    e(f"s_movk_i32 s{sHS2}, 128")
    e(f"s_cselect_b32 s{sHS2}, {64*3072}, s{sHS2}")
    e(f"v_and_b32 v{t0}, 1, v{L}")
    e(f"v_lshl_add_u32 v{vTC}, v{t0}, 6, v{vTC}")
    e(f"v_add_u32 v{vTC}, s{sT0}, v{vTC}")
    e(f"s_cselect_b32 vcc_lo, s{sT1}, s{sXE}")
    e(f"s_cselect_b32 vcc_hi, s{sWB}, s{sXB}")
e(f"s_lshl_b32 s{sM0}, s{sW}, 13")
CLR = opt["clr"] >= 0 or opt["clrs"]
sCL = sHS
vNAN = 244
if CLR:
    e(f"s_lshl_b32 s{sT0}, s{sMT}, 2")
    e(f"s_lshr_b32 s{sT1}, s{sFT}, 1")
    e(f"s_add_u32 s{sT0}, s{sT0}, s{sT1}")
    e(f"s_lshl_b32 s{sT0}, s{sT0}, 2")
    e(f"s_add_u32 s{sT0}, s{sT0}, s{sW}")
    e(f"s_lshl_b32 s{sT0}, s{sT0}, 1")
    e(f"s_and_b32 s{sT1}, s{sFT}, 1")
    e(f"s_add_u32 s{sT0}, s{sT0}, s{sT1}")
    e(f"s_mul_i32 s{sT0}, s{sT0}, 6144")
    e(f"v_add_u32 v248, s{sT0}, v{vL16}")
    e(f"v_add_u32 v249, 3072, v248")
    for r in range(4): e(f"v_mov_b32 v{vNAN+r}, -1")
def clr_ops():
    def mk(i):
        def f():
            e(f"buffer_store_dwordx4 {vr(vNAN,4)}, v{248 + i//3}, {srd(sH)}, 0 offen offset:{(i%3)*1024} sc1"); VM.issue("clr")
        return f
    return [mk(i) for i in range(6)]
CLO = clr_ops()
e(f"s_mov_b32 s{sSPIN}, {EP}")
for r, n in ((sX, 2621440), (sW1, 1966080), (sW2, 1966080), (sOUT, 2621440), (sH, HREC)):
    e(f"s_mov_b32 s{r+2}, {n}"); e(f"s_mov_b32 s{r+3}, 0x20000")
e("s_waitcnt lgkmcnt(0)")
if opt["wso"]:
    e(f"s_add_u32 s12, s12, {opt['wso'] << 20}"); e("s_addc_u32 s13, s13, 0")
for r, p in ((sW2, 8), (sX, 4), (sW1, 6), (sOUT, 10), (sH, 12)):
    e(f"s_mov_b64 s[{r}:{r+1}], s[{p}:{p+1}]")
if opt["tch"]:
    e(f"s_bitcmp1_b32 s{sW}, 0")
    e(f"s_cselect_b64 s[8:9], s[6:7], s[4:5]")
    e(f"s_cselect_b32 s10, s{sW1+2}, s{sX+2}")
    e("s_mov_b32 s11, 0x20000")
    e(f"s_mov_b32 s6, s{sHS}")
    e(f"s_mov_b32 s7, s{sHS2}")
def touch():
    e("s_add_u32 s6, s6, s7")
    e("s_cmp_eq_u32 s6, vcc_lo")
    e("s_cselect_b32 s6, vcc_hi, s6")
    e(f"s_mov_b32 exec_lo, s{sWO}")
    e("s_mov_b32 exec_hi, 0")
    e(f"buffer_load_dword v251, v{vTC}, s[8:11], s6 offen"); VM.issue("tch")
    e("s_mov_b64 exec, -1")
stamp()
e(f"s_load_dword s{sE}, s[12:13], s{sSPIN}")

def adv_k():
    if opt["xlin"]:
        e(f"s_add_u32 s100, s100, 8192")
        e(f"s_cmp_eq_u32 s100, s101")
        e(f"s_cselect_b32 s100, s{sXB}, s100")
    e(f"s_add_u32 s{sKX}, s{sKX}, 128")
    e(f"s_add_u32 s{sKW}, s{sKW}, {64*3072}")
    e(f"s_cmp_eq_u32 s{sKX}, s{sXE}")
    e(f"s_cselect_b32 s{sKX}, s{sXB}, s{sKX}")
    e(f"s_cselect_b32 s{sKW}, s{sWB}, s{sKW}")
def dma_ops(st):
    base = (st % NSL) * 32768
    def mk(i):
        def f():
            if i == 0: e(f"s_add_u32 m0, s{sM0}, {base+6144}"); e("s_nop 0")
            if i < 2:
                e(f"buffer_load_dwordx4 v{vDX+i}, {srd(sX)}, s{100 if opt['xlin'] else sKX} offen offset:{i*1024} {opt['xaux'] if st < opt['ntst'] else ''} lds")
            else:
                j = i - 2
                e(f"buffer_load_dwordx4 v{vDW+j}, {srd(sW1)}, s{sKW} offen offset:{(j%4)*1024} {opt['w1aux'] if st < opt['ntst'] else ''} lds")
            VM.issue(f"st{st}")
            if i == 1: e(f"s_add_u32 m0, s{sM0}, {base}"); e("s_nop 0")
            if i == 5: e(f"s_add_u32 m0, s{sM0}, {base+4096}"); e("s_nop 0")
            if i == 7 and st < 9: adv_k()
        return f
    return [mk(i) for i in range(8)]

def setup2():
    R, C = t0, t1
    u0, u1, u2 = vTM+7, vTM+8, vTM+9
    e(f"s_and_b32 s{sT0}, s2, 63")
    e(f"s_mul_i32 s{sT1}, s{sT0}, 205")
    e(f"s_lshr_b32 s{sT1}, s{sT1}, 10")
    e(f"s_mul_i32 s{sRS}, s{sT1}, 5")
    e(f"s_sub_u32 s{sRS}, s{sT0}, s{sRS}")
    e(f"s_lshr_b32 s{sRD}, s2, 6")
    e(f"s_mul_i32 s{sRFL}, s{sRD}, 5")
    e(f"s_add_u32 s{sRFL}, s{sRFL}, s{sRS}")
    e(f"s_lshl_b32 s{sRFL}, s{sRFL}, 4")
    e(f"s_add_u32 s{sRFL}, s{sRFL}, s{sT1}")
    e(f"s_lshl_b32 s{sRFL}, s{sRFL}, 7")
    if opt["own"]:
        e(f"s_mul_i32 s6, s{sT1}, 6")
        e(f"s_add_u32 s6, s6, s{sRD}")
        e(f"s_lshr_b32 s7, s{sT1}, 1")
        e(f"s_mul_i32 s7, s7, 6")
        e(f"s_and_b32 s8, s{sT1}, 1")
        e(f"s_add_u32 s7, s7, s8")
        e(f"s_mul_i32 s8, s{sRD}, 12")
        e(f"s_add_u32 s7, s7, s8")
        e(f"s_sub_u32 s7, s7, 20")
        e(f"s_cmp_lt_u32 s{sT1}, 8")
        e(f"s_cselect_b32 s6, s6, s7")
        e(f"s_mul_i32 s6, s6, 40960")
    e(f"s_mul_i32 s{sRD}, s{sRD}, 12")
    e(f"s_add_u32 s{sT1}, s{sT1}, s{sRD}")
    e(f"s_mul_i32 s{sT1}, s{sT1}, 40960")
    e(f"s_lshl_b32 s{sRD}, s{sRS}, 13")
    e(f"s_add_u32 s{sRD}, s{sRD}, s{sT1}")
    e(f"s_lshl_b32 s{sRS}, s{sRS}, 8")
    e(f"s_add_u32 s{sRS}, s{sRS}, s{6 if opt['own'] else sT1}")
    e(f"s_lshl_b32 s{sT1}, s{sW}, 11")
    e(f"s_add_u32 s{sRD}, s{sRD}, s{sT1}")
    e(f"s_add_u32 s{sRD}, s{sRD}, {W2F}")
    e(f"s_cmp_lt_u32 s{sT0}, {0 if opt['nor'] else 60}")
    e(f"s_cselect_b32 s{sRS}, s{sRS}, 1966080")
    e(f"s_cselect_b32 s{sRD}, s{sRD}, {HREC}")
    if opt["pt"] & 1:
        e(f"s_min_u32 s{sT1}, s{sRS}, {1966080-4}")
        e(f"s_load_dword s6, s[8:9], s{sT1}")
    if opt["pt"] & 2:
        e(f"s_mul_i32 s{sT1}, s{sMT}, {64*3072}")
        e(f"s_load_dword s6, s[12:13], s{sT1}")
    if opt["pt"] & 4:
        e(f"s_load_dword s6, s[10:11], s{sXB}")
    if opt["pt"] & 8:
        e(f"s_load_dword s6, s[12:13], s{sRD}")
    e(f"v_lshl_add_u32 v{t0}, v{Wv}, 3, v{G}")
    e(f"v_mul_u32_u24 v{t0}, 1280, v{t0}")
    e(f"v_and_b32 v{t1}, 15, v{L}")
    e(f"v_lshlrev_b32 v{t2}, 1, v{G}")
    e(f"v_xor_b32 v{t1}, v{t1}, v{t2}")
    e(f"v_lshl_add_u32 v{vDR}, v{t1}, 4, v{t0}")
    e(f"v_xor_b32 v{t1}, 8, v{t1}")
    e(f"v_lshl_add_u32 v{vDR+1}, v{t1}, 4, v{t0}")
    e(f"v_add_u32 v{vDR+1}, {4*1280-1024}, v{vDR+1}")
    e(f"v_bfe_u32 v{R}, v{L}, 2, 2")
    e(f"v_and_b32 v{C}, 3, v{L}")
    e(f"v_lshrrev_b32 v{u0}, 1, v{G}")
    e(f"v_lshl_add_u32 v{u0}, v{u0}, 3, v{R}")
    e(f"v_mul_u32_u24 v{u0}, 384, v{u0}")
    e(f"v_lshrrev_b32 v{u1}, 1, v{R}")
    e(f"v_xor_b32 v{u1}, v{u1}, v{Wv}")
    e(f"v_and_b32 v{u1}, 1, v{u1}")
    e(f"v_lshl_add_u32 v{u0}, v{u1}, 6, v{u0}")
    e(f"v_and_b32 v{u1}, 1, v{G}")
    e(f"v_lshl_add_u32 v{u0}, v{u1}, 5, v{u0}")
    e(f"v_lshl_add_u32 v{vA}, v{C}, 3, v{u0}")
    e(f"v_add_u32 v{vA+1}, 65536, v{vA}")
    e(f"v_and_b32 v{u0}, 2, v{Wv}")
    e(f"v_add_u32 v{u0}, v{u0}, v{u1}")
    e(f"v_lshlrev_b32 v{u0}, 13, v{u0}")
    e(f"v_and_b32 v{u2}, 15, v{L}")
    e(f"v_lshl_add_u32 v{u0}, v{u2}, 7, v{u0}")
    e(f"v_add_u32 v{u0}, 6144, v{u0}")
    e(f"v_lshrrev_b32 v{u1}, 1, v{u2}")
    e(f"v_lshrrev_b32 v{t2}, 5, v{L}")
    e(f"v_xor_b32 v{u1}, v{u1}, v{t2}")
    e(f"v_lshl_add_u32 v{vB}, v{u1}, 4, v{u0}")
    for k in range(1, 4): e(f"v_xor_b32 v{vB+k}, {32*k}, v{vB}")
    for k in range(4): e(f"v_add_u32 v{vB+4+k}, 65536, v{vB+k}")
    e(f"v_and_b32 v{u1}, 1, v{G}")
    e(f"v_lshl_add_u32 v{u1}, v{u1}, 2, v{R}")
    e(f"v_lshlrev_b32 v{u0}, 12, v{t2}")
    e(f"v_lshl_add_u32 v{u0}, v{u1}, 8, v{u0}")
    e(f"v_lshlrev_b32 v{t3}, 1, v{Wv}")
    e(f"v_xor_b32 v{u1}, v{u1}, v{t3}")
    e(f"v_lshl_add_u32 v{u0}, v{u1}, 5, v{u0}")
    e(f"v_and_b32 v{u1}, 1, v{C}")
    e(f"v_lshl_add_u32 v{u0}, v{u1}, 4, v{u0}")
    e(f"v_lshrrev_b32 v{u1}, 1, v{C}")
    e(f"v_lshl_add_u32 v{u0}, v{u1}, 3, v{u0}")
    e(f"v_add_u32 v{vRA}, {RB}, v{u0}")
    e(f"v_xor_b32 v{vRA+1}, 32, v{vRA}")
    e(f"v_mov_b32 v{vCN}, {CNT}")
    e(f"v_mov_b32 v{vONE}, 0")
    e(f"ds_write_b32 v{vCN}, v{vONE}"); LG.issue("cnt")
    if opt["ab"]: e(f"ds_write_b32 v{vCN}, v{vONE} offset:4"); LG.issue("cnt")
    for i in range(48): e(f"v_mov_b32 v{vACC1+i}, 0")
    e(f"v_mov_b32 v{vONE}, 1")
    e(f"v_and_b32 v{u1}, 1, v{G}")
    e(f"v_mul_u32_u24 v{u0}, 12288, v{u1}")
    e(f"v_lshl_add_u32 v{u0}, v{t2}, 8, v{u0}")
    e(f"v_lshl_add_u32 v{vHS}, v{u2}, 4, v{u0}")
    if opt["own"]:
        e(f"s_and_b32 s{sT0}, s{sW}, 1")
        e(f"s_and_b32 s{sT1}, s{sW}, 2")
        e(f"s_sub_u32 s{sT1}, s{sT1}, s{sT0}")
        e(f"s_add_u32 s{sT1}, s{sT1}, 3")
        e(f"v_add_u32 v{u0}, s{sT1}, v{u1}")
        e(f"v_and_b32 v{u0}, 3, v{u0}")
        e(f"s_lshl_b32 s{sT0}, s{sT0}, 12")
        e(f"s_add_u32 s{sT0}, s{sT0}, {OWN}")
        e(f"v_lshl_add_u32 v{u0}, v{u0}, 10, s{sT0}")
        e(f"v_lshl_add_u32 v{u0}, v{t2}, 8, v{u0}")
        e(f"v_lshl_add_u32 v{vOW}, v{u2}, 4, v{u0}")
        e(f"v_xor_b32 v{vOW+1}, 2048, v{vOW}")
        e(f"s_lshl_b32 s{sT0}, s{sW}, 12")
        e(f"s_add_u32 s{sT0}, s{sT0}, {OWN}")
        e(f"v_add_u32 v{vOW+2}, s{sT0}, v{vL16}")
    e(f"v_mul_u32_u24 v{u0}, 1280, v{u2}")
    e(f"v_lshl_add_u32 v{vOUT}, v{G}, 4, v{u0}")
    e(f"v_lshl_add_u32 v{u0}, v{u1}, 4, v{u0}")
    e(f"v_lshl_add_u32 v{vOUT2}, v{t2}, 3, v{u0}")
    e(f"v_add_u32 v{vL16b}, 4096, v{vL16}")
    e(f"s_mul_i32 s{sT0}, s{sFT}, 5")
    e(f"v_lshl_add_u32 v{u0}, v{u1}, 2, s{sT0}")
    e(f"v_lshrrev_b32 v{u0}, 3, v{u0}")
    e(f"v_mad_u32_u24 v{u0}, v{Wv}, 5, v{u0}")
    e(f"v_min_u32 v{vRP}, 11, v{u2}")
    e(f"v_lshlrev_b32 v{vRP}, 7, v{vRP}")
    e(f"v_lshl_add_u32 v{vRP}, v{u0}, 11, v{vRP}")
    e(f"v_lshlrev_b32 v{vL4}, 2, v{L}")
    if opt["own"]:
        e(f"v_and_b32 v{vPA}, 7, v{L}")
        e(f"v_lshlrev_b32 v{vPA}, 7, v{vPA}")
    else: e(f"v_mul_u32_u24 v{vPA}, {FS}, v{u1}")
    e(f"v_mul_u32_u24 v{u0}, 205, v{L}")
    e(f"v_lshrrev_b32 v{u0}, 10, v{u0}")
    e(f"v_sub_u32 v{vAC}, v{Wv}, v{u0}")
    e(f"v_mad_i32_i24 v{vAC}, v{vAC}, 5, v{L}")
    e(f"v_lshlrev_b32 v{vAC}, 11, v{vAC}")
    e(f"v_lshl_add_u32 v{vAC}, v{u0}, 7, v{vAC}")
    e(f"s_mul_i32 s{sT0}, s{sW}, 15360")
    e(f"s_add_u32 s{sT0}, s{sT0}, {RED}")
    e(f"v_add_u32 v{vRW}, s{sT0}, v{vL16}")
    for p in range(3):
        e(f"s_sub_u32 s{sT0}, s{sW}, {1+p}")
        e(f"s_and_b32 s{sT0}, s{sT0}, 3")
        e(f"s_mul_i32 s{sT0}, s{sT0}, 15360")
        e(f"s_add_u32 s{sT0}, s{sT0}, {RED + p*5120}")
        e(f"v_add_u32 v{vRR+p}, s{sT0}, v{vL16}")
    e(f"s_mul_i32 s{sW2B}, s{sW}, {12*40960}")
    e(f"s_mul_i32 s{sT0}, s{sFT}, 5120")
    e(f"s_add_u32 s{sW2B}, s{sW2B}, s{sT0}")
    e(f"s_add_u32 s{sW2B}, s{sW2B}, {W2F}")
    if opt["ab"]:
        e(f"s_mov_b32 s{sSIG+6}, 0x98763210"); e(f"s_mov_b32 s{sSIG+7}, 0x98763210")
        e(f"s_lshr_b64 s[{sSIG+6}:{sSIG+7}], s[{sSIG+6}:{sSIG+7}], s{sROT}")
        e(f"s_mov_b32 s{sSIG+7}, s{sSIG+6}")
        e(f"s_and_b32 s{sROT}, s{sROT}, 12")
        e(f"s_lshr_b32 s{sSIG+11}, 0xba54ba54, s{sROT}")
        for n in range(12):
            src = sSIG+7 if n < 8 else sSIG+11
            e(f"s_bfe_u32 s{sSIG+n}, s{src}, {0x40000 + 4*(n%8)}")
            e(f"s_lshl_b32 s{sSIG+n}, s{sSIG+n}, 10")
    if opt["own"]:
        e(f"s_lshl_b32 s{sSIG}, s{sFT}, 10")
        for n in range(1, 12):
            e(f"s_cmp_eq_u32 s{sROT}, s{sFT}")
            e(f"s_addc_u32 s{sROT}, s{sROT}, 0")
            e(f"s_lshl_b32 s{sSIG+n}, s{sROT}, 10")
            if n < 11:
                e(f"s_add_u32 s{sROT}, s{sROT}, 1")
                e(f"s_cmp_ge_u32 s{sROT}, 12")
                e(f"s_cselect_b32 s{sROT}, 0, s{sROT}")
    for n in range(12 if not opt["ab"] and not opt["own"] else 0):
        e(f"s_lshl_b32 s{sSIG+n}, s{sROT}, 10")
        if n < 11:
            e(f"s_add_u32 s{sROT}, s{sROT}, 1")
            e(f"s_cmp_ge_u32 s{sROT}, 12")
            e(f"s_cselect_b32 s{sROT}, 0, s{sROT}")
    if opt["own2"] == 2:
        e(f"s_mov_b32 s{sOWN}, s{sW}")
    elif opt["own2"] == 3:
        e(f"s_and_b32 s{sOWN}, s{sFT}, 1")
        e(f"s_add_u32 s{sOWN}, s{sW}, s{sOWN}")
    elif opt["own2"]:
        e(f"s_lshl_b32 s{sOWN}, s{sFT}, 1")
        e(f"s_add_u32 s{sOWN}, s{sW}, s{sOWN}")
    else: e(f"s_add_u32 s{sOWN}, s{sW}, s{sFT}")
    e(f"s_and_b32 s{sOWN}, s{sOWN}, 3")
    e(f"s_lshl_b32 s{sT1}, s{sMT}, 2")
    e(f"s_add_u32 s{sT1}, s{sT1}, s{sW}")
    if opt["own"]: e(f"s_lshl_b32 s{sPOL}, s{sMT}, 10")
    else: e(f"s_mul_i32 s{sPOL}, s{sT1}, {2*FS}")
    e(f"s_add_u32 s{sPOL}, s{sPOL}, {FL}")
    e(f"s_lshl_b32 s{sT1}, s{sT1}, 2")
    for p in range(4):
        e(f"s_add_u32 s{sT0}, s{sOWN}, {1+p}")
        e(f"s_and_b32 s{sT0}, s{sT0}, 3")
        e(f"s_add_u32 s{sT0}, s{sT0}, s{sT1}")
        e(f"s_mul_i32 s{sT0}, s{sT0}, 12288")
        e(f"v_add_u32 v{vHB+p}, s{sT0}, v{vL16}")
    e(f"s_lshl_b32 s{sOB}, s{sMT}, 2")
    e(f"s_add_u32 s{sOB}, s{sOB}, s{sOWN}")
    e(f"s_mul_i32 s{sOB}, s{sOB}, {16*1280}")
    e(f"s_mul_i32 s{sT0}, s{sFT}, 160")
    e(f"s_add_u32 s{sOB}, s{sOB}, s{sT0}")
    if opt["ost"]:
        e(f"s_cmp_ge_u32 s{sW}, {opt['ost']}")
        e(f"s_cselect_b32 s{sOB}, s{sOB}, 2621440")
    e(f"s_lshl_b32 s{sT0}, s{sMT}, 2")
    e(f"s_lshr_b32 s{sT1}, s{sFT}, 1")
    e(f"s_add_u32 s{sT0}, s{sT0}, s{sT1}")
    e(f"s_mul_i32 s{sFLG}, s{sT0}, {2*FS}")
    e(f"s_lshl_b32 s{sT0}, s{sT0}, 2")
    e(f"s_and_b32 s{sT1}, s{sW}, 2")
    e(f"s_add_u32 s{sT0}, s{sT0}, s{sT1}")
    e(f"s_mul_i32 s{sHS}, s{sT0}, 12288")
    e(f"s_and_b32 s{sT0}, s{sFT}, 1")
    e(f"s_mul_i32 s{sT1}, s{sT0}, {FS}")
    e(f"s_add_u32 s{sFLG}, s{sFLG}, s{sT1}")
    e(f"s_add_u32 s{sFLG}, s{sFLG}, {FL}")
    e(f"s_mul_i32 s{sT0}, s{sT0}, 6")
    e(f"s_and_b32 s{sT1}, s{sW}, 1")
    e(f"s_add_u32 s{sT0}, s{sT0}, s{sT1}")
    e(f"s_lshl_b32 s{sT0}, s{sT0}, 10")
    e(f"s_add_u32 s{sHS}, s{sHS}, s{sT0}")
    e(f"s_add_u32 s{sHS2}, s{sHS}, 4096")
    if opt["own"]:
        e(f"s_and_b32 s{sT0}, s{sFT}, 1")
        e(f"s_lshl_b32 s{sT0}, s{sT0}, 12")
        e(f"s_sub_u32 s{sHS2}, s{sHS}, s{sT0}")
        e(f"s_add_u32 s{sHS2}, s{sHS2}, 8192")
        e(f"s_lshl_b32 s{sT0}, s{sMT}, 2")
        e(f"s_add_u32 s{sT0}, s{sT0}, s{sT1}")
        e(f"s_lshl_b32 s{sT0}, s{sT0}, 2")
        e(f"s_and_b32 s{sT1}, s{sW}, 2")
        e(f"s_add_u32 s{sT0}, s{sT0}, s{sT1}")
        e(f"s_mul_i32 s{sT0}, s{sT0}, 12")
        e(f"s_add_u32 s{sT0}, s{sT0}, s{sFT}")
        e(f"s_lshl_b32 s{sHS}, s{sT0}, 10")
        e(f"s_add_u32 s{sHS1}, s{sHS}, 98304")
    e(f"s_add_u32 s{sRFL}, s{sRFL}, {RFL}")
    e(f"s_cmp_eq_u32 s{sW}, 0")
    e(f"s_cselect_b32 s{sRFL}, s{sRFL}, {HREC}")
    e(f"s_mov_b32 s{sL2E}, 0xbfb8aa3b")
    if opt["pk"]:
        e(f"s_mov_b32 s{sPK}, 0xbfb8aa3b"); e(f"s_mov_b32 s{sPK+1}, 0xbfb8aa3b")
def r_loads():
    e(f"s_lshr_b32 m0, s{sM0}, 2")
    e(f"s_add_u32 m0, m0, {RB}")
    e("s_nop 0")
    for i in range(2):
        e(f"buffer_load_dwordx4 v{vDR+i}, {srd(sW2)}, s{sRS} offen offset:{i*1024} {opt['raux']} lds"); VM.issue("rld")
def r_reads():
    for ee in range(2):
        for t in range(2):
            e(f"ds_read_b64_tr_b16 {vr(vRF + 4*ee + 2*t, 2)}, v{vRA+ee} offset:{t*2048}"); LG.issue("rrd")
def r_stores():
    LG.wait("rrd")
    for ee in range(2):
        e(f"buffer_store_dwordx4 {vr(vRF+4*ee,4)}, v{vL16}, {srd(sH)}, s{sRD} offen offset:{ee*1024} {opt['rsaux']}"); VM.issue("rst")
S2 = capture(setup2)
groups = []
for l in S2:
    if l.startswith("s_cselect") or (groups and groups[-1][-1].startswith("s_cmp")): groups[-1].append(l)
    else: groups.append([l])
ST0 = []
def pre_order(spec):
    kx, kw = (sKX, 6, 8), (sKW, 7, 9)
    def nxt(i):
        a, b = (i + 1) % 3, i
        e(f"s_add_u32 s{kx[a]}, s{kx[b]}, 128")
        e(f"s_add_u32 s{kw[a]}, s{kw[b]}, {64*3072}")
        e(f"s_cmp_eq_u32 s{kx[a]}, s{sXE}")
        e(f"s_cselect_b32 s{kx[a]}, s{sXB}, s{kx[a]}")
        e(f"s_cselect_b32 s{kw[a]}, s{sWB}, s{kw[a]}")
    ops = []
    for ch in spec:
        if ch in "abc":
            st = "abc".index(ch)
            for i in range(2):
                def f(st=st, i=i):
                    if i == 0: e(f"s_add_u32 m0, s{sM0}, {st*32768+6144}"); e("s_nop 0")
                    e(f"buffer_load_dwordx4 v{vDX+i}, {srd(sX)}, s{kx[st]} offen offset:{i*1024} {opt['xaux']} lds"); VM.issue(f"st{st}")
                    if st == 0 and i == 1: nxt(0); nxt(1)
                ops.append(f)
        elif ch in "ABC":
            st = "ABC".index(ch)
            for j in range(6):
                def f(st=st, j=j):
                    if j % 4 == 0: e(f"s_add_u32 m0, s{sM0}, {st*32768+j*1024}"); e("s_nop 0")
                    e(f"buffer_load_dwordx4 v{vDW+j}, {srd(sW1)}, s{kw[st]} offen offset:{(j%4)*1024} {opt['w1aux']} lds"); VM.issue(f"st{st}")
                ops.append(f)
        elif ch == "R": ops.append(r_loads)
        elif ch == ".": ops.append(None)
        elif ch == "P":
            def f():
                e(f"s_bfe_u32 s10, s{sMT}, 0x10002")
                e(f"s_mul_i32 s10, s10, 320")
                e(f"s_and_b32 s11, s{sMT}, 3")
                e(f"s_lshl_b32 s11, s11, 4")
                e(f"s_add_u32 s10, s10, s11")
                e(f"s_mul_i32 s11, s{sW}, 12")
                e(f"s_sub_u32 s10, s10, s11")
                e(f"s_add_u32 s10, s10, 256")
                e(f"s_mul_i32 s10, s10, 3072")
                e(f"s_add_u32 s10, s10, s{sWB}")
                e(f"buffer_load_dwordx4 v[244:247], v{vDW}, {srd(sW1)}, s10 offen"); VM.issue("pp")
                e("s_mov_b32 exec_hi, 0")
                e(f"buffer_load_dwordx4 v[248:251], v{vDW+1}, {srd(sW1)}, s10 offen offset:1024"); VM.issue("pp")
                e("s_mov_b32 exec_hi, -1")
            ops.append(f)
    assert spec[0] == "a" and all(c in spec for c in "abcABC")
    last = ops[-1]
    def fin(): last(); nxt(2)
    ops[-1] = fin
    return ops
if opt["po"]:
    first = pre_order(opt["po"]); opt["pre3"] = 1
    if None in first:
        k = first.index(None); first, ST0 = first[:k], first[k+1:]
    if "R" in opt["po"]: opt["rls"] = -1
else:
    first = dma_ops(0) + dma_ops(1) + (dma_ops(2) if opt["pre3"] else [])
    if opt["rls"] < 0: first.append(r_loads)
    if opt["tch"]: first[opt["tp0"]:opt["tp0"]] = [touch] * (opt["la"] - 1)
if opt["clr"] >= 0: first[opt["clr"]:opt["clr"]] = CLO
NF0 = opt["nf0"]
for f in first[:NF0]: f()
if opt["fst"]:
    e(f"s_waitcnt vmcnt({NF0-1})"); stamp(k=5)
    e(f"s_waitcnt vmcnt({NF0-3})"); stamp(k=5)
rest = first[NF0:]
per = (len(groups) + len(rest) - 1) // len(rest)
head = len(groups) * opt["head"] // 100
for g in groups[:head]: O.extend(g)
groups = groups[head:]
per = (len(groups) + len(rest) - 1) // len(rest)
for f in rest:
    f()
    for g in groups[:per]: O.extend(g)
    groups = groups[per:]
assert not groups
stamp()

def w2_ops():
    ops = []
    order = list(range(1, 12)); order.insert(opt["w0p"], 0)
    for n in order:
        for j in range(5):
            def f(n=n, j=j):
                if j == 0:
                    e(f"s_mul_i32 s{sWO}, s{sSIG+n}, 40")
                    e(f"s_add_u32 s{sWO}, s{sWO}, s{sW2B}")
                va = vL16 if j < 4 else vL16b
                e(f"buffer_load_dwordx4 {ar(n*20+4*j, 4)}, v{va}, {srd(sH)}, s{sWO} offen offset:{(j%4)*1024} {opt['w2aux'].replace('-','')}")
                VM.issue(f"w{n}")
            ops.append(f)
    return ops
W2L = w2_ops()
def take(n):
    r = W2L[:n]; del W2L[:n]; return r

def rd_ops(st, half):
    slot = st % NSL
    sb = (slot % 2) * 32768
    hi = slot // 2
    ops = []
    if opt["nord"]: return ops
    for kk in range(2):
        ks = 2*half + kk
        def b(ks=ks, kk=kk):
            e(f"ds_read_b128 {vr(vBF + (half*2+kk)*4, 4)}, v{vB + 4*hi + ks} offset:{sb}"); LG.issue(f"B{ks}")
        ops.append(b)
        for q in range(3):
            for t in range(2):
                def a(ks=ks, kk=kk, q=q, t=t):
                    e(f"ds_read_b64_tr_b16 {vr(vAF + half*24 + (kk*3+q)*4 + 2*t, 2)}, v{vA+hi} offset:{sb + ks*8192 + t*1536 + q*128}")
                    LG.issue(f"A{ks}{q}")
                ops.append(a)
    return ops
def i16(kk, q): return kk == 1
def mfma1(half, kk, q):
    ks = 2*half + kk
    LG.wait(f"A{ks}{q}")
    if opt["nomf1"]: return
    if opt["m16"]:
        for z in range(2):
            c = vr(vACC1+16*q+8*kk+4*z, 4)
            e(f"v_mfma_f32_16x16x32_bf16 {c}, {vr(vAF + half*24 + (kk*3+q)*4, 4)}, {vr(vBF + (half*2+(kk^z if i16(kk, q) else kk))*4, 4)}, {c}")
        return
    e(f"v_mfma_f32_32x32x16_bf16 {vr(vACC1+16*q,16)}, {vr(vAF + half*24 + (kk*3+q)*4, 4)}, {vr(vBF + (half*2+kk)*4, 4)}, {vr(vACC1+16*q,16)}")
def half_body(mf_half, rds, fill):
    rds = list(rds); fill = list(fill)
    for i in range(6):
        if mf_half is not None: mfma1(mf_half, i // 3, i % 3)
        left = 6 - i
        for _ in range((len(rds) + left - 1) // left if i else min(len(rds), 4)):
            if rds: rds.pop(0)()
        for _ in range((len(fill) + left - 1) // left):
            if fill: fill.pop(0)()
    assert not rds and not fill

def flag_store(off):
    fk = opt["fk"]
    if fk in (1, 3, 4):
        for r in range(4): e(f"v_mov_b32 v{vTM+12+r}, s{sTAG}")
        e(f"s_mov_b64 exec, {dict([(1,255),(3,1),(4,15)])[fk]}")
        e(f"buffer_store_dwordx4 {vr(vTM+12,4)}, v{vL16}, {srd(sH)}, s{off} offen sc1"); VM.issue("flag")
        e("s_mov_b64 exec, -1")
        return
    e(f"v_mov_b32 v{vT}, s{sTAG}")
    e("s_mov_b32 exec_hi, 0" if fk == 0 else "s_mov_b64 exec, 1")
    e(f"buffer_store_dword v{vT}, v{vL4}, {srd(sH)}, s{off} offen sc1"); VM.issue("flag")
    e("s_mov_b64 exec, -1")
def r_poll():
    e(f"s_mov_b32 s{sT0}, {HREC if opt['norp'] else RFL}")
    e(f"buffer_load_dword v{vPOLL}, v{vRP}, {srd(sH)}, s{sT0} offen sc1"); VM.issue("rpoll")

def spin_check(lab, vv, va, tag, so=None, fake=False):
    VM.wait(tag)
    e(f"s_mov_b32 s{sSPIN}, 20000")
    e(f"L_{lab}:")
    e(f"v_cmp_ne_u32 vcc, s{sTAG}, v{vv}")
    e("s_cmp_eq_u64 vcc, 0" if not fake else "s_cmp_eq_u32 s2, s2")
    e(f"s_cbranch_scc1 L_{lab}_go")
    e(f"s_sub_u32 s{sSPIN}, s{sSPIN}, 1")
    e(f"s_cmp_eq_u32 s{sSPIN}, 0")
    e(f"s_cbranch_scc1 L_{lab}_go")
    if so is None: e(f"s_mov_b32 s{sT0}, {RFL}")
    e(f"buffer_load_dword v{vv}, v{va}, {srd(sH)}, s{sT0 if so is None else so} offen sc1")
    e("s_waitcnt vmcnt(0)")
    e(f"s_branch L_{lab}")
    e(f"L_{lab}_go:")
def r_check(): spin_check("rp", vPOLL, vRP, "rpoll", None, opt["norp"])

EMU = [int(c) for c in str(opt["emu"]).lstrip("x")]
def emu_ops(bi):
    q, g2 = bi // 2, bi % 2
    a0 = 216; tt = vS + (bi % 2) * 8; pk = vRF + 8 + bi * 4
    ops = []
    if opt["emv"] and not opt["epk"]:
        for r in range(8): ops.append(f"v_mul_f32 v{tt+r}, s{sL2E}, v{a0+r}")
        for r in range(8): ops.append(f"v_exp_f32 v{tt+r}, v{tt+r}")
        for r in range(8): ops.append(f"v_add_f32 v{tt+r}, 1.0, v{tt+r}")
        for r in range(8): ops.append(f"v_rcp_f32 v{tt+r}, v{tt+r}")
        for r in range(8): ops.append(f"v_mul_f32 v{tt+r}, v{a0+r}, v{tt+r}")
        for r in range(4): ops.append(f"v_cvt_pk_bf16_f32 v{pk+r}, v{tt+2*r}, v{tt+2*r+1}")
    elif opt["emv"]:
        for r in range(0, 8, 2): ops.append(f"v_pk_mul_f32 {vr(tt+r,2)}, {vr(a0+r,2)}, s[{sPK}:{sPK+1}]")
        for r in range(8): ops.append(f"v_exp_f32 v{tt+r}, v{tt+r}")
        for r in range(0, 8, 2): ops.append(f"v_pk_add_f32 {vr(tt+r,2)}, {vr(tt+r,2)}, 1.0 op_sel_hi:[1,0]")
        for r in range(8): ops.append(f"v_rcp_f32 v{tt+r}, v{tt+r}")
        for r in range(0, 8, 2): ops.append(f"v_pk_mul_f32 {vr(tt+r,2)}, {vr(a0+r,2)}, {vr(tt+r,2)}")
        for r in range(4): ops.append(f"v_cvt_pk_bf16_f32 v{pk+r}, v{tt+2*r}, v{tt+2*r+1}")
    fs = [(lambda l=l: e(l)) for l in ops]
    def st_():
        e(f"buffer_store_dwordx4 {vr(pk,4)}, v{vHS}, {srd(sH)}, s{sHS} offen offset:{g2*512 + (q%2)*2048} sc1"); VM.issue("hstA" if opt["ab"] else "hst")
    return fs + [st_]
def merge(a, b):
    r = []; a = list(a); b = list(b); na, nb_ = len(a), len(b)
    while a or b:
        if a and (not b or len(a) * nb_ >= len(b) * na): r.append(a.pop(0))
        else: r.append(b.pop(0))
    return r
if EMU:
    for r in range(8): e(f"v_cvt_f32_u32 v{216+r}, v{vL16}"); e(f"v_mul_f32 v{216+r}, 0x3a000000, v{216+r}")
for st in range(10):
    VM.wait(f"st{st}")
    if st == opt["rjs"]: VM.wait("rld")
    if st == opt["rfs"]: VM.wait("rst"); VM.wait("clr")
    if st == opt["afs"] and st: VM.wait("hstA")
    LG.drain()
    e("s_barrier")
    if st == opt["afs"] and st:
        e(f"s_cmp_eq_u32 s{sW}, 0")
        e(f"s_cselect_b32 s{sT1}, s{sFLG}, {HREC}")
        flag_store(sT1); stamp(k=7)
    if st == 9: stamp()
    stamp(k=1)
    if st >= 8: stamp(k=4)
    if st == opt["rfs"]:
        e(f"s_mul_i32 s{sTAG}, s{sE}, 0x9E3779B1")
        e(f"s_add_u32 s{sTAG}, s{sTAG}, 0x7F4A7C15")
        flag_store(sRFL)
    if (st == opt["rcs"] and opt["rck"] == 0) or (st == 9 and opt["rck"] == 2): r_check()
    if NSL == 4:
        if st == 0: fill = ([] if opt["pre3"] else dma_ops(2)) + dma_ops(3)
        elif st < 7: fill = dma_ops(st + 3)
        else: fill = take(opt[f"n{st}"])
    elif st == 0 and opt["pre3"]: fill = list(ST0)
    elif st < 8: fill = dma_ops(st + 2)
    else: fill = take(opt["n8"] if st == 8 else opt["n9"])
    if opt["tch"] and st + opt["la"] < 10: fill.insert(opt["tpos"], touch)
    if st == opt["rls"]: fill = [r_loads] + fill if opt["rpos"] == 0 else fill + [r_loads]
    if st == opt["rjs"]:
        fill.insert(min(opt["rsp"], len(fill)), r_stores)
        fill = [r_reads] + fill
    if st == opt["rps"]: fill.insert(opt["rpp"], r_poll)
    ex = [CLO[i] for i, c in enumerate(str(opt["clrs"]).lstrip("x")) if int(c) == st]
    for bi, es in enumerate(EMU):
        if es == st: ex += emu_ops(bi)
    if ex: fill = merge(fill, ex)
    h = (len(fill) + 1) // 2
    f0, f1 = fill[:h], fill[h:]
    if st == 8 and opt["rck"] == 1:
        k = 1 if opt["rps"] == 8 else 0
        f0, f1 = fill[:k], [r_check] + fill[k:]
    half_body(1 if st else None, rd_ops(st, 0), f0)
    half_body(0, rd_ops(st, 1), f1)
stamp()
PEND = []
def silu_block(q, g2):
    a0 = vACC1 + 16*q + 8*g2
    bi = 2*q + g2
    tt = vS + (bi % 2) * 8
    pk = vRF + bi * 4
    ops = []
    if opt["pk"]:
        for r in range(0, 8, 2): ops.append(f"v_pk_mul_f32 {vr(tt+r,2)}, {vr(a0+r,2)}, s[{sPK}:{sPK+1}]")
        for r in range(8): ops.append(f"v_exp_f32 v{tt+r}, v{tt+r}")
        for r in range(0, 8, 2): ops.append(f"v_pk_add_f32 {vr(tt+r,2)}, {vr(tt+r,2)}, 1.0 op_sel_hi:[1,0]")
        for r in range(8): ops.append(f"v_rcp_f32 v{tt+r}, v{tt+r}")
        for r in range(0, 8, 2): ops.append(f"v_pk_mul_f32 {vr(tt+r,2)}, {vr(a0+r,2)}, {vr(tt+r,2)}")
    else:
        for r in range(8): ops.append(f"v_mul_f32 v{tt+r}, s{sL2E}, v{a0+r}")
        for r in range(8): ops.append(f"v_exp_f32 v{tt+r}, v{tt+r}")
        for r in range(8): ops.append(f"v_add_f32 v{tt+r}, 1.0, v{tt+r}")
        for r in range(8): ops.append(f"v_rcp_f32 v{tt+r}, v{tt+r}")
        for r in range(8): ops.append(f"v_mul_f32 v{tt+r}, v{a0+r}, v{tt+r}")
    for r in range(4): ops.append(f"v_cvt_pk_bf16_f32 v{pk+r}, v{tt+2*r}, v{tt+2*r+1}")
    nbs = str(opt["nb"]).lstrip("x")
    fill = take(int(nbs[bi] if len(nbs) > 1 else nbs))
    step = len(ops) // (len(fill) + 1) if fill else 0
    for i, l in enumerate(ops):
        if not opt["novalu"]: e(l)
        if fill and step and (i + 1) % step == 0: fill.pop(0)()
    for f in fill: f()
    so = sHS if q < 2 else sHS2
    def st_():
        if opt["nost"]: return
        if opt["own"]:
            e(f"buffer_store_dwordx4 {vr(pk,4)}, v{vHS}, {srd(sH)}, s{(sHS, sHS1, sHS2)[q]} offen offset:{g2*512} sc1"); VM.issue("hst")
            if q < 2: e(f"ds_write_b128 v{vOW+q}, {vr(pk,4)} offset:{q*8192 + g2*512}"); LG.issue("ow")
            return
        e(f"buffer_store_dwordx4 {vr(pk,4)}, v{vHS}, {srd(sH)}, s{so} offen offset:{g2*512 + (q%2)*2048} {opt['hsaux'].replace('-','')}"); VM.issue("hstA" if opt["ab"] and q < 2 else "hst")
        if opt["hs2"]:
            e(f"buffer_store_dwordx4 {vr(pk,4)}, v{vHS}, {srd(sH)}, s{so} offen offset:{g2*512 + (q%2)*2048} {opt['hs2'].replace('-','')}"); VM.issue("hst")
    PEND.append(st_)
    if bi >= opt["sl"]:
        while PEND: PEND.pop(0)()
for q in range(3):
    for kk in range(2): mfma1(1, kk, q)
e("s_nop 7")
stamp(k=4)
if opt["sts"] == 4: VM.drain(); stamp(k=4)
def cnt_add(tag, off):
    VM.wait(tag)
    e("s_mov_b64 exec, 1")
    e(f"ds_add_rtn_u32 v{vT+1}, v{vCN}, v{vONE} offset:{off}")
    e("s_mov_b64 exec, -1")
def cnt_flag(add):
    e("s_waitcnt lgkmcnt(0)"); LG.q = []
    e(f"v_readfirstlane_b32 s{sT0}, v{vT+1}")
    e(f"s_add_u32 s{sT1}, s{sFLG}, {add}")
    e(f"s_cmp_eq_u32 s{sT0}, 3")
    e(f"s_cselect_b32 s{sT1}, s{sT1}, {HREC}")
    flag_store(sT1)
for q in range(3):
    for g2 in range(2):
        bi = 2*q + g2
        if opt["ab"] and not opt["afs"] and bi == 4 + opt["afp"]: cnt_add("hstA", 0); stamp(k=7)
        if bi >= len(EMU): silu_block(q, g2)
        if opt["ab"] and not opt["afs"] and bi == 4 + opt["afp"]: cnt_flag(0); stamp(k=7)
stamp(); stamp(k=4)
if not opt["spec"]:
    for i, f in enumerate(take(opt["post"])):
        if i == opt["pae"]:
            e(f"buffer_load_dword v{vPOLL}, v{vPA}, {srd(sH)}, s{sPOL} offen sc1"); VM.issue("poll")
        f()
    if opt["wb"]:
        VM.wait("hst")
        e("buffer_wbl2 sc1"); VM.issue("hst")
    VM.wait("hst")
    stamp(k=4)
    if opt["sts"] == 4: VM.drain(); stamp(k=4)
    if opt["fb"]:
        e(f"s_cmp_eq_u32 s{sW}, 0")
        e(f"s_cselect_b32 s{sFLG}, s{sFLG}, {HREC}")
        if opt["own"]: LG.drain()
        e("s_barrier")
    else:
        e("s_mov_b64 exec, 1")
        e(f"ds_add_rtn_u32 v{vT+1}, v{vCN}, v{vONE} offset:{4 if opt['ab'] else 0}")
        e("s_mov_b64 exec, -1")
        if opt["ab"]: e(f"s_add_u32 s{sFLG}, s{sFLG}, {FLB}")
        for f in take(opt["mid"]): f()
        e("s_waitcnt lgkmcnt(0)")
        e(f"v_readfirstlane_b32 s{sT0}, v{vT+1}")
        e(f"s_cmp_eq_u32 s{sT0}, {3 if opt['nopoll'] < 2 else 9}")
        e(f"s_cselect_b32 s{sFLG}, s{sFLG}, {HREC}")
    if opt["nopoll"] == 3: e(f"s_mov_b32 s{sPOL}, {HREC}")
    flag_store(sFLG)
    if opt["fb"] == 2: e("s_barrier")
    stamp(); stamp(k=3)
else:
    for f in take(opt["fw"]): f()
    VM.wait("hst")
    e(f"s_lshl_b32 s{sT0}, s{sW}, 15")
    e(f"s_add_u32 s{sFLG}, s{sFLG}, s{sT0}")
    flag_store(sFLG)
    stamp()
HL = [(p, n) for p in range(4) for n in range(12)]
def hload():
    if HL:
        p, n = HL.pop(0)
        if opt["noh"] and (p*12+n) % opt["noh"]: return
        e(f"buffer_load_dwordx4 {vr(vH + (p*12+n)*4, 4)}, v{vHB+p}, {srd(sH)}, s{sSIG+n} offen {opt['haux'].replace('-','')}"); VM.issue(f"h{p}_{n}")
def mark(v):
    if not opt["stamps"] or opt["sts"]: return
    i = NST[0]; NST[0] += 1
    e(f"s_add_u32 s{72+2*i}, s74, {v}"); e(f"s_addc_u32 s{73+2*i}, s75, 0")
def allc_load():
    e("s_cmp_eq_u32 s2, 0")
    e(f"s_cselect_b32 s{sT0}, {RFL}, s{sH+2}")
    e(f"buffer_load_dword v{vAV}, v{vAC}, {srd(sH)}, s{sT0} offen sc1"); VM.issue("allc")
def p0_block(ML, pre):
    ML = list(ML)
    for f in ML[:pre]: f()
    del ML[:pre]
    stamp()
    for n in range(12):
        assert (0, n) not in HL and not any(getattr(f, "__defaults__", None) and f.__defaults__[0] == n for f in ML), n
        late = max((f"h0_{n}", f"w{n}"), key=lambda t: len(VM.q) - 1 - VM.q[::-1].index(t) if t in VM.q else -1)
        VM.wait(late)
        if n == 0 or n == 6: stamp(k=2)
        cnt = (len(ML) + 11 - n) // (12 - n)
        pos = {1: [opt["hj"]], 2: [1, 3], 3: [0, 2, 4], 4: [0, 1, 2, 3], 5: [0, 1, 2, 3, 4], 0: []}[cnt]
        for j in range(5):
            c = "0" if n == 0 else vr(vACC2+4*j, 4)
            e(f"v_mfma_f32_16x16x32_bf16 {vr(vACC2+4*j,4)}, {ar(n*20+4*j,4)}, {vr(vH+n*4,4)}, {c}")
            if j in pos: ML.pop(0)()
    assert not ML and not W2L
def late_path():
    if opt['skipw']: del W2L[-opt['skipw']:]
    if opt["sts"] == 6:
        stamp(k=6)
        i = 0
        while len(W2L) > opt["pollq"]:
            take(1)[0](); i += 1
            if i % 4 == 0 and i >= opt["dw"]:
                e(f"s_waitcnt vmcnt({opt['dw']})"); stamp(k=6)
    for f in take(max(0, len(W2L) - opt["pollq"])): f()
    stamp(k=3)
    if opt["sts"] == 3: VM.drain(); stamp(k=3)
    if opt["sts"] == 4: stamp(k=4); VM.drain(); stamp(k=4)
    if opt["sp"]:
        e(f"s_load_dword s6, s[12:13], s{sPOL} {opt['spg']}")
        e(f"s_add_u32 s{sT0}, s{sPOL}, 128")
        e(f"s_load_dword s7, s[12:13], s{sT0} {opt['spg']}")
        for f in take(len(W2L)): f()
        stamp(k=3)
        e("s_waitcnt lgkmcnt(0)")
        stamp(k=3)
        stamp()
        e(f"s_cmp_eq_u32 s6, s{sTAG}")
        e(f"s_cselect_b32 s6, s7, s6")
        e(f"s_cmp_eq_u32 s6, s{sTAG}")
        e("s_cbranch_scc1 L_hp_go")
        e(f"v_mov_b32 v{vPOLL}, s6")
        spin_check("hp", vPOLL, vPA, "poll", sPOL, opt["nopoll"])
    else:
        e(f"buffer_load_dword v{vPOLL}, v{vPA}, {srd(sH)}, s{sPOL} offen sc1"); VM.issue("poll")
        for f in take(len(W2L)): f()
        stamp(k=3)
        VM.wait("poll")
        stamp(k=3)
        stamp()
        spin_check("hp", vPOLL, vPA, "poll", sPOL, opt["nopoll"])
    stamp(); stamp(k=2); stamp(k=3)
    mark(1000)
    allc_load()
    p0_block([hload] * (opt["hpre"] + 12), opt["hpre"])
LATE = []
if opt["eq"]:
    import re
    for f in take(len(W2L) - opt["eq"]): f()
    e(f"buffer_load_dword v{vPOLL}, v{vPA}, {srd(sH)}, s{sPOL} offen sc1"); VM.issue("poll")
    for f in take(opt["ec"]): f()
    VM.wait("poll")
    e(f"v_cmp_ne_u32 vcc, s{sTAG}, v{vPOLL}")
    e("s_cmp_eq_u64 vcc, 0" if not opt["nopoll"] else "s_cmp_eq_u32 s2, s2")
    e("s_cbranch_scc0 L_late")
    sv = (list(VM.q), list(W2L), list(HL), NST[0])
    LATE = ["L_late:"] + capture(late_path) + ["s_branch L_p1"]
    endq, endn = list(VM.q), NST[0]
    VM.q, W2L[:], HL[:], NST[0] = sv
    stamp(); stamp(); stamp(k=2); mark(0)
    allc_load()
    m = re.match(r"h(\d+)w(\d+)", opt["eil"])
    ML = []; nh = 12; ws = take(len(W2L))
    while nh or ws:
        k = min(nh, int(m.group(1))); ML += [hload] * k; nh -= k
        k = int(m.group(2)); ML += ws[:k]; del ws[:k]
    ML += [hload] * opt["hpre"]
    p0_block(ML, opt["epre"])
    assert NST[0] == endn, (NST[0], endn)
    k = min(len(VM.q), len(endq))
    assert VM.q[-k:] == endq[-k:] and all(t.startswith("h1") for t in VM.q + endq), (VM.q, endq)
    if len(endq) > len(VM.q): VM.q = endq
    e("L_p1:")
elif opt["spec"]:
    allc_load()
    for f in take(len(W2L) - opt["wl"]): f()
    stamp(); stamp(); stamp(k=2); mark(1000)
    ws = take(len(W2L))
    p0_block([hload] * opt["hpre"] + merge(ws, [hload] * 12) if ws else [hload] * (opt["hpre"] + 12), opt["hpre"])
elif not opt["ab"] and not opt["dfw"]:
    late_path()
def allc_check():
    e("s_cmp_lg_u32 s2, 0")
    e("s_cbranch_scc1 L_ac_go")
    assert "allc" not in VM.q
    spin_check("ac", vAV, vAC, "allc")
def phase2_new():
    B1, B2, MA = opt["b1"], opt["b2"], opt["madd"]
    for p in range(1, 4):
        ac = vACC2 + (p % 2) * 20
        pa = vACC2 + ((p-1) % 2) * 20
        slots = {(n, j): [] for n in range(12) for j in range(5)}
        if p > 0:
            for jj, pos in enumerate([(1, 0), (1, 2), (1, 4), (2, 1), (2, 3)]):
                def w(jj=jj):
                    e(f"ds_write_b128 v{vRW}, {vr(pa+4*jj,4)} offset:{(p-1)*5120 + jj*1024}"); LG.issue("red")
                slots[pos].append(w)
        def rd(pp, j, dst):
            def f():
                e(f"ds_read_b128 {vr(dst, 4)}, v{vRR+pp} offset:{j*1024}"); LG.issue(f"rr{pp}{j}")
            return f
        if p == 2:
            k = 0
            for j in range(5):
                for pp in range(2):
                    slots[(B1 + k // 5, k % 5)].append(rd(pp, j, vH + pp*20 + 4*j)); k += 1
            assert B1 + 3 <= 8
            for i in range(20):
                def a(i=i):
                    LG.wait(f"rr1{i//4}")
                    e(f"v_add_f32 v{pa+i}, v{vH+i}, v{vH+20+i}")
                slots[(8 + i // 5, i % 5)].append(a)
        if p == 3:
            for j in range(5): slots[(B2, j)].append(rd(2, j, vH + 4*j))
        for n in range(12):
            if (p == 2 and n == B1) or (p == 3 and n == B2):
                if p == 3: allc_check(); stamp(k=2)
                LG.drain(); e("s_barrier")
                if p == 3: stamp(k=2)
            VM.wait(f"h{p}_{n}")
            if n == 0 or (n == 6 and p < 3): stamp(k=2)
            def madd(j):
                LG.wait(f"rr2{j}")
                for r in range(4): e(f"v_add_f32 v{ac+4*j+r}, v{ac+4*j+r}, v{vH+4*j+r}")
            mid = p == 3 and n == MA
            if mid: e("s_nop 3"); madd(0)
            for j in range(5):
                c = "0" if n == 0 and p < 3 else vr(ac+4*j, 4)
                if mid:
                    if j < 4: madd(j+1)
                    else: e("s_nop 0")
                e(f"v_mfma_f32_16x16x32_bf16 {vr(ac+4*j,4)}, {ar(n*20+4*j,4)}, {vr(vH+(p*12+n)*4,4)}, {c}")
                if j == opt["hj"]: hload()
                for f in slots[(n, j)]: f()
    stamp(); stamp(k=2)
    ac = vACC2 + 20
    pk = vH + 64
    def cvt(j):
        for r in range(2): e(f"v_cvt_pk_bf16_f32 v{pk+2*j+r}, v{ac+4*j+2*r}, v{ac+4*j+2*r+1}")
    def swp(b):
        e(f"v_permlane32_swap_b32 v{pk+4*b}, v{pk+4*b+2}")
        e(f"v_permlane32_swap_b32 v{pk+4*b+1}, v{pk+4*b+3}")
        e(f"buffer_store_dwordx4 {vr(pk+4*b,4)}, v{vOUT}, {srd(sOUT)}, s{sOB} offen offset:{64*b} {opt['outaux']}")
    e("s_nop 3")
    cvt(0); cvt(1); cvt(2); swp(0); cvt(3); cvt(4); swp(1)
    e(f"buffer_store_dwordx2 {vr(pk+8,2)}, v{vOUT2}, {srd(sOUT)}, s{sOB} offen offset:128 {opt['outaux']}")
def phase2_old():
    for p in range(4):
        ac = vACC2 + (p % 2) * 20
        for n in range(12):
            VM.wait(f"h{p}_{n}")
            if n == 0 or (n == 6 and p < 3): stamp(k=2)
            if n == 0: stamp(k=3)
            for j in range(5):
                c = "0" if n == 0 else vr(ac+4*j, 4)
                if j >= opt["nomf2"]: e(f"v_mfma_f32_16x16x32_bf16 {vr(ac+4*j,4)}, {ar(n*20+4*j,4)}, {vr(vH+(p*12+n)*4,4)}, {c}")
                if j == opt["hj"]: hload()
                if p > 0 and n >= 2 and n < 7 and j == 3:
                    pa = vACC2 + ((p-1) % 2) * 20; jj = n - 2
                    e(f"ds_write_b128 v{vRW}, {vr(pa+4*jj,4)} offset:{(p-1)*5120 + jj*1024}"); LG.issue("red")
            if p == 3 and n == 7:
                e("s_cmp_lg_u32 s2, 0")
                e("s_cbranch_scc1 L_ac_go")
                assert "allc" not in VM.q
                spin_check("ac", vAV, vAC, "allc")
                stamp(k=2)
                LG.drain(); e("s_barrier")
                stamp(k=2)
                for pp in range(3):
                    for j in range(5):
                        e(f"ds_read_b128 {vr(vH + (pp*5+j)*4, 4)}, v{vRR+pp} offset:{j*1024}"); LG.issue("rr")
            if p == 3 and n == 9:
                LG.drain()
                for i in range(20): e(f"v_add_f32 v{vH+i}, v{vH+i}, v{vH+20+i}")
            if p == 3 and n == 10:
                for i in range(20): e(f"v_add_f32 v{vH+i}, v{vH+i}, v{vH+40+i}")
    stamp(); stamp(k=2)
    ac = vACC2 + 20
    e("s_nop 3")
    for j in range(5):
        for r in range(4): e(f"v_add_f32 v{vH+4*j+r}, v{vH+4*j+r}, v{ac+4*j+r}")
    pk = vH + 64
    for j in range(5):
        for r in range(2): e(f"v_cvt_pk_bf16_f32 v{pk+2*j+r}, v{vH+4*j+2*r}, v{vH+4*j+2*r+1}")
    e("s_nop 1")
    for b in range(2):
        e(f"v_permlane32_swap_b32 v{pk+4*b}, v{pk+4*b+2}")
        e(f"v_permlane32_swap_b32 v{pk+4*b+1}, v{pk+4*b+3}")
    for b in range(2):
        e(f"buffer_store_dwordx4 {vr(pk+4*b,4)}, v{vOUT}, {srd(sOUT)}, s{sOB} offen offset:{64*b} {opt['outaux']}")
    e(f"buffer_store_dwordx2 {vr(pk+8,2)}, v{vOUT2}, {srd(sOUT)}, s{sOB} offen offset:128 {opt['outaux']}")
def phase2_ab():
    OA = opt["owna"]
    NE = opt["ne"]; NL = 12 - NE
    items = [(p, n) for p in range(3) for n in range(NE)] + [(3, n) for n in range(OA)]
    NA = len(items)
    items += [(p, n) for p in range(3) for n in range(NE, 12)] + [(3, n) for n in range(OA, 12)]
    NS = 36; vH2 = 112
    acc = lambda p, j: 24 + 20*p + 4*j
    hp = opt["hpre"]
    HI = list(range(48))
    seen = set()
    I0 = 0
    def own_mf(k):
        if not opt["own"] or k != opt["omp"]: return
        VM.wait("w0")
        for p in range(4):
            LG.wait(f"or{p}")
            for j in range(5):
                e(f"v_mfma_f32_16x16x32_bf16 {vr(acc(p,j),4)}, {ar(4*j,4)}, {vr(vH2+p*4,4)}, 0")
    if opt["own"]:
        items = [(p, 0) for p in range(4)] + [(p, n) for p in range(4) for n in range(1, 12)]
        HI = HI[4:]; I0 = 4; seen = {0, 1, 2, 3}
        for p in range(4):
            e(f"ds_read_b128 {vr(vH2+p*4, 4)}, v{vOW+2} offset:{p*1024}"); LG.issue(f"or{p}")
    def hl():
        if not HI: return
        i = HI.pop(0); p, n = items[i]
        if i == NA and not opt["dfw"]:
            spin_check("hpb", vPOLL, vPA, "pollB", sPOL, opt["nopoll"]); stamp(k=7)
        e(f"buffer_load_dwordx4 {vr(vH2 + (i % NS)*4, 4)}, v{vHB+p}, {srd(sH)}, s{sSIG+n} offen {opt['haux'].replace('-','')}"); VM.issue(f"h{i}")
    if opt["pae"] < 0:
        for f in take(max(0, len(W2L) - opt["pa"])): f()
        e(f"buffer_load_dword v{vPOLL}, v{vPA}, {srd(sH)}, s{sPOL} offen sc1"); VM.issue("poll")
        for f in take(opt["ec"]): f()
    own_mf(0)
    VM.wait("poll")
    stamp(); stamp(k=7)
    spin_check("hp", vPOLL, vPA, "poll", sPOL, opt["nopoll"])
    stamp(); stamp(k=2); stamp(k=7)
    e(f"s_add_u32 s{sPOL}, s{sPOL}, {FLB}")
    allc_load()
    for _ in range(hp): hl()
    for f in take(opt["wsk"]): f()
    own_mf(1)
    stamp()
    slots = {(i, j): [] for i in range(48) for j in range(5)}
    if opt["own"]: NA = 37
    L3 = NA + 3*NL
    for p in range(3):
        i0 = NA + NL*(p+1) if NL else NE*(p+1)
        if opt["own"]: i0 = 4 + 11*(p+1)
        for jj, (di, j) in enumerate([(1, 0), (1, 2), (1, 4), (2, 1), (2, 3)]):
            def w(jj=jj, p=p):
                e(f"ds_write_b128 v{vRW}, {vr(acc(p,jj),4)} offset:{p*5120 + jj*1024}"); LG.issue("red")
            slots[(i0 + di, j)].append(w)
    IB = L3 + opt["rb"]
    k = 0
    rest = 48 - IB
    assert rest >= 1
    rds = []
    for j in range(5):
        for pp in range(3):
            def f(pp=pp, j=j):
                e(f"ds_read_b128 {vr(acc(pp,j), 4)}, v{vRR+pp} offset:{j*1024}"); LG.issue(f"rr{j}")
            rds.append(f)
    per = 1 if rest >= 7 else 3
    for k, f in enumerate(rds): slots[(IB + k // per // 5, k // per % 5)].append(f)
    adds = []
    for j in range(5):
        for pp in (1, 2):
            for r in (0, 2):
                def a(j=j, pp=pp, r=r):
                    LG.wait(f"rr{j}")
                    if opt["epk"]: e(f"v_pk_add_f32 {vr(acc(0,j)+r,2)}, {vr(acc(0,j)+r,2)}, {vr(acc(pp,j)+r,2)}")
                    else:
                        for z in range(2): e(f"v_add_f32 v{acc(0,j)+r+z}, v{acc(0,j)+r+z}, v{acc(pp,j)+r+z}")
                adds.append(a)
    MA = 47 if rest >= 7 else None
    if MA:
        a0 = (MA - 3) * 5 - 5
        for k, f in enumerate(adds): slots[((a0 + k) // 5, (a0 + k) % 5)].append(f)
    for i, (p, n) in enumerate(items):
        if i < I0: continue
        if i == IB:
            allc_check(); stamp(k=2)
            LG.drain(); e("s_barrier")
            stamp(k=2)
        assert i not in HI and not any(f.__defaults__[0] == n for f in W2L), (i, n)
        late = max((f"h{i}", f"w{n}"), key=lambda t: len(VM.q) - 1 - VM.q[::-1].index(t) if t in VM.q else -1)
        VM.wait(late)
        if i % 8 == 0: stamp(k=2)
        def madd(j):
            if opt["epk"]:
                for r in (0, 2): e(f"v_pk_add_f32 {vr(acc(3,j)+r,2)}, {vr(acc(3,j)+r,2)}, {vr(acc(0,j)+r,2)}")
            else:
                for r in range(4): e(f"v_add_f32 v{acc(3,j)+r}, v{acc(3,j)+r}, v{acc(0,j)+r}")
        mid = i == MA
        if mid: e("s_nop 3"); madd(0)
        for j in range(5):
            c = vr(acc(p,j), 4) if p in seen else "0"
            if mid:
                if j < 4: madd(j+1)
                else: e("s_nop 1")
            e(f"v_mfma_f32_16x16x32_bf16 {vr(acc(p,j),4)}, {ar(n*20+4*j,4)}, {vr(vH2+(i % NS)*4,4)}, {c}")
            if j == opt["hj"]: hl()
            if j == 3 and i % opt["wr"] == 0:
                for f in take(1): f()
            if j == 4 and i == opt["pb"] and not opt["dfw"]:
                e(f"buffer_load_dword v{vPOLL}, v{vPA}, {srd(sH)}, s{sPOL} offen sc1"); VM.issue("pollB")
            for f in slots[(i, j)]: f()
        seen.add(p)
    stamp(); stamp(k=2); stamp(k=7)
    ac = acc(3, 0)
    pk = vH2 + 64
    if not MA:
        for f in adds: f()
        for j in range(5): madd(j)
    def cvt(j):
        for r in range(2): e(f"v_cvt_pk_bf16_f32 v{pk+2*j+r}, v{ac+4*j+2*r}, v{ac+4*j+2*r+1}")
    def swp(b):
        e(f"v_permlane32_swap_b32 v{pk+4*b}, v{pk+4*b+2}")
        e(f"v_permlane32_swap_b32 v{pk+4*b+1}, v{pk+4*b+3}")
        e(f"buffer_store_dwordx4 {vr(pk+4*b,4)}, v{vOUT}, {srd(sOUT)}, s{sOB} offen offset:{64*b} {opt['outaux']}")
    e("s_nop 3")
    cvt(0); cvt(1); cvt(2); swp(0); cvt(3); cvt(4); swp(1)
    e(f"buffer_store_dwordx2 {vr(pk+8,2)}, v{vOUT2}, {srd(sOUT)}, s{sOB} offen offset:128 {opt['outaux']}")
assert opt["tail"]
if opt["ab"] or opt["dfw"]: phase2_ab()
else: phase2_new()
e(f"s_or_b32 s{sT0}, s{sW}, s2")
e(f"s_cmp_lg_u32 s{sT0}, 0")
e("s_cbranch_scc1 L_nobump")
e(f"s_add_u32 s{sE}, s{sE}, 1")
e(f"v_mov_b32 v{vT}, s{sE}")
e(f"s_mov_b32 s{sT0}, {EP}")
e("s_mov_b64 exec, 1")
e(f"buffer_store_dword v{vT}, off, {srd(sH)}, s{sT0}")
e("s_mov_b64 exec, -1")
e("L_nobump:")
if opt["stamps"]:
    e("s_waitcnt vmcnt(0)")
    stamp(k=-1); stamp(True)
    ns = NST[0]
    assert 72 + 2*ns <= 102
    e("s_waitcnt lgkmcnt(0)")
    if opt["rt"]:
        e(f"s_lshl_b32 s{sT0}, s2, 2")
        e(f"s_add_u32 s{sT0}, s{sT0}, s{sW}")
        e(f"s_mul_i32 s{sT0}, s{sT0}, {ns*8}")
    else:
        e(f"s_cmp_lg_u32 s{sW}, {opt['stamps']-1}")
        e("s_cbranch_scc1 L_end")
        e(f"s_mul_i32 s{sT0}, s2, {ns*8}")
    e("s_mov_b64 exec, 1")
    e(f"s_add_u32 s{sT0}, s{sT0}, {0x8000000 - (opt['wso'] << 20)}")
    e(f"v_mov_b32 v{vT}, s{sT0}")
    for i in range(ns):
        e(f"v_mov_b32 v24, s{72+2*i}"); e(f"v_mov_b32 v25, s{73+2*i}")
        e(f"global_store_dwordx2 v{vT}, v[24:25], s[12:13] offset:{i*8}"); e("s_nop 1")
    sys.stderr.write(f"nstamps {ns}\n")
if LATE:
    e("s_endpgm")
    O.extend(LATE)
e("L_end:")

hdr = f"""; FFN out = silu(x @ w1) @ w2, one launch, 256 workgroups (one per CU).
; @launch grid=(256,1,1) block=(256,1,1) lds=163840
.amdgcn_target "amdgcn-amd-amdhsa--gfx950"
.text
.globl {NAME}
.p2align 8
.type {NAME},@function
{NAME}:
"""
ftr = f"""s_endpgm
.section .rodata,"a"
.p2align 6
.amdhsa_kernel {NAME}
  .amdhsa_next_free_vgpr 512
  .amdhsa_next_free_sgpr 102
  .amdhsa_accum_offset 256
  .amdhsa_group_segment_fixed_size 0
  .amdhsa_kernarg_size 48
  .amdhsa_user_sgpr_count 2
  .amdhsa_user_sgpr_kernarg_segment_ptr 1
  .amdhsa_system_sgpr_workgroup_id_x 1
.end_amdhsa_kernel
"""
body = "\n".join(("" if l.endswith(":") else "    ") + l.rstrip() for l in O)
open(sys.argv[1], "w").write(hdr + body + "\n" + ftr)
```

```python
import sys
NAME = "standalone__dense_activation_silu__prompt_kernel"
opt = dict(enc=0, w0p=0, own=0, omp=0, dfw=0, ne=8, clr=-1, clrs='', spec=0, fw=12, wl=0, rsp=99, rrp=0, fb=0, tch=0, la=4, tp0=0, tpos=8, th=1, ns=3, n7=0, rcs=8, epk=1, fk=0, ost=0, pae=-1, wsk=0, afs=0, ab=0, afp=0, pa=20, pb=6, wr=1, owna=0, rb=4, skipw=0, m16=0, rtm=0, po="", rsaux="sc1", emu="", emv=1, fs=128, dw=8, eq=0, ec=4, epre=16, eil="h12w9", pfm=3, stamps=0, rot=1, rot2=1, pf=1, outaux="", map=2, raux="nt", xaux="", haux="sc1", hsaux="sc1", hs2="", wb=0, wso=0, sp=0, spg="", nord=0, nomf1=0, norp=0, pk=1, tail=1, b1=4, b2=4, madd=8, pt=0, fst=0, tab="x037", nost=0, novalu=0, nomf2=0, noh=0, hj=1, w2aux="sc1", w1aux="",
           sa=0, ma=10, sb=0, mb=10, mx=0, n8=8, n9=8, nb=0, post=0, pollq=8, hpre=8, sep=0, sts=0, rpos=0, rls=0, rjs=2, rpp=0, rps=7, rck=0, nopoll=0, rfs=4, sl=0, head=50, nf0=4, pre3=0, rt=0, own2=2, ntst=10, mid=2, xlin=0, nor=0)
for a in sys.argv[2:]:
    k, v = a.split("=")
    assert k in opt, k
    opt[k] = int(v) if v.lstrip("-").isdigit() else v.replace("_", " ")
if opt["own"]: opt["dfw"] = 1; opt["ne"] = 12; assert opt["fb"] and opt["own2"] == 2
O = []
def e(s): O.append(s)
NST = [0]
def stamp(rt=False, k=0):
    if not opt["stamps"]: return
    if not rt and NST[0] > 1 and k != opt["sts"] and k != -1: return
    i = NST[0]; NST[0] += 1
    e(f"s_memrealtime s[{72+2*i}:{73+2*i}]" if rt or opt["rt"] or opt["rtm"] else f"s_memtime s[{72+2*i}:{73+2*i}]")

class Q:
    def __init__(s, name, mx): s.name = name; s.mx = mx; s.q = []
    def issue(s, tag): s.q.append(tag)
    def wait(s, tag):
        if tag not in s.q: return
        i = len(s.q) - 1 - s.q[::-1].index(tag)
        n = min(len(s.q) - 1 - i, s.mx)
        e(f"s_waitcnt {s.name}({n})")
        s.q = s.q[len(s.q)-n:] if n else []
    def drain(s):
        e(f"s_waitcnt {s.name}(0)"); s.q = []
VM = Q("vmcnt", 63); LG = Q("lgkmcnt", 15)

FL = 0x600000; EP = 0x608000; RFL = 0x610000; W2F = 0x620000; HREC = 0x800000
if opt['spec']: FL = 0x800000; HREC = 0x820000
FS = opt["fs"]
if FS > 128: FL = 0x800000; HREC = FL + 256 * FS
FLB = 0x200000
if opt["ab"]: HREC = 0x808000
RED = 98304; RB = 98304 if opt['ns'] == 3 else 131072; CNT = 159744
NSL = opt['ns']
sX, sW1, sW2, sOUT, sH = 16, 20, 24, 28, 32
(sW, sMT, sFT, sKX, sKW, sXB, sWB, sXE, sM0, sT0, sT1, sE, sTAG, sHS, sHS2, sFLG, sPOL, sW2B, sOWN, sROT,
 sRS, sRD, sWO, sL2E) = range(36, 60)
sSIG = 60
sPK = 4; sOB = 3; sRFL = 14; sSPIN = 15
vL16 = 1; vL16b = 2; vOUT = 3; vOUT2 = 4; vRW = 5; vRP = 6; vHS = 7
vPOLL = 8; vL4 = 9; vPA = 19
vRR = 10
vHB = 13
vT = 17
vCN = 20; vONE = 21; vAV = 22; vAC = 23
vDX = 24; vDW = 26; vDR = 32
vA = 34; vB = 36
vRA = 44
vTM = 46
vACC1 = 64; vAF = 112; vBF = 160; vS = 176; vRF = 192
vH = 64; vACC2 = 24; vOW = 240; OWN = 32768; sHS1 = 6
def srd(r): return f"s[{r}:{r+3}]"
def vr(r, n): return f"v[{r}:{r+n-1}]"
def ar(r, n): return f"a[{r}:{r+n-1}]"
def capture(fn):
    global O
    sv = O; O = []; fn(); r = O; O = sv; return r

e("s_cmp_ge_u32 s2, 256")
e("s_cbranch_scc1 L_end")
stamp(True); stamp()
e("s_load_dwordx8 s[4:11], s[0:1], 0")
e("s_load_dwordx2 s[12:13], s[0:1], 40")
L, Wv = vTM, vTM+1
t0, t1, t2, t3 = vTM+2, vTM+3, vTM+4, vTM+5
e(f"v_and_b32 v{L}, 63, v0")
e(f"v_lshrrev_b32 v{Wv}, 6, v0")
e(f"v_lshlrev_b32 v{vL16}, 4, v{L}")
e(f"v_readfirstlane_b32 s{sW}, v{Wv}")
if opt["pf"]:
    e("s_getpc_b64 s[14:15]")
    e("L_pc:")
    e(f"s_lshr_b32 s{sT0}, s2, 3")
    e(f"s_and_b32 s{sT0}, s{sT0}, {opt['pfm']}")
    e(f"s_lshl_b32 s{sT0}, s{sT0}, 12")
    e(f"v_lshl_add_u32 v{t0}, v0, 4, s{sT0}")
    e(f"v_min_u32 v{t0}, L_end-L_pc-16, v{t0}")
    e(f"global_load_dwordx4 v[252:255], v{t0}, s[14:15]")
    VM.issue("pf")
fa = opt["map"]
e(f"s_and_b32 s{sT0}, s2, 7")
e(f"s_lshr_b32 s{sT1}, s2, 3")
e(f"s_and_b32 s{sFT}, s{sT1}, {(1<<fa)-1}")
e(f"s_lshr_b32 s{sMT}, s{sT1}, {fa}")
if opt["rot"] == 3:
    tb = str(opt["tab"]).lstrip("x")
    tv = sum(int(c) << (4*i) for i, c in enumerate((tb * 16)[:16]))
    e(f"s_mul_i32 s{sKX}, s{sMT}, {opt['ma']}")
    e(f"s_mul_i32 s{sT1}, s{sFT}, {opt['mb']}")
    e(f"s_add_u32 s{sKX}, s{sKX}, s{sT1}")
    e(f"s_lshl_b32 s{sKX}, s{sKX}, 2")
    e(f"s_mov_b32 s{sSIG}, {tv & 0xffffffff}")
    e(f"s_mov_b32 s{sSIG+1}, {tv >> 32}")
    e(f"s_lshr_b64 s[{sSIG}:{sSIG+1}], s[{sSIG}:{sSIG+1}], s{sKX}")
    e(f"s_and_b32 s{sKX}, s{sSIG}, 15")
elif opt["rot"]:
    e(f"s_lshr_b32 s{sKX}, s{sMT}, {opt['sa']}")
    e(f"s_mul_i32 s{sKX}, s{sKX}, {opt['ma']}")
    e(f"s_lshr_b32 s{sT1}, s{sFT}, {opt['sb']}")
    e(f"s_mul_i32 s{sT1}, s{sT1}, {opt['mb']}")
    e(f"s_add_u32 s{sKX}, s{sKX}, s{sT1}")
    if opt['mx']:
        e(f"s_mul_i32 s{sT1}, s{sT0}, {opt['mx']}")
        e(f"s_add_u32 s{sKX}, s{sKX}, s{sT1}")
    e(f"s_lshr_b32 s{sKX}, s{sKX}, 2")
    e(f"s_mul_i32 s{sT1}, s{sKX}, 205")
    e(f"s_lshr_b32 s{sT1}, s{sT1}, 11")
    e(f"s_mul_i32 s{sT1}, s{sT1}, 10")
    e(f"s_sub_u32 s{sKX}, s{sKX}, s{sT1}")
else:
    e(f"s_mov_b32 s{sKX}, 0")
if opt["ab"]:
    e(f"s_lshl_b32 s{sROT}, s{sMT}, 2")
elif opt["rot2"] == 3:
    e(f"s_and_b32 s{sROT}, s{sMT}, 1")
    e(f"s_mul_i32 s{sROT}, s{sROT}, 6")
elif opt["rot2"] == 4:
    e(f"s_lshr_b32 s{sROT}, s{sMT}, 1")
    e(f"s_mul_i32 s{sROT}, s{sROT}, 3")
elif opt["rot2"] == 5:
    e(f"s_and_b32 s{sROT}, s{sMT}, 3")
elif opt["rot2"] == 6:
    e(f"s_mul_i32 s{sROT}, s{sMT}, 3")
    e(f"s_lshr_b32 s{sROT}, s{sROT}, 3")
    e(f"s_lshl_b32 s{sROT}, s{sROT}, 2")
elif opt["rot2"] == 2:
    e(f"s_and_b32 s{sROT}, s{sMT}, 3")
    e(f"s_mul_i32 s{sROT}, s{sROT}, 3")
elif opt["rot2"]:
    e(f"s_mul_i32 s{sROT}, s{sMT}, 12")
    e(f"s_lshr_b32 s{sROT}, s{sROT}, {5-fa}")
else:
    e(f"s_mov_b32 s{sROT}, 0")
e(f"s_and_b32 s{sT1}, s{sT0}, {(8>>fa)-1}")
e(f"s_lshl_b32 s{sT1}, s{sT1}, {fa}")
e(f"s_add_u32 s{sFT}, s{sFT}, s{sT1}")
e(f"s_lshr_b32 s{sT1}, s{sT0}, {3-fa}")
e(f"s_lshl_b32 s{sT1}, s{sT1}, {5-fa}")
e(f"s_add_u32 s{sMT}, s{sMT}, s{sT1}")
e(f"s_mul_i32 s{sXB}, s{sMT}, 81920")
e(f"s_mul_i32 s{sWB}, s{sFT}, 384")
e(f"s_add_u32 s{sXE}, s{sXB}, 1280")
e(f"s_mul_i32 s{sKW}, s{sKX}, {64*3072}")
e(f"s_add_u32 s{sKW}, s{sKW}, s{sWB}")
e(f"s_lshl_b32 s{sKX}, s{sKX}, 7")
e(f"s_add_u32 s{sKX}, s{sKX}, s{sXB}")
G = vTM+6
e(f"v_lshrrev_b32 v{G}, 4, v{L}")
e(f"v_lshrrev_b32 v{t0}, 3, v{L}")
e(f"v_lshl_add_u32 v{t0}, v{Wv}, 4, v{t0}")
e(f"v_mul_u32_u24 v{t0}, 1280, v{t0}")
e(f"v_and_b32 v{t1}, 7, v{L}")
e(f"v_xor_b32 v{t1}, v{t1}, v{G}")
e(f"v_lshl_add_u32 v{vDX}, v{t1}, 4, v{t0}")
e(f"v_xor_b32 v{t1}, 4, v{t1}")
e(f"v_lshl_add_u32 v{vDX+1}, v{t1}, 4, v{t0}")
e(f"v_add_u32 v{vDX+1}, {8*1280-1024}, v{vDX+1}")
if opt["xlin"]:
    e(f"v_lshl_add_u32 v{vDX}, v{Wv}, 11, v{vL16}")
    e(f"v_mov_b32 v{vDX+1}, v{vDX}")
    e(f"s_and_b32 s{sT0}, s{sFT}, 3")
    e(f"s_mul_i32 s{sT0}, s{sT0}, {opt['xlin']}")
    e(f"s_lshr_b32 s{sT0}, s{sT0}, 2")
    e(f"s_lshl_b32 s100, s{sT0}, 13")
    e(f"s_add_u32 s100, s100, s{sXB}")
    e(f"s_add_u32 s101, s{sXB}, 81920")
e(f"v_mul_u32_u24 v{t3}, {16*3072}, v{Wv}")
for i in range(3):
    if i: e(f"v_add_u32 v{t0}, {64*i}, v{L}")
    src = t0 if i else L
    e(f"v_mul_u32_u24 v{t1}, 2731, v{src}")
    e(f"v_lshrrev_b32 v{t1}, 16, v{t1}")
    e(f"v_mul_u32_u24 v{t2}, 24, v{t1}")
    e(f"v_sub_u32 v{t0}, v{src}, v{t2}")
    e(f"v_and_b32 v{t2}, 2, v{t1}")
    e(f"v_lshlrev_b32 v{t2}, 1, v{t2}")
    e(f"v_xor_b32 v{t0}, v{t0}, v{t2}")
    e(f"v_mul_u32_u24 v{t1}, 3072, v{t1}")
    e(f"v_lshl_add_u32 v{t0}, v{t0}, 4, v{t1}")
    e(f"v_add_u32 v{t0}, v{t0}, v{t3}")
    if i: e(f"v_subrev_u32 v{vDW+i}, {i*1024}, v{t0}")
    else: e(f"v_mov_b32 v{vDW}, v{t0}")
    e(f"v_add_u32 v{vDW+3+i}, {8*3072 - ((i+3)%4)*1024}, v{t0}")
vTC = 250
if opt["tch"]:
    e(f"v_lshrrev_b32 v{t0}, 1, v{L}")
    e(f"v_mul_u32_u24 v{t1}, 1280, v{t0}")
    e(f"v_mul_u32_u24 v{t2}, 43, v{t0}")
    e(f"v_lshrrev_b32 v{t2}, 7, v{t2}")
    e(f"v_mul_u32_u24 v{t2}, {3072-384}, v{t2}")
    e(f"v_lshl_add_u32 v{t2}, v{t0}, 7, v{t2}")
    e(f"s_and_b32 s{sT0}, s{sFT}, 3")
    e(f"s_lshl_b32 s{sT0}, s{sT0}, 1")
    e(f"s_lshr_b32 s{sT1}, s{sW}, 1")
    e(f"s_add_u32 s{sT0}, s{sT0}, s{sT1}")
    e(f"s_mul_i32 s{sT0}, s{sT0}, {8*1280}")
    e(f"s_and_b32 s{sWO}, s{sMT}, 7")
    e(f"s_lshl_b32 s{sWO}, s{sWO}, 1")
    e(f"s_add_u32 s{sWO}, s{sWO}, s{sT1}")
    e(f"s_mul_i32 s{sWO}, s{sWO}, {4*3072}")
    e(f"s_add_u32 s{sT1}, s{sWB}, {640*3072}")
    e(f"s_bitcmp1_b32 s{sW}, 0")
    e(f"s_cselect_b64 vcc, -1, 0")
    e(f"v_cndmask_b32 v{vTC}, v{t1}, v{t2}, vcc")
    e(f"s_cselect_b32 s{sT0}, s{sWO}, s{sT0}")
    e(f"s_mov_b32 s{sWO}, {0xffff if opt['th'] else 0x5555}")
    e(f"s_cselect_b32 s{sWO}, {0xffffff if opt['th'] else 0x555555}, s{sWO}")
    e(f"s_cselect_b32 s{sHS}, s{sKW}, s{sKX}")
    e(f"s_movk_i32 s{sHS2}, 128")
    e(f"s_cselect_b32 s{sHS2}, {64*3072}, s{sHS2}")
    e(f"v_and_b32 v{t0}, 1, v{L}")
    e(f"v_lshl_add_u32 v{vTC}, v{t0}, 6, v{vTC}")
    e(f"v_add_u32 v{vTC}, s{sT0}, v{vTC}")
    e(f"s_cselect_b32 vcc_lo, s{sT1}, s{sXE}")
    e(f"s_cselect_b32 vcc_hi, s{sWB}, s{sXB}")
e(f"s_lshl_b32 s{sM0}, s{sW}, 13")
CLR = opt["clr"] >= 0 or opt["clrs"]
sCL = sHS
vNAN = 244
if CLR:
    e(f"s_lshl_b32 s{sT0}, s{sMT}, 2")
    e(f"s_lshr_b32 s{sT1}, s{sFT}, 1")
    e(f"s_add_u32 s{sT0}, s{sT0}, s{sT1}")
    e(f"s_lshl_b32 s{sT0}, s{sT0}, 2")
    e(f"s_add_u32 s{sT0}, s{sT0}, s{sW}")
    e(f"s_lshl_b32 s{sT0}, s{sT0}, 1")
    e(f"s_and_b32 s{sT1}, s{sFT}, 1")
    e(f"s_add_u32 s{sT0}, s{sT0}, s{sT1}")
    e(f"s_mul_i32 s{sT0}, s{sT0}, 6144")
    e(f"v_add_u32 v248, s{sT0}, v{vL16}")
    e(f"v_add_u32 v249, 3072, v248")
    for r in range(4): e(f"v_mov_b32 v{vNAN+r}, -1")
def clr_ops():
    def mk(i):
        def f():
            e(f"buffer_store_dwordx4 {vr(vNAN,4)}, v{248 + i//3}, {srd(sH)}, 0 offen offset:{(i%3)*1024} sc1"); VM.issue("clr")
        return f
    return [mk(i) for i in range(6)]
CLO = clr_ops()
e(f"s_mov_b32 s{sSPIN}, {EP}")
for r, n in ((sX, 2621440), (sW1, 1966080), (sW2, 1966080), (sOUT, 2621440), (sH, HREC)):
    e(f"s_mov_b32 s{r+2}, {n}"); e(f"s_mov_b32 s{r+3}, 0x20000")
e("s_waitcnt lgkmcnt(0)")
if opt["wso"]:
    e(f"s_add_u32 s12, s12, {opt['wso'] << 20}"); e("s_addc_u32 s13, s13, 0")
for r, p in ((sW2, 8), (sX, 4), (sW1, 6), (sOUT, 10), (sH, 12)):
    e(f"s_mov_b64 s[{r}:{r+1}], s[{p}:{p+1}]")
if opt["tch"]:
    e(f"s_bitcmp1_b32 s{sW}, 0")
    e(f"s_cselect_b64 s[8:9], s[6:7], s[4:5]")
    e(f"s_cselect_b32 s10, s{sW1+2}, s{sX+2}")
    e("s_mov_b32 s11, 0x20000")
    e(f"s_mov_b32 s6, s{sHS}")
    e(f"s_mov_b32 s7, s{sHS2}")
def touch():
    e("s_add_u32 s6, s6, s7")
    e("s_cmp_eq_u32 s6, vcc_lo")
    e("s_cselect_b32 s6, vcc_hi, s6")
    e(f"s_mov_b32 exec_lo, s{sWO}")
    e("s_mov_b32 exec_hi, 0")
    e(f"buffer_load_dword v251, v{vTC}, s[8:11], s6 offen"); VM.issue("tch")
    e("s_mov_b64 exec, -1")
stamp()
e(f"s_load_dword s{sE}, s[12:13], s{sSPIN}")

def adv_k():
    if opt["xlin"]:
        e(f"s_add_u32 s100, s100, 8192")
        e(f"s_cmp_eq_u32 s100, s101")
        e(f"s_cselect_b32 s100, s{sXB}, s100")
    e(f"s_add_u32 s{sKX}, s{sKX}, 128")
    e(f"s_add_u32 s{sKW}, s{sKW}, {64*3072}")
    e(f"s_cmp_eq_u32 s{sKX}, s{sXE}")
    e(f"s_cselect_b32 s{sKX}, s{sXB}, s{sKX}")
    e(f"s_cselect_b32 s{sKW}, s{sWB}, s{sKW}")
def dma_ops(st):
    base = (st % NSL) * 32768
    def mk(i):
        def f():
            if i == 0: e(f"s_add_u32 m0, s{sM0}, {base+6144}"); e("s_nop 0")
            if i < 2:
                e(f"buffer_load_dwordx4 v{vDX+i}, {srd(sX)}, s{100 if opt['xlin'] else sKX} offen offset:{i*1024} {opt['xaux'] if st < opt['ntst'] else ''} lds")
            else:
                j = i - 2
                e(f"buffer_load_dwordx4 v{vDW+j}, {srd(sW1)}, s{sKW} offen offset:{(j%4)*1024} {opt['w1aux'] if st < opt['ntst'] else ''} lds")
            VM.issue(f"st{st}")
            if i == 1: e(f"s_add_u32 m0, s{sM0}, {base}"); e("s_nop 0")
            if i == 5: e(f"s_add_u32 m0, s{sM0}, {base+4096}"); e("s_nop 0")
            if i == 7 and st < 9: adv_k()
        return f
    return [mk(i) for i in range(8)]

def setup2():
    R, C = t0, t1
    u0, u1, u2 = vTM+7, vTM+8, vTM+9
    e(f"s_and_b32 s{sT0}, s2, 63")
    e(f"s_mul_i32 s{sT1}, s{sT0}, 205")
    e(f"s_lshr_b32 s{sT1}, s{sT1}, 10")
    e(f"s_mul_i32 s{sRS}, s{sT1}, 5")
    e(f"s_sub_u32 s{sRS}, s{sT0}, s{sRS}")
    e(f"s_lshr_b32 s{sRD}, s2, 6")
    e(f"s_mul_i32 s{sRFL}, s{sRD}, 5")
    e(f"s_add_u32 s{sRFL}, s{sRFL}, s{sRS}")
    e(f"s_lshl_b32 s{sRFL}, s{sRFL}, 4")
    e(f"s_add_u32 s{sRFL}, s{sRFL}, s{sT1}")
    e(f"s_lshl_b32 s{sRFL}, s{sRFL}, 7")
    if opt["own"]:
        e(f"s_mul_i32 s6, s{sT1}, 6")
        e(f"s_add_u32 s6, s6, s{sRD}")
        e(f"s_lshr_b32 s7, s{sT1}, 1")
        e(f"s_mul_i32 s7, s7, 6")
        e(f"s_and_b32 s8, s{sT1}, 1")
        e(f"s_add_u32 s7, s7, s8")
        e(f"s_mul_i32 s8, s{sRD}, 12")
        e(f"s_add_u32 s7, s7, s8")
        e(f"s_sub_u32 s7, s7, 20")
        e(f"s_cmp_lt_u32 s{sT1}, 8")
        e(f"s_cselect_b32 s6, s6, s7")
        e(f"s_mul_i32 s6, s6, 40960")
    e(f"s_mul_i32 s{sRD}, s{sRD}, 12")
    e(f"s_add_u32 s{sT1}, s{sT1}, s{sRD}")
    e(f"s_mul_i32 s{sT1}, s{sT1}, 40960")
    e(f"s_lshl_b32 s{sRD}, s{sRS}, 13")
    e(f"s_add_u32 s{sRD}, s{sRD}, s{sT1}")
    e(f"s_lshl_b32 s{sRS}, s{sRS}, 8")
    e(f"s_add_u32 s{sRS}, s{sRS}, s{6 if opt['own'] else sT1}")
    e(f"s_lshl_b32 s{sT1}, s{sW}, 11")
    e(f"s_add_u32 s{sRD}, s{sRD}, s{sT1}")
    e(f"s_add_u32 s{sRD}, s{sRD}, {W2F}")
    e(f"s_cmp_lt_u32 s{sT0}, {0 if opt['nor'] else 60}")
    e(f"s_cselect_b32 s{sRS}, s{sRS}, 1966080")
    e(f"s_cselect_b32 s{sRD}, s{sRD}, {HREC}")
    if opt["pt"] & 1:
        e(f"s_min_u32 s{sT1}, s{sRS}, {1966080-4}")
        e(f"s_load_dword s6, s[8:9], s{sT1}")
    if opt["pt"] & 2:
        e(f"s_mul_i32 s{sT1}, s{sMT}, {64*3072}")
        e(f"s_load_dword s6, s[12:13], s{sT1}")
    if opt["pt"] & 4:
        e(f"s_load_dword s6, s[10:11], s{sXB}")
    if opt["pt"] & 8:
        e(f"s_load_dword s6, s[12:13], s{sRD}")
    e(f"v_lshl_add_u32 v{t0}, v{Wv}, 3, v{G}")
    e(f"v_mul_u32_u24 v{t0}, 1280, v{t0}")
    e(f"v_and_b32 v{t1}, 15, v{L}")
    e(f"v_lshlrev_b32 v{t2}, 1, v{G}")
    e(f"v_xor_b32 v{t1}, v{t1}, v{t2}")
    e(f"v_lshl_add_u32 v{vDR}, v{t1}, 4, v{t0}")
    e(f"v_xor_b32 v{t1}, 8, v{t1}")
    e(f"v_lshl_add_u32 v{vDR+1}, v{t1}, 4, v{t0}")
    e(f"v_add_u32 v{vDR+1}, {4*1280-1024}, v{vDR+1}")
    e(f"v_bfe_u32 v{R}, v{L}, 2, 2")
    e(f"v_and_b32 v{C}, 3, v{L}")
    e(f"v_lshrrev_b32 v{u0}, 1, v{G}")
    e(f"v_lshl_add_u32 v{u0}, v{u0}, 3, v{R}")
    e(f"v_mul_u32_u24 v{u0}, 384, v{u0}")
    e(f"v_lshrrev_b32 v{u1}, 1, v{R}")
    e(f"v_xor_b32 v{u1}, v{u1}, v{Wv}")
    e(f"v_and_b32 v{u1}, 1, v{u1}")
    e(f"v_lshl_add_u32 v{u0}, v{u1}, 6, v{u0}")
    e(f"v_and_b32 v{u1}, 1, v{G}")
    e(f"v_lshl_add_u32 v{u0}, v{u1}, 5, v{u0}")
    e(f"v_lshl_add_u32 v{vA}, v{C}, 3, v{u0}")
    e(f"v_add_u32 v{vA+1}, 65536, v{vA}")
    e(f"v_and_b32 v{u0}, 2, v{Wv}")
    e(f"v_add_u32 v{u0}, v{u0}, v{u1}")
    e(f"v_lshlrev_b32 v{u0}, 13, v{u0}")
    e(f"v_and_b32 v{u2}, 15, v{L}")
    e(f"v_lshl_add_u32 v{u0}, v{u2}, 7, v{u0}")
    e(f"v_add_u32 v{u0}, 6144, v{u0}")
    e(f"v_lshrrev_b32 v{u1}, 1, v{u2}")
    e(f"v_lshrrev_b32 v{t2}, 5, v{L}")
    e(f"v_xor_b32 v{u1}, v{u1}, v{t2}")
    e(f"v_lshl_add_u32 v{vB}, v{u1}, 4, v{u0}")
    for k in range(1, 4): e(f"v_xor_b32 v{vB+k}, {32*k}, v{vB}")
    for k in range(4): e(f"v_add_u32 v{vB+4+k}, 65536, v{vB+k}")
    e(f"v_and_b32 v{u1}, 1, v{G}")
    e(f"v_lshl_add_u32 v{u1}, v{u1}, 2, v{R}")
    e(f"v_lshlrev_b32 v{u0}, 12, v{t2}")
    e(f"v_lshl_add_u32 v{u0}, v{u1}, 8, v{u0}")
    e(f"v_lshlrev_b32 v{t3}, 1, v{Wv}")
    e(f"v_xor_b32 v{u1}, v{u1}, v{t3}")
    e(f"v_lshl_add_u32 v{u0}, v{u1}, 5, v{u0}")
    e(f"v_and_b32 v{u1}, 1, v{C}")
    e(f"v_lshl_add_u32 v{u0}, v{u1}, 4, v{u0}")
    e(f"v_lshrrev_b32 v{u1}, 1, v{C}")
    e(f"v_lshl_add_u32 v{u0}, v{u1}, 3, v{u0}")
    e(f"v_add_u32 v{vRA}, {RB}, v{u0}")
    e(f"v_xor_b32 v{vRA+1}, 32, v{vRA}")
    e(f"v_mov_b32 v{vCN}, {CNT}")
    e(f"v_mov_b32 v{vONE}, 0")
    e(f"ds_write_b32 v{vCN}, v{vONE}"); LG.issue("cnt")
    if opt["ab"]: e(f"ds_write_b32 v{vCN}, v{vONE} offset:4"); LG.issue("cnt")
    for i in range(48): e(f"v_mov_b32 v{vACC1+i}, 0")
    e(f"v_mov_b32 v{vONE}, 1")
    e(f"v_and_b32 v{u1}, 1, v{G}")
    e(f"v_mul_u32_u24 v{u0}, 12288, v{u1}")
    e(f"v_lshl_add_u32 v{u0}, v{t2}, 8, v{u0}")
    e(f"v_lshl_add_u32 v{vHS}, v{u2}, 4, v{u0}")
    if opt["own"]:
        e(f"s_and_b32 s{sT0}, s{sW}, 1")
        e(f"s_and_b32 s{sT1}, s{sW}, 2")
        e(f"s_sub_u32 s{sT1}, s{sT1}, s{sT0}")
        e(f"s_add_u32 s{sT1}, s{sT1}, 3")
        e(f"v_add_u32 v{u0}, s{sT1}, v{u1}")
        e(f"v_and_b32 v{u0}, 3, v{u0}")
        e(f"s_lshl_b32 s{sT0}, s{sT0}, 12")
        e(f"s_add_u32 s{sT0}, s{sT0}, {OWN}")
        e(f"v_lshl_add_u32 v{u0}, v{u0}, 10, s{sT0}")
        e(f"v_lshl_add_u32 v{u0}, v{t2}, 8, v{u0}")
        e(f"v_lshl_add_u32 v{vOW}, v{u2}, 4, v{u0}")
        e(f"v_xor_b32 v{vOW+1}, 2048, v{vOW}")
        e(f"s_lshl_b32 s{sT0}, s{sW}, 12")
        e(f"s_add_u32 s{sT0}, s{sT0}, {OWN}")
        e(f"v_add_u32 v{vOW+2}, s{sT0}, v{vL16}")
    e(f"v_mul_u32_u24 v{u0}, 1280, v{u2}")
    e(f"v_lshl_add_u32 v{vOUT}, v{G}, 4, v{u0}")
    e(f"v_lshl_add_u32 v{u0}, v{u1}, 4, v{u0}")
    e(f"v_lshl_add_u32 v{vOUT2}, v{t2}, 3, v{u0}")
    e(f"v_add_u32 v{vL16b}, 4096, v{vL16}")
    e(f"s_mul_i32 s{sT0}, s{sFT}, 5")
    e(f"v_lshl_add_u32 v{u0}, v{u1}, 2, s{sT0}")
    e(f"v_lshrrev_b32 v{u0}, 3, v{u0}")
    e(f"v_mad_u32_u24 v{u0}, v{Wv}, 5, v{u0}")
    e(f"v_min_u32 v{vRP}, 11, v{u2}")
    e(f"v_lshlrev_b32 v{vRP}, 7, v{vRP}")
    e(f"v_lshl_add_u32 v{vRP}, v{u0}, 11, v{vRP}")
    e(f"v_lshlrev_b32 v{vL4}, 2, v{L}")
    if opt["own"]:
        e(f"v_and_b32 v{vPA}, 7, v{L}")
        e(f"v_lshlrev_b32 v{vPA}, 7, v{vPA}")
    else: e(f"v_mul_u32_u24 v{vPA}, {FS}, v{u1}")
    e(f"v_mul_u32_u24 v{u0}, 205, v{L}")
    e(f"v_lshrrev_b32 v{u0}, 10, v{u0}")
    e(f"v_sub_u32 v{vAC}, v{Wv}, v{u0}")
    e(f"v_mad_i32_i24 v{vAC}, v{vAC}, 5, v{L}")
    e(f"v_lshlrev_b32 v{vAC}, 11, v{vAC}")
    e(f"v_lshl_add_u32 v{vAC}, v{u0}, 7, v{vAC}")
    e(f"s_mul_i32 s{sT0}, s{sW}, 15360")
    e(f"s_add_u32 s{sT0}, s{sT0}, {RED}")
    e(f"v_add_u32 v{vRW}, s{sT0}, v{vL16}")
    for p in range(3):
        e(f"s_sub_u32 s{sT0}, s{sW}, {1+p}")
        e(f"s_and_b32 s{sT0}, s{sT0}, 3")
        e(f"s_mul_i32 s{sT0}, s{sT0}, 15360")
        e(f"s_add_u32 s{sT0}, s{sT0}, {RED + p*5120}")
        e(f"v_add_u32 v{vRR+p}, s{sT0}, v{vL16}")
    e(f"s_mul_i32 s{sW2B}, s{sW}, {12*40960}")
    e(f"s_mul_i32 s{sT0}, s{sFT}, 5120")
    e(f"s_add_u32 s{sW2B}, s{sW2B}, s{sT0}")
    e(f"s_add_u32 s{sW2B}, s{sW2B}, {W2F}")
    if opt["ab"]:
        e(f"s_mov_b32 s{sSIG+6}, 0x98763210"); e(f"s_mov_b32 s{sSIG+7}, 0x98763210")
        e(f"s_lshr_b64 s[{sSIG+6}:{sSIG+7}], s[{sSIG+6}:{sSIG+7}], s{sROT}")
        e(f"s_mov_b32 s{sSIG+7}, s{sSIG+6}")
        e(f"s_and_b32 s{sROT}, s{sROT}, 12")
        e(f"s_lshr_b32 s{sSIG+11}, 0xba54ba54, s{sROT}")
        for n in range(12):
            src = sSIG+7 if n < 8 else sSIG+11
            e(f"s_bfe_u32 s{sSIG+n}, s{src}, {0x40000 + 4*(n%8)}")
            e(f"s_lshl_b32 s{sSIG+n}, s{sSIG+n}, 10")
    if opt["own"]:
        e(f"s_lshl_b32 s{sSIG}, s{sFT}, 10")
        for n in range(1, 12):
            e(f"s_cmp_eq_u32 s{sROT}, s{sFT}")
            e(f"s_addc_u32 s{sROT}, s{sROT}, 0")
            e(f"s_lshl_b32 s{sSIG+n}, s{sROT}, 10")
            if n < 11:
                e(f"s_add_u32 s{sROT}, s{sROT}, 1")
                e(f"s_cmp_ge_u32 s{sROT}, 12")
                e(f"s_cselect_b32 s{sROT}, 0, s{sROT}")
    for n in range(12 if not opt["ab"] and not opt["own"] else 0):
        e(f"s_lshl_b32 s{sSIG+n}, s{sROT}, 10")
        if n < 11:
            e(f"s_add_u32 s{sROT}, s{sROT}, 1")
            e(f"s_cmp_ge_u32 s{sROT}, 12")
            e(f"s_cselect_b32 s{sROT}, 0, s{sROT}")
    if opt["own2"] == 2:
        e(f"s_mov_b32 s{sOWN}, s{sW}")
    elif opt["own2"] == 3:
        e(f"s_and_b32 s{sOWN}, s{sFT}, 1")
        e(f"s_add_u32 s{sOWN}, s{sW}, s{sOWN}")
    elif opt["own2"]:
        e(f"s_lshl_b32 s{sOWN}, s{sFT}, 1")
        e(f"s_add_u32 s{sOWN}, s{sW}, s{sOWN}")
    else: e(f"s_add_u32 s{sOWN}, s{sW}, s{sFT}")
    e(f"s_and_b32 s{sOWN}, s{sOWN}, 3")
    e(f"s_lshl_b32 s{sT1}, s{sMT}, 2")
    e(f"s_add_u32 s{sT1}, s{sT1}, s{sW}")
    if opt["own"]: e(f"s_lshl_b32 s{sPOL}, s{sMT}, 10")
    else: e(f"s_mul_i32 s{sPOL}, s{sT1}, {2*FS}")
    e(f"s_add_u32 s{sPOL}, s{sPOL}, {FL}")
    e(f"s_lshl_b32 s{sT1}, s{sT1}, 2")
    for p in range(4):
        e(f"s_add_u32 s{sT0}, s{sOWN}, {1+p}")
        e(f"s_and_b32 s{sT0}, s{sT0}, 3")
        e(f"s_add_u32 s{sT0}, s{sT0}, s{sT1}")
        e(f"s_mul_i32 s{sT0}, s{sT0}, 12288")
        e(f"v_add_u32 v{vHB+p}, s{sT0}, v{vL16}")
    e(f"s_lshl_b32 s{sOB}, s{sMT}, 2")
    e(f"s_add_u32 s{sOB}, s{sOB}, s{sOWN}")
    e(f"s_mul_i32 s{sOB}, s{sOB}, {16*1280}")
    e(f"s_mul_i32 s{sT0}, s{sFT}, 160")
    e(f"s_add_u32 s{sOB}, s{sOB}, s{sT0}")
    if opt["ost"]:
        e(f"s_cmp_ge_u32 s{sW}, {opt['ost']}")
        e(f"s_cselect_b32 s{sOB}, s{sOB}, 2621440")
    e(f"s_lshl_b32 s{sT0}, s{sMT}, 2")
    e(f"s_lshr_b32 s{sT1}, s{sFT}, 1")
    e(f"s_add_u32 s{sT0}, s{sT0}, s{sT1}")
    e(f"s_mul_i32 s{sFLG}, s{sT0}, {2*FS}")
    e(f"s_lshl_b32 s{sT0}, s{sT0}, 2")
    e(f"s_and_b32 s{sT1}, s{sW}, 2")
    e(f"s_add_u32 s{sT0}, s{sT0}, s{sT1}")
    e(f"s_mul_i32 s{sHS}, s{sT0}, 12288")
    e(f"s_and_b32 s{sT0}, s{sFT}, 1")
    e(f"s_mul_i32 s{sT1}, s{sT0}, {FS}")
    e(f"s_add_u32 s{sFLG}, s{sFLG}, s{sT1}")
    e(f"s_add_u32 s{sFLG}, s{sFLG}, {FL}")
    e(f"s_mul_i32 s{sT0}, s{sT0}, 6")
    e(f"s_and_b32 s{sT1}, s{sW}, 1")
    e(f"s_add_u32 s{sT0}, s{sT0}, s{sT1}")
    e(f"s_lshl_b32 s{sT0}, s{sT0}, 10")
    e(f"s_add_u32 s{sHS}, s{sHS}, s{sT0}")
    e(f"s_add_u32 s{sHS2}, s{sHS}, 4096")
    if opt["own"]:
        e(f"s_and_b32 s{sT0}, s{sFT}, 1")
        e(f"s_lshl_b32 s{sT0}, s{sT0}, 12")
        e(f"s_sub_u32 s{sHS2}, s{sHS}, s{sT0}")
        e(f"s_add_u32 s{sHS2}, s{sHS2}, 8192")
        e(f"s_lshl_b32 s{sT0}, s{sMT}, 2")
        e(f"s_add_u32 s{sT0}, s{sT0}, s{sT1}")
        e(f"s_lshl_b32 s{sT0}, s{sT0}, 2")
        e(f"s_and_b32 s{sT1}, s{sW}, 2")
        e(f"s_add_u32 s{sT0}, s{sT0}, s{sT1}")
        e(f"s_mul_i32 s{sT0}, s{sT0}, 12")
        e(f"s_add_u32 s{sT0}, s{sT0}, s{sFT}")
        e(f"s_lshl_b32 s{sHS}, s{sT0}, 10")
        e(f"s_add_u32 s{sHS1}, s{sHS}, 98304")
    e(f"s_add_u32 s{sRFL}, s{sRFL}, {RFL}")
    e(f"s_cmp_eq_u32 s{sW}, 0")
    e(f"s_cselect_b32 s{sRFL}, s{sRFL}, {HREC}")
    e(f"s_mov_b32 s{sL2E}, 0xbfb8aa3b")
    if opt["pk"]:
        e(f"s_mov_b32 s{sPK}, 0xbfb8aa3b"); e(f"s_mov_b32 s{sPK+1}, 0xbfb8aa3b")
def r_loads():
    e(f"s_lshr_b32 m0, s{sM0}, 2")
    e(f"s_add_u32 m0, m0, {RB}")
    e("s_nop 0")
    for i in range(2):
        e(f"buffer_load_dwordx4 v{vDR+i}, {srd(sW2)}, s{sRS} offen offset:{i*1024} {opt['raux']} lds"); VM.issue("rld")
def r_reads():
    for ee in range(2):
        for t in range(2):
            e(f"ds_read_b64_tr_b16 {vr(vRF + 4*ee + 2*t, 2)}, v{vRA+ee} offset:{t*2048}"); LG.issue("rrd")
def r_stores():
    LG.wait("rrd")
    for ee in range(2):
        e(f"buffer_store_dwordx4 {vr(vRF+4*ee,4)}, v{vL16}, {srd(sH)}, s{sRD} offen offset:{ee*1024} {opt['rsaux']}"); VM.issue("rst")
S2 = capture(setup2)
groups = []
for l in S2:
    if l.startswith("s_cselect") or (groups and groups[-1][-1].startswith("s_cmp")): groups[-1].append(l)
    else: groups.append([l])
ST0 = []
def pre_order(spec):
    kx, kw = (sKX, 6, 8), (sKW, 7, 9)
    def nxt(i):
        a, b = (i + 1) % 3, i
        e(f"s_add_u32 s{kx[a]}, s{kx[b]}, 128")
        e(f"s_add_u32 s{kw[a]}, s{kw[b]}, {64*3072}")
        e(f"s_cmp_eq_u32 s{kx[a]}, s{sXE}")
        e(f"s_cselect_b32 s{kx[a]}, s{sXB}, s{kx[a]}")
        e(f"s_cselect_b32 s{kw[a]}, s{sWB}, s{kw[a]}")
    ops = []
    for ch in spec:
        if ch in "abc":
            st = "abc".index(ch)
            for i in range(2):
                def f(st=st, i=i):
                    if i == 0: e(f"s_add_u32 m0, s{sM0}, {st*32768+6144}"); e("s_nop 0")
                    e(f"buffer_load_dwordx4 v{vDX+i}, {srd(sX)}, s{kx[st]} offen offset:{i*1024} {opt['xaux']} lds"); VM.issue(f"st{st}")
                    if st == 0 and i == 1: nxt(0); nxt(1)
                ops.append(f)
        elif ch in "ABC":
            st = "ABC".index(ch)
            for j in range(6):
                def f(st=st, j=j):
                    if j % 4 == 0: e(f"s_add_u32 m0, s{sM0}, {st*32768+j*1024}"); e("s_nop 0")
                    e(f"buffer_load_dwordx4 v{vDW+j}, {srd(sW1)}, s{kw[st]} offen offset:{(j%4)*1024} {opt['w1aux']} lds"); VM.issue(f"st{st}")
                ops.append(f)
        elif ch == "R": ops.append(r_loads)
        elif ch == ".": ops.append(None)
        elif ch == "P":
            def f():
                e(f"s_bfe_u32 s10, s{sMT}, 0x10002")
                e(f"s_mul_i32 s10, s10, 320")
                e(f"s_and_b32 s11, s{sMT}, 3")
                e(f"s_lshl_b32 s11, s11, 4")
                e(f"s_add_u32 s10, s10, s11")
                e(f"s_mul_i32 s11, s{sW}, 12")
                e(f"s_sub_u32 s10, s10, s11")
                e(f"s_add_u32 s10, s10, 256")
                e(f"s_mul_i32 s10, s10, 3072")
                e(f"s_add_u32 s10, s10, s{sWB}")
                e(f"buffer_load_dwordx4 v[244:247], v{vDW}, {srd(sW1)}, s10 offen"); VM.issue("pp")
                e("s_mov_b32 exec_hi, 0")
                e(f"buffer_load_dwordx4 v[248:251], v{vDW+1}, {srd(sW1)}, s10 offen offset:1024"); VM.issue("pp")
                e("s_mov_b32 exec_hi, -1")
            ops.append(f)
    assert spec[0] == "a" and all(c in spec for c in "abcABC")
    last = ops[-1]
    def fin(): last(); nxt(2)
    ops[-1] = fin
    return ops
if opt["po"]:
    first = pre_order(opt["po"]); opt["pre3"] = 1
    if None in first:
        k = first.index(None); first, ST0 = first[:k], first[k+1:]
    if "R" in opt["po"]: opt["rls"] = -1
else:
    first = dma_ops(0) + dma_ops(1) + (dma_ops(2) if opt["pre3"] else [])
    if opt["rls"] < 0: first.append(r_loads)
    if opt["tch"]: first[opt["tp0"]:opt["tp0"]] = [touch] * (opt["la"] - 1)
if opt["clr"] >= 0: first[opt["clr"]:opt["clr"]] = CLO
NF0 = opt["nf0"]
for f in first[:NF0]: f()
if opt["fst"]:
    e(f"s_waitcnt vmcnt({NF0-1})"); stamp(k=5)
    e(f"s_waitcnt vmcnt({NF0-3})"); stamp(k=5)
rest = first[NF0:]
per = (len(groups) + len(rest) - 1) // len(rest)
head = len(groups) * opt["head"] // 100
for g in groups[:head]: O.extend(g)
groups = groups[head:]
per = (len(groups) + len(rest) - 1) // len(rest)
for f in rest:
    f()
    for g in groups[:per]: O.extend(g)
    groups = groups[per:]
assert not groups
stamp()

def w2_ops():
    ops = []
    order = list(range(1, 12)); order.insert(opt["w0p"], 0)
    for n in order:
        for j in range(5):
            def f(n=n, j=j):
                if j == 0:
                    e(f"s_mul_i32 s{sWO}, s{sSIG+n}, 40")
                    e(f"s_add_u32 s{sWO}, s{sWO}, s{sW2B}")
                va = vL16 if j < 4 else vL16b
                e(f"buffer_load_dwordx4 {ar(n*20+4*j, 4)}, v{va}, {srd(sH)}, s{sWO} offen offset:{(j%4)*1024} {opt['w2aux'].replace('-','')}")
                VM.issue(f"w{n}")
            ops.append(f)
    return ops
W2L = w2_ops()
def take(n):
    r = W2L[:n]; del W2L[:n]; return r

def rd_ops(st, half):
    slot = st % NSL
    sb = (slot % 2) * 32768
    hi = slot // 2
    ops = []
    if opt["nord"]: return ops
    for kk in range(2):
        ks = 2*half + kk
        def b(ks=ks, kk=kk):
            e(f"ds_read_b128 {vr(vBF + (half*2+kk)*4, 4)}, v{vB + 4*hi + ks} offset:{sb}"); LG.issue(f"B{ks}")
        ops.append(b)
        for q in range(3):
            for t in range(2):
                def a(ks=ks, kk=kk, q=q, t=t):
                    e(f"ds_read_b64_tr_b16 {vr(vAF + half*24 + (kk*3+q)*4 + 2*t, 2)}, v{vA+hi} offset:{sb + ks*8192 + t*1536 + q*128}")
                    LG.issue(f"A{ks}{q}")
                ops.append(a)
    return ops
def i16(kk, q): return kk == 1
def mfma1(half, kk, q):
    ks = 2*half + kk
    LG.wait(f"A{ks}{q}")
    if opt["nomf1"]: return
    if opt["m16"]:
        for z in range(2):
            c = vr(vACC1+16*q+8*kk+4*z, 4)
            e(f"v_mfma_f32_16x16x32_bf16 {c}, {vr(vAF + half*24 + (kk*3+q)*4, 4)}, {vr(vBF + (half*2+(kk^z if i16(kk, q) else kk))*4, 4)}, {c}")
        return
    e(f"v_mfma_f32_32x32x16_bf16 {vr(vACC1+16*q,16)}, {vr(vAF + half*24 + (kk*3+q)*4, 4)}, {vr(vBF + (half*2+kk)*4, 4)}, {vr(vACC1+16*q,16)}")
def half_body(mf_half, rds, fill):
    rds = list(rds); fill = list(fill)
    for i in range(6):
        if mf_half is not None: mfma1(mf_half, i // 3, i % 3)
        left = 6 - i
        for _ in range((len(rds) + left - 1) // left if i else min(len(rds), 4)):
            if rds: rds.pop(0)()
        for _ in range((len(fill) + left - 1) // left):
            if fill: fill.pop(0)()
    assert not rds and not fill

def flag_store(off):
    fk = opt["fk"]
    if fk in (1, 3, 4):
        for r in range(4): e(f"v_mov_b32 v{vTM+12+r}, s{sTAG}")
        e(f"s_mov_b64 exec, {dict([(1,255),(3,1),(4,15)])[fk]}")
        e(f"buffer_store_dwordx4 {vr(vTM+12,4)}, v{vL16}, {srd(sH)}, s{off} offen sc1"); VM.issue("flag")
        e("s_mov_b64 exec, -1")
        return
    e(f"v_mov_b32 v{vT}, s{sTAG}")
    e("s_mov_b32 exec_hi, 0" if fk == 0 else "s_mov_b64 exec, 1")
    e(f"buffer_store_dword v{vT}, v{vL4}, {srd(sH)}, s{off} offen sc1"); VM.issue("flag")
    e("s_mov_b64 exec, -1")
def r_poll():
    e(f"s_mov_b32 s{sT0}, {HREC if opt['norp'] else RFL}")
    e(f"buffer_load_dword v{vPOLL}, v{vRP}, {srd(sH)}, s{sT0} offen sc1"); VM.issue("rpoll")

def spin_check(lab, vv, va, tag, so=None, fake=False):
    VM.wait(tag)
    e(f"s_mov_b32 s{sSPIN}, 20000")
    e(f"L_{lab}:")
    e(f"v_cmp_ne_u32 vcc, s{sTAG}, v{vv}")
    e("s_cmp_eq_u64 vcc, 0" if not fake else "s_cmp_eq_u32 s2, s2")
    e(f"s_cbranch_scc1 L_{lab}_go")
    e(f"s_sub_u32 s{sSPIN}, s{sSPIN}, 1")
    e(f"s_cmp_eq_u32 s{sSPIN}, 0")
    e(f"s_cbranch_scc1 L_{lab}_go")
    if so is None: e(f"s_mov_b32 s{sT0}, {RFL}")
    e(f"buffer_load_dword v{vv}, v{va}, {srd(sH)}, s{sT0 if so is None else so} offen sc1")
    e("s_waitcnt vmcnt(0)")
    e(f"s_branch L_{lab}")
    e(f"L_{lab}_go:")
def r_check(): spin_check("rp", vPOLL, vRP, "rpoll", None, opt["norp"])

EMU = [int(c) for c in str(opt["emu"]).lstrip("x")]
def emu_ops(bi):
    q, g2 = bi // 2, bi % 2
    a0 = 216; tt = vS + (bi % 2) * 8; pk = vRF + 8 + bi * 4
    ops = []
    if opt["emv"] and not opt["epk"]:
        for r in range(8): ops.append(f"v_mul_f32 v{tt+r}, s{sL2E}, v{a0+r}")
        for r in range(8): ops.append(f"v_exp_f32 v{tt+r}, v{tt+r}")
        for r in range(8): ops.append(f"v_add_f32 v{tt+r}, 1.0, v{tt+r}")
        for r in range(8): ops.append(f"v_rcp_f32 v{tt+r}, v{tt+r}")
        for r in range(8): ops.append(f"v_mul_f32 v{tt+r}, v{a0+r}, v{tt+r}")
        for r in range(4): ops.append(f"v_cvt_pk_bf16_f32 v{pk+r}, v{tt+2*r}, v{tt+2*r+1}")
    elif opt["emv"]:
        for r in range(0, 8, 2): ops.append(f"v_pk_mul_f32 {vr(tt+r,2)}, {vr(a0+r,2)}, s[{sPK}:{sPK+1}]")
        for r in range(8): ops.append(f"v_exp_f32 v{tt+r}, v{tt+r}")
        for r in range(0, 8, 2): ops.append(f"v_pk_add_f32 {vr(tt+r,2)}, {vr(tt+r,2)}, 1.0 op_sel_hi:[1,0]")
        for r in range(8): ops.append(f"v_rcp_f32 v{tt+r}, v{tt+r}")
        for r in range(0, 8, 2): ops.append(f"v_pk_mul_f32 {vr(tt+r,2)}, {vr(a0+r,2)}, {vr(tt+r,2)}")
        for r in range(4): ops.append(f"v_cvt_pk_bf16_f32 v{pk+r}, v{tt+2*r}, v{tt+2*r+1}")
    fs = [(lambda l=l: e(l)) for l in ops]
    def st_():
        e(f"buffer_store_dwordx4 {vr(pk,4)}, v{vHS}, {srd(sH)}, s{sHS} offen offset:{g2*512 + (q%2)*2048} sc1"); VM.issue("hstA" if opt["ab"] else "hst")
    return fs + [st_]
def merge(a, b):
    r = []; a = list(a); b = list(b); na, nb_ = len(a), len(b)
    while a or b:
        if a and (not b or len(a) * nb_ >= len(b) * na): r.append(a.pop(0))
        else: r.append(b.pop(0))
    return r
if EMU:
    for r in range(8): e(f"v_cvt_f32_u32 v{216+r}, v{vL16}"); e(f"v_mul_f32 v{216+r}, 0x3a000000, v{216+r}")
for st in range(10):
    VM.wait(f"st{st}")
    if st == opt["rjs"]: VM.wait("rld")
    if st == opt["rfs"]: VM.wait("rst"); VM.wait("clr")
    if st == opt["afs"] and st: VM.wait("hstA")
    LG.drain()
    e("s_barrier")
    if st == opt["afs"] and st:
        e(f"s_cmp_eq_u32 s{sW}, 0")
        e(f"s_cselect_b32 s{sT1}, s{sFLG}, {HREC}")
        flag_store(sT1); stamp(k=7)
    if st == 9: stamp()
    stamp(k=1)
    if st >= 8: stamp(k=4)
    if st == opt["rfs"]:
        e(f"s_mul_i32 s{sTAG}, s{sE}, 0x9E3779B1")
        e(f"s_add_u32 s{sTAG}, s{sTAG}, 0x7F4A7C15")
        flag_store(sRFL)
    if (st == opt["rcs"] and opt["rck"] == 0) or (st == 9 and opt["rck"] == 2): r_check()
    if NSL == 4:
        if st == 0: fill = ([] if opt["pre3"] else dma_ops(2)) + dma_ops(3)
        elif st < 7: fill = dma_ops(st + 3)
        else: fill = take(opt[f"n{st}"])
    elif st == 0 and opt["pre3"]: fill = list(ST0)
    elif st < 8: fill = dma_ops(st + 2)
    else: fill = take(opt["n8"] if st == 8 else opt["n9"])
    if opt["tch"] and st + opt["la"] < 10: fill.insert(opt["tpos"], touch)
    if st == opt["rls"]: fill = [r_loads] + fill if opt["rpos"] == 0 else fill + [r_loads]
    if st == opt["rjs"]:
        fill.insert(min(opt["rsp"], len(fill)), r_stores)
        fill = [r_reads] + fill
    if st == opt["rps"]: fill.insert(opt["rpp"], r_poll)
    ex = [CLO[i] for i, c in enumerate(str(opt["clrs"]).lstrip("x")) if int(c) == st]
    for bi, es in enumerate(EMU):
        if es == st: ex += emu_ops(bi)
    if ex: fill = merge(fill, ex)
    h = (len(fill) + 1) // 2
    f0, f1 = fill[:h], fill[h:]
    if st == 8 and opt["rck"] == 1:
        k = 1 if opt["rps"] == 8 else 0
        f0, f1 = fill[:k], [r_check] + fill[k:]
    half_body(1 if st else None, rd_ops(st, 0), f0)
    half_body(0, rd_ops(st, 1), f1)
stamp()
PEND = []
def silu_block(q, g2):
    a0 = vACC1 + 16*q + 8*g2
    bi = 2*q + g2
    tt = vS + (bi % 2) * 8
    pk = vRF + bi * 4
    ops = []
    if opt["pk"]:
        for r in range(0, 8, 2): ops.append(f"v_pk_mul_f32 {vr(tt+r,2)}, {vr(a0+r,2)}, s[{sPK}:{sPK+1}]")
        for r in range(8): ops.append(f"v_exp_f32 v{tt+r}, v{tt+r}")
        for r in range(0, 8, 2): ops.append(f"v_pk_add_f32 {vr(tt+r,2)}, {vr(tt+r,2)}, 1.0 op_sel_hi:[1,0]")
        for r in range(8): ops.append(f"v_rcp_f32 v{tt+r}, v{tt+r}")
        for r in range(0, 8, 2): ops.append(f"v_pk_mul_f32 {vr(tt+r,2)}, {vr(a0+r,2)}, {vr(tt+r,2)}")
    else:
        for r in range(8): ops.append(f"v_mul_f32 v{tt+r}, s{sL2E}, v{a0+r}")
        for r in range(8): ops.append(f"v_exp_f32 v{tt+r}, v{tt+r}")
        for r in range(8): ops.append(f"v_add_f32 v{tt+r}, 1.0, v{tt+r}")
        for r in range(8): ops.append(f"v_rcp_f32 v{tt+r}, v{tt+r}")
        for r in range(8): ops.append(f"v_mul_f32 v{tt+r}, v{a0+r}, v{tt+r}")
    for r in range(4): ops.append(f"v_cvt_pk_bf16_f32 v{pk+r}, v{tt+2*r}, v{tt+2*r+1}")
    nbs = str(opt["nb"]).lstrip("x")
    fill = take(int(nbs[bi] if len(nbs) > 1 else nbs))
    step = len(ops) // (len(fill) + 1) if fill else 0
    for i, l in enumerate(ops):
        if not opt["novalu"]: e(l)
        if fill and step and (i + 1) % step == 0: fill.pop(0)()
    for f in fill: f()
    so = sHS if q < 2 else sHS2
    def st_():
        if opt["nost"]: return
        if opt["own"]:
            e(f"buffer_store_dwordx4 {vr(pk,4)}, v{vHS}, {srd(sH)}, s{(sHS, sHS1, sHS2)[q]} offen offset:{g2*512} sc1"); VM.issue("hst")
            if q < 2: e(f"ds_write_b128 v{vOW+q}, {vr(pk,4)} offset:{q*8192 + g2*512}"); LG.issue("ow")
            return
        e(f"buffer_store_dwordx4 {vr(pk,4)}, v{vHS}, {srd(sH)}, s{so} offen offset:{g2*512 + (q%2)*2048} {opt['hsaux'].replace('-','')}"); VM.issue("hstA" if opt["ab"] and q < 2 else "hst")
        if opt["hs2"]:
            e(f"buffer_store_dwordx4 {vr(pk,4)}, v{vHS}, {srd(sH)}, s{so} offen offset:{g2*512 + (q%2)*2048} {opt['hs2'].replace('-','')}"); VM.issue("hst")
    PEND.append(st_)
    if bi >= opt["sl"]:
        while PEND: PEND.pop(0)()
for q in range(3):
    for kk in range(2): mfma1(1, kk, q)
e("s_nop 7")
stamp(k=4)
if opt["sts"] == 4: VM.drain(); stamp(k=4)
def cnt_add(tag, off):
    VM.wait(tag)
    e("s_mov_b64 exec, 1")
    e(f"ds_add_rtn_u32 v{vT+1}, v{vCN}, v{vONE} offset:{off}")
    e("s_mov_b64 exec, -1")
def cnt_flag(add):
    e("s_waitcnt lgkmcnt(0)"); LG.q = []
    e(f"v_readfirstlane_b32 s{sT0}, v{vT+1}")
    e(f"s_add_u32 s{sT1}, s{sFLG}, {add}")
    e(f"s_cmp_eq_u32 s{sT0}, 3")
    e(f"s_cselect_b32 s{sT1}, s{sT1}, {HREC}")
    flag_store(sT1)
for q in range(3):
    for g2 in range(2):
        bi = 2*q + g2
        if opt["ab"] and not opt["afs"] and bi == 4 + opt["afp"]: cnt_add("hstA", 0); stamp(k=7)
        if bi >= len(EMU): silu_block(q, g2)
        if opt["ab"] and not opt["afs"] and bi == 4 + opt["afp"]: cnt_flag(0); stamp(k=7)
stamp(); stamp(k=4)
if not opt["spec"]:
    for i, f in enumerate(take(opt["post"])):
        if i == opt["pae"]:
            e(f"buffer_load_dword v{vPOLL}, v{vPA}, {srd(sH)}, s{sPOL} offen sc1"); VM.issue("poll")
        f()
    if opt["wb"]:
        VM.wait("hst")
        e("buffer_wbl2 sc1"); VM.issue("hst")
    VM.wait("hst")
    stamp(k=4)
    if opt["sts"] == 4: VM.drain(); stamp(k=4)
    if opt["fb"]:
        e(f"s_cmp_eq_u32 s{sW}, 0")
        e(f"s_cselect_b32 s{sFLG}, s{sFLG}, {HREC}")
        if opt["own"]: LG.drain()
        e("s_barrier")
    else:
        e("s_mov_b64 exec, 1")
        e(f"ds_add_rtn_u32 v{vT+1}, v{vCN}, v{vONE} offset:{4 if opt['ab'] else 0}")
        e("s_mov_b64 exec, -1")
        if opt["ab"]: e(f"s_add_u32 s{sFLG}, s{sFLG}, {FLB}")
        for f in take(opt["mid"]): f()
        e("s_waitcnt lgkmcnt(0)")
        e(f"v_readfirstlane_b32 s{sT0}, v{vT+1}")
        e(f"s_cmp_eq_u32 s{sT0}, {3 if opt['nopoll'] < 2 else 9}")
        e(f"s_cselect_b32 s{sFLG}, s{sFLG}, {HREC}")
    if opt["nopoll"] == 3: e(f"s_mov_b32 s{sPOL}, {HREC}")
    flag_store(sFLG)
    if opt["fb"] == 2: e("s_barrier")
    stamp(); stamp(k=3)
else:
    for f in take(opt["fw"]): f()
    VM.wait("hst")
    e(f"s_lshl_b32 s{sT0}, s{sW}, 15")
    e(f"s_add_u32 s{sFLG}, s{sFLG}, s{sT0}")
    flag_store(sFLG)
    stamp()
HL = [(p, n) for p in range(4) for n in range(12)]
def hload():
    if HL:
        p, n = HL.pop(0)
        if opt["noh"] and (p*12+n) % opt["noh"]: return
        e(f"buffer_load_dwordx4 {vr(vH + (p*12+n)*4, 4)}, v{vHB+p}, {srd(sH)}, s{sSIG+n} offen {opt['haux'].replace('-','')}"); VM.issue(f"h{p}_{n}")
def mark(v):
    if not opt["stamps"] or opt["sts"]: return
    i = NST[0]; NST[0] += 1
    e(f"s_add_u32 s{72+2*i}, s74, {v}"); e(f"s_addc_u32 s{73+2*i}, s75, 0")
def allc_load():
    e("s_cmp_eq_u32 s2, 0")
    e(f"s_cselect_b32 s{sT0}, {RFL}, s{sH+2}")
    e(f"buffer_load_dword v{vAV}, v{vAC}, {srd(sH)}, s{sT0} offen sc1"); VM.issue("allc")
def p0_block(ML, pre):
    ML = list(ML)
    for f in ML[:pre]: f()
    del ML[:pre]
    stamp()
    for n in range(12):
        assert (0, n) not in HL and not any(getattr(f, "__defaults__", None) and f.__defaults__[0] == n for f in ML), n
        late = max((f"h0_{n}", f"w{n}"), key=lambda t: len(VM.q) - 1 - VM.q[::-1].index(t) if t in VM.q else -1)
        VM.wait(late)
        if n == 0 or n == 6: stamp(k=2)
        cnt = (len(ML) + 11 - n) // (12 - n)
        pos = {1: [opt["hj"]], 2: [1, 3], 3: [0, 2, 4], 4: [0, 1, 2, 3], 5: [0, 1, 2, 3, 4], 0: []}[cnt]
        for j in range(5):
            c = "0" if n == 0 else vr(vACC2+4*j, 4)
            e(f"v_mfma_f32_16x16x32_bf16 {vr(vACC2+4*j,4)}, {ar(n*20+4*j,4)}, {vr(vH+n*4,4)}, {c}")
            if j in pos: ML.pop(0)()
    assert not ML and not W2L
def late_path():
    if opt['skipw']: del W2L[-opt['skipw']:]
    if opt["sts"] == 6:
        stamp(k=6)
        i = 0
        while len(W2L) > opt["pollq"]:
            take(1)[0](); i += 1
            if i % 4 == 0 and i >= opt["dw"]:
                e(f"s_waitcnt vmcnt({opt['dw']})"); stamp(k=6)
    for f in take(max(0, len(W2L) - opt["pollq"])): f()
    stamp(k=3)
    if opt["sts"] == 3: VM.drain(); stamp(k=3)
    if opt["sts"] == 4: stamp(k=4); VM.drain(); stamp(k=4)
    if opt["sp"]:
        e(f"s_load_dword s6, s[12:13], s{sPOL} {opt['spg']}")
        e(f"s_add_u32 s{sT0}, s{sPOL}, 128")
        e(f"s_load_dword s7, s[12:13], s{sT0} {opt['spg']}")
        for f in take(len(W2L)): f()
        stamp(k=3)
        e("s_waitcnt lgkmcnt(0)")
        stamp(k=3)
        stamp()
        e(f"s_cmp_eq_u32 s6, s{sTAG}")
        e(f"s_cselect_b32 s6, s7, s6")
        e(f"s_cmp_eq_u32 s6, s{sTAG}")
        e("s_cbranch_scc1 L_hp_go")
        e(f"v_mov_b32 v{vPOLL}, s6")
        spin_check("hp", vPOLL, vPA, "poll", sPOL, opt["nopoll"])
    else:
        e(f"buffer_load_dword v{vPOLL}, v{vPA}, {srd(sH)}, s{sPOL} offen sc1"); VM.issue("poll")
        for f in take(len(W2L)): f()
        stamp(k=3)
        VM.wait("poll")
        stamp(k=3)
        stamp()
        spin_check("hp", vPOLL, vPA, "poll", sPOL, opt["nopoll"])
    stamp(); stamp(k=2); stamp(k=3)
    mark(1000)
    allc_load()
    p0_block([hload] * (opt["hpre"] + 12), opt["hpre"])
LATE = []
if opt["eq"]:
    import re
    for f in take(len(W2L) - opt["eq"]): f()
    e(f"buffer_load_dword v{vPOLL}, v{vPA}, {srd(sH)}, s{sPOL} offen sc1"); VM.issue("poll")
    for f in take(opt["ec"]): f()
    VM.wait("poll")
    e(f"v_cmp_ne_u32 vcc, s{sTAG}, v{vPOLL}")
    e("s_cmp_eq_u64 vcc, 0" if not opt["nopoll"] else "s_cmp_eq_u32 s2, s2")
    e("s_cbranch_scc0 L_late")
    sv = (list(VM.q), list(W2L), list(HL), NST[0])
    LATE = ["L_late:"] + capture(late_path) + ["s_branch L_p1"]
    endq, endn = list(VM.q), NST[0]
    VM.q, W2L[:], HL[:], NST[0] = sv
    stamp(); stamp(); stamp(k=2); mark(0)
    allc_load()
    m = re.match(r"h(\d+)w(\d+)", opt["eil"])
    ML = []; nh = 12; ws = take(len(W2L))
    while nh or ws:
        k = min(nh, int(m.group(1))); ML += [hload] * k; nh -= k
        k = int(m.group(2)); ML += ws[:k]; del ws[:k]
    ML += [hload] * opt["hpre"]
    p0_block(ML, opt["epre"])
    assert NST[0] == endn, (NST[0], endn)
    k = min(len(VM.q), len(endq))
    assert VM.q[-k:] == endq[-k:] and all(t.startswith("h1") for t in VM.q + endq), (VM.q, endq)
    if len(endq) > len(VM.q): VM.q = endq
    e("L_p1:")
elif opt["spec"]:
    allc_load()
    for f in take(len(W2L) - opt["wl"]): f()
    stamp(); stamp(); stamp(k=2); mark(1000)
    ws = take(len(W2L))
    p0_block([hload] * opt["hpre"] + merge(ws, [hload] * 12) if ws else [hload] * (opt["hpre"] + 12), opt["hpre"])
elif not opt["ab"] and not opt["dfw"]:
    late_path()
def allc_check():
    e("s_cmp_lg_u32 s2, 0")
    e("s_cbranch_scc1 L_ac_go")
    assert "allc" not in VM.q
    spin_check("ac", vAV, vAC, "allc")
def phase2_new():
    B1, B2, MA = opt["b1"], opt["b2"], opt["madd"]
    for p in range(1, 4):
        ac = vACC2 + (p % 2) * 20
        pa = vACC2 + ((p-1) % 2) * 20
        slots = {(n, j): [] for n in range(12) for j in range(5)}
        if p > 0:
            for jj, pos in enumerate([(1, 0), (1, 2), (1, 4), (2, 1), (2, 3)]):
                def w(jj=jj):
                    e(f"ds_write_b128 v{vRW}, {vr(pa+4*jj,4)} offset:{(p-1)*5120 + jj*1024}"); LG.issue("red")
                slots[pos].append(w)
        def rd(pp, j, dst):
            def f():
                e(f"ds_read_b128 {vr(dst, 4)}, v{vRR+pp} offset:{j*1024}"); LG.issue(f"rr{pp}{j}")
            return f
        if p == 2:
            k = 0
            for j in range(5):
                for pp in range(2):
                    slots[(B1 + k // 5, k % 5)].append(rd(pp, j, vH + pp*20 + 4*j)); k += 1
            assert B1 + 3 <= 8
            for i in range(20):
                def a(i=i):
                    LG.wait(f"rr1{i//4}")
                    e(f"v_add_f32 v{pa+i}, v{vH+i}, v{vH+20+i}")
                slots[(8 + i // 5, i % 5)].append(a)
        if p == 3:
            for j in range(5): slots[(B2, j)].append(rd(2, j, vH + 4*j))
        for n in range(12):
            if (p == 2 and n == B1) or (p == 3 and n == B2):
                if p == 3: allc_check(); stamp(k=2)
                LG.drain(); e("s_barrier")
                if p == 3: stamp(k=2)
            VM.wait(f"h{p}_{n}")
            if n == 0 or (n == 6 and p < 3): stamp(k=2)
            def madd(j):
                LG.wait(f"rr2{j}")
                for r in range(4): e(f"v_add_f32 v{ac+4*j+r}, v{ac+4*j+r}, v{vH+4*j+r}")
            mid = p == 3 and n == MA
            if mid: e("s_nop 3"); madd(0)
            for j in range(5):
                c = "0" if n == 0 and p < 3 else vr(ac+4*j, 4)
                if mid:
                    if j < 4: madd(j+1)
                    else: e("s_nop 0")
                e(f"v_mfma_f32_16x16x32_bf16 {vr(ac+4*j,4)}, {ar(n*20+4*j,4)}, {vr(vH+(p*12+n)*4,4)}, {c}")
                if j == opt["hj"]: hload()
                for f in slots[(n, j)]: f()
    stamp(); stamp(k=2)
    if opt["enc"]: stamp(True)
    ac = vACC2 + 20
    pk = vH + 64
    def cvt(j):
        for r in range(2): e(f"v_cvt_pk_bf16_f32 v{pk+2*j+r}, v{ac+4*j+2*r}, v{ac+4*j+2*r+1}")
    def swp(b):
        e(f"v_permlane32_swap_b32 v{pk+4*b}, v{pk+4*b+2}")
        e(f"v_permlane32_swap_b32 v{pk+4*b+1}, v{pk+4*b+3}")
        if opt["enc"]:
            e("s_waitcnt lgkmcnt(0)")
            e(f"v_lshrrev_b32 v{vT+1}, 4, v{vL16}")
            for r in range(4):
                i = 4*b + r
                e(f"v_mov_b32 v{vT}, s{72+2*i}")
                e("s_mov_b32 exec_lo, 0")
                e(f"v_mov_b32 v{vT}, s{72+2*min(i+8, 14)}")
                e("s_mov_b32 exec_lo, -1")
                e(f"v_lshrrev_b32 v{vT}, v{vT+1}, v{vT}")
                e(f"v_bfi_b32 v{pk+4*b+r}, 1, v{vT}, v{pk+4*b+r}")
        e(f"buffer_store_dwordx4 {vr(pk+4*b,4)}, v{vOUT}, {srd(sOUT)}, s{sOB} offen offset:{64*b} {opt['outaux']}")
    e("s_nop 3")
    cvt(0); cvt(1); cvt(2); swp(0); cvt(3); cvt(4); swp(1)
    e(f"buffer_store_dwordx2 {vr(pk+8,2)}, v{vOUT2}, {srd(sOUT)}, s{sOB} offen offset:128 {opt['outaux']}")
def phase2_old():
    for p in range(4):
        ac = vACC2 + (p % 2) * 20
        for n in range(12):
            VM.wait(f"h{p}_{n}")
            if n == 0 or (n == 6 and p < 3): stamp(k=2)
            if n == 0: stamp(k=3)
            for j in range(5):
                c = "0" if n == 0 else vr(ac+4*j, 4)
                if j >= opt["nomf2"]: e(f"v_mfma_f32_16x16x32_bf16 {vr(ac+4*j,4)}, {ar(n*20+4*j,4)}, {vr(vH+(p*12+n)*4,4)}, {c}")
                if j == opt["hj"]: hload()
                if p > 0 and n >= 2 and n < 7 and j == 3:
                    pa = vACC2 + ((p-1) % 2) * 20; jj = n - 2
                    e(f"ds_write_b128 v{vRW}, {vr(pa+4*jj,4)} offset:{(p-1)*5120 + jj*1024}"); LG.issue("red")
            if p == 3 and n == 7:
                e("s_cmp_lg_u32 s2, 0")
                e("s_cbranch_scc1 L_ac_go")
                assert "allc" not in VM.q
                spin_check("ac", vAV, vAC, "allc")
                stamp(k=2)
                LG.drain(); e("s_barrier")
                stamp(k=2)
                for pp in range(3):
                    for j in range(5):
                        e(f"ds_read_b128 {vr(vH + (pp*5+j)*4, 4)}, v{vRR+pp} offset:{j*1024}"); LG.issue("rr")
            if p == 3 and n == 9:
                LG.drain()
                for i in range(20): e(f"v_add_f32 v{vH+i}, v{vH+i}, v{vH+20+i}")
            if p == 3 and n == 10:
                for i in range(20): e(f"v_add_f32 v{vH+i}, v{vH+i}, v{vH+40+i}")
    stamp(); stamp(k=2)
    ac = vACC2 + 20
    e("s_nop 3")
    for j in range(5):
        for r in range(4): e(f"v_add_f32 v{vH+4*j+r}, v{vH+4*j+r}, v{ac+4*j+r}")
    pk = vH + 64
    for j in range(5):
        for r in range(2): e(f"v_cvt_pk_bf16_f32 v{pk+2*j+r}, v{vH+4*j+2*r}, v{vH+4*j+2*r+1}")
    e("s_nop 1")
    for b in range(2):
        e(f"v_permlane32_swap_b32 v{pk+4*b}, v{pk+4*b+2}")
        e(f"v_permlane32_swap_b32 v{pk+4*b+1}, v{pk+4*b+3}")
    for b in range(2):
        e(f"buffer_store_dwordx4 {vr(pk+4*b,4)}, v{vOUT}, {srd(sOUT)}, s{sOB} offen offset:{64*b} {opt['outaux']}")
    e(f"buffer_store_dwordx2 {vr(pk+8,2)}, v{vOUT2}, {srd(sOUT)}, s{sOB} offen offset:128 {opt['outaux']}")
def phase2_ab():
    OA = opt["owna"]
    NE = opt["ne"]; NL = 12 - NE
    items = [(p, n) for p in range(3) for n in range(NE)] + [(3, n) for n in range(OA)]
    NA = len(items)
    items += [(p, n) for p in range(3) for n in range(NE, 12)] + [(3, n) for n in range(OA, 12)]
    NS = 36; vH2 = 112
    acc = lambda p, j: 24 + 20*p + 4*j
    hp = opt["hpre"]
    HI = list(range(48))
    seen = set()
    I0 = 0
    def own_mf(k):
        if not opt["own"] or k != opt["omp"]: return
        VM.wait("w0")
        for p in range(4):
            LG.wait(f"or{p}")
            for j in range(5):
                e(f"v_mfma_f32_16x16x32_bf16 {vr(acc(p,j),4)}, {ar(4*j,4)}, {vr(vH2+p*4,4)}, 0")
    if opt["own"]:
        items = [(p, 0) for p in range(4)] + [(p, n) for p in range(4) for n in range(1, 12)]
        HI = HI[4:]; I0 = 4; seen = {0, 1, 2, 3}
        for p in range(4):
            e(f"ds_read_b128 {vr(vH2+p*4, 4)}, v{vOW+2} offset:{p*1024}"); LG.issue(f"or{p}")
    def hl():
        if not HI: return
        i = HI.pop(0); p, n = items[i]
        if i == NA and not opt["dfw"]:
            spin_check("hpb", vPOLL, vPA, "pollB", sPOL, opt["nopoll"]); stamp(k=7)
        e(f"buffer_load_dwordx4 {vr(vH2 + (i % NS)*4, 4)}, v{vHB+p}, {srd(sH)}, s{sSIG+n} offen {opt['haux'].replace('-','')}"); VM.issue(f"h{i}")
    if opt["pae"] < 0:
        for f in take(max(0, len(W2L) - opt["pa"])): f()
        e(f"buffer_load_dword v{vPOLL}, v{vPA}, {srd(sH)}, s{sPOL} offen sc1"); VM.issue("poll")
        for f in take(opt["ec"]): f()
    own_mf(0)
    VM.wait("poll")
    stamp(); stamp(k=7)
    spin_check("hp", vPOLL, vPA, "poll", sPOL, opt["nopoll"])
    stamp(); stamp(k=2); stamp(k=7)
    e(f"s_add_u32 s{sPOL}, s{sPOL}, {FLB}")
    allc_load()
    for _ in range(hp): hl()
    for f in take(opt["wsk"]): f()
    own_mf(1)
    stamp()
    slots = {(i, j): [] for i in range(48) for j in range(5)}
    if opt["own"]: NA = 37
    L3 = NA + 3*NL
    for p in range(3):
        i0 = NA + NL*(p+1) if NL else NE*(p+1)
        if opt["own"]: i0 = 4 + 11*(p+1)
        for jj, (di, j) in enumerate([(1, 0), (1, 2), (1, 4), (2, 1), (2, 3)]):
            def w(jj=jj, p=p):
                e(f"ds_write_b128 v{vRW}, {vr(acc(p,jj),4)} offset:{p*5120 + jj*1024}"); LG.issue("red")
            slots[(i0 + di, j)].append(w)
    IB = L3 + opt["rb"]
    k = 0
    rest = 48 - IB
    assert rest >= 1
    rds = []
    for j in range(5):
        for pp in range(3):
            def f(pp=pp, j=j):
                e(f"ds_read_b128 {vr(acc(pp,j), 4)}, v{vRR+pp} offset:{j*1024}"); LG.issue(f"rr{j}")
            rds.append(f)
    per = 1 if rest >= 7 else 3
    for k, f in enumerate(rds): slots[(IB + k // per // 5, k // per % 5)].append(f)
    adds = []
    for j in range(5):
        for pp in (1, 2):
            for r in (0, 2):
                def a(j=j, pp=pp, r=r):
                    LG.wait(f"rr{j}")
                    if opt["epk"]: e(f"v_pk_add_f32 {vr(acc(0,j)+r,2)}, {vr(acc(0,j)+r,2)}, {vr(acc(pp,j)+r,2)}")
                    else:
                        for z in range(2): e(f"v_add_f32 v{acc(0,j)+r+z}, v{acc(0,j)+r+z}, v{acc(pp,j)+r+z}")
                adds.append(a)
    MA = 47 if rest >= 7 else None
    if MA:
        a0 = (MA - 3) * 5 - 5
        for k, f in enumerate(adds): slots[((a0 + k) // 5, (a0 + k) % 5)].append(f)
    for i, (p, n) in enumerate(items):
        if i < I0: continue
        if i == IB:
            allc_check(); stamp(k=2)
            LG.drain(); e("s_barrier")
            stamp(k=2)
        assert i not in HI and not any(f.__defaults__[0] == n for f in W2L), (i, n)
        late = max((f"h{i}", f"w{n}"), key=lambda t: len(VM.q) - 1 - VM.q[::-1].index(t) if t in VM.q else -1)
        VM.wait(late)
        if i % 8 == 0: stamp(k=2)
        def madd(j):
            if opt["epk"]:
                for r in (0, 2): e(f"v_pk_add_f32 {vr(acc(3,j)+r,2)}, {vr(acc(3,j)+r,2)}, {vr(acc(0,j)+r,2)}")
            else:
                for r in range(4): e(f"v_add_f32 v{acc(3,j)+r}, v{acc(3,j)+r}, v{acc(0,j)+r}")
        mid = i == MA
        if mid: e("s_nop 3"); madd(0)
        for j in range(5):
            c = vr(acc(p,j), 4) if p in seen else "0"
            if mid:
                if j < 4: madd(j+1)
                else: e("s_nop 1")
            e(f"v_mfma_f32_16x16x32_bf16 {vr(acc(p,j),4)}, {ar(n*20+4*j,4)}, {vr(vH2+(i % NS)*4,4)}, {c}")
            if j == opt["hj"]: hl()
            if j == 3 and i % opt["wr"] == 0:
                for f in take(1): f()
            if j == 4 and i == opt["pb"] and not opt["dfw"]:
                e(f"buffer_load_dword v{vPOLL}, v{vPA}, {srd(sH)}, s{sPOL} offen sc1"); VM.issue("pollB")
            for f in slots[(i, j)]: f()
        seen.add(p)
    stamp(); stamp(k=2); stamp(k=7)
    if opt["enc"]: stamp(True)
    ac = acc(3, 0)
    pk = vH2 + 64
    if not MA:
        for f in adds: f()
        for j in range(5): madd(j)
    def cvt(j):
        for r in range(2): e(f"v_cvt_pk_bf16_f32 v{pk+2*j+r}, v{ac+4*j+2*r}, v{ac+4*j+2*r+1}")
    def swp(b):
        e(f"v_permlane32_swap_b32 v{pk+4*b}, v{pk+4*b+2}")
        e(f"v_permlane32_swap_b32 v{pk+4*b+1}, v{pk+4*b+3}")
        if opt["enc"]:
            e("s_waitcnt lgkmcnt(0)")
            e(f"v_lshrrev_b32 v{vT+1}, 4, v{vL16}")
            for r in range(4):
                i = 4*b + r
                e(f"v_mov_b32 v{vT}, s{72+2*i}")
                e("s_mov_b32 exec_lo, 0")
                e(f"v_mov_b32 v{vT}, s{72+2*min(i+8, 14)}")
                e("s_mov_b32 exec_lo, -1")
                e(f"v_lshrrev_b32 v{vT}, v{vT+1}, v{vT}")
                e(f"v_bfi_b32 v{pk+4*b+r}, 1, v{vT}, v{pk+4*b+r}")
        e(f"buffer_store_dwordx4 {vr(pk+4*b,4)}, v{vOUT}, {srd(sOUT)}, s{sOB} offen offset:{64*b} {opt['outaux']}")
    e("s_nop 3")
    cvt(0); cvt(1); cvt(2); swp(0); cvt(3); cvt(4); swp(1)
    e(f"buffer_store_dwordx2 {vr(pk+8,2)}, v{vOUT2}, {srd(sOUT)}, s{sOB} offen offset:128 {opt['outaux']}")
assert opt["tail"]
if opt["ab"] or opt["dfw"]: phase2_ab()
else: phase2_new()
e(f"s_or_b32 s{sT0}, s{sW}, s2")
e(f"s_cmp_lg_u32 s{sT0}, 0")
e("s_cbranch_scc1 L_nobump")
e(f"s_add_u32 s{sE}, s{sE}, 1")
e(f"v_mov_b32 v{vT}, s{sE}")
e(f"s_mov_b32 s{sT0}, {EP}")
e("s_mov_b64 exec, 1")
e(f"buffer_store_dword v{vT}, off, {srd(sH)}, s{sT0}")
e("s_mov_b64 exec, -1")
e("L_nobump:")
if opt["enc"]: sys.stderr.write(f"enc stamps {NST[0]}\n")
if opt["stamps"] and not opt["enc"]:
    e("s_waitcnt vmcnt(0)")
    stamp(k=-1); stamp(True)
    ns = NST[0]
    assert 72 + 2*ns <= 102
    e("s_waitcnt lgkmcnt(0)")
    if opt["rt"]:
        e(f"s_lshl_b32 s{sT0}, s2, 2")
        e(f"s_add_u32 s{sT0}, s{sT0}, s{sW}")
        e(f"s_mul_i32 s{sT0}, s{sT0}, {ns*8}")
    else:
        e(f"s_cmp_lg_u32 s{sW}, {opt['stamps']-1}")
        e("s_cbranch_scc1 L_end")
        e(f"s_mul_i32 s{sT0}, s2, {ns*8}")
    e("s_mov_b64 exec, 1")
    e(f"s_add_u32 s{sT0}, s{sT0}, {0x8000000 - (opt['wso'] << 20)}")
    e(f"v_mov_b32 v{vT}, s{sT0}")
    for i in range(ns):
        e(f"v_mov_b32 v24, s{72+2*i}"); e(f"v_mov_b32 v25, s{73+2*i}")
        e(f"global_store_dwordx2 v{vT}, v[24:25], s[12:13] offset:{i*8}"); e("s_nop 1")
    sys.stderr.write(f"nstamps {ns}\n")
if LATE:
    e("s_endpgm")
    O.extend(LATE)
e("L_end:")

hdr = f"""; FFN out = silu(x @ w1) @ w2, one launch, 256 workgroups (one per CU).
; @launch grid=(256,1,1) block=(256,1,1) lds=163840
.amdgcn_target "amdgcn-amd-amdhsa--gfx950"
.text
.globl {NAME}
.p2align 8
.type {NAME},@function
{NAME}:
"""
ftr = f"""s_endpgm
.section .rodata,"a"
.p2align 6
.amdhsa_kernel {NAME}
  .amdhsa_next_free_vgpr 512
  .amdhsa_next_free_sgpr 102
  .amdhsa_accum_offset 256
  .amdhsa_group_segment_fixed_size 0
  .amdhsa_kernarg_size 48
  .amdhsa_user_sgpr_count 2
  .amdhsa_user_sgpr_kernarg_segment_ptr 1
  .amdhsa_system_sgpr_workgroup_id_x 1
.end_amdhsa_kernel
"""
body = "\n".join(("" if l.endswith(":") else "    ") + l.rstrip() for l in O)
open(sys.argv[1], "w").write(hdr + body + "\n" + ftr)
```

```python
import sys
NAME = "standalone__dense_activation_silu__prompt_kernel"
opt = dict(wt=-1, wts=-1, wtp=99, wth=0, wtaux='', d1=0, d7=0, w5p=4, tl=8, rpq=0, waux='', es=-1, esaux='sc1', ot=-1, otm=1, enc=0, w0p=0, own=0, omp=0, dfw=0, ne=8, clr=-1, clrs='', spec=0, fw=12, wl=0, rsp=99, rrp=0, fb=0, tch=0, la=4, tp0=0, tpos=8, th=1, ns=3, n7=0, rcs=8, epk=1, fk=0, ost=0, pae=-1, wsk=0, afs=0, ab=0, afp=0, pa=20, pb=6, wr=1, owna=0, rb=4, skipw=0, m16=0, rtm=0, po="", rsaux="sc1", emu="", emv=1, fs=128, dw=8, eq=0, ec=4, epre=16, eil="h12w9", pfm=3, stamps=0, rot=1, rot2=1, pf=1, outaux="", map=2, raux="nt", xaux="", haux="sc1", hsaux="sc1", hs2="", wb=0, wso=0, sp=0, spg="", nord=0, nomf1=0, norp=0, pk=1, tail=1, b1=4, b2=4, madd=8, pt=0, fst=0, tab="x037", nost=0, novalu=0, nomf2=0, noh=0, hj=1, w2aux="sc1", w1aux="",
           sa=0, ma=10, sb=0, mb=10, mx=0, n8=8, n9=8, nb=0, post=0, pollq=8, hpre=8, sep=0, sts=0, rpos=0, rls=0, rjs=2, rpp=0, rps=7, rck=0, nopoll=0, rfs=4, sl=0, head=50, nf0=4, pre3=0, rt=0, own2=2, ntst=10, mid=2, xlin=0, nor=0)
for a in sys.argv[2:]:
    k, v = a.split("=")
    assert k in opt, k
    opt[k] = int(v) if v.lstrip("-").isdigit() else v.replace("_", " ")
if opt["own"]: opt["dfw"] = 1; opt["ne"] = 12; assert opt["fb"] and opt["own2"] == 2
D1 = opt['d1']
if D1: assert not (opt['own'] or opt['ab'] or opt['dfw'] or opt['spec'] or opt['eq'] or opt['tch'] or opt['po']) and opt['fb'] and opt['ns'] == 3
O = []
def e(s): O.append(s)
NST = [0]
def stamp(rt=False, k=0):
    if not opt["stamps"]: return
    if not rt and NST[0] > 1 and k != opt["sts"] and k != -1: return
    i = NST[0]; NST[0] += 1
    e(f"s_memrealtime s[{72+2*i}:{73+2*i}]" if rt or opt["rt"] or opt["rtm"] else f"s_memtime s[{72+2*i}:{73+2*i}]")

class Q:
    def __init__(s, name, mx): s.name = name; s.mx = mx; s.q = []
    def issue(s, tag): s.q.append(tag)
    def wait(s, tag):
        if tag not in s.q: return
        i = len(s.q) - 1 - s.q[::-1].index(tag)
        n = min(len(s.q) - 1 - i, s.mx)
        e(f"s_waitcnt {s.name}({n})")
        s.q = s.q[len(s.q)-n:] if n else []
    def drain(s):
        e(f"s_waitcnt {s.name}(0)"); s.q = []
VM = Q("vmcnt", 63); LG = Q("lgkmcnt", 15)

FL = 0x600000; EP = 0x608000; RFL = 0x610000; W2F = 0x620000; HREC = 0x800000
if opt['spec']: FL = 0x800000; HREC = 0x820000
FS = opt["fs"]
if FS > 128: FL = 0x800000; HREC = FL + 256 * FS
FLB = 0x200000
if opt["ab"]: HREC = 0x808000
RED = 98304; RB = 98304 if opt['ns'] == 3 else 131072; CNT = 159744
NSL = opt['ns']
sX, sW1, sW2, sOUT, sH = 16, 20, 24, 28, 32
(sW, sMT, sFT, sKX, sKW, sXB, sWB, sXE, sM0, sT0, sT1, sE, sTAG, sHS, sHS2, sFLG, sPOL, sW2B, sOWN, sROT,
 sRS, sRD, sWO, sL2E) = range(36, 60)
sSIG = 60
sPK = 4; sOB = 3; sRFL = 14; sSPIN = 15
vL16 = 1; vL16b = 2; vOUT = 3; vOUT2 = 4; vRW = 5; vRP = 6; vHS = 7
vPOLL = 8; vL4 = 9; vPA = 19
vRR = 10
vHB = 13
vT = 17
vCN = 20; vONE = 21; vAV = 22; vAC = 23
vDX = 24; vDW = 26; vDR = 32
vA = 34; vB = 36
vRA = 44
vTM = 46
vACC1 = 64; vAF = 112; vBF = 160; vS = 176; vRF = 192
vWD = 56; vWT = 60; sW5B = 6; sOB2 = 7; vRW2 = 20
vH = 64; vACC2 = 24; vOW = 240; OWN = 32768; sHS1 = 6
def srd(r): return f"s[{r}:{r+3}]"
def vr(r, n): return f"v[{r}:{r+n-1}]"
def ar(r, n): return f"a[{r}:{r+n-1}]"
def capture(fn):
    global O
    sv = O; O = []; fn(); r = O; O = sv; return r

e("s_cmp_ge_u32 s2, 256")
e("s_cbranch_scc1 L_end")
stamp(True); stamp()
e("s_load_dwordx8 s[4:11], s[0:1], 0")
e("s_load_dwordx2 s[12:13], s[0:1], 40")
L, Wv = vTM, vTM+1
t0, t1, t2, t3 = vTM+2, vTM+3, vTM+4, vTM+5
e(f"v_and_b32 v{L}, 63, v0")
e(f"v_lshrrev_b32 v{Wv}, 6, v0")
e(f"v_lshlrev_b32 v{vL16}, 4, v{L}")
e(f"v_readfirstlane_b32 s{sW}, v{Wv}")
if opt["pf"]:
    e("s_getpc_b64 s[14:15]")
    e("L_pc:")
    e(f"s_lshr_b32 s{sT0}, s2, 3")
    e(f"s_and_b32 s{sT0}, s{sT0}, {opt['pfm']}")
    e(f"s_lshl_b32 s{sT0}, s{sT0}, 12")
    e(f"v_lshl_add_u32 v{t0}, v0, 4, s{sT0}")
    e(f"v_min_u32 v{t0}, L_end-L_pc-16, v{t0}")
    e(f"global_load_dwordx4 v[252:255], v{t0}, s[14:15]")
    VM.issue("pf")
fa = opt["map"]
e(f"s_and_b32 s{sT0}, s2, 7")
e(f"s_lshr_b32 s{sT1}, s2, 3")
e(f"s_and_b32 s{sFT}, s{sT1}, {(1<<fa)-1}")
e(f"s_lshr_b32 s{sMT}, s{sT1}, {fa}")
if opt["rot"] == 3:
    tb = str(opt["tab"]).lstrip("x")
    tv = sum(int(c) << (4*i) for i, c in enumerate((tb * 16)[:16]))
    e(f"s_mul_i32 s{sKX}, s{sMT}, {opt['ma']}")
    e(f"s_mul_i32 s{sT1}, s{sFT}, {opt['mb']}")
    e(f"s_add_u32 s{sKX}, s{sKX}, s{sT1}")
    e(f"s_lshl_b32 s{sKX}, s{sKX}, 2")
    e(f"s_mov_b32 s{sSIG}, {tv & 0xffffffff}")
    e(f"s_mov_b32 s{sSIG+1}, {tv >> 32}")
    e(f"s_lshr_b64 s[{sSIG}:{sSIG+1}], s[{sSIG}:{sSIG+1}], s{sKX}")
    e(f"s_and_b32 s{sKX}, s{sSIG}, 15")
elif opt["rot"]:
    e(f"s_lshr_b32 s{sKX}, s{sMT}, {opt['sa']}")
    e(f"s_mul_i32 s{sKX}, s{sKX}, {opt['ma']}")
    e(f"s_lshr_b32 s{sT1}, s{sFT}, {opt['sb']}")
    e(f"s_mul_i32 s{sT1}, s{sT1}, {opt['mb']}")
    e(f"s_add_u32 s{sKX}, s{sKX}, s{sT1}")
    if opt['mx']:
        e(f"s_mul_i32 s{sT1}, s{sT0}, {opt['mx']}")
        e(f"s_add_u32 s{sKX}, s{sKX}, s{sT1}")
    e(f"s_lshr_b32 s{sKX}, s{sKX}, 2")
    e(f"s_mul_i32 s{sT1}, s{sKX}, 205")
    e(f"s_lshr_b32 s{sT1}, s{sT1}, 11")
    e(f"s_mul_i32 s{sT1}, s{sT1}, 10")
    e(f"s_sub_u32 s{sKX}, s{sKX}, s{sT1}")
else:
    e(f"s_mov_b32 s{sKX}, 0")
if opt["ab"]:
    e(f"s_lshl_b32 s{sROT}, s{sMT}, 2")
elif opt["rot2"] == 3:
    e(f"s_and_b32 s{sROT}, s{sMT}, 1")
    e(f"s_mul_i32 s{sROT}, s{sROT}, 6")
elif opt["rot2"] == 4:
    e(f"s_lshr_b32 s{sROT}, s{sMT}, 1")
    e(f"s_mul_i32 s{sROT}, s{sROT}, 3")
elif opt["rot2"] == 5:
    e(f"s_and_b32 s{sROT}, s{sMT}, 3")
elif opt["rot2"] == 6:
    e(f"s_mul_i32 s{sROT}, s{sMT}, 3")
    e(f"s_lshr_b32 s{sROT}, s{sROT}, 3")
    e(f"s_lshl_b32 s{sROT}, s{sROT}, 2")
elif opt["rot2"] == 2:
    e(f"s_and_b32 s{sROT}, s{sMT}, 3")
    e(f"s_mul_i32 s{sROT}, s{sROT}, 3")
elif opt["rot2"]:
    e(f"s_mul_i32 s{sROT}, s{sMT}, 12")
    e(f"s_lshr_b32 s{sROT}, s{sROT}, {5-fa}")
else:
    e(f"s_mov_b32 s{sROT}, 0")
e(f"s_and_b32 s{sT1}, s{sT0}, {(8>>fa)-1}")
e(f"s_lshl_b32 s{sT1}, s{sT1}, {fa}")
e(f"s_add_u32 s{sFT}, s{sFT}, s{sT1}")
e(f"s_lshr_b32 s{sT1}, s{sT0}, {3-fa}")
e(f"s_lshl_b32 s{sT1}, s{sT1}, {5-fa}")
e(f"s_add_u32 s{sMT}, s{sMT}, s{sT1}")
e(f"s_mul_i32 s{sXB}, s{sMT}, 81920")
e(f"s_mul_i32 s{sWB}, s{sFT}, 384")
e(f"s_add_u32 s{sXE}, s{sXB}, 1280")
e(f"s_mul_i32 s{sKW}, s{sKX}, {64*3072}")
e(f"s_add_u32 s{sKW}, s{sKW}, s{sWB}")
e(f"s_lshl_b32 s{sKX}, s{sKX}, 7")
e(f"s_add_u32 s{sKX}, s{sKX}, s{sXB}")
G = vTM+6
e(f"v_lshrrev_b32 v{G}, 4, v{L}")
e(f"v_lshrrev_b32 v{t0}, 3, v{L}")
e(f"v_lshl_add_u32 v{t0}, v{Wv}, 4, v{t0}")
e(f"v_mul_u32_u24 v{t0}, 1280, v{t0}")
e(f"v_and_b32 v{t1}, 7, v{L}")
e(f"v_xor_b32 v{t1}, v{t1}, v{G}")
e(f"v_lshl_add_u32 v{vDX}, v{t1}, 4, v{t0}")
e(f"v_xor_b32 v{t1}, 4, v{t1}")
e(f"v_lshl_add_u32 v{vDX+1}, v{t1}, 4, v{t0}")
e(f"v_add_u32 v{vDX+1}, {8*1280-1024}, v{vDX+1}")
if opt["xlin"]:
    e(f"v_lshl_add_u32 v{vDX}, v{Wv}, 11, v{vL16}")
    e(f"v_mov_b32 v{vDX+1}, v{vDX}")
    e(f"s_and_b32 s{sT0}, s{sFT}, 3")
    e(f"s_mul_i32 s{sT0}, s{sT0}, {opt['xlin']}")
    e(f"s_lshr_b32 s{sT0}, s{sT0}, 2")
    e(f"s_lshl_b32 s100, s{sT0}, 13")
    e(f"s_add_u32 s100, s100, s{sXB}")
    e(f"s_add_u32 s101, s{sXB}, 81920")
e(f"v_mul_u32_u24 v{t3}, {16*3072}, v{Wv}")
for i in range(3):
    if i: e(f"v_add_u32 v{t0}, {64*i}, v{L}")
    src = t0 if i else L
    e(f"v_mul_u32_u24 v{t1}, 2731, v{src}")
    e(f"v_lshrrev_b32 v{t1}, 16, v{t1}")
    e(f"v_mul_u32_u24 v{t2}, 24, v{t1}")
    e(f"v_sub_u32 v{t0}, v{src}, v{t2}")
    e(f"v_and_b32 v{t2}, 2, v{t1}")
    e(f"v_lshlrev_b32 v{t2}, 1, v{t2}")
    e(f"v_xor_b32 v{t0}, v{t0}, v{t2}")
    e(f"v_mul_u32_u24 v{t1}, 3072, v{t1}")
    e(f"v_lshl_add_u32 v{t0}, v{t0}, 4, v{t1}")
    e(f"v_add_u32 v{t0}, v{t0}, v{t3}")
    if i: e(f"v_subrev_u32 v{vDW+i}, {i*1024}, v{t0}")
    else: e(f"v_mov_b32 v{vDW}, v{t0}")
    e(f"v_add_u32 v{vDW+3+i}, {8*3072 - ((i+3)%4)*1024}, v{t0}")
vTC = 250
if opt["tch"]:
    e(f"v_lshrrev_b32 v{t0}, 1, v{L}")
    e(f"v_mul_u32_u24 v{t1}, 1280, v{t0}")
    e(f"v_mul_u32_u24 v{t2}, 43, v{t0}")
    e(f"v_lshrrev_b32 v{t2}, 7, v{t2}")
    e(f"v_mul_u32_u24 v{t2}, {3072-384}, v{t2}")
    e(f"v_lshl_add_u32 v{t2}, v{t0}, 7, v{t2}")
    e(f"s_and_b32 s{sT0}, s{sFT}, 3")
    e(f"s_lshl_b32 s{sT0}, s{sT0}, 1")
    e(f"s_lshr_b32 s{sT1}, s{sW}, 1")
    e(f"s_add_u32 s{sT0}, s{sT0}, s{sT1}")
    e(f"s_mul_i32 s{sT0}, s{sT0}, {8*1280}")
    e(f"s_and_b32 s{sWO}, s{sMT}, 7")
    e(f"s_lshl_b32 s{sWO}, s{sWO}, 1")
    e(f"s_add_u32 s{sWO}, s{sWO}, s{sT1}")
    e(f"s_mul_i32 s{sWO}, s{sWO}, {4*3072}")
    e(f"s_add_u32 s{sT1}, s{sWB}, {640*3072}")
    e(f"s_bitcmp1_b32 s{sW}, 0")
    e(f"s_cselect_b64 vcc, -1, 0")
    e(f"v_cndmask_b32 v{vTC}, v{t1}, v{t2}, vcc")
    e(f"s_cselect_b32 s{sT0}, s{sWO}, s{sT0}")
    e(f"s_mov_b32 s{sWO}, {0xffff if opt['th'] else 0x5555}")
    e(f"s_cselect_b32 s{sWO}, {0xffffff if opt['th'] else 0x555555}, s{sWO}")
    e(f"s_cselect_b32 s{sHS}, s{sKW}, s{sKX}")
    e(f"s_movk_i32 s{sHS2}, 128")
    e(f"s_cselect_b32 s{sHS2}, {64*3072}, s{sHS2}")
    e(f"v_and_b32 v{t0}, 1, v{L}")
    e(f"v_lshl_add_u32 v{vTC}, v{t0}, 6, v{vTC}")
    e(f"v_add_u32 v{vTC}, s{sT0}, v{vTC}")
    e(f"s_cselect_b32 vcc_lo, s{sT1}, s{sXE}")
    e(f"s_cselect_b32 vcc_hi, s{sWB}, s{sXB}")
e(f"s_lshl_b32 s{sM0}, s{sW}, 13")
CLR = opt["clr"] >= 0 or opt["clrs"]
sCL = sHS
vNAN = 244
if CLR:
    e(f"s_lshl_b32 s{sT0}, s{sMT}, 2")
    e(f"s_lshr_b32 s{sT1}, s{sFT}, 1")
    e(f"s_add_u32 s{sT0}, s{sT0}, s{sT1}")
    e(f"s_lshl_b32 s{sT0}, s{sT0}, 2")
    e(f"s_add_u32 s{sT0}, s{sT0}, s{sW}")
    e(f"s_lshl_b32 s{sT0}, s{sT0}, 1")
    e(f"s_and_b32 s{sT1}, s{sFT}, 1")
    e(f"s_add_u32 s{sT0}, s{sT0}, s{sT1}")
    e(f"s_mul_i32 s{sT0}, s{sT0}, 6144")
    e(f"v_add_u32 v248, s{sT0}, v{vL16}")
    e(f"v_add_u32 v249, 3072, v248")
    for r in range(4): e(f"v_mov_b32 v{vNAN+r}, -1")
def clr_ops():
    def mk(i):
        def f():
            e(f"buffer_store_dwordx4 {vr(vNAN,4)}, v{248 + i//3}, {srd(sH)}, 0 offen offset:{(i%3)*1024} sc1"); VM.issue("clr")
        return f
    return [mk(i) for i in range(6)]
CLO = clr_ops()
e(f"s_mov_b32 s{sSPIN}, {EP}")
for r, n in ((sX, 2621440), (sW1, 1966080), (sW2, 1966080), (sOUT, 2621440), (sH, HREC)):
    e(f"s_mov_b32 s{r+2}, {n}"); e(f"s_mov_b32 s{r+3}, 0x20000")
e("s_waitcnt lgkmcnt(0)")
if opt["wso"]:
    e(f"s_add_u32 s12, s12, {opt['wso'] << 20}"); e("s_addc_u32 s13, s13, 0")
for r, p in ((sW2, 8), (sX, 4), (sW1, 6), (sOUT, 10), (sH, 12)):
    e(f"s_mov_b64 s[{r}:{r+1}], s[{p}:{p+1}]")
if opt["tch"]:
    e(f"s_bitcmp1_b32 s{sW}, 0")
    e(f"s_cselect_b64 s[8:9], s[6:7], s[4:5]")
    e(f"s_cselect_b32 s10, s{sW1+2}, s{sX+2}")
    e("s_mov_b32 s11, 0x20000")
    e(f"s_mov_b32 s6, s{sHS}")
    e(f"s_mov_b32 s7, s{sHS2}")
def touch():
    e("s_add_u32 s6, s6, s7")
    e("s_cmp_eq_u32 s6, vcc_lo")
    e("s_cselect_b32 s6, vcc_hi, s6")
    e(f"s_mov_b32 exec_lo, s{sWO}")
    e("s_mov_b32 exec_hi, 0")
    e(f"buffer_load_dword v251, v{vTC}, s[8:11], s6 offen"); VM.issue("tch")
    e("s_mov_b64 exec, -1")
stamp()
e(f"s_load_dword s{sE}, s[12:13], s{sSPIN}")

def adv_k():
    if opt["xlin"]:
        e(f"s_add_u32 s100, s100, 8192")
        e(f"s_cmp_eq_u32 s100, s101")
        e(f"s_cselect_b32 s100, s{sXB}, s100")
    e(f"s_add_u32 s{sKX}, s{sKX}, 128")
    e(f"s_add_u32 s{sKW}, s{sKW}, {64*3072}")
    e(f"s_cmp_eq_u32 s{sKX}, s{sXE}")
    e(f"s_cselect_b32 s{sKX}, s{sXB}, s{sKX}")
    e(f"s_cselect_b32 s{sKW}, s{sWB}, s{sKW}")
def dma_ops(st):
    base = (st % NSL) * 32768
    def mk(i):
        def f():
            if i == 0: e(f"s_add_u32 m0, s{sM0}, {base+6144}"); e("s_nop 0")
            if i < 2:
                e(f"buffer_load_dwordx4 v{vDX+i}, {srd(sX)}, s{100 if opt['xlin'] else sKX} offen offset:{i*1024} {opt['xaux'] if st < opt['ntst'] else ''} lds")
            else:
                j = i - 2
                e(f"buffer_load_dwordx4 v{vDW+j}, {srd(sW1)}, s{sKW} offen offset:{(j%4)*1024} {opt['w1aux'] if st < opt['ntst'] else ''} lds")
            VM.issue(f"st{st}")
            if i == 1: e(f"s_add_u32 m0, s{sM0}, {base}"); e("s_nop 0")
            if i == 5: e(f"s_add_u32 m0, s{sM0}, {base+4096}"); e("s_nop 0")
            if i == 7 and st < 9: adv_k()
        return f
    return [mk(i) for i in range(8)]

def setup2():
    R, C = t0, t1
    u0, u1, u2 = vTM+7, vTM+8, vTM+9
    if D1:
        e(f"s_lshr_b32 s{sT1}, s2, 1")
        e(f"s_and_b32 s{sT0}, s2, 1")
        e(f"s_mul_i32 s{sRFL}, s{sT0}, 48")
        e(f"s_add_u32 s{sRFL}, s{sRFL}, s{sT1}")
        e(f"s_lshl_b32 s{sRFL}, s{sRFL}, 7")
        e(f"s_lshl_b32 s{sRS}, s{sT1}, 2")
        e(f"s_add_u32 s{sRS}, s{sRS}, s{sW}")
        e(f"s_mul_i32 s{sRS}, s{sRS}, 10240")
        e(f"s_lshl_b32 s{sT0}, s{sT0}, 7")
        e(f"s_add_u32 s{sRS}, s{sRS}, s{sT0}")
        e(f"s_add_u32 s{sRS}, s{sRS}, 1024")
        e(f"s_lshl_b32 s{sRD}, s2, 2")
        e(f"s_add_u32 s{sRD}, s{sRD}, s{sW}")
        e(f"s_lshl_b32 s{sRD}, s{sRD}, 10")
        e(f"s_add_u32 s{sRD}, s{sRD}, {W2F}")
        e(f"s_cmp_lt_u32 s2, {0 if opt['nor'] else 96}")
        e(f"s_cselect_b32 s{sRS}, s{sRS}, 1966080")
        e(f"s_cselect_b32 s{sRD}, s{sRD}, {HREC}")
        e(f"s_cselect_b32 s{sRFL}, s{sRFL}, {HREC - RFL}")
    else:
        e(f"s_and_b32 s{sT0}, s2, 63")
        e(f"s_mul_i32 s{sT1}, s{sT0}, 205")
        e(f"s_lshr_b32 s{sT1}, s{sT1}, 10")
        e(f"s_mul_i32 s{sRS}, s{sT1}, 5")
        e(f"s_sub_u32 s{sRS}, s{sT0}, s{sRS}")
        e(f"s_lshr_b32 s{sRD}, s2, 6")
        e(f"s_mul_i32 s{sRFL}, s{sRD}, 5")
        e(f"s_add_u32 s{sRFL}, s{sRFL}, s{sRS}")
        e(f"s_lshl_b32 s{sRFL}, s{sRFL}, 4")
        e(f"s_add_u32 s{sRFL}, s{sRFL}, s{sT1}")
        e(f"s_lshl_b32 s{sRFL}, s{sRFL}, 7")
        if opt["own"]:
            e(f"s_mul_i32 s6, s{sT1}, 6")
            e(f"s_add_u32 s6, s6, s{sRD}")
            e(f"s_lshr_b32 s7, s{sT1}, 1")
            e(f"s_mul_i32 s7, s7, 6")
            e(f"s_and_b32 s8, s{sT1}, 1")
            e(f"s_add_u32 s7, s7, s8")
            e(f"s_mul_i32 s8, s{sRD}, 12")
            e(f"s_add_u32 s7, s7, s8")
            e(f"s_sub_u32 s7, s7, 20")
            e(f"s_cmp_lt_u32 s{sT1}, 8")
            e(f"s_cselect_b32 s6, s6, s7")
            e(f"s_mul_i32 s6, s6, 40960")
        e(f"s_mul_i32 s{sRD}, s{sRD}, 12")
        e(f"s_add_u32 s{sT1}, s{sT1}, s{sRD}")
        e(f"s_mul_i32 s{sT1}, s{sT1}, 40960")
        e(f"s_lshl_b32 s{sRD}, s{sRS}, 13")
        e(f"s_add_u32 s{sRD}, s{sRD}, s{sT1}")
        e(f"s_lshl_b32 s{sRS}, s{sRS}, 8")
        e(f"s_add_u32 s{sRS}, s{sRS}, s{6 if opt['own'] else sT1}")
        e(f"s_lshl_b32 s{sT1}, s{sW}, 11")
        e(f"s_add_u32 s{sRD}, s{sRD}, s{sT1}")
        e(f"s_add_u32 s{sRD}, s{sRD}, {W2F}")
        e(f"s_cmp_lt_u32 s{sT0}, {0 if opt['nor'] else 60}")
        e(f"s_cselect_b32 s{sRS}, s{sRS}, 1966080")
        e(f"s_cselect_b32 s{sRD}, s{sRD}, {HREC}")
    if opt["pt"] & 1:
        e(f"s_min_u32 s{sT1}, s{sRS}, {1966080-4}")
        e(f"s_load_dword s6, s[8:9], s{sT1}")
    if opt["pt"] & 2:
        e(f"s_mul_i32 s{sT1}, s{sMT}, {64*3072}")
        e(f"s_load_dword s6, s[12:13], s{sT1}")
    if opt["pt"] & 4:
        e(f"s_load_dword s6, s[10:11], s{sXB}")
    if opt["pt"] & 8:
        e(f"s_load_dword s6, s[12:13], s{sRD}")
    if D1:
        e(f"v_lshrrev_b32 v{t0}, 3, v{L}")
        e(f"v_mul_u32_u24 v{t0}, 1280, v{t0}")
        e(f"v_and_b32 v{t1}, 7, v{L}")
        e(f"v_lshlrev_b32 v{t2}, 1, v{G}")
        e(f"v_xor_b32 v{t1}, v{t1}, v{t2}")
        e(f"v_lshl_add_u32 v{vWD}, v{t1}, 4, v{t0}")
        for i in range(1, 4): e(f"v_add_u32 v{vWD+i}, {i*(10240-1024)}, v{vWD}")
    else:
        e(f"v_lshl_add_u32 v{t0}, v{Wv}, 3, v{G}")
        e(f"v_mul_u32_u24 v{t0}, 1280, v{t0}")
        e(f"v_and_b32 v{t1}, 15, v{L}")
        e(f"v_lshlrev_b32 v{t2}, 1, v{G}")
        e(f"v_xor_b32 v{t1}, v{t1}, v{t2}")
        e(f"v_lshl_add_u32 v{vDR}, v{t1}, 4, v{t0}")
        e(f"v_xor_b32 v{t1}, 8, v{t1}")
        e(f"v_lshl_add_u32 v{vDR+1}, v{t1}, 4, v{t0}")
        e(f"v_add_u32 v{vDR+1}, {4*1280-1024}, v{vDR+1}")
    e(f"v_bfe_u32 v{R}, v{L}, 2, 2")
    e(f"v_and_b32 v{C}, 3, v{L}")
    e(f"v_lshrrev_b32 v{u0}, 1, v{G}")
    e(f"v_lshl_add_u32 v{u0}, v{u0}, 3, v{R}")
    e(f"v_mul_u32_u24 v{u0}, 384, v{u0}")
    e(f"v_lshrrev_b32 v{u1}, 1, v{R}")
    e(f"v_xor_b32 v{u1}, v{u1}, v{Wv}")
    e(f"v_and_b32 v{u1}, 1, v{u1}")
    e(f"v_lshl_add_u32 v{u0}, v{u1}, 6, v{u0}")
    e(f"v_and_b32 v{u1}, 1, v{G}")
    e(f"v_lshl_add_u32 v{u0}, v{u1}, 5, v{u0}")
    e(f"v_lshl_add_u32 v{vA}, v{C}, 3, v{u0}")
    e(f"v_add_u32 v{vA+1}, 65536, v{vA}")
    e(f"v_and_b32 v{u0}, 2, v{Wv}")
    e(f"v_add_u32 v{u0}, v{u0}, v{u1}")
    e(f"v_lshlrev_b32 v{u0}, 13, v{u0}")
    e(f"v_and_b32 v{u2}, 15, v{L}")
    e(f"v_lshl_add_u32 v{u0}, v{u2}, 7, v{u0}")
    e(f"v_add_u32 v{u0}, 6144, v{u0}")
    e(f"v_lshrrev_b32 v{u1}, 1, v{u2}")
    e(f"v_lshrrev_b32 v{t2}, 5, v{L}")
    e(f"v_xor_b32 v{u1}, v{u1}, v{t2}")
    e(f"v_lshl_add_u32 v{vB}, v{u1}, 4, v{u0}")
    for k in range(1, 4): e(f"v_xor_b32 v{vB+k}, {32*k}, v{vB}")
    for k in range(4): e(f"v_add_u32 v{vB+4+k}, 65536, v{vB+k}")
    if D1:
        e(f"v_and_b32 v{u1}, 1, v{G}")
        e(f"v_lshl_add_u32 v{u1}, v{u1}, 2, v{R}")
        e(f"v_lshlrev_b32 v{u0}, 11, v{t2}")
        e(f"v_lshl_add_u32 v{u0}, v{u1}, 7, v{u0}")
        e(f"v_lshrrev_b32 v{u1}, 1, v{u1}")
        e(f"v_lshl_add_u32 v{u0}, v{u1}, 5, v{u0}")
        e(f"v_and_b32 v{u1}, 1, v{C}")
        e(f"v_lshl_add_u32 v{u0}, v{u1}, 4, v{u0}")
        e(f"v_lshrrev_b32 v{u1}, 1, v{C}")
        e(f"v_lshl_add_u32 v{u0}, v{u1}, 3, v{u0}")
        e(f"v_add_u32 v{u0}, {RB}, v{u0}")
        e(f"v_lshlrev_b32 v{t3}, 5, v{Wv}")
        e(f"v_xor_b32 v{vRA}, v{u0}, v{t3}")
        e(f"v_add_u32 v{vWT}, s{sM0}, v{u0}")
        for j in range(1, 4): e(f"v_xor_b32 v{vWT+j}, {32*j}, v{vWT}")
    else:
        e(f"v_and_b32 v{u1}, 1, v{G}")
        e(f"v_lshl_add_u32 v{u1}, v{u1}, 2, v{R}")
        e(f"v_lshlrev_b32 v{u0}, 12, v{t2}")
        e(f"v_lshl_add_u32 v{u0}, v{u1}, 8, v{u0}")
        e(f"v_lshlrev_b32 v{t3}, 1, v{Wv}")
        e(f"v_xor_b32 v{u1}, v{u1}, v{t3}")
        e(f"v_lshl_add_u32 v{u0}, v{u1}, 5, v{u0}")
        e(f"v_and_b32 v{u1}, 1, v{C}")
        e(f"v_lshl_add_u32 v{u0}, v{u1}, 4, v{u0}")
        e(f"v_lshrrev_b32 v{u1}, 1, v{C}")
        e(f"v_lshl_add_u32 v{u0}, v{u1}, 3, v{u0}")
        e(f"v_add_u32 v{vRA}, {RB}, v{u0}")
        e(f"v_xor_b32 v{vRA+1}, 32, v{vRA}")
    if not D1:
        e(f"v_mov_b32 v{vCN}, {CNT}")
        e(f"v_mov_b32 v{vONE}, 0")
        e(f"ds_write_b32 v{vCN}, v{vONE}"); LG.issue("cnt")
    if opt["ab"]: e(f"ds_write_b32 v{vCN}, v{vONE} offset:4"); LG.issue("cnt")
    for i in range(48): e(f"v_mov_b32 v{vACC1+i}, 0")
    if not D1: e(f"v_mov_b32 v{vONE}, 1")
    e(f"v_and_b32 v{u1}, 1, v{G}")
    e(f"v_mul_u32_u24 v{u0}, 12288, v{u1}")
    e(f"v_lshl_add_u32 v{u0}, v{t2}, 8, v{u0}")
    e(f"v_lshl_add_u32 v{vHS}, v{u2}, 4, v{u0}")
    if opt["own"]:
        e(f"s_and_b32 s{sT0}, s{sW}, 1")
        e(f"s_and_b32 s{sT1}, s{sW}, 2")
        e(f"s_sub_u32 s{sT1}, s{sT1}, s{sT0}")
        e(f"s_add_u32 s{sT1}, s{sT1}, 3")
        e(f"v_add_u32 v{u0}, s{sT1}, v{u1}")
        e(f"v_and_b32 v{u0}, 3, v{u0}")
        e(f"s_lshl_b32 s{sT0}, s{sT0}, 12")
        e(f"s_add_u32 s{sT0}, s{sT0}, {OWN}")
        e(f"v_lshl_add_u32 v{u0}, v{u0}, 10, s{sT0}")
        e(f"v_lshl_add_u32 v{u0}, v{t2}, 8, v{u0}")
        e(f"v_lshl_add_u32 v{vOW}, v{u2}, 4, v{u0}")
        e(f"v_xor_b32 v{vOW+1}, 2048, v{vOW}")
        e(f"s_lshl_b32 s{sT0}, s{sW}, 12")
        e(f"s_add_u32 s{sT0}, s{sT0}, {OWN}")
        e(f"v_add_u32 v{vOW+2}, s{sT0}, v{vL16}")
    e(f"v_mul_u32_u24 v{u0}, 1280, v{u2}")
    e(f"v_lshl_add_u32 v{vOUT}, v{G}, 4, v{u0}")
    e(f"v_lshl_add_u32 v{u0}, v{u1}, 4, v{u0}")
    e(f"v_lshl_add_u32 v{vOUT2}, v{t2}, 3, v{u0}")
    if not D1: e(f"v_add_u32 v{vL16b}, 4096, v{vL16}")
    if D1:
        e(f"s_lshr_b32 s{sT0}, s{sFT}, 2")
        e(f"s_lshl_b32 s{sT0}, s{sT0}, 2")
        e(f"s_add_u32 s{sT0}, s{sT0}, s{sW}")
        e(f"s_mul_i32 s{sT0}, s{sT0}, {12*128}")
        e(f"v_min_u32 v{vRP}, 11, v{u2}")
        e(f"v_lshl_add_u32 v{vRP}, v{vRP}, 7, s{sT0}")
    else:
        e(f"s_mul_i32 s{sT0}, s{sFT}, 5")
        e(f"v_lshl_add_u32 v{u0}, v{u1}, 2, s{sT0}")
        e(f"v_lshrrev_b32 v{u0}, 3, v{u0}")
        e(f"v_mad_u32_u24 v{u0}, v{Wv}, 5, v{u0}")
        e(f"v_min_u32 v{vRP}, 11, v{u2}")
        e(f"v_lshlrev_b32 v{vRP}, 7, v{vRP}")
        e(f"v_lshl_add_u32 v{vRP}, v{u0}, 11, v{vRP}")
    e(f"v_lshlrev_b32 v{vL4}, 2, v{L}")
    if opt["own"]:
        e(f"v_and_b32 v{vPA}, 7, v{L}")
        e(f"v_lshlrev_b32 v{vPA}, 7, v{vPA}")
    else: e(f"v_mul_u32_u24 v{vPA}, {FS}, v{u1}")
    if D1:
        assert FS == 128
        e(f"v_lshlrev_b32 v{vAC}, 7, v0")
        e(f"s_add_u32 s{sT0}, s{sM0}, 32768")
        e(f"v_add_u32 v{vRW}, s{sT0}, v{vL16}")
        e(f"v_add_u32 v{vRW2}, 65536, v{vRW}")
        for p in range(3):
            e(f"s_sub_u32 s{sT0}, s{sW}, {1+p}")
            e(f"s_and_b32 s{sT0}, s{sT0}, 3")
            e(f"s_lshl_b32 s{sT0}, s{sT0}, 13")
            e(f"s_add_u32 s{sT0}, s{sT0}, {32768*(p+1)}")
            e(f"v_add_u32 v{vRR+p}, s{sT0}, v{vL16}")
        e(f"s_mul_i32 s{sW2B}, s{sW}, {12*40960}")
        e(f"s_lshl_b32 s{sT0}, s{sFT}, 7")
        e(f"s_add_u32 s{sW2B}, s{sW2B}, s{sT0}")
        e(f"s_mul_i32 s{sW5B}, s{sW}, 96")
        e(f"s_add_u32 s{sW5B}, s{sW5B}, s{sFT}")
        e(f"s_lshl_b32 s{sW5B}, s{sW5B}, 10")
        e(f"s_add_u32 s{sW5B}, s{sW5B}, {W2F}")
    else:
        e(f"v_mul_u32_u24 v{u0}, 205, v{L}")
        e(f"v_lshrrev_b32 v{u0}, 10, v{u0}")
        e(f"v_sub_u32 v{vAC}, v{Wv}, v{u0}")
        e(f"v_mad_i32_i24 v{vAC}, v{vAC}, 5, v{L}")
        e(f"v_lshlrev_b32 v{vAC}, 11, v{vAC}")
        e(f"v_lshl_add_u32 v{vAC}, v{u0}, 7, v{vAC}")
        e(f"s_mul_i32 s{sT0}, s{sW}, 15360")
        e(f"s_add_u32 s{sT0}, s{sT0}, {RED}")
        e(f"v_add_u32 v{vRW}, s{sT0}, v{vL16}")
        for p in range(3):
            e(f"s_sub_u32 s{sT0}, s{sW}, {1+p}")
            e(f"s_and_b32 s{sT0}, s{sT0}, 3")
            e(f"s_mul_i32 s{sT0}, s{sT0}, 15360")
            e(f"s_add_u32 s{sT0}, s{sT0}, {RED + p*5120}")
            e(f"v_add_u32 v{vRR+p}, s{sT0}, v{vL16}")
        e(f"s_mul_i32 s{sW2B}, s{sW}, {12*40960}")
        e(f"s_mul_i32 s{sT0}, s{sFT}, 5120")
        e(f"s_add_u32 s{sW2B}, s{sW2B}, s{sT0}")
        e(f"s_add_u32 s{sW2B}, s{sW2B}, {W2F}")
    if opt["ab"]:
        e(f"s_mov_b32 s{sSIG+6}, 0x98763210"); e(f"s_mov_b32 s{sSIG+7}, 0x98763210")
        e(f"s_lshr_b64 s[{sSIG+6}:{sSIG+7}], s[{sSIG+6}:{sSIG+7}], s{sROT}")
        e(f"s_mov_b32 s{sSIG+7}, s{sSIG+6}")
        e(f"s_and_b32 s{sROT}, s{sROT}, 12")
        e(f"s_lshr_b32 s{sSIG+11}, 0xba54ba54, s{sROT}")
        for n in range(12):
            src = sSIG+7 if n < 8 else sSIG+11
            e(f"s_bfe_u32 s{sSIG+n}, s{src}, {0x40000 + 4*(n%8)}")
            e(f"s_lshl_b32 s{sSIG+n}, s{sSIG+n}, 10")
    if opt["own"]:
        e(f"s_lshl_b32 s{sSIG}, s{sFT}, 10")
        for n in range(1, 12):
            e(f"s_cmp_eq_u32 s{sROT}, s{sFT}")
            e(f"s_addc_u32 s{sROT}, s{sROT}, 0")
            e(f"s_lshl_b32 s{sSIG+n}, s{sROT}, 10")
            if n < 11:
                e(f"s_add_u32 s{sROT}, s{sROT}, 1")
                e(f"s_cmp_ge_u32 s{sROT}, 12")
                e(f"s_cselect_b32 s{sROT}, 0, s{sROT}")
    for n in range(12 if not opt["ab"] and not opt["own"] else 0):
        e(f"s_lshl_b32 s{sSIG+n}, s{sROT}, 10")
        if n < 11:
            e(f"s_add_u32 s{sROT}, s{sROT}, 1")
            e(f"s_cmp_ge_u32 s{sROT}, 12")
            e(f"s_cselect_b32 s{sROT}, 0, s{sROT}")
    if opt["own2"] == 2:
        e(f"s_mov_b32 s{sOWN}, s{sW}")
    elif opt["own2"] == 3:
        e(f"s_and_b32 s{sOWN}, s{sFT}, 1")
        e(f"s_add_u32 s{sOWN}, s{sW}, s{sOWN}")
    elif opt["own2"]:
        e(f"s_lshl_b32 s{sOWN}, s{sFT}, 1")
        e(f"s_add_u32 s{sOWN}, s{sW}, s{sOWN}")
    else: e(f"s_add_u32 s{sOWN}, s{sW}, s{sFT}")
    e(f"s_and_b32 s{sOWN}, s{sOWN}, 3")
    e(f"s_lshl_b32 s{sT1}, s{sMT}, 2")
    e(f"s_add_u32 s{sT1}, s{sT1}, s{sW}")
    if opt["own"]: e(f"s_lshl_b32 s{sPOL}, s{sMT}, 10")
    else: e(f"s_mul_i32 s{sPOL}, s{sT1}, {2*FS}")
    e(f"s_add_u32 s{sPOL}, s{sPOL}, {FL}")
    e(f"s_lshl_b32 s{sT1}, s{sT1}, 2")
    for p in range(4):
        e(f"s_add_u32 s{sT0}, s{sOWN}, {1+p}")
        e(f"s_and_b32 s{sT0}, s{sT0}, 3")
        e(f"s_add_u32 s{sT0}, s{sT0}, s{sT1}")
        e(f"s_mul_i32 s{sT0}, s{sT0}, 12288")
        e(f"v_add_u32 v{vHB+p}, s{sT0}, v{vL16}")
    e(f"s_lshl_b32 s{sOB}, s{sMT}, 2")
    e(f"s_add_u32 s{sOB}, s{sOB}, s{sOWN}")
    e(f"s_mul_i32 s{sOB}, s{sOB}, {16*1280}")
    if D1:
        e(f"s_lshl_b32 s{sT0}, s{sFT}, 5")
        e(f"s_add_u32 s{sOB2}, s{sOB}, s{sT0}")
        e(f"s_add_u32 s{sOB2}, s{sOB2}, {1024-128}")
    e(f"s_mul_i32 s{sT0}, s{sFT}, {128 if D1 else 160}")
    e(f"s_add_u32 s{sOB}, s{sOB}, s{sT0}")
    if opt["ost"]:
        e(f"s_cmp_ge_u32 s{sW}, {opt['ost']}")
        e(f"s_cselect_b32 s{sOB}, s{sOB}, 2621440")
    e(f"s_lshl_b32 s{sT0}, s{sMT}, 2")
    e(f"s_lshr_b32 s{sT1}, s{sFT}, 1")
    e(f"s_add_u32 s{sT0}, s{sT0}, s{sT1}")
    e(f"s_mul_i32 s{sFLG}, s{sT0}, {2*FS}")
    e(f"s_lshl_b32 s{sT0}, s{sT0}, 2")
    e(f"s_and_b32 s{sT1}, s{sW}, 2")
    e(f"s_add_u32 s{sT0}, s{sT0}, s{sT1}")
    e(f"s_mul_i32 s{sHS}, s{sT0}, 12288")
    e(f"s_and_b32 s{sT0}, s{sFT}, 1")
    e(f"s_mul_i32 s{sT1}, s{sT0}, {FS}")
    e(f"s_add_u32 s{sFLG}, s{sFLG}, s{sT1}")
    e(f"s_add_u32 s{sFLG}, s{sFLG}, {FL}")
    e(f"s_mul_i32 s{sT0}, s{sT0}, 6")
    e(f"s_and_b32 s{sT1}, s{sW}, 1")
    e(f"s_add_u32 s{sT0}, s{sT0}, s{sT1}")
    e(f"s_lshl_b32 s{sT0}, s{sT0}, 10")
    e(f"s_add_u32 s{sHS}, s{sHS}, s{sT0}")
    e(f"s_add_u32 s{sHS2}, s{sHS}, 4096")
    if opt["own"]:
        e(f"s_and_b32 s{sT0}, s{sFT}, 1")
        e(f"s_lshl_b32 s{sT0}, s{sT0}, 12")
        e(f"s_sub_u32 s{sHS2}, s{sHS}, s{sT0}")
        e(f"s_add_u32 s{sHS2}, s{sHS2}, 8192")
        e(f"s_lshl_b32 s{sT0}, s{sMT}, 2")
        e(f"s_add_u32 s{sT0}, s{sT0}, s{sT1}")
        e(f"s_lshl_b32 s{sT0}, s{sT0}, 2")
        e(f"s_and_b32 s{sT1}, s{sW}, 2")
        e(f"s_add_u32 s{sT0}, s{sT0}, s{sT1}")
        e(f"s_mul_i32 s{sT0}, s{sT0}, 12")
        e(f"s_add_u32 s{sT0}, s{sT0}, s{sFT}")
        e(f"s_lshl_b32 s{sHS}, s{sT0}, 10")
        e(f"s_add_u32 s{sHS1}, s{sHS}, 98304")
    e(f"s_add_u32 s{sRFL}, s{sRFL}, {RFL}")
    e(f"s_cmp_eq_u32 s{sW}, 0")
    e(f"s_cselect_b32 s{sRFL}, s{sRFL}, {HREC}")
    e(f"s_mov_b32 s{sL2E}, 0xbfb8aa3b")
    if opt["pk"]:
        e(f"s_mov_b32 s{sPK}, 0xbfb8aa3b"); e(f"s_mov_b32 s{sPK+1}, 0xbfb8aa3b")
def r_loads():
    if D1:
        e(f"s_lshr_b32 m0, s{sM0}, 3")
        e(f"s_add_u32 m0, m0, {RB}")
        e("s_nop 0")
        e(f"buffer_load_dwordx4 v{vWD}, {srd(sW2)}, s{sRS} offen {opt['raux']} lds"); VM.issue("rld")
        return
    e(f"s_lshr_b32 m0, s{sM0}, 2")
    e(f"s_add_u32 m0, m0, {RB}")
    e("s_nop 0")
    for i in range(2):
        e(f"buffer_load_dwordx4 v{vDR+i}, {srd(sW2)}, s{sRS} offen offset:{i*1024} {opt['raux']} lds"); VM.issue("rld")
def r_reads():
    if D1:
        for t in range(2):
            e(f"ds_read_b64_tr_b16 {vr(vRF + 2*t, 2)}, v{vRA} offset:{t*1024}"); LG.issue("rrd")
        return
    for ee in range(2):
        for t in range(2):
            e(f"ds_read_b64_tr_b16 {vr(vRF + 4*ee + 2*t, 2)}, v{vRA+ee} offset:{t*2048}"); LG.issue("rrd")
def r_stores():
    LG.wait("rrd")
    for ee in range(1 if D1 else 2):
        e(f"buffer_store_dwordx4 {vr(vRF+4*ee,4)}, v{vL16}, {srd(sH)}, s{sRD} offen offset:{ee*1024} {opt['rsaux']}"); VM.issue("rst")
S2 = capture(setup2)
groups = []
for l in S2:
    if l.startswith("s_cselect") or (groups and groups[-1][-1].startswith("s_cmp")): groups[-1].append(l)
    else: groups.append([l])
ST0 = []
def pre_order(spec):
    kx, kw = (sKX, 6, 8), (sKW, 7, 9)
    def nxt(i):
        a, b = (i + 1) % 3, i
        e(f"s_add_u32 s{kx[a]}, s{kx[b]}, 128")
        e(f"s_add_u32 s{kw[a]}, s{kw[b]}, {64*3072}")
        e(f"s_cmp_eq_u32 s{kx[a]}, s{sXE}")
        e(f"s_cselect_b32 s{kx[a]}, s{sXB}, s{kx[a]}")
        e(f"s_cselect_b32 s{kw[a]}, s{sWB}, s{kw[a]}")
    ops = []
    for ch in spec:
        if ch in "abc":
            st = "abc".index(ch)
            for i in range(2):
                def f(st=st, i=i):
                    if i == 0: e(f"s_add_u32 m0, s{sM0}, {st*32768+6144}"); e("s_nop 0")
                    e(f"buffer_load_dwordx4 v{vDX+i}, {srd(sX)}, s{kx[st]} offen offset:{i*1024} {opt['xaux']} lds"); VM.issue(f"st{st}")
                    if st == 0 and i == 1: nxt(0); nxt(1)
                ops.append(f)
        elif ch in "ABC":
            st = "ABC".index(ch)
            for j in range(6):
                def f(st=st, j=j):
                    if j % 4 == 0: e(f"s_add_u32 m0, s{sM0}, {st*32768+j*1024}"); e("s_nop 0")
                    e(f"buffer_load_dwordx4 v{vDW+j}, {srd(sW1)}, s{kw[st]} offen offset:{(j%4)*1024} {opt['w1aux']} lds"); VM.issue(f"st{st}")
                ops.append(f)
        elif ch == "R": ops.append(r_loads)
        elif ch == ".": ops.append(None)
        elif ch == "P":
            def f():
                e(f"s_bfe_u32 s10, s{sMT}, 0x10002")
                e(f"s_mul_i32 s10, s10, 320")
                e(f"s_and_b32 s11, s{sMT}, 3")
                e(f"s_lshl_b32 s11, s11, 4")
                e(f"s_add_u32 s10, s10, s11")
                e(f"s_mul_i32 s11, s{sW}, 12")
                e(f"s_sub_u32 s10, s10, s11")
                e(f"s_add_u32 s10, s10, 256")
                e(f"s_mul_i32 s10, s10, 3072")
                e(f"s_add_u32 s10, s10, s{sWB}")
                e(f"buffer_load_dwordx4 v[244:247], v{vDW}, {srd(sW1)}, s10 offen"); VM.issue("pp")
                e("s_mov_b32 exec_hi, 0")
                e(f"buffer_load_dwordx4 v[248:251], v{vDW+1}, {srd(sW1)}, s10 offen offset:1024"); VM.issue("pp")
                e("s_mov_b32 exec_hi, -1")
            ops.append(f)
    assert spec[0] == "a" and all(c in spec for c in "abcABC")
    last = ops[-1]
    def fin(): last(); nxt(2)
    ops[-1] = fin
    return ops
if opt["po"]:
    first = pre_order(opt["po"]); opt["pre3"] = 1
    if None in first:
        k = first.index(None); first, ST0 = first[:k], first[k+1:]
    if "R" in opt["po"]: opt["rls"] = -1
else:
    first = dma_ops(0) + dma_ops(1) + (dma_ops(2) if opt["pre3"] else [])
    if opt["rls"] < 0: first.append(r_loads)
    if opt["tch"]: first[opt["tp0"]:opt["tp0"]] = [touch] * (opt["la"] - 1)
def wtouch():
    e(f"s_lshl_b32 s8, s2, 2")
    e(f"s_add_u32 s8, s8, s{sW}")
    e(f"s_mul_i32 s8, s8, {15*128}")
    e(f"v_lshlrev_b32 v250, {2 if opt['wth'] else 3}, v{vL16}")
    e(f"s_mov_b64 exec, {(1 << (30 if opt['wth'] else 15)) - 1}")
    e(f"buffer_load_dword v251, v250, {srd(sW2)}, s8 offen {opt['wtaux']}"); VM.issue("wt")
    e("s_mov_b64 exec, -1")
if opt["wt"] >= 0: first.insert(opt["wt"], wtouch)
if opt["clr"] >= 0: first[opt["clr"]:opt["clr"]] = CLO
NF0 = opt["nf0"]
for f in first[:NF0]: f()
if opt["fst"]:
    e(f"s_waitcnt vmcnt({NF0-1})"); stamp(k=5)
    e(f"s_waitcnt vmcnt({NF0-3})"); stamp(k=5)
rest = first[NF0:]
per = (len(groups) + len(rest) - 1) // len(rest)
head = len(groups) * opt["head"] // 100
for g in groups[:head]: O.extend(g)
groups = groups[head:]
per = (len(groups) + len(rest) - 1) // len(rest)
for f in rest:
    f()
    for g in groups[:per]: O.extend(g)
    groups = groups[per:]
assert not groups
stamp()

def w2_ops():
    ops = []
    order = list(range(1, 12)); order.insert(opt["w0p"], 0)
    for n in order:
        for j in range(5):
            def f(n=n, j=j):
                if j == 0:
                    e(f"s_mul_i32 s{sWO}, s{sSIG+n}, 40")
                    e(f"s_add_u32 s{sWO}, s{sWO}, s{sW2B}")
                va = vL16 if j < 4 else vL16b
                e(f"buffer_load_dwordx4 {ar(n*20+4*j, 4)}, v{va}, {srd(sH)}, s{sWO} offen offset:{(j%4)*1024} {opt['w2aux'].replace('-','')}")
                VM.issue(f"w{n}")
            ops.append(f)
    return ops
WREG = [3, 3, 4, 4, 1, 1, 2, 2, 3, 3, 4, 4]
def wd_ops():
    ops = []
    for n in range(12):
        for i in range(4):
            def f(n=n, i=i):
                if i == 0:
                    if n >= 8: assert f"t{n-8}" in TDONE and f"t{n-8}" not in LG.q, n
                    e(f"s_mul_i32 s{sWO}, s{sSIG+n}, 40")
                    e(f"s_add_u32 m0, s{sM0}, {WREG[n]*32768 + (n%2)*4096}")
                    e(f"s_add_u32 s{sWO}, s{sWO}, s{sW2B}")
                e(f"buffer_load_dwordx4 v{vWD+i}, {srd(sW2)}, s{sWO} offen offset:{i*1024} {opt['waux']} lds")
                VM.issue(f"d{n}")
            ops.append(f)
    return ops
def w5_ops():
    ops = []
    for n in range(12):
        def f(n=n):
            e(f"s_lshl3_add_u32 s{sT1}, s{sSIG+n}, s{sW5B}")
            e(f"buffer_load_dwordx4 {ar(n*20+16, 4)}, v{vL16}, {srd(sH)}, s{sT1} offen sc1")
            VM.issue(f"w{n}")
        ops.append(f)
    return ops
TDONE = []; TWIN = [3]
def tgroup(n):
    assert not any(f.__defaults__[0] == n and len(f.__defaults__) == 2 for f in W2L), n
    VM.wait(f"d{n}")
    win = 3 if WREG[n] >= 3 else 1
    if win != TWIN[0]:
        for j in range(4): e(f"v_add_u32 v{vWT+j}, {(win - TWIN[0]) * 32768}, v{vWT+j}")
        TWIN[0] = win
    if len(LG.q) > 7:
        e("s_waitcnt lgkmcnt(7)"); LG.q = LG.q[-7:]
    for j in range(4):
        for t in range(2):
            e(f"ds_read_b64_tr_b16 {ar(n*20+4*j+2*t, 2)}, v{vWT+j} offset:{(WREG[n]-win)*32768 + (n%2)*4096 + t*1024}"); LG.issue(f"t{n}")
    TDONE.append(f"t{n}")
W2L = wd_ops() if D1 else w2_ops()
def take(n):
    r = W2L[:n]; del W2L[:n]; return r

def rd_ops(st, half):
    slot = st % NSL
    sb = (slot % 2) * 32768
    hi = slot // 2
    ops = []
    if opt["nord"]: return ops
    for kk in range(2):
        ks = 2*half + kk
        def b(ks=ks, kk=kk):
            e(f"ds_read_b128 {vr(vBF + (half*2+kk)*4, 4)}, v{vB + 4*hi + ks} offset:{sb}"); LG.issue(f"B{ks}")
        ops.append(b)
        for q in range(3):
            for t in range(2):
                def a(ks=ks, kk=kk, q=q, t=t):
                    e(f"ds_read_b64_tr_b16 {vr(vAF + half*24 + (kk*3+q)*4 + 2*t, 2)}, v{vA+hi} offset:{sb + ks*8192 + t*1536 + q*128}")
                    LG.issue(f"A{ks}{q}")
                ops.append(a)
    return ops
def i16(kk, q): return kk == 1
def mfma1(half, kk, q):
    ks = 2*half + kk
    LG.wait(f"A{ks}{q}")
    if opt["nomf1"]: return
    if opt["m16"]:
        for z in range(2):
            c = vr(vACC1+16*q+8*kk+4*z, 4)
            e(f"v_mfma_f32_16x16x32_bf16 {c}, {vr(vAF + half*24 + (kk*3+q)*4, 4)}, {vr(vBF + (half*2+(kk^z if i16(kk, q) else kk))*4, 4)}, {c}")
        return
    e(f"v_mfma_f32_32x32x16_bf16 {vr(vACC1+16*q,16)}, {vr(vAF + half*24 + (kk*3+q)*4, 4)}, {vr(vBF + (half*2+kk)*4, 4)}, {vr(vACC1+16*q,16)}")
def half_body(mf_half, rds, fill):
    rds = list(rds); fill = list(fill)
    for i in range(6):
        if mf_half is not None: mfma1(mf_half, i // 3, i % 3)
        left = 6 - i
        for _ in range((len(rds) + left - 1) // left if i else min(len(rds), 4)):
            if rds: rds.pop(0)()
        for _ in range((len(fill) + left - 1) // left):
            if fill: fill.pop(0)()
    assert not rds and not fill

def flag_store(off):
    fk = opt["fk"]
    if fk in (1, 3, 4):
        for r in range(4): e(f"v_mov_b32 v{vTM+12+r}, s{sTAG}")
        e(f"s_mov_b64 exec, {dict([(1,255),(3,1),(4,15)])[fk]}")
        e(f"buffer_store_dwordx4 {vr(vTM+12,4)}, v{vL16}, {srd(sH)}, s{off} offen sc1"); VM.issue("flag")
        e("s_mov_b64 exec, -1")
        return
    e(f"v_mov_b32 v{vT}, s{sTAG}")
    e("s_mov_b32 exec_hi, 0" if fk == 0 else "s_mov_b64 exec, 1")
    e(f"buffer_store_dword v{vT}, v{vL4}, {srd(sH)}, s{off} offen sc1"); VM.issue("flag")
    e("s_mov_b64 exec, -1")
def r_poll():
    e(f"s_mov_b32 s{sT0}, {HREC if opt['norp'] else RFL}")
    e(f"buffer_load_dword v{vPOLL}, v{vRP}, {srd(sH)}, s{sT0} offen sc1"); VM.issue("rpoll")

def spin_check(lab, vv, va, tag, so=None, fake=False):
    VM.wait(tag)
    e(f"s_mov_b32 s{sSPIN}, 20000")
    e(f"L_{lab}:")
    e(f"v_cmp_ne_u32 vcc, s{sTAG}, v{vv}")
    e("s_cmp_eq_u64 vcc, 0" if not fake else "s_cmp_eq_u32 s2, s2")
    e(f"s_cbranch_scc1 L_{lab}_go")
    e(f"s_sub_u32 s{sSPIN}, s{sSPIN}, 1")
    e(f"s_cmp_eq_u32 s{sSPIN}, 0")
    e(f"s_cbranch_scc1 L_{lab}_go")
    if so is None: e(f"s_mov_b32 s{sT0}, {RFL}")
    e(f"buffer_load_dword v{vv}, v{va}, {srd(sH)}, s{sT0 if so is None else so} offen sc1")
    e("s_waitcnt vmcnt(0)")
    e(f"s_branch L_{lab}")
    e(f"L_{lab}_go:")
def r_check(): spin_check("rp", vPOLL, vRP, "rpoll", None, opt["norp"])

EMU = [int(c) for c in str(opt["emu"]).lstrip("x")]
def emu_ops(bi):
    q, g2 = bi // 2, bi % 2
    a0 = 216; tt = vS + (bi % 2) * 8; pk = vRF + 8 + bi * 4
    ops = []
    if opt["emv"] and not opt["epk"]:
        for r in range(8): ops.append(f"v_mul_f32 v{tt+r}, s{sL2E}, v{a0+r}")
        for r in range(8): ops.append(f"v_exp_f32 v{tt+r}, v{tt+r}")
        for r in range(8): ops.append(f"v_add_f32 v{tt+r}, 1.0, v{tt+r}")
        for r in range(8): ops.append(f"v_rcp_f32 v{tt+r}, v{tt+r}")
        for r in range(8): ops.append(f"v_mul_f32 v{tt+r}, v{a0+r}, v{tt+r}")
        for r in range(4): ops.append(f"v_cvt_pk_bf16_f32 v{pk+r}, v{tt+2*r}, v{tt+2*r+1}")
    elif opt["emv"]:
        for r in range(0, 8, 2): ops.append(f"v_pk_mul_f32 {vr(tt+r,2)}, {vr(a0+r,2)}, s[{sPK}:{sPK+1}]")
        for r in range(8): ops.append(f"v_exp_f32 v{tt+r}, v{tt+r}")
        for r in range(0, 8, 2): ops.append(f"v_pk_add_f32 {vr(tt+r,2)}, {vr(tt+r,2)}, 1.0 op_sel_hi:[1,0]")
        for r in range(8): ops.append(f"v_rcp_f32 v{tt+r}, v{tt+r}")
        for r in range(0, 8, 2): ops.append(f"v_pk_mul_f32 {vr(tt+r,2)}, {vr(a0+r,2)}, {vr(tt+r,2)}")
        for r in range(4): ops.append(f"v_cvt_pk_bf16_f32 v{pk+r}, v{tt+2*r}, v{tt+2*r+1}")
    fs = [(lambda l=l: e(l)) for l in ops]
    def st_():
        e(f"buffer_store_dwordx4 {vr(pk,4)}, v{vHS}, {srd(sH)}, s{sHS} offen offset:{g2*512 + (q%2)*2048} sc1"); VM.issue("hstA" if opt["ab"] else "hst")
    return fs + [st_]
def merge(a, b):
    r = []; a = list(a); b = list(b); na, nb_ = len(a), len(b)
    while a or b:
        if a and (not b or len(a) * nb_ >= len(b) * na): r.append(a.pop(0))
        else: r.append(b.pop(0))
    return r
if EMU:
    for r in range(8): e(f"v_cvt_f32_u32 v{216+r}, v{vL16}"); e(f"v_mul_f32 v{216+r}, 0x3a000000, v{216+r}")
for st in range(10):
    VM.wait(f"st{st}")
    if st == opt["rjs"]: VM.wait("rld")
    if st == opt["rfs"]: VM.wait("rst"); VM.wait("clr")
    if st == opt["afs"] and st: VM.wait("hstA")
    LG.drain()
    e("s_barrier")
    if st == opt["afs"] and st:
        e(f"s_cmp_eq_u32 s{sW}, 0")
        e(f"s_cselect_b32 s{sT1}, s{sFLG}, {HREC}")
        flag_store(sT1); stamp(k=7)
    if st == 9: stamp()
    stamp(k=1)
    if st >= 8: stamp(k=4)
    if st == opt["rfs"]:
        e(f"s_mul_i32 s{sTAG}, s{sE}, 0x9E3779B1")
        e(f"s_add_u32 s{sTAG}, s{sTAG}, 0x7F4A7C15")
        flag_store(sRFL)
    if not D1 and ((st == opt["rcs"] and opt["rck"] == 0) or (st == 9 and opt["rck"] == 2)): r_check()
    if NSL == 4:
        if st == 0: fill = ([] if opt["pre3"] else dma_ops(2)) + dma_ops(3)
        elif st < 7: fill = dma_ops(st + 3)
        else: fill = take(opt[f"n{st}"])
    elif st == 0 and opt["pre3"]: fill = list(ST0)
    elif st < 8: fill = dma_ops(st + 2) + (take(opt["d7"]) if st == 7 else [])
    else: fill = take(opt["n8"] if st == 8 else opt["n9"])
    if opt["tch"] and st + opt["la"] < 10: fill.insert(opt["tpos"], touch)
    if st == opt["rls"]: fill = [r_loads] + fill if opt["rpos"] == 0 else fill + [r_loads]
    if st == opt["rjs"]:
        fill.insert(min(opt["rsp"], len(fill)), r_stores)
        fill = [r_reads] + fill
    if st == opt["rps"] and not D1: fill.insert(opt["rpp"], r_poll)
    if st == opt["wts"]: fill.insert(min(opt["wtp"], len(fill)), wtouch)
    if st == opt["ot"]:
        def otch():
            if opt["otm"] == 1: e("s_mov_b64 exec, 1")
            e(f"buffer_load_dword v251, v{vOUT}, {srd(sOUT)}, s{sOB} offen"); VM.issue("ot")
            if opt["otm"] == 3: e(f"buffer_load_dword v251, v{vOUT2}, {srd(sOUT)}, s{sOB} offen offset:128"); VM.issue("ot")
            e("s_mov_b64 exec, -1")
        fill.append(otch)
    ex = [CLO[i] for i, c in enumerate(str(opt["clrs"]).lstrip("x")) if int(c) == st]
    for bi, es in enumerate(EMU):
        if es == st: ex += emu_ops(bi)
    if ex: fill = merge(fill, ex)
    h = (len(fill) + 1) // 2
    f0, f1 = fill[:h], fill[h:]
    if st == 8 and opt["rck"] == 1:
        k = 1 if opt["rps"] == 8 else 0
        f0, f1 = fill[:k], [r_check] + fill[k:]
    half_body(1 if st else None, rd_ops(st, 0), f0)
    half_body(0, rd_ops(st, 1), f1)
stamp()
PEND = []
def silu_block(q, g2):
    a0 = vACC1 + 16*q + 8*g2
    bi = 2*q + g2
    tt = vS + (bi % 2) * 8
    pk = vRF + bi * 4
    ops = []
    if opt["pk"]:
        for r in range(0, 8, 2): ops.append(f"v_pk_mul_f32 {vr(tt+r,2)}, {vr(a0+r,2)}, s[{sPK}:{sPK+1}]")
        for r in range(8): ops.append(f"v_exp_f32 v{tt+r}, v{tt+r}")
        for r in range(0, 8, 2): ops.append(f"v_pk_add_f32 {vr(tt+r,2)}, {vr(tt+r,2)}, 1.0 op_sel_hi:[1,0]")
        for r in range(8): ops.append(f"v_rcp_f32 v{tt+r}, v{tt+r}")
        for r in range(0, 8, 2): ops.append(f"v_pk_mul_f32 {vr(tt+r,2)}, {vr(a0+r,2)}, {vr(tt+r,2)}")
    else:
        for r in range(8): ops.append(f"v_mul_f32 v{tt+r}, s{sL2E}, v{a0+r}")
        for r in range(8): ops.append(f"v_exp_f32 v{tt+r}, v{tt+r}")
        for r in range(8): ops.append(f"v_add_f32 v{tt+r}, 1.0, v{tt+r}")
        for r in range(8): ops.append(f"v_rcp_f32 v{tt+r}, v{tt+r}")
        for r in range(8): ops.append(f"v_mul_f32 v{tt+r}, v{a0+r}, v{tt+r}")
    for r in range(4): ops.append(f"v_cvt_pk_bf16_f32 v{pk+r}, v{tt+2*r}, v{tt+2*r+1}")
    nbs = str(opt["nb"]).lstrip("x")
    fill = take(int(nbs[bi] if len(nbs) > 1 else nbs))
    step = len(ops) // (len(fill) + 1) if fill else 0
    for i, l in enumerate(ops):
        if not opt["novalu"]: e(l)
        if fill and step and (i + 1) % step == 0: fill.pop(0)()
    for f in fill: f()
    so = sHS if q < 2 else sHS2
    def st_():
        if opt["nost"]: return
        if opt["own"]:
            e(f"buffer_store_dwordx4 {vr(pk,4)}, v{vHS}, {srd(sH)}, s{(sHS, sHS1, sHS2)[q]} offen offset:{g2*512} sc1"); VM.issue("hst")
            if q < 2: e(f"ds_write_b128 v{vOW+q}, {vr(pk,4)} offset:{q*8192 + g2*512}"); LG.issue("ow")
            return
        e(f"buffer_store_dwordx4 {vr(pk,4)}, v{vHS}, {srd(sH)}, s{so} offen offset:{g2*512 + (q%2)*2048} {opt['hsaux'].replace('-','')}"); VM.issue("hstA" if opt["ab"] and q < 2 else "hst")
        if opt["hs2"]:
            e(f"buffer_store_dwordx4 {vr(pk,4)}, v{vHS}, {srd(sH)}, s{so} offen offset:{g2*512 + (q%2)*2048} {opt['hs2'].replace('-','')}"); VM.issue("hst")
    PEND.append(st_)
    if bi >= opt["sl"]:
        while PEND: PEND.pop(0)()
for q in range(3):
    for kk in range(2): mfma1(1, kk, q)
e("s_nop 7")
stamp(k=4)
if opt["sts"] == 4: VM.drain(); stamp(k=4)
def cnt_add(tag, off):
    VM.wait(tag)
    e("s_mov_b64 exec, 1")
    e(f"ds_add_rtn_u32 v{vT+1}, v{vCN}, v{vONE} offset:{off}")
    e("s_mov_b64 exec, -1")
def cnt_flag(add):
    e("s_waitcnt lgkmcnt(0)"); LG.q = []
    e(f"v_readfirstlane_b32 s{sT0}, v{vT+1}")
    e(f"s_add_u32 s{sT1}, s{sFLG}, {add}")
    e(f"s_cmp_eq_u32 s{sT0}, 3")
    e(f"s_cselect_b32 s{sT1}, s{sT1}, {HREC}")
    flag_store(sT1)
for q in range(3):
    for g2 in range(2):
        bi = 2*q + g2
        if opt["ab"] and not opt["afs"] and bi == 4 + opt["afp"]: cnt_add("hstA", 0); stamp(k=7)
        if bi >= len(EMU): silu_block(q, g2)
        if opt["ab"] and not opt["afs"] and bi == 4 + opt["afp"]: cnt_flag(0); stamp(k=7)
stamp(); stamp(k=4)
if not opt["spec"]:
    NT = (48 - len(W2L)) // 4
    for i, f in enumerate(take(opt["post"])):
        if D1 and i == opt["rpq"]: r_poll()
        if i == opt["pae"]:
            e(f"buffer_load_dword v{vPOLL}, v{vPA}, {srd(sH)}, s{sPOL} offen sc1"); VM.issue("poll")
        f()
    if opt["wb"]:
        VM.wait("hst")
        e("buffer_wbl2 sc1"); VM.issue("hst")
    if D1:
        for n in range(NT): tgroup(n)
    VM.wait("hst")
    stamp(k=4)
    if opt["sts"] == 4: VM.drain(); stamp(k=4)
    if opt["fb"]:
        e(f"s_cmp_eq_u32 s{sW}, 0")
        e(f"s_cselect_b32 s{sFLG}, s{sFLG}, {HREC}")
        if opt["own"]: LG.drain()
        e("s_barrier")
    else:
        e("s_mov_b64 exec, 1")
        e(f"ds_add_rtn_u32 v{vT+1}, v{vCN}, v{vONE} offset:{4 if opt['ab'] else 0}")
        e("s_mov_b64 exec, -1")
        if opt["ab"]: e(f"s_add_u32 s{sFLG}, s{sFLG}, {FLB}")
        for f in take(opt["mid"]): f()
        e("s_waitcnt lgkmcnt(0)")
        e(f"v_readfirstlane_b32 s{sT0}, v{vT+1}")
        e(f"s_cmp_eq_u32 s{sT0}, {3 if opt['nopoll'] < 2 else 9}")
        e(f"s_cselect_b32 s{sFLG}, s{sFLG}, {HREC}")
    if opt["nopoll"] == 3: e(f"s_mov_b32 s{sPOL}, {HREC}")
    flag_store(sFLG)
    if opt["fb"] == 2: e("s_barrier")
    stamp(); stamp(k=3)
else:
    for f in take(opt["fw"]): f()
    VM.wait("hst")
    e(f"s_lshl_b32 s{sT0}, s{sW}, 15")
    e(f"s_add_u32 s{sFLG}, s{sFLG}, s{sT0}")
    flag_store(sFLG)
    stamp()
HL = [(p, n) for p in range(4) for n in range(12)]
def hload():
    if HL:
        p, n = HL.pop(0)
        if opt["noh"] and (p*12+n) % opt["noh"]: return
        e(f"buffer_load_dwordx4 {vr(vH + (p*12+n)*4, 4)}, v{vHB+p}, {srd(sH)}, s{sSIG+n} offen {opt['haux'].replace('-','')}"); VM.issue(f"h{p}_{n}")
def mark(v):
    if not opt["stamps"] or opt["sts"]: return
    i = NST[0]; NST[0] += 1
    e(f"s_add_u32 s{72+2*i}, s74, {v}"); e(f"s_addc_u32 s{73+2*i}, s75, 0")
def allc_load():
    e("s_cmp_eq_u32 s2, 0")
    e(f"s_cselect_b32 s{sT0}, {FL if D1 else RFL}, s{sH+2}")
    e(f"buffer_load_dword v{vAV}, v{vAC}, {srd(sH)}, s{sT0} offen sc1"); VM.issue("allc")
def p0_block(ML, pre):
    ML = list(ML)
    for f in ML[:pre]: f()
    del ML[:pre]
    if D1: LG.drain()
    stamp()
    for n in range(12):
        assert (0, n) not in HL and not any(getattr(f, "__defaults__", None) and f.__defaults__[0] == n for f in ML), n
        late = max((f"h0_{n}", f"w{n}"), key=lambda t: len(VM.q) - 1 - VM.q[::-1].index(t) if t in VM.q else -1)
        VM.wait(late)
        if n == 0 or n == 6: stamp(k=2)
        cnt = (len(ML) + 11 - n) // (12 - n)
        pos = {1: [opt["hj"]], 2: [1, 3], 3: [0, 2, 4], 4: [0, 1, 2, 3], 5: [0, 1, 2, 3, 4], 0: []}[cnt]
        for j in range(5):
            c = "0" if n == 0 else vr(vACC2+4*j, 4)
            e(f"v_mfma_f32_16x16x32_bf16 {vr(vACC2+4*j,4)}, {ar(n*20+4*j,4)}, {vr(vH+n*4,4)}, {c}")
            if j in pos: ML.pop(0)()
    assert not ML and not W2L
def late_d1():
    W5 = w5_ops()
    cnt = 0
    while W2L:
        n = W2L[0].__defaults__[0]
        if W2L[0].__defaults__[1] == 0 and n >= 8:
            while f"t{n-8}" not in TDONE: tgroup(len(TDONE))
            LG.wait(f"t{n-8}")
        take(1)[0](); cnt += 1
        if cnt % opt["tl"] == 0 and len(TDONE) < n - 2: tgroup(len(TDONE))
    r_check()
    for f in W5[:opt["w5p"]]: f()
    stamp(k=3)
    e(f"buffer_load_dword v{vPOLL}, v{vPA}, {srd(sH)}, s{sPOL} offen sc1"); VM.issue("poll")
    for f in W5[opt["w5p"]:]: f()
    stamp(k=3)
    while len(TDONE) < 12: tgroup(len(TDONE))
    VM.wait("poll")
    stamp(k=3)
    stamp()
    spin_check("hp", vPOLL, vPA, "poll", sPOL, opt["nopoll"])
    stamp(); stamp(k=2); stamp(k=3)
    mark(1000)
    allc_load()
    p0_block([hload] * (opt["hpre"] + 12), opt["hpre"])
def late_path():
    if D1: return late_d1()
    if opt['skipw']: del W2L[-opt['skipw']:]
    if opt["sts"] == 6:
        stamp(k=6)
        i = 0
        while len(W2L) > opt["pollq"]:
            take(1)[0](); i += 1
            if i % 4 == 0 and i >= opt["dw"]:
                e(f"s_waitcnt vmcnt({opt['dw']})"); stamp(k=6)
    for f in take(max(0, len(W2L) - opt["pollq"])): f()
    stamp(k=3)
    if opt["sts"] == 3: VM.drain(); stamp(k=3)
    if opt["sts"] == 4: stamp(k=4); VM.drain(); stamp(k=4)
    if opt["sp"]:
        e(f"s_load_dword s6, s[12:13], s{sPOL} {opt['spg']}")
        e(f"s_add_u32 s{sT0}, s{sPOL}, 128")
        e(f"s_load_dword s7, s[12:13], s{sT0} {opt['spg']}")
        for f in take(len(W2L)): f()
        stamp(k=3)
        e("s_waitcnt lgkmcnt(0)")
        stamp(k=3)
        stamp()
        e(f"s_cmp_eq_u32 s6, s{sTAG}")
        e(f"s_cselect_b32 s6, s7, s6")
        e(f"s_cmp_eq_u32 s6, s{sTAG}")
        e("s_cbranch_scc1 L_hp_go")
        e(f"v_mov_b32 v{vPOLL}, s6")
        spin_check("hp", vPOLL, vPA, "poll", sPOL, opt["nopoll"])
    else:
        e(f"buffer_load_dword v{vPOLL}, v{vPA}, {srd(sH)}, s{sPOL} offen sc1"); VM.issue("poll")
        for f in take(len(W2L)): f()
        stamp(k=3)
        VM.wait("poll")
        stamp(k=3)
        stamp()
        spin_check("hp", vPOLL, vPA, "poll", sPOL, opt["nopoll"])
    stamp(); stamp(k=2); stamp(k=3)
    mark(1000)
    allc_load()
    p0_block([hload] * (opt["hpre"] + 12), opt["hpre"])
LATE = []
if opt["eq"]:
    import re
    for f in take(len(W2L) - opt["eq"]): f()
    e(f"buffer_load_dword v{vPOLL}, v{vPA}, {srd(sH)}, s{sPOL} offen sc1"); VM.issue("poll")
    for f in take(opt["ec"]): f()
    VM.wait("poll")
    e(f"v_cmp_ne_u32 vcc, s{sTAG}, v{vPOLL}")
    e("s_cmp_eq_u64 vcc, 0" if not opt["nopoll"] else "s_cmp_eq_u32 s2, s2")
    e("s_cbranch_scc0 L_late")
    sv = (list(VM.q), list(W2L), list(HL), NST[0])
    LATE = ["L_late:"] + capture(late_path) + ["s_branch L_p1"]
    endq, endn = list(VM.q), NST[0]
    VM.q, W2L[:], HL[:], NST[0] = sv
    stamp(); stamp(); stamp(k=2); mark(0)
    allc_load()
    m = re.match(r"h(\d+)w(\d+)", opt["eil"])
    ML = []; nh = 12; ws = take(len(W2L))
    while nh or ws:
        k = min(nh, int(m.group(1))); ML += [hload] * k; nh -= k
        k = int(m.group(2)); ML += ws[:k]; del ws[:k]
    ML += [hload] * opt["hpre"]
    p0_block(ML, opt["epre"])
    assert NST[0] == endn, (NST[0], endn)
    k = min(len(VM.q), len(endq))
    assert VM.q[-k:] == endq[-k:] and all(t.startswith("h1") for t in VM.q + endq), (VM.q, endq)
    if len(endq) > len(VM.q): VM.q = endq
    e("L_p1:")
elif opt["spec"]:
    allc_load()
    for f in take(len(W2L) - opt["wl"]): f()
    stamp(); stamp(); stamp(k=2); mark(1000)
    ws = take(len(W2L))
    p0_block([hload] * opt["hpre"] + merge(ws, [hload] * 12) if ws else [hload] * (opt["hpre"] + 12), opt["hpre"])
elif not opt["ab"] and not opt["dfw"]:
    late_path()
def allc_check():
    e("s_cmp_lg_u32 s2, 0")
    e("s_cbranch_scc1 L_ac_go")
    assert "allc" not in VM.q
    if D1: e(f"s_mov_b32 s{sT1}, {FL}")
    spin_check("ac", vAV, vAC, "allc", sT1 if D1 else None)
def phase2_new():
    B1, B2, MA = opt["b1"], opt["b2"], opt["madd"]
    for p in range(1, 4):
        ac = vACC2 + (p % 2) * 20
        pa = vACC2 + ((p-1) % 2) * 20
        slots = {(n, j): [] for n in range(12) for j in range(5)}
        if p > 0:
            for jj, pos in enumerate([(1, 0), (1, 2), (1, 4), (2, 1), (2, 3)]):
                def w(jj=jj):
                    if D1: e(f"ds_write_b128 v{vRW if p < 3 else vRW2}, {vr(pa+4*jj,4)} offset:{((p-1)%2)*32768 + jj*1024}")
                    else: e(f"ds_write_b128 v{vRW}, {vr(pa+4*jj,4)} offset:{(p-1)*5120 + jj*1024}")
                    LG.issue("red")
                slots[pos].append(w)
        def rd(pp, j, dst):
            def f():
                e(f"ds_read_b128 {vr(dst, 4)}, v{vRR+pp} offset:{j*1024}"); LG.issue(f"rr{pp}{j}")
            return f
        if p == 2:
            k = 0
            for j in range(5):
                for pp in range(2):
                    slots[(B1 + k // 5, k % 5)].append(rd(pp, j, vH + pp*20 + 4*j)); k += 1
            assert B1 + 3 <= 8
            for i in range(20):
                def a(i=i):
                    LG.wait(f"rr1{i//4}")
                    e(f"v_add_f32 v{pa+i}, v{vH+i}, v{vH+20+i}")
                slots[(8 + i // 5, i % 5)].append(a)
        if p == 3:
            for j in range(5): slots[(B2, j)].append(rd(2, j, vH + 4*j))
        for n in range(12):
            if (p == 2 and n == B1) or (p == 3 and n == B2):
                if p == 3: allc_check(); stamp(k=2)
                LG.drain(); e("s_barrier")
                if p == 3: stamp(k=2)
            VM.wait(f"h{p}_{n}")
            if p * 12 + n == opt["es"]:
                e(f"s_lshl_b32 s6, s{sMT}, 2")
                e(f"s_add_u32 s6, s6, s{sOWN}")
                e(f"s_mul_i32 s6, s6, {16*1280}")
                e(f"s_mul_i32 s7, s{sFT}, 160")
                e(f"s_add_u32 s6, s6, s7")
                e(f"s_cmp_lt_u32 s{sW}, {opt['ost']}")
                e(f"s_cselect_b32 s6, s6, 2621440")
                ax = opt['esaux'].replace('-', '')
                for b in range(2):
                    e(f"buffer_store_dwordx4 {vr(vH+40+4*b,4)}, v{vOUT}, {srd(sOUT)}, s6 offen offset:{64*b} {ax}"); VM.issue("es")
                e(f"buffer_store_dwordx2 {vr(vH+40,2)}, v{vOUT2}, {srd(sOUT)}, s6 offen offset:128 {ax}"); VM.issue("es")
            if n == 0 or (n == 6 and p < 3): stamp(k=2)
            def madd(j):
                LG.wait(f"rr2{j}")
                for r in range(4): e(f"v_add_f32 v{ac+4*j+r}, v{ac+4*j+r}, v{vH+4*j+r}")
            mid = p == 3 and n == MA
            if mid: e("s_nop 3"); madd(0)
            for j in range(5):
                c = "0" if n == 0 and p < 3 else vr(ac+4*j, 4)
                if mid:
                    if j < 4: madd(j+1)
                    else: e("s_nop 0")
                e(f"v_mfma_f32_16x16x32_bf16 {vr(ac+4*j,4)}, {ar(n*20+4*j,4)}, {vr(vH+(p*12+n)*4,4)}, {c}")
                if j == opt["hj"]: hload()
                for f in slots[(n, j)]: f()
    stamp(); stamp(k=2)
    if opt["enc"]: stamp(True)
    ac = vACC2 + 20
    pk = vH + 64
    def cvt(j):
        for r in range(2): e(f"v_cvt_pk_bf16_f32 v{pk+2*j+r}, v{ac+4*j+2*r}, v{ac+4*j+2*r+1}")
    def swp(b):
        e(f"v_permlane32_swap_b32 v{pk+4*b}, v{pk+4*b+2}")
        e(f"v_permlane32_swap_b32 v{pk+4*b+1}, v{pk+4*b+3}")
        if opt["enc"]:
            e("s_waitcnt lgkmcnt(0)")
            e(f"v_lshrrev_b32 v{vT+1}, 4, v{vL16}")
            for r in range(4):
                i = 4*b + r
                e(f"v_mov_b32 v{vT}, s{72+2*i}")
                e("s_mov_b32 exec_lo, 0")
                e(f"v_mov_b32 v{vT}, s{72+2*min(i+8, 14)}")
                e("s_mov_b32 exec_lo, -1")
                e(f"v_lshrrev_b32 v{vT}, v{vT+1}, v{vT}")
                e(f"v_bfi_b32 v{pk+4*b+r}, 1, v{vT}, v{pk+4*b+r}")
        e(f"buffer_store_dwordx4 {vr(pk+4*b,4)}, v{vOUT}, {srd(sOUT)}, s{sOB} offen offset:{64*b} {opt['outaux']}")
    e("s_nop 3")
    cvt(0); cvt(1); cvt(2); swp(0); cvt(3); cvt(4); swp(1)
    e(f"buffer_store_dwordx2 {vr(pk+8,2)}, v{vOUT2}, {srd(sOUT)}, s{sOB2 if D1 else sOB} offen offset:128 {opt['outaux']}")
def phase2_old():
    for p in range(4):
        ac = vACC2 + (p % 2) * 20
        for n in range(12):
            VM.wait(f"h{p}_{n}")
            if n == 0 or (n == 6 and p < 3): stamp(k=2)
            if n == 0: stamp(k=3)
            for j in range(5):
                c = "0" if n == 0 else vr(ac+4*j, 4)
                if j >= opt["nomf2"]: e(f"v_mfma_f32_16x16x32_bf16 {vr(ac+4*j,4)}, {ar(n*20+4*j,4)}, {vr(vH+(p*12+n)*4,4)}, {c}")
                if j == opt["hj"]: hload()
                if p > 0 and n >= 2 and n < 7 and j == 3:
                    pa = vACC2 + ((p-1) % 2) * 20; jj = n - 2
                    e(f"ds_write_b128 v{vRW}, {vr(pa+4*jj,4)} offset:{(p-1)*5120 + jj*1024}"); LG.issue("red")
            if p == 3 and n == 7:
                e("s_cmp_lg_u32 s2, 0")
                e("s_cbranch_scc1 L_ac_go")
                assert "allc" not in VM.q
                spin_check("ac", vAV, vAC, "allc")
                stamp(k=2)
                LG.drain(); e("s_barrier")
                stamp(k=2)
                for pp in range(3):
                    for j in range(5):
                        e(f"ds_read_b128 {vr(vH + (pp*5+j)*4, 4)}, v{vRR+pp} offset:{j*1024}"); LG.issue("rr")
            if p == 3 and n == 9:
                LG.drain()
                for i in range(20): e(f"v_add_f32 v{vH+i}, v{vH+i}, v{vH+20+i}")
            if p == 3 and n == 10:
                for i in range(20): e(f"v_add_f32 v{vH+i}, v{vH+i}, v{vH+40+i}")
    stamp(); stamp(k=2)
    ac = vACC2 + 20
    e("s_nop 3")
    for j in range(5):
        for r in range(4): e(f"v_add_f32 v{vH+4*j+r}, v{vH+4*j+r}, v{ac+4*j+r}")
    pk = vH + 64
    for j in range(5):
        for r in range(2): e(f"v_cvt_pk_bf16_f32 v{pk+2*j+r}, v{vH+4*j+2*r}, v{vH+4*j+2*r+1}")
    e("s_nop 1")
    for b in range(2):
        e(f"v_permlane32_swap_b32 v{pk+4*b}, v{pk+4*b+2}")
        e(f"v_permlane32_swap_b32 v{pk+4*b+1}, v{pk+4*b+3}")
    for b in range(2):
        e(f"buffer_store_dwordx4 {vr(pk+4*b,4)}, v{vOUT}, {srd(sOUT)}, s{sOB} offen offset:{64*b} {opt['outaux']}")
    e(f"buffer_store_dwordx2 {vr(pk+8,2)}, v{vOUT2}, {srd(sOUT)}, s{sOB} offen offset:128 {opt['outaux']}")
def phase2_ab():
    OA = opt["owna"]
    NE = opt["ne"]; NL = 12 - NE
    items = [(p, n) for p in range(3) for n in range(NE)] + [(3, n) for n in range(OA)]
    NA = len(items)
    items += [(p, n) for p in range(3) for n in range(NE, 12)] + [(3, n) for n in range(OA, 12)]
    NS = 36; vH2 = 112
    acc = lambda p, j: 24 + 20*p + 4*j
    hp = opt["hpre"]
    HI = list(range(48))
    seen = set()
    I0 = 0
    def own_mf(k):
        if not opt["own"] or k != opt["omp"]: return
        VM.wait("w0")
        for p in range(4):
            LG.wait(f"or{p}")
            for j in range(5):
                e(f"v_mfma_f32_16x16x32_bf16 {vr(acc(p,j),4)}, {ar(4*j,4)}, {vr(vH2+p*4,4)}, 0")
    if opt["own"]:
        items = [(p, 0) for p in range(4)] + [(p, n) for p in range(4) for n in range(1, 12)]
        HI = HI[4:]; I0 = 4; seen = {0, 1, 2, 3}
        for p in range(4):
            e(f"ds_read_b128 {vr(vH2+p*4, 4)}, v{vOW+2} offset:{p*1024}"); LG.issue(f"or{p}")
    def hl():
        if not HI: return
        i = HI.pop(0); p, n = items[i]
        if i == NA and not opt["dfw"]:
            spin_check("hpb", vPOLL, vPA, "pollB", sPOL, opt["nopoll"]); stamp(k=7)
        e(f"buffer_load_dwordx4 {vr(vH2 + (i % NS)*4, 4)}, v{vHB+p}, {srd(sH)}, s{sSIG+n} offen {opt['haux'].replace('-','')}"); VM.issue(f"h{i}")
    if opt["pae"] < 0:
        for f in take(max(0, len(W2L) - opt["pa"])): f()
        e(f"buffer_load_dword v{vPOLL}, v{vPA}, {srd(sH)}, s{sPOL} offen sc1"); VM.issue("poll")
        for f in take(opt["ec"]): f()
    own_mf(0)
    VM.wait("poll")
    stamp(); stamp(k=7)
    spin_check("hp", vPOLL, vPA, "poll", sPOL, opt["nopoll"])
    stamp(); stamp(k=2); stamp(k=7)
    e(f"s_add_u32 s{sPOL}, s{sPOL}, {FLB}")
    allc_load()
    for _ in range(hp): hl()
    for f in take(opt["wsk"]): f()
    own_mf(1)
    stamp()
    slots = {(i, j): [] for i in range(48) for j in range(5)}
    if opt["own"]: NA = 37
    L3 = NA + 3*NL
    for p in range(3):
        i0 = NA + NL*(p+1) if NL else NE*(p+1)
        if opt["own"]: i0 = 4 + 11*(p+1)
        for jj, (di, j) in enumerate([(1, 0), (1, 2), (1, 4), (2, 1), (2, 3)]):
            def w(jj=jj, p=p):
                e(f"ds_write_b128 v{vRW}, {vr(acc(p,jj),4)} offset:{p*5120 + jj*1024}"); LG.issue("red")
            slots[(i0 + di, j)].append(w)
    IB = L3 + opt["rb"]
    k = 0
    rest = 48 - IB
    assert rest >= 1
    rds = []
    for j in range(5):
        for pp in range(3):
            def f(pp=pp, j=j):
                e(f"ds_read_b128 {vr(acc(pp,j), 4)}, v{vRR+pp} offset:{j*1024}"); LG.issue(f"rr{j}")
            rds.append(f)
    per = 1 if rest >= 7 else 3
    for k, f in enumerate(rds): slots[(IB + k // per // 5, k // per % 5)].append(f)
    adds = []
    for j in range(5):
        for pp in (1, 2):
            for r in (0, 2):
                def a(j=j, pp=pp, r=r):
                    LG.wait(f"rr{j}")
                    if opt["epk"]: e(f"v_pk_add_f32 {vr(acc(0,j)+r,2)}, {vr(acc(0,j)+r,2)}, {vr(acc(pp,j)+r,2)}")
                    else:
                        for z in range(2): e(f"v_add_f32 v{acc(0,j)+r+z}, v{acc(0,j)+r+z}, v{acc(pp,j)+r+z}")
                adds.append(a)
    MA = 47 if rest >= 7 else None
    if MA:
        a0 = (MA - 3) * 5 - 5
        for k, f in enumerate(adds): slots[((a0 + k) // 5, (a0 + k) % 5)].append(f)
    for i, (p, n) in enumerate(items):
        if i < I0: continue
        if i == IB:
            allc_check(); stamp(k=2)
            LG.drain(); e("s_barrier")
            stamp(k=2)
        assert i not in HI and not any(f.__defaults__[0] == n for f in W2L), (i, n)
        late = max((f"h{i}", f"w{n}"), key=lambda t: len(VM.q) - 1 - VM.q[::-1].index(t) if t in VM.q else -1)
        VM.wait(late)
        if i % 8 == 0: stamp(k=2)
        def madd(j):
            if opt["epk"]:
                for r in (0, 2): e(f"v_pk_add_f32 {vr(acc(3,j)+r,2)}, {vr(acc(3,j)+r,2)}, {vr(acc(0,j)+r,2)}")
            else:
                for r in range(4): e(f"v_add_f32 v{acc(3,j)+r}, v{acc(3,j)+r}, v{acc(0,j)+r}")
        mid = i == MA
        if mid: e("s_nop 3"); madd(0)
        for j in range(5):
            c = vr(acc(p,j), 4) if p in seen else "0"
            if mid:
                if j < 4: madd(j+1)
                else: e("s_nop 1")
            e(f"v_mfma_f32_16x16x32_bf16 {vr(acc(p,j),4)}, {ar(n*20+4*j,4)}, {vr(vH2+(i % NS)*4,4)}, {c}")
            if j == opt["hj"]: hl()
            if j == 3 and i % opt["wr"] == 0:
                for f in take(1): f()
            if j == 4 and i == opt["pb"] and not opt["dfw"]:
                e(f"buffer_load_dword v{vPOLL}, v{vPA}, {srd(sH)}, s{sPOL} offen sc1"); VM.issue("pollB")
            for f in slots[(i, j)]: f()
        seen.add(p)
    stamp(); stamp(k=2); stamp(k=7)
    if opt["enc"]: stamp(True)
    ac = acc(3, 0)
    pk = vH2 + 64
    if not MA:
        for f in adds: f()
        for j in range(5): madd(j)
    def cvt(j):
        for r in range(2): e(f"v_cvt_pk_bf16_f32 v{pk+2*j+r}, v{ac+4*j+2*r}, v{ac+4*j+2*r+1}")
    def swp(b):
        e(f"v_permlane32_swap_b32 v{pk+4*b}, v{pk+4*b+2}")
        e(f"v_permlane32_swap_b32 v{pk+4*b+1}, v{pk+4*b+3}")
        if opt["enc"]:
            e("s_waitcnt lgkmcnt(0)")
            e(f"v_lshrrev_b32 v{vT+1}, 4, v{vL16}")
            for r in range(4):
                i = 4*b + r
                e(f"v_mov_b32 v{vT}, s{72+2*i}")
                e("s_mov_b32 exec_lo, 0")
                e(f"v_mov_b32 v{vT}, s{72+2*min(i+8, 14)}")
                e("s_mov_b32 exec_lo, -1")
                e(f"v_lshrrev_b32 v{vT}, v{vT+1}, v{vT}")
                e(f"v_bfi_b32 v{pk+4*b+r}, 1, v{vT}, v{pk+4*b+r}")
        e(f"buffer_store_dwordx4 {vr(pk+4*b,4)}, v{vOUT}, {srd(sOUT)}, s{sOB} offen offset:{64*b} {opt['outaux']}")
    e("s_nop 3")
    cvt(0); cvt(1); cvt(2); swp(0); cvt(3); cvt(4); swp(1)
    e(f"buffer_store_dwordx2 {vr(pk+8,2)}, v{vOUT2}, {srd(sOUT)}, s{sOB} offen offset:128 {opt['outaux']}")
assert opt["tail"]
if opt["ab"] or opt["dfw"]: phase2_ab()
else: phase2_new()
e(f"s_or_b32 s{sT0}, s{sW}, s2")
e(f"s_cmp_lg_u32 s{sT0}, 0")
e("s_cbranch_scc1 L_nobump")
e(f"s_add_u32 s{sE}, s{sE}, 1")
e(f"v_mov_b32 v{vT}, s{sE}")
e(f"s_mov_b32 s{sT0}, {EP}")
e("s_mov_b64 exec, 1")
e(f"buffer_store_dword v{vT}, off, {srd(sH)}, s{sT0}")
e("s_mov_b64 exec, -1")
e("L_nobump:")
if opt["enc"]: sys.stderr.write(f"enc stamps {NST[0]}\n")
if opt["stamps"] and not opt["enc"]:
    e("s_waitcnt vmcnt(0)")
    stamp(k=-1); stamp(True)
    ns = NST[0]
    assert 72 + 2*ns <= 102
    e("s_waitcnt lgkmcnt(0)")
    if opt["rt"]:
        e(f"s_lshl_b32 s{sT0}, s2, 2")
        e(f"s_add_u32 s{sT0}, s{sT0}, s{sW}")
        e(f"s_mul_i32 s{sT0}, s{sT0}, {ns*8}")
    else:
        e(f"s_cmp_lg_u32 s{sW}, {opt['stamps']-1}")
        e("s_cbranch_scc1 L_end")
        e(f"s_mul_i32 s{sT0}, s2, {ns*8}")
    e("s_mov_b64 exec, 1")
    e(f"s_add_u32 s{sT0}, s{sT0}, {0x8000000 - (opt['wso'] << 20)}")
    e(f"v_mov_b32 v{vT}, s{sT0}")
    for i in range(ns):
        e(f"v_mov_b32 v24, s{72+2*i}"); e(f"v_mov_b32 v25, s{73+2*i}")
        e(f"global_store_dwordx2 v{vT}, v[24:25], s[12:13] offset:{i*8}"); e("s_nop 1")
    sys.stderr.write(f"nstamps {ns}\n")
if LATE:
    e("s_endpgm")
    O.extend(LATE)
e("L_end:")

hdr = f"""; FFN out = silu(x @ w1) @ w2, one launch, 256 workgroups (one per CU).
; @launch grid=(256,1,1) block=(256,1,1) lds=163840
.amdgcn_target "amdgcn-amd-amdhsa--gfx950"
.text
.globl {NAME}
.p2align 8
.type {NAME},@function
{NAME}:
"""
ftr = f"""s_endpgm
.section .rodata,"a"
.p2align 6
.amdhsa_kernel {NAME}
  .amdhsa_next_free_vgpr 512
  .amdhsa_next_free_sgpr 102
  .amdhsa_accum_offset 256
  .amdhsa_group_segment_fixed_size 0
  .amdhsa_kernarg_size 48
  .amdhsa_user_sgpr_count 2
  .amdhsa_user_sgpr_kernarg_segment_ptr 1
  .amdhsa_system_sgpr_workgroup_id_x 1
.end_amdhsa_kernel
"""
body = "\n".join(("" if l.endswith(":") else "    ") + l.rstrip() for l in O)
open(sys.argv[1], "w").write(hdr + body + "\n" + ftr)
```

```python
import sys
NAME = "standalone__dense_activation_silu__prompt_kernel"
opt = dict(dst=-1, dn=4, st0=0, nhw=0, wtx=0, tfm=0, tpm=0, tsil=0, c5=0, w5s=8, w5k=2, rcl=0, w5d=0, tin=0, sw=-1, sws=-1, swp=0, swn=15, ems=1, pqd=0, tlate=0, tmix=1, wt=-1, wts=-1, wtp=99, wth=0, wtaux='', d1=0, d7=0, w5p=4, tl=8, rpq=0, waux='', es=-1, esaux='sc1', ot=-1, otm=1, enc=0, w0p=0, own=0, omp=0, dfw=0, ne=8, clr=-1, clrs='', spec=0, fw=12, wl=0, rsp=99, rrp=0, fb=0, tch=0, la=4, tp0=0, tpos=8, th=1, ns=3, n7=0, rcs=8, epk=1, fk=0, ost=0, pae=-1, wsk=0, afs=0, ab=0, afp=0, pa=20, pb=6, wr=1, owna=0, rb=4, skipw=0, m16=0, rtm=0, po="", rsaux="sc1", emu="", emv=1, fs=128, dw=8, eq=0, ec=4, epre=16, eil="h12w9", pfm=3, stamps=0, rot=1, rot2=1, pf=1, outaux="", map=2, raux="nt", xaux="", haux="sc1", hsaux="sc1", hs2="", wb=0, wso=0, sp=0, spg="", nord=0, nomf1=0, norp=0, pk=1, tail=1, b1=4, b2=4, madd=8, pt=0, fst=0, tab="x037", nost=0, novalu=0, nomf2=0, noh=0, hj=1, w2aux="sc1", w1aux="",
           sa=0, ma=10, sb=0, mb=10, mx=0, n8=8, n9=8, nb=0, post=0, pollq=8, hpre=8, sep=0, sts=0, rpos=0, rls=0, rjs=2, rpp=0, rps=7, rck=0, nopoll=0, rfs=4, sl=0, head=50, nf0=4, pre3=0, rt=0, own2=2, ntst=10, mid=2, xlin=0, nor=0)
for a in sys.argv[2:]:
    k, v = a.split("=")
    assert k in opt, k
    opt[k] = int(v) if v.lstrip("-").isdigit() else v.replace("_", " ")
if opt["own"]: opt["dfw"] = 1; opt["ne"] = 12; assert opt["fb"] and opt["own2"] == 2
D1 = opt['d1']
if D1: assert not (opt['own'] or opt['ab'] or opt['dfw'] or opt['spec'] or opt['eq'] or opt['tch'] or opt['po']) and opt['fb'] and opt['ns'] == 3
O = []
def e(s): O.append(s)
NST = [0]
def stamp(rt=False, k=0):
    if not opt["stamps"]: return
    if not rt and NST[0] > 1 and k != opt["sts"] and k != -1: return
    i = NST[0]; NST[0] += 1
    e(f"s_memrealtime s[{72+2*i}:{73+2*i}]" if rt or opt["rt"] or opt["rtm"] else f"s_memtime s[{72+2*i}:{73+2*i}]")

class Q:
    def __init__(s, name, mx): s.name = name; s.mx = mx; s.q = []
    def issue(s, tag): s.q.append(tag)
    def wait(s, tag):
        if tag not in s.q: return
        i = len(s.q) - 1 - s.q[::-1].index(tag)
        n = min(len(s.q) - 1 - i, s.mx)
        e(f"s_waitcnt {s.name}({n})")
        s.q = s.q[len(s.q)-n:] if n else []
    def drain(s):
        e(f"s_waitcnt {s.name}(0)"); s.q = []
VM = Q("vmcnt", 63); LG = Q("lgkmcnt", 15)

FL = 0x600000; EP = 0x608000; RFL = 0x610000; W2F = 0x620000; HREC = 0x800000
if opt['spec']: FL = 0x800000; HREC = 0x820000
FS = opt["fs"]
if FS > 128: FL = 0x800000; HREC = FL + 256 * FS
FLB = 0x200000
if opt["ab"]: HREC = 0x808000
RED = 98304; RB = 98304 if opt['ns'] == 3 else 131072; CNT = 159744
NSL = opt['ns']
sX, sW1, sW2, sOUT, sH = 16, 20, 24, 28, 32
(sW, sMT, sFT, sKX, sKW, sXB, sWB, sXE, sM0, sT0, sT1, sE, sTAG, sHS, sHS2, sFLG, sPOL, sW2B, sOWN, sROT,
 sRS, sRD, sWO, sL2E) = range(36, 60)
sSIG = 60
sPK = 4; sOB = 3; sRFL = 14; sSPIN = 15
vL16 = 1; vL16b = 2; vOUT = 3; vOUT2 = 4; vRW = 5; vRP = 6; vHS = 7
vPOLL = 8; vL4 = 9; vPA = 19
vRR = 10
vHB = 13
vT = 17
vCN = 20; vONE = 21; vAV = 22; vAC = 23
vDX = 24; vDW = 26; vDR = 32
vA = 34; vB = 36
vRA = 44
vTM = 46
vACC1 = 64; vAF = 112; vBF = 160; vS = 176; vRF = 192
vWD = 56; vWT = 60; sW5B = 6; sOB2 = 7; vRW2 = 20
vH = 64; vACC2 = 24; vOW = 240; OWN = 32768; sHS1 = 6
def srd(r): return f"s[{r}:{r+3}]"
def vr(r, n): return f"v[{r}:{r+n-1}]"
def ar(r, n): return f"a[{r}:{r+n-1}]"
def capture(fn):
    global O
    sv = O; O = []; fn(); r = O; O = sv; return r

e("s_cmp_ge_u32 s2, 256")
e("s_cbranch_scc1 L_end")
stamp(True); stamp()
e("s_load_dwordx8 s[4:11], s[0:1], 0")
e("s_load_dwordx2 s[12:13], s[0:1], 40")
L, Wv = vTM, vTM+1
t0, t1, t2, t3 = vTM+2, vTM+3, vTM+4, vTM+5
e(f"v_and_b32 v{L}, 63, v0")
e(f"v_lshrrev_b32 v{Wv}, 6, v0")
e(f"v_lshlrev_b32 v{vL16}, 4, v{L}")
e(f"v_readfirstlane_b32 s{sW}, v{Wv}")
if opt["pf"]:
    e("s_getpc_b64 s[14:15]")
    e("L_pc:")
    e(f"s_lshr_b32 s{sT0}, s2, 3")
    e(f"s_and_b32 s{sT0}, s{sT0}, {opt['pfm']}")
    e(f"s_lshl_b32 s{sT0}, s{sT0}, 12")
    e(f"v_lshl_add_u32 v{t0}, v0, 4, s{sT0}")
    e(f"v_min_u32 v{t0}, L_end-L_pc-16, v{t0}")
    e(f"global_load_dwordx4 v[252:255], v{t0}, s[14:15]")
    VM.issue("pf")
fa = opt["map"]
e(f"s_and_b32 s{sT0}, s2, 7")
e(f"s_lshr_b32 s{sT1}, s2, 3")
e(f"s_and_b32 s{sFT}, s{sT1}, {(1<<fa)-1}")
e(f"s_lshr_b32 s{sMT}, s{sT1}, {fa}")
if opt["rot"] == 3:
    tb = str(opt["tab"]).lstrip("x")
    tv = sum(int(c) << (4*i) for i, c in enumerate((tb * 16)[:16]))
    e(f"s_mul_i32 s{sKX}, s{sMT}, {opt['ma']}")
    e(f"s_mul_i32 s{sT1}, s{sFT}, {opt['mb']}")
    e(f"s_add_u32 s{sKX}, s{sKX}, s{sT1}")
    e(f"s_lshl_b32 s{sKX}, s{sKX}, 2")
    e(f"s_mov_b32 s{sSIG}, {tv & 0xffffffff}")
    e(f"s_mov_b32 s{sSIG+1}, {tv >> 32}")
    e(f"s_lshr_b64 s[{sSIG}:{sSIG+1}], s[{sSIG}:{sSIG+1}], s{sKX}")
    e(f"s_and_b32 s{sKX}, s{sSIG}, 15")
elif opt["rot"]:
    e(f"s_lshr_b32 s{sKX}, s{sMT}, {opt['sa']}")
    e(f"s_mul_i32 s{sKX}, s{sKX}, {opt['ma']}")
    e(f"s_lshr_b32 s{sT1}, s{sFT}, {opt['sb']}")
    e(f"s_mul_i32 s{sT1}, s{sT1}, {opt['mb']}")
    e(f"s_add_u32 s{sKX}, s{sKX}, s{sT1}")
    if opt['mx']:
        e(f"s_mul_i32 s{sT1}, s{sT0}, {opt['mx']}")
        e(f"s_add_u32 s{sKX}, s{sKX}, s{sT1}")
    e(f"s_lshr_b32 s{sKX}, s{sKX}, 2")
    e(f"s_mul_i32 s{sT1}, s{sKX}, 205")
    e(f"s_lshr_b32 s{sT1}, s{sT1}, 11")
    e(f"s_mul_i32 s{sT1}, s{sT1}, 10")
    e(f"s_sub_u32 s{sKX}, s{sKX}, s{sT1}")
else:
    e(f"s_mov_b32 s{sKX}, 0")
if opt["ab"]:
    e(f"s_lshl_b32 s{sROT}, s{sMT}, 2")
elif opt["rot2"] == 3:
    e(f"s_and_b32 s{sROT}, s{sMT}, 1")
    e(f"s_mul_i32 s{sROT}, s{sROT}, 6")
elif opt["rot2"] == 4:
    e(f"s_lshr_b32 s{sROT}, s{sMT}, 1")
    e(f"s_mul_i32 s{sROT}, s{sROT}, 3")
elif opt["rot2"] == 5:
    e(f"s_and_b32 s{sROT}, s{sMT}, 3")
elif opt["rot2"] == 6:
    e(f"s_mul_i32 s{sROT}, s{sMT}, 3")
    e(f"s_lshr_b32 s{sROT}, s{sROT}, 3")
    e(f"s_lshl_b32 s{sROT}, s{sROT}, 2")
elif opt["rot2"] == 7:
    e(f"s_mul_i32 s{sROT}, s{sMT}, 12")
    e(f"s_lshr_b32 s{sROT}, s{sROT}, 3")
    e(f"s_bitcmp1_b32 s2, 1")
    e(f"s_addc_u32 s{sROT}, s{sROT}, 0")
elif opt["rot2"] == 2:
    e(f"s_and_b32 s{sROT}, s{sMT}, 3")
    e(f"s_mul_i32 s{sROT}, s{sROT}, 3")
elif opt["rot2"]:
    e(f"s_mul_i32 s{sROT}, s{sMT}, 12")
    e(f"s_lshr_b32 s{sROT}, s{sROT}, {5-fa}")
else:
    e(f"s_mov_b32 s{sROT}, 0")
e(f"s_and_b32 s{sT1}, s{sT0}, {(8>>fa)-1}")
e(f"s_lshl_b32 s{sT1}, s{sT1}, {fa}")
e(f"s_add_u32 s{sFT}, s{sFT}, s{sT1}")
e(f"s_lshr_b32 s{sT1}, s{sT0}, {3-fa}")
e(f"s_lshl_b32 s{sT1}, s{sT1}, {5-fa}")
e(f"s_add_u32 s{sMT}, s{sMT}, s{sT1}")
e(f"s_mul_i32 s{sXB}, s{sMT}, 81920")
e(f"s_mul_i32 s{sWB}, s{sFT}, 384")
e(f"s_add_u32 s{sXE}, s{sXB}, 1280")
e(f"s_mul_i32 s{sKW}, s{sKX}, {64*3072}")
e(f"s_add_u32 s{sKW}, s{sKW}, s{sWB}")
e(f"s_lshl_b32 s{sKX}, s{sKX}, 7")
e(f"s_add_u32 s{sKX}, s{sKX}, s{sXB}")
G = vTM+6
e(f"v_lshrrev_b32 v{G}, 4, v{L}")
e(f"v_lshrrev_b32 v{t0}, 3, v{L}")
e(f"v_lshl_add_u32 v{t0}, v{Wv}, 4, v{t0}")
e(f"v_mul_u32_u24 v{t0}, 1280, v{t0}")
e(f"v_and_b32 v{t1}, 7, v{L}")
e(f"v_xor_b32 v{t1}, v{t1}, v{G}")
e(f"v_lshl_add_u32 v{vDX}, v{t1}, 4, v{t0}")
e(f"v_xor_b32 v{t1}, 4, v{t1}")
e(f"v_lshl_add_u32 v{vDX+1}, v{t1}, 4, v{t0}")
e(f"v_add_u32 v{vDX+1}, {8*1280-1024}, v{vDX+1}")
if opt["xlin"]:
    e(f"v_lshl_add_u32 v{vDX}, v{Wv}, 11, v{vL16}")
    e(f"v_mov_b32 v{vDX+1}, v{vDX}")
    e(f"s_and_b32 s{sT0}, s{sFT}, 3")
    e(f"s_mul_i32 s{sT0}, s{sT0}, {opt['xlin']}")
    e(f"s_lshr_b32 s{sT0}, s{sT0}, 2")
    e(f"s_lshl_b32 s100, s{sT0}, 13")
    e(f"s_add_u32 s100, s100, s{sXB}")
    e(f"s_add_u32 s101, s{sXB}, 81920")
e(f"v_mul_u32_u24 v{t3}, {16*3072}, v{Wv}")
for i in range(3):
    if i: e(f"v_add_u32 v{t0}, {64*i}, v{L}")
    src = t0 if i else L
    e(f"v_mul_u32_u24 v{t1}, 2731, v{src}")
    e(f"v_lshrrev_b32 v{t1}, 16, v{t1}")
    e(f"v_mul_u32_u24 v{t2}, 24, v{t1}")
    e(f"v_sub_u32 v{t0}, v{src}, v{t2}")
    e(f"v_and_b32 v{t2}, 2, v{t1}")
    e(f"v_lshlrev_b32 v{t2}, 1, v{t2}")
    e(f"v_xor_b32 v{t0}, v{t0}, v{t2}")
    e(f"v_mul_u32_u24 v{t1}, 3072, v{t1}")
    e(f"v_lshl_add_u32 v{t0}, v{t0}, 4, v{t1}")
    e(f"v_add_u32 v{t0}, v{t0}, v{t3}")
    if i: e(f"v_subrev_u32 v{vDW+i}, {i*1024}, v{t0}")
    else: e(f"v_mov_b32 v{vDW}, v{t0}")
    e(f"v_add_u32 v{vDW+3+i}, {8*3072 - ((i+3)%4)*1024}, v{t0}")
vTC = 250
if opt["tch"]:
    e(f"v_lshrrev_b32 v{t0}, 1, v{L}")
    e(f"v_mul_u32_u24 v{t1}, 1280, v{t0}")
    e(f"v_mul_u32_u24 v{t2}, 43, v{t0}")
    e(f"v_lshrrev_b32 v{t2}, 7, v{t2}")
    e(f"v_mul_u32_u24 v{t2}, {3072-384}, v{t2}")
    e(f"v_lshl_add_u32 v{t2}, v{t0}, 7, v{t2}")
    e(f"s_and_b32 s{sT0}, s{sFT}, 3")
    e(f"s_lshl_b32 s{sT0}, s{sT0}, 1")
    e(f"s_lshr_b32 s{sT1}, s{sW}, 1")
    e(f"s_add_u32 s{sT0}, s{sT0}, s{sT1}")
    e(f"s_mul_i32 s{sT0}, s{sT0}, {8*1280}")
    e(f"s_and_b32 s{sWO}, s{sMT}, 7")
    e(f"s_lshl_b32 s{sWO}, s{sWO}, 1")
    e(f"s_add_u32 s{sWO}, s{sWO}, s{sT1}")
    e(f"s_mul_i32 s{sWO}, s{sWO}, {4*3072}")
    e(f"s_add_u32 s{sT1}, s{sWB}, {640*3072}")
    e(f"s_bitcmp1_b32 s{sW}, 0")
    e(f"s_cselect_b64 vcc, -1, 0")
    e(f"v_cndmask_b32 v{vTC}, v{t1}, v{t2}, vcc")
    e(f"s_cselect_b32 s{sT0}, s{sWO}, s{sT0}")
    e(f"s_mov_b32 s{sWO}, {0xffff if opt['th'] else 0x5555}")
    e(f"s_cselect_b32 s{sWO}, {0xffffff if opt['th'] else 0x555555}, s{sWO}")
    e(f"s_cselect_b32 s{sHS}, s{sKW}, s{sKX}")
    e(f"s_movk_i32 s{sHS2}, 128")
    e(f"s_cselect_b32 s{sHS2}, {64*3072}, s{sHS2}")
    e(f"v_and_b32 v{t0}, 1, v{L}")
    e(f"v_lshl_add_u32 v{vTC}, v{t0}, 6, v{vTC}")
    e(f"v_add_u32 v{vTC}, s{sT0}, v{vTC}")
    e(f"s_cselect_b32 vcc_lo, s{sT1}, s{sXE}")
    e(f"s_cselect_b32 vcc_hi, s{sWB}, s{sXB}")
e(f"s_lshl_b32 s{sM0}, s{sW}, 13")
CLR = opt["clr"] >= 0 or opt["clrs"]
sCL = sHS
vNAN = 244
if CLR:
    e(f"s_lshl_b32 s{sT0}, s{sMT}, 2")
    e(f"s_lshr_b32 s{sT1}, s{sFT}, 1")
    e(f"s_add_u32 s{sT0}, s{sT0}, s{sT1}")
    e(f"s_lshl_b32 s{sT0}, s{sT0}, 2")
    e(f"s_add_u32 s{sT0}, s{sT0}, s{sW}")
    e(f"s_lshl_b32 s{sT0}, s{sT0}, 1")
    e(f"s_and_b32 s{sT1}, s{sFT}, 1")
    e(f"s_add_u32 s{sT0}, s{sT0}, s{sT1}")
    e(f"s_mul_i32 s{sT0}, s{sT0}, 6144")
    e(f"v_add_u32 v248, s{sT0}, v{vL16}")
    e(f"v_add_u32 v249, 3072, v248")
    for r in range(4): e(f"v_mov_b32 v{vNAN+r}, -1")
def clr_ops():
    def mk(i):
        def f():
            e(f"buffer_store_dwordx4 {vr(vNAN,4)}, v{248 + i//3}, {srd(sH)}, 0 offen offset:{(i%3)*1024} sc1"); VM.issue("clr")
        return f
    return [mk(i) for i in range(6)]
CLO = clr_ops()
e(f"s_mov_b32 s{sSPIN}, {EP}")
for r, n in ((sX, 2621440), (sW1, 1966080), (sW2, 1966080), (sOUT, 2621440), (sH, HREC)):
    e(f"s_mov_b32 s{r+2}, {n}"); e(f"s_mov_b32 s{r+3}, 0x20000")
e("s_waitcnt lgkmcnt(0)")
if opt["wso"]:
    e(f"s_add_u32 s12, s12, {opt['wso'] << 20}"); e("s_addc_u32 s13, s13, 0")
for r, p in ((sW2, 8), (sX, 4), (sW1, 6), (sOUT, 10), (sH, 12)):
    e(f"s_mov_b64 s[{r}:{r+1}], s[{p}:{p+1}]")
if opt["tch"]:
    e(f"s_bitcmp1_b32 s{sW}, 0")
    e(f"s_cselect_b64 s[8:9], s[6:7], s[4:5]")
    e(f"s_cselect_b32 s10, s{sW1+2}, s{sX+2}")
    e("s_mov_b32 s11, 0x20000")
    e(f"s_mov_b32 s6, s{sHS}")
    e(f"s_mov_b32 s7, s{sHS2}")
def touch():
    e("s_add_u32 s6, s6, s7")
    e("s_cmp_eq_u32 s6, vcc_lo")
    e("s_cselect_b32 s6, vcc_hi, s6")
    e(f"s_mov_b32 exec_lo, s{sWO}")
    e("s_mov_b32 exec_hi, 0")
    e(f"buffer_load_dword v251, v{vTC}, s[8:11], s6 offen"); VM.issue("tch")
    e("s_mov_b64 exec, -1")
stamp()
e(f"s_load_dword s{sE}, s[12:13], s{sSPIN}")

def adv_k():
    if opt["xlin"]:
        e(f"s_add_u32 s100, s100, 8192")
        e(f"s_cmp_eq_u32 s100, s101")
        e(f"s_cselect_b32 s100, s{sXB}, s100")
    e(f"s_add_u32 s{sKX}, s{sKX}, 128")
    e(f"s_add_u32 s{sKW}, s{sKW}, {64*3072}")
    e(f"s_cmp_eq_u32 s{sKX}, s{sXE}")
    e(f"s_cselect_b32 s{sKX}, s{sXB}, s{sKX}")
    e(f"s_cselect_b32 s{sKW}, s{sWB}, s{sKW}")
def dma_ops(st):
    base = (st % NSL) * 32768
    def mk(i):
        def f():
            if i == 0: e(f"s_add_u32 m0, s{sM0}, {base+6144}"); e("s_nop 0")
            if i < 2:
                e(f"buffer_load_dwordx4 v{vDX+i}, {srd(sX)}, s{100 if opt['xlin'] else sKX} offen offset:{i*1024} {opt['xaux'] if st < opt['ntst'] else ''} lds")
            else:
                j = i - 2
                e(f"buffer_load_dwordx4 v{vDW+j}, {srd(sW1)}, s{sKW} offen offset:{(j%4)*1024} {opt['w1aux'] if st < opt['ntst'] else ''} lds")
            VM.issue(f"st{st}")
            if i == 1: e(f"s_add_u32 m0, s{sM0}, {base}"); e("s_nop 0")
            if i == 5: e(f"s_add_u32 m0, s{sM0}, {base+4096}"); e("s_nop 0")
            if i == 7 and st < 9: adv_k()
        return f
    return [mk(i) for i in range(8)]

def setup2():
    R, C = t0, t1
    u0, u1, u2 = vTM+7, vTM+8, vTM+9
    if D1:
        e(f"s_lshr_b32 s{sT1}, s2, 1")
        e(f"s_and_b32 s{sT0}, s2, 1")
        e(f"s_mul_i32 s{sRFL}, s{sT0}, 48")
        e(f"s_add_u32 s{sRFL}, s{sRFL}, s{sT1}")
        e(f"s_lshl_b32 s{sRFL}, s{sRFL}, 7")
        e(f"s_lshl_b32 s{sRS}, s{sT1}, 2")
        e(f"s_add_u32 s{sRS}, s{sRS}, s{sW}")
        e(f"s_mul_i32 s{sRS}, s{sRS}, 10240")
        e(f"s_lshl_b32 s{sT0}, s{sT0}, 7")
        e(f"s_add_u32 s{sRS}, s{sRS}, s{sT0}")
        e(f"s_add_u32 s{sRS}, s{sRS}, 1024")
        e(f"s_lshl_b32 s{sRD}, s2, 2")
        e(f"s_add_u32 s{sRD}, s{sRD}, s{sW}")
        e(f"s_lshl_b32 s{sRD}, s{sRD}, 10")
        e(f"s_add_u32 s{sRD}, s{sRD}, {W2F}")
        e(f"s_cmp_lt_u32 s2, {0 if opt['nor'] else 96}")
        e(f"s_cselect_b32 s{sRS}, s{sRS}, 1966080")
        e(f"s_cselect_b32 s{sRD}, s{sRD}, {HREC}")
        e(f"s_cselect_b32 s{sRFL}, s{sRFL}, {HREC - RFL}")
    else:
        e(f"s_and_b32 s{sT0}, s2, 63")
        e(f"s_mul_i32 s{sT1}, s{sT0}, 205")
        e(f"s_lshr_b32 s{sT1}, s{sT1}, 10")
        e(f"s_mul_i32 s{sRS}, s{sT1}, 5")
        e(f"s_sub_u32 s{sRS}, s{sT0}, s{sRS}")
        e(f"s_lshr_b32 s{sRD}, s2, 6")
        e(f"s_mul_i32 s{sRFL}, s{sRD}, 5")
        e(f"s_add_u32 s{sRFL}, s{sRFL}, s{sRS}")
        e(f"s_lshl_b32 s{sRFL}, s{sRFL}, 4")
        e(f"s_add_u32 s{sRFL}, s{sRFL}, s{sT1}")
        e(f"s_lshl_b32 s{sRFL}, s{sRFL}, 7")
        if opt["own"]:
            e(f"s_mul_i32 s6, s{sT1}, 6")
            e(f"s_add_u32 s6, s6, s{sRD}")
            e(f"s_lshr_b32 s7, s{sT1}, 1")
            e(f"s_mul_i32 s7, s7, 6")
            e(f"s_and_b32 s8, s{sT1}, 1")
            e(f"s_add_u32 s7, s7, s8")
            e(f"s_mul_i32 s8, s{sRD}, 12")
            e(f"s_add_u32 s7, s7, s8")
            e(f"s_sub_u32 s7, s7, 20")
            e(f"s_cmp_lt_u32 s{sT1}, 8")
            e(f"s_cselect_b32 s6, s6, s7")
            e(f"s_mul_i32 s6, s6, 40960")
        e(f"s_mul_i32 s{sRD}, s{sRD}, 12")
        e(f"s_add_u32 s{sT1}, s{sT1}, s{sRD}")
        e(f"s_mul_i32 s{sT1}, s{sT1}, 40960")
        e(f"s_lshl_b32 s{sRD}, s{sRS}, 13")
        e(f"s_add_u32 s{sRD}, s{sRD}, s{sT1}")
        e(f"s_lshl_b32 s{sRS}, s{sRS}, 8")
        e(f"s_add_u32 s{sRS}, s{sRS}, s{6 if opt['own'] else sT1}")
        e(f"s_lshl_b32 s{sT1}, s{sW}, 11")
        e(f"s_add_u32 s{sRD}, s{sRD}, s{sT1}")
        e(f"s_add_u32 s{sRD}, s{sRD}, {W2F}")
        e(f"s_cmp_lt_u32 s{sT0}, {0 if opt['nor'] else 60}")
        e(f"s_cselect_b32 s{sRS}, s{sRS}, 1966080")
        e(f"s_cselect_b32 s{sRD}, s{sRD}, {HREC}")
    if opt["pt"] & 1:
        e(f"s_min_u32 s{sT1}, s{sRS}, {1966080-4}")
        e(f"s_load_dword s6, s[8:9], s{sT1}")
    if opt["pt"] & 2:
        e(f"s_mul_i32 s{sT1}, s{sMT}, {64*3072}")
        e(f"s_load_dword s6, s[12:13], s{sT1}")
    if opt["pt"] & 4:
        e(f"s_load_dword s6, s[10:11], s{sXB}")
    if opt["pt"] & 8:
        e(f"s_load_dword s6, s[12:13], s{sRD}")
    if D1:
        e(f"v_lshrrev_b32 v{t0}, 3, v{L}")
        e(f"v_mul_u32_u24 v{t0}, 1280, v{t0}")
        e(f"v_and_b32 v{t1}, 7, v{L}")
        e(f"v_lshlrev_b32 v{t2}, 1, v{G}")
        e(f"v_xor_b32 v{t1}, v{t1}, v{t2}")
        e(f"v_lshl_add_u32 v{vWD}, v{t1}, 4, v{t0}")
        for i in range(1, 4): e(f"v_add_u32 v{vWD+i}, {i*(10240-1024)}, v{vWD}")
    else:
        e(f"v_lshl_add_u32 v{t0}, v{Wv}, 3, v{G}")
        e(f"v_mul_u32_u24 v{t0}, 1280, v{t0}")
        e(f"v_and_b32 v{t1}, 15, v{L}")
        e(f"v_lshlrev_b32 v{t2}, 1, v{G}")
        e(f"v_xor_b32 v{t1}, v{t1}, v{t2}")
        e(f"v_lshl_add_u32 v{vDR}, v{t1}, 4, v{t0}")
        e(f"v_xor_b32 v{t1}, 8, v{t1}")
        e(f"v_lshl_add_u32 v{vDR+1}, v{t1}, 4, v{t0}")
        e(f"v_add_u32 v{vDR+1}, {4*1280-1024}, v{vDR+1}")
    e(f"v_bfe_u32 v{R}, v{L}, 2, 2")
    e(f"v_and_b32 v{C}, 3, v{L}")
    e(f"v_lshrrev_b32 v{u0}, 1, v{G}")
    e(f"v_lshl_add_u32 v{u0}, v{u0}, 3, v{R}")
    e(f"v_mul_u32_u24 v{u0}, 384, v{u0}")
    e(f"v_lshrrev_b32 v{u1}, 1, v{R}")
    e(f"v_xor_b32 v{u1}, v{u1}, v{Wv}")
    e(f"v_and_b32 v{u1}, 1, v{u1}")
    e(f"v_lshl_add_u32 v{u0}, v{u1}, 6, v{u0}")
    e(f"v_and_b32 v{u1}, 1, v{G}")
    e(f"v_lshl_add_u32 v{u0}, v{u1}, 5, v{u0}")
    e(f"v_lshl_add_u32 v{vA}, v{C}, 3, v{u0}")
    e(f"v_add_u32 v{vA+1}, 65536, v{vA}")
    e(f"v_and_b32 v{u0}, 2, v{Wv}")
    e(f"v_add_u32 v{u0}, v{u0}, v{u1}")
    e(f"v_lshlrev_b32 v{u0}, 13, v{u0}")
    e(f"v_and_b32 v{u2}, 15, v{L}")
    e(f"v_lshl_add_u32 v{u0}, v{u2}, 7, v{u0}")
    e(f"v_add_u32 v{u0}, 6144, v{u0}")
    e(f"v_lshrrev_b32 v{u1}, 1, v{u2}")
    e(f"v_lshrrev_b32 v{t2}, 5, v{L}")
    e(f"v_xor_b32 v{u1}, v{u1}, v{t2}")
    e(f"v_lshl_add_u32 v{vB}, v{u1}, 4, v{u0}")
    for k in range(1, 4): e(f"v_xor_b32 v{vB+k}, {32*k}, v{vB}")
    for k in range(4): e(f"v_add_u32 v{vB+4+k}, 65536, v{vB+k}")
    if D1:
        e(f"v_and_b32 v{u1}, 1, v{G}")
        e(f"v_lshl_add_u32 v{u1}, v{u1}, 2, v{R}")
        e(f"v_lshlrev_b32 v{u0}, 11, v{t2}")
        e(f"v_lshl_add_u32 v{u0}, v{u1}, 7, v{u0}")
        e(f"v_lshrrev_b32 v{u1}, 1, v{u1}")
        e(f"v_lshl_add_u32 v{u0}, v{u1}, 5, v{u0}")
        e(f"v_and_b32 v{u1}, 1, v{C}")
        e(f"v_lshl_add_u32 v{u0}, v{u1}, 4, v{u0}")
        e(f"v_lshrrev_b32 v{u1}, 1, v{C}")
        e(f"v_lshl_add_u32 v{u0}, v{u1}, 3, v{u0}")
        e(f"v_add_u32 v{u0}, {RB}, v{u0}")
        e(f"v_lshlrev_b32 v{t3}, 5, v{Wv}")
        e(f"v_xor_b32 v{vRA}, v{u0}, v{t3}")
        e(f"v_add_u32 v{vWT}, s{sM0}, v{u0}")
        for j in range(1, 4): e(f"v_xor_b32 v{vWT+j}, {32*j}, v{vWT}")
    else:
        e(f"v_and_b32 v{u1}, 1, v{G}")
        e(f"v_lshl_add_u32 v{u1}, v{u1}, 2, v{R}")
        e(f"v_lshlrev_b32 v{u0}, 12, v{t2}")
        e(f"v_lshl_add_u32 v{u0}, v{u1}, 8, v{u0}")
        e(f"v_lshlrev_b32 v{t3}, 1, v{Wv}")
        e(f"v_xor_b32 v{u1}, v{u1}, v{t3}")
        e(f"v_lshl_add_u32 v{u0}, v{u1}, 5, v{u0}")
        e(f"v_and_b32 v{u1}, 1, v{C}")
        e(f"v_lshl_add_u32 v{u0}, v{u1}, 4, v{u0}")
        e(f"v_lshrrev_b32 v{u1}, 1, v{C}")
        e(f"v_lshl_add_u32 v{u0}, v{u1}, 3, v{u0}")
        e(f"v_add_u32 v{vRA}, {RB}, v{u0}")
        e(f"v_xor_b32 v{vRA+1}, 32, v{vRA}")
    if not D1:
        e(f"v_mov_b32 v{vCN}, {CNT}")
        e(f"v_mov_b32 v{vONE}, 0")
        e(f"ds_write_b32 v{vCN}, v{vONE}"); LG.issue("cnt")
    if opt["ab"]: e(f"ds_write_b32 v{vCN}, v{vONE} offset:4"); LG.issue("cnt")
    for i in range(48): e(f"v_mov_b32 v{vACC1+i}, 0")
    if not D1: e(f"v_mov_b32 v{vONE}, 1")
    e(f"v_and_b32 v{u1}, 1, v{G}")
    e(f"v_mul_u32_u24 v{u0}, 12288, v{u1}")
    e(f"v_lshl_add_u32 v{u0}, v{t2}, 8, v{u0}")
    e(f"v_lshl_add_u32 v{vHS}, v{u2}, 4, v{u0}")
    if opt["own"]:
        e(f"s_and_b32 s{sT0}, s{sW}, 1")
        e(f"s_and_b32 s{sT1}, s{sW}, 2")
        e(f"s_sub_u32 s{sT1}, s{sT1}, s{sT0}")
        e(f"s_add_u32 s{sT1}, s{sT1}, 3")
        e(f"v_add_u32 v{u0}, s{sT1}, v{u1}")
        e(f"v_and_b32 v{u0}, 3, v{u0}")
        e(f"s_lshl_b32 s{sT0}, s{sT0}, 12")
        e(f"s_add_u32 s{sT0}, s{sT0}, {OWN}")
        e(f"v_lshl_add_u32 v{u0}, v{u0}, 10, s{sT0}")
        e(f"v_lshl_add_u32 v{u0}, v{t2}, 8, v{u0}")
        e(f"v_lshl_add_u32 v{vOW}, v{u2}, 4, v{u0}")
        e(f"v_xor_b32 v{vOW+1}, 2048, v{vOW}")
        e(f"s_lshl_b32 s{sT0}, s{sW}, 12")
        e(f"s_add_u32 s{sT0}, s{sT0}, {OWN}")
        e(f"v_add_u32 v{vOW+2}, s{sT0}, v{vL16}")
    e(f"v_mul_u32_u24 v{u0}, 1280, v{u2}")
    e(f"v_lshl_add_u32 v{vOUT}, v{G}, 4, v{u0}")
    e(f"v_lshl_add_u32 v{u0}, v{u1}, 4, v{u0}")
    e(f"v_lshl_add_u32 v{vOUT2}, v{t2}, 3, v{u0}")
    if not D1: e(f"v_add_u32 v{vL16b}, 4096, v{vL16}")
    if D1:
        e(f"s_lshr_b32 s{sT0}, s{sFT}, 2")
        e(f"s_lshl_b32 s{sT0}, s{sT0}, 2")
        e(f"s_add_u32 s{sT0}, s{sT0}, s{sW}")
        e(f"s_mul_i32 s{sT0}, s{sT0}, {12*128}")
        e(f"v_min_u32 v{vRP}, 11, v{u2}")
        e(f"v_lshl_add_u32 v{vRP}, v{vRP}, 7, s{sT0}")
    else:
        e(f"s_mul_i32 s{sT0}, s{sFT}, 5")
        e(f"v_lshl_add_u32 v{u0}, v{u1}, 2, s{sT0}")
        e(f"v_lshrrev_b32 v{u0}, 3, v{u0}")
        e(f"v_mad_u32_u24 v{u0}, v{Wv}, 5, v{u0}")
        e(f"v_min_u32 v{vRP}, 11, v{u2}")
        e(f"v_lshlrev_b32 v{vRP}, 7, v{vRP}")
        e(f"v_lshl_add_u32 v{vRP}, v{u0}, 11, v{vRP}")
    e(f"v_lshlrev_b32 v{vL4}, 2, v{L}")
    if opt["own"]:
        e(f"v_and_b32 v{vPA}, 7, v{L}")
        e(f"v_lshlrev_b32 v{vPA}, 7, v{vPA}")
    else: e(f"v_mul_u32_u24 v{vPA}, {FS}, v{u1}")
    if D1:
        assert FS == 128
        e(f"v_lshlrev_b32 v{vAC}, 7, v0")
        e(f"s_add_u32 s{sT0}, s{sM0}, 32768")
        e(f"v_add_u32 v{vRW}, s{sT0}, v{vL16}")
        e(f"v_add_u32 v{vRW2}, 65536, v{vRW}")
        for p in range(3):
            e(f"s_sub_u32 s{sT0}, s{sW}, {1+p}")
            e(f"s_and_b32 s{sT0}, s{sT0}, 3")
            e(f"s_lshl_b32 s{sT0}, s{sT0}, 13")
            e(f"s_add_u32 s{sT0}, s{sT0}, {32768*(p+1)}")
            e(f"v_add_u32 v{vRR+p}, s{sT0}, v{vL16}")
        e(f"s_mul_i32 s{sW2B}, s{sW}, {12*40960}")
        e(f"s_lshl_b32 s{sT0}, s{sFT}, 7")
        e(f"s_add_u32 s{sW2B}, s{sW2B}, s{sT0}")
        e(f"s_mul_i32 s{sW5B}, s{sW}, 96")
        e(f"s_add_u32 s{sW5B}, s{sW5B}, s{sFT}")
        e(f"s_lshl_b32 s{sW5B}, s{sW5B}, 10")
        e(f"s_add_u32 s{sW5B}, s{sW5B}, {W2F}")
    else:
        e(f"v_mul_u32_u24 v{u0}, 205, v{L}")
        e(f"v_lshrrev_b32 v{u0}, 10, v{u0}")
        e(f"v_sub_u32 v{vAC}, v{Wv}, v{u0}")
        e(f"v_mad_i32_i24 v{vAC}, v{vAC}, 5, v{L}")
        e(f"v_lshlrev_b32 v{vAC}, 11, v{vAC}")
        e(f"v_lshl_add_u32 v{vAC}, v{u0}, 7, v{vAC}")
        e(f"s_mul_i32 s{sT0}, s{sW}, 15360")
        e(f"s_add_u32 s{sT0}, s{sT0}, {RED}")
        e(f"v_add_u32 v{vRW}, s{sT0}, v{vL16}")
        for p in range(3):
            e(f"s_sub_u32 s{sT0}, s{sW}, {1+p}")
            e(f"s_and_b32 s{sT0}, s{sT0}, 3")
            e(f"s_mul_i32 s{sT0}, s{sT0}, 15360")
            e(f"s_add_u32 s{sT0}, s{sT0}, {RED + p*5120}")
            e(f"v_add_u32 v{vRR+p}, s{sT0}, v{vL16}")
        e(f"s_mul_i32 s{sW2B}, s{sW}, {12*40960}")
        e(f"s_mul_i32 s{sT0}, s{sFT}, 5120")
        e(f"s_add_u32 s{sW2B}, s{sW2B}, s{sT0}")
        e(f"s_add_u32 s{sW2B}, s{sW2B}, {W2F}")
    if opt["ab"]:
        e(f"s_mov_b32 s{sSIG+6}, 0x98763210"); e(f"s_mov_b32 s{sSIG+7}, 0x98763210")
        e(f"s_lshr_b64 s[{sSIG+6}:{sSIG+7}], s[{sSIG+6}:{sSIG+7}], s{sROT}")
        e(f"s_mov_b32 s{sSIG+7}, s{sSIG+6}")
        e(f"s_and_b32 s{sROT}, s{sROT}, 12")
        e(f"s_lshr_b32 s{sSIG+11}, 0xba54ba54, s{sROT}")
        for n in range(12):
            src = sSIG+7 if n < 8 else sSIG+11
            e(f"s_bfe_u32 s{sSIG+n}, s{src}, {0x40000 + 4*(n%8)}")
            e(f"s_lshl_b32 s{sSIG+n}, s{sSIG+n}, 10")
    if opt["own"]:
        e(f"s_lshl_b32 s{sSIG}, s{sFT}, 10")
        for n in range(1, 12):
            e(f"s_cmp_eq_u32 s{sROT}, s{sFT}")
            e(f"s_addc_u32 s{sROT}, s{sROT}, 0")
            e(f"s_lshl_b32 s{sSIG+n}, s{sROT}, 10")
            if n < 11:
                e(f"s_add_u32 s{sROT}, s{sROT}, 1")
                e(f"s_cmp_ge_u32 s{sROT}, 12")
                e(f"s_cselect_b32 s{sROT}, 0, s{sROT}")
    for n in range(12 if not opt["ab"] and not opt["own"] else 0):
        e(f"s_lshl_b32 s{sSIG+n}, s{sROT}, 10")
        if n < 11:
            e(f"s_add_u32 s{sROT}, s{sROT}, 1")
            e(f"s_cmp_ge_u32 s{sROT}, 12")
            e(f"s_cselect_b32 s{sROT}, 0, s{sROT}")
    if opt["own2"] == 2:
        e(f"s_mov_b32 s{sOWN}, s{sW}")
    elif opt["own2"] == 3:
        e(f"s_and_b32 s{sOWN}, s{sFT}, 1")
        e(f"s_add_u32 s{sOWN}, s{sW}, s{sOWN}")
    elif opt["own2"]:
        e(f"s_lshl_b32 s{sOWN}, s{sFT}, 1")
        e(f"s_add_u32 s{sOWN}, s{sW}, s{sOWN}")
    else: e(f"s_add_u32 s{sOWN}, s{sW}, s{sFT}")
    e(f"s_and_b32 s{sOWN}, s{sOWN}, 3")
    e(f"s_lshl_b32 s{sT1}, s{sMT}, 2")
    e(f"s_add_u32 s{sT1}, s{sT1}, s{sW}")
    if opt["own"]: e(f"s_lshl_b32 s{sPOL}, s{sMT}, 10")
    else: e(f"s_mul_i32 s{sPOL}, s{sT1}, {2*FS}")
    e(f"s_add_u32 s{sPOL}, s{sPOL}, {FL}")
    e(f"s_lshl_b32 s{sT1}, s{sT1}, 2")
    for p in range(4):
        e(f"s_add_u32 s{sT0}, s{sOWN}, {1+p}")
        e(f"s_and_b32 s{sT0}, s{sT0}, 3")
        e(f"s_add_u32 s{sT0}, s{sT0}, s{sT1}")
        e(f"s_mul_i32 s{sT0}, s{sT0}, 12288")
        e(f"v_add_u32 v{vHB+p}, s{sT0}, v{vL16}")
    e(f"s_lshl_b32 s{sOB}, s{sMT}, 2")
    e(f"s_add_u32 s{sOB}, s{sOB}, s{sOWN}")
    e(f"s_mul_i32 s{sOB}, s{sOB}, {16*1280}")
    if D1:
        e(f"s_lshl_b32 s{sT0}, s{sFT}, 5")
        e(f"s_add_u32 s{sOB2}, s{sOB}, s{sT0}")
        e(f"s_add_u32 s{sOB2}, s{sOB2}, {1024-128}")
    e(f"s_mul_i32 s{sT0}, s{sFT}, {128 if D1 else 160}")
    e(f"s_add_u32 s{sOB}, s{sOB}, s{sT0}")
    if opt["ost"]:
        e(f"s_cmp_ge_u32 s{sW}, {opt['ost']}")
        e(f"s_cselect_b32 s{sOB}, s{sOB}, 2621440")
    e(f"s_lshl_b32 s{sT0}, s{sMT}, 2")
    e(f"s_lshr_b32 s{sT1}, s{sFT}, 1")
    e(f"s_add_u32 s{sT0}, s{sT0}, s{sT1}")
    e(f"s_mul_i32 s{sFLG}, s{sT0}, {2*FS}")
    e(f"s_lshl_b32 s{sT0}, s{sT0}, 2")
    e(f"s_and_b32 s{sT1}, s{sW}, 2")
    e(f"s_add_u32 s{sT0}, s{sT0}, s{sT1}")
    e(f"s_mul_i32 s{sHS}, s{sT0}, 12288")
    e(f"s_and_b32 s{sT0}, s{sFT}, 1")
    e(f"s_mul_i32 s{sT1}, s{sT0}, {FS}")
    e(f"s_add_u32 s{sFLG}, s{sFLG}, s{sT1}")
    e(f"s_add_u32 s{sFLG}, s{sFLG}, {FL}")
    e(f"s_mul_i32 s{sT0}, s{sT0}, 6")
    e(f"s_and_b32 s{sT1}, s{sW}, 1")
    e(f"s_add_u32 s{sT0}, s{sT0}, s{sT1}")
    e(f"s_lshl_b32 s{sT0}, s{sT0}, 10")
    e(f"s_add_u32 s{sHS}, s{sHS}, s{sT0}")
    e(f"s_add_u32 s{sHS2}, s{sHS}, 4096")
    if opt["own"]:
        e(f"s_and_b32 s{sT0}, s{sFT}, 1")
        e(f"s_lshl_b32 s{sT0}, s{sT0}, 12")
        e(f"s_sub_u32 s{sHS2}, s{sHS}, s{sT0}")
        e(f"s_add_u32 s{sHS2}, s{sHS2}, 8192")
        e(f"s_lshl_b32 s{sT0}, s{sMT}, 2")
        e(f"s_add_u32 s{sT0}, s{sT0}, s{sT1}")
        e(f"s_lshl_b32 s{sT0}, s{sT0}, 2")
        e(f"s_and_b32 s{sT1}, s{sW}, 2")
        e(f"s_add_u32 s{sT0}, s{sT0}, s{sT1}")
        e(f"s_mul_i32 s{sT0}, s{sT0}, 12")
        e(f"s_add_u32 s{sT0}, s{sT0}, s{sFT}")
        e(f"s_lshl_b32 s{sHS}, s{sT0}, 10")
        e(f"s_add_u32 s{sHS1}, s{sHS}, 98304")
    e(f"s_add_u32 s{sRFL}, s{sRFL}, {RFL}")
    e(f"s_cmp_eq_u32 s{sW}, 0")
    e(f"s_cselect_b32 s{sRFL}, s{sRFL}, {HREC}")
    e(f"s_mov_b32 s{sL2E}, 0xbfb8aa3b")
    if opt["pk"]:
        e(f"s_mov_b32 s{sPK}, 0xbfb8aa3b"); e(f"s_mov_b32 s{sPK+1}, 0xbfb8aa3b")
def r_loads():
    if D1:
        e(f"s_lshr_b32 m0, s{sM0}, 3")
        e(f"s_add_u32 m0, m0, {RB}")
        e("s_nop 0")
        e(f"buffer_load_dwordx4 v{vWD}, {srd(sW2)}, s{sRS} offen {opt['raux']} lds"); VM.issue("rld")
        return
    e(f"s_lshr_b32 m0, s{sM0}, 2")
    e(f"s_add_u32 m0, m0, {RB}")
    e("s_nop 0")
    for i in range(2):
        e(f"buffer_load_dwordx4 v{vDR+i}, {srd(sW2)}, s{sRS} offen offset:{i*1024} {opt['raux']} lds"); VM.issue("rld")
def r_reads():
    if D1:
        for t in range(2):
            e(f"ds_read_b64_tr_b16 {vr(vRF + 2*t, 2)}, v{vRA} offset:{t*1024}"); LG.issue("rrd")
        return
    for ee in range(2):
        for t in range(2):
            e(f"ds_read_b64_tr_b16 {vr(vRF + 4*ee + 2*t, 2)}, v{vRA+ee} offset:{t*2048}"); LG.issue("rrd")
def r_stores():
    LG.wait("rrd")
    for ee in range(1 if D1 else 2):
        e(f"buffer_store_dwordx4 {vr(vRF+4*ee,4)}, v{vL16}, {srd(sH)}, s{sRD} offen offset:{ee*1024} {opt['rsaux']}"); VM.issue("rst")
S2 = capture(setup2)
groups = []
for l in S2:
    if l.startswith("s_cselect") or (groups and groups[-1][-1].startswith("s_cmp")): groups[-1].append(l)
    else: groups.append([l])
ST0 = []
def pre_order(spec):
    kx, kw = (sKX, 6, 8), (sKW, 7, 9)
    def nxt(i):
        a, b = (i + 1) % 3, i
        e(f"s_add_u32 s{kx[a]}, s{kx[b]}, 128")
        e(f"s_add_u32 s{kw[a]}, s{kw[b]}, {64*3072}")
        e(f"s_cmp_eq_u32 s{kx[a]}, s{sXE}")
        e(f"s_cselect_b32 s{kx[a]}, s{sXB}, s{kx[a]}")
        e(f"s_cselect_b32 s{kw[a]}, s{sWB}, s{kw[a]}")
    ops = []
    for ch in spec:
        if ch in "abc":
            st = "abc".index(ch)
            for i in range(2):
                def f(st=st, i=i):
                    if i == 0: e(f"s_add_u32 m0, s{sM0}, {st*32768+6144}"); e("s_nop 0")
                    e(f"buffer_load_dwordx4 v{vDX+i}, {srd(sX)}, s{kx[st]} offen offset:{i*1024} {opt['xaux']} lds"); VM.issue(f"st{st}")
                    if st == 0 and i == 1: nxt(0); nxt(1)
                ops.append(f)
        elif ch in "ABC":
            st = "ABC".index(ch)
            for j in range(6):
                def f(st=st, j=j):
                    if j % 4 == 0: e(f"s_add_u32 m0, s{sM0}, {st*32768+j*1024}"); e("s_nop 0")
                    e(f"buffer_load_dwordx4 v{vDW+j}, {srd(sW1)}, s{kw[st]} offen offset:{(j%4)*1024} {opt['w1aux']} lds"); VM.issue(f"st{st}")
                ops.append(f)
        elif ch == "R": ops.append(r_loads)
        elif ch == ".": ops.append(None)
        elif ch == "P":
            def f():
                e(f"s_bfe_u32 s10, s{sMT}, 0x10002")
                e(f"s_mul_i32 s10, s10, 320")
                e(f"s_and_b32 s11, s{sMT}, 3")
                e(f"s_lshl_b32 s11, s11, 4")
                e(f"s_add_u32 s10, s10, s11")
                e(f"s_mul_i32 s11, s{sW}, 12")
                e(f"s_sub_u32 s10, s10, s11")
                e(f"s_add_u32 s10, s10, 256")
                e(f"s_mul_i32 s10, s10, 3072")
                e(f"s_add_u32 s10, s10, s{sWB}")
                e(f"buffer_load_dwordx4 v[244:247], v{vDW}, {srd(sW1)}, s10 offen"); VM.issue("pp")
                e("s_mov_b32 exec_hi, 0")
                e(f"buffer_load_dwordx4 v[248:251], v{vDW+1}, {srd(sW1)}, s10 offen offset:1024"); VM.issue("pp")
                e("s_mov_b32 exec_hi, -1")
            ops.append(f)
    assert spec[0] == "a" and all(c in spec for c in "abcABC")
    last = ops[-1]
    def fin(): last(); nxt(2)
    ops[-1] = fin
    return ops
if opt["po"]:
    first = pre_order(opt["po"]); opt["pre3"] = 1
    if None in first:
        k = first.index(None); first, ST0 = first[:k], first[k+1:]
    if "R" in opt["po"]: opt["rls"] = -1
else:
    first = dma_ops(0) + dma_ops(1) + (dma_ops(2) if opt["pre3"] else [])
    if opt["rls"] < 0: first.append(r_loads)
    if opt["tch"]: first[opt["tp0"]:opt["tp0"]] = [touch] * (opt["la"] - 1)
def wtouch():
    if opt["wtx"]:
        e(f"s_lshr_b32 s8, s2, 3")
        e(f"s_lshl_b32 s8, s8, 2")
        e(f"s_add_u32 s8, s8, s{sW}")
        e(f"s_mul_i32 s8, s8, {12*1280}")
        e(f"s_lshr_b32 s9, s{sFT}, 2")
        e(f"s_lshl_b32 s9, s9, 9")
        e(f"s_add_u32 s8, s8, s9")
        e(f"v_lshrrev_b32 v250, 6, v{vL16}")
        e(f"v_mul_u32_u24 v250, {1280-512}, v250")
        e(f"v_lshl_add_u32 v250, v{vL16}, 3, v250")
        e(f"s_mov_b32 exec_hi, 0xffff")
        e(f"buffer_load_dword v251, v250, {srd(sW2)}, s8 offen {opt['wtaux']}"); VM.issue("wt")
        e("s_mov_b64 exec, -1")
        return
    e(f"s_lshl_b32 s8, s2, 2")
    e(f"s_add_u32 s8, s8, s{sW}")
    e(f"s_mul_i32 s8, s8, {15*128}")
    e(f"v_lshlrev_b32 v250, {2 if opt['wth'] else 3}, v{vL16}")
    e(f"s_mov_b64 exec, {(1 << (30 if opt['wth'] else 15)) - 1}")
    e(f"buffer_load_dword v251, v250, {srd(sW2)}, s8 offen {opt['wtaux']}"); VM.issue("wt")
    e("s_mov_b64 exec, -1")
if opt["wt"] >= 0: first.insert(opt["wt"], wtouch)
def stouch():
    e(f"s_lshl_b32 s100, s2, 2")
    e(f"s_add_u32 s100, s100, s{sW}")
    e(f"s_mul_i32 s100, s100, {15*128}")
    for i in range(opt["swn"]):
        e(f"s_load_dword s101, s[{sW2}:{sW2+1}], s100 offset:{i*128}")
if opt["sw"] >= 0: first.insert(opt["sw"], stouch)
if opt["clr"] >= 0: first[opt["clr"]:opt["clr"]] = CLO
NF0 = opt["nf0"]
for f in first[:NF0]: f()
if opt["fst"]:
    e(f"s_waitcnt vmcnt({NF0-1})"); stamp(k=5)
    e(f"s_waitcnt vmcnt({NF0-3})"); stamp(k=5)
rest = first[NF0:]
per = (len(groups) + len(rest) - 1) // len(rest)
head = len(groups) * opt["head"] // 100
for g in groups[:head]: O.extend(g)
groups = groups[head:]
per = (len(groups) + len(rest) - 1) // len(rest)
for f in rest:
    f()
    for g in groups[:per]: O.extend(g)
    groups = groups[per:]
assert not groups
stamp()

def w2_ops():
    ops = []
    order = list(range(1, 12)); order.insert(opt["w0p"], 0)
    for n in order:
        for j in range(5):
            def f(n=n, j=j):
                if j == 0:
                    e(f"s_mul_i32 s{sWO}, s{sSIG+n}, 40")
                    e(f"s_add_u32 s{sWO}, s{sWO}, s{sW2B}")
                va = vL16 if j < 4 else vL16b
                e(f"buffer_load_dwordx4 {ar(n*20+4*j, 4)}, v{va}, {srd(sH)}, s{sWO} offen offset:{(j%4)*1024} {opt['w2aux'].replace('-','')}")
                VM.issue(f"w{n}")
            ops.append(f)
    return ops
WREG = [3, 3, 4, 4, 1, 1, 2, 2, 3, 3, 4, 4]
def wd_ops():
    ops = []
    for n in range(12):
        for i in range(4):
            def f(n=n, i=i):
                if i == 0:
                    if n >= 8: assert f"t{n-8}" in TDONE and f"t{n-8}" not in LG.q, n
                    e(f"s_mul_i32 s{sWO}, s{sSIG+n}, 40")
                    e(f"s_add_u32 m0, s{sM0}, {WREG[n]*32768 + (n%2)*4096}")
                    e(f"s_add_u32 s{sWO}, s{sWO}, s{sW2B}")
                e(f"buffer_load_dwordx4 v{vWD+i}, {srd(sW2)}, s{sWO} offen offset:{i*1024} {opt['waux']} lds")
                VM.issue(f"d{n}")
            ops.append(f)
    return ops
def w5_ops():
    ops = []
    for n in range(12):
        def f(n=n):
            e(f"s_lshl3_add_u32 s{sT1}, s{sSIG+n}, s{sW5B}")
            e(f"buffer_load_dwordx4 {ar(n*20+16, 4)}, v{vL16}, {srd(sH)}, s{sT1} offen sc1")
            VM.issue(f"w{n}")
        ops.append(f)
    return ops
TDONE = []; TWIN = [3]
def tgroup_ops(n):
    def head():
        assert not any(f.__defaults__[0] == n and len(f.__defaults__) == 2 for f in W2L), n
        VM.wait(f"d{n}")
        win = 3 if WREG[n] >= 3 else 1
        if win != TWIN[0]:
            for j in range(4): e(f"v_add_u32 v{vWT+j}, {(win - TWIN[0]) * 32768}, v{vWT+j}")
            TWIN[0] = win
        if len(LG.q) > 7:
            e("s_waitcnt lgkmcnt(7)"); LG.q = LG.q[-7:]
    ops = []
    for j in range(4):
        def f(j=j):
            if j == 0: head()
            win = TWIN[0]
            for t in range(2):
                e(f"ds_read_b64_tr_b16 {ar(n*20+4*j+2*t, 2)}, v{vWT+j} offset:{(WREG[n]-win)*32768 + (n%2)*4096 + t*1024}"); LG.issue(f"t{n}")
        ops.append(f)
    TDONE.append(f"t{n}")
    return ops
def tgroup(n):
    for f in tgroup_ops(n): f()
W2L = wd_ops() if D1 else w2_ops()
def take(n):
    r = W2L[:n]; del W2L[:n]; return r

def rd_ops(st, half):
    slot = st % NSL
    sb = (slot % 2) * 32768
    hi = slot // 2
    ops = []
    if opt["nord"]: return ops
    for kk in range(2):
        ks = 2*half + kk
        def b(ks=ks, kk=kk):
            e(f"ds_read_b128 {vr(vBF + (half*2+kk)*4, 4)}, v{vB + 4*hi + ks} offset:{sb}"); LG.issue(f"B{ks}")
        ops.append(b)
        for q in range(3):
            for t in range(2):
                def a(ks=ks, kk=kk, q=q, t=t):
                    e(f"ds_read_b64_tr_b16 {vr(vAF + half*24 + (kk*3+q)*4 + 2*t, 2)}, v{vA+hi} offset:{sb + ks*8192 + t*1536 + q*128}")
                    LG.issue(f"A{ks}{q}")
                ops.append(a)
    return ops
def i16(kk, q): return kk == 1
def mfma1(half, kk, q):
    ks = 2*half + kk
    LG.wait(f"A{ks}{q}")
    if opt["nomf1"]: return
    if opt["m16"]:
        for z in range(2):
            c = vr(vACC1+16*q+8*kk+4*z, 4)
            e(f"v_mfma_f32_16x16x32_bf16 {c}, {vr(vAF + half*24 + (kk*3+q)*4, 4)}, {vr(vBF + (half*2+(kk^z if i16(kk, q) else kk))*4, 4)}, {c}")
        return
    e(f"v_mfma_f32_32x32x16_bf16 {vr(vACC1+16*q,16)}, {vr(vAF + half*24 + (kk*3+q)*4, 4)}, {vr(vBF + (half*2+kk)*4, 4)}, {vr(vACC1+16*q,16)}")
def half_body(mf_half, rds, fill):
    rds = list(rds); fill = list(fill)
    for i in range(6):
        if mf_half is not None: mfma1(mf_half, i // 3, i % 3)
        left = 6 - i
        for _ in range((len(rds) + left - 1) // left if i else min(len(rds), 4)):
            if rds: rds.pop(0)()
        for _ in range((len(fill) + left - 1) // left):
            if fill: fill.pop(0)()
    assert not rds and not fill

def flag_store(off):
    fk = opt["fk"]
    if fk in (1, 3, 4):
        for r in range(4): e(f"v_mov_b32 v{vTM+12+r}, s{sTAG}")
        e(f"s_mov_b64 exec, {dict([(1,255),(3,1),(4,15)])[fk]}")
        e(f"buffer_store_dwordx4 {vr(vTM+12,4)}, v{vL16}, {srd(sH)}, s{off} offen sc1"); VM.issue("flag")
        e("s_mov_b64 exec, -1")
        return
    e(f"v_mov_b32 v{vT}, s{sTAG}")
    e("s_mov_b32 exec_hi, 0" if fk == 0 else "s_mov_b64 exec, 1")
    e(f"buffer_store_dword v{vT}, v{vL4}, {srd(sH)}, s{off} offen sc1"); VM.issue("flag")
    e("s_mov_b64 exec, -1")
def r_poll():
    e(f"s_mov_b32 s{sT0}, {HREC if opt['norp'] else RFL}")
    e(f"buffer_load_dword v{vPOLL}, v{vRP}, {srd(sH)}, s{sT0} offen sc1"); VM.issue("rpoll")

def spin_check(lab, vv, va, tag, so=None, fake=False):
    VM.wait(tag)
    e(f"s_mov_b32 s{sSPIN}, 20000")
    e(f"L_{lab}:")
    e(f"v_cmp_ne_u32 vcc, s{sTAG}, v{vv}")
    e("s_cmp_eq_u64 vcc, 0" if not fake else "s_cmp_eq_u32 s2, s2")
    e(f"s_cbranch_scc1 L_{lab}_go")
    e(f"s_sub_u32 s{sSPIN}, s{sSPIN}, 1")
    e(f"s_cmp_eq_u32 s{sSPIN}, 0")
    e(f"s_cbranch_scc1 L_{lab}_go")
    if so is None: e(f"s_mov_b32 s{sT0}, {RFL}")
    e(f"buffer_load_dword v{vv}, v{va}, {srd(sH)}, s{sT0 if so is None else so} offen sc1")
    e("s_waitcnt vmcnt(0)")
    e(f"s_branch L_{lab}")
    e(f"L_{lab}_go:")
def r_check(): spin_check("rp", vPOLL, vRP, "rpoll", None, opt["norp"])

PEND = []
EMU = [int(c) for c in str(opt["emu"]).lstrip("x")]
def emu_ops(bi):
    q, g2 = bi // 2, bi % 2
    a0 = 216; tt = vS + (bi % 2) * 8; pk = vRF + 8 + bi * 4
    ops = []
    if opt["emv"] and not opt["epk"]:
        for r in range(8): ops.append(f"v_mul_f32 v{tt+r}, s{sL2E}, v{a0+r}")
        for r in range(8): ops.append(f"v_exp_f32 v{tt+r}, v{tt+r}")
        for r in range(8): ops.append(f"v_add_f32 v{tt+r}, 1.0, v{tt+r}")
        for r in range(8): ops.append(f"v_rcp_f32 v{tt+r}, v{tt+r}")
        for r in range(8): ops.append(f"v_mul_f32 v{tt+r}, v{a0+r}, v{tt+r}")
        for r in range(4): ops.append(f"v_cvt_pk_bf16_f32 v{pk+r}, v{tt+2*r}, v{tt+2*r+1}")
    elif opt["emv"]:
        for r in range(0, 8, 2): ops.append(f"v_pk_mul_f32 {vr(tt+r,2)}, {vr(a0+r,2)}, s[{sPK}:{sPK+1}]")
        for r in range(8): ops.append(f"v_exp_f32 v{tt+r}, v{tt+r}")
        for r in range(0, 8, 2): ops.append(f"v_pk_add_f32 {vr(tt+r,2)}, {vr(tt+r,2)}, 1.0 op_sel_hi:[1,0]")
        for r in range(8): ops.append(f"v_rcp_f32 v{tt+r}, v{tt+r}")
        for r in range(0, 8, 2): ops.append(f"v_pk_mul_f32 {vr(tt+r,2)}, {vr(a0+r,2)}, {vr(tt+r,2)}")
        for r in range(4): ops.append(f"v_cvt_pk_bf16_f32 v{pk+r}, v{tt+2*r}, v{tt+2*r+1}")
    fs = [(lambda l=l: e(l)) for l in ops]
    def st_():
        e(f"buffer_store_dwordx4 {vr(pk,4)}, v{vHS}, {srd(sH)}, s{sHS} offen offset:{g2*512 + (q%2)*2048} sc1"); VM.issue("hstA" if opt["ab"] else "hst")
    if not opt['ems']: PEND.append(st_); return fs
    return fs + [st_]
def merge(a, b):
    r = []; a = list(a); b = list(b); na, nb_ = len(a), len(b)
    while a or b:
        if a and (not b or len(a) * nb_ >= len(b) * na): r.append(a.pop(0))
        else: r.append(b.pop(0))
    return r
if EMU:
    for r in range(8): e(f"v_cvt_f32_u32 v{216+r}, v{vL16}"); e(f"v_mul_f32 v{216+r}, 0x3a000000, v{216+r}")
for st in range(10):
    VM.wait(f"st{st}")
    if st == opt["rjs"]: VM.wait("rld")
    if st == opt["rfs"]: VM.wait("rst"); VM.wait("clr")
    if st == opt["afs"] and st: VM.wait("hstA")
    LG.drain()
    e("s_barrier")
    if st == opt["afs"] and st:
        e(f"s_cmp_eq_u32 s{sW}, 0")
        e(f"s_cselect_b32 s{sT1}, s{sFLG}, {HREC}")
        flag_store(sT1); stamp(k=7)
    if st == 9: stamp()
    stamp(k=1)
    if st >= 8: stamp(k=4)
    if st == opt["rfs"]:
        e(f"s_mul_i32 s{sTAG}, s{sE}, 0x9E3779B1")
        e(f"s_add_u32 s{sTAG}, s{sTAG}, 0x7F4A7C15")
        flag_store(sRFL)
    if not D1 and ((st == opt["rcs"] and opt["rck"] == 0) or (st == 9 and opt["rck"] == 2)): r_check()
    if NSL == 4:
        if st == 0: fill = ([] if opt["pre3"] else dma_ops(2)) + dma_ops(3)
        elif st < 7: fill = dma_ops(st + 3)
        else: fill = take(opt[f"n{st}"])
    elif st == 0 and opt["pre3"]: fill = list(ST0)
    elif st < 8: fill = dma_ops(st + 2) + (take(opt["d7"]) if st == 7 else [])
    else: fill = take(opt["n8"] if st == 8 else opt["n9"])
    if st == opt["dst"]: fill = fill + take(opt["dn"])
    if opt["tch"] and st + opt["la"] < 10: fill.insert(opt["tpos"], touch)
    if st == opt["rls"]: fill = [r_loads] + fill if opt["rpos"] == 0 else fill + [r_loads]
    if st == opt["rjs"]:
        fill.insert(min(opt["rsp"], len(fill)), r_stores)
        fill = [r_reads] + fill
    if st == opt["rps"] and not D1: fill.insert(opt["rpp"], r_poll)
    if st == opt["wts"]: fill.insert(min(opt["wtp"], len(fill)), wtouch)
    if st == opt['sws']: fill.insert(min(opt['swp'], len(fill)), stouch)
    if st == opt["ot"]:
        def otch():
            if opt["otm"] == 1: e("s_mov_b64 exec, 1")
            e(f"buffer_load_dword v251, v{vOUT}, {srd(sOUT)}, s{sOB} offen"); VM.issue("ot")
            if opt["otm"] == 3: e(f"buffer_load_dword v251, v{vOUT2}, {srd(sOUT)}, s{sOB} offen offset:128"); VM.issue("ot")
            e("s_mov_b64 exec, -1")
        fill.append(otch)
    ex = [CLO[i] for i, c in enumerate(str(opt["clrs"]).lstrip("x")) if int(c) == st]
    for bi, es in enumerate(EMU):
        if es == st: ex += emu_ops(bi)
    if ex: fill = merge(fill, ex)
    h = (len(fill) + 1) // 2
    f0, f1 = fill[:h], fill[h:]
    if st == 8 and opt["rck"] == 1:
        k = 1 if opt["rps"] == 8 else 0
        f0, f1 = fill[:k], [r_check] + fill[k:]
    half_body(1 if st else None, rd_ops(st, 0), f0)
    half_body(0, rd_ops(st, 1), f1)
stamp()
def silu_block(q, g2):
    a0 = vACC1 + 16*q + 8*g2
    bi = 2*q + g2
    tt = vS + (bi % 2) * 8
    pk = vRF + bi * 4
    ops = []
    if opt["pk"]:
        for r in range(0, 8, 2): ops.append(f"v_pk_mul_f32 {vr(tt+r,2)}, {vr(a0+r,2)}, s[{sPK}:{sPK+1}]")
        for r in range(8): ops.append(f"v_exp_f32 v{tt+r}, v{tt+r}")
        for r in range(0, 8, 2): ops.append(f"v_pk_add_f32 {vr(tt+r,2)}, {vr(tt+r,2)}, 1.0 op_sel_hi:[1,0]")
        for r in range(8): ops.append(f"v_rcp_f32 v{tt+r}, v{tt+r}")
        for r in range(0, 8, 2): ops.append(f"v_pk_mul_f32 {vr(tt+r,2)}, {vr(a0+r,2)}, {vr(tt+r,2)}")
    else:
        for r in range(8): ops.append(f"v_mul_f32 v{tt+r}, s{sL2E}, v{a0+r}")
        for r in range(8): ops.append(f"v_exp_f32 v{tt+r}, v{tt+r}")
        for r in range(8): ops.append(f"v_add_f32 v{tt+r}, 1.0, v{tt+r}")
        for r in range(8): ops.append(f"v_rcp_f32 v{tt+r}, v{tt+r}")
        for r in range(8): ops.append(f"v_mul_f32 v{tt+r}, v{a0+r}, v{tt+r}")
    for r in range(4): ops.append(f"v_cvt_pk_bf16_f32 v{pk+r}, v{tt+2*r}, v{tt+2*r+1}")
    nbs = str(opt["nb"]).lstrip("x")
    fill = take(int(nbs[bi] if len(nbs) > 1 else nbs))
    if opt["tsil"] and bi >= 6 - opt["tsil"]: fill = fill + tgroup_ops(len(TDONE))
    step = len(ops) // (len(fill) + 1) if fill else 0
    for i, l in enumerate(ops):
        if not opt["novalu"]: e(l)
        if fill and step and (i + 1) % step == 0: fill.pop(0)()
    for f in fill: f()
    so = sHS if q < 2 else sHS2
    def st_():
        if opt["nost"]: return
        if opt["own"]:
            e(f"buffer_store_dwordx4 {vr(pk,4)}, v{vHS}, {srd(sH)}, s{(sHS, sHS1, sHS2)[q]} offen offset:{g2*512} sc1"); VM.issue("hst")
            if q < 2: e(f"ds_write_b128 v{vOW+q}, {vr(pk,4)} offset:{q*8192 + g2*512}"); LG.issue("ow")
            return
        e(f"buffer_store_dwordx4 {vr(pk,4)}, v{vHS}, {srd(sH)}, s{so} offen offset:{g2*512 + (q%2)*2048} {opt['hsaux'].replace('-','')}"); VM.issue("hstA" if opt["ab"] and q < 2 else "hst")
        if opt["hs2"]:
            e(f"buffer_store_dwordx4 {vr(pk,4)}, v{vHS}, {srd(sH)}, s{so} offen offset:{g2*512 + (q%2)*2048} {opt['hs2'].replace('-','')}"); VM.issue("hst")
    PEND.append(st_)
    if bi >= opt["sl"]:
        while PEND: PEND.pop(0)()
if opt["st0"]:
    e(f"s_cmp_lt_u32 s{sW}, {opt['st0']}")
    e(f"s_cselect_b32 s{sHS}, s{sHS}, {HREC}")
    e(f"s_cselect_b32 s{sHS2}, s{sHS2}, {HREC}")
for q in range(3):
    for kk in range(2): mfma1(1, kk, q)
e("s_nop 7")
stamp(k=4)
if opt["sts"] == 4: VM.drain(); stamp(k=4)
def cnt_add(tag, off):
    VM.wait(tag)
    e("s_mov_b64 exec, 1")
    e(f"ds_add_rtn_u32 v{vT+1}, v{vCN}, v{vONE} offset:{off}")
    e("s_mov_b64 exec, -1")
def cnt_flag(add):
    e("s_waitcnt lgkmcnt(0)"); LG.q = []
    e(f"v_readfirstlane_b32 s{sT0}, v{vT+1}")
    e(f"s_add_u32 s{sT1}, s{sFLG}, {add}")
    e(f"s_cmp_eq_u32 s{sT0}, 3")
    e(f"s_cselect_b32 s{sT1}, s{sT1}, {HREC}")
    flag_store(sT1)
for q in range(3):
    for g2 in range(2):
        bi = 2*q + g2
        if opt["ab"] and not opt["afs"] and bi == 4 + opt["afp"]: cnt_add("hstA", 0); stamp(k=7)
        if bi >= len(EMU): silu_block(q, g2)
        if opt["ab"] and not opt["afs"] and bi == 4 + opt["afp"]: cnt_flag(0); stamp(k=7)
stamp(); stamp(k=4); stamp(k=8)
if not opt["spec"]:
    NT = (48 - len(W2L)) // 4
    PL = take(opt["post"])
    if opt["tpm"]:
        TL = []
        while len(TDONE) < NT: TL += tgroup_ops(len(TDONE))
        PL = merge(PL, TL) if opt["tpm"] == 1 else TL + PL
    for i, f in enumerate(PL):
        if D1 and i == opt["rpq"]: r_poll()
        if i == opt["pae"]:
            e(f"buffer_load_dword v{vPOLL}, v{vPA}, {srd(sH)}, s{sPOL} offen sc1"); VM.issue("poll")
        f()
    if opt["wb"]:
        VM.wait("hst")
        e("buffer_wbl2 sc1"); VM.issue("hst")
    if D1:
        while len(TDONE) < NT: tgroup(len(TDONE))
    stamp(k=8)
    if not opt["nhw"]: VM.wait("hst")
    stamp(k=8)
    stamp(k=4)
    if opt["sts"] == 4: VM.drain(); stamp(k=4)
    if opt["fb"]:
        e(f"s_cmp_eq_u32 s{sW}, 0")
        e(f"s_cselect_b32 s{sFLG}, s{sFLG}, {HREC}")
        if opt["own"]: LG.drain()
        e("s_barrier")
    else:
        e("s_mov_b64 exec, 1")
        e(f"ds_add_rtn_u32 v{vT+1}, v{vCN}, v{vONE} offset:{4 if opt['ab'] else 0}")
        e("s_mov_b64 exec, -1")
        if opt["ab"]: e(f"s_add_u32 s{sFLG}, s{sFLG}, {FLB}")
        for f in take(opt["mid"]): f()
        e("s_waitcnt lgkmcnt(0)")
        e(f"v_readfirstlane_b32 s{sT0}, v{vT+1}")
        e(f"s_cmp_eq_u32 s{sT0}, {3 if opt['nopoll'] < 2 else 9}")
        e(f"s_cselect_b32 s{sFLG}, s{sFLG}, {HREC}")
    if opt["nopoll"] == 3: e(f"s_mov_b32 s{sPOL}, {HREC}")
    flag_store(sFLG)
    if opt["fb"] == 2: e("s_barrier")
    stamp(); stamp(k=3)
else:
    for f in take(opt["fw"]): f()
    VM.wait("hst")
    e(f"s_lshl_b32 s{sT0}, s{sW}, 15")
    e(f"s_add_u32 s{sFLG}, s{sFLG}, s{sT0}")
    flag_store(sFLG)
    stamp()
HL = [(p, n) for p in range(4) for n in range(12)]
def hload():
    if HL:
        p, n = HL.pop(0)
        if opt["noh"] and (p*12+n) % opt["noh"]: return
        e(f"buffer_load_dwordx4 {vr(vH + (p*12+n)*4, 4)}, v{vHB+p}, {srd(sH)}, s{sSIG+n} offen {opt['haux'].replace('-','')}"); VM.issue(f"h{p}_{n}")
def mark(v):
    if not opt["stamps"] or opt["sts"]: return
    i = NST[0]; NST[0] += 1
    e(f"s_add_u32 s{72+2*i}, s74, {v}"); e(f"s_addc_u32 s{73+2*i}, s75, 0")
def allc_load():
    e("s_cmp_eq_u32 s2, 0")
    e(f"s_cselect_b32 s{sT0}, {FL if D1 else RFL}, s{sH+2}")
    e(f"buffer_load_dword v{vAV}, v{vAC}, {srd(sH)}, s{sT0} offen sc1"); VM.issue("allc")
def p0_block(ML, pre):
    ML = list(ML)
    TL = []
    while D1 and len(TDONE) < 12 - opt["tin"]: TL += tgroup_ops(len(TDONE))
    for f in (merge(ML[:pre], TL) if opt["tmix"] else ML[:pre] + TL): f()
    del ML[:pre]
    if D1 and not opt["tin"]: LG.drain()
    stamp()
    for n in range(12):
        assert (0, n) not in HL and not any(getattr(f, "__defaults__", None) and f.__defaults__[0] == n for f in ML), n
        late = max((f"h0_{n}", f"w{n}"), key=lambda t: len(VM.q) - 1 - VM.q[::-1].index(t) if t in VM.q else -1)
        VM.wait(late)
        TL = []
        if D1:
            assert f"t{n}" in TDONE
            LG.wait(f"t{n}")
            if len(TDONE) < 12: TL = tgroup_ops(len(TDONE))
        if n == 0 or n == 6: stamp(k=2)
        cnt = (len(ML) + 11 - n) // (12 - n)
        pos = {1: [opt["hj"]], 2: [1, 3], 3: [0, 2, 4], 4: [0, 1, 2, 3], 5: [0, 1, 2, 3, 4], 0: []}[cnt]
        for j in range(5):
            c = "0" if n == 0 else vr(vACC2+4*j, 4)
            e(f"v_mfma_f32_16x16x32_bf16 {vr(vACC2+4*j,4)}, {ar(n*20+4*j,4)}, {vr(vH+n*4,4)}, {c}")
            if j in pos: ML.pop(0)()
            elif TL: TL.pop(0)()
        for f in TL: f()
    assert not ML and not W2L
TP = []
def tstep(n):
    if not opt["tfm"]: return
    if not TP and len(TDONE) <= n - opt["tfm"] and len(TDONE) < 12 - opt["tlate"]: TP.extend(tgroup_ops(len(TDONE)))
    if TP: TP.pop(0)()
def late_d1():
    W5 = w5_ops()
    cnt = 0
    vP2 = vAV if opt["pqd"] or opt["rcl"] else vPOLL
    def poll():
        stamp(k=3)
        e(f"buffer_load_dword v{vP2}, v{vPA}, {srd(sH)}, s{sPOL} offen sc1"); VM.issue("poll")
    while W2L:
        n = W2L[0].__defaults__[0]
        if W2L[0].__defaults__[1] == 0 and n >= 8:
            while f"t{n-8}" not in TDONE: tgroup(len(TDONE))
            LG.wait(f"t{n-8}")
        if len(W2L) == opt["pqd"]: poll()
        take(1)[0](); cnt += 1
        if opt["tfm"]: tstep(n)
        elif cnt % opt["tl"] == 0 and len(TDONE) < n - 2: tgroup(len(TDONE))
    if not opt["rcl"]: r_check()
    else: assert opt["w5d"] == 12
    WD = W5[12-opt["w5d"]:]; del W5[12-opt["w5d"]:]
    for i, f in enumerate(W5[:opt["w5p"]]): f(); tstep(12 + i // 4)
    if not opt["pqd"]: poll()
    for i, f in enumerate(W5[opt["w5p"]:]): f(); tstep(12 + (i + opt["w5p"]) // 4)
    for f in TP: f()
    stamp(k=3)
    while len(TDONE) < 12 - opt['tlate']: tgroup(len(TDONE))
    VM.wait("poll")
    stamp(k=3)
    stamp()
    spin_check("hp", vP2, vPA, "poll", sPOL, opt["nopoll"])
    stamp(); stamp(k=2); stamp(k=3)
    mark(1000)
    allc_load()
    if opt["c5"]:
        WDL.extend(WD); return
    ML = []; pre = 0
    for i in range(opt["hpre"] + 12):
        ML.append(hload)
        if WD and WD[0].__defaults__[0] == i: ML.append(WD.pop(0))
        if i == opt["hpre"] - 1: pre = len(ML)
    p0_block(ML, pre)
WDL = []
def late_path():
    if D1: return late_d1()
    if opt['skipw']: del W2L[-opt['skipw']:]
    if opt["sts"] == 6:
        stamp(k=6)
        i = 0
        while len(W2L) > opt["pollq"]:
            take(1)[0](); i += 1
            if i % 4 == 0 and i >= opt["dw"]:
                e(f"s_waitcnt vmcnt({opt['dw']})"); stamp(k=6)
    for f in take(max(0, len(W2L) - opt["pollq"])): f()
    stamp(k=3)
    if opt["sts"] == 3: VM.drain(); stamp(k=3)
    if opt["sts"] == 4: stamp(k=4); VM.drain(); stamp(k=4)
    if opt["sp"]:
        e(f"s_load_dword s6, s[12:13], s{sPOL} {opt['spg']}")
        e(f"s_add_u32 s{sT0}, s{sPOL}, 128")
        e(f"s_load_dword s7, s[12:13], s{sT0} {opt['spg']}")
        for f in take(len(W2L)): f()
        stamp(k=3)
        e("s_waitcnt lgkmcnt(0)")
        stamp(k=3)
        stamp()
        e(f"s_cmp_eq_u32 s6, s{sTAG}")
        e(f"s_cselect_b32 s6, s7, s6")
        e(f"s_cmp_eq_u32 s6, s{sTAG}")
        e("s_cbranch_scc1 L_hp_go")
        e(f"v_mov_b32 v{vPOLL}, s6")
        spin_check("hp", vPOLL, vPA, "poll", sPOL, opt["nopoll"])
    else:
        e(f"buffer_load_dword v{vPOLL}, v{vPA}, {srd(sH)}, s{sPOL} offen sc1"); VM.issue("poll")
        for f in take(len(W2L)): f()
        stamp(k=3)
        VM.wait("poll")
        stamp(k=3)
        stamp()
        spin_check("hp", vPOLL, vPA, "poll", sPOL, opt["nopoll"])
    stamp(); stamp(k=2); stamp(k=3)
    mark(1000)
    allc_load()
    p0_block([hload] * (opt["hpre"] + 12), opt["hpre"])
LATE = []
if opt["eq"]:
    import re
    for f in take(len(W2L) - opt["eq"]): f()
    e(f"buffer_load_dword v{vPOLL}, v{vPA}, {srd(sH)}, s{sPOL} offen sc1"); VM.issue("poll")
    for f in take(opt["ec"]): f()
    VM.wait("poll")
    e(f"v_cmp_ne_u32 vcc, s{sTAG}, v{vPOLL}")
    e("s_cmp_eq_u64 vcc, 0" if not opt["nopoll"] else "s_cmp_eq_u32 s2, s2")
    e("s_cbranch_scc0 L_late")
    sv = (list(VM.q), list(W2L), list(HL), NST[0])
    LATE = ["L_late:"] + capture(late_path) + ["s_branch L_p1"]
    endq, endn = list(VM.q), NST[0]
    VM.q, W2L[:], HL[:], NST[0] = sv
    stamp(); stamp(); stamp(k=2); mark(0)
    allc_load()
    m = re.match(r"h(\d+)w(\d+)", opt["eil"])
    ML = []; nh = 12; ws = take(len(W2L))
    while nh or ws:
        k = min(nh, int(m.group(1))); ML += [hload] * k; nh -= k
        k = int(m.group(2)); ML += ws[:k]; del ws[:k]
    ML += [hload] * opt["hpre"]
    p0_block(ML, opt["epre"])
    assert NST[0] == endn, (NST[0], endn)
    k = min(len(VM.q), len(endq))
    assert VM.q[-k:] == endq[-k:] and all(t.startswith("h1") for t in VM.q + endq), (VM.q, endq)
    if len(endq) > len(VM.q): VM.q = endq
    e("L_p1:")
elif opt["spec"]:
    allc_load()
    for f in take(len(W2L) - opt["wl"]): f()
    stamp(); stamp(); stamp(k=2); mark(1000)
    ws = take(len(W2L))
    p0_block([hload] * opt["hpre"] + merge(ws, [hload] * 12) if ws else [hload] * (opt["hpre"] + 12), opt["hpre"])
elif not opt["ab"] and not opt["dfw"]:
    late_path()
def allc_check():
    e("s_cmp_lg_u32 s2, 0")
    e("s_cbranch_scc1 L_ac_go")
    assert "allc" not in VM.q
    if D1: e(f"s_mov_b32 s{sT1}, {FL}")
    spin_check("ac", vAV, vAC, "allc", sT1 if D1 else None)
def phase2_new():
    B1, B2, MA = opt["b1"], opt["b2"], opt["madd"]
    for p in range(1, 4):
        ac = vACC2 + (p % 2) * 20
        pa = vACC2 + ((p-1) % 2) * 20
        slots = {(n, j): [] for n in range(12) for j in range(5)}
        if p > 0:
            for jj, pos in enumerate([(1, 0), (1, 2), (1, 4), (2, 1), (2, 3)]):
                def w(jj=jj):
                    if D1: e(f"ds_write_b128 v{vRW if p < 3 else vRW2}, {vr(pa+4*jj,4)} offset:{((p-1)%2)*32768 + jj*1024}")
                    else: e(f"ds_write_b128 v{vRW}, {vr(pa+4*jj,4)} offset:{(p-1)*5120 + jj*1024}")
                    LG.issue("red")
                slots[pos].append(w)
        def rd(pp, j, dst):
            def f():
                e(f"ds_read_b128 {vr(dst, 4)}, v{vRR+pp} offset:{j*1024}"); LG.issue(f"rr{pp}{j}")
            return f
        if p == 2:
            k = 0
            for j in range(5):
                for pp in range(2):
                    slots[(B1 + k // 5, k % 5)].append(rd(pp, j, vH + pp*20 + 4*j)); k += 1
            assert B1 + 3 <= 8
            for i in range(20):
                def a(i=i):
                    LG.wait(f"rr1{i//4}")
                    e(f"v_add_f32 v{pa+i}, v{vH+i}, v{vH+20+i}")
                slots[(8 + i // 5, i % 5)].append(a)
        if p == 3:
            for j in range(5): slots[(B2, j)].append(rd(2, j, vH + 4*j))
        for n in range(12):
            if (p == 2 and n == B1) or (p == 3 and n == B2):
                if p == 3: allc_check(); stamp(k=2)
                LG.drain(); e("s_barrier")
                if p == 3: stamp(k=2)
            VM.wait(f"h{p}_{n}")
            if p * 12 + n == opt["es"]:
                e(f"s_lshl_b32 s6, s{sMT}, 2")
                e(f"s_add_u32 s6, s6, s{sOWN}")
                e(f"s_mul_i32 s6, s6, {16*1280}")
                e(f"s_mul_i32 s7, s{sFT}, 160")
                e(f"s_add_u32 s6, s6, s7")
                e(f"s_cmp_lt_u32 s{sW}, {opt['ost']}")
                e(f"s_cselect_b32 s6, s6, 2621440")
                ax = opt['esaux'].replace('-', '')
                for b in range(2):
                    e(f"buffer_store_dwordx4 {vr(vH+40+4*b,4)}, v{vOUT}, {srd(sOUT)}, s6 offen offset:{64*b} {ax}"); VM.issue("es")
                e(f"buffer_store_dwordx2 {vr(vH+40,2)}, v{vOUT2}, {srd(sOUT)}, s6 offen offset:128 {ax}"); VM.issue("es")
            if n == 0 or (n == 6 and p < 3): stamp(k=2)
            def madd(j):
                LG.wait(f"rr2{j}")
                for r in range(4): e(f"v_add_f32 v{ac+4*j+r}, v{ac+4*j+r}, v{vH+4*j+r}")
            mid = p == 3 and n == MA
            if mid: e("s_nop 3"); madd(0)
            for j in range(5):
                c = "0" if n == 0 and p < 3 else vr(ac+4*j, 4)
                if mid:
                    if j < 4: madd(j+1)
                    else: e("s_nop 0")
                e(f"v_mfma_f32_16x16x32_bf16 {vr(ac+4*j,4)}, {ar(n*20+4*j,4)}, {vr(vH+(p*12+n)*4,4)}, {c}")
                if j == opt["hj"]: hload()
                for f in slots[(n, j)]: f()
    out_tail()
def out_tail():
    stamp(); stamp(k=2)
    if opt["enc"]: stamp(True)
    ac = vACC2 + 20
    pk = vH + 64
    def cvt(j):
        for r in range(2): e(f"v_cvt_pk_bf16_f32 v{pk+2*j+r}, v{ac+4*j+2*r}, v{ac+4*j+2*r+1}")
    def swp(b):
        e(f"v_permlane32_swap_b32 v{pk+4*b}, v{pk+4*b+2}")
        e(f"v_permlane32_swap_b32 v{pk+4*b+1}, v{pk+4*b+3}")
        if opt["enc"]:
            e("s_waitcnt lgkmcnt(0)")
            e(f"v_lshrrev_b32 v{vT+1}, 4, v{vL16}")
            for r in range(4):
                i = 4*b + r
                e(f"v_mov_b32 v{vT}, s{72+2*i}")
                e("s_mov_b32 exec_lo, 0")
                e(f"v_mov_b32 v{vT}, s{72+2*min(i+8, 14)}")
                e("s_mov_b32 exec_lo, -1")
                e(f"v_lshrrev_b32 v{vT}, v{vT+1}, v{vT}")
                e(f"v_bfi_b32 v{pk+4*b+r}, 1, v{vT}, v{pk+4*b+r}")
        e(f"buffer_store_dwordx4 {vr(pk+4*b,4)}, v{vOUT}, {srd(sOUT)}, s{sOB} offen offset:{64*b} {opt['outaux']}")
    e("s_nop 3")
    cvt(0); cvt(1); cvt(2); swp(0); cvt(3); cvt(4); swp(1)
    e(f"buffer_store_dwordx2 {vr(pk+8,2)}, v{vOUT2}, {srd(sOUT)}, s{sOB2 if D1 else sOB} offen offset:128 {opt['outaux']}")
def phase2_c():
    B1, B2, MA = opt["b1"], opt["b2"], opt["madd"]
    hp = opt["hpre"]
    ML = []
    WD = list(WDL)
    for i in range(48):
        g = [hload]
        k = 12 - len(WD)
        if WD and (i >= opt["w5s"] + (k - (12 - len(WDL))) * opt["w5k"] or i >= 24 + k): g.append(WD.pop(0))
        ML.append(g)
    assert not WD
    TL = []
    while len(TDONE) < 12: TL += tgroup_ops(len(TDONE))
    pre = [f for g in ML[:hp] for f in g]
    if opt["rcl"]:
        assert len(pre) == hp
        pre.append(r_check)
    for f in merge(pre, TL): f()
    del ML[:hp]
    LG.drain()
    stamp()
    A5 = 240
    def wr(blk, jj, src):
        def f():
            e(f"ds_write_b128 v{vRW if blk < 2 else vRW2}, {src} offset:{(blk%2)*32768 + jj*1024}"); LG.issue("red")
        return f
    def rd(pp, j, dst):
        def f():
            e(f"ds_read_b128 {vr(dst, 4)}, v{vRR+pp} offset:{j*1024}"); LG.issue(f"rr{pp}{j}")
        return f
    for p in range(4):
        ac = vACC2 + (p % 2) * 20
        pa = vACC2 + ((p-1) % 2) * 20
        NM = [4, 4, 7, 5][p]
        slots = {(n, j): [] for n in range(12) for j in range(NM)}
        def put(i0, step, fs):
            for k, f in enumerate(fs):
                i = i0 + k * step
                slots[(i // NM, i % NM)].append(f)
        if p > 0:
            ws = [wr(p-1, jj, vr(pa+4*jj, 4)) for jj in range(4)]
            if p == 3: ws += [wr(b, 4, ar(A5+4*b, 4)) for b in range(3)]
            put(NM, 2, ws)
            if p == 3: assert NM + 2*6 < B2 * NM
        if p == 2:
            assert B1 >= 4
            put(B1 * NM, 1, [rd(pp, j, vH + pp*48 + 4*j) for j in range(4) for pp in range(2)])
            def mk(i):
                def a():
                    LG.wait(f"rr1{i//4}")
                    e(f"v_add_f32 v{pa+i}, v{vH+i}, v{vH+48+i}")
                return a
            put(8 * NM, 1, [mk(i) for i in range(16)])
        if p == 3:
            put(B2 * NM, 1, [rd(pp, 4, vH + 16 + 4*pp) for pp in range(3)] + [rd(2, j, vH + 4*j) for j in range(4)])
            def mk(i):
                def a():
                    LG.wait(f"rr{1 + i//4}4")
                    e(f"v_add_f32 v{vH+16+i%4}, v{vH+16+i%4}, v{vH+20+i}")
                return a
            put((MA - 2) * NM, 1, [mk(i) for i in range(8)])
            assert MA - 2 >= B2 + 2
        for n in range(12):
            if (p == 2 and n == B1) or (p == 3 and n == B2):
                if p == 3: allc_check(); stamp(k=2)
                LG.drain(); e("s_barrier")
                if p == 3: stamp(k=2)
            VM.wait(f"h{p}_{n}")
            if n == 0 or (n == 6 and p < 3): stamp(k=2)
            def madd(j):
                LG.wait(f"rr2{j}")
                for r in range(4): e(f"v_add_f32 v{ac+4*j+r}, v{ac+4*j+r}, v{vH+4*j+r}")
            mid = p == 3 and n == MA
            if mid: e("s_nop 3"); madd(0)
            g = ML.pop(0) if ML else []
            for j in range(NM):
                if j < 4 or p == 3:
                    d = vr(ac+4*j, 4); b = p
                    c = "0" if n == 0 and (p < 3 or j == 4) else d
                else:
                    b = (j - 2) % 3
                    d = ar(A5+4*b, 4); c = "0" if n == 0 else d
                    assert not any(f is not hload and f.__defaults__[0] == n for gg in ML + [g] for f in gg), n
                    VM.wait(f"w{n}")
                if mid:
                    if j < 4: madd(j+1)
                    else: e("s_nop 0")
                e(f"v_mfma_f32_16x16x32_bf16 {d}, {ar(n*20+4*min(j,4),4)}, {vr(vH+(b*12+n)*4,4)}, {c}")
                if g and j in (opt["hj"], 3): g.pop(0)()
                for f in slots[(n, j)]: f()
            assert not g
    out_tail()
def phase2_ab():
    OA = opt["owna"]
    NE = opt["ne"]; NL = 12 - NE
    items = [(p, n) for p in range(3) for n in range(NE)] + [(3, n) for n in range(OA)]
    NA = len(items)
    items += [(p, n) for p in range(3) for n in range(NE, 12)] + [(3, n) for n in range(OA, 12)]
    NS = 36; vH2 = 112
    acc = lambda p, j: 24 + 20*p + 4*j
    hp = opt["hpre"]
    HI = list(range(48))
    seen = set()
    I0 = 0
    def own_mf(k):
        if not opt["own"] or k != opt["omp"]: return
        VM.wait("w0")
        for p in range(4):
            LG.wait(f"or{p}")
            for j in range(5):
                e(f"v_mfma_f32_16x16x32_bf16 {vr(acc(p,j),4)}, {ar(4*j,4)}, {vr(vH2+p*4,4)}, 0")
    if opt["own"]:
        items = [(p, 0) for p in range(4)] + [(p, n) for p in range(4) for n in range(1, 12)]
        HI = HI[4:]; I0 = 4; seen = {0, 1, 2, 3}
        for p in range(4):
            e(f"ds_read_b128 {vr(vH2+p*4, 4)}, v{vOW+2} offset:{p*1024}"); LG.issue(f"or{p}")
    def hl():
        if not HI: return
        i = HI.pop(0); p, n = items[i]
        if i == NA and not opt["dfw"]:
            spin_check("hpb", vPOLL, vPA, "pollB", sPOL, opt["nopoll"]); stamp(k=7)
        e(f"buffer_load_dwordx4 {vr(vH2 + (i % NS)*4, 4)}, v{vHB+p}, {srd(sH)}, s{sSIG+n} offen {opt['haux'].replace('-','')}"); VM.issue(f"h{i}")
    if opt["pae"] < 0:
        for f in take(max(0, len(W2L) - opt["pa"])): f()
        e(f"buffer_load_dword v{vPOLL}, v{vPA}, {srd(sH)}, s{sPOL} offen sc1"); VM.issue("poll")
        for f in take(opt["ec"]): f()
    own_mf(0)
    VM.wait("poll")
    stamp(); stamp(k=7)
    spin_check("hp", vPOLL, vPA, "poll", sPOL, opt["nopoll"])
    stamp(); stamp(k=2); stamp(k=7)
    e(f"s_add_u32 s{sPOL}, s{sPOL}, {FLB}")
    allc_load()
    for _ in range(hp): hl()
    for f in take(opt["wsk"]): f()
    own_mf(1)
    stamp()
    slots = {(i, j): [] for i in range(48) for j in range(5)}
    if opt["own"]: NA = 37
    L3 = NA + 3*NL
    for p in range(3):
        i0 = NA + NL*(p+1) if NL else NE*(p+1)
        if opt["own"]: i0 = 4 + 11*(p+1)
        for jj, (di, j) in enumerate([(1, 0), (1, 2), (1, 4), (2, 1), (2, 3)]):
            def w(jj=jj, p=p):
                e(f"ds_write_b128 v{vRW}, {vr(acc(p,jj),4)} offset:{p*5120 + jj*1024}"); LG.issue("red")
            slots[(i0 + di, j)].append(w)
    IB = L3 + opt["rb"]
    k = 0
    rest = 48 - IB
    assert rest >= 1
    rds = []
    for j in range(5):
        for pp in range(3):
            def f(pp=pp, j=j):
                e(f"ds_read_b128 {vr(acc(pp,j), 4)}, v{vRR+pp} offset:{j*1024}"); LG.issue(f"rr{j}")
            rds.append(f)
    per = 1 if rest >= 7 else 3
    for k, f in enumerate(rds): slots[(IB + k // per // 5, k // per % 5)].append(f)
    adds = []
    for j in range(5):
        for pp in (1, 2):
            for r in (0, 2):
                def a(j=j, pp=pp, r=r):
                    LG.wait(f"rr{j}")
                    if opt["epk"]: e(f"v_pk_add_f32 {vr(acc(0,j)+r,2)}, {vr(acc(0,j)+r,2)}, {vr(acc(pp,j)+r,2)}")
                    else:
                        for z in range(2): e(f"v_add_f32 v{acc(0,j)+r+z}, v{acc(0,j)+r+z}, v{acc(pp,j)+r+z}")
                adds.append(a)
    MA = 47 if rest >= 7 else None
    if MA:
        a0 = (MA - 3) * 5 - 5
        for k, f in enumerate(adds): slots[((a0 + k) // 5, (a0 + k) % 5)].append(f)
    for i, (p, n) in enumerate(items):
        if i < I0: continue
        if i == IB:
            allc_check(); stamp(k=2)
            LG.drain(); e("s_barrier")
            stamp(k=2)
        assert i not in HI and not any(f.__defaults__[0] == n for f in W2L), (i, n)
        late = max((f"h{i}", f"w{n}"), key=lambda t: len(VM.q) - 1 - VM.q[::-1].index(t) if t in VM.q else -1)
        VM.wait(late)
        if i % 8 == 0: stamp(k=2)
        def madd(j):
            if opt["epk"]:
                for r in (0, 2): e(f"v_pk_add_f32 {vr(acc(3,j)+r,2)}, {vr(acc(3,j)+r,2)}, {vr(acc(0,j)+r,2)}")
            else:
                for r in range(4): e(f"v_add_f32 v{acc(3,j)+r}, v{acc(3,j)+r}, v{acc(0,j)+r}")
        mid = i == MA
        if mid: e("s_nop 3"); madd(0)
        for j in range(5):
            c = vr(acc(p,j), 4) if p in seen else "0"
            if mid:
                if j < 4: madd(j+1)
                else: e("s_nop 1")
            e(f"v_mfma_f32_16x16x32_bf16 {vr(acc(p,j),4)}, {ar(n*20+4*j,4)}, {vr(vH2+(i % NS)*4,4)}, {c}")
            if j == opt["hj"]: hl()
            if j == 3 and i % opt["wr"] == 0:
                for f in take(1): f()
            if j == 4 and i == opt["pb"] and not opt["dfw"]:
                e(f"buffer_load_dword v{vPOLL}, v{vPA}, {srd(sH)}, s{sPOL} offen sc1"); VM.issue("pollB")
            for f in slots[(i, j)]: f()
        seen.add(p)
    stamp(); stamp(k=2); stamp(k=7)
    if opt["enc"]: stamp(True)
    ac = acc(3, 0)
    pk = vH2 + 64
    if not MA:
        for f in adds: f()
        for j in range(5): madd(j)
    def cvt(j):
        for r in range(2): e(f"v_cvt_pk_bf16_f32 v{pk+2*j+r}, v{ac+4*j+2*r}, v{ac+4*j+2*r+1}")
    def swp(b):
        e(f"v_permlane32_swap_b32 v{pk+4*b}, v{pk+4*b+2}")
        e(f"v_permlane32_swap_b32 v{pk+4*b+1}, v{pk+4*b+3}")
        if opt["enc"]:
            e("s_waitcnt lgkmcnt(0)")
            e(f"v_lshrrev_b32 v{vT+1}, 4, v{vL16}")
            for r in range(4):
                i = 4*b + r
                e(f"v_mov_b32 v{vT}, s{72+2*i}")
                e("s_mov_b32 exec_lo, 0")
                e(f"v_mov_b32 v{vT}, s{72+2*min(i+8, 14)}")
                e("s_mov_b32 exec_lo, -1")
                e(f"v_lshrrev_b32 v{vT}, v{vT+1}, v{vT}")
                e(f"v_bfi_b32 v{pk+4*b+r}, 1, v{vT}, v{pk+4*b+r}")
        e(f"buffer_store_dwordx4 {vr(pk+4*b,4)}, v{vOUT}, {srd(sOUT)}, s{sOB} offen offset:{64*b} {opt['outaux']}")
    e("s_nop 3")
    cvt(0); cvt(1); cvt(2); swp(0); cvt(3); cvt(4); swp(1)
    e(f"buffer_store_dwordx2 {vr(pk+8,2)}, v{vOUT2}, {srd(sOUT)}, s{sOB} offen offset:128 {opt['outaux']}")
assert opt["tail"]
if opt["ab"] or opt["dfw"]: phase2_ab()
elif opt["c5"]: phase2_c()
else: phase2_new()
e(f"s_or_b32 s{sT0}, s{sW}, s2")
e(f"s_cmp_lg_u32 s{sT0}, 0")
e("s_cbranch_scc1 L_nobump")
e(f"s_add_u32 s{sE}, s{sE}, 1")
e(f"v_mov_b32 v{vT}, s{sE}")
e(f"s_mov_b32 s{sT0}, {EP}")
e("s_mov_b64 exec, 1")
e(f"buffer_store_dword v{vT}, off, {srd(sH)}, s{sT0}")
e("s_mov_b64 exec, -1")
e("L_nobump:")
if opt["enc"]: sys.stderr.write(f"enc stamps {NST[0]}\n")
if opt["stamps"] and not opt["enc"]:
    e("s_waitcnt vmcnt(0)")
    stamp(k=-1); stamp(True)
    ns = NST[0]
    assert 72 + 2*ns <= 102
    e("s_waitcnt lgkmcnt(0)")
    if opt["rt"]:
        e(f"s_lshl_b32 s{sT0}, s2, 2")
        e(f"s_add_u32 s{sT0}, s{sT0}, s{sW}")
        e(f"s_mul_i32 s{sT0}, s{sT0}, {ns*8}")
    else:
        e(f"s_cmp_lg_u32 s{sW}, {opt['stamps']-1}")
        e("s_cbranch_scc1 L_end")
        e(f"s_mul_i32 s{sT0}, s2, {ns*8}")
    e("s_mov_b64 exec, 1")
    e(f"s_add_u32 s{sT0}, s{sT0}, {0x8000000 - (opt['wso'] << 20)}")
    e(f"v_mov_b32 v{vT}, s{sT0}")
    for i in range(ns):
        e(f"v_mov_b32 v24, s{72+2*i}"); e(f"v_mov_b32 v25, s{73+2*i}")
        e(f"global_store_dwordx2 v{vT}, v[24:25], s[12:13] offset:{i*8}"); e("s_nop 1")
    sys.stderr.write(f"nstamps {ns}\n")
if LATE:
    e("s_endpgm")
    O.extend(LATE)
e("L_end:")

hdr = f"""; FFN out = silu(x @ w1) @ w2, one launch, 256 workgroups (one per CU).
; @launch grid=(256,1,1) block=(256,1,1) lds=163840
.amdgcn_target "amdgcn-amd-amdhsa--gfx950"
.text
.globl {NAME}
.p2align 8
.type {NAME},@function
{NAME}:
"""
ftr = f"""s_endpgm
.section .rodata,"a"
.p2align 6
.amdhsa_kernel {NAME}
  .amdhsa_next_free_vgpr 512
  .amdhsa_next_free_sgpr 102
  .amdhsa_accum_offset 256
  .amdhsa_group_segment_fixed_size 0
  .amdhsa_kernarg_size 48
  .amdhsa_user_sgpr_count 2
  .amdhsa_user_sgpr_kernarg_segment_ptr 1
  .amdhsa_system_sgpr_workgroup_id_x 1
.end_amdhsa_kernel
"""
body = "\n".join(("" if l.endswith(":") else "    ") + l.rstrip() for l in O)
open(sys.argv[1], "w").write(hdr + body + "\n" + ftr)
```

```python
import sys, re
def regs(tok):
    tok = tok.strip()
    m = re.fullmatch(r"-?\|?([vas])\[(\d+):(\d+)\]\|?", tok)
    if m: return {(m.group(1), i) for i in range(int(m.group(2)), int(m.group(3)) + 1)}
    m = re.fullmatch(r"-?\|?([vas])(\d+)\|?", tok)
    if m: return {(m.group(1), int(m.group(2)))}
    if tok in ("vcc", "vcc_lo", "vcc_hi"): return {("s", "vcc")}
    if tok == "m0": return {("s", "m0")}
    if tok.startswith("exec"): return {("s", "exec")}
    return set()
TR = ("v_exp_", "v_rcp_", "v_log_", "v_rsq_", "v_sqrt_", "v_sin_", "v_cos_")
class I:
    def __init__(s, ln, t):
        s.ln = ln; s.t = t
        p = t.split(None, 1); s.op = p[0]
        ops = [x.strip() for x in p[1].split(",")] if len(p) > 1 else []
        if ops:
            last = ops[-1].split(); ops[-1] = last[0]; s.mods = last[1:]
        else: s.mods = []
        s.ops = ops
        o = s.op
        s.mfma = o.startswith("v_mfma"); s.valu = o.startswith("v_") and not s.mfma
        s.vmem = o.startswith(("buffer_", "global_")); s.ds = o.startswith("ds_"); s.salu = o.startswith("s_")
        R = [regs(x) for x in ops]
        s.w = set(); s.r = set()
        if s.mfma:
            s.w = R[0]; s.A, s.B, s.C = R[1], R[2], R[3]; s.r = s.A | s.B | s.C
            s.ps = 8 if "32x32" in o else 4
        elif s.valu:
            s.w = R[0]; s.r = set().union(*R[1:]) if len(R) > 1 else set()
            if "swap" in o: s.w = R[0] | R[1]; s.r = s.w
            if o.startswith(("v_fmac", "v_mac")): s.r |= R[0]
        elif s.vmem:
            lds = "lds" in s.mods
            if "store" in o or lds: s.r = set().union(*R); s.data = R[0] if o.startswith("buffer") and not lds else (R[1] if not lds else set())
            else: s.w = R[0]; s.r = set().union(*R[1:])
            if lds: s.r |= {("s", "m0")}
        elif s.ds:
            if "read" in o or "rtn" in o or "permute" in o: s.w = R[0]; s.r = set().union(*R[1:]) if len(R) > 1 else set()
            else: s.r = set().union(*R)
            if "addtid" in o: s.r |= {("s", "m0")}
        elif s.salu:
            if o.startswith(("s_cmp", "s_bitcmp", "s_cbranch", "s_branch", "s_waitcnt", "s_nop", "s_barrier", "s_endpgm")): s.r = set().union(*R) if R else set()
            else: s.w = R[0]; s.r = set().union(*R[1:]) if len(R) > 1 else set()
        s.ws = int(ops[0]) + 1 if o == "s_nop" else 1
def need(a, b):
    n = 0
    if a.mfma:
        if b.mfma:
            if a.w & (b.A | b.B): n = max(n, a.ps + 4)
            if a.w & b.C and (a.w != b.C or a.ps != b.ps): n = max(n, a.ps + 2)
            if a.w & b.w and not (a.w & b.C): n = max(n, a.ps + 2)
        elif a.w & (b.r | b.w): n = max(n, a.ps + 4)
        if b.valu and a.C & b.w: n = max(n, a.ps - 1)
    if a.valu:
        vw = {x for x in a.w if x[0] != "s"}; sw = {x for x in a.w if x[0] == "s"}
        if b.mfma and vw & b.r: n = max(n, 2)
        if a.op.startswith(TR) and b.valu and not b.op.startswith(TR) and vw & b.r: n = max(n, 1)
        if ("permlane" in b.op or "dpp" in b.op) and vw & b.r: n = max(n, 2)
        if b.op.startswith(("v_readfirstlane", "v_readlane")) and vw & b.r: n = max(n, 1)
        if b.vmem and sw & b.r: n = max(n, 5)
        if b.valu and sw & b.r: n = max(n, 2)
        if "op_sel" in a.t and b.valu and vw & (b.r | b.w) and not a.op.startswith("v_pk"): n = max(n, 1)
    if a.salu and ("s", "m0") in a.w and (b.vmem or b.ds) and ("s", "m0") in b.r: n = max(n, 1)
    if a.vmem and "store" in a.op and ("x4" in a.op or "x3" in a.op) and a.data & b.w: n = max(n, 2 if b.valu else 1)
    return n
def check(L, tag):
    bad = 0
    for i, a in enumerate(L):
        d = 0
        for b in L[i+1:i+14]:
            k = need(a, b)
            if k > d: print(f"{tag}: line {a.ln} `{a.t}` -> line {b.ln} `{b.t}` needs {k} has {d}"); bad += 1
            d += b.ws
            if d > 12: break
    return bad
def fix(lines):
    out = []; L = []
    for t in lines:
        if t.endswith(":"): out.append(t); continue
        b = I(0, t); d = 0; k = 0
        for a in reversed(L[-14:]):
            k = max(k, need(a, b) - d); d += a.ws
        if k > 0:
            out.append(f"s_nop {k-1}"); L.append(I(0, f"s_nop {k-1}"))
        out.append(t); L.append(b)
    return out
if __name__ == '__main__':
    src = open(sys.argv[1]).read().split("\n")
    L = []; lab = {}
    on = False
    for n, l in enumerate(src, 1):
        t = l.split(";")[0].strip()
        if t.endswith("_kernel:"): on = True; continue
        if not on or not t: continue
        if t.startswith(".p2align"): continue
        if t.startswith("."): break
        if t.endswith(":"): lab[t[:-1]] = len(L); continue
        L.append(I(n, t))
    bad = check(L, "lin")
    for i, a in enumerate(L):
        if a.op.startswith(("s_cbranch", "s_branch")) and a.ops[0] in lab:
            j = lab[a.ops[0]]
            bad += check(L[max(0, i-14):i+1] + L[j:j+14], f"br{a.ln}")
    print("hazards:", bad)
```

```python
import sys
from haz import fix
NAME = "standalone__dense_activation_silu__prompt_kernel"
opt = dict(wq='', rds=1, ad0=8, t4=0, k4=0, k2=3, fr=3, fd=2, a4=0, bp=0, ofk=0, w5aux='sc1', rpk=0, pl2=7, nom=0, owv=1, ow=0, owp=2, ada=7, wb64=0, wg0=3, wgs=2, smd=0, dst=-1, dn=4, st0=0, nhw=0, wtx=0, tfm=0, tpm=0, tsil=0, c5=0, w5s=8, w5k=2, rcl=0, w5d=0, tin=0, sw=-1, sws=-1, swp=0, swn=15, ems=1, pqd=0, tlate=0, tmix=1, wt=-1, wts=-1, wtp=99, wth=0, wtaux='', d1=0, d7=0, w5p=4, tl=8, rpq=0, waux='', es=-1, esaux='sc1', ot=-1, otm=1, enc=0, w0p=0, own=0, omp=0, dfw=0, ne=8, clr=-1, clrs='', spec=0, fw=12, wl=0, rsp=99, rrp=0, fb=0, tch=0, la=4, tp0=0, tpos=8, th=1, ns=3, n7=0, rcs=8, epk=1, fk=0, ost=0, pae=-1, wsk=0, afs=0, ab=0, afp=0, pa=20, pb=6, wr=1, owna=0, rb=4, skipw=0, m16=0, rtm=0, po="", rsaux="sc1", emu="", emv=1, fs=128, dw=8, eq=0, ec=4, epre=16, eil="h12w9", pfm=3, stamps=0, rot=1, rot2=1, pf=1, outaux="", map=2, raux="nt", xaux="", haux="sc1", hsaux="sc1", hs2="", wb=0, wso=0, sp=0, spg="", nord=0, nomf1=0, norp=0, pk=1, tail=1, b1=4, b2=4, madd=8, pt=0, fst=0, tab="x037", nost=0, novalu=0, nomf2=0, noh=0, hj=1, w2aux="sc1", w1aux="",
           sa=0, ma=10, sb=0, mb=10, mx=0, n8=8, n9=8, nb=0, post=0, pollq=8, hpre=8, sep=0, sts=0, rpos=0, rls=0, rjs=2, rpp=0, rps=7, rck=0, nopoll=0, rfs=4, sl=0, head=50, nf0=4, pre3=0, rt=0, own2=2, ntst=10, mid=2, xlin=0, nor=0)
for a in sys.argv[2:]:
    k, v = a.split("=")
    assert k in opt, k
    opt[k] = int(v) if v.lstrip("-").isdigit() else v.replace("_", " ")
if opt["own"]: opt["dfw"] = 1; opt["ne"] = 12; assert opt["fb"] and opt["own2"] == 2
D1 = opt['d1']
OW = opt['ow']
if OW: assert D1 and opt['own2'] == 2 and opt['post'] <= 12 and not opt['c5'] and not opt['w5d'] and not opt['smd'] and str(opt['nb']) == '0'
if D1: assert not (opt['own'] or opt['ab'] or opt['dfw'] or opt['spec'] or opt['eq'] or opt['tch'] or opt['po']) and opt['fb'] and opt['ns'] == 3
O = []
def e(s): O.append(s)
NST = [0]
def stamp(rt=False, k=0):
    if not opt["stamps"]: return
    if not rt and NST[0] > 1 and k != opt["sts"] and k != -1: return
    i = NST[0]; NST[0] += 1
    e(f"s_memrealtime s[{72+2*i}:{73+2*i}]" if rt or opt["rt"] or opt["rtm"] else f"s_memtime s[{72+2*i}:{73+2*i}]")

class Q:
    def __init__(s, name, mx): s.name = name; s.mx = mx; s.q = []
    def issue(s, tag): s.q.append(tag)
    def wait(s, tag):
        if tag not in s.q: return
        i = len(s.q) - 1 - s.q[::-1].index(tag)
        n = min(len(s.q) - 1 - i, s.mx)
        e(f"s_waitcnt {s.name}({n})")
        s.q = s.q[len(s.q)-n:] if n else []
    def drain(s):
        e(f"s_waitcnt {s.name}(0)"); s.q = []
VM = Q("vmcnt", 63); LG = Q("lgkmcnt", 15)

FL = 0x600000; EP = 0x608000; RFL = 0x610000; W2F = 0x620000; HREC = 0x800000
if opt['spec']: FL = 0x800000; HREC = 0x820000
FS = opt["fs"]
if FS > 128: FL = 0x800000; HREC = FL + 256 * FS
FLB = 0x200000
if opt["ab"]: HREC = 0x808000
RED = 98304; RB = 98304 if opt['ns'] == 3 else 131072; CNT = 159744
NSL = opt['ns']
sX, sW1, sW2, sOUT, sH = 16, 20, 24, 28, 32
(sW, sMT, sFT, sKX, sKW, sXB, sWB, sXE, sM0, sT0, sT1, sE, sTAG, sHS, sHS2, sFLG, sPOL, sW2B, sOWN, sROT,
 sRS, sRD, sWO, sL2E) = range(36, 60)
sSIG = 60
sPK = 4; sOB = 3; sRFL = 14; sSPIN = 15
vL16 = 1; vL16b = 2; vOUT = 3; vOUT2 = 4; vRW = 5; vRP = 6; vHS = 7
vPOLL = 8; vL4 = 9; vPA = 19
vRR = 10
vHB = 13
vT = 17
vCN = 20; vONE = 21; vAV = 22; vAC = 23
vDX = 24; vDW = 26; vDR = 32
vA = 34; vB = 36
vRA = 44
vTM = 46
vACC1 = 64; vAF = 112; vBF = 160; vS = 176; vRF = 192
vWD = 56; vWT = 60; sW5B = 6; sOB2 = 7; vRW2 = 20
vH = 64; vACC2 = 24; vOW = 240; OWN = 32768; sHS1 = 6
def mf2(d, n, j, b, c):
    a = ar(n*20+4*j, 4)
    if j == 4 and opt["t4"]: a, b = b, a
    e(f"v_mfma_f32_16x16x32_bf16 {d}, {a}, {b}, {c}")
def srd(r): return f"s[{r}:{r+3}]"
def vr(r, n): return f"v[{r}:{r+n-1}]"
def ar(r, n): return f"a[{r}:{r+n-1}]"
def capture(fn):
    global O
    sv = O; O = []; fn(); r = O; O = sv; return r

e("s_cmp_ge_u32 s2, 256")
e("s_cbranch_scc1 L_end")
stamp(True); stamp()
e("s_load_dwordx8 s[4:11], s[0:1], 0")
e("s_load_dwordx2 s[12:13], s[0:1], 40")
L, Wv = vTM, vTM+1
t0, t1, t2, t3 = vTM+2, vTM+3, vTM+4, vTM+5
e(f"v_and_b32 v{L}, 63, v0")
e(f"v_lshrrev_b32 v{Wv}, 6, v0")
e(f"v_lshlrev_b32 v{vL16}, 4, v{L}")
e(f"v_readfirstlane_b32 s{sW}, v{Wv}")
if opt["pf"]:
    e("s_getpc_b64 s[14:15]")
    e("L_pc:")
    e(f"s_lshr_b32 s{sT0}, s2, 3")
    e(f"s_and_b32 s{sT0}, s{sT0}, {opt['pfm']}")
    e(f"s_lshl_b32 s{sT0}, s{sT0}, 12")
    e(f"v_lshl_add_u32 v{t0}, v0, 4, s{sT0}")
    e(f"v_min_u32 v{t0}, L_end-L_pc-16, v{t0}")
    e(f"global_load_dwordx4 v[252:255], v{t0}, s[14:15]")
    VM.issue("pf")
fa = opt["map"]
e(f"s_and_b32 s{sT0}, s2, 7")
e(f"s_lshr_b32 s{sT1}, s2, 3")
e(f"s_and_b32 s{sFT}, s{sT1}, {(1<<fa)-1}")
e(f"s_lshr_b32 s{sMT}, s{sT1}, {fa}")
if opt["rot"] == 3:
    tb = str(opt["tab"]).lstrip("x")
    tv = sum(int(c) << (4*i) for i, c in enumerate((tb * 16)[:16]))
    e(f"s_mul_i32 s{sKX}, s{sMT}, {opt['ma']}")
    e(f"s_mul_i32 s{sT1}, s{sFT}, {opt['mb']}")
    e(f"s_add_u32 s{sKX}, s{sKX}, s{sT1}")
    e(f"s_lshl_b32 s{sKX}, s{sKX}, 2")
    e(f"s_mov_b32 s{sSIG}, {tv & 0xffffffff}")
    e(f"s_mov_b32 s{sSIG+1}, {tv >> 32}")
    e(f"s_lshr_b64 s[{sSIG}:{sSIG+1}], s[{sSIG}:{sSIG+1}], s{sKX}")
    e(f"s_and_b32 s{sKX}, s{sSIG}, 15")
elif opt["rot"]:
    e(f"s_lshr_b32 s{sKX}, s{sMT}, {opt['sa']}")
    e(f"s_mul_i32 s{sKX}, s{sKX}, {opt['ma']}")
    e(f"s_lshr_b32 s{sT1}, s{sFT}, {opt['sb']}")
    e(f"s_mul_i32 s{sT1}, s{sT1}, {opt['mb']}")
    e(f"s_add_u32 s{sKX}, s{sKX}, s{sT1}")
    if opt['mx']:
        e(f"s_mul_i32 s{sT1}, s{sT0}, {opt['mx']}")
        e(f"s_add_u32 s{sKX}, s{sKX}, s{sT1}")
    e(f"s_lshr_b32 s{sKX}, s{sKX}, 2")
    e(f"s_mul_i32 s{sT1}, s{sKX}, 205")
    e(f"s_lshr_b32 s{sT1}, s{sT1}, 11")
    e(f"s_mul_i32 s{sT1}, s{sT1}, 10")
    e(f"s_sub_u32 s{sKX}, s{sKX}, s{sT1}")
else:
    e(f"s_mov_b32 s{sKX}, 0")
if opt["ab"]:
    e(f"s_lshl_b32 s{sROT}, s{sMT}, 2")
elif opt["rot2"] == 3:
    e(f"s_and_b32 s{sROT}, s{sMT}, 1")
    e(f"s_mul_i32 s{sROT}, s{sROT}, 6")
elif opt["rot2"] == 4:
    e(f"s_lshr_b32 s{sROT}, s{sMT}, 1")
    e(f"s_mul_i32 s{sROT}, s{sROT}, 3")
elif opt["rot2"] == 5:
    e(f"s_and_b32 s{sROT}, s{sMT}, 3")
elif opt["rot2"] == 6:
    e(f"s_mul_i32 s{sROT}, s{sMT}, 3")
    e(f"s_lshr_b32 s{sROT}, s{sROT}, 3")
    e(f"s_lshl_b32 s{sROT}, s{sROT}, 2")
elif opt["rot2"] == 7:
    e(f"s_mul_i32 s{sROT}, s{sMT}, 12")
    e(f"s_lshr_b32 s{sROT}, s{sROT}, 3")
    e(f"s_bitcmp1_b32 s2, 1")
    e(f"s_addc_u32 s{sROT}, s{sROT}, 0")
elif opt["rot2"] == 2:
    e(f"s_and_b32 s{sROT}, s{sMT}, 3")
    e(f"s_mul_i32 s{sROT}, s{sROT}, 3")
elif opt["rot2"]:
    e(f"s_mul_i32 s{sROT}, s{sMT}, 12")
    e(f"s_lshr_b32 s{sROT}, s{sROT}, {5-fa}")
else:
    e(f"s_mov_b32 s{sROT}, 0")
e(f"s_and_b32 s{sT1}, s{sT0}, {(8>>fa)-1}")
e(f"s_lshl_b32 s{sT1}, s{sT1}, {fa}")
e(f"s_add_u32 s{sFT}, s{sFT}, s{sT1}")
e(f"s_lshr_b32 s{sT1}, s{sT0}, {3-fa}")
e(f"s_lshl_b32 s{sT1}, s{sT1}, {5-fa}")
e(f"s_add_u32 s{sMT}, s{sMT}, s{sT1}")
e(f"s_mul_i32 s{sXB}, s{sMT}, 81920")
e(f"s_mul_i32 s{sWB}, s{sFT}, 384")
e(f"s_add_u32 s{sXE}, s{sXB}, 1280")
e(f"s_mul_i32 s{sKW}, s{sKX}, {64*3072}")
e(f"s_add_u32 s{sKW}, s{sKW}, s{sWB}")
e(f"s_lshl_b32 s{sKX}, s{sKX}, 7")
e(f"s_add_u32 s{sKX}, s{sKX}, s{sXB}")
G = vTM+6
e(f"v_lshrrev_b32 v{G}, 4, v{L}")
e(f"v_lshrrev_b32 v{t0}, 3, v{L}")
e(f"v_lshl_add_u32 v{t0}, v{Wv}, 4, v{t0}")
e(f"v_mul_u32_u24 v{t0}, 1280, v{t0}")
e(f"v_and_b32 v{t1}, 7, v{L}")
e(f"v_xor_b32 v{t1}, v{t1}, v{G}")
e(f"v_lshl_add_u32 v{vDX}, v{t1}, 4, v{t0}")
e(f"v_xor_b32 v{t1}, 4, v{t1}")
e(f"v_lshl_add_u32 v{vDX+1}, v{t1}, 4, v{t0}")
e(f"v_add_u32 v{vDX+1}, {8*1280-1024}, v{vDX+1}")
if opt["xlin"]:
    e(f"v_lshl_add_u32 v{vDX}, v{Wv}, 11, v{vL16}")
    e(f"v_mov_b32 v{vDX+1}, v{vDX}")
    e(f"s_and_b32 s{sT0}, s{sFT}, 3")
    e(f"s_mul_i32 s{sT0}, s{sT0}, {opt['xlin']}")
    e(f"s_lshr_b32 s{sT0}, s{sT0}, 2")
    e(f"s_lshl_b32 s100, s{sT0}, 13")
    e(f"s_add_u32 s100, s100, s{sXB}")
    e(f"s_add_u32 s101, s{sXB}, 81920")
e(f"v_mul_u32_u24 v{t3}, {16*3072}, v{Wv}")
for i in range(3):
    if i: e(f"v_add_u32 v{t0}, {64*i}, v{L}")
    src = t0 if i else L
    e(f"v_mul_u32_u24 v{t1}, 2731, v{src}")
    e(f"v_lshrrev_b32 v{t1}, 16, v{t1}")
    e(f"v_mul_u32_u24 v{t2}, 24, v{t1}")
    e(f"v_sub_u32 v{t0}, v{src}, v{t2}")
    e(f"v_and_b32 v{t2}, 2, v{t1}")
    e(f"v_lshlrev_b32 v{t2}, 1, v{t2}")
    e(f"v_xor_b32 v{t0}, v{t0}, v{t2}")
    e(f"v_mul_u32_u24 v{t1}, 3072, v{t1}")
    e(f"v_lshl_add_u32 v{t0}, v{t0}, 4, v{t1}")
    e(f"v_add_u32 v{t0}, v{t0}, v{t3}")
    if i: e(f"v_subrev_u32 v{vDW+i}, {i*1024}, v{t0}")
    else: e(f"v_mov_b32 v{vDW}, v{t0}")
    e(f"v_add_u32 v{vDW+3+i}, {8*3072 - ((i+3)%4)*1024}, v{t0}")
vTC = 250
if opt["tch"]:
    e(f"v_lshrrev_b32 v{t0}, 1, v{L}")
    e(f"v_mul_u32_u24 v{t1}, 1280, v{t0}")
    e(f"v_mul_u32_u24 v{t2}, 43, v{t0}")
    e(f"v_lshrrev_b32 v{t2}, 7, v{t2}")
    e(f"v_mul_u32_u24 v{t2}, {3072-384}, v{t2}")
    e(f"v_lshl_add_u32 v{t2}, v{t0}, 7, v{t2}")
    e(f"s_and_b32 s{sT0}, s{sFT}, 3")
    e(f"s_lshl_b32 s{sT0}, s{sT0}, 1")
    e(f"s_lshr_b32 s{sT1}, s{sW}, 1")
    e(f"s_add_u32 s{sT0}, s{sT0}, s{sT1}")
    e(f"s_mul_i32 s{sT0}, s{sT0}, {8*1280}")
    e(f"s_and_b32 s{sWO}, s{sMT}, 7")
    e(f"s_lshl_b32 s{sWO}, s{sWO}, 1")
    e(f"s_add_u32 s{sWO}, s{sWO}, s{sT1}")
    e(f"s_mul_i32 s{sWO}, s{sWO}, {4*3072}")
    e(f"s_add_u32 s{sT1}, s{sWB}, {640*3072}")
    e(f"s_bitcmp1_b32 s{sW}, 0")
    e(f"s_cselect_b64 vcc, -1, 0")
    e(f"v_cndmask_b32 v{vTC}, v{t1}, v{t2}, vcc")
    e(f"s_cselect_b32 s{sT0}, s{sWO}, s{sT0}")
    e(f"s_mov_b32 s{sWO}, {0xffff if opt['th'] else 0x5555}")
    e(f"s_cselect_b32 s{sWO}, {0xffffff if opt['th'] else 0x555555}, s{sWO}")
    e(f"s_cselect_b32 s{sHS}, s{sKW}, s{sKX}")
    e(f"s_movk_i32 s{sHS2}, 128")
    e(f"s_cselect_b32 s{sHS2}, {64*3072}, s{sHS2}")
    e(f"v_and_b32 v{t0}, 1, v{L}")
    e(f"v_lshl_add_u32 v{vTC}, v{t0}, 6, v{vTC}")
    e(f"v_add_u32 v{vTC}, s{sT0}, v{vTC}")
    e(f"s_cselect_b32 vcc_lo, s{sT1}, s{sXE}")
    e(f"s_cselect_b32 vcc_hi, s{sWB}, s{sXB}")
e(f"s_lshl_b32 s{sM0}, s{sW}, 13")
CLR = opt["clr"] >= 0 or opt["clrs"]
sCL = sHS
vNAN = 244
if CLR:
    e(f"s_lshl_b32 s{sT0}, s{sMT}, 2")
    e(f"s_lshr_b32 s{sT1}, s{sFT}, 1")
    e(f"s_add_u32 s{sT0}, s{sT0}, s{sT1}")
    e(f"s_lshl_b32 s{sT0}, s{sT0}, 2")
    e(f"s_add_u32 s{sT0}, s{sT0}, s{sW}")
    e(f"s_lshl_b32 s{sT0}, s{sT0}, 1")
    e(f"s_and_b32 s{sT1}, s{sFT}, 1")
    e(f"s_add_u32 s{sT0}, s{sT0}, s{sT1}")
    e(f"s_mul_i32 s{sT0}, s{sT0}, 6144")
    e(f"v_add_u32 v248, s{sT0}, v{vL16}")
    e(f"v_add_u32 v249, 3072, v248")
    for r in range(4): e(f"v_mov_b32 v{vNAN+r}, -1")
def clr_ops():
    def mk(i):
        def f():
            e(f"buffer_store_dwordx4 {vr(vNAN,4)}, v{248 + i//3}, {srd(sH)}, 0 offen offset:{(i%3)*1024} sc1"); VM.issue("clr")
        return f
    return [mk(i) for i in range(6)]
CLO = clr_ops()
e(f"s_mov_b32 s{sSPIN}, {EP}")
for r, n in ((sX, 2621440), (sW1, 1966080), (sW2, 1966080), (sOUT, 2621440), (sH, HREC)):
    e(f"s_mov_b32 s{r+2}, {n}"); e(f"s_mov_b32 s{r+3}, 0x20000")
e("s_waitcnt lgkmcnt(0)")
if opt["wso"]:
    e(f"s_add_u32 s12, s12, {opt['wso'] << 20}"); e("s_addc_u32 s13, s13, 0")
for r, p in ((sW2, 8), (sX, 4), (sW1, 6), (sOUT, 10), (sH, 12)):
    e(f"s_mov_b64 s[{r}:{r+1}], s[{p}:{p+1}]")
if opt["tch"]:
    e(f"s_bitcmp1_b32 s{sW}, 0")
    e(f"s_cselect_b64 s[8:9], s[6:7], s[4:5]")
    e(f"s_cselect_b32 s10, s{sW1+2}, s{sX+2}")
    e("s_mov_b32 s11, 0x20000")
    e(f"s_mov_b32 s6, s{sHS}")
    e(f"s_mov_b32 s7, s{sHS2}")
def touch():
    e("s_add_u32 s6, s6, s7")
    e("s_cmp_eq_u32 s6, vcc_lo")
    e("s_cselect_b32 s6, vcc_hi, s6")
    e(f"s_mov_b32 exec_lo, s{sWO}")
    e("s_mov_b32 exec_hi, 0")
    e(f"buffer_load_dword v251, v{vTC}, s[8:11], s6 offen"); VM.issue("tch")
    e("s_mov_b64 exec, -1")
stamp()
e(f"s_load_dword s{sE}, s[12:13], s{sSPIN}")

def adv_k():
    if opt["xlin"]:
        e(f"s_add_u32 s100, s100, 8192")
        e(f"s_cmp_eq_u32 s100, s101")
        e(f"s_cselect_b32 s100, s{sXB}, s100")
    e(f"s_add_u32 s{sKX}, s{sKX}, 128")
    e(f"s_add_u32 s{sKW}, s{sKW}, {64*3072}")
    e(f"s_cmp_eq_u32 s{sKX}, s{sXE}")
    e(f"s_cselect_b32 s{sKX}, s{sXB}, s{sKX}")
    e(f"s_cselect_b32 s{sKW}, s{sWB}, s{sKW}")
def dma_ops(st):
    base = (st % NSL) * 32768
    def mk(i):
        def f():
            if i == 0: e(f"s_add_u32 m0, s{sM0}, {base+6144}"); e("s_nop 0")
            if i < 2:
                e(f"buffer_load_dwordx4 v{vDX+i}, {srd(sX)}, s{100 if opt['xlin'] else sKX} offen offset:{i*1024} {opt['xaux'] if st < opt['ntst'] else ''} lds")
            else:
                j = i - 2
                e(f"buffer_load_dwordx4 v{vDW+j}, {srd(sW1)}, s{sKW} offen offset:{(j%4)*1024} {opt['w1aux'] if st < opt['ntst'] else ''} lds")
            VM.issue(f"st{st}")
            if i == 1: e(f"s_add_u32 m0, s{sM0}, {base}"); e("s_nop 0")
            if i == 5: e(f"s_add_u32 m0, s{sM0}, {base+4096}"); e("s_nop 0")
            if i == 7 and st < 9: adv_k()
        return f
    return [mk(i) for i in range(8)]

def setup2():
    R, C = t0, t1
    u0, u1, u2 = vTM+7, vTM+8, vTM+9
    if D1:
        e(f"s_lshr_b32 s{sT1}, s2, 1")
        e(f"s_and_b32 s{sT0}, s2, 1")
        if opt["rpk"]:
            e(f"s_mul_i32 s{sRFL}, s{sT1}, 43")
            e(f"s_lshr_b32 s{sRFL}, s{sRFL}, 9")
            e(f"s_mul_i32 s{sRFL}, s{sRFL}, {128 // opt['rpk'] - 12}")
            e(f"s_add_u32 s{sRFL}, s{sRFL}, s{sT1}")
            e(f"s_mul_i32 s{sRFL}, s{sRFL}, {opt['rpk']}")
            e(f"s_lshl_b32 s{sRS}, s{sT0}, 9")
            e(f"s_add_u32 s{sRFL}, s{sRFL}, s{sRS}")
        else:
            e(f"s_mul_i32 s{sRFL}, s{sT0}, 48")
            e(f"s_add_u32 s{sRFL}, s{sRFL}, s{sT1}")
            e(f"s_lshl_b32 s{sRFL}, s{sRFL}, 7")
        if OW:
            e(f"s_mul_i32 s{sRS}, s{sT1}, 43")
            e(f"s_lshr_b32 s{sRS}, s{sRS}, 9")
            e(f"s_mul_i32 s{sRS}, s{sRS}, 47")
            e(f"s_lshl_b32 s{sT1}, s{sT1}, 2")
            e(f"s_sub_u32 s{sT1}, s{sT1}, s{sRS}")
        e(f"s_lshl_b32 s{sRS}, s{sT1}, 2")
        e(f"s_add_u32 s{sRS}, s{sRS}, s{sW}")
        e(f"s_mul_i32 s{sRS}, s{sRS}, 10240")
        e(f"s_lshl_b32 s{sT0}, s{sT0}, 7")
        e(f"s_add_u32 s{sRS}, s{sRS}, s{sT0}")
        e(f"s_add_u32 s{sRS}, s{sRS}, 1024")
        e(f"s_lshl_b32 s{sRD}, s2, 2")
        e(f"s_add_u32 s{sRD}, s{sRD}, s{sW}")
        e(f"s_lshl_b32 s{sRD}, s{sRD}, 10")
        e(f"s_add_u32 s{sRD}, s{sRD}, {W2F}")
        e(f"s_cmp_lt_u32 s2, {0 if opt['nor'] else 96}")
        e(f"s_cselect_b32 s{sRS}, s{sRS}, 1966080")
        e(f"s_cselect_b32 s{sRD}, s{sRD}, {HREC}")
        e(f"s_cselect_b32 s{sRFL}, s{sRFL}, {HREC - RFL}")
    else:
        e(f"s_and_b32 s{sT0}, s2, 63")
        e(f"s_mul_i32 s{sT1}, s{sT0}, 205")
        e(f"s_lshr_b32 s{sT1}, s{sT1}, 10")
        e(f"s_mul_i32 s{sRS}, s{sT1}, 5")
        e(f"s_sub_u32 s{sRS}, s{sT0}, s{sRS}")
        e(f"s_lshr_b32 s{sRD}, s2, 6")
        e(f"s_mul_i32 s{sRFL}, s{sRD}, 5")
        e(f"s_add_u32 s{sRFL}, s{sRFL}, s{sRS}")
        e(f"s_lshl_b32 s{sRFL}, s{sRFL}, 4")
        e(f"s_add_u32 s{sRFL}, s{sRFL}, s{sT1}")
        e(f"s_lshl_b32 s{sRFL}, s{sRFL}, 7")
        if opt["own"]:
            e(f"s_mul_i32 s6, s{sT1}, 6")
            e(f"s_add_u32 s6, s6, s{sRD}")
            e(f"s_lshr_b32 s7, s{sT1}, 1")
            e(f"s_mul_i32 s7, s7, 6")
            e(f"s_and_b32 s8, s{sT1}, 1")
            e(f"s_add_u32 s7, s7, s8")
            e(f"s_mul_i32 s8, s{sRD}, 12")
            e(f"s_add_u32 s7, s7, s8")
            e(f"s_sub_u32 s7, s7, 20")
            e(f"s_cmp_lt_u32 s{sT1}, 8")
            e(f"s_cselect_b32 s6, s6, s7")
            e(f"s_mul_i32 s6, s6, 40960")
        e(f"s_mul_i32 s{sRD}, s{sRD}, 12")
        e(f"s_add_u32 s{sT1}, s{sT1}, s{sRD}")
        e(f"s_mul_i32 s{sT1}, s{sT1}, 40960")
        e(f"s_lshl_b32 s{sRD}, s{sRS}, 13")
        e(f"s_add_u32 s{sRD}, s{sRD}, s{sT1}")
        e(f"s_lshl_b32 s{sRS}, s{sRS}, 8")
        e(f"s_add_u32 s{sRS}, s{sRS}, s{6 if opt['own'] else sT1}")
        e(f"s_lshl_b32 s{sT1}, s{sW}, 11")
        e(f"s_add_u32 s{sRD}, s{sRD}, s{sT1}")
        e(f"s_add_u32 s{sRD}, s{sRD}, {W2F}")
        e(f"s_cmp_lt_u32 s{sT0}, {0 if opt['nor'] else 60}")
        e(f"s_cselect_b32 s{sRS}, s{sRS}, 1966080")
        e(f"s_cselect_b32 s{sRD}, s{sRD}, {HREC}")
    if opt["pt"] & 1:
        e(f"s_min_u32 s{sT1}, s{sRS}, {1966080-4}")
        e(f"s_load_dword s6, s[8:9], s{sT1}")
    if opt["pt"] & 2:
        e(f"s_mul_i32 s{sT1}, s{sMT}, {64*3072}")
        e(f"s_load_dword s6, s[12:13], s{sT1}")
    if opt["pt"] & 4:
        e(f"s_load_dword s6, s[10:11], s{sXB}")
    if opt["pt"] & 8:
        e(f"s_load_dword s6, s[12:13], s{sRD}")
    if D1:
        e(f"v_lshrrev_b32 v{t0}, 3, v{L}")
        e(f"v_mul_u32_u24 v{t0}, 1280, v{t0}")
        e(f"v_and_b32 v{t1}, 7, v{L}")
        e(f"v_lshlrev_b32 v{t2}, 1, v{G}")
        e(f"v_xor_b32 v{t1}, v{t1}, v{t2}")
        e(f"v_lshl_add_u32 v{vWD}, v{t1}, 4, v{t0}")
        for i in range(1, 4): e(f"v_add_u32 v{vWD+i}, {i*(10240-1024)}, v{vWD}")
    else:
        e(f"v_lshl_add_u32 v{t0}, v{Wv}, 3, v{G}")
        e(f"v_mul_u32_u24 v{t0}, 1280, v{t0}")
        e(f"v_and_b32 v{t1}, 15, v{L}")
        e(f"v_lshlrev_b32 v{t2}, 1, v{G}")
        e(f"v_xor_b32 v{t1}, v{t1}, v{t2}")
        e(f"v_lshl_add_u32 v{vDR}, v{t1}, 4, v{t0}")
        e(f"v_xor_b32 v{t1}, 8, v{t1}")
        e(f"v_lshl_add_u32 v{vDR+1}, v{t1}, 4, v{t0}")
        e(f"v_add_u32 v{vDR+1}, {4*1280-1024}, v{vDR+1}")
    e(f"v_bfe_u32 v{R}, v{L}, 2, 2")
    e(f"v_and_b32 v{C}, 3, v{L}")
    e(f"v_lshrrev_b32 v{u0}, 1, v{G}")
    e(f"v_lshl_add_u32 v{u0}, v{u0}, 3, v{R}")
    e(f"v_mul_u32_u24 v{u0}, 384, v{u0}")
    e(f"v_lshrrev_b32 v{u1}, 1, v{R}")
    e(f"v_xor_b32 v{u1}, v{u1}, v{Wv}")
    e(f"v_and_b32 v{u1}, 1, v{u1}")
    e(f"v_lshl_add_u32 v{u0}, v{u1}, 6, v{u0}")
    e(f"v_and_b32 v{u1}, 1, v{G}")
    e(f"v_lshl_add_u32 v{u0}, v{u1}, 5, v{u0}")
    e(f"v_lshl_add_u32 v{vA}, v{C}, 3, v{u0}")
    e(f"v_add_u32 v{vA+1}, 65536, v{vA}")
    e(f"v_and_b32 v{u0}, 2, v{Wv}")
    e(f"v_add_u32 v{u0}, v{u0}, v{u1}")
    e(f"v_lshlrev_b32 v{u0}, 13, v{u0}")
    e(f"v_and_b32 v{u2}, 15, v{L}")
    e(f"v_lshl_add_u32 v{u0}, v{u2}, 7, v{u0}")
    e(f"v_add_u32 v{u0}, 6144, v{u0}")
    e(f"v_lshrrev_b32 v{u1}, 1, v{u2}")
    e(f"v_lshrrev_b32 v{t2}, 5, v{L}")
    e(f"v_xor_b32 v{u1}, v{u1}, v{t2}")
    e(f"v_lshl_add_u32 v{vB}, v{u1}, 4, v{u0}")
    for k in range(1, 4): e(f"v_xor_b32 v{vB+k}, {32*k}, v{vB}")
    for k in range(4): e(f"v_add_u32 v{vB+4+k}, 65536, v{vB+k}")
    if D1:
        e(f"v_and_b32 v{u1}, 1, v{G}")
        e(f"v_lshl_add_u32 v{u1}, v{u1}, 2, v{R}")
        e(f"v_lshlrev_b32 v{u0}, 11, v{t2}")
        e(f"v_lshl_add_u32 v{u0}, v{u1}, 7, v{u0}")
        e(f"v_lshrrev_b32 v{u1}, 1, v{u1}")
        e(f"v_lshl_add_u32 v{u0}, v{u1}, 5, v{u0}")
        e(f"v_and_b32 v{u1}, 1, v{C}")
        e(f"v_lshl_add_u32 v{u0}, v{u1}, 4, v{u0}")
        e(f"v_lshrrev_b32 v{u1}, 1, v{C}")
        e(f"v_lshl_add_u32 v{u0}, v{u1}, 3, v{u0}")
        e(f"v_add_u32 v{u0}, {RB}, v{u0}")
        e(f"v_lshlrev_b32 v{t3}, 5, v{Wv}")
        e(f"v_xor_b32 v{vRA}, v{u0}, v{t3}")
        e(f"v_add_u32 v{vWT}, s{sM0}, v{u0}")
        for j in range(1, 4): e(f"v_xor_b32 v{vWT+j}, {32*j}, v{vWT}")
    else:
        e(f"v_and_b32 v{u1}, 1, v{G}")
        e(f"v_lshl_add_u32 v{u1}, v{u1}, 2, v{R}")
        e(f"v_lshlrev_b32 v{u0}, 12, v{t2}")
        e(f"v_lshl_add_u32 v{u0}, v{u1}, 8, v{u0}")
        e(f"v_lshlrev_b32 v{t3}, 1, v{Wv}")
        e(f"v_xor_b32 v{u1}, v{u1}, v{t3}")
        e(f"v_lshl_add_u32 v{u0}, v{u1}, 5, v{u0}")
        e(f"v_and_b32 v{u1}, 1, v{C}")
        e(f"v_lshl_add_u32 v{u0}, v{u1}, 4, v{u0}")
        e(f"v_lshrrev_b32 v{u1}, 1, v{C}")
        e(f"v_lshl_add_u32 v{u0}, v{u1}, 3, v{u0}")
        e(f"v_add_u32 v{vRA}, {RB}, v{u0}")
        e(f"v_xor_b32 v{vRA+1}, 32, v{vRA}")
    if not D1:
        e(f"v_mov_b32 v{vCN}, {CNT}")
        e(f"v_mov_b32 v{vONE}, 0")
        e(f"ds_write_b32 v{vCN}, v{vONE}"); LG.issue("cnt")
    if opt["ab"]: e(f"ds_write_b32 v{vCN}, v{vONE} offset:4"); LG.issue("cnt")
    for i in range(48): e(f"v_mov_b32 v{vACC1+i}, 0")
    if not D1: e(f"v_mov_b32 v{vONE}, 1")
    e(f"v_and_b32 v{u1}, 1, v{G}")
    e(f"v_mul_u32_u24 v{u0}, 12288, v{u1}")
    e(f"v_lshl_add_u32 v{u0}, v{t2}, 8, v{u0}")
    e(f"v_lshl_add_u32 v{vHS}, v{u2}, 4, v{u0}")
    if opt["own"]:
        e(f"s_and_b32 s{sT0}, s{sW}, 1")
        e(f"s_and_b32 s{sT1}, s{sW}, 2")
        e(f"s_sub_u32 s{sT1}, s{sT1}, s{sT0}")
        e(f"s_add_u32 s{sT1}, s{sT1}, 3")
        e(f"v_add_u32 v{u0}, s{sT1}, v{u1}")
        e(f"v_and_b32 v{u0}, 3, v{u0}")
        e(f"s_lshl_b32 s{sT0}, s{sT0}, 12")
        e(f"s_add_u32 s{sT0}, s{sT0}, {OWN}")
        e(f"v_lshl_add_u32 v{u0}, v{u0}, 10, s{sT0}")
        e(f"v_lshl_add_u32 v{u0}, v{t2}, 8, v{u0}")
        e(f"v_lshl_add_u32 v{vOW}, v{u2}, 4, v{u0}")
        e(f"v_xor_b32 v{vOW+1}, 2048, v{vOW}")
        e(f"s_lshl_b32 s{sT0}, s{sW}, 12")
        e(f"s_add_u32 s{sT0}, s{sT0}, {OWN}")
        e(f"v_add_u32 v{vOW+2}, s{sT0}, v{vL16}")
    if OW:
        e(f"s_and_b32 s{sT0}, s{sW}, 1")
        e(f"s_lshl1_add_u32 s{sT0}, s{sFT}, s{sT0}")
        e(f"s_and_b32 s{sT0}, s{sT0}, 3")
        e(f"s_and_b32 s{sT1}, s{sW}, 2")
        e(f"s_sub_u32 s{sT1}, s{sT1}, s{sT0}")
        e(f"s_add_u32 s{sT1}, s{sT1}, 7")
        e(f"v_add_u32 v{u0}, s{sT1}, v{u1}")
        e(f"v_and_b32 v{u0}, 3, v{u0}")
        e(f"s_lshl_b32 s{sT0}, s{sT0}, 13")
        e(f"s_add_u32 s{sT0}, s{sT0}, {65536+4096}")
        e(f"v_lshl_add_u32 v{u0}, v{u0}, 10, s{sT0}")
        e(f"v_lshl_add_u32 v{u0}, v{t2}, 8, v{u0}")
        e(f"v_lshl_add_u32 v{vOW}, v{u2}, 4, v{u0}")
        e(f"v_xor_b32 v{vOW+1}, {16384+2048}, v{vOW}")
    e(f"v_mul_u32_u24 v{u0}, 1280, v{u2}")
    e(f"v_lshl_add_u32 v{vOUT}, v{G}, 4, v{u0}")
    e(f"v_lshl_add_u32 v{u0}, v{u1}, 4, v{u0}")
    e(f"v_lshl_add_u32 v{vOUT2}, v{t2}, 3, v{u0}")
    if opt["bp"]:
        e(f"v_lshrrev_b32 v{vL16b}, 2, v{L}")
        e(f"v_mul_u32_u24 v{u0}, 1280, v{vL16b}")
        e(f"v_lshl_add_u32 v{vOUT}, v{C}, 4, v{u0}")
        e(f"v_lshl_add_u32 v{vL16b}, v{C}, 4, v{vL16b}")
        e(f"v_lshlrev_b32 v{vL16b}, 2, v{vL16b}")
        e(f"v_and_b32 v{vOUT2}, 1, v{C}")
        e(f"v_lshl_add_u32 v{u0}, v{vOUT2}, 4, v{u0}")
        e(f"v_lshrrev_b32 v{vOUT2}, 1, v{C}")
        e(f"v_lshl_add_u32 v{vOUT2}, v{vOUT2}, 3, v{u0}")
    if opt["t4"]:
        e(f"v_mul_u32_u24 v{u0}, {4*1280}, v{G}")
        e(f"v_lshl_add_u32 v{u0}, v{C}, 1, v{u0}")
        e(f"v_and_b32 v{vOUT2}, 1, v{R}")
        e(f"v_lshl_add_u32 v{u0}, v{vOUT2}, 4, v{u0}")
        e(f"v_lshrrev_b32 v{vOUT2}, 1, v{R}")
        e(f"v_lshl_add_u32 v{vOUT2}, v{vOUT2}, 3, v{u0}")
    if opt["ofk"]:
        sh = 1 + opt["ofk"]
        e(f"v_lshrrev_b32 v{u0}, {sh}, v{L}")
        e(f"v_mul_u32_u24 v{u0}, 1280, v{u0}")
        e(f"v_and_b32 v{vOUT}, {(1 << sh) - 1}, v{L}")
        e(f"v_lshl_add_u32 v{vOUT}, v{vOUT}, 4, v{u0}")
        e(f"v_add_u32 v{vL16b}, {64 if sh == 2 else 10240}, v{vOUT}")
        e(f"v_lshrrev_b32 v{u0}, 2, v{L}")
        e(f"v_mul_u32_u24 v{u0}, 1280, v{u0}")
        e(f"v_and_b32 v{vOUT2}, 3, v{L}")
        e(f"v_lshl_add_u32 v{vOUT2}, v{vOUT2}, 3, v{u0}")
    if not D1: e(f"v_add_u32 v{vL16b}, 4096, v{vL16}")
    if D1:
        e(f"s_lshr_b32 s{sT0}, s{sFT}, 2")
        e(f"s_lshl_b32 s{sT0}, s{sT0}, 2")
        e(f"s_add_u32 s{sT0}, s{sT0}, s{sW}")
        e(f"s_mul_i32 s{sT0}, s{sT0}, {128 if opt['rpk'] else 12*128}")
        e(f"v_min_u32 v{vRP}, 11, v{u2}")
        e(f"v_lshl_add_u32 v{vRP}, v{vRP}, {dict([(0,7),(4,2),(8,3)])[opt['rpk']]}, s{sT0}")
    else:
        e(f"s_mul_i32 s{sT0}, s{sFT}, 5")
        e(f"v_lshl_add_u32 v{u0}, v{u1}, 2, s{sT0}")
        e(f"v_lshrrev_b32 v{u0}, 3, v{u0}")
        e(f"v_mad_u32_u24 v{u0}, v{Wv}, 5, v{u0}")
        e(f"v_min_u32 v{vRP}, 11, v{u2}")
        e(f"v_lshlrev_b32 v{vRP}, 7, v{vRP}")
        e(f"v_lshl_add_u32 v{vRP}, v{u0}, 11, v{vRP}")
    e(f"v_lshlrev_b32 v{vL4}, 2, v{L}")
    if opt["own"] or OW:
        e(f"v_and_b32 v{vPA}, {opt['pl2']}, v{L}")
        e(f"v_lshlrev_b32 v{vPA}, 7, v{vPA}")
    else: e(f"v_mul_u32_u24 v{vPA}, {FS}, v{u1}")
    if D1:
        assert FS == 128
        e(f"v_lshlrev_b32 v{vAC}, 7, v0")
        e(f"s_add_u32 s{sT0}, s{sM0}, 32768")
        e(f"v_add_u32 v{vRW}, s{sT0}, v{vL16}")
        e(f"v_add_u32 v{vRW2}, 65536, v{vRW}")
        for p in range(3):
            e(f"s_sub_u32 s{sT0}, s{sW}, {1+p}")
            e(f"s_and_b32 s{sT0}, s{sT0}, 3")
            e(f"s_lshl_b32 s{sT0}, s{sT0}, 13")
            e(f"s_add_u32 s{sT0}, s{sT0}, {32768*(p+1)}")
            e(f"v_add_u32 v{vRR+p}, s{sT0}, v{vL16}")
        e(f"s_mul_i32 s{sW2B}, s{sW}, {40960 if OW else 12*40960}")
        e(f"s_lshl_b32 s{sT0}, s{sFT}, 7")
        e(f"s_add_u32 s{sW2B}, s{sW2B}, s{sT0}")
        e(f"s_mul_i32 s{sW5B}, s{sW}, 96")
        e(f"s_add_u32 s{sW5B}, s{sW5B}, s{sFT}")
        e(f"s_lshl_b32 s{sW5B}, s{sW5B}, 10")
        e(f"s_add_u32 s{sW5B}, s{sW5B}, {W2F}")
    else:
        e(f"v_mul_u32_u24 v{u0}, 205, v{L}")
        e(f"v_lshrrev_b32 v{u0}, 10, v{u0}")
        e(f"v_sub_u32 v{vAC}, v{Wv}, v{u0}")
        e(f"v_mad_i32_i24 v{vAC}, v{vAC}, 5, v{L}")
        e(f"v_lshlrev_b32 v{vAC}, 11, v{vAC}")
        e(f"v_lshl_add_u32 v{vAC}, v{u0}, 7, v{vAC}")
        e(f"s_mul_i32 s{sT0}, s{sW}, 15360")
        e(f"s_add_u32 s{sT0}, s{sT0}, {RED}")
        e(f"v_add_u32 v{vRW}, s{sT0}, v{vL16}")
        for p in range(3):
            e(f"s_sub_u32 s{sT0}, s{sW}, {1+p}")
            e(f"s_and_b32 s{sT0}, s{sT0}, 3")
            e(f"s_mul_i32 s{sT0}, s{sT0}, 15360")
            e(f"s_add_u32 s{sT0}, s{sT0}, {RED + p*5120}")
            e(f"v_add_u32 v{vRR+p}, s{sT0}, v{vL16}")
        e(f"s_mul_i32 s{sW2B}, s{sW}, {12*40960}")
        e(f"s_mul_i32 s{sT0}, s{sFT}, 5120")
        e(f"s_add_u32 s{sW2B}, s{sW2B}, s{sT0}")
        e(f"s_add_u32 s{sW2B}, s{sW2B}, {W2F}")
    if opt["ab"]:
        e(f"s_mov_b32 s{sSIG+6}, 0x98763210"); e(f"s_mov_b32 s{sSIG+7}, 0x98763210")
        e(f"s_lshr_b64 s[{sSIG+6}:{sSIG+7}], s[{sSIG+6}:{sSIG+7}], s{sROT}")
        e(f"s_mov_b32 s{sSIG+7}, s{sSIG+6}")
        e(f"s_and_b32 s{sROT}, s{sROT}, 12")
        e(f"s_lshr_b32 s{sSIG+11}, 0xba54ba54, s{sROT}")
        for n in range(12):
            src = sSIG+7 if n < 8 else sSIG+11
            e(f"s_bfe_u32 s{sSIG+n}, s{src}, {0x40000 + 4*(n%8)}")
            e(f"s_lshl_b32 s{sSIG+n}, s{sSIG+n}, 10")
    if opt["own"]:
        e(f"s_lshl_b32 s{sSIG}, s{sFT}, 10")
        for n in range(1, 12):
            e(f"s_cmp_eq_u32 s{sROT}, s{sFT}")
            e(f"s_addc_u32 s{sROT}, s{sROT}, 0")
            e(f"s_lshl_b32 s{sSIG+n}, s{sROT}, 10")
            if n < 11:
                e(f"s_add_u32 s{sROT}, s{sROT}, 1")
                e(f"s_cmp_ge_u32 s{sROT}, 12")
                e(f"s_cselect_b32 s{sROT}, 0, s{sROT}")
    if OW:
        e(f"s_lshl_b32 s{sT0}, s{sFT}, 1")
        e(f"s_sub_u32 s{sT0}, s{sW}, s{sT0}")
        e(f"s_and_b32 s{sT0}, s{sT0}, 3")
        e(f"s_mul_i32 s{sT1}, s{sFT}, 6")
        e(f"s_add_u32 s{sT0}, s{sT0}, s{sT1}")
        e(f"s_lshr_b32 s{sT0}, s{sT0}, 2")
        e(f"s_lshl_b32 s{sSIG}, s{sT0}, 10")
        for n in range(1, 12):
            e(f"s_cmp_ge_u32 s{sROT}, s{sT0}")
            e(f"s_addc_u32 s{sT1}, s{sROT}, 0")
            e(f"s_lshl_b32 s{sSIG+n}, s{sT1}, 10")
            if n < 11:
                e(f"s_add_u32 s{sROT}, s{sROT}, 1")
                e(f"s_cmp_ge_u32 s{sROT}, 11")
                e(f"s_cselect_b32 s{sROT}, 0, s{sROT}")
    for n in range(12 if not opt["ab"] and not opt["own"] and not OW else 0):
        e(f"s_lshl_b32 s{sSIG+n}, s{sROT}, 10")
        if n < 11:
            e(f"s_add_u32 s{sROT}, s{sROT}, 1")
            e(f"s_cmp_ge_u32 s{sROT}, 12")
            e(f"s_cselect_b32 s{sROT}, 0, s{sROT}")
    if opt["own2"] == 2:
        e(f"s_mov_b32 s{sOWN}, s{sW}")
    elif opt["own2"] == 3:
        e(f"s_and_b32 s{sOWN}, s{sFT}, 1")
        e(f"s_add_u32 s{sOWN}, s{sW}, s{sOWN}")
    elif opt["own2"]:
        e(f"s_lshl_b32 s{sOWN}, s{sFT}, 1")
        e(f"s_add_u32 s{sOWN}, s{sW}, s{sOWN}")
    else: e(f"s_add_u32 s{sOWN}, s{sW}, s{sFT}")
    e(f"s_and_b32 s{sOWN}, s{sOWN}, 3")
    e(f"s_lshl_b32 s{sT1}, s{sMT}, 2")
    e(f"s_add_u32 s{sT1}, s{sT1}, s{sW}")
    if opt["own"] or OW: e(f"s_lshl_b32 s{sPOL}, s{sMT}, 10")
    else: e(f"s_mul_i32 s{sPOL}, s{sT1}, {2*FS}")
    e(f"s_add_u32 s{sPOL}, s{sPOL}, {FL}")
    e(f"s_lshl_b32 s{sT1}, s{sT1}, 2")
    for p in range(4):
        e(f"s_add_u32 s{sT0}, s{sOWN}, {1+p}")
        e(f"s_and_b32 s{sT0}, s{sT0}, 3")
        e(f"s_add_u32 s{sT0}, s{sT0}, s{sT1}")
        e(f"s_mul_i32 s{sT0}, s{sT0}, 12288")
        e(f"v_add_u32 v{vHB+p}, s{sT0}, v{vL16}")
    e(f"s_lshl_b32 s{sOB}, s{sMT}, 2")
    e(f"s_add_u32 s{sOB}, s{sOB}, s{sOWN}")
    e(f"s_mul_i32 s{sOB}, s{sOB}, {16*1280}")
    if D1:
        e(f"s_lshl_b32 s{sT0}, s{sFT}, 5")
        e(f"s_add_u32 s{sOB2}, s{sOB}, s{sT0}")
        e(f"s_add_u32 s{sOB2}, s{sOB2}, {1024-128}")
    e(f"s_mul_i32 s{sT0}, s{sFT}, {128 if D1 else 160}")
    e(f"s_add_u32 s{sOB}, s{sOB}, s{sT0}")
    if opt["ost"]:
        e(f"s_cmp_ge_u32 s{sW}, {opt['ost']}")
        e(f"s_cselect_b32 s{sOB}, s{sOB}, 2621440")
    e(f"s_lshl_b32 s{sT0}, s{sMT}, 2")
    e(f"s_lshr_b32 s{sT1}, s{sFT}, 1")
    e(f"s_add_u32 s{sT0}, s{sT0}, s{sT1}")
    e(f"s_mul_i32 s{sFLG}, s{sT0}, {2*FS}")
    e(f"s_lshl_b32 s{sT0}, s{sT0}, 2")
    e(f"s_and_b32 s{sT1}, s{sW}, 2")
    e(f"s_add_u32 s{sT0}, s{sT0}, s{sT1}")
    e(f"s_mul_i32 s{sHS}, s{sT0}, 12288")
    e(f"s_and_b32 s{sT0}, s{sFT}, 1")
    e(f"s_mul_i32 s{sT1}, s{sT0}, {FS}")
    e(f"s_add_u32 s{sFLG}, s{sFLG}, s{sT1}")
    e(f"s_add_u32 s{sFLG}, s{sFLG}, {FL}")
    e(f"s_mul_i32 s{sT0}, s{sT0}, 6")
    e(f"s_and_b32 s{sT1}, s{sW}, 1")
    e(f"s_add_u32 s{sT0}, s{sT0}, s{sT1}")
    e(f"s_lshl_b32 s{sT0}, s{sT0}, 10")
    e(f"s_add_u32 s{sHS}, s{sHS}, s{sT0}")
    e(f"s_add_u32 s{sHS2}, s{sHS}, 4096")
    if opt["own"]:
        e(f"s_and_b32 s{sT0}, s{sFT}, 1")
        e(f"s_lshl_b32 s{sT0}, s{sT0}, 12")
        e(f"s_sub_u32 s{sHS2}, s{sHS}, s{sT0}")
        e(f"s_add_u32 s{sHS2}, s{sHS2}, 8192")
        e(f"s_lshl_b32 s{sT0}, s{sMT}, 2")
        e(f"s_add_u32 s{sT0}, s{sT0}, s{sT1}")
        e(f"s_lshl_b32 s{sT0}, s{sT0}, 2")
        e(f"s_and_b32 s{sT1}, s{sW}, 2")
        e(f"s_add_u32 s{sT0}, s{sT0}, s{sT1}")
        e(f"s_mul_i32 s{sT0}, s{sT0}, 12")
        e(f"s_add_u32 s{sT0}, s{sT0}, s{sFT}")
        e(f"s_lshl_b32 s{sHS}, s{sT0}, 10")
        e(f"s_add_u32 s{sHS1}, s{sHS}, 98304")
    if OW:
        for q, r in enumerate((sHS, 10, sHS2)):
            e(f"s_mul_i32 s{sT0}, s{sFT}, 6")
            e(f"s_and_b32 s{sT1}, s{sW}, 1")
            e(f"s_add_u32 s{sT0}, s{sT0}, s{sT1}")
            if q: e(f"s_add_u32 s{sT0}, s{sT0}, {2*q}")
            e(f"s_and_b32 s{sT1}, s{sT0}, 3")
            e(f"s_lshl2_add_u32 s{sT1}, s{sMT}, s{sT1}")
            e(f"s_and_b32 s{r}, s{sW}, 2")
            e(f"s_lshl2_add_u32 s{sT1}, s{sT1}, s{r}")
            e(f"s_mul_i32 s{sT1}, s{sT1}, 12")
            e(f"s_lshr_b32 s{sT0}, s{sT0}, 2")
            e(f"s_add_u32 s{sT0}, s{sT0}, s{sT1}")
            e(f"s_lshl_b32 s{r}, s{sT0}, 10")
    e(f"s_add_u32 s{sRFL}, s{sRFL}, {RFL}")
    e(f"s_cmp_eq_u32 s{sW}, 0")
    e(f"s_cselect_b32 s{sRFL}, s{sRFL}, {HREC}")
    e(f"s_mov_b32 s{sL2E}, 0xbfb8aa3b")
    if opt["pk"]:
        e(f"s_mov_b32 s{sPK}, 0xbfb8aa3b"); e(f"s_mov_b32 s{sPK+1}, 0xbfb8aa3b")
def r_loads():
    if D1:
        e(f"s_lshr_b32 m0, s{sM0}, 3")
        e(f"s_add_u32 m0, m0, {RB}")
        e("s_nop 0")
        e(f"buffer_load_dwordx4 v{vWD}, {srd(sW2)}, s{sRS} offen {opt['raux']} lds"); VM.issue("rld")
        return
    e(f"s_lshr_b32 m0, s{sM0}, 2")
    e(f"s_add_u32 m0, m0, {RB}")
    e("s_nop 0")
    for i in range(2):
        e(f"buffer_load_dwordx4 v{vDR+i}, {srd(sW2)}, s{sRS} offen offset:{i*1024} {opt['raux']} lds"); VM.issue("rld")
def r_reads():
    if D1:
        for t in range(2):
            e(f"ds_read_b64_tr_b16 {vr(vRF + 2*t, 2)}, v{vRA} offset:{t*1024}"); LG.issue("rrd")
        return
    for ee in range(2):
        for t in range(2):
            e(f"ds_read_b64_tr_b16 {vr(vRF + 4*ee + 2*t, 2)}, v{vRA+ee} offset:{t*2048}"); LG.issue("rrd")
def r_stores():
    LG.wait("rrd")
    for ee in range(1 if D1 else 2):
        e(f"buffer_store_dwordx4 {vr(vRF+4*ee,4)}, v{vL16}, {srd(sH)}, s{sRD} offen offset:{ee*1024} {opt['rsaux']}"); VM.issue("rst")
S2 = capture(setup2)
groups = []
for l in S2:
    if l.startswith("s_cselect") or (groups and groups[-1][-1].startswith("s_cmp")): groups[-1].append(l)
    else: groups.append([l])
ST0 = []
def pre_order(spec):
    kx, kw = (sKX, 6, 8), (sKW, 7, 9)
    def nxt(i):
        a, b = (i + 1) % 3, i
        e(f"s_add_u32 s{kx[a]}, s{kx[b]}, 128")
        e(f"s_add_u32 s{kw[a]}, s{kw[b]}, {64*3072}")
        e(f"s_cmp_eq_u32 s{kx[a]}, s{sXE}")
        e(f"s_cselect_b32 s{kx[a]}, s{sXB}, s{kx[a]}")
        e(f"s_cselect_b32 s{kw[a]}, s{sWB}, s{kw[a]}")
    ops = []
    for ch in spec:
        if ch in "abc":
            st = "abc".index(ch)
            for i in range(2):
                def f(st=st, i=i):
                    if i == 0: e(f"s_add_u32 m0, s{sM0}, {st*32768+6144}"); e("s_nop 0")
                    e(f"buffer_load_dwordx4 v{vDX+i}, {srd(sX)}, s{kx[st]} offen offset:{i*1024} {opt['xaux']} lds"); VM.issue(f"st{st}")
                    if st == 0 and i == 1: nxt(0); nxt(1)
                ops.append(f)
        elif ch in "ABC":
            st = "ABC".index(ch)
            for j in range(6):
                def f(st=st, j=j):
                    if j % 4 == 0: e(f"s_add_u32 m0, s{sM0}, {st*32768+j*1024}"); e("s_nop 0")
                    e(f"buffer_load_dwordx4 v{vDW+j}, {srd(sW1)}, s{kw[st]} offen offset:{(j%4)*1024} {opt['w1aux']} lds"); VM.issue(f"st{st}")
                ops.append(f)
        elif ch == "R": ops.append(r_loads)
        elif ch == ".": ops.append(None)
        elif ch == "P":
            def f():
                e(f"s_bfe_u32 s10, s{sMT}, 0x10002")
                e(f"s_mul_i32 s10, s10, 320")
                e(f"s_and_b32 s11, s{sMT}, 3")
                e(f"s_lshl_b32 s11, s11, 4")
                e(f"s_add_u32 s10, s10, s11")
                e(f"s_mul_i32 s11, s{sW}, 12")
                e(f"s_sub_u32 s10, s10, s11")
                e(f"s_add_u32 s10, s10, 256")
                e(f"s_mul_i32 s10, s10, 3072")
                e(f"s_add_u32 s10, s10, s{sWB}")
                e(f"buffer_load_dwordx4 v[244:247], v{vDW}, {srd(sW1)}, s10 offen"); VM.issue("pp")
                e("s_mov_b32 exec_hi, 0")
                e(f"buffer_load_dwordx4 v[248:251], v{vDW+1}, {srd(sW1)}, s10 offen offset:1024"); VM.issue("pp")
                e("s_mov_b32 exec_hi, -1")
            ops.append(f)
    assert spec[0] == "a" and all(c in spec for c in "abcABC")
    last = ops[-1]
    def fin(): last(); nxt(2)
    ops[-1] = fin
    return ops
if opt["po"]:
    first = pre_order(opt["po"]); opt["pre3"] = 1
    if None in first:
        k = first.index(None); first, ST0 = first[:k], first[k+1:]
    if "R" in opt["po"]: opt["rls"] = -1
else:
    first = dma_ops(0) + dma_ops(1) + (dma_ops(2) if opt["pre3"] else [])
    if opt["rls"] < 0: first.append(r_loads)
    if opt["tch"]: first[opt["tp0"]:opt["tp0"]] = [touch] * (opt["la"] - 1)
def wtouch():
    if opt["wtx"]:
        e(f"s_lshr_b32 s8, s2, 3")
        e(f"s_lshl_b32 s8, s8, 2")
        e(f"s_add_u32 s8, s8, s{sW}")
        e(f"s_mul_i32 s8, s8, {12*1280}")
        e(f"s_lshr_b32 s9, s{sFT}, 2")
        e(f"s_lshl_b32 s9, s9, 9")
        e(f"s_add_u32 s8, s8, s9")
        e(f"v_lshrrev_b32 v250, 6, v{vL16}")
        e(f"v_mul_u32_u24 v250, {1280-512}, v250")
        e(f"v_lshl_add_u32 v250, v{vL16}, 3, v250")
        e(f"s_mov_b32 exec_hi, 0xffff")
        e(f"buffer_load_dword v251, v250, {srd(sW2)}, s8 offen {opt['wtaux']}"); VM.issue("wt")
        e("s_mov_b64 exec, -1")
        return
    e(f"s_lshl_b32 s8, s2, 2")
    e(f"s_add_u32 s8, s8, s{sW}")
    e(f"s_mul_i32 s8, s8, {15*128}")
    e(f"v_lshlrev_b32 v250, {2 if opt['wth'] else 3}, v{vL16}")
    e(f"s_mov_b64 exec, {(1 << (30 if opt['wth'] else 15)) - 1}")
    e(f"buffer_load_dword v251, v250, {srd(sW2)}, s8 offen {opt['wtaux']}"); VM.issue("wt")
    e("s_mov_b64 exec, -1")
if opt["wt"] >= 0: first.insert(opt["wt"], wtouch)
def stouch():
    e(f"s_lshl_b32 s100, s2, 2")
    e(f"s_add_u32 s100, s100, s{sW}")
    e(f"s_mul_i32 s100, s100, {15*128}")
    for i in range(opt["swn"]):
        e(f"s_load_dword s101, s[{sW2}:{sW2+1}], s100 offset:{i*128}")
if opt["sw"] >= 0: first.insert(opt["sw"], stouch)
if opt["clr"] >= 0: first[opt["clr"]:opt["clr"]] = CLO
NF0 = opt["nf0"]
for f in first[:NF0]: f()
if opt["fst"]:
    e(f"s_waitcnt vmcnt({NF0-1})"); stamp(k=5)
    e(f"s_waitcnt vmcnt({NF0-3})"); stamp(k=5)
rest = first[NF0:]
per = (len(groups) + len(rest) - 1) // len(rest)
head = len(groups) * opt["head"] // 100
for g in groups[:head]: O.extend(g)
groups = groups[head:]
per = (len(groups) + len(rest) - 1) // len(rest)
for f in rest:
    f()
    for g in groups[:per]: O.extend(g)
    groups = groups[per:]
assert not groups
stamp()

def w2_ops():
    ops = []
    order = list(range(1, 12)); order.insert(opt["w0p"], 0)
    for n in order:
        for j in range(5):
            def f(n=n, j=j):
                if j == 0:
                    e(f"s_mul_i32 s{sWO}, s{sSIG+n}, 40")
                    e(f"s_add_u32 s{sWO}, s{sWO}, s{sW2B}")
                va = vL16 if j < 4 else vL16b
                e(f"buffer_load_dwordx4 {ar(n*20+4*j, 4)}, v{va}, {srd(sH)}, s{sWO} offen offset:{(j%4)*1024} {opt['w2aux'].replace('-','')}")
                VM.issue(f"w{n}")
            ops.append(f)
    return ops
WREG = [3, 3, 4, 4, 1, 1, 2, 2, 3, 3, 4, 4]
WHF = [n % 2 for n in range(12)]
WDEP = [None] * 8 + ["t0", "t1", "t2", "t3"]
if OW:
    WREG = [3, 3, 4, 4, 1, 1, 2, 3, 3, 4, 4, 2]
    WHF = [0, 1, 0, 1, 0, 1, 0, 0, 1, 0, 1, 1]
    WDEP = [None] * 7 + ["t0", "t1", "t2", "t3", "or3"]
def wd_ops():
    ops = []
    for n in range(12):
        for i in range(4):
            def f(n=n, i=i):
                if i == 0:
                    if WDEP[n]: assert WDEP[n] in TDONE + ORD and WDEP[n] not in LG.q, n
                    e(f"s_mul_i32 s{sWO}, s{sSIG+n}, {160 if OW else 40}")
                    e(f"s_add_u32 m0, s{sM0}, {WREG[n]*32768 + WHF[n]*4096}")
                    e(f"s_add_u32 s{sWO}, s{sWO}, s{sW2B}")
                e(f"buffer_load_dwordx4 v{vWD+i}, {srd(sW2)}, s{sWO} offen offset:{i*1024} {opt['waux']} lds")
                VM.issue(f"d{n}")
            ops.append(f)
    return ops
def w5_ops():
    ops = []
    for n in range(12):
        def f(n=n):
            e(f"s_lshl3_add_u32 s{sT1}, s{sSIG+n}, s{sW5B}")
            e(f"buffer_load_dwordx4 {ar(n*20+16, 4)}, v{vL16}, {srd(sH)}, s{sT1} offen {opt['w5aux'].replace('-','')}")
            VM.issue(f"w{n}")
        ops.append(f)
    return ops
TDONE = []; TWIN = [3]; ORD = []
def tgroup_ops(n):
    def head():
        assert not any(f.__defaults__[0] == n and len(f.__defaults__) == 2 for f in W2L), n
        VM.wait(f"d{n}")
        win = 3 if WREG[n] >= 3 else 1
        if win != TWIN[0]:
            for j in range(4): e(f"v_add_u32 v{vWT+j}, {(win - TWIN[0]) * 32768}, v{vWT+j}")
            TWIN[0] = win
        if len(LG.q) > 7:
            e("s_waitcnt lgkmcnt(7)"); LG.q = LG.q[-7:]
    ops = []
    for j in range(4):
        def f(j=j):
            if j == 0: head()
            win = TWIN[0]
            for t in range(2):
                e(f"ds_read_b64_tr_b16 {ar(n*20+4*j+2*t, 2)}, v{vWT+j} offset:{(WREG[n]-win)*32768 + WHF[n]*4096 + t*1024}"); LG.issue(f"t{n}")
        ops.append(f)
    TDONE.append(f"t{n}")
    return ops
def tgroup(n):
    for f in tgroup_ops(n): f()
W2L = wd_ops() if D1 else w2_ops()
def take(n):
    r = W2L[:n]; del W2L[:n]; return r

def rd_ops(st, half):
    slot = st % NSL
    sb = (slot % 2) * 32768
    hi = slot // 2
    ops = []
    if opt["nord"]: return ops
    for kk in range(2):
        ks = 2*half + kk
        def b(ks=ks, kk=kk):
            e(f"ds_read_b128 {vr(vBF + (half*2+kk)*4, 4)}, v{vB + 4*hi + ks} offset:{sb}"); LG.issue(f"B{ks}")
        ops.append(b)
        for q in range(3):
            for t in range(2):
                def a(ks=ks, kk=kk, q=q, t=t):
                    e(f"ds_read_b64_tr_b16 {vr(vAF + half*24 + (kk*3+q)*4 + 2*t, 2)}, v{vA+hi} offset:{sb + ks*8192 + t*1536 + q*128}")
                    LG.issue(f"A{ks}{q}")
                ops.append(a)
    return ops
def i16(kk, q): return kk == 1
def mfma1(half, kk, q):
    ks = 2*half + kk
    LG.wait(f"A{ks}{q}")
    if opt["nomf1"]: return
    if opt["m16"]:
        for z in range(2):
            c = vr(vACC1+16*q+8*kk+4*z, 4)
            e(f"v_mfma_f32_16x16x32_bf16 {c}, {vr(vAF + half*24 + (kk*3+q)*4, 4)}, {vr(vBF + (half*2+(kk^z if i16(kk, q) else kk))*4, 4)}, {c}")
        return
    e(f"v_mfma_f32_32x32x16_bf16 {vr(vACC1+16*q,16)}, {vr(vAF + half*24 + (kk*3+q)*4, 4)}, {vr(vBF + (half*2+kk)*4, 4)}, {vr(vACC1+16*q,16)}")
def half_body(mf_half, rds, fill):
    rds = list(rds); fill = list(fill)
    for i in range(6):
        if mf_half is not None: mfma1(mf_half, i // 3, i % 3)
        left = 6 - i
        for _ in range((len(rds) + left - 1) // left if i else min(len(rds), 4)):
            if rds: rds.pop(0)()
        for _ in range((len(fill) + left - 1) // left):
            if fill: fill.pop(0)()
    assert not rds and not fill

def flag_store(off, lanes=0):
    fk = opt["fk"]
    if fk in (1, 3, 4):
        for r in range(4): e(f"v_mov_b32 v{vTM+12+r}, s{sTAG}")
        e(f"s_mov_b64 exec, {dict([(1,255),(3,1),(4,15)])[fk]}")
        e(f"buffer_store_dwordx4 {vr(vTM+12,4)}, v{vL16}, {srd(sH)}, s{off} offen sc1"); VM.issue("flag")
        e("s_mov_b64 exec, -1")
        return
    e(f"v_mov_b32 v{vT}, s{sTAG}")
    e(f"s_mov_b64 exec, {(1 << lanes) - 1}" if lanes else "s_mov_b32 exec_hi, 0" if fk == 0 else "s_mov_b64 exec, 1")
    e(f"buffer_store_dword v{vT}, v{vL4}, {srd(sH)}, s{off} offen sc1"); VM.issue("flag")
    e("s_mov_b64 exec, -1")
def r_poll():
    e(f"s_mov_b32 s{sT0}, {HREC if opt['norp'] else RFL}")
    e(f"buffer_load_dword v{vPOLL}, v{vRP}, {srd(sH)}, s{sT0} offen sc1"); VM.issue("rpoll")

def spin_check(lab, vv, va, tag, so=None, fake=False):
    VM.wait(tag)
    e(f"s_mov_b32 s{sSPIN}, 20000")
    e(f"L_{lab}:")
    e(f"v_cmp_ne_u32 vcc, s{sTAG}, v{vv}")
    e("s_cmp_eq_u64 vcc, 0" if not fake else "s_cmp_eq_u32 s2, s2")
    e(f"s_cbranch_scc1 L_{lab}_go")
    e(f"s_sub_u32 s{sSPIN}, s{sSPIN}, 1")
    e(f"s_cmp_eq_u32 s{sSPIN}, 0")
    e(f"s_cbranch_scc1 L_{lab}_go")
    if so is None: e(f"s_mov_b32 s{sT0}, {RFL}")
    e(f"buffer_load_dword v{vv}, v{va}, {srd(sH)}, s{sT0 if so is None else so} offen sc1")
    e("s_waitcnt vmcnt(0)")
    e(f"s_branch L_{lab}")
    e(f"L_{lab}_go:")
def r_check(): spin_check("rp", vPOLL, vRP, "rpoll", None, opt["norp"])

PEND = []
EMU = [int(c) for c in str(opt["emu"]).lstrip("x")]
def emu_ops(bi):
    q, g2 = bi // 2, bi % 2
    a0 = 216; tt = vS + (bi % 2) * 8; pk = vRF + 8 + bi * 4
    ops = []
    if opt["emv"] and not opt["epk"]:
        for r in range(8): ops.append(f"v_mul_f32 v{tt+r}, s{sL2E}, v{a0+r}")
        for r in range(8): ops.append(f"v_exp_f32 v{tt+r}, v{tt+r}")
        for r in range(8): ops.append(f"v_add_f32 v{tt+r}, 1.0, v{tt+r}")
        for r in range(8): ops.append(f"v_rcp_f32 v{tt+r}, v{tt+r}")
        for r in range(8): ops.append(f"v_mul_f32 v{tt+r}, v{a0+r}, v{tt+r}")
        for r in range(4): ops.append(f"v_cvt_pk_bf16_f32 v{pk+r}, v{tt+2*r}, v{tt+2*r+1}")
    elif opt["emv"]:
        for r in range(0, 8, 2): ops.append(f"v_pk_mul_f32 {vr(tt+r,2)}, {vr(a0+r,2)}, s[{sPK}:{sPK+1}]")
        for r in range(8): ops.append(f"v_exp_f32 v{tt+r}, v{tt+r}")
        for r in range(0, 8, 2): ops.append(f"v_pk_add_f32 {vr(tt+r,2)}, {vr(tt+r,2)}, 1.0 op_sel_hi:[1,0]")
        for r in range(8): ops.append(f"v_rcp_f32 v{tt+r}, v{tt+r}")
        for r in range(0, 8, 2): ops.append(f"v_pk_mul_f32 {vr(tt+r,2)}, {vr(a0+r,2)}, {vr(tt+r,2)}")
        for r in range(4): ops.append(f"v_cvt_pk_bf16_f32 v{pk+r}, v{tt+2*r}, v{tt+2*r+1}")
    fs = [(lambda l=l: e(l)) for l in ops]
    def st_():
        e(f"buffer_store_dwordx4 {vr(pk,4)}, v{vHS}, {srd(sH)}, s{sHS} offen offset:{g2*512 + (q%2)*2048} sc1"); VM.issue("hstA" if opt["ab"] else "hst")
    if not opt['ems']: PEND.append(st_); return fs
    return fs + [st_]
def merge(a, b):
    r = []; a = list(a); b = list(b); na, nb_ = len(a), len(b)
    while a or b:
        if a and (not b or len(a) * nb_ >= len(b) * na): r.append(a.pop(0))
        else: r.append(b.pop(0))
    return r
if EMU:
    for r in range(8): e(f"v_cvt_f32_u32 v{216+r}, v{vL16}"); e(f"v_mul_f32 v{216+r}, 0x3a000000, v{216+r}")
for st in range(10):
    VM.wait(f"st{st}")
    if st == opt["rjs"]: VM.wait("rld")
    if st == opt["rfs"]: VM.wait("rst"); VM.wait("clr")
    if st == opt["afs"] and st: VM.wait("hstA")
    LG.drain()
    e("s_barrier")
    if st == opt["afs"] and st:
        e(f"s_cmp_eq_u32 s{sW}, 0")
        e(f"s_cselect_b32 s{sT1}, s{sFLG}, {HREC}")
        flag_store(sT1); stamp(k=7)
    if st == 9: stamp()
    stamp(k=1)
    if st >= 8: stamp(k=4)
    if st == opt["rfs"]:
        e(f"s_mul_i32 s{sTAG}, s{sE}, 0x9E3779B1")
        e(f"s_add_u32 s{sTAG}, s{sTAG}, 0x7F4A7C15")
        flag_store(sRFL, opt["rpk"] // 4)
    if not D1 and ((st == opt["rcs"] and opt["rck"] == 0) or (st == 9 and opt["rck"] == 2)): r_check()
    if NSL == 4:
        if st == 0: fill = ([] if opt["pre3"] else dma_ops(2)) + dma_ops(3)
        elif st < 7: fill = dma_ops(st + 3)
        else: fill = take(opt[f"n{st}"])
    elif st == 0 and opt["pre3"]: fill = list(ST0)
    elif st < 8: fill = dma_ops(st + 2) + (take(opt["d7"]) if st == 7 else [])
    else: fill = take(opt["n8"] if st == 8 else opt["n9"])
    if st == opt["dst"]: fill = fill + take(opt["dn"])
    if opt["tch"] and st + opt["la"] < 10: fill.insert(opt["tpos"], touch)
    if st == opt["rls"]: fill = [r_loads] + fill if opt["rpos"] == 0 else fill + [r_loads]
    if st == opt["rjs"]:
        fill.insert(min(opt["rsp"], len(fill)), r_stores)
        fill = [r_reads] + fill
    if st == opt["rps"] and not D1: fill.insert(opt["rpp"], r_poll)
    if st == opt["wts"]: fill.insert(min(opt["wtp"], len(fill)), wtouch)
    if st == opt['sws']: fill.insert(min(opt['swp'], len(fill)), stouch)
    if st == opt["ot"]:
        def otch():
            if opt["otm"] == 1: e("s_mov_b64 exec, 1")
            e(f"buffer_load_dword v251, v{vOUT}, {srd(sOUT)}, s{sOB} offen"); VM.issue("ot")
            if opt["otm"] == 3: e(f"buffer_load_dword v251, v{vOUT2}, {srd(sOUT)}, s{sOB} offen offset:128"); VM.issue("ot")
            e("s_mov_b64 exec, -1")
        fill.append(otch)
    ex = [CLO[i] for i, c in enumerate(str(opt["clrs"]).lstrip("x")) if int(c) == st]
    for bi, es in enumerate(EMU):
        if es == st: ex += emu_ops(bi)
    if ex: fill = merge(fill, ex)
    h = (len(fill) + 1) // 2
    f0, f1 = fill[:h], fill[h:]
    if st == 8 and opt["rck"] == 1:
        k = 1 if opt["rps"] == 8 else 0
        f0, f1 = fill[:k], [r_check] + fill[k:]
    half_body(1 if st else None, rd_ops(st, 0), f0)
    half_body(0, rd_ops(st, 1), f1)
stamp()
def silu_block(q, g2):
    a0 = vACC1 + 16*q + 8*g2
    bi = 2*q + g2
    tt = vS + (bi % 2) * 8
    pk = vRF + bi * 4
    ops = []
    if opt["pk"]:
        for r in range(0, 8, 2): ops.append(f"v_pk_mul_f32 {vr(tt+r,2)}, {vr(a0+r,2)}, s[{sPK}:{sPK+1}]")
        for r in range(8): ops.append(f"v_exp_f32 v{tt+r}, v{tt+r}")
        for r in range(0, 8, 2): ops.append(f"v_pk_add_f32 {vr(tt+r,2)}, {vr(tt+r,2)}, 1.0 op_sel_hi:[1,0]")
        for r in range(8): ops.append(f"v_rcp_f32 v{tt+r}, v{tt+r}")
        for r in range(0, 8, 2): ops.append(f"v_pk_mul_f32 {vr(tt+r,2)}, {vr(a0+r,2)}, {vr(tt+r,2)}")
    else:
        for r in range(8): ops.append(f"v_mul_f32 v{tt+r}, s{sL2E}, v{a0+r}")
        for r in range(8): ops.append(f"v_exp_f32 v{tt+r}, v{tt+r}")
        for r in range(8): ops.append(f"v_add_f32 v{tt+r}, 1.0, v{tt+r}")
        for r in range(8): ops.append(f"v_rcp_f32 v{tt+r}, v{tt+r}")
        for r in range(8): ops.append(f"v_mul_f32 v{tt+r}, v{a0+r}, v{tt+r}")
    for r in range(4): ops.append(f"v_cvt_pk_bf16_f32 v{pk+r}, v{tt+2*r}, v{tt+2*r+1}")
    nbs = str(opt["nb"]).lstrip("x")
    fill = take(int(nbs[bi] if len(nbs) > 1 else nbs))
    if opt["tsil"] and bi >= 6 - opt["tsil"]: fill = fill + tgroup_ops(len(TDONE))
    step = len(ops) // (len(fill) + 1) if fill else 0
    for i, l in enumerate(ops):
        if not opt["novalu"]: e(l)
        if fill and step and (i + 1) % step == 0: fill.pop(0)()
    for f in fill: f()
    so = sHS if q < 2 else sHS2
    def st_():
        if opt["nost"]: return
        if OW:
            e(f"buffer_store_dwordx4 {vr(pk,4)}, v{vHS}, {srd(sH)}, s{(sHS, 10, sHS2)[q]} offen offset:{g2*512} sc1"); VM.issue("hst")
            if q < 2: e(f"ds_write_b128 v{vOW+q}, {vr(pk,4)} offset:{g2*512}"); LG.issue("ow")
            return
        if opt["own"]:
            e(f"buffer_store_dwordx4 {vr(pk,4)}, v{vHS}, {srd(sH)}, s{(sHS, sHS1, sHS2)[q]} offen offset:{g2*512} sc1"); VM.issue("hst")
            if q < 2: e(f"ds_write_b128 v{vOW+q}, {vr(pk,4)} offset:{q*8192 + g2*512}"); LG.issue("ow")
            return
        e(f"buffer_store_dwordx4 {vr(pk,4)}, v{vHS}, {srd(sH)}, s{so} offen offset:{g2*512 + (q%2)*2048} {opt['hsaux'].replace('-','')}"); VM.issue("hstA" if opt["ab"] and q < 2 else "hst")
        if opt["hs2"]:
            e(f"buffer_store_dwordx4 {vr(pk,4)}, v{vHS}, {srd(sH)}, s{so} offen offset:{g2*512 + (q%2)*2048} {opt['hs2'].replace('-','')}"); VM.issue("hst")
    PEND.append(st_)
    if bi >= opt["sl"]:
        while PEND: PEND.pop(0)()
if opt["st0"]:
    e(f"s_cmp_lt_u32 s{sW}, {opt['st0']}")
    e(f"s_cselect_b32 s{sHS}, s{sHS}, {HREC}")
    e(f"s_cselect_b32 s{sHS2}, s{sHS2}, {HREC}")
for q in range(3):
    for kk in range(2): mfma1(1, kk, q)
e("s_nop 7")
stamp(k=4)
if opt["sts"] == 4: VM.drain(); stamp(k=4)
def cnt_add(tag, off):
    VM.wait(tag)
    e("s_mov_b64 exec, 1")
    e(f"ds_add_rtn_u32 v{vT+1}, v{vCN}, v{vONE} offset:{off}")
    e("s_mov_b64 exec, -1")
def cnt_flag(add):
    e("s_waitcnt lgkmcnt(0)"); LG.q = []
    e(f"v_readfirstlane_b32 s{sT0}, v{vT+1}")
    e(f"s_add_u32 s{sT1}, s{sFLG}, {add}")
    e(f"s_cmp_eq_u32 s{sT0}, 3")
    e(f"s_cselect_b32 s{sT1}, s{sT1}, {HREC}")
    flag_store(sT1)
for q in range(3):
    for g2 in range(2):
        bi = 2*q + g2
        if opt["ab"] and not opt["afs"] and bi == 4 + opt["afp"]: cnt_add("hstA", 0); stamp(k=7)
        if bi >= len(EMU): silu_block(q, g2)
        if opt["ab"] and not opt["afs"] and bi == 4 + opt["afp"]: cnt_flag(0); stamp(k=7)
stamp(); stamp(k=4); stamp(k=8)
if not opt["spec"]:
    NT = (48 - len(W2L)) // 4
    PL = take(opt["post"])
    if opt["tpm"]:
        TL = []
        while len(TDONE) < NT: TL += tgroup_ops(len(TDONE))
        PL = merge(PL, TL) if opt["tpm"] == 1 else TL + PL
    for i, f in enumerate(PL):
        if D1 and i == opt["rpq"]: r_poll()
        if i == opt["pae"]:
            e(f"buffer_load_dword v{vPOLL}, v{vPA}, {srd(sH)}, s{sPOL} offen sc1"); VM.issue("poll")
        f()
    if opt["wb"]:
        VM.wait("hst")
        e("buffer_wbl2 sc1"); VM.issue("hst")
    if D1:
        while len(TDONE) < NT: tgroup(len(TDONE))
    stamp(k=8)
    if not opt["nhw"]: VM.wait("hst")
    stamp(k=8)
    stamp(k=4)
    if opt["sts"] == 4: VM.drain(); stamp(k=4)
    if opt["fb"]:
        e(f"s_cmp_eq_u32 s{sW}, 0")
        e(f"s_cselect_b32 s{sFLG}, s{sFLG}, {HREC}")
        if opt["own"]: LG.drain()
        if OW: LG.drain()
        e("s_barrier")
    else:
        e("s_mov_b64 exec, 1")
        e(f"ds_add_rtn_u32 v{vT+1}, v{vCN}, v{vONE} offset:{4 if opt['ab'] else 0}")
        e("s_mov_b64 exec, -1")
        if opt["ab"]: e(f"s_add_u32 s{sFLG}, s{sFLG}, {FLB}")
        for f in take(opt["mid"]): f()
        e("s_waitcnt lgkmcnt(0)")
        e(f"v_readfirstlane_b32 s{sT0}, v{vT+1}")
        e(f"s_cmp_eq_u32 s{sT0}, {3 if opt['nopoll'] < 2 else 9}")
        e(f"s_cselect_b32 s{sFLG}, s{sFLG}, {HREC}")
    if opt["nopoll"] == 3: e(f"s_mov_b32 s{sPOL}, {HREC}")
    flag_store(sFLG)
    if opt["fb"] == 2: e("s_barrier")
    stamp(); stamp(k=3)
else:
    for f in take(opt["fw"]): f()
    VM.wait("hst")
    e(f"s_lshl_b32 s{sT0}, s{sW}, 15")
    e(f"s_add_u32 s{sFLG}, s{sFLG}, s{sT0}")
    flag_store(sFLG)
    stamp()
N0 = 1 if OW else 0
HL = [(p, n) for p in range(4) for n in range(N0, 12)]
def hreg(p, n): return vH + (p*(12-N0) + n - N0)*4
def park(p, j): return [vACC2, 196, 216, 240][p] + 4*j if (p, j) != (3, 4) else 236
def ofr(p): return vr(152+4*p, 4) if opt['owv'] else ar(240+4*p, 4)
def own_reads():
    for p in range(4):
        e(f"ds_read_b128 {ofr(p)}, v{vRW} offset:{32768 + 4096 + p*1024}"); LG.issue(f"or{p}"); ORD.append(f"or{p}")
def own_ops(js):
    def mk(p, j):
        def f():
            LG.wait(f"or{p}"); LG.wait("t0")
            if j == 4: VM.wait("w0")
            if opt["nom"]: return
            mf2(vr(park(p, j), 4), 0, j, ofr(p), '0')
        return f
    return [mk(p, j) for p in range(4) for j in js]
def hload():
    if HL:
        p, n = HL.pop(0)
        if opt["noh"] and (p*12+n) % opt["noh"]: return
        e(f"buffer_load_dwordx4 {vr(hreg(p, n), 4)}, v{vHB+p}, {srd(sH)}, s{sSIG+n} offen {opt['haux'].replace('-','')}"); VM.issue(f"h{p}_{n}")
def mark(v):
    if not opt["stamps"] or opt["sts"]: return
    i = NST[0]; NST[0] += 1
    e(f"s_add_u32 s{72+2*i}, s74, {v}"); e(f"s_addc_u32 s{73+2*i}, s75, 0")
def allc_load():
    e("s_cmp_eq_u32 s2, 0")
    e(f"s_cselect_b32 s{sT0}, {FL if D1 else RFL}, s{sH+2}")
    e(f"buffer_load_dword v{vAV}, v{vAC}, {srd(sH)}, s{sT0} offen sc1"); VM.issue("allc")
def p0_block(ML, pre):
    ML = list(ML)
    TL = []
    while D1 and len(TDONE) < 12 - opt["tin"]: TL += tgroup_ops(len(TDONE))
    for f in (merge(ML[:pre], TL) if opt["tmix"] else ML[:pre] + TL): f()
    if OW:
        for f in own_ops([4]): f()
    del ML[:pre]
    if D1 and not opt["tin"]: LG.drain()
    stamp()
    for n in range(N0, 12):
        assert (0, n) not in HL and not any(getattr(f, "__defaults__", None) and f.__defaults__[0] == n for f in ML), n
        late = max((f"h0_{n}", f"w{n}"), key=lambda t: len(VM.q) - 1 - VM.q[::-1].index(t) if t in VM.q else -1)
        VM.wait(late)
        TL = []
        if D1:
            assert f"t{n}" in TDONE
            LG.wait(f"t{n}")
            if len(TDONE) < 12: TL = tgroup_ops(len(TDONE))
        if n == N0 or n == 6: stamp(k=2)
        cnt = (len(ML) + 11 - n) // (12 - n)
        pos = {1: [opt["hj"]], 2: [1, 3], 3: [0, 2, 4], 4: [0, 1, 2, 3], 5: [0, 1, 2, 3, 4], 0: []}[cnt]
        for j in range(5):
            c = "0" if n == 0 else vr(vACC2+4*j, 4)
            mf2(vr(vACC2+4*j,4), n, j, vr(hreg(0, n),4), c)
            if j in pos: ML.pop(0)()
            elif TL: TL.pop(0)()
        for f in TL: f()
    assert not ML and not W2L
TP = []
def tstep(n):
    if not opt["tfm"]: return
    if not TP and len(TDONE) <= n - opt["tfm"] and len(TDONE) < 12 - opt["tlate"]: TP.extend(tgroup_ops(len(TDONE)))
    if TP: TP.pop(0)()
def late_d1():
    W5 = w5_ops()
    cnt = 0
    vP2 = vAV if opt["pqd"] or opt["rcl"] else vPOLL
    def poll():
        stamp(k=3)
        e(f"buffer_load_dword v{vP2}, v{vPA}, {srd(sH)}, s{sPOL} offen sc1"); VM.issue("poll")
    OM = []
    if OW: own_reads(); OM = own_ops(range(4))
    while W2L:
        n = W2L[0].__defaults__[0]
        if W2L[0].__defaults__[1] == 0 and WDEP[n]:
            while WDEP[n] not in TDONE + ORD: tgroup(len(TDONE))
            LG.wait(WDEP[n])
        if len(W2L) == opt["pqd"]: poll()
        take(1)[0](); cnt += 1
        if OM and cnt > opt["owp"]: OM.pop(0)()
        if opt["tfm"]: tstep(n)
        elif cnt % opt["tl"] == 0 and len(TDONE) < n - 2: tgroup(len(TDONE))
    if opt["owp"] < 50:
        for f in OM: f()
        OM = []
    if not opt["rcl"]: r_check()
    else: assert opt["w5d"] == 12
    WD = W5[12-opt["w5d"]:]; del W5[12-opt["w5d"]:]
    def om(i):
        if 50 <= opt["owp"] < 90 and i >= opt["owp"] - 50:
            for _ in range(2):
                if OM: OM.pop(0)()
    for i, f in enumerate(W5[:opt["w5p"]]): f(); tstep(12 + i // 4); om(i)
    if not opt["pqd"]: poll()
    for i, f in enumerate(W5[opt["w5p"]:]): f(); tstep(12 + (i + opt["w5p"]) // 4); om(i + opt["w5p"])
    for f in TP: f()
    for f in OM: f()
    stamp(k=3)
    while len(TDONE) < 12 - opt['tlate']: tgroup(len(TDONE))
    VM.wait("poll")
    stamp(k=3)
    stamp()
    spin_check("hp", vP2, vPA, "poll", sPOL, opt["nopoll"])
    stamp(); stamp(k=2); stamp(k=3)
    mark(1000)
    allc_load()
    if opt["c5"]:
        WDL.extend(WD); return
    ML = []; pre = 0
    for i in range(opt["hpre"] + 12 - N0):
        ML.append(hload)
        if WD and WD[0].__defaults__[0] == i: ML.append(WD.pop(0))
        if i == opt["hpre"] - 1: pre = len(ML)
    p0_block(ML, pre)
WDL = []
def late_path():
    if D1: return late_d1()
    if opt['skipw']: del W2L[-opt['skipw']:]
    if opt["sts"] == 6:
        stamp(k=6)
        i = 0
        while len(W2L) > opt["pollq"]:
            take(1)[0](); i += 1
            if i % 4 == 0 and i >= opt["dw"]:
                e(f"s_waitcnt vmcnt({opt['dw']})"); stamp(k=6)
    for f in take(max(0, len(W2L) - opt["pollq"])): f()
    stamp(k=3)
    if opt["sts"] == 3: VM.drain(); stamp(k=3)
    if opt["sts"] == 4: stamp(k=4); VM.drain(); stamp(k=4)
    if opt["sp"]:
        e(f"s_load_dword s6, s[12:13], s{sPOL} {opt['spg']}")
        e(f"s_add_u32 s{sT0}, s{sPOL}, 128")
        e(f"s_load_dword s7, s[12:13], s{sT0} {opt['spg']}")
        for f in take(len(W2L)): f()
        stamp(k=3)
        e("s_waitcnt lgkmcnt(0)")
        stamp(k=3)
        stamp()
        e(f"s_cmp_eq_u32 s6, s{sTAG}")
        e(f"s_cselect_b32 s6, s7, s6")
        e(f"s_cmp_eq_u32 s6, s{sTAG}")
        e("s_cbranch_scc1 L_hp_go")
        e(f"v_mov_b32 v{vPOLL}, s6")
        spin_check("hp", vPOLL, vPA, "poll", sPOL, opt["nopoll"])
    else:
        e(f"buffer_load_dword v{vPOLL}, v{vPA}, {srd(sH)}, s{sPOL} offen sc1"); VM.issue("poll")
        for f in take(len(W2L)): f()
        stamp(k=3)
        VM.wait("poll")
        stamp(k=3)
        stamp()
        spin_check("hp", vPOLL, vPA, "poll", sPOL, opt["nopoll"])
    stamp(); stamp(k=2); stamp(k=3)
    mark(1000)
    allc_load()
    p0_block([hload] * (opt["hpre"] + 12), opt["hpre"])
LATE = []
if opt["eq"]:
    import re
    for f in take(len(W2L) - opt["eq"]): f()
    e(f"buffer_load_dword v{vPOLL}, v{vPA}, {srd(sH)}, s{sPOL} offen sc1"); VM.issue("poll")
    for f in take(opt["ec"]): f()
    VM.wait("poll")
    e(f"v_cmp_ne_u32 vcc, s{sTAG}, v{vPOLL}")
    e("s_cmp_eq_u64 vcc, 0" if not opt["nopoll"] else "s_cmp_eq_u32 s2, s2")
    e("s_cbranch_scc0 L_late")
    sv = (list(VM.q), list(W2L), list(HL), NST[0])
    LATE = ["L_late:"] + capture(late_path) + ["s_branch L_p1"]
    endq, endn = list(VM.q), NST[0]
    VM.q, W2L[:], HL[:], NST[0] = sv
    stamp(); stamp(); stamp(k=2); mark(0)
    allc_load()
    m = re.match(r"h(\d+)w(\d+)", opt["eil"])
    ML = []; nh = 12; ws = take(len(W2L))
    while nh or ws:
        k = min(nh, int(m.group(1))); ML += [hload] * k; nh -= k
        k = int(m.group(2)); ML += ws[:k]; del ws[:k]
    ML += [hload] * opt["hpre"]
    p0_block(ML, opt["epre"])
    assert NST[0] == endn, (NST[0], endn)
    k = min(len(VM.q), len(endq))
    assert VM.q[-k:] == endq[-k:] and all(t.startswith("h1") for t in VM.q + endq), (VM.q, endq)
    if len(endq) > len(VM.q): VM.q = endq
    e("L_p1:")
elif opt["spec"]:
    allc_load()
    for f in take(len(W2L) - opt["wl"]): f()
    stamp(); stamp(); stamp(k=2); mark(1000)
    ws = take(len(W2L))
    p0_block([hload] * opt["hpre"] + merge(ws, [hload] * 12) if ws else [hload] * (opt["hpre"] + 12), opt["hpre"])
elif not opt["ab"] and not opt["dfw"]:
    late_path()
def allc_check():
    e("s_cmp_lg_u32 s2, 0")
    e("s_cbranch_scc1 L_ac_go")
    assert "allc" not in VM.q
    if D1: e(f"s_mov_b32 s{sT1}, {FL}")
    spin_check("ac", vAV, vAC, "allc", sT1 if D1 else None)
def phase2_new():
    B1, B2, MA = opt["b1"], opt["b2"], opt["madd"]
    for p in range(1, 4):
        ac = vACC2 + (p % 2) * 20
        pa = vACC2 + ((p-1) % 2) * 20
        slots = {(n, j): [] for n in range(12) for j in range(5)}
        if opt["wb64"]:
            for k in range(10):
                def w(k=k):
                    e(f"ds_write_b64 v{vRW if p < 3 else vRW2}, {vr(pa+2*k,2)} offset:{((p-1)%2)*32768 + (k//2)*1024 + (k%2)*8}")
                    LG.issue("red")
                i = 5*N0 + opt["wg0"] + k * opt["wgs"]
                assert i < 5 * min(B1, B2)
                slots[(i // 5, i % 5)].append(w)
        elif p > 0:
            PW = [(1, 0), (1, 2), (1, 4), (2, 1), (2, 3)]
            if opt["wq"]:
                q = str(opt["wq"]).lstrip("x")
                i0, di = int(q[2*p-2], 36), int(q[2*p-1], 36)
                PW = [((i0 + k*di) // 5, (i0 + k*di) % 5) for k in range(5)]
            for jj, pos in enumerate(PW):
                def w(jj=jj):
                    if D1: e(f"ds_write_b128 v{vRW if p < 3 else vRW2}, {vr(pa+4*jj,4)} offset:{((p-1)%2)*32768 + jj*1024}")
                    else: e(f"ds_write_b128 v{vRW}, {vr(pa+4*jj,4)} offset:{(p-1)*5120 + jj*1024}")
                    LG.issue("red")
                slots[(pos[0] + N0, pos[1])].append(w)
                assert pos[0] + N0 < (12, B1, B2)[p-1]
        def rd(pp, j, dst):
            def f():
                e(f"ds_read_b128 {vr(dst, 4)}, v{vRR+pp} offset:{j*1024}"); LG.issue(f"rr{pp}{j}")
            return f
        if p == 2:
            k = 0
            for j in range(5):
                for pp in range(2):
                    slots[(B1 + k // 5, k % 5)].append(rd(pp, j, vH + pp*20 + 4*j)); k += opt["rds"]
            assert B1 + 3 <= 8 or opt["wq"]
            for i in range(20):
                def a(i=i):
                    LG.wait(f"rr1{i//4}")
                    if OW and opt["ada"] == 7:
                        e(f"v_add_f32 v{pa+i}, v{vH+i}, v{vH+20+i}")
                        if i: e(f"v_add_f32 v{pa+i-1}, v{pa+i-1}, v{park(3, (i-1)//4) + (i-1)%4}")
                        if i == 19: e(f"v_add_f32 v{pa+i}, v{pa+i}, v{park(3, 4) + 3}")
                        return
                    if OW:
                        jt, r = i // 4, (i % 2) * 2
                        d = vr(pa + 4*jt + r, 2)
                        if i % 4 < 2: e(f"v_pk_add_f32 {d}, {vr(vH + 4*jt + r, 2)}, {vr(vH + 20 + 4*jt + r, 2)}")
                        else: e(f"v_pk_add_f32 {d}, {d}, {vr(park(3, jt) + r, 2)}")
                        return
                    e(f"v_add_f32 v{pa+i}, v{vH+i}, v{vH+20+i}")
                i2 = 5*opt["ad0"] + i * (60 - 5*opt["ad0"]) // 20
                assert i2 > 5*B1 + (2*(i//4) + 1)*opt["rds"]
                slots[(i2 // 5, i2 % 5)].append(a)
        if p == 3:
            for j in range(5): slots[(B2, j)].append(rd(2, j, vH + 4*j))
            if opt["smd"]:
                MA = -1
                for j in range(5):
                    for r in range(4):
                        def a(j=j, r=r):
                            LG.wait(f"rr2{j}")
                            e(f"v_add_f32 v{ac+4*j+r}, v{ac+4*j+r}, v{vH+4*j+r}")
                        i = (opt["smd"] + j) * 5 + j + 2 + r // 2 if opt["smd"] + 5 < 12 else opt["smd"] * 5 + 3 * j + (2*j) % 5 * 0 + 99
                        slots[(i // 5, i % 5)].append(a)
        K4 = opt["k4"] if p == 3 else 0
        if K4: MA = -1; I0 = len(O)
        for n in range(N0, 12 - (opt["k2"] if K4 else 0)):
            if (p == 2 and n == B1) or (p == 3 and n == B2):
                if p == 3: allc_check(); stamp(k=2)
                LG.drain(); e("s_barrier")
                if p == 3: stamp(k=2)
            VM.wait(f"h{p}_{n}")
            if p * 12 + n == opt["es"]:
                e(f"s_lshl_b32 s6, s{sMT}, 2")
                e(f"s_add_u32 s6, s6, s{sOWN}")
                e(f"s_mul_i32 s6, s6, {16*1280}")
                e(f"s_mul_i32 s7, s{sFT}, 160")
                e(f"s_add_u32 s6, s6, s7")
                e(f"s_cmp_lt_u32 s{sW}, {opt['ost']}")
                e(f"s_cselect_b32 s6, s6, 2621440")
                ax = opt['esaux'].replace('-', '')
                for b in range(2):
                    e(f"buffer_store_dwordx4 {vr(vH+40+4*b,4)}, v{vOUT}, {srd(sOUT)}, s6 offen offset:{64*b} {ax}"); VM.issue("es")
                e(f"buffer_store_dwordx2 {vr(vH+40,2)}, v{vOUT2}, {srd(sOUT)}, s6 offen offset:128 {ax}"); VM.issue("es")
            if n == N0 or (n == 6 and p < 3): stamp(k=2)
            def madd(j):
                LG.wait(f"rr2{j}")
                for r in range(4): e(f"v_add_f32 v{ac+4*j+r}, v{ac+4*j+r}, v{vH+4*j+r}")
            mid = p == 3 and n == MA
            if mid: e("s_nop 3"); madd(0)
            for j in range(5):
                c = "0" if n == 0 and p < 3 else vr(ac+4*j, 4)
                if OW and n == 1 and p < 3: c = vr(park(p, j), 4)
                if mid:
                    if j < 4: madd(j+1)
                    else: e("s_nop 0")
                if j < 4 or n < 12 - K4: mf2(vr(ac+4*j,4), n, j, vr(hreg(p, n),4), c)
                if j == opt["hj"]: hload()
                for f in slots[(n, j)]: f()
                if K4 and opt["a4"] and n == opt["a4"] and j < 4:
                    assert n > 12 - K4 and n > B2
                    LG.wait("rr24"); e(f"v_add_f32 v{ac+16+j}, v{ac+16+j}, v{vH+16+j}")
    if opt["k4"]:
        tile_tail()
        O[I0:] = fix(O[I0:])
    else: out_tail()
def tile_tail():
    K2, K4 = opt["k2"], opt["k4"]
    assert opt["bp"] and opt["t4"] and not HL
    ac = vACC2 + 20; pk = vH + 64
    ML = [(n, j) for g in ((0, 1), (2, 3)) for n in range(12 - K2, 12) for j in g] + [(n, 4) for n in range(12 - K4, 12)]
    def add(j):
        def mk(r):
            def f(): LG.wait(f"rr2{j}"); e(f"v_add_f32 v{ac+4*j+r}, v{ac+4*j+r}, v{vH+4*j+r}")
            return f
        return [mk(r) for r in range(4)]
    def ln(t): return lambda: e(t)
    def cvt(j): return [ln(f"v_cvt_pk_bf16_f32 v{pk+2*j+r}, v{ac+4*j+2*r}, v{ac+4*j+2*r+1}") for r in range(2)]
    def sw(b): return [ln(f"v_permlane32_swap_b32 v{pk+4*b+r}, v{pk+4*b+2+r}") for r in range(2)]
    def bp(b):
        def mk(r):
            def f(): e(f"ds_bpermute_b32 v{pk+16+4*b+r}, v{vL16b}, v{pk+4*b+r}"); LG.issue(f"bp{b}")
            return f
        return [mk(r) for r in (0, 2, 1, 3)]
    def st(b):
        def f():
            LG.wait(f"bp{b}")
            e(f"buffer_store_dwordx4 {vr(pk+16+4*b,4)}, v{vOUT}, {srd(sOUT)}, s{sOB} offen offset:{64*b} {opt['outaux']}")
        return [f]
    fd = opt["fd"]
    Qo = [(0, f) for f in ([] if opt["a4"] else add(4))] + [(fd - 1, f) for f in add(2) + add(3)]
    n23 = len(Qo)
    Qo += [(2*K2 + fd - 1, f) for f in add(0) + add(1) + cvt(0) + cvt(1) + sw(0) + bp(0)]
    Qo += [(4*K2 + fd - 1, f) for f in cvt(2) + cvt(3) + sw(1) + bp(1) + st(0)]
    done = 0
    for i, (n, j) in enumerate(ML):
        if i == 2*K2:
            while done < n23: Qo.pop(0)[1](); done += 1
        VM.wait(f"h3_{n}")
        mf2(vr(ac+4*j,4), n, j, vr(hreg(3, n),4), vr(ac+4*j,4))
        for _ in range(opt["fr"]):
            if Qo and Qo[0][0] <= i: Qo.pop(0)[1](); done += 1
    stamp(); stamp(k=2)
    for _, f in Qo: f()
    for f in cvt(4): f()
    for r in range(4):
        e(f"buffer_store_short{'_d16_hi' if r % 2 else ''} v{pk+8+r//2}, v{vOUT2}, {srd(sOUT)}, s{sOB2} offen offset:{128 + r*1280} {opt['outaux']}")
    st(1)[0]()
def out_tail():
    stamp(); stamp(k=2)
    if opt["enc"]: stamp(True)
    ac = vACC2 + 20
    pk = vH + 64
    def cvt(j):
        for r in range(2): e(f"v_cvt_pk_bf16_f32 v{pk+2*j+r}, v{ac+4*j+2*r}, v{ac+4*j+2*r+1}")
    def swp(b):
        e(f"v_permlane32_swap_b32 v{pk+4*b}, v{pk+4*b+2}")
        e(f"v_permlane32_swap_b32 v{pk+4*b+1}, v{pk+4*b+3}")
        if opt["enc"]:
            e("s_waitcnt lgkmcnt(0)")
            e(f"v_lshrrev_b32 v{vT+1}, 4, v{vL16}")
            for r in range(4):
                i = 4*b + r
                e(f"v_mov_b32 v{vT}, s{72+2*i}")
                e("s_mov_b32 exec_lo, 0")
                e(f"v_mov_b32 v{vT}, s{72+2*min(i+8, 14)}")
                e("s_mov_b32 exec_lo, -1")
                e(f"v_lshrrev_b32 v{vT}, v{vT+1}, v{vT}")
                e(f"v_bfi_b32 v{pk+4*b+r}, 1, v{vT}, v{pk+4*b+r}")
        if opt["ofk"]:
            e(f"buffer_store_dwordx4 {vr(pk+4*b,4)}, v{vL16b if b else vOUT}, {srd(sOUT)}, s{sOB} offen {opt['outaux']}"); return
        e(f"buffer_store_dwordx4 {vr(pk+4*b,4)}, v{vOUT}, {srd(sOUT)}, s{sOB} offen offset:{64*b} {opt['outaux']}")
    if opt["bp"]:
        assert not opt["enc"]
        def sw(b):
            e(f"v_permlane32_swap_b32 v{pk+4*b}, v{pk+4*b+2}")
            e(f"v_permlane32_swap_b32 v{pk+4*b+1}, v{pk+4*b+3}")
        def bp(b, n):
            for r in range(n):
                e(f"ds_bpermute_b32 v{pk+16+4*b+r}, v{vL16b}, v{pk+4*b+r}"); LG.issue(f"bp{b}")
        def st(b):
            LG.wait(f"bp{b}")
            if b < 2: e(f"buffer_store_dwordx4 {vr(pk+16+4*b,4)}, v{vOUT}, {srd(sOUT)}, s{sOB} offen offset:{64*b} {opt['outaux']}")
            else: e(f"buffer_store_dwordx2 {vr(pk+24,2)}, v{vOUT2}, {srd(sOUT)}, s{sOB2} offen offset:128 {opt['outaux']}")
        e("s_nop 3")
        if opt["t4"]:
            cvt(0); cvt(1); cvt(2); sw(0); cvt(3); bp(0, 4); sw(1); cvt(4); bp(1, 4)
            for r in range(4):
                e(f"buffer_store_short{'_d16_hi' if r % 2 else ''} v{pk+8+r//2}, v{vOUT2}, {srd(sOUT)}, s{sOB2} offen offset:{128 + r*1280} {opt['outaux']}")
            st(0); st(1)
            return
        cvt(0); cvt(1); cvt(2); sw(0); cvt(3); bp(0, 4); cvt(4); sw(1); bp(2, 2); bp(1, 4); st(0); st(2); st(1)
        return
    e("s_nop 3")
    cvt(0); cvt(1); cvt(2); swp(0); cvt(3); cvt(4); swp(1)
    e(f"buffer_store_dwordx2 {vr(pk+8,2)}, v{vOUT2}, {srd(sOUT)}, s{sOB2 if D1 else sOB} offen offset:128 {opt['outaux']}")
def phase2_c():
    B1, B2, MA = opt["b1"], opt["b2"], opt["madd"]
    hp = opt["hpre"]
    ML = []
    WD = list(WDL)
    for i in range(48):
        g = [hload]
        k = 12 - len(WD)
        if WD and (i >= opt["w5s"] + (k - (12 - len(WDL))) * opt["w5k"] or i >= 24 + k): g.append(WD.pop(0))
        ML.append(g)
    assert not WD
    TL = []
    while len(TDONE) < 12: TL += tgroup_ops(len(TDONE))
    pre = [f for g in ML[:hp] for f in g]
    if opt["rcl"]:
        assert len(pre) == hp
        pre.append(r_check)
    for f in merge(pre, TL): f()
    del ML[:hp]
    LG.drain()
    stamp()
    A5 = 240
    def wr(blk, jj, src):
        def f():
            e(f"ds_write_b128 v{vRW if blk < 2 else vRW2}, {src} offset:{(blk%2)*32768 + jj*1024}"); LG.issue("red")
        return f
    def rd(pp, j, dst):
        def f():
            e(f"ds_read_b128 {vr(dst, 4)}, v{vRR+pp} offset:{j*1024}"); LG.issue(f"rr{pp}{j}")
        return f
    for p in range(4):
        ac = vACC2 + (p % 2) * 20
        pa = vACC2 + ((p-1) % 2) * 20
        NM = [4, 4, 7, 5][p]
        slots = {(n, j): [] for n in range(12) for j in range(NM)}
        def put(i0, step, fs):
            for k, f in enumerate(fs):
                i = i0 + k * step
                slots[(i // NM, i % NM)].append(f)
        if p > 0:
            ws = [wr(p-1, jj, vr(pa+4*jj, 4)) for jj in range(4)]
            if p == 3: ws += [wr(b, 4, ar(A5+4*b, 4)) for b in range(3)]
            put(NM, 2, ws)
            if p == 3: assert NM + 2*6 < B2 * NM
        if p == 2:
            assert B1 >= 4
            put(B1 * NM, 1, [rd(pp, j, vH + pp*48 + 4*j) for j in range(4) for pp in range(2)])
            def mk(i):
                def a():
                    LG.wait(f"rr1{i//4}")
                    e(f"v_add_f32 v{pa+i}, v{vH+i}, v{vH+48+i}")
                return a
            put(8 * NM, 1, [mk(i) for i in range(16)])
        if p == 3:
            put(B2 * NM, 1, [rd(pp, 4, vH + 16 + 4*pp) for pp in range(3)] + [rd(2, j, vH + 4*j) for j in range(4)])
            def mk(i):
                def a():
                    LG.wait(f"rr{1 + i//4}4")
                    e(f"v_add_f32 v{vH+16+i%4}, v{vH+16+i%4}, v{vH+20+i}")
                return a
            put((MA - 2) * NM, 1, [mk(i) for i in range(8)])
            assert MA - 2 >= B2 + 2
        for n in range(12):
            if (p == 2 and n == B1) or (p == 3 and n == B2):
                if p == 3: allc_check(); stamp(k=2)
                LG.drain(); e("s_barrier")
                if p == 3: stamp(k=2)
            VM.wait(f"h{p}_{n}")
            if n == 0 or (n == 6 and p < 3): stamp(k=2)
            def madd(j):
                LG.wait(f"rr2{j}")
                for r in range(4): e(f"v_add_f32 v{ac+4*j+r}, v{ac+4*j+r}, v{vH+4*j+r}")
            mid = p == 3 and n == MA
            if mid: e("s_nop 3"); madd(0)
            g = ML.pop(0) if ML else []
            for j in range(NM):
                if j < 4 or p == 3:
                    d = vr(ac+4*j, 4); b = p
                    c = "0" if n == 0 and (p < 3 or j == 4) else d
                else:
                    b = (j - 2) % 3
                    d = ar(A5+4*b, 4); c = "0" if n == 0 else d
                    assert not any(f is not hload and f.__defaults__[0] == n for gg in ML + [g] for f in gg), n
                    VM.wait(f"w{n}")
                if mid:
                    if j < 4: madd(j+1)
                    else: e("s_nop 0")
                e(f"v_mfma_f32_16x16x32_bf16 {d}, {ar(n*20+4*min(j,4),4)}, {vr(vH+(b*12+n)*4,4)}, {c}")
                if g and j in (opt["hj"], 3): g.pop(0)()
                for f in slots[(n, j)]: f()
            assert not g
    out_tail()
def phase2_ab():
    OA = opt["owna"]
    NE = opt["ne"]; NL = 12 - NE
    items = [(p, n) for p in range(3) for n in range(NE)] + [(3, n) for n in range(OA)]
    NA = len(items)
    items += [(p, n) for p in range(3) for n in range(NE, 12)] + [(3, n) for n in range(OA, 12)]
    NS = 36; vH2 = 112
    acc = lambda p, j: 24 + 20*p + 4*j
    hp = opt["hpre"]
    HI = list(range(48))
    seen = set()
    I0 = 0
    def own_mf(k):
        if not opt["own"] or k != opt["omp"]: return
        VM.wait("w0")
        for p in range(4):
            LG.wait(f"or{p}")
            for j in range(5):
                e(f"v_mfma_f32_16x16x32_bf16 {vr(acc(p,j),4)}, {ar(4*j,4)}, {vr(vH2+p*4,4)}, 0")
    if opt["own"]:
        items = [(p, 0) for p in range(4)] + [(p, n) for p in range(4) for n in range(1, 12)]
        HI = HI[4:]; I0 = 4; seen = {0, 1, 2, 3}
        for p in range(4):
            e(f"ds_read_b128 {vr(vH2+p*4, 4)}, v{vOW+2} offset:{p*1024}"); LG.issue(f"or{p}")
    def hl():
        if not HI: return
        i = HI.pop(0); p, n = items[i]
        if i == NA and not opt["dfw"]:
            spin_check("hpb", vPOLL, vPA, "pollB", sPOL, opt["nopoll"]); stamp(k=7)
        e(f"buffer_load_dwordx4 {vr(vH2 + (i % NS)*4, 4)}, v{vHB+p}, {srd(sH)}, s{sSIG+n} offen {opt['haux'].replace('-','')}"); VM.issue(f"h{i}")
    if opt["pae"] < 0:
        for f in take(max(0, len(W2L) - opt["pa"])): f()
        e(f"buffer_load_dword v{vPOLL}, v{vPA}, {srd(sH)}, s{sPOL} offen sc1"); VM.issue("poll")
        for f in take(opt["ec"]): f()
    own_mf(0)
    VM.wait("poll")
    stamp(); stamp(k=7)
    spin_check("hp", vPOLL, vPA, "poll", sPOL, opt["nopoll"])
    stamp(); stamp(k=2); stamp(k=7)
    e(f"s_add_u32 s{sPOL}, s{sPOL}, {FLB}")
    allc_load()
    for _ in range(hp): hl()
    for f in take(opt["wsk"]): f()
    own_mf(1)
    stamp()
    slots = {(i, j): [] for i in range(48) for j in range(5)}
    if opt["own"]: NA = 37
    L3 = NA + 3*NL
    for p in range(3):
        i0 = NA + NL*(p+1) if NL else NE*(p+1)
        if opt["own"]: i0 = 4 + 11*(p+1)
        for jj, (di, j) in enumerate([(1, 0), (1, 2), (1, 4), (2, 1), (2, 3)]):
            def w(jj=jj, p=p):
                e(f"ds_write_b128 v{vRW}, {vr(acc(p,jj),4)} offset:{p*5120 + jj*1024}"); LG.issue("red")
            slots[(i0 + di, j)].append(w)
    IB = L3 + opt["rb"]
    k = 0
    rest = 48 - IB
    assert rest >= 1
    rds = []
    for j in range(5):
        for pp in range(3):
            def f(pp=pp, j=j):
                e(f"ds_read_b128 {vr(acc(pp,j), 4)}, v{vRR+pp} offset:{j*1024}"); LG.issue(f"rr{j}")
            rds.append(f)
    per = 1 if rest >= 7 else 3
    for k, f in enumerate(rds): slots[(IB + k // per // 5, k // per % 5)].append(f)
    adds = []
    for j in range(5):
        for pp in (1, 2):
            for r in (0, 2):
                def a(j=j, pp=pp, r=r):
                    LG.wait(f"rr{j}")
                    if opt["epk"]: e(f"v_pk_add_f32 {vr(acc(0,j)+r,2)}, {vr(acc(0,j)+r,2)}, {vr(acc(pp,j)+r,2)}")
                    else:
                        for z in range(2): e(f"v_add_f32 v{acc(0,j)+r+z}, v{acc(0,j)+r+z}, v{acc(pp,j)+r+z}")
                adds.append(a)
    MA = 47 if rest >= 7 else None
    if MA:
        a0 = (MA - 3) * 5 - 5
        for k, f in enumerate(adds): slots[((a0 + k) // 5, (a0 + k) % 5)].append(f)
    for i, (p, n) in enumerate(items):
        if i < I0: continue
        if i == IB:
            allc_check(); stamp(k=2)
            LG.drain(); e("s_barrier")
            stamp(k=2)
        assert i not in HI and not any(f.__defaults__[0] == n for f in W2L), (i, n)
        late = max((f"h{i}", f"w{n}"), key=lambda t: len(VM.q) - 1 - VM.q[::-1].index(t) if t in VM.q else -1)
        VM.wait(late)
        if i % 8 == 0: stamp(k=2)
        def madd(j):
            if opt["epk"]:
                for r in (0, 2): e(f"v_pk_add_f32 {vr(acc(3,j)+r,2)}, {vr(acc(3,j)+r,2)}, {vr(acc(0,j)+r,2)}")
            else:
                for r in range(4): e(f"v_add_f32 v{acc(3,j)+r}, v{acc(3,j)+r}, v{acc(0,j)+r}")
        mid = i == MA
        if mid: e("s_nop 3"); madd(0)
        for j in range(5):
            c = vr(acc(p,j), 4) if p in seen else "0"
            if mid:
                if j < 4: madd(j+1)
                else: e("s_nop 1")
            e(f"v_mfma_f32_16x16x32_bf16 {vr(acc(p,j),4)}, {ar(n*20+4*j,4)}, {vr(vH2+(i % NS)*4,4)}, {c}")
            if j == opt["hj"]: hl()
            if j == 3 and i % opt["wr"] == 0:
                for f in take(1): f()
            if j == 4 and i == opt["pb"] and not opt["dfw"]:
                e(f"buffer_load_dword v{vPOLL}, v{vPA}, {srd(sH)}, s{sPOL} offen sc1"); VM.issue("pollB")
            for f in slots[(i, j)]: f()
        seen.add(p)
    stamp(); stamp(k=2); stamp(k=7)
    if opt["enc"]: stamp(True)
    ac = acc(3, 0)
    pk = vH2 + 64
    if not MA:
        for f in adds: f()
        for j in range(5): madd(j)
    def cvt(j):
        for r in range(2): e(f"v_cvt_pk_bf16_f32 v{pk+2*j+r}, v{ac+4*j+2*r}, v{ac+4*j+2*r+1}")
    def swp(b):
        e(f"v_permlane32_swap_b32 v{pk+4*b}, v{pk+4*b+2}")
        e(f"v_permlane32_swap_b32 v{pk+4*b+1}, v{pk+4*b+3}")
        if opt["enc"]:
            e("s_waitcnt lgkmcnt(0)")
            e(f"v_lshrrev_b32 v{vT+1}, 4, v{vL16}")
            for r in range(4):
                i = 4*b + r
                e(f"v_mov_b32 v{vT}, s{72+2*i}")
                e("s_mov_b32 exec_lo, 0")
                e(f"v_mov_b32 v{vT}, s{72+2*min(i+8, 14)}")
                e("s_mov_b32 exec_lo, -1")
                e(f"v_lshrrev_b32 v{vT}, v{vT+1}, v{vT}")
                e(f"v_bfi_b32 v{pk+4*b+r}, 1, v{vT}, v{pk+4*b+r}")
        e(f"buffer_store_dwordx4 {vr(pk+4*b,4)}, v{vOUT}, {srd(sOUT)}, s{sOB} offen offset:{64*b} {opt['outaux']}")
    e("s_nop 3")
    cvt(0); cvt(1); cvt(2); swp(0); cvt(3); cvt(4); swp(1)
    e(f"buffer_store_dwordx2 {vr(pk+8,2)}, v{vOUT2}, {srd(sOUT)}, s{sOB} offen offset:128 {opt['outaux']}")
assert opt["tail"]
if opt["ab"] or opt["dfw"]: phase2_ab()
elif opt["c5"]: phase2_c()
else: phase2_new()
e(f"s_or_b32 s{sT0}, s{sW}, s2")
e(f"s_cmp_lg_u32 s{sT0}, 0")
e("s_cbranch_scc1 L_nobump")
e(f"s_add_u32 s{sE}, s{sE}, 1")
e(f"v_mov_b32 v{vT}, s{sE}")
e(f"s_mov_b32 s{sT0}, {EP}")
e("s_mov_b64 exec, 1")
e(f"buffer_store_dword v{vT}, off, {srd(sH)}, s{sT0}")
e("s_mov_b64 exec, -1")
e("L_nobump:")
if opt["enc"]: sys.stderr.write(f"enc stamps {NST[0]}\n")
if opt["stamps"] and not opt["enc"]:
    e("s_waitcnt vmcnt(0)")
    stamp(k=-1); stamp(True)
    ns = NST[0]
    assert 72 + 2*ns <= 102
    e("s_waitcnt lgkmcnt(0)")
    if opt["rt"]:
        e(f"s_lshl_b32 s{sT0}, s2, 2")
        e(f"s_add_u32 s{sT0}, s{sT0}, s{sW}")
        e(f"s_mul_i32 s{sT0}, s{sT0}, {ns*8}")
    else:
        e(f"s_cmp_lg_u32 s{sW}, {opt['stamps']-1}")
        e("s_cbranch_scc1 L_end")
        e(f"s_mul_i32 s{sT0}, s2, {ns*8}")
    e("s_mov_b64 exec, 1")
    e(f"s_add_u32 s{sT0}, s{sT0}, {0x8000000 - (opt['wso'] << 20)}")
    e(f"v_mov_b32 v{vT}, s{sT0}")
    for i in range(ns):
        e(f"v_mov_b32 v24, s{72+2*i}"); e(f"v_mov_b32 v25, s{73+2*i}")
        e(f"global_store_dwordx2 v{vT}, v[24:25], s[12:13] offset:{i*8}"); e("s_nop 1")
    sys.stderr.write(f"nstamps {ns}\n")
if LATE:
    e("s_endpgm")
    O.extend(LATE)
e("L_end:")

hdr = f"""; FFN out = silu(x @ w1) @ w2, one launch, 256 workgroups (one per CU).
; @launch grid=(256,1,1) block=(256,1,1) lds=163840
.amdgcn_target "amdgcn-amd-amdhsa--gfx950"
.text
.globl {NAME}
.p2align 8
.type {NAME},@function
{NAME}:
"""
ftr = f"""s_endpgm
.section .rodata,"a"
.p2align 6
.amdhsa_kernel {NAME}
  .amdhsa_next_free_vgpr 512
  .amdhsa_next_free_sgpr 102
  .amdhsa_accum_offset 256
  .amdhsa_group_segment_fixed_size 0
  .amdhsa_kernarg_size 48
  .amdhsa_user_sgpr_count 2
  .amdhsa_user_sgpr_kernarg_segment_ptr 1
  .amdhsa_system_sgpr_workgroup_id_x 1
.end_amdhsa_kernel
"""
body = "\n".join(("" if l.endswith(":") else "    ") + l.rstrip() for l in O)
open(sys.argv[1], "w").write(hdr + body + "\n" + ftr)
```

```python
import sys
from haz import fix
NAME = "standalone__dense_activation_silu__prompt_kernel"
opt = dict(al=0, wu=-1, pat='', pat1='', hid=0, r16=0, ro=0, sil=0, sild=2, silk='1', e7=0, e7a=10, e7b=10, fp='', qm=0, swab=0, wtc=0, rmap=0, nw=-1, wx='', wxp=99, acb=0, acp=-1, wq='', rds=1, ad0=8, t4=0, k4=0, k2=3, fr=3, fd=2, a4=0, bp=0, ofk=0, w5aux='sc1', rpk=0, pl2=7, nom=0, owv=1, ow=0, owp=2, ada=7, wb64=0, wg0=3, wgs=2, smd=0, dst=-1, dn=4, st0=0, nhw=0, wtx=0, tfm=0, tpm=0, tsil=0, c5=0, w5s=8, w5k=2, rcl=0, w5d=0, tin=0, sw=-1, sws=-1, swp=0, swn=15, ems=1, pqd=0, tlate=0, tmix=1, wt=-1, wts=-1, wtp=99, wth=0, wtaux='', d1=0, d7=0, w5p=4, tl=8, rpq=0, waux='', es=-1, esaux='sc1', ot=-1, otm=1, enc=0, w0p=0, own=0, omp=0, dfw=0, ne=8, clr=-1, clrs='', spec=0, fw=12, wl=0, rsp=99, rrp=0, fb=0, tch=0, la=4, tp0=0, tpos=8, th=1, ns=3, n7=0, rcs=8, epk=1, fk=0, ost=0, pae=-1, wsk=0, afs=0, ab=0, afp=0, pa=20, pb=6, wr=1, owna=0, rb=4, skipw=0, m16=0, rtm=0, po="", rsaux="sc1", emu="", emv=1, fs=128, dw=8, eq=0, ec=4, epre=16, eil="h12w9", pfm=3, stamps=0, rot=1, rot2=1, pf=1, outaux="", map=2, raux="nt", xaux="", haux="sc1", hsaux="sc1", hs2="", wb=0, wso=0, sp=0, spg="", nord=0, nomf1=0, norp=0, pk=1, tail=1, b1=4, b2=4, madd=8, pt=0, fst=0, tab="x037", nost=0, novalu=0, nomf2=0, noh=0, hj=1, w2aux="sc1", w1aux="",
           sa=0, ma=10, sb=0, mb=10, mx=0, n8=8, n9=8, nb=0, post=0, pollq=8, hpre=8, sep=0, sts=0, rpos=0, rls=0, rjs=2, rpp=0, rps=7, rck=0, nopoll=0, rfs=4, sl=0, head=50, nf0=4, pre3=0, rt=0, own2=2, ntst=10, mid=2, xlin=0, nor=0)
for a in sys.argv[2:]:
    k, v = a.split("=")
    assert k in opt, k
    opt[k] = int(v) if v.lstrip("-").isdigit() else v.replace("_", " ")
if opt["own"]: opt["dfw"] = 1; opt["ne"] = 12; assert opt["fb"] and opt["own2"] == 2
D1 = opt['d1']
OW = opt['ow']
if OW: assert D1 and opt['own2'] == 2 and opt['post'] <= 12 and not opt['c5'] and not opt['w5d'] and not opt['smd'] and str(opt['nb']) == '0'
if D1: assert not (opt['own'] or opt['ab'] or opt['dfw'] or opt['spec'] or opt['eq'] or opt['tch'] or opt['po']) and opt['fb'] and opt['ns'] == 3
O = []
def e(s): O.append(s)
NST = [0]
def stamp(rt=False, k=0):
    if not opt["stamps"]: return
    if not rt and NST[0] > 1 and k != opt["sts"] and k != -1: return
    i = NST[0]; NST[0] += 1
    e(f"s_memrealtime s[{72+2*i}:{73+2*i}]" if rt or opt["rt"] or opt["rtm"] else f"s_memtime s[{72+2*i}:{73+2*i}]")

class Q:
    def __init__(s, name, mx): s.name = name; s.mx = mx; s.q = []
    def issue(s, tag): s.q.append(tag)
    def wait(s, tag):
        if tag not in s.q: return
        i = len(s.q) - 1 - s.q[::-1].index(tag)
        n = min(len(s.q) - 1 - i, s.mx)
        e(f"s_waitcnt {s.name}({n})")
        s.q = s.q[len(s.q)-n:] if n else []
    def drain(s):
        e(f"s_waitcnt {s.name}(0)"); s.q = []
VM = Q("vmcnt", 63); LG = Q("lgkmcnt", 15)

FL = 0x600000; EP = 0x608000; RFL = 0x610000; W2F = 0x620000; HREC = 0x800000
if opt['spec']: FL = 0x800000; HREC = 0x820000
FS = opt["fs"]
if FS > 128: FL = 0x800000; HREC = FL + 256 * FS
FLB = 0x200000
if opt["ab"]: HREC = 0x808000
RED = 98304; RB = 98304 if opt['ns'] == 3 else 131072; CNT = 159744
NSL = opt['ns']
sX, sW1, sW2, sOUT, sH = 16, 20, 24, 28, 32
(sW, sMT, sFT, sKX, sKW, sXB, sWB, sXE, sM0, sT0, sT1, sE, sTAG, sHS, sHS2, sFLG, sPOL, sW2B, sOWN, sROT,
 sRS, sRD, sWO, sL2E) = range(36, 60)
sSIG = 60
sPK = 4; sOB = 3; sRFL = 14; sSPIN = 15
vL16 = 1; vL16b = 2; vOUT = 3; vOUT2 = 4; vRW = 5; vRP = 6; vHS = 7
vPOLL = 8; vL4 = 9; vPA = 19
vRR = 10
vHB = 13
vT = 17
vCN = 20; vONE = 21; vAV = 22; vAC = 23
vDX = 24; vDW = 26; vDR = 32
vA = 34; vB = 36
vRA = 44
vTM = 46
vACC1 = 64; vAF = 112; vBF = 160; vS = 176; vRF = 192
vWD = 56; vWT = 60; sW5B = 6; sOB2 = 7; vRW2 = 20
vH = 64; vACC2 = 24; vOW = 240; OWN = 32768; sHS1 = 6
def mf2(d, n, j, b, c):
    a = ar(n*20+4*j, 4)
    if j == 4 and opt["t4"]: a, b = b, a
    e(f"v_mfma_f32_16x16x32_bf16 {d}, {a}, {b}, {c}")
def srd(r): return f"s[{r}:{r+3}]"
def vr(r, n): return f"v[{r}:{r+n-1}]"
def ar(r, n): return f"a[{r}:{r+n-1}]"
def capture(fn):
    global O
    sv = O; O = []; fn(); r = O; O = sv; return r

e("s_cmp_ge_u32 s2, 256")
e("s_cbranch_scc1 L_end")
stamp(True); stamp()
e("s_load_dwordx8 s[4:11], s[0:1], 0")
e("s_load_dwordx2 s[12:13], s[0:1], 40")
L, Wv = vTM, vTM+1
t0, t1, t2, t3 = vTM+2, vTM+3, vTM+4, vTM+5
e(f"v_and_b32 v{L}, 63, v0")
e(f"v_lshrrev_b32 v{Wv}, 6, v0")
e(f"v_lshlrev_b32 v{vL16}, 4, v{L}")
e(f"v_readfirstlane_b32 s{sW}, v{Wv}")
if opt["pf"]:
    e("s_getpc_b64 s[14:15]")
    e("L_pc:")
    e(f"s_lshr_b32 s{sT0}, s2, 3")
    e(f"s_and_b32 s{sT0}, s{sT0}, {opt['pfm']}")
    e(f"s_lshl_b32 s{sT0}, s{sT0}, 12")
    e(f"v_lshl_add_u32 v{t0}, v0, 4, s{sT0}")
    e(f"v_min_u32 v{t0}, L_end-L_pc-16, v{t0}")
    e(f"global_load_dwordx4 v[252:255], v{t0}, s[14:15]")
    VM.issue("pf")
fa = opt["map"]
e(f"s_and_b32 s{sT0}, s2, 7")
e(f"s_lshr_b32 s{sT1}, s2, 3")
e(f"s_and_b32 s{sFT}, s{sT1}, {(1<<fa)-1}")
e(f"s_lshr_b32 s{sMT}, s{sT1}, {fa}")
if opt["rot"] == 3:
    tb = str(opt["tab"]).lstrip("x")
    tv = sum(int(c) << (4*i) for i, c in enumerate((tb * 16)[:16]))
    e(f"s_mul_i32 s{sKX}, s{sMT}, {opt['ma']}")
    e(f"s_mul_i32 s{sT1}, s{sFT}, {opt['mb']}")
    e(f"s_add_u32 s{sKX}, s{sKX}, s{sT1}")
    e(f"s_lshl_b32 s{sKX}, s{sKX}, 2")
    e(f"s_mov_b32 s{sSIG}, {tv & 0xffffffff}")
    e(f"s_mov_b32 s{sSIG+1}, {tv >> 32}")
    e(f"s_lshr_b64 s[{sSIG}:{sSIG+1}], s[{sSIG}:{sSIG+1}], s{sKX}")
    e(f"s_and_b32 s{sKX}, s{sSIG}, 15")
elif opt["rot"]:
    e(f"s_lshr_b32 s{sKX}, s{sMT}, {opt['sa']}")
    e(f"s_mul_i32 s{sKX}, s{sKX}, {opt['ma']}")
    e(f"s_lshr_b32 s{sT1}, s{sFT}, {opt['sb']}")
    e(f"s_mul_i32 s{sT1}, s{sT1}, {opt['mb']}")
    e(f"s_add_u32 s{sKX}, s{sKX}, s{sT1}")
    if opt['mx']:
        e(f"s_mul_i32 s{sT1}, s{sT0}, {opt['mx']}")
        e(f"s_add_u32 s{sKX}, s{sKX}, s{sT1}")
    e(f"s_lshr_b32 s{sKX}, s{sKX}, 2")
    e(f"s_mul_i32 s{sT1}, s{sKX}, 205")
    e(f"s_lshr_b32 s{sT1}, s{sT1}, 11")
    e(f"s_mul_i32 s{sT1}, s{sT1}, 10")
    e(f"s_sub_u32 s{sKX}, s{sKX}, s{sT1}")
else:
    e(f"s_mov_b32 s{sKX}, 0")
if opt["ab"]:
    e(f"s_lshl_b32 s{sROT}, s{sMT}, 2")
elif opt["rot2"] == 3:
    e(f"s_and_b32 s{sROT}, s{sMT}, 1")
    e(f"s_mul_i32 s{sROT}, s{sROT}, 6")
elif opt["rot2"] == 4:
    e(f"s_lshr_b32 s{sROT}, s{sMT}, 1")
    e(f"s_mul_i32 s{sROT}, s{sROT}, 3")
elif opt["rot2"] == 5:
    e(f"s_and_b32 s{sROT}, s{sMT}, 3")
elif opt["rot2"] == 6:
    e(f"s_mul_i32 s{sROT}, s{sMT}, 3")
    e(f"s_lshr_b32 s{sROT}, s{sROT}, 3")
    e(f"s_lshl_b32 s{sROT}, s{sROT}, 2")
elif opt["rot2"] == 7:
    e(f"s_mul_i32 s{sROT}, s{sMT}, 12")
    e(f"s_lshr_b32 s{sROT}, s{sROT}, 3")
    e(f"s_bitcmp1_b32 s2, 1")
    e(f"s_addc_u32 s{sROT}, s{sROT}, 0")
elif opt["rot2"] == 2:
    e(f"s_and_b32 s{sROT}, s{sMT}, 3")
    e(f"s_mul_i32 s{sROT}, s{sROT}, 3")
elif opt["rot2"]:
    e(f"s_mul_i32 s{sROT}, s{sMT}, 12")
    e(f"s_lshr_b32 s{sROT}, s{sROT}, {5-fa}")
else:
    e(f"s_mov_b32 s{sROT}, 0")
e(f"s_and_b32 s{sT1}, s{sT0}, {(8>>fa)-1}")
e(f"s_lshl_b32 s{sT1}, s{sT1}, {fa}")
e(f"s_add_u32 s{sFT}, s{sFT}, s{sT1}")
e(f"s_lshr_b32 s{sT1}, s{sT0}, {3-fa}")
e(f"s_lshl_b32 s{sT1}, s{sT1}, {5-fa}")
e(f"s_add_u32 s{sMT}, s{sMT}, s{sT1}")
e(f"s_mul_i32 s{sXB}, s{sMT}, 81920")
e(f"s_mul_i32 s{sWB}, s{sFT}, 384")
e(f"s_add_u32 s{sXE}, s{sXB}, 1280")
e(f"s_mul_i32 s{sKW}, s{sKX}, {64*3072}")
e(f"s_add_u32 s{sKW}, s{sKW}, s{sWB}")
e(f"s_lshl_b32 s{sKX}, s{sKX}, 7")
e(f"s_add_u32 s{sKX}, s{sKX}, s{sXB}")
G = vTM+6
e(f"v_lshrrev_b32 v{G}, 4, v{L}")
e(f"v_lshrrev_b32 v{t0}, 3, v{L}")
e(f"v_lshl_add_u32 v{t0}, v{Wv}, 4, v{t0}")
e(f"v_mul_u32_u24 v{t0}, 1280, v{t0}")
e(f"v_and_b32 v{t1}, 7, v{L}")
e(f"v_xor_b32 v{t1}, v{t1}, v{G}")
e(f"v_lshl_add_u32 v{vDX}, v{t1}, 4, v{t0}")
e(f"v_xor_b32 v{t1}, 4, v{t1}")
e(f"v_lshl_add_u32 v{vDX+1}, v{t1}, 4, v{t0}")
e(f"v_add_u32 v{vDX+1}, {8*1280-1024}, v{vDX+1}")
if opt["xlin"]:
    e(f"v_lshl_add_u32 v{vDX}, v{Wv}, 11, v{vL16}")
    e(f"v_mov_b32 v{vDX+1}, v{vDX}")
    e(f"s_and_b32 s{sT0}, s{sFT}, 3")
    e(f"s_mul_i32 s{sT0}, s{sT0}, {opt['xlin']}")
    e(f"s_lshr_b32 s{sT0}, s{sT0}, 2")
    e(f"s_lshl_b32 s100, s{sT0}, 13")
    e(f"s_add_u32 s100, s100, s{sXB}")
    e(f"s_add_u32 s101, s{sXB}, 81920")
e(f"v_mul_u32_u24 v{t3}, {16*3072}, v{Wv}")
for i in range(3):
    if i: e(f"v_add_u32 v{t0}, {64*i}, v{L}")
    src = t0 if i else L
    e(f"v_mul_u32_u24 v{t1}, 2731, v{src}")
    e(f"v_lshrrev_b32 v{t1}, 16, v{t1}")
    e(f"v_mul_u32_u24 v{t2}, 24, v{t1}")
    e(f"v_sub_u32 v{t0}, v{src}, v{t2}")
    e(f"v_and_b32 v{t2}, 2, v{t1}")
    e(f"v_lshlrev_b32 v{t2}, 1, v{t2}")
    e(f"v_xor_b32 v{t0}, v{t0}, v{t2}")
    e(f"v_mul_u32_u24 v{t1}, 3072, v{t1}")
    e(f"v_lshl_add_u32 v{t0}, v{t0}, 4, v{t1}")
    e(f"v_add_u32 v{t0}, v{t0}, v{t3}")
    if i: e(f"v_subrev_u32 v{vDW+i}, {i*1024}, v{t0}")
    else: e(f"v_mov_b32 v{vDW}, v{t0}")
    if opt["r16"]: e(f"v_xor_b32 v{t0}, 16, v{t0}")
    e(f"v_add_u32 v{vDW+3+i}, {8*3072 - ((i+3)%4)*1024}, v{t0}")
if opt["e7"]:
    e(f"s_lshr_b32 s{sT0}, s{sMT}, 1")
    e(f"s_and_b32 s{sT1}, s{sMT}, 1")
    e(f"s_lshl1_add_u32 s{sT1}, s{sFT}, s{sT1}")
    e(f"s_mul_i32 s{sXB}, s{sT0}, 163840")
    e(f"s_mul_i32 s{sWB}, s{sT1}, {192 if opt['e7'] == 1 else 128}")
    e(f"s_and_b32 s{sT0}, s{sT0}, 3")
    e(f"s_and_b32 s{sT1}, s{sT1}, 7")
    e(f"s_mul_i32 s{sT0}, s{sT0}, {opt['e7a']}")
    e(f"s_mul_i32 s{sT1}, s{sT1}, {opt['e7b']}")
    e(f"s_add_u32 s{sKX}, s{sT0}, s{sT1}")
    e(f"s_lshr_b32 s{sKX}, s{sKX}, 2")
    e(f"s_mul_i32 s{sT1}, s{sKX}, 205")
    e(f"s_lshr_b32 s{sT1}, s{sT1}, 11")
    e(f"s_mul_i32 s{sT1}, s{sT1}, 10")
    e(f"s_sub_u32 s{sKX}, s{sKX}, s{sT1}")
    e(f"s_add_u32 s{sXE}, s{sXB}, 1280")
    e(f"s_mul_i32 s{sKW}, s{sKX}, {64*3072}")
    e(f"s_add_u32 s{sKW}, s{sKW}, s{sWB}")
    e(f"s_lshl_b32 s{sKX}, s{sKX}, 7")
    e(f"s_add_u32 s{sKX}, s{sKX}, s{sXB}")
    e(f"v_mul_u32_u24 v{t0}, {16*1280}, v{Wv}")
    e(f"v_add_u32 v{vDX}, v{vDX}, v{t0}")
    e(f"v_add_u32 v{vDX+1}, v{vDX+1}, v{t0}")
    e(f"v_add_u32 v{vDW+4}, {16*1280}, v{vDX}")
    e(f"v_add_u32 v{vDW+5}, {16*1280}, v{vDX+1}")
    for i in range(3):
        e(f"v_add_u32 v{t0}, {64*i}, v{L}")
        if opt["e7"] == 1:
            e(f"v_mul_u32_u24 v{t1}, 5462, v{t0}")
            e(f"v_lshrrev_b32 v{t1}, 16, v{t1}")
            e(f"v_mul_u32_u24 v{t1}, {3072 - 192}, v{t1}")
        else:
            e(f"v_lshrrev_b32 v{t1}, 3, v{t0}")
            e(f"v_mul_u32_u24 v{t1}, {2048 - 128}, v{t1}")
        e(f"v_lshl_add_u32 v{t0}, v{t0}, 4, v{t1}")
        e(f"v_add_u32 v{t0}, v{t0}, v{t3}")
        e(f"v_subrev_u32 v{vDW+i}, {i*1024}, v{t0}")
vTC = 250
if opt["tch"]:
    e(f"v_lshrrev_b32 v{t0}, 1, v{L}")
    e(f"v_mul_u32_u24 v{t1}, 1280, v{t0}")
    e(f"v_mul_u32_u24 v{t2}, 43, v{t0}")
    e(f"v_lshrrev_b32 v{t2}, 7, v{t2}")
    e(f"v_mul_u32_u24 v{t2}, {3072-384}, v{t2}")
    e(f"v_lshl_add_u32 v{t2}, v{t0}, 7, v{t2}")
    e(f"s_and_b32 s{sT0}, s{sFT}, 3")
    e(f"s_lshl_b32 s{sT0}, s{sT0}, 1")
    e(f"s_lshr_b32 s{sT1}, s{sW}, 1")
    e(f"s_add_u32 s{sT0}, s{sT0}, s{sT1}")
    e(f"s_mul_i32 s{sT0}, s{sT0}, {8*1280}")
    e(f"s_and_b32 s{sWO}, s{sMT}, 7")
    e(f"s_lshl_b32 s{sWO}, s{sWO}, 1")
    e(f"s_add_u32 s{sWO}, s{sWO}, s{sT1}")
    e(f"s_mul_i32 s{sWO}, s{sWO}, {4*3072}")
    e(f"s_add_u32 s{sT1}, s{sWB}, {640*3072}")
    e(f"s_bitcmp1_b32 s{sW}, 0")
    e(f"s_cselect_b64 vcc, -1, 0")
    e(f"v_cndmask_b32 v{vTC}, v{t1}, v{t2}, vcc")
    e(f"s_cselect_b32 s{sT0}, s{sWO}, s{sT0}")
    e(f"s_mov_b32 s{sWO}, {0xffff if opt['th'] else 0x5555}")
    e(f"s_cselect_b32 s{sWO}, {0xffffff if opt['th'] else 0x555555}, s{sWO}")
    e(f"s_cselect_b32 s{sHS}, s{sKW}, s{sKX}")
    e(f"s_movk_i32 s{sHS2}, 128")
    e(f"s_cselect_b32 s{sHS2}, {64*3072}, s{sHS2}")
    e(f"v_and_b32 v{t0}, 1, v{L}")
    e(f"v_lshl_add_u32 v{vTC}, v{t0}, 6, v{vTC}")
    e(f"v_add_u32 v{vTC}, s{sT0}, v{vTC}")
    e(f"s_cselect_b32 vcc_lo, s{sT1}, s{sXE}")
    e(f"s_cselect_b32 vcc_hi, s{sWB}, s{sXB}")
e(f"s_lshl_b32 s{sM0}, s{sW}, 13")
CLR = opt["clr"] >= 0 or opt["clrs"]
sCL = sHS
vNAN = 244
if CLR:
    e(f"s_lshl_b32 s{sT0}, s{sMT}, 2")
    e(f"s_lshr_b32 s{sT1}, s{sFT}, 1")
    e(f"s_add_u32 s{sT0}, s{sT0}, s{sT1}")
    e(f"s_lshl_b32 s{sT0}, s{sT0}, 2")
    e(f"s_add_u32 s{sT0}, s{sT0}, s{sW}")
    e(f"s_lshl_b32 s{sT0}, s{sT0}, 1")
    e(f"s_and_b32 s{sT1}, s{sFT}, 1")
    e(f"s_add_u32 s{sT0}, s{sT0}, s{sT1}")
    e(f"s_mul_i32 s{sT0}, s{sT0}, 6144")
    e(f"v_add_u32 v248, s{sT0}, v{vL16}")
    e(f"v_add_u32 v249, 3072, v248")
    for r in range(4): e(f"v_mov_b32 v{vNAN+r}, -1")
def clr_ops():
    def mk(i):
        def f():
            e(f"buffer_store_dwordx4 {vr(vNAN,4)}, v{248 + i//3}, {srd(sH)}, 0 offen offset:{(i%3)*1024} sc1"); VM.issue("clr")
        return f
    return [mk(i) for i in range(6)]
CLO = clr_ops()
e(f"s_mov_b32 s{sSPIN}, {EP}")
for r, n in ((sX, 2621440), (sW1, 1966080), (sW2, 1966080), (sOUT, 2621440), (sH, HREC)):
    e(f"s_mov_b32 s{r+2}, {n}"); e(f"s_mov_b32 s{r+3}, 0x20000")
e("s_waitcnt lgkmcnt(0)")
if opt["wso"]:
    e(f"s_add_u32 s12, s12, {opt['wso'] << 20}"); e("s_addc_u32 s13, s13, 0")
for r, p in ((sW2, 8), (sX, 4), (sW1, 6), (sOUT, 10), (sH, 12)):
    e(f"s_mov_b64 s[{r}:{r+1}], s[{p}:{p+1}]")
if opt["tch"]:
    e(f"s_bitcmp1_b32 s{sW}, 0")
    e(f"s_cselect_b64 s[8:9], s[6:7], s[4:5]")
    e(f"s_cselect_b32 s10, s{sW1+2}, s{sX+2}")
    e("s_mov_b32 s11, 0x20000")
    e(f"s_mov_b32 s6, s{sHS}")
    e(f"s_mov_b32 s7, s{sHS2}")
def touch():
    e("s_add_u32 s6, s6, s7")
    e("s_cmp_eq_u32 s6, vcc_lo")
    e("s_cselect_b32 s6, vcc_hi, s6")
    e(f"s_mov_b32 exec_lo, s{sWO}")
    e("s_mov_b32 exec_hi, 0")
    e(f"buffer_load_dword v251, v{vTC}, s[8:11], s6 offen"); VM.issue("tch")
    e("s_mov_b64 exec, -1")
stamp()
e(f"s_load_dword s{sE}, s[12:13], s{sSPIN}")

def adv_k():
    if opt["xlin"]:
        e(f"s_add_u32 s100, s100, 8192")
        e(f"s_cmp_eq_u32 s100, s101")
        e(f"s_cselect_b32 s100, s{sXB}, s100")
    e(f"s_add_u32 s{sKX}, s{sKX}, 128")
    e(f"s_add_u32 s{sKW}, s{sKW}, {64*3072}")
    e(f"s_cmp_eq_u32 s{sKX}, s{sXE}")
    e(f"s_cselect_b32 s{sKX}, s{sXB}, s{sKX}")
    e(f"s_cselect_b32 s{sKW}, s{sWB}, s{sKW}")
def dma_ops(st):
    base = (st % NSL) * 32768
    def mk(i):
        def f():
            if i == 0: e(f"s_add_u32 m0, s{sM0}, {base+6144}"); e("s_nop 0")
            if i < 2:
                e(f"buffer_load_dwordx4 v{vDX+i}, {srd(sX)}, s{100 if opt['xlin'] else sKX} offen offset:{i*1024} {opt['xaux'] if st < opt['ntst'] else ''} lds")
            elif opt["e7"] and i >= 5:
                if i == 5: e(f"s_add_u32 m0, s{sM0}, {base+4096}"); e("s_nop 0"); return
                e(f"buffer_load_dwordx4 v{vDW+i-2}, {srd(sX)}, s{sKX} offen offset:{(i-6)*1024} lds")
            else:
                j = i - 2
                e(f"buffer_load_dwordx4 v{vDW+j}, {srd(sW1)}, s{sKW} offen offset:{(j%4)*1024} {opt['w1aux'] if st < opt['ntst'] else ''} lds")
            VM.issue(f"st{st}")
            if i == 1: e(f"s_add_u32 m0, s{sM0}, {base}"); e("s_nop 0")
            if i == 5: e(f"s_add_u32 m0, s{sM0}, {base+4096}"); e("s_nop 0")
            if i == 7 and st < 9: adv_k()
        return f
    return [mk(i) for i in range(8)]

def setup2():
    R, C = t0, t1
    u0, u1, u2 = vTM+7, vTM+8, vTM+9
    if D1:
        RJ = 2
        if opt["rmap"]:
            RJ = 9
            e(f"s_lshr_b32 s9, s2, 4")
            e(f"s_lshl_b32 s9, s9, 3")
            e(f"s_and_b32 s{sT0}, s2, 7")
            e(f"s_add_u32 s9, s9, s{sT0}")
            if opt["rmap"] > 2: e(f"s_xor_b32 s9, s9, {0x60}")
            e(f"s_lshr_b32 s{sT0}, s2, 2")
            e(f"s_xor_b32 s{sT0}, s{sT0}, s2")
            e(f"s_bitcmp{(opt['rmap'] - 1) % 2}_b32 s{sT0}, 3")
            e(f"s_cselect_b32 s9, s9, 255")
        e(f"s_lshr_b32 s{sT1}, s{RJ}, 1")
        e(f"s_and_b32 s{sT0}, s{RJ}, 1")
        if opt["rpk"]:
            e(f"s_mul_i32 s{sRFL}, s{sT1}, 43")
            e(f"s_lshr_b32 s{sRFL}, s{sRFL}, 9")
            e(f"s_mul_i32 s{sRFL}, s{sRFL}, {128 // opt['rpk'] - 12}")
            e(f"s_add_u32 s{sRFL}, s{sRFL}, s{sT1}")
            e(f"s_mul_i32 s{sRFL}, s{sRFL}, {opt['rpk']}")
            e(f"s_lshl_b32 s{sRS}, s{sT0}, 9")
            e(f"s_add_u32 s{sRFL}, s{sRFL}, s{sRS}")
        else:
            e(f"s_mul_i32 s{sRFL}, s{sT0}, 48")
            e(f"s_add_u32 s{sRFL}, s{sRFL}, s{sT1}")
            e(f"s_lshl_b32 s{sRFL}, s{sRFL}, 7")
        if OW:
            e(f"s_mul_i32 s{sRS}, s{sT1}, 43")
            e(f"s_lshr_b32 s{sRS}, s{sRS}, 9")
            e(f"s_mul_i32 s{sRS}, s{sRS}, 47")
            e(f"s_lshl_b32 s{sT1}, s{sT1}, 2")
            e(f"s_sub_u32 s{sT1}, s{sT1}, s{sRS}")
        e(f"s_lshl_b32 s{sRS}, s{sT1}, 2")
        e(f"s_add_u32 s{sRS}, s{sRS}, s{sW}")
        e(f"s_mul_i32 s{sRS}, s{sRS}, 10240")
        e(f"s_lshl_b32 s{sT0}, s{sT0}, 7")
        e(f"s_add_u32 s{sRS}, s{sRS}, s{sT0}")
        e(f"s_add_u32 s{sRS}, s{sRS}, 1024")
        e(f"s_lshl_b32 s{sRD}, s{RJ}, 2")
        e(f"s_add_u32 s{sRD}, s{sRD}, s{sW}")
        e(f"s_lshl_b32 s{sRD}, s{sRD}, 10")
        e(f"s_add_u32 s{sRD}, s{sRD}, {W2F}")
        e(f"s_cmp_lt_u32 s{RJ}, {0 if opt['nor'] else 96}")
        e(f"s_cselect_b32 s{sRS}, s{sRS}, 1966080")
        e(f"s_cselect_b32 s{sRD}, s{sRD}, {HREC}")
        e(f"s_cselect_b32 s{sRFL}, s{sRFL}, {HREC - RFL}")
    else:
        e(f"s_and_b32 s{sT0}, s2, 63")
        e(f"s_mul_i32 s{sT1}, s{sT0}, 205")
        e(f"s_lshr_b32 s{sT1}, s{sT1}, 10")
        e(f"s_mul_i32 s{sRS}, s{sT1}, 5")
        e(f"s_sub_u32 s{sRS}, s{sT0}, s{sRS}")
        e(f"s_lshr_b32 s{sRD}, s2, 6")
        e(f"s_mul_i32 s{sRFL}, s{sRD}, 5")
        e(f"s_add_u32 s{sRFL}, s{sRFL}, s{sRS}")
        e(f"s_lshl_b32 s{sRFL}, s{sRFL}, 4")
        e(f"s_add_u32 s{sRFL}, s{sRFL}, s{sT1}")
        e(f"s_lshl_b32 s{sRFL}, s{sRFL}, 7")
        if opt["own"]:
            e(f"s_mul_i32 s6, s{sT1}, 6")
            e(f"s_add_u32 s6, s6, s{sRD}")
            e(f"s_lshr_b32 s7, s{sT1}, 1")
            e(f"s_mul_i32 s7, s7, 6")
            e(f"s_and_b32 s8, s{sT1}, 1")
            e(f"s_add_u32 s7, s7, s8")
            e(f"s_mul_i32 s8, s{sRD}, 12")
            e(f"s_add_u32 s7, s7, s8")
            e(f"s_sub_u32 s7, s7, 20")
            e(f"s_cmp_lt_u32 s{sT1}, 8")
            e(f"s_cselect_b32 s6, s6, s7")
            e(f"s_mul_i32 s6, s6, 40960")
        e(f"s_mul_i32 s{sRD}, s{sRD}, 12")
        e(f"s_add_u32 s{sT1}, s{sT1}, s{sRD}")
        e(f"s_mul_i32 s{sT1}, s{sT1}, 40960")
        e(f"s_lshl_b32 s{sRD}, s{sRS}, 13")
        e(f"s_add_u32 s{sRD}, s{sRD}, s{sT1}")
        e(f"s_lshl_b32 s{sRS}, s{sRS}, 8")
        e(f"s_add_u32 s{sRS}, s{sRS}, s{6 if opt['own'] else sT1}")
        e(f"s_lshl_b32 s{sT1}, s{sW}, 11")
        e(f"s_add_u32 s{sRD}, s{sRD}, s{sT1}")
        e(f"s_add_u32 s{sRD}, s{sRD}, {W2F}")
        e(f"s_cmp_lt_u32 s{sT0}, {0 if opt['nor'] else 60}")
        e(f"s_cselect_b32 s{sRS}, s{sRS}, 1966080")
        e(f"s_cselect_b32 s{sRD}, s{sRD}, {HREC}")
    if opt["pt"] & 1:
        e(f"s_min_u32 s{sT1}, s{sRS}, {1966080-4}")
        e(f"s_load_dword s6, s[8:9], s{sT1}")
    if opt["pt"] & 2:
        e(f"s_mul_i32 s{sT1}, s{sMT}, {64*3072}")
        e(f"s_load_dword s6, s[12:13], s{sT1}")
    if opt["pt"] & 4:
        e(f"s_load_dword s6, s[10:11], s{sXB}")
    if opt["pt"] & 8:
        e(f"s_load_dword s6, s[12:13], s{sRD}")
    if D1:
        e(f"v_lshrrev_b32 v{t0}, 3, v{L}")
        e(f"v_mul_u32_u24 v{t0}, 1280, v{t0}")
        e(f"v_and_b32 v{t1}, 7, v{L}")
        e(f"v_lshlrev_b32 v{t2}, 1, v{G}")
        e(f"v_xor_b32 v{t1}, v{t1}, v{t2}")
        e(f"v_lshl_add_u32 v{vWD}, v{t1}, 4, v{t0}")
        for i in range(1, 4): e(f"v_add_u32 v{vWD+i}, {i*(10240-1024)}, v{vWD}")
    else:
        e(f"v_lshl_add_u32 v{t0}, v{Wv}, 3, v{G}")
        e(f"v_mul_u32_u24 v{t0}, 1280, v{t0}")
        e(f"v_and_b32 v{t1}, 15, v{L}")
        e(f"v_lshlrev_b32 v{t2}, 1, v{G}")
        e(f"v_xor_b32 v{t1}, v{t1}, v{t2}")
        e(f"v_lshl_add_u32 v{vDR}, v{t1}, 4, v{t0}")
        e(f"v_xor_b32 v{t1}, 8, v{t1}")
        e(f"v_lshl_add_u32 v{vDR+1}, v{t1}, 4, v{t0}")
        e(f"v_add_u32 v{vDR+1}, {4*1280-1024}, v{vDR+1}")
    e(f"v_bfe_u32 v{R}, v{L}, 2, 2")
    e(f"v_and_b32 v{C}, 3, v{L}")
    if opt["r16"]:
        e(f"v_and_b32 v{u1}, 1, v{G}")
        e(f"v_lshl_add_u32 v{u0}, v{u1}, 3, v{R}")
        e(f"v_mul_u32_u24 v{u0}, 384, v{u0}")
        e(f"v_lshl_add_u32 v{u0}, v{u1}, 4, v{u0}")
        e(f"v_lshrrev_b32 v{t2}, 5, v{L}")
        e(f"v_lshl_add_u32 v{u0}, v{t2}, 13, v{u0}")
        e(f"v_lshrrev_b32 v{u1}, 1, v{R}")
        e(f"v_xor_b32 v{u1}, v{u1}, v{Wv}")
        e(f"v_and_b32 v{u1}, 1, v{u1}")
        e(f"v_lshl_add_u32 v{u0}, v{u1}, 6, v{u0}")
        e(f"v_lshrrev_b32 v{u1}, 1, v{C}")
        e(f"v_lshl_add_u32 v{u0}, v{u1}, 5, v{u0}")
        e(f"v_and_b32 v{u1}, 1, v{C}")
        e(f"v_lshl_add_u32 v{vA}, v{u1}, 3, v{u0}")
        e(f"v_xor_b32 v{vA+1}, 16, v{vA}")
        for k in range(2): e(f"v_add_u32 v{vA+2+k}, 65536, v{vA+k}")
        e(f"v_and_b32 v{u0}, 2, v{Wv}")
        e(f"v_lshlrev_b32 v{u0}, 13, v{u0}")
        e(f"v_and_b32 v{u2}, 15, v{L}")
        e(f"v_lshl_add_u32 v{u0}, v{u2}, 7, v{u0}")
        e(f"v_add_u32 v{u0}, 6144, v{u0}")
        e(f"v_lshrrev_b32 v{u1}, 1, v{u2}")
        e(f"v_xor_b32 v{u1}, v{u1}, v{G}")
        e(f"v_lshl_add_u32 v{vB+4}, v{u1}, 4, v{u0}")
        e(f"v_xor_b32 v{vB+5}, 64, v{vB+4}")
        for k in range(2): e(f"v_add_u32 v{vB+6+k}, 65536, v{vB+4+k}")
    else:
        e(f"v_lshrrev_b32 v{u0}, 1, v{G}")
        e(f"v_lshl_add_u32 v{u0}, v{u0}, 3, v{R}")
        e(f"v_mul_u32_u24 v{u0}, 384, v{u0}")
        e(f"v_lshrrev_b32 v{u1}, 1, v{R}")
        e(f"v_xor_b32 v{u1}, v{u1}, v{Wv}")
        e(f"v_and_b32 v{u1}, 1, v{u1}")
        e(f"v_lshl_add_u32 v{u0}, v{u1}, 6, v{u0}")
        e(f"v_and_b32 v{u1}, 1, v{G}")
        e(f"v_lshl_add_u32 v{u0}, v{u1}, 5, v{u0}")
        e(f"v_lshl_add_u32 v{vA}, v{C}, 3, v{u0}")
        e(f"v_add_u32 v{vA+1}, 65536, v{vA}")
        e(f"v_and_b32 v{u0}, 2, v{Wv}")
        e(f"v_add_u32 v{u0}, v{u0}, v{u1}")
        e(f"v_lshlrev_b32 v{u0}, 13, v{u0}")
        e(f"v_and_b32 v{u2}, 15, v{L}")
        e(f"v_lshl_add_u32 v{u0}, v{u2}, 7, v{u0}")
        e(f"v_add_u32 v{u0}, 6144, v{u0}")
        e(f"v_lshrrev_b32 v{u1}, 1, v{u2}")
        e(f"v_lshrrev_b32 v{t2}, 5, v{L}")
        e(f"v_xor_b32 v{u1}, v{u1}, v{t2}")
        e(f"v_lshl_add_u32 v{vB}, v{u1}, 4, v{u0}")
        for k in range(1, 4): e(f"v_xor_b32 v{vB+k}, {32*k}, v{vB}")
        for k in range(4): e(f"v_add_u32 v{vB+4+k}, 65536, v{vB+k}")
    if D1:
        e(f"v_and_b32 v{u1}, 1, v{G}")
        e(f"v_lshl_add_u32 v{u1}, v{u1}, 2, v{R}")
        e(f"v_lshlrev_b32 v{u0}, 11, v{t2}")
        e(f"v_lshl_add_u32 v{u0}, v{u1}, 7, v{u0}")
        e(f"v_lshrrev_b32 v{u1}, 1, v{u1}")
        e(f"v_lshl_add_u32 v{u0}, v{u1}, 5, v{u0}")
        e(f"v_and_b32 v{u1}, 1, v{C}")
        e(f"v_lshl_add_u32 v{u0}, v{u1}, 4, v{u0}")
        e(f"v_lshrrev_b32 v{u1}, 1, v{C}")
        e(f"v_lshl_add_u32 v{u0}, v{u1}, 3, v{u0}")
        e(f"v_add_u32 v{u0}, {RB}, v{u0}")
        e(f"v_lshlrev_b32 v{t3}, 5, v{Wv}")
        e(f"v_xor_b32 v{vRA}, v{u0}, v{t3}")
        e(f"v_add_u32 v{vWT}, s{sM0}, v{u0}")
        for j in range(1, 4): e(f"v_xor_b32 v{vWT+j}, {32*j}, v{vWT}")
    else:
        e(f"v_and_b32 v{u1}, 1, v{G}")
        e(f"v_lshl_add_u32 v{u1}, v{u1}, 2, v{R}")
        e(f"v_lshlrev_b32 v{u0}, 12, v{t2}")
        e(f"v_lshl_add_u32 v{u0}, v{u1}, 8, v{u0}")
        e(f"v_lshlrev_b32 v{t3}, 1, v{Wv}")
        e(f"v_xor_b32 v{u1}, v{u1}, v{t3}")
        e(f"v_lshl_add_u32 v{u0}, v{u1}, 5, v{u0}")
        e(f"v_and_b32 v{u1}, 1, v{C}")
        e(f"v_lshl_add_u32 v{u0}, v{u1}, 4, v{u0}")
        e(f"v_lshrrev_b32 v{u1}, 1, v{C}")
        e(f"v_lshl_add_u32 v{u0}, v{u1}, 3, v{u0}")
        e(f"v_add_u32 v{vRA}, {RB}, v{u0}")
        e(f"v_xor_b32 v{vRA+1}, 32, v{vRA}")
    if not D1:
        e(f"v_mov_b32 v{vCN}, {CNT}")
        e(f"v_mov_b32 v{vONE}, 0")
        e(f"ds_write_b32 v{vCN}, v{vONE}"); LG.issue("cnt")
    if opt["ab"]: e(f"ds_write_b32 v{vCN}, v{vONE} offset:4"); LG.issue("cnt")
    for i in range(48): e(f"v_mov_b32 v{vACC1+i}, 0")
    if not D1: e(f"v_mov_b32 v{vONE}, 1")
    e(f"v_and_b32 v{u1}, 1, v{G}")
    if opt["r16"]: e(f"v_add_u32 v{vHS}, 12288, v{vL16}")
    else:
        e(f"v_mul_u32_u24 v{u0}, 12288, v{u1}")
        e(f"v_lshl_add_u32 v{u0}, v{t2}, 8, v{u0}")
        e(f"v_lshl_add_u32 v{vHS}, v{u2}, 4, v{u0}")
    if opt["own"]:
        e(f"s_and_b32 s{sT0}, s{sW}, 1")
        e(f"s_and_b32 s{sT1}, s{sW}, 2")
        e(f"s_sub_u32 s{sT1}, s{sT1}, s{sT0}")
        e(f"s_add_u32 s{sT1}, s{sT1}, 3")
        e(f"v_add_u32 v{u0}, s{sT1}, v{u1}")
        e(f"v_and_b32 v{u0}, 3, v{u0}")
        e(f"s_lshl_b32 s{sT0}, s{sT0}, 12")
        e(f"s_add_u32 s{sT0}, s{sT0}, {OWN}")
        e(f"v_lshl_add_u32 v{u0}, v{u0}, 10, s{sT0}")
        e(f"v_lshl_add_u32 v{u0}, v{t2}, 8, v{u0}")
        e(f"v_lshl_add_u32 v{vOW}, v{u2}, 4, v{u0}")
        e(f"v_xor_b32 v{vOW+1}, 2048, v{vOW}")
        e(f"s_lshl_b32 s{sT0}, s{sW}, 12")
        e(f"s_add_u32 s{sT0}, s{sT0}, {OWN}")
        e(f"v_add_u32 v{vOW+2}, s{sT0}, v{vL16}")
    if OW:
        e(f"s_and_b32 s{sT0}, s{sW}, 1")
        e(f"s_lshl1_add_u32 s{sT0}, s{sFT}, s{sT0}")
        e(f"s_and_b32 s{sT0}, s{sT0}, 3")
        e(f"s_and_b32 s{sT1}, s{sW}, 2")
        e(f"s_sub_u32 s{sT1}, s{sT1}, s{sT0}")
        e(f"s_add_u32 s{sT1}, s{sT1}, 7")
        e(f"v_add_u32 v{u0}, s{sT1}, v{u1}")
        e(f"v_and_b32 v{u0}, 3, v{u0}")
        e(f"s_lshl_b32 s{sT0}, s{sT0}, 13")
        e(f"s_add_u32 s{sT0}, s{sT0}, {65536+4096}")
        e(f"v_lshl_add_u32 v{u0}, v{u0}, 10, s{sT0}")
        e(f"v_lshl_add_u32 v{u0}, v{t2}, 8, v{u0}")
        e(f"v_lshl_add_u32 v{vOW}, v{u2}, 4, v{u0}")
        e(f"v_xor_b32 v{vOW+1}, {16384+2048}, v{vOW}")
    e(f"v_mul_u32_u24 v{u0}, 1280, v{u2}")
    e(f"v_lshl_add_u32 v{vOUT}, v{G}, 4, v{u0}")
    e(f"v_lshl_add_u32 v{u0}, v{u1}, 4, v{u0}")
    e(f"v_lshl_add_u32 v{vOUT2}, v{t2}, 3, v{u0}")
    if opt["bp"]:
        e(f"v_lshrrev_b32 v{vL16b}, 2, v{L}")
        e(f"v_mul_u32_u24 v{u0}, 1280, v{vL16b}")
        e(f"v_lshl_add_u32 v{vOUT}, v{C}, 4, v{u0}")
        e(f"v_lshl_add_u32 v{vL16b}, v{C}, 4, v{vL16b}")
        e(f"v_lshlrev_b32 v{vL16b}, 2, v{vL16b}")
        e(f"v_and_b32 v{vOUT2}, 1, v{C}")
        e(f"v_lshl_add_u32 v{u0}, v{vOUT2}, 4, v{u0}")
        e(f"v_lshrrev_b32 v{vOUT2}, 1, v{C}")
        e(f"v_lshl_add_u32 v{vOUT2}, v{vOUT2}, 3, v{u0}")
    if opt["t4"]:
        e(f"v_mul_u32_u24 v{u0}, {4*1280}, v{G}")
        e(f"v_lshl_add_u32 v{u0}, v{C}, 1, v{u0}")
        e(f"v_and_b32 v{vOUT2}, 1, v{R}")
        e(f"v_lshl_add_u32 v{u0}, v{vOUT2}, 4, v{u0}")
        e(f"v_lshrrev_b32 v{vOUT2}, 1, v{R}")
        e(f"v_lshl_add_u32 v{vOUT2}, v{vOUT2}, 3, v{u0}")
    if opt["ofk"]:
        sh = 1 + opt["ofk"]
        e(f"v_lshrrev_b32 v{u0}, {sh}, v{L}")
        e(f"v_mul_u32_u24 v{u0}, 1280, v{u0}")
        e(f"v_and_b32 v{vOUT}, {(1 << sh) - 1}, v{L}")
        e(f"v_lshl_add_u32 v{vOUT}, v{vOUT}, 4, v{u0}")
        e(f"v_add_u32 v{vL16b}, {64 if sh == 2 else 10240}, v{vOUT}")
        e(f"v_lshrrev_b32 v{u0}, 2, v{L}")
        e(f"v_mul_u32_u24 v{u0}, 1280, v{u0}")
        e(f"v_and_b32 v{vOUT2}, 3, v{L}")
        e(f"v_lshl_add_u32 v{vOUT2}, v{vOUT2}, 3, v{u0}")
    if not D1: e(f"v_add_u32 v{vL16b}, 4096, v{vL16}")
    if D1:
        e(f"s_lshr_b32 s{sT0}, s{sFT}, 2")
        e(f"s_lshl_b32 s{sT0}, s{sT0}, 2")
        e(f"s_add_u32 s{sT0}, s{sT0}, s{sW}")
        e(f"s_mul_i32 s{sT0}, s{sT0}, {128 if opt['rpk'] else 12*128}")
        e(f"v_min_u32 v{vRP}, 11, v{u2}")
        e(f"v_lshl_add_u32 v{vRP}, v{vRP}, {dict([(0,7),(4,2),(8,3)])[opt['rpk']]}, s{sT0}")
    else:
        e(f"s_mul_i32 s{sT0}, s{sFT}, 5")
        e(f"v_lshl_add_u32 v{u0}, v{u1}, 2, s{sT0}")
        e(f"v_lshrrev_b32 v{u0}, 3, v{u0}")
        e(f"v_mad_u32_u24 v{u0}, v{Wv}, 5, v{u0}")
        e(f"v_min_u32 v{vRP}, 11, v{u2}")
        e(f"v_lshlrev_b32 v{vRP}, 7, v{vRP}")
        e(f"v_lshl_add_u32 v{vRP}, v{u0}, 11, v{vRP}")
    e(f"v_lshlrev_b32 v{vL4}, 2, v{L}")
    if opt["own"] or OW:
        e(f"v_and_b32 v{vPA}, {opt['pl2']}, v{L}")
        e(f"v_lshlrev_b32 v{vPA}, 7, v{vPA}")
    else: e(f"v_mul_u32_u24 v{vPA}, {FS}, v{u1}")
    if D1:
        assert FS == 128
        e(f"v_lshlrev_b32 v{vAC}, 7, v0")
        e(f"s_add_u32 s{sT0}, s{sM0}, 32768")
        e(f"v_add_u32 v{vRW}, s{sT0}, v{vL16}")
        e(f"v_add_u32 v{vRW2}, 65536, v{vRW}")
        for p in range(3):
            e(f"s_sub_u32 s{sT0}, s{sW}, {1+p}")
            e(f"s_and_b32 s{sT0}, s{sT0}, 3")
            e(f"s_lshl_b32 s{sT0}, s{sT0}, 13")
            e(f"s_add_u32 s{sT0}, s{sT0}, {32768*(p+1)}")
            e(f"v_add_u32 v{vRR+p}, s{sT0}, v{vL16}")
        e(f"s_mul_i32 s{sW2B}, s{sW}, {40960 if OW else 12*40960}")
        e(f"s_lshl_b32 s{sT0}, s{sFT}, 7")
        e(f"s_add_u32 s{sW2B}, s{sW2B}, s{sT0}")
        e(f"s_mul_i32 s{sW5B}, s{sW}, 96")
        e(f"s_add_u32 s{sW5B}, s{sW5B}, s{sFT}")
        e(f"s_lshl_b32 s{sW5B}, s{sW5B}, 10")
        e(f"s_add_u32 s{sW5B}, s{sW5B}, {W2F}")
    else:
        e(f"v_mul_u32_u24 v{u0}, 205, v{L}")
        e(f"v_lshrrev_b32 v{u0}, 10, v{u0}")
        e(f"v_sub_u32 v{vAC}, v{Wv}, v{u0}")
        e(f"v_mad_i32_i24 v{vAC}, v{vAC}, 5, v{L}")
        e(f"v_lshlrev_b32 v{vAC}, 11, v{vAC}")
        e(f"v_lshl_add_u32 v{vAC}, v{u0}, 7, v{vAC}")
        e(f"s_mul_i32 s{sT0}, s{sW}, 15360")
        e(f"s_add_u32 s{sT0}, s{sT0}, {RED}")
        e(f"v_add_u32 v{vRW}, s{sT0}, v{vL16}")
        for p in range(3):
            e(f"s_sub_u32 s{sT0}, s{sW}, {1+p}")
            e(f"s_and_b32 s{sT0}, s{sT0}, 3")
            e(f"s_mul_i32 s{sT0}, s{sT0}, 15360")
            e(f"s_add_u32 s{sT0}, s{sT0}, {RED + p*5120}")
            e(f"v_add_u32 v{vRR+p}, s{sT0}, v{vL16}")
        e(f"s_mul_i32 s{sW2B}, s{sW}, {12*40960}")
        e(f"s_mul_i32 s{sT0}, s{sFT}, 5120")
        e(f"s_add_u32 s{sW2B}, s{sW2B}, s{sT0}")
        e(f"s_add_u32 s{sW2B}, s{sW2B}, {W2F}")
    if opt["ab"]:
        e(f"s_mov_b32 s{sSIG+6}, 0x98763210"); e(f"s_mov_b32 s{sSIG+7}, 0x98763210")
        e(f"s_lshr_b64 s[{sSIG+6}:{sSIG+7}], s[{sSIG+6}:{sSIG+7}], s{sROT}")
        e(f"s_mov_b32 s{sSIG+7}, s{sSIG+6}")
        e(f"s_and_b32 s{sROT}, s{sROT}, 12")
        e(f"s_lshr_b32 s{sSIG+11}, 0xba54ba54, s{sROT}")
        for n in range(12):
            src = sSIG+7 if n < 8 else sSIG+11
            e(f"s_bfe_u32 s{sSIG+n}, s{src}, {0x40000 + 4*(n%8)}")
            e(f"s_lshl_b32 s{sSIG+n}, s{sSIG+n}, 10")
    if opt["own"]:
        e(f"s_lshl_b32 s{sSIG}, s{sFT}, 10")
        for n in range(1, 12):
            e(f"s_cmp_eq_u32 s{sROT}, s{sFT}")
            e(f"s_addc_u32 s{sROT}, s{sROT}, 0")
            e(f"s_lshl_b32 s{sSIG+n}, s{sROT}, 10")
            if n < 11:
                e(f"s_add_u32 s{sROT}, s{sROT}, 1")
                e(f"s_cmp_ge_u32 s{sROT}, 12")
                e(f"s_cselect_b32 s{sROT}, 0, s{sROT}")
    if OW:
        e(f"s_lshl_b32 s{sT0}, s{sFT}, 1")
        e(f"s_sub_u32 s{sT0}, s{sW}, s{sT0}")
        e(f"s_and_b32 s{sT0}, s{sT0}, 3")
        e(f"s_mul_i32 s{sT1}, s{sFT}, 6")
        e(f"s_add_u32 s{sT0}, s{sT0}, s{sT1}")
        e(f"s_lshr_b32 s{sT0}, s{sT0}, 2")
        e(f"s_lshl_b32 s{sSIG}, s{sT0}, 10")
        for n in range(1, 12):
            e(f"s_cmp_ge_u32 s{sROT}, s{sT0}")
            e(f"s_addc_u32 s{sT1}, s{sROT}, 0")
            e(f"s_lshl_b32 s{sSIG+n}, s{sT1}, 10")
            if n < 11:
                e(f"s_add_u32 s{sROT}, s{sROT}, 1")
                e(f"s_cmp_ge_u32 s{sROT}, 11")
                e(f"s_cselect_b32 s{sROT}, 0, s{sROT}")
    for n in range(12 if not opt["ab"] and not opt["own"] and not OW else 0):
        e(f"s_lshl_b32 s{sSIG+n}, s{sROT}, 10")
        if n < 11:
            e(f"s_add_u32 s{sROT}, s{sROT}, 1")
            e(f"s_cmp_ge_u32 s{sROT}, 12")
            e(f"s_cselect_b32 s{sROT}, 0, s{sROT}")
    if opt["own2"] == 2:
        e(f"s_mov_b32 s{sOWN}, s{sW}")
    elif opt["own2"] == 3:
        e(f"s_and_b32 s{sOWN}, s{sFT}, 1")
        e(f"s_add_u32 s{sOWN}, s{sW}, s{sOWN}")
    elif opt["own2"]:
        e(f"s_lshl_b32 s{sOWN}, s{sFT}, 1")
        e(f"s_add_u32 s{sOWN}, s{sW}, s{sOWN}")
    else: e(f"s_add_u32 s{sOWN}, s{sW}, s{sFT}")
    e(f"s_and_b32 s{sOWN}, s{sOWN}, 3")
    e(f"s_lshl_b32 s{sT1}, s{sMT}, 2")
    e(f"s_add_u32 s{sT1}, s{sT1}, s{sW}")
    if opt["own"] or OW: e(f"s_lshl_b32 s{sPOL}, s{sMT}, 10")
    else: e(f"s_mul_i32 s{sPOL}, s{sT1}, {2*FS}")
    e(f"s_add_u32 s{sPOL}, s{sPOL}, {FL}")
    e(f"s_lshl_b32 s{sT1}, s{sT1}, 2")
    for p in range(4):
        e(f"s_add_u32 s{sT0}, s{sOWN}, {1+p}")
        e(f"s_and_b32 s{sT0}, s{sT0}, 3")
        e(f"s_add_u32 s{sT0}, s{sT0}, s{sT1}")
        e(f"s_mul_i32 s{sT0}, s{sT0}, 12288")
        e(f"v_add_u32 v{vHB+p}, s{sT0}, v{vL16}")
    e(f"s_lshl_b32 s{sOB}, s{sMT}, 2")
    e(f"s_add_u32 s{sOB}, s{sOB}, s{sOWN}")
    e(f"s_mul_i32 s{sOB}, s{sOB}, {16*1280}")
    if D1:
        e(f"s_lshl_b32 s{sT0}, s{sFT}, 5")
        e(f"s_add_u32 s{sOB2}, s{sOB}, s{sT0}")
        e(f"s_add_u32 s{sOB2}, s{sOB2}, {1024-128}")
    e(f"s_mul_i32 s{sT0}, s{sFT}, {128 if D1 else 160}")
    e(f"s_add_u32 s{sOB}, s{sOB}, s{sT0}")
    if opt["ost"]:
        e(f"s_cmp_ge_u32 s{sW}, {opt['ost']}")
        e(f"s_cselect_b32 s{sOB}, s{sOB}, 2621440")
    e(f"s_lshl_b32 s{sT0}, s{sMT}, 2")
    e(f"s_lshr_b32 s{sT1}, s{sFT}, 1")
    e(f"s_add_u32 s{sT0}, s{sT0}, s{sT1}")
    e(f"s_mul_i32 s{sFLG}, s{sT0}, {2*FS}")
    e(f"s_lshl_b32 s{sT0}, s{sT0}, 2")
    e(f"s_and_b32 s{sT1}, s{sW}, 2")
    e(f"s_add_u32 s{sT0}, s{sT0}, s{sT1}")
    e(f"s_mul_i32 s{sHS}, s{sT0}, 12288")
    e(f"s_and_b32 s{sT0}, s{sFT}, 1")
    e(f"s_mul_i32 s{sT1}, s{sT0}, {FS}")
    e(f"s_add_u32 s{sFLG}, s{sFLG}, s{sT1}")
    e(f"s_add_u32 s{sFLG}, s{sFLG}, {FL}")
    e(f"s_mul_i32 s{sT0}, s{sT0}, 6")
    e(f"s_and_b32 s{sT1}, s{sW}, 1")
    e(f"s_add_u32 s{sT0}, s{sT0}, s{sT1}")
    e(f"s_lshl_b32 s{sT0}, s{sT0}, 10")
    e(f"s_add_u32 s{sHS}, s{sHS}, s{sT0}")
    e(f"s_add_u32 s{sHS2}, s{sHS}, 4096")
    if opt["own"]:
        e(f"s_and_b32 s{sT0}, s{sFT}, 1")
        e(f"s_lshl_b32 s{sT0}, s{sT0}, 12")
        e(f"s_sub_u32 s{sHS2}, s{sHS}, s{sT0}")
        e(f"s_add_u32 s{sHS2}, s{sHS2}, 8192")
        e(f"s_lshl_b32 s{sT0}, s{sMT}, 2")
        e(f"s_add_u32 s{sT0}, s{sT0}, s{sT1}")
        e(f"s_lshl_b32 s{sT0}, s{sT0}, 2")
        e(f"s_and_b32 s{sT1}, s{sW}, 2")
        e(f"s_add_u32 s{sT0}, s{sT0}, s{sT1}")
        e(f"s_mul_i32 s{sT0}, s{sT0}, 12")
        e(f"s_add_u32 s{sT0}, s{sT0}, s{sFT}")
        e(f"s_lshl_b32 s{sHS}, s{sT0}, 10")
        e(f"s_add_u32 s{sHS1}, s{sHS}, 98304")
    if OW:
        for q, r in enumerate((sHS, 10, sHS2)):
            e(f"s_mul_i32 s{sT0}, s{sFT}, 6")
            e(f"s_and_b32 s{sT1}, s{sW}, 1")
            e(f"s_add_u32 s{sT0}, s{sT0}, s{sT1}")
            if q: e(f"s_add_u32 s{sT0}, s{sT0}, {2*q}")
            e(f"s_and_b32 s{sT1}, s{sT0}, 3")
            e(f"s_lshl2_add_u32 s{sT1}, s{sMT}, s{sT1}")
            e(f"s_and_b32 s{r}, s{sW}, 2")
            e(f"s_lshl2_add_u32 s{sT1}, s{sT1}, s{r}")
            e(f"s_mul_i32 s{sT1}, s{sT1}, 12")
            e(f"s_lshr_b32 s{sT0}, s{sT0}, 2")
            e(f"s_add_u32 s{sT0}, s{sT0}, s{sT1}")
            e(f"s_lshl_b32 s{r}, s{sT0}, 10")
    e(f"s_add_u32 s{sRFL}, s{sRFL}, {RFL}")
    e(f"s_cmp_eq_u32 s{sW}, 0")
    e(f"s_cselect_b32 s{sRFL}, s{sRFL}, {HREC}")
    e(f"s_mov_b32 s{sL2E}, 0xbfb8aa3b")
    if opt["pk"]:
        e(f"s_mov_b32 s{sPK}, 0xbfb8aa3b"); e(f"s_mov_b32 s{sPK+1}, 0xbfb8aa3b")
def r_loads():
    if D1:
        e(f"s_lshr_b32 m0, s{sM0}, 3")
        e(f"s_add_u32 m0, m0, {RB}")
        e("s_nop 0")
        e(f"buffer_load_dwordx4 v{vWD}, {srd(sW2)}, s{sRS} offen {opt['raux']} lds"); VM.issue("rld")
        return
    e(f"s_lshr_b32 m0, s{sM0}, 2")
    e(f"s_add_u32 m0, m0, {RB}")
    e("s_nop 0")
    for i in range(2):
        e(f"buffer_load_dwordx4 v{vDR+i}, {srd(sW2)}, s{sRS} offen offset:{i*1024} {opt['raux']} lds"); VM.issue("rld")
def r_reads():
    if D1:
        for t in range(2):
            e(f"ds_read_b64_tr_b16 {vr(vRF + 2*t, 2)}, v{vRA} offset:{t*1024}"); LG.issue("rrd")
        return
    for ee in range(2):
        for t in range(2):
            e(f"ds_read_b64_tr_b16 {vr(vRF + 4*ee + 2*t, 2)}, v{vRA+ee} offset:{t*2048}"); LG.issue("rrd")
def r_stores():
    LG.wait("rrd")
    for ee in range(1 if D1 else 2):
        e(f"buffer_store_dwordx4 {vr(vRF+4*ee,4)}, v{vL16}, {srd(sH)}, s{sRD} offen offset:{ee*1024} {opt['rsaux']}"); VM.issue("rst")
S2 = capture(setup2)
groups = []
for l in S2:
    if l.startswith("s_cselect") or (groups and groups[-1][-1].startswith(("s_cmp", "s_bitcmp"))): groups[-1].append(l)
    else: groups.append([l])
ST0 = []
def pre_order(spec):
    kx, kw = (sKX, 6, 8), (sKW, 7, 9)
    def nxt(i):
        a, b = (i + 1) % 3, i
        e(f"s_add_u32 s{kx[a]}, s{kx[b]}, 128")
        e(f"s_add_u32 s{kw[a]}, s{kw[b]}, {64*3072}")
        e(f"s_cmp_eq_u32 s{kx[a]}, s{sXE}")
        e(f"s_cselect_b32 s{kx[a]}, s{sXB}, s{kx[a]}")
        e(f"s_cselect_b32 s{kw[a]}, s{sWB}, s{kw[a]}")
    ops = []
    for ch in spec:
        if ch in "abc":
            st = "abc".index(ch)
            for i in range(2):
                def f(st=st, i=i):
                    if i == 0: e(f"s_add_u32 m0, s{sM0}, {st*32768+6144}"); e("s_nop 0")
                    e(f"buffer_load_dwordx4 v{vDX+i}, {srd(sX)}, s{kx[st]} offen offset:{i*1024} {opt['xaux']} lds"); VM.issue(f"st{st}")
                    if st == 0 and i == 1: nxt(0); nxt(1)
                ops.append(f)
        elif ch in "ABC":
            st = "ABC".index(ch)
            for j in range(6):
                def f(st=st, j=j):
                    if j % 4 == 0: e(f"s_add_u32 m0, s{sM0}, {st*32768+j*1024}"); e("s_nop 0")
                    e(f"buffer_load_dwordx4 v{vDW+j}, {srd(sW1)}, s{kw[st]} offen offset:{(j%4)*1024} {opt['w1aux']} lds"); VM.issue(f"st{st}")
                ops.append(f)
        elif ch == "R": ops.append(r_loads)
        elif ch == ".": ops.append(None)
        elif ch == "P":
            def f():
                e(f"s_bfe_u32 s10, s{sMT}, 0x10002")
                e(f"s_mul_i32 s10, s10, 320")
                e(f"s_and_b32 s11, s{sMT}, 3")
                e(f"s_lshl_b32 s11, s11, 4")
                e(f"s_add_u32 s10, s10, s11")
                e(f"s_mul_i32 s11, s{sW}, 12")
                e(f"s_sub_u32 s10, s10, s11")
                e(f"s_add_u32 s10, s10, 256")
                e(f"s_mul_i32 s10, s10, 3072")
                e(f"s_add_u32 s10, s10, s{sWB}")
                e(f"buffer_load_dwordx4 v[244:247], v{vDW}, {srd(sW1)}, s10 offen"); VM.issue("pp")
                e("s_mov_b32 exec_hi, 0")
                e(f"buffer_load_dwordx4 v[248:251], v{vDW+1}, {srd(sW1)}, s10 offen offset:1024"); VM.issue("pp")
                e("s_mov_b32 exec_hi, -1")
            ops.append(f)
    assert spec[0] == "a" and all(c in spec for c in "abcABC")
    last = ops[-1]
    def fin(): last(); nxt(2)
    ops[-1] = fin
    return ops
if opt["po"]:
    first = pre_order(opt["po"]); opt["pre3"] = 1
    if None in first:
        k = first.index(None); first, ST0 = first[:k], first[k+1:]
    if "R" in opt["po"]: opt["rls"] = -1
else:
    first = dma_ops(0) + dma_ops(1) + (dma_ops(2) if opt["pre3"] else [])
    if opt["rls"] < 0: first.append(r_loads)
    if opt["tch"]: first[opt["tp0"]:opt["tp0"]] = [touch] * (opt["la"] - 1)
def wxtouch(k, n):
    def f():
        if k == 0:
            e(f"s_lshr_b32 s8, s2, 3")
            e(f"s_lshl_b32 s8, s8, 2")
            e(f"s_add_u32 s8, s8, s{sW}")
            e(f"s_mul_i32 s8, s8, {12*1280}")
            e(f"s_lshr_b32 s9, s{sFT}, 2")
            e(f"s_lshl_b32 s9, s9, 9")
            e(f"s_add_u32 s8, s8, s9")
            e(f"v_lshrrev_b32 v250, 6, v{vL16}")
            e(f"v_mul_u32_u24 v250, {1280-512}, v250")
            e(f"v_lshl_add_u32 v250, v{vL16}, 3, v250")
        m = ((1 << (48 // n)) - 1) << (k * 48 // n)
        e(f"s_mov_b32 exec_lo, {m & 0xffffffff}")
        e(f"s_mov_b32 exec_hi, {m >> 32}")
        e(f"buffer_load_dword v251, v250, {srd(sW2)}, s8 offen {opt['wtaux']}"); VM.issue("wt")
        e("s_mov_b64 exec, -1")
    return f
def wtouch():
    if opt["wtx"]:
        e(f"s_lshr_b32 s8, s2, 3")
        e(f"s_lshl_b32 s8, s8, 2")
        e(f"s_add_u32 s8, s8, s{sW}")
        e(f"s_mul_i32 s8, s8, {12*1280}")
        e(f"s_lshr_b32 s9, s{sFT}, 2")
        e(f"s_lshl_b32 s9, s9, 9")
        e(f"s_add_u32 s8, s8, s9")
        e(f"v_lshrrev_b32 v250, 6, v{vL16}")
        e(f"v_mul_u32_u24 v250, {1280-512}, v250")
        e(f"v_lshl_add_u32 v250, v{vL16}, 3, v250")
        e(f"s_mov_b32 exec_hi, 0xffff")
        e(f"buffer_load_dword v251, v250, {srd(sW2)}, s8 offen {opt['wtaux']}"); VM.issue("wt")
        e("s_mov_b64 exec, -1")
        return
    if opt["wtc"]:
        e(f"s_lshr_b32 s8, s2, 4")
        e(f"s_lshl_b32 s8, s8, 3")
        e(f"s_and_b32 s9, s2, 7")
        e(f"s_add_u32 s8, s8, s9")
        e(f"s_lshl2_add_u32 s8, s8, s{sW}")
        e(f"s_mul_i32 s8, s8, {3*1280}")
        e(f"v_lshrrev_b32 v250, 7, v{vL16}")
        e(f"v_lshlrev_b32 v250, 8, v250")
        e(f"v_lshl_add_u32 v250, v{vL16}, 3, v250")
        e(f"s_lshr_b32 s9, s2, 2")
        e(f"s_xor_b32 s9, s9, s2")
        e(f"s_bitcmp{opt['wtc'] - 1}_b32 s9, 3")
        e(f"s_cselect_b32 s8, s8, 1966080")
        e(f"s_mov_b64 exec, {(1 << 24) - 1}")
        e(f"buffer_load_dword v251, v250, {srd(sW2)}, s8 offen {opt['wtaux']}"); VM.issue("wt")
        e("s_mov_b64 exec, -1")
        return
    e(f"s_lshl_b32 s8, s2, 2")
    e(f"s_add_u32 s8, s8, s{sW}")
    e(f"s_mul_i32 s8, s8, {15*128}")
    e(f"v_lshlrev_b32 v250, {2 if opt['wth'] else 3}, v{vL16}")
    e(f"s_mov_b64 exec, {(1 << (30 if opt['wth'] else 15)) - 1}")
    e(f"buffer_load_dword v251, v250, {srd(sW2)}, s8 offen {opt['wtaux']}"); VM.issue("wt")
    e("s_mov_b64 exec, -1")
if opt["wt"] >= 0: first.insert(opt["wt"], wtouch)
def stouch():
    e(f"s_lshl_b32 s100, s2, 2")
    e(f"s_add_u32 s100, s100, s{sW}")
    e(f"s_mul_i32 s100, s100, {15*128}")
    for i in range(opt["swn"]):
        e(f"s_load_dword s101, s[{sW2}:{sW2+1}], s100 offset:{i*128}")
if opt["sw"] >= 0: first.insert(opt["sw"], stouch)
if opt["clr"] >= 0: first[opt["clr"]:opt["clr"]] = CLO
NF0 = opt["nf0"]
for f in first[:NF0]: f()
if opt["fst"]:
    e(f"s_waitcnt vmcnt({NF0-1})"); stamp(k=5)
    e(f"s_waitcnt vmcnt({NF0-3})"); stamp(k=5)
rest = first[NF0:]
per = (len(groups) + len(rest) - 1) // len(rest)
head = len(groups) * opt["head"] // 100
for g in groups[:head]: O.extend(g)
groups = groups[head:]
per = (len(groups) + len(rest) - 1) // len(rest)
for f in rest:
    f()
    for g in groups[:per]: O.extend(g)
    groups = groups[per:]
assert not groups
stamp()

def w2_ops():
    ops = []
    order = list(range(1, 12)); order.insert(opt["w0p"], 0)
    for n in order:
        for j in range(5):
            def f(n=n, j=j):
                if j == 0:
                    e(f"s_mul_i32 s{sWO}, s{sSIG+n}, 40")
                    e(f"s_add_u32 s{sWO}, s{sWO}, s{sW2B}")
                va = vL16 if j < 4 else vL16b
                e(f"buffer_load_dwordx4 {ar(n*20+4*j, 4)}, v{va}, {srd(sH)}, s{sWO} offen offset:{(j%4)*1024} {opt['w2aux'].replace('-','')}")
                VM.issue(f"w{n}")
            ops.append(f)
    return ops
WREG = [3, 3, 4, 4, 1, 1, 2, 2, 3, 3, 4, 4]
WHF = [n % 2 for n in range(12)]
WDEP = [None] * 8 + ["t0", "t1", "t2", "t3"]
if OW:
    WREG = [3, 3, 4, 4, 1, 1, 2, 3, 3, 4, 4, 2]
    WHF = [0, 1, 0, 1, 0, 1, 0, 0, 1, 0, 1, 1]
    WDEP = [None] * 7 + ["t0", "t1", "t2", "t3", "or3"]
def wd_ops():
    ops = []
    for n in range(12):
        for i in range(4):
            def f(n=n, i=i):
                if i == 0:
                    if WDEP[n]: assert WDEP[n] in TDONE + ORD and WDEP[n] not in LG.q, n
                    e(f"s_mul_i32 s{sWO}, s{sSIG+n}, {160 if OW else 40}")
                    e(f"s_add_u32 m0, s{sM0}, {WREG[n]*32768 + WHF[n]*4096}")
                    e(f"s_add_u32 s{sWO}, s{sWO}, s{sW2B}")
                e(f"buffer_load_dwordx4 v{vWD+i}, {srd(sW2)}, s{sWO} offen offset:{i*1024} {opt['waux']} lds")
                VM.issue(f"d{n}")
            ops.append(f)
    return ops
def w5_ops():
    ops = []
    for n in range(12):
        def f(n=n):
            e(f"s_lshl3_add_u32 s{sT1}, s{sSIG+n}, s{sW5B}")
            e(f"buffer_load_dwordx4 {ar(n*20+16, 4)}, v{vL16}, {srd(sH)}, s{sT1} offen {opt['w5aux'].replace('-','')}")
            VM.issue(f"w{n}")
        ops.append(f)
    return ops
TDONE = []; TWIN = [3]; ORD = []
def tgroup_ops(n):
    def head():
        assert not any(f.__defaults__[0] == n and len(f.__defaults__) == 2 for f in W2L), n
        VM.wait(f"d{n}")
        win = 3 if WREG[n] >= 3 else 1
        if win != TWIN[0]:
            for j in range(4): e(f"v_add_u32 v{vWT+j}, {(win - TWIN[0]) * 32768}, v{vWT+j}")
            TWIN[0] = win
        if len(LG.q) > 7:
            e("s_waitcnt lgkmcnt(7)"); LG.q = LG.q[-7:]
    ops = []
    for j in range(4):
        def f(j=j):
            if j == 0: head()
            win = TWIN[0]
            for t in range(2):
                e(f"ds_read_b64_tr_b16 {ar(n*20+4*j+2*t, 2)}, v{vWT+j} offset:{(WREG[n]-win)*32768 + WHF[n]*4096 + t*1024}"); LG.issue(f"t{n}")
        ops.append(f)
    TDONE.append(f"t{n}")
    return ops
def tgroup(n):
    for f in tgroup_ops(n): f()
W2L = wd_ops() if D1 else w2_ops()
def take(n):
    r = W2L[:n]; del W2L[:n]; return r

def rd_ops(st, half):
    slot = st % NSL
    sb = (slot % 2) * 32768
    hi = slot // 2
    ops = []
    if opt["nord"]: return ops
    if opt["r16"]:
        def b(rt):
            def f(): e(f"ds_read_b128 {vr(vBF + (half*2+rt)*4, 4)}, v{vB + 4 + 2*hi + half} offset:{sb + rt*8192}"); LG.issue(f"B{half}{rt}")
            return f
        def a(j, t):
            def f():
                e(f"ds_read_b64_tr_b16 {vr(vAF + half*24 + j*4 + 2*t, 2)}, v{vA + 2*hi + j%2} offset:{sb + half*16384 + t*1536 + (j//2)*128}")
                LG.issue(f"A{half}{j}")
            return f
        A = [a(j, t) for j in range(6) for t in range(2)]
        return [b(0)] + A[:2] + [b(1)] + A[2:]
    for kk in range(2):
        ks = 2*half + kk
        def b(ks=ks, kk=kk):
            e(f"ds_read_b128 {vr(vBF + (half*2+kk)*4, 4)}, v{vB + 4*hi + ks} offset:{sb}"); LG.issue(f"B{ks}")
        ops.append(b)
        for q in range(3):
            for t in range(2):
                def a(ks=ks, kk=kk, q=q, t=t):
                    e(f"ds_read_b64_tr_b16 {vr(vAF + half*24 + (kk*3+q)*4 + 2*t, 2)}, v{vA+hi} offset:{sb + ks*8192 + t*1536 + q*128}")
                    LG.issue(f"A{ks}{q}")
                ops.append(a)
    if opt["qm"] in (1, 2):
        qs = (0, 1, 2) if opt["qm"] == 1 or half == 0 else (2, 1, 0)
        ops = [ops[0], ops[7]] + [ops[7*kk + 1 + 2*q + t] for q in qs for kk in range(2) for t in range(2)]
    if opt["qm"] == 3: ops = ops[:8] + [ops[8 + 2*q + t] for q in (2, 1, 0) for t in range(2)]
    return ops
def i16(kk, q): return kk == 1
def mfma1(half, kk, q, zz=None):
    ks = 2*half + kk
    LG.wait(f"A{ks}{q}")
    if opt["nomf1"]: return
    if opt["m16"]:
        for z in (range(2) if zz is None else [zz]):
            c = vr(vACC1+16*q+8*kk+4*z, 4)
            e(f"v_mfma_f32_16x16x32_bf16 {c}, {vr(vAF + half*24 + (kk*3+q)*4, 4)}, {vr(vBF + (half*2+(kk^z if i16(kk, q) else kk))*4, 4)}, {c}")
        return
    a, b = vr(vAF + half*24 + (kk*3+q)*4, 4), vr(vBF + (half*2+kk)*4, 4)
    if opt["swab"]: a, b = b, a
    e(f"v_mfma_f32_32x32x16_bf16 {vr(vACC1+16*q,16)}, {a}, {b}, {vr(vACC1+16*q,16)}")
def mfma16(half, i):
    j, rt = i // 2, i % 2
    if opt["ro"] == 1 and j % 2: rt ^= 1
    LG.wait(f"A{half}{j}"); LG.wait(f"B{half}{rt}")
    if opt["nomf1"]: return
    c = vr(vACC1 + (j//2)*16 + rt*8 + (j%2)*4, 4)
    e(f"v_mfma_f32_16x16x32_bf16 {c}, {vr(vAF + half*24 + j*4, 4)}, {vr(vBF + (half*2+rt)*4, 4)}, {c}")
def half_body(mf_half, rds, fill, cnt=None):
    rds = list(rds); fill = list(fill)
    if (opt["m16"] >= 2 or opt["r16"]) and mf_half is not None:
        for i in range(12):
            if opt["r16"]: mfma16(mf_half, i)
            else: mfma1(mf_half, i // 6, (i // 2) % 3, i % 2)
            left = 12 - i
            if opt["pat"]:
                P = opt["pat1"] if opt["pat1"] and mf_half == 0 else opt["pat"]
                ch = P[i]
                for _ in range(dict(a=2, b=1, c=3, M=1, N=2).get(ch, 0)):
                    if rds: rds.pop(0)()
                if ch in "LMN":
                    nl = sum(c in "LMN" for c in P[i:])
                    for _ in range((len(fill) + nl - 1) // nl): fill.pop(0)()
            elif opt["m16"] == 2 or opt["r16"] == 2:
                for _ in range((len(rds) + left - 1) // left if i else 2):
                    if rds: rds.pop(0)()
                if i % 2 == 1:
                    for _ in range((len(fill) + left // 2) // (left // 2 + 1)):
                        if fill: fill.pop(0)()
            else:
                if i % 3 == 2 and fill:
                    for _ in range((len(fill) + left // 3) // (left // 3 + 1)): fill.pop(0)()
                else:
                    for _ in range(2):
                        if rds: rds.pop(0)()
        assert not rds and not fill, (len(rds), len(fill))
        return
    for i in range(6):
        if mf_half is not None:
            if opt["qm"] == 1: mfma1(mf_half, i % 2, i // 2)
            elif opt["qm"] == 2: mfma1(mf_half, i % 2, (i // 2) if mf_half == 0 else 2 - i // 2)
            elif opt["qm"] == 3: mfma1(mf_half, i // 3, (i % 3) if i < 3 else 5 - i)
            else: mfma1(mf_half, i // 3, i % 3)
        left = 6 - i
        for _ in range((len(rds) + left - 1) // left if i else min(len(rds), 4)):
            if rds: rds.pop(0)()
        if cnt is not None:
            for _ in range(cnt[i]):
                if fill: fill.pop(0)()
            if i == 5:
                while fill: fill.pop(0)()
            continue
        for _ in range((len(fill) + left - 1) // left):
            if fill: fill.pop(0)()
    assert not rds and not fill

def flag_store(off, lanes=0):
    fk = opt["fk"]
    if fk in (1, 3, 4):
        for r in range(4): e(f"v_mov_b32 v{vTM+12+r}, s{sTAG}")
        e(f"s_mov_b64 exec, {dict([(1,255),(3,1),(4,15)])[fk]}")
        e(f"buffer_store_dwordx4 {vr(vTM+12,4)}, v{vL16}, {srd(sH)}, s{off} offen sc1"); VM.issue("flag")
        e("s_mov_b64 exec, -1")
        return
    e(f"v_mov_b32 v{vT}, s{sTAG}")
    e(f"s_mov_b64 exec, {(1 << lanes) - 1}" if lanes else "s_mov_b32 exec_hi, 0" if fk == 0 else "s_mov_b64 exec, 1")
    e(f"buffer_store_dword v{vT}, v{vL4}, {srd(sH)}, s{off} offen sc1"); VM.issue("flag")
    e("s_mov_b64 exec, -1")
def r_poll():
    e(f"s_mov_b32 s{sT0}, {HREC if opt['norp'] else RFL}")
    e(f"buffer_load_dword v{vPOLL}, v{vRP}, {srd(sH)}, s{sT0} offen sc1"); VM.issue("rpoll")

def spin_slow(lab, vv, va, so):
    e(f"L_{lab}_s:")
    e(f"s_mov_b32 s{sSPIN}, 20000")
    e(f"L_{lab}:")
    e(f"buffer_load_dword v{vv}, v{va}, {srd(sH)}, s{so} offen sc1")
    e(f"s_sub_u32 s{sSPIN}, s{sSPIN}, 1")
    e("s_waitcnt vmcnt(0)")
    e(f"v_cmp_ne_u32 vcc, s{sTAG}, v{vv}")
    e(f"s_cbranch_scc1 L_{lab}_go")
    e(f"s_cbranch_vccnz L_{lab}")
    e(f"s_branch L_{lab}_go")
def spin_fast(lab, vv, tag):
    VM.wait(tag)
    e(f"v_cmp_ne_u32 vcc, s{sTAG}, v{vv}")
    e(f"s_cbranch_vccnz L_{lab}_s")
    e(f"L_{lab}_go:")
def spin_check(lab, vv, va, tag, so=None, fake=False):
    VM.wait(tag)
    e(f"s_mov_b32 s{sSPIN}, 20000")
    e(f"L_{lab}:")
    e(f"v_cmp_ne_u32 vcc, s{sTAG}, v{vv}")
    e("s_cmp_eq_u64 vcc, 0" if not fake else "s_cmp_eq_u32 s2, s2")
    e(f"s_cbranch_scc1 L_{lab}_go")
    e(f"s_sub_u32 s{sSPIN}, s{sSPIN}, 1")
    e(f"s_cmp_eq_u32 s{sSPIN}, 0")
    e(f"s_cbranch_scc1 L_{lab}_go")
    if so is None: e(f"s_mov_b32 s{sT0}, {RFL}")
    e(f"buffer_load_dword v{vv}, v{va}, {srd(sH)}, s{sT0 if so is None else so} offen sc1")
    e("s_waitcnt vmcnt(0)")
    e(f"s_branch L_{lab}")
    e(f"L_{lab}_go:")
def r_check(): spin_check("rp", vPOLL, vRP, "rpoll", None, opt["norp"])

PEND = []
EMU = [int(c) for c in str(opt["emu"]).lstrip("x")]
def emu_ops(bi):
    q, g2 = bi // 2, bi % 2
    a0 = 216; tt = vS + (bi % 2) * 8; pk = vRF + 8 + bi * 4
    ops = []
    if opt["emv"] and not opt["epk"]:
        for r in range(8): ops.append(f"v_mul_f32 v{tt+r}, s{sL2E}, v{a0+r}")
        for r in range(8): ops.append(f"v_exp_f32 v{tt+r}, v{tt+r}")
        for r in range(8): ops.append(f"v_add_f32 v{tt+r}, 1.0, v{tt+r}")
        for r in range(8): ops.append(f"v_rcp_f32 v{tt+r}, v{tt+r}")
        for r in range(8): ops.append(f"v_mul_f32 v{tt+r}, v{a0+r}, v{tt+r}")
        for r in range(4): ops.append(f"v_cvt_pk_bf16_f32 v{pk+r}, v{tt+2*r}, v{tt+2*r+1}")
    elif opt["emv"]:
        for r in range(0, 8, 2): ops.append(f"v_pk_mul_f32 {vr(tt+r,2)}, {vr(a0+r,2)}, s[{sPK}:{sPK+1}]")
        for r in range(8): ops.append(f"v_exp_f32 v{tt+r}, v{tt+r}")
        for r in range(0, 8, 2): ops.append(f"v_pk_add_f32 {vr(tt+r,2)}, {vr(tt+r,2)}, 1.0 op_sel_hi:[1,0]")
        for r in range(8): ops.append(f"v_rcp_f32 v{tt+r}, v{tt+r}")
        for r in range(0, 8, 2): ops.append(f"v_pk_mul_f32 {vr(tt+r,2)}, {vr(a0+r,2)}, {vr(tt+r,2)}")
        for r in range(4): ops.append(f"v_cvt_pk_bf16_f32 v{pk+r}, v{tt+2*r}, v{tt+2*r+1}")
    fs = [(lambda l=l: e(l)) for l in ops]
    def st_():
        e(f"buffer_store_dwordx4 {vr(pk,4)}, v{vHS}, {srd(sH)}, s{sHS} offen offset:{g2*512 + (q%2)*2048} sc1"); VM.issue("hstA" if opt["ab"] else "hst")
    if not opt['ems']: PEND.append(st_); return fs
    return fs + [st_]
def merge(a, b):
    r = []; a = list(a); b = list(b); na, nb_ = len(a), len(b)
    while a or b:
        if a and (not b or len(a) * nb_ >= len(b) * na): r.append(a.pop(0))
        else: r.append(b.pop(0))
    return r
if EMU:
    for r in range(8): e(f"v_cvt_f32_u32 v{216+r}, v{vL16}"); e(f"v_mul_f32 v{216+r}, 0x3a000000, v{216+r}")
for st in range(10):
    if st == opt["wu"]:
        e("s_mov_b64 exec, 0")
        for k in range(1, 4):
            e(f"s_cmp_eq_u32 s{sW}, {k}")
            e(f"s_cbranch_scc1 L_w{k}")
        e("L_wr:")
        e("s_mov_b64 exec, -1")
    if st != opt["nw"]: VM.wait(f"st{st}")
    if st == opt["rjs"]: VM.wait("rld")
    if st == opt["rfs"]: VM.wait("rst"); VM.wait("clr")
    if st == opt["afs"] and st: VM.wait("hstA")
    LG.drain()
    e("s_barrier")
    if st == opt["afs"] and st:
        e(f"s_cmp_eq_u32 s{sW}, 0")
        e(f"s_cselect_b32 s{sT1}, s{sFLG}, {HREC}")
        flag_store(sT1); stamp(k=7)
    if st == 9: stamp()
    stamp(k=1)
    if st >= 8: stamp(k=4)
    if st == opt["rfs"]:
        e(f"s_mul_i32 s{sTAG}, s{sE}, 0x9E3779B1")
        e(f"s_add_u32 s{sTAG}, s{sTAG}, 0x7F4A7C15")
        flag_store(sRFL, opt["rpk"] // 4)
    if not D1 and ((st == opt["rcs"] and opt["rck"] == 0) or (st == 9 and opt["rck"] == 2)): r_check()
    if NSL == 4:
        if st == 0: fill = ([] if opt["pre3"] else dma_ops(2)) + dma_ops(3)
        elif st < 7: fill = dma_ops(st + 3)
        else: fill = take(opt[f"n{st}"])
    elif st == 0 and opt["pre3"]: fill = list(ST0)
    elif st < 8: fill = dma_ops(st + 2) + (take(opt["d7"]) if st == 7 else [])
    else: fill = take(opt["n8"] if st == 8 else opt["n9"])
    if st == opt["dst"]: fill = fill + take(opt["dn"])
    if opt["tch"] and st + opt["la"] < 10: fill.insert(opt["tpos"], touch)
    if st == opt["rls"]: fill = [r_loads] + fill if opt["rpos"] == 0 else fill + [r_loads]
    if st == opt["rjs"]:
        fill.insert(min(opt["rsp"], len(fill)), r_stores)
        fill = [r_reads] + fill
    if st == opt["rps"] and not D1: fill.insert(opt["rpp"], r_poll)
    if st == opt["wts"]: fill.insert(min(opt["wtp"], len(fill)), wtouch)
    WX = [int(c) for c in str(opt["wx"]).lstrip("x")]
    for k, c in enumerate(WX):
        if c == st: fill.insert(min(opt["wxp"], len(fill)), wxtouch(k, len(WX)))
    if st == opt['sws']: fill.insert(min(opt['swp'], len(fill)), stouch)
    if st == opt["ot"]:
        def otch():
            if opt["otm"] == 1: e("s_mov_b64 exec, 1")
            e(f"buffer_load_dword v251, v{vOUT}, {srd(sOUT)}, s{sOB} offen"); VM.issue("ot")
            if opt["otm"] == 3: e(f"buffer_load_dword v251, v{vOUT2}, {srd(sOUT)}, s{sOB} offen offset:128"); VM.issue("ot")
            e("s_mov_b64 exec, -1")
        fill.append(otch)
    ex = [CLO[i] for i, c in enumerate(str(opt["clrs"]).lstrip("x")) if int(c) == st]
    for bi, es in enumerate(EMU):
        if es == st: ex += emu_ops(bi)
    if ex: fill = merge(fill, ex)
    h = (len(fill) + 1) // 2
    f0, f1 = fill[:h], fill[h:]
    if st == 8 and opt["rck"] == 1:
        k = 1 if opt["rps"] == 8 else 0
        f0, f1 = fill[:k], [r_check] + fill[k:]
    if opt["fp"] and st:
        c = [int(z) for z in str(opt["fp"]).lstrip("x")]
        assert sum(c) == 8
        if st == opt["rjs"]: c[-12] += 1
        if len(c) == 13:
            k = c.pop(0)
            pre, fill = fill[:k + (st == opt["rjs"])], fill[k + (st == opt["rjs"]):]
            if st == opt["rjs"]: fill.insert(0, pre.pop(0))
            for f in pre: f()
        h = sum(c[:6])
        half_body(1, rd_ops(st, 0), fill[:h], c[:6])
        half_body(0, rd_ops(st, 1), fill[h:], c[6:])
        continue
    half_body(1 if st else None, rd_ops(st, 0), f0)
    half_body(0, rd_ops(st, 1), f1)
stamp()
def silu_block(q, g2):
    a0 = vACC1 + 16*q + 8*g2
    bi = 2*q + g2
    tt = vS + (bi % 2) * 8
    pk = vRF + bi * 4
    ops = []
    if opt["pk"]:
        for r in range(0, 8, 2): ops.append(f"v_pk_mul_f32 {vr(tt+r,2)}, {vr(a0+r,2)}, s[{sPK}:{sPK+1}]")
        for r in range(8): ops.append(f"v_exp_f32 v{tt+r}, v{tt+r}")
        for r in range(0, 8, 2): ops.append(f"v_pk_add_f32 {vr(tt+r,2)}, {vr(tt+r,2)}, 1.0 op_sel_hi:[1,0]")
        for r in range(8): ops.append(f"v_rcp_f32 v{tt+r}, v{tt+r}")
        for r in range(0, 8, 2): ops.append(f"v_pk_mul_f32 {vr(tt+r,2)}, {vr(a0+r,2)}, {vr(tt+r,2)}")
    else:
        for r in range(8): ops.append(f"v_mul_f32 v{tt+r}, s{sL2E}, v{a0+r}")
        for r in range(8): ops.append(f"v_exp_f32 v{tt+r}, v{tt+r}")
        for r in range(8): ops.append(f"v_add_f32 v{tt+r}, 1.0, v{tt+r}")
        for r in range(8): ops.append(f"v_rcp_f32 v{tt+r}, v{tt+r}")
        for r in range(8): ops.append(f"v_mul_f32 v{tt+r}, v{a0+r}, v{tt+r}")
    for r in range(4): ops.append(f"v_cvt_pk_bf16_f32 v{pk+r}, v{tt+2*r}, v{tt+2*r+1}")
    nbs = str(opt["nb"]).lstrip("x")
    fill = take(int(nbs[bi] if len(nbs) > 1 else nbs))
    if opt["tsil"] and bi >= 6 - opt["tsil"]: fill = fill + tgroup_ops(len(TDONE))
    step = len(ops) // (len(fill) + 1) if fill else 0
    for i, l in enumerate(ops):
        if not opt["novalu"]: e(l)
        if fill and step and (i + 1) % step == 0: fill.pop(0)()
    for f in fill: f()
    so = sHS if q < 2 else sHS2
    def st_():
        if opt["nost"]: return
        if OW:
            e(f"buffer_store_dwordx4 {vr(pk,4)}, v{vHS}, {srd(sH)}, s{(sHS, 10, sHS2)[q]} offen offset:{g2*512} sc1"); VM.issue("hst")
            if q < 2: e(f"ds_write_b128 v{vOW+q}, {vr(pk,4)} offset:{g2*512}"); LG.issue("ow")
            return
        if opt["own"]:
            e(f"buffer_store_dwordx4 {vr(pk,4)}, v{vHS}, {srd(sH)}, s{(sHS, sHS1, sHS2)[q]} offen offset:{g2*512} sc1"); VM.issue("hst")
            if q < 2: e(f"ds_write_b128 v{vOW+q}, {vr(pk,4)} offset:{q*8192 + g2*512}"); LG.issue("ow")
            return
        if opt["r16"]:
            e(f"buffer_store_dwordx4 {vr(pk,4)}, v{vHS if g2 else vL16}, {srd(sH)}, s{so} offen offset:{(q%2)*2048} {opt['hsaux'].replace('-','')}"); VM.issue("hst")
            return
        e(f"buffer_store_dwordx4 {vr(pk,4)}, v{vHS}, {srd(sH)}, s{so} offen offset:{g2*512 + (q%2)*2048} {opt['hsaux'].replace('-','')}"); VM.issue("hstA" if opt["ab"] and q < 2 else "hst")
        if opt["hs2"]:
            e(f"buffer_store_dwordx4 {vr(pk,4)}, v{vHS}, {srd(sH)}, s{so} offen offset:{g2*512 + (q%2)*2048} {opt['hs2'].replace('-','')}"); VM.issue("hst")
    PEND.append(st_)
    if bi >= opt["sl"]:
        while PEND: PEND.pop(0)()
if opt["st0"]:
    e(f"s_cmp_lt_u32 s{sW}, {opt['st0']}")
    e(f"s_cselect_b32 s{sHS}, s{sHS}, {HREC}")
    e(f"s_cselect_b32 s{sHS2}, s{sHS2}, {HREC}")
if opt["r16"]:
    for i in range(12): mfma16(1, i)
else:
    for q in range(3):
        for kk in range(2): mfma1(1, kk, q)
    e("s_nop 7")
stamp(k=4)
if opt["sts"] == 4: VM.drain(); stamp(k=4)
def cnt_add(tag, off):
    VM.wait(tag)
    e("s_mov_b64 exec, 1")
    e(f"ds_add_rtn_u32 v{vT+1}, v{vCN}, v{vONE} offset:{off}")
    e("s_mov_b64 exec, -1")
def cnt_flag(add):
    e("s_waitcnt lgkmcnt(0)"); LG.q = []
    e(f"v_readfirstlane_b32 s{sT0}, v{vT+1}")
    e(f"s_add_u32 s{sT1}, s{sFLG}, {add}")
    e(f"s_cmp_eq_u32 s{sT0}, 3")
    e(f"s_cselect_b32 s{sT1}, s{sT1}, {HREC}")
    flag_store(sT1)
def silu_mix():
    P = opt["sil"] == 1
    T = []; N = []
    def ln(t): return lambda: e(t)
    def mulA(b):
        a0 = vACC1 + 8*b; tt = vS + (b % 2) * 8
        if P: return [(f"m{b}{r}", [], ln(f"v_pk_mul_f32 {vr(tt+r,2)}, {vr(a0+r,2)}, s[{sPK}:{sPK+1}]")) for r in range(0, 8, 2)]
        return [(f"m{b}{r}", [], ln(f"v_mul_f32 v{tt+r}, s{sL2E}, v{a0+r}")) for r in range(8)]
    def add(b):
        tt = vS + (b % 2) * 8
        if P: return [(f"a{b}{r}", [f"e{b}{r+1}"], ln(f"v_pk_add_f32 {vr(tt+r,2)}, {vr(tt+r,2)}, 1.0 op_sel_hi:[1,0]")) for r in range(0, 8, 2)]
        return [(f"a{b}{r}", [f"e{b}{r}"], ln(f"v_add_f32 v{tt+r}, 1.0, v{tt+r}")) for r in range(8)]
    def fin(b):
        a0 = vACC1 + 8*b; tt = vS + (b % 2) * 8; pk = vRF + b * 4
        q, g2 = b // 2, b % 2
        m = []
        for r in range(0, 8, 2):
            if P: m.append([(f"f{b}{r}", [f"r{b}{r+1}"], ln(f"v_pk_mul_f32 {vr(tt+r,2)}, {vr(a0+r,2)}, {vr(tt+r,2)}"))])
            else: m.append([(f"f{b}{r+1-z}", [f"r{b}{r+z}"], ln(f"v_mul_f32 v{tt+r+z}, v{a0+r+z}, v{tt+r+z}")) for z in range(2)])
        c = [(f"c{b}{r}", [f"f{b}{2*r}"], ln(f"v_cvt_pk_bf16_f32 v{pk+r}, v{tt+2*r}, v{tt+2*r+1}")) for r in range(4)]
        def st_():
            e(f"buffer_store_dwordx4 {vr(pk,4)}, v{vHS}, {srd(sH)}, s{sHS if q < 2 else sHS2} offen offset:{g2*512 + (q%2)*2048} {opt['hsaux'].replace('-','')}"); VM.issue("hst")
        return m[0] + m[1] + [c[0]] + m[2] + [c[1]] + m[3] + [c[2], c[3], (f"s{b}", [], st_)]
    N += mulA(0)
    for b in range(6):
        tt = vS + (b % 2) * 8
        T += [(f"e{b}{r}", [f"m{b}{r & ~1 if P else r}"], ln(f"v_exp_f32 v{tt+r}, v{tt+r}")) for r in range(8)]
        T += [(f"r{b}{r}", [f"a{b}{r & ~1 if P else r}"], ln(f"v_rcp_f32 v{tt+r}, v{tt+r}")) for r in range(8)]
        N += add(b)
        if b < 5: N += mulA(b + 1)
        N += fin(b)
    done = {}
    I0 = len(O)
    def emit(x): x[2](); done[x[0]] = len(done)
    K = [int(c) for c in str(opt["silk"]).lstrip("x")]
    for i, t in enumerate(T):
        while not all(d in done for d in t[1]): emit(N.pop(0))
        emit(t)
        k = K[i % len(K)]
        while N and all(d in done and len(done) - done[d] >= opt["sild"] for d in N[0][1]) and (k > 0 or N[0][0][0] == "s"):
            if N[0][0][0] != "s": k -= 1
            emit(N.pop(0))
    for x in N: emit(x)
    O[I0-8:] = fix(O[I0-8:])
if opt["sil"]: silu_mix()
for q in range(3 if not opt["sil"] else 0):
    for g2 in range(2):
        bi = 2*q + g2
        if opt["ab"] and not opt["afs"] and bi == 4 + opt["afp"]: cnt_add("hstA", 0); stamp(k=7)
        if bi >= len(EMU): silu_block(q, g2)
        if opt["ab"] and not opt["afs"] and bi == 4 + opt["afp"]: cnt_flag(0); stamp(k=7)
stamp(); stamp(k=4); stamp(k=8)
if not opt["spec"]:
    NT = (48 - len(W2L)) // 4
    PL = take(opt["post"])
    if opt["tpm"]:
        TL = []
        while len(TDONE) < NT: TL += tgroup_ops(len(TDONE))
        PL = merge(PL, TL) if opt["tpm"] == 1 else TL + PL
    for i, f in enumerate(PL):
        if D1 and i == opt["rpq"]: r_poll()
        if i == opt["pae"]:
            e(f"buffer_load_dword v{vPOLL}, v{vPA}, {srd(sH)}, s{sPOL} offen sc1"); VM.issue("poll")
        f()
    if opt["wb"]:
        VM.wait("hst")
        e("buffer_wbl2 sc1"); VM.issue("hst")
    if D1:
        while len(TDONE) < NT: tgroup(len(TDONE))
    stamp(k=8)
    if not opt["nhw"]: VM.wait("hst")
    stamp(k=8)
    stamp(k=4)
    if opt["sts"] == 4: VM.drain(); stamp(k=4)
    if opt["fb"]:
        e(f"s_cmp_eq_u32 s{sW}, 0")
        e(f"s_cselect_b32 s{sFLG}, s{sFLG}, {HREC}")
        if opt["own"]: LG.drain()
        if OW: LG.drain()
        e("s_barrier")
    else:
        e("s_mov_b64 exec, 1")
        e(f"ds_add_rtn_u32 v{vT+1}, v{vCN}, v{vONE} offset:{4 if opt['ab'] else 0}")
        e("s_mov_b64 exec, -1")
        if opt["ab"]: e(f"s_add_u32 s{sFLG}, s{sFLG}, {FLB}")
        for f in take(opt["mid"]): f()
        e("s_waitcnt lgkmcnt(0)")
        e(f"v_readfirstlane_b32 s{sT0}, v{vT+1}")
        e(f"s_cmp_eq_u32 s{sT0}, {3 if opt['nopoll'] < 2 else 9}")
        e(f"s_cselect_b32 s{sFLG}, s{sFLG}, {HREC}")
    if opt["nopoll"] == 3: e(f"s_mov_b32 s{sPOL}, {HREC}")
    flag_store(sFLG)
    if opt["fb"] == 2: e("s_barrier")
    stamp(); stamp(k=3)
else:
    for f in take(opt["fw"]): f()
    VM.wait("hst")
    e(f"s_lshl_b32 s{sT0}, s{sW}, 15")
    e(f"s_add_u32 s{sFLG}, s{sFLG}, s{sT0}")
    flag_store(sFLG)
    stamp()
N0 = 1 if OW else 0
HL = [(p, n) for p in range(4) for n in range(N0, 12)]
def hreg(p, n): return vH + (p*(12-N0) + n - N0)*4
def park(p, j): return [vACC2, 196, 216, 240][p] + 4*j if (p, j) != (3, 4) else 236
def ofr(p): return vr(152+4*p, 4) if opt['owv'] else ar(240+4*p, 4)
def own_reads():
    for p in range(4):
        e(f"ds_read_b128 {ofr(p)}, v{vRW} offset:{32768 + 4096 + p*1024}"); LG.issue(f"or{p}"); ORD.append(f"or{p}")
def own_ops(js):
    def mk(p, j):
        def f():
            LG.wait(f"or{p}"); LG.wait("t0")
            if j == 4: VM.wait("w0")
            if opt["nom"]: return
            mf2(vr(park(p, j), 4), 0, j, ofr(p), '0')
        return f
    return [mk(p, j) for p in range(4) for j in js]
def hload():
    if HL:
        p, n = HL.pop(0)
        if opt["noh"] and (p*12+n) % opt["noh"]: return
        e(f"buffer_load_dwordx4 {vr(hreg(p, n), 4)}, v{vHB+p}, {srd(sH)}, s{sSIG+n} offen {opt['haux'].replace('-','')}"); VM.issue(f"h{p}_{n}")
def mark(v):
    if not opt["stamps"] or opt["sts"]: return
    i = NST[0]; NST[0] += 1
    e(f"s_add_u32 s{72+2*i}, s74, {v}"); e(f"s_addc_u32 s{73+2*i}, s75, 0")
ACI = []; OOL = []
def allc_load(late=False):
    if opt["acb"] == 2 or (opt["acp"] >= 0) != late: return
    if opt["acb"] == 3:
        e("s_cmp_eq_u32 s2, 0")
        e("s_cbranch_scc1 L_aclo")
        e("L_acl:")
        OOL.extend(["L_aclo:", f"s_mov_b32 s{sT0}, {FL}", f"buffer_load_dword v{vAV}, v{vAC}, {srd(sH)}, s{sT0} offen sc1", "s_branch L_acl"])
        return
    if opt["acb"]:
        e("s_cmp_lg_u32 s2, 0")
        e("s_cbranch_scc1 L_acl")
        e(f"s_mov_b32 s{sT0}, {FL}")
        e(f"buffer_load_dword v{vAV}, v{vAC}, {srd(sH)}, s{sT0} offen sc1")
        e("L_acl:")
        VM.q.insert(0, "allc") if False else None
        ACI.append(len(VM.q))
        return
    e("s_cmp_eq_u32 s2, 0")
    e(f"s_cselect_b32 s{sT0}, {FL if D1 else RFL}, s{sH+2}")
    e(f"buffer_load_dword v{vAV}, v{vAC}, {srd(sH)}, s{sT0} offen sc1"); VM.issue("allc")
def p0_block(ML, pre):
    ML = list(ML)
    TL = []
    while D1 and len(TDONE) < 12 - opt["tin"]: TL += tgroup_ops(len(TDONE))
    for f in (merge(ML[:pre], TL) if opt["tmix"] else ML[:pre] + TL): f()
    if OW:
        for f in own_ops([4]): f()
    del ML[:pre]
    if D1 and not opt["tin"]: LG.drain()
    stamp()
    for n in range(N0, 12):
        assert (0, n) not in HL and not any(getattr(f, "__defaults__", None) and f.__defaults__[0] == n for f in ML), n
        late = max((f"h0_{n}", f"w{n}"), key=lambda t: len(VM.q) - 1 - VM.q[::-1].index(t) if t in VM.q else -1)
        VM.wait(late)
        TL = []
        if D1:
            assert f"t{n}" in TDONE
            LG.wait(f"t{n}")
            if len(TDONE) < 12: TL = tgroup_ops(len(TDONE))
        if n == N0 or n == 6: stamp(k=2)
        cnt = (len(ML) + 11 - n) // (12 - n)
        pos = {1: [opt["hj"]], 2: [1, 3], 3: [0, 2, 4], 4: [0, 1, 2, 3], 5: [0, 1, 2, 3, 4], 0: []}[cnt]
        for j in range(5):
            c = "0" if n == 0 else vr(vACC2+4*j, 4)
            mf2(vr(vACC2+4*j,4), n, j, vr(hreg(0, n),4), c)
            if j in pos: ML.pop(0)()
            elif TL: TL.pop(0)()
        for f in TL: f()
    assert not ML and not W2L
TP = []
def tstep(n):
    if not opt["tfm"]: return
    if not TP and len(TDONE) <= n - opt["tfm"] and len(TDONE) < 12 - opt["tlate"]: TP.extend(tgroup_ops(len(TDONE)))
    if TP: TP.pop(0)()
def late_d1():
    W5 = w5_ops()
    cnt = 0
    vP2 = vAV if opt["pqd"] or opt["rcl"] else vPOLL
    def poll():
        stamp(k=3)
        e(f"buffer_load_dword v{vP2}, v{vPA}, {srd(sH)}, s{sPOL} offen sc1"); VM.issue("poll")
    OM = []
    if OW: own_reads(); OM = own_ops(range(4))
    while W2L:
        n = W2L[0].__defaults__[0]
        if W2L[0].__defaults__[1] == 0 and WDEP[n]:
            while WDEP[n] not in TDONE + ORD: tgroup(len(TDONE))
            LG.wait(WDEP[n])
        if len(W2L) == opt["pqd"]: poll()
        take(1)[0](); cnt += 1
        if OM and cnt > opt["owp"]: OM.pop(0)()
        if opt["tfm"]: tstep(n)
        elif cnt % opt["tl"] == 0 and len(TDONE) < n - 2: tgroup(len(TDONE))
    if opt["owp"] < 50:
        for f in OM: f()
        OM = []
    if not opt["rcl"]: r_check()
    else: assert opt["w5d"] == 12
    WD = W5[12-opt["w5d"]:]; del W5[12-opt["w5d"]:]
    def om(i):
        if 50 <= opt["owp"] < 90 and i >= opt["owp"] - 50:
            for _ in range(2):
                if OM: OM.pop(0)()
    for i, f in enumerate(W5[:opt["w5p"]]): f(); tstep(12 + i // 4); om(i)
    if not opt["pqd"]: poll()
    for i, f in enumerate(W5[opt["w5p"]:]): f(); tstep(12 + (i + opt["w5p"]) // 4); om(i + opt["w5p"])
    for f in TP: f()
    for f in OM: f()
    stamp(k=3)
    while len(TDONE) < 12 - opt['tlate']: tgroup(len(TDONE))
    if opt["hid"]:
        e("s_branch L_hid")
        spin_slow("hp", vP2, vPA, sPOL)
        if opt["hid"] & 2:
            e("L_ac_c:")
            e(f"s_mov_b32 s{sT1}, {FL}")
            e(f"v_cmp_ne_u32 vcc, s{sTAG}, v{vAV}")
            e("s_cmp_eq_u64 vcc, 0")
            e(f"s_cbranch_scc1 L_ac_go")
            spin_slow("ac", vAV, vAC, sT1)
        if opt["al"]: e(".p2align 12")
        e("L_hid:")
    VM.wait("poll")
    stamp(k=3)
    stamp()
    if opt["hid"]: spin_fast("hp", vP2, "poll")
    else: spin_check("hp", vP2, vPA, "poll", sPOL, opt["nopoll"])
    stamp(); stamp(k=2); stamp(k=3)
    mark(1000)
    allc_load()
    if opt["c5"]:
        WDL.extend(WD); return
    ML = []; pre = 0
    for i in range(opt["hpre"] + 12 - N0):
        ML.append(hload)
        if WD and WD[0].__defaults__[0] == i: ML.append(WD.pop(0))
        if i == opt["hpre"] - 1: pre = len(ML)
    p0_block(ML, pre)
WDL = []
def late_path():
    if D1: return late_d1()
    if opt['skipw']: del W2L[-opt['skipw']:]
    if opt["sts"] == 6:
        stamp(k=6)
        i = 0
        while len(W2L) > opt["pollq"]:
            take(1)[0](); i += 1
            if i % 4 == 0 and i >= opt["dw"]:
                e(f"s_waitcnt vmcnt({opt['dw']})"); stamp(k=6)
    for f in take(max(0, len(W2L) - opt["pollq"])): f()
    stamp(k=3)
    if opt["sts"] == 3: VM.drain(); stamp(k=3)
    if opt["sts"] == 4: stamp(k=4); VM.drain(); stamp(k=4)
    if opt["sp"]:
        e(f"s_load_dword s6, s[12:13], s{sPOL} {opt['spg']}")
        e(f"s_add_u32 s{sT0}, s{sPOL}, 128")
        e(f"s_load_dword s7, s[12:13], s{sT0} {opt['spg']}")
        for f in take(len(W2L)): f()
        stamp(k=3)
        e("s_waitcnt lgkmcnt(0)")
        stamp(k=3)
        stamp()
        e(f"s_cmp_eq_u32 s6, s{sTAG}")
        e(f"s_cselect_b32 s6, s7, s6")
        e(f"s_cmp_eq_u32 s6, s{sTAG}")
        e("s_cbranch_scc1 L_hp_go")
        e(f"v_mov_b32 v{vPOLL}, s6")
        spin_check("hp", vPOLL, vPA, "poll", sPOL, opt["nopoll"])
    else:
        e(f"buffer_load_dword v{vPOLL}, v{vPA}, {srd(sH)}, s{sPOL} offen sc1"); VM.issue("poll")
        for f in take(len(W2L)): f()
        stamp(k=3)
        VM.wait("poll")
        stamp(k=3)
        stamp()
        spin_check("hp", vPOLL, vPA, "poll", sPOL, opt["nopoll"])
    stamp(); stamp(k=2); stamp(k=3)
    mark(1000)
    allc_load()
    p0_block([hload] * (opt["hpre"] + 12), opt["hpre"])
LATE = []
if opt["eq"]:
    import re
    for f in take(len(W2L) - opt["eq"]): f()
    e(f"buffer_load_dword v{vPOLL}, v{vPA}, {srd(sH)}, s{sPOL} offen sc1"); VM.issue("poll")
    for f in take(opt["ec"]): f()
    VM.wait("poll")
    e(f"v_cmp_ne_u32 vcc, s{sTAG}, v{vPOLL}")
    e("s_cmp_eq_u64 vcc, 0" if not opt["nopoll"] else "s_cmp_eq_u32 s2, s2")
    e("s_cbranch_scc0 L_late")
    sv = (list(VM.q), list(W2L), list(HL), NST[0])
    LATE = ["L_late:"] + capture(late_path) + ["s_branch L_p1"]
    endq, endn = list(VM.q), NST[0]
    VM.q, W2L[:], HL[:], NST[0] = sv
    stamp(); stamp(); stamp(k=2); mark(0)
    allc_load()
    m = re.match(r"h(\d+)w(\d+)", opt["eil"])
    ML = []; nh = 12; ws = take(len(W2L))
    while nh or ws:
        k = min(nh, int(m.group(1))); ML += [hload] * k; nh -= k
        k = int(m.group(2)); ML += ws[:k]; del ws[:k]
    ML += [hload] * opt["hpre"]
    p0_block(ML, opt["epre"])
    assert NST[0] == endn, (NST[0], endn)
    k = min(len(VM.q), len(endq))
    assert VM.q[-k:] == endq[-k:] and all(t.startswith("h1") for t in VM.q + endq), (VM.q, endq)
    if len(endq) > len(VM.q): VM.q = endq
    e("L_p1:")
elif opt["spec"]:
    allc_load()
    for f in take(len(W2L) - opt["wl"]): f()
    stamp(); stamp(); stamp(k=2); mark(1000)
    ws = take(len(W2L))
    p0_block([hload] * opt["hpre"] + merge(ws, [hload] * 12) if ws else [hload] * (opt["hpre"] + 12), opt["hpre"])
elif not opt["ab"] and not opt["dfw"]:
    late_path()
def allc_check():
    if opt["acb"] == 2: return
    if opt["hid"] & 2:
        assert "allc" not in VM.q
        e("s_cmp_eq_u32 s2, 0")
        e("s_cbranch_scc1 L_ac_c")
        e("L_ac_go:")
        return
    if opt["acb"] == 3:
        e("s_cmp_eq_u32 s2, 0")
        e("s_cbranch_scc1 L_aco")
        e("L_acb:")
        def body():
            e(f"s_mov_b32 s{sT1}, {FL}")
            spin_check("ac", vAV, vAC, "allc", sT1)
        OOL.extend(["L_aco:"] + capture(body) + ["s_branch L_acb"])
        return
    e("s_cmp_lg_u32 s2, 0")
    e("s_cbranch_scc1 L_ac_go")
    assert "allc" not in VM.q
    if D1: e(f"s_mov_b32 s{sT1}, {FL}")
    spin_check("ac", vAV, vAC, "allc", sT1 if D1 else None)
def phase2_new():
    B1, B2, MA = opt["b1"], opt["b2"], opt["madd"]
    for p in range(1, 4):
        ac = vACC2 + (p % 2) * 20
        pa = vACC2 + ((p-1) % 2) * 20
        slots = {(n, j): [] for n in range(12) for j in range(5)}
        if opt["wb64"]:
            for k in range(10):
                def w(k=k):
                    e(f"ds_write_b64 v{vRW if p < 3 else vRW2}, {vr(pa+2*k,2)} offset:{((p-1)%2)*32768 + (k//2)*1024 + (k%2)*8}")
                    LG.issue("red")
                i = 5*N0 + opt["wg0"] + k * opt["wgs"]
                assert i < 5 * min(B1, B2)
                slots[(i // 5, i % 5)].append(w)
        elif p > 0:
            PW = [(1, 0), (1, 2), (1, 4), (2, 1), (2, 3)]
            if opt["wq"]:
                q = str(opt["wq"]).lstrip("x")
                i0, di = int(q[2*p-2], 36), int(q[2*p-1], 36)
                PW = [((i0 + k*di) // 5, (i0 + k*di) % 5) for k in range(5)]
            for jj, pos in enumerate(PW):
                def w(jj=jj):
                    if D1: e(f"ds_write_b128 v{vRW if p < 3 else vRW2}, {vr(pa+4*jj,4)} offset:{((p-1)%2)*32768 + jj*1024}")
                    else: e(f"ds_write_b128 v{vRW}, {vr(pa+4*jj,4)} offset:{(p-1)*5120 + jj*1024}")
                    LG.issue("red")
                slots[(pos[0] + N0, pos[1])].append(w)
                assert pos[0] + N0 < (12, B1, B2)[p-1]
        def rd(pp, j, dst):
            def f():
                e(f"ds_read_b128 {vr(dst, 4)}, v{vRR+pp} offset:{j*1024}"); LG.issue(f"rr{pp}{j}")
            return f
        if p == 2:
            k = 0
            for j in range(5):
                for pp in range(2):
                    slots[(B1 + k // 5, k % 5)].append(rd(pp, j, vH + pp*20 + 4*j)); k += opt["rds"]
            assert B1 + 3 <= 8 or opt["wq"]
            for i in range(20):
                def a(i=i):
                    LG.wait(f"rr1{i//4}")
                    if OW and opt["ada"] == 7:
                        e(f"v_add_f32 v{pa+i}, v{vH+i}, v{vH+20+i}")
                        if i: e(f"v_add_f32 v{pa+i-1}, v{pa+i-1}, v{park(3, (i-1)//4) + (i-1)%4}")
                        if i == 19: e(f"v_add_f32 v{pa+i}, v{pa+i}, v{park(3, 4) + 3}")
                        return
                    if OW:
                        jt, r = i // 4, (i % 2) * 2
                        d = vr(pa + 4*jt + r, 2)
                        if i % 4 < 2: e(f"v_pk_add_f32 {d}, {vr(vH + 4*jt + r, 2)}, {vr(vH + 20 + 4*jt + r, 2)}")
                        else: e(f"v_pk_add_f32 {d}, {d}, {vr(park(3, jt) + r, 2)}")
                        return
                    e(f"v_add_f32 v{pa+i}, v{vH+i}, v{vH+20+i}")
                i2 = 5*opt["ad0"] + i * (60 - 5*opt["ad0"]) // 20
                assert i2 > 5*B1 + (2*(i//4) + 1)*opt["rds"]
                slots[(i2 // 5, i2 % 5)].append(a)
        if p == 3:
            for j in range(5): slots[(B2, j)].append(rd(2, j, vH + 4*j))
            if opt["smd"]:
                MA = -1
                for j in range(5):
                    for r in range(4):
                        def a(j=j, r=r):
                            LG.wait(f"rr2{j}")
                            e(f"v_add_f32 v{ac+4*j+r}, v{ac+4*j+r}, v{vH+4*j+r}")
                        i = (opt["smd"] + j) * 5 + j + 2 + r // 2 if opt["smd"] + 5 < 12 else opt["smd"] * 5 + 3 * j + (2*j) % 5 * 0 + 99
                        slots[(i // 5, i % 5)].append(a)
        K4 = opt["k4"] if p == 3 else 0
        if K4: MA = -1; I0 = len(O)
        for n in range(N0, 12 - (opt["k2"] if K4 else 0)):
            if (p == 2 and n == B1) or (p == 3 and n == B2):
                if p == 3: allc_check(); stamp(k=2)
                LG.drain(); e("s_barrier")
                if p == 3: stamp(k=2)
            VM.wait(f"h{p}_{n}")
            if p * 12 + n == opt["acp"]: allc_load(True)
            if p * 12 + n == opt["es"]:
                e(f"s_lshl_b32 s6, s{sMT}, 2")
                e(f"s_add_u32 s6, s6, s{sOWN}")
                e(f"s_mul_i32 s6, s6, {16*1280}")
                e(f"s_mul_i32 s7, s{sFT}, 160")
                e(f"s_add_u32 s6, s6, s7")
                e(f"s_cmp_lt_u32 s{sW}, {opt['ost']}")
                e(f"s_cselect_b32 s6, s6, 2621440")
                ax = opt['esaux'].replace('-', '')
                for b in range(2):
                    e(f"buffer_store_dwordx4 {vr(vH+40+4*b,4)}, v{vOUT}, {srd(sOUT)}, s6 offen offset:{64*b} {ax}"); VM.issue("es")
                e(f"buffer_store_dwordx2 {vr(vH+40,2)}, v{vOUT2}, {srd(sOUT)}, s6 offen offset:128 {ax}"); VM.issue("es")
            if n == N0 or (n == 6 and p < 3): stamp(k=2)
            def madd(j):
                LG.wait(f"rr2{j}")
                for r in range(4): e(f"v_add_f32 v{ac+4*j+r}, v{ac+4*j+r}, v{vH+4*j+r}")
            mid = p == 3 and n == MA
            if mid: e("s_nop 3"); madd(0)
            for j in range(5):
                c = "0" if n == 0 and p < 3 else vr(ac+4*j, 4)
                if OW and n == 1 and p < 3: c = vr(park(p, j), 4)
                if mid:
                    if j < 4: madd(j+1)
                    else: e("s_nop 0")
                if j < 4 or n < 12 - K4: mf2(vr(ac+4*j,4), n, j, vr(hreg(p, n),4), c)
                if j == opt["hj"]: hload()
                for f in slots[(n, j)]: f()
                if K4 and opt["a4"] and n == opt["a4"] and j < 4:
                    assert n > 12 - K4 and n > B2
                    LG.wait("rr24"); e(f"v_add_f32 v{ac+16+j}, v{ac+16+j}, v{vH+16+j}")
    if opt["k4"]:
        tile_tail()
        O[I0:] = fix(O[I0:])
    else: out_tail()
def tile_tail():
    K2, K4 = opt["k2"], opt["k4"]
    assert opt["bp"] and opt["t4"] and not HL
    ac = vACC2 + 20; pk = vH + 64
    ML = [(n, j) for g in ((0, 1), (2, 3)) for n in range(12 - K2, 12) for j in g] + [(n, 4) for n in range(12 - K4, 12)]
    def add(j):
        def mk(r):
            def f(): LG.wait(f"rr2{j}"); e(f"v_add_f32 v{ac+4*j+r}, v{ac+4*j+r}, v{vH+4*j+r}")
            return f
        return [mk(r) for r in range(4)]
    def ln(t): return lambda: e(t)
    def cvt(j): return [ln(f"v_cvt_pk_bf16_f32 v{pk+2*j+r}, v{ac+4*j+2*r}, v{ac+4*j+2*r+1}") for r in range(2)]
    def sw(b): return [ln(f"v_permlane32_swap_b32 v{pk+4*b+r}, v{pk+4*b+2+r}") for r in range(2)]
    def bp(b):
        def mk(r):
            def f(): e(f"ds_bpermute_b32 v{pk+16+4*b+r}, v{vL16b}, v{pk+4*b+r}"); LG.issue(f"bp{b}")
            return f
        return [mk(r) for r in (0, 2, 1, 3)]
    def st(b):
        def f():
            LG.wait(f"bp{b}")
            e(f"buffer_store_dwordx4 {vr(pk+16+4*b,4)}, v{vOUT}, {srd(sOUT)}, s{sOB} offen offset:{64*b} {opt['outaux']}")
        return [f]
    fd = opt["fd"]
    Qo = [(0, f) for f in ([] if opt["a4"] else add(4))] + [(fd - 1, f) for f in add(2) + add(3)]
    n23 = len(Qo)
    Qo += [(2*K2 + fd - 1, f) for f in add(0) + add(1) + cvt(0) + cvt(1) + sw(0) + bp(0)]
    Qo += [(4*K2 + fd - 1, f) for f in cvt(2) + cvt(3) + sw(1) + bp(1) + st(0)]
    done = 0
    for i, (n, j) in enumerate(ML):
        if i == 2*K2:
            while done < n23: Qo.pop(0)[1](); done += 1
        VM.wait(f"h3_{n}")
        mf2(vr(ac+4*j,4), n, j, vr(hreg(3, n),4), vr(ac+4*j,4))
        for _ in range(opt["fr"]):
            if Qo and Qo[0][0] <= i: Qo.pop(0)[1](); done += 1
    stamp(); stamp(k=2)
    for _, f in Qo: f()
    for f in cvt(4): f()
    for r in range(4):
        e(f"buffer_store_short{'_d16_hi' if r % 2 else ''} v{pk+8+r//2}, v{vOUT2}, {srd(sOUT)}, s{sOB2} offen offset:{128 + r*1280} {opt['outaux']}")
    st(1)[0]()
def out_tail():
    stamp(); stamp(k=2)
    if opt["enc"]: stamp(True)
    ac = vACC2 + 20
    pk = vH + 64
    def cvt(j):
        for r in range(2): e(f"v_cvt_pk_bf16_f32 v{pk+2*j+r}, v{ac+4*j+2*r}, v{ac+4*j+2*r+1}")
    def swp(b):
        e(f"v_permlane32_swap_b32 v{pk+4*b}, v{pk+4*b+2}")
        e(f"v_permlane32_swap_b32 v{pk+4*b+1}, v{pk+4*b+3}")
        if opt["enc"]:
            e("s_waitcnt lgkmcnt(0)")
            e(f"v_lshrrev_b32 v{vT+1}, 4, v{vL16}")
            for r in range(4):
                i = 4*b + r
                e(f"v_mov_b32 v{vT}, s{72+2*i}")
                e("s_mov_b32 exec_lo, 0")
                e(f"v_mov_b32 v{vT}, s{72+2*min(i+8, 14)}")
                e("s_mov_b32 exec_lo, -1")
                e(f"v_lshrrev_b32 v{vT}, v{vT+1}, v{vT}")
                e(f"v_bfi_b32 v{pk+4*b+r}, 1, v{vT}, v{pk+4*b+r}")
        if opt["ofk"]:
            e(f"buffer_store_dwordx4 {vr(pk+4*b,4)}, v{vL16b if b else vOUT}, {srd(sOUT)}, s{sOB} offen {opt['outaux']}"); return
        e(f"buffer_store_dwordx4 {vr(pk+4*b,4)}, v{vOUT}, {srd(sOUT)}, s{sOB} offen offset:{64*b} {opt['outaux']}")
    if opt["bp"]:
        assert not opt["enc"]
        def sw(b):
            e(f"v_permlane32_swap_b32 v{pk+4*b}, v{pk+4*b+2}")
            e(f"v_permlane32_swap_b32 v{pk+4*b+1}, v{pk+4*b+3}")
        def bp(b, n):
            for r in range(n):
                e(f"ds_bpermute_b32 v{pk+16+4*b+r}, v{vL16b}, v{pk+4*b+r}"); LG.issue(f"bp{b}")
        def st(b):
            LG.wait(f"bp{b}")
            if b < 2: e(f"buffer_store_dwordx4 {vr(pk+16+4*b,4)}, v{vOUT}, {srd(sOUT)}, s{sOB} offen offset:{64*b} {opt['outaux']}")
            else: e(f"buffer_store_dwordx2 {vr(pk+24,2)}, v{vOUT2}, {srd(sOUT)}, s{sOB2} offen offset:128 {opt['outaux']}")
        e("s_nop 3")
        if opt["t4"]:
            cvt(0); cvt(1); cvt(2); sw(0); cvt(3); bp(0, 4); sw(1); cvt(4); bp(1, 4)
            for r in range(4):
                e(f"buffer_store_short{'_d16_hi' if r % 2 else ''} v{pk+8+r//2}, v{vOUT2}, {srd(sOUT)}, s{sOB2} offen offset:{128 + r*1280} {opt['outaux']}")
            st(0); st(1)
            return
        cvt(0); cvt(1); cvt(2); sw(0); cvt(3); bp(0, 4); cvt(4); sw(1); bp(2, 2); bp(1, 4); st(0); st(2); st(1)
        return
    e("s_nop 3")
    cvt(0); cvt(1); cvt(2); swp(0); cvt(3); cvt(4); swp(1)
    e(f"buffer_store_dwordx2 {vr(pk+8,2)}, v{vOUT2}, {srd(sOUT)}, s{sOB2 if D1 else sOB} offen offset:128 {opt['outaux']}")
def phase2_c():
    B1, B2, MA = opt["b1"], opt["b2"], opt["madd"]
    hp = opt["hpre"]
    ML = []
    WD = list(WDL)
    for i in range(48):
        g = [hload]
        k = 12 - len(WD)
        if WD and (i >= opt["w5s"] + (k - (12 - len(WDL))) * opt["w5k"] or i >= 24 + k): g.append(WD.pop(0))
        ML.append(g)
    assert not WD
    TL = []
    while len(TDONE) < 12: TL += tgroup_ops(len(TDONE))
    pre = [f for g in ML[:hp] for f in g]
    if opt["rcl"]:
        assert len(pre) == hp
        pre.append(r_check)
    for f in merge(pre, TL): f()
    del ML[:hp]
    LG.drain()
    stamp()
    A5 = 240
    def wr(blk, jj, src):
        def f():
            e(f"ds_write_b128 v{vRW if blk < 2 else vRW2}, {src} offset:{(blk%2)*32768 + jj*1024}"); LG.issue("red")
        return f
    def rd(pp, j, dst):
        def f():
            e(f"ds_read_b128 {vr(dst, 4)}, v{vRR+pp} offset:{j*1024}"); LG.issue(f"rr{pp}{j}")
        return f
    for p in range(4):
        ac = vACC2 + (p % 2) * 20
        pa = vACC2 + ((p-1) % 2) * 20
        NM = [4, 4, 7, 5][p]
        slots = {(n, j): [] for n in range(12) for j in range(NM)}
        def put(i0, step, fs):
            for k, f in enumerate(fs):
                i = i0 + k * step
                slots[(i // NM, i % NM)].append(f)
        if p > 0:
            ws = [wr(p-1, jj, vr(pa+4*jj, 4)) for jj in range(4)]
            if p == 3: ws += [wr(b, 4, ar(A5+4*b, 4)) for b in range(3)]
            put(NM, 2, ws)
            if p == 3: assert NM + 2*6 < B2 * NM
        if p == 2:
            assert B1 >= 4
            put(B1 * NM, 1, [rd(pp, j, vH + pp*48 + 4*j) for j in range(4) for pp in range(2)])
            def mk(i):
                def a():
                    LG.wait(f"rr1{i//4}")
                    e(f"v_add_f32 v{pa+i}, v{vH+i}, v{vH+48+i}")
                return a
            put(8 * NM, 1, [mk(i) for i in range(16)])
        if p == 3:
            put(B2 * NM, 1, [rd(pp, 4, vH + 16 + 4*pp) for pp in range(3)] + [rd(2, j, vH + 4*j) for j in range(4)])
            def mk(i):
                def a():
                    LG.wait(f"rr{1 + i//4}4")
                    e(f"v_add_f32 v{vH+16+i%4}, v{vH+16+i%4}, v{vH+20+i}")
                return a
            put((MA - 2) * NM, 1, [mk(i) for i in range(8)])
            assert MA - 2 >= B2 + 2
        for n in range(12):
            if (p == 2 and n == B1) or (p == 3 and n == B2):
                if p == 3: allc_check(); stamp(k=2)
                LG.drain(); e("s_barrier")
                if p == 3: stamp(k=2)
            VM.wait(f"h{p}_{n}")
            if n == 0 or (n == 6 and p < 3): stamp(k=2)
            def madd(j):
                LG.wait(f"rr2{j}")
                for r in range(4): e(f"v_add_f32 v{ac+4*j+r}, v{ac+4*j+r}, v{vH+4*j+r}")
            mid = p == 3 and n == MA
            if mid: e("s_nop 3"); madd(0)
            g = ML.pop(0) if ML else []
            for j in range(NM):
                if j < 4 or p == 3:
                    d = vr(ac+4*j, 4); b = p
                    c = "0" if n == 0 and (p < 3 or j == 4) else d
                else:
                    b = (j - 2) % 3
                    d = ar(A5+4*b, 4); c = "0" if n == 0 else d
                    assert not any(f is not hload and f.__defaults__[0] == n for gg in ML + [g] for f in gg), n
                    VM.wait(f"w{n}")
                if mid:
                    if j < 4: madd(j+1)
                    else: e("s_nop 0")
                e(f"v_mfma_f32_16x16x32_bf16 {d}, {ar(n*20+4*min(j,4),4)}, {vr(vH+(b*12+n)*4,4)}, {c}")
                if g and j in (opt["hj"], 3): g.pop(0)()
                for f in slots[(n, j)]: f()
            assert not g
    out_tail()
def phase2_ab():
    OA = opt["owna"]
    NE = opt["ne"]; NL = 12 - NE
    items = [(p, n) for p in range(3) for n in range(NE)] + [(3, n) for n in range(OA)]
    NA = len(items)
    items += [(p, n) for p in range(3) for n in range(NE, 12)] + [(3, n) for n in range(OA, 12)]
    NS = 36; vH2 = 112
    acc = lambda p, j: 24 + 20*p + 4*j
    hp = opt["hpre"]
    HI = list(range(48))
    seen = set()
    I0 = 0
    def own_mf(k):
        if not opt["own"] or k != opt["omp"]: return
        VM.wait("w0")
        for p in range(4):
            LG.wait(f"or{p}")
            for j in range(5):
                e(f"v_mfma_f32_16x16x32_bf16 {vr(acc(p,j),4)}, {ar(4*j,4)}, {vr(vH2+p*4,4)}, 0")
    if opt["own"]:
        items = [(p, 0) for p in range(4)] + [(p, n) for p in range(4) for n in range(1, 12)]
        HI = HI[4:]; I0 = 4; seen = {0, 1, 2, 3}
        for p in range(4):
            e(f"ds_read_b128 {vr(vH2+p*4, 4)}, v{vOW+2} offset:{p*1024}"); LG.issue(f"or{p}")
    def hl():
        if not HI: return
        i = HI.pop(0); p, n = items[i]
        if i == NA and not opt["dfw"]:
            spin_check("hpb", vPOLL, vPA, "pollB", sPOL, opt["nopoll"]); stamp(k=7)
        e(f"buffer_load_dwordx4 {vr(vH2 + (i % NS)*4, 4)}, v{vHB+p}, {srd(sH)}, s{sSIG+n} offen {opt['haux'].replace('-','')}"); VM.issue(f"h{i}")
    if opt["pae"] < 0:
        for f in take(max(0, len(W2L) - opt["pa"])): f()
        e(f"buffer_load_dword v{vPOLL}, v{vPA}, {srd(sH)}, s{sPOL} offen sc1"); VM.issue("poll")
        for f in take(opt["ec"]): f()
    own_mf(0)
    VM.wait("poll")
    stamp(); stamp(k=7)
    spin_check("hp", vPOLL, vPA, "poll", sPOL, opt["nopoll"])
    stamp(); stamp(k=2); stamp(k=7)
    e(f"s_add_u32 s{sPOL}, s{sPOL}, {FLB}")
    allc_load()
    for _ in range(hp): hl()
    for f in take(opt["wsk"]): f()
    own_mf(1)
    stamp()
    slots = {(i, j): [] for i in range(48) for j in range(5)}
    if opt["own"]: NA = 37
    L3 = NA + 3*NL
    for p in range(3):
        i0 = NA + NL*(p+1) if NL else NE*(p+1)
        if opt["own"]: i0 = 4 + 11*(p+1)
        for jj, (di, j) in enumerate([(1, 0), (1, 2), (1, 4), (2, 1), (2, 3)]):
            def w(jj=jj, p=p):
                e(f"ds_write_b128 v{vRW}, {vr(acc(p,jj),4)} offset:{p*5120 + jj*1024}"); LG.issue("red")
            slots[(i0 + di, j)].append(w)
    IB = L3 + opt["rb"]
    k = 0
    rest = 48 - IB
    assert rest >= 1
    rds = []
    for j in range(5):
        for pp in range(3):
            def f(pp=pp, j=j):
                e(f"ds_read_b128 {vr(acc(pp,j), 4)}, v{vRR+pp} offset:{j*1024}"); LG.issue(f"rr{j}")
            rds.append(f)
    per = 1 if rest >= 7 else 3
    for k, f in enumerate(rds): slots[(IB + k // per // 5, k // per % 5)].append(f)
    adds = []
    for j in range(5):
        for pp in (1, 2):
            for r in (0, 2):
                def a(j=j, pp=pp, r=r):
                    LG.wait(f"rr{j}")
                    if opt["epk"]: e(f"v_pk_add_f32 {vr(acc(0,j)+r,2)}, {vr(acc(0,j)+r,2)}, {vr(acc(pp,j)+r,2)}")
                    else:
                        for z in range(2): e(f"v_add_f32 v{acc(0,j)+r+z}, v{acc(0,j)+r+z}, v{acc(pp,j)+r+z}")
                adds.append(a)
    MA = 47 if rest >= 7 else None
    if MA:
        a0 = (MA - 3) * 5 - 5
        for k, f in enumerate(adds): slots[((a0 + k) // 5, (a0 + k) % 5)].append(f)
    for i, (p, n) in enumerate(items):
        if i < I0: continue
        if i == IB:
            allc_check(); stamp(k=2)
            LG.drain(); e("s_barrier")
            stamp(k=2)
        assert i not in HI and not any(f.__defaults__[0] == n for f in W2L), (i, n)
        late = max((f"h{i}", f"w{n}"), key=lambda t: len(VM.q) - 1 - VM.q[::-1].index(t) if t in VM.q else -1)
        VM.wait(late)
        if i % 8 == 0: stamp(k=2)
        def madd(j):
            if opt["epk"]:
                for r in (0, 2): e(f"v_pk_add_f32 {vr(acc(3,j)+r,2)}, {vr(acc(3,j)+r,2)}, {vr(acc(0,j)+r,2)}")
            else:
                for r in range(4): e(f"v_add_f32 v{acc(3,j)+r}, v{acc(3,j)+r}, v{acc(0,j)+r}")
        mid = i == MA
        if mid: e("s_nop 3"); madd(0)
        for j in range(5):
            c = vr(acc(p,j), 4) if p in seen else "0"
            if mid:
                if j < 4: madd(j+1)
                else: e("s_nop 1")
            e(f"v_mfma_f32_16x16x32_bf16 {vr(acc(p,j),4)}, {ar(n*20+4*j,4)}, {vr(vH2+(i % NS)*4,4)}, {c}")
            if j == opt["hj"]: hl()
            if j == 3 and i % opt["wr"] == 0:
                for f in take(1): f()
            if j == 4 and i == opt["pb"] and not opt["dfw"]:
                e(f"buffer_load_dword v{vPOLL}, v{vPA}, {srd(sH)}, s{sPOL} offen sc1"); VM.issue("pollB")
            for f in slots[(i, j)]: f()
        seen.add(p)
    stamp(); stamp(k=2); stamp(k=7)
    if opt["enc"]: stamp(True)
    ac = acc(3, 0)
    pk = vH2 + 64
    if not MA:
        for f in adds: f()
        for j in range(5): madd(j)
    def cvt(j):
        for r in range(2): e(f"v_cvt_pk_bf16_f32 v{pk+2*j+r}, v{ac+4*j+2*r}, v{ac+4*j+2*r+1}")
    def swp(b):
        e(f"v_permlane32_swap_b32 v{pk+4*b}, v{pk+4*b+2}")
        e(f"v_permlane32_swap_b32 v{pk+4*b+1}, v{pk+4*b+3}")
        if opt["enc"]:
            e("s_waitcnt lgkmcnt(0)")
            e(f"v_lshrrev_b32 v{vT+1}, 4, v{vL16}")
            for r in range(4):
                i = 4*b + r
                e(f"v_mov_b32 v{vT}, s{72+2*i}")
                e("s_mov_b32 exec_lo, 0")
                e(f"v_mov_b32 v{vT}, s{72+2*min(i+8, 14)}")
                e("s_mov_b32 exec_lo, -1")
                e(f"v_lshrrev_b32 v{vT}, v{vT+1}, v{vT}")
                e(f"v_bfi_b32 v{pk+4*b+r}, 1, v{vT}, v{pk+4*b+r}")
        e(f"buffer_store_dwordx4 {vr(pk+4*b,4)}, v{vOUT}, {srd(sOUT)}, s{sOB} offen offset:{64*b} {opt['outaux']}")
    e("s_nop 3")
    cvt(0); cvt(1); cvt(2); swp(0); cvt(3); cvt(4); swp(1)
    e(f"buffer_store_dwordx2 {vr(pk+8,2)}, v{vOUT2}, {srd(sOUT)}, s{sOB} offen offset:128 {opt['outaux']}")
assert opt["tail"]
if opt["ab"] or opt["dfw"]: phase2_ab()
elif opt["c5"]: phase2_c()
else: phase2_new()
e(f"s_or_b32 s{sT0}, s{sW}, s2")
e(f"s_cmp_lg_u32 s{sT0}, 0")
e("s_cbranch_scc1 L_nobump")
e(f"s_add_u32 s{sE}, s{sE}, 1")
e(f"v_mov_b32 v{vT}, s{sE}")
e(f"s_mov_b32 s{sT0}, {EP}")
e("s_mov_b64 exec, 1")
e(f"buffer_store_dword v{vT}, off, {srd(sH)}, s{sT0}")
e("s_mov_b64 exec, -1")
e("L_nobump:")
if opt["enc"]: sys.stderr.write(f"enc stamps {NST[0]}\n")
if opt["stamps"] and not opt["enc"]:
    e("s_waitcnt vmcnt(0)")
    stamp(k=-1); stamp(True)
    ns = NST[0]
    assert 72 + 2*ns <= 102
    e("s_waitcnt lgkmcnt(0)")
    if opt["rt"]:
        e(f"s_lshl_b32 s{sT0}, s2, 2")
        e(f"s_add_u32 s{sT0}, s{sT0}, s{sW}")
        e(f"s_mul_i32 s{sT0}, s{sT0}, {ns*8}")
    else:
        e(f"s_cmp_lg_u32 s{sW}, {opt['stamps']-1}")
        e("s_cbranch_scc1 L_end")
        e(f"s_mul_i32 s{sT0}, s2, {ns*8}")
    e("s_mov_b64 exec, 1")
    e(f"s_add_u32 s{sT0}, s{sT0}, {0x8000000 - (opt['wso'] << 20)}")
    e(f"v_mov_b32 v{vT}, s{sT0}")
    for i in range(ns):
        e(f"v_mov_b32 v24, s{72+2*i}"); e(f"v_mov_b32 v25, s{73+2*i}")
        e(f"global_store_dwordx2 v{vT}, v[24:25], s[12:13] offset:{i*8}"); e("s_nop 1")
    sys.stderr.write(f"nstamps {ns}\n")
LATE += OOL
if LATE:
    e("s_endpgm")
    O.extend(LATE)
e("L_end:")

hdr = f"""; FFN out = silu(x @ w1) @ w2, one launch, 256 workgroups (one per CU).
; @launch grid=(256,1,1) block=(256,1,1) lds=163840
.amdgcn_target "amdgcn-amd-amdhsa--gfx950"
.text
.globl {NAME}
.p2align 8
.type {NAME},@function
{NAME}:
"""
ftr = f"""s_endpgm
.section .rodata,"a"
.p2align 6
.amdhsa_kernel {NAME}
  .amdhsa_next_free_vgpr 512
  .amdhsa_next_free_sgpr 102
  .amdhsa_accum_offset 256
  .amdhsa_group_segment_fixed_size 0
  .amdhsa_kernarg_size 48
  .amdhsa_user_sgpr_count 2
  .amdhsa_user_sgpr_kernarg_segment_ptr 1
  .amdhsa_system_sgpr_workgroup_id_x 1
.end_amdhsa_kernel
"""
def sizes(lines):
    import subprocess, tempfile, os, re
    d = tempfile.mkdtemp()
    t = hdr + "\n".join(f"Z{i}:\n{l}" for i, l in enumerate(lines)) + "\nL_w1x:\n" + ftr
    for k in range(1, 4):
        if f"L_w{k}:" not in lines: t = t.replace(f"L_w{k}\n", "L_w1x\n")
    open(d + "/a.s", "w").write(t)
    r = subprocess.run(["clang", "-x", "assembler", "-target", "amdgcn-amd-amdhsa", "-mcpu=gfx950", "-c", d + "/a.s", "-o", d + "/a.o"], capture_output=True, text=True)
    assert r.returncode == 0, r.stderr
    import struct
    b = open(d + "/a.o", "rb").read()
    shoff = struct.unpack_from("<Q", b, 0x28)[0]; shn = struct.unpack_from("<H", b, 0x3c)[0]
    sec = [struct.unpack_from("<IIQQQQIIQQ", b, shoff + 64*i) for i in range(shn)]
    sy = [x for x in sec if x[1] == 2][0]; st = sec[sy[6]]
    ad = {}
    for i in range(sy[5] // 24):
        n, _, _, _, v, _ = struct.unpack_from("<IBBHQQ", b, sy[4] + 24*i)
        nm = b[st[4]+n:b.index(b"\0", st[4]+n)].decode()
        if re.fullmatch(r"Z\d+", nm): ad[int(nm[1:])] = v
    return ad
if opt["wu"] >= 0:
    assert opt["al"]
    for k in range(1, 4):
        ad = sizes(O)
        i = min(j for j in range(len(O)) if ad[j] >= 4096*k and not O[j].startswith(".") and not O[j].endswith(":"))
        O[i:i] = [f"L_w{k}:", "s_cbranch_execz L_wr"]
        sys.stderr.write(f"page {k}: {O[i-1]} | {O[i+2]}\n")
    if opt["stamps"]: sys.stderr.write(f"nstamps {NST[0]}\n")
body = "\n".join(("" if l.endswith(":") else "    ") + l.rstrip() for l in O)
open(sys.argv[1], "w").write(hdr + body + "\n" + ftr)
```

```python
import sys
from haz import fix
NAME = "standalone__dense_activation_silu__prompt_kernel"
opt = dict(tpre=0, fpre=0, rpl=-1, rtab='', ttab='', pfs='', skd=0, sk5=0, al=0, wu=-1, pat='', pat1='', hid=0, r16=0, ro=0, sil=0, sild=2, silk='1', e7=0, e7a=10, e7b=10, fp='', qm=0, swab=0, wtc=0, rmap=0, nw=-1, wx='', wxp=99, acb=0, acp=-1, wq='', rds=1, ad0=8, t4=0, k4=0, k2=3, fr=3, fd=2, a4=0, bp=0, ofk=0, w5aux='sc1', rpk=0, pl2=7, nom=0, owv=1, ow=0, owp=2, ada=7, wb64=0, wg0=3, wgs=2, smd=0, dst=-1, dn=4, st0=0, nhw=0, wtx=0, tfm=0, tpm=0, tsil=0, c5=0, w5s=8, w5k=2, rcl=0, w5d=0, tin=0, sw=-1, sws=-1, swp=0, swn=15, ems=1, pqd=0, tlate=0, tmix=1, wt=-1, wts=-1, wtp=99, wth=0, wtaux='', d1=0, d7=0, w5p=4, tl=8, rpq=0, waux='', es=-1, esaux='sc1', ot=-1, otm=1, enc=0, w0p=0, own=0, omp=0, dfw=0, ne=8, clr=-1, clrs='', spec=0, fw=12, wl=0, rsp=99, rrp=0, fb=0, tch=0, la=4, tp0=0, tpos=8, th=1, ns=3, n7=0, rcs=8, epk=1, fk=0, ost=0, pae=-1, wsk=0, afs=0, ab=0, afp=0, pa=20, pb=6, wr=1, owna=0, rb=4, skipw=0, m16=0, rtm=0, po="", rsaux="sc1", emu="", emv=1, fs=128, dw=8, eq=0, ec=4, epre=16, eil="h12w9", pfm=3, stamps=0, rot=1, rot2=1, pf=1, outaux="", map=2, raux="nt", xaux="", haux="sc1", hsaux="sc1", hs2="", wb=0, wso=0, sp=0, spg="", nord=0, nomf1=0, norp=0, pk=1, tail=1, b1=4, b2=4, madd=8, pt=0, fst=0, tab="x037", nost=0, novalu=0, nomf2=0, noh=0, hj=1, w2aux="sc1", w1aux="",
           sa=0, ma=10, sb=0, mb=10, mx=0, n8=8, n9=8, nb=0, post=0, pollq=8, hpre=8, sep=0, sts=0, rpos=0, rls=0, rjs=2, rpp=0, rps=7, rck=0, nopoll=0, rfs=4, sl=0, head=50, nf0=4, pre3=0, rt=0, own2=2, ntst=10, mid=2, xlin=0, nor=0)
for a in sys.argv[2:]:
    k, v = a.split("=")
    assert k in opt, k
    opt[k] = int(v) if v.lstrip("-").isdigit() else v.replace("_", " ")
if opt["own"]: opt["dfw"] = 1; opt["ne"] = 12; assert opt["fb"] and opt["own2"] == 2
D1 = opt['d1']
RPW = opt['rfs'] >= 10
if RPW: assert D1 and opt['rpk']
R2 = '2' in str(opt['rtab'])
if R2: assert D1 and opt['rpk'] and not RPW and not opt['ow']
OW = opt['ow']
if OW: assert D1 and opt['own2'] == 2 and opt['post'] <= 12 and not opt['c5'] and not opt['w5d'] and not opt['smd'] and str(opt['nb']) == '0'
if D1: assert not (opt['own'] or opt['ab'] or opt['dfw'] or opt['spec'] or opt['eq'] or opt['tch'] or opt['po']) and opt['fb'] and opt['ns'] == 3
O = []
def e(s): O.append(s)
NST = [0]
def stamp(rt=False, k=0):
    if not opt["stamps"]: return
    if not rt and NST[0] > 1 and k != opt["sts"] and k != -1: return
    i = NST[0]; NST[0] += 1
    e(f"s_memrealtime s[{72+2*i}:{73+2*i}]" if rt or opt["rt"] or opt["rtm"] else f"s_memtime s[{72+2*i}:{73+2*i}]")

class Q:
    def __init__(s, name, mx): s.name = name; s.mx = mx; s.q = []
    def issue(s, tag): s.q.append(tag)
    def wait(s, tag):
        if tag not in s.q: return
        i = len(s.q) - 1 - s.q[::-1].index(tag)
        n = min(len(s.q) - 1 - i, s.mx)
        e(f"s_waitcnt {s.name}({n})")
        s.q = s.q[len(s.q)-n:] if n else []
    def drain(s):
        e(f"s_waitcnt {s.name}(0)"); s.q = []
VM = Q("vmcnt", 63); LG = Q("lgkmcnt", 15)

FL = 0x600000; EP = 0x608000; RFL = 0x610000; W2F = 0x620000; HREC = 0x800000
if opt['spec']: FL = 0x800000; HREC = 0x820000
FS = opt["fs"]
if FS > 128: FL = 0x800000; HREC = FL + 256 * FS
FLB = 0x200000
if opt["ab"]: HREC = 0x808000
RED = 98304; RB = 98304 if opt['ns'] == 3 else 131072; CNT = 159744
NSL = opt['ns']
sX, sW1, sW2, sOUT, sH = 16, 20, 24, 28, 32
(sW, sMT, sFT, sKX, sKW, sXB, sWB, sXE, sM0, sT0, sT1, sE, sTAG, sHS, sHS2, sFLG, sPOL, sW2B, sOWN, sROT,
 sRS, sRD, sWO, sL2E) = range(36, 60)
sSIG = 60
sPK = 4; sOB = 3; sRFL = 14; sSPIN = 15
vL16 = 1; vL16b = 2; vOUT = 3; vOUT2 = 4; vRW = 5; vRP = 6; vHS = 7
vPOLL = 8; vL4 = 9; vPA = 19
vRR = 10
vHB = 13
vT = 17
vCN = 20; vONE = 21; vAV = 22; vAC = 23
vDX = 24; vDW = 26; vDR = 32
vA = 34; vB = 36
vRA = 44
vTM = 46
vACC1 = 64; vAF = 112; vBF = 160; vS = 176; vRF = 192
vWD = 56; vWT = 60; sW5B = 6; sOB2 = 7; vRW2 = 20
vH = 64; vACC2 = 24; vOW = 240; OWN = 32768; sHS1 = 6
def mf2(d, n, j, b, c):
    a = ar(n*20+4*j, 4)
    if j == 4 and opt["t4"]: a, b = b, a
    e(f"v_mfma_f32_16x16x32_bf16 {d}, {a}, {b}, {c}")
def srd(r): return f"s[{r}:{r+3}]"
def vr(r, n): return f"v[{r}:{r+n-1}]"
def ar(r, n): return f"a[{r}:{r+n-1}]"
def capture(fn):
    global O
    sv = O; O = []; fn(); r = O; O = sv; return r

e("s_cmp_ge_u32 s2, 256")
e("s_cbranch_scc1 L_end")
stamp(True); stamp()
e("s_load_dwordx8 s[4:11], s[0:1], 0")
e("s_load_dwordx2 s[12:13], s[0:1], 40")
L, Wv = vTM, vTM+1
t0, t1, t2, t3 = vTM+2, vTM+3, vTM+4, vTM+5
e(f"v_and_b32 v{L}, 63, v0")
e(f"v_lshrrev_b32 v{Wv}, 6, v0")
e(f"v_lshlrev_b32 v{vL16}, 4, v{L}")
e(f"v_readfirstlane_b32 s{sW}, v{Wv}")
if opt["pf"]:
    e("s_getpc_b64 s[14:15]")
    e("L_pc:")
    if opt["pfs"]:
        tb = (str(opt["pfs"]).lstrip("x") + "0" * 32)[:32]
        tv = sum(int(c) << (2*i) for i, c in enumerate(tb))
        e(f"s_lshr_b32 s{sT0}, s2, 2")
        e(f"s_and_b32 s{sT0}, s{sT0}, 62")
        if tv >> 32:
            e(f"s_mov_b32 s{sSIG}, {tv & 0xffffffff}")
            e(f"s_mov_b32 s{sSIG+1}, {tv >> 32}")
            e(f"s_lshr_b64 s[{sSIG}:{sSIG+1}], s[{sSIG}:{sSIG+1}], s{sT0}")
        else:
            e(f"s_lshr_b64 s[{sSIG}:{sSIG+1}], {tv}, s{sT0}")
        e(f"s_and_b32 s{sT0}, s{sSIG}, 3")
    else:
        e(f"s_lshr_b32 s{sT0}, s2, 3")
        e(f"s_and_b32 s{sT0}, s{sT0}, {opt['pfm']}")
    e(f"s_lshl_b32 s{sT0}, s{sT0}, 12")
    e(f"v_lshl_add_u32 v{t0}, v0, 4, s{sT0}")
    e(f"v_min_u32 v{t0}, L_end-L_pc-16, v{t0}")
    e(f"global_load_dwordx4 v[252:255], v{t0}, s[14:15]")
    VM.issue("pf")
fa = opt["map"]
e(f"s_and_b32 s{sT0}, s2, 7")
e(f"s_lshr_b32 s{sT1}, s2, 3")
e(f"s_and_b32 s{sFT}, s{sT1}, {(1<<fa)-1}")
e(f"s_lshr_b32 s{sMT}, s{sT1}, {fa}")
if opt["rot"] == 3:
    tb = str(opt["tab"]).lstrip("x")
    tv = sum(int(c) << (4*i) for i, c in enumerate((tb * 16)[:16]))
    e(f"s_mul_i32 s{sKX}, s{sMT}, {opt['ma']}")
    e(f"s_mul_i32 s{sT1}, s{sFT}, {opt['mb']}")
    e(f"s_add_u32 s{sKX}, s{sKX}, s{sT1}")
    e(f"s_lshl_b32 s{sKX}, s{sKX}, 2")
    e(f"s_mov_b32 s{sSIG}, {tv & 0xffffffff}")
    e(f"s_mov_b32 s{sSIG+1}, {tv >> 32}")
    e(f"s_lshr_b64 s[{sSIG}:{sSIG+1}], s[{sSIG}:{sSIG+1}], s{sKX}")
    e(f"s_and_b32 s{sKX}, s{sSIG}, 15")
elif opt["rot"]:
    e(f"s_lshr_b32 s{sKX}, s{sMT}, {opt['sa']}")
    e(f"s_mul_i32 s{sKX}, s{sKX}, {opt['ma']}")
    e(f"s_lshr_b32 s{sT1}, s{sFT}, {opt['sb']}")
    e(f"s_mul_i32 s{sT1}, s{sT1}, {opt['mb']}")
    e(f"s_add_u32 s{sKX}, s{sKX}, s{sT1}")
    if opt['mx']:
        e(f"s_mul_i32 s{sT1}, s{sT0}, {opt['mx']}")
        e(f"s_add_u32 s{sKX}, s{sKX}, s{sT1}")
    e(f"s_lshr_b32 s{sKX}, s{sKX}, 2")
    e(f"s_mul_i32 s{sT1}, s{sKX}, 205")
    e(f"s_lshr_b32 s{sT1}, s{sT1}, 11")
    e(f"s_mul_i32 s{sT1}, s{sT1}, 10")
    e(f"s_sub_u32 s{sKX}, s{sKX}, s{sT1}")
else:
    e(f"s_mov_b32 s{sKX}, 0")
if opt["ab"]:
    e(f"s_lshl_b32 s{sROT}, s{sMT}, 2")
elif opt["rot2"] == 3:
    e(f"s_and_b32 s{sROT}, s{sMT}, 1")
    e(f"s_mul_i32 s{sROT}, s{sROT}, 6")
elif opt["rot2"] == 4:
    e(f"s_lshr_b32 s{sROT}, s{sMT}, 1")
    e(f"s_mul_i32 s{sROT}, s{sROT}, 3")
elif opt["rot2"] == 5:
    e(f"s_and_b32 s{sROT}, s{sMT}, 3")
elif opt["rot2"] == 6:
    e(f"s_mul_i32 s{sROT}, s{sMT}, 3")
    e(f"s_lshr_b32 s{sROT}, s{sROT}, 3")
    e(f"s_lshl_b32 s{sROT}, s{sROT}, 2")
elif opt["rot2"] == 7:
    e(f"s_mul_i32 s{sROT}, s{sMT}, 12")
    e(f"s_lshr_b32 s{sROT}, s{sROT}, 3")
    e(f"s_bitcmp1_b32 s2, 1")
    e(f"s_addc_u32 s{sROT}, s{sROT}, 0")
elif opt["rot2"] == 2:
    e(f"s_and_b32 s{sROT}, s{sMT}, 3")
    e(f"s_mul_i32 s{sROT}, s{sROT}, 3")
elif opt["rot2"]:
    e(f"s_mul_i32 s{sROT}, s{sMT}, 12")
    e(f"s_lshr_b32 s{sROT}, s{sROT}, {5-fa}")
else:
    e(f"s_mov_b32 s{sROT}, 0")
e(f"s_and_b32 s{sT1}, s{sT0}, {(8>>fa)-1}")
e(f"s_lshl_b32 s{sT1}, s{sT1}, {fa}")
e(f"s_add_u32 s{sFT}, s{sFT}, s{sT1}")
e(f"s_lshr_b32 s{sT1}, s{sT0}, {3-fa}")
e(f"s_lshl_b32 s{sT1}, s{sT1}, {5-fa}")
e(f"s_add_u32 s{sMT}, s{sMT}, s{sT1}")
e(f"s_mul_i32 s{sXB}, s{sMT}, 81920")
e(f"s_mul_i32 s{sWB}, s{sFT}, 384")
e(f"s_add_u32 s{sXE}, s{sXB}, 1280")
e(f"s_mul_i32 s{sKW}, s{sKX}, {64*3072}")
e(f"s_add_u32 s{sKW}, s{sKW}, s{sWB}")
e(f"s_lshl_b32 s{sKX}, s{sKX}, 7")
e(f"s_add_u32 s{sKX}, s{sKX}, s{sXB}")
G = vTM+6
e(f"v_lshrrev_b32 v{G}, 4, v{L}")
e(f"v_lshrrev_b32 v{t0}, 3, v{L}")
e(f"v_lshl_add_u32 v{t0}, v{Wv}, 4, v{t0}")
e(f"v_mul_u32_u24 v{t0}, 1280, v{t0}")
e(f"v_and_b32 v{t1}, 7, v{L}")
e(f"v_xor_b32 v{t1}, v{t1}, v{G}")
e(f"v_lshl_add_u32 v{vDX}, v{t1}, 4, v{t0}")
e(f"v_xor_b32 v{t1}, 4, v{t1}")
e(f"v_lshl_add_u32 v{vDX+1}, v{t1}, 4, v{t0}")
e(f"v_add_u32 v{vDX+1}, {8*1280-1024}, v{vDX+1}")
if opt["xlin"]:
    e(f"v_lshl_add_u32 v{vDX}, v{Wv}, 11, v{vL16}")
    e(f"v_mov_b32 v{vDX+1}, v{vDX}")
    e(f"s_and_b32 s{sT0}, s{sFT}, 3")
    e(f"s_mul_i32 s{sT0}, s{sT0}, {opt['xlin']}")
    e(f"s_lshr_b32 s{sT0}, s{sT0}, 2")
    e(f"s_lshl_b32 s100, s{sT0}, 13")
    e(f"s_add_u32 s100, s100, s{sXB}")
    e(f"s_add_u32 s101, s{sXB}, 81920")
e(f"v_mul_u32_u24 v{t3}, {16*3072}, v{Wv}")
for i in range(3):
    if i: e(f"v_add_u32 v{t0}, {64*i}, v{L}")
    src = t0 if i else L
    e(f"v_mul_u32_u24 v{t1}, 2731, v{src}")
    e(f"v_lshrrev_b32 v{t1}, 16, v{t1}")
    e(f"v_mul_u32_u24 v{t2}, 24, v{t1}")
    e(f"v_sub_u32 v{t0}, v{src}, v{t2}")
    e(f"v_and_b32 v{t2}, 2, v{t1}")
    e(f"v_lshlrev_b32 v{t2}, 1, v{t2}")
    e(f"v_xor_b32 v{t0}, v{t0}, v{t2}")
    e(f"v_mul_u32_u24 v{t1}, 3072, v{t1}")
    e(f"v_lshl_add_u32 v{t0}, v{t0}, 4, v{t1}")
    e(f"v_add_u32 v{t0}, v{t0}, v{t3}")
    if i: e(f"v_subrev_u32 v{vDW+i}, {i*1024}, v{t0}")
    else: e(f"v_mov_b32 v{vDW}, v{t0}")
    if opt["r16"]: e(f"v_xor_b32 v{t0}, 16, v{t0}")
    e(f"v_add_u32 v{vDW+3+i}, {8*3072 - ((i+3)%4)*1024}, v{t0}")
if opt["e7"]:
    e(f"s_lshr_b32 s{sT0}, s{sMT}, 1")
    e(f"s_and_b32 s{sT1}, s{sMT}, 1")
    e(f"s_lshl1_add_u32 s{sT1}, s{sFT}, s{sT1}")
    e(f"s_mul_i32 s{sXB}, s{sT0}, 163840")
    e(f"s_mul_i32 s{sWB}, s{sT1}, {192 if opt['e7'] == 1 else 128}")
    e(f"s_and_b32 s{sT0}, s{sT0}, 3")
    e(f"s_and_b32 s{sT1}, s{sT1}, 7")
    e(f"s_mul_i32 s{sT0}, s{sT0}, {opt['e7a']}")
    e(f"s_mul_i32 s{sT1}, s{sT1}, {opt['e7b']}")
    e(f"s_add_u32 s{sKX}, s{sT0}, s{sT1}")
    e(f"s_lshr_b32 s{sKX}, s{sKX}, 2")
    e(f"s_mul_i32 s{sT1}, s{sKX}, 205")
    e(f"s_lshr_b32 s{sT1}, s{sT1}, 11")
    e(f"s_mul_i32 s{sT1}, s{sT1}, 10")
    e(f"s_sub_u32 s{sKX}, s{sKX}, s{sT1}")
    e(f"s_add_u32 s{sXE}, s{sXB}, 1280")
    e(f"s_mul_i32 s{sKW}, s{sKX}, {64*3072}")
    e(f"s_add_u32 s{sKW}, s{sKW}, s{sWB}")
    e(f"s_lshl_b32 s{sKX}, s{sKX}, 7")
    e(f"s_add_u32 s{sKX}, s{sKX}, s{sXB}")
    e(f"v_mul_u32_u24 v{t0}, {16*1280}, v{Wv}")
    e(f"v_add_u32 v{vDX}, v{vDX}, v{t0}")
    e(f"v_add_u32 v{vDX+1}, v{vDX+1}, v{t0}")
    e(f"v_add_u32 v{vDW+4}, {16*1280}, v{vDX}")
    e(f"v_add_u32 v{vDW+5}, {16*1280}, v{vDX+1}")
    for i in range(3):
        e(f"v_add_u32 v{t0}, {64*i}, v{L}")
        if opt["e7"] == 1:
            e(f"v_mul_u32_u24 v{t1}, 5462, v{t0}")
            e(f"v_lshrrev_b32 v{t1}, 16, v{t1}")
            e(f"v_mul_u32_u24 v{t1}, {3072 - 192}, v{t1}")
        else:
            e(f"v_lshrrev_b32 v{t1}, 3, v{t0}")
            e(f"v_mul_u32_u24 v{t1}, {2048 - 128}, v{t1}")
        e(f"v_lshl_add_u32 v{t0}, v{t0}, 4, v{t1}")
        e(f"v_add_u32 v{t0}, v{t0}, v{t3}")
        e(f"v_subrev_u32 v{vDW+i}, {i*1024}, v{t0}")
vTC = 250
if opt["tch"]:
    e(f"v_lshrrev_b32 v{t0}, 1, v{L}")
    e(f"v_mul_u32_u24 v{t1}, 1280, v{t0}")
    e(f"v_mul_u32_u24 v{t2}, 43, v{t0}")
    e(f"v_lshrrev_b32 v{t2}, 7, v{t2}")
    e(f"v_mul_u32_u24 v{t2}, {3072-384}, v{t2}")
    e(f"v_lshl_add_u32 v{t2}, v{t0}, 7, v{t2}")
    e(f"s_and_b32 s{sT0}, s{sFT}, 3")
    e(f"s_lshl_b32 s{sT0}, s{sT0}, 1")
    e(f"s_lshr_b32 s{sT1}, s{sW}, 1")
    e(f"s_add_u32 s{sT0}, s{sT0}, s{sT1}")
    e(f"s_mul_i32 s{sT0}, s{sT0}, {8*1280}")
    e(f"s_and_b32 s{sWO}, s{sMT}, 7")
    e(f"s_lshl_b32 s{sWO}, s{sWO}, 1")
    e(f"s_add_u32 s{sWO}, s{sWO}, s{sT1}")
    e(f"s_mul_i32 s{sWO}, s{sWO}, {4*3072}")
    e(f"s_add_u32 s{sT1}, s{sWB}, {640*3072}")
    e(f"s_bitcmp1_b32 s{sW}, 0")
    e(f"s_cselect_b64 vcc, -1, 0")
    e(f"v_cndmask_b32 v{vTC}, v{t1}, v{t2}, vcc")
    e(f"s_cselect_b32 s{sT0}, s{sWO}, s{sT0}")
    e(f"s_mov_b32 s{sWO}, {0xffff if opt['th'] else 0x5555}")
    e(f"s_cselect_b32 s{sWO}, {0xffffff if opt['th'] else 0x555555}, s{sWO}")
    e(f"s_cselect_b32 s{sHS}, s{sKW}, s{sKX}")
    e(f"s_movk_i32 s{sHS2}, 128")
    e(f"s_cselect_b32 s{sHS2}, {64*3072}, s{sHS2}")
    e(f"v_and_b32 v{t0}, 1, v{L}")
    e(f"v_lshl_add_u32 v{vTC}, v{t0}, 6, v{vTC}")
    e(f"v_add_u32 v{vTC}, s{sT0}, v{vTC}")
    e(f"s_cselect_b32 vcc_lo, s{sT1}, s{sXE}")
    e(f"s_cselect_b32 vcc_hi, s{sWB}, s{sXB}")
e(f"s_lshl_b32 s{sM0}, s{sW}, 13")
CLR = opt["clr"] >= 0 or opt["clrs"]
sCL = sHS
vNAN = 244
if CLR:
    e(f"s_lshl_b32 s{sT0}, s{sMT}, 2")
    e(f"s_lshr_b32 s{sT1}, s{sFT}, 1")
    e(f"s_add_u32 s{sT0}, s{sT0}, s{sT1}")
    e(f"s_lshl_b32 s{sT0}, s{sT0}, 2")
    e(f"s_add_u32 s{sT0}, s{sT0}, s{sW}")
    e(f"s_lshl_b32 s{sT0}, s{sT0}, 1")
    e(f"s_and_b32 s{sT1}, s{sFT}, 1")
    e(f"s_add_u32 s{sT0}, s{sT0}, s{sT1}")
    e(f"s_mul_i32 s{sT0}, s{sT0}, 6144")
    e(f"v_add_u32 v248, s{sT0}, v{vL16}")
    e(f"v_add_u32 v249, 3072, v248")
    for r in range(4): e(f"v_mov_b32 v{vNAN+r}, -1")
def clr_ops():
    def mk(i):
        def f():
            e(f"buffer_store_dwordx4 {vr(vNAN,4)}, v{248 + i//3}, {srd(sH)}, 0 offen offset:{(i%3)*1024} sc1"); VM.issue("clr")
        return f
    return [mk(i) for i in range(6)]
CLO = clr_ops()
e(f"s_mov_b32 s{sSPIN}, {EP}")
for r, n in ((sX, 2621440), (sW1, 1966080), (sW2, 1966080), (sOUT, 2621440), (sH, HREC)):
    e(f"s_mov_b32 s{r+2}, {n}"); e(f"s_mov_b32 s{r+3}, 0x20000")
e("s_waitcnt lgkmcnt(0)")
if opt["wso"]:
    e(f"s_add_u32 s12, s12, {opt['wso'] << 20}"); e("s_addc_u32 s13, s13, 0")
for r, p in ((sW2, 8), (sX, 4), (sW1, 6), (sOUT, 10), (sH, 12)):
    e(f"s_mov_b64 s[{r}:{r+1}], s[{p}:{p+1}]")
if opt["tch"]:
    e(f"s_bitcmp1_b32 s{sW}, 0")
    e(f"s_cselect_b64 s[8:9], s[6:7], s[4:5]")
    e(f"s_cselect_b32 s10, s{sW1+2}, s{sX+2}")
    e("s_mov_b32 s11, 0x20000")
    e(f"s_mov_b32 s6, s{sHS}")
    e(f"s_mov_b32 s7, s{sHS2}")
def touch():
    e("s_add_u32 s6, s6, s7")
    e("s_cmp_eq_u32 s6, vcc_lo")
    e("s_cselect_b32 s6, vcc_hi, s6")
    e(f"s_mov_b32 exec_lo, s{sWO}")
    e("s_mov_b32 exec_hi, 0")
    e(f"buffer_load_dword v251, v{vTC}, s[8:11], s6 offen"); VM.issue("tch")
    e("s_mov_b64 exec, -1")
stamp()
e(f"s_load_dword s{sE}, s[12:13], s{sSPIN}")

def adv_k():
    if opt["xlin"]:
        e(f"s_add_u32 s100, s100, 8192")
        e(f"s_cmp_eq_u32 s100, s101")
        e(f"s_cselect_b32 s100, s{sXB}, s100")
    e(f"s_add_u32 s{sKX}, s{sKX}, 128")
    e(f"s_add_u32 s{sKW}, s{sKW}, {64*3072}")
    e(f"s_cmp_eq_u32 s{sKX}, s{sXE}")
    e(f"s_cselect_b32 s{sKX}, s{sXB}, s{sKX}")
    e(f"s_cselect_b32 s{sKW}, s{sWB}, s{sKW}")
def dma_ops(st):
    base = (st % NSL) * 32768
    def mk(i):
        def f():
            if i == 0: e(f"s_add_u32 m0, s{sM0}, {base+6144}"); e("s_nop 0")
            if i < 2:
                e(f"buffer_load_dwordx4 v{vDX+i}, {srd(sX)}, s{100 if opt['xlin'] else sKX} offen offset:{i*1024} {opt['xaux'] if st < opt['ntst'] else ''} lds")
            elif opt["e7"] and i >= 5:
                if i == 5: e(f"s_add_u32 m0, s{sM0}, {base+4096}"); e("s_nop 0"); return
                e(f"buffer_load_dwordx4 v{vDW+i-2}, {srd(sX)}, s{sKX} offen offset:{(i-6)*1024} lds")
            else:
                j = i - 2
                e(f"buffer_load_dwordx4 v{vDW+j}, {srd(sW1)}, s{sKW} offen offset:{(j%4)*1024} {opt['w1aux'] if st < opt['ntst'] else ''} lds")
            VM.issue(f"st{st}")
            if i == 1: e(f"s_add_u32 m0, s{sM0}, {base}"); e("s_nop 0")
            if i == 5: e(f"s_add_u32 m0, s{sM0}, {base+4096}"); e("s_nop 0")
            if i == 7 and st < 9: adv_k()
        return f
    return [mk(i) for i in range(8)]

def setup2():
    R, C = t0, t1
    u0, u1, u2 = vTM+7, vTM+8, vTM+9
    if D1:
        RJ = 2
        if opt["rtab"]:
            RJ = 9
            tb = str(opt["rtab"]).lstrip("x"); assert len(tb) == 32 and sum(map(int, tb)) == 12
            m1_ = sum((c == "1") << i for i, c in enumerate(tb)); m2_ = sum((c == "2") << i for i, c in enumerate(tb))
            e(f"s_lshr_b32 s{sT0}, s2, 3")
            e(f"s_bfm_b32 s9, s{sT0}, 0")
            if R2:
                e(f"s_mov_b32 s8, {m2_}")
                e(f"s_bitcmp1_b32 s8, s{sT0}")
                e(f"s_cselect_b32 s8, s8, {m1_}")
                e(f"s_cselect_b32 s10, 1, 0")
                e(f"s_cselect_b32 s11, 0, {16 * tb.count('2')}")
                e(f"s_and_b32 s9, s9, s8")
            else: e(f"s_and_b32 s9, s9, {m1_}")
            e(f"s_bcnt1_i32_b32 s9, s9")
            e(f"s_and_b32 s{sT1}, s2, 7")
            e(f"s_lshl3_add_u32 s9, s9, s{sT1}")
            if R2:
                e(f"s_lshl_b32 s9, s9, s10")
                e(f"s_add_u32 s9, s9, s11")
            e(f"s_bitcmp1_b32 {'s8' if R2 else m1_}, s{sT0}")
            e(f"s_cselect_b32 s9, s9, 255")
        elif opt["rmap"]:
            RJ = 9
            e(f"s_lshr_b32 s9, s2, 4")
            e(f"s_lshl_b32 s9, s9, 3")
            e(f"s_and_b32 s{sT0}, s2, 7")
            e(f"s_add_u32 s9, s9, s{sT0}")
            if opt["rmap"] > 2: e(f"s_xor_b32 s9, s9, {0x60}")
            e(f"s_lshr_b32 s{sT0}, s2, 2")
            e(f"s_xor_b32 s{sT0}, s{sT0}, s2")
            e(f"s_bitcmp{(opt['rmap'] - 1) % 2}_b32 s{sT0}, 3")
            e(f"s_cselect_b32 s9, s9, 255")
        e(f"s_lshr_b32 s{sT1}, s{RJ}, 1")
        e(f"s_and_b32 s{sT0}, s{RJ}, 1")
        if opt["rpk"]:
            e(f"s_mul_i32 s{sRFL}, s{sT1}, 43")
            e(f"s_lshr_b32 s{sRFL}, s{sRFL}, 9")
            e(f"s_mul_i32 s{sRFL}, s{sRFL}, {128 // opt['rpk'] - 12}")
            e(f"s_add_u32 s{sRFL}, s{sRFL}, s{sT1}")
            e(f"s_mul_i32 s{sRFL}, s{sRFL}, {opt['rpk']}")
            if RPW: e(f"s_lshl2_add_u32 s{sRS}, s{sT0}, s{sW}")
            e(f"s_lshl_b32 s{sRS}, s{sRS if RPW else sT0}, 9")
            e(f"s_add_u32 s{sRFL}, s{sRFL}, s{sRS}")
        else:
            e(f"s_mul_i32 s{sRFL}, s{sT0}, 48")
            e(f"s_add_u32 s{sRFL}, s{sRFL}, s{sT1}")
            e(f"s_lshl_b32 s{sRFL}, s{sRFL}, 7")
        if OW:
            e(f"s_mul_i32 s{sRS}, s{sT1}, 43")
            e(f"s_lshr_b32 s{sRS}, s{sRS}, 9")
            e(f"s_mul_i32 s{sRS}, s{sRS}, 47")
            e(f"s_lshl_b32 s{sT1}, s{sT1}, 2")
            e(f"s_sub_u32 s{sT1}, s{sT1}, s{sRS}")
        e(f"s_lshl_b32 s{sRS}, s{sT1}, 2")
        e(f"s_add_u32 s{sRS}, s{sRS}, s{sW}")
        e(f"s_mul_i32 s{sRS}, s{sRS}, 10240")
        e(f"s_lshl_b32 s{sT0}, s{sT0}, 7")
        e(f"s_add_u32 s{sRS}, s{sRS}, s{sT0}")
        e(f"s_add_u32 s{sRS}, s{sRS}, 1024")
        e(f"s_lshl_b32 s{sRD}, s{RJ}, 2")
        e(f"s_add_u32 s{sRD}, s{sRD}, s{sW}")
        e(f"s_lshl_b32 s{sRD}, s{sRD}, 10")
        e(f"s_add_u32 s{sRD}, s{sRD}, {W2F}")
        e(f"s_cmp_lt_u32 s{RJ}, {0 if opt['nor'] else 96}")
        e(f"s_cselect_b32 s{sRS}, s{sRS}, 1966080")
        e(f"s_cselect_b32 s{sRD}, s{sRD}, {HREC}")
        e(f"s_cselect_b32 s{sRFL}, s{sRFL}, {HREC - RFL}")
    else:
        e(f"s_and_b32 s{sT0}, s2, 63")
        e(f"s_mul_i32 s{sT1}, s{sT0}, 205")
        e(f"s_lshr_b32 s{sT1}, s{sT1}, 10")
        e(f"s_mul_i32 s{sRS}, s{sT1}, 5")
        e(f"s_sub_u32 s{sRS}, s{sT0}, s{sRS}")
        e(f"s_lshr_b32 s{sRD}, s2, 6")
        e(f"s_mul_i32 s{sRFL}, s{sRD}, 5")
        e(f"s_add_u32 s{sRFL}, s{sRFL}, s{sRS}")
        e(f"s_lshl_b32 s{sRFL}, s{sRFL}, 4")
        e(f"s_add_u32 s{sRFL}, s{sRFL}, s{sT1}")
        e(f"s_lshl_b32 s{sRFL}, s{sRFL}, 7")
        if opt["own"]:
            e(f"s_mul_i32 s6, s{sT1}, 6")
            e(f"s_add_u32 s6, s6, s{sRD}")
            e(f"s_lshr_b32 s7, s{sT1}, 1")
            e(f"s_mul_i32 s7, s7, 6")
            e(f"s_and_b32 s8, s{sT1}, 1")
            e(f"s_add_u32 s7, s7, s8")
            e(f"s_mul_i32 s8, s{sRD}, 12")
            e(f"s_add_u32 s7, s7, s8")
            e(f"s_sub_u32 s7, s7, 20")
            e(f"s_cmp_lt_u32 s{sT1}, 8")
            e(f"s_cselect_b32 s6, s6, s7")
            e(f"s_mul_i32 s6, s6, 40960")
        e(f"s_mul_i32 s{sRD}, s{sRD}, 12")
        e(f"s_add_u32 s{sT1}, s{sT1}, s{sRD}")
        e(f"s_mul_i32 s{sT1}, s{sT1}, 40960")
        e(f"s_lshl_b32 s{sRD}, s{sRS}, 13")
        e(f"s_add_u32 s{sRD}, s{sRD}, s{sT1}")
        e(f"s_lshl_b32 s{sRS}, s{sRS}, 8")
        e(f"s_add_u32 s{sRS}, s{sRS}, s{6 if opt['own'] else sT1}")
        e(f"s_lshl_b32 s{sT1}, s{sW}, 11")
        e(f"s_add_u32 s{sRD}, s{sRD}, s{sT1}")
        e(f"s_add_u32 s{sRD}, s{sRD}, {W2F}")
        e(f"s_cmp_lt_u32 s{sT0}, {0 if opt['nor'] else 60}")
        e(f"s_cselect_b32 s{sRS}, s{sRS}, 1966080")
        e(f"s_cselect_b32 s{sRD}, s{sRD}, {HREC}")
    if opt["pt"] & 1:
        e(f"s_min_u32 s{sT1}, s{sRS}, {1966080-4}")
        e(f"s_load_dword s6, s[8:9], s{sT1}")
    if opt["pt"] & 2:
        e(f"s_mul_i32 s{sT1}, s{sMT}, {64*3072}")
        e(f"s_load_dword s6, s[12:13], s{sT1}")
    if opt["pt"] & 4:
        e(f"s_load_dword s6, s[10:11], s{sXB}")
    if opt["pt"] & 8:
        e(f"s_load_dword s6, s[12:13], s{sRD}")
    if D1:
        e(f"v_lshrrev_b32 v{t0}, 3, v{L}")
        e(f"v_mul_u32_u24 v{t0}, 1280, v{t0}")
        e(f"v_and_b32 v{t1}, 7, v{L}")
        e(f"v_lshlrev_b32 v{t2}, 1, v{G}")
        e(f"v_xor_b32 v{t1}, v{t1}, v{t2}")
        e(f"v_lshl_add_u32 v{vWD}, v{t1}, 4, v{t0}")
        for i in range(1, 4): e(f"v_add_u32 v{vWD+i}, {i*(10240-1024)}, v{vWD}")
    else:
        e(f"v_lshl_add_u32 v{t0}, v{Wv}, 3, v{G}")
        e(f"v_mul_u32_u24 v{t0}, 1280, v{t0}")
        e(f"v_and_b32 v{t1}, 15, v{L}")
        e(f"v_lshlrev_b32 v{t2}, 1, v{G}")
        e(f"v_xor_b32 v{t1}, v{t1}, v{t2}")
        e(f"v_lshl_add_u32 v{vDR}, v{t1}, 4, v{t0}")
        e(f"v_xor_b32 v{t1}, 8, v{t1}")
        e(f"v_lshl_add_u32 v{vDR+1}, v{t1}, 4, v{t0}")
        e(f"v_add_u32 v{vDR+1}, {4*1280-1024}, v{vDR+1}")
    e(f"v_bfe_u32 v{R}, v{L}, 2, 2")
    e(f"v_and_b32 v{C}, 3, v{L}")
    if opt["r16"]:
        e(f"v_and_b32 v{u1}, 1, v{G}")
        e(f"v_lshl_add_u32 v{u0}, v{u1}, 3, v{R}")
        e(f"v_mul_u32_u24 v{u0}, 384, v{u0}")
        e(f"v_lshl_add_u32 v{u0}, v{u1}, 4, v{u0}")
        e(f"v_lshrrev_b32 v{t2}, 5, v{L}")
        e(f"v_lshl_add_u32 v{u0}, v{t2}, 13, v{u0}")
        e(f"v_lshrrev_b32 v{u1}, 1, v{R}")
        e(f"v_xor_b32 v{u1}, v{u1}, v{Wv}")
        e(f"v_and_b32 v{u1}, 1, v{u1}")
        e(f"v_lshl_add_u32 v{u0}, v{u1}, 6, v{u0}")
        e(f"v_lshrrev_b32 v{u1}, 1, v{C}")
        e(f"v_lshl_add_u32 v{u0}, v{u1}, 5, v{u0}")
        e(f"v_and_b32 v{u1}, 1, v{C}")
        e(f"v_lshl_add_u32 v{vA}, v{u1}, 3, v{u0}")
        e(f"v_xor_b32 v{vA+1}, 16, v{vA}")
        for k in range(2): e(f"v_add_u32 v{vA+2+k}, 65536, v{vA+k}")
        e(f"v_and_b32 v{u0}, 2, v{Wv}")
        e(f"v_lshlrev_b32 v{u0}, 13, v{u0}")
        e(f"v_and_b32 v{u2}, 15, v{L}")
        e(f"v_lshl_add_u32 v{u0}, v{u2}, 7, v{u0}")
        e(f"v_add_u32 v{u0}, 6144, v{u0}")
        e(f"v_lshrrev_b32 v{u1}, 1, v{u2}")
        e(f"v_xor_b32 v{u1}, v{u1}, v{G}")
        e(f"v_lshl_add_u32 v{vB+4}, v{u1}, 4, v{u0}")
        e(f"v_xor_b32 v{vB+5}, 64, v{vB+4}")
        for k in range(2): e(f"v_add_u32 v{vB+6+k}, 65536, v{vB+4+k}")
    else:
        e(f"v_lshrrev_b32 v{u0}, 1, v{G}")
        e(f"v_lshl_add_u32 v{u0}, v{u0}, 3, v{R}")
        e(f"v_mul_u32_u24 v{u0}, 384, v{u0}")
        e(f"v_lshrrev_b32 v{u1}, 1, v{R}")
        e(f"v_xor_b32 v{u1}, v{u1}, v{Wv}")
        e(f"v_and_b32 v{u1}, 1, v{u1}")
        e(f"v_lshl_add_u32 v{u0}, v{u1}, 6, v{u0}")
        e(f"v_and_b32 v{u1}, 1, v{G}")
        e(f"v_lshl_add_u32 v{u0}, v{u1}, 5, v{u0}")
        e(f"v_lshl_add_u32 v{vA}, v{C}, 3, v{u0}")
        e(f"v_add_u32 v{vA+1}, 65536, v{vA}")
        e(f"v_and_b32 v{u0}, 2, v{Wv}")
        e(f"v_add_u32 v{u0}, v{u0}, v{u1}")
        e(f"v_lshlrev_b32 v{u0}, 13, v{u0}")
        e(f"v_and_b32 v{u2}, 15, v{L}")
        e(f"v_lshl_add_u32 v{u0}, v{u2}, 7, v{u0}")
        e(f"v_add_u32 v{u0}, 6144, v{u0}")
        e(f"v_lshrrev_b32 v{u1}, 1, v{u2}")
        e(f"v_lshrrev_b32 v{t2}, 5, v{L}")
        e(f"v_xor_b32 v{u1}, v{u1}, v{t2}")
        e(f"v_lshl_add_u32 v{vB}, v{u1}, 4, v{u0}")
        for k in range(1, 4): e(f"v_xor_b32 v{vB+k}, {32*k}, v{vB}")
        for k in range(4): e(f"v_add_u32 v{vB+4+k}, 65536, v{vB+k}")
    if D1:
        e(f"v_and_b32 v{u1}, 1, v{G}")
        e(f"v_lshl_add_u32 v{u1}, v{u1}, 2, v{R}")
        e(f"v_lshlrev_b32 v{u0}, 11, v{t2}")
        e(f"v_lshl_add_u32 v{u0}, v{u1}, 7, v{u0}")
        e(f"v_lshrrev_b32 v{u1}, 1, v{u1}")
        e(f"v_lshl_add_u32 v{u0}, v{u1}, 5, v{u0}")
        e(f"v_and_b32 v{u1}, 1, v{C}")
        e(f"v_lshl_add_u32 v{u0}, v{u1}, 4, v{u0}")
        e(f"v_lshrrev_b32 v{u1}, 1, v{C}")
        e(f"v_lshl_add_u32 v{u0}, v{u1}, 3, v{u0}")
        e(f"v_add_u32 v{u0}, {RB}, v{u0}")
        e(f"v_lshlrev_b32 v{t3}, 5, v{Wv}")
        e(f"v_xor_b32 v{vRA}, v{u0}, v{t3}")
        e(f"v_add_u32 v{vWT}, s{sM0}, v{u0}")
        for j in range(1, 4): e(f"v_xor_b32 v{vWT+j}, {32*j}, v{vWT}")
    else:
        e(f"v_and_b32 v{u1}, 1, v{G}")
        e(f"v_lshl_add_u32 v{u1}, v{u1}, 2, v{R}")
        e(f"v_lshlrev_b32 v{u0}, 12, v{t2}")
        e(f"v_lshl_add_u32 v{u0}, v{u1}, 8, v{u0}")
        e(f"v_lshlrev_b32 v{t3}, 1, v{Wv}")
        e(f"v_xor_b32 v{u1}, v{u1}, v{t3}")
        e(f"v_lshl_add_u32 v{u0}, v{u1}, 5, v{u0}")
        e(f"v_and_b32 v{u1}, 1, v{C}")
        e(f"v_lshl_add_u32 v{u0}, v{u1}, 4, v{u0}")
        e(f"v_lshrrev_b32 v{u1}, 1, v{C}")
        e(f"v_lshl_add_u32 v{u0}, v{u1}, 3, v{u0}")
        e(f"v_add_u32 v{vRA}, {RB}, v{u0}")
        e(f"v_xor_b32 v{vRA+1}, 32, v{vRA}")
    if not D1:
        e(f"v_mov_b32 v{vCN}, {CNT}")
        e(f"v_mov_b32 v{vONE}, 0")
        e(f"ds_write_b32 v{vCN}, v{vONE}"); LG.issue("cnt")
    if opt["ab"]: e(f"ds_write_b32 v{vCN}, v{vONE} offset:4"); LG.issue("cnt")
    for i in range(48): e(f"v_mov_b32 v{vACC1+i}, 0")
    if not D1: e(f"v_mov_b32 v{vONE}, 1")
    e(f"v_and_b32 v{u1}, 1, v{G}")
    if opt["r16"]: e(f"v_add_u32 v{vHS}, 12288, v{vL16}")
    else:
        e(f"v_mul_u32_u24 v{u0}, 12288, v{u1}")
        e(f"v_lshl_add_u32 v{u0}, v{t2}, 8, v{u0}")
        e(f"v_lshl_add_u32 v{vHS}, v{u2}, 4, v{u0}")
    if opt["own"]:
        e(f"s_and_b32 s{sT0}, s{sW}, 1")
        e(f"s_and_b32 s{sT1}, s{sW}, 2")
        e(f"s_sub_u32 s{sT1}, s{sT1}, s{sT0}")
        e(f"s_add_u32 s{sT1}, s{sT1}, 3")
        e(f"v_add_u32 v{u0}, s{sT1}, v{u1}")
        e(f"v_and_b32 v{u0}, 3, v{u0}")
        e(f"s_lshl_b32 s{sT0}, s{sT0}, 12")
        e(f"s_add_u32 s{sT0}, s{sT0}, {OWN}")
        e(f"v_lshl_add_u32 v{u0}, v{u0}, 10, s{sT0}")
        e(f"v_lshl_add_u32 v{u0}, v{t2}, 8, v{u0}")
        e(f"v_lshl_add_u32 v{vOW}, v{u2}, 4, v{u0}")
        e(f"v_xor_b32 v{vOW+1}, 2048, v{vOW}")
        e(f"s_lshl_b32 s{sT0}, s{sW}, 12")
        e(f"s_add_u32 s{sT0}, s{sT0}, {OWN}")
        e(f"v_add_u32 v{vOW+2}, s{sT0}, v{vL16}")
    if OW:
        e(f"s_and_b32 s{sT0}, s{sW}, 1")
        e(f"s_lshl1_add_u32 s{sT0}, s{sFT}, s{sT0}")
        e(f"s_and_b32 s{sT0}, s{sT0}, 3")
        e(f"s_and_b32 s{sT1}, s{sW}, 2")
        e(f"s_sub_u32 s{sT1}, s{sT1}, s{sT0}")
        e(f"s_add_u32 s{sT1}, s{sT1}, 7")
        e(f"v_add_u32 v{u0}, s{sT1}, v{u1}")
        e(f"v_and_b32 v{u0}, 3, v{u0}")
        e(f"s_lshl_b32 s{sT0}, s{sT0}, 13")
        e(f"s_add_u32 s{sT0}, s{sT0}, {65536+4096}")
        e(f"v_lshl_add_u32 v{u0}, v{u0}, 10, s{sT0}")
        e(f"v_lshl_add_u32 v{u0}, v{t2}, 8, v{u0}")
        e(f"v_lshl_add_u32 v{vOW}, v{u2}, 4, v{u0}")
        e(f"v_xor_b32 v{vOW+1}, {16384+2048}, v{vOW}")
    e(f"v_mul_u32_u24 v{u0}, 1280, v{u2}")
    e(f"v_lshl_add_u32 v{vOUT}, v{G}, 4, v{u0}")
    e(f"v_lshl_add_u32 v{u0}, v{u1}, 4, v{u0}")
    e(f"v_lshl_add_u32 v{vOUT2}, v{t2}, 3, v{u0}")
    if opt["bp"]:
        e(f"v_lshrrev_b32 v{vL16b}, 2, v{L}")
        e(f"v_mul_u32_u24 v{u0}, 1280, v{vL16b}")
        e(f"v_lshl_add_u32 v{vOUT}, v{C}, 4, v{u0}")
        e(f"v_lshl_add_u32 v{vL16b}, v{C}, 4, v{vL16b}")
        e(f"v_lshlrev_b32 v{vL16b}, 2, v{vL16b}")
        e(f"v_and_b32 v{vOUT2}, 1, v{C}")
        e(f"v_lshl_add_u32 v{u0}, v{vOUT2}, 4, v{u0}")
        e(f"v_lshrrev_b32 v{vOUT2}, 1, v{C}")
        e(f"v_lshl_add_u32 v{vOUT2}, v{vOUT2}, 3, v{u0}")
    if opt["t4"]:
        e(f"v_mul_u32_u24 v{u0}, {4*1280}, v{G}")
        e(f"v_lshl_add_u32 v{u0}, v{C}, 1, v{u0}")
        e(f"v_and_b32 v{vOUT2}, 1, v{R}")
        e(f"v_lshl_add_u32 v{u0}, v{vOUT2}, 4, v{u0}")
        e(f"v_lshrrev_b32 v{vOUT2}, 1, v{R}")
        e(f"v_lshl_add_u32 v{vOUT2}, v{vOUT2}, 3, v{u0}")
    if opt["ofk"]:
        sh = 1 + opt["ofk"]
        e(f"v_lshrrev_b32 v{u0}, {sh}, v{L}")
        e(f"v_mul_u32_u24 v{u0}, 1280, v{u0}")
        e(f"v_and_b32 v{vOUT}, {(1 << sh) - 1}, v{L}")
        e(f"v_lshl_add_u32 v{vOUT}, v{vOUT}, 4, v{u0}")
        e(f"v_add_u32 v{vL16b}, {64 if sh == 2 else 10240}, v{vOUT}")
        e(f"v_lshrrev_b32 v{u0}, 2, v{L}")
        e(f"v_mul_u32_u24 v{u0}, 1280, v{u0}")
        e(f"v_and_b32 v{vOUT2}, 3, v{L}")
        e(f"v_lshl_add_u32 v{vOUT2}, v{vOUT2}, 3, v{u0}")
    if not D1: e(f"v_add_u32 v{vL16b}, 4096, v{vL16}")
    if D1:
        if RPW: e(f"s_lshl2_add_u32 s{sT0}, s{sFT}, s{sW}")
        else:
            e(f"s_lshr_b32 s{sT0}, s{sFT}, 2")
            e(f"s_lshl_b32 s{sT0}, s{sT0}, 2")
            e(f"s_add_u32 s{sT0}, s{sT0}, s{sW}")
        e(f"s_mul_i32 s{sT0}, s{sT0}, {128 if opt['rpk'] else 12*128}")
        e(f"v_min_u32 v{vRP}, 11, v{u2}")
        e(f"v_lshl_add_u32 v{vRP}, v{vRP}, {dict([(0,7),(4,2),(8,3)])[opt['rpk']]}, s{sT0}")
    else:
        e(f"s_mul_i32 s{sT0}, s{sFT}, 5")
        e(f"v_lshl_add_u32 v{u0}, v{u1}, 2, s{sT0}")
        e(f"v_lshrrev_b32 v{u0}, 3, v{u0}")
        e(f"v_mad_u32_u24 v{u0}, v{Wv}, 5, v{u0}")
        e(f"v_min_u32 v{vRP}, 11, v{u2}")
        e(f"v_lshlrev_b32 v{vRP}, 7, v{vRP}")
        e(f"v_lshl_add_u32 v{vRP}, v{u0}, 11, v{vRP}")
    e(f"v_lshlrev_b32 v{vL4}, 2, v{L}")
    if opt["own"] or OW:
        e(f"v_and_b32 v{vPA}, {opt['pl2']}, v{L}")
        e(f"v_lshlrev_b32 v{vPA}, 7, v{vPA}")
    else: e(f"v_mul_u32_u24 v{vPA}, {FS}, v{u1}")
    if D1:
        assert FS == 128
        e(f"v_lshlrev_b32 v{vAC}, 7, v0")
        e(f"s_add_u32 s{sT0}, s{sM0}, 32768")
        e(f"v_add_u32 v{vRW}, s{sT0}, v{vL16}")
        e(f"v_add_u32 v{vRW2}, 65536, v{vRW}")
        for p in range(3):
            e(f"s_sub_u32 s{sT0}, s{sW}, {1+p}")
            e(f"s_and_b32 s{sT0}, s{sT0}, 3")
            e(f"s_lshl_b32 s{sT0}, s{sT0}, 13")
            e(f"s_add_u32 s{sT0}, s{sT0}, {32768*(p+1)}")
            e(f"v_add_u32 v{vRR+p}, s{sT0}, v{vL16}")
        e(f"s_mul_i32 s{sW2B}, s{sW}, {40960 if OW else 12*40960}")
        e(f"s_lshl_b32 s{sT0}, s{sFT}, 7")
        e(f"s_add_u32 s{sW2B}, s{sW2B}, s{sT0}")
        e(f"s_mul_i32 s{sW5B}, s{sW}, 96")
        e(f"s_add_u32 s{sW5B}, s{sW5B}, s{sFT}")
        e(f"s_lshl_b32 s{sW5B}, s{sW5B}, 10")
        e(f"s_add_u32 s{sW5B}, s{sW5B}, {W2F}")
    else:
        e(f"v_mul_u32_u24 v{u0}, 205, v{L}")
        e(f"v_lshrrev_b32 v{u0}, 10, v{u0}")
        e(f"v_sub_u32 v{vAC}, v{Wv}, v{u0}")
        e(f"v_mad_i32_i24 v{vAC}, v{vAC}, 5, v{L}")
        e(f"v_lshlrev_b32 v{vAC}, 11, v{vAC}")
        e(f"v_lshl_add_u32 v{vAC}, v{u0}, 7, v{vAC}")
        e(f"s_mul_i32 s{sT0}, s{sW}, 15360")
        e(f"s_add_u32 s{sT0}, s{sT0}, {RED}")
        e(f"v_add_u32 v{vRW}, s{sT0}, v{vL16}")
        for p in range(3):
            e(f"s_sub_u32 s{sT0}, s{sW}, {1+p}")
            e(f"s_and_b32 s{sT0}, s{sT0}, 3")
            e(f"s_mul_i32 s{sT0}, s{sT0}, 15360")
            e(f"s_add_u32 s{sT0}, s{sT0}, {RED + p*5120}")
            e(f"v_add_u32 v{vRR+p}, s{sT0}, v{vL16}")
        e(f"s_mul_i32 s{sW2B}, s{sW}, {12*40960}")
        e(f"s_mul_i32 s{sT0}, s{sFT}, 5120")
        e(f"s_add_u32 s{sW2B}, s{sW2B}, s{sT0}")
        e(f"s_add_u32 s{sW2B}, s{sW2B}, {W2F}")
    if opt["ab"]:
        e(f"s_mov_b32 s{sSIG+6}, 0x98763210"); e(f"s_mov_b32 s{sSIG+7}, 0x98763210")
        e(f"s_lshr_b64 s[{sSIG+6}:{sSIG+7}], s[{sSIG+6}:{sSIG+7}], s{sROT}")
        e(f"s_mov_b32 s{sSIG+7}, s{sSIG+6}")
        e(f"s_and_b32 s{sROT}, s{sROT}, 12")
        e(f"s_lshr_b32 s{sSIG+11}, 0xba54ba54, s{sROT}")
        for n in range(12):
            src = sSIG+7 if n < 8 else sSIG+11
            e(f"s_bfe_u32 s{sSIG+n}, s{src}, {0x40000 + 4*(n%8)}")
            e(f"s_lshl_b32 s{sSIG+n}, s{sSIG+n}, 10")
    if opt["own"]:
        e(f"s_lshl_b32 s{sSIG}, s{sFT}, 10")
        for n in range(1, 12):
            e(f"s_cmp_eq_u32 s{sROT}, s{sFT}")
            e(f"s_addc_u32 s{sROT}, s{sROT}, 0")
            e(f"s_lshl_b32 s{sSIG+n}, s{sROT}, 10")
            if n < 11:
                e(f"s_add_u32 s{sROT}, s{sROT}, 1")
                e(f"s_cmp_ge_u32 s{sROT}, 12")
                e(f"s_cselect_b32 s{sROT}, 0, s{sROT}")
    if OW:
        e(f"s_lshl_b32 s{sT0}, s{sFT}, 1")
        e(f"s_sub_u32 s{sT0}, s{sW}, s{sT0}")
        e(f"s_and_b32 s{sT0}, s{sT0}, 3")
        e(f"s_mul_i32 s{sT1}, s{sFT}, 6")
        e(f"s_add_u32 s{sT0}, s{sT0}, s{sT1}")
        e(f"s_lshr_b32 s{sT0}, s{sT0}, 2")
        e(f"s_lshl_b32 s{sSIG}, s{sT0}, 10")
        for n in range(1, 12):
            e(f"s_cmp_ge_u32 s{sROT}, s{sT0}")
            e(f"s_addc_u32 s{sT1}, s{sROT}, 0")
            e(f"s_lshl_b32 s{sSIG+n}, s{sT1}, 10")
            if n < 11:
                e(f"s_add_u32 s{sROT}, s{sROT}, 1")
                e(f"s_cmp_ge_u32 s{sROT}, 11")
                e(f"s_cselect_b32 s{sROT}, 0, s{sROT}")
    for n in range(12 if not opt["ab"] and not opt["own"] and not OW else 0):
        e(f"s_lshl_b32 s{sSIG+n}, s{sROT}, 10")
        if n < 11:
            e(f"s_add_u32 s{sROT}, s{sROT}, 1")
            e(f"s_cmp_ge_u32 s{sROT}, 12")
            e(f"s_cselect_b32 s{sROT}, 0, s{sROT}")
    if opt["own2"] == 2:
        e(f"s_mov_b32 s{sOWN}, s{sW}")
    elif opt["own2"] == 3:
        e(f"s_and_b32 s{sOWN}, s{sFT}, 1")
        e(f"s_add_u32 s{sOWN}, s{sW}, s{sOWN}")
    elif opt["own2"]:
        e(f"s_lshl_b32 s{sOWN}, s{sFT}, 1")
        e(f"s_add_u32 s{sOWN}, s{sW}, s{sOWN}")
    else: e(f"s_add_u32 s{sOWN}, s{sW}, s{sFT}")
    e(f"s_and_b32 s{sOWN}, s{sOWN}, 3")
    e(f"s_lshl_b32 s{sT1}, s{sMT}, 2")
    e(f"s_add_u32 s{sT1}, s{sT1}, s{sW}")
    if opt["own"] or OW: e(f"s_lshl_b32 s{sPOL}, s{sMT}, 10")
    else: e(f"s_mul_i32 s{sPOL}, s{sT1}, {2*FS}")
    e(f"s_add_u32 s{sPOL}, s{sPOL}, {FL}")
    e(f"s_lshl_b32 s{sT1}, s{sT1}, 2")
    for p in range(4):
        e(f"s_add_u32 s{sT0}, s{sOWN}, {1+p}")
        e(f"s_and_b32 s{sT0}, s{sT0}, 3")
        e(f"s_add_u32 s{sT0}, s{sT0}, s{sT1}")
        e(f"s_mul_i32 s{sT0}, s{sT0}, 12288")
        e(f"v_add_u32 v{vHB+p}, s{sT0}, v{vL16}")
    e(f"s_lshl_b32 s{sOB}, s{sMT}, 2")
    e(f"s_add_u32 s{sOB}, s{sOB}, s{sOWN}")
    e(f"s_mul_i32 s{sOB}, s{sOB}, {16*1280}")
    if D1:
        e(f"s_lshl_b32 s{sT0}, s{sFT}, 5")
        e(f"s_add_u32 s{sOB2}, s{sOB}, s{sT0}")
        e(f"s_add_u32 s{sOB2}, s{sOB2}, {1024-128}")
    e(f"s_mul_i32 s{sT0}, s{sFT}, {128 if D1 else 160}")
    e(f"s_add_u32 s{sOB}, s{sOB}, s{sT0}")
    if opt["ost"]:
        e(f"s_cmp_ge_u32 s{sW}, {opt['ost']}")
        e(f"s_cselect_b32 s{sOB}, s{sOB}, 2621440")
    e(f"s_lshl_b32 s{sT0}, s{sMT}, 2")
    e(f"s_lshr_b32 s{sT1}, s{sFT}, 1")
    e(f"s_add_u32 s{sT0}, s{sT0}, s{sT1}")
    e(f"s_mul_i32 s{sFLG}, s{sT0}, {2*FS}")
    e(f"s_lshl_b32 s{sT0}, s{sT0}, 2")
    e(f"s_and_b32 s{sT1}, s{sW}, 2")
    e(f"s_add_u32 s{sT0}, s{sT0}, s{sT1}")
    e(f"s_mul_i32 s{sHS}, s{sT0}, 12288")
    e(f"s_and_b32 s{sT0}, s{sFT}, 1")
    e(f"s_mul_i32 s{sT1}, s{sT0}, {FS}")
    e(f"s_add_u32 s{sFLG}, s{sFLG}, s{sT1}")
    e(f"s_add_u32 s{sFLG}, s{sFLG}, {FL}")
    e(f"s_mul_i32 s{sT0}, s{sT0}, 6")
    e(f"s_and_b32 s{sT1}, s{sW}, 1")
    e(f"s_add_u32 s{sT0}, s{sT0}, s{sT1}")
    e(f"s_lshl_b32 s{sT0}, s{sT0}, 10")
    e(f"s_add_u32 s{sHS}, s{sHS}, s{sT0}")
    e(f"s_add_u32 s{sHS2}, s{sHS}, 4096")
    if opt["own"]:
        e(f"s_and_b32 s{sT0}, s{sFT}, 1")
        e(f"s_lshl_b32 s{sT0}, s{sT0}, 12")
        e(f"s_sub_u32 s{sHS2}, s{sHS}, s{sT0}")
        e(f"s_add_u32 s{sHS2}, s{sHS2}, 8192")
        e(f"s_lshl_b32 s{sT0}, s{sMT}, 2")
        e(f"s_add_u32 s{sT0}, s{sT0}, s{sT1}")
        e(f"s_lshl_b32 s{sT0}, s{sT0}, 2")
        e(f"s_and_b32 s{sT1}, s{sW}, 2")
        e(f"s_add_u32 s{sT0}, s{sT0}, s{sT1}")
        e(f"s_mul_i32 s{sT0}, s{sT0}, 12")
        e(f"s_add_u32 s{sT0}, s{sT0}, s{sFT}")
        e(f"s_lshl_b32 s{sHS}, s{sT0}, 10")
        e(f"s_add_u32 s{sHS1}, s{sHS}, 98304")
    if OW:
        for q, r in enumerate((sHS, 10, sHS2)):
            e(f"s_mul_i32 s{sT0}, s{sFT}, 6")
            e(f"s_and_b32 s{sT1}, s{sW}, 1")
            e(f"s_add_u32 s{sT0}, s{sT0}, s{sT1}")
            if q: e(f"s_add_u32 s{sT0}, s{sT0}, {2*q}")
            e(f"s_and_b32 s{sT1}, s{sT0}, 3")
            e(f"s_lshl2_add_u32 s{sT1}, s{sMT}, s{sT1}")
            e(f"s_and_b32 s{r}, s{sW}, 2")
            e(f"s_lshl2_add_u32 s{sT1}, s{sT1}, s{r}")
            e(f"s_mul_i32 s{sT1}, s{sT1}, 12")
            e(f"s_lshr_b32 s{sT0}, s{sT0}, 2")
            e(f"s_add_u32 s{sT0}, s{sT0}, s{sT1}")
            e(f"s_lshl_b32 s{r}, s{sT0}, 10")
    e(f"s_add_u32 s{sRFL}, s{sRFL}, {RFL}")
    if opt["tpre"]:
        tb = str(opt["ttab"]).lstrip("x"); assert len(tb) == 32
        nn = tb.count("1"); assert 48 % nn == 0 and 48 // nn <= 8
        rw = 48 // nn
        mk_ = sum(int(c) << i for i, c in enumerate(tb))
        e(f"s_lshr_b32 s9, s2, 3")
        e(f"s_bfm_b32 s8, s9, 0")
        e(f"s_and_b32 s8, s8, {mk_}")
        e(f"s_bcnt1_i32_b32 s8, s8")
        e(f"s_and_b32 s{sT0}, s2, 7")
        e(f"s_lshl3_add_u32 s8, s8, s{sT0}")
        e(f"s_lshl2_add_u32 s8, s8, s{sW}")
        e(f"s_mul_i32 s8, s8, {rw*1280}")
        e(f"s_bitcmp1_b32 {mk_}, s9")
        e(f"s_cselect_b32 s8, s8, 1966080")
        e(f"v_lshrrev_b32 v251, 3, v{L}")
        e(f"v_lshl_add_u32 v250, v251, 8, s8")
        e(f"v_lshl_add_u32 v250, v{L}, 7, v250")
        if rw < 8:
            e(f"v_add_u32 v251, {8 - rw}, v251")
            e(f"v_lshrrev_b32 v251, 3, v251")
            e(f"v_lshl_add_u32 v250, v251, 21, v250")
    if R2:
        e(f"s_lshl_b32 s{sT0}, s{sW}, 9")
        e(f"s_add_u32 s{sRFL}, s{sRFL}, s{sT0}")
        e(f"s_cmp_le_u32 s{sW}, s10")
        e(f"s_cselect_b32 s{sRFL}, s{sRFL}, {HREC}")
    elif not RPW:
        e(f"s_cmp_eq_u32 s{sW}, 0")
        e(f"s_cselect_b32 s{sRFL}, s{sRFL}, {HREC}")
    if opt["fpre"]:
        assert opt["fb"] and opt["fk"] == 0 and not RPW
        e(f"s_cmp_eq_u32 s{sW}, 0")
        e(f"s_cselect_b32 s{sFLG}, s{sFLG}, {HREC}")
        assert HREC == 1 << 23 and opt["rpk"] == 8
        e(f"v_lshrrev_b32 v249, 1, v{L}")
        e(f"v_lshl_add_u32 v249, v249, 23, v{vL4}")
        e(f"v_lshrrev_b32 v248, 5, v{L}")
        e(f"v_lshl_add_u32 v248, v248, 23, v{vL4}")
    e(f"s_mov_b32 s{sL2E}, 0xbfb8aa3b")
    if opt["pk"]:
        e(f"s_mov_b32 s{sPK}, 0xbfb8aa3b"); e(f"s_mov_b32 s{sPK+1}, 0xbfb8aa3b")
def r_loads():
    if D1:
        e(f"s_lshr_b32 m0, s{sM0}, 3")
        e(f"s_add_u32 m0, m0, {RB}")
        e("s_nop 0")
        e(f"buffer_load_dwordx4 v{vWD}, {srd(sW2)}, s{sRS} offen {opt['raux']} lds"); VM.issue("rld")
        if R2:
            e(f"s_add_u32 m0, m0, {4096 - 128}")
            e(f"s_cmp_eq_u32 s10, 1")
            e(f"s_cselect_b32 s{sRS}, s{sRS}, 1966080")
            e(f"buffer_load_dwordx4 v{vWD}, {srd(sW2)}, s{sRS} offen offset:128 {opt['raux']} lds"); VM.issue("rld")
        return
    e(f"s_lshr_b32 m0, s{sM0}, 2")
    e(f"s_add_u32 m0, m0, {RB}")
    e("s_nop 0")
    for i in range(2):
        e(f"buffer_load_dwordx4 v{vDR+i}, {srd(sW2)}, s{sRS} offen offset:{i*1024} {opt['raux']} lds"); VM.issue("rld")
def r_reads():
    if D1:
        for t in range(4 if R2 else 2):
            e(f"ds_read_b64_tr_b16 {vr(vRF + 2*t, 2)}, v{vRA} offset:{(t % 2)*1024 + (t // 2)*4096}"); LG.issue("rrd")
        return
    for ee in range(2):
        for t in range(2):
            e(f"ds_read_b64_tr_b16 {vr(vRF + 4*ee + 2*t, 2)}, v{vRA+ee} offset:{t*2048}"); LG.issue("rrd")
def r_stores():
    LG.wait("rrd")
    for ee in range(1 if D1 else 2):
        e(f"buffer_store_dwordx4 {vr(vRF+4*ee,4)}, v{vL16}, {srd(sH)}, s{sRD} offen offset:{ee*1024} {opt['rsaux']}"); VM.issue("rst")
    if R2:
        e(f"s_add_u32 s{sRD}, s{sRD}, 4096")
        e(f"s_cmp_eq_u32 s10, 1")
        e(f"s_cselect_b32 s{sRD}, s{sRD}, {HREC}")
        e(f"buffer_store_dwordx4 {vr(vRF+4,4)}, v{vL16}, {srd(sH)}, s{sRD} offen {opt['rsaux']}"); VM.issue("rst")
S2 = capture(setup2)
groups = []
for l in S2:
    if l.startswith("s_cselect") or (groups and groups[-1][-1].startswith(("s_cmp", "s_bitcmp"))): groups[-1].append(l)
    else: groups.append([l])
ST0 = []
def pre_order(spec):
    kx, kw = (sKX, 6, 8), (sKW, 7, 9)
    def nxt(i):
        a, b = (i + 1) % 3, i
        e(f"s_add_u32 s{kx[a]}, s{kx[b]}, 128")
        e(f"s_add_u32 s{kw[a]}, s{kw[b]}, {64*3072}")
        e(f"s_cmp_eq_u32 s{kx[a]}, s{sXE}")
        e(f"s_cselect_b32 s{kx[a]}, s{sXB}, s{kx[a]}")
        e(f"s_cselect_b32 s{kw[a]}, s{sWB}, s{kw[a]}")
    ops = []
    for ch in spec:
        if ch in "abc":
            st = "abc".index(ch)
            for i in range(2):
                def f(st=st, i=i):
                    if i == 0: e(f"s_add_u32 m0, s{sM0}, {st*32768+6144}"); e("s_nop 0")
                    e(f"buffer_load_dwordx4 v{vDX+i}, {srd(sX)}, s{kx[st]} offen offset:{i*1024} {opt['xaux']} lds"); VM.issue(f"st{st}")
                    if st == 0 and i == 1: nxt(0); nxt(1)
                ops.append(f)
        elif ch in "ABC":
            st = "ABC".index(ch)
            for j in range(6):
                def f(st=st, j=j):
                    if j % 4 == 0: e(f"s_add_u32 m0, s{sM0}, {st*32768+j*1024}"); e("s_nop 0")
                    e(f"buffer_load_dwordx4 v{vDW+j}, {srd(sW1)}, s{kw[st]} offen offset:{(j%4)*1024} {opt['w1aux']} lds"); VM.issue(f"st{st}")
                ops.append(f)
        elif ch == "R": ops.append(r_loads)
        elif ch == ".": ops.append(None)
        elif ch == "P":
            def f():
                e(f"s_bfe_u32 s10, s{sMT}, 0x10002")
                e(f"s_mul_i32 s10, s10, 320")
                e(f"s_and_b32 s11, s{sMT}, 3")
                e(f"s_lshl_b32 s11, s11, 4")
                e(f"s_add_u32 s10, s10, s11")
                e(f"s_mul_i32 s11, s{sW}, 12")
                e(f"s_sub_u32 s10, s10, s11")
                e(f"s_add_u32 s10, s10, 256")
                e(f"s_mul_i32 s10, s10, 3072")
                e(f"s_add_u32 s10, s10, s{sWB}")
                e(f"buffer_load_dwordx4 v[244:247], v{vDW}, {srd(sW1)}, s10 offen"); VM.issue("pp")
                e("s_mov_b32 exec_hi, 0")
                e(f"buffer_load_dwordx4 v[248:251], v{vDW+1}, {srd(sW1)}, s10 offen offset:1024"); VM.issue("pp")
                e("s_mov_b32 exec_hi, -1")
            ops.append(f)
    assert spec[0] == "a" and all(c in spec for c in "abcABC")
    last = ops[-1]
    def fin(): last(); nxt(2)
    ops[-1] = fin
    return ops
if opt["po"]:
    first = pre_order(opt["po"]); opt["pre3"] = 1
    if None in first:
        k = first.index(None); first, ST0 = first[:k], first[k+1:]
    if "R" in opt["po"]: opt["rls"] = -1
else:
    first = dma_ops(0) + dma_ops(1) + (dma_ops(2) if opt["pre3"] else [])
    if opt["rls"] < 0: first.append(r_loads)
    if opt["tch"]: first[opt["tp0"]:opt["tp0"]] = [touch] * (opt["la"] - 1)
def wxtouch(k, n):
    def f():
        if k == 0:
            e(f"s_lshr_b32 s8, s2, 3")
            e(f"s_lshl_b32 s8, s8, 2")
            e(f"s_add_u32 s8, s8, s{sW}")
            e(f"s_mul_i32 s8, s8, {12*1280}")
            e(f"s_lshr_b32 s9, s{sFT}, 2")
            e(f"s_lshl_b32 s9, s9, 9")
            e(f"s_add_u32 s8, s8, s9")
            e(f"v_lshrrev_b32 v250, 6, v{vL16}")
            e(f"v_mul_u32_u24 v250, {1280-512}, v250")
            e(f"v_lshl_add_u32 v250, v{vL16}, 3, v250")
        m = ((1 << (48 // n)) - 1) << (k * 48 // n)
        e(f"s_mov_b32 exec_lo, {m & 0xffffffff}")
        e(f"s_mov_b32 exec_hi, {m >> 32}")
        e(f"buffer_load_dword v251, v250, {srd(sW2)}, s8 offen {opt['wtaux']}"); VM.issue("wt")
        e("s_mov_b64 exec, -1")
    return f
def wtouch():
    if opt["tpre"]:
        e(f"buffer_load_dword v251, v250, {srd(sW2)}, 0 offen {opt['wtaux']}"); VM.issue("wt")
        return
    if opt["wtx"]:
        e(f"s_lshr_b32 s8, s2, 3")
        e(f"s_lshl_b32 s8, s8, 2")
        e(f"s_add_u32 s8, s8, s{sW}")
        e(f"s_mul_i32 s8, s8, {12*1280}")
        e(f"s_lshr_b32 s9, s{sFT}, 2")
        e(f"s_lshl_b32 s9, s9, 9")
        e(f"s_add_u32 s8, s8, s9")
        e(f"v_lshrrev_b32 v250, 6, v{vL16}")
        e(f"v_mul_u32_u24 v250, {1280-512}, v250")
        e(f"v_lshl_add_u32 v250, v{vL16}, 3, v250")
        e(f"s_mov_b32 exec_hi, 0xffff")
        e(f"buffer_load_dword v251, v250, {srd(sW2)}, s8 offen {opt['wtaux']}"); VM.issue("wt")
        e("s_mov_b64 exec, -1")
        return
    if opt["ttab"]:
        tb = str(opt["ttab"]).lstrip("x"); assert len(tb) == 32
        nn = tb.count("1"); assert 48 % nn == 0 and 48 // nn <= 8
        rw = 48 // nn
        mk_ = sum(int(c) << i for i, c in enumerate(tb))
        e(f"s_lshr_b32 s9, s2, 3")
        e(f"s_bfm_b32 s8, s9, 0")
        e(f"s_and_b32 s8, s8, {mk_}")
        e(f"s_bcnt1_i32_b32 s8, s8")
        e(f"s_and_b32 m0, s2, 7") if False else None
        e(f"s_lshl_b32 s8, s8, 3")
        e(f"s_bitcmp1_b32 {mk_}, s9")
        e(f"s_cselect_b32 s8, s8, 0x10000")
        e(f"s_and_b32 s9, s2, 7")
        e(f"s_add_u32 s8, s8, s9")
        e(f"s_lshl2_add_u32 s8, s8, s{sW}")
        e(f"s_mul_i32 s8, s8, {rw*1280}")
        e(f"s_min_u32 s8, s8, 1966080")
        e(f"v_lshrrev_b32 v250, 7, v{vL16}")
        e(f"v_lshlrev_b32 v250, 8, v250")
        e(f"v_lshl_add_u32 v250, v{vL16}, 3, v250")
        if rw < 8:
            m = (1 << (8*rw)) - 1
            e(f"s_mov_b32 exec_lo, {m & 0xffffffff}")
            e(f"s_mov_b32 exec_hi, {m >> 32}")
        e(f"buffer_load_dword v251, v250, {srd(sW2)}, s8 offen {opt['wtaux']}"); VM.issue("wt")
        if rw < 8: e("s_mov_b64 exec, -1")
        return
    if opt["wtc"]:
        e(f"s_lshr_b32 s8, s2, 4")
        e(f"s_lshl_b32 s8, s8, 3")
        e(f"s_and_b32 s9, s2, 7")
        e(f"s_add_u32 s8, s8, s9")
        e(f"s_lshl2_add_u32 s8, s8, s{sW}")
        e(f"s_mul_i32 s8, s8, {3*1280}")
        e(f"v_lshrrev_b32 v250, 7, v{vL16}")
        e(f"v_lshlrev_b32 v250, 8, v250")
        e(f"v_lshl_add_u32 v250, v{vL16}, 3, v250")
        e(f"s_lshr_b32 s9, s2, 2")
        e(f"s_xor_b32 s9, s9, s2")
        e(f"s_bitcmp{opt['wtc'] - 1}_b32 s9, 3")
        e(f"s_cselect_b32 s8, s8, 1966080")
        e(f"s_mov_b64 exec, {(1 << 24) - 1}")
        e(f"buffer_load_dword v251, v250, {srd(sW2)}, s8 offen {opt['wtaux']}"); VM.issue("wt")
        e("s_mov_b64 exec, -1")
        return
    e(f"s_lshl_b32 s8, s2, 2")
    e(f"s_add_u32 s8, s8, s{sW}")
    e(f"s_mul_i32 s8, s8, {15*128}")
    e(f"v_lshlrev_b32 v250, {2 if opt['wth'] else 3}, v{vL16}")
    e(f"s_mov_b64 exec, {(1 << (30 if opt['wth'] else 15)) - 1}")
    e(f"buffer_load_dword v251, v250, {srd(sW2)}, s8 offen {opt['wtaux']}"); VM.issue("wt")
    e("s_mov_b64 exec, -1")
if opt["wt"] >= 0: first.insert(opt["wt"], wtouch)
def stouch():
    e(f"s_lshl_b32 s100, s2, 2")
    e(f"s_add_u32 s100, s100, s{sW}")
    e(f"s_mul_i32 s100, s100, {15*128}")
    for i in range(opt["swn"]):
        e(f"s_load_dword s101, s[{sW2}:{sW2+1}], s100 offset:{i*128}")
if opt["sw"] >= 0: first.insert(opt["sw"], stouch)
if opt["clr"] >= 0: first[opt["clr"]:opt["clr"]] = CLO
NF0 = opt["nf0"]
for f in first[:NF0]: f()
if opt["fst"]:
    e(f"s_waitcnt vmcnt({NF0-1})"); stamp(k=5)
    e(f"s_waitcnt vmcnt({NF0-3})"); stamp(k=5)
rest = first[NF0:]
per = (len(groups) + len(rest) - 1) // len(rest)
head = len(groups) * opt["head"] // 100
for g in groups[:head]: O.extend(g)
groups = groups[head:]
per = (len(groups) + len(rest) - 1) // len(rest)
for f in rest:
    f()
    for g in groups[:per]: O.extend(g)
    groups = groups[per:]
assert not groups
stamp()

def w2_ops():
    ops = []
    order = list(range(1, 12)); order.insert(opt["w0p"], 0)
    for n in order:
        for j in range(5):
            def f(n=n, j=j):
                if j == 0:
                    e(f"s_mul_i32 s{sWO}, s{sSIG+n}, 40")
                    e(f"s_add_u32 s{sWO}, s{sWO}, s{sW2B}")
                va = vL16 if j < 4 else vL16b
                e(f"buffer_load_dwordx4 {ar(n*20+4*j, 4)}, v{va}, {srd(sH)}, s{sWO} offen offset:{(j%4)*1024} {opt['w2aux'].replace('-','')}")
                VM.issue(f"w{n}")
            ops.append(f)
    return ops
WREG = [3, 3, 4, 4, 1, 1, 2, 2, 3, 3, 4, 4]
WHF = [n % 2 for n in range(12)]
WDEP = [None] * 8 + ["t0", "t1", "t2", "t3"]
if OW:
    WREG = [3, 3, 4, 4, 1, 1, 2, 3, 3, 4, 4, 2]
    WHF = [0, 1, 0, 1, 0, 1, 0, 0, 1, 0, 1, 1]
    WDEP = [None] * 7 + ["t0", "t1", "t2", "t3", "or3"]
def wd_ops():
    ops = []
    for n in range(12):
        for i in range(4):
            def f(n=n, i=i):
                if i == 0:
                    if WDEP[n]: assert WDEP[n] in TDONE + ORD and WDEP[n] not in LG.q, n
                    e(f"s_mul_i32 s{sWO}, s{sSIG+n}, {160 if OW else 40}")
                    e(f"s_add_u32 m0, s{sM0}, {WREG[n]*32768 + WHF[n]*4096}")
                    e(f"s_add_u32 s{sWO}, s{sWO}, s{sW2B}")
                if n >= 12 - opt["skd"]: return
                e(f"buffer_load_dwordx4 v{vWD+i}, {srd(sW2)}, s{sWO} offen offset:{i*1024} {opt['waux']} lds")
                VM.issue(f"d{n}")
            ops.append(f)
    return ops
def w5_ops():
    ops = []
    for n in range(12):
        def f(n=n):
            if n >= 12 - opt["sk5"]: return
            e(f"s_lshl3_add_u32 s{sT1}, s{sSIG+n}, s{sW5B}")
            e(f"buffer_load_dwordx4 {ar(n*20+16, 4)}, v{vL16}, {srd(sH)}, s{sT1} offen {opt['w5aux'].replace('-','')}")
            VM.issue(f"w{n}")
        ops.append(f)
    return ops
TDONE = []; TWIN = [3]; ORD = []
def tgroup_ops(n):
    def head():
        assert not any(f.__defaults__[0] == n and len(f.__defaults__) == 2 for f in W2L), n
        VM.wait(f"d{n}")
        win = 3 if WREG[n] >= 3 else 1
        if win != TWIN[0]:
            for j in range(4): e(f"v_add_u32 v{vWT+j}, {(win - TWIN[0]) * 32768}, v{vWT+j}")
            TWIN[0] = win
        if len(LG.q) > 7:
            e("s_waitcnt lgkmcnt(7)"); LG.q = LG.q[-7:]
    ops = []
    for j in range(4):
        def f(j=j):
            if j == 0: head()
            win = TWIN[0]
            for t in range(2):
                e(f"ds_read_b64_tr_b16 {ar(n*20+4*j+2*t, 2)}, v{vWT+j} offset:{(WREG[n]-win)*32768 + WHF[n]*4096 + t*1024}"); LG.issue(f"t{n}")
        ops.append(f)
    TDONE.append(f"t{n}")
    return ops
def tgroup(n):
    for f in tgroup_ops(n): f()
W2L = wd_ops() if D1 else w2_ops()
def take(n):
    r = W2L[:n]; del W2L[:n]; return r

def rd_ops(st, half):
    slot = st % NSL
    sb = (slot % 2) * 32768
    hi = slot // 2
    ops = []
    if opt["nord"]: return ops
    if opt["r16"]:
        def b(rt):
            def f(): e(f"ds_read_b128 {vr(vBF + (half*2+rt)*4, 4)}, v{vB + 4 + 2*hi + half} offset:{sb + rt*8192}"); LG.issue(f"B{half}{rt}")
            return f
        def a(j, t):
            def f():
                e(f"ds_read_b64_tr_b16 {vr(vAF + half*24 + j*4 + 2*t, 2)}, v{vA + 2*hi + j%2} offset:{sb + half*16384 + t*1536 + (j//2)*128}")
                LG.issue(f"A{half}{j}")
            return f
        A = [a(j, t) for j in range(6) for t in range(2)]
        return [b(0)] + A[:2] + [b(1)] + A[2:]
    for kk in range(2):
        ks = 2*half + kk
        def b(ks=ks, kk=kk):
            e(f"ds_read_b128 {vr(vBF + (half*2+kk)*4, 4)}, v{vB + 4*hi + ks} offset:{sb}"); LG.issue(f"B{ks}")
        ops.append(b)
        for q in range(3):
            for t in range(2):
                def a(ks=ks, kk=kk, q=q, t=t):
                    e(f"ds_read_b64_tr_b16 {vr(vAF + half*24 + (kk*3+q)*4 + 2*t, 2)}, v{vA+hi} offset:{sb + ks*8192 + t*1536 + q*128}")
                    LG.issue(f"A{ks}{q}")
                ops.append(a)
    if opt["qm"] in (1, 2):
        qs = (0, 1, 2) if opt["qm"] == 1 or half == 0 else (2, 1, 0)
        ops = [ops[0], ops[7]] + [ops[7*kk + 1 + 2*q + t] for q in qs for kk in range(2) for t in range(2)]
    if opt["qm"] == 3: ops = ops[:8] + [ops[8 + 2*q + t] for q in (2, 1, 0) for t in range(2)]
    return ops
def i16(kk, q): return kk == 1
def mfma1(half, kk, q, zz=None):
    ks = 2*half + kk
    LG.wait(f"A{ks}{q}")
    if opt["nomf1"]: return
    if opt["m16"]:
        for z in (range(2) if zz is None else [zz]):
            c = vr(vACC1+16*q+8*kk+4*z, 4)
            e(f"v_mfma_f32_16x16x32_bf16 {c}, {vr(vAF + half*24 + (kk*3+q)*4, 4)}, {vr(vBF + (half*2+(kk^z if i16(kk, q) else kk))*4, 4)}, {c}")
        return
    a, b = vr(vAF + half*24 + (kk*3+q)*4, 4), vr(vBF + (half*2+kk)*4, 4)
    if opt["swab"]: a, b = b, a
    e(f"v_mfma_f32_32x32x16_bf16 {vr(vACC1+16*q,16)}, {a}, {b}, {vr(vACC1+16*q,16)}")
def mfma16(half, i):
    j, rt = i // 2, i % 2
    if opt["ro"] == 1 and j % 2: rt ^= 1
    LG.wait(f"A{half}{j}"); LG.wait(f"B{half}{rt}")
    if opt["nomf1"]: return
    c = vr(vACC1 + (j//2)*16 + rt*8 + (j%2)*4, 4)
    e(f"v_mfma_f32_16x16x32_bf16 {c}, {vr(vAF + half*24 + j*4, 4)}, {vr(vBF + (half*2+rt)*4, 4)}, {c}")
def half_body(mf_half, rds, fill, cnt=None):
    rds = list(rds); fill = list(fill)
    if (opt["m16"] >= 2 or opt["r16"]) and mf_half is not None:
        for i in range(12):
            if opt["r16"]: mfma16(mf_half, i)
            else: mfma1(mf_half, i // 6, (i // 2) % 3, i % 2)
            left = 12 - i
            if opt["pat"]:
                P = opt["pat1"] if opt["pat1"] and mf_half == 0 else opt["pat"]
                ch = P[i]
                for _ in range(dict(a=2, b=1, c=3, M=1, N=2).get(ch, 0)):
                    if rds: rds.pop(0)()
                if ch in "LMN":
                    nl = sum(c in "LMN" for c in P[i:])
                    for _ in range((len(fill) + nl - 1) // nl): fill.pop(0)()
            elif opt["m16"] == 2 or opt["r16"] == 2:
                for _ in range((len(rds) + left - 1) // left if i else 2):
                    if rds: rds.pop(0)()
                if i % 2 == 1:
                    for _ in range((len(fill) + left // 2) // (left // 2 + 1)):
                        if fill: fill.pop(0)()
            else:
                if i % 3 == 2 and fill:
                    for _ in range((len(fill) + left // 3) // (left // 3 + 1)): fill.pop(0)()
                else:
                    for _ in range(2):
                        if rds: rds.pop(0)()
        assert not rds and not fill, (len(rds), len(fill))
        return
    for i in range(6):
        if mf_half is not None:
            if opt["qm"] == 1: mfma1(mf_half, i % 2, i // 2)
            elif opt["qm"] == 2: mfma1(mf_half, i % 2, (i // 2) if mf_half == 0 else 2 - i // 2)
            elif opt["qm"] == 3: mfma1(mf_half, i // 3, (i % 3) if i < 3 else 5 - i)
            else: mfma1(mf_half, i // 3, i % 3)
        left = 6 - i
        for _ in range((len(rds) + left - 1) // left if i else min(len(rds), 4)):
            if rds: rds.pop(0)()
        if cnt is not None:
            for _ in range(cnt[i]):
                if fill: fill.pop(0)()
            if i == 5:
                while fill: fill.pop(0)()
            continue
        for _ in range((len(fill) + left - 1) // left):
            if fill: fill.pop(0)()
    assert not rds and not fill

def flag_store(off, lanes=0):
    fk = opt["fk"]
    if opt["fpre"]:
        e(f"buffer_store_dword v{vT}, v{249 if lanes else 248}, {srd(sH)}, s{off} offen sc1"); VM.issue("flag")
        return
    if fk in (1, 3, 4):
        for r in range(4): e(f"v_mov_b32 v{vTM+12+r}, s{sTAG}")
        e(f"s_mov_b64 exec, {dict([(1,255),(3,1),(4,15)])[fk]}")
        e(f"buffer_store_dwordx4 {vr(vTM+12,4)}, v{vL16}, {srd(sH)}, s{off} offen sc1"); VM.issue("flag")
        e("s_mov_b64 exec, -1")
        return
    e(f"v_mov_b32 v{vT}, s{sTAG}")
    e(f"s_mov_b64 exec, {(1 << lanes) - 1}" if lanes else "s_mov_b32 exec_hi, 0" if fk == 0 else "s_mov_b64 exec, 1")
    e(f"buffer_store_dword v{vT}, v{vL4}, {srd(sH)}, s{off} offen sc1"); VM.issue("flag")
    e("s_mov_b64 exec, -1")
def r_poll():
    e(f"s_mov_b32 s{sT0}, {HREC if opt['norp'] else RFL}")
    e(f"buffer_load_dword v{vPOLL}, v{vRP}, {srd(sH)}, s{sT0} offen sc1"); VM.issue("rpoll")

def spin_slow(lab, vv, va, so):
    e(f"L_{lab}_s:")
    e(f"s_mov_b32 s{sSPIN}, 20000")
    e(f"L_{lab}:")
    e(f"buffer_load_dword v{vv}, v{va}, {srd(sH)}, s{so} offen sc1")
    e(f"s_sub_u32 s{sSPIN}, s{sSPIN}, 1")
    e("s_waitcnt vmcnt(0)")
    e(f"v_cmp_ne_u32 vcc, s{sTAG}, v{vv}")
    e(f"s_cbranch_scc1 L_{lab}_go")
    e(f"s_cbranch_vccnz L_{lab}")
    e(f"s_branch L_{lab}_go")
def spin_fast(lab, vv, tag):
    VM.wait(tag)
    e(f"v_cmp_ne_u32 vcc, s{sTAG}, v{vv}")
    e(f"s_cbranch_vccnz L_{lab}_s")
    e(f"L_{lab}_go:")
def spin_check(lab, vv, va, tag, so=None, fake=False):
    VM.wait(tag)
    e(f"s_mov_b32 s{sSPIN}, 20000")
    e(f"L_{lab}:")
    e(f"v_cmp_ne_u32 vcc, s{sTAG}, v{vv}")
    e("s_cmp_eq_u64 vcc, 0" if not fake else "s_cmp_eq_u32 s2, s2")
    e(f"s_cbranch_scc1 L_{lab}_go")
    e(f"s_sub_u32 s{sSPIN}, s{sSPIN}, 1")
    e(f"s_cmp_eq_u32 s{sSPIN}, 0")
    e(f"s_cbranch_scc1 L_{lab}_go")
    if so is None: e(f"s_mov_b32 s{sT0}, {RFL}")
    e(f"buffer_load_dword v{vv}, v{va}, {srd(sH)}, s{sT0 if so is None else so} offen sc1")
    e("s_waitcnt vmcnt(0)")
    e(f"s_branch L_{lab}")
    e(f"L_{lab}_go:")
def r_check(): spin_check("rp", vPOLL, vRP, "rpoll", None, opt["norp"])

PEND = []
EMU = [int(c) for c in str(opt["emu"]).lstrip("x")]
def emu_ops(bi):
    q, g2 = bi // 2, bi % 2
    a0 = 216; tt = vS + (bi % 2) * 8; pk = vRF + 8 + bi * 4
    ops = []
    if opt["emv"] and not opt["epk"]:
        for r in range(8): ops.append(f"v_mul_f32 v{tt+r}, s{sL2E}, v{a0+r}")
        for r in range(8): ops.append(f"v_exp_f32 v{tt+r}, v{tt+r}")
        for r in range(8): ops.append(f"v_add_f32 v{tt+r}, 1.0, v{tt+r}")
        for r in range(8): ops.append(f"v_rcp_f32 v{tt+r}, v{tt+r}")
        for r in range(8): ops.append(f"v_mul_f32 v{tt+r}, v{a0+r}, v{tt+r}")
        for r in range(4): ops.append(f"v_cvt_pk_bf16_f32 v{pk+r}, v{tt+2*r}, v{tt+2*r+1}")
    elif opt["emv"]:
        for r in range(0, 8, 2): ops.append(f"v_pk_mul_f32 {vr(tt+r,2)}, {vr(a0+r,2)}, s[{sPK}:{sPK+1}]")
        for r in range(8): ops.append(f"v_exp_f32 v{tt+r}, v{tt+r}")
        for r in range(0, 8, 2): ops.append(f"v_pk_add_f32 {vr(tt+r,2)}, {vr(tt+r,2)}, 1.0 op_sel_hi:[1,0]")
        for r in range(8): ops.append(f"v_rcp_f32 v{tt+r}, v{tt+r}")
        for r in range(0, 8, 2): ops.append(f"v_pk_mul_f32 {vr(tt+r,2)}, {vr(a0+r,2)}, {vr(tt+r,2)}")
        for r in range(4): ops.append(f"v_cvt_pk_bf16_f32 v{pk+r}, v{tt+2*r}, v{tt+2*r+1}")
    fs = [(lambda l=l: e(l)) for l in ops]
    def st_():
        e(f"buffer_store_dwordx4 {vr(pk,4)}, v{vHS}, {srd(sH)}, s{sHS} offen offset:{g2*512 + (q%2)*2048} sc1"); VM.issue("hstA" if opt["ab"] else "hst")
    if not opt['ems']: PEND.append(st_); return fs
    return fs + [st_]
def merge(a, b):
    r = []; a = list(a); b = list(b); na, nb_ = len(a), len(b)
    while a or b:
        if a and (not b or len(a) * nb_ >= len(b) * na): r.append(a.pop(0))
        else: r.append(b.pop(0))
    return r
if EMU:
    for r in range(8): e(f"v_cvt_f32_u32 v{216+r}, v{vL16}"); e(f"v_mul_f32 v{216+r}, 0x3a000000, v{216+r}")
for st in range(10):
    if st == 1 and opt["fpre"]:
        e(f"s_mul_i32 s{sTAG}, s{sE}, 0x9E3779B1")
        e(f"s_add_u32 s{sTAG}, s{sTAG}, 0x7F4A7C15")
        e(f"v_mov_b32 v{vT}, s{sTAG}")
    if st == opt["wu"]:
        e("s_mov_b64 exec, 0")
        for k in range(1, 4):
            e(f"s_cmp_eq_u32 s{sW}, {k}")
            e(f"s_cbranch_scc1 L_w{k}")
        e("L_wr:")
        e("s_mov_b64 exec, -1")
    if st != opt["nw"]: VM.wait(f"st{st}")
    if st == opt["rjs"]: VM.wait("rld")
    if st == opt["rfs"]: VM.wait("rst"); VM.wait("clr")
    if st == opt["afs"] and st: VM.wait("hstA")
    LG.drain()
    e("s_barrier")
    if st == opt["afs"] and st:
        e(f"s_cmp_eq_u32 s{sW}, 0")
        e(f"s_cselect_b32 s{sT1}, s{sFLG}, {HREC}")
        flag_store(sT1); stamp(k=7)
    if st == 9: stamp()
    stamp(k=1)
    if st >= 8: stamp(k=4)
    if st == opt["rfs"] or (RPW and st == 1):
        if not opt["fpre"]:
            e(f"s_mul_i32 s{sTAG}, s{sE}, 0x9E3779B1")
            e(f"s_add_u32 s{sTAG}, s{sTAG}, 0x7F4A7C15")
        if not RPW and opt["fpre"] < 2: flag_store(sRFL, opt["rpk"] // 4)
    if not D1 and ((st == opt["rcs"] and opt["rck"] == 0) or (st == 9 and opt["rck"] == 2)): r_check()
    if NSL == 4:
        if st == 0: fill = ([] if opt["pre3"] else dma_ops(2)) + dma_ops(3)
        elif st < 7: fill = dma_ops(st + 3)
        else: fill = take(opt[f"n{st}"])
    elif st == 0 and opt["pre3"]: fill = list(ST0)
    elif st < 8: fill = dma_ops(st + 2) + (take(opt["d7"]) if st == 7 else [])
    else: fill = take(opt["n8"] if st == 8 else opt["n9"])
    if st == opt["dst"]: fill = fill + take(opt["dn"])
    if opt["tch"] and st + opt["la"] < 10: fill.insert(opt["tpos"], touch)
    if st == opt["rls"]: fill = [r_loads] + fill if opt["rpos"] == 0 else fill + [r_loads]
    if st == opt["rjs"]:
        fill.insert(min(opt["rsp"], len(fill)), r_stores)
        fill = [r_reads] + fill
    if st == opt["rps"] and not D1: fill.insert(opt["rpp"], r_poll)
    if st == opt["rfs"] and opt["fpre"] >= 2: fill.insert(min(opt["fpre"] - 2, len(fill)), lambda: flag_store(sRFL, opt["rpk"] // 4))
    if st == opt["wts"]: fill.insert(min(opt["wtp"], len(fill)), wtouch)
    WX = [int(c) for c in str(opt["wx"]).lstrip("x")]
    for k, c in enumerate(WX):
        if c == st: fill.insert(min(opt["wxp"], len(fill)), wxtouch(k, len(WX)))
    if st == opt['sws']: fill.insert(min(opt['swp'], len(fill)), stouch)
    if st == opt["ot"]:
        def otch():
            if opt["otm"] == 1: e("s_mov_b64 exec, 1")
            e(f"buffer_load_dword v251, v{vOUT}, {srd(sOUT)}, s{sOB} offen"); VM.issue("ot")
            if opt["otm"] == 3: e(f"buffer_load_dword v251, v{vOUT2}, {srd(sOUT)}, s{sOB} offen offset:128"); VM.issue("ot")
            e("s_mov_b64 exec, -1")
        fill.append(otch)
    ex = [CLO[i] for i, c in enumerate(str(opt["clrs"]).lstrip("x")) if int(c) == st]
    for bi, es in enumerate(EMU):
        if es == st: ex += emu_ops(bi)
    if ex: fill = merge(fill, ex)
    h = (len(fill) + 1) // 2
    f0, f1 = fill[:h], fill[h:]
    if st == 8 and opt["rck"] == 1:
        k = 1 if opt["rps"] == 8 else 0
        f0, f1 = fill[:k], [r_check] + fill[k:]
    if opt["fp"] and st:
        c = [int(z) for z in str(opt["fp"]).lstrip("x")]
        assert sum(c) == 8
        if st == opt["rjs"]: c[-12] += 1
        if len(c) == 13:
            k = c.pop(0)
            pre, fill = fill[:k + (st == opt["rjs"])], fill[k + (st == opt["rjs"]):]
            if st == opt["rjs"]: fill.insert(0, pre.pop(0))
            for f in pre: f()
        h = sum(c[:6])
        half_body(1, rd_ops(st, 0), fill[:h], c[:6])
        half_body(0, rd_ops(st, 1), fill[h:], c[6:])
        continue
    half_body(1 if st else None, rd_ops(st, 0), f0)
    half_body(0, rd_ops(st, 1), f1)
stamp()
def silu_block(q, g2):
    a0 = vACC1 + 16*q + 8*g2
    bi = 2*q + g2
    tt = vS + (bi % 2) * 8
    pk = vRF + bi * 4
    ops = []
    if opt["pk"]:
        for r in range(0, 8, 2): ops.append(f"v_pk_mul_f32 {vr(tt+r,2)}, {vr(a0+r,2)}, s[{sPK}:{sPK+1}]")
        for r in range(8): ops.append(f"v_exp_f32 v{tt+r}, v{tt+r}")
        for r in range(0, 8, 2): ops.append(f"v_pk_add_f32 {vr(tt+r,2)}, {vr(tt+r,2)}, 1.0 op_sel_hi:[1,0]")
        for r in range(8): ops.append(f"v_rcp_f32 v{tt+r}, v{tt+r}")
        for r in range(0, 8, 2): ops.append(f"v_pk_mul_f32 {vr(tt+r,2)}, {vr(a0+r,2)}, {vr(tt+r,2)}")
    else:
        for r in range(8): ops.append(f"v_mul_f32 v{tt+r}, s{sL2E}, v{a0+r}")
        for r in range(8): ops.append(f"v_exp_f32 v{tt+r}, v{tt+r}")
        for r in range(8): ops.append(f"v_add_f32 v{tt+r}, 1.0, v{tt+r}")
        for r in range(8): ops.append(f"v_rcp_f32 v{tt+r}, v{tt+r}")
        for r in range(8): ops.append(f"v_mul_f32 v{tt+r}, v{a0+r}, v{tt+r}")
    for r in range(4): ops.append(f"v_cvt_pk_bf16_f32 v{pk+r}, v{tt+2*r}, v{tt+2*r+1}")
    nbs = str(opt["nb"]).lstrip("x")
    fill = take(int(nbs[bi] if len(nbs) > 1 else nbs))
    if opt["tsil"] and bi >= 6 - opt["tsil"]: fill = fill + tgroup_ops(len(TDONE))
    step = len(ops) // (len(fill) + 1) if fill else 0
    for i, l in enumerate(ops):
        if not opt["novalu"]: e(l)
        if fill and step and (i + 1) % step == 0: fill.pop(0)()
    for f in fill: f()
    so = sHS if q < 2 else sHS2
    def st_():
        if opt["nost"]: return
        if OW:
            e(f"buffer_store_dwordx4 {vr(pk,4)}, v{vHS}, {srd(sH)}, s{(sHS, 10, sHS2)[q]} offen offset:{g2*512} sc1"); VM.issue("hst")
            if q < 2: e(f"ds_write_b128 v{vOW+q}, {vr(pk,4)} offset:{g2*512}"); LG.issue("ow")
            return
        if opt["own"]:
            e(f"buffer_store_dwordx4 {vr(pk,4)}, v{vHS}, {srd(sH)}, s{(sHS, sHS1, sHS2)[q]} offen offset:{g2*512} sc1"); VM.issue("hst")
            if q < 2: e(f"ds_write_b128 v{vOW+q}, {vr(pk,4)} offset:{q*8192 + g2*512}"); LG.issue("ow")
            return
        if opt["r16"]:
            e(f"buffer_store_dwordx4 {vr(pk,4)}, v{vHS if g2 else vL16}, {srd(sH)}, s{so} offen offset:{(q%2)*2048} {opt['hsaux'].replace('-','')}"); VM.issue("hst")
            return
        e(f"buffer_store_dwordx4 {vr(pk,4)}, v{vHS}, {srd(sH)}, s{so} offen offset:{g2*512 + (q%2)*2048} {opt['hsaux'].replace('-','')}"); VM.issue("hstA" if opt["ab"] and q < 2 else "hst")
        if opt["hs2"]:
            e(f"buffer_store_dwordx4 {vr(pk,4)}, v{vHS}, {srd(sH)}, s{so} offen offset:{g2*512 + (q%2)*2048} {opt['hs2'].replace('-','')}"); VM.issue("hst")
    PEND.append(st_)
    if bi >= opt["sl"]:
        while PEND: PEND.pop(0)()
if opt["st0"]:
    e(f"s_cmp_lt_u32 s{sW}, {opt['st0']}")
    e(f"s_cselect_b32 s{sHS}, s{sHS}, {HREC}")
    e(f"s_cselect_b32 s{sHS2}, s{sHS2}, {HREC}")
if opt["r16"]:
    for i in range(12):
        mfma16(1, i)
        if opt["rfs"] == 10 and i == 4: VM.wait("rst"); flag_store(sRFL, opt["rpk"] // 4)
else:
    for q in range(3):
        for kk in range(2): mfma1(1, kk, q)
    e("s_nop 7")
stamp(k=4)
if opt["sts"] == 4: VM.drain(); stamp(k=4)
def cnt_add(tag, off):
    VM.wait(tag)
    e("s_mov_b64 exec, 1")
    e(f"ds_add_rtn_u32 v{vT+1}, v{vCN}, v{vONE} offset:{off}")
    e("s_mov_b64 exec, -1")
def cnt_flag(add):
    e("s_waitcnt lgkmcnt(0)"); LG.q = []
    e(f"v_readfirstlane_b32 s{sT0}, v{vT+1}")
    e(f"s_add_u32 s{sT1}, s{sFLG}, {add}")
    e(f"s_cmp_eq_u32 s{sT0}, 3")
    e(f"s_cselect_b32 s{sT1}, s{sT1}, {HREC}")
    flag_store(sT1)
def silu_mix():
    P = opt["sil"] == 1
    T = []; N = []
    def ln(t): return lambda: e(t)
    def mulA(b):
        a0 = vACC1 + 8*b; tt = vS + (b % 2) * 8
        if P: return [(f"m{b}{r}", [], ln(f"v_pk_mul_f32 {vr(tt+r,2)}, {vr(a0+r,2)}, s[{sPK}:{sPK+1}]")) for r in range(0, 8, 2)]
        return [(f"m{b}{r}", [], ln(f"v_mul_f32 v{tt+r}, s{sL2E}, v{a0+r}")) for r in range(8)]
    def add(b):
        tt = vS + (b % 2) * 8
        if P: return [(f"a{b}{r}", [f"e{b}{r+1}"], ln(f"v_pk_add_f32 {vr(tt+r,2)}, {vr(tt+r,2)}, 1.0 op_sel_hi:[1,0]")) for r in range(0, 8, 2)]
        return [(f"a{b}{r}", [f"e{b}{r}"], ln(f"v_add_f32 v{tt+r}, 1.0, v{tt+r}")) for r in range(8)]
    def fin(b):
        a0 = vACC1 + 8*b; tt = vS + (b % 2) * 8; pk = vRF + b * 4
        q, g2 = b // 2, b % 2
        m = []
        for r in range(0, 8, 2):
            if P: m.append([(f"f{b}{r}", [f"r{b}{r+1}"], ln(f"v_pk_mul_f32 {vr(tt+r,2)}, {vr(a0+r,2)}, {vr(tt+r,2)}"))])
            else: m.append([(f"f{b}{r+1-z}", [f"r{b}{r+z}"], ln(f"v_mul_f32 v{tt+r+z}, v{a0+r+z}, v{tt+r+z}")) for z in range(2)])
        c = [(f"c{b}{r}", [f"f{b}{2*r}"], ln(f"v_cvt_pk_bf16_f32 v{pk+r}, v{tt+2*r}, v{tt+2*r+1}")) for r in range(4)]
        def st_():
            e(f"buffer_store_dwordx4 {vr(pk,4)}, v{vHS}, {srd(sH)}, s{sHS if q < 2 else sHS2} offen offset:{g2*512 + (q%2)*2048} {opt['hsaux'].replace('-','')}"); VM.issue("hst")
        return m[0] + m[1] + [c[0]] + m[2] + [c[1]] + m[3] + [c[2], c[3], (f"s{b}", [], st_)]
    N += mulA(0)
    for b in range(6):
        tt = vS + (b % 2) * 8
        T += [(f"e{b}{r}", [f"m{b}{r & ~1 if P else r}"], ln(f"v_exp_f32 v{tt+r}, v{tt+r}")) for r in range(8)]
        T += [(f"r{b}{r}", [f"a{b}{r & ~1 if P else r}"], ln(f"v_rcp_f32 v{tt+r}, v{tt+r}")) for r in range(8)]
        N += add(b)
        if b < 5: N += mulA(b + 1)
        N += fin(b)
    done = {}
    I0 = len(O)
    def emit(x): x[2](); done[x[0]] = len(done)
    K = [int(c) for c in str(opt["silk"]).lstrip("x")]
    for i, t in enumerate(T):
        while not all(d in done for d in t[1]): emit(N.pop(0))
        emit(t)
        k = K[i % len(K)]
        while N and all(d in done and len(done) - done[d] >= opt["sild"] for d in N[0][1]) and (k > 0 or N[0][0][0] == "s"):
            if N[0][0][0] != "s": k -= 1
            emit(N.pop(0))
    for x in N: emit(x)
    O[I0-8:] = fix(O[I0-8:])
if opt["sil"]: silu_mix()
for q in range(3 if not opt["sil"] else 0):
    for g2 in range(2):
        bi = 2*q + g2
        if opt["ab"] and not opt["afs"] and bi == 4 + opt["afp"]: cnt_add("hstA", 0); stamp(k=7)
        if opt["rfs"] == 11 + bi: VM.wait("rst"); flag_store(sRFL, opt["rpk"] // 4)
        if bi >= len(EMU): silu_block(q, g2)
        if opt["ab"] and not opt["afs"] and bi == 4 + opt["afp"]: cnt_flag(0); stamp(k=7)
stamp(); stamp(k=4); stamp(k=8)
if not opt["spec"]:
    NT = (48 - len(W2L)) // 4
    PL = take(opt["post"])
    if opt["tpm"]:
        TL = []
        while len(TDONE) < NT: TL += tgroup_ops(len(TDONE))
        PL = merge(PL, TL) if opt["tpm"] == 1 else TL + PL
    for i, f in enumerate(PL):
        if D1 and i == opt["rpq"] and opt["rpl"] < 0: r_poll()
        if i == opt["pae"]:
            e(f"buffer_load_dword v{vPOLL}, v{vPA}, {srd(sH)}, s{sPOL} offen sc1"); VM.issue("poll")
        f()
    if opt["wb"]:
        VM.wait("hst")
        e("buffer_wbl2 sc1"); VM.issue("hst")
    if D1:
        while len(TDONE) < NT: tgroup(len(TDONE))
    stamp(k=8)
    if not opt["nhw"]: VM.wait("hst")
    stamp(k=8)
    stamp(k=4)
    if opt["sts"] == 4: VM.drain(); stamp(k=4)
    if opt["fb"]:
        if not opt["fpre"]:
            e(f"s_cmp_eq_u32 s{sW}, 0")
            e(f"s_cselect_b32 s{sFLG}, s{sFLG}, {HREC}")
        if opt["own"]: LG.drain()
        if OW: LG.drain()
        e("s_barrier")
    else:
        e("s_mov_b64 exec, 1")
        e(f"ds_add_rtn_u32 v{vT+1}, v{vCN}, v{vONE} offset:{4 if opt['ab'] else 0}")
        e("s_mov_b64 exec, -1")
        if opt["ab"]: e(f"s_add_u32 s{sFLG}, s{sFLG}, {FLB}")
        for f in take(opt["mid"]): f()
        e("s_waitcnt lgkmcnt(0)")
        e(f"v_readfirstlane_b32 s{sT0}, v{vT+1}")
        e(f"s_cmp_eq_u32 s{sT0}, {3 if opt['nopoll'] < 2 else 9}")
        e(f"s_cselect_b32 s{sFLG}, s{sFLG}, {HREC}")
    if opt["nopoll"] == 3: e(f"s_mov_b32 s{sPOL}, {HREC}")
    flag_store(sFLG)
    if opt["fb"] == 2: e("s_barrier")
    stamp(); stamp(k=3)
else:
    for f in take(opt["fw"]): f()
    VM.wait("hst")
    e(f"s_lshl_b32 s{sT0}, s{sW}, 15")
    e(f"s_add_u32 s{sFLG}, s{sFLG}, s{sT0}")
    flag_store(sFLG)
    stamp()
N0 = 1 if OW else 0
HL = [(p, n) for p in range(4) for n in range(N0, 12)]
def hreg(p, n): return vH + (p*(12-N0) + n - N0)*4
def park(p, j): return [vACC2, 196, 216, 240][p] + 4*j if (p, j) != (3, 4) else 236
def ofr(p): return vr(152+4*p, 4) if opt['owv'] else ar(240+4*p, 4)
def own_reads():
    for p in range(4):
        e(f"ds_read_b128 {ofr(p)}, v{vRW} offset:{32768 + 4096 + p*1024}"); LG.issue(f"or{p}"); ORD.append(f"or{p}")
def own_ops(js):
    def mk(p, j):
        def f():
            LG.wait(f"or{p}"); LG.wait("t0")
            if j == 4: VM.wait("w0")
            if opt["nom"]: return
            mf2(vr(park(p, j), 4), 0, j, ofr(p), '0')
        return f
    return [mk(p, j) for p in range(4) for j in js]
def hload():
    if HL:
        p, n = HL.pop(0)
        if opt["noh"] and (p*12+n) % opt["noh"]: return
        e(f"buffer_load_dwordx4 {vr(hreg(p, n), 4)}, v{vHB+p}, {srd(sH)}, s{sSIG+n} offen {opt['haux'].replace('-','')}"); VM.issue(f"h{p}_{n}")
def mark(v):
    if not opt["stamps"] or opt["sts"]: return
    i = NST[0]; NST[0] += 1
    e(f"s_add_u32 s{72+2*i}, s74, {v}"); e(f"s_addc_u32 s{73+2*i}, s75, 0")
ACI = []; OOL = []
def allc_load(late=False):
    if opt["acb"] == 2 or (opt["acp"] >= 0) != late: return
    if opt["acb"] == 3:
        e("s_cmp_eq_u32 s2, 0")
        e("s_cbranch_scc1 L_aclo")
        e("L_acl:")
        OOL.extend(["L_aclo:", f"s_mov_b32 s{sT0}, {FL}", f"buffer_load_dword v{vAV}, v{vAC}, {srd(sH)}, s{sT0} offen sc1", "s_branch L_acl"])
        return
    if opt["acb"]:
        e("s_cmp_lg_u32 s2, 0")
        e("s_cbranch_scc1 L_acl")
        e(f"s_mov_b32 s{sT0}, {FL}")
        e(f"buffer_load_dword v{vAV}, v{vAC}, {srd(sH)}, s{sT0} offen sc1")
        e("L_acl:")
        VM.q.insert(0, "allc") if False else None
        ACI.append(len(VM.q))
        return
    e("s_cmp_eq_u32 s2, 0")
    e(f"s_cselect_b32 s{sT0}, {FL if D1 else RFL}, s{sH+2}")
    e(f"buffer_load_dword v{vAV}, v{vAC}, {srd(sH)}, s{sT0} offen sc1"); VM.issue("allc")
def p0_block(ML, pre):
    ML = list(ML)
    TL = []
    while D1 and len(TDONE) < 12 - opt["tin"]: TL += tgroup_ops(len(TDONE))
    for f in (merge(ML[:pre], TL) if opt["tmix"] else ML[:pre] + TL): f()
    if OW:
        for f in own_ops([4]): f()
    del ML[:pre]
    if D1 and not opt["tin"]: LG.drain()
    stamp()
    for n in range(N0, 12):
        assert (0, n) not in HL and not any(getattr(f, "__defaults__", None) and f.__defaults__[0] == n for f in ML), n
        late = max((f"h0_{n}", f"w{n}"), key=lambda t: len(VM.q) - 1 - VM.q[::-1].index(t) if t in VM.q else -1)
        VM.wait(late)
        TL = []
        if D1:
            assert f"t{n}" in TDONE
            LG.wait(f"t{n}")
            if len(TDONE) < 12: TL = tgroup_ops(len(TDONE))
        if n == N0 or n == 6: stamp(k=2)
        cnt = (len(ML) + 11 - n) // (12 - n)
        pos = {1: [opt["hj"]], 2: [1, 3], 3: [0, 2, 4], 4: [0, 1, 2, 3], 5: [0, 1, 2, 3, 4], 0: []}[cnt]
        for j in range(5):
            c = "0" if n == 0 else vr(vACC2+4*j, 4)
            mf2(vr(vACC2+4*j,4), n, j, vr(hreg(0, n),4), c)
            if j in pos: ML.pop(0)()
            elif TL: TL.pop(0)()
        for f in TL: f()
    assert not ML and not W2L
TP = []
def tstep(n):
    if not opt["tfm"]: return
    if not TP and len(TDONE) <= n - opt["tfm"] and len(TDONE) < 12 - opt["tlate"]: TP.extend(tgroup_ops(len(TDONE)))
    if TP: TP.pop(0)()
def late_d1():
    W5 = w5_ops()
    cnt = 0
    vP2 = vAV if opt["pqd"] or opt["rcl"] else vPOLL
    def poll():
        stamp(k=3)
        e(f"buffer_load_dword v{vP2}, v{vPA}, {srd(sH)}, s{sPOL} offen sc1"); VM.issue("poll")
    OM = []
    if OW: own_reads(); OM = own_ops(range(4))
    while W2L:
        n = W2L[0].__defaults__[0]
        if W2L[0].__defaults__[1] == 0 and WDEP[n]:
            while WDEP[n] not in TDONE + ORD: tgroup(len(TDONE))
            LG.wait(WDEP[n])
        if len(W2L) == opt["pqd"]: poll()
        if cnt == opt["rpl"]: r_poll()
        take(1)[0](); cnt += 1
        if OM and cnt > opt["owp"]: OM.pop(0)()
        if opt["tfm"]: tstep(n)
        elif cnt % opt["tl"] == 0 and len(TDONE) < n - 2: tgroup(len(TDONE))
    if opt["owp"] < 50:
        for f in OM: f()
        OM = []
    if not opt["rcl"]: r_check()
    else: assert opt["w5d"] == 12
    WD = W5[12-opt["w5d"]:]; del W5[12-opt["w5d"]:]
    def om(i):
        if 50 <= opt["owp"] < 90 and i >= opt["owp"] - 50:
            for _ in range(2):
                if OM: OM.pop(0)()
    for i, f in enumerate(W5[:opt["w5p"]]): f(); tstep(12 + i // 4); om(i)
    if not opt["pqd"]: poll()
    for i, f in enumerate(W5[opt["w5p"]:]): f(); tstep(12 + (i + opt["w5p"]) // 4); om(i + opt["w5p"])
    for f in TP: f()
    for f in OM: f()
    stamp(k=3)
    while len(TDONE) < 12 - opt['tlate']: tgroup(len(TDONE))
    if opt["hid"]:
        e("s_branch L_hid")
        spin_slow("hp", vP2, vPA, sPOL)
        if opt["hid"] & 2:
            e("L_ac_c:")
            e(f"s_mov_b32 s{sT1}, {FL}")
            e(f"v_cmp_ne_u32 vcc, s{sTAG}, v{vAV}")
            e("s_cmp_eq_u64 vcc, 0")
            e(f"s_cbranch_scc1 L_ac_go")
            spin_slow("ac", vAV, vAC, sT1)
        if opt["al"]: e(".p2align 12")
        e("L_hid:")
    VM.wait("poll")
    stamp(k=3)
    stamp()
    if opt["hid"]: spin_fast("hp", vP2, "poll")
    else: spin_check("hp", vP2, vPA, "poll", sPOL, opt["nopoll"])
    stamp(); stamp(k=2); stamp(k=3)
    mark(1000)
    allc_load()
    if opt["c5"]:
        WDL.extend(WD); return
    ML = []; pre = 0
    for i in range(opt["hpre"] + 12 - N0):
        ML.append(hload)
        if WD and WD[0].__defaults__[0] == i: ML.append(WD.pop(0))
        if i == opt["hpre"] - 1: pre = len(ML)
    p0_block(ML, pre)
WDL = []
def late_path():
    if D1: return late_d1()
    if opt['skipw']: del W2L[-opt['skipw']:]
    if opt["sts"] == 6:
        stamp(k=6)
        i = 0
        while len(W2L) > opt["pollq"]:
            take(1)[0](); i += 1
            if i % 4 == 0 and i >= opt["dw"]:
                e(f"s_waitcnt vmcnt({opt['dw']})"); stamp(k=6)
    for f in take(max(0, len(W2L) - opt["pollq"])): f()
    stamp(k=3)
    if opt["sts"] == 3: VM.drain(); stamp(k=3)
    if opt["sts"] == 4: stamp(k=4); VM.drain(); stamp(k=4)
    if opt["sp"]:
        e(f"s_load_dword s6, s[12:13], s{sPOL} {opt['spg']}")
        e(f"s_add_u32 s{sT0}, s{sPOL}, 128")
        e(f"s_load_dword s7, s[12:13], s{sT0} {opt['spg']}")
        for f in take(len(W2L)): f()
        stamp(k=3)
        e("s_waitcnt lgkmcnt(0)")
        stamp(k=3)
        stamp()
        e(f"s_cmp_eq_u32 s6, s{sTAG}")
        e(f"s_cselect_b32 s6, s7, s6")
        e(f"s_cmp_eq_u32 s6, s{sTAG}")
        e("s_cbranch_scc1 L_hp_go")
        e(f"v_mov_b32 v{vPOLL}, s6")
        spin_check("hp", vPOLL, vPA, "poll", sPOL, opt["nopoll"])
    else:
        e(f"buffer_load_dword v{vPOLL}, v{vPA}, {srd(sH)}, s{sPOL} offen sc1"); VM.issue("poll")
        for f in take(len(W2L)): f()
        stamp(k=3)
        VM.wait("poll")
        stamp(k=3)
        stamp()
        spin_check("hp", vPOLL, vPA, "poll", sPOL, opt["nopoll"])
    stamp(); stamp(k=2); stamp(k=3)
    mark(1000)
    allc_load()
    p0_block([hload] * (opt["hpre"] + 12), opt["hpre"])
LATE = []
if opt["eq"]:
    import re
    for f in take(len(W2L) - opt["eq"]): f()
    e(f"buffer_load_dword v{vPOLL}, v{vPA}, {srd(sH)}, s{sPOL} offen sc1"); VM.issue("poll")
    for f in take(opt["ec"]): f()
    VM.wait("poll")
    e(f"v_cmp_ne_u32 vcc, s{sTAG}, v{vPOLL}")
    e("s_cmp_eq_u64 vcc, 0" if not opt["nopoll"] else "s_cmp_eq_u32 s2, s2")
    e("s_cbranch_scc0 L_late")
    sv = (list(VM.q), list(W2L), list(HL), NST[0])
    LATE = ["L_late:"] + capture(late_path) + ["s_branch L_p1"]
    endq, endn = list(VM.q), NST[0]
    VM.q, W2L[:], HL[:], NST[0] = sv
    stamp(); stamp(); stamp(k=2); mark(0)
    allc_load()
    m = re.match(r"h(\d+)w(\d+)", opt["eil"])
    ML = []; nh = 12; ws = take(len(W2L))
    while nh or ws:
        k = min(nh, int(m.group(1))); ML += [hload] * k; nh -= k
        k = int(m.group(2)); ML += ws[:k]; del ws[:k]
    ML += [hload] * opt["hpre"]
    p0_block(ML, opt["epre"])
    assert NST[0] == endn, (NST[0], endn)
    k = min(len(VM.q), len(endq))
    assert VM.q[-k:] == endq[-k:] and all(t.startswith("h1") for t in VM.q + endq), (VM.q, endq)
    if len(endq) > len(VM.q): VM.q = endq
    e("L_p1:")
elif opt["spec"]:
    allc_load()
    for f in take(len(W2L) - opt["wl"]): f()
    stamp(); stamp(); stamp(k=2); mark(1000)
    ws = take(len(W2L))
    p0_block([hload] * opt["hpre"] + merge(ws, [hload] * 12) if ws else [hload] * (opt["hpre"] + 12), opt["hpre"])
elif not opt["ab"] and not opt["dfw"]:
    late_path()
def allc_check():
    if opt["acb"] == 2: return
    if opt["hid"] & 2:
        assert "allc" not in VM.q
        e("s_cmp_eq_u32 s2, 0")
        e("s_cbranch_scc1 L_ac_c")
        e("L_ac_go:")
        return
    if opt["acb"] == 3:
        e("s_cmp_eq_u32 s2, 0")
        e("s_cbranch_scc1 L_aco")
        e("L_acb:")
        def body():
            e(f"s_mov_b32 s{sT1}, {FL}")
            spin_check("ac", vAV, vAC, "allc", sT1)
        OOL.extend(["L_aco:"] + capture(body) + ["s_branch L_acb"])
        return
    e("s_cmp_lg_u32 s2, 0")
    e("s_cbranch_scc1 L_ac_go")
    assert "allc" not in VM.q
    if D1: e(f"s_mov_b32 s{sT1}, {FL}")
    spin_check("ac", vAV, vAC, "allc", sT1 if D1 else None)
def phase2_new():
    B1, B2, MA = opt["b1"], opt["b2"], opt["madd"]
    for p in range(1, 4):
        ac = vACC2 + (p % 2) * 20
        pa = vACC2 + ((p-1) % 2) * 20
        slots = {(n, j): [] for n in range(12) for j in range(5)}
        if opt["wb64"]:
            for k in range(10):
                def w(k=k):
                    e(f"ds_write_b64 v{vRW if p < 3 else vRW2}, {vr(pa+2*k,2)} offset:{((p-1)%2)*32768 + (k//2)*1024 + (k%2)*8}")
                    LG.issue("red")
                i = 5*N0 + opt["wg0"] + k * opt["wgs"]
                assert i < 5 * min(B1, B2)
                slots[(i // 5, i % 5)].append(w)
        elif p > 0:
            PW = [(1, 0), (1, 2), (1, 4), (2, 1), (2, 3)]
            if opt["wq"]:
                q = str(opt["wq"]).lstrip("x")
                i0, di = int(q[2*p-2], 36), int(q[2*p-1], 36)
                PW = [((i0 + k*di) // 5, (i0 + k*di) % 5) for k in range(5)]
            for jj, pos in enumerate(PW):
                def w(jj=jj):
                    if D1: e(f"ds_write_b128 v{vRW if p < 3 else vRW2}, {vr(pa+4*jj,4)} offset:{((p-1)%2)*32768 + jj*1024}")
                    else: e(f"ds_write_b128 v{vRW}, {vr(pa+4*jj,4)} offset:{(p-1)*5120 + jj*1024}")
                    LG.issue("red")
                slots[(pos[0] + N0, pos[1])].append(w)
                assert pos[0] + N0 < (12, B1, B2)[p-1]
        def rd(pp, j, dst):
            def f():
                e(f"ds_read_b128 {vr(dst, 4)}, v{vRR+pp} offset:{j*1024}"); LG.issue(f"rr{pp}{j}")
            return f
        if p == 2:
            k = 0
            for j in range(5):
                for pp in range(2):
                    slots[(B1 + k // 5, k % 5)].append(rd(pp, j, vH + pp*20 + 4*j)); k += opt["rds"]
            assert B1 + 3 <= 8 or opt["wq"]
            for i in range(20):
                def a(i=i):
                    LG.wait(f"rr1{i//4}")
                    if OW and opt["ada"] == 7:
                        e(f"v_add_f32 v{pa+i}, v{vH+i}, v{vH+20+i}")
                        if i: e(f"v_add_f32 v{pa+i-1}, v{pa+i-1}, v{park(3, (i-1)//4) + (i-1)%4}")
                        if i == 19: e(f"v_add_f32 v{pa+i}, v{pa+i}, v{park(3, 4) + 3}")
                        return
                    if OW:
                        jt, r = i // 4, (i % 2) * 2
                        d = vr(pa + 4*jt + r, 2)
                        if i % 4 < 2: e(f"v_pk_add_f32 {d}, {vr(vH + 4*jt + r, 2)}, {vr(vH + 20 + 4*jt + r, 2)}")
                        else: e(f"v_pk_add_f32 {d}, {d}, {vr(park(3, jt) + r, 2)}")
                        return
                    e(f"v_add_f32 v{pa+i}, v{vH+i}, v{vH+20+i}")
                i2 = 5*opt["ad0"] + i * (60 - 5*opt["ad0"]) // 20
                assert i2 > 5*B1 + (2*(i//4) + 1)*opt["rds"]
                slots[(i2 // 5, i2 % 5)].append(a)
        if p == 3:
            for j in range(5): slots[(B2, j)].append(rd(2, j, vH + 4*j))
            if opt["smd"]:
                MA = -1
                for j in range(5):
                    for r in range(4):
                        def a(j=j, r=r):
                            LG.wait(f"rr2{j}")
                            e(f"v_add_f32 v{ac+4*j+r}, v{ac+4*j+r}, v{vH+4*j+r}")
                        i = (opt["smd"] + j) * 5 + j + 2 + r // 2 if opt["smd"] + 5 < 12 else opt["smd"] * 5 + 3 * j + (2*j) % 5 * 0 + 99
                        slots[(i // 5, i % 5)].append(a)
        K4 = opt["k4"] if p == 3 else 0
        if K4: MA = -1; I0 = len(O)
        for n in range(N0, 12 - (opt["k2"] if K4 else 0)):
            if (p == 2 and n == B1) or (p == 3 and n == B2):
                if p == 3: allc_check(); stamp(k=2)
                LG.drain(); e("s_barrier")
                if p == 3: stamp(k=2)
            VM.wait(f"h{p}_{n}")
            if p * 12 + n == opt["acp"]: allc_load(True)
            if p * 12 + n == opt["es"]:
                e(f"s_lshl_b32 s6, s{sMT}, 2")
                e(f"s_add_u32 s6, s6, s{sOWN}")
                e(f"s_mul_i32 s6, s6, {16*1280}")
                e(f"s_mul_i32 s7, s{sFT}, 160")
                e(f"s_add_u32 s6, s6, s7")
                e(f"s_cmp_lt_u32 s{sW}, {opt['ost']}")
                e(f"s_cselect_b32 s6, s6, 2621440")
                ax = opt['esaux'].replace('-', '')
                for b in range(2):
                    e(f"buffer_store_dwordx4 {vr(vH+40+4*b,4)}, v{vOUT}, {srd(sOUT)}, s6 offen offset:{64*b} {ax}"); VM.issue("es")
                e(f"buffer_store_dwordx2 {vr(vH+40,2)}, v{vOUT2}, {srd(sOUT)}, s6 offen offset:128 {ax}"); VM.issue("es")
            if n == N0 or (n == 6 and p < 3): stamp(k=2)
            def madd(j):
                LG.wait(f"rr2{j}")
                for r in range(4): e(f"v_add_f32 v{ac+4*j+r}, v{ac+4*j+r}, v{vH+4*j+r}")
            mid = p == 3 and n == MA
            if mid: e("s_nop 3"); madd(0)
            for j in range(5):
                c = "0" if n == 0 and p < 3 else vr(ac+4*j, 4)
                if OW and n == 1 and p < 3: c = vr(park(p, j), 4)
                if mid:
                    if j < 4: madd(j+1)
                    else: e("s_nop 0")
                if j < 4 or n < 12 - K4: mf2(vr(ac+4*j,4), n, j, vr(hreg(p, n),4), c)
                if j == opt["hj"]: hload()
                for f in slots[(n, j)]: f()
                if K4 and opt["a4"] and n == opt["a4"] and j < 4:
                    assert n > 12 - K4 and n > B2
                    LG.wait("rr24"); e(f"v_add_f32 v{ac+16+j}, v{ac+16+j}, v{vH+16+j}")
    if opt["k4"]:
        tile_tail()
        O[I0:] = fix(O[I0:])
    else: out_tail()
def tile_tail():
    K2, K4 = opt["k2"], opt["k4"]
    assert opt["bp"] and opt["t4"] and not HL
    ac = vACC2 + 20; pk = vH + 64
    ML = [(n, j) for g in ((0, 1), (2, 3)) for n in range(12 - K2, 12) for j in g] + [(n, 4) for n in range(12 - K4, 12)]
    def add(j):
        def mk(r):
            def f(): LG.wait(f"rr2{j}"); e(f"v_add_f32 v{ac+4*j+r}, v{ac+4*j+r}, v{vH+4*j+r}")
            return f
        return [mk(r) for r in range(4)]
    def ln(t): return lambda: e(t)
    def cvt(j): return [ln(f"v_cvt_pk_bf16_f32 v{pk+2*j+r}, v{ac+4*j+2*r}, v{ac+4*j+2*r+1}") for r in range(2)]
    def sw(b): return [ln(f"v_permlane32_swap_b32 v{pk+4*b+r}, v{pk+4*b+2+r}") for r in range(2)]
    def bp(b):
        def mk(r):
            def f(): e(f"ds_bpermute_b32 v{pk+16+4*b+r}, v{vL16b}, v{pk+4*b+r}"); LG.issue(f"bp{b}")
            return f
        return [mk(r) for r in (0, 2, 1, 3)]
    def st(b):
        def f():
            LG.wait(f"bp{b}")
            e(f"buffer_store_dwordx4 {vr(pk+16+4*b,4)}, v{vOUT}, {srd(sOUT)}, s{sOB} offen offset:{64*b} {opt['outaux']}")
        return [f]
    fd = opt["fd"]
    Qo = [(0, f) for f in ([] if opt["a4"] else add(4))] + [(fd - 1, f) for f in add(2) + add(3)]
    n23 = len(Qo)
    Qo += [(2*K2 + fd - 1, f) for f in add(0) + add(1) + cvt(0) + cvt(1) + sw(0) + bp(0)]
    Qo += [(4*K2 + fd - 1, f) for f in cvt(2) + cvt(3) + sw(1) + bp(1) + st(0)]
    done = 0
    for i, (n, j) in enumerate(ML):
        if i == 2*K2:
            while done < n23: Qo.pop(0)[1](); done += 1
        VM.wait(f"h3_{n}")
        mf2(vr(ac+4*j,4), n, j, vr(hreg(3, n),4), vr(ac+4*j,4))
        for _ in range(opt["fr"]):
            if Qo and Qo[0][0] <= i: Qo.pop(0)[1](); done += 1
    stamp(); stamp(k=2)
    for _, f in Qo: f()
    for f in cvt(4): f()
    for r in range(4):
        e(f"buffer_store_short{'_d16_hi' if r % 2 else ''} v{pk+8+r//2}, v{vOUT2}, {srd(sOUT)}, s{sOB2} offen offset:{128 + r*1280} {opt['outaux']}")
    st(1)[0]()
def out_tail():
    stamp(); stamp(k=2)
    if opt["enc"]: stamp(True)
    ac = vACC2 + 20
    pk = vH + 64
    def cvt(j):
        for r in range(2): e(f"v_cvt_pk_bf16_f32 v{pk+2*j+r}, v{ac+4*j+2*r}, v{ac+4*j+2*r+1}")
    def swp(b):
        e(f"v_permlane32_swap_b32 v{pk+4*b}, v{pk+4*b+2}")
        e(f"v_permlane32_swap_b32 v{pk+4*b+1}, v{pk+4*b+3}")
        if opt["enc"]:
            e("s_waitcnt lgkmcnt(0)")
            e(f"v_lshrrev_b32 v{vT+1}, 4, v{vL16}")
            for r in range(4):
                i = 4*b + r
                e(f"v_mov_b32 v{vT}, s{72+2*i}")
                e("s_mov_b32 exec_lo, 0")
                e(f"v_mov_b32 v{vT}, s{72+2*min(i+8, 14)}")
                e("s_mov_b32 exec_lo, -1")
                e(f"v_lshrrev_b32 v{vT}, v{vT+1}, v{vT}")
                e(f"v_bfi_b32 v{pk+4*b+r}, 1, v{vT}, v{pk+4*b+r}")
        if opt["ofk"]:
            e(f"buffer_store_dwordx4 {vr(pk+4*b,4)}, v{vL16b if b else vOUT}, {srd(sOUT)}, s{sOB} offen {opt['outaux']}"); return
        e(f"buffer_store_dwordx4 {vr(pk+4*b,4)}, v{vOUT}, {srd(sOUT)}, s{sOB} offen offset:{64*b} {opt['outaux']}")
    if opt["bp"]:
        assert not opt["enc"]
        def sw(b):
            e(f"v_permlane32_swap_b32 v{pk+4*b}, v{pk+4*b+2}")
            e(f"v_permlane32_swap_b32 v{pk+4*b+1}, v{pk+4*b+3}")
        def bp(b, n):
            for r in range(n):
                e(f"ds_bpermute_b32 v{pk+16+4*b+r}, v{vL16b}, v{pk+4*b+r}"); LG.issue(f"bp{b}")
        def st(b):
            LG.wait(f"bp{b}")
            if b < 2: e(f"buffer_store_dwordx4 {vr(pk+16+4*b,4)}, v{vOUT}, {srd(sOUT)}, s{sOB} offen offset:{64*b} {opt['outaux']}")
            else: e(f"buffer_store_dwordx2 {vr(pk+24,2)}, v{vOUT2}, {srd(sOUT)}, s{sOB2} offen offset:128 {opt['outaux']}")
        e("s_nop 3")
        if opt["t4"]:
            cvt(0); cvt(1); cvt(2); sw(0); cvt(3); bp(0, 4); sw(1); cvt(4); bp(1, 4)
            for r in range(4):
                e(f"buffer_store_short{'_d16_hi' if r % 2 else ''} v{pk+8+r//2}, v{vOUT2}, {srd(sOUT)}, s{sOB2} offen offset:{128 + r*1280} {opt['outaux']}")
            st(0); st(1)
            return
        cvt(0); cvt(1); cvt(2); sw(0); cvt(3); bp(0, 4); cvt(4); sw(1); bp(2, 2); bp(1, 4); st(0); st(2); st(1)
        return
    e("s_nop 3")
    cvt(0); cvt(1); cvt(2); swp(0); cvt(3); cvt(4); swp(1)
    e(f"buffer_store_dwordx2 {vr(pk+8,2)}, v{vOUT2}, {srd(sOUT)}, s{sOB2 if D1 else sOB} offen offset:128 {opt['outaux']}")
def phase2_c():
    B1, B2, MA = opt["b1"], opt["b2"], opt["madd"]
    hp = opt["hpre"]
    ML = []
    WD = list(WDL)
    for i in range(48):
        g = [hload]
        k = 12 - len(WD)
        if WD and (i >= opt["w5s"] + (k - (12 - len(WDL))) * opt["w5k"] or i >= 24 + k): g.append(WD.pop(0))
        ML.append(g)
    assert not WD
    TL = []
    while len(TDONE) < 12: TL += tgroup_ops(len(TDONE))
    pre = [f for g in ML[:hp] for f in g]
    if opt["rcl"]:
        assert len(pre) == hp
        pre.append(r_check)
    for f in merge(pre, TL): f()
    del ML[:hp]
    LG.drain()
    stamp()
    A5 = 240
    def wr(blk, jj, src):
        def f():
            e(f"ds_write_b128 v{vRW if blk < 2 else vRW2}, {src} offset:{(blk%2)*32768 + jj*1024}"); LG.issue("red")
        return f
    def rd(pp, j, dst):
        def f():
            e(f"ds_read_b128 {vr(dst, 4)}, v{vRR+pp} offset:{j*1024}"); LG.issue(f"rr{pp}{j}")
        return f
    for p in range(4):
        ac = vACC2 + (p % 2) * 20
        pa = vACC2 + ((p-1) % 2) * 20
        NM = [4, 4, 7, 5][p]
        slots = {(n, j): [] for n in range(12) for j in range(NM)}
        def put(i0, step, fs):
            for k, f in enumerate(fs):
                i = i0 + k * step
                slots[(i // NM, i % NM)].append(f)
        if p > 0:
            ws = [wr(p-1, jj, vr(pa+4*jj, 4)) for jj in range(4)]
            if p == 3: ws += [wr(b, 4, ar(A5+4*b, 4)) for b in range(3)]
            put(NM, 2, ws)
            if p == 3: assert NM + 2*6 < B2 * NM
        if p == 2:
            assert B1 >= 4
            put(B1 * NM, 1, [rd(pp, j, vH + pp*48 + 4*j) for j in range(4) for pp in range(2)])
            def mk(i):
                def a():
                    LG.wait(f"rr1{i//4}")
                    e(f"v_add_f32 v{pa+i}, v{vH+i}, v{vH+48+i}")
                return a
            put(8 * NM, 1, [mk(i) for i in range(16)])
        if p == 3:
            put(B2 * NM, 1, [rd(pp, 4, vH + 16 + 4*pp) for pp in range(3)] + [rd(2, j, vH + 4*j) for j in range(4)])
            def mk(i):
                def a():
                    LG.wait(f"rr{1 + i//4}4")
                    e(f"v_add_f32 v{vH+16+i%4}, v{vH+16+i%4}, v{vH+20+i}")
                return a
            put((MA - 2) * NM, 1, [mk(i) for i in range(8)])
            assert MA - 2 >= B2 + 2
        for n in range(12):
            if (p == 2 and n == B1) or (p == 3 and n == B2):
                if p == 3: allc_check(); stamp(k=2)
                LG.drain(); e("s_barrier")
                if p == 3: stamp(k=2)
            VM.wait(f"h{p}_{n}")
            if n == 0 or (n == 6 and p < 3): stamp(k=2)
            def madd(j):
                LG.wait(f"rr2{j}")
                for r in range(4): e(f"v_add_f32 v{ac+4*j+r}, v{ac+4*j+r}, v{vH+4*j+r}")
            mid = p == 3 and n == MA
            if mid: e("s_nop 3"); madd(0)
            g = ML.pop(0) if ML else []
            for j in range(NM):
                if j < 4 or p == 3:
                    d = vr(ac+4*j, 4); b = p
                    c = "0" if n == 0 and (p < 3 or j == 4) else d
                else:
                    b = (j - 2) % 3
                    d = ar(A5+4*b, 4); c = "0" if n == 0 else d
                    assert not any(f is not hload and f.__defaults__[0] == n for gg in ML + [g] for f in gg), n
                    VM.wait(f"w{n}")
                if mid:
                    if j < 4: madd(j+1)
                    else: e("s_nop 0")
                e(f"v_mfma_f32_16x16x32_bf16 {d}, {ar(n*20+4*min(j,4),4)}, {vr(vH+(b*12+n)*4,4)}, {c}")
                if g and j in (opt["hj"], 3): g.pop(0)()
                for f in slots[(n, j)]: f()
            assert not g
    out_tail()
def phase2_ab():
    OA = opt["owna"]
    NE = opt["ne"]; NL = 12 - NE
    items = [(p, n) for p in range(3) for n in range(NE)] + [(3, n) for n in range(OA)]
    NA = len(items)
    items += [(p, n) for p in range(3) for n in range(NE, 12)] + [(3, n) for n in range(OA, 12)]
    NS = 36; vH2 = 112
    acc = lambda p, j: 24 + 20*p + 4*j
    hp = opt["hpre"]
    HI = list(range(48))
    seen = set()
    I0 = 0
    def own_mf(k):
        if not opt["own"] or k != opt["omp"]: return
        VM.wait("w0")
        for p in range(4):
            LG.wait(f"or{p}")
            for j in range(5):
                e(f"v_mfma_f32_16x16x32_bf16 {vr(acc(p,j),4)}, {ar(4*j,4)}, {vr(vH2+p*4,4)}, 0")
    if opt["own"]:
        items = [(p, 0) for p in range(4)] + [(p, n) for p in range(4) for n in range(1, 12)]
        HI = HI[4:]; I0 = 4; seen = {0, 1, 2, 3}
        for p in range(4):
            e(f"ds_read_b128 {vr(vH2+p*4, 4)}, v{vOW+2} offset:{p*1024}"); LG.issue(f"or{p}")
    def hl():
        if not HI: return
        i = HI.pop(0); p, n = items[i]
        if i == NA and not opt["dfw"]:
            spin_check("hpb", vPOLL, vPA, "pollB", sPOL, opt["nopoll"]); stamp(k=7)
        e(f"buffer_load_dwordx4 {vr(vH2 + (i % NS)*4, 4)}, v{vHB+p}, {srd(sH)}, s{sSIG+n} offen {opt['haux'].replace('-','')}"); VM.issue(f"h{i}")
    if opt["pae"] < 0:
        for f in take(max(0, len(W2L) - opt["pa"])): f()
        e(f"buffer_load_dword v{vPOLL}, v{vPA}, {srd(sH)}, s{sPOL} offen sc1"); VM.issue("poll")
        for f in take(opt["ec"]): f()
    own_mf(0)
    VM.wait("poll")
    stamp(); stamp(k=7)
    spin_check("hp", vPOLL, vPA, "poll", sPOL, opt["nopoll"])
    stamp(); stamp(k=2); stamp(k=7)
    e(f"s_add_u32 s{sPOL}, s{sPOL}, {FLB}")
    allc_load()
    for _ in range(hp): hl()
    for f in take(opt["wsk"]): f()
    own_mf(1)
    stamp()
    slots = {(i, j): [] for i in range(48) for j in range(5)}
    if opt["own"]: NA = 37
    L3 = NA + 3*NL
    for p in range(3):
        i0 = NA + NL*(p+1) if NL else NE*(p+1)
        if opt["own"]: i0 = 4 + 11*(p+1)
        for jj, (di, j) in enumerate([(1, 0), (1, 2), (1, 4), (2, 1), (2, 3)]):
            def w(jj=jj, p=p):
                e(f"ds_write_b128 v{vRW}, {vr(acc(p,jj),4)} offset:{p*5120 + jj*1024}"); LG.issue("red")
            slots[(i0 + di, j)].append(w)
    IB = L3 + opt["rb"]
    k = 0
    rest = 48 - IB
    assert rest >= 1
    rds = []
    for j in range(5):
        for pp in range(3):
            def f(pp=pp, j=j):
                e(f"ds_read_b128 {vr(acc(pp,j), 4)}, v{vRR+pp} offset:{j*1024}"); LG.issue(f"rr{j}")
            rds.append(f)
    per = 1 if rest >= 7 else 3
    for k, f in enumerate(rds): slots[(IB + k // per // 5, k // per % 5)].append(f)
    adds = []
    for j in range(5):
        for pp in (1, 2):
            for r in (0, 2):
                def a(j=j, pp=pp, r=r):
                    LG.wait(f"rr{j}")
                    if opt["epk"]: e(f"v_pk_add_f32 {vr(acc(0,j)+r,2)}, {vr(acc(0,j)+r,2)}, {vr(acc(pp,j)+r,2)}")
                    else:
                        for z in range(2): e(f"v_add_f32 v{acc(0,j)+r+z}, v{acc(0,j)+r+z}, v{acc(pp,j)+r+z}")
                adds.append(a)
    MA = 47 if rest >= 7 else None
    if MA:
        a0 = (MA - 3) * 5 - 5
        for k, f in enumerate(adds): slots[((a0 + k) // 5, (a0 + k) % 5)].append(f)
    for i, (p, n) in enumerate(items):
        if i < I0: continue
        if i == IB:
            allc_check(); stamp(k=2)
            LG.drain(); e("s_barrier")
            stamp(k=2)
        assert i not in HI and not any(f.__defaults__[0] == n for f in W2L), (i, n)
        late = max((f"h{i}", f"w{n}"), key=lambda t: len(VM.q) - 1 - VM.q[::-1].index(t) if t in VM.q else -1)
        VM.wait(late)
        if i % 8 == 0: stamp(k=2)
        def madd(j):
            if opt["epk"]:
                for r in (0, 2): e(f"v_pk_add_f32 {vr(acc(3,j)+r,2)}, {vr(acc(3,j)+r,2)}, {vr(acc(0,j)+r,2)}")
            else:
                for r in range(4): e(f"v_add_f32 v{acc(3,j)+r}, v{acc(3,j)+r}, v{acc(0,j)+r}")
        mid = i == MA
        if mid: e("s_nop 3"); madd(0)
        for j in range(5):
            c = vr(acc(p,j), 4) if p in seen else "0"
            if mid:
                if j < 4: madd(j+1)
                else: e("s_nop 1")
            e(f"v_mfma_f32_16x16x32_bf16 {vr(acc(p,j),4)}, {ar(n*20+4*j,4)}, {vr(vH2+(i % NS)*4,4)}, {c}")
            if j == opt["hj"]: hl()
            if j == 3 and i % opt["wr"] == 0:
                for f in take(1): f()
            if j == 4 and i == opt["pb"] and not opt["dfw"]:
                e(f"buffer_load_dword v{vPOLL}, v{vPA}, {srd(sH)}, s{sPOL} offen sc1"); VM.issue("pollB")
            for f in slots[(i, j)]: f()
        seen.add(p)
    stamp(); stamp(k=2); stamp(k=7)
    if opt["enc"]: stamp(True)
    ac = acc(3, 0)
    pk = vH2 + 64
    if not MA:
        for f in adds: f()
        for j in range(5): madd(j)
    def cvt(j):
        for r in range(2): e(f"v_cvt_pk_bf16_f32 v{pk+2*j+r}, v{ac+4*j+2*r}, v{ac+4*j+2*r+1}")
    def swp(b):
        e(f"v_permlane32_swap_b32 v{pk+4*b}, v{pk+4*b+2}")
        e(f"v_permlane32_swap_b32 v{pk+4*b+1}, v{pk+4*b+3}")
        if opt["enc"]:
            e("s_waitcnt lgkmcnt(0)")
            e(f"v_lshrrev_b32 v{vT+1}, 4, v{vL16}")
            for r in range(4):
                i = 4*b + r
                e(f"v_mov_b32 v{vT}, s{72+2*i}")
                e("s_mov_b32 exec_lo, 0")
                e(f"v_mov_b32 v{vT}, s{72+2*min(i+8, 14)}")
                e("s_mov_b32 exec_lo, -1")
                e(f"v_lshrrev_b32 v{vT}, v{vT+1}, v{vT}")
                e(f"v_bfi_b32 v{pk+4*b+r}, 1, v{vT}, v{pk+4*b+r}")
        e(f"buffer_store_dwordx4 {vr(pk+4*b,4)}, v{vOUT}, {srd(sOUT)}, s{sOB} offen offset:{64*b} {opt['outaux']}")
    e("s_nop 3")
    cvt(0); cvt(1); cvt(2); swp(0); cvt(3); cvt(4); swp(1)
    e(f"buffer_store_dwordx2 {vr(pk+8,2)}, v{vOUT2}, {srd(sOUT)}, s{sOB} offen offset:128 {opt['outaux']}")
assert opt["tail"]
if opt["ab"] or opt["dfw"]: phase2_ab()
elif opt["c5"]: phase2_c()
else: phase2_new()
e(f"s_or_b32 s{sT0}, s{sW}, s2")
e(f"s_cmp_lg_u32 s{sT0}, 0")
e("s_cbranch_scc1 L_nobump")
e(f"s_add_u32 s{sE}, s{sE}, 1")
e(f"v_mov_b32 v{vT}, s{sE}")
e(f"s_mov_b32 s{sT0}, {EP}")
e("s_mov_b64 exec, 1")
e(f"buffer_store_dword v{vT}, off, {srd(sH)}, s{sT0}")
e("s_mov_b64 exec, -1")
e("L_nobump:")
if opt["enc"]: sys.stderr.write(f"enc stamps {NST[0]}\n")
if opt["stamps"] and not opt["enc"]:
    e("s_waitcnt vmcnt(0)")
    stamp(k=-1); stamp(True)
    ns = NST[0]
    assert 72 + 2*ns <= 102
    e("s_waitcnt lgkmcnt(0)")
    if opt["rt"]:
        e(f"s_lshl_b32 s{sT0}, s2, 2")
        e(f"s_add_u32 s{sT0}, s{sT0}, s{sW}")
        e(f"s_mul_i32 s{sT0}, s{sT0}, {ns*8}")
    else:
        e(f"s_cmp_lg_u32 s{sW}, {opt['stamps']-1}")
        e("s_cbranch_scc1 L_end")
        e(f"s_mul_i32 s{sT0}, s2, {ns*8}")
    e("s_mov_b64 exec, 1")
    e(f"s_add_u32 s{sT0}, s{sT0}, {0x8000000 - (opt['wso'] << 20)}")
    e(f"v_mov_b32 v{vT}, s{sT0}")
    for i in range(ns):
        e(f"v_mov_b32 v24, s{72+2*i}"); e(f"v_mov_b32 v25, s{73+2*i}")
        e(f"global_store_dwordx2 v{vT}, v[24:25], s[12:13] offset:{i*8}"); e("s_nop 1")
    sys.stderr.write(f"nstamps {ns}\n")
LATE += OOL
if LATE:
    e("s_endpgm")
    O.extend(LATE)
e("L_end:")

hdr = f"""; FFN out = silu(x @ w1) @ w2, one launch, 256 workgroups (one per CU).
; @launch grid=(256,1,1) block=(256,1,1) lds=163840
.amdgcn_target "amdgcn-amd-amdhsa--gfx950"
.text
.globl {NAME}
.p2align 8
.type {NAME},@function
{NAME}:
"""
ftr = f"""s_endpgm
.section .rodata,"a"
.p2align 6
.amdhsa_kernel {NAME}
  .amdhsa_next_free_vgpr 512
  .amdhsa_next_free_sgpr 102
  .amdhsa_accum_offset 256
  .amdhsa_group_segment_fixed_size 0
  .amdhsa_kernarg_size 48
  .amdhsa_user_sgpr_count 2
  .amdhsa_user_sgpr_kernarg_segment_ptr 1
  .amdhsa_system_sgpr_workgroup_id_x 1
.end_amdhsa_kernel
"""
def sizes(lines):
    import subprocess, tempfile, os, re
    d = tempfile.mkdtemp()
    t = hdr + "\n".join(f"Z{i}:\n{l}" for i, l in enumerate(lines)) + "\nL_w1x:\n" + ftr
    for k in range(1, 4):
        if f"L_w{k}:" not in lines: t = t.replace(f"L_w{k}\n", "L_w1x\n")
    open(d + "/a.s", "w").write(t)
    r = subprocess.run(["clang", "-x", "assembler", "-target", "amdgcn-amd-amdhsa", "-mcpu=gfx950", "-c", d + "/a.s", "-o", d + "/a.o"], capture_output=True, text=True)
    assert r.returncode == 0, r.stderr
    import struct
    b = open(d + "/a.o", "rb").read()
    shoff = struct.unpack_from("<Q", b, 0x28)[0]; shn = struct.unpack_from("<H", b, 0x3c)[0]
    sec = [struct.unpack_from("<IIQQQQIIQQ", b, shoff + 64*i) for i in range(shn)]
    sy = [x for x in sec if x[1] == 2][0]; st = sec[sy[6]]
    ad = {}
    for i in range(sy[5] // 24):
        n, _, _, _, v, _ = struct.unpack_from("<IBBHQQ", b, sy[4] + 24*i)
        nm = b[st[4]+n:b.index(b"\0", st[4]+n)].decode()
        if re.fullmatch(r"Z\d+", nm): ad[int(nm[1:])] = v
    return ad
if opt["wu"] >= 0:
    assert opt["al"]
    for k in range(1, 4):
        ad = sizes(O)
        i = min(j for j in range(len(O)) if ad[j] >= 4096*k and not O[j].startswith(".") and not O[j].endswith(":"))
        O[i:i] = [f"L_w{k}:", "s_cbranch_execz L_wr"]
        sys.stderr.write(f"page {k}: {O[i-1]} | {O[i+2]}\n")
    if opt["stamps"]: sys.stderr.write(f"nstamps {NST[0]}\n")
body = "\n".join(("" if l.endswith(":") else "    ") + l.rstrip() for l in O)
open(sys.argv[1], "w").write(hdr + body + "\n" + ftr)
```

```python
import sys
from haz import fix
NAME = "standalone__dense_activation_silu__prompt_kernel"
opt = dict(amp=-1, ampb=1, ampk=4, amps=0, ampw=-1, tpre=0, fpre=0, rpl=-1, rtab='', ttab='', pfs='', skd=0, sk5=0, al=0, wu=-1, pat='', pat1='', hid=0, r16=0, ro=0, sil=0, sild=2, silk='1', e7=0, e7a=10, e7b=10, fp='', qm=0, swab=0, wtc=0, rmap=0, nw=-1, wx='', wxp=99, acb=0, acp=-1, wq='', rds=1, ad0=8, t4=0, k4=0, k2=3, fr=3, fd=2, a4=0, bp=0, ofk=0, w5aux='sc1', rpk=0, pl2=7, nom=0, owv=1, ow=0, owp=2, ada=7, wb64=0, wg0=3, wgs=2, smd=0, dst=-1, dn=4, st0=0, nhw=0, wtx=0, tfm=0, tpm=0, tsil=0, c5=0, w5s=8, w5k=2, rcl=0, w5d=0, tin=0, sw=-1, sws=-1, swp=0, swn=15, ems=1, pqd=0, tlate=0, tmix=1, wt=-1, wts=-1, wtp=99, wth=0, wtaux='', d1=0, d7=0, w5p=4, tl=8, rpq=0, waux='', es=-1, esaux='sc1', ot=-1, otm=1, enc=0, w0p=0, own=0, omp=0, dfw=0, ne=8, clr=-1, clrs='', spec=0, fw=12, wl=0, rsp=99, rrp=0, fb=0, tch=0, la=4, tp0=0, tpos=8, th=1, ns=3, n7=0, rcs=8, epk=1, fk=0, ost=0, pae=-1, wsk=0, afs=0, ab=0, afp=0, pa=20, pb=6, wr=1, owna=0, rb=4, skipw=0, m16=0, rtm=0, po="", rsaux="sc1", emu="", emv=1, fs=128, dw=8, eq=0, ec=4, epre=16, eil="h12w9", pfm=3, stamps=0, rot=1, rot2=1, pf=1, outaux="", map=2, raux="nt", xaux="", haux="sc1", hsaux="sc1", hs2="", wb=0, wso=0, sp=0, spg="", nord=0, nomf1=0, norp=0, pk=1, tail=1, b1=4, b2=4, madd=8, pt=0, fst=0, tab="x037", nost=0, novalu=0, nomf2=0, noh=0, hj=1, w2aux="sc1", w1aux="",
           sa=0, ma=10, sb=0, mb=10, mx=0, n8=8, n9=8, nb=0, post=0, pollq=8, hpre=8, sep=0, sts=0, rpos=0, rls=0, rjs=2, rpp=0, rps=7, rck=0, nopoll=0, rfs=4, sl=0, head=50, nf0=4, pre3=0, rt=0, own2=2, ntst=10, mid=2, xlin=0, nor=0)
for a in sys.argv[2:]:
    k, v = a.split("=")
    assert k in opt, k
    opt[k] = int(v) if v.lstrip("-").isdigit() else v.replace("_", " ")
if opt["own"]: opt["dfw"] = 1; opt["ne"] = 12; assert opt["fb"] and opt["own2"] == 2
D1 = opt['d1']
RPW = opt['rfs'] >= 10
if RPW: assert D1 and opt['rpk']
R2 = '2' in str(opt['rtab'])
if R2: assert D1 and opt['rpk'] and not RPW and not opt['ow']
OW = opt['ow']
if OW: assert D1 and opt['own2'] == 2 and opt['post'] <= 12 and not opt['c5'] and not opt['w5d'] and not opt['smd'] and str(opt['nb']) == '0'
if D1: assert not (opt['own'] or opt['ab'] or opt['dfw'] or opt['spec'] or opt['eq'] or opt['tch'] or opt['po']) and opt['fb'] and opt['ns'] == 3
O = []
def e(s): O.append(s)
NST = [0]
def stamp(rt=False, k=0):
    if not opt["stamps"]: return
    if not rt and NST[0] > 1 and k != opt["sts"] and k != -1: return
    i = NST[0]; NST[0] += 1
    e(f"s_memrealtime s[{72+2*i}:{73+2*i}]" if rt or opt["rt"] or opt["rtm"] else f"s_memtime s[{72+2*i}:{73+2*i}]")

class Q:
    def __init__(s, name, mx): s.name = name; s.mx = mx; s.q = []
    def issue(s, tag): s.q.append(tag)
    def wait(s, tag):
        if tag not in s.q: return
        i = len(s.q) - 1 - s.q[::-1].index(tag)
        n = min(len(s.q) - 1 - i, s.mx)
        e(f"s_waitcnt {s.name}({n})")
        s.q = s.q[len(s.q)-n:] if n else []
    def drain(s):
        e(f"s_waitcnt {s.name}(0)"); s.q = []
VM = Q("vmcnt", 63); LG = Q("lgkmcnt", 15)

FL = 0x600000; EP = 0x608000; RFL = 0x610000; W2F = 0x620000; HREC = 0x800000
if opt['spec']: FL = 0x800000; HREC = 0x820000
FS = opt["fs"]
if FS > 128: FL = 0x800000; HREC = FL + 256 * FS
FLB = 0x200000
if opt["ab"]: HREC = 0x808000
RED = 98304; RB = 98304 if opt['ns'] == 3 else 131072; CNT = 159744
NSL = opt['ns']
sX, sW1, sW2, sOUT, sH = 16, 20, 24, 28, 32
(sW, sMT, sFT, sKX, sKW, sXB, sWB, sXE, sM0, sT0, sT1, sE, sTAG, sHS, sHS2, sFLG, sPOL, sW2B, sOWN, sROT,
 sRS, sRD, sWO, sL2E) = range(36, 60)
sSIG = 60
sPK = 4; sOB = 3; sRFL = 14; sSPIN = 15
vL16 = 1; vL16b = 2; vOUT = 3; vOUT2 = 4; vRW = 5; vRP = 6; vHS = 7
vPOLL = 8; vL4 = 9; vPA = 19
vRR = 10
vHB = 13
vT = 17
vCN = 20; vONE = 21; vAV = 22; vAC = 23
vDX = 24; vDW = 26; vDR = 32
vA = 34; vB = 36
vRA = 44
vTM = 46
vACC1 = 64; vAF = 112; vBF = 160; vS = 176; vRF = 192
vWD = 56; vWT = 60; sW5B = 6; sOB2 = 7; vRW2 = 20
vH = 64; vACC2 = 24; vOW = 240; OWN = 32768; sHS1 = 6
def mf2(d, n, j, b, c):
    a = ar(n*20+4*j, 4)
    if j == 4 and opt["t4"]: a, b = b, a
    e(f"v_mfma_f32_16x16x32_bf16 {d}, {a}, {b}, {c}")
def srd(r): return f"s[{r}:{r+3}]"
def vr(r, n): return f"v[{r}:{r+n-1}]"
def ar(r, n): return f"a[{r}:{r+n-1}]"
def capture(fn):
    global O
    sv = O; O = []; fn(); r = O; O = sv; return r

e("s_cmp_ge_u32 s2, 256")
e("s_cbranch_scc1 L_end")
stamp(True); stamp()
e("s_load_dwordx8 s[4:11], s[0:1], 0")
e("s_load_dwordx2 s[12:13], s[0:1], 40")
L, Wv = vTM, vTM+1
t0, t1, t2, t3 = vTM+2, vTM+3, vTM+4, vTM+5
e(f"v_and_b32 v{L}, 63, v0")
e(f"v_lshrrev_b32 v{Wv}, 6, v0")
e(f"v_lshlrev_b32 v{vL16}, 4, v{L}")
e(f"v_readfirstlane_b32 s{sW}, v{Wv}")
if opt["pf"]:
    e("s_getpc_b64 s[14:15]")
    e("L_pc:")
    if opt["pfs"]:
        tb = (str(opt["pfs"]).lstrip("x") + "0" * 32)[:32]
        tv = sum(int(c) << (2*i) for i, c in enumerate(tb))
        e(f"s_lshr_b32 s{sT0}, s2, 2")
        e(f"s_and_b32 s{sT0}, s{sT0}, 62")
        if tv >> 32:
            e(f"s_mov_b32 s{sSIG}, {tv & 0xffffffff}")
            e(f"s_mov_b32 s{sSIG+1}, {tv >> 32}")
            e(f"s_lshr_b64 s[{sSIG}:{sSIG+1}], s[{sSIG}:{sSIG+1}], s{sT0}")
        else:
            e(f"s_lshr_b64 s[{sSIG}:{sSIG+1}], {tv}, s{sT0}")
        e(f"s_and_b32 s{sT0}, s{sSIG}, 3")
    else:
        e(f"s_lshr_b32 s{sT0}, s2, 3")
        e(f"s_and_b32 s{sT0}, s{sT0}, {opt['pfm']}")
    e(f"s_lshl_b32 s{sT0}, s{sT0}, 12")
    e(f"v_lshl_add_u32 v{t0}, v0, 4, s{sT0}")
    e(f"v_min_u32 v{t0}, L_end-L_pc-16, v{t0}")
    e(f"global_load_dwordx4 v[252:255], v{t0}, s[14:15]")
    VM.issue("pf")
fa = opt["map"]
e(f"s_and_b32 s{sT0}, s2, 7")
e(f"s_lshr_b32 s{sT1}, s2, 3")
e(f"s_and_b32 s{sFT}, s{sT1}, {(1<<fa)-1}")
e(f"s_lshr_b32 s{sMT}, s{sT1}, {fa}")
if opt["rot"] == 3:
    tb = str(opt["tab"]).lstrip("x")
    tv = sum(int(c) << (4*i) for i, c in enumerate((tb * 16)[:16]))
    e(f"s_mul_i32 s{sKX}, s{sMT}, {opt['ma']}")
    e(f"s_mul_i32 s{sT1}, s{sFT}, {opt['mb']}")
    e(f"s_add_u32 s{sKX}, s{sKX}, s{sT1}")
    e(f"s_lshl_b32 s{sKX}, s{sKX}, 2")
    e(f"s_mov_b32 s{sSIG}, {tv & 0xffffffff}")
    e(f"s_mov_b32 s{sSIG+1}, {tv >> 32}")
    e(f"s_lshr_b64 s[{sSIG}:{sSIG+1}], s[{sSIG}:{sSIG+1}], s{sKX}")
    e(f"s_and_b32 s{sKX}, s{sSIG}, 15")
elif opt["rot"]:
    e(f"s_lshr_b32 s{sKX}, s{sMT}, {opt['sa']}")
    e(f"s_mul_i32 s{sKX}, s{sKX}, {opt['ma']}")
    e(f"s_lshr_b32 s{sT1}, s{sFT}, {opt['sb']}")
    e(f"s_mul_i32 s{sT1}, s{sT1}, {opt['mb']}")
    e(f"s_add_u32 s{sKX}, s{sKX}, s{sT1}")
    if opt['mx']:
        e(f"s_mul_i32 s{sT1}, s{sT0}, {opt['mx']}")
        e(f"s_add_u32 s{sKX}, s{sKX}, s{sT1}")
    e(f"s_lshr_b32 s{sKX}, s{sKX}, 2")
    e(f"s_mul_i32 s{sT1}, s{sKX}, 205")
    e(f"s_lshr_b32 s{sT1}, s{sT1}, 11")
    e(f"s_mul_i32 s{sT1}, s{sT1}, 10")
    e(f"s_sub_u32 s{sKX}, s{sKX}, s{sT1}")
else:
    e(f"s_mov_b32 s{sKX}, 0")
if opt["ab"]:
    e(f"s_lshl_b32 s{sROT}, s{sMT}, 2")
elif opt["rot2"] == 3:
    e(f"s_and_b32 s{sROT}, s{sMT}, 1")
    e(f"s_mul_i32 s{sROT}, s{sROT}, 6")
elif opt["rot2"] == 4:
    e(f"s_lshr_b32 s{sROT}, s{sMT}, 1")
    e(f"s_mul_i32 s{sROT}, s{sROT}, 3")
elif opt["rot2"] == 5:
    e(f"s_and_b32 s{sROT}, s{sMT}, 3")
elif opt["rot2"] == 6:
    e(f"s_mul_i32 s{sROT}, s{sMT}, 3")
    e(f"s_lshr_b32 s{sROT}, s{sROT}, 3")
    e(f"s_lshl_b32 s{sROT}, s{sROT}, 2")
elif opt["rot2"] == 7:
    e(f"s_mul_i32 s{sROT}, s{sMT}, 12")
    e(f"s_lshr_b32 s{sROT}, s{sROT}, 3")
    e(f"s_bitcmp1_b32 s2, 1")
    e(f"s_addc_u32 s{sROT}, s{sROT}, 0")
elif opt["rot2"] == 2:
    e(f"s_and_b32 s{sROT}, s{sMT}, 3")
    e(f"s_mul_i32 s{sROT}, s{sROT}, 3")
elif opt["rot2"]:
    e(f"s_mul_i32 s{sROT}, s{sMT}, 12")
    e(f"s_lshr_b32 s{sROT}, s{sROT}, {5-fa}")
else:
    e(f"s_mov_b32 s{sROT}, 0")
e(f"s_and_b32 s{sT1}, s{sT0}, {(8>>fa)-1}")
e(f"s_lshl_b32 s{sT1}, s{sT1}, {fa}")
e(f"s_add_u32 s{sFT}, s{sFT}, s{sT1}")
e(f"s_lshr_b32 s{sT1}, s{sT0}, {3-fa}")
e(f"s_lshl_b32 s{sT1}, s{sT1}, {5-fa}")
e(f"s_add_u32 s{sMT}, s{sMT}, s{sT1}")
e(f"s_mul_i32 s{sXB}, s{sMT}, 81920")
e(f"s_mul_i32 s{sWB}, s{sFT}, 384")
e(f"s_add_u32 s{sXE}, s{sXB}, 1280")
e(f"s_mul_i32 s{sKW}, s{sKX}, {64*3072}")
e(f"s_add_u32 s{sKW}, s{sKW}, s{sWB}")
e(f"s_lshl_b32 s{sKX}, s{sKX}, 7")
e(f"s_add_u32 s{sKX}, s{sKX}, s{sXB}")
G = vTM+6
e(f"v_lshrrev_b32 v{G}, 4, v{L}")
e(f"v_lshrrev_b32 v{t0}, 3, v{L}")
e(f"v_lshl_add_u32 v{t0}, v{Wv}, 4, v{t0}")
e(f"v_mul_u32_u24 v{t0}, 1280, v{t0}")
e(f"v_and_b32 v{t1}, 7, v{L}")
e(f"v_xor_b32 v{t1}, v{t1}, v{G}")
e(f"v_lshl_add_u32 v{vDX}, v{t1}, 4, v{t0}")
e(f"v_xor_b32 v{t1}, 4, v{t1}")
e(f"v_lshl_add_u32 v{vDX+1}, v{t1}, 4, v{t0}")
e(f"v_add_u32 v{vDX+1}, {8*1280-1024}, v{vDX+1}")
if opt["xlin"]:
    e(f"v_lshl_add_u32 v{vDX}, v{Wv}, 11, v{vL16}")
    e(f"v_mov_b32 v{vDX+1}, v{vDX}")
    e(f"s_and_b32 s{sT0}, s{sFT}, 3")
    e(f"s_mul_i32 s{sT0}, s{sT0}, {opt['xlin']}")
    e(f"s_lshr_b32 s{sT0}, s{sT0}, 2")
    e(f"s_lshl_b32 s100, s{sT0}, 13")
    e(f"s_add_u32 s100, s100, s{sXB}")
    e(f"s_add_u32 s101, s{sXB}, 81920")
e(f"v_mul_u32_u24 v{t3}, {16*3072}, v{Wv}")
for i in range(3):
    if i: e(f"v_add_u32 v{t0}, {64*i}, v{L}")
    src = t0 if i else L
    e(f"v_mul_u32_u24 v{t1}, 2731, v{src}")
    e(f"v_lshrrev_b32 v{t1}, 16, v{t1}")
    e(f"v_mul_u32_u24 v{t2}, 24, v{t1}")
    e(f"v_sub_u32 v{t0}, v{src}, v{t2}")
    e(f"v_and_b32 v{t2}, 2, v{t1}")
    e(f"v_lshlrev_b32 v{t2}, 1, v{t2}")
    e(f"v_xor_b32 v{t0}, v{t0}, v{t2}")
    e(f"v_mul_u32_u24 v{t1}, 3072, v{t1}")
    e(f"v_lshl_add_u32 v{t0}, v{t0}, 4, v{t1}")
    e(f"v_add_u32 v{t0}, v{t0}, v{t3}")
    if i: e(f"v_subrev_u32 v{vDW+i}, {i*1024}, v{t0}")
    else: e(f"v_mov_b32 v{vDW}, v{t0}")
    if opt["r16"]: e(f"v_xor_b32 v{t0}, 16, v{t0}")
    e(f"v_add_u32 v{vDW+3+i}, {8*3072 - ((i+3)%4)*1024}, v{t0}")
if opt["e7"]:
    e(f"s_lshr_b32 s{sT0}, s{sMT}, 1")
    e(f"s_and_b32 s{sT1}, s{sMT}, 1")
    e(f"s_lshl1_add_u32 s{sT1}, s{sFT}, s{sT1}")
    e(f"s_mul_i32 s{sXB}, s{sT0}, 163840")
    e(f"s_mul_i32 s{sWB}, s{sT1}, {192 if opt['e7'] == 1 else 128}")
    e(f"s_and_b32 s{sT0}, s{sT0}, 3")
    e(f"s_and_b32 s{sT1}, s{sT1}, 7")
    e(f"s_mul_i32 s{sT0}, s{sT0}, {opt['e7a']}")
    e(f"s_mul_i32 s{sT1}, s{sT1}, {opt['e7b']}")
    e(f"s_add_u32 s{sKX}, s{sT0}, s{sT1}")
    e(f"s_lshr_b32 s{sKX}, s{sKX}, 2")
    e(f"s_mul_i32 s{sT1}, s{sKX}, 205")
    e(f"s_lshr_b32 s{sT1}, s{sT1}, 11")
    e(f"s_mul_i32 s{sT1}, s{sT1}, 10")
    e(f"s_sub_u32 s{sKX}, s{sKX}, s{sT1}")
    e(f"s_add_u32 s{sXE}, s{sXB}, 1280")
    e(f"s_mul_i32 s{sKW}, s{sKX}, {64*3072}")
    e(f"s_add_u32 s{sKW}, s{sKW}, s{sWB}")
    e(f"s_lshl_b32 s{sKX}, s{sKX}, 7")
    e(f"s_add_u32 s{sKX}, s{sKX}, s{sXB}")
    e(f"v_mul_u32_u24 v{t0}, {16*1280}, v{Wv}")
    e(f"v_add_u32 v{vDX}, v{vDX}, v{t0}")
    e(f"v_add_u32 v{vDX+1}, v{vDX+1}, v{t0}")
    e(f"v_add_u32 v{vDW+4}, {16*1280}, v{vDX}")
    e(f"v_add_u32 v{vDW+5}, {16*1280}, v{vDX+1}")
    for i in range(3):
        e(f"v_add_u32 v{t0}, {64*i}, v{L}")
        if opt["e7"] == 1:
            e(f"v_mul_u32_u24 v{t1}, 5462, v{t0}")
            e(f"v_lshrrev_b32 v{t1}, 16, v{t1}")
            e(f"v_mul_u32_u24 v{t1}, {3072 - 192}, v{t1}")
        else:
            e(f"v_lshrrev_b32 v{t1}, 3, v{t0}")
            e(f"v_mul_u32_u24 v{t1}, {2048 - 128}, v{t1}")
        e(f"v_lshl_add_u32 v{t0}, v{t0}, 4, v{t1}")
        e(f"v_add_u32 v{t0}, v{t0}, v{t3}")
        e(f"v_subrev_u32 v{vDW+i}, {i*1024}, v{t0}")
vTC = 250
if opt["tch"]:
    e(f"v_lshrrev_b32 v{t0}, 1, v{L}")
    e(f"v_mul_u32_u24 v{t1}, 1280, v{t0}")
    e(f"v_mul_u32_u24 v{t2}, 43, v{t0}")
    e(f"v_lshrrev_b32 v{t2}, 7, v{t2}")
    e(f"v_mul_u32_u24 v{t2}, {3072-384}, v{t2}")
    e(f"v_lshl_add_u32 v{t2}, v{t0}, 7, v{t2}")
    e(f"s_and_b32 s{sT0}, s{sFT}, 3")
    e(f"s_lshl_b32 s{sT0}, s{sT0}, 1")
    e(f"s_lshr_b32 s{sT1}, s{sW}, 1")
    e(f"s_add_u32 s{sT0}, s{sT0}, s{sT1}")
    e(f"s_mul_i32 s{sT0}, s{sT0}, {8*1280}")
    e(f"s_and_b32 s{sWO}, s{sMT}, 7")
    e(f"s_lshl_b32 s{sWO}, s{sWO}, 1")
    e(f"s_add_u32 s{sWO}, s{sWO}, s{sT1}")
    e(f"s_mul_i32 s{sWO}, s{sWO}, {4*3072}")
    e(f"s_add_u32 s{sT1}, s{sWB}, {640*3072}")
    e(f"s_bitcmp1_b32 s{sW}, 0")
    e(f"s_cselect_b64 vcc, -1, 0")
    e(f"v_cndmask_b32 v{vTC}, v{t1}, v{t2}, vcc")
    e(f"s_cselect_b32 s{sT0}, s{sWO}, s{sT0}")
    e(f"s_mov_b32 s{sWO}, {0xffff if opt['th'] else 0x5555}")
    e(f"s_cselect_b32 s{sWO}, {0xffffff if opt['th'] else 0x555555}, s{sWO}")
    e(f"s_cselect_b32 s{sHS}, s{sKW}, s{sKX}")
    e(f"s_movk_i32 s{sHS2}, 128")
    e(f"s_cselect_b32 s{sHS2}, {64*3072}, s{sHS2}")
    e(f"v_and_b32 v{t0}, 1, v{L}")
    e(f"v_lshl_add_u32 v{vTC}, v{t0}, 6, v{vTC}")
    e(f"v_add_u32 v{vTC}, s{sT0}, v{vTC}")
    e(f"s_cselect_b32 vcc_lo, s{sT1}, s{sXE}")
    e(f"s_cselect_b32 vcc_hi, s{sWB}, s{sXB}")
e(f"s_lshl_b32 s{sM0}, s{sW}, 13")
CLR = opt["clr"] >= 0 or opt["clrs"]
sCL = sHS
vNAN = 244
if CLR:
    e(f"s_lshl_b32 s{sT0}, s{sMT}, 2")
    e(f"s_lshr_b32 s{sT1}, s{sFT}, 1")
    e(f"s_add_u32 s{sT0}, s{sT0}, s{sT1}")
    e(f"s_lshl_b32 s{sT0}, s{sT0}, 2")
    e(f"s_add_u32 s{sT0}, s{sT0}, s{sW}")
    e(f"s_lshl_b32 s{sT0}, s{sT0}, 1")
    e(f"s_and_b32 s{sT1}, s{sFT}, 1")
    e(f"s_add_u32 s{sT0}, s{sT0}, s{sT1}")
    e(f"s_mul_i32 s{sT0}, s{sT0}, 6144")
    e(f"v_add_u32 v248, s{sT0}, v{vL16}")
    e(f"v_add_u32 v249, 3072, v248")
    for r in range(4): e(f"v_mov_b32 v{vNAN+r}, -1")
def clr_ops():
    def mk(i):
        def f():
            e(f"buffer_store_dwordx4 {vr(vNAN,4)}, v{248 + i//3}, {srd(sH)}, 0 offen offset:{(i%3)*1024} sc1"); VM.issue("clr")
        return f
    return [mk(i) for i in range(6)]
CLO = clr_ops()
e(f"s_mov_b32 s{sSPIN}, {EP}")
for r, n in ((sX, 2621440), (sW1, 1966080), (sW2, 1966080), (sOUT, 2621440), (sH, HREC)):
    e(f"s_mov_b32 s{r+2}, {n}"); e(f"s_mov_b32 s{r+3}, 0x20000")
e("s_waitcnt lgkmcnt(0)")
if opt["wso"]:
    e(f"s_add_u32 s12, s12, {opt['wso'] << 20}"); e("s_addc_u32 s13, s13, 0")
for r, p in ((sW2, 8), (sX, 4), (sW1, 6), (sOUT, 10), (sH, 12)):
    e(f"s_mov_b64 s[{r}:{r+1}], s[{p}:{p+1}]")
if opt["tch"]:
    e(f"s_bitcmp1_b32 s{sW}, 0")
    e(f"s_cselect_b64 s[8:9], s[6:7], s[4:5]")
    e(f"s_cselect_b32 s10, s{sW1+2}, s{sX+2}")
    e("s_mov_b32 s11, 0x20000")
    e(f"s_mov_b32 s6, s{sHS}")
    e(f"s_mov_b32 s7, s{sHS2}")
def touch():
    e("s_add_u32 s6, s6, s7")
    e("s_cmp_eq_u32 s6, vcc_lo")
    e("s_cselect_b32 s6, vcc_hi, s6")
    e(f"s_mov_b32 exec_lo, s{sWO}")
    e("s_mov_b32 exec_hi, 0")
    e(f"buffer_load_dword v251, v{vTC}, s[8:11], s6 offen"); VM.issue("tch")
    e("s_mov_b64 exec, -1")
stamp()
e(f"s_load_dword s{sE}, s[12:13], s{sSPIN}")

def adv_k():
    if opt["xlin"]:
        e(f"s_add_u32 s100, s100, 8192")
        e(f"s_cmp_eq_u32 s100, s101")
        e(f"s_cselect_b32 s100, s{sXB}, s100")
    e(f"s_add_u32 s{sKX}, s{sKX}, 128")
    e(f"s_add_u32 s{sKW}, s{sKW}, {64*3072}")
    e(f"s_cmp_eq_u32 s{sKX}, s{sXE}")
    e(f"s_cselect_b32 s{sKX}, s{sXB}, s{sKX}")
    e(f"s_cselect_b32 s{sKW}, s{sWB}, s{sKW}")
def dma_ops(st):
    base = (st % NSL) * 32768
    def mk(i):
        def f():
            if i == 0: e(f"s_add_u32 m0, s{sM0}, {base+6144}"); e("s_nop 0")
            if i < 2:
                e(f"buffer_load_dwordx4 v{vDX+i}, {srd(sX)}, s{100 if opt['xlin'] else sKX} offen offset:{i*1024} {opt['xaux'] if st < opt['ntst'] else ''} lds")
            elif opt["e7"] and i >= 5:
                if i == 5: e(f"s_add_u32 m0, s{sM0}, {base+4096}"); e("s_nop 0"); return
                e(f"buffer_load_dwordx4 v{vDW+i-2}, {srd(sX)}, s{sKX} offen offset:{(i-6)*1024} lds")
            else:
                j = i - 2
                e(f"buffer_load_dwordx4 v{vDW+j}, {srd(sW1)}, s{sKW} offen offset:{(j%4)*1024} {opt['w1aux'] if st < opt['ntst'] else ''} lds")
            VM.issue(f"st{st}")
            if i == 1: e(f"s_add_u32 m0, s{sM0}, {base}"); e("s_nop 0")
            if i == 5: e(f"s_add_u32 m0, s{sM0}, {base+4096}"); e("s_nop 0")
            if i == 7 and st < 9: adv_k()
        return f
    return [mk(i) for i in range(8)]

def setup2():
    R, C = t0, t1
    u0, u1, u2 = vTM+7, vTM+8, vTM+9
    if D1:
        RJ = 2
        if opt["rtab"]:
            RJ = 9
            tb = str(opt["rtab"]).lstrip("x"); assert len(tb) == 32 and sum(map(int, tb)) == 12
            m1_ = sum((c == "1") << i for i, c in enumerate(tb)); m2_ = sum((c == "2") << i for i, c in enumerate(tb))
            e(f"s_lshr_b32 s{sT0}, s2, 3")
            e(f"s_bfm_b32 s9, s{sT0}, 0")
            if R2:
                e(f"s_mov_b32 s8, {m2_}")
                e(f"s_bitcmp1_b32 s8, s{sT0}")
                e(f"s_cselect_b32 s8, s8, {m1_}")
                e(f"s_cselect_b32 s10, 1, 0")
                e(f"s_cselect_b32 s11, 0, {16 * tb.count('2')}")
                e(f"s_and_b32 s9, s9, s8")
            else: e(f"s_and_b32 s9, s9, {m1_}")
            e(f"s_bcnt1_i32_b32 s9, s9")
            e(f"s_and_b32 s{sT1}, s2, 7")
            e(f"s_lshl3_add_u32 s9, s9, s{sT1}")
            if R2:
                e(f"s_lshl_b32 s9, s9, s10")
                e(f"s_add_u32 s9, s9, s11")
            e(f"s_bitcmp1_b32 {'s8' if R2 else m1_}, s{sT0}")
            e(f"s_cselect_b32 s9, s9, 255")
        elif opt["rmap"]:
            RJ = 9
            e(f"s_lshr_b32 s9, s2, 4")
            e(f"s_lshl_b32 s9, s9, 3")
            e(f"s_and_b32 s{sT0}, s2, 7")
            e(f"s_add_u32 s9, s9, s{sT0}")
            if opt["rmap"] > 2: e(f"s_xor_b32 s9, s9, {0x60}")
            e(f"s_lshr_b32 s{sT0}, s2, 2")
            e(f"s_xor_b32 s{sT0}, s{sT0}, s2")
            e(f"s_bitcmp{(opt['rmap'] - 1) % 2}_b32 s{sT0}, 3")
            e(f"s_cselect_b32 s9, s9, 255")
        e(f"s_lshr_b32 s{sT1}, s{RJ}, 1")
        e(f"s_and_b32 s{sT0}, s{RJ}, 1")
        if opt["rpk"]:
            e(f"s_mul_i32 s{sRFL}, s{sT1}, 43")
            e(f"s_lshr_b32 s{sRFL}, s{sRFL}, 9")
            e(f"s_mul_i32 s{sRFL}, s{sRFL}, {128 // opt['rpk'] - 12}")
            e(f"s_add_u32 s{sRFL}, s{sRFL}, s{sT1}")
            e(f"s_mul_i32 s{sRFL}, s{sRFL}, {opt['rpk']}")
            if RPW: e(f"s_lshl2_add_u32 s{sRS}, s{sT0}, s{sW}")
            e(f"s_lshl_b32 s{sRS}, s{sRS if RPW else sT0}, 9")
            e(f"s_add_u32 s{sRFL}, s{sRFL}, s{sRS}")
        else:
            e(f"s_mul_i32 s{sRFL}, s{sT0}, 48")
            e(f"s_add_u32 s{sRFL}, s{sRFL}, s{sT1}")
            e(f"s_lshl_b32 s{sRFL}, s{sRFL}, 7")
        if OW:
            e(f"s_mul_i32 s{sRS}, s{sT1}, 43")
            e(f"s_lshr_b32 s{sRS}, s{sRS}, 9")
            e(f"s_mul_i32 s{sRS}, s{sRS}, 47")
            e(f"s_lshl_b32 s{sT1}, s{sT1}, 2")
            e(f"s_sub_u32 s{sT1}, s{sT1}, s{sRS}")
        e(f"s_lshl_b32 s{sRS}, s{sT1}, 2")
        e(f"s_add_u32 s{sRS}, s{sRS}, s{sW}")
        e(f"s_mul_i32 s{sRS}, s{sRS}, 10240")
        e(f"s_lshl_b32 s{sT0}, s{sT0}, 7")
        e(f"s_add_u32 s{sRS}, s{sRS}, s{sT0}")
        e(f"s_add_u32 s{sRS}, s{sRS}, 1024")
        e(f"s_lshl_b32 s{sRD}, s{RJ}, 2")
        e(f"s_add_u32 s{sRD}, s{sRD}, s{sW}")
        e(f"s_lshl_b32 s{sRD}, s{sRD}, 10")
        e(f"s_add_u32 s{sRD}, s{sRD}, {W2F}")
        e(f"s_cmp_lt_u32 s{RJ}, {0 if opt['nor'] else 96}")
        e(f"s_cselect_b32 s{sRS}, s{sRS}, 1966080")
        e(f"s_cselect_b32 s{sRD}, s{sRD}, {HREC}")
        e(f"s_cselect_b32 s{sRFL}, s{sRFL}, {HREC - RFL}")
    else:
        e(f"s_and_b32 s{sT0}, s2, 63")
        e(f"s_mul_i32 s{sT1}, s{sT0}, 205")
        e(f"s_lshr_b32 s{sT1}, s{sT1}, 10")
        e(f"s_mul_i32 s{sRS}, s{sT1}, 5")
        e(f"s_sub_u32 s{sRS}, s{sT0}, s{sRS}")
        e(f"s_lshr_b32 s{sRD}, s2, 6")
        e(f"s_mul_i32 s{sRFL}, s{sRD}, 5")
        e(f"s_add_u32 s{sRFL}, s{sRFL}, s{sRS}")
        e(f"s_lshl_b32 s{sRFL}, s{sRFL}, 4")
        e(f"s_add_u32 s{sRFL}, s{sRFL}, s{sT1}")
        e(f"s_lshl_b32 s{sRFL}, s{sRFL}, 7")
        if opt["own"]:
            e(f"s_mul_i32 s6, s{sT1}, 6")
            e(f"s_add_u32 s6, s6, s{sRD}")
            e(f"s_lshr_b32 s7, s{sT1}, 1")
            e(f"s_mul_i32 s7, s7, 6")
            e(f"s_and_b32 s8, s{sT1}, 1")
            e(f"s_add_u32 s7, s7, s8")
            e(f"s_mul_i32 s8, s{sRD}, 12")
            e(f"s_add_u32 s7, s7, s8")
            e(f"s_sub_u32 s7, s7, 20")
            e(f"s_cmp_lt_u32 s{sT1}, 8")
            e(f"s_cselect_b32 s6, s6, s7")
            e(f"s_mul_i32 s6, s6, 40960")
        e(f"s_mul_i32 s{sRD}, s{sRD}, 12")
        e(f"s_add_u32 s{sT1}, s{sT1}, s{sRD}")
        e(f"s_mul_i32 s{sT1}, s{sT1}, 40960")
        e(f"s_lshl_b32 s{sRD}, s{sRS}, 13")
        e(f"s_add_u32 s{sRD}, s{sRD}, s{sT1}")
        e(f"s_lshl_b32 s{sRS}, s{sRS}, 8")
        e(f"s_add_u32 s{sRS}, s{sRS}, s{6 if opt['own'] else sT1}")
        e(f"s_lshl_b32 s{sT1}, s{sW}, 11")
        e(f"s_add_u32 s{sRD}, s{sRD}, s{sT1}")
        e(f"s_add_u32 s{sRD}, s{sRD}, {W2F}")
        e(f"s_cmp_lt_u32 s{sT0}, {0 if opt['nor'] else 60}")
        e(f"s_cselect_b32 s{sRS}, s{sRS}, 1966080")
        e(f"s_cselect_b32 s{sRD}, s{sRD}, {HREC}")
    if opt["pt"] & 1:
        e(f"s_min_u32 s{sT1}, s{sRS}, {1966080-4}")
        e(f"s_load_dword s6, s[8:9], s{sT1}")
    if opt["pt"] & 2:
        e(f"s_mul_i32 s{sT1}, s{sMT}, {64*3072}")
        e(f"s_load_dword s6, s[12:13], s{sT1}")
    if opt["pt"] & 4:
        e(f"s_load_dword s6, s[10:11], s{sXB}")
    if opt["pt"] & 8:
        e(f"s_load_dword s6, s[12:13], s{sRD}")
    if D1:
        e(f"v_lshrrev_b32 v{t0}, 3, v{L}")
        e(f"v_mul_u32_u24 v{t0}, 1280, v{t0}")
        e(f"v_and_b32 v{t1}, 7, v{L}")
        e(f"v_lshlrev_b32 v{t2}, 1, v{G}")
        e(f"v_xor_b32 v{t1}, v{t1}, v{t2}")
        e(f"v_lshl_add_u32 v{vWD}, v{t1}, 4, v{t0}")
        for i in range(1, 4): e(f"v_add_u32 v{vWD+i}, {i*(10240-1024)}, v{vWD}")
    else:
        e(f"v_lshl_add_u32 v{t0}, v{Wv}, 3, v{G}")
        e(f"v_mul_u32_u24 v{t0}, 1280, v{t0}")
        e(f"v_and_b32 v{t1}, 15, v{L}")
        e(f"v_lshlrev_b32 v{t2}, 1, v{G}")
        e(f"v_xor_b32 v{t1}, v{t1}, v{t2}")
        e(f"v_lshl_add_u32 v{vDR}, v{t1}, 4, v{t0}")
        e(f"v_xor_b32 v{t1}, 8, v{t1}")
        e(f"v_lshl_add_u32 v{vDR+1}, v{t1}, 4, v{t0}")
        e(f"v_add_u32 v{vDR+1}, {4*1280-1024}, v{vDR+1}")
    e(f"v_bfe_u32 v{R}, v{L}, 2, 2")
    e(f"v_and_b32 v{C}, 3, v{L}")
    if opt["r16"]:
        e(f"v_and_b32 v{u1}, 1, v{G}")
        e(f"v_lshl_add_u32 v{u0}, v{u1}, 3, v{R}")
        e(f"v_mul_u32_u24 v{u0}, 384, v{u0}")
        e(f"v_lshl_add_u32 v{u0}, v{u1}, 4, v{u0}")
        e(f"v_lshrrev_b32 v{t2}, 5, v{L}")
        e(f"v_lshl_add_u32 v{u0}, v{t2}, 13, v{u0}")
        e(f"v_lshrrev_b32 v{u1}, 1, v{R}")
        e(f"v_xor_b32 v{u1}, v{u1}, v{Wv}")
        e(f"v_and_b32 v{u1}, 1, v{u1}")
        e(f"v_lshl_add_u32 v{u0}, v{u1}, 6, v{u0}")
        e(f"v_lshrrev_b32 v{u1}, 1, v{C}")
        e(f"v_lshl_add_u32 v{u0}, v{u1}, 5, v{u0}")
        e(f"v_and_b32 v{u1}, 1, v{C}")
        e(f"v_lshl_add_u32 v{vA}, v{u1}, 3, v{u0}")
        e(f"v_xor_b32 v{vA+1}, 16, v{vA}")
        for k in range(2): e(f"v_add_u32 v{vA+2+k}, 65536, v{vA+k}")
        e(f"v_and_b32 v{u0}, 2, v{Wv}")
        e(f"v_lshlrev_b32 v{u0}, 13, v{u0}")
        e(f"v_and_b32 v{u2}, 15, v{L}")
        e(f"v_lshl_add_u32 v{u0}, v{u2}, 7, v{u0}")
        e(f"v_add_u32 v{u0}, 6144, v{u0}")
        e(f"v_lshrrev_b32 v{u1}, 1, v{u2}")
        e(f"v_xor_b32 v{u1}, v{u1}, v{G}")
        e(f"v_lshl_add_u32 v{vB+4}, v{u1}, 4, v{u0}")
        e(f"v_xor_b32 v{vB+5}, 64, v{vB+4}")
        for k in range(2): e(f"v_add_u32 v{vB+6+k}, 65536, v{vB+4+k}")
    else:
        e(f"v_lshrrev_b32 v{u0}, 1, v{G}")
        e(f"v_lshl_add_u32 v{u0}, v{u0}, 3, v{R}")
        e(f"v_mul_u32_u24 v{u0}, 384, v{u0}")
        e(f"v_lshrrev_b32 v{u1}, 1, v{R}")
        e(f"v_xor_b32 v{u1}, v{u1}, v{Wv}")
        e(f"v_and_b32 v{u1}, 1, v{u1}")
        e(f"v_lshl_add_u32 v{u0}, v{u1}, 6, v{u0}")
        e(f"v_and_b32 v{u1}, 1, v{G}")
        e(f"v_lshl_add_u32 v{u0}, v{u1}, 5, v{u0}")
        e(f"v_lshl_add_u32 v{vA}, v{C}, 3, v{u0}")
        e(f"v_add_u32 v{vA+1}, 65536, v{vA}")
        e(f"v_and_b32 v{u0}, 2, v{Wv}")
        e(f"v_add_u32 v{u0}, v{u0}, v{u1}")
        e(f"v_lshlrev_b32 v{u0}, 13, v{u0}")
        e(f"v_and_b32 v{u2}, 15, v{L}")
        e(f"v_lshl_add_u32 v{u0}, v{u2}, 7, v{u0}")
        e(f"v_add_u32 v{u0}, 6144, v{u0}")
        e(f"v_lshrrev_b32 v{u1}, 1, v{u2}")
        e(f"v_lshrrev_b32 v{t2}, 5, v{L}")
        e(f"v_xor_b32 v{u1}, v{u1}, v{t2}")
        e(f"v_lshl_add_u32 v{vB}, v{u1}, 4, v{u0}")
        for k in range(1, 4): e(f"v_xor_b32 v{vB+k}, {32*k}, v{vB}")
        for k in range(4): e(f"v_add_u32 v{vB+4+k}, 65536, v{vB+k}")
    if D1:
        e(f"v_and_b32 v{u1}, 1, v{G}")
        e(f"v_lshl_add_u32 v{u1}, v{u1}, 2, v{R}")
        e(f"v_lshlrev_b32 v{u0}, 11, v{t2}")
        e(f"v_lshl_add_u32 v{u0}, v{u1}, 7, v{u0}")
        e(f"v_lshrrev_b32 v{u1}, 1, v{u1}")
        e(f"v_lshl_add_u32 v{u0}, v{u1}, 5, v{u0}")
        e(f"v_and_b32 v{u1}, 1, v{C}")
        e(f"v_lshl_add_u32 v{u0}, v{u1}, 4, v{u0}")
        e(f"v_lshrrev_b32 v{u1}, 1, v{C}")
        e(f"v_lshl_add_u32 v{u0}, v{u1}, 3, v{u0}")
        e(f"v_add_u32 v{u0}, {RB}, v{u0}")
        e(f"v_lshlrev_b32 v{t3}, 5, v{Wv}")
        e(f"v_xor_b32 v{vRA}, v{u0}, v{t3}")
        e(f"v_add_u32 v{vWT}, s{sM0}, v{u0}")
        for j in range(1, 4): e(f"v_xor_b32 v{vWT+j}, {32*j}, v{vWT}")
    else:
        e(f"v_and_b32 v{u1}, 1, v{G}")
        e(f"v_lshl_add_u32 v{u1}, v{u1}, 2, v{R}")
        e(f"v_lshlrev_b32 v{u0}, 12, v{t2}")
        e(f"v_lshl_add_u32 v{u0}, v{u1}, 8, v{u0}")
        e(f"v_lshlrev_b32 v{t3}, 1, v{Wv}")
        e(f"v_xor_b32 v{u1}, v{u1}, v{t3}")
        e(f"v_lshl_add_u32 v{u0}, v{u1}, 5, v{u0}")
        e(f"v_and_b32 v{u1}, 1, v{C}")
        e(f"v_lshl_add_u32 v{u0}, v{u1}, 4, v{u0}")
        e(f"v_lshrrev_b32 v{u1}, 1, v{C}")
        e(f"v_lshl_add_u32 v{u0}, v{u1}, 3, v{u0}")
        e(f"v_add_u32 v{vRA}, {RB}, v{u0}")
        e(f"v_xor_b32 v{vRA+1}, 32, v{vRA}")
    if not D1:
        e(f"v_mov_b32 v{vCN}, {CNT}")
        e(f"v_mov_b32 v{vONE}, 0")
        e(f"ds_write_b32 v{vCN}, v{vONE}"); LG.issue("cnt")
    if opt["ab"]: e(f"ds_write_b32 v{vCN}, v{vONE} offset:4"); LG.issue("cnt")
    for i in range(48): e(f"v_mov_b32 v{vACC1+i}, 0")
    if not D1: e(f"v_mov_b32 v{vONE}, 1")
    e(f"v_and_b32 v{u1}, 1, v{G}")
    if opt["r16"]: e(f"v_add_u32 v{vHS}, 12288, v{vL16}")
    else:
        e(f"v_mul_u32_u24 v{u0}, 12288, v{u1}")
        e(f"v_lshl_add_u32 v{u0}, v{t2}, 8, v{u0}")
        e(f"v_lshl_add_u32 v{vHS}, v{u2}, 4, v{u0}")
    if opt["own"]:
        e(f"s_and_b32 s{sT0}, s{sW}, 1")
        e(f"s_and_b32 s{sT1}, s{sW}, 2")
        e(f"s_sub_u32 s{sT1}, s{sT1}, s{sT0}")
        e(f"s_add_u32 s{sT1}, s{sT1}, 3")
        e(f"v_add_u32 v{u0}, s{sT1}, v{u1}")
        e(f"v_and_b32 v{u0}, 3, v{u0}")
        e(f"s_lshl_b32 s{sT0}, s{sT0}, 12")
        e(f"s_add_u32 s{sT0}, s{sT0}, {OWN}")
        e(f"v_lshl_add_u32 v{u0}, v{u0}, 10, s{sT0}")
        e(f"v_lshl_add_u32 v{u0}, v{t2}, 8, v{u0}")
        e(f"v_lshl_add_u32 v{vOW}, v{u2}, 4, v{u0}")
        e(f"v_xor_b32 v{vOW+1}, 2048, v{vOW}")
        e(f"s_lshl_b32 s{sT0}, s{sW}, 12")
        e(f"s_add_u32 s{sT0}, s{sT0}, {OWN}")
        e(f"v_add_u32 v{vOW+2}, s{sT0}, v{vL16}")
    if OW:
        e(f"s_and_b32 s{sT0}, s{sW}, 1")
        e(f"s_lshl1_add_u32 s{sT0}, s{sFT}, s{sT0}")
        e(f"s_and_b32 s{sT0}, s{sT0}, 3")
        e(f"s_and_b32 s{sT1}, s{sW}, 2")
        e(f"s_sub_u32 s{sT1}, s{sT1}, s{sT0}")
        e(f"s_add_u32 s{sT1}, s{sT1}, 7")
        e(f"v_add_u32 v{u0}, s{sT1}, v{u1}")
        e(f"v_and_b32 v{u0}, 3, v{u0}")
        e(f"s_lshl_b32 s{sT0}, s{sT0}, 13")
        e(f"s_add_u32 s{sT0}, s{sT0}, {65536+4096}")
        e(f"v_lshl_add_u32 v{u0}, v{u0}, 10, s{sT0}")
        e(f"v_lshl_add_u32 v{u0}, v{t2}, 8, v{u0}")
        e(f"v_lshl_add_u32 v{vOW}, v{u2}, 4, v{u0}")
        e(f"v_xor_b32 v{vOW+1}, {16384+2048}, v{vOW}")
    e(f"v_mul_u32_u24 v{u0}, 1280, v{u2}")
    e(f"v_lshl_add_u32 v{vOUT}, v{G}, 4, v{u0}")
    e(f"v_lshl_add_u32 v{u0}, v{u1}, 4, v{u0}")
    e(f"v_lshl_add_u32 v{vOUT2}, v{t2}, 3, v{u0}")
    if opt["bp"]:
        e(f"v_lshrrev_b32 v{vL16b}, 2, v{L}")
        e(f"v_mul_u32_u24 v{u0}, 1280, v{vL16b}")
        e(f"v_lshl_add_u32 v{vOUT}, v{C}, 4, v{u0}")
        e(f"v_lshl_add_u32 v{vL16b}, v{C}, 4, v{vL16b}")
        e(f"v_lshlrev_b32 v{vL16b}, 2, v{vL16b}")
        e(f"v_and_b32 v{vOUT2}, 1, v{C}")
        e(f"v_lshl_add_u32 v{u0}, v{vOUT2}, 4, v{u0}")
        e(f"v_lshrrev_b32 v{vOUT2}, 1, v{C}")
        e(f"v_lshl_add_u32 v{vOUT2}, v{vOUT2}, 3, v{u0}")
    if opt["t4"]:
        e(f"v_mul_u32_u24 v{u0}, {4*1280}, v{G}")
        e(f"v_lshl_add_u32 v{u0}, v{C}, 1, v{u0}")
        e(f"v_and_b32 v{vOUT2}, 1, v{R}")
        e(f"v_lshl_add_u32 v{u0}, v{vOUT2}, 4, v{u0}")
        e(f"v_lshrrev_b32 v{vOUT2}, 1, v{R}")
        e(f"v_lshl_add_u32 v{vOUT2}, v{vOUT2}, 3, v{u0}")
    if opt["ofk"]:
        sh = 1 + opt["ofk"]
        e(f"v_lshrrev_b32 v{u0}, {sh}, v{L}")
        e(f"v_mul_u32_u24 v{u0}, 1280, v{u0}")
        e(f"v_and_b32 v{vOUT}, {(1 << sh) - 1}, v{L}")
        e(f"v_lshl_add_u32 v{vOUT}, v{vOUT}, 4, v{u0}")
        e(f"v_add_u32 v{vL16b}, {64 if sh == 2 else 10240}, v{vOUT}")
        e(f"v_lshrrev_b32 v{u0}, 2, v{L}")
        e(f"v_mul_u32_u24 v{u0}, 1280, v{u0}")
        e(f"v_and_b32 v{vOUT2}, 3, v{L}")
        e(f"v_lshl_add_u32 v{vOUT2}, v{vOUT2}, 3, v{u0}")
    if not D1: e(f"v_add_u32 v{vL16b}, 4096, v{vL16}")
    if D1:
        if RPW: e(f"s_lshl2_add_u32 s{sT0}, s{sFT}, s{sW}")
        else:
            e(f"s_lshr_b32 s{sT0}, s{sFT}, 2")
            e(f"s_lshl_b32 s{sT0}, s{sT0}, 2")
            e(f"s_add_u32 s{sT0}, s{sT0}, s{sW}")
        e(f"s_mul_i32 s{sT0}, s{sT0}, {128 if opt['rpk'] else 12*128}")
        e(f"v_min_u32 v{vRP}, 11, v{u2}")
        e(f"v_lshl_add_u32 v{vRP}, v{vRP}, {dict([(0,7),(4,2),(8,3)])[opt['rpk']]}, s{sT0}")
    else:
        e(f"s_mul_i32 s{sT0}, s{sFT}, 5")
        e(f"v_lshl_add_u32 v{u0}, v{u1}, 2, s{sT0}")
        e(f"v_lshrrev_b32 v{u0}, 3, v{u0}")
        e(f"v_mad_u32_u24 v{u0}, v{Wv}, 5, v{u0}")
        e(f"v_min_u32 v{vRP}, 11, v{u2}")
        e(f"v_lshlrev_b32 v{vRP}, 7, v{vRP}")
        e(f"v_lshl_add_u32 v{vRP}, v{u0}, 11, v{vRP}")
    e(f"v_lshlrev_b32 v{vL4}, 2, v{L}")
    if opt["own"] or OW:
        e(f"v_and_b32 v{vPA}, {opt['pl2']}, v{L}")
        e(f"v_lshlrev_b32 v{vPA}, 7, v{vPA}")
    else: e(f"v_mul_u32_u24 v{vPA}, {FS}, v{u1}")
    if D1:
        assert FS == 128
        e(f"v_lshlrev_b32 v{vAC}, 7, v0")
        e(f"s_add_u32 s{sT0}, s{sM0}, 32768")
        e(f"v_add_u32 v{vRW}, s{sT0}, v{vL16}")
        e(f"v_add_u32 v{vRW2}, 65536, v{vRW}")
        for p in range(3):
            e(f"s_sub_u32 s{sT0}, s{sW}, {1+p}")
            e(f"s_and_b32 s{sT0}, s{sT0}, 3")
            e(f"s_lshl_b32 s{sT0}, s{sT0}, 13")
            e(f"s_add_u32 s{sT0}, s{sT0}, {32768*(p+1)}")
            e(f"v_add_u32 v{vRR+p}, s{sT0}, v{vL16}")
        e(f"s_mul_i32 s{sW2B}, s{sW}, {40960 if OW else 12*40960}")
        e(f"s_lshl_b32 s{sT0}, s{sFT}, 7")
        e(f"s_add_u32 s{sW2B}, s{sW2B}, s{sT0}")
        e(f"s_mul_i32 s{sW5B}, s{sW}, 96")
        e(f"s_add_u32 s{sW5B}, s{sW5B}, s{sFT}")
        e(f"s_lshl_b32 s{sW5B}, s{sW5B}, 10")
        e(f"s_add_u32 s{sW5B}, s{sW5B}, {W2F}")
    else:
        e(f"v_mul_u32_u24 v{u0}, 205, v{L}")
        e(f"v_lshrrev_b32 v{u0}, 10, v{u0}")
        e(f"v_sub_u32 v{vAC}, v{Wv}, v{u0}")
        e(f"v_mad_i32_i24 v{vAC}, v{vAC}, 5, v{L}")
        e(f"v_lshlrev_b32 v{vAC}, 11, v{vAC}")
        e(f"v_lshl_add_u32 v{vAC}, v{u0}, 7, v{vAC}")
        e(f"s_mul_i32 s{sT0}, s{sW}, 15360")
        e(f"s_add_u32 s{sT0}, s{sT0}, {RED}")
        e(f"v_add_u32 v{vRW}, s{sT0}, v{vL16}")
        for p in range(3):
            e(f"s_sub_u32 s{sT0}, s{sW}, {1+p}")
            e(f"s_and_b32 s{sT0}, s{sT0}, 3")
            e(f"s_mul_i32 s{sT0}, s{sT0}, 15360")
            e(f"s_add_u32 s{sT0}, s{sT0}, {RED + p*5120}")
            e(f"v_add_u32 v{vRR+p}, s{sT0}, v{vL16}")
        e(f"s_mul_i32 s{sW2B}, s{sW}, {12*40960}")
        e(f"s_mul_i32 s{sT0}, s{sFT}, 5120")
        e(f"s_add_u32 s{sW2B}, s{sW2B}, s{sT0}")
        e(f"s_add_u32 s{sW2B}, s{sW2B}, {W2F}")
    if opt["ab"]:
        e(f"s_mov_b32 s{sSIG+6}, 0x98763210"); e(f"s_mov_b32 s{sSIG+7}, 0x98763210")
        e(f"s_lshr_b64 s[{sSIG+6}:{sSIG+7}], s[{sSIG+6}:{sSIG+7}], s{sROT}")
        e(f"s_mov_b32 s{sSIG+7}, s{sSIG+6}")
        e(f"s_and_b32 s{sROT}, s{sROT}, 12")
        e(f"s_lshr_b32 s{sSIG+11}, 0xba54ba54, s{sROT}")
        for n in range(12):
            src = sSIG+7 if n < 8 else sSIG+11
            e(f"s_bfe_u32 s{sSIG+n}, s{src}, {0x40000 + 4*(n%8)}")
            e(f"s_lshl_b32 s{sSIG+n}, s{sSIG+n}, 10")
    if opt["own"]:
        e(f"s_lshl_b32 s{sSIG}, s{sFT}, 10")
        for n in range(1, 12):
            e(f"s_cmp_eq_u32 s{sROT}, s{sFT}")
            e(f"s_addc_u32 s{sROT}, s{sROT}, 0")
            e(f"s_lshl_b32 s{sSIG+n}, s{sROT}, 10")
            if n < 11:
                e(f"s_add_u32 s{sROT}, s{sROT}, 1")
                e(f"s_cmp_ge_u32 s{sROT}, 12")
                e(f"s_cselect_b32 s{sROT}, 0, s{sROT}")
    if OW:
        e(f"s_lshl_b32 s{sT0}, s{sFT}, 1")
        e(f"s_sub_u32 s{sT0}, s{sW}, s{sT0}")
        e(f"s_and_b32 s{sT0}, s{sT0}, 3")
        e(f"s_mul_i32 s{sT1}, s{sFT}, 6")
        e(f"s_add_u32 s{sT0}, s{sT0}, s{sT1}")
        e(f"s_lshr_b32 s{sT0}, s{sT0}, 2")
        e(f"s_lshl_b32 s{sSIG}, s{sT0}, 10")
        for n in range(1, 12):
            e(f"s_cmp_ge_u32 s{sROT}, s{sT0}")
            e(f"s_addc_u32 s{sT1}, s{sROT}, 0")
            e(f"s_lshl_b32 s{sSIG+n}, s{sT1}, 10")
            if n < 11:
                e(f"s_add_u32 s{sROT}, s{sROT}, 1")
                e(f"s_cmp_ge_u32 s{sROT}, 11")
                e(f"s_cselect_b32 s{sROT}, 0, s{sROT}")
    for n in range(12 if not opt["ab"] and not opt["own"] and not OW else 0):
        e(f"s_lshl_b32 s{sSIG+n}, s{sROT}, 10")
        if n < 11:
            e(f"s_add_u32 s{sROT}, s{sROT}, 1")
            e(f"s_cmp_ge_u32 s{sROT}, 12")
            e(f"s_cselect_b32 s{sROT}, 0, s{sROT}")
    if opt["own2"] == 2:
        e(f"s_mov_b32 s{sOWN}, s{sW}")
    elif opt["own2"] == 3:
        e(f"s_and_b32 s{sOWN}, s{sFT}, 1")
        e(f"s_add_u32 s{sOWN}, s{sW}, s{sOWN}")
    elif opt["own2"]:
        e(f"s_lshl_b32 s{sOWN}, s{sFT}, 1")
        e(f"s_add_u32 s{sOWN}, s{sW}, s{sOWN}")
    else: e(f"s_add_u32 s{sOWN}, s{sW}, s{sFT}")
    e(f"s_and_b32 s{sOWN}, s{sOWN}, 3")
    e(f"s_lshl_b32 s{sT1}, s{sMT}, 2")
    e(f"s_add_u32 s{sT1}, s{sT1}, s{sW}")
    if opt["own"] or OW: e(f"s_lshl_b32 s{sPOL}, s{sMT}, 10")
    else: e(f"s_mul_i32 s{sPOL}, s{sT1}, {2*FS}")
    e(f"s_add_u32 s{sPOL}, s{sPOL}, {FL}")
    e(f"s_lshl_b32 s{sT1}, s{sT1}, 2")
    for p in range(4):
        e(f"s_add_u32 s{sT0}, s{sOWN}, {1+p}")
        e(f"s_and_b32 s{sT0}, s{sT0}, 3")
        e(f"s_add_u32 s{sT0}, s{sT0}, s{sT1}")
        e(f"s_mul_i32 s{sT0}, s{sT0}, 12288")
        e(f"v_add_u32 v{vHB+p}, s{sT0}, v{vL16}")
    e(f"s_lshl_b32 s{sOB}, s{sMT}, 2")
    e(f"s_add_u32 s{sOB}, s{sOB}, s{sOWN}")
    e(f"s_mul_i32 s{sOB}, s{sOB}, {16*1280}")
    if D1:
        e(f"s_lshl_b32 s{sT0}, s{sFT}, 5")
        e(f"s_add_u32 s{sOB2}, s{sOB}, s{sT0}")
        e(f"s_add_u32 s{sOB2}, s{sOB2}, {1024-128}")
    e(f"s_mul_i32 s{sT0}, s{sFT}, {128 if D1 else 160}")
    e(f"s_add_u32 s{sOB}, s{sOB}, s{sT0}")
    if opt["ost"]:
        e(f"s_cmp_ge_u32 s{sW}, {opt['ost']}")
        e(f"s_cselect_b32 s{sOB}, s{sOB}, 2621440")
    e(f"s_lshl_b32 s{sT0}, s{sMT}, 2")
    e(f"s_lshr_b32 s{sT1}, s{sFT}, 1")
    e(f"s_add_u32 s{sT0}, s{sT0}, s{sT1}")
    e(f"s_mul_i32 s{sFLG}, s{sT0}, {2*FS}")
    e(f"s_lshl_b32 s{sT0}, s{sT0}, 2")
    e(f"s_and_b32 s{sT1}, s{sW}, 2")
    e(f"s_add_u32 s{sT0}, s{sT0}, s{sT1}")
    e(f"s_mul_i32 s{sHS}, s{sT0}, 12288")
    e(f"s_and_b32 s{sT0}, s{sFT}, 1")
    e(f"s_mul_i32 s{sT1}, s{sT0}, {FS}")
    e(f"s_add_u32 s{sFLG}, s{sFLG}, s{sT1}")
    e(f"s_add_u32 s{sFLG}, s{sFLG}, {FL}")
    e(f"s_mul_i32 s{sT0}, s{sT0}, 6")
    e(f"s_and_b32 s{sT1}, s{sW}, 1")
    e(f"s_add_u32 s{sT0}, s{sT0}, s{sT1}")
    e(f"s_lshl_b32 s{sT0}, s{sT0}, 10")
    e(f"s_add_u32 s{sHS}, s{sHS}, s{sT0}")
    e(f"s_add_u32 s{sHS2}, s{sHS}, 4096")
    if opt["own"]:
        e(f"s_and_b32 s{sT0}, s{sFT}, 1")
        e(f"s_lshl_b32 s{sT0}, s{sT0}, 12")
        e(f"s_sub_u32 s{sHS2}, s{sHS}, s{sT0}")
        e(f"s_add_u32 s{sHS2}, s{sHS2}, 8192")
        e(f"s_lshl_b32 s{sT0}, s{sMT}, 2")
        e(f"s_add_u32 s{sT0}, s{sT0}, s{sT1}")
        e(f"s_lshl_b32 s{sT0}, s{sT0}, 2")
        e(f"s_and_b32 s{sT1}, s{sW}, 2")
        e(f"s_add_u32 s{sT0}, s{sT0}, s{sT1}")
        e(f"s_mul_i32 s{sT0}, s{sT0}, 12")
        e(f"s_add_u32 s{sT0}, s{sT0}, s{sFT}")
        e(f"s_lshl_b32 s{sHS}, s{sT0}, 10")
        e(f"s_add_u32 s{sHS1}, s{sHS}, 98304")
    if OW:
        for q, r in enumerate((sHS, 10, sHS2)):
            e(f"s_mul_i32 s{sT0}, s{sFT}, 6")
            e(f"s_and_b32 s{sT1}, s{sW}, 1")
            e(f"s_add_u32 s{sT0}, s{sT0}, s{sT1}")
            if q: e(f"s_add_u32 s{sT0}, s{sT0}, {2*q}")
            e(f"s_and_b32 s{sT1}, s{sT0}, 3")
            e(f"s_lshl2_add_u32 s{sT1}, s{sMT}, s{sT1}")
            e(f"s_and_b32 s{r}, s{sW}, 2")
            e(f"s_lshl2_add_u32 s{sT1}, s{sT1}, s{r}")
            e(f"s_mul_i32 s{sT1}, s{sT1}, 12")
            e(f"s_lshr_b32 s{sT0}, s{sT0}, 2")
            e(f"s_add_u32 s{sT0}, s{sT0}, s{sT1}")
            e(f"s_lshl_b32 s{r}, s{sT0}, 10")
    e(f"s_add_u32 s{sRFL}, s{sRFL}, {RFL}")
    if opt["tpre"]:
        tb = str(opt["ttab"]).lstrip("x"); assert len(tb) == 32
        nn = tb.count("1"); assert 48 % nn == 0 and 48 // nn <= 8
        rw = 48 // nn
        mk_ = sum(int(c) << i for i, c in enumerate(tb))
        e(f"s_lshr_b32 s9, s2, 3")
        e(f"s_bfm_b32 s8, s9, 0")
        e(f"s_and_b32 s8, s8, {mk_}")
        e(f"s_bcnt1_i32_b32 s8, s8")
        e(f"s_and_b32 s{sT0}, s2, 7")
        e(f"s_lshl3_add_u32 s8, s8, s{sT0}")
        e(f"s_lshl2_add_u32 s8, s8, s{sW}")
        e(f"s_mul_i32 s8, s8, {rw*1280}")
        e(f"s_bitcmp1_b32 {mk_}, s9")
        e(f"s_cselect_b32 s8, s8, 1966080")
        e(f"v_lshrrev_b32 v251, 3, v{L}")
        e(f"v_lshl_add_u32 v250, v251, 8, s8")
        e(f"v_lshl_add_u32 v250, v{L}, 7, v250")
        if rw < 8:
            e(f"v_add_u32 v251, {8 - rw}, v251")
            e(f"v_lshrrev_b32 v251, 3, v251")
            e(f"v_lshl_add_u32 v250, v251, 21, v250")
    if R2:
        e(f"s_lshl_b32 s{sT0}, s{sW}, 9")
        e(f"s_add_u32 s{sRFL}, s{sRFL}, s{sT0}")
        e(f"s_cmp_le_u32 s{sW}, s10")
        e(f"s_cselect_b32 s{sRFL}, s{sRFL}, {HREC}")
    elif not RPW:
        e(f"s_cmp_eq_u32 s{sW}, 0")
        e(f"s_cselect_b32 s{sRFL}, s{sRFL}, {HREC}")
    if opt["fpre"]:
        assert opt["fb"] and opt["fk"] == 0 and not RPW
        e(f"s_cmp_eq_u32 s{sW}, 0")
        e(f"s_cselect_b32 s{sFLG}, s{sFLG}, {HREC}")
        assert HREC == 1 << 23 and opt["rpk"] == 8
        e(f"v_lshrrev_b32 v249, 1, v{L}")
        e(f"v_lshl_add_u32 v249, v249, 23, v{vL4}")
        e(f"v_lshrrev_b32 v248, 5, v{L}")
        e(f"v_lshl_add_u32 v248, v248, 23, v{vL4}")
    e(f"s_mov_b32 s{sL2E}, 0xbfb8aa3b")
    if opt["pk"]:
        e(f"s_mov_b32 s{sPK}, 0xbfb8aa3b"); e(f"s_mov_b32 s{sPK+1}, 0xbfb8aa3b")
def r_loads():
    if D1:
        e(f"s_lshr_b32 m0, s{sM0}, 3")
        e(f"s_add_u32 m0, m0, {RB}")
        e("s_nop 0")
        e(f"buffer_load_dwordx4 v{vWD}, {srd(sW2)}, s{sRS} offen {opt['raux']} lds"); VM.issue("rld")
        if R2:
            e(f"s_add_u32 m0, m0, {4096 - 128}")
            e(f"s_cmp_eq_u32 s10, 1")
            e(f"s_cselect_b32 s{sRS}, s{sRS}, 1966080")
            e(f"buffer_load_dwordx4 v{vWD}, {srd(sW2)}, s{sRS} offen offset:128 {opt['raux']} lds"); VM.issue("rld")
        return
    e(f"s_lshr_b32 m0, s{sM0}, 2")
    e(f"s_add_u32 m0, m0, {RB}")
    e("s_nop 0")
    for i in range(2):
        e(f"buffer_load_dwordx4 v{vDR+i}, {srd(sW2)}, s{sRS} offen offset:{i*1024} {opt['raux']} lds"); VM.issue("rld")
def r_reads():
    if D1:
        for t in range(4 if R2 else 2):
            e(f"ds_read_b64_tr_b16 {vr(vRF + 2*t, 2)}, v{vRA} offset:{(t % 2)*1024 + (t // 2)*4096}"); LG.issue("rrd")
        return
    for ee in range(2):
        for t in range(2):
            e(f"ds_read_b64_tr_b16 {vr(vRF + 4*ee + 2*t, 2)}, v{vRA+ee} offset:{t*2048}"); LG.issue("rrd")
def r_stores():
    LG.wait("rrd")
    for ee in range(1 if D1 else 2):
        e(f"buffer_store_dwordx4 {vr(vRF+4*ee,4)}, v{vL16}, {srd(sH)}, s{sRD} offen offset:{ee*1024} {opt['rsaux']}"); VM.issue("rst")
    if R2:
        e(f"s_add_u32 s{sRD}, s{sRD}, 4096")
        e(f"s_cmp_eq_u32 s10, 1")
        e(f"s_cselect_b32 s{sRD}, s{sRD}, {HREC}")
        e(f"buffer_store_dwordx4 {vr(vRF+4,4)}, v{vL16}, {srd(sH)}, s{sRD} offen {opt['rsaux']}"); VM.issue("rst")
S2 = capture(setup2)
groups = []
for l in S2:
    if l.startswith("s_cselect") or (groups and groups[-1][-1].startswith(("s_cmp", "s_bitcmp"))): groups[-1].append(l)
    else: groups.append([l])
ST0 = []
def pre_order(spec):
    kx, kw = (sKX, 6, 8), (sKW, 7, 9)
    def nxt(i):
        a, b = (i + 1) % 3, i
        e(f"s_add_u32 s{kx[a]}, s{kx[b]}, 128")
        e(f"s_add_u32 s{kw[a]}, s{kw[b]}, {64*3072}")
        e(f"s_cmp_eq_u32 s{kx[a]}, s{sXE}")
        e(f"s_cselect_b32 s{kx[a]}, s{sXB}, s{kx[a]}")
        e(f"s_cselect_b32 s{kw[a]}, s{sWB}, s{kw[a]}")
    ops = []
    for ch in spec:
        if ch in "abc":
            st = "abc".index(ch)
            for i in range(2):
                def f(st=st, i=i):
                    if i == 0: e(f"s_add_u32 m0, s{sM0}, {st*32768+6144}"); e("s_nop 0")
                    e(f"buffer_load_dwordx4 v{vDX+i}, {srd(sX)}, s{kx[st]} offen offset:{i*1024} {opt['xaux']} lds"); VM.issue(f"st{st}")
                    if st == 0 and i == 1: nxt(0); nxt(1)
                ops.append(f)
        elif ch in "ABC":
            st = "ABC".index(ch)
            for j in range(6):
                def f(st=st, j=j):
                    if j % 4 == 0: e(f"s_add_u32 m0, s{sM0}, {st*32768+j*1024}"); e("s_nop 0")
                    e(f"buffer_load_dwordx4 v{vDW+j}, {srd(sW1)}, s{kw[st]} offen offset:{(j%4)*1024} {opt['w1aux']} lds"); VM.issue(f"st{st}")
                ops.append(f)
        elif ch == "R": ops.append(r_loads)
        elif ch == ".": ops.append(None)
        elif ch == "P":
            def f():
                e(f"s_bfe_u32 s10, s{sMT}, 0x10002")
                e(f"s_mul_i32 s10, s10, 320")
                e(f"s_and_b32 s11, s{sMT}, 3")
                e(f"s_lshl_b32 s11, s11, 4")
                e(f"s_add_u32 s10, s10, s11")
                e(f"s_mul_i32 s11, s{sW}, 12")
                e(f"s_sub_u32 s10, s10, s11")
                e(f"s_add_u32 s10, s10, 256")
                e(f"s_mul_i32 s10, s10, 3072")
                e(f"s_add_u32 s10, s10, s{sWB}")
                e(f"buffer_load_dwordx4 v[244:247], v{vDW}, {srd(sW1)}, s10 offen"); VM.issue("pp")
                e("s_mov_b32 exec_hi, 0")
                e(f"buffer_load_dwordx4 v[248:251], v{vDW+1}, {srd(sW1)}, s10 offen offset:1024"); VM.issue("pp")
                e("s_mov_b32 exec_hi, -1")
            ops.append(f)
    assert spec[0] == "a" and all(c in spec for c in "abcABC")
    last = ops[-1]
    def fin(): last(); nxt(2)
    ops[-1] = fin
    return ops
if opt["po"]:
    first = pre_order(opt["po"]); opt["pre3"] = 1
    if None in first:
        k = first.index(None); first, ST0 = first[:k], first[k+1:]
    if "R" in opt["po"]: opt["rls"] = -1
else:
    first = dma_ops(0) + dma_ops(1) + (dma_ops(2) if opt["pre3"] else [])
    if opt["rls"] < 0: first.append(r_loads)
    if opt["tch"]: first[opt["tp0"]:opt["tp0"]] = [touch] * (opt["la"] - 1)
def wxtouch(k, n):
    def f():
        if k == 0:
            e(f"s_lshr_b32 s8, s2, 3")
            e(f"s_lshl_b32 s8, s8, 2")
            e(f"s_add_u32 s8, s8, s{sW}")
            e(f"s_mul_i32 s8, s8, {12*1280}")
            e(f"s_lshr_b32 s9, s{sFT}, 2")
            e(f"s_lshl_b32 s9, s9, 9")
            e(f"s_add_u32 s8, s8, s9")
            e(f"v_lshrrev_b32 v250, 6, v{vL16}")
            e(f"v_mul_u32_u24 v250, {1280-512}, v250")
            e(f"v_lshl_add_u32 v250, v{vL16}, 3, v250")
        m = ((1 << (48 // n)) - 1) << (k * 48 // n)
        e(f"s_mov_b32 exec_lo, {m & 0xffffffff}")
        e(f"s_mov_b32 exec_hi, {m >> 32}")
        e(f"buffer_load_dword v251, v250, {srd(sW2)}, s8 offen {opt['wtaux']}"); VM.issue("wt")
        e("s_mov_b64 exec, -1")
    return f
def wtouch():
    if opt["tpre"]:
        e(f"buffer_load_dword v251, v250, {srd(sW2)}, 0 offen {opt['wtaux']}"); VM.issue("wt")
        return
    if opt["wtx"]:
        e(f"s_lshr_b32 s8, s2, 3")
        e(f"s_lshl_b32 s8, s8, 2")
        e(f"s_add_u32 s8, s8, s{sW}")
        e(f"s_mul_i32 s8, s8, {12*1280}")
        e(f"s_lshr_b32 s9, s{sFT}, 2")
        e(f"s_lshl_b32 s9, s9, 9")
        e(f"s_add_u32 s8, s8, s9")
        e(f"v_lshrrev_b32 v250, 6, v{vL16}")
        e(f"v_mul_u32_u24 v250, {1280-512}, v250")
        e(f"v_lshl_add_u32 v250, v{vL16}, 3, v250")
        e(f"s_mov_b32 exec_hi, 0xffff")
        e(f"buffer_load_dword v251, v250, {srd(sW2)}, s8 offen {opt['wtaux']}"); VM.issue("wt")
        e("s_mov_b64 exec, -1")
        return
    if opt["ttab"]:
        tb = str(opt["ttab"]).lstrip("x"); assert len(tb) == 32
        nn = tb.count("1"); assert 48 % nn == 0 and 48 // nn <= 8
        rw = 48 // nn
        mk_ = sum(int(c) << i for i, c in enumerate(tb))
        e(f"s_lshr_b32 s9, s2, 3")
        e(f"s_bfm_b32 s8, s9, 0")
        e(f"s_and_b32 s8, s8, {mk_}")
        e(f"s_bcnt1_i32_b32 s8, s8")
        e(f"s_and_b32 m0, s2, 7") if False else None
        e(f"s_lshl_b32 s8, s8, 3")
        e(f"s_bitcmp1_b32 {mk_}, s9")
        e(f"s_cselect_b32 s8, s8, 0x10000")
        e(f"s_and_b32 s9, s2, 7")
        e(f"s_add_u32 s8, s8, s9")
        e(f"s_lshl2_add_u32 s8, s8, s{sW}")
        e(f"s_mul_i32 s8, s8, {rw*1280}")
        e(f"s_min_u32 s8, s8, 1966080")
        e(f"v_lshrrev_b32 v250, 7, v{vL16}")
        e(f"v_lshlrev_b32 v250, 8, v250")
        e(f"v_lshl_add_u32 v250, v{vL16}, 3, v250")
        if rw < 8:
            m = (1 << (8*rw)) - 1
            e(f"s_mov_b32 exec_lo, {m & 0xffffffff}")
            e(f"s_mov_b32 exec_hi, {m >> 32}")
        e(f"buffer_load_dword v251, v250, {srd(sW2)}, s8 offen {opt['wtaux']}"); VM.issue("wt")
        if rw < 8: e("s_mov_b64 exec, -1")
        return
    if opt["wtc"]:
        e(f"s_lshr_b32 s8, s2, 4")
        e(f"s_lshl_b32 s8, s8, 3")
        e(f"s_and_b32 s9, s2, 7")
        e(f"s_add_u32 s8, s8, s9")
        e(f"s_lshl2_add_u32 s8, s8, s{sW}")
        e(f"s_mul_i32 s8, s8, {3*1280}")
        e(f"v_lshrrev_b32 v250, 7, v{vL16}")
        e(f"v_lshlrev_b32 v250, 8, v250")
        e(f"v_lshl_add_u32 v250, v{vL16}, 3, v250")
        e(f"s_lshr_b32 s9, s2, 2")
        e(f"s_xor_b32 s9, s9, s2")
        e(f"s_bitcmp{opt['wtc'] - 1}_b32 s9, 3")
        e(f"s_cselect_b32 s8, s8, 1966080")
        e(f"s_mov_b64 exec, {(1 << 24) - 1}")
        e(f"buffer_load_dword v251, v250, {srd(sW2)}, s8 offen {opt['wtaux']}"); VM.issue("wt")
        e("s_mov_b64 exec, -1")
        return
    e(f"s_lshl_b32 s8, s2, 2")
    e(f"s_add_u32 s8, s8, s{sW}")
    e(f"s_mul_i32 s8, s8, {15*128}")
    e(f"v_lshlrev_b32 v250, {2 if opt['wth'] else 3}, v{vL16}")
    e(f"s_mov_b64 exec, {(1 << (30 if opt['wth'] else 15)) - 1}")
    e(f"buffer_load_dword v251, v250, {srd(sW2)}, s8 offen {opt['wtaux']}"); VM.issue("wt")
    e("s_mov_b64 exec, -1")
if opt["wt"] >= 0: first.insert(opt["wt"], wtouch)
def stouch():
    e(f"s_lshl_b32 s100, s2, 2")
    e(f"s_add_u32 s100, s100, s{sW}")
    e(f"s_mul_i32 s100, s100, {15*128}")
    for i in range(opt["swn"]):
        e(f"s_load_dword s101, s[{sW2}:{sW2+1}], s100 offset:{i*128}")
if opt["sw"] >= 0: first.insert(opt["sw"], stouch)
if opt["clr"] >= 0: first[opt["clr"]:opt["clr"]] = CLO
NF0 = opt["nf0"]
for f in first[:NF0]: f()
if opt["fst"]:
    e(f"s_waitcnt vmcnt({NF0-1})"); stamp(k=5)
    e(f"s_waitcnt vmcnt({NF0-3})"); stamp(k=5)
rest = first[NF0:]
per = (len(groups) + len(rest) - 1) // len(rest)
head = len(groups) * opt["head"] // 100
for g in groups[:head]: O.extend(g)
groups = groups[head:]
per = (len(groups) + len(rest) - 1) // len(rest)
for f in rest:
    f()
    for g in groups[:per]: O.extend(g)
    groups = groups[per:]
assert not groups
stamp()

def w2_ops():
    ops = []
    order = list(range(1, 12)); order.insert(opt["w0p"], 0)
    for n in order:
        for j in range(5):
            def f(n=n, j=j):
                if j == 0:
                    e(f"s_mul_i32 s{sWO}, s{sSIG+n}, 40")
                    e(f"s_add_u32 s{sWO}, s{sWO}, s{sW2B}")
                va = vL16 if j < 4 else vL16b
                e(f"buffer_load_dwordx4 {ar(n*20+4*j, 4)}, v{va}, {srd(sH)}, s{sWO} offen offset:{(j%4)*1024} {opt['w2aux'].replace('-','')}")
                VM.issue(f"w{n}")
            ops.append(f)
    return ops
WREG = [3, 3, 4, 4, 1, 1, 2, 2, 3, 3, 4, 4]
WHF = [n % 2 for n in range(12)]
WDEP = [None] * 8 + ["t0", "t1", "t2", "t3"]
if OW:
    WREG = [3, 3, 4, 4, 1, 1, 2, 3, 3, 4, 4, 2]
    WHF = [0, 1, 0, 1, 0, 1, 0, 0, 1, 0, 1, 1]
    WDEP = [None] * 7 + ["t0", "t1", "t2", "t3", "or3"]
def wd_ops():
    ops = []
    for n in range(12):
        for i in range(4):
            def f(n=n, i=i):
                if i == 0:
                    if WDEP[n]: assert WDEP[n] in TDONE + ORD and WDEP[n] not in LG.q, n
                    e(f"s_mul_i32 s{sWO}, s{sSIG+n}, {160 if OW else 40}")
                    e(f"s_add_u32 m0, s{sM0}, {WREG[n]*32768 + WHF[n]*4096}")
                    e(f"s_add_u32 s{sWO}, s{sWO}, s{sW2B}")
                if n >= 12 - opt["skd"]: return
                e(f"buffer_load_dwordx4 v{vWD+i}, {srd(sW2)}, s{sWO} offen offset:{i*1024} {opt['waux']} lds")
                VM.issue(f"d{n}")
            ops.append(f)
    return ops
def w5_ops():
    ops = []
    for n in range(12):
        def f(n=n):
            if n >= 12 - opt["sk5"]: return
            e(f"s_lshl3_add_u32 s{sT1}, s{sSIG+n}, s{sW5B}")
            e(f"buffer_load_dwordx4 {ar(n*20+16, 4)}, v{vL16}, {srd(sH)}, s{sT1} offen {opt['w5aux'].replace('-','')}")
            VM.issue(f"w{n}")
        ops.append(f)
    return ops
TDONE = []; TWIN = [3]; ORD = []
def tgroup_ops(n):
    def head():
        assert not any(f.__defaults__[0] == n and len(f.__defaults__) == 2 for f in W2L), n
        VM.wait(f"d{n}")
        win = 3 if WREG[n] >= 3 else 1
        if win != TWIN[0]:
            for j in range(4): e(f"v_add_u32 v{vWT+j}, {(win - TWIN[0]) * 32768}, v{vWT+j}")
            TWIN[0] = win
        if len(LG.q) > 7:
            e("s_waitcnt lgkmcnt(7)"); LG.q = LG.q[-7:]
    ops = []
    for j in range(4):
        def f(j=j):
            if j == 0: head()
            win = TWIN[0]
            for t in range(2):
                e(f"ds_read_b64_tr_b16 {ar(n*20+4*j+2*t, 2)}, v{vWT+j} offset:{(WREG[n]-win)*32768 + WHF[n]*4096 + t*1024}"); LG.issue(f"t{n}")
        ops.append(f)
    TDONE.append(f"t{n}")
    return ops
def tgroup(n):
    for f in tgroup_ops(n): f()
W2L = wd_ops() if D1 else w2_ops()
def take(n):
    r = W2L[:n]; del W2L[:n]; return r

def rd_ops(st, half):
    slot = st % NSL
    sb = (slot % 2) * 32768
    hi = slot // 2
    ops = []
    if opt["nord"]: return ops
    if opt["r16"]:
        def b(rt):
            def f(): e(f"ds_read_b128 {vr(vBF + (half*2+rt)*4, 4)}, v{vB + 4 + 2*hi + half} offset:{sb + rt*8192}"); LG.issue(f"B{half}{rt}")
            return f
        def a(j, t):
            def f():
                e(f"ds_read_b64_tr_b16 {vr(vAF + half*24 + j*4 + 2*t, 2)}, v{vA + 2*hi + j%2} offset:{sb + half*16384 + t*1536 + (j//2)*128}")
                LG.issue(f"A{half}{j}")
            return f
        A = [a(j, t) for j in range(6) for t in range(2)]
        return [b(0)] + A[:2] + [b(1)] + A[2:]
    for kk in range(2):
        ks = 2*half + kk
        def b(ks=ks, kk=kk):
            e(f"ds_read_b128 {vr(vBF + (half*2+kk)*4, 4)}, v{vB + 4*hi + ks} offset:{sb}"); LG.issue(f"B{ks}")
        ops.append(b)
        for q in range(3):
            for t in range(2):
                def a(ks=ks, kk=kk, q=q, t=t):
                    e(f"ds_read_b64_tr_b16 {vr(vAF + half*24 + (kk*3+q)*4 + 2*t, 2)}, v{vA+hi} offset:{sb + ks*8192 + t*1536 + q*128}")
                    LG.issue(f"A{ks}{q}")
                ops.append(a)
    if opt["qm"] in (1, 2):
        qs = (0, 1, 2) if opt["qm"] == 1 or half == 0 else (2, 1, 0)
        ops = [ops[0], ops[7]] + [ops[7*kk + 1 + 2*q + t] for q in qs for kk in range(2) for t in range(2)]
    if opt["qm"] == 3: ops = ops[:8] + [ops[8 + 2*q + t] for q in (2, 1, 0) for t in range(2)]
    return ops
def i16(kk, q): return kk == 1
def mfma1(half, kk, q, zz=None):
    ks = 2*half + kk
    LG.wait(f"A{ks}{q}")
    if opt["nomf1"]: return
    if opt["m16"]:
        for z in (range(2) if zz is None else [zz]):
            c = vr(vACC1+16*q+8*kk+4*z, 4)
            e(f"v_mfma_f32_16x16x32_bf16 {c}, {vr(vAF + half*24 + (kk*3+q)*4, 4)}, {vr(vBF + (half*2+(kk^z if i16(kk, q) else kk))*4, 4)}, {c}")
        return
    a, b = vr(vAF + half*24 + (kk*3+q)*4, 4), vr(vBF + (half*2+kk)*4, 4)
    if opt["swab"]: a, b = b, a
    e(f"v_mfma_f32_32x32x16_bf16 {vr(vACC1+16*q,16)}, {a}, {b}, {vr(vACC1+16*q,16)}")
def mfma16(half, i):
    j, rt = i // 2, i % 2
    if opt["ro"] == 1 and j % 2: rt ^= 1
    LG.wait(f"A{half}{j}"); LG.wait(f"B{half}{rt}")
    if opt["nomf1"]: return
    c = vr(vACC1 + (j//2)*16 + rt*8 + (j%2)*4, 4)
    e(f"v_mfma_f32_16x16x32_bf16 {c}, {vr(vAF + half*24 + j*4, 4)}, {vr(vBF + (half*2+rt)*4, 4)}, {c}")
def half_body(mf_half, rds, fill, cnt=None):
    rds = list(rds); fill = list(fill)
    if (opt["m16"] >= 2 or opt["r16"]) and mf_half is not None:
        for i in range(12):
            if opt["r16"]: mfma16(mf_half, i)
            else: mfma1(mf_half, i // 6, (i // 2) % 3, i % 2)
            left = 12 - i
            if opt["pat"]:
                P = opt["pat1"] if opt["pat1"] and mf_half == 0 else opt["pat"]
                ch = P[i]
                for _ in range(dict(a=2, b=1, c=3, M=1, N=2).get(ch, 0)):
                    if rds: rds.pop(0)()
                if ch in "LMN":
                    nl = sum(c in "LMN" for c in P[i:])
                    for _ in range((len(fill) + nl - 1) // nl): fill.pop(0)()
            elif opt["m16"] == 2 or opt["r16"] == 2:
                for _ in range((len(rds) + left - 1) // left if i else 2):
                    if rds: rds.pop(0)()
                if i % 2 == 1:
                    for _ in range((len(fill) + left // 2) // (left // 2 + 1)):
                        if fill: fill.pop(0)()
            else:
                if i % 3 == 2 and fill:
                    for _ in range((len(fill) + left // 3) // (left // 3 + 1)): fill.pop(0)()
                else:
                    for _ in range(2):
                        if rds: rds.pop(0)()
        assert not rds and not fill, (len(rds), len(fill))
        return
    for i in range(6):
        if mf_half is not None:
            if opt["qm"] == 1: mfma1(mf_half, i % 2, i // 2)
            elif opt["qm"] == 2: mfma1(mf_half, i % 2, (i // 2) if mf_half == 0 else 2 - i // 2)
            elif opt["qm"] == 3: mfma1(mf_half, i // 3, (i % 3) if i < 3 else 5 - i)
            else: mfma1(mf_half, i // 3, i % 3)
        left = 6 - i
        for _ in range((len(rds) + left - 1) // left if i else min(len(rds), 4)):
            if rds: rds.pop(0)()
        if cnt is not None:
            for _ in range(cnt[i]):
                if fill: fill.pop(0)()
            if i == 5:
                while fill: fill.pop(0)()
            continue
        for _ in range((len(fill) + left - 1) // left):
            if fill: fill.pop(0)()
    assert not rds and not fill

def flag_store(off, lanes=0):
    fk = opt["fk"]
    if opt["fpre"]:
        e(f"buffer_store_dword v{vT}, v{249 if lanes else 248}, {srd(sH)}, s{off} offen sc1"); VM.issue("flag")
        return
    if fk in (1, 3, 4):
        for r in range(4): e(f"v_mov_b32 v{vTM+12+r}, s{sTAG}")
        e(f"s_mov_b64 exec, {dict([(1,255),(3,1),(4,15)])[fk]}")
        e(f"buffer_store_dwordx4 {vr(vTM+12,4)}, v{vL16}, {srd(sH)}, s{off} offen sc1"); VM.issue("flag")
        e("s_mov_b64 exec, -1")
        return
    e(f"v_mov_b32 v{vT}, s{sTAG}")
    e(f"s_mov_b64 exec, {(1 << lanes) - 1}" if lanes else "s_mov_b32 exec_hi, 0" if fk == 0 else "s_mov_b64 exec, 1")
    e(f"buffer_store_dword v{vT}, v{vL4}, {srd(sH)}, s{off} offen sc1"); VM.issue("flag")
    e("s_mov_b64 exec, -1")
def r_poll():
    e(f"s_mov_b32 s{sT0}, {HREC if opt['norp'] else RFL}")
    e(f"buffer_load_dword v{vPOLL}, v{vRP}, {srd(sH)}, s{sT0} offen sc1"); VM.issue("rpoll")

def spin_slow(lab, vv, va, so):
    e(f"L_{lab}_s:")
    e(f"s_mov_b32 s{sSPIN}, 20000")
    e(f"L_{lab}:")
    e(f"buffer_load_dword v{vv}, v{va}, {srd(sH)}, s{so} offen sc1")
    e(f"s_sub_u32 s{sSPIN}, s{sSPIN}, 1")
    e("s_waitcnt vmcnt(0)")
    e(f"v_cmp_ne_u32 vcc, s{sTAG}, v{vv}")
    e(f"s_cbranch_scc1 L_{lab}_go")
    e(f"s_cbranch_vccnz L_{lab}")
    e(f"s_branch L_{lab}_go")
def spin_fast(lab, vv, tag):
    VM.wait(tag)
    e(f"v_cmp_ne_u32 vcc, s{sTAG}, v{vv}")
    e(f"s_cbranch_vccnz L_{lab}_s")
    e(f"L_{lab}_go:")
def spin_check(lab, vv, va, tag, so=None, fake=False):
    VM.wait(tag)
    e(f"s_mov_b32 s{sSPIN}, 20000")
    e(f"L_{lab}:")
    e(f"v_cmp_ne_u32 vcc, s{sTAG}, v{vv}")
    e("s_cmp_eq_u64 vcc, 0" if not fake else "s_cmp_eq_u32 s2, s2")
    e(f"s_cbranch_scc1 L_{lab}_go")
    e(f"s_sub_u32 s{sSPIN}, s{sSPIN}, 1")
    e(f"s_cmp_eq_u32 s{sSPIN}, 0")
    e(f"s_cbranch_scc1 L_{lab}_go")
    if so is None: e(f"s_mov_b32 s{sT0}, {RFL}")
    e(f"buffer_load_dword v{vv}, v{va}, {srd(sH)}, s{sT0 if so is None else so} offen sc1")
    e("s_waitcnt vmcnt(0)")
    e(f"s_branch L_{lab}")
    e(f"L_{lab}_go:")
def r_check(): spin_check("rp", vPOLL, vRP, "rpoll", None, opt["norp"])

PEND = []
EMU = [int(c) for c in str(opt["emu"]).lstrip("x")]
def emu_ops(bi):
    q, g2 = bi // 2, bi % 2
    a0 = 216; tt = vS + (bi % 2) * 8; pk = vRF + 8 + bi * 4
    ops = []
    if opt["emv"] and not opt["epk"]:
        for r in range(8): ops.append(f"v_mul_f32 v{tt+r}, s{sL2E}, v{a0+r}")
        for r in range(8): ops.append(f"v_exp_f32 v{tt+r}, v{tt+r}")
        for r in range(8): ops.append(f"v_add_f32 v{tt+r}, 1.0, v{tt+r}")
        for r in range(8): ops.append(f"v_rcp_f32 v{tt+r}, v{tt+r}")
        for r in range(8): ops.append(f"v_mul_f32 v{tt+r}, v{a0+r}, v{tt+r}")
        for r in range(4): ops.append(f"v_cvt_pk_bf16_f32 v{pk+r}, v{tt+2*r}, v{tt+2*r+1}")
    elif opt["emv"]:
        for r in range(0, 8, 2): ops.append(f"v_pk_mul_f32 {vr(tt+r,2)}, {vr(a0+r,2)}, s[{sPK}:{sPK+1}]")
        for r in range(8): ops.append(f"v_exp_f32 v{tt+r}, v{tt+r}")
        for r in range(0, 8, 2): ops.append(f"v_pk_add_f32 {vr(tt+r,2)}, {vr(tt+r,2)}, 1.0 op_sel_hi:[1,0]")
        for r in range(8): ops.append(f"v_rcp_f32 v{tt+r}, v{tt+r}")
        for r in range(0, 8, 2): ops.append(f"v_pk_mul_f32 {vr(tt+r,2)}, {vr(a0+r,2)}, {vr(tt+r,2)}")
        for r in range(4): ops.append(f"v_cvt_pk_bf16_f32 v{pk+r}, v{tt+2*r}, v{tt+2*r+1}")
    fs = [(lambda l=l: e(l)) for l in ops]
    def st_():
        e(f"buffer_store_dwordx4 {vr(pk,4)}, v{vHS}, {srd(sH)}, s{sHS} offen offset:{g2*512 + (q%2)*2048} sc1"); VM.issue("hstA" if opt["ab"] else "hst")
    if not opt['ems']: PEND.append(st_); return fs
    return fs + [st_]
def merge(a, b):
    r = []; a = list(a); b = list(b); na, nb_ = len(a), len(b)
    while a or b:
        if a and (not b or len(a) * nb_ >= len(b) * na): r.append(a.pop(0))
        else: r.append(b.pop(0))
    return r
if EMU:
    for r in range(8): e(f"v_cvt_f32_u32 v{216+r}, v{vL16}"); e(f"v_mul_f32 v{216+r}, 0x3a000000, v{216+r}")
for st in range(10):
    if st == 1 and opt["fpre"]:
        e(f"s_mul_i32 s{sTAG}, s{sE}, 0x9E3779B1")
        e(f"s_add_u32 s{sTAG}, s{sTAG}, 0x7F4A7C15")
        e(f"v_mov_b32 v{vT}, s{sTAG}")
    if st == opt["wu"]:
        e("s_mov_b64 exec, 0")
        for k in range(1, 4):
            e(f"s_cmp_eq_u32 s{sW}, {k}")
            e(f"s_cbranch_scc1 L_w{k}")
        e("L_wr:")
        e("s_mov_b64 exec, -1")
    if st != opt["nw"]: VM.wait(f"st{st}")
    if st == opt["rjs"]: VM.wait("rld")
    if st == opt["rfs"]: VM.wait("rst"); VM.wait("clr")
    if st == opt["afs"] and st: VM.wait("hstA")
    LG.drain()
    e("s_barrier")
    if st == opt["afs"] and st:
        e(f"s_cmp_eq_u32 s{sW}, 0")
        e(f"s_cselect_b32 s{sT1}, s{sFLG}, {HREC}")
        flag_store(sT1); stamp(k=7)
    if st == 9: stamp()
    stamp(k=1)
    if st >= 8: stamp(k=4)
    if st == opt["rfs"] or (RPW and st == 1):
        if not opt["fpre"]:
            e(f"s_mul_i32 s{sTAG}, s{sE}, 0x9E3779B1")
            e(f"s_add_u32 s{sTAG}, s{sTAG}, 0x7F4A7C15")
        if not RPW and opt["fpre"] < 2: flag_store(sRFL, opt["rpk"] // 4)
    if not D1 and ((st == opt["rcs"] and opt["rck"] == 0) or (st == 9 and opt["rck"] == 2)): r_check()
    if NSL == 4:
        if st == 0: fill = ([] if opt["pre3"] else dma_ops(2)) + dma_ops(3)
        elif st < 7: fill = dma_ops(st + 3)
        else: fill = take(opt[f"n{st}"])
    elif st == 0 and opt["pre3"]: fill = list(ST0)
    elif st < 8: fill = dma_ops(st + 2) + (take(opt["d7"]) if st == 7 else [])
    else: fill = take(opt["n8"] if st == 8 else opt["n9"])
    if st == opt["dst"]: fill = fill + take(opt["dn"])
    if opt["tch"] and st + opt["la"] < 10: fill.insert(opt["tpos"], touch)
    if st == opt["rls"]: fill = [r_loads] + fill if opt["rpos"] == 0 else fill + [r_loads]
    if st == opt["rjs"]:
        fill.insert(min(opt["rsp"], len(fill)), r_stores)
        fill = [r_reads] + fill
    if st == opt["rps"] and not D1: fill.insert(opt["rpp"], r_poll)
    if st == opt["rfs"] and opt["fpre"] >= 2: fill.insert(min(opt["fpre"] - 2, len(fill)), lambda: flag_store(sRFL, opt["rpk"] // 4))
    if st == opt["wts"]: fill.insert(min(opt["wtp"], len(fill)), wtouch)
    WX = [int(c) for c in str(opt["wx"]).lstrip("x")]
    for k, c in enumerate(WX):
        if c == st: fill.insert(min(opt["wxp"], len(fill)), wxtouch(k, len(WX)))
    if st == opt['sws']: fill.insert(min(opt['swp'], len(fill)), stouch)
    if st == opt["ot"]:
        def otch():
            if opt["otm"] == 1: e("s_mov_b64 exec, 1")
            e(f"buffer_load_dword v251, v{vOUT}, {srd(sOUT)}, s{sOB} offen"); VM.issue("ot")
            if opt["otm"] == 3: e(f"buffer_load_dword v251, v{vOUT2}, {srd(sOUT)}, s{sOB} offen offset:128"); VM.issue("ot")
            e("s_mov_b64 exec, -1")
        fill.append(otch)
    ex = [CLO[i] for i, c in enumerate(str(opt["clrs"]).lstrip("x")) if int(c) == st]
    for bi, es in enumerate(EMU):
        if es == st: ex += emu_ops(bi)
    if ex: fill = merge(fill, ex)
    h = (len(fill) + 1) // 2
    f0, f1 = fill[:h], fill[h:]
    if st == 8 and opt["rck"] == 1:
        k = 1 if opt["rps"] == 8 else 0
        f0, f1 = fill[:k], [r_check] + fill[k:]
    if opt["fp"] and st:
        c = [int(z) for z in str(opt["fp"]).lstrip("x")]
        assert sum(c) == 8
        if st == opt["rjs"]: c[-12] += 1
        if len(c) == 13:
            k = c.pop(0)
            pre, fill = fill[:k + (st == opt["rjs"])], fill[k + (st == opt["rjs"]):]
            if st == opt["rjs"]: fill.insert(0, pre.pop(0))
            for f in pre: f()
        h = sum(c[:6])
        half_body(1, rd_ops(st, 0), fill[:h], c[:6])
        half_body(0, rd_ops(st, 1), fill[h:], c[6:])
        continue
    half_body(1 if st else None, rd_ops(st, 0), f0)
    half_body(0, rd_ops(st, 1), f1)
stamp()
def silu_block(q, g2):
    a0 = vACC1 + 16*q + 8*g2
    bi = 2*q + g2
    tt = vS + (bi % 2) * 8
    pk = vRF + bi * 4
    ops = []
    if opt["pk"]:
        for r in range(0, 8, 2): ops.append(f"v_pk_mul_f32 {vr(tt+r,2)}, {vr(a0+r,2)}, s[{sPK}:{sPK+1}]")
        for r in range(8): ops.append(f"v_exp_f32 v{tt+r}, v{tt+r}")
        for r in range(0, 8, 2): ops.append(f"v_pk_add_f32 {vr(tt+r,2)}, {vr(tt+r,2)}, 1.0 op_sel_hi:[1,0]")
        for r in range(8): ops.append(f"v_rcp_f32 v{tt+r}, v{tt+r}")
        for r in range(0, 8, 2): ops.append(f"v_pk_mul_f32 {vr(tt+r,2)}, {vr(a0+r,2)}, {vr(tt+r,2)}")
    else:
        for r in range(8): ops.append(f"v_mul_f32 v{tt+r}, s{sL2E}, v{a0+r}")
        for r in range(8): ops.append(f"v_exp_f32 v{tt+r}, v{tt+r}")
        for r in range(8): ops.append(f"v_add_f32 v{tt+r}, 1.0, v{tt+r}")
        for r in range(8): ops.append(f"v_rcp_f32 v{tt+r}, v{tt+r}")
        for r in range(8): ops.append(f"v_mul_f32 v{tt+r}, v{a0+r}, v{tt+r}")
    for r in range(4): ops.append(f"v_cvt_pk_bf16_f32 v{pk+r}, v{tt+2*r}, v{tt+2*r+1}")
    nbs = str(opt["nb"]).lstrip("x")
    fill = take(int(nbs[bi] if len(nbs) > 1 else nbs))
    if opt["tsil"] and bi >= 6 - opt["tsil"]: fill = fill + tgroup_ops(len(TDONE))
    step = len(ops) // (len(fill) + 1) if fill else 0
    for i, l in enumerate(ops):
        if not opt["novalu"]: e(l)
        if fill and step and (i + 1) % step == 0: fill.pop(0)()
    for f in fill: f()
    so = sHS if q < 2 else sHS2
    def st_():
        if opt["nost"]: return
        if OW:
            e(f"buffer_store_dwordx4 {vr(pk,4)}, v{vHS}, {srd(sH)}, s{(sHS, 10, sHS2)[q]} offen offset:{g2*512} sc1"); VM.issue("hst")
            if q < 2: e(f"ds_write_b128 v{vOW+q}, {vr(pk,4)} offset:{g2*512}"); LG.issue("ow")
            return
        if opt["own"]:
            e(f"buffer_store_dwordx4 {vr(pk,4)}, v{vHS}, {srd(sH)}, s{(sHS, sHS1, sHS2)[q]} offen offset:{g2*512} sc1"); VM.issue("hst")
            if q < 2: e(f"ds_write_b128 v{vOW+q}, {vr(pk,4)} offset:{q*8192 + g2*512}"); LG.issue("ow")
            return
        if opt["r16"]:
            e(f"buffer_store_dwordx4 {vr(pk,4)}, v{vHS if g2 else vL16}, {srd(sH)}, s{so} offen offset:{(q%2)*2048} {opt['hsaux'].replace('-','')}"); VM.issue("hst")
            return
        e(f"buffer_store_dwordx4 {vr(pk,4)}, v{vHS}, {srd(sH)}, s{so} offen offset:{g2*512 + (q%2)*2048} {opt['hsaux'].replace('-','')}"); VM.issue("hstA" if opt["ab"] and q < 2 else "hst")
        if opt["hs2"]:
            e(f"buffer_store_dwordx4 {vr(pk,4)}, v{vHS}, {srd(sH)}, s{so} offen offset:{g2*512 + (q%2)*2048} {opt['hs2'].replace('-','')}"); VM.issue("hst")
    PEND.append(st_)
    if bi >= opt["sl"]:
        while PEND: PEND.pop(0)()
if opt["st0"]:
    e(f"s_cmp_lt_u32 s{sW}, {opt['st0']}")
    e(f"s_cselect_b32 s{sHS}, s{sHS}, {HREC}")
    e(f"s_cselect_b32 s{sHS2}, s{sHS2}, {HREC}")
if opt["r16"]:
    for i in range(12):
        mfma16(1, i)
        if opt["rfs"] == 10 and i == 4: VM.wait("rst"); flag_store(sRFL, opt["rpk"] // 4)
else:
    for q in range(3):
        for kk in range(2): mfma1(1, kk, q)
    e("s_nop 7")
stamp(k=4)
if opt["sts"] == 4: VM.drain(); stamp(k=4)
def cnt_add(tag, off):
    VM.wait(tag)
    e("s_mov_b64 exec, 1")
    e(f"ds_add_rtn_u32 v{vT+1}, v{vCN}, v{vONE} offset:{off}")
    e("s_mov_b64 exec, -1")
def cnt_flag(add):
    e("s_waitcnt lgkmcnt(0)"); LG.q = []
    e(f"v_readfirstlane_b32 s{sT0}, v{vT+1}")
    e(f"s_add_u32 s{sT1}, s{sFLG}, {add}")
    e(f"s_cmp_eq_u32 s{sT0}, 3")
    e(f"s_cselect_b32 s{sT1}, s{sT1}, {HREC}")
    flag_store(sT1)
def silu_mix():
    P = opt["sil"] == 1
    T = []; N = []
    def ln(t): return lambda: e(t)
    def mulA(b):
        a0 = vACC1 + 8*b; tt = vS + (b % 2) * 8
        if P: return [(f"m{b}{r}", [], ln(f"v_pk_mul_f32 {vr(tt+r,2)}, {vr(a0+r,2)}, s[{sPK}:{sPK+1}]")) for r in range(0, 8, 2)]
        return [(f"m{b}{r}", [], ln(f"v_mul_f32 v{tt+r}, s{sL2E}, v{a0+r}")) for r in range(8)]
    def add(b):
        tt = vS + (b % 2) * 8
        if P: return [(f"a{b}{r}", [f"e{b}{r+1}"], ln(f"v_pk_add_f32 {vr(tt+r,2)}, {vr(tt+r,2)}, 1.0 op_sel_hi:[1,0]")) for r in range(0, 8, 2)]
        return [(f"a{b}{r}", [f"e{b}{r}"], ln(f"v_add_f32 v{tt+r}, 1.0, v{tt+r}")) for r in range(8)]
    def fin(b):
        a0 = vACC1 + 8*b; tt = vS + (b % 2) * 8; pk = vRF + b * 4
        q, g2 = b // 2, b % 2
        m = []
        for r in range(0, 8, 2):
            if P: m.append([(f"f{b}{r}", [f"r{b}{r+1}"], ln(f"v_pk_mul_f32 {vr(tt+r,2)}, {vr(a0+r,2)}, {vr(tt+r,2)}"))])
            else: m.append([(f"f{b}{r+1-z}", [f"r{b}{r+z}"], ln(f"v_mul_f32 v{tt+r+z}, v{a0+r+z}, v{tt+r+z}")) for z in range(2)])
        c = [(f"c{b}{r}", [f"f{b}{2*r}"], ln(f"v_cvt_pk_bf16_f32 v{pk+r}, v{tt+2*r}, v{tt+2*r+1}")) for r in range(4)]
        def st_():
            e(f"buffer_store_dwordx4 {vr(pk,4)}, v{vHS}, {srd(sH)}, s{sHS if q < 2 else sHS2} offen offset:{g2*512 + (q%2)*2048} {opt['hsaux'].replace('-','')}"); VM.issue("hst")
        return m[0] + m[1] + [c[0]] + m[2] + [c[1]] + m[3] + [c[2], c[3], (f"s{b}", [], st_)]
    N += mulA(0)
    for b in range(6):
        tt = vS + (b % 2) * 8
        T += [(f"e{b}{r}", [f"m{b}{r & ~1 if P else r}"], ln(f"v_exp_f32 v{tt+r}, v{tt+r}")) for r in range(8)]
        T += [(f"r{b}{r}", [f"a{b}{r & ~1 if P else r}"], ln(f"v_rcp_f32 v{tt+r}, v{tt+r}")) for r in range(8)]
        N += add(b)
        if b < 5: N += mulA(b + 1)
        N += fin(b)
    done = {}
    I0 = len(O)
    def emit(x): x[2](); done[x[0]] = len(done)
    K = [int(c) for c in str(opt["silk"]).lstrip("x")]
    for i, t in enumerate(T):
        while not all(d in done for d in t[1]): emit(N.pop(0))
        emit(t)
        k = K[i % len(K)]
        while N and all(d in done and len(done) - done[d] >= opt["sild"] for d in N[0][1]) and (k > 0 or N[0][0][0] == "s"):
            if N[0][0][0] != "s": k -= 1
            emit(N.pop(0))
    for x in N: emit(x)
    O[I0-8:] = fix(O[I0-8:])
if opt["sil"]: silu_mix()
for q in range(3 if not opt["sil"] else 0):
    for g2 in range(2):
        bi = 2*q + g2
        if opt["ab"] and not opt["afs"] and bi == 4 + opt["afp"]: cnt_add("hstA", 0); stamp(k=7)
        if opt["rfs"] == 11 + bi: VM.wait("rst"); flag_store(sRFL, opt["rpk"] // 4)
        if bi >= len(EMU): silu_block(q, g2)
        if opt["ab"] and not opt["afs"] and bi == 4 + opt["afp"]: cnt_flag(0); stamp(k=7)
stamp(); stamp(k=4); stamp(k=8)
if not opt["spec"]:
    NT = (48 - len(W2L)) // 4
    PL = take(opt["post"])
    if opt["tpm"]:
        TL = []
        while len(TDONE) < NT: TL += tgroup_ops(len(TDONE))
        PL = merge(PL, TL) if opt["tpm"] == 1 else TL + PL
    for i, f in enumerate(PL):
        if D1 and i == opt["rpq"] and opt["rpl"] < 0: r_poll()
        if i == opt["pae"]:
            e(f"buffer_load_dword v{vPOLL}, v{vPA}, {srd(sH)}, s{sPOL} offen sc1"); VM.issue("poll")
        f()
    if opt["wb"]:
        VM.wait("hst")
        e("buffer_wbl2 sc1"); VM.issue("hst")
    if D1:
        while len(TDONE) < NT: tgroup(len(TDONE))
    stamp(k=8)
    if not opt["nhw"]: VM.wait("hst")
    stamp(k=8)
    stamp(k=4)
    if opt["sts"] == 4: VM.drain(); stamp(k=4)
    if opt["fb"]:
        if not opt["fpre"]:
            e(f"s_cmp_eq_u32 s{sW}, 0")
            e(f"s_cselect_b32 s{sFLG}, s{sFLG}, {HREC}")
        if opt["own"]: LG.drain()
        if OW: LG.drain()
        e("s_barrier")
    else:
        e("s_mov_b64 exec, 1")
        e(f"ds_add_rtn_u32 v{vT+1}, v{vCN}, v{vONE} offset:{4 if opt['ab'] else 0}")
        e("s_mov_b64 exec, -1")
        if opt["ab"]: e(f"s_add_u32 s{sFLG}, s{sFLG}, {FLB}")
        for f in take(opt["mid"]): f()
        e("s_waitcnt lgkmcnt(0)")
        e(f"v_readfirstlane_b32 s{sT0}, v{vT+1}")
        e(f"s_cmp_eq_u32 s{sT0}, {3 if opt['nopoll'] < 2 else 9}")
        e(f"s_cselect_b32 s{sFLG}, s{sFLG}, {HREC}")
    if opt["nopoll"] == 3: e(f"s_mov_b32 s{sPOL}, {HREC}")
    flag_store(sFLG)
    if opt["fb"] == 2: e("s_barrier")
    stamp(); stamp(k=3)
else:
    for f in take(opt["fw"]): f()
    VM.wait("hst")
    e(f"s_lshl_b32 s{sT0}, s{sW}, 15")
    e(f"s_add_u32 s{sFLG}, s{sFLG}, s{sT0}")
    flag_store(sFLG)
    stamp()
N0 = 1 if OW else 0
HL = [(p, n) for p in range(4) for n in range(N0, 12)]
def hreg(p, n): return vH + (p*(12-N0) + n - N0)*4
def park(p, j): return [vACC2, 196, 216, 240][p] + 4*j if (p, j) != (3, 4) else 236
def ofr(p): return vr(152+4*p, 4) if opt['owv'] else ar(240+4*p, 4)
def own_reads():
    for p in range(4):
        e(f"ds_read_b128 {ofr(p)}, v{vRW} offset:{32768 + 4096 + p*1024}"); LG.issue(f"or{p}"); ORD.append(f"or{p}")
def own_ops(js):
    def mk(p, j):
        def f():
            LG.wait(f"or{p}"); LG.wait("t0")
            if j == 4: VM.wait("w0")
            if opt["nom"]: return
            mf2(vr(park(p, j), 4), 0, j, ofr(p), '0')
        return f
    return [mk(p, j) for p in range(4) for j in js]
def hload():
    if HL:
        p, n = HL.pop(0)
        if opt["noh"] and (p*12+n) % opt["noh"]: return
        e(f"buffer_load_dwordx4 {vr(hreg(p, n), 4)}, v{vHB+p}, {srd(sH)}, s{sSIG+n} offen {opt['haux'].replace('-','')}"); VM.issue(f"h{p}_{n}")
def mark(v):
    if not opt["stamps"] or opt["sts"]: return
    i = NST[0]; NST[0] += 1
    e(f"s_add_u32 s{72+2*i}, s74, {v}"); e(f"s_addc_u32 s{73+2*i}, s75, 0")
ACI = []; OOL = []
def allc_load(late=False):
    if opt["acb"] == 2 or (opt["acp"] >= 0) != late: return
    if opt["acb"] == 3:
        e("s_cmp_eq_u32 s2, 0")
        e("s_cbranch_scc1 L_aclo")
        e("L_acl:")
        OOL.extend(["L_aclo:", f"s_mov_b32 s{sT0}, {FL}", f"buffer_load_dword v{vAV}, v{vAC}, {srd(sH)}, s{sT0} offen sc1", "s_branch L_acl"])
        return
    if opt["acb"]:
        e("s_cmp_lg_u32 s2, 0")
        e("s_cbranch_scc1 L_acl")
        e(f"s_mov_b32 s{sT0}, {FL}")
        e(f"buffer_load_dword v{vAV}, v{vAC}, {srd(sH)}, s{sT0} offen sc1")
        e("L_acl:")
        VM.q.insert(0, "allc") if False else None
        ACI.append(len(VM.q))
        return
    e("s_cmp_eq_u32 s2, 0")
    e(f"s_cselect_b32 s{sT0}, {FL if D1 else RFL}, s{sH+2}")
    e(f"buffer_load_dword v{vAV}, v{vAC}, {srd(sH)}, s{sT0} offen sc1"); VM.issue("allc")
def p0_block(ML, pre):
    ML = list(ML)
    TL = []
    while D1 and len(TDONE) < 12 - opt["tin"]: TL += tgroup_ops(len(TDONE))
    for f in (merge(ML[:pre], TL) if opt["tmix"] else ML[:pre] + TL): f()
    if OW:
        for f in own_ops([4]): f()
    del ML[:pre]
    if D1 and not opt["tin"]: LG.drain()
    stamp()
    for n in range(N0, 12):
        assert (0, n) not in HL and not any(getattr(f, "__defaults__", None) and f.__defaults__[0] == n for f in ML), n
        late = max((f"h0_{n}", f"w{n}"), key=lambda t: len(VM.q) - 1 - VM.q[::-1].index(t) if t in VM.q else -1)
        VM.wait(late)
        TL = []
        if D1:
            assert f"t{n}" in TDONE
            LG.wait(f"t{n}")
            if len(TDONE) < 12: TL = tgroup_ops(len(TDONE))
        if n == N0 or n == 6: stamp(k=2)
        cnt = (len(ML) + 11 - n) // (12 - n)
        pos = {1: [opt["hj"]], 2: [1, 3], 3: [0, 2, 4], 4: [0, 1, 2, 3], 5: [0, 1, 2, 3, 4], 0: []}[cnt]
        for j in range(5):
            c = "0" if n == 0 else vr(vACC2+4*j, 4)
            mf2(vr(vACC2+4*j,4), n, j, vr(hreg(0, n),4), c)
            if j in pos: ML.pop(0)()
            elif TL: TL.pop(0)()
        for f in TL: f()
    assert not ML and not W2L
TP = []
def tstep(n):
    if not opt["tfm"]: return
    if not TP and len(TDONE) <= n - opt["tfm"] and len(TDONE) < 12 - opt["tlate"]: TP.extend(tgroup_ops(len(TDONE)))
    if TP: TP.pop(0)()
def late_d1():
    W5 = w5_ops()
    cnt = 0
    vP2 = vAV if opt["pqd"] or opt["rcl"] else vPOLL
    def poll():
        stamp(k=3)
        e(f"buffer_load_dword v{vP2}, v{vPA}, {srd(sH)}, s{sPOL} offen sc1"); VM.issue("poll")
    OM = []
    if OW: own_reads(); OM = own_ops(range(4))
    while W2L:
        n = W2L[0].__defaults__[0]
        if W2L[0].__defaults__[1] == 0 and WDEP[n]:
            while WDEP[n] not in TDONE + ORD: tgroup(len(TDONE))
            LG.wait(WDEP[n])
        if len(W2L) == opt["pqd"]: poll()
        if cnt == opt["rpl"]: r_poll()
        take(1)[0](); cnt += 1
        if OM and cnt > opt["owp"]: OM.pop(0)()
        if opt["tfm"]: tstep(n)
        elif cnt % opt["tl"] == 0 and len(TDONE) < n - 2: tgroup(len(TDONE))
    if opt["owp"] < 50:
        for f in OM: f()
        OM = []
    if not opt["rcl"]: r_check()
    else: assert opt["w5d"] == 12
    WD = W5[12-opt["w5d"]:]; del W5[12-opt["w5d"]:]
    def om(i):
        if 50 <= opt["owp"] < 90 and i >= opt["owp"] - 50:
            for _ in range(2):
                if OM: OM.pop(0)()
    for i, f in enumerate(W5[:opt["w5p"]]): f(); tstep(12 + i // 4); om(i)
    if not opt["pqd"]: poll()
    for i, f in enumerate(W5[opt["w5p"]:]): f(); tstep(12 + (i + opt["w5p"]) // 4); om(i + opt["w5p"])
    for f in TP: f()
    for f in OM: f()
    stamp(k=3)
    while len(TDONE) < 12 - opt['tlate']: tgroup(len(TDONE))
    if opt["hid"]:
        e("s_branch L_hid")
        spin_slow("hp", vP2, vPA, sPOL)
        if opt["hid"] & 2:
            e("L_ac_c:")
            e(f"s_mov_b32 s{sT1}, {FL}")
            e(f"v_cmp_ne_u32 vcc, s{sTAG}, v{vAV}")
            e("s_cmp_eq_u64 vcc, 0")
            e(f"s_cbranch_scc1 L_ac_go")
            spin_slow("ac", vAV, vAC, sT1)
        if opt["al"]: e(".p2align 12")
        e("L_hid:")
    VM.wait("poll")
    stamp(k=3)
    stamp()
    if opt["hid"]: spin_fast("hp", vP2, "poll")
    else: spin_check("hp", vP2, vPA, "poll", sPOL, opt["nopoll"])
    stamp(); stamp(k=2); stamp(k=3)
    mark(1000)
    allc_load()
    if opt["c5"]:
        WDL.extend(WD); return
    ML = []; pre = 0
    for i in range(opt["hpre"] + 12 - N0):
        ML.append(hload)
        if WD and WD[0].__defaults__[0] == i: ML.append(WD.pop(0))
        if i == opt["hpre"] - 1: pre = len(ML)
    p0_block(ML, pre)
WDL = []
def late_path():
    if D1: return late_d1()
    if opt['skipw']: del W2L[-opt['skipw']:]
    if opt["sts"] == 6:
        stamp(k=6)
        i = 0
        while len(W2L) > opt["pollq"]:
            take(1)[0](); i += 1
            if i % 4 == 0 and i >= opt["dw"]:
                e(f"s_waitcnt vmcnt({opt['dw']})"); stamp(k=6)
    for f in take(max(0, len(W2L) - opt["pollq"])): f()
    stamp(k=3)
    if opt["sts"] == 3: VM.drain(); stamp(k=3)
    if opt["sts"] == 4: stamp(k=4); VM.drain(); stamp(k=4)
    if opt["sp"]:
        e(f"s_load_dword s6, s[12:13], s{sPOL} {opt['spg']}")
        e(f"s_add_u32 s{sT0}, s{sPOL}, 128")
        e(f"s_load_dword s7, s[12:13], s{sT0} {opt['spg']}")
        for f in take(len(W2L)): f()
        stamp(k=3)
        e("s_waitcnt lgkmcnt(0)")
        stamp(k=3)
        stamp()
        e(f"s_cmp_eq_u32 s6, s{sTAG}")
        e(f"s_cselect_b32 s6, s7, s6")
        e(f"s_cmp_eq_u32 s6, s{sTAG}")
        e("s_cbranch_scc1 L_hp_go")
        e(f"v_mov_b32 v{vPOLL}, s6")
        spin_check("hp", vPOLL, vPA, "poll", sPOL, opt["nopoll"])
    else:
        e(f"buffer_load_dword v{vPOLL}, v{vPA}, {srd(sH)}, s{sPOL} offen sc1"); VM.issue("poll")
        for f in take(len(W2L)): f()
        stamp(k=3)
        VM.wait("poll")
        stamp(k=3)
        stamp()
        spin_check("hp", vPOLL, vPA, "poll", sPOL, opt["nopoll"])
    stamp(); stamp(k=2); stamp(k=3)
    mark(1000)
    allc_load()
    p0_block([hload] * (opt["hpre"] + 12), opt["hpre"])
LATE = []
if opt["eq"]:
    import re
    for f in take(len(W2L) - opt["eq"]): f()
    e(f"buffer_load_dword v{vPOLL}, v{vPA}, {srd(sH)}, s{sPOL} offen sc1"); VM.issue("poll")
    for f in take(opt["ec"]): f()
    VM.wait("poll")
    e(f"v_cmp_ne_u32 vcc, s{sTAG}, v{vPOLL}")
    e("s_cmp_eq_u64 vcc, 0" if not opt["nopoll"] else "s_cmp_eq_u32 s2, s2")
    e("s_cbranch_scc0 L_late")
    sv = (list(VM.q), list(W2L), list(HL), NST[0])
    LATE = ["L_late:"] + capture(late_path) + ["s_branch L_p1"]
    endq, endn = list(VM.q), NST[0]
    VM.q, W2L[:], HL[:], NST[0] = sv
    stamp(); stamp(); stamp(k=2); mark(0)
    allc_load()
    m = re.match(r"h(\d+)w(\d+)", opt["eil"])
    ML = []; nh = 12; ws = take(len(W2L))
    while nh or ws:
        k = min(nh, int(m.group(1))); ML += [hload] * k; nh -= k
        k = int(m.group(2)); ML += ws[:k]; del ws[:k]
    ML += [hload] * opt["hpre"]
    p0_block(ML, opt["epre"])
    assert NST[0] == endn, (NST[0], endn)
    k = min(len(VM.q), len(endq))
    assert VM.q[-k:] == endq[-k:] and all(t.startswith("h1") for t in VM.q + endq), (VM.q, endq)
    if len(endq) > len(VM.q): VM.q = endq
    e("L_p1:")
elif opt["spec"]:
    allc_load()
    for f in take(len(W2L) - opt["wl"]): f()
    stamp(); stamp(); stamp(k=2); mark(1000)
    ws = take(len(W2L))
    p0_block([hload] * opt["hpre"] + merge(ws, [hload] * 12) if ws else [hload] * (opt["hpre"] + 12), opt["hpre"])
elif not opt["ab"] and not opt["dfw"]:
    late_path()
def allc_check():
    if opt["acb"] == 2: return
    if opt["hid"] & 2:
        assert "allc" not in VM.q
        e("s_cmp_eq_u32 s2, 0")
        e("s_cbranch_scc1 L_ac_c")
        e("L_ac_go:")
        return
    if opt["acb"] == 3:
        e("s_cmp_eq_u32 s2, 0")
        e("s_cbranch_scc1 L_aco")
        e("L_acb:")
        def body():
            e(f"s_mov_b32 s{sT1}, {FL}")
            spin_check("ac", vAV, vAC, "allc", sT1)
        OOL.extend(["L_aco:"] + capture(body) + ["s_branch L_acb"])
        return
    e("s_cmp_lg_u32 s2, 0")
    e("s_cbranch_scc1 L_ac_go")
    assert "allc" not in VM.q
    if D1: e(f"s_mov_b32 s{sT1}, {FL}")
    spin_check("ac", vAV, vAC, "allc", sT1 if D1 else None)
def phase2_new():
    B1, B2, MA = opt["b1"], opt["b2"], opt["madd"]
    for p in range(1, 4):
        ac = vACC2 + (p % 2) * 20
        pa = vACC2 + ((p-1) % 2) * 20
        slots = {(n, j): [] for n in range(12) for j in range(5)}
        if opt["wb64"]:
            for k in range(10):
                def w(k=k):
                    e(f"ds_write_b64 v{vRW if p < 3 else vRW2}, {vr(pa+2*k,2)} offset:{((p-1)%2)*32768 + (k//2)*1024 + (k%2)*8}")
                    LG.issue("red")
                i = 5*N0 + opt["wg0"] + k * opt["wgs"]
                assert i < 5 * min(B1, B2)
                slots[(i // 5, i % 5)].append(w)
        elif p > 0:
            PW = [(1, 0), (1, 2), (1, 4), (2, 1), (2, 3)]
            if opt["wq"]:
                q = str(opt["wq"]).lstrip("x")
                i0, di = int(q[2*p-2], 36), int(q[2*p-1], 36)
                PW = [((i0 + k*di) // 5, (i0 + k*di) % 5) for k in range(5)]
            for jj, pos in enumerate(PW):
                def w(jj=jj):
                    if D1: e(f"ds_write_b128 v{vRW if p < 3 else vRW2}, {vr(pa+4*jj,4)} offset:{((p-1)%2)*32768 + jj*1024}")
                    else: e(f"ds_write_b128 v{vRW}, {vr(pa+4*jj,4)} offset:{(p-1)*5120 + jj*1024}")
                    LG.issue("red")
                slots[(pos[0] + N0, pos[1])].append(w)
                assert pos[0] + N0 < (12, B1, B2)[p-1]
        def rd(pp, j, dst):
            def f():
                e(f"ds_read_b128 {vr(dst, 4)}, v{vRR+pp} offset:{j*1024}"); LG.issue(f"rr{pp}{j}")
            return f
        if p == 2:
            k = 0
            for j in range(5):
                for pp in range(2):
                    slots[(B1 + k // 5, k % 5)].append(rd(pp, j, vH + pp*20 + 4*j)); k += opt["rds"]
            assert B1 + 3 <= 8 or opt["wq"]
            for i in range(20):
                def a(i=i):
                    LG.wait(f"rr1{i//4}")
                    if OW and opt["ada"] == 7:
                        e(f"v_add_f32 v{pa+i}, v{vH+i}, v{vH+20+i}")
                        if i: e(f"v_add_f32 v{pa+i-1}, v{pa+i-1}, v{park(3, (i-1)//4) + (i-1)%4}")
                        if i == 19: e(f"v_add_f32 v{pa+i}, v{pa+i}, v{park(3, 4) + 3}")
                        return
                    if OW:
                        jt, r = i // 4, (i % 2) * 2
                        d = vr(pa + 4*jt + r, 2)
                        if i % 4 < 2: e(f"v_pk_add_f32 {d}, {vr(vH + 4*jt + r, 2)}, {vr(vH + 20 + 4*jt + r, 2)}")
                        else: e(f"v_pk_add_f32 {d}, {d}, {vr(park(3, jt) + r, 2)}")
                        return
                    e(f"v_add_f32 v{pa+i}, v{vH+i}, v{vH+20+i}")
                i2 = 5*opt["ad0"] + i * (60 - 5*opt["ad0"]) // 20
                assert i2 > 5*B1 + (2*(i//4) + 1)*opt["rds"]
                slots[(i2 // 5, i2 % 5)].append(a)
        if p == 3:
            for j in range(5): slots[(B2, j)].append(rd(2, j, vH + 4*j))
            if opt["smd"]:
                MA = -1
                for j in range(5):
                    for r in range(4):
                        def a(j=j, r=r):
                            LG.wait(f"rr2{j}")
                            e(f"v_add_f32 v{ac+4*j+r}, v{ac+4*j+r}, v{vH+4*j+r}")
                        i = (opt["smd"] + j) * 5 + j + 2 + r // 2 if opt["smd"] + 5 < 12 else opt["smd"] * 5 + 3 * j + (2*j) % 5 * 0 + 99
                        slots[(i // 5, i % 5)].append(a)
        K4 = opt["k4"] if p == 3 else 0
        if K4: MA = -1; I0 = len(O)
        for n in range(N0, 12 - (opt["k2"] if K4 else 0)):
            if (p == 2 and n == B1) or (p == 3 and n == B2):
                if p == 3: allc_check(); stamp(k=2)
                LG.drain(); e("s_barrier")
                if p == 3: stamp(k=2)
            VM.wait(f"h{p}_{n}")
            if p * 12 + n == opt["acp"]: allc_load(True)
            if p * 12 + n == opt["es"]:
                e(f"s_lshl_b32 s6, s{sMT}, 2")
                e(f"s_add_u32 s6, s6, s{sOWN}")
                e(f"s_mul_i32 s6, s6, {16*1280}")
                e(f"s_mul_i32 s7, s{sFT}, 160")
                e(f"s_add_u32 s6, s6, s7")
                e(f"s_cmp_lt_u32 s{sW}, {opt['ost']}")
                e(f"s_cselect_b32 s6, s6, 2621440")
                ax = opt['esaux'].replace('-', '')
                for b in range(2):
                    e(f"buffer_store_dwordx4 {vr(vH+40+4*b,4)}, v{vOUT}, {srd(sOUT)}, s6 offen offset:{64*b} {ax}"); VM.issue("es")
                e(f"buffer_store_dwordx2 {vr(vH+40,2)}, v{vOUT2}, {srd(sOUT)}, s6 offen offset:128 {ax}"); VM.issue("es")
            if n == N0 or (n == 6 and p < 3): stamp(k=2)
            def madd(j):
                LG.wait(f"rr2{j}")
                for r in range(4): e(f"v_add_f32 v{ac+4*j+r}, v{ac+4*j+r}, v{vH+4*j+r}")
            mid = p == 3 and n == MA
            if mid: e("s_nop 3"); madd(0)
            for j in range(5):
                c = "0" if n == 0 and p < 3 else vr(ac+4*j, 4)
                if OW and n == 1 and p < 3: c = vr(park(p, j), 4)
                if mid:
                    if j < 4: madd(j+1)
                    else: e("s_nop 0")
                if j < 4 or n < 12 - K4: mf2(vr(ac+4*j,4), n, j, vr(hreg(p, n),4), c)
                if j == opt["hj"]: hload()
                for f in slots[(n, j)]: f()
                if K4 and opt["a4"] and n == opt["a4"] and j < 4:
                    assert n > 12 - K4 and n > B2
                    LG.wait("rr24"); e(f"v_add_f32 v{ac+16+j}, v{ac+16+j}, v{vH+16+j}")
    if opt["k4"]:
        tile_tail()
        O[I0:] = fix(O[I0:])
    else: out_tail()
def tile_tail():
    K2, K4 = opt["k2"], opt["k4"]
    assert opt["bp"] and opt["t4"] and not HL
    ac = vACC2 + 20; pk = vH + 64
    ML = [(n, j) for g in ((0, 1), (2, 3)) for n in range(12 - K2, 12) for j in g] + [(n, 4) for n in range(12 - K4, 12)]
    def add(j):
        def mk(r):
            def f(): LG.wait(f"rr2{j}"); e(f"v_add_f32 v{ac+4*j+r}, v{ac+4*j+r}, v{vH+4*j+r}")
            return f
        return [mk(r) for r in range(4)]
    def ln(t): return lambda: e(t)
    def cvt(j): return [ln(f"v_cvt_pk_bf16_f32 v{pk+2*j+r}, v{ac+4*j+2*r}, v{ac+4*j+2*r+1}") for r in range(2)]
    def sw(b): return [ln(f"v_permlane32_swap_b32 v{pk+4*b+r}, v{pk+4*b+2+r}") for r in range(2)]
    def bp(b):
        def mk(r):
            def f(): e(f"ds_bpermute_b32 v{pk+16+4*b+r}, v{vL16b}, v{pk+4*b+r}"); LG.issue(f"bp{b}")
            return f
        return [mk(r) for r in (0, 2, 1, 3)]
    def st(b):
        def f():
            LG.wait(f"bp{b}")
            e(f"buffer_store_dwordx4 {vr(pk+16+4*b,4)}, v{vOUT}, {srd(sOUT)}, s{sOB} offen offset:{64*b} {opt['outaux']}")
        return [f]
    fd = opt["fd"]
    Qo = [(0, f) for f in ([] if opt["a4"] else add(4))] + [(fd - 1, f) for f in add(2) + add(3)]
    n23 = len(Qo)
    Qo += [(2*K2 + fd - 1, f) for f in add(0) + add(1) + cvt(0) + cvt(1) + sw(0) + bp(0)]
    Qo += [(4*K2 + fd - 1, f) for f in cvt(2) + cvt(3) + sw(1) + bp(1) + st(0)]
    done = 0
    for i, (n, j) in enumerate(ML):
        if i == 2*K2:
            while done < n23: Qo.pop(0)[1](); done += 1
        VM.wait(f"h3_{n}")
        mf2(vr(ac+4*j,4), n, j, vr(hreg(3, n),4), vr(ac+4*j,4))
        for _ in range(opt["fr"]):
            if Qo and Qo[0][0] <= i: Qo.pop(0)[1](); done += 1
    stamp(); stamp(k=2)
    for _, f in Qo: f()
    for f in cvt(4): f()
    for r in range(4):
        e(f"buffer_store_short{'_d16_hi' if r % 2 else ''} v{pk+8+r//2}, v{vOUT2}, {srd(sOUT)}, s{sOB2} offen offset:{128 + r*1280} {opt['outaux']}")
    st(1)[0]()
def out_tail():
    stamp(); stamp(k=2)
    if opt["enc"]: stamp(True)
    ac = vACC2 + 20
    pk = vH + 64
    def cvt(j):
        for r in range(2): e(f"v_cvt_pk_bf16_f32 v{pk+2*j+r}, v{ac+4*j+2*r}, v{ac+4*j+2*r+1}")
    def swp(b):
        e(f"v_permlane32_swap_b32 v{pk+4*b}, v{pk+4*b+2}")
        e(f"v_permlane32_swap_b32 v{pk+4*b+1}, v{pk+4*b+3}")
        if opt["enc"]:
            e("s_waitcnt lgkmcnt(0)")
            e(f"v_lshrrev_b32 v{vT+1}, 4, v{vL16}")
            for r in range(4):
                i = 4*b + r
                e(f"v_mov_b32 v{vT}, s{72+2*i}")
                e("s_mov_b32 exec_lo, 0")
                e(f"v_mov_b32 v{vT}, s{72+2*min(i+8, 14)}")
                e("s_mov_b32 exec_lo, -1")
                e(f"v_lshrrev_b32 v{vT}, v{vT+1}, v{vT}")
                e(f"v_bfi_b32 v{pk+4*b+r}, 1, v{vT}, v{pk+4*b+r}")
        if opt["ofk"]:
            e(f"buffer_store_dwordx4 {vr(pk+4*b,4)}, v{vL16b if b else vOUT}, {srd(sOUT)}, s{sOB} offen {opt['outaux']}"); return
        e(f"buffer_store_dwordx4 {vr(pk+4*b,4)}, v{vOUT}, {srd(sOUT)}, s{sOB} offen offset:{64*b} {opt['outaux']}")
    if opt["bp"]:
        assert not opt["enc"]
        def sw(b):
            e(f"v_permlane32_swap_b32 v{pk+4*b}, v{pk+4*b+2}")
            e(f"v_permlane32_swap_b32 v{pk+4*b+1}, v{pk+4*b+3}")
        def bp(b, n):
            for r in range(n):
                e(f"ds_bpermute_b32 v{pk+16+4*b+r}, v{vL16b}, v{pk+4*b+r}"); LG.issue(f"bp{b}")
        def st(b):
            LG.wait(f"bp{b}")
            if b < 2: e(f"buffer_store_dwordx4 {vr(pk+16+4*b,4)}, v{vOUT}, {srd(sOUT)}, s{sOB} offen offset:{64*b} {opt['outaux']}")
            else: e(f"buffer_store_dwordx2 {vr(pk+24,2)}, v{vOUT2}, {srd(sOUT)}, s{sOB2} offen offset:128 {opt['outaux']}")
        e("s_nop 3")
        if opt["t4"]:
            cvt(0); cvt(1); cvt(2); sw(0); cvt(3); bp(0, 4); sw(1); cvt(4); bp(1, 4)
            for r in range(4):
                e(f"buffer_store_short{'_d16_hi' if r % 2 else ''} v{pk+8+r//2}, v{vOUT2}, {srd(sOUT)}, s{sOB2} offen offset:{128 + r*1280} {opt['outaux']}")
            st(0); st(1)
            return
        cvt(0); cvt(1); cvt(2); sw(0); cvt(3); bp(0, 4); cvt(4); sw(1); bp(2, 2); bp(1, 4); st(0); st(2); st(1)
        return
    e("s_nop 3")
    cvt(0); cvt(1); cvt(2); swp(0); cvt(3); cvt(4); swp(1)
    e(f"buffer_store_dwordx2 {vr(pk+8,2)}, v{vOUT2}, {srd(sOUT)}, s{sOB2 if D1 else sOB} offen offset:128 {opt['outaux']}")
def phase2_c():
    B1, B2, MA = opt["b1"], opt["b2"], opt["madd"]
    hp = opt["hpre"]
    ML = []
    WD = list(WDL)
    for i in range(48):
        g = [hload]
        k = 12 - len(WD)
        if WD and (i >= opt["w5s"] + (k - (12 - len(WDL))) * opt["w5k"] or i >= 24 + k): g.append(WD.pop(0))
        ML.append(g)
    assert not WD
    TL = []
    while len(TDONE) < 12: TL += tgroup_ops(len(TDONE))
    pre = [f for g in ML[:hp] for f in g]
    if opt["rcl"]:
        assert len(pre) == hp
        pre.append(r_check)
    for f in merge(pre, TL): f()
    del ML[:hp]
    LG.drain()
    stamp()
    A5 = 240
    def wr(blk, jj, src):
        def f():
            e(f"ds_write_b128 v{vRW if blk < 2 else vRW2}, {src} offset:{(blk%2)*32768 + jj*1024}"); LG.issue("red")
        return f
    def rd(pp, j, dst):
        def f():
            e(f"ds_read_b128 {vr(dst, 4)}, v{vRR+pp} offset:{j*1024}"); LG.issue(f"rr{pp}{j}")
        return f
    for p in range(4):
        ac = vACC2 + (p % 2) * 20
        pa = vACC2 + ((p-1) % 2) * 20
        NM = [4, 4, 7, 5][p]
        slots = {(n, j): [] for n in range(12) for j in range(NM)}
        def put(i0, step, fs):
            for k, f in enumerate(fs):
                i = i0 + k * step
                slots[(i // NM, i % NM)].append(f)
        if p > 0:
            ws = [wr(p-1, jj, vr(pa+4*jj, 4)) for jj in range(4)]
            if p == 3: ws += [wr(b, 4, ar(A5+4*b, 4)) for b in range(3)]
            put(NM, 2, ws)
            if p == 3: assert NM + 2*6 < B2 * NM
        if p == 2:
            assert B1 >= 4
            put(B1 * NM, 1, [rd(pp, j, vH + pp*48 + 4*j) for j in range(4) for pp in range(2)])
            def mk(i):
                def a():
                    LG.wait(f"rr1{i//4}")
                    e(f"v_add_f32 v{pa+i}, v{vH+i}, v{vH+48+i}")
                return a
            put(8 * NM, 1, [mk(i) for i in range(16)])
        if p == 3:
            put(B2 * NM, 1, [rd(pp, 4, vH + 16 + 4*pp) for pp in range(3)] + [rd(2, j, vH + 4*j) for j in range(4)])
            def mk(i):
                def a():
                    LG.wait(f"rr{1 + i//4}4")
                    e(f"v_add_f32 v{vH+16+i%4}, v{vH+16+i%4}, v{vH+20+i}")
                return a
            put((MA - 2) * NM, 1, [mk(i) for i in range(8)])
            assert MA - 2 >= B2 + 2
        for n in range(12):
            if (p == 2 and n == B1) or (p == 3 and n == B2):
                if p == 3: allc_check(); stamp(k=2)
                LG.drain(); e("s_barrier")
                if p == 3: stamp(k=2)
            VM.wait(f"h{p}_{n}")
            if n == 0 or (n == 6 and p < 3): stamp(k=2)
            def madd(j):
                LG.wait(f"rr2{j}")
                for r in range(4): e(f"v_add_f32 v{ac+4*j+r}, v{ac+4*j+r}, v{vH+4*j+r}")
            mid = p == 3 and n == MA
            if mid: e("s_nop 3"); madd(0)
            g = ML.pop(0) if ML else []
            for j in range(NM):
                if j < 4 or p == 3:
                    d = vr(ac+4*j, 4); b = p
                    c = "0" if n == 0 and (p < 3 or j == 4) else d
                else:
                    b = (j - 2) % 3
                    d = ar(A5+4*b, 4); c = "0" if n == 0 else d
                    assert not any(f is not hload and f.__defaults__[0] == n for gg in ML + [g] for f in gg), n
                    VM.wait(f"w{n}")
                if mid:
                    if j < 4: madd(j+1)
                    else: e("s_nop 0")
                e(f"v_mfma_f32_16x16x32_bf16 {d}, {ar(n*20+4*min(j,4),4)}, {vr(vH+(b*12+n)*4,4)}, {c}")
                if g and j in (opt["hj"], 3): g.pop(0)()
                for f in slots[(n, j)]: f()
            assert not g
    out_tail()
def phase2_ab():
    OA = opt["owna"]
    NE = opt["ne"]; NL = 12 - NE
    items = [(p, n) for p in range(3) for n in range(NE)] + [(3, n) for n in range(OA)]
    NA = len(items)
    items += [(p, n) for p in range(3) for n in range(NE, 12)] + [(3, n) for n in range(OA, 12)]
    NS = 36; vH2 = 112
    acc = lambda p, j: 24 + 20*p + 4*j
    hp = opt["hpre"]
    HI = list(range(48))
    seen = set()
    I0 = 0
    def own_mf(k):
        if not opt["own"] or k != opt["omp"]: return
        VM.wait("w0")
        for p in range(4):
            LG.wait(f"or{p}")
            for j in range(5):
                e(f"v_mfma_f32_16x16x32_bf16 {vr(acc(p,j),4)}, {ar(4*j,4)}, {vr(vH2+p*4,4)}, 0")
    if opt["own"]:
        items = [(p, 0) for p in range(4)] + [(p, n) for p in range(4) for n in range(1, 12)]
        HI = HI[4:]; I0 = 4; seen = {0, 1, 2, 3}
        for p in range(4):
            e(f"ds_read_b128 {vr(vH2+p*4, 4)}, v{vOW+2} offset:{p*1024}"); LG.issue(f"or{p}")
    def hl():
        if not HI: return
        i = HI.pop(0); p, n = items[i]
        if i == NA and not opt["dfw"]:
            spin_check("hpb", vPOLL, vPA, "pollB", sPOL, opt["nopoll"]); stamp(k=7)
        e(f"buffer_load_dwordx4 {vr(vH2 + (i % NS)*4, 4)}, v{vHB+p}, {srd(sH)}, s{sSIG+n} offen {opt['haux'].replace('-','')}"); VM.issue(f"h{i}")
    if opt["pae"] < 0:
        for f in take(max(0, len(W2L) - opt["pa"])): f()
        e(f"buffer_load_dword v{vPOLL}, v{vPA}, {srd(sH)}, s{sPOL} offen sc1"); VM.issue("poll")
        for f in take(opt["ec"]): f()
    own_mf(0)
    VM.wait("poll")
    stamp(); stamp(k=7)
    spin_check("hp", vPOLL, vPA, "poll", sPOL, opt["nopoll"])
    stamp(); stamp(k=2); stamp(k=7)
    e(f"s_add_u32 s{sPOL}, s{sPOL}, {FLB}")
    allc_load()
    for _ in range(hp): hl()
    for f in take(opt["wsk"]): f()
    own_mf(1)
    stamp()
    slots = {(i, j): [] for i in range(48) for j in range(5)}
    if opt["own"]: NA = 37
    L3 = NA + 3*NL
    for p in range(3):
        i0 = NA + NL*(p+1) if NL else NE*(p+1)
        if opt["own"]: i0 = 4 + 11*(p+1)
        for jj, (di, j) in enumerate([(1, 0), (1, 2), (1, 4), (2, 1), (2, 3)]):
            def w(jj=jj, p=p):
                e(f"ds_write_b128 v{vRW}, {vr(acc(p,jj),4)} offset:{p*5120 + jj*1024}"); LG.issue("red")
            slots[(i0 + di, j)].append(w)
    IB = L3 + opt["rb"]
    k = 0
    rest = 48 - IB
    assert rest >= 1
    rds = []
    for j in range(5):
        for pp in range(3):
            def f(pp=pp, j=j):
                e(f"ds_read_b128 {vr(acc(pp,j), 4)}, v{vRR+pp} offset:{j*1024}"); LG.issue(f"rr{j}")
            rds.append(f)
    per = 1 if rest >= 7 else 3
    for k, f in enumerate(rds): slots[(IB + k // per // 5, k // per % 5)].append(f)
    adds = []
    for j in range(5):
        for pp in (1, 2):
            for r in (0, 2):
                def a(j=j, pp=pp, r=r):
                    LG.wait(f"rr{j}")
                    if opt["epk"]: e(f"v_pk_add_f32 {vr(acc(0,j)+r,2)}, {vr(acc(0,j)+r,2)}, {vr(acc(pp,j)+r,2)}")
                    else:
                        for z in range(2): e(f"v_add_f32 v{acc(0,j)+r+z}, v{acc(0,j)+r+z}, v{acc(pp,j)+r+z}")
                adds.append(a)
    MA = 47 if rest >= 7 else None
    if MA:
        a0 = (MA - 3) * 5 - 5
        for k, f in enumerate(adds): slots[((a0 + k) // 5, (a0 + k) % 5)].append(f)
    for i, (p, n) in enumerate(items):
        if i < I0: continue
        if i == IB:
            allc_check(); stamp(k=2)
            LG.drain(); e("s_barrier")
            stamp(k=2)
        assert i not in HI and not any(f.__defaults__[0] == n for f in W2L), (i, n)
        late = max((f"h{i}", f"w{n}"), key=lambda t: len(VM.q) - 1 - VM.q[::-1].index(t) if t in VM.q else -1)
        VM.wait(late)
        if i % 8 == 0: stamp(k=2)
        def madd(j):
            if opt["epk"]:
                for r in (0, 2): e(f"v_pk_add_f32 {vr(acc(3,j)+r,2)}, {vr(acc(3,j)+r,2)}, {vr(acc(0,j)+r,2)}")
            else:
                for r in range(4): e(f"v_add_f32 v{acc(3,j)+r}, v{acc(3,j)+r}, v{acc(0,j)+r}")
        mid = i == MA
        if mid: e("s_nop 3"); madd(0)
        for j in range(5):
            c = vr(acc(p,j), 4) if p in seen else "0"
            if mid:
                if j < 4: madd(j+1)
                else: e("s_nop 1")
            e(f"v_mfma_f32_16x16x32_bf16 {vr(acc(p,j),4)}, {ar(n*20+4*j,4)}, {vr(vH2+(i % NS)*4,4)}, {c}")
            if j == opt["hj"]: hl()
            if j == 3 and i % opt["wr"] == 0:
                for f in take(1): f()
            if j == 4 and i == opt["pb"] and not opt["dfw"]:
                e(f"buffer_load_dword v{vPOLL}, v{vPA}, {srd(sH)}, s{sPOL} offen sc1"); VM.issue("pollB")
            for f in slots[(i, j)]: f()
        seen.add(p)
    stamp(); stamp(k=2); stamp(k=7)
    if opt["enc"]: stamp(True)
    ac = acc(3, 0)
    pk = vH2 + 64
    if not MA:
        for f in adds: f()
        for j in range(5): madd(j)
    def cvt(j):
        for r in range(2): e(f"v_cvt_pk_bf16_f32 v{pk+2*j+r}, v{ac+4*j+2*r}, v{ac+4*j+2*r+1}")
    def swp(b):
        e(f"v_permlane32_swap_b32 v{pk+4*b}, v{pk+4*b+2}")
        e(f"v_permlane32_swap_b32 v{pk+4*b+1}, v{pk+4*b+3}")
        if opt["enc"]:
            e("s_waitcnt lgkmcnt(0)")
            e(f"v_lshrrev_b32 v{vT+1}, 4, v{vL16}")
            for r in range(4):
                i = 4*b + r
                e(f"v_mov_b32 v{vT}, s{72+2*i}")
                e("s_mov_b32 exec_lo, 0")
                e(f"v_mov_b32 v{vT}, s{72+2*min(i+8, 14)}")
                e("s_mov_b32 exec_lo, -1")
                e(f"v_lshrrev_b32 v{vT}, v{vT+1}, v{vT}")
                e(f"v_bfi_b32 v{pk+4*b+r}, 1, v{vT}, v{pk+4*b+r}")
        e(f"buffer_store_dwordx4 {vr(pk+4*b,4)}, v{vOUT}, {srd(sOUT)}, s{sOB} offen offset:{64*b} {opt['outaux']}")
    e("s_nop 3")
    cvt(0); cvt(1); cvt(2); swp(0); cvt(3); cvt(4); swp(1)
    e(f"buffer_store_dwordx2 {vr(pk+8,2)}, v{vOUT2}, {srd(sOUT)}, s{sOB} offen offset:128 {opt['outaux']}")
assert opt["tail"]
if opt["ab"] or opt["dfw"]: phase2_ab()
elif opt["c5"]: phase2_c()
else: phase2_new()
e(f"s_or_b32 s{sT0}, s{sW}, s2")
e(f"s_cmp_lg_u32 s{sT0}, 0")
e("s_cbranch_scc1 L_nobump")
e(f"s_add_u32 s{sE}, s{sE}, 1")
e(f"v_mov_b32 v{vT}, s{sE}")
e(f"s_mov_b32 s{sT0}, {EP}")
e("s_mov_b64 exec, 1")
e(f"buffer_store_dword v{vT}, off, {srd(sH)}, s{sT0}")
e("s_mov_b64 exec, -1")
e("L_nobump:")
if opt["enc"]: sys.stderr.write(f"enc stamps {NST[0]}\n")
if opt["stamps"] and not opt["enc"]:
    e("s_waitcnt vmcnt(0)")
    stamp(k=-1); stamp(True)
    ns = NST[0]
    assert 72 + 2*ns <= 102
    e("s_waitcnt lgkmcnt(0)")
    if opt["amp"] >= 0:
        if opt["ampw"] >= 0:
            e(f"s_cmp_lg_u32 s2, {opt['ampw']}")
            e("s_cbranch_scc1 L_end")
        a = opt["amp"] if opt["amp"] < ns else ns - 2
        e(f"s_sub_u32 s60, s{72+2*a}, s{72+2*opt['ampb']}")
        e(f"s_mul_i32 s60, s60, {opt['ampk']}")
        e(f"s_lshr_b32 s60, s60, {opt['amps']}")
        e(f"s_min_u32 s60, s60, 50000")
        e(f"s_mov_b32 s61, 200000")
        e("L_amp:")
        e("s_memrealtime s[62:63]")
        e("s_sub_u32 s61, s61, 1")
        e("s_cbranch_scc1 L_end")
        e("s_waitcnt lgkmcnt(0)")
        e(f"s_sub_u32 s62, s62, s{72+2*(ns-1)}")
        e("s_cmp_lt_u32 s62, s60")
        e("s_cbranch_scc1 L_amp")
        e("s_branch L_end")
    if opt["rt"]:
        e(f"s_lshl_b32 s{sT0}, s2, 2")
        e(f"s_add_u32 s{sT0}, s{sT0}, s{sW}")
        e(f"s_mul_i32 s{sT0}, s{sT0}, {ns*8}")
    else:
        e(f"s_cmp_lg_u32 s{sW}, {opt['stamps']-1}")
        e("s_cbranch_scc1 L_end")
        e(f"s_mul_i32 s{sT0}, s2, {ns*8}")
    e("s_mov_b64 exec, 1")
    e(f"s_add_u32 s{sT0}, s{sT0}, {0x8000000 - (opt['wso'] << 20)}")
    e(f"v_mov_b32 v{vT}, s{sT0}")
    for i in range(ns):
        e(f"v_mov_b32 v24, s{72+2*i}"); e(f"v_mov_b32 v25, s{73+2*i}")
        e(f"global_store_dwordx2 v{vT}, v[24:25], s[12:13] offset:{i*8}"); e("s_nop 1")
    sys.stderr.write(f"nstamps {ns}\n")
LATE += OOL
if LATE:
    e("s_endpgm")
    O.extend(LATE)
e("L_end:")

hdr = f"""; FFN out = silu(x @ w1) @ w2, one launch, 256 workgroups (one per CU).
; @launch grid=(256,1,1) block=(256,1,1) lds=163840
.amdgcn_target "amdgcn-amd-amdhsa--gfx950"
.text
.globl {NAME}
.p2align 8
.type {NAME},@function
{NAME}:
"""
ftr = f"""s_endpgm
.section .rodata,"a"
.p2align 6
.amdhsa_kernel {NAME}
  .amdhsa_next_free_vgpr 512
  .amdhsa_next_free_sgpr 102
  .amdhsa_accum_offset 256
  .amdhsa_group_segment_fixed_size 0
  .amdhsa_kernarg_size 48
  .amdhsa_user_sgpr_count 2
  .amdhsa_user_sgpr_kernarg_segment_ptr 1
  .amdhsa_system_sgpr_workgroup_id_x 1
.end_amdhsa_kernel
"""
def sizes(lines):
    import subprocess, tempfile, os, re
    d = tempfile.mkdtemp()
    t = hdr + "\n".join(f"Z{i}:\n{l}" for i, l in enumerate(lines)) + "\nL_w1x:\n" + ftr
    for k in range(1, 4):
        if f"L_w{k}:" not in lines: t = t.replace(f"L_w{k}\n", "L_w1x\n")
    open(d + "/a.s", "w").write(t)
    r = subprocess.run(["clang", "-x", "assembler", "-target", "amdgcn-amd-amdhsa", "-mcpu=gfx950", "-c", d + "/a.s", "-o", d + "/a.o"], capture_output=True, text=True)
    assert r.returncode == 0, r.stderr
    import struct
    b = open(d + "/a.o", "rb").read()
    shoff = struct.unpack_from("<Q", b, 0x28)[0]; shn = struct.unpack_from("<H", b, 0x3c)[0]
    sec = [struct.unpack_from("<IIQQQQIIQQ", b, shoff + 64*i) for i in range(shn)]
    sy = [x for x in sec if x[1] == 2][0]; st = sec[sy[6]]
    ad = {}
    for i in range(sy[5] // 24):
        n, _, _, _, v, _ = struct.unpack_from("<IBBHQQ", b, sy[4] + 24*i)
        nm = b[st[4]+n:b.index(b"\0", st[4]+n)].decode()
        if re.fullmatch(r"Z\d+", nm): ad[int(nm[1:])] = v
    return ad
if opt["wu"] >= 0:
    assert opt["al"]
    for k in range(1, 4):
        ad = sizes(O)
        i = min(j for j in range(len(O)) if ad[j] >= 4096*k and not O[j].startswith(".") and not O[j].endswith(":"))
        O[i:i] = [f"L_w{k}:", "s_cbranch_execz L_wr"]
        sys.stderr.write(f"page {k}: {O[i-1]} | {O[i+2]}\n")
    if opt["stamps"]: sys.stderr.write(f"nstamps {NST[0]}\n")
body = "\n".join(("" if l.endswith(":") else "    ") + l.rstrip() for l in O)
open(sys.argv[1], "w").write(hdr + body + "\n" + ftr)
```

```python
import sys
from haz import fix
NAME = "standalone__dense_activation_silu__prompt_kernel"
opt = dict(ampc=2000, ampa=0, ampx=-1, ampl=-1, amp=-1, ampb=1, ampk=4, amps=0, ampw=-1, tpre=0, fpre=0, rpl=-1, rtab='', ttab='', pfs='', skd=0, sk5=0, al=0, wu=-1, pat='', pat1='', hid=0, r16=0, ro=0, sil=0, sild=2, silk='1', e7=0, e7a=10, e7b=10, fp='', qm=0, swab=0, wtc=0, rmap=0, nw=-1, wx='', wxp=99, acb=0, acp=-1, wq='', rds=1, ad0=8, t4=0, k4=0, k2=3, fr=3, fd=2, a4=0, bp=0, ofk=0, w5aux='sc1', rpk=0, pl2=7, nom=0, owv=1, ow=0, owp=2, ada=7, wb64=0, wg0=3, wgs=2, smd=0, dst=-1, dn=4, st0=0, nhw=0, wtx=0, tfm=0, tpm=0, tsil=0, c5=0, w5s=8, w5k=2, rcl=0, w5d=0, tin=0, sw=-1, sws=-1, swp=0, swn=15, ems=1, pqd=0, tlate=0, tmix=1, wt=-1, wts=-1, wtp=99, wth=0, wtaux='', d1=0, d7=0, w5p=4, tl=8, rpq=0, waux='', es=-1, esaux='sc1', ot=-1, otm=1, enc=0, w0p=0, own=0, omp=0, dfw=0, ne=8, clr=-1, clrs='', spec=0, fw=12, wl=0, rsp=99, rrp=0, fb=0, tch=0, la=4, tp0=0, tpos=8, th=1, ns=3, n7=0, rcs=8, epk=1, fk=0, ost=0, pae=-1, wsk=0, afs=0, ab=0, afp=0, pa=20, pb=6, wr=1, owna=0, rb=4, skipw=0, m16=0, rtm=0, po="", rsaux="sc1", emu="", emv=1, fs=128, dw=8, eq=0, ec=4, epre=16, eil="h12w9", pfm=3, stamps=0, rot=1, rot2=1, pf=1, outaux="", map=2, raux="nt", xaux="", haux="sc1", hsaux="sc1", hs2="", wb=0, wso=0, sp=0, spg="", nord=0, nomf1=0, norp=0, pk=1, tail=1, b1=4, b2=4, madd=8, pt=0, fst=0, tab="x037", nost=0, novalu=0, nomf2=0, noh=0, hj=1, w2aux="sc1", w1aux="",
           sa=0, ma=10, sb=0, mb=10, mx=0, n8=8, n9=8, nb=0, post=0, pollq=8, hpre=8, sep=0, sts=0, rpos=0, rls=0, rjs=2, rpp=0, rps=7, rck=0, nopoll=0, rfs=4, sl=0, head=50, nf0=4, pre3=0, rt=0, own2=2, ntst=10, mid=2, xlin=0, nor=0)
for a in sys.argv[2:]:
    k, v = a.split("=")
    assert k in opt, k
    opt[k] = int(v) if v.lstrip("-").isdigit() else v.replace("_", " ")
if opt["own"]: opt["dfw"] = 1; opt["ne"] = 12; assert opt["fb"] and opt["own2"] == 2
D1 = opt['d1']
RPW = opt['rfs'] >= 10
if RPW: assert D1 and opt['rpk']
R2 = '2' in str(opt['rtab'])
if R2: assert D1 and opt['rpk'] and not RPW and not opt['ow']
OW = opt['ow']
if OW: assert D1 and opt['own2'] == 2 and opt['post'] <= 12 and not opt['c5'] and not opt['w5d'] and not opt['smd'] and str(opt['nb']) == '0'
if D1: assert not (opt['own'] or opt['ab'] or opt['dfw'] or opt['spec'] or opt['eq'] or opt['tch'] or opt['po']) and opt['fb'] and opt['ns'] == 3
O = []
def e(s): O.append(s)
NST = [0]
def stamp(rt=False, k=0):
    if not opt["stamps"]: return
    if not rt and NST[0] > 1 and k != opt["sts"] and k != -1: return
    i = NST[0]; NST[0] += 1
    e(f"s_memrealtime s[{72+2*i}:{73+2*i}]" if rt or opt["rt"] or opt["rtm"] else f"s_memtime s[{72+2*i}:{73+2*i}]")

class Q:
    def __init__(s, name, mx): s.name = name; s.mx = mx; s.q = []
    def issue(s, tag): s.q.append(tag)
    def wait(s, tag):
        if tag not in s.q: return
        i = len(s.q) - 1 - s.q[::-1].index(tag)
        n = min(len(s.q) - 1 - i, s.mx)
        e(f"s_waitcnt {s.name}({n})")
        s.q = s.q[len(s.q)-n:] if n else []
    def drain(s):
        e(f"s_waitcnt {s.name}(0)"); s.q = []
VM = Q("vmcnt", 63); LG = Q("lgkmcnt", 15)

FL = 0x600000; EP = 0x608000; RFL = 0x610000; W2F = 0x620000; HREC = 0x800000
if opt['spec']: FL = 0x800000; HREC = 0x820000
FS = opt["fs"]
if FS > 128: FL = 0x800000; HREC = FL + 256 * FS
FLB = 0x200000
if opt["ab"]: HREC = 0x808000
RED = 98304; RB = 98304 if opt['ns'] == 3 else 131072; CNT = 159744
NSL = opt['ns']
sX, sW1, sW2, sOUT, sH = 16, 20, 24, 28, 32
(sW, sMT, sFT, sKX, sKW, sXB, sWB, sXE, sM0, sT0, sT1, sE, sTAG, sHS, sHS2, sFLG, sPOL, sW2B, sOWN, sROT,
 sRS, sRD, sWO, sL2E) = range(36, 60)
sSIG = 60
sPK = 4; sOB = 3; sRFL = 14; sSPIN = 15
vL16 = 1; vL16b = 2; vOUT = 3; vOUT2 = 4; vRW = 5; vRP = 6; vHS = 7
vPOLL = 8; vL4 = 9; vPA = 19
vRR = 10
vHB = 13
vT = 17
vCN = 20; vONE = 21; vAV = 22; vAC = 23
vDX = 24; vDW = 26; vDR = 32
vA = 34; vB = 36
vRA = 44
vTM = 46
vACC1 = 64; vAF = 112; vBF = 160; vS = 176; vRF = 192
vWD = 56; vWT = 60; sW5B = 6; sOB2 = 7; vRW2 = 20
vH = 64; vACC2 = 24; vOW = 240; OWN = 32768; sHS1 = 6
def mf2(d, n, j, b, c):
    a = ar(n*20+4*j, 4)
    if j == 4 and opt["t4"]: a, b = b, a
    e(f"v_mfma_f32_16x16x32_bf16 {d}, {a}, {b}, {c}")
def srd(r): return f"s[{r}:{r+3}]"
def vr(r, n): return f"v[{r}:{r+n-1}]"
def ar(r, n): return f"a[{r}:{r+n-1}]"
def capture(fn):
    global O
    sv = O; O = []; fn(); r = O; O = sv; return r

e("s_cmp_ge_u32 s2, 256")
e("s_cbranch_scc1 L_end")
stamp(True); stamp()
e("s_load_dwordx8 s[4:11], s[0:1], 0")
e("s_load_dwordx2 s[12:13], s[0:1], 40")
L, Wv = vTM, vTM+1
t0, t1, t2, t3 = vTM+2, vTM+3, vTM+4, vTM+5
e(f"v_and_b32 v{L}, 63, v0")
e(f"v_lshrrev_b32 v{Wv}, 6, v0")
e(f"v_lshlrev_b32 v{vL16}, 4, v{L}")
e(f"v_readfirstlane_b32 s{sW}, v{Wv}")
if opt["pf"]:
    e("s_getpc_b64 s[14:15]")
    e("L_pc:")
    if opt["pfs"]:
        tb = (str(opt["pfs"]).lstrip("x") + "0" * 32)[:32]
        tv = sum(int(c) << (2*i) for i, c in enumerate(tb))
        e(f"s_lshr_b32 s{sT0}, s2, 2")
        e(f"s_and_b32 s{sT0}, s{sT0}, 62")
        if tv >> 32:
            e(f"s_mov_b32 s{sSIG}, {tv & 0xffffffff}")
            e(f"s_mov_b32 s{sSIG+1}, {tv >> 32}")
            e(f"s_lshr_b64 s[{sSIG}:{sSIG+1}], s[{sSIG}:{sSIG+1}], s{sT0}")
        else:
            e(f"s_lshr_b64 s[{sSIG}:{sSIG+1}], {tv}, s{sT0}")
        e(f"s_and_b32 s{sT0}, s{sSIG}, 3")
    else:
        e(f"s_lshr_b32 s{sT0}, s2, 3")
        e(f"s_and_b32 s{sT0}, s{sT0}, {opt['pfm']}")
    e(f"s_lshl_b32 s{sT0}, s{sT0}, 12")
    e(f"v_lshl_add_u32 v{t0}, v0, 4, s{sT0}")
    e(f"v_min_u32 v{t0}, L_end-L_pc-16, v{t0}")
    e(f"global_load_dwordx4 v[252:255], v{t0}, s[14:15]")
    VM.issue("pf")
fa = opt["map"]
e(f"s_and_b32 s{sT0}, s2, 7")
e(f"s_lshr_b32 s{sT1}, s2, 3")
e(f"s_and_b32 s{sFT}, s{sT1}, {(1<<fa)-1}")
e(f"s_lshr_b32 s{sMT}, s{sT1}, {fa}")
if opt["rot"] == 3:
    tb = str(opt["tab"]).lstrip("x")
    tv = sum(int(c) << (4*i) for i, c in enumerate((tb * 16)[:16]))
    e(f"s_mul_i32 s{sKX}, s{sMT}, {opt['ma']}")
    e(f"s_mul_i32 s{sT1}, s{sFT}, {opt['mb']}")
    e(f"s_add_u32 s{sKX}, s{sKX}, s{sT1}")
    e(f"s_lshl_b32 s{sKX}, s{sKX}, 2")
    e(f"s_mov_b32 s{sSIG}, {tv & 0xffffffff}")
    e(f"s_mov_b32 s{sSIG+1}, {tv >> 32}")
    e(f"s_lshr_b64 s[{sSIG}:{sSIG+1}], s[{sSIG}:{sSIG+1}], s{sKX}")
    e(f"s_and_b32 s{sKX}, s{sSIG}, 15")
elif opt["rot"]:
    e(f"s_lshr_b32 s{sKX}, s{sMT}, {opt['sa']}")
    e(f"s_mul_i32 s{sKX}, s{sKX}, {opt['ma']}")
    e(f"s_lshr_b32 s{sT1}, s{sFT}, {opt['sb']}")
    e(f"s_mul_i32 s{sT1}, s{sT1}, {opt['mb']}")
    e(f"s_add_u32 s{sKX}, s{sKX}, s{sT1}")
    if opt['mx']:
        e(f"s_mul_i32 s{sT1}, s{sT0}, {opt['mx']}")
        e(f"s_add_u32 s{sKX}, s{sKX}, s{sT1}")
    e(f"s_lshr_b32 s{sKX}, s{sKX}, 2")
    e(f"s_mul_i32 s{sT1}, s{sKX}, 205")
    e(f"s_lshr_b32 s{sT1}, s{sT1}, 11")
    e(f"s_mul_i32 s{sT1}, s{sT1}, 10")
    e(f"s_sub_u32 s{sKX}, s{sKX}, s{sT1}")
else:
    e(f"s_mov_b32 s{sKX}, 0")
if opt["ab"]:
    e(f"s_lshl_b32 s{sROT}, s{sMT}, 2")
elif opt["rot2"] == 3:
    e(f"s_and_b32 s{sROT}, s{sMT}, 1")
    e(f"s_mul_i32 s{sROT}, s{sROT}, 6")
elif opt["rot2"] == 4:
    e(f"s_lshr_b32 s{sROT}, s{sMT}, 1")
    e(f"s_mul_i32 s{sROT}, s{sROT}, 3")
elif opt["rot2"] == 5:
    e(f"s_and_b32 s{sROT}, s{sMT}, 3")
elif opt["rot2"] == 6:
    e(f"s_mul_i32 s{sROT}, s{sMT}, 3")
    e(f"s_lshr_b32 s{sROT}, s{sROT}, 3")
    e(f"s_lshl_b32 s{sROT}, s{sROT}, 2")
elif opt["rot2"] == 7:
    e(f"s_mul_i32 s{sROT}, s{sMT}, 12")
    e(f"s_lshr_b32 s{sROT}, s{sROT}, 3")
    e(f"s_bitcmp1_b32 s2, 1")
    e(f"s_addc_u32 s{sROT}, s{sROT}, 0")
elif opt["rot2"] == 2:
    e(f"s_and_b32 s{sROT}, s{sMT}, 3")
    e(f"s_mul_i32 s{sROT}, s{sROT}, 3")
elif opt["rot2"]:
    e(f"s_mul_i32 s{sROT}, s{sMT}, 12")
    e(f"s_lshr_b32 s{sROT}, s{sROT}, {5-fa}")
else:
    e(f"s_mov_b32 s{sROT}, 0")
e(f"s_and_b32 s{sT1}, s{sT0}, {(8>>fa)-1}")
e(f"s_lshl_b32 s{sT1}, s{sT1}, {fa}")
e(f"s_add_u32 s{sFT}, s{sFT}, s{sT1}")
e(f"s_lshr_b32 s{sT1}, s{sT0}, {3-fa}")
e(f"s_lshl_b32 s{sT1}, s{sT1}, {5-fa}")
e(f"s_add_u32 s{sMT}, s{sMT}, s{sT1}")
e(f"s_mul_i32 s{sXB}, s{sMT}, 81920")
e(f"s_mul_i32 s{sWB}, s{sFT}, 384")
e(f"s_add_u32 s{sXE}, s{sXB}, 1280")
e(f"s_mul_i32 s{sKW}, s{sKX}, {64*3072}")
e(f"s_add_u32 s{sKW}, s{sKW}, s{sWB}")
e(f"s_lshl_b32 s{sKX}, s{sKX}, 7")
e(f"s_add_u32 s{sKX}, s{sKX}, s{sXB}")
G = vTM+6
e(f"v_lshrrev_b32 v{G}, 4, v{L}")
e(f"v_lshrrev_b32 v{t0}, 3, v{L}")
e(f"v_lshl_add_u32 v{t0}, v{Wv}, 4, v{t0}")
e(f"v_mul_u32_u24 v{t0}, 1280, v{t0}")
e(f"v_and_b32 v{t1}, 7, v{L}")
e(f"v_xor_b32 v{t1}, v{t1}, v{G}")
e(f"v_lshl_add_u32 v{vDX}, v{t1}, 4, v{t0}")
e(f"v_xor_b32 v{t1}, 4, v{t1}")
e(f"v_lshl_add_u32 v{vDX+1}, v{t1}, 4, v{t0}")
e(f"v_add_u32 v{vDX+1}, {8*1280-1024}, v{vDX+1}")
if opt["xlin"]:
    e(f"v_lshl_add_u32 v{vDX}, v{Wv}, 11, v{vL16}")
    e(f"v_mov_b32 v{vDX+1}, v{vDX}")
    e(f"s_and_b32 s{sT0}, s{sFT}, 3")
    e(f"s_mul_i32 s{sT0}, s{sT0}, {opt['xlin']}")
    e(f"s_lshr_b32 s{sT0}, s{sT0}, 2")
    e(f"s_lshl_b32 s100, s{sT0}, 13")
    e(f"s_add_u32 s100, s100, s{sXB}")
    e(f"s_add_u32 s101, s{sXB}, 81920")
e(f"v_mul_u32_u24 v{t3}, {16*3072}, v{Wv}")
for i in range(3):
    if i: e(f"v_add_u32 v{t0}, {64*i}, v{L}")
    src = t0 if i else L
    e(f"v_mul_u32_u24 v{t1}, 2731, v{src}")
    e(f"v_lshrrev_b32 v{t1}, 16, v{t1}")
    e(f"v_mul_u32_u24 v{t2}, 24, v{t1}")
    e(f"v_sub_u32 v{t0}, v{src}, v{t2}")
    e(f"v_and_b32 v{t2}, 2, v{t1}")
    e(f"v_lshlrev_b32 v{t2}, 1, v{t2}")
    e(f"v_xor_b32 v{t0}, v{t0}, v{t2}")
    e(f"v_mul_u32_u24 v{t1}, 3072, v{t1}")
    e(f"v_lshl_add_u32 v{t0}, v{t0}, 4, v{t1}")
    e(f"v_add_u32 v{t0}, v{t0}, v{t3}")
    if i: e(f"v_subrev_u32 v{vDW+i}, {i*1024}, v{t0}")
    else: e(f"v_mov_b32 v{vDW}, v{t0}")
    if opt["r16"]: e(f"v_xor_b32 v{t0}, 16, v{t0}")
    e(f"v_add_u32 v{vDW+3+i}, {8*3072 - ((i+3)%4)*1024}, v{t0}")
if opt["e7"]:
    e(f"s_lshr_b32 s{sT0}, s{sMT}, 1")
    e(f"s_and_b32 s{sT1}, s{sMT}, 1")
    e(f"s_lshl1_add_u32 s{sT1}, s{sFT}, s{sT1}")
    e(f"s_mul_i32 s{sXB}, s{sT0}, 163840")
    e(f"s_mul_i32 s{sWB}, s{sT1}, {192 if opt['e7'] == 1 else 128}")
    e(f"s_and_b32 s{sT0}, s{sT0}, 3")
    e(f"s_and_b32 s{sT1}, s{sT1}, 7")
    e(f"s_mul_i32 s{sT0}, s{sT0}, {opt['e7a']}")
    e(f"s_mul_i32 s{sT1}, s{sT1}, {opt['e7b']}")
    e(f"s_add_u32 s{sKX}, s{sT0}, s{sT1}")
    e(f"s_lshr_b32 s{sKX}, s{sKX}, 2")
    e(f"s_mul_i32 s{sT1}, s{sKX}, 205")
    e(f"s_lshr_b32 s{sT1}, s{sT1}, 11")
    e(f"s_mul_i32 s{sT1}, s{sT1}, 10")
    e(f"s_sub_u32 s{sKX}, s{sKX}, s{sT1}")
    e(f"s_add_u32 s{sXE}, s{sXB}, 1280")
    e(f"s_mul_i32 s{sKW}, s{sKX}, {64*3072}")
    e(f"s_add_u32 s{sKW}, s{sKW}, s{sWB}")
    e(f"s_lshl_b32 s{sKX}, s{sKX}, 7")
    e(f"s_add_u32 s{sKX}, s{sKX}, s{sXB}")
    e(f"v_mul_u32_u24 v{t0}, {16*1280}, v{Wv}")
    e(f"v_add_u32 v{vDX}, v{vDX}, v{t0}")
    e(f"v_add_u32 v{vDX+1}, v{vDX+1}, v{t0}")
    e(f"v_add_u32 v{vDW+4}, {16*1280}, v{vDX}")
    e(f"v_add_u32 v{vDW+5}, {16*1280}, v{vDX+1}")
    for i in range(3):
        e(f"v_add_u32 v{t0}, {64*i}, v{L}")
        if opt["e7"] == 1:
            e(f"v_mul_u32_u24 v{t1}, 5462, v{t0}")
            e(f"v_lshrrev_b32 v{t1}, 16, v{t1}")
            e(f"v_mul_u32_u24 v{t1}, {3072 - 192}, v{t1}")
        else:
            e(f"v_lshrrev_b32 v{t1}, 3, v{t0}")
            e(f"v_mul_u32_u24 v{t1}, {2048 - 128}, v{t1}")
        e(f"v_lshl_add_u32 v{t0}, v{t0}, 4, v{t1}")
        e(f"v_add_u32 v{t0}, v{t0}, v{t3}")
        e(f"v_subrev_u32 v{vDW+i}, {i*1024}, v{t0}")
vTC = 250
if opt["tch"]:
    e(f"v_lshrrev_b32 v{t0}, 1, v{L}")
    e(f"v_mul_u32_u24 v{t1}, 1280, v{t0}")
    e(f"v_mul_u32_u24 v{t2}, 43, v{t0}")
    e(f"v_lshrrev_b32 v{t2}, 7, v{t2}")
    e(f"v_mul_u32_u24 v{t2}, {3072-384}, v{t2}")
    e(f"v_lshl_add_u32 v{t2}, v{t0}, 7, v{t2}")
    e(f"s_and_b32 s{sT0}, s{sFT}, 3")
    e(f"s_lshl_b32 s{sT0}, s{sT0}, 1")
    e(f"s_lshr_b32 s{sT1}, s{sW}, 1")
    e(f"s_add_u32 s{sT0}, s{sT0}, s{sT1}")
    e(f"s_mul_i32 s{sT0}, s{sT0}, {8*1280}")
    e(f"s_and_b32 s{sWO}, s{sMT}, 7")
    e(f"s_lshl_b32 s{sWO}, s{sWO}, 1")
    e(f"s_add_u32 s{sWO}, s{sWO}, s{sT1}")
    e(f"s_mul_i32 s{sWO}, s{sWO}, {4*3072}")
    e(f"s_add_u32 s{sT1}, s{sWB}, {640*3072}")
    e(f"s_bitcmp1_b32 s{sW}, 0")
    e(f"s_cselect_b64 vcc, -1, 0")
    e(f"v_cndmask_b32 v{vTC}, v{t1}, v{t2}, vcc")
    e(f"s_cselect_b32 s{sT0}, s{sWO}, s{sT0}")
    e(f"s_mov_b32 s{sWO}, {0xffff if opt['th'] else 0x5555}")
    e(f"s_cselect_b32 s{sWO}, {0xffffff if opt['th'] else 0x555555}, s{sWO}")
    e(f"s_cselect_b32 s{sHS}, s{sKW}, s{sKX}")
    e(f"s_movk_i32 s{sHS2}, 128")
    e(f"s_cselect_b32 s{sHS2}, {64*3072}, s{sHS2}")
    e(f"v_and_b32 v{t0}, 1, v{L}")
    e(f"v_lshl_add_u32 v{vTC}, v{t0}, 6, v{vTC}")
    e(f"v_add_u32 v{vTC}, s{sT0}, v{vTC}")
    e(f"s_cselect_b32 vcc_lo, s{sT1}, s{sXE}")
    e(f"s_cselect_b32 vcc_hi, s{sWB}, s{sXB}")
e(f"s_lshl_b32 s{sM0}, s{sW}, 13")
CLR = opt["clr"] >= 0 or opt["clrs"]
sCL = sHS
vNAN = 244
if CLR:
    e(f"s_lshl_b32 s{sT0}, s{sMT}, 2")
    e(f"s_lshr_b32 s{sT1}, s{sFT}, 1")
    e(f"s_add_u32 s{sT0}, s{sT0}, s{sT1}")
    e(f"s_lshl_b32 s{sT0}, s{sT0}, 2")
    e(f"s_add_u32 s{sT0}, s{sT0}, s{sW}")
    e(f"s_lshl_b32 s{sT0}, s{sT0}, 1")
    e(f"s_and_b32 s{sT1}, s{sFT}, 1")
    e(f"s_add_u32 s{sT0}, s{sT0}, s{sT1}")
    e(f"s_mul_i32 s{sT0}, s{sT0}, 6144")
    e(f"v_add_u32 v248, s{sT0}, v{vL16}")
    e(f"v_add_u32 v249, 3072, v248")
    for r in range(4): e(f"v_mov_b32 v{vNAN+r}, -1")
def clr_ops():
    def mk(i):
        def f():
            e(f"buffer_store_dwordx4 {vr(vNAN,4)}, v{248 + i//3}, {srd(sH)}, 0 offen offset:{(i%3)*1024} sc1"); VM.issue("clr")
        return f
    return [mk(i) for i in range(6)]
CLO = clr_ops()
e(f"s_mov_b32 s{sSPIN}, {EP}")
for r, n in ((sX, 2621440), (sW1, 1966080), (sW2, 1966080), (sOUT, 2621440), (sH, HREC)):
    e(f"s_mov_b32 s{r+2}, {n}"); e(f"s_mov_b32 s{r+3}, 0x20000")
e("s_waitcnt lgkmcnt(0)")
if opt["wso"]:
    e(f"s_add_u32 s12, s12, {opt['wso'] << 20}"); e("s_addc_u32 s13, s13, 0")
for r, p in ((sW2, 8), (sX, 4), (sW1, 6), (sOUT, 10), (sH, 12)):
    e(f"s_mov_b64 s[{r}:{r+1}], s[{p}:{p+1}]")
if opt["tch"]:
    e(f"s_bitcmp1_b32 s{sW}, 0")
    e(f"s_cselect_b64 s[8:9], s[6:7], s[4:5]")
    e(f"s_cselect_b32 s10, s{sW1+2}, s{sX+2}")
    e("s_mov_b32 s11, 0x20000")
    e(f"s_mov_b32 s6, s{sHS}")
    e(f"s_mov_b32 s7, s{sHS2}")
def touch():
    e("s_add_u32 s6, s6, s7")
    e("s_cmp_eq_u32 s6, vcc_lo")
    e("s_cselect_b32 s6, vcc_hi, s6")
    e(f"s_mov_b32 exec_lo, s{sWO}")
    e("s_mov_b32 exec_hi, 0")
    e(f"buffer_load_dword v251, v{vTC}, s[8:11], s6 offen"); VM.issue("tch")
    e("s_mov_b64 exec, -1")
stamp()
e(f"s_load_dword s{sE}, s[12:13], s{sSPIN}")

def adv_k():
    if opt["xlin"]:
        e(f"s_add_u32 s100, s100, 8192")
        e(f"s_cmp_eq_u32 s100, s101")
        e(f"s_cselect_b32 s100, s{sXB}, s100")
    e(f"s_add_u32 s{sKX}, s{sKX}, 128")
    e(f"s_add_u32 s{sKW}, s{sKW}, {64*3072}")
    e(f"s_cmp_eq_u32 s{sKX}, s{sXE}")
    e(f"s_cselect_b32 s{sKX}, s{sXB}, s{sKX}")
    e(f"s_cselect_b32 s{sKW}, s{sWB}, s{sKW}")
def dma_ops(st):
    base = (st % NSL) * 32768
    def mk(i):
        def f():
            if i == 0: e(f"s_add_u32 m0, s{sM0}, {base+6144}"); e("s_nop 0")
            if i < 2:
                e(f"buffer_load_dwordx4 v{vDX+i}, {srd(sX)}, s{100 if opt['xlin'] else sKX} offen offset:{i*1024} {opt['xaux'] if st < opt['ntst'] else ''} lds")
            elif opt["e7"] and i >= 5:
                if i == 5: e(f"s_add_u32 m0, s{sM0}, {base+4096}"); e("s_nop 0"); return
                e(f"buffer_load_dwordx4 v{vDW+i-2}, {srd(sX)}, s{sKX} offen offset:{(i-6)*1024} lds")
            else:
                j = i - 2
                e(f"buffer_load_dwordx4 v{vDW+j}, {srd(sW1)}, s{sKW} offen offset:{(j%4)*1024} {opt['w1aux'] if st < opt['ntst'] else ''} lds")
            VM.issue(f"st{st}")
            if i == 1: e(f"s_add_u32 m0, s{sM0}, {base}"); e("s_nop 0")
            if i == 5: e(f"s_add_u32 m0, s{sM0}, {base+4096}"); e("s_nop 0")
            if i == 7 and st < 9: adv_k()
        return f
    return [mk(i) for i in range(8)]

def setup2():
    R, C = t0, t1
    u0, u1, u2 = vTM+7, vTM+8, vTM+9
    if D1:
        RJ = 2
        if opt["rtab"]:
            RJ = 9
            tb = str(opt["rtab"]).lstrip("x"); assert len(tb) == 32 and sum(map(int, tb)) == 12
            m1_ = sum((c == "1") << i for i, c in enumerate(tb)); m2_ = sum((c == "2") << i for i, c in enumerate(tb))
            e(f"s_lshr_b32 s{sT0}, s2, 3")
            e(f"s_bfm_b32 s9, s{sT0}, 0")
            if R2:
                e(f"s_mov_b32 s8, {m2_}")
                e(f"s_bitcmp1_b32 s8, s{sT0}")
                e(f"s_cselect_b32 s8, s8, {m1_}")
                e(f"s_cselect_b32 s10, 1, 0")
                e(f"s_cselect_b32 s11, 0, {16 * tb.count('2')}")
                e(f"s_and_b32 s9, s9, s8")
            else: e(f"s_and_b32 s9, s9, {m1_}")
            e(f"s_bcnt1_i32_b32 s9, s9")
            e(f"s_and_b32 s{sT1}, s2, 7")
            e(f"s_lshl3_add_u32 s9, s9, s{sT1}")
            if R2:
                e(f"s_lshl_b32 s9, s9, s10")
                e(f"s_add_u32 s9, s9, s11")
            e(f"s_bitcmp1_b32 {'s8' if R2 else m1_}, s{sT0}")
            e(f"s_cselect_b32 s9, s9, 255")
        elif opt["rmap"]:
            RJ = 9
            e(f"s_lshr_b32 s9, s2, 4")
            e(f"s_lshl_b32 s9, s9, 3")
            e(f"s_and_b32 s{sT0}, s2, 7")
            e(f"s_add_u32 s9, s9, s{sT0}")
            if opt["rmap"] > 2: e(f"s_xor_b32 s9, s9, {0x60}")
            e(f"s_lshr_b32 s{sT0}, s2, 2")
            e(f"s_xor_b32 s{sT0}, s{sT0}, s2")
            e(f"s_bitcmp{(opt['rmap'] - 1) % 2}_b32 s{sT0}, 3")
            e(f"s_cselect_b32 s9, s9, 255")
        e(f"s_lshr_b32 s{sT1}, s{RJ}, 1")
        e(f"s_and_b32 s{sT0}, s{RJ}, 1")
        if opt["rpk"]:
            e(f"s_mul_i32 s{sRFL}, s{sT1}, 43")
            e(f"s_lshr_b32 s{sRFL}, s{sRFL}, 9")
            e(f"s_mul_i32 s{sRFL}, s{sRFL}, {128 // opt['rpk'] - 12}")
            e(f"s_add_u32 s{sRFL}, s{sRFL}, s{sT1}")
            e(f"s_mul_i32 s{sRFL}, s{sRFL}, {opt['rpk']}")
            if RPW: e(f"s_lshl2_add_u32 s{sRS}, s{sT0}, s{sW}")
            e(f"s_lshl_b32 s{sRS}, s{sRS if RPW else sT0}, 9")
            e(f"s_add_u32 s{sRFL}, s{sRFL}, s{sRS}")
        else:
            e(f"s_mul_i32 s{sRFL}, s{sT0}, 48")
            e(f"s_add_u32 s{sRFL}, s{sRFL}, s{sT1}")
            e(f"s_lshl_b32 s{sRFL}, s{sRFL}, 7")
        if OW:
            e(f"s_mul_i32 s{sRS}, s{sT1}, 43")
            e(f"s_lshr_b32 s{sRS}, s{sRS}, 9")
            e(f"s_mul_i32 s{sRS}, s{sRS}, 47")
            e(f"s_lshl_b32 s{sT1}, s{sT1}, 2")
            e(f"s_sub_u32 s{sT1}, s{sT1}, s{sRS}")
        e(f"s_lshl_b32 s{sRS}, s{sT1}, 2")
        e(f"s_add_u32 s{sRS}, s{sRS}, s{sW}")
        e(f"s_mul_i32 s{sRS}, s{sRS}, 10240")
        e(f"s_lshl_b32 s{sT0}, s{sT0}, 7")
        e(f"s_add_u32 s{sRS}, s{sRS}, s{sT0}")
        e(f"s_add_u32 s{sRS}, s{sRS}, 1024")
        e(f"s_lshl_b32 s{sRD}, s{RJ}, 2")
        e(f"s_add_u32 s{sRD}, s{sRD}, s{sW}")
        e(f"s_lshl_b32 s{sRD}, s{sRD}, 10")
        e(f"s_add_u32 s{sRD}, s{sRD}, {W2F}")
        e(f"s_cmp_lt_u32 s{RJ}, {0 if opt['nor'] else 96}")
        e(f"s_cselect_b32 s{sRS}, s{sRS}, 1966080")
        e(f"s_cselect_b32 s{sRD}, s{sRD}, {HREC}")
        e(f"s_cselect_b32 s{sRFL}, s{sRFL}, {HREC - RFL}")
    else:
        e(f"s_and_b32 s{sT0}, s2, 63")
        e(f"s_mul_i32 s{sT1}, s{sT0}, 205")
        e(f"s_lshr_b32 s{sT1}, s{sT1}, 10")
        e(f"s_mul_i32 s{sRS}, s{sT1}, 5")
        e(f"s_sub_u32 s{sRS}, s{sT0}, s{sRS}")
        e(f"s_lshr_b32 s{sRD}, s2, 6")
        e(f"s_mul_i32 s{sRFL}, s{sRD}, 5")
        e(f"s_add_u32 s{sRFL}, s{sRFL}, s{sRS}")
        e(f"s_lshl_b32 s{sRFL}, s{sRFL}, 4")
        e(f"s_add_u32 s{sRFL}, s{sRFL}, s{sT1}")
        e(f"s_lshl_b32 s{sRFL}, s{sRFL}, 7")
        if opt["own"]:
            e(f"s_mul_i32 s6, s{sT1}, 6")
            e(f"s_add_u32 s6, s6, s{sRD}")
            e(f"s_lshr_b32 s7, s{sT1}, 1")
            e(f"s_mul_i32 s7, s7, 6")
            e(f"s_and_b32 s8, s{sT1}, 1")
            e(f"s_add_u32 s7, s7, s8")
            e(f"s_mul_i32 s8, s{sRD}, 12")
            e(f"s_add_u32 s7, s7, s8")
            e(f"s_sub_u32 s7, s7, 20")
            e(f"s_cmp_lt_u32 s{sT1}, 8")
            e(f"s_cselect_b32 s6, s6, s7")
            e(f"s_mul_i32 s6, s6, 40960")
        e(f"s_mul_i32 s{sRD}, s{sRD}, 12")
        e(f"s_add_u32 s{sT1}, s{sT1}, s{sRD}")
        e(f"s_mul_i32 s{sT1}, s{sT1}, 40960")
        e(f"s_lshl_b32 s{sRD}, s{sRS}, 13")
        e(f"s_add_u32 s{sRD}, s{sRD}, s{sT1}")
        e(f"s_lshl_b32 s{sRS}, s{sRS}, 8")
        e(f"s_add_u32 s{sRS}, s{sRS}, s{6 if opt['own'] else sT1}")
        e(f"s_lshl_b32 s{sT1}, s{sW}, 11")
        e(f"s_add_u32 s{sRD}, s{sRD}, s{sT1}")
        e(f"s_add_u32 s{sRD}, s{sRD}, {W2F}")
        e(f"s_cmp_lt_u32 s{sT0}, {0 if opt['nor'] else 60}")
        e(f"s_cselect_b32 s{sRS}, s{sRS}, 1966080")
        e(f"s_cselect_b32 s{sRD}, s{sRD}, {HREC}")
    if opt["pt"] & 1:
        e(f"s_min_u32 s{sT1}, s{sRS}, {1966080-4}")
        e(f"s_load_dword s6, s[8:9], s{sT1}")
    if opt["pt"] & 2:
        e(f"s_mul_i32 s{sT1}, s{sMT}, {64*3072}")
        e(f"s_load_dword s6, s[12:13], s{sT1}")
    if opt["pt"] & 4:
        e(f"s_load_dword s6, s[10:11], s{sXB}")
    if opt["pt"] & 8:
        e(f"s_load_dword s6, s[12:13], s{sRD}")
    if D1:
        e(f"v_lshrrev_b32 v{t0}, 3, v{L}")
        e(f"v_mul_u32_u24 v{t0}, 1280, v{t0}")
        e(f"v_and_b32 v{t1}, 7, v{L}")
        e(f"v_lshlrev_b32 v{t2}, 1, v{G}")
        e(f"v_xor_b32 v{t1}, v{t1}, v{t2}")
        e(f"v_lshl_add_u32 v{vWD}, v{t1}, 4, v{t0}")
        for i in range(1, 4): e(f"v_add_u32 v{vWD+i}, {i*(10240-1024)}, v{vWD}")
    else:
        e(f"v_lshl_add_u32 v{t0}, v{Wv}, 3, v{G}")
        e(f"v_mul_u32_u24 v{t0}, 1280, v{t0}")
        e(f"v_and_b32 v{t1}, 15, v{L}")
        e(f"v_lshlrev_b32 v{t2}, 1, v{G}")
        e(f"v_xor_b32 v{t1}, v{t1}, v{t2}")
        e(f"v_lshl_add_u32 v{vDR}, v{t1}, 4, v{t0}")
        e(f"v_xor_b32 v{t1}, 8, v{t1}")
        e(f"v_lshl_add_u32 v{vDR+1}, v{t1}, 4, v{t0}")
        e(f"v_add_u32 v{vDR+1}, {4*1280-1024}, v{vDR+1}")
    e(f"v_bfe_u32 v{R}, v{L}, 2, 2")
    e(f"v_and_b32 v{C}, 3, v{L}")
    if opt["r16"]:
        e(f"v_and_b32 v{u1}, 1, v{G}")
        e(f"v_lshl_add_u32 v{u0}, v{u1}, 3, v{R}")
        e(f"v_mul_u32_u24 v{u0}, 384, v{u0}")
        e(f"v_lshl_add_u32 v{u0}, v{u1}, 4, v{u0}")
        e(f"v_lshrrev_b32 v{t2}, 5, v{L}")
        e(f"v_lshl_add_u32 v{u0}, v{t2}, 13, v{u0}")
        e(f"v_lshrrev_b32 v{u1}, 1, v{R}")
        e(f"v_xor_b32 v{u1}, v{u1}, v{Wv}")
        e(f"v_and_b32 v{u1}, 1, v{u1}")
        e(f"v_lshl_add_u32 v{u0}, v{u1}, 6, v{u0}")
        e(f"v_lshrrev_b32 v{u1}, 1, v{C}")
        e(f"v_lshl_add_u32 v{u0}, v{u1}, 5, v{u0}")
        e(f"v_and_b32 v{u1}, 1, v{C}")
        e(f"v_lshl_add_u32 v{vA}, v{u1}, 3, v{u0}")
        e(f"v_xor_b32 v{vA+1}, 16, v{vA}")
        for k in range(2): e(f"v_add_u32 v{vA+2+k}, 65536, v{vA+k}")
        e(f"v_and_b32 v{u0}, 2, v{Wv}")
        e(f"v_lshlrev_b32 v{u0}, 13, v{u0}")
        e(f"v_and_b32 v{u2}, 15, v{L}")
        e(f"v_lshl_add_u32 v{u0}, v{u2}, 7, v{u0}")
        e(f"v_add_u32 v{u0}, 6144, v{u0}")
        e(f"v_lshrrev_b32 v{u1}, 1, v{u2}")
        e(f"v_xor_b32 v{u1}, v{u1}, v{G}")
        e(f"v_lshl_add_u32 v{vB+4}, v{u1}, 4, v{u0}")
        e(f"v_xor_b32 v{vB+5}, 64, v{vB+4}")
        for k in range(2): e(f"v_add_u32 v{vB+6+k}, 65536, v{vB+4+k}")
    else:
        e(f"v_lshrrev_b32 v{u0}, 1, v{G}")
        e(f"v_lshl_add_u32 v{u0}, v{u0}, 3, v{R}")
        e(f"v_mul_u32_u24 v{u0}, 384, v{u0}")
        e(f"v_lshrrev_b32 v{u1}, 1, v{R}")
        e(f"v_xor_b32 v{u1}, v{u1}, v{Wv}")
        e(f"v_and_b32 v{u1}, 1, v{u1}")
        e(f"v_lshl_add_u32 v{u0}, v{u1}, 6, v{u0}")
        e(f"v_and_b32 v{u1}, 1, v{G}")
        e(f"v_lshl_add_u32 v{u0}, v{u1}, 5, v{u0}")
        e(f"v_lshl_add_u32 v{vA}, v{C}, 3, v{u0}")
        e(f"v_add_u32 v{vA+1}, 65536, v{vA}")
        e(f"v_and_b32 v{u0}, 2, v{Wv}")
        e(f"v_add_u32 v{u0}, v{u0}, v{u1}")
        e(f"v_lshlrev_b32 v{u0}, 13, v{u0}")
        e(f"v_and_b32 v{u2}, 15, v{L}")
        e(f"v_lshl_add_u32 v{u0}, v{u2}, 7, v{u0}")
        e(f"v_add_u32 v{u0}, 6144, v{u0}")
        e(f"v_lshrrev_b32 v{u1}, 1, v{u2}")
        e(f"v_lshrrev_b32 v{t2}, 5, v{L}")
        e(f"v_xor_b32 v{u1}, v{u1}, v{t2}")
        e(f"v_lshl_add_u32 v{vB}, v{u1}, 4, v{u0}")
        for k in range(1, 4): e(f"v_xor_b32 v{vB+k}, {32*k}, v{vB}")
        for k in range(4): e(f"v_add_u32 v{vB+4+k}, 65536, v{vB+k}")
    if D1:
        e(f"v_and_b32 v{u1}, 1, v{G}")
        e(f"v_lshl_add_u32 v{u1}, v{u1}, 2, v{R}")
        e(f"v_lshlrev_b32 v{u0}, 11, v{t2}")
        e(f"v_lshl_add_u32 v{u0}, v{u1}, 7, v{u0}")
        e(f"v_lshrrev_b32 v{u1}, 1, v{u1}")
        e(f"v_lshl_add_u32 v{u0}, v{u1}, 5, v{u0}")
        e(f"v_and_b32 v{u1}, 1, v{C}")
        e(f"v_lshl_add_u32 v{u0}, v{u1}, 4, v{u0}")
        e(f"v_lshrrev_b32 v{u1}, 1, v{C}")
        e(f"v_lshl_add_u32 v{u0}, v{u1}, 3, v{u0}")
        e(f"v_add_u32 v{u0}, {RB}, v{u0}")
        e(f"v_lshlrev_b32 v{t3}, 5, v{Wv}")
        e(f"v_xor_b32 v{vRA}, v{u0}, v{t3}")
        e(f"v_add_u32 v{vWT}, s{sM0}, v{u0}")
        for j in range(1, 4): e(f"v_xor_b32 v{vWT+j}, {32*j}, v{vWT}")
    else:
        e(f"v_and_b32 v{u1}, 1, v{G}")
        e(f"v_lshl_add_u32 v{u1}, v{u1}, 2, v{R}")
        e(f"v_lshlrev_b32 v{u0}, 12, v{t2}")
        e(f"v_lshl_add_u32 v{u0}, v{u1}, 8, v{u0}")
        e(f"v_lshlrev_b32 v{t3}, 1, v{Wv}")
        e(f"v_xor_b32 v{u1}, v{u1}, v{t3}")
        e(f"v_lshl_add_u32 v{u0}, v{u1}, 5, v{u0}")
        e(f"v_and_b32 v{u1}, 1, v{C}")
        e(f"v_lshl_add_u32 v{u0}, v{u1}, 4, v{u0}")
        e(f"v_lshrrev_b32 v{u1}, 1, v{C}")
        e(f"v_lshl_add_u32 v{u0}, v{u1}, 3, v{u0}")
        e(f"v_add_u32 v{vRA}, {RB}, v{u0}")
        e(f"v_xor_b32 v{vRA+1}, 32, v{vRA}")
    if not D1:
        e(f"v_mov_b32 v{vCN}, {CNT}")
        e(f"v_mov_b32 v{vONE}, 0")
        e(f"ds_write_b32 v{vCN}, v{vONE}"); LG.issue("cnt")
    if opt["ab"]: e(f"ds_write_b32 v{vCN}, v{vONE} offset:4"); LG.issue("cnt")
    for i in range(48): e(f"v_mov_b32 v{vACC1+i}, 0")
    if not D1: e(f"v_mov_b32 v{vONE}, 1")
    e(f"v_and_b32 v{u1}, 1, v{G}")
    if opt["r16"]: e(f"v_add_u32 v{vHS}, 12288, v{vL16}")
    else:
        e(f"v_mul_u32_u24 v{u0}, 12288, v{u1}")
        e(f"v_lshl_add_u32 v{u0}, v{t2}, 8, v{u0}")
        e(f"v_lshl_add_u32 v{vHS}, v{u2}, 4, v{u0}")
    if opt["own"]:
        e(f"s_and_b32 s{sT0}, s{sW}, 1")
        e(f"s_and_b32 s{sT1}, s{sW}, 2")
        e(f"s_sub_u32 s{sT1}, s{sT1}, s{sT0}")
        e(f"s_add_u32 s{sT1}, s{sT1}, 3")
        e(f"v_add_u32 v{u0}, s{sT1}, v{u1}")
        e(f"v_and_b32 v{u0}, 3, v{u0}")
        e(f"s_lshl_b32 s{sT0}, s{sT0}, 12")
        e(f"s_add_u32 s{sT0}, s{sT0}, {OWN}")
        e(f"v_lshl_add_u32 v{u0}, v{u0}, 10, s{sT0}")
        e(f"v_lshl_add_u32 v{u0}, v{t2}, 8, v{u0}")
        e(f"v_lshl_add_u32 v{vOW}, v{u2}, 4, v{u0}")
        e(f"v_xor_b32 v{vOW+1}, 2048, v{vOW}")
        e(f"s_lshl_b32 s{sT0}, s{sW}, 12")
        e(f"s_add_u32 s{sT0}, s{sT0}, {OWN}")
        e(f"v_add_u32 v{vOW+2}, s{sT0}, v{vL16}")
    if OW:
        e(f"s_and_b32 s{sT0}, s{sW}, 1")
        e(f"s_lshl1_add_u32 s{sT0}, s{sFT}, s{sT0}")
        e(f"s_and_b32 s{sT0}, s{sT0}, 3")
        e(f"s_and_b32 s{sT1}, s{sW}, 2")
        e(f"s_sub_u32 s{sT1}, s{sT1}, s{sT0}")
        e(f"s_add_u32 s{sT1}, s{sT1}, 7")
        e(f"v_add_u32 v{u0}, s{sT1}, v{u1}")
        e(f"v_and_b32 v{u0}, 3, v{u0}")
        e(f"s_lshl_b32 s{sT0}, s{sT0}, 13")
        e(f"s_add_u32 s{sT0}, s{sT0}, {65536+4096}")
        e(f"v_lshl_add_u32 v{u0}, v{u0}, 10, s{sT0}")
        e(f"v_lshl_add_u32 v{u0}, v{t2}, 8, v{u0}")
        e(f"v_lshl_add_u32 v{vOW}, v{u2}, 4, v{u0}")
        e(f"v_xor_b32 v{vOW+1}, {16384+2048}, v{vOW}")
    e(f"v_mul_u32_u24 v{u0}, 1280, v{u2}")
    e(f"v_lshl_add_u32 v{vOUT}, v{G}, 4, v{u0}")
    e(f"v_lshl_add_u32 v{u0}, v{u1}, 4, v{u0}")
    e(f"v_lshl_add_u32 v{vOUT2}, v{t2}, 3, v{u0}")
    if opt["bp"]:
        e(f"v_lshrrev_b32 v{vL16b}, 2, v{L}")
        e(f"v_mul_u32_u24 v{u0}, 1280, v{vL16b}")
        e(f"v_lshl_add_u32 v{vOUT}, v{C}, 4, v{u0}")
        e(f"v_lshl_add_u32 v{vL16b}, v{C}, 4, v{vL16b}")
        e(f"v_lshlrev_b32 v{vL16b}, 2, v{vL16b}")
        e(f"v_and_b32 v{vOUT2}, 1, v{C}")
        e(f"v_lshl_add_u32 v{u0}, v{vOUT2}, 4, v{u0}")
        e(f"v_lshrrev_b32 v{vOUT2}, 1, v{C}")
        e(f"v_lshl_add_u32 v{vOUT2}, v{vOUT2}, 3, v{u0}")
    if opt["t4"]:
        e(f"v_mul_u32_u24 v{u0}, {4*1280}, v{G}")
        e(f"v_lshl_add_u32 v{u0}, v{C}, 1, v{u0}")
        e(f"v_and_b32 v{vOUT2}, 1, v{R}")
        e(f"v_lshl_add_u32 v{u0}, v{vOUT2}, 4, v{u0}")
        e(f"v_lshrrev_b32 v{vOUT2}, 1, v{R}")
        e(f"v_lshl_add_u32 v{vOUT2}, v{vOUT2}, 3, v{u0}")
    if opt["ofk"]:
        sh = 1 + opt["ofk"]
        e(f"v_lshrrev_b32 v{u0}, {sh}, v{L}")
        e(f"v_mul_u32_u24 v{u0}, 1280, v{u0}")
        e(f"v_and_b32 v{vOUT}, {(1 << sh) - 1}, v{L}")
        e(f"v_lshl_add_u32 v{vOUT}, v{vOUT}, 4, v{u0}")
        e(f"v_add_u32 v{vL16b}, {64 if sh == 2 else 10240}, v{vOUT}")
        e(f"v_lshrrev_b32 v{u0}, 2, v{L}")
        e(f"v_mul_u32_u24 v{u0}, 1280, v{u0}")
        e(f"v_and_b32 v{vOUT2}, 3, v{L}")
        e(f"v_lshl_add_u32 v{vOUT2}, v{vOUT2}, 3, v{u0}")
    if not D1: e(f"v_add_u32 v{vL16b}, 4096, v{vL16}")
    if D1:
        if RPW: e(f"s_lshl2_add_u32 s{sT0}, s{sFT}, s{sW}")
        else:
            e(f"s_lshr_b32 s{sT0}, s{sFT}, 2")
            e(f"s_lshl_b32 s{sT0}, s{sT0}, 2")
            e(f"s_add_u32 s{sT0}, s{sT0}, s{sW}")
        e(f"s_mul_i32 s{sT0}, s{sT0}, {128 if opt['rpk'] else 12*128}")
        e(f"v_min_u32 v{vRP}, 11, v{u2}")
        e(f"v_lshl_add_u32 v{vRP}, v{vRP}, {dict([(0,7),(4,2),(8,3)])[opt['rpk']]}, s{sT0}")
    else:
        e(f"s_mul_i32 s{sT0}, s{sFT}, 5")
        e(f"v_lshl_add_u32 v{u0}, v{u1}, 2, s{sT0}")
        e(f"v_lshrrev_b32 v{u0}, 3, v{u0}")
        e(f"v_mad_u32_u24 v{u0}, v{Wv}, 5, v{u0}")
        e(f"v_min_u32 v{vRP}, 11, v{u2}")
        e(f"v_lshlrev_b32 v{vRP}, 7, v{vRP}")
        e(f"v_lshl_add_u32 v{vRP}, v{u0}, 11, v{vRP}")
    e(f"v_lshlrev_b32 v{vL4}, 2, v{L}")
    if opt["own"] or OW:
        e(f"v_and_b32 v{vPA}, {opt['pl2']}, v{L}")
        e(f"v_lshlrev_b32 v{vPA}, 7, v{vPA}")
    else: e(f"v_mul_u32_u24 v{vPA}, {FS}, v{u1}")
    if D1:
        assert FS == 128
        e(f"v_lshlrev_b32 v{vAC}, 7, v0")
        e(f"s_add_u32 s{sT0}, s{sM0}, 32768")
        e(f"v_add_u32 v{vRW}, s{sT0}, v{vL16}")
        e(f"v_add_u32 v{vRW2}, 65536, v{vRW}")
        for p in range(3):
            e(f"s_sub_u32 s{sT0}, s{sW}, {1+p}")
            e(f"s_and_b32 s{sT0}, s{sT0}, 3")
            e(f"s_lshl_b32 s{sT0}, s{sT0}, 13")
            e(f"s_add_u32 s{sT0}, s{sT0}, {32768*(p+1)}")
            e(f"v_add_u32 v{vRR+p}, s{sT0}, v{vL16}")
        e(f"s_mul_i32 s{sW2B}, s{sW}, {40960 if OW else 12*40960}")
        e(f"s_lshl_b32 s{sT0}, s{sFT}, 7")
        e(f"s_add_u32 s{sW2B}, s{sW2B}, s{sT0}")
        e(f"s_mul_i32 s{sW5B}, s{sW}, 96")
        e(f"s_add_u32 s{sW5B}, s{sW5B}, s{sFT}")
        e(f"s_lshl_b32 s{sW5B}, s{sW5B}, 10")
        e(f"s_add_u32 s{sW5B}, s{sW5B}, {W2F}")
    else:
        e(f"v_mul_u32_u24 v{u0}, 205, v{L}")
        e(f"v_lshrrev_b32 v{u0}, 10, v{u0}")
        e(f"v_sub_u32 v{vAC}, v{Wv}, v{u0}")
        e(f"v_mad_i32_i24 v{vAC}, v{vAC}, 5, v{L}")
        e(f"v_lshlrev_b32 v{vAC}, 11, v{vAC}")
        e(f"v_lshl_add_u32 v{vAC}, v{u0}, 7, v{vAC}")
        e(f"s_mul_i32 s{sT0}, s{sW}, 15360")
        e(f"s_add_u32 s{sT0}, s{sT0}, {RED}")
        e(f"v_add_u32 v{vRW}, s{sT0}, v{vL16}")
        for p in range(3):
            e(f"s_sub_u32 s{sT0}, s{sW}, {1+p}")
            e(f"s_and_b32 s{sT0}, s{sT0}, 3")
            e(f"s_mul_i32 s{sT0}, s{sT0}, 15360")
            e(f"s_add_u32 s{sT0}, s{sT0}, {RED + p*5120}")
            e(f"v_add_u32 v{vRR+p}, s{sT0}, v{vL16}")
        e(f"s_mul_i32 s{sW2B}, s{sW}, {12*40960}")
        e(f"s_mul_i32 s{sT0}, s{sFT}, 5120")
        e(f"s_add_u32 s{sW2B}, s{sW2B}, s{sT0}")
        e(f"s_add_u32 s{sW2B}, s{sW2B}, {W2F}")
    if opt["ab"]:
        e(f"s_mov_b32 s{sSIG+6}, 0x98763210"); e(f"s_mov_b32 s{sSIG+7}, 0x98763210")
        e(f"s_lshr_b64 s[{sSIG+6}:{sSIG+7}], s[{sSIG+6}:{sSIG+7}], s{sROT}")
        e(f"s_mov_b32 s{sSIG+7}, s{sSIG+6}")
        e(f"s_and_b32 s{sROT}, s{sROT}, 12")
        e(f"s_lshr_b32 s{sSIG+11}, 0xba54ba54, s{sROT}")
        for n in range(12):
            src = sSIG+7 if n < 8 else sSIG+11
            e(f"s_bfe_u32 s{sSIG+n}, s{src}, {0x40000 + 4*(n%8)}")
            e(f"s_lshl_b32 s{sSIG+n}, s{sSIG+n}, 10")
    if opt["own"]:
        e(f"s_lshl_b32 s{sSIG}, s{sFT}, 10")
        for n in range(1, 12):
            e(f"s_cmp_eq_u32 s{sROT}, s{sFT}")
            e(f"s_addc_u32 s{sROT}, s{sROT}, 0")
            e(f"s_lshl_b32 s{sSIG+n}, s{sROT}, 10")
            if n < 11:
                e(f"s_add_u32 s{sROT}, s{sROT}, 1")
                e(f"s_cmp_ge_u32 s{sROT}, 12")
                e(f"s_cselect_b32 s{sROT}, 0, s{sROT}")
    if OW:
        e(f"s_lshl_b32 s{sT0}, s{sFT}, 1")
        e(f"s_sub_u32 s{sT0}, s{sW}, s{sT0}")
        e(f"s_and_b32 s{sT0}, s{sT0}, 3")
        e(f"s_mul_i32 s{sT1}, s{sFT}, 6")
        e(f"s_add_u32 s{sT0}, s{sT0}, s{sT1}")
        e(f"s_lshr_b32 s{sT0}, s{sT0}, 2")
        e(f"s_lshl_b32 s{sSIG}, s{sT0}, 10")
        for n in range(1, 12):
            e(f"s_cmp_ge_u32 s{sROT}, s{sT0}")
            e(f"s_addc_u32 s{sT1}, s{sROT}, 0")
            e(f"s_lshl_b32 s{sSIG+n}, s{sT1}, 10")
            if n < 11:
                e(f"s_add_u32 s{sROT}, s{sROT}, 1")
                e(f"s_cmp_ge_u32 s{sROT}, 11")
                e(f"s_cselect_b32 s{sROT}, 0, s{sROT}")
    for n in range(12 if not opt["ab"] and not opt["own"] and not OW else 0):
        e(f"s_lshl_b32 s{sSIG+n}, s{sROT}, 10")
        if n < 11:
            e(f"s_add_u32 s{sROT}, s{sROT}, 1")
            e(f"s_cmp_ge_u32 s{sROT}, 12")
            e(f"s_cselect_b32 s{sROT}, 0, s{sROT}")
    if opt["own2"] == 2:
        e(f"s_mov_b32 s{sOWN}, s{sW}")
    elif opt["own2"] == 3:
        e(f"s_and_b32 s{sOWN}, s{sFT}, 1")
        e(f"s_add_u32 s{sOWN}, s{sW}, s{sOWN}")
    elif opt["own2"]:
        e(f"s_lshl_b32 s{sOWN}, s{sFT}, 1")
        e(f"s_add_u32 s{sOWN}, s{sW}, s{sOWN}")
    else: e(f"s_add_u32 s{sOWN}, s{sW}, s{sFT}")
    e(f"s_and_b32 s{sOWN}, s{sOWN}, 3")
    e(f"s_lshl_b32 s{sT1}, s{sMT}, 2")
    e(f"s_add_u32 s{sT1}, s{sT1}, s{sW}")
    if opt["own"] or OW: e(f"s_lshl_b32 s{sPOL}, s{sMT}, 10")
    else: e(f"s_mul_i32 s{sPOL}, s{sT1}, {2*FS}")
    e(f"s_add_u32 s{sPOL}, s{sPOL}, {FL}")
    e(f"s_lshl_b32 s{sT1}, s{sT1}, 2")
    for p in range(4):
        e(f"s_add_u32 s{sT0}, s{sOWN}, {1+p}")
        e(f"s_and_b32 s{sT0}, s{sT0}, 3")
        e(f"s_add_u32 s{sT0}, s{sT0}, s{sT1}")
        e(f"s_mul_i32 s{sT0}, s{sT0}, 12288")
        e(f"v_add_u32 v{vHB+p}, s{sT0}, v{vL16}")
    e(f"s_lshl_b32 s{sOB}, s{sMT}, 2")
    e(f"s_add_u32 s{sOB}, s{sOB}, s{sOWN}")
    e(f"s_mul_i32 s{sOB}, s{sOB}, {16*1280}")
    if D1:
        e(f"s_lshl_b32 s{sT0}, s{sFT}, 5")
        e(f"s_add_u32 s{sOB2}, s{sOB}, s{sT0}")
        e(f"s_add_u32 s{sOB2}, s{sOB2}, {1024-128}")
    e(f"s_mul_i32 s{sT0}, s{sFT}, {128 if D1 else 160}")
    e(f"s_add_u32 s{sOB}, s{sOB}, s{sT0}")
    if opt["ost"]:
        e(f"s_cmp_ge_u32 s{sW}, {opt['ost']}")
        e(f"s_cselect_b32 s{sOB}, s{sOB}, 2621440")
    e(f"s_lshl_b32 s{sT0}, s{sMT}, 2")
    e(f"s_lshr_b32 s{sT1}, s{sFT}, 1")
    e(f"s_add_u32 s{sT0}, s{sT0}, s{sT1}")
    e(f"s_mul_i32 s{sFLG}, s{sT0}, {2*FS}")
    e(f"s_lshl_b32 s{sT0}, s{sT0}, 2")
    e(f"s_and_b32 s{sT1}, s{sW}, 2")
    e(f"s_add_u32 s{sT0}, s{sT0}, s{sT1}")
    e(f"s_mul_i32 s{sHS}, s{sT0}, 12288")
    e(f"s_and_b32 s{sT0}, s{sFT}, 1")
    e(f"s_mul_i32 s{sT1}, s{sT0}, {FS}")
    e(f"s_add_u32 s{sFLG}, s{sFLG}, s{sT1}")
    e(f"s_add_u32 s{sFLG}, s{sFLG}, {FL}")
    e(f"s_mul_i32 s{sT0}, s{sT0}, 6")
    e(f"s_and_b32 s{sT1}, s{sW}, 1")
    e(f"s_add_u32 s{sT0}, s{sT0}, s{sT1}")
    e(f"s_lshl_b32 s{sT0}, s{sT0}, 10")
    e(f"s_add_u32 s{sHS}, s{sHS}, s{sT0}")
    e(f"s_add_u32 s{sHS2}, s{sHS}, 4096")
    if opt["own"]:
        e(f"s_and_b32 s{sT0}, s{sFT}, 1")
        e(f"s_lshl_b32 s{sT0}, s{sT0}, 12")
        e(f"s_sub_u32 s{sHS2}, s{sHS}, s{sT0}")
        e(f"s_add_u32 s{sHS2}, s{sHS2}, 8192")
        e(f"s_lshl_b32 s{sT0}, s{sMT}, 2")
        e(f"s_add_u32 s{sT0}, s{sT0}, s{sT1}")
        e(f"s_lshl_b32 s{sT0}, s{sT0}, 2")
        e(f"s_and_b32 s{sT1}, s{sW}, 2")
        e(f"s_add_u32 s{sT0}, s{sT0}, s{sT1}")
        e(f"s_mul_i32 s{sT0}, s{sT0}, 12")
        e(f"s_add_u32 s{sT0}, s{sT0}, s{sFT}")
        e(f"s_lshl_b32 s{sHS}, s{sT0}, 10")
        e(f"s_add_u32 s{sHS1}, s{sHS}, 98304")
    if OW:
        for q, r in enumerate((sHS, 10, sHS2)):
            e(f"s_mul_i32 s{sT0}, s{sFT}, 6")
            e(f"s_and_b32 s{sT1}, s{sW}, 1")
            e(f"s_add_u32 s{sT0}, s{sT0}, s{sT1}")
            if q: e(f"s_add_u32 s{sT0}, s{sT0}, {2*q}")
            e(f"s_and_b32 s{sT1}, s{sT0}, 3")
            e(f"s_lshl2_add_u32 s{sT1}, s{sMT}, s{sT1}")
            e(f"s_and_b32 s{r}, s{sW}, 2")
            e(f"s_lshl2_add_u32 s{sT1}, s{sT1}, s{r}")
            e(f"s_mul_i32 s{sT1}, s{sT1}, 12")
            e(f"s_lshr_b32 s{sT0}, s{sT0}, 2")
            e(f"s_add_u32 s{sT0}, s{sT0}, s{sT1}")
            e(f"s_lshl_b32 s{r}, s{sT0}, 10")
    e(f"s_add_u32 s{sRFL}, s{sRFL}, {RFL}")
    if opt["tpre"]:
        tb = str(opt["ttab"]).lstrip("x"); assert len(tb) == 32
        nn = tb.count("1"); assert 48 % nn == 0 and 48 // nn <= 8
        rw = 48 // nn
        mk_ = sum(int(c) << i for i, c in enumerate(tb))
        e(f"s_lshr_b32 s9, s2, 3")
        e(f"s_bfm_b32 s8, s9, 0")
        e(f"s_and_b32 s8, s8, {mk_}")
        e(f"s_bcnt1_i32_b32 s8, s8")
        e(f"s_and_b32 s{sT0}, s2, 7")
        e(f"s_lshl3_add_u32 s8, s8, s{sT0}")
        e(f"s_lshl2_add_u32 s8, s8, s{sW}")
        e(f"s_mul_i32 s8, s8, {rw*1280}")
        e(f"s_bitcmp1_b32 {mk_}, s9")
        e(f"s_cselect_b32 s8, s8, 1966080")
        e(f"v_lshrrev_b32 v251, 3, v{L}")
        e(f"v_lshl_add_u32 v250, v251, 8, s8")
        e(f"v_lshl_add_u32 v250, v{L}, 7, v250")
        if rw < 8:
            e(f"v_add_u32 v251, {8 - rw}, v251")
            e(f"v_lshrrev_b32 v251, 3, v251")
            e(f"v_lshl_add_u32 v250, v251, 21, v250")
    if R2:
        e(f"s_lshl_b32 s{sT0}, s{sW}, 9")
        e(f"s_add_u32 s{sRFL}, s{sRFL}, s{sT0}")
        e(f"s_cmp_le_u32 s{sW}, s10")
        e(f"s_cselect_b32 s{sRFL}, s{sRFL}, {HREC}")
    elif not RPW:
        e(f"s_cmp_eq_u32 s{sW}, 0")
        e(f"s_cselect_b32 s{sRFL}, s{sRFL}, {HREC}")
    if opt["fpre"]:
        assert opt["fb"] and opt["fk"] == 0 and not RPW
        e(f"s_cmp_eq_u32 s{sW}, 0")
        e(f"s_cselect_b32 s{sFLG}, s{sFLG}, {HREC}")
        assert HREC == 1 << 23 and opt["rpk"] == 8
        e(f"v_lshrrev_b32 v249, 1, v{L}")
        e(f"v_lshl_add_u32 v249, v249, 23, v{vL4}")
        e(f"v_lshrrev_b32 v248, 5, v{L}")
        e(f"v_lshl_add_u32 v248, v248, 23, v{vL4}")
    e(f"s_mov_b32 s{sL2E}, 0xbfb8aa3b")
    if opt["pk"]:
        e(f"s_mov_b32 s{sPK}, 0xbfb8aa3b"); e(f"s_mov_b32 s{sPK+1}, 0xbfb8aa3b")
def r_loads():
    if D1:
        e(f"s_lshr_b32 m0, s{sM0}, 3")
        e(f"s_add_u32 m0, m0, {RB}")
        e("s_nop 0")
        e(f"buffer_load_dwordx4 v{vWD}, {srd(sW2)}, s{sRS} offen {opt['raux']} lds"); VM.issue("rld")
        if R2:
            e(f"s_add_u32 m0, m0, {4096 - 128}")
            e(f"s_cmp_eq_u32 s10, 1")
            e(f"s_cselect_b32 s{sRS}, s{sRS}, 1966080")
            e(f"buffer_load_dwordx4 v{vWD}, {srd(sW2)}, s{sRS} offen offset:128 {opt['raux']} lds"); VM.issue("rld")
        return
    e(f"s_lshr_b32 m0, s{sM0}, 2")
    e(f"s_add_u32 m0, m0, {RB}")
    e("s_nop 0")
    for i in range(2):
        e(f"buffer_load_dwordx4 v{vDR+i}, {srd(sW2)}, s{sRS} offen offset:{i*1024} {opt['raux']} lds"); VM.issue("rld")
def r_reads():
    if D1:
        for t in range(4 if R2 else 2):
            e(f"ds_read_b64_tr_b16 {vr(vRF + 2*t, 2)}, v{vRA} offset:{(t % 2)*1024 + (t // 2)*4096}"); LG.issue("rrd")
        return
    for ee in range(2):
        for t in range(2):
            e(f"ds_read_b64_tr_b16 {vr(vRF + 4*ee + 2*t, 2)}, v{vRA+ee} offset:{t*2048}"); LG.issue("rrd")
def r_stores():
    LG.wait("rrd")
    for ee in range(1 if D1 else 2):
        e(f"buffer_store_dwordx4 {vr(vRF+4*ee,4)}, v{vL16}, {srd(sH)}, s{sRD} offen offset:{ee*1024} {opt['rsaux']}"); VM.issue("rst")
    if R2:
        e(f"s_add_u32 s{sRD}, s{sRD}, 4096")
        e(f"s_cmp_eq_u32 s10, 1")
        e(f"s_cselect_b32 s{sRD}, s{sRD}, {HREC}")
        e(f"buffer_store_dwordx4 {vr(vRF+4,4)}, v{vL16}, {srd(sH)}, s{sRD} offen {opt['rsaux']}"); VM.issue("rst")
S2 = capture(setup2)
groups = []
for l in S2:
    if l.startswith("s_cselect") or (groups and groups[-1][-1].startswith(("s_cmp", "s_bitcmp"))): groups[-1].append(l)
    else: groups.append([l])
ST0 = []
def pre_order(spec):
    kx, kw = (sKX, 6, 8), (sKW, 7, 9)
    def nxt(i):
        a, b = (i + 1) % 3, i
        e(f"s_add_u32 s{kx[a]}, s{kx[b]}, 128")
        e(f"s_add_u32 s{kw[a]}, s{kw[b]}, {64*3072}")
        e(f"s_cmp_eq_u32 s{kx[a]}, s{sXE}")
        e(f"s_cselect_b32 s{kx[a]}, s{sXB}, s{kx[a]}")
        e(f"s_cselect_b32 s{kw[a]}, s{sWB}, s{kw[a]}")
    ops = []
    for ch in spec:
        if ch in "abc":
            st = "abc".index(ch)
            for i in range(2):
                def f(st=st, i=i):
                    if i == 0: e(f"s_add_u32 m0, s{sM0}, {st*32768+6144}"); e("s_nop 0")
                    e(f"buffer_load_dwordx4 v{vDX+i}, {srd(sX)}, s{kx[st]} offen offset:{i*1024} {opt['xaux']} lds"); VM.issue(f"st{st}")
                    if st == 0 and i == 1: nxt(0); nxt(1)
                ops.append(f)
        elif ch in "ABC":
            st = "ABC".index(ch)
            for j in range(6):
                def f(st=st, j=j):
                    if j % 4 == 0: e(f"s_add_u32 m0, s{sM0}, {st*32768+j*1024}"); e("s_nop 0")
                    e(f"buffer_load_dwordx4 v{vDW+j}, {srd(sW1)}, s{kw[st]} offen offset:{(j%4)*1024} {opt['w1aux']} lds"); VM.issue(f"st{st}")
                ops.append(f)
        elif ch == "R": ops.append(r_loads)
        elif ch == ".": ops.append(None)
        elif ch == "P":
            def f():
                e(f"s_bfe_u32 s10, s{sMT}, 0x10002")
                e(f"s_mul_i32 s10, s10, 320")
                e(f"s_and_b32 s11, s{sMT}, 3")
                e(f"s_lshl_b32 s11, s11, 4")
                e(f"s_add_u32 s10, s10, s11")
                e(f"s_mul_i32 s11, s{sW}, 12")
                e(f"s_sub_u32 s10, s10, s11")
                e(f"s_add_u32 s10, s10, 256")
                e(f"s_mul_i32 s10, s10, 3072")
                e(f"s_add_u32 s10, s10, s{sWB}")
                e(f"buffer_load_dwordx4 v[244:247], v{vDW}, {srd(sW1)}, s10 offen"); VM.issue("pp")
                e("s_mov_b32 exec_hi, 0")
                e(f"buffer_load_dwordx4 v[248:251], v{vDW+1}, {srd(sW1)}, s10 offen offset:1024"); VM.issue("pp")
                e("s_mov_b32 exec_hi, -1")
            ops.append(f)
    assert spec[0] == "a" and all(c in spec for c in "abcABC")
    last = ops[-1]
    def fin(): last(); nxt(2)
    ops[-1] = fin
    return ops
if opt["po"]:
    first = pre_order(opt["po"]); opt["pre3"] = 1
    if None in first:
        k = first.index(None); first, ST0 = first[:k], first[k+1:]
    if "R" in opt["po"]: opt["rls"] = -1
else:
    first = dma_ops(0) + dma_ops(1) + (dma_ops(2) if opt["pre3"] else [])
    if opt["rls"] < 0: first.append(r_loads)
    if opt["tch"]: first[opt["tp0"]:opt["tp0"]] = [touch] * (opt["la"] - 1)
def wxtouch(k, n):
    def f():
        if k == 0:
            e(f"s_lshr_b32 s8, s2, 3")
            e(f"s_lshl_b32 s8, s8, 2")
            e(f"s_add_u32 s8, s8, s{sW}")
            e(f"s_mul_i32 s8, s8, {12*1280}")
            e(f"s_lshr_b32 s9, s{sFT}, 2")
            e(f"s_lshl_b32 s9, s9, 9")
            e(f"s_add_u32 s8, s8, s9")
            e(f"v_lshrrev_b32 v250, 6, v{vL16}")
            e(f"v_mul_u32_u24 v250, {1280-512}, v250")
            e(f"v_lshl_add_u32 v250, v{vL16}, 3, v250")
        m = ((1 << (48 // n)) - 1) << (k * 48 // n)
        e(f"s_mov_b32 exec_lo, {m & 0xffffffff}")
        e(f"s_mov_b32 exec_hi, {m >> 32}")
        e(f"buffer_load_dword v251, v250, {srd(sW2)}, s8 offen {opt['wtaux']}"); VM.issue("wt")
        e("s_mov_b64 exec, -1")
    return f
def wtouch():
    if opt["tpre"]:
        e(f"buffer_load_dword v251, v250, {srd(sW2)}, 0 offen {opt['wtaux']}"); VM.issue("wt")
        return
    if opt["wtx"]:
        e(f"s_lshr_b32 s8, s2, 3")
        e(f"s_lshl_b32 s8, s8, 2")
        e(f"s_add_u32 s8, s8, s{sW}")
        e(f"s_mul_i32 s8, s8, {12*1280}")
        e(f"s_lshr_b32 s9, s{sFT}, 2")
        e(f"s_lshl_b32 s9, s9, 9")
        e(f"s_add_u32 s8, s8, s9")
        e(f"v_lshrrev_b32 v250, 6, v{vL16}")
        e(f"v_mul_u32_u24 v250, {1280-512}, v250")
        e(f"v_lshl_add_u32 v250, v{vL16}, 3, v250")
        e(f"s_mov_b32 exec_hi, 0xffff")
        e(f"buffer_load_dword v251, v250, {srd(sW2)}, s8 offen {opt['wtaux']}"); VM.issue("wt")
        e("s_mov_b64 exec, -1")
        return
    if opt["ttab"]:
        tb = str(opt["ttab"]).lstrip("x"); assert len(tb) == 32
        nn = tb.count("1"); assert 48 % nn == 0 and 48 // nn <= 8
        rw = 48 // nn
        mk_ = sum(int(c) << i for i, c in enumerate(tb))
        e(f"s_lshr_b32 s9, s2, 3")
        e(f"s_bfm_b32 s8, s9, 0")
        e(f"s_and_b32 s8, s8, {mk_}")
        e(f"s_bcnt1_i32_b32 s8, s8")
        e(f"s_and_b32 m0, s2, 7") if False else None
        e(f"s_lshl_b32 s8, s8, 3")
        e(f"s_bitcmp1_b32 {mk_}, s9")
        e(f"s_cselect_b32 s8, s8, 0x10000")
        e(f"s_and_b32 s9, s2, 7")
        e(f"s_add_u32 s8, s8, s9")
        e(f"s_lshl2_add_u32 s8, s8, s{sW}")
        e(f"s_mul_i32 s8, s8, {rw*1280}")
        e(f"s_min_u32 s8, s8, 1966080")
        e(f"v_lshrrev_b32 v250, 7, v{vL16}")
        e(f"v_lshlrev_b32 v250, 8, v250")
        e(f"v_lshl_add_u32 v250, v{vL16}, 3, v250")
        if rw < 8:
            m = (1 << (8*rw)) - 1
            e(f"s_mov_b32 exec_lo, {m & 0xffffffff}")
            e(f"s_mov_b32 exec_hi, {m >> 32}")
        e(f"buffer_load_dword v251, v250, {srd(sW2)}, s8 offen {opt['wtaux']}"); VM.issue("wt")
        if rw < 8: e("s_mov_b64 exec, -1")
        return
    if opt["wtc"]:
        e(f"s_lshr_b32 s8, s2, 4")
        e(f"s_lshl_b32 s8, s8, 3")
        e(f"s_and_b32 s9, s2, 7")
        e(f"s_add_u32 s8, s8, s9")
        e(f"s_lshl2_add_u32 s8, s8, s{sW}")
        e(f"s_mul_i32 s8, s8, {3*1280}")
        e(f"v_lshrrev_b32 v250, 7, v{vL16}")
        e(f"v_lshlrev_b32 v250, 8, v250")
        e(f"v_lshl_add_u32 v250, v{vL16}, 3, v250")
        e(f"s_lshr_b32 s9, s2, 2")
        e(f"s_xor_b32 s9, s9, s2")
        e(f"s_bitcmp{opt['wtc'] - 1}_b32 s9, 3")
        e(f"s_cselect_b32 s8, s8, 1966080")
        e(f"s_mov_b64 exec, {(1 << 24) - 1}")
        e(f"buffer_load_dword v251, v250, {srd(sW2)}, s8 offen {opt['wtaux']}"); VM.issue("wt")
        e("s_mov_b64 exec, -1")
        return
    e(f"s_lshl_b32 s8, s2, 2")
    e(f"s_add_u32 s8, s8, s{sW}")
    e(f"s_mul_i32 s8, s8, {15*128}")
    e(f"v_lshlrev_b32 v250, {2 if opt['wth'] else 3}, v{vL16}")
    e(f"s_mov_b64 exec, {(1 << (30 if opt['wth'] else 15)) - 1}")
    e(f"buffer_load_dword v251, v250, {srd(sW2)}, s8 offen {opt['wtaux']}"); VM.issue("wt")
    e("s_mov_b64 exec, -1")
if opt["wt"] >= 0: first.insert(opt["wt"], wtouch)
def stouch():
    e(f"s_lshl_b32 s100, s2, 2")
    e(f"s_add_u32 s100, s100, s{sW}")
    e(f"s_mul_i32 s100, s100, {15*128}")
    for i in range(opt["swn"]):
        e(f"s_load_dword s101, s[{sW2}:{sW2+1}], s100 offset:{i*128}")
if opt["sw"] >= 0: first.insert(opt["sw"], stouch)
if opt["clr"] >= 0: first[opt["clr"]:opt["clr"]] = CLO
NF0 = opt["nf0"]
for f in first[:NF0]: f()
if opt["fst"]:
    e(f"s_waitcnt vmcnt({NF0-1})"); stamp(k=5)
    e(f"s_waitcnt vmcnt({NF0-3})"); stamp(k=5)
rest = first[NF0:]
per = (len(groups) + len(rest) - 1) // len(rest)
head = len(groups) * opt["head"] // 100
for g in groups[:head]: O.extend(g)
groups = groups[head:]
per = (len(groups) + len(rest) - 1) // len(rest)
for f in rest:
    f()
    for g in groups[:per]: O.extend(g)
    groups = groups[per:]
assert not groups
stamp()

def w2_ops():
    ops = []
    order = list(range(1, 12)); order.insert(opt["w0p"], 0)
    for n in order:
        for j in range(5):
            def f(n=n, j=j):
                if j == 0:
                    e(f"s_mul_i32 s{sWO}, s{sSIG+n}, 40")
                    e(f"s_add_u32 s{sWO}, s{sWO}, s{sW2B}")
                va = vL16 if j < 4 else vL16b
                e(f"buffer_load_dwordx4 {ar(n*20+4*j, 4)}, v{va}, {srd(sH)}, s{sWO} offen offset:{(j%4)*1024} {opt['w2aux'].replace('-','')}")
                VM.issue(f"w{n}")
            ops.append(f)
    return ops
WREG = [3, 3, 4, 4, 1, 1, 2, 2, 3, 3, 4, 4]
WHF = [n % 2 for n in range(12)]
WDEP = [None] * 8 + ["t0", "t1", "t2", "t3"]
if OW:
    WREG = [3, 3, 4, 4, 1, 1, 2, 3, 3, 4, 4, 2]
    WHF = [0, 1, 0, 1, 0, 1, 0, 0, 1, 0, 1, 1]
    WDEP = [None] * 7 + ["t0", "t1", "t2", "t3", "or3"]
def wd_ops():
    ops = []
    for n in range(12):
        for i in range(4):
            def f(n=n, i=i):
                if i == 0:
                    if WDEP[n]: assert WDEP[n] in TDONE + ORD and WDEP[n] not in LG.q, n
                    e(f"s_mul_i32 s{sWO}, s{sSIG+n}, {160 if OW else 40}")
                    e(f"s_add_u32 m0, s{sM0}, {WREG[n]*32768 + WHF[n]*4096}")
                    e(f"s_add_u32 s{sWO}, s{sWO}, s{sW2B}")
                if n >= 12 - opt["skd"]: return
                e(f"buffer_load_dwordx4 v{vWD+i}, {srd(sW2)}, s{sWO} offen offset:{i*1024} {opt['waux']} lds")
                VM.issue(f"d{n}")
            ops.append(f)
    return ops
def w5_ops():
    ops = []
    for n in range(12):
        def f(n=n):
            if n >= 12 - opt["sk5"]: return
            e(f"s_lshl3_add_u32 s{sT1}, s{sSIG+n}, s{sW5B}")
            e(f"buffer_load_dwordx4 {ar(n*20+16, 4)}, v{vL16}, {srd(sH)}, s{sT1} offen {opt['w5aux'].replace('-','')}")
            VM.issue(f"w{n}")
        ops.append(f)
    return ops
TDONE = []; TWIN = [3]; ORD = []
def tgroup_ops(n):
    def head():
        assert not any(f.__defaults__[0] == n and len(f.__defaults__) == 2 for f in W2L), n
        VM.wait(f"d{n}")
        win = 3 if WREG[n] >= 3 else 1
        if win != TWIN[0]:
            for j in range(4): e(f"v_add_u32 v{vWT+j}, {(win - TWIN[0]) * 32768}, v{vWT+j}")
            TWIN[0] = win
        if len(LG.q) > 7:
            e("s_waitcnt lgkmcnt(7)"); LG.q = LG.q[-7:]
    ops = []
    for j in range(4):
        def f(j=j):
            if j == 0: head()
            win = TWIN[0]
            for t in range(2):
                e(f"ds_read_b64_tr_b16 {ar(n*20+4*j+2*t, 2)}, v{vWT+j} offset:{(WREG[n]-win)*32768 + WHF[n]*4096 + t*1024}"); LG.issue(f"t{n}")
        ops.append(f)
    TDONE.append(f"t{n}")
    return ops
def tgroup(n):
    for f in tgroup_ops(n): f()
W2L = wd_ops() if D1 else w2_ops()
def take(n):
    r = W2L[:n]; del W2L[:n]; return r

def rd_ops(st, half):
    slot = st % NSL
    sb = (slot % 2) * 32768
    hi = slot // 2
    ops = []
    if opt["nord"]: return ops
    if opt["r16"]:
        def b(rt):
            def f(): e(f"ds_read_b128 {vr(vBF + (half*2+rt)*4, 4)}, v{vB + 4 + 2*hi + half} offset:{sb + rt*8192}"); LG.issue(f"B{half}{rt}")
            return f
        def a(j, t):
            def f():
                e(f"ds_read_b64_tr_b16 {vr(vAF + half*24 + j*4 + 2*t, 2)}, v{vA + 2*hi + j%2} offset:{sb + half*16384 + t*1536 + (j//2)*128}")
                LG.issue(f"A{half}{j}")
            return f
        A = [a(j, t) for j in range(6) for t in range(2)]
        return [b(0)] + A[:2] + [b(1)] + A[2:]
    for kk in range(2):
        ks = 2*half + kk
        def b(ks=ks, kk=kk):
            e(f"ds_read_b128 {vr(vBF + (half*2+kk)*4, 4)}, v{vB + 4*hi + ks} offset:{sb}"); LG.issue(f"B{ks}")
        ops.append(b)
        for q in range(3):
            for t in range(2):
                def a(ks=ks, kk=kk, q=q, t=t):
                    e(f"ds_read_b64_tr_b16 {vr(vAF + half*24 + (kk*3+q)*4 + 2*t, 2)}, v{vA+hi} offset:{sb + ks*8192 + t*1536 + q*128}")
                    LG.issue(f"A{ks}{q}")
                ops.append(a)
    if opt["qm"] in (1, 2):
        qs = (0, 1, 2) if opt["qm"] == 1 or half == 0 else (2, 1, 0)
        ops = [ops[0], ops[7]] + [ops[7*kk + 1 + 2*q + t] for q in qs for kk in range(2) for t in range(2)]
    if opt["qm"] == 3: ops = ops[:8] + [ops[8 + 2*q + t] for q in (2, 1, 0) for t in range(2)]
    return ops
def i16(kk, q): return kk == 1
def mfma1(half, kk, q, zz=None):
    ks = 2*half + kk
    LG.wait(f"A{ks}{q}")
    if opt["nomf1"]: return
    if opt["m16"]:
        for z in (range(2) if zz is None else [zz]):
            c = vr(vACC1+16*q+8*kk+4*z, 4)
            e(f"v_mfma_f32_16x16x32_bf16 {c}, {vr(vAF + half*24 + (kk*3+q)*4, 4)}, {vr(vBF + (half*2+(kk^z if i16(kk, q) else kk))*4, 4)}, {c}")
        return
    a, b = vr(vAF + half*24 + (kk*3+q)*4, 4), vr(vBF + (half*2+kk)*4, 4)
    if opt["swab"]: a, b = b, a
    e(f"v_mfma_f32_32x32x16_bf16 {vr(vACC1+16*q,16)}, {a}, {b}, {vr(vACC1+16*q,16)}")
def mfma16(half, i):
    j, rt = i // 2, i % 2
    if opt["ro"] == 1 and j % 2: rt ^= 1
    LG.wait(f"A{half}{j}"); LG.wait(f"B{half}{rt}")
    if opt["nomf1"]: return
    c = vr(vACC1 + (j//2)*16 + rt*8 + (j%2)*4, 4)
    e(f"v_mfma_f32_16x16x32_bf16 {c}, {vr(vAF + half*24 + j*4, 4)}, {vr(vBF + (half*2+rt)*4, 4)}, {c}")
def half_body(mf_half, rds, fill, cnt=None):
    rds = list(rds); fill = list(fill)
    if (opt["m16"] >= 2 or opt["r16"]) and mf_half is not None:
        for i in range(12):
            if opt["r16"]: mfma16(mf_half, i)
            else: mfma1(mf_half, i // 6, (i // 2) % 3, i % 2)
            left = 12 - i
            if opt["pat"]:
                P = opt["pat1"] if opt["pat1"] and mf_half == 0 else opt["pat"]
                ch = P[i]
                for _ in range(dict(a=2, b=1, c=3, M=1, N=2).get(ch, 0)):
                    if rds: rds.pop(0)()
                if ch in "LMN":
                    nl = sum(c in "LMN" for c in P[i:])
                    for _ in range((len(fill) + nl - 1) // nl): fill.pop(0)()
            elif opt["m16"] == 2 or opt["r16"] == 2:
                for _ in range((len(rds) + left - 1) // left if i else 2):
                    if rds: rds.pop(0)()
                if i % 2 == 1:
                    for _ in range((len(fill) + left // 2) // (left // 2 + 1)):
                        if fill: fill.pop(0)()
            else:
                if i % 3 == 2 and fill:
                    for _ in range((len(fill) + left // 3) // (left // 3 + 1)): fill.pop(0)()
                else:
                    for _ in range(2):
                        if rds: rds.pop(0)()
        assert not rds and not fill, (len(rds), len(fill))
        return
    for i in range(6):
        if mf_half is not None:
            if opt["qm"] == 1: mfma1(mf_half, i % 2, i // 2)
            elif opt["qm"] == 2: mfma1(mf_half, i % 2, (i // 2) if mf_half == 0 else 2 - i // 2)
            elif opt["qm"] == 3: mfma1(mf_half, i // 3, (i % 3) if i < 3 else 5 - i)
            else: mfma1(mf_half, i // 3, i % 3)
        left = 6 - i
        for _ in range((len(rds) + left - 1) // left if i else min(len(rds), 4)):
            if rds: rds.pop(0)()
        if cnt is not None:
            for _ in range(cnt[i]):
                if fill: fill.pop(0)()
            if i == 5:
                while fill: fill.pop(0)()
            continue
        for _ in range((len(fill) + left - 1) // left):
            if fill: fill.pop(0)()
    assert not rds and not fill

def flag_store(off, lanes=0):
    fk = opt["fk"]
    if opt["fpre"]:
        e(f"buffer_store_dword v{vT}, v{249 if lanes else 248}, {srd(sH)}, s{off} offen sc1"); VM.issue("flag")
        return
    if fk in (1, 3, 4):
        for r in range(4): e(f"v_mov_b32 v{vTM+12+r}, s{sTAG}")
        e(f"s_mov_b64 exec, {dict([(1,255),(3,1),(4,15)])[fk]}")
        e(f"buffer_store_dwordx4 {vr(vTM+12,4)}, v{vL16}, {srd(sH)}, s{off} offen sc1"); VM.issue("flag")
        e("s_mov_b64 exec, -1")
        return
    e(f"v_mov_b32 v{vT}, s{sTAG}")
    e(f"s_mov_b64 exec, {(1 << lanes) - 1}" if lanes else "s_mov_b32 exec_hi, 0" if fk == 0 else "s_mov_b64 exec, 1")
    e(f"buffer_store_dword v{vT}, v{vL4}, {srd(sH)}, s{off} offen sc1"); VM.issue("flag")
    e("s_mov_b64 exec, -1")
def r_poll():
    e(f"s_mov_b32 s{sT0}, {HREC if opt['norp'] else RFL}")
    e(f"buffer_load_dword v{vPOLL}, v{vRP}, {srd(sH)}, s{sT0} offen sc1"); VM.issue("rpoll")

def spin_slow(lab, vv, va, so):
    e(f"L_{lab}_s:")
    e(f"s_mov_b32 s{sSPIN}, 20000")
    e(f"L_{lab}:")
    e(f"buffer_load_dword v{vv}, v{va}, {srd(sH)}, s{so} offen sc1")
    e(f"s_sub_u32 s{sSPIN}, s{sSPIN}, 1")
    e("s_waitcnt vmcnt(0)")
    e(f"v_cmp_ne_u32 vcc, s{sTAG}, v{vv}")
    e(f"s_cbranch_scc1 L_{lab}_go")
    e(f"s_cbranch_vccnz L_{lab}")
    e(f"s_branch L_{lab}_go")
def spin_fast(lab, vv, tag):
    VM.wait(tag)
    e(f"v_cmp_ne_u32 vcc, s{sTAG}, v{vv}")
    e(f"s_cbranch_vccnz L_{lab}_s")
    e(f"L_{lab}_go:")
def spin_check(lab, vv, va, tag, so=None, fake=False):
    VM.wait(tag)
    e(f"s_mov_b32 s{sSPIN}, 20000")
    e(f"L_{lab}:")
    e(f"v_cmp_ne_u32 vcc, s{sTAG}, v{vv}")
    e("s_cmp_eq_u64 vcc, 0" if not fake else "s_cmp_eq_u32 s2, s2")
    e(f"s_cbranch_scc1 L_{lab}_go")
    e(f"s_sub_u32 s{sSPIN}, s{sSPIN}, 1")
    e(f"s_cmp_eq_u32 s{sSPIN}, 0")
    e(f"s_cbranch_scc1 L_{lab}_go")
    if so is None: e(f"s_mov_b32 s{sT0}, {RFL}")
    e(f"buffer_load_dword v{vv}, v{va}, {srd(sH)}, s{sT0 if so is None else so} offen sc1")
    e("s_waitcnt vmcnt(0)")
    e(f"s_branch L_{lab}")
    e(f"L_{lab}_go:")
def r_check(): spin_check("rp", vPOLL, vRP, "rpoll", None, opt["norp"])

PEND = []
EMU = [int(c) for c in str(opt["emu"]).lstrip("x")]
def emu_ops(bi):
    q, g2 = bi // 2, bi % 2
    a0 = 216; tt = vS + (bi % 2) * 8; pk = vRF + 8 + bi * 4
    ops = []
    if opt["emv"] and not opt["epk"]:
        for r in range(8): ops.append(f"v_mul_f32 v{tt+r}, s{sL2E}, v{a0+r}")
        for r in range(8): ops.append(f"v_exp_f32 v{tt+r}, v{tt+r}")
        for r in range(8): ops.append(f"v_add_f32 v{tt+r}, 1.0, v{tt+r}")
        for r in range(8): ops.append(f"v_rcp_f32 v{tt+r}, v{tt+r}")
        for r in range(8): ops.append(f"v_mul_f32 v{tt+r}, v{a0+r}, v{tt+r}")
        for r in range(4): ops.append(f"v_cvt_pk_bf16_f32 v{pk+r}, v{tt+2*r}, v{tt+2*r+1}")
    elif opt["emv"]:
        for r in range(0, 8, 2): ops.append(f"v_pk_mul_f32 {vr(tt+r,2)}, {vr(a0+r,2)}, s[{sPK}:{sPK+1}]")
        for r in range(8): ops.append(f"v_exp_f32 v{tt+r}, v{tt+r}")
        for r in range(0, 8, 2): ops.append(f"v_pk_add_f32 {vr(tt+r,2)}, {vr(tt+r,2)}, 1.0 op_sel_hi:[1,0]")
        for r in range(8): ops.append(f"v_rcp_f32 v{tt+r}, v{tt+r}")
        for r in range(0, 8, 2): ops.append(f"v_pk_mul_f32 {vr(tt+r,2)}, {vr(a0+r,2)}, {vr(tt+r,2)}")
        for r in range(4): ops.append(f"v_cvt_pk_bf16_f32 v{pk+r}, v{tt+2*r}, v{tt+2*r+1}")
    fs = [(lambda l=l: e(l)) for l in ops]
    def st_():
        e(f"buffer_store_dwordx4 {vr(pk,4)}, v{vHS}, {srd(sH)}, s{sHS} offen offset:{g2*512 + (q%2)*2048} sc1"); VM.issue("hstA" if opt["ab"] else "hst")
    if not opt['ems']: PEND.append(st_); return fs
    return fs + [st_]
def merge(a, b):
    r = []; a = list(a); b = list(b); na, nb_ = len(a), len(b)
    while a or b:
        if a and (not b or len(a) * nb_ >= len(b) * na): r.append(a.pop(0))
        else: r.append(b.pop(0))
    return r
if EMU:
    for r in range(8): e(f"v_cvt_f32_u32 v{216+r}, v{vL16}"); e(f"v_mul_f32 v{216+r}, 0x3a000000, v{216+r}")
for st in range(10):
    if st == 1 and opt["fpre"]:
        e(f"s_mul_i32 s{sTAG}, s{sE}, 0x9E3779B1")
        e(f"s_add_u32 s{sTAG}, s{sTAG}, 0x7F4A7C15")
        e(f"v_mov_b32 v{vT}, s{sTAG}")
    if st == opt["wu"]:
        e("s_mov_b64 exec, 0")
        for k in range(1, 4):
            e(f"s_cmp_eq_u32 s{sW}, {k}")
            e(f"s_cbranch_scc1 L_w{k}")
        e("L_wr:")
        e("s_mov_b64 exec, -1")
    if st != opt["nw"]: VM.wait(f"st{st}")
    if st == opt["rjs"]: VM.wait("rld")
    if st == opt["rfs"]: VM.wait("rst"); VM.wait("clr")
    if st == opt["afs"] and st: VM.wait("hstA")
    LG.drain()
    e("s_barrier")
    if st == opt["afs"] and st:
        e(f"s_cmp_eq_u32 s{sW}, 0")
        e(f"s_cselect_b32 s{sT1}, s{sFLG}, {HREC}")
        flag_store(sT1); stamp(k=7)
    if st == 9: stamp()
    stamp(k=1)
    if st >= 8: stamp(k=4)
    if st == opt["rfs"] or (RPW and st == 1):
        if not opt["fpre"]:
            e(f"s_mul_i32 s{sTAG}, s{sE}, 0x9E3779B1")
            e(f"s_add_u32 s{sTAG}, s{sTAG}, 0x7F4A7C15")
        if not RPW and opt["fpre"] < 2: flag_store(sRFL, opt["rpk"] // 4)
    if not D1 and ((st == opt["rcs"] and opt["rck"] == 0) or (st == 9 and opt["rck"] == 2)): r_check()
    if NSL == 4:
        if st == 0: fill = ([] if opt["pre3"] else dma_ops(2)) + dma_ops(3)
        elif st < 7: fill = dma_ops(st + 3)
        else: fill = take(opt[f"n{st}"])
    elif st == 0 and opt["pre3"]: fill = list(ST0)
    elif st < 8: fill = dma_ops(st + 2) + (take(opt["d7"]) if st == 7 else [])
    else: fill = take(opt["n8"] if st == 8 else opt["n9"])
    if st == opt["dst"]: fill = fill + take(opt["dn"])
    if opt["tch"] and st + opt["la"] < 10: fill.insert(opt["tpos"], touch)
    if st == opt["rls"]: fill = [r_loads] + fill if opt["rpos"] == 0 else fill + [r_loads]
    if st == opt["rjs"]:
        fill.insert(min(opt["rsp"], len(fill)), r_stores)
        fill = [r_reads] + fill
    if st == opt["rps"] and not D1: fill.insert(opt["rpp"], r_poll)
    if st == opt["rfs"] and opt["fpre"] >= 2: fill.insert(min(opt["fpre"] - 2, len(fill)), lambda: flag_store(sRFL, opt["rpk"] // 4))
    if st == opt["wts"]: fill.insert(min(opt["wtp"], len(fill)), wtouch)
    WX = [int(c) for c in str(opt["wx"]).lstrip("x")]
    for k, c in enumerate(WX):
        if c == st: fill.insert(min(opt["wxp"], len(fill)), wxtouch(k, len(WX)))
    if st == opt['sws']: fill.insert(min(opt['swp'], len(fill)), stouch)
    if st == opt["ot"]:
        def otch():
            if opt["otm"] == 1: e("s_mov_b64 exec, 1")
            e(f"buffer_load_dword v251, v{vOUT}, {srd(sOUT)}, s{sOB} offen"); VM.issue("ot")
            if opt["otm"] == 3: e(f"buffer_load_dword v251, v{vOUT2}, {srd(sOUT)}, s{sOB} offen offset:128"); VM.issue("ot")
            e("s_mov_b64 exec, -1")
        fill.append(otch)
    ex = [CLO[i] for i, c in enumerate(str(opt["clrs"]).lstrip("x")) if int(c) == st]
    for bi, es in enumerate(EMU):
        if es == st: ex += emu_ops(bi)
    if ex: fill = merge(fill, ex)
    h = (len(fill) + 1) // 2
    f0, f1 = fill[:h], fill[h:]
    if st == 8 and opt["rck"] == 1:
        k = 1 if opt["rps"] == 8 else 0
        f0, f1 = fill[:k], [r_check] + fill[k:]
    if opt["fp"] and st:
        c = [int(z) for z in str(opt["fp"]).lstrip("x")]
        assert sum(c) == 8
        if st == opt["rjs"]: c[-12] += 1
        if len(c) == 13:
            k = c.pop(0)
            pre, fill = fill[:k + (st == opt["rjs"])], fill[k + (st == opt["rjs"]):]
            if st == opt["rjs"]: fill.insert(0, pre.pop(0))
            for f in pre: f()
        h = sum(c[:6])
        half_body(1, rd_ops(st, 0), fill[:h], c[:6])
        half_body(0, rd_ops(st, 1), fill[h:], c[6:])
        continue
    half_body(1 if st else None, rd_ops(st, 0), f0)
    half_body(0, rd_ops(st, 1), f1)
stamp()
def silu_block(q, g2):
    a0 = vACC1 + 16*q + 8*g2
    bi = 2*q + g2
    tt = vS + (bi % 2) * 8
    pk = vRF + bi * 4
    ops = []
    if opt["pk"]:
        for r in range(0, 8, 2): ops.append(f"v_pk_mul_f32 {vr(tt+r,2)}, {vr(a0+r,2)}, s[{sPK}:{sPK+1}]")
        for r in range(8): ops.append(f"v_exp_f32 v{tt+r}, v{tt+r}")
        for r in range(0, 8, 2): ops.append(f"v_pk_add_f32 {vr(tt+r,2)}, {vr(tt+r,2)}, 1.0 op_sel_hi:[1,0]")
        for r in range(8): ops.append(f"v_rcp_f32 v{tt+r}, v{tt+r}")
        for r in range(0, 8, 2): ops.append(f"v_pk_mul_f32 {vr(tt+r,2)}, {vr(a0+r,2)}, {vr(tt+r,2)}")
    else:
        for r in range(8): ops.append(f"v_mul_f32 v{tt+r}, s{sL2E}, v{a0+r}")
        for r in range(8): ops.append(f"v_exp_f32 v{tt+r}, v{tt+r}")
        for r in range(8): ops.append(f"v_add_f32 v{tt+r}, 1.0, v{tt+r}")
        for r in range(8): ops.append(f"v_rcp_f32 v{tt+r}, v{tt+r}")
        for r in range(8): ops.append(f"v_mul_f32 v{tt+r}, v{a0+r}, v{tt+r}")
    for r in range(4): ops.append(f"v_cvt_pk_bf16_f32 v{pk+r}, v{tt+2*r}, v{tt+2*r+1}")
    nbs = str(opt["nb"]).lstrip("x")
    fill = take(int(nbs[bi] if len(nbs) > 1 else nbs))
    if opt["tsil"] and bi >= 6 - opt["tsil"]: fill = fill + tgroup_ops(len(TDONE))
    step = len(ops) // (len(fill) + 1) if fill else 0
    for i, l in enumerate(ops):
        if not opt["novalu"]: e(l)
        if fill and step and (i + 1) % step == 0: fill.pop(0)()
    for f in fill: f()
    so = sHS if q < 2 else sHS2
    def st_():
        if opt["nost"]: return
        if OW:
            e(f"buffer_store_dwordx4 {vr(pk,4)}, v{vHS}, {srd(sH)}, s{(sHS, 10, sHS2)[q]} offen offset:{g2*512} sc1"); VM.issue("hst")
            if q < 2: e(f"ds_write_b128 v{vOW+q}, {vr(pk,4)} offset:{g2*512}"); LG.issue("ow")
            return
        if opt["own"]:
            e(f"buffer_store_dwordx4 {vr(pk,4)}, v{vHS}, {srd(sH)}, s{(sHS, sHS1, sHS2)[q]} offen offset:{g2*512} sc1"); VM.issue("hst")
            if q < 2: e(f"ds_write_b128 v{vOW+q}, {vr(pk,4)} offset:{q*8192 + g2*512}"); LG.issue("ow")
            return
        if opt["r16"]:
            e(f"buffer_store_dwordx4 {vr(pk,4)}, v{vHS if g2 else vL16}, {srd(sH)}, s{so} offen offset:{(q%2)*2048} {opt['hsaux'].replace('-','')}"); VM.issue("hst")
            return
        e(f"buffer_store_dwordx4 {vr(pk,4)}, v{vHS}, {srd(sH)}, s{so} offen offset:{g2*512 + (q%2)*2048} {opt['hsaux'].replace('-','')}"); VM.issue("hstA" if opt["ab"] and q < 2 else "hst")
        if opt["hs2"]:
            e(f"buffer_store_dwordx4 {vr(pk,4)}, v{vHS}, {srd(sH)}, s{so} offen offset:{g2*512 + (q%2)*2048} {opt['hs2'].replace('-','')}"); VM.issue("hst")
    PEND.append(st_)
    if bi >= opt["sl"]:
        while PEND: PEND.pop(0)()
if opt["st0"]:
    e(f"s_cmp_lt_u32 s{sW}, {opt['st0']}")
    e(f"s_cselect_b32 s{sHS}, s{sHS}, {HREC}")
    e(f"s_cselect_b32 s{sHS2}, s{sHS2}, {HREC}")
if opt["r16"]:
    for i in range(12):
        mfma16(1, i)
        if opt["rfs"] == 10 and i == 4: VM.wait("rst"); flag_store(sRFL, opt["rpk"] // 4)
else:
    for q in range(3):
        for kk in range(2): mfma1(1, kk, q)
    e("s_nop 7")
stamp(k=4)
if opt["sts"] == 4: VM.drain(); stamp(k=4)
def cnt_add(tag, off):
    VM.wait(tag)
    e("s_mov_b64 exec, 1")
    e(f"ds_add_rtn_u32 v{vT+1}, v{vCN}, v{vONE} offset:{off}")
    e("s_mov_b64 exec, -1")
def cnt_flag(add):
    e("s_waitcnt lgkmcnt(0)"); LG.q = []
    e(f"v_readfirstlane_b32 s{sT0}, v{vT+1}")
    e(f"s_add_u32 s{sT1}, s{sFLG}, {add}")
    e(f"s_cmp_eq_u32 s{sT0}, 3")
    e(f"s_cselect_b32 s{sT1}, s{sT1}, {HREC}")
    flag_store(sT1)
def silu_mix():
    P = opt["sil"] == 1
    T = []; N = []
    def ln(t): return lambda: e(t)
    def mulA(b):
        a0 = vACC1 + 8*b; tt = vS + (b % 2) * 8
        if P: return [(f"m{b}{r}", [], ln(f"v_pk_mul_f32 {vr(tt+r,2)}, {vr(a0+r,2)}, s[{sPK}:{sPK+1}]")) for r in range(0, 8, 2)]
        return [(f"m{b}{r}", [], ln(f"v_mul_f32 v{tt+r}, s{sL2E}, v{a0+r}")) for r in range(8)]
    def add(b):
        tt = vS + (b % 2) * 8
        if P: return [(f"a{b}{r}", [f"e{b}{r+1}"], ln(f"v_pk_add_f32 {vr(tt+r,2)}, {vr(tt+r,2)}, 1.0 op_sel_hi:[1,0]")) for r in range(0, 8, 2)]
        return [(f"a{b}{r}", [f"e{b}{r}"], ln(f"v_add_f32 v{tt+r}, 1.0, v{tt+r}")) for r in range(8)]
    def fin(b):
        a0 = vACC1 + 8*b; tt = vS + (b % 2) * 8; pk = vRF + b * 4
        q, g2 = b // 2, b % 2
        m = []
        for r in range(0, 8, 2):
            if P: m.append([(f"f{b}{r}", [f"r{b}{r+1}"], ln(f"v_pk_mul_f32 {vr(tt+r,2)}, {vr(a0+r,2)}, {vr(tt+r,2)}"))])
            else: m.append([(f"f{b}{r+1-z}", [f"r{b}{r+z}"], ln(f"v_mul_f32 v{tt+r+z}, v{a0+r+z}, v{tt+r+z}")) for z in range(2)])
        c = [(f"c{b}{r}", [f"f{b}{2*r}"], ln(f"v_cvt_pk_bf16_f32 v{pk+r}, v{tt+2*r}, v{tt+2*r+1}")) for r in range(4)]
        def st_():
            e(f"buffer_store_dwordx4 {vr(pk,4)}, v{vHS}, {srd(sH)}, s{sHS if q < 2 else sHS2} offen offset:{g2*512 + (q%2)*2048} {opt['hsaux'].replace('-','')}"); VM.issue("hst")
        return m[0] + m[1] + [c[0]] + m[2] + [c[1]] + m[3] + [c[2], c[3], (f"s{b}", [], st_)]
    N += mulA(0)
    for b in range(6):
        tt = vS + (b % 2) * 8
        T += [(f"e{b}{r}", [f"m{b}{r & ~1 if P else r}"], ln(f"v_exp_f32 v{tt+r}, v{tt+r}")) for r in range(8)]
        T += [(f"r{b}{r}", [f"a{b}{r & ~1 if P else r}"], ln(f"v_rcp_f32 v{tt+r}, v{tt+r}")) for r in range(8)]
        N += add(b)
        if b < 5: N += mulA(b + 1)
        N += fin(b)
    done = {}
    I0 = len(O)
    def emit(x): x[2](); done[x[0]] = len(done)
    K = [int(c) for c in str(opt["silk"]).lstrip("x")]
    for i, t in enumerate(T):
        while not all(d in done for d in t[1]): emit(N.pop(0))
        emit(t)
        k = K[i % len(K)]
        while N and all(d in done and len(done) - done[d] >= opt["sild"] for d in N[0][1]) and (k > 0 or N[0][0][0] == "s"):
            if N[0][0][0] != "s": k -= 1
            emit(N.pop(0))
    for x in N: emit(x)
    O[I0-8:] = fix(O[I0-8:])
if opt["sil"]: silu_mix()
for q in range(3 if not opt["sil"] else 0):
    for g2 in range(2):
        bi = 2*q + g2
        if opt["ab"] and not opt["afs"] and bi == 4 + opt["afp"]: cnt_add("hstA", 0); stamp(k=7)
        if opt["rfs"] == 11 + bi: VM.wait("rst"); flag_store(sRFL, opt["rpk"] // 4)
        if bi >= len(EMU): silu_block(q, g2)
        if opt["ab"] and not opt["afs"] and bi == 4 + opt["afp"]: cnt_flag(0); stamp(k=7)
stamp(); stamp(k=4); stamp(k=8)
if not opt["spec"]:
    NT = (48 - len(W2L)) // 4
    PL = take(opt["post"])
    if opt["tpm"]:
        TL = []
        while len(TDONE) < NT: TL += tgroup_ops(len(TDONE))
        PL = merge(PL, TL) if opt["tpm"] == 1 else TL + PL
    for i, f in enumerate(PL):
        if D1 and i == opt["rpq"] and opt["rpl"] < 0: r_poll()
        if i == opt["pae"]:
            e(f"buffer_load_dword v{vPOLL}, v{vPA}, {srd(sH)}, s{sPOL} offen sc1"); VM.issue("poll")
        f()
    if opt["wb"]:
        VM.wait("hst")
        e("buffer_wbl2 sc1"); VM.issue("hst")
    if D1:
        while len(TDONE) < NT: tgroup(len(TDONE))
    stamp(k=8)
    if not opt["nhw"]: VM.wait("hst")
    stamp(k=8)
    stamp(k=4)
    if opt["sts"] == 4: VM.drain(); stamp(k=4)
    if opt["fb"]:
        if not opt["fpre"]:
            e(f"s_cmp_eq_u32 s{sW}, 0")
            e(f"s_cselect_b32 s{sFLG}, s{sFLG}, {HREC}")
        if opt["own"]: LG.drain()
        if OW: LG.drain()
        e("s_barrier")
    else:
        e("s_mov_b64 exec, 1")
        e(f"ds_add_rtn_u32 v{vT+1}, v{vCN}, v{vONE} offset:{4 if opt['ab'] else 0}")
        e("s_mov_b64 exec, -1")
        if opt["ab"]: e(f"s_add_u32 s{sFLG}, s{sFLG}, {FLB}")
        for f in take(opt["mid"]): f()
        e("s_waitcnt lgkmcnt(0)")
        e(f"v_readfirstlane_b32 s{sT0}, v{vT+1}")
        e(f"s_cmp_eq_u32 s{sT0}, {3 if opt['nopoll'] < 2 else 9}")
        e(f"s_cselect_b32 s{sFLG}, s{sFLG}, {HREC}")
    if opt["nopoll"] == 3: e(f"s_mov_b32 s{sPOL}, {HREC}")
    flag_store(sFLG)
    if opt["fb"] == 2: e("s_barrier")
    stamp(); stamp(k=3)
else:
    for f in take(opt["fw"]): f()
    VM.wait("hst")
    e(f"s_lshl_b32 s{sT0}, s{sW}, 15")
    e(f"s_add_u32 s{sFLG}, s{sFLG}, s{sT0}")
    flag_store(sFLG)
    stamp()
N0 = 1 if OW else 0
HL = [(p, n) for p in range(4) for n in range(N0, 12)]
def hreg(p, n): return vH + (p*(12-N0) + n - N0)*4
def park(p, j): return [vACC2, 196, 216, 240][p] + 4*j if (p, j) != (3, 4) else 236
def ofr(p): return vr(152+4*p, 4) if opt['owv'] else ar(240+4*p, 4)
def own_reads():
    for p in range(4):
        e(f"ds_read_b128 {ofr(p)}, v{vRW} offset:{32768 + 4096 + p*1024}"); LG.issue(f"or{p}"); ORD.append(f"or{p}")
def own_ops(js):
    def mk(p, j):
        def f():
            LG.wait(f"or{p}"); LG.wait("t0")
            if j == 4: VM.wait("w0")
            if opt["nom"]: return
            mf2(vr(park(p, j), 4), 0, j, ofr(p), '0')
        return f
    return [mk(p, j) for p in range(4) for j in js]
def hload():
    if HL:
        p, n = HL.pop(0)
        if opt["noh"] and (p*12+n) % opt["noh"]: return
        e(f"buffer_load_dwordx4 {vr(hreg(p, n), 4)}, v{vHB+p}, {srd(sH)}, s{sSIG+n} offen {opt['haux'].replace('-','')}"); VM.issue(f"h{p}_{n}")
def mark(v):
    if not opt["stamps"] or opt["sts"]: return
    i = NST[0]; NST[0] += 1
    e(f"s_add_u32 s{72+2*i}, s74, {v}"); e(f"s_addc_u32 s{73+2*i}, s75, 0")
ACI = []; OOL = []
def allc_load(late=False):
    if opt["acb"] == 2 or (opt["acp"] >= 0) != late: return
    if opt["acb"] == 3:
        e("s_cmp_eq_u32 s2, 0")
        e("s_cbranch_scc1 L_aclo")
        e("L_acl:")
        OOL.extend(["L_aclo:", f"s_mov_b32 s{sT0}, {FL}", f"buffer_load_dword v{vAV}, v{vAC}, {srd(sH)}, s{sT0} offen sc1", "s_branch L_acl"])
        return
    if opt["acb"]:
        e("s_cmp_lg_u32 s2, 0")
        e("s_cbranch_scc1 L_acl")
        e(f"s_mov_b32 s{sT0}, {FL}")
        e(f"buffer_load_dword v{vAV}, v{vAC}, {srd(sH)}, s{sT0} offen sc1")
        e("L_acl:")
        VM.q.insert(0, "allc") if False else None
        ACI.append(len(VM.q))
        return
    e("s_cmp_eq_u32 s2, 0")
    e(f"s_cselect_b32 s{sT0}, {FL if D1 else RFL}, s{sH+2}")
    e(f"buffer_load_dword v{vAV}, v{vAC}, {srd(sH)}, s{sT0} offen sc1"); VM.issue("allc")
def p0_block(ML, pre):
    ML = list(ML)
    TL = []
    while D1 and len(TDONE) < 12 - opt["tin"]: TL += tgroup_ops(len(TDONE))
    for f in (merge(ML[:pre], TL) if opt["tmix"] else ML[:pre] + TL): f()
    if OW:
        for f in own_ops([4]): f()
    del ML[:pre]
    if D1 and not opt["tin"]: LG.drain()
    stamp()
    for n in range(N0, 12):
        assert (0, n) not in HL and not any(getattr(f, "__defaults__", None) and f.__defaults__[0] == n for f in ML), n
        late = max((f"h0_{n}", f"w{n}"), key=lambda t: len(VM.q) - 1 - VM.q[::-1].index(t) if t in VM.q else -1)
        VM.wait(late)
        TL = []
        if D1:
            assert f"t{n}" in TDONE
            LG.wait(f"t{n}")
            if len(TDONE) < 12: TL = tgroup_ops(len(TDONE))
        if n == N0 or n == 6: stamp(k=2)
        cnt = (len(ML) + 11 - n) // (12 - n)
        pos = {1: [opt["hj"]], 2: [1, 3], 3: [0, 2, 4], 4: [0, 1, 2, 3], 5: [0, 1, 2, 3, 4], 0: []}[cnt]
        for j in range(5):
            c = "0" if n == 0 else vr(vACC2+4*j, 4)
            mf2(vr(vACC2+4*j,4), n, j, vr(hreg(0, n),4), c)
            if j in pos: ML.pop(0)()
            elif TL: TL.pop(0)()
        for f in TL: f()
    assert not ML and not W2L
TP = []
def tstep(n):
    if not opt["tfm"]: return
    if not TP and len(TDONE) <= n - opt["tfm"] and len(TDONE) < 12 - opt["tlate"]: TP.extend(tgroup_ops(len(TDONE)))
    if TP: TP.pop(0)()
def late_d1():
    W5 = w5_ops()
    cnt = 0
    vP2 = vAV if opt["pqd"] or opt["rcl"] else vPOLL
    def poll():
        stamp(k=3)
        e(f"buffer_load_dword v{vP2}, v{vPA}, {srd(sH)}, s{sPOL} offen sc1"); VM.issue("poll")
    OM = []
    if OW: own_reads(); OM = own_ops(range(4))
    while W2L:
        n = W2L[0].__defaults__[0]
        if W2L[0].__defaults__[1] == 0 and WDEP[n]:
            while WDEP[n] not in TDONE + ORD: tgroup(len(TDONE))
            LG.wait(WDEP[n])
        if len(W2L) == opt["pqd"]: poll()
        if cnt == opt["rpl"]: r_poll()
        take(1)[0](); cnt += 1
        if OM and cnt > opt["owp"]: OM.pop(0)()
        if opt["tfm"]: tstep(n)
        elif cnt % opt["tl"] == 0 and len(TDONE) < n - 2: tgroup(len(TDONE))
    if opt["owp"] < 50:
        for f in OM: f()
        OM = []
    if not opt["rcl"]: r_check()
    else: assert opt["w5d"] == 12
    WD = W5[12-opt["w5d"]:]; del W5[12-opt["w5d"]:]
    def om(i):
        if 50 <= opt["owp"] < 90 and i >= opt["owp"] - 50:
            for _ in range(2):
                if OM: OM.pop(0)()
    for i, f in enumerate(W5[:opt["w5p"]]): f(); tstep(12 + i // 4); om(i)
    if not opt["pqd"]: poll()
    for i, f in enumerate(W5[opt["w5p"]:]): f(); tstep(12 + (i + opt["w5p"]) // 4); om(i + opt["w5p"])
    for f in TP: f()
    for f in OM: f()
    stamp(k=3)
    while len(TDONE) < 12 - opt['tlate']: tgroup(len(TDONE))
    if opt["hid"]:
        e("s_branch L_hid")
        spin_slow("hp", vP2, vPA, sPOL)
        if opt["hid"] & 2:
            e("L_ac_c:")
            e(f"s_mov_b32 s{sT1}, {FL}")
            e(f"v_cmp_ne_u32 vcc, s{sTAG}, v{vAV}")
            e("s_cmp_eq_u64 vcc, 0")
            e(f"s_cbranch_scc1 L_ac_go")
            spin_slow("ac", vAV, vAC, sT1)
        if opt["al"]: e(".p2align 12")
        e("L_hid:")
    VM.wait("poll")
    stamp(k=3)
    stamp()
    if opt["hid"]: spin_fast("hp", vP2, "poll")
    else: spin_check("hp", vP2, vPA, "poll", sPOL, opt["nopoll"])
    stamp(); stamp(k=2); stamp(k=3)
    mark(1000)
    allc_load()
    if opt["c5"]:
        WDL.extend(WD); return
    ML = []; pre = 0
    for i in range(opt["hpre"] + 12 - N0):
        ML.append(hload)
        if WD and WD[0].__defaults__[0] == i: ML.append(WD.pop(0))
        if i == opt["hpre"] - 1: pre = len(ML)
    p0_block(ML, pre)
WDL = []
def late_path():
    if D1: return late_d1()
    if opt['skipw']: del W2L[-opt['skipw']:]
    if opt["sts"] == 6:
        stamp(k=6)
        i = 0
        while len(W2L) > opt["pollq"]:
            take(1)[0](); i += 1
            if i % 4 == 0 and i >= opt["dw"]:
                e(f"s_waitcnt vmcnt({opt['dw']})"); stamp(k=6)
    for f in take(max(0, len(W2L) - opt["pollq"])): f()
    stamp(k=3)
    if opt["sts"] == 3: VM.drain(); stamp(k=3)
    if opt["sts"] == 4: stamp(k=4); VM.drain(); stamp(k=4)
    if opt["sp"]:
        e(f"s_load_dword s6, s[12:13], s{sPOL} {opt['spg']}")
        e(f"s_add_u32 s{sT0}, s{sPOL}, 128")
        e(f"s_load_dword s7, s[12:13], s{sT0} {opt['spg']}")
        for f in take(len(W2L)): f()
        stamp(k=3)
        e("s_waitcnt lgkmcnt(0)")
        stamp(k=3)
        stamp()
        e(f"s_cmp_eq_u32 s6, s{sTAG}")
        e(f"s_cselect_b32 s6, s7, s6")
        e(f"s_cmp_eq_u32 s6, s{sTAG}")
        e("s_cbranch_scc1 L_hp_go")
        e(f"v_mov_b32 v{vPOLL}, s6")
        spin_check("hp", vPOLL, vPA, "poll", sPOL, opt["nopoll"])
    else:
        e(f"buffer_load_dword v{vPOLL}, v{vPA}, {srd(sH)}, s{sPOL} offen sc1"); VM.issue("poll")
        for f in take(len(W2L)): f()
        stamp(k=3)
        VM.wait("poll")
        stamp(k=3)
        stamp()
        spin_check("hp", vPOLL, vPA, "poll", sPOL, opt["nopoll"])
    stamp(); stamp(k=2); stamp(k=3)
    mark(1000)
    allc_load()
    p0_block([hload] * (opt["hpre"] + 12), opt["hpre"])
LATE = []
if opt["eq"]:
    import re
    for f in take(len(W2L) - opt["eq"]): f()
    e(f"buffer_load_dword v{vPOLL}, v{vPA}, {srd(sH)}, s{sPOL} offen sc1"); VM.issue("poll")
    for f in take(opt["ec"]): f()
    VM.wait("poll")
    e(f"v_cmp_ne_u32 vcc, s{sTAG}, v{vPOLL}")
    e("s_cmp_eq_u64 vcc, 0" if not opt["nopoll"] else "s_cmp_eq_u32 s2, s2")
    e("s_cbranch_scc0 L_late")
    sv = (list(VM.q), list(W2L), list(HL), NST[0])
    LATE = ["L_late:"] + capture(late_path) + ["s_branch L_p1"]
    endq, endn = list(VM.q), NST[0]
    VM.q, W2L[:], HL[:], NST[0] = sv
    stamp(); stamp(); stamp(k=2); mark(0)
    allc_load()
    m = re.match(r"h(\d+)w(\d+)", opt["eil"])
    ML = []; nh = 12; ws = take(len(W2L))
    while nh or ws:
        k = min(nh, int(m.group(1))); ML += [hload] * k; nh -= k
        k = int(m.group(2)); ML += ws[:k]; del ws[:k]
    ML += [hload] * opt["hpre"]
    p0_block(ML, opt["epre"])
    assert NST[0] == endn, (NST[0], endn)
    k = min(len(VM.q), len(endq))
    assert VM.q[-k:] == endq[-k:] and all(t.startswith("h1") for t in VM.q + endq), (VM.q, endq)
    if len(endq) > len(VM.q): VM.q = endq
    e("L_p1:")
elif opt["spec"]:
    allc_load()
    for f in take(len(W2L) - opt["wl"]): f()
    stamp(); stamp(); stamp(k=2); mark(1000)
    ws = take(len(W2L))
    p0_block([hload] * opt["hpre"] + merge(ws, [hload] * 12) if ws else [hload] * (opt["hpre"] + 12), opt["hpre"])
elif not opt["ab"] and not opt["dfw"]:
    late_path()
def allc_check():
    if opt["acb"] == 2: return
    if opt["hid"] & 2:
        assert "allc" not in VM.q
        e("s_cmp_eq_u32 s2, 0")
        e("s_cbranch_scc1 L_ac_c")
        e("L_ac_go:")
        return
    if opt["acb"] == 3:
        e("s_cmp_eq_u32 s2, 0")
        e("s_cbranch_scc1 L_aco")
        e("L_acb:")
        def body():
            e(f"s_mov_b32 s{sT1}, {FL}")
            spin_check("ac", vAV, vAC, "allc", sT1)
        OOL.extend(["L_aco:"] + capture(body) + ["s_branch L_acb"])
        return
    e("s_cmp_lg_u32 s2, 0")
    e("s_cbranch_scc1 L_ac_go")
    assert "allc" not in VM.q
    if D1: e(f"s_mov_b32 s{sT1}, {FL}")
    spin_check("ac", vAV, vAC, "allc", sT1 if D1 else None)
def phase2_new():
    B1, B2, MA = opt["b1"], opt["b2"], opt["madd"]
    for p in range(1, 4):
        ac = vACC2 + (p % 2) * 20
        pa = vACC2 + ((p-1) % 2) * 20
        slots = {(n, j): [] for n in range(12) for j in range(5)}
        if opt["wb64"]:
            for k in range(10):
                def w(k=k):
                    e(f"ds_write_b64 v{vRW if p < 3 else vRW2}, {vr(pa+2*k,2)} offset:{((p-1)%2)*32768 + (k//2)*1024 + (k%2)*8}")
                    LG.issue("red")
                i = 5*N0 + opt["wg0"] + k * opt["wgs"]
                assert i < 5 * min(B1, B2)
                slots[(i // 5, i % 5)].append(w)
        elif p > 0:
            PW = [(1, 0), (1, 2), (1, 4), (2, 1), (2, 3)]
            if opt["wq"]:
                q = str(opt["wq"]).lstrip("x")
                i0, di = int(q[2*p-2], 36), int(q[2*p-1], 36)
                PW = [((i0 + k*di) // 5, (i0 + k*di) % 5) for k in range(5)]
            for jj, pos in enumerate(PW):
                def w(jj=jj):
                    if D1: e(f"ds_write_b128 v{vRW if p < 3 else vRW2}, {vr(pa+4*jj,4)} offset:{((p-1)%2)*32768 + jj*1024}")
                    else: e(f"ds_write_b128 v{vRW}, {vr(pa+4*jj,4)} offset:{(p-1)*5120 + jj*1024}")
                    LG.issue("red")
                slots[(pos[0] + N0, pos[1])].append(w)
                assert pos[0] + N0 < (12, B1, B2)[p-1]
        def rd(pp, j, dst):
            def f():
                e(f"ds_read_b128 {vr(dst, 4)}, v{vRR+pp} offset:{j*1024}"); LG.issue(f"rr{pp}{j}")
            return f
        if p == 2:
            k = 0
            for j in range(5):
                for pp in range(2):
                    slots[(B1 + k // 5, k % 5)].append(rd(pp, j, vH + pp*20 + 4*j)); k += opt["rds"]
            assert B1 + 3 <= 8 or opt["wq"]
            for i in range(20):
                def a(i=i):
                    LG.wait(f"rr1{i//4}")
                    if OW and opt["ada"] == 7:
                        e(f"v_add_f32 v{pa+i}, v{vH+i}, v{vH+20+i}")
                        if i: e(f"v_add_f32 v{pa+i-1}, v{pa+i-1}, v{park(3, (i-1)//4) + (i-1)%4}")
                        if i == 19: e(f"v_add_f32 v{pa+i}, v{pa+i}, v{park(3, 4) + 3}")
                        return
                    if OW:
                        jt, r = i // 4, (i % 2) * 2
                        d = vr(pa + 4*jt + r, 2)
                        if i % 4 < 2: e(f"v_pk_add_f32 {d}, {vr(vH + 4*jt + r, 2)}, {vr(vH + 20 + 4*jt + r, 2)}")
                        else: e(f"v_pk_add_f32 {d}, {d}, {vr(park(3, jt) + r, 2)}")
                        return
                    e(f"v_add_f32 v{pa+i}, v{vH+i}, v{vH+20+i}")
                i2 = 5*opt["ad0"] + i * (60 - 5*opt["ad0"]) // 20
                assert i2 > 5*B1 + (2*(i//4) + 1)*opt["rds"]
                slots[(i2 // 5, i2 % 5)].append(a)
        if p == 3:
            for j in range(5): slots[(B2, j)].append(rd(2, j, vH + 4*j))
            if opt["smd"]:
                MA = -1
                for j in range(5):
                    for r in range(4):
                        def a(j=j, r=r):
                            LG.wait(f"rr2{j}")
                            e(f"v_add_f32 v{ac+4*j+r}, v{ac+4*j+r}, v{vH+4*j+r}")
                        i = (opt["smd"] + j) * 5 + j + 2 + r // 2 if opt["smd"] + 5 < 12 else opt["smd"] * 5 + 3 * j + (2*j) % 5 * 0 + 99
                        slots[(i // 5, i % 5)].append(a)
        K4 = opt["k4"] if p == 3 else 0
        if K4: MA = -1; I0 = len(O)
        for n in range(N0, 12 - (opt["k2"] if K4 else 0)):
            if (p == 2 and n == B1) or (p == 3 and n == B2):
                if p == 3: allc_check(); stamp(k=2)
                LG.drain(); e("s_barrier")
                if p == 3: stamp(k=2)
            VM.wait(f"h{p}_{n}")
            if p * 12 + n == opt["acp"]: allc_load(True)
            if p * 12 + n == opt["es"]:
                e(f"s_lshl_b32 s6, s{sMT}, 2")
                e(f"s_add_u32 s6, s6, s{sOWN}")
                e(f"s_mul_i32 s6, s6, {16*1280}")
                e(f"s_mul_i32 s7, s{sFT}, 160")
                e(f"s_add_u32 s6, s6, s7")
                e(f"s_cmp_lt_u32 s{sW}, {opt['ost']}")
                e(f"s_cselect_b32 s6, s6, 2621440")
                ax = opt['esaux'].replace('-', '')
                for b in range(2):
                    e(f"buffer_store_dwordx4 {vr(vH+40+4*b,4)}, v{vOUT}, {srd(sOUT)}, s6 offen offset:{64*b} {ax}"); VM.issue("es")
                e(f"buffer_store_dwordx2 {vr(vH+40,2)}, v{vOUT2}, {srd(sOUT)}, s6 offen offset:128 {ax}"); VM.issue("es")
            if n == N0 or (n == 6 and p < 3): stamp(k=2)
            def madd(j):
                LG.wait(f"rr2{j}")
                for r in range(4): e(f"v_add_f32 v{ac+4*j+r}, v{ac+4*j+r}, v{vH+4*j+r}")
            mid = p == 3 and n == MA
            if mid: e("s_nop 3"); madd(0)
            for j in range(5):
                c = "0" if n == 0 and p < 3 else vr(ac+4*j, 4)
                if OW and n == 1 and p < 3: c = vr(park(p, j), 4)
                if mid:
                    if j < 4: madd(j+1)
                    else: e("s_nop 0")
                if j < 4 or n < 12 - K4: mf2(vr(ac+4*j,4), n, j, vr(hreg(p, n),4), c)
                if j == opt["hj"]: hload()
                for f in slots[(n, j)]: f()
                if K4 and opt["a4"] and n == opt["a4"] and j < 4:
                    assert n > 12 - K4 and n > B2
                    LG.wait("rr24"); e(f"v_add_f32 v{ac+16+j}, v{ac+16+j}, v{vH+16+j}")
    if opt["k4"]:
        tile_tail()
        O[I0:] = fix(O[I0:])
    else: out_tail()
def tile_tail():
    K2, K4 = opt["k2"], opt["k4"]
    assert opt["bp"] and opt["t4"] and not HL
    ac = vACC2 + 20; pk = vH + 64
    ML = [(n, j) for g in ((0, 1), (2, 3)) for n in range(12 - K2, 12) for j in g] + [(n, 4) for n in range(12 - K4, 12)]
    def add(j):
        def mk(r):
            def f(): LG.wait(f"rr2{j}"); e(f"v_add_f32 v{ac+4*j+r}, v{ac+4*j+r}, v{vH+4*j+r}")
            return f
        return [mk(r) for r in range(4)]
    def ln(t): return lambda: e(t)
    def cvt(j): return [ln(f"v_cvt_pk_bf16_f32 v{pk+2*j+r}, v{ac+4*j+2*r}, v{ac+4*j+2*r+1}") for r in range(2)]
    def sw(b): return [ln(f"v_permlane32_swap_b32 v{pk+4*b+r}, v{pk+4*b+2+r}") for r in range(2)]
    def bp(b):
        def mk(r):
            def f(): e(f"ds_bpermute_b32 v{pk+16+4*b+r}, v{vL16b}, v{pk+4*b+r}"); LG.issue(f"bp{b}")
            return f
        return [mk(r) for r in (0, 2, 1, 3)]
    def st(b):
        def f():
            LG.wait(f"bp{b}")
            e(f"buffer_store_dwordx4 {vr(pk+16+4*b,4)}, v{vOUT}, {srd(sOUT)}, s{sOB} offen offset:{64*b} {opt['outaux']}")
        return [f]
    fd = opt["fd"]
    Qo = [(0, f) for f in ([] if opt["a4"] else add(4))] + [(fd - 1, f) for f in add(2) + add(3)]
    n23 = len(Qo)
    Qo += [(2*K2 + fd - 1, f) for f in add(0) + add(1) + cvt(0) + cvt(1) + sw(0) + bp(0)]
    Qo += [(4*K2 + fd - 1, f) for f in cvt(2) + cvt(3) + sw(1) + bp(1) + st(0)]
    done = 0
    for i, (n, j) in enumerate(ML):
        if i == 2*K2:
            while done < n23: Qo.pop(0)[1](); done += 1
        VM.wait(f"h3_{n}")
        mf2(vr(ac+4*j,4), n, j, vr(hreg(3, n),4), vr(ac+4*j,4))
        for _ in range(opt["fr"]):
            if Qo and Qo[0][0] <= i: Qo.pop(0)[1](); done += 1
    stamp(); stamp(k=2)
    for _, f in Qo: f()
    for f in cvt(4): f()
    for r in range(4):
        e(f"buffer_store_short{'_d16_hi' if r % 2 else ''} v{pk+8+r//2}, v{vOUT2}, {srd(sOUT)}, s{sOB2} offen offset:{128 + r*1280} {opt['outaux']}")
    st(1)[0]()
def out_tail():
    stamp(); stamp(k=2)
    if opt["enc"]: stamp(True)
    ac = vACC2 + 20
    pk = vH + 64
    def cvt(j):
        for r in range(2): e(f"v_cvt_pk_bf16_f32 v{pk+2*j+r}, v{ac+4*j+2*r}, v{ac+4*j+2*r+1}")
    def swp(b):
        e(f"v_permlane32_swap_b32 v{pk+4*b}, v{pk+4*b+2}")
        e(f"v_permlane32_swap_b32 v{pk+4*b+1}, v{pk+4*b+3}")
        if opt["enc"]:
            e("s_waitcnt lgkmcnt(0)")
            e(f"v_lshrrev_b32 v{vT+1}, 4, v{vL16}")
            for r in range(4):
                i = 4*b + r
                e(f"v_mov_b32 v{vT}, s{72+2*i}")
                e("s_mov_b32 exec_lo, 0")
                e(f"v_mov_b32 v{vT}, s{72+2*min(i+8, 14)}")
                e("s_mov_b32 exec_lo, -1")
                e(f"v_lshrrev_b32 v{vT}, v{vT+1}, v{vT}")
                e(f"v_bfi_b32 v{pk+4*b+r}, 1, v{vT}, v{pk+4*b+r}")
        if opt["ofk"]:
            e(f"buffer_store_dwordx4 {vr(pk+4*b,4)}, v{vL16b if b else vOUT}, {srd(sOUT)}, s{sOB} offen {opt['outaux']}"); return
        e(f"buffer_store_dwordx4 {vr(pk+4*b,4)}, v{vOUT}, {srd(sOUT)}, s{sOB} offen offset:{64*b} {opt['outaux']}")
    if opt["bp"]:
        assert not opt["enc"]
        def sw(b):
            e(f"v_permlane32_swap_b32 v{pk+4*b}, v{pk+4*b+2}")
            e(f"v_permlane32_swap_b32 v{pk+4*b+1}, v{pk+4*b+3}")
        def bp(b, n):
            for r in range(n):
                e(f"ds_bpermute_b32 v{pk+16+4*b+r}, v{vL16b}, v{pk+4*b+r}"); LG.issue(f"bp{b}")
        def st(b):
            LG.wait(f"bp{b}")
            if b < 2: e(f"buffer_store_dwordx4 {vr(pk+16+4*b,4)}, v{vOUT}, {srd(sOUT)}, s{sOB} offen offset:{64*b} {opt['outaux']}")
            else: e(f"buffer_store_dwordx2 {vr(pk+24,2)}, v{vOUT2}, {srd(sOUT)}, s{sOB2} offen offset:128 {opt['outaux']}")
        e("s_nop 3")
        if opt["t4"]:
            cvt(0); cvt(1); cvt(2); sw(0); cvt(3); bp(0, 4); sw(1); cvt(4); bp(1, 4)
            for r in range(4):
                e(f"buffer_store_short{'_d16_hi' if r % 2 else ''} v{pk+8+r//2}, v{vOUT2}, {srd(sOUT)}, s{sOB2} offen offset:{128 + r*1280} {opt['outaux']}")
            st(0); st(1)
            return
        cvt(0); cvt(1); cvt(2); sw(0); cvt(3); bp(0, 4); cvt(4); sw(1); bp(2, 2); bp(1, 4); st(0); st(2); st(1)
        return
    e("s_nop 3")
    cvt(0); cvt(1); cvt(2); swp(0); cvt(3); cvt(4); swp(1)
    e(f"buffer_store_dwordx2 {vr(pk+8,2)}, v{vOUT2}, {srd(sOUT)}, s{sOB2 if D1 else sOB} offen offset:128 {opt['outaux']}")
def phase2_c():
    B1, B2, MA = opt["b1"], opt["b2"], opt["madd"]
    hp = opt["hpre"]
    ML = []
    WD = list(WDL)
    for i in range(48):
        g = [hload]
        k = 12 - len(WD)
        if WD and (i >= opt["w5s"] + (k - (12 - len(WDL))) * opt["w5k"] or i >= 24 + k): g.append(WD.pop(0))
        ML.append(g)
    assert not WD
    TL = []
    while len(TDONE) < 12: TL += tgroup_ops(len(TDONE))
    pre = [f for g in ML[:hp] for f in g]
    if opt["rcl"]:
        assert len(pre) == hp
        pre.append(r_check)
    for f in merge(pre, TL): f()
    del ML[:hp]
    LG.drain()
    stamp()
    A5 = 240
    def wr(blk, jj, src):
        def f():
            e(f"ds_write_b128 v{vRW if blk < 2 else vRW2}, {src} offset:{(blk%2)*32768 + jj*1024}"); LG.issue("red")
        return f
    def rd(pp, j, dst):
        def f():
            e(f"ds_read_b128 {vr(dst, 4)}, v{vRR+pp} offset:{j*1024}"); LG.issue(f"rr{pp}{j}")
        return f
    for p in range(4):
        ac = vACC2 + (p % 2) * 20
        pa = vACC2 + ((p-1) % 2) * 20
        NM = [4, 4, 7, 5][p]
        slots = {(n, j): [] for n in range(12) for j in range(NM)}
        def put(i0, step, fs):
            for k, f in enumerate(fs):
                i = i0 + k * step
                slots[(i // NM, i % NM)].append(f)
        if p > 0:
            ws = [wr(p-1, jj, vr(pa+4*jj, 4)) for jj in range(4)]
            if p == 3: ws += [wr(b, 4, ar(A5+4*b, 4)) for b in range(3)]
            put(NM, 2, ws)
            if p == 3: assert NM + 2*6 < B2 * NM
        if p == 2:
            assert B1 >= 4
            put(B1 * NM, 1, [rd(pp, j, vH + pp*48 + 4*j) for j in range(4) for pp in range(2)])
            def mk(i):
                def a():
                    LG.wait(f"rr1{i//4}")
                    e(f"v_add_f32 v{pa+i}, v{vH+i}, v{vH+48+i}")
                return a
            put(8 * NM, 1, [mk(i) for i in range(16)])
        if p == 3:
            put(B2 * NM, 1, [rd(pp, 4, vH + 16 + 4*pp) for pp in range(3)] + [rd(2, j, vH + 4*j) for j in range(4)])
            def mk(i):
                def a():
                    LG.wait(f"rr{1 + i//4}4")
                    e(f"v_add_f32 v{vH+16+i%4}, v{vH+16+i%4}, v{vH+20+i}")
                return a
            put((MA - 2) * NM, 1, [mk(i) for i in range(8)])
            assert MA - 2 >= B2 + 2
        for n in range(12):
            if (p == 2 and n == B1) or (p == 3 and n == B2):
                if p == 3: allc_check(); stamp(k=2)
                LG.drain(); e("s_barrier")
                if p == 3: stamp(k=2)
            VM.wait(f"h{p}_{n}")
            if n == 0 or (n == 6 and p < 3): stamp(k=2)
            def madd(j):
                LG.wait(f"rr2{j}")
                for r in range(4): e(f"v_add_f32 v{ac+4*j+r}, v{ac+4*j+r}, v{vH+4*j+r}")
            mid = p == 3 and n == MA
            if mid: e("s_nop 3"); madd(0)
            g = ML.pop(0) if ML else []
            for j in range(NM):
                if j < 4 or p == 3:
                    d = vr(ac+4*j, 4); b = p
                    c = "0" if n == 0 and (p < 3 or j == 4) else d
                else:
                    b = (j - 2) % 3
                    d = ar(A5+4*b, 4); c = "0" if n == 0 else d
                    assert not any(f is not hload and f.__defaults__[0] == n for gg in ML + [g] for f in gg), n
                    VM.wait(f"w{n}")
                if mid:
                    if j < 4: madd(j+1)
                    else: e("s_nop 0")
                e(f"v_mfma_f32_16x16x32_bf16 {d}, {ar(n*20+4*min(j,4),4)}, {vr(vH+(b*12+n)*4,4)}, {c}")
                if g and j in (opt["hj"], 3): g.pop(0)()
                for f in slots[(n, j)]: f()
            assert not g
    out_tail()
def phase2_ab():
    OA = opt["owna"]
    NE = opt["ne"]; NL = 12 - NE
    items = [(p, n) for p in range(3) for n in range(NE)] + [(3, n) for n in range(OA)]
    NA = len(items)
    items += [(p, n) for p in range(3) for n in range(NE, 12)] + [(3, n) for n in range(OA, 12)]
    NS = 36; vH2 = 112
    acc = lambda p, j: 24 + 20*p + 4*j
    hp = opt["hpre"]
    HI = list(range(48))
    seen = set()
    I0 = 0
    def own_mf(k):
        if not opt["own"] or k != opt["omp"]: return
        VM.wait("w0")
        for p in range(4):
            LG.wait(f"or{p}")
            for j in range(5):
                e(f"v_mfma_f32_16x16x32_bf16 {vr(acc(p,j),4)}, {ar(4*j,4)}, {vr(vH2+p*4,4)}, 0")
    if opt["own"]:
        items = [(p, 0) for p in range(4)] + [(p, n) for p in range(4) for n in range(1, 12)]
        HI = HI[4:]; I0 = 4; seen = {0, 1, 2, 3}
        for p in range(4):
            e(f"ds_read_b128 {vr(vH2+p*4, 4)}, v{vOW+2} offset:{p*1024}"); LG.issue(f"or{p}")
    def hl():
        if not HI: return
        i = HI.pop(0); p, n = items[i]
        if i == NA and not opt["dfw"]:
            spin_check("hpb", vPOLL, vPA, "pollB", sPOL, opt["nopoll"]); stamp(k=7)
        e(f"buffer_load_dwordx4 {vr(vH2 + (i % NS)*4, 4)}, v{vHB+p}, {srd(sH)}, s{sSIG+n} offen {opt['haux'].replace('-','')}"); VM.issue(f"h{i}")
    if opt["pae"] < 0:
        for f in take(max(0, len(W2L) - opt["pa"])): f()
        e(f"buffer_load_dword v{vPOLL}, v{vPA}, {srd(sH)}, s{sPOL} offen sc1"); VM.issue("poll")
        for f in take(opt["ec"]): f()
    own_mf(0)
    VM.wait("poll")
    stamp(); stamp(k=7)
    spin_check("hp", vPOLL, vPA, "poll", sPOL, opt["nopoll"])
    stamp(); stamp(k=2); stamp(k=7)
    e(f"s_add_u32 s{sPOL}, s{sPOL}, {FLB}")
    allc_load()
    for _ in range(hp): hl()
    for f in take(opt["wsk"]): f()
    own_mf(1)
    stamp()
    slots = {(i, j): [] for i in range(48) for j in range(5)}
    if opt["own"]: NA = 37
    L3 = NA + 3*NL
    for p in range(3):
        i0 = NA + NL*(p+1) if NL else NE*(p+1)
        if opt["own"]: i0 = 4 + 11*(p+1)
        for jj, (di, j) in enumerate([(1, 0), (1, 2), (1, 4), (2, 1), (2, 3)]):
            def w(jj=jj, p=p):
                e(f"ds_write_b128 v{vRW}, {vr(acc(p,jj),4)} offset:{p*5120 + jj*1024}"); LG.issue("red")
            slots[(i0 + di, j)].append(w)
    IB = L3 + opt["rb"]
    k = 0
    rest = 48 - IB
    assert rest >= 1
    rds = []
    for j in range(5):
        for pp in range(3):
            def f(pp=pp, j=j):
                e(f"ds_read_b128 {vr(acc(pp,j), 4)}, v{vRR+pp} offset:{j*1024}"); LG.issue(f"rr{j}")
            rds.append(f)
    per = 1 if rest >= 7 else 3
    for k, f in enumerate(rds): slots[(IB + k // per // 5, k // per % 5)].append(f)
    adds = []
    for j in range(5):
        for pp in (1, 2):
            for r in (0, 2):
                def a(j=j, pp=pp, r=r):
                    LG.wait(f"rr{j}")
                    if opt["epk"]: e(f"v_pk_add_f32 {vr(acc(0,j)+r,2)}, {vr(acc(0,j)+r,2)}, {vr(acc(pp,j)+r,2)}")
                    else:
                        for z in range(2): e(f"v_add_f32 v{acc(0,j)+r+z}, v{acc(0,j)+r+z}, v{acc(pp,j)+r+z}")
                adds.append(a)
    MA = 47 if rest >= 7 else None
    if MA:
        a0 = (MA - 3) * 5 - 5
        for k, f in enumerate(adds): slots[((a0 + k) // 5, (a0 + k) % 5)].append(f)
    for i, (p, n) in enumerate(items):
        if i < I0: continue
        if i == IB:
            allc_check(); stamp(k=2)
            LG.drain(); e("s_barrier")
            stamp(k=2)
        assert i not in HI and not any(f.__defaults__[0] == n for f in W2L), (i, n)
        late = max((f"h{i}", f"w{n}"), key=lambda t: len(VM.q) - 1 - VM.q[::-1].index(t) if t in VM.q else -1)
        VM.wait(late)
        if i % 8 == 0: stamp(k=2)
        def madd(j):
            if opt["epk"]:
                for r in (0, 2): e(f"v_pk_add_f32 {vr(acc(3,j)+r,2)}, {vr(acc(3,j)+r,2)}, {vr(acc(0,j)+r,2)}")
            else:
                for r in range(4): e(f"v_add_f32 v{acc(3,j)+r}, v{acc(3,j)+r}, v{acc(0,j)+r}")
        mid = i == MA
        if mid: e("s_nop 3"); madd(0)
        for j in range(5):
            c = vr(acc(p,j), 4) if p in seen else "0"
            if mid:
                if j < 4: madd(j+1)
                else: e("s_nop 1")
            e(f"v_mfma_f32_16x16x32_bf16 {vr(acc(p,j),4)}, {ar(n*20+4*j,4)}, {vr(vH2+(i % NS)*4,4)}, {c}")
            if j == opt["hj"]: hl()
            if j == 3 and i % opt["wr"] == 0:
                for f in take(1): f()
            if j == 4 and i == opt["pb"] and not opt["dfw"]:
                e(f"buffer_load_dword v{vPOLL}, v{vPA}, {srd(sH)}, s{sPOL} offen sc1"); VM.issue("pollB")
            for f in slots[(i, j)]: f()
        seen.add(p)
    stamp(); stamp(k=2); stamp(k=7)
    if opt["enc"]: stamp(True)
    ac = acc(3, 0)
    pk = vH2 + 64
    if not MA:
        for f in adds: f()
        for j in range(5): madd(j)
    def cvt(j):
        for r in range(2): e(f"v_cvt_pk_bf16_f32 v{pk+2*j+r}, v{ac+4*j+2*r}, v{ac+4*j+2*r+1}")
    def swp(b):
        e(f"v_permlane32_swap_b32 v{pk+4*b}, v{pk+4*b+2}")
        e(f"v_permlane32_swap_b32 v{pk+4*b+1}, v{pk+4*b+3}")
        if opt["enc"]:
            e("s_waitcnt lgkmcnt(0)")
            e(f"v_lshrrev_b32 v{vT+1}, 4, v{vL16}")
            for r in range(4):
                i = 4*b + r
                e(f"v_mov_b32 v{vT}, s{72+2*i}")
                e("s_mov_b32 exec_lo, 0")
                e(f"v_mov_b32 v{vT}, s{72+2*min(i+8, 14)}")
                e("s_mov_b32 exec_lo, -1")
                e(f"v_lshrrev_b32 v{vT}, v{vT+1}, v{vT}")
                e(f"v_bfi_b32 v{pk+4*b+r}, 1, v{vT}, v{pk+4*b+r}")
        e(f"buffer_store_dwordx4 {vr(pk+4*b,4)}, v{vOUT}, {srd(sOUT)}, s{sOB} offen offset:{64*b} {opt['outaux']}")
    e("s_nop 3")
    cvt(0); cvt(1); cvt(2); swp(0); cvt(3); cvt(4); swp(1)
    e(f"buffer_store_dwordx2 {vr(pk+8,2)}, v{vOUT2}, {srd(sOUT)}, s{sOB} offen offset:128 {opt['outaux']}")
assert opt["tail"]
if opt["ab"] or opt["dfw"]: phase2_ab()
elif opt["c5"]: phase2_c()
else: phase2_new()
e(f"s_or_b32 s{sT0}, s{sW}, s2")
e(f"s_cmp_lg_u32 s{sT0}, 0")
e("s_cbranch_scc1 L_nobump")
e(f"s_add_u32 s{sE}, s{sE}, 1")
e(f"v_mov_b32 v{vT}, s{sE}")
e(f"s_mov_b32 s{sT0}, {EP}")
e("s_mov_b64 exec, 1")
e(f"buffer_store_dword v{vT}, off, {srd(sH)}, s{sT0}")
e("s_mov_b64 exec, -1")
e("L_nobump:")
if opt["enc"]: sys.stderr.write(f"enc stamps {NST[0]}\n")
if opt["stamps"] and not opt["enc"]:
    e("s_waitcnt vmcnt(0)")
    stamp(k=-1); stamp(True)
    ns = NST[0]
    assert 72 + 2*ns <= 102
    e("s_waitcnt lgkmcnt(0)")
    if opt["amp"] >= 0 and opt["ampa"]:
        a = opt["amp"] if opt["amp"] < ns else ns - 2
        e("s_load_dwordx2 s[64:65], s[0:1], 32")
        e("s_not_b32 s60, s74")
        e("v_mov_b32 v24, s60")
        e("v_mov_b32 v25, 0")
        e("s_mov_b64 exec, 1")
        e("s_waitcnt lgkmcnt(0)")
        e("s_lshr_b32 s60, s2, 3")
        e(f"s_or_b32 s60, s60, s{sW}")
        e("s_cbranch_scc1 L_ampn")
        e("global_atomic_umax v25, v24, s[64:65] sc1")
        e("s_waitcnt vmcnt(0)")
        e("L_ampn:")
        if opt["ampw"] >= 0:
            e(f"s_cmp_lg_u32 s2, {opt['ampw']}")
            e("s_cbranch_scc1 L_end")
        if opt["ampx"] >= 0:
            e("s_and_b32 s60, s2, 7")
            e(f"s_cmp_lg_u32 s60, {opt['ampx']}")
            e("s_cbranch_scc1 L_end")
        if opt["ampl"] >= 0:
            e("s_lshr_b32 s60, s2, 3")
            e(f"s_cmp_lg_u32 s60, {opt['ampl']}")
            e("s_cbranch_scc1 L_end")
        e("s_mov_b32 s61, 200000")
        e("L_amp0:")
        e("s_memrealtime s[62:63]")
        e("s_sub_u32 s61, s61, 1")
        e("s_cbranch_scc1 L_end")
        e("s_waitcnt lgkmcnt(0)")
        e("s_sub_u32 s62, s62, s74")
        e("s_cmp_lt_u32 s62, 1500")
        e("s_cbranch_scc1 L_amp0")
        e("global_load_dword v24, v25, s[64:65] sc0 sc1")
        e("s_waitcnt vmcnt(0)")
        e("v_readfirstlane_b32 s66, v24")
        e("s_not_b32 s66, s66")
        e(f"s_sub_u32 s60, s{72+2*a}, s66")
        e(f"s_min_u32 s60, s60, 5000")
        e(f"s_mul_i32 s60, s60, {opt['ampk']}")
        e(f"s_add_u32 s60, s60, {opt['ampc']}")
        e(f"s_min_u32 s60, s60, 50000")
        e(f"s_mov_b32 s61, 200000")
        e("L_amp:")
        e("s_memrealtime s[62:63]")
        e("s_sub_u32 s61, s61, 1")
        e("s_cbranch_scc1 L_end")
        e("s_waitcnt lgkmcnt(0)")
        e("s_sub_u32 s62, s62, s66")
        e("s_cmp_lt_u32 s62, s60")
        e("s_cbranch_scc1 L_amp")
        e("s_branch L_end")
    elif opt["amp"] >= 0:
        if opt["ampw"] >= 0:
            e(f"s_cmp_lg_u32 s2, {opt['ampw']}")
            e("s_cbranch_scc1 L_end")
        a = opt["amp"] if opt["amp"] < ns else ns - 2
        e(f"s_sub_u32 s60, s{72+2*a}, s{72+2*opt['ampb']}")
        e(f"s_mul_i32 s60, s60, {opt['ampk']}")
        e(f"s_lshr_b32 s60, s60, {opt['amps']}")
        e(f"s_min_u32 s60, s60, 50000")
        e(f"s_mov_b32 s61, 200000")
        e("L_amp:")
        e("s_memrealtime s[62:63]")
        e("s_sub_u32 s61, s61, 1")
        e("s_cbranch_scc1 L_end")
        e("s_waitcnt lgkmcnt(0)")
        e(f"s_sub_u32 s62, s62, s{72+2*(ns-1)}")
        e("s_cmp_lt_u32 s62, s60")
        e("s_cbranch_scc1 L_amp")
        e("s_branch L_end")
    if opt["rt"]:
        e(f"s_lshl_b32 s{sT0}, s2, 2")
        e(f"s_add_u32 s{sT0}, s{sT0}, s{sW}")
        e(f"s_mul_i32 s{sT0}, s{sT0}, {ns*8}")
    else:
        e(f"s_cmp_lg_u32 s{sW}, {opt['stamps']-1}")
        e("s_cbranch_scc1 L_end")
        e(f"s_mul_i32 s{sT0}, s2, {ns*8}")
    e("s_mov_b64 exec, 1")
    e(f"s_add_u32 s{sT0}, s{sT0}, {0x8000000 - (opt['wso'] << 20)}")
    e(f"v_mov_b32 v{vT}, s{sT0}")
    for i in range(ns):
        e(f"v_mov_b32 v24, s{72+2*i}"); e(f"v_mov_b32 v25, s{73+2*i}")
        e(f"global_store_dwordx2 v{vT}, v[24:25], s[12:13] offset:{i*8}"); e("s_nop 1")
    sys.stderr.write(f"nstamps {ns}\n")
LATE += OOL
if LATE:
    e("s_endpgm")
    O.extend(LATE)
e("L_end:")

hdr = f"""; FFN out = silu(x @ w1) @ w2, one launch, 256 workgroups (one per CU).
; @launch grid=(256,1,1) block=(256,1,1) lds=163840
.amdgcn_target "amdgcn-amd-amdhsa--gfx950"
.text
.globl {NAME}
.p2align 8
.type {NAME},@function
{NAME}:
"""
ftr = f"""s_endpgm
.section .rodata,"a"
.p2align 6
.amdhsa_kernel {NAME}
  .amdhsa_next_free_vgpr 512
  .amdhsa_next_free_sgpr 102
  .amdhsa_accum_offset 256
  .amdhsa_group_segment_fixed_size 0
  .amdhsa_kernarg_size 48
  .amdhsa_user_sgpr_count 2
  .amdhsa_user_sgpr_kernarg_segment_ptr 1
  .amdhsa_system_sgpr_workgroup_id_x 1
.end_amdhsa_kernel
"""
def sizes(lines):
    import subprocess, tempfile, os, re
    d = tempfile.mkdtemp()
    t = hdr + "\n".join(f"Z{i}:\n{l}" for i, l in enumerate(lines)) + "\nL_w1x:\n" + ftr
    for k in range(1, 4):
        if f"L_w{k}:" not in lines: t = t.replace(f"L_w{k}\n", "L_w1x\n")
    open(d + "/a.s", "w").write(t)
    r = subprocess.run(["clang", "-x", "assembler", "-target", "amdgcn-amd-amdhsa", "-mcpu=gfx950", "-c", d + "/a.s", "-o", d + "/a.o"], capture_output=True, text=True)
    assert r.returncode == 0, r.stderr
    import struct
    b = open(d + "/a.o", "rb").read()
    shoff = struct.unpack_from("<Q", b, 0x28)[0]; shn = struct.unpack_from("<H", b, 0x3c)[0]
    sec = [struct.unpack_from("<IIQQQQIIQQ", b, shoff + 64*i) for i in range(shn)]
    sy = [x for x in sec if x[1] == 2][0]; st = sec[sy[6]]
    ad = {}
    for i in range(sy[5] // 24):
        n, _, _, _, v, _ = struct.unpack_from("<IBBHQQ", b, sy[4] + 24*i)
        nm = b[st[4]+n:b.index(b"\0", st[4]+n)].decode()
        if re.fullmatch(r"Z\d+", nm): ad[int(nm[1:])] = v
    return ad
if opt["wu"] >= 0:
    assert opt["al"]
    for k in range(1, 4):
        ad = sizes(O)
        i = min(j for j in range(len(O)) if ad[j] >= 4096*k and not O[j].startswith(".") and not O[j].endswith(":"))
        O[i:i] = [f"L_w{k}:", "s_cbranch_execz L_wr"]
        sys.stderr.write(f"page {k}: {O[i-1]} | {O[i+2]}\n")
    if opt["stamps"]: sys.stderr.write(f"nstamps {NST[0]}\n")
body = "\n".join(("" if l.endswith(":") else "    ") + l.rstrip() for l in O)
open(sys.argv[1], "w").write(hdr + body + "\n" + ftr)
```

```python
import sys
from haz import fix
NAME = "standalone__dense_activation_silu__prompt_kernel"
opt = dict(ampc=2000, ampa=0, ampx=-1, ampl=-1, amp=-1, ampb=1, ampk=4, amps=0, ampw=-1, tpre=0, fpre=0, rpl=-1, rtab='', ttab='', pfs='', skd=0, sk5=0, al=0, wu=-1, pat='', pat1='', hid=0, r16=0, ro=0, sil=0, sild=2, silk='1', e7=0, e7a=10, e7b=10, fp='', qm=0, swab=0, wtc=0, rmap=0, nw=-1, wx='', wxp=99, acb=0, acp=-1, wq='', rds=1, ad0=8, t4=0, k4=0, k2=3, fr=3, fd=2, a4=0, bp=0, ofk=0, w5aux='sc1', rpk=0, pl2=7, nom=0, owv=1, ow=0, owp=2, ada=7, wb64=0, wg0=3, wgs=2, smd=0, dst=-1, dn=4, st0=0, nhw=0, wtx=0, tfm=0, tpm=0, tsil=0, c5=0, w5s=8, w5k=2, rcl=0, w5d=0, tin=0, sw=-1, sws=-1, swp=0, swn=15, ems=1, pqd=0, tlate=0, tmix=1, wt=-1, wts=-1, wtp=99, wth=0, wtaux='', d1=0, d7=0, w5p=4, tl=8, rpq=0, waux='', es=-1, esaux='sc1', ot=-1, otm=1, enc=0, w0p=0, own=0, omp=0, dfw=0, ne=8, clr=-1, clrs='', spec=0, fw=12, wl=0, rsp=99, rrp=0, fb=0, tch=0, la=4, tp0=0, tpos=8, th=1, ns=3, n7=0, rcs=8, epk=1, fk=0, ost=0, pae=-1, wsk=0, afs=0, ab=0, afp=0, pa=20, pb=6, wr=1, owna=0, rb=4, skipw=0, m16=0, rtm=0, po="", rsaux="sc1", emu="", emv=1, fs=128, dw=8, eq=0, ec=4, epre=16, eil="h12w9", pfm=3, stamps=0, rot=1, rot2=1, pf=1, outaux="", map=2, raux="nt", xaux="", haux="sc1", hsaux="sc1", hs2="", wb=0, wso=0, sp=0, spg="", nord=0, nomf1=0, norp=0, pk=1, tail=1, b1=4, b2=4, madd=8, pt=0, fst=0, tab="x037", nost=0, novalu=0, nomf2=0, noh=0, hj=1, w2aux="sc1", w1aux="",
           sa=0, ma=10, sb=0, mb=10, mx=0, n8=8, n9=8, nb=0, post=0, pollq=8, hpre=8, sep=0, sts=0, rpos=0, rls=0, rjs=2, rpp=0, rps=7, rck=0, nopoll=0, rfs=4, sl=0, head=50, nf0=4, pre3=0, rt=0, own2=2, ntst=10, mid=2, xlin=0, nor=0)
for a in sys.argv[2:]:
    k, v = a.split("=")
    assert k in opt, k
    opt[k] = int(v) if v.lstrip("-").isdigit() else v.replace("_", " ")
if opt["own"]: opt["dfw"] = 1; opt["ne"] = 12; assert opt["fb"] and opt["own2"] == 2
D1 = opt['d1']
RPW = opt['rfs'] >= 10
if RPW: assert D1 and opt['rpk']
R2 = '2' in str(opt['rtab'])
if R2: assert D1 and opt['rpk'] and not RPW and not opt['ow']
OW = opt['ow']
if OW: assert D1 and opt['own2'] == 2 and opt['post'] <= 12 and not opt['c5'] and not opt['w5d'] and not opt['smd'] and str(opt['nb']) == '0'
if D1: assert not (opt['own'] or opt['ab'] or opt['dfw'] or opt['spec'] or opt['eq'] or opt['tch'] or opt['po']) and opt['fb'] and opt['ns'] == 3
O = []
def e(s): O.append(s)
NST = [0]
def stamp(rt=False, k=0):
    if not opt["stamps"]: return
    if not rt and NST[0] > 1 and k != opt["sts"] and k != -1: return
    i = NST[0]; NST[0] += 1
    e(f"s_memrealtime s[{72+2*i}:{73+2*i}]" if rt or opt["rt"] or opt["rtm"] else f"s_memtime s[{72+2*i}:{73+2*i}]")

class Q:
    def __init__(s, name, mx): s.name = name; s.mx = mx; s.q = []
    def issue(s, tag): s.q.append(tag)
    def wait(s, tag):
        if tag not in s.q: return
        i = len(s.q) - 1 - s.q[::-1].index(tag)
        n = min(len(s.q) - 1 - i, s.mx)
        e(f"s_waitcnt {s.name}({n})")
        s.q = s.q[len(s.q)-n:] if n else []
    def drain(s):
        e(f"s_waitcnt {s.name}(0)"); s.q = []
VM = Q("vmcnt", 63); LG = Q("lgkmcnt", 15)

FL = 0x600000; EP = 0x608000; RFL = 0x610000; W2F = 0x620000; HREC = 0x800000
if opt['spec']: FL = 0x800000; HREC = 0x820000
FS = opt["fs"]
if FS > 128: FL = 0x800000; HREC = FL + 256 * FS
FLB = 0x200000
if opt["ab"]: HREC = 0x808000
RED = 98304; RB = 98304 if opt['ns'] == 3 else 131072; CNT = 159744
NSL = opt['ns']
sX, sW1, sW2, sOUT, sH = 16, 20, 24, 28, 32
(sW, sMT, sFT, sKX, sKW, sXB, sWB, sXE, sM0, sT0, sT1, sE, sTAG, sHS, sHS2, sFLG, sPOL, sW2B, sOWN, sROT,
 sRS, sRD, sWO, sL2E) = range(36, 60)
sSIG = 60
sPK = 4; sOB = 3; sRFL = 14; sSPIN = 15
vL16 = 1; vL16b = 2; vOUT = 3; vOUT2 = 4; vRW = 5; vRP = 6; vHS = 7
vPOLL = 8; vL4 = 9; vPA = 19
vRR = 10
vHB = 13
vT = 17
vCN = 20; vONE = 21; vAV = 22; vAC = 23
vDX = 24; vDW = 26; vDR = 32
vA = 34; vB = 36
vRA = 44
vTM = 46
vACC1 = 64; vAF = 112; vBF = 160; vS = 176; vRF = 192
vWD = 56; vWT = 60; sW5B = 6; sOB2 = 7; vRW2 = 20
vH = 64; vACC2 = 24; vOW = 240; OWN = 32768; sHS1 = 6
def mf2(d, n, j, b, c):
    a = ar(n*20+4*j, 4)
    if j == 4 and opt["t4"]: a, b = b, a
    e(f"v_mfma_f32_16x16x32_bf16 {d}, {a}, {b}, {c}")
def srd(r): return f"s[{r}:{r+3}]"
def vr(r, n): return f"v[{r}:{r+n-1}]"
def ar(r, n): return f"a[{r}:{r+n-1}]"
def capture(fn):
    global O
    sv = O; O = []; fn(); r = O; O = sv; return r

e("s_cmp_ge_u32 s2, 256")
e("s_cbranch_scc1 L_end")
stamp(True); stamp()
e("s_load_dwordx8 s[4:11], s[0:1], 0")
e("s_load_dwordx2 s[12:13], s[0:1], 40")
L, Wv = vTM, vTM+1
t0, t1, t2, t3 = vTM+2, vTM+3, vTM+4, vTM+5
e(f"v_and_b32 v{L}, 63, v0")
e(f"v_lshrrev_b32 v{Wv}, 6, v0")
e(f"v_lshlrev_b32 v{vL16}, 4, v{L}")
e(f"v_readfirstlane_b32 s{sW}, v{Wv}")
if opt["pf"]:
    e("s_getpc_b64 s[14:15]")
    e("L_pc:")
    if opt["pfs"]:
        tb = (str(opt["pfs"]).lstrip("x") + "0" * 32)[:32]
        tv = sum(int(c) << (2*i) for i, c in enumerate(tb))
        e(f"s_lshr_b32 s{sT0}, s2, 2")
        e(f"s_and_b32 s{sT0}, s{sT0}, 62")
        if tv >> 32:
            e(f"s_mov_b32 s{sSIG}, {tv & 0xffffffff}")
            e(f"s_mov_b32 s{sSIG+1}, {tv >> 32}")
            e(f"s_lshr_b64 s[{sSIG}:{sSIG+1}], s[{sSIG}:{sSIG+1}], s{sT0}")
        else:
            e(f"s_lshr_b64 s[{sSIG}:{sSIG+1}], {tv}, s{sT0}")
        e(f"s_and_b32 s{sT0}, s{sSIG}, 3")
    else:
        e(f"s_lshr_b32 s{sT0}, s2, 3")
        e(f"s_and_b32 s{sT0}, s{sT0}, {opt['pfm']}")
    e(f"s_lshl_b32 s{sT0}, s{sT0}, 12")
    e(f"v_lshl_add_u32 v{t0}, v0, 4, s{sT0}")
    e(f"v_min_u32 v{t0}, L_end-L_pc-16, v{t0}")
    e(f"global_load_dwordx4 v[252:255], v{t0}, s[14:15]")
    VM.issue("pf")
fa = opt["map"]
e(f"s_and_b32 s{sT0}, s2, 7")
e(f"s_lshr_b32 s{sT1}, s2, 3")
e(f"s_and_b32 s{sFT}, s{sT1}, {(1<<fa)-1}")
e(f"s_lshr_b32 s{sMT}, s{sT1}, {fa}")
if opt["rot"] == 3:
    tb = str(opt["tab"]).lstrip("x")
    tv = sum(int(c) << (4*i) for i, c in enumerate((tb * 16)[:16]))
    e(f"s_mul_i32 s{sKX}, s{sMT}, {opt['ma']}")
    e(f"s_mul_i32 s{sT1}, s{sFT}, {opt['mb']}")
    e(f"s_add_u32 s{sKX}, s{sKX}, s{sT1}")
    e(f"s_lshl_b32 s{sKX}, s{sKX}, 2")
    e(f"s_mov_b32 s{sSIG}, {tv & 0xffffffff}")
    e(f"s_mov_b32 s{sSIG+1}, {tv >> 32}")
    e(f"s_lshr_b64 s[{sSIG}:{sSIG+1}], s[{sSIG}:{sSIG+1}], s{sKX}")
    e(f"s_and_b32 s{sKX}, s{sSIG}, 15")
elif opt["rot"]:
    e(f"s_lshr_b32 s{sKX}, s{sMT}, {opt['sa']}")
    e(f"s_mul_i32 s{sKX}, s{sKX}, {opt['ma']}")
    e(f"s_lshr_b32 s{sT1}, s{sFT}, {opt['sb']}")
    e(f"s_mul_i32 s{sT1}, s{sT1}, {opt['mb']}")
    e(f"s_add_u32 s{sKX}, s{sKX}, s{sT1}")
    if opt['mx']:
        e(f"s_mul_i32 s{sT1}, s{sT0}, {opt['mx']}")
        e(f"s_add_u32 s{sKX}, s{sKX}, s{sT1}")
    e(f"s_lshr_b32 s{sKX}, s{sKX}, 2")
    e(f"s_mul_i32 s{sT1}, s{sKX}, 205")
    e(f"s_lshr_b32 s{sT1}, s{sT1}, 11")
    e(f"s_mul_i32 s{sT1}, s{sT1}, 10")
    e(f"s_sub_u32 s{sKX}, s{sKX}, s{sT1}")
else:
    e(f"s_mov_b32 s{sKX}, 0")
if opt["ab"]:
    e(f"s_lshl_b32 s{sROT}, s{sMT}, 2")
elif opt["rot2"] == 3:
    e(f"s_and_b32 s{sROT}, s{sMT}, 1")
    e(f"s_mul_i32 s{sROT}, s{sROT}, 6")
elif opt["rot2"] == 4:
    e(f"s_lshr_b32 s{sROT}, s{sMT}, 1")
    e(f"s_mul_i32 s{sROT}, s{sROT}, 3")
elif opt["rot2"] == 5:
    e(f"s_and_b32 s{sROT}, s{sMT}, 3")
elif opt["rot2"] == 6:
    e(f"s_mul_i32 s{sROT}, s{sMT}, 3")
    e(f"s_lshr_b32 s{sROT}, s{sROT}, 3")
    e(f"s_lshl_b32 s{sROT}, s{sROT}, 2")
elif opt["rot2"] == 7:
    e(f"s_mul_i32 s{sROT}, s{sMT}, 12")
    e(f"s_lshr_b32 s{sROT}, s{sROT}, 3")
    e(f"s_bitcmp1_b32 s2, 1")
    e(f"s_addc_u32 s{sROT}, s{sROT}, 0")
elif opt["rot2"] == 2:
    e(f"s_and_b32 s{sROT}, s{sMT}, 3")
    e(f"s_mul_i32 s{sROT}, s{sROT}, 3")
elif opt["rot2"]:
    e(f"s_mul_i32 s{sROT}, s{sMT}, 12")
    e(f"s_lshr_b32 s{sROT}, s{sROT}, {5-fa}")
else:
    e(f"s_mov_b32 s{sROT}, 0")
e(f"s_and_b32 s{sT1}, s{sT0}, {(8>>fa)-1}")
e(f"s_lshl_b32 s{sT1}, s{sT1}, {fa}")
e(f"s_add_u32 s{sFT}, s{sFT}, s{sT1}")
e(f"s_lshr_b32 s{sT1}, s{sT0}, {3-fa}")
e(f"s_lshl_b32 s{sT1}, s{sT1}, {5-fa}")
e(f"s_add_u32 s{sMT}, s{sMT}, s{sT1}")
e(f"s_mul_i32 s{sXB}, s{sMT}, 81920")
e(f"s_mul_i32 s{sWB}, s{sFT}, 384")
e(f"s_add_u32 s{sXE}, s{sXB}, 1280")
e(f"s_mul_i32 s{sKW}, s{sKX}, {64*3072}")
e(f"s_add_u32 s{sKW}, s{sKW}, s{sWB}")
e(f"s_lshl_b32 s{sKX}, s{sKX}, 7")
e(f"s_add_u32 s{sKX}, s{sKX}, s{sXB}")
G = vTM+6
e(f"v_lshrrev_b32 v{G}, 4, v{L}")
e(f"v_lshrrev_b32 v{t0}, 3, v{L}")
e(f"v_lshl_add_u32 v{t0}, v{Wv}, 4, v{t0}")
e(f"v_mul_u32_u24 v{t0}, 1280, v{t0}")
e(f"v_and_b32 v{t1}, 7, v{L}")
e(f"v_xor_b32 v{t1}, v{t1}, v{G}")
e(f"v_lshl_add_u32 v{vDX}, v{t1}, 4, v{t0}")
e(f"v_xor_b32 v{t1}, 4, v{t1}")
e(f"v_lshl_add_u32 v{vDX+1}, v{t1}, 4, v{t0}")
e(f"v_add_u32 v{vDX+1}, {8*1280-1024}, v{vDX+1}")
if opt["xlin"]:
    e(f"v_lshl_add_u32 v{vDX}, v{Wv}, 11, v{vL16}")
    e(f"v_mov_b32 v{vDX+1}, v{vDX}")
    e(f"s_and_b32 s{sT0}, s{sFT}, 3")
    e(f"s_mul_i32 s{sT0}, s{sT0}, {opt['xlin']}")
    e(f"s_lshr_b32 s{sT0}, s{sT0}, 2")
    e(f"s_lshl_b32 s100, s{sT0}, 13")
    e(f"s_add_u32 s100, s100, s{sXB}")
    e(f"s_add_u32 s101, s{sXB}, 81920")
e(f"v_mul_u32_u24 v{t3}, {16*3072}, v{Wv}")
for i in range(3):
    if i: e(f"v_add_u32 v{t0}, {64*i}, v{L}")
    src = t0 if i else L
    e(f"v_mul_u32_u24 v{t1}, 2731, v{src}")
    e(f"v_lshrrev_b32 v{t1}, 16, v{t1}")
    e(f"v_mul_u32_u24 v{t2}, 24, v{t1}")
    e(f"v_sub_u32 v{t0}, v{src}, v{t2}")
    e(f"v_and_b32 v{t2}, 2, v{t1}")
    e(f"v_lshlrev_b32 v{t2}, 1, v{t2}")
    e(f"v_xor_b32 v{t0}, v{t0}, v{t2}")
    e(f"v_mul_u32_u24 v{t1}, 3072, v{t1}")
    e(f"v_lshl_add_u32 v{t0}, v{t0}, 4, v{t1}")
    e(f"v_add_u32 v{t0}, v{t0}, v{t3}")
    if i: e(f"v_subrev_u32 v{vDW+i}, {i*1024}, v{t0}")
    else: e(f"v_mov_b32 v{vDW}, v{t0}")
    if opt["r16"]: e(f"v_xor_b32 v{t0}, 16, v{t0}")
    e(f"v_add_u32 v{vDW+3+i}, {8*3072 - ((i+3)%4)*1024}, v{t0}")
if opt["e7"]:
    e(f"s_lshr_b32 s{sT0}, s{sMT}, 1")
    e(f"s_and_b32 s{sT1}, s{sMT}, 1")
    e(f"s_lshl1_add_u32 s{sT1}, s{sFT}, s{sT1}")
    e(f"s_mul_i32 s{sXB}, s{sT0}, 163840")
    e(f"s_mul_i32 s{sWB}, s{sT1}, {192 if opt['e7'] == 1 else 128}")
    e(f"s_and_b32 s{sT0}, s{sT0}, 3")
    e(f"s_and_b32 s{sT1}, s{sT1}, 7")
    e(f"s_mul_i32 s{sT0}, s{sT0}, {opt['e7a']}")
    e(f"s_mul_i32 s{sT1}, s{sT1}, {opt['e7b']}")
    e(f"s_add_u32 s{sKX}, s{sT0}, s{sT1}")
    e(f"s_lshr_b32 s{sKX}, s{sKX}, 2")
    e(f"s_mul_i32 s{sT1}, s{sKX}, 205")
    e(f"s_lshr_b32 s{sT1}, s{sT1}, 11")
    e(f"s_mul_i32 s{sT1}, s{sT1}, 10")
    e(f"s_sub_u32 s{sKX}, s{sKX}, s{sT1}")
    e(f"s_add_u32 s{sXE}, s{sXB}, 1280")
    e(f"s_mul_i32 s{sKW}, s{sKX}, {64*3072}")
    e(f"s_add_u32 s{sKW}, s{sKW}, s{sWB}")
    e(f"s_lshl_b32 s{sKX}, s{sKX}, 7")
    e(f"s_add_u32 s{sKX}, s{sKX}, s{sXB}")
    e(f"v_mul_u32_u24 v{t0}, {16*1280}, v{Wv}")
    e(f"v_add_u32 v{vDX}, v{vDX}, v{t0}")
    e(f"v_add_u32 v{vDX+1}, v{vDX+1}, v{t0}")
    e(f"v_add_u32 v{vDW+4}, {16*1280}, v{vDX}")
    e(f"v_add_u32 v{vDW+5}, {16*1280}, v{vDX+1}")
    for i in range(3):
        e(f"v_add_u32 v{t0}, {64*i}, v{L}")
        if opt["e7"] == 1:
            e(f"v_mul_u32_u24 v{t1}, 5462, v{t0}")
            e(f"v_lshrrev_b32 v{t1}, 16, v{t1}")
            e(f"v_mul_u32_u24 v{t1}, {3072 - 192}, v{t1}")
        else:
            e(f"v_lshrrev_b32 v{t1}, 3, v{t0}")
            e(f"v_mul_u32_u24 v{t1}, {2048 - 128}, v{t1}")
        e(f"v_lshl_add_u32 v{t0}, v{t0}, 4, v{t1}")
        e(f"v_add_u32 v{t0}, v{t0}, v{t3}")
        e(f"v_subrev_u32 v{vDW+i}, {i*1024}, v{t0}")
vTC = 250
if opt["tch"]:
    e(f"v_lshrrev_b32 v{t0}, 1, v{L}")
    e(f"v_mul_u32_u24 v{t1}, 1280, v{t0}")
    e(f"v_mul_u32_u24 v{t2}, 43, v{t0}")
    e(f"v_lshrrev_b32 v{t2}, 7, v{t2}")
    e(f"v_mul_u32_u24 v{t2}, {3072-384}, v{t2}")
    e(f"v_lshl_add_u32 v{t2}, v{t0}, 7, v{t2}")
    e(f"s_and_b32 s{sT0}, s{sFT}, 3")
    e(f"s_lshl_b32 s{sT0}, s{sT0}, 1")
    e(f"s_lshr_b32 s{sT1}, s{sW}, 1")
    e(f"s_add_u32 s{sT0}, s{sT0}, s{sT1}")
    e(f"s_mul_i32 s{sT0}, s{sT0}, {8*1280}")
    e(f"s_and_b32 s{sWO}, s{sMT}, 7")
    e(f"s_lshl_b32 s{sWO}, s{sWO}, 1")
    e(f"s_add_u32 s{sWO}, s{sWO}, s{sT1}")
    e(f"s_mul_i32 s{sWO}, s{sWO}, {4*3072}")
    e(f"s_add_u32 s{sT1}, s{sWB}, {640*3072}")
    e(f"s_bitcmp1_b32 s{sW}, 0")
    e(f"s_cselect_b64 vcc, -1, 0")
    e(f"v_cndmask_b32 v{vTC}, v{t1}, v{t2}, vcc")
    e(f"s_cselect_b32 s{sT0}, s{sWO}, s{sT0}")
    e(f"s_mov_b32 s{sWO}, {0xffff if opt['th'] else 0x5555}")
    e(f"s_cselect_b32 s{sWO}, {0xffffff if opt['th'] else 0x555555}, s{sWO}")
    e(f"s_cselect_b32 s{sHS}, s{sKW}, s{sKX}")
    e(f"s_movk_i32 s{sHS2}, 128")
    e(f"s_cselect_b32 s{sHS2}, {64*3072}, s{sHS2}")
    e(f"v_and_b32 v{t0}, 1, v{L}")
    e(f"v_lshl_add_u32 v{vTC}, v{t0}, 6, v{vTC}")
    e(f"v_add_u32 v{vTC}, s{sT0}, v{vTC}")
    e(f"s_cselect_b32 vcc_lo, s{sT1}, s{sXE}")
    e(f"s_cselect_b32 vcc_hi, s{sWB}, s{sXB}")
e(f"s_lshl_b32 s{sM0}, s{sW}, 13")
CLR = opt["clr"] >= 0 or opt["clrs"]
sCL = sHS
vNAN = 244
if CLR:
    e(f"s_lshl_b32 s{sT0}, s{sMT}, 2")
    e(f"s_lshr_b32 s{sT1}, s{sFT}, 1")
    e(f"s_add_u32 s{sT0}, s{sT0}, s{sT1}")
    e(f"s_lshl_b32 s{sT0}, s{sT0}, 2")
    e(f"s_add_u32 s{sT0}, s{sT0}, s{sW}")
    e(f"s_lshl_b32 s{sT0}, s{sT0}, 1")
    e(f"s_and_b32 s{sT1}, s{sFT}, 1")
    e(f"s_add_u32 s{sT0}, s{sT0}, s{sT1}")
    e(f"s_mul_i32 s{sT0}, s{sT0}, 6144")
    e(f"v_add_u32 v248, s{sT0}, v{vL16}")
    e(f"v_add_u32 v249, 3072, v248")
    for r in range(4): e(f"v_mov_b32 v{vNAN+r}, -1")
def clr_ops():
    def mk(i):
        def f():
            e(f"buffer_store_dwordx4 {vr(vNAN,4)}, v{248 + i//3}, {srd(sH)}, 0 offen offset:{(i%3)*1024} sc1"); VM.issue("clr")
        return f
    return [mk(i) for i in range(6)]
CLO = clr_ops()
e(f"s_mov_b32 s{sSPIN}, {EP}")
for r, n in ((sX, 2621440), (sW1, 1966080), (sW2, 1966080), (sOUT, 2621440), (sH, HREC)):
    e(f"s_mov_b32 s{r+2}, {n}"); e(f"s_mov_b32 s{r+3}, 0x20000")
e("s_waitcnt lgkmcnt(0)")
if opt["wso"]:
    e(f"s_add_u32 s12, s12, {opt['wso'] << 20}"); e("s_addc_u32 s13, s13, 0")
for r, p in ((sW2, 8), (sX, 4), (sW1, 6), (sOUT, 10), (sH, 12)):
    e(f"s_mov_b64 s[{r}:{r+1}], s[{p}:{p+1}]")
if opt["tch"]:
    e(f"s_bitcmp1_b32 s{sW}, 0")
    e(f"s_cselect_b64 s[8:9], s[6:7], s[4:5]")
    e(f"s_cselect_b32 s10, s{sW1+2}, s{sX+2}")
    e("s_mov_b32 s11, 0x20000")
    e(f"s_mov_b32 s6, s{sHS}")
    e(f"s_mov_b32 s7, s{sHS2}")
def touch():
    e("s_add_u32 s6, s6, s7")
    e("s_cmp_eq_u32 s6, vcc_lo")
    e("s_cselect_b32 s6, vcc_hi, s6")
    e(f"s_mov_b32 exec_lo, s{sWO}")
    e("s_mov_b32 exec_hi, 0")
    e(f"buffer_load_dword v251, v{vTC}, s[8:11], s6 offen"); VM.issue("tch")
    e("s_mov_b64 exec, -1")
stamp()
e(f"s_load_dword s{sE}, s[12:13], s{sSPIN}")

def adv_k():
    if opt["xlin"]:
        e(f"s_add_u32 s100, s100, 8192")
        e(f"s_cmp_eq_u32 s100, s101")
        e(f"s_cselect_b32 s100, s{sXB}, s100")
    e(f"s_add_u32 s{sKX}, s{sKX}, 128")
    e(f"s_add_u32 s{sKW}, s{sKW}, {64*3072}")
    e(f"s_cmp_eq_u32 s{sKX}, s{sXE}")
    e(f"s_cselect_b32 s{sKX}, s{sXB}, s{sKX}")
    e(f"s_cselect_b32 s{sKW}, s{sWB}, s{sKW}")
def dma_ops(st):
    base = (st % NSL) * 32768
    def mk(i):
        def f():
            if i == 0: e(f"s_add_u32 m0, s{sM0}, {base+6144}"); e("s_nop 0")
            if i < 2:
                e(f"buffer_load_dwordx4 v{vDX+i}, {srd(sX)}, s{100 if opt['xlin'] else sKX} offen offset:{i*1024} {opt['xaux'] if st < opt['ntst'] else ''} lds")
            elif opt["e7"] and i >= 5:
                if i == 5: e(f"s_add_u32 m0, s{sM0}, {base+4096}"); e("s_nop 0"); return
                e(f"buffer_load_dwordx4 v{vDW+i-2}, {srd(sX)}, s{sKX} offen offset:{(i-6)*1024} lds")
            else:
                j = i - 2
                e(f"buffer_load_dwordx4 v{vDW+j}, {srd(sW1)}, s{sKW} offen offset:{(j%4)*1024} {opt['w1aux'] if st < opt['ntst'] else ''} lds")
            VM.issue(f"st{st}")
            if i == 1: e(f"s_add_u32 m0, s{sM0}, {base}"); e("s_nop 0")
            if i == 5: e(f"s_add_u32 m0, s{sM0}, {base+4096}"); e("s_nop 0")
            if i == 7 and st < 9: adv_k()
        return f
    return [mk(i) for i in range(8)]

def setup2():
    R, C = t0, t1
    u0, u1, u2 = vTM+7, vTM+8, vTM+9
    if D1:
        RJ = 2
        if opt["rtab"]:
            RJ = 9
            tb = str(opt["rtab"]).lstrip("x"); assert len(tb) == 32 and sum(map(int, tb)) == 12
            m1_ = sum((c == "1") << i for i, c in enumerate(tb)); m2_ = sum((c == "2") << i for i, c in enumerate(tb))
            e(f"s_lshr_b32 s{sT0}, s2, 3")
            e(f"s_bfm_b32 s9, s{sT0}, 0")
            if R2:
                e(f"s_mov_b32 s8, {m2_}")
                e(f"s_bitcmp1_b32 s8, s{sT0}")
                e(f"s_cselect_b32 s8, s8, {m1_}")
                e(f"s_cselect_b32 s10, 1, 0")
                e(f"s_cselect_b32 s11, 0, {16 * tb.count('2')}")
                e(f"s_and_b32 s9, s9, s8")
            else: e(f"s_and_b32 s9, s9, {m1_}")
            e(f"s_bcnt1_i32_b32 s9, s9")
            e(f"s_and_b32 s{sT1}, s2, 7")
            e(f"s_lshl3_add_u32 s9, s9, s{sT1}")
            if R2:
                e(f"s_lshl_b32 s9, s9, s10")
                e(f"s_add_u32 s9, s9, s11")
            e(f"s_bitcmp1_b32 {'s8' if R2 else m1_}, s{sT0}")
            e(f"s_cselect_b32 s9, s9, 255")
        elif opt["rmap"]:
            RJ = 9
            e(f"s_lshr_b32 s9, s2, 4")
            e(f"s_lshl_b32 s9, s9, 3")
            e(f"s_and_b32 s{sT0}, s2, 7")
            e(f"s_add_u32 s9, s9, s{sT0}")
            if opt["rmap"] > 2: e(f"s_xor_b32 s9, s9, {0x60}")
            e(f"s_lshr_b32 s{sT0}, s2, 2")
            e(f"s_xor_b32 s{sT0}, s{sT0}, s2")
            e(f"s_bitcmp{(opt['rmap'] - 1) % 2}_b32 s{sT0}, 3")
            e(f"s_cselect_b32 s9, s9, 255")
        e(f"s_lshr_b32 s{sT1}, s{RJ}, 1")
        e(f"s_and_b32 s{sT0}, s{RJ}, 1")
        if opt["rpk"]:
            e(f"s_mul_i32 s{sRFL}, s{sT1}, 43")
            e(f"s_lshr_b32 s{sRFL}, s{sRFL}, 9")
            e(f"s_mul_i32 s{sRFL}, s{sRFL}, {128 // opt['rpk'] - 12}")
            e(f"s_add_u32 s{sRFL}, s{sRFL}, s{sT1}")
            e(f"s_mul_i32 s{sRFL}, s{sRFL}, {opt['rpk']}")
            if RPW: e(f"s_lshl2_add_u32 s{sRS}, s{sT0}, s{sW}")
            e(f"s_lshl_b32 s{sRS}, s{sRS if RPW else sT0}, 9")
            e(f"s_add_u32 s{sRFL}, s{sRFL}, s{sRS}")
        else:
            e(f"s_mul_i32 s{sRFL}, s{sT0}, 48")
            e(f"s_add_u32 s{sRFL}, s{sRFL}, s{sT1}")
            e(f"s_lshl_b32 s{sRFL}, s{sRFL}, 7")
        if OW:
            e(f"s_mul_i32 s{sRS}, s{sT1}, 43")
            e(f"s_lshr_b32 s{sRS}, s{sRS}, 9")
            e(f"s_mul_i32 s{sRS}, s{sRS}, 47")
            e(f"s_lshl_b32 s{sT1}, s{sT1}, 2")
            e(f"s_sub_u32 s{sT1}, s{sT1}, s{sRS}")
        e(f"s_lshl_b32 s{sRS}, s{sT1}, 2")
        e(f"s_add_u32 s{sRS}, s{sRS}, s{sW}")
        e(f"s_mul_i32 s{sRS}, s{sRS}, 10240")
        e(f"s_lshl_b32 s{sT0}, s{sT0}, 7")
        e(f"s_add_u32 s{sRS}, s{sRS}, s{sT0}")
        e(f"s_add_u32 s{sRS}, s{sRS}, 1024")
        e(f"s_lshl_b32 s{sRD}, s{RJ}, 2")
        e(f"s_add_u32 s{sRD}, s{sRD}, s{sW}")
        e(f"s_lshl_b32 s{sRD}, s{sRD}, 10")
        e(f"s_add_u32 s{sRD}, s{sRD}, {W2F}")
        e(f"s_cmp_lt_u32 s{RJ}, {0 if opt['nor'] else 96}")
        e(f"s_cselect_b32 s{sRS}, s{sRS}, 1966080")
        e(f"s_cselect_b32 s{sRD}, s{sRD}, {HREC}")
        e(f"s_cselect_b32 s{sRFL}, s{sRFL}, {HREC - RFL}")
    else:
        e(f"s_and_b32 s{sT0}, s2, 63")
        e(f"s_mul_i32 s{sT1}, s{sT0}, 205")
        e(f"s_lshr_b32 s{sT1}, s{sT1}, 10")
        e(f"s_mul_i32 s{sRS}, s{sT1}, 5")
        e(f"s_sub_u32 s{sRS}, s{sT0}, s{sRS}")
        e(f"s_lshr_b32 s{sRD}, s2, 6")
        e(f"s_mul_i32 s{sRFL}, s{sRD}, 5")
        e(f"s_add_u32 s{sRFL}, s{sRFL}, s{sRS}")
        e(f"s_lshl_b32 s{sRFL}, s{sRFL}, 4")
        e(f"s_add_u32 s{sRFL}, s{sRFL}, s{sT1}")
        e(f"s_lshl_b32 s{sRFL}, s{sRFL}, 7")
        if opt["own"]:
            e(f"s_mul_i32 s6, s{sT1}, 6")
            e(f"s_add_u32 s6, s6, s{sRD}")
            e(f"s_lshr_b32 s7, s{sT1}, 1")
            e(f"s_mul_i32 s7, s7, 6")
            e(f"s_and_b32 s8, s{sT1}, 1")
            e(f"s_add_u32 s7, s7, s8")
            e(f"s_mul_i32 s8, s{sRD}, 12")
            e(f"s_add_u32 s7, s7, s8")
            e(f"s_sub_u32 s7, s7, 20")
            e(f"s_cmp_lt_u32 s{sT1}, 8")
            e(f"s_cselect_b32 s6, s6, s7")
            e(f"s_mul_i32 s6, s6, 40960")
        e(f"s_mul_i32 s{sRD}, s{sRD}, 12")
        e(f"s_add_u32 s{sT1}, s{sT1}, s{sRD}")
        e(f"s_mul_i32 s{sT1}, s{sT1}, 40960")
        e(f"s_lshl_b32 s{sRD}, s{sRS}, 13")
        e(f"s_add_u32 s{sRD}, s{sRD}, s{sT1}")
        e(f"s_lshl_b32 s{sRS}, s{sRS}, 8")
        e(f"s_add_u32 s{sRS}, s{sRS}, s{6 if opt['own'] else sT1}")
        e(f"s_lshl_b32 s{sT1}, s{sW}, 11")
        e(f"s_add_u32 s{sRD}, s{sRD}, s{sT1}")
        e(f"s_add_u32 s{sRD}, s{sRD}, {W2F}")
        e(f"s_cmp_lt_u32 s{sT0}, {0 if opt['nor'] else 60}")
        e(f"s_cselect_b32 s{sRS}, s{sRS}, 1966080")
        e(f"s_cselect_b32 s{sRD}, s{sRD}, {HREC}")
    if opt["pt"] & 1:
        e(f"s_min_u32 s{sT1}, s{sRS}, {1966080-4}")
        e(f"s_load_dword s101, s[8:9], s{sT1}")
    if opt["pt"] & 2:
        e(f"s_mul_i32 s{sT1}, s{sMT}, {64*3072}")
        e(f"s_load_dword s101, s[12:13], s{sT1}")
    if opt["pt"] & 4:
        e(f"s_load_dword s101, s[10:11], s{sXB}")
    if opt["pt"] & 8:
        e(f"s_load_dword s101, s[12:13], s{sRD}")
    if D1:
        e(f"v_lshrrev_b32 v{t0}, 3, v{L}")
        e(f"v_mul_u32_u24 v{t0}, 1280, v{t0}")
        e(f"v_and_b32 v{t1}, 7, v{L}")
        e(f"v_lshlrev_b32 v{t2}, 1, v{G}")
        e(f"v_xor_b32 v{t1}, v{t1}, v{t2}")
        e(f"v_lshl_add_u32 v{vWD}, v{t1}, 4, v{t0}")
        for i in range(1, 4): e(f"v_add_u32 v{vWD+i}, {i*(10240-1024)}, v{vWD}")
    else:
        e(f"v_lshl_add_u32 v{t0}, v{Wv}, 3, v{G}")
        e(f"v_mul_u32_u24 v{t0}, 1280, v{t0}")
        e(f"v_and_b32 v{t1}, 15, v{L}")
        e(f"v_lshlrev_b32 v{t2}, 1, v{G}")
        e(f"v_xor_b32 v{t1}, v{t1}, v{t2}")
        e(f"v_lshl_add_u32 v{vDR}, v{t1}, 4, v{t0}")
        e(f"v_xor_b32 v{t1}, 8, v{t1}")
        e(f"v_lshl_add_u32 v{vDR+1}, v{t1}, 4, v{t0}")
        e(f"v_add_u32 v{vDR+1}, {4*1280-1024}, v{vDR+1}")
    e(f"v_bfe_u32 v{R}, v{L}, 2, 2")
    e(f"v_and_b32 v{C}, 3, v{L}")
    if opt["r16"]:
        e(f"v_and_b32 v{u1}, 1, v{G}")
        e(f"v_lshl_add_u32 v{u0}, v{u1}, 3, v{R}")
        e(f"v_mul_u32_u24 v{u0}, 384, v{u0}")
        e(f"v_lshl_add_u32 v{u0}, v{u1}, 4, v{u0}")
        e(f"v_lshrrev_b32 v{t2}, 5, v{L}")
        e(f"v_lshl_add_u32 v{u0}, v{t2}, 13, v{u0}")
        e(f"v_lshrrev_b32 v{u1}, 1, v{R}")
        e(f"v_xor_b32 v{u1}, v{u1}, v{Wv}")
        e(f"v_and_b32 v{u1}, 1, v{u1}")
        e(f"v_lshl_add_u32 v{u0}, v{u1}, 6, v{u0}")
        e(f"v_lshrrev_b32 v{u1}, 1, v{C}")
        e(f"v_lshl_add_u32 v{u0}, v{u1}, 5, v{u0}")
        e(f"v_and_b32 v{u1}, 1, v{C}")
        e(f"v_lshl_add_u32 v{vA}, v{u1}, 3, v{u0}")
        e(f"v_xor_b32 v{vA+1}, 16, v{vA}")
        for k in range(2): e(f"v_add_u32 v{vA+2+k}, 65536, v{vA+k}")
        e(f"v_and_b32 v{u0}, 2, v{Wv}")
        e(f"v_lshlrev_b32 v{u0}, 13, v{u0}")
        e(f"v_and_b32 v{u2}, 15, v{L}")
        e(f"v_lshl_add_u32 v{u0}, v{u2}, 7, v{u0}")
        e(f"v_add_u32 v{u0}, 6144, v{u0}")
        e(f"v_lshrrev_b32 v{u1}, 1, v{u2}")
        e(f"v_xor_b32 v{u1}, v{u1}, v{G}")
        e(f"v_lshl_add_u32 v{vB+4}, v{u1}, 4, v{u0}")
        e(f"v_xor_b32 v{vB+5}, 64, v{vB+4}")
        for k in range(2): e(f"v_add_u32 v{vB+6+k}, 65536, v{vB+4+k}")
    else:
        e(f"v_lshrrev_b32 v{u0}, 1, v{G}")
        e(f"v_lshl_add_u32 v{u0}, v{u0}, 3, v{R}")
        e(f"v_mul_u32_u24 v{u0}, 384, v{u0}")
        e(f"v_lshrrev_b32 v{u1}, 1, v{R}")
        e(f"v_xor_b32 v{u1}, v{u1}, v{Wv}")
        e(f"v_and_b32 v{u1}, 1, v{u1}")
        e(f"v_lshl_add_u32 v{u0}, v{u1}, 6, v{u0}")
        e(f"v_and_b32 v{u1}, 1, v{G}")
        e(f"v_lshl_add_u32 v{u0}, v{u1}, 5, v{u0}")
        e(f"v_lshl_add_u32 v{vA}, v{C}, 3, v{u0}")
        e(f"v_add_u32 v{vA+1}, 65536, v{vA}")
        e(f"v_and_b32 v{u0}, 2, v{Wv}")
        e(f"v_add_u32 v{u0}, v{u0}, v{u1}")
        e(f"v_lshlrev_b32 v{u0}, 13, v{u0}")
        e(f"v_and_b32 v{u2}, 15, v{L}")
        e(f"v_lshl_add_u32 v{u0}, v{u2}, 7, v{u0}")
        e(f"v_add_u32 v{u0}, 6144, v{u0}")
        e(f"v_lshrrev_b32 v{u1}, 1, v{u2}")
        e(f"v_lshrrev_b32 v{t2}, 5, v{L}")
        e(f"v_xor_b32 v{u1}, v{u1}, v{t2}")
        e(f"v_lshl_add_u32 v{vB}, v{u1}, 4, v{u0}")
        for k in range(1, 4): e(f"v_xor_b32 v{vB+k}, {32*k}, v{vB}")
        for k in range(4): e(f"v_add_u32 v{vB+4+k}, 65536, v{vB+k}")
    if D1:
        e(f"v_and_b32 v{u1}, 1, v{G}")
        e(f"v_lshl_add_u32 v{u1}, v{u1}, 2, v{R}")
        e(f"v_lshlrev_b32 v{u0}, 11, v{t2}")
        e(f"v_lshl_add_u32 v{u0}, v{u1}, 7, v{u0}")
        e(f"v_lshrrev_b32 v{u1}, 1, v{u1}")
        e(f"v_lshl_add_u32 v{u0}, v{u1}, 5, v{u0}")
        e(f"v_and_b32 v{u1}, 1, v{C}")
        e(f"v_lshl_add_u32 v{u0}, v{u1}, 4, v{u0}")
        e(f"v_lshrrev_b32 v{u1}, 1, v{C}")
        e(f"v_lshl_add_u32 v{u0}, v{u1}, 3, v{u0}")
        e(f"v_add_u32 v{u0}, {RB}, v{u0}")
        e(f"v_lshlrev_b32 v{t3}, 5, v{Wv}")
        e(f"v_xor_b32 v{vRA}, v{u0}, v{t3}")
        e(f"v_add_u32 v{vWT}, s{sM0}, v{u0}")
        for j in range(1, 4): e(f"v_xor_b32 v{vWT+j}, {32*j}, v{vWT}")
    else:
        e(f"v_and_b32 v{u1}, 1, v{G}")
        e(f"v_lshl_add_u32 v{u1}, v{u1}, 2, v{R}")
        e(f"v_lshlrev_b32 v{u0}, 12, v{t2}")
        e(f"v_lshl_add_u32 v{u0}, v{u1}, 8, v{u0}")
        e(f"v_lshlrev_b32 v{t3}, 1, v{Wv}")
        e(f"v_xor_b32 v{u1}, v{u1}, v{t3}")
        e(f"v_lshl_add_u32 v{u0}, v{u1}, 5, v{u0}")
        e(f"v_and_b32 v{u1}, 1, v{C}")
        e(f"v_lshl_add_u32 v{u0}, v{u1}, 4, v{u0}")
        e(f"v_lshrrev_b32 v{u1}, 1, v{C}")
        e(f"v_lshl_add_u32 v{u0}, v{u1}, 3, v{u0}")
        e(f"v_add_u32 v{vRA}, {RB}, v{u0}")
        e(f"v_xor_b32 v{vRA+1}, 32, v{vRA}")
    if not D1:
        e(f"v_mov_b32 v{vCN}, {CNT}")
        e(f"v_mov_b32 v{vONE}, 0")
        e(f"ds_write_b32 v{vCN}, v{vONE}"); LG.issue("cnt")
    if opt["ab"]: e(f"ds_write_b32 v{vCN}, v{vONE} offset:4"); LG.issue("cnt")
    for i in range(48): e(f"v_mov_b32 v{vACC1+i}, 0")
    if not D1: e(f"v_mov_b32 v{vONE}, 1")
    e(f"v_and_b32 v{u1}, 1, v{G}")
    if opt["r16"]: e(f"v_add_u32 v{vHS}, 12288, v{vL16}")
    else:
        e(f"v_mul_u32_u24 v{u0}, 12288, v{u1}")
        e(f"v_lshl_add_u32 v{u0}, v{t2}, 8, v{u0}")
        e(f"v_lshl_add_u32 v{vHS}, v{u2}, 4, v{u0}")
    if opt["own"]:
        e(f"s_and_b32 s{sT0}, s{sW}, 1")
        e(f"s_and_b32 s{sT1}, s{sW}, 2")
        e(f"s_sub_u32 s{sT1}, s{sT1}, s{sT0}")
        e(f"s_add_u32 s{sT1}, s{sT1}, 3")
        e(f"v_add_u32 v{u0}, s{sT1}, v{u1}")
        e(f"v_and_b32 v{u0}, 3, v{u0}")
        e(f"s_lshl_b32 s{sT0}, s{sT0}, 12")
        e(f"s_add_u32 s{sT0}, s{sT0}, {OWN}")
        e(f"v_lshl_add_u32 v{u0}, v{u0}, 10, s{sT0}")
        e(f"v_lshl_add_u32 v{u0}, v{t2}, 8, v{u0}")
        e(f"v_lshl_add_u32 v{vOW}, v{u2}, 4, v{u0}")
        e(f"v_xor_b32 v{vOW+1}, 2048, v{vOW}")
        e(f"s_lshl_b32 s{sT0}, s{sW}, 12")
        e(f"s_add_u32 s{sT0}, s{sT0}, {OWN}")
        e(f"v_add_u32 v{vOW+2}, s{sT0}, v{vL16}")
    if OW:
        e(f"s_and_b32 s{sT0}, s{sW}, 1")
        e(f"s_lshl1_add_u32 s{sT0}, s{sFT}, s{sT0}")
        e(f"s_and_b32 s{sT0}, s{sT0}, 3")
        e(f"s_and_b32 s{sT1}, s{sW}, 2")
        e(f"s_sub_u32 s{sT1}, s{sT1}, s{sT0}")
        e(f"s_add_u32 s{sT1}, s{sT1}, 7")
        e(f"v_add_u32 v{u0}, s{sT1}, v{u1}")
        e(f"v_and_b32 v{u0}, 3, v{u0}")
        e(f"s_lshl_b32 s{sT0}, s{sT0}, 13")
        e(f"s_add_u32 s{sT0}, s{sT0}, {65536+4096}")
        e(f"v_lshl_add_u32 v{u0}, v{u0}, 10, s{sT0}")
        e(f"v_lshl_add_u32 v{u0}, v{t2}, 8, v{u0}")
        e(f"v_lshl_add_u32 v{vOW}, v{u2}, 4, v{u0}")
        e(f"v_xor_b32 v{vOW+1}, {16384+2048}, v{vOW}")
    e(f"v_mul_u32_u24 v{u0}, 1280, v{u2}")
    e(f"v_lshl_add_u32 v{vOUT}, v{G}, 4, v{u0}")
    e(f"v_lshl_add_u32 v{u0}, v{u1}, 4, v{u0}")
    e(f"v_lshl_add_u32 v{vOUT2}, v{t2}, 3, v{u0}")
    if opt["bp"]:
        e(f"v_lshrrev_b32 v{vL16b}, 2, v{L}")
        e(f"v_mul_u32_u24 v{u0}, 1280, v{vL16b}")
        e(f"v_lshl_add_u32 v{vOUT}, v{C}, 4, v{u0}")
        e(f"v_lshl_add_u32 v{vL16b}, v{C}, 4, v{vL16b}")
        e(f"v_lshlrev_b32 v{vL16b}, 2, v{vL16b}")
        e(f"v_and_b32 v{vOUT2}, 1, v{C}")
        e(f"v_lshl_add_u32 v{u0}, v{vOUT2}, 4, v{u0}")
        e(f"v_lshrrev_b32 v{vOUT2}, 1, v{C}")
        e(f"v_lshl_add_u32 v{vOUT2}, v{vOUT2}, 3, v{u0}")
    if opt["t4"]:
        e(f"v_mul_u32_u24 v{u0}, {4*1280}, v{G}")
        e(f"v_lshl_add_u32 v{u0}, v{C}, 1, v{u0}")
        e(f"v_and_b32 v{vOUT2}, 1, v{R}")
        e(f"v_lshl_add_u32 v{u0}, v{vOUT2}, 4, v{u0}")
        e(f"v_lshrrev_b32 v{vOUT2}, 1, v{R}")
        e(f"v_lshl_add_u32 v{vOUT2}, v{vOUT2}, 3, v{u0}")
    if opt["ofk"]:
        sh = 1 + opt["ofk"]
        e(f"v_lshrrev_b32 v{u0}, {sh}, v{L}")
        e(f"v_mul_u32_u24 v{u0}, 1280, v{u0}")
        e(f"v_and_b32 v{vOUT}, {(1 << sh) - 1}, v{L}")
        e(f"v_lshl_add_u32 v{vOUT}, v{vOUT}, 4, v{u0}")
        e(f"v_add_u32 v{vL16b}, {64 if sh == 2 else 10240}, v{vOUT}")
        e(f"v_lshrrev_b32 v{u0}, 2, v{L}")
        e(f"v_mul_u32_u24 v{u0}, 1280, v{u0}")
        e(f"v_and_b32 v{vOUT2}, 3, v{L}")
        e(f"v_lshl_add_u32 v{vOUT2}, v{vOUT2}, 3, v{u0}")
    if not D1: e(f"v_add_u32 v{vL16b}, 4096, v{vL16}")
    if D1:
        if RPW: e(f"s_lshl2_add_u32 s{sT0}, s{sFT}, s{sW}")
        else:
            e(f"s_lshr_b32 s{sT0}, s{sFT}, 2")
            e(f"s_lshl_b32 s{sT0}, s{sT0}, 2")
            e(f"s_add_u32 s{sT0}, s{sT0}, s{sW}")
        e(f"s_mul_i32 s{sT0}, s{sT0}, {128 if opt['rpk'] else 12*128}")
        e(f"v_min_u32 v{vRP}, 11, v{u2}")
        e(f"v_lshl_add_u32 v{vRP}, v{vRP}, {dict([(0,7),(4,2),(8,3)])[opt['rpk']]}, s{sT0}")
    else:
        e(f"s_mul_i32 s{sT0}, s{sFT}, 5")
        e(f"v_lshl_add_u32 v{u0}, v{u1}, 2, s{sT0}")
        e(f"v_lshrrev_b32 v{u0}, 3, v{u0}")
        e(f"v_mad_u32_u24 v{u0}, v{Wv}, 5, v{u0}")
        e(f"v_min_u32 v{vRP}, 11, v{u2}")
        e(f"v_lshlrev_b32 v{vRP}, 7, v{vRP}")
        e(f"v_lshl_add_u32 v{vRP}, v{u0}, 11, v{vRP}")
    e(f"v_lshlrev_b32 v{vL4}, 2, v{L}")
    if opt["own"] or OW:
        e(f"v_and_b32 v{vPA}, {opt['pl2']}, v{L}")
        e(f"v_lshlrev_b32 v{vPA}, 7, v{vPA}")
    else: e(f"v_mul_u32_u24 v{vPA}, {FS}, v{u1}")
    if D1:
        assert FS == 128
        e(f"v_lshlrev_b32 v{vAC}, 7, v0")
        e(f"s_add_u32 s{sT0}, s{sM0}, 32768")
        e(f"v_add_u32 v{vRW}, s{sT0}, v{vL16}")
        e(f"v_add_u32 v{vRW2}, 65536, v{vRW}")
        for p in range(3):
            e(f"s_sub_u32 s{sT0}, s{sW}, {1+p}")
            e(f"s_and_b32 s{sT0}, s{sT0}, 3")
            e(f"s_lshl_b32 s{sT0}, s{sT0}, 13")
            e(f"s_add_u32 s{sT0}, s{sT0}, {32768*(p+1)}")
            e(f"v_add_u32 v{vRR+p}, s{sT0}, v{vL16}")
        e(f"s_mul_i32 s{sW2B}, s{sW}, {40960 if OW else 12*40960}")
        e(f"s_lshl_b32 s{sT0}, s{sFT}, 7")
        e(f"s_add_u32 s{sW2B}, s{sW2B}, s{sT0}")
        e(f"s_mul_i32 s{sW5B}, s{sW}, 96")
        e(f"s_add_u32 s{sW5B}, s{sW5B}, s{sFT}")
        e(f"s_lshl_b32 s{sW5B}, s{sW5B}, 10")
        e(f"s_add_u32 s{sW5B}, s{sW5B}, {W2F}")
    else:
        e(f"v_mul_u32_u24 v{u0}, 205, v{L}")
        e(f"v_lshrrev_b32 v{u0}, 10, v{u0}")
        e(f"v_sub_u32 v{vAC}, v{Wv}, v{u0}")
        e(f"v_mad_i32_i24 v{vAC}, v{vAC}, 5, v{L}")
        e(f"v_lshlrev_b32 v{vAC}, 11, v{vAC}")
        e(f"v_lshl_add_u32 v{vAC}, v{u0}, 7, v{vAC}")
        e(f"s_mul_i32 s{sT0}, s{sW}, 15360")
        e(f"s_add_u32 s{sT0}, s{sT0}, {RED}")
        e(f"v_add_u32 v{vRW}, s{sT0}, v{vL16}")
        for p in range(3):
            e(f"s_sub_u32 s{sT0}, s{sW}, {1+p}")
            e(f"s_and_b32 s{sT0}, s{sT0}, 3")
            e(f"s_mul_i32 s{sT0}, s{sT0}, 15360")
            e(f"s_add_u32 s{sT0}, s{sT0}, {RED + p*5120}")
            e(f"v_add_u32 v{vRR+p}, s{sT0}, v{vL16}")
        e(f"s_mul_i32 s{sW2B}, s{sW}, {12*40960}")
        e(f"s_mul_i32 s{sT0}, s{sFT}, 5120")
        e(f"s_add_u32 s{sW2B}, s{sW2B}, s{sT0}")
        e(f"s_add_u32 s{sW2B}, s{sW2B}, {W2F}")
    if opt["ab"]:
        e(f"s_mov_b32 s{sSIG+6}, 0x98763210"); e(f"s_mov_b32 s{sSIG+7}, 0x98763210")
        e(f"s_lshr_b64 s[{sSIG+6}:{sSIG+7}], s[{sSIG+6}:{sSIG+7}], s{sROT}")
        e(f"s_mov_b32 s{sSIG+7}, s{sSIG+6}")
        e(f"s_and_b32 s{sROT}, s{sROT}, 12")
        e(f"s_lshr_b32 s{sSIG+11}, 0xba54ba54, s{sROT}")
        for n in range(12):
            src = sSIG+7 if n < 8 else sSIG+11
            e(f"s_bfe_u32 s{sSIG+n}, s{src}, {0x40000 + 4*(n%8)}")
            e(f"s_lshl_b32 s{sSIG+n}, s{sSIG+n}, 10")
    if opt["own"]:
        e(f"s_lshl_b32 s{sSIG}, s{sFT}, 10")
        for n in range(1, 12):
            e(f"s_cmp_eq_u32 s{sROT}, s{sFT}")
            e(f"s_addc_u32 s{sROT}, s{sROT}, 0")
            e(f"s_lshl_b32 s{sSIG+n}, s{sROT}, 10")
            if n < 11:
                e(f"s_add_u32 s{sROT}, s{sROT}, 1")
                e(f"s_cmp_ge_u32 s{sROT}, 12")
                e(f"s_cselect_b32 s{sROT}, 0, s{sROT}")
    if OW:
        e(f"s_lshl_b32 s{sT0}, s{sFT}, 1")
        e(f"s_sub_u32 s{sT0}, s{sW}, s{sT0}")
        e(f"s_and_b32 s{sT0}, s{sT0}, 3")
        e(f"s_mul_i32 s{sT1}, s{sFT}, 6")
        e(f"s_add_u32 s{sT0}, s{sT0}, s{sT1}")
        e(f"s_lshr_b32 s{sT0}, s{sT0}, 2")
        e(f"s_lshl_b32 s{sSIG}, s{sT0}, 10")
        for n in range(1, 12):
            e(f"s_cmp_ge_u32 s{sROT}, s{sT0}")
            e(f"s_addc_u32 s{sT1}, s{sROT}, 0")
            e(f"s_lshl_b32 s{sSIG+n}, s{sT1}, 10")
            if n < 11:
                e(f"s_add_u32 s{sROT}, s{sROT}, 1")
                e(f"s_cmp_ge_u32 s{sROT}, 11")
                e(f"s_cselect_b32 s{sROT}, 0, s{sROT}")
    for n in range(12 if not opt["ab"] and not opt["own"] and not OW else 0):
        e(f"s_lshl_b32 s{sSIG+n}, s{sROT}, 10")
        if n < 11:
            e(f"s_add_u32 s{sROT}, s{sROT}, 1")
            e(f"s_cmp_ge_u32 s{sROT}, 12")
            e(f"s_cselect_b32 s{sROT}, 0, s{sROT}")
    if opt["own2"] == 2:
        e(f"s_mov_b32 s{sOWN}, s{sW}")
    elif opt["own2"] == 3:
        e(f"s_and_b32 s{sOWN}, s{sFT}, 1")
        e(f"s_add_u32 s{sOWN}, s{sW}, s{sOWN}")
    elif opt["own2"]:
        e(f"s_lshl_b32 s{sOWN}, s{sFT}, 1")
        e(f"s_add_u32 s{sOWN}, s{sW}, s{sOWN}")
    else: e(f"s_add_u32 s{sOWN}, s{sW}, s{sFT}")
    e(f"s_and_b32 s{sOWN}, s{sOWN}, 3")
    e(f"s_lshl_b32 s{sT1}, s{sMT}, 2")
    e(f"s_add_u32 s{sT1}, s{sT1}, s{sW}")
    if opt["own"] or OW: e(f"s_lshl_b32 s{sPOL}, s{sMT}, 10")
    else: e(f"s_mul_i32 s{sPOL}, s{sT1}, {2*FS}")
    e(f"s_add_u32 s{sPOL}, s{sPOL}, {FL}")
    e(f"s_lshl_b32 s{sT1}, s{sT1}, 2")
    for p in range(4):
        e(f"s_add_u32 s{sT0}, s{sOWN}, {1+p}")
        e(f"s_and_b32 s{sT0}, s{sT0}, 3")
        e(f"s_add_u32 s{sT0}, s{sT0}, s{sT1}")
        e(f"s_mul_i32 s{sT0}, s{sT0}, 12288")
        e(f"v_add_u32 v{vHB+p}, s{sT0}, v{vL16}")
    e(f"s_lshl_b32 s{sOB}, s{sMT}, 2")
    e(f"s_add_u32 s{sOB}, s{sOB}, s{sOWN}")
    e(f"s_mul_i32 s{sOB}, s{sOB}, {16*1280}")
    if D1:
        e(f"s_lshl_b32 s{sT0}, s{sFT}, 5")
        e(f"s_add_u32 s{sOB2}, s{sOB}, s{sT0}")
        e(f"s_add_u32 s{sOB2}, s{sOB2}, {1024-128}")
    e(f"s_mul_i32 s{sT0}, s{sFT}, {128 if D1 else 160}")
    e(f"s_add_u32 s{sOB}, s{sOB}, s{sT0}")
    if opt["ost"]:
        e(f"s_cmp_ge_u32 s{sW}, {opt['ost']}")
        e(f"s_cselect_b32 s{sOB}, s{sOB}, 2621440")
    e(f"s_lshl_b32 s{sT0}, s{sMT}, 2")
    e(f"s_lshr_b32 s{sT1}, s{sFT}, 1")
    e(f"s_add_u32 s{sT0}, s{sT0}, s{sT1}")
    e(f"s_mul_i32 s{sFLG}, s{sT0}, {2*FS}")
    e(f"s_lshl_b32 s{sT0}, s{sT0}, 2")
    e(f"s_and_b32 s{sT1}, s{sW}, 2")
    e(f"s_add_u32 s{sT0}, s{sT0}, s{sT1}")
    e(f"s_mul_i32 s{sHS}, s{sT0}, 12288")
    e(f"s_and_b32 s{sT0}, s{sFT}, 1")
    e(f"s_mul_i32 s{sT1}, s{sT0}, {FS}")
    e(f"s_add_u32 s{sFLG}, s{sFLG}, s{sT1}")
    e(f"s_add_u32 s{sFLG}, s{sFLG}, {FL}")
    e(f"s_mul_i32 s{sT0}, s{sT0}, 6")
    e(f"s_and_b32 s{sT1}, s{sW}, 1")
    e(f"s_add_u32 s{sT0}, s{sT0}, s{sT1}")
    e(f"s_lshl_b32 s{sT0}, s{sT0}, 10")
    e(f"s_add_u32 s{sHS}, s{sHS}, s{sT0}")
    e(f"s_add_u32 s{sHS2}, s{sHS}, 4096")
    if opt["own"]:
        e(f"s_and_b32 s{sT0}, s{sFT}, 1")
        e(f"s_lshl_b32 s{sT0}, s{sT0}, 12")
        e(f"s_sub_u32 s{sHS2}, s{sHS}, s{sT0}")
        e(f"s_add_u32 s{sHS2}, s{sHS2}, 8192")
        e(f"s_lshl_b32 s{sT0}, s{sMT}, 2")
        e(f"s_add_u32 s{sT0}, s{sT0}, s{sT1}")
        e(f"s_lshl_b32 s{sT0}, s{sT0}, 2")
        e(f"s_and_b32 s{sT1}, s{sW}, 2")
        e(f"s_add_u32 s{sT0}, s{sT0}, s{sT1}")
        e(f"s_mul_i32 s{sT0}, s{sT0}, 12")
        e(f"s_add_u32 s{sT0}, s{sT0}, s{sFT}")
        e(f"s_lshl_b32 s{sHS}, s{sT0}, 10")
        e(f"s_add_u32 s{sHS1}, s{sHS}, 98304")
    if OW:
        for q, r in enumerate((sHS, 10, sHS2)):
            e(f"s_mul_i32 s{sT0}, s{sFT}, 6")
            e(f"s_and_b32 s{sT1}, s{sW}, 1")
            e(f"s_add_u32 s{sT0}, s{sT0}, s{sT1}")
            if q: e(f"s_add_u32 s{sT0}, s{sT0}, {2*q}")
            e(f"s_and_b32 s{sT1}, s{sT0}, 3")
            e(f"s_lshl2_add_u32 s{sT1}, s{sMT}, s{sT1}")
            e(f"s_and_b32 s{r}, s{sW}, 2")
            e(f"s_lshl2_add_u32 s{sT1}, s{sT1}, s{r}")
            e(f"s_mul_i32 s{sT1}, s{sT1}, 12")
            e(f"s_lshr_b32 s{sT0}, s{sT0}, 2")
            e(f"s_add_u32 s{sT0}, s{sT0}, s{sT1}")
            e(f"s_lshl_b32 s{r}, s{sT0}, 10")
    e(f"s_add_u32 s{sRFL}, s{sRFL}, {RFL}")
    if opt["tpre"]:
        tb = str(opt["ttab"]).lstrip("x"); assert len(tb) == 32
        nn = tb.count("1"); assert 48 % nn == 0 and 48 // nn <= 8
        rw = 48 // nn
        mk_ = sum(int(c) << i for i, c in enumerate(tb))
        e(f"s_lshr_b32 s9, s2, 3")
        e(f"s_bfm_b32 s8, s9, 0")
        e(f"s_and_b32 s8, s8, {mk_}")
        e(f"s_bcnt1_i32_b32 s8, s8")
        e(f"s_and_b32 s{sT0}, s2, 7")
        e(f"s_lshl3_add_u32 s8, s8, s{sT0}")
        e(f"s_lshl2_add_u32 s8, s8, s{sW}")
        e(f"s_mul_i32 s8, s8, {rw*1280}")
        e(f"s_bitcmp1_b32 {mk_}, s9")
        e(f"s_cselect_b32 s8, s8, 1966080")
        e(f"v_lshrrev_b32 v251, 3, v{L}")
        e(f"v_lshl_add_u32 v250, v251, 8, s8")
        e(f"v_lshl_add_u32 v250, v{L}, 7, v250")
        if rw < 8:
            e(f"v_add_u32 v251, {8 - rw}, v251")
            e(f"v_lshrrev_b32 v251, 3, v251")
            e(f"v_lshl_add_u32 v250, v251, 21, v250")
    if R2:
        e(f"s_lshl_b32 s{sT0}, s{sW}, 9")
        e(f"s_add_u32 s{sRFL}, s{sRFL}, s{sT0}")
        e(f"s_cmp_le_u32 s{sW}, s10")
        e(f"s_cselect_b32 s{sRFL}, s{sRFL}, {HREC}")
    elif not RPW:
        e(f"s_cmp_eq_u32 s{sW}, 0")
        e(f"s_cselect_b32 s{sRFL}, s{sRFL}, {HREC}")
    if opt["fpre"]:
        assert opt["fb"] and opt["fk"] == 0 and not RPW
        e(f"s_cmp_eq_u32 s{sW}, 0")
        e(f"s_cselect_b32 s{sFLG}, s{sFLG}, {HREC}")
        assert HREC == 1 << 23 and opt["rpk"] == 8
        e(f"v_lshrrev_b32 v249, 1, v{L}")
        e(f"v_lshl_add_u32 v249, v249, 23, v{vL4}")
        e(f"v_lshrrev_b32 v248, 5, v{L}")
        e(f"v_lshl_add_u32 v248, v248, 23, v{vL4}")
    e(f"s_mov_b32 s{sL2E}, 0xbfb8aa3b")
    if opt["pk"]:
        e(f"s_mov_b32 s{sPK}, 0xbfb8aa3b"); e(f"s_mov_b32 s{sPK+1}, 0xbfb8aa3b")
def r_loads():
    if D1:
        e(f"s_lshr_b32 m0, s{sM0}, 3")
        e(f"s_add_u32 m0, m0, {RB}")
        e("s_nop 0")
        e(f"buffer_load_dwordx4 v{vWD}, {srd(sW2)}, s{sRS} offen {opt['raux']} lds"); VM.issue("rld")
        if R2:
            e(f"s_add_u32 m0, m0, {4096 - 128}")
            e(f"s_cmp_eq_u32 s10, 1")
            e(f"s_cselect_b32 s{sRS}, s{sRS}, 1966080")
            e(f"buffer_load_dwordx4 v{vWD}, {srd(sW2)}, s{sRS} offen offset:128 {opt['raux']} lds"); VM.issue("rld")
        return
    e(f"s_lshr_b32 m0, s{sM0}, 2")
    e(f"s_add_u32 m0, m0, {RB}")
    e("s_nop 0")
    for i in range(2):
        e(f"buffer_load_dwordx4 v{vDR+i}, {srd(sW2)}, s{sRS} offen offset:{i*1024} {opt['raux']} lds"); VM.issue("rld")
def r_reads():
    if D1:
        for t in range(4 if R2 else 2):
            e(f"ds_read_b64_tr_b16 {vr(vRF + 2*t, 2)}, v{vRA} offset:{(t % 2)*1024 + (t // 2)*4096}"); LG.issue("rrd")
        return
    for ee in range(2):
        for t in range(2):
            e(f"ds_read_b64_tr_b16 {vr(vRF + 4*ee + 2*t, 2)}, v{vRA+ee} offset:{t*2048}"); LG.issue("rrd")
def r_stores():
    LG.wait("rrd")
    for ee in range(1 if D1 else 2):
        e(f"buffer_store_dwordx4 {vr(vRF+4*ee,4)}, v{vL16}, {srd(sH)}, s{sRD} offen offset:{ee*1024} {opt['rsaux']}"); VM.issue("rst")
    if R2:
        e(f"s_add_u32 s{sRD}, s{sRD}, 4096")
        e(f"s_cmp_eq_u32 s10, 1")
        e(f"s_cselect_b32 s{sRD}, s{sRD}, {HREC}")
        e(f"buffer_store_dwordx4 {vr(vRF+4,4)}, v{vL16}, {srd(sH)}, s{sRD} offen {opt['rsaux']}"); VM.issue("rst")
S2 = capture(setup2)
groups = []
for l in S2:
    if l.startswith("s_cselect") or (groups and groups[-1][-1].startswith(("s_cmp", "s_bitcmp"))): groups[-1].append(l)
    else: groups.append([l])
ST0 = []
def pre_order(spec):
    kx, kw = (sKX, 6, 8), (sKW, 7, 9)
    def nxt(i):
        a, b = (i + 1) % 3, i
        e(f"s_add_u32 s{kx[a]}, s{kx[b]}, 128")
        e(f"s_add_u32 s{kw[a]}, s{kw[b]}, {64*3072}")
        e(f"s_cmp_eq_u32 s{kx[a]}, s{sXE}")
        e(f"s_cselect_b32 s{kx[a]}, s{sXB}, s{kx[a]}")
        e(f"s_cselect_b32 s{kw[a]}, s{sWB}, s{kw[a]}")
    ops = []
    for ch in spec:
        if ch in "abc":
            st = "abc".index(ch)
            for i in range(2):
                def f(st=st, i=i):
                    if i == 0: e(f"s_add_u32 m0, s{sM0}, {st*32768+6144}"); e("s_nop 0")
                    e(f"buffer_load_dwordx4 v{vDX+i}, {srd(sX)}, s{kx[st]} offen offset:{i*1024} {opt['xaux']} lds"); VM.issue(f"st{st}")
                    if st == 0 and i == 1: nxt(0); nxt(1)
                ops.append(f)
        elif ch in "ABC":
            st = "ABC".index(ch)
            for j in range(6):
                def f(st=st, j=j):
                    if j % 4 == 0: e(f"s_add_u32 m0, s{sM0}, {st*32768+j*1024}"); e("s_nop 0")
                    e(f"buffer_load_dwordx4 v{vDW+j}, {srd(sW1)}, s{kw[st]} offen offset:{(j%4)*1024} {opt['w1aux']} lds"); VM.issue(f"st{st}")
                ops.append(f)
        elif ch == "R": ops.append(r_loads)
        elif ch == ".": ops.append(None)
        elif ch == "P":
            def f():
                e(f"s_bfe_u32 s10, s{sMT}, 0x10002")
                e(f"s_mul_i32 s10, s10, 320")
                e(f"s_and_b32 s11, s{sMT}, 3")
                e(f"s_lshl_b32 s11, s11, 4")
                e(f"s_add_u32 s10, s10, s11")
                e(f"s_mul_i32 s11, s{sW}, 12")
                e(f"s_sub_u32 s10, s10, s11")
                e(f"s_add_u32 s10, s10, 256")
                e(f"s_mul_i32 s10, s10, 3072")
                e(f"s_add_u32 s10, s10, s{sWB}")
                e(f"buffer_load_dwordx4 v[244:247], v{vDW}, {srd(sW1)}, s10 offen"); VM.issue("pp")
                e("s_mov_b32 exec_hi, 0")
                e(f"buffer_load_dwordx4 v[248:251], v{vDW+1}, {srd(sW1)}, s10 offen offset:1024"); VM.issue("pp")
                e("s_mov_b32 exec_hi, -1")
            ops.append(f)
    assert spec[0] == "a" and all(c in spec for c in "abcABC")
    last = ops[-1]
    def fin(): last(); nxt(2)
    ops[-1] = fin
    return ops
if opt["po"]:
    first = pre_order(opt["po"]); opt["pre3"] = 1
    if None in first:
        k = first.index(None); first, ST0 = first[:k], first[k+1:]
    if "R" in opt["po"]: opt["rls"] = -1
else:
    first = dma_ops(0) + dma_ops(1) + (dma_ops(2) if opt["pre3"] else [])
    if opt["rls"] < 0: first.append(r_loads)
    if opt["tch"]: first[opt["tp0"]:opt["tp0"]] = [touch] * (opt["la"] - 1)
def wxtouch(k, n):
    def f():
        if k == 0:
            e(f"s_lshr_b32 s8, s2, 3")
            e(f"s_lshl_b32 s8, s8, 2")
            e(f"s_add_u32 s8, s8, s{sW}")
            e(f"s_mul_i32 s8, s8, {12*1280}")
            e(f"s_lshr_b32 s9, s{sFT}, 2")
            e(f"s_lshl_b32 s9, s9, 9")
            e(f"s_add_u32 s8, s8, s9")
            e(f"v_lshrrev_b32 v250, 6, v{vL16}")
            e(f"v_mul_u32_u24 v250, {1280-512}, v250")
            e(f"v_lshl_add_u32 v250, v{vL16}, 3, v250")
        m = ((1 << (48 // n)) - 1) << (k * 48 // n)
        e(f"s_mov_b32 exec_lo, {m & 0xffffffff}")
        e(f"s_mov_b32 exec_hi, {m >> 32}")
        e(f"buffer_load_dword v251, v250, {srd(sW2)}, s8 offen {opt['wtaux']}"); VM.issue("wt")
        e("s_mov_b64 exec, -1")
    return f
def wtouch():
    if opt["tpre"]:
        e(f"buffer_load_dword v251, v250, {srd(sW2)}, 0 offen {opt['wtaux']}"); VM.issue("wt")
        return
    if opt["wtx"]:
        e(f"s_lshr_b32 s8, s2, 3")
        e(f"s_lshl_b32 s8, s8, 2")
        e(f"s_add_u32 s8, s8, s{sW}")
        e(f"s_mul_i32 s8, s8, {12*1280}")
        e(f"s_lshr_b32 s9, s{sFT}, 2")
        e(f"s_lshl_b32 s9, s9, 9")
        e(f"s_add_u32 s8, s8, s9")
        e(f"v_lshrrev_b32 v250, 6, v{vL16}")
        e(f"v_mul_u32_u24 v250, {1280-512}, v250")
        e(f"v_lshl_add_u32 v250, v{vL16}, 3, v250")
        e(f"s_mov_b32 exec_hi, 0xffff")
        e(f"buffer_load_dword v251, v250, {srd(sW2)}, s8 offen {opt['wtaux']}"); VM.issue("wt")
        e("s_mov_b64 exec, -1")
        return
    if opt["ttab"]:
        tb = str(opt["ttab"]).lstrip("x"); assert len(tb) == 32
        nn = tb.count("1"); assert 48 % nn == 0 and 48 // nn <= 8
        rw = 48 // nn
        mk_ = sum(int(c) << i for i, c in enumerate(tb))
        e(f"s_lshr_b32 s9, s2, 3")
        e(f"s_bfm_b32 s8, s9, 0")
        e(f"s_and_b32 s8, s8, {mk_}")
        e(f"s_bcnt1_i32_b32 s8, s8")
        e(f"s_and_b32 m0, s2, 7") if False else None
        e(f"s_lshl_b32 s8, s8, 3")
        e(f"s_bitcmp1_b32 {mk_}, s9")
        e(f"s_cselect_b32 s8, s8, 0x10000")
        e(f"s_and_b32 s9, s2, 7")
        e(f"s_add_u32 s8, s8, s9")
        e(f"s_lshl2_add_u32 s8, s8, s{sW}")
        e(f"s_mul_i32 s8, s8, {rw*1280}")
        e(f"s_min_u32 s8, s8, 1966080")
        e(f"v_lshrrev_b32 v250, 7, v{vL16}")
        e(f"v_lshlrev_b32 v250, 8, v250")
        e(f"v_lshl_add_u32 v250, v{vL16}, 3, v250")
        if rw < 8:
            m = (1 << (8*rw)) - 1
            e(f"s_mov_b32 exec_lo, {m & 0xffffffff}")
            e(f"s_mov_b32 exec_hi, {m >> 32}")
        e(f"buffer_load_dword v251, v250, {srd(sW2)}, s8 offen {opt['wtaux']}"); VM.issue("wt")
        if rw < 8: e("s_mov_b64 exec, -1")
        return
    if opt["wtc"]:
        e(f"s_lshr_b32 s8, s2, 4")
        e(f"s_lshl_b32 s8, s8, 3")
        e(f"s_and_b32 s9, s2, 7")
        e(f"s_add_u32 s8, s8, s9")
        e(f"s_lshl2_add_u32 s8, s8, s{sW}")
        e(f"s_mul_i32 s8, s8, {3*1280}")
        e(f"v_lshrrev_b32 v250, 7, v{vL16}")
        e(f"v_lshlrev_b32 v250, 8, v250")
        e(f"v_lshl_add_u32 v250, v{vL16}, 3, v250")
        e(f"s_lshr_b32 s9, s2, 2")
        e(f"s_xor_b32 s9, s9, s2")
        e(f"s_bitcmp{opt['wtc'] - 1}_b32 s9, 3")
        e(f"s_cselect_b32 s8, s8, 1966080")
        e(f"s_mov_b64 exec, {(1 << 24) - 1}")
        e(f"buffer_load_dword v251, v250, {srd(sW2)}, s8 offen {opt['wtaux']}"); VM.issue("wt")
        e("s_mov_b64 exec, -1")
        return
    e(f"s_lshl_b32 s8, s2, 2")
    e(f"s_add_u32 s8, s8, s{sW}")
    e(f"s_mul_i32 s8, s8, {15*128}")
    e(f"v_lshlrev_b32 v250, {2 if opt['wth'] else 3}, v{vL16}")
    e(f"s_mov_b64 exec, {(1 << (30 if opt['wth'] else 15)) - 1}")
    e(f"buffer_load_dword v251, v250, {srd(sW2)}, s8 offen {opt['wtaux']}"); VM.issue("wt")
    e("s_mov_b64 exec, -1")
if opt["wt"] >= 0: first.insert(opt["wt"], wtouch)
def stouch():
    e(f"s_lshl_b32 s100, s2, 2")
    e(f"s_add_u32 s100, s100, s{sW}")
    e(f"s_mul_i32 s100, s100, {15*128}")
    for i in range(opt["swn"]):
        e(f"s_load_dword s101, s[{sW2}:{sW2+1}], s100 offset:{i*128}")
if opt["sw"] >= 0: first.insert(opt["sw"], stouch)
if opt["clr"] >= 0: first[opt["clr"]:opt["clr"]] = CLO
NF0 = opt["nf0"]
for f in first[:NF0]: f()
if opt["fst"]:
    e(f"s_waitcnt vmcnt({NF0-1})"); stamp(k=5)
    e(f"s_waitcnt vmcnt({NF0-3})"); stamp(k=5)
rest = first[NF0:]
per = (len(groups) + len(rest) - 1) // len(rest)
head = len(groups) * opt["head"] // 100
for g in groups[:head]: O.extend(g)
groups = groups[head:]
per = (len(groups) + len(rest) - 1) // len(rest)
for f in rest:
    f()
    for g in groups[:per]: O.extend(g)
    groups = groups[per:]
assert not groups
stamp()

def w2_ops():
    ops = []
    order = list(range(1, 12)); order.insert(opt["w0p"], 0)
    for n in order:
        for j in range(5):
            def f(n=n, j=j):
                if j == 0:
                    e(f"s_mul_i32 s{sWO}, s{sSIG+n}, 40")
                    e(f"s_add_u32 s{sWO}, s{sWO}, s{sW2B}")
                va = vL16 if j < 4 else vL16b
                e(f"buffer_load_dwordx4 {ar(n*20+4*j, 4)}, v{va}, {srd(sH)}, s{sWO} offen offset:{(j%4)*1024} {opt['w2aux'].replace('-','')}")
                VM.issue(f"w{n}")
            ops.append(f)
    return ops
WREG = [3, 3, 4, 4, 1, 1, 2, 2, 3, 3, 4, 4]
WHF = [n % 2 for n in range(12)]
WDEP = [None] * 8 + ["t0", "t1", "t2", "t3"]
if OW:
    WREG = [3, 3, 4, 4, 1, 1, 2, 3, 3, 4, 4, 2]
    WHF = [0, 1, 0, 1, 0, 1, 0, 0, 1, 0, 1, 1]
    WDEP = [None] * 7 + ["t0", "t1", "t2", "t3", "or3"]
def wd_ops():
    ops = []
    for n in range(12):
        for i in range(4):
            def f(n=n, i=i):
                if i == 0:
                    if WDEP[n]: assert WDEP[n] in TDONE + ORD and WDEP[n] not in LG.q, n
                    e(f"s_mul_i32 s{sWO}, s{sSIG+n}, {160 if OW else 40}")
                    e(f"s_add_u32 m0, s{sM0}, {WREG[n]*32768 + WHF[n]*4096}")
                    e(f"s_add_u32 s{sWO}, s{sWO}, s{sW2B}")
                if n >= 12 - opt["skd"]: return
                e(f"buffer_load_dwordx4 v{vWD+i}, {srd(sW2)}, s{sWO} offen offset:{i*1024} {opt['waux']} lds")
                VM.issue(f"d{n}")
            ops.append(f)
    return ops
def w5_ops():
    ops = []
    for n in range(12):
        def f(n=n):
            if n >= 12 - opt["sk5"]: return
            e(f"s_lshl3_add_u32 s{sT1}, s{sSIG+n}, s{sW5B}")
            e(f"buffer_load_dwordx4 {ar(n*20+16, 4)}, v{vL16}, {srd(sH)}, s{sT1} offen {opt['w5aux'].replace('-','')}")
            VM.issue(f"w{n}")
        ops.append(f)
    return ops
TDONE = []; TWIN = [3]; ORD = []
def tgroup_ops(n):
    def head():
        assert not any(f.__defaults__[0] == n and len(f.__defaults__) == 2 for f in W2L), n
        VM.wait(f"d{n}")
        win = 3 if WREG[n] >= 3 else 1
        if win != TWIN[0]:
            for j in range(4): e(f"v_add_u32 v{vWT+j}, {(win - TWIN[0]) * 32768}, v{vWT+j}")
            TWIN[0] = win
        if len(LG.q) > 7:
            e("s_waitcnt lgkmcnt(7)"); LG.q = LG.q[-7:]
    ops = []
    for j in range(4):
        def f(j=j):
            if j == 0: head()
            win = TWIN[0]
            for t in range(2):
                e(f"ds_read_b64_tr_b16 {ar(n*20+4*j+2*t, 2)}, v{vWT+j} offset:{(WREG[n]-win)*32768 + WHF[n]*4096 + t*1024}"); LG.issue(f"t{n}")
        ops.append(f)
    TDONE.append(f"t{n}")
    return ops
def tgroup(n):
    for f in tgroup_ops(n): f()
W2L = wd_ops() if D1 else w2_ops()
def take(n):
    r = W2L[:n]; del W2L[:n]; return r

def rd_ops(st, half):
    slot = st % NSL
    sb = (slot % 2) * 32768
    hi = slot // 2
    ops = []
    if opt["nord"]: return ops
    if opt["r16"]:
        def b(rt):
            def f(): e(f"ds_read_b128 {vr(vBF + (half*2+rt)*4, 4)}, v{vB + 4 + 2*hi + half} offset:{sb + rt*8192}"); LG.issue(f"B{half}{rt}")
            return f
        def a(j, t):
            def f():
                e(f"ds_read_b64_tr_b16 {vr(vAF + half*24 + j*4 + 2*t, 2)}, v{vA + 2*hi + j%2} offset:{sb + half*16384 + t*1536 + (j//2)*128}")
                LG.issue(f"A{half}{j}")
            return f
        A = [a(j, t) for j in range(6) for t in range(2)]
        return [b(0)] + A[:2] + [b(1)] + A[2:]
    for kk in range(2):
        ks = 2*half + kk
        def b(ks=ks, kk=kk):
            e(f"ds_read_b128 {vr(vBF + (half*2+kk)*4, 4)}, v{vB + 4*hi + ks} offset:{sb}"); LG.issue(f"B{ks}")
        ops.append(b)
        for q in range(3):
            for t in range(2):
                def a(ks=ks, kk=kk, q=q, t=t):
                    e(f"ds_read_b64_tr_b16 {vr(vAF + half*24 + (kk*3+q)*4 + 2*t, 2)}, v{vA+hi} offset:{sb + ks*8192 + t*1536 + q*128}")
                    LG.issue(f"A{ks}{q}")
                ops.append(a)
    if opt["qm"] in (1, 2):
        qs = (0, 1, 2) if opt["qm"] == 1 or half == 0 else (2, 1, 0)
        ops = [ops[0], ops[7]] + [ops[7*kk + 1 + 2*q + t] for q in qs for kk in range(2) for t in range(2)]
    if opt["qm"] == 3: ops = ops[:8] + [ops[8 + 2*q + t] for q in (2, 1, 0) for t in range(2)]
    return ops
def i16(kk, q): return kk == 1
def mfma1(half, kk, q, zz=None):
    ks = 2*half + kk
    LG.wait(f"A{ks}{q}")
    if opt["nomf1"]: return
    if opt["m16"]:
        for z in (range(2) if zz is None else [zz]):
            c = vr(vACC1+16*q+8*kk+4*z, 4)
            e(f"v_mfma_f32_16x16x32_bf16 {c}, {vr(vAF + half*24 + (kk*3+q)*4, 4)}, {vr(vBF + (half*2+(kk^z if i16(kk, q) else kk))*4, 4)}, {c}")
        return
    a, b = vr(vAF + half*24 + (kk*3+q)*4, 4), vr(vBF + (half*2+kk)*4, 4)
    if opt["swab"]: a, b = b, a
    e(f"v_mfma_f32_32x32x16_bf16 {vr(vACC1+16*q,16)}, {a}, {b}, {vr(vACC1+16*q,16)}")
def mfma16(half, i):
    j, rt = i // 2, i % 2
    if opt["ro"] == 1 and j % 2: rt ^= 1
    LG.wait(f"A{half}{j}"); LG.wait(f"B{half}{rt}")
    if opt["nomf1"]: return
    c = vr(vACC1 + (j//2)*16 + rt*8 + (j%2)*4, 4)
    e(f"v_mfma_f32_16x16x32_bf16 {c}, {vr(vAF + half*24 + j*4, 4)}, {vr(vBF + (half*2+rt)*4, 4)}, {c}")
def half_body(mf_half, rds, fill, cnt=None):
    rds = list(rds); fill = list(fill)
    if (opt["m16"] >= 2 or opt["r16"]) and mf_half is not None:
        for i in range(12):
            if opt["r16"]: mfma16(mf_half, i)
            else: mfma1(mf_half, i // 6, (i // 2) % 3, i % 2)
            left = 12 - i
            if opt["pat"]:
                P = opt["pat1"] if opt["pat1"] and mf_half == 0 else opt["pat"]
                ch = P[i]
                for _ in range(dict(a=2, b=1, c=3, M=1, N=2).get(ch, 0)):
                    if rds: rds.pop(0)()
                if ch in "LMN":
                    nl = sum(c in "LMN" for c in P[i:])
                    for _ in range((len(fill) + nl - 1) // nl): fill.pop(0)()
            elif opt["m16"] == 2 or opt["r16"] == 2:
                for _ in range((len(rds) + left - 1) // left if i else 2):
                    if rds: rds.pop(0)()
                if i % 2 == 1:
                    for _ in range((len(fill) + left // 2) // (left // 2 + 1)):
                        if fill: fill.pop(0)()
            else:
                if i % 3 == 2 and fill:
                    for _ in range((len(fill) + left // 3) // (left // 3 + 1)): fill.pop(0)()
                else:
                    for _ in range(2):
                        if rds: rds.pop(0)()
        assert not rds and not fill, (len(rds), len(fill))
        return
    for i in range(6):
        if mf_half is not None:
            if opt["qm"] == 1: mfma1(mf_half, i % 2, i // 2)
            elif opt["qm"] == 2: mfma1(mf_half, i % 2, (i // 2) if mf_half == 0 else 2 - i // 2)
            elif opt["qm"] == 3: mfma1(mf_half, i // 3, (i % 3) if i < 3 else 5 - i)
            else: mfma1(mf_half, i // 3, i % 3)
        left = 6 - i
        for _ in range((len(rds) + left - 1) // left if i else min(len(rds), 4)):
            if rds: rds.pop(0)()
        if cnt is not None:
            for _ in range(cnt[i]):
                if fill: fill.pop(0)()
            if i == 5:
                while fill: fill.pop(0)()
            continue
        for _ in range((len(fill) + left - 1) // left):
            if fill: fill.pop(0)()
    assert not rds and not fill

def flag_store(off, lanes=0):
    fk = opt["fk"]
    if opt["fpre"]:
        e(f"buffer_store_dword v{vT}, v{249 if lanes else 248}, {srd(sH)}, s{off} offen sc1"); VM.issue("flag")
        return
    if fk in (1, 3, 4):
        for r in range(4): e(f"v_mov_b32 v{vTM+12+r}, s{sTAG}")
        e(f"s_mov_b64 exec, {dict([(1,255),(3,1),(4,15)])[fk]}")
        e(f"buffer_store_dwordx4 {vr(vTM+12,4)}, v{vL16}, {srd(sH)}, s{off} offen sc1"); VM.issue("flag")
        e("s_mov_b64 exec, -1")
        return
    e(f"v_mov_b32 v{vT}, s{sTAG}")
    e(f"s_mov_b64 exec, {(1 << lanes) - 1}" if lanes else "s_mov_b32 exec_hi, 0" if fk == 0 else "s_mov_b64 exec, 1")
    e(f"buffer_store_dword v{vT}, v{vL4}, {srd(sH)}, s{off} offen sc1"); VM.issue("flag")
    e("s_mov_b64 exec, -1")
def r_poll():
    e(f"s_mov_b32 s{sT0}, {HREC if opt['norp'] else RFL}")
    e(f"buffer_load_dword v{vPOLL}, v{vRP}, {srd(sH)}, s{sT0} offen sc1"); VM.issue("rpoll")

def spin_slow(lab, vv, va, so):
    e(f"L_{lab}_s:")
    e(f"s_mov_b32 s{sSPIN}, 20000")
    e(f"L_{lab}:")
    e(f"buffer_load_dword v{vv}, v{va}, {srd(sH)}, s{so} offen sc1")
    e(f"s_sub_u32 s{sSPIN}, s{sSPIN}, 1")
    e("s_waitcnt vmcnt(0)")
    e(f"v_cmp_ne_u32 vcc, s{sTAG}, v{vv}")
    e(f"s_cbranch_scc1 L_{lab}_go")
    e(f"s_cbranch_vccnz L_{lab}")
    e(f"s_branch L_{lab}_go")
def spin_fast(lab, vv, tag):
    VM.wait(tag)
    e(f"v_cmp_ne_u32 vcc, s{sTAG}, v{vv}")
    e(f"s_cbranch_vccnz L_{lab}_s")
    e(f"L_{lab}_go:")
def spin_check(lab, vv, va, tag, so=None, fake=False):
    VM.wait(tag)
    e(f"s_mov_b32 s{sSPIN}, 20000")
    e(f"L_{lab}:")
    e(f"v_cmp_ne_u32 vcc, s{sTAG}, v{vv}")
    e("s_cmp_eq_u64 vcc, 0" if not fake else "s_cmp_eq_u32 s2, s2")
    e(f"s_cbranch_scc1 L_{lab}_go")
    e(f"s_sub_u32 s{sSPIN}, s{sSPIN}, 1")
    e(f"s_cmp_eq_u32 s{sSPIN}, 0")
    e(f"s_cbranch_scc1 L_{lab}_go")
    if so is None: e(f"s_mov_b32 s{sT0}, {RFL}")
    e(f"buffer_load_dword v{vv}, v{va}, {srd(sH)}, s{sT0 if so is None else so} offen sc1")
    e("s_waitcnt vmcnt(0)")
    e(f"s_branch L_{lab}")
    e(f"L_{lab}_go:")
def r_check(): spin_check("rp", vPOLL, vRP, "rpoll", None, opt["norp"])

PEND = []
EMU = [int(c) for c in str(opt["emu"]).lstrip("x")]
def emu_ops(bi):
    q, g2 = bi // 2, bi % 2
    a0 = 216; tt = vS + (bi % 2) * 8; pk = vRF + 8 + bi * 4
    ops = []
    if opt["emv"] and not opt["epk"]:
        for r in range(8): ops.append(f"v_mul_f32 v{tt+r}, s{sL2E}, v{a0+r}")
        for r in range(8): ops.append(f"v_exp_f32 v{tt+r}, v{tt+r}")
        for r in range(8): ops.append(f"v_add_f32 v{tt+r}, 1.0, v{tt+r}")
        for r in range(8): ops.append(f"v_rcp_f32 v{tt+r}, v{tt+r}")
        for r in range(8): ops.append(f"v_mul_f32 v{tt+r}, v{a0+r}, v{tt+r}")
        for r in range(4): ops.append(f"v_cvt_pk_bf16_f32 v{pk+r}, v{tt+2*r}, v{tt+2*r+1}")
    elif opt["emv"]:
        for r in range(0, 8, 2): ops.append(f"v_pk_mul_f32 {vr(tt+r,2)}, {vr(a0+r,2)}, s[{sPK}:{sPK+1}]")
        for r in range(8): ops.append(f"v_exp_f32 v{tt+r}, v{tt+r}")
        for r in range(0, 8, 2): ops.append(f"v_pk_add_f32 {vr(tt+r,2)}, {vr(tt+r,2)}, 1.0 op_sel_hi:[1,0]")
        for r in range(8): ops.append(f"v_rcp_f32 v{tt+r}, v{tt+r}")
        for r in range(0, 8, 2): ops.append(f"v_pk_mul_f32 {vr(tt+r,2)}, {vr(a0+r,2)}, {vr(tt+r,2)}")
        for r in range(4): ops.append(f"v_cvt_pk_bf16_f32 v{pk+r}, v{tt+2*r}, v{tt+2*r+1}")
    fs = [(lambda l=l: e(l)) for l in ops]
    def st_():
        e(f"buffer_store_dwordx4 {vr(pk,4)}, v{vHS}, {srd(sH)}, s{sHS} offen offset:{g2*512 + (q%2)*2048} sc1"); VM.issue("hstA" if opt["ab"] else "hst")
    if not opt['ems']: PEND.append(st_); return fs
    return fs + [st_]
def merge(a, b):
    r = []; a = list(a); b = list(b); na, nb_ = len(a), len(b)
    while a or b:
        if a and (not b or len(a) * nb_ >= len(b) * na): r.append(a.pop(0))
        else: r.append(b.pop(0))
    return r
if EMU:
    for r in range(8): e(f"v_cvt_f32_u32 v{216+r}, v{vL16}"); e(f"v_mul_f32 v{216+r}, 0x3a000000, v{216+r}")
for st in range(10):
    if st == 1 and opt["fpre"]:
        e(f"s_mul_i32 s{sTAG}, s{sE}, 0x9E3779B1")
        e(f"s_add_u32 s{sTAG}, s{sTAG}, 0x7F4A7C15")
        e(f"v_mov_b32 v{vT}, s{sTAG}")
    if st == opt["wu"]:
        e("s_mov_b64 exec, 0")
        for k in range(1, 4):
            e(f"s_cmp_eq_u32 s{sW}, {k}")
            e(f"s_cbranch_scc1 L_w{k}")
        e("L_wr:")
        e("s_mov_b64 exec, -1")
    if st != opt["nw"]: VM.wait(f"st{st}")
    if st == opt["rjs"]: VM.wait("rld")
    if st == opt["rfs"]: VM.wait("rst"); VM.wait("clr")
    if st == opt["afs"] and st: VM.wait("hstA")
    LG.drain()
    e("s_barrier")
    if st == opt["afs"] and st:
        e(f"s_cmp_eq_u32 s{sW}, 0")
        e(f"s_cselect_b32 s{sT1}, s{sFLG}, {HREC}")
        flag_store(sT1); stamp(k=7)
    if st == 9: stamp()
    stamp(k=1)
    if st >= 8: stamp(k=4)
    if st == opt["rfs"] or (RPW and st == 1):
        if not opt["fpre"]:
            e(f"s_mul_i32 s{sTAG}, s{sE}, 0x9E3779B1")
            e(f"s_add_u32 s{sTAG}, s{sTAG}, 0x7F4A7C15")
        if not RPW and opt["fpre"] < 2: flag_store(sRFL, opt["rpk"] // 4)
    if not D1 and ((st == opt["rcs"] and opt["rck"] == 0) or (st == 9 and opt["rck"] == 2)): r_check()
    if NSL == 4:
        if st == 0: fill = ([] if opt["pre3"] else dma_ops(2)) + dma_ops(3)
        elif st < 7: fill = dma_ops(st + 3)
        else: fill = take(opt[f"n{st}"])
    elif st == 0 and opt["pre3"]: fill = list(ST0)
    elif st < 8: fill = dma_ops(st + 2) + (take(opt["d7"]) if st == 7 else [])
    else: fill = take(opt["n8"] if st == 8 else opt["n9"])
    if st == opt["dst"]: fill = fill + take(opt["dn"])
    if opt["tch"] and st + opt["la"] < 10: fill.insert(opt["tpos"], touch)
    if st == opt["rls"]: fill = [r_loads] + fill if opt["rpos"] == 0 else fill + [r_loads]
    if st == opt["rjs"]:
        fill.insert(min(opt["rsp"], len(fill)), r_stores)
        fill = [r_reads] + fill
    if st == opt["rps"] and not D1: fill.insert(opt["rpp"], r_poll)
    if st == opt["rfs"] and opt["fpre"] >= 2: fill.insert(min(opt["fpre"] - 2, len(fill)), lambda: flag_store(sRFL, opt["rpk"] // 4))
    if st == opt["wts"]: fill.insert(min(opt["wtp"], len(fill)), wtouch)
    WX = [int(c) for c in str(opt["wx"]).lstrip("x")]
    for k, c in enumerate(WX):
        if c == st: fill.insert(min(opt["wxp"], len(fill)), wxtouch(k, len(WX)))
    if st == opt['sws']: fill.insert(min(opt['swp'], len(fill)), stouch)
    if st == opt["ot"]:
        def otch():
            if opt["otm"] == 1: e("s_mov_b64 exec, 1")
            e(f"buffer_load_dword v251, v{vOUT}, {srd(sOUT)}, s{sOB} offen"); VM.issue("ot")
            if opt["otm"] == 3: e(f"buffer_load_dword v251, v{vOUT2}, {srd(sOUT)}, s{sOB} offen offset:128"); VM.issue("ot")
            e("s_mov_b64 exec, -1")
        fill.append(otch)
    ex = [CLO[i] for i, c in enumerate(str(opt["clrs"]).lstrip("x")) if int(c) == st]
    for bi, es in enumerate(EMU):
        if es == st: ex += emu_ops(bi)
    if ex: fill = merge(fill, ex)
    h = (len(fill) + 1) // 2
    f0, f1 = fill[:h], fill[h:]
    if st == 8 and opt["rck"] == 1:
        k = 1 if opt["rps"] == 8 else 0
        f0, f1 = fill[:k], [r_check] + fill[k:]
    if opt["fp"] and st:
        c = [int(z) for z in str(opt["fp"]).lstrip("x")]
        assert sum(c) == 8
        if st == opt["rjs"]: c[-12] += 1
        if len(c) == 13:
            k = c.pop(0)
            pre, fill = fill[:k + (st == opt["rjs"])], fill[k + (st == opt["rjs"]):]
            if st == opt["rjs"]: fill.insert(0, pre.pop(0))
            for f in pre: f()
        h = sum(c[:6])
        half_body(1, rd_ops(st, 0), fill[:h], c[:6])
        half_body(0, rd_ops(st, 1), fill[h:], c[6:])
        continue
    half_body(1 if st else None, rd_ops(st, 0), f0)
    half_body(0, rd_ops(st, 1), f1)
stamp()
def silu_block(q, g2):
    a0 = vACC1 + 16*q + 8*g2
    bi = 2*q + g2
    tt = vS + (bi % 2) * 8
    pk = vRF + bi * 4
    ops = []
    if opt["pk"]:
        for r in range(0, 8, 2): ops.append(f"v_pk_mul_f32 {vr(tt+r,2)}, {vr(a0+r,2)}, s[{sPK}:{sPK+1}]")
        for r in range(8): ops.append(f"v_exp_f32 v{tt+r}, v{tt+r}")
        for r in range(0, 8, 2): ops.append(f"v_pk_add_f32 {vr(tt+r,2)}, {vr(tt+r,2)}, 1.0 op_sel_hi:[1,0]")
        for r in range(8): ops.append(f"v_rcp_f32 v{tt+r}, v{tt+r}")
        for r in range(0, 8, 2): ops.append(f"v_pk_mul_f32 {vr(tt+r,2)}, {vr(a0+r,2)}, {vr(tt+r,2)}")
    else:
        for r in range(8): ops.append(f"v_mul_f32 v{tt+r}, s{sL2E}, v{a0+r}")
        for r in range(8): ops.append(f"v_exp_f32 v{tt+r}, v{tt+r}")
        for r in range(8): ops.append(f"v_add_f32 v{tt+r}, 1.0, v{tt+r}")
        for r in range(8): ops.append(f"v_rcp_f32 v{tt+r}, v{tt+r}")
        for r in range(8): ops.append(f"v_mul_f32 v{tt+r}, v{a0+r}, v{tt+r}")
    for r in range(4): ops.append(f"v_cvt_pk_bf16_f32 v{pk+r}, v{tt+2*r}, v{tt+2*r+1}")
    nbs = str(opt["nb"]).lstrip("x")
    fill = take(int(nbs[bi] if len(nbs) > 1 else nbs))
    if opt["tsil"] and bi >= 6 - opt["tsil"]: fill = fill + tgroup_ops(len(TDONE))
    step = len(ops) // (len(fill) + 1) if fill else 0
    for i, l in enumerate(ops):
        if not opt["novalu"]: e(l)
        if fill and step and (i + 1) % step == 0: fill.pop(0)()
    for f in fill: f()
    so = sHS if q < 2 else sHS2
    def st_():
        if opt["nost"]: return
        if OW:
            e(f"buffer_store_dwordx4 {vr(pk,4)}, v{vHS}, {srd(sH)}, s{(sHS, 10, sHS2)[q]} offen offset:{g2*512} sc1"); VM.issue("hst")
            if q < 2: e(f"ds_write_b128 v{vOW+q}, {vr(pk,4)} offset:{g2*512}"); LG.issue("ow")
            return
        if opt["own"]:
            e(f"buffer_store_dwordx4 {vr(pk,4)}, v{vHS}, {srd(sH)}, s{(sHS, sHS1, sHS2)[q]} offen offset:{g2*512} sc1"); VM.issue("hst")
            if q < 2: e(f"ds_write_b128 v{vOW+q}, {vr(pk,4)} offset:{q*8192 + g2*512}"); LG.issue("ow")
            return
        if opt["r16"]:
            e(f"buffer_store_dwordx4 {vr(pk,4)}, v{vHS if g2 else vL16}, {srd(sH)}, s{so} offen offset:{(q%2)*2048} {opt['hsaux'].replace('-','')}"); VM.issue("hst")
            return
        e(f"buffer_store_dwordx4 {vr(pk,4)}, v{vHS}, {srd(sH)}, s{so} offen offset:{g2*512 + (q%2)*2048} {opt['hsaux'].replace('-','')}"); VM.issue("hstA" if opt["ab"] and q < 2 else "hst")
        if opt["hs2"]:
            e(f"buffer_store_dwordx4 {vr(pk,4)}, v{vHS}, {srd(sH)}, s{so} offen offset:{g2*512 + (q%2)*2048} {opt['hs2'].replace('-','')}"); VM.issue("hst")
    PEND.append(st_)
    if bi >= opt["sl"]:
        while PEND: PEND.pop(0)()
if opt["st0"]:
    e(f"s_cmp_lt_u32 s{sW}, {opt['st0']}")
    e(f"s_cselect_b32 s{sHS}, s{sHS}, {HREC}")
    e(f"s_cselect_b32 s{sHS2}, s{sHS2}, {HREC}")
if opt["r16"]:
    for i in range(12):
        mfma16(1, i)
        if opt["rfs"] == 10 and i == 4: VM.wait("rst"); flag_store(sRFL, opt["rpk"] // 4)
else:
    for q in range(3):
        for kk in range(2): mfma1(1, kk, q)
    e("s_nop 7")
stamp(k=4)
if opt["sts"] == 4: VM.drain(); stamp(k=4)
def cnt_add(tag, off):
    VM.wait(tag)
    e("s_mov_b64 exec, 1")
    e(f"ds_add_rtn_u32 v{vT+1}, v{vCN}, v{vONE} offset:{off}")
    e("s_mov_b64 exec, -1")
def cnt_flag(add):
    e("s_waitcnt lgkmcnt(0)"); LG.q = []
    e(f"v_readfirstlane_b32 s{sT0}, v{vT+1}")
    e(f"s_add_u32 s{sT1}, s{sFLG}, {add}")
    e(f"s_cmp_eq_u32 s{sT0}, 3")
    e(f"s_cselect_b32 s{sT1}, s{sT1}, {HREC}")
    flag_store(sT1)
def silu_mix():
    P = opt["sil"] == 1
    T = []; N = []
    def ln(t): return lambda: e(t)
    def mulA(b):
        a0 = vACC1 + 8*b; tt = vS + (b % 2) * 8
        if P: return [(f"m{b}{r}", [], ln(f"v_pk_mul_f32 {vr(tt+r,2)}, {vr(a0+r,2)}, s[{sPK}:{sPK+1}]")) for r in range(0, 8, 2)]
        return [(f"m{b}{r}", [], ln(f"v_mul_f32 v{tt+r}, s{sL2E}, v{a0+r}")) for r in range(8)]
    def add(b):
        tt = vS + (b % 2) * 8
        if P: return [(f"a{b}{r}", [f"e{b}{r+1}"], ln(f"v_pk_add_f32 {vr(tt+r,2)}, {vr(tt+r,2)}, 1.0 op_sel_hi:[1,0]")) for r in range(0, 8, 2)]
        return [(f"a{b}{r}", [f"e{b}{r}"], ln(f"v_add_f32 v{tt+r}, 1.0, v{tt+r}")) for r in range(8)]
    def fin(b):
        a0 = vACC1 + 8*b; tt = vS + (b % 2) * 8; pk = vRF + b * 4
        q, g2 = b // 2, b % 2
        m = []
        for r in range(0, 8, 2):
            if P: m.append([(f"f{b}{r}", [f"r{b}{r+1}"], ln(f"v_pk_mul_f32 {vr(tt+r,2)}, {vr(a0+r,2)}, {vr(tt+r,2)}"))])
            else: m.append([(f"f{b}{r+1-z}", [f"r{b}{r+z}"], ln(f"v_mul_f32 v{tt+r+z}, v{a0+r+z}, v{tt+r+z}")) for z in range(2)])
        c = [(f"c{b}{r}", [f"f{b}{2*r}"], ln(f"v_cvt_pk_bf16_f32 v{pk+r}, v{tt+2*r}, v{tt+2*r+1}")) for r in range(4)]
        def st_():
            e(f"buffer_store_dwordx4 {vr(pk,4)}, v{vHS}, {srd(sH)}, s{sHS if q < 2 else sHS2} offen offset:{g2*512 + (q%2)*2048} {opt['hsaux'].replace('-','')}"); VM.issue("hst")
        return m[0] + m[1] + [c[0]] + m[2] + [c[1]] + m[3] + [c[2], c[3], (f"s{b}", [], st_)]
    N += mulA(0)
    for b in range(6):
        tt = vS + (b % 2) * 8
        T += [(f"e{b}{r}", [f"m{b}{r & ~1 if P else r}"], ln(f"v_exp_f32 v{tt+r}, v{tt+r}")) for r in range(8)]
        T += [(f"r{b}{r}", [f"a{b}{r & ~1 if P else r}"], ln(f"v_rcp_f32 v{tt+r}, v{tt+r}")) for r in range(8)]
        N += add(b)
        if b < 5: N += mulA(b + 1)
        N += fin(b)
    done = {}
    I0 = len(O)
    def emit(x): x[2](); done[x[0]] = len(done)
    K = [int(c) for c in str(opt["silk"]).lstrip("x")]
    for i, t in enumerate(T):
        while not all(d in done for d in t[1]): emit(N.pop(0))
        emit(t)
        k = K[i % len(K)]
        while N and all(d in done and len(done) - done[d] >= opt["sild"] for d in N[0][1]) and (k > 0 or N[0][0][0] == "s"):
            if N[0][0][0] != "s": k -= 1
            emit(N.pop(0))
    for x in N: emit(x)
    O[I0-8:] = fix(O[I0-8:])
if opt["sil"]: silu_mix()
for q in range(3 if not opt["sil"] else 0):
    for g2 in range(2):
        bi = 2*q + g2
        if opt["ab"] and not opt["afs"] and bi == 4 + opt["afp"]: cnt_add("hstA", 0); stamp(k=7)
        if opt["rfs"] == 11 + bi: VM.wait("rst"); flag_store(sRFL, opt["rpk"] // 4)
        if bi >= len(EMU): silu_block(q, g2)
        if opt["ab"] and not opt["afs"] and bi == 4 + opt["afp"]: cnt_flag(0); stamp(k=7)
stamp(); stamp(k=4); stamp(k=8)
if not opt["spec"]:
    NT = (48 - len(W2L)) // 4
    PL = take(opt["post"])
    if opt["tpm"]:
        TL = []
        while len(TDONE) < NT: TL += tgroup_ops(len(TDONE))
        PL = merge(PL, TL) if opt["tpm"] == 1 else TL + PL
    for i, f in enumerate(PL):
        if D1 and i == opt["rpq"] and opt["rpl"] < 0: r_poll()
        if i == opt["pae"]:
            e(f"buffer_load_dword v{vPOLL}, v{vPA}, {srd(sH)}, s{sPOL} offen sc1"); VM.issue("poll")
        f()
    if opt["wb"]:
        VM.wait("hst")
        e("buffer_wbl2 sc1"); VM.issue("hst")
    if D1:
        while len(TDONE) < NT: tgroup(len(TDONE))
    stamp(k=8)
    if not opt["nhw"]: VM.wait("hst")
    stamp(k=8)
    stamp(k=4)
    if opt["sts"] == 4: VM.drain(); stamp(k=4)
    if opt["fb"]:
        if not opt["fpre"]:
            e(f"s_cmp_eq_u32 s{sW}, 0")
            e(f"s_cselect_b32 s{sFLG}, s{sFLG}, {HREC}")
        if opt["own"]: LG.drain()
        if OW: LG.drain()
        e("s_barrier")
    else:
        e("s_mov_b64 exec, 1")
        e(f"ds_add_rtn_u32 v{vT+1}, v{vCN}, v{vONE} offset:{4 if opt['ab'] else 0}")
        e("s_mov_b64 exec, -1")
        if opt["ab"]: e(f"s_add_u32 s{sFLG}, s{sFLG}, {FLB}")
        for f in take(opt["mid"]): f()
        e("s_waitcnt lgkmcnt(0)")
        e(f"v_readfirstlane_b32 s{sT0}, v{vT+1}")
        e(f"s_cmp_eq_u32 s{sT0}, {3 if opt['nopoll'] < 2 else 9}")
        e(f"s_cselect_b32 s{sFLG}, s{sFLG}, {HREC}")
    if opt["nopoll"] == 3: e(f"s_mov_b32 s{sPOL}, {HREC}")
    flag_store(sFLG)
    if opt["fb"] == 2: e("s_barrier")
    stamp(); stamp(k=3)
else:
    for f in take(opt["fw"]): f()
    VM.wait("hst")
    e(f"s_lshl_b32 s{sT0}, s{sW}, 15")
    e(f"s_add_u32 s{sFLG}, s{sFLG}, s{sT0}")
    flag_store(sFLG)
    stamp()
N0 = 1 if OW else 0
HL = [(p, n) for p in range(4) for n in range(N0, 12)]
def hreg(p, n): return vH + (p*(12-N0) + n - N0)*4
def park(p, j): return [vACC2, 196, 216, 240][p] + 4*j if (p, j) != (3, 4) else 236
def ofr(p): return vr(152+4*p, 4) if opt['owv'] else ar(240+4*p, 4)
def own_reads():
    for p in range(4):
        e(f"ds_read_b128 {ofr(p)}, v{vRW} offset:{32768 + 4096 + p*1024}"); LG.issue(f"or{p}"); ORD.append(f"or{p}")
def own_ops(js):
    def mk(p, j):
        def f():
            LG.wait(f"or{p}"); LG.wait("t0")
            if j == 4: VM.wait("w0")
            if opt["nom"]: return
            mf2(vr(park(p, j), 4), 0, j, ofr(p), '0')
        return f
    return [mk(p, j) for p in range(4) for j in js]
def hload():
    if HL:
        p, n = HL.pop(0)
        if opt["noh"] and (p*12+n) % opt["noh"]: return
        e(f"buffer_load_dwordx4 {vr(hreg(p, n), 4)}, v{vHB+p}, {srd(sH)}, s{sSIG+n} offen {opt['haux'].replace('-','')}"); VM.issue(f"h{p}_{n}")
def mark(v):
    if not opt["stamps"] or opt["sts"]: return
    i = NST[0]; NST[0] += 1
    e(f"s_add_u32 s{72+2*i}, s74, {v}"); e(f"s_addc_u32 s{73+2*i}, s75, 0")
ACI = []; OOL = []
def allc_load(late=False):
    if opt["acb"] == 2 or (opt["acp"] >= 0) != late: return
    if opt["acb"] == 3:
        e("s_cmp_eq_u32 s2, 0")
        e("s_cbranch_scc1 L_aclo")
        e("L_acl:")
        OOL.extend(["L_aclo:", f"s_mov_b32 s{sT0}, {FL}", f"buffer_load_dword v{vAV}, v{vAC}, {srd(sH)}, s{sT0} offen sc1", "s_branch L_acl"])
        return
    if opt["acb"]:
        e("s_cmp_lg_u32 s2, 0")
        e("s_cbranch_scc1 L_acl")
        e(f"s_mov_b32 s{sT0}, {FL}")
        e(f"buffer_load_dword v{vAV}, v{vAC}, {srd(sH)}, s{sT0} offen sc1")
        e("L_acl:")
        VM.q.insert(0, "allc") if False else None
        ACI.append(len(VM.q))
        return
    e("s_cmp_eq_u32 s2, 0")
    e(f"s_cselect_b32 s{sT0}, {FL if D1 else RFL}, s{sH+2}")
    e(f"buffer_load_dword v{vAV}, v{vAC}, {srd(sH)}, s{sT0} offen sc1"); VM.issue("allc")
def p0_block(ML, pre):
    ML = list(ML)
    TL = []
    while D1 and len(TDONE) < 12 - opt["tin"]: TL += tgroup_ops(len(TDONE))
    for f in (merge(ML[:pre], TL) if opt["tmix"] else ML[:pre] + TL): f()
    if OW:
        for f in own_ops([4]): f()
    del ML[:pre]
    if D1 and not opt["tin"]: LG.drain()
    stamp()
    for n in range(N0, 12):
        assert (0, n) not in HL and not any(getattr(f, "__defaults__", None) and f.__defaults__[0] == n for f in ML), n
        late = max((f"h0_{n}", f"w{n}"), key=lambda t: len(VM.q) - 1 - VM.q[::-1].index(t) if t in VM.q else -1)
        VM.wait(late)
        TL = []
        if D1:
            assert f"t{n}" in TDONE
            LG.wait(f"t{n}")
            if len(TDONE) < 12: TL = tgroup_ops(len(TDONE))
        if n == N0 or n == 6: stamp(k=2)
        cnt = (len(ML) + 11 - n) // (12 - n)
        pos = {1: [opt["hj"]], 2: [1, 3], 3: [0, 2, 4], 4: [0, 1, 2, 3], 5: [0, 1, 2, 3, 4], 0: []}[cnt]
        for j in range(5):
            c = "0" if n == 0 else vr(vACC2+4*j, 4)
            mf2(vr(vACC2+4*j,4), n, j, vr(hreg(0, n),4), c)
            if j in pos: ML.pop(0)()
            elif TL: TL.pop(0)()
        for f in TL: f()
    assert not ML and not W2L
TP = []
def tstep(n):
    if not opt["tfm"]: return
    if not TP and len(TDONE) <= n - opt["tfm"] and len(TDONE) < 12 - opt["tlate"]: TP.extend(tgroup_ops(len(TDONE)))
    if TP: TP.pop(0)()
def late_d1():
    W5 = w5_ops()
    cnt = 0
    vP2 = vAV if opt["pqd"] or opt["rcl"] else vPOLL
    def poll():
        stamp(k=3)
        e(f"buffer_load_dword v{vP2}, v{vPA}, {srd(sH)}, s{sPOL} offen sc1"); VM.issue("poll")
    OM = []
    if OW: own_reads(); OM = own_ops(range(4))
    while W2L:
        n = W2L[0].__defaults__[0]
        if W2L[0].__defaults__[1] == 0 and WDEP[n]:
            while WDEP[n] not in TDONE + ORD: tgroup(len(TDONE))
            LG.wait(WDEP[n])
        if len(W2L) == opt["pqd"]: poll()
        if cnt == opt["rpl"]: r_poll()
        take(1)[0](); cnt += 1
        if OM and cnt > opt["owp"]: OM.pop(0)()
        if opt["tfm"]: tstep(n)
        elif cnt % opt["tl"] == 0 and len(TDONE) < n - 2: tgroup(len(TDONE))
    if opt["owp"] < 50:
        for f in OM: f()
        OM = []
    if not opt["rcl"]: r_check()
    else: assert opt["w5d"] == 12
    WD = W5[12-opt["w5d"]:]; del W5[12-opt["w5d"]:]
    def om(i):
        if 50 <= opt["owp"] < 90 and i >= opt["owp"] - 50:
            for _ in range(2):
                if OM: OM.pop(0)()
    for i, f in enumerate(W5[:opt["w5p"]]): f(); tstep(12 + i // 4); om(i)
    if not opt["pqd"]: poll()
    for i, f in enumerate(W5[opt["w5p"]:]): f(); tstep(12 + (i + opt["w5p"]) // 4); om(i + opt["w5p"])
    for f in TP: f()
    for f in OM: f()
    stamp(k=3)
    while len(TDONE) < 12 - opt['tlate']: tgroup(len(TDONE))
    if opt["hid"]:
        e("s_branch L_hid")
        spin_slow("hp", vP2, vPA, sPOL)
        if opt["hid"] & 2:
            e("L_ac_c:")
            e(f"s_mov_b32 s{sT1}, {FL}")
            e(f"v_cmp_ne_u32 vcc, s{sTAG}, v{vAV}")
            e("s_cmp_eq_u64 vcc, 0")
            e(f"s_cbranch_scc1 L_ac_go")
            spin_slow("ac", vAV, vAC, sT1)
        if opt["al"]: e(".p2align 12")
        e("L_hid:")
    VM.wait("poll")
    stamp(k=3)
    stamp()
    if opt["hid"]: spin_fast("hp", vP2, "poll")
    else: spin_check("hp", vP2, vPA, "poll", sPOL, opt["nopoll"])
    stamp(); stamp(k=2); stamp(k=3)
    mark(1000)
    allc_load()
    if opt["c5"]:
        WDL.extend(WD); return
    ML = []; pre = 0
    for i in range(opt["hpre"] + 12 - N0):
        ML.append(hload)
        if WD and WD[0].__defaults__[0] == i: ML.append(WD.pop(0))
        if i == opt["hpre"] - 1: pre = len(ML)
    p0_block(ML, pre)
WDL = []
def late_path():
    if D1: return late_d1()
    if opt['skipw']: del W2L[-opt['skipw']:]
    if opt["sts"] == 6:
        stamp(k=6)
        i = 0
        while len(W2L) > opt["pollq"]:
            take(1)[0](); i += 1
            if i % 4 == 0 and i >= opt["dw"]:
                e(f"s_waitcnt vmcnt({opt['dw']})"); stamp(k=6)
    for f in take(max(0, len(W2L) - opt["pollq"])): f()
    stamp(k=3)
    if opt["sts"] == 3: VM.drain(); stamp(k=3)
    if opt["sts"] == 4: stamp(k=4); VM.drain(); stamp(k=4)
    if opt["sp"]:
        e(f"s_load_dword s6, s[12:13], s{sPOL} {opt['spg']}")
        e(f"s_add_u32 s{sT0}, s{sPOL}, 128")
        e(f"s_load_dword s7, s[12:13], s{sT0} {opt['spg']}")
        for f in take(len(W2L)): f()
        stamp(k=3)
        e("s_waitcnt lgkmcnt(0)")
        stamp(k=3)
        stamp()
        e(f"s_cmp_eq_u32 s6, s{sTAG}")
        e(f"s_cselect_b32 s6, s7, s6")
        e(f"s_cmp_eq_u32 s6, s{sTAG}")
        e("s_cbranch_scc1 L_hp_go")
        e(f"v_mov_b32 v{vPOLL}, s6")
        spin_check("hp", vPOLL, vPA, "poll", sPOL, opt["nopoll"])
    else:
        e(f"buffer_load_dword v{vPOLL}, v{vPA}, {srd(sH)}, s{sPOL} offen sc1"); VM.issue("poll")
        for f in take(len(W2L)): f()
        stamp(k=3)
        VM.wait("poll")
        stamp(k=3)
        stamp()
        spin_check("hp", vPOLL, vPA, "poll", sPOL, opt["nopoll"])
    stamp(); stamp(k=2); stamp(k=3)
    mark(1000)
    allc_load()
    p0_block([hload] * (opt["hpre"] + 12), opt["hpre"])
LATE = []
if opt["eq"]:
    import re
    for f in take(len(W2L) - opt["eq"]): f()
    e(f"buffer_load_dword v{vPOLL}, v{vPA}, {srd(sH)}, s{sPOL} offen sc1"); VM.issue("poll")
    for f in take(opt["ec"]): f()
    VM.wait("poll")
    e(f"v_cmp_ne_u32 vcc, s{sTAG}, v{vPOLL}")
    e("s_cmp_eq_u64 vcc, 0" if not opt["nopoll"] else "s_cmp_eq_u32 s2, s2")
    e("s_cbranch_scc0 L_late")
    sv = (list(VM.q), list(W2L), list(HL), NST[0])
    LATE = ["L_late:"] + capture(late_path) + ["s_branch L_p1"]
    endq, endn = list(VM.q), NST[0]
    VM.q, W2L[:], HL[:], NST[0] = sv
    stamp(); stamp(); stamp(k=2); mark(0)
    allc_load()
    m = re.match(r"h(\d+)w(\d+)", opt["eil"])
    ML = []; nh = 12; ws = take(len(W2L))
    while nh or ws:
        k = min(nh, int(m.group(1))); ML += [hload] * k; nh -= k
        k = int(m.group(2)); ML += ws[:k]; del ws[:k]
    ML += [hload] * opt["hpre"]
    p0_block(ML, opt["epre"])
    assert NST[0] == endn, (NST[0], endn)
    k = min(len(VM.q), len(endq))
    assert VM.q[-k:] == endq[-k:] and all(t.startswith("h1") for t in VM.q + endq), (VM.q, endq)
    if len(endq) > len(VM.q): VM.q = endq
    e("L_p1:")
elif opt["spec"]:
    allc_load()
    for f in take(len(W2L) - opt["wl"]): f()
    stamp(); stamp(); stamp(k=2); mark(1000)
    ws = take(len(W2L))
    p0_block([hload] * opt["hpre"] + merge(ws, [hload] * 12) if ws else [hload] * (opt["hpre"] + 12), opt["hpre"])
elif not opt["ab"] and not opt["dfw"]:
    late_path()
def allc_check():
    if opt["acb"] == 2: return
    if opt["hid"] & 2:
        assert "allc" not in VM.q
        e("s_cmp_eq_u32 s2, 0")
        e("s_cbranch_scc1 L_ac_c")
        e("L_ac_go:")
        return
    if opt["acb"] == 3:
        e("s_cmp_eq_u32 s2, 0")
        e("s_cbranch_scc1 L_aco")
        e("L_acb:")
        def body():
            e(f"s_mov_b32 s{sT1}, {FL}")
            spin_check("ac", vAV, vAC, "allc", sT1)
        OOL.extend(["L_aco:"] + capture(body) + ["s_branch L_acb"])
        return
    e("s_cmp_lg_u32 s2, 0")
    e("s_cbranch_scc1 L_ac_go")
    assert "allc" not in VM.q
    if D1: e(f"s_mov_b32 s{sT1}, {FL}")
    spin_check("ac", vAV, vAC, "allc", sT1 if D1 else None)
def phase2_new():
    B1, B2, MA = opt["b1"], opt["b2"], opt["madd"]
    for p in range(1, 4):
        ac = vACC2 + (p % 2) * 20
        pa = vACC2 + ((p-1) % 2) * 20
        slots = {(n, j): [] for n in range(12) for j in range(5)}
        if opt["wb64"]:
            for k in range(10):
                def w(k=k):
                    e(f"ds_write_b64 v{vRW if p < 3 else vRW2}, {vr(pa+2*k,2)} offset:{((p-1)%2)*32768 + (k//2)*1024 + (k%2)*8}")
                    LG.issue("red")
                i = 5*N0 + opt["wg0"] + k * opt["wgs"]
                assert i < 5 * min(B1, B2)
                slots[(i // 5, i % 5)].append(w)
        elif p > 0:
            PW = [(1, 0), (1, 2), (1, 4), (2, 1), (2, 3)]
            if opt["wq"]:
                q = str(opt["wq"]).lstrip("x")
                i0, di = int(q[2*p-2], 36), int(q[2*p-1], 36)
                PW = [((i0 + k*di) // 5, (i0 + k*di) % 5) for k in range(5)]
            for jj, pos in enumerate(PW):
                def w(jj=jj):
                    if D1: e(f"ds_write_b128 v{vRW if p < 3 else vRW2}, {vr(pa+4*jj,4)} offset:{((p-1)%2)*32768 + jj*1024}")
                    else: e(f"ds_write_b128 v{vRW}, {vr(pa+4*jj,4)} offset:{(p-1)*5120 + jj*1024}")
                    LG.issue("red")
                slots[(pos[0] + N0, pos[1])].append(w)
                assert pos[0] + N0 < (12, B1, B2)[p-1]
        def rd(pp, j, dst):
            def f():
                e(f"ds_read_b128 {vr(dst, 4)}, v{vRR+pp} offset:{j*1024}"); LG.issue(f"rr{pp}{j}")
            return f
        if p == 2:
            k = 0
            for j in range(5):
                for pp in range(2):
                    slots[(B1 + k // 5, k % 5)].append(rd(pp, j, vH + pp*20 + 4*j)); k += opt["rds"]
            assert B1 + 3 <= 8 or opt["wq"]
            for i in range(20):
                def a(i=i):
                    LG.wait(f"rr1{i//4}")
                    if OW and opt["ada"] == 7:
                        e(f"v_add_f32 v{pa+i}, v{vH+i}, v{vH+20+i}")
                        if i: e(f"v_add_f32 v{pa+i-1}, v{pa+i-1}, v{park(3, (i-1)//4) + (i-1)%4}")
                        if i == 19: e(f"v_add_f32 v{pa+i}, v{pa+i}, v{park(3, 4) + 3}")
                        return
                    if OW:
                        jt, r = i // 4, (i % 2) * 2
                        d = vr(pa + 4*jt + r, 2)
                        if i % 4 < 2: e(f"v_pk_add_f32 {d}, {vr(vH + 4*jt + r, 2)}, {vr(vH + 20 + 4*jt + r, 2)}")
                        else: e(f"v_pk_add_f32 {d}, {d}, {vr(park(3, jt) + r, 2)}")
                        return
                    e(f"v_add_f32 v{pa+i}, v{vH+i}, v{vH+20+i}")
                i2 = 5*opt["ad0"] + i * (60 - 5*opt["ad0"]) // 20
                assert i2 > 5*B1 + (2*(i//4) + 1)*opt["rds"]
                slots[(i2 // 5, i2 % 5)].append(a)
        if p == 3:
            for j in range(5): slots[(B2, j)].append(rd(2, j, vH + 4*j))
            if opt["smd"]:
                MA = -1
                for j in range(5):
                    for r in range(4):
                        def a(j=j, r=r):
                            LG.wait(f"rr2{j}")
                            e(f"v_add_f32 v{ac+4*j+r}, v{ac+4*j+r}, v{vH+4*j+r}")
                        i = (opt["smd"] + j) * 5 + j + 2 + r // 2 if opt["smd"] + 5 < 12 else opt["smd"] * 5 + 3 * j + (2*j) % 5 * 0 + 99
                        slots[(i // 5, i % 5)].append(a)
        K4 = opt["k4"] if p == 3 else 0
        if K4: MA = -1; I0 = len(O)
        for n in range(N0, 12 - (opt["k2"] if K4 else 0)):
            if (p == 2 and n == B1) or (p == 3 and n == B2):
                if p == 3: allc_check(); stamp(k=2)
                LG.drain(); e("s_barrier")
                if p == 3: stamp(k=2)
            VM.wait(f"h{p}_{n}")
            if p * 12 + n == opt["acp"]: allc_load(True)
            if p * 12 + n == opt["es"]:
                e(f"s_lshl_b32 s6, s{sMT}, 2")
                e(f"s_add_u32 s6, s6, s{sOWN}")
                e(f"s_mul_i32 s6, s6, {16*1280}")
                e(f"s_mul_i32 s7, s{sFT}, 160")
                e(f"s_add_u32 s6, s6, s7")
                e(f"s_cmp_lt_u32 s{sW}, {opt['ost']}")
                e(f"s_cselect_b32 s6, s6, 2621440")
                ax = opt['esaux'].replace('-', '')
                for b in range(2):
                    e(f"buffer_store_dwordx4 {vr(vH+40+4*b,4)}, v{vOUT}, {srd(sOUT)}, s6 offen offset:{64*b} {ax}"); VM.issue("es")
                e(f"buffer_store_dwordx2 {vr(vH+40,2)}, v{vOUT2}, {srd(sOUT)}, s6 offen offset:128 {ax}"); VM.issue("es")
            if n == N0 or (n == 6 and p < 3): stamp(k=2)
            def madd(j):
                LG.wait(f"rr2{j}")
                for r in range(4): e(f"v_add_f32 v{ac+4*j+r}, v{ac+4*j+r}, v{vH+4*j+r}")
            mid = p == 3 and n == MA
            if mid: e("s_nop 3"); madd(0)
            for j in range(5):
                c = "0" if n == 0 and p < 3 else vr(ac+4*j, 4)
                if OW and n == 1 and p < 3: c = vr(park(p, j), 4)
                if mid:
                    if j < 4: madd(j+1)
                    else: e("s_nop 0")
                if j < 4 or n < 12 - K4: mf2(vr(ac+4*j,4), n, j, vr(hreg(p, n),4), c)
                if j == opt["hj"]: hload()
                for f in slots[(n, j)]: f()
                if K4 and opt["a4"] and n == opt["a4"] and j < 4:
                    assert n > 12 - K4 and n > B2
                    LG.wait("rr24"); e(f"v_add_f32 v{ac+16+j}, v{ac+16+j}, v{vH+16+j}")
    if opt["k4"]:
        tile_tail()
        O[I0:] = fix(O[I0:])
    else: out_tail()
def tile_tail():
    K2, K4 = opt["k2"], opt["k4"]
    assert opt["bp"] and opt["t4"] and not HL
    ac = vACC2 + 20; pk = vH + 64
    ML = [(n, j) for g in ((0, 1), (2, 3)) for n in range(12 - K2, 12) for j in g] + [(n, 4) for n in range(12 - K4, 12)]
    def add(j):
        def mk(r):
            def f(): LG.wait(f"rr2{j}"); e(f"v_add_f32 v{ac+4*j+r}, v{ac+4*j+r}, v{vH+4*j+r}")
            return f
        return [mk(r) for r in range(4)]
    def ln(t): return lambda: e(t)
    def cvt(j): return [ln(f"v_cvt_pk_bf16_f32 v{pk+2*j+r}, v{ac+4*j+2*r}, v{ac+4*j+2*r+1}") for r in range(2)]
    def sw(b): return [ln(f"v_permlane32_swap_b32 v{pk+4*b+r}, v{pk+4*b+2+r}") for r in range(2)]
    def bp(b):
        def mk(r):
            def f(): e(f"ds_bpermute_b32 v{pk+16+4*b+r}, v{vL16b}, v{pk+4*b+r}"); LG.issue(f"bp{b}")
            return f
        return [mk(r) for r in (0, 2, 1, 3)]
    def st(b):
        def f():
            LG.wait(f"bp{b}")
            e(f"buffer_store_dwordx4 {vr(pk+16+4*b,4)}, v{vOUT}, {srd(sOUT)}, s{sOB} offen offset:{64*b} {opt['outaux']}")
        return [f]
    fd = opt["fd"]
    Qo = [(0, f) for f in ([] if opt["a4"] else add(4))] + [(fd - 1, f) for f in add(2) + add(3)]
    n23 = len(Qo)
    Qo += [(2*K2 + fd - 1, f) for f in add(0) + add(1) + cvt(0) + cvt(1) + sw(0) + bp(0)]
    Qo += [(4*K2 + fd - 1, f) for f in cvt(2) + cvt(3) + sw(1) + bp(1) + st(0)]
    done = 0
    for i, (n, j) in enumerate(ML):
        if i == 2*K2:
            while done < n23: Qo.pop(0)[1](); done += 1
        VM.wait(f"h3_{n}")
        mf2(vr(ac+4*j,4), n, j, vr(hreg(3, n),4), vr(ac+4*j,4))
        for _ in range(opt["fr"]):
            if Qo and Qo[0][0] <= i: Qo.pop(0)[1](); done += 1
    stamp(); stamp(k=2)
    for _, f in Qo: f()
    for f in cvt(4): f()
    for r in range(4):
        e(f"buffer_store_short{'_d16_hi' if r % 2 else ''} v{pk+8+r//2}, v{vOUT2}, {srd(sOUT)}, s{sOB2} offen offset:{128 + r*1280} {opt['outaux']}")
    st(1)[0]()
def out_tail():
    stamp(); stamp(k=2)
    if opt["enc"]: stamp(True)
    ac = vACC2 + 20
    pk = vH + 64
    def cvt(j):
        for r in range(2): e(f"v_cvt_pk_bf16_f32 v{pk+2*j+r}, v{ac+4*j+2*r}, v{ac+4*j+2*r+1}")
    def swp(b):
        e(f"v_permlane32_swap_b32 v{pk+4*b}, v{pk+4*b+2}")
        e(f"v_permlane32_swap_b32 v{pk+4*b+1}, v{pk+4*b+3}")
        if opt["enc"]:
            e("s_waitcnt lgkmcnt(0)")
            e(f"v_lshrrev_b32 v{vT+1}, 4, v{vL16}")
            for r in range(4):
                i = 4*b + r
                e(f"v_mov_b32 v{vT}, s{72+2*i}")
                e("s_mov_b32 exec_lo, 0")
                e(f"v_mov_b32 v{vT}, s{72+2*min(i+8, 14)}")
                e("s_mov_b32 exec_lo, -1")
                e(f"v_lshrrev_b32 v{vT}, v{vT+1}, v{vT}")
                e(f"v_bfi_b32 v{pk+4*b+r}, 1, v{vT}, v{pk+4*b+r}")
        if opt["ofk"]:
            e(f"buffer_store_dwordx4 {vr(pk+4*b,4)}, v{vL16b if b else vOUT}, {srd(sOUT)}, s{sOB} offen {opt['outaux']}"); return
        e(f"buffer_store_dwordx4 {vr(pk+4*b,4)}, v{vOUT}, {srd(sOUT)}, s{sOB} offen offset:{64*b} {opt['outaux']}")
    if opt["bp"]:
        assert not opt["enc"]
        def sw(b):
            e(f"v_permlane32_swap_b32 v{pk+4*b}, v{pk+4*b+2}")
            e(f"v_permlane32_swap_b32 v{pk+4*b+1}, v{pk+4*b+3}")
        def bp(b, n):
            for r in range(n):
                e(f"ds_bpermute_b32 v{pk+16+4*b+r}, v{vL16b}, v{pk+4*b+r}"); LG.issue(f"bp{b}")
        def st(b):
            LG.wait(f"bp{b}")
            if b < 2: e(f"buffer_store_dwordx4 {vr(pk+16+4*b,4)}, v{vOUT}, {srd(sOUT)}, s{sOB} offen offset:{64*b} {opt['outaux']}")
            else: e(f"buffer_store_dwordx2 {vr(pk+24,2)}, v{vOUT2}, {srd(sOUT)}, s{sOB2} offen offset:128 {opt['outaux']}")
        e("s_nop 3")
        if opt["t4"]:
            cvt(0); cvt(1); cvt(2); sw(0); cvt(3); bp(0, 4); sw(1); cvt(4); bp(1, 4)
            for r in range(4):
                e(f"buffer_store_short{'_d16_hi' if r % 2 else ''} v{pk+8+r//2}, v{vOUT2}, {srd(sOUT)}, s{sOB2} offen offset:{128 + r*1280} {opt['outaux']}")
            st(0); st(1)
            return
        cvt(0); cvt(1); cvt(2); sw(0); cvt(3); bp(0, 4); cvt(4); sw(1); bp(2, 2); bp(1, 4); st(0); st(2); st(1)
        return
    e("s_nop 3")
    cvt(0); cvt(1); cvt(2); swp(0); cvt(3); cvt(4); swp(1)
    e(f"buffer_store_dwordx2 {vr(pk+8,2)}, v{vOUT2}, {srd(sOUT)}, s{sOB2 if D1 else sOB} offen offset:128 {opt['outaux']}")
def phase2_c():
    B1, B2, MA = opt["b1"], opt["b2"], opt["madd"]
    hp = opt["hpre"]
    ML = []
    WD = list(WDL)
    for i in range(48):
        g = [hload]
        k = 12 - len(WD)
        if WD and (i >= opt["w5s"] + (k - (12 - len(WDL))) * opt["w5k"] or i >= 24 + k): g.append(WD.pop(0))
        ML.append(g)
    assert not WD
    TL = []
    while len(TDONE) < 12: TL += tgroup_ops(len(TDONE))
    pre = [f for g in ML[:hp] for f in g]
    if opt["rcl"]:
        assert len(pre) == hp
        pre.append(r_check)
    for f in merge(pre, TL): f()
    del ML[:hp]
    LG.drain()
    stamp()
    A5 = 240
    def wr(blk, jj, src):
        def f():
            e(f"ds_write_b128 v{vRW if blk < 2 else vRW2}, {src} offset:{(blk%2)*32768 + jj*1024}"); LG.issue("red")
        return f
    def rd(pp, j, dst):
        def f():
            e(f"ds_read_b128 {vr(dst, 4)}, v{vRR+pp} offset:{j*1024}"); LG.issue(f"rr{pp}{j}")
        return f
    for p in range(4):
        ac = vACC2 + (p % 2) * 20
        pa = vACC2 + ((p-1) % 2) * 20
        NM = [4, 4, 7, 5][p]
        slots = {(n, j): [] for n in range(12) for j in range(NM)}
        def put(i0, step, fs):
            for k, f in enumerate(fs):
                i = i0 + k * step
                slots[(i // NM, i % NM)].append(f)
        if p > 0:
            ws = [wr(p-1, jj, vr(pa+4*jj, 4)) for jj in range(4)]
            if p == 3: ws += [wr(b, 4, ar(A5+4*b, 4)) for b in range(3)]
            put(NM, 2, ws)
            if p == 3: assert NM + 2*6 < B2 * NM
        if p == 2:
            assert B1 >= 4
            put(B1 * NM, 1, [rd(pp, j, vH + pp*48 + 4*j) for j in range(4) for pp in range(2)])
            def mk(i):
                def a():
                    LG.wait(f"rr1{i//4}")
                    e(f"v_add_f32 v{pa+i}, v{vH+i}, v{vH+48+i}")
                return a
            put(8 * NM, 1, [mk(i) for i in range(16)])
        if p == 3:
            put(B2 * NM, 1, [rd(pp, 4, vH + 16 + 4*pp) for pp in range(3)] + [rd(2, j, vH + 4*j) for j in range(4)])
            def mk(i):
                def a():
                    LG.wait(f"rr{1 + i//4}4")
                    e(f"v_add_f32 v{vH+16+i%4}, v{vH+16+i%4}, v{vH+20+i}")
                return a
            put((MA - 2) * NM, 1, [mk(i) for i in range(8)])
            assert MA - 2 >= B2 + 2
        for n in range(12):
            if (p == 2 and n == B1) or (p == 3 and n == B2):
                if p == 3: allc_check(); stamp(k=2)
                LG.drain(); e("s_barrier")
                if p == 3: stamp(k=2)
            VM.wait(f"h{p}_{n}")
            if n == 0 or (n == 6 and p < 3): stamp(k=2)
            def madd(j):
                LG.wait(f"rr2{j}")
                for r in range(4): e(f"v_add_f32 v{ac+4*j+r}, v{ac+4*j+r}, v{vH+4*j+r}")
            mid = p == 3 and n == MA
            if mid: e("s_nop 3"); madd(0)
            g = ML.pop(0) if ML else []
            for j in range(NM):
                if j < 4 or p == 3:
                    d = vr(ac+4*j, 4); b = p
                    c = "0" if n == 0 and (p < 3 or j == 4) else d
                else:
                    b = (j - 2) % 3
                    d = ar(A5+4*b, 4); c = "0" if n == 0 else d
                    assert not any(f is not hload and f.__defaults__[0] == n for gg in ML + [g] for f in gg), n
                    VM.wait(f"w{n}")
                if mid:
                    if j < 4: madd(j+1)
                    else: e("s_nop 0")
                e(f"v_mfma_f32_16x16x32_bf16 {d}, {ar(n*20+4*min(j,4),4)}, {vr(vH+(b*12+n)*4,4)}, {c}")
                if g and j in (opt["hj"], 3): g.pop(0)()
                for f in slots[(n, j)]: f()
            assert not g
    out_tail()
def phase2_ab():
    OA = opt["owna"]
    NE = opt["ne"]; NL = 12 - NE
    items = [(p, n) for p in range(3) for n in range(NE)] + [(3, n) for n in range(OA)]
    NA = len(items)
    items += [(p, n) for p in range(3) for n in range(NE, 12)] + [(3, n) for n in range(OA, 12)]
    NS = 36; vH2 = 112
    acc = lambda p, j: 24 + 20*p + 4*j
    hp = opt["hpre"]
    HI = list(range(48))
    seen = set()
    I0 = 0
    def own_mf(k):
        if not opt["own"] or k != opt["omp"]: return
        VM.wait("w0")
        for p in range(4):
            LG.wait(f"or{p}")
            for j in range(5):
                e(f"v_mfma_f32_16x16x32_bf16 {vr(acc(p,j),4)}, {ar(4*j,4)}, {vr(vH2+p*4,4)}, 0")
    if opt["own"]:
        items = [(p, 0) for p in range(4)] + [(p, n) for p in range(4) for n in range(1, 12)]
        HI = HI[4:]; I0 = 4; seen = {0, 1, 2, 3}
        for p in range(4):
            e(f"ds_read_b128 {vr(vH2+p*4, 4)}, v{vOW+2} offset:{p*1024}"); LG.issue(f"or{p}")
    def hl():
        if not HI: return
        i = HI.pop(0); p, n = items[i]
        if i == NA and not opt["dfw"]:
            spin_check("hpb", vPOLL, vPA, "pollB", sPOL, opt["nopoll"]); stamp(k=7)
        e(f"buffer_load_dwordx4 {vr(vH2 + (i % NS)*4, 4)}, v{vHB+p}, {srd(sH)}, s{sSIG+n} offen {opt['haux'].replace('-','')}"); VM.issue(f"h{i}")
    if opt["pae"] < 0:
        for f in take(max(0, len(W2L) - opt["pa"])): f()
        e(f"buffer_load_dword v{vPOLL}, v{vPA}, {srd(sH)}, s{sPOL} offen sc1"); VM.issue("poll")
        for f in take(opt["ec"]): f()
    own_mf(0)
    VM.wait("poll")
    stamp(); stamp(k=7)
    spin_check("hp", vPOLL, vPA, "poll", sPOL, opt["nopoll"])
    stamp(); stamp(k=2); stamp(k=7)
    e(f"s_add_u32 s{sPOL}, s{sPOL}, {FLB}")
    allc_load()
    for _ in range(hp): hl()
    for f in take(opt["wsk"]): f()
    own_mf(1)
    stamp()
    slots = {(i, j): [] for i in range(48) for j in range(5)}
    if opt["own"]: NA = 37
    L3 = NA + 3*NL
    for p in range(3):
        i0 = NA + NL*(p+1) if NL else NE*(p+1)
        if opt["own"]: i0 = 4 + 11*(p+1)
        for jj, (di, j) in enumerate([(1, 0), (1, 2), (1, 4), (2, 1), (2, 3)]):
            def w(jj=jj, p=p):
                e(f"ds_write_b128 v{vRW}, {vr(acc(p,jj),4)} offset:{p*5120 + jj*1024}"); LG.issue("red")
            slots[(i0 + di, j)].append(w)
    IB = L3 + opt["rb"]
    k = 0
    rest = 48 - IB
    assert rest >= 1
    rds = []
    for j in range(5):
        for pp in range(3):
            def f(pp=pp, j=j):
                e(f"ds_read_b128 {vr(acc(pp,j), 4)}, v{vRR+pp} offset:{j*1024}"); LG.issue(f"rr{j}")
            rds.append(f)
    per = 1 if rest >= 7 else 3
    for k, f in enumerate(rds): slots[(IB + k // per // 5, k // per % 5)].append(f)
    adds = []
    for j in range(5):
        for pp in (1, 2):
            for r in (0, 2):
                def a(j=j, pp=pp, r=r):
                    LG.wait(f"rr{j}")
                    if opt["epk"]: e(f"v_pk_add_f32 {vr(acc(0,j)+r,2)}, {vr(acc(0,j)+r,2)}, {vr(acc(pp,j)+r,2)}")
                    else:
                        for z in range(2): e(f"v_add_f32 v{acc(0,j)+r+z}, v{acc(0,j)+r+z}, v{acc(pp,j)+r+z}")
                adds.append(a)
    MA = 47 if rest >= 7 else None
    if MA:
        a0 = (MA - 3) * 5 - 5
        for k, f in enumerate(adds): slots[((a0 + k) // 5, (a0 + k) % 5)].append(f)
    for i, (p, n) in enumerate(items):
        if i < I0: continue
        if i == IB:
            allc_check(); stamp(k=2)
            LG.drain(); e("s_barrier")
            stamp(k=2)
        assert i not in HI and not any(f.__defaults__[0] == n for f in W2L), (i, n)
        late = max((f"h{i}", f"w{n}"), key=lambda t: len(VM.q) - 1 - VM.q[::-1].index(t) if t in VM.q else -1)
        VM.wait(late)
        if i % 8 == 0: stamp(k=2)
        def madd(j):
            if opt["epk"]:
                for r in (0, 2): e(f"v_pk_add_f32 {vr(acc(3,j)+r,2)}, {vr(acc(3,j)+r,2)}, {vr(acc(0,j)+r,2)}")
            else:
                for r in range(4): e(f"v_add_f32 v{acc(3,j)+r}, v{acc(3,j)+r}, v{acc(0,j)+r}")
        mid = i == MA
        if mid: e("s_nop 3"); madd(0)
        for j in range(5):
            c = vr(acc(p,j), 4) if p in seen else "0"
            if mid:
                if j < 4: madd(j+1)
                else: e("s_nop 1")
            e(f"v_mfma_f32_16x16x32_bf16 {vr(acc(p,j),4)}, {ar(n*20+4*j,4)}, {vr(vH2+(i % NS)*4,4)}, {c}")
            if j == opt["hj"]: hl()
            if j == 3 and i % opt["wr"] == 0:
                for f in take(1): f()
            if j == 4 and i == opt["pb"] and not opt["dfw"]:
                e(f"buffer_load_dword v{vPOLL}, v{vPA}, {srd(sH)}, s{sPOL} offen sc1"); VM.issue("pollB")
            for f in slots[(i, j)]: f()
        seen.add(p)
    stamp(); stamp(k=2); stamp(k=7)
    if opt["enc"]: stamp(True)
    ac = acc(3, 0)
    pk = vH2 + 64
    if not MA:
        for f in adds: f()
        for j in range(5): madd(j)
    def cvt(j):
        for r in range(2): e(f"v_cvt_pk_bf16_f32 v{pk+2*j+r}, v{ac+4*j+2*r}, v{ac+4*j+2*r+1}")
    def swp(b):
        e(f"v_permlane32_swap_b32 v{pk+4*b}, v{pk+4*b+2}")
        e(f"v_permlane32_swap_b32 v{pk+4*b+1}, v{pk+4*b+3}")
        if opt["enc"]:
            e("s_waitcnt lgkmcnt(0)")
            e(f"v_lshrrev_b32 v{vT+1}, 4, v{vL16}")
            for r in range(4):
                i = 4*b + r
                e(f"v_mov_b32 v{vT}, s{72+2*i}")
                e("s_mov_b32 exec_lo, 0")
                e(f"v_mov_b32 v{vT}, s{72+2*min(i+8, 14)}")
                e("s_mov_b32 exec_lo, -1")
                e(f"v_lshrrev_b32 v{vT}, v{vT+1}, v{vT}")
                e(f"v_bfi_b32 v{pk+4*b+r}, 1, v{vT}, v{pk+4*b+r}")
        e(f"buffer_store_dwordx4 {vr(pk+4*b,4)}, v{vOUT}, {srd(sOUT)}, s{sOB} offen offset:{64*b} {opt['outaux']}")
    e("s_nop 3")
    cvt(0); cvt(1); cvt(2); swp(0); cvt(3); cvt(4); swp(1)
    e(f"buffer_store_dwordx2 {vr(pk+8,2)}, v{vOUT2}, {srd(sOUT)}, s{sOB} offen offset:128 {opt['outaux']}")
assert opt["tail"]
if opt["ab"] or opt["dfw"]: phase2_ab()
elif opt["c5"]: phase2_c()
else: phase2_new()
e(f"s_or_b32 s{sT0}, s{sW}, s2")
e(f"s_cmp_lg_u32 s{sT0}, 0")
e("s_cbranch_scc1 L_nobump")
e(f"s_add_u32 s{sE}, s{sE}, 1")
e(f"v_mov_b32 v{vT}, s{sE}")
e(f"s_mov_b32 s{sT0}, {EP}")
e("s_mov_b64 exec, 1")
e(f"buffer_store_dword v{vT}, off, {srd(sH)}, s{sT0}")
e("s_mov_b64 exec, -1")
e("L_nobump:")
if opt["enc"]: sys.stderr.write(f"enc stamps {NST[0]}\n")
if opt["stamps"] and not opt["enc"]:
    e("s_waitcnt vmcnt(0)")
    stamp(k=-1); stamp(True)
    ns = NST[0]
    assert 72 + 2*ns <= 102
    e("s_waitcnt lgkmcnt(0)")
    if opt["amp"] >= 0 and opt["ampa"]:
        a = opt["amp"] if opt["amp"] < ns else ns - 2
        e("s_load_dwordx2 s[64:65], s[0:1], 32")
        e("s_not_b32 s60, s74")
        e("v_mov_b32 v24, s60")
        e("v_mov_b32 v25, 0")
        e("s_mov_b64 exec, 1")
        e("s_waitcnt lgkmcnt(0)")
        e("s_lshr_b32 s60, s2, 3")
        e(f"s_or_b32 s60, s60, s{sW}")
        e("s_cbranch_scc1 L_ampn")
        e("global_atomic_umax v25, v24, s[64:65] sc1")
        e("s_waitcnt vmcnt(0)")
        e("L_ampn:")
        if opt["ampw"] >= 0:
            e(f"s_cmp_lg_u32 s2, {opt['ampw']}")
            e("s_cbranch_scc1 L_end")
        if opt["ampx"] >= 0:
            e("s_and_b32 s60, s2, 7")
            e(f"s_cmp_lg_u32 s60, {opt['ampx']}")
            e("s_cbranch_scc1 L_end")
        if opt["ampl"] >= 0:
            e("s_lshr_b32 s60, s2, 3")
            e(f"s_cmp_lg_u32 s60, {opt['ampl']}")
            e("s_cbranch_scc1 L_end")
        e("s_mov_b32 s61, 200000")
        e("L_amp0:")
        e("s_memrealtime s[62:63]")
        e("s_sub_u32 s61, s61, 1")
        e("s_cbranch_scc1 L_end")
        e("s_waitcnt lgkmcnt(0)")
        e("s_sub_u32 s62, s62, s74")
        e("s_cmp_lt_u32 s62, 1500")
        e("s_cbranch_scc1 L_amp0")
        e("global_load_dword v24, v25, s[64:65] sc0 sc1")
        e("s_waitcnt vmcnt(0)")
        e("v_readfirstlane_b32 s66, v24")
        e("s_not_b32 s66, s66")
        e(f"s_sub_u32 s60, s{72+2*a}, s66")
        e(f"s_min_u32 s60, s60, 5000")
        e(f"s_mul_i32 s60, s60, {opt['ampk']}")
        e(f"s_add_u32 s60, s60, {opt['ampc']}")
        e(f"s_min_u32 s60, s60, 50000")
        e(f"s_mov_b32 s61, 200000")
        e("L_amp:")
        e("s_memrealtime s[62:63]")
        e("s_sub_u32 s61, s61, 1")
        e("s_cbranch_scc1 L_end")
        e("s_waitcnt lgkmcnt(0)")
        e("s_sub_u32 s62, s62, s66")
        e("s_cmp_lt_u32 s62, s60")
        e("s_cbranch_scc1 L_amp")
        e("s_branch L_end")
    elif opt["amp"] >= 0:
        if opt["ampw"] >= 0:
            e(f"s_cmp_lg_u32 s2, {opt['ampw']}")
            e("s_cbranch_scc1 L_end")
        a = opt["amp"] if opt["amp"] < ns else ns - 2
        e(f"s_sub_u32 s60, s{72+2*a}, s{72+2*opt['ampb']}")
        e(f"s_mul_i32 s60, s60, {opt['ampk']}")
        e(f"s_lshr_b32 s60, s60, {opt['amps']}")
        e(f"s_min_u32 s60, s60, 50000")
        e(f"s_mov_b32 s61, 200000")
        e("L_amp:")
        e("s_memrealtime s[62:63]")
        e("s_sub_u32 s61, s61, 1")
        e("s_cbranch_scc1 L_end")
        e("s_waitcnt lgkmcnt(0)")
        e(f"s_sub_u32 s62, s62, s{72+2*(ns-1)}")
        e("s_cmp_lt_u32 s62, s60")
        e("s_cbranch_scc1 L_amp")
        e("s_branch L_end")
    if opt["rt"]:
        e(f"s_lshl_b32 s{sT0}, s2, 2")
        e(f"s_add_u32 s{sT0}, s{sT0}, s{sW}")
        e(f"s_mul_i32 s{sT0}, s{sT0}, {ns*8}")
    else:
        e(f"s_cmp_lg_u32 s{sW}, {opt['stamps']-1}")
        e("s_cbranch_scc1 L_end")
        e(f"s_mul_i32 s{sT0}, s2, {ns*8}")
    e("s_mov_b64 exec, 1")
    e(f"s_add_u32 s{sT0}, s{sT0}, {0x8000000 - (opt['wso'] << 20)}")
    e(f"v_mov_b32 v{vT}, s{sT0}")
    for i in range(ns):
        e(f"v_mov_b32 v24, s{72+2*i}"); e(f"v_mov_b32 v25, s{73+2*i}")
        e(f"global_store_dwordx2 v{vT}, v[24:25], s[12:13] offset:{i*8}"); e("s_nop 1")
    sys.stderr.write(f"nstamps {ns}\n")
LATE += OOL
if LATE:
    e("s_endpgm")
    O.extend(LATE)
e("L_end:")

hdr = f"""; FFN out = silu(x @ w1) @ w2, one launch, 256 workgroups (one per CU).
; @launch grid=(256,1,1) block=(256,1,1) lds=163840
.amdgcn_target "amdgcn-amd-amdhsa--gfx950"
.text
.globl {NAME}
.p2align 8
.type {NAME},@function
{NAME}:
"""
ftr = f"""s_endpgm
.section .rodata,"a"
.p2align 6
.amdhsa_kernel {NAME}
  .amdhsa_next_free_vgpr 512
  .amdhsa_next_free_sgpr 102
  .amdhsa_accum_offset 256
  .amdhsa_group_segment_fixed_size 0
  .amdhsa_kernarg_size 48
  .amdhsa_user_sgpr_count 2
  .amdhsa_user_sgpr_kernarg_segment_ptr 1
  .amdhsa_system_sgpr_workgroup_id_x 1
.end_amdhsa_kernel
"""
def sizes(lines):
    import subprocess, tempfile, os, re
    d = tempfile.mkdtemp()
    t = hdr + "\n".join(f"Z{i}:\n{l}" for i, l in enumerate(lines)) + "\nL_w1x:\n" + ftr
    for k in range(1, 4):
        if f"L_w{k}:" not in lines: t = t.replace(f"L_w{k}\n", "L_w1x\n")
    open(d + "/a.s", "w").write(t)
    r = subprocess.run(["clang", "-x", "assembler", "-target", "amdgcn-amd-amdhsa", "-mcpu=gfx950", "-c", d + "/a.s", "-o", d + "/a.o"], capture_output=True, text=True)
    assert r.returncode == 0, r.stderr
    import struct
    b = open(d + "/a.o", "rb").read()
    shoff = struct.unpack_from("<Q", b, 0x28)[0]; shn = struct.unpack_from("<H", b, 0x3c)[0]
    sec = [struct.unpack_from("<IIQQQQIIQQ", b, shoff + 64*i) for i in range(shn)]
    sy = [x for x in sec if x[1] == 2][0]; st = sec[sy[6]]
    ad = {}
    for i in range(sy[5] // 24):
        n, _, _, _, v, _ = struct.unpack_from("<IBBHQQ", b, sy[4] + 24*i)
        nm = b[st[4]+n:b.index(b"\0", st[4]+n)].decode()
        if re.fullmatch(r"Z\d+", nm): ad[int(nm[1:])] = v
    return ad
if opt["wu"] >= 0:
    assert opt["al"]
    for k in range(1, 4):
        ad = sizes(O)
        i = min(j for j in range(len(O)) if ad[j] >= 4096*k and not O[j].startswith(".") and not O[j].endswith(":"))
        O[i:i] = [f"L_w{k}:", "s_cbranch_execz L_wr"]
        sys.stderr.write(f"page {k}: {O[i-1]} | {O[i+2]}\n")
    if opt["stamps"]: sys.stderr.write(f"nstamps {NST[0]}\n")
body = "\n".join(("" if l.endswith(":") else "    ") + l.rstrip() for l in O)
open(sys.argv[1], "w").write(hdr + body + "\n" + ftr)
```

```python
import sys
from haz import fix
NAME = "standalone__dense_activation_silu__prompt_kernel"
opt = dict(emo=0, emaux='sc1', ampc=2000, ampa=0, ampx=-1, ampl=-1, amp=-1, ampb=1, ampk=4, amps=0, ampw=-1, tpre=0, fpre=0, rpl=-1, rtab='', ttab='', pfs='', skd=0, sk5=0, al=0, wu=-1, pat='', pat1='', hid=0, r16=0, ro=0, sil=0, sild=2, silk='1', e7=0, e7a=10, e7b=10, fp='', qm=0, swab=0, wtc=0, rmap=0, nw=-1, wx='', wxp=99, acb=0, acp=-1, wq='', rds=1, ad0=8, t4=0, k4=0, k2=3, fr=3, fd=2, a4=0, bp=0, ofk=0, w5aux='sc1', rpk=0, pl2=7, nom=0, owv=1, ow=0, owp=2, ada=7, wb64=0, wg0=3, wgs=2, smd=0, dst=-1, dn=4, st0=0, nhw=0, wtx=0, tfm=0, tpm=0, tsil=0, c5=0, w5s=8, w5k=2, rcl=0, w5d=0, tin=0, sw=-1, sws=-1, swp=0, swn=15, ems=1, pqd=0, tlate=0, tmix=1, wt=-1, wts=-1, wtp=99, wth=0, wtaux='', d1=0, d7=0, w5p=4, tl=8, rpq=0, waux='', es=-1, esaux='sc1', ot=-1, otm=1, enc=0, w0p=0, own=0, omp=0, dfw=0, ne=8, clr=-1, clrs='', spec=0, fw=12, wl=0, rsp=99, rrp=0, fb=0, tch=0, la=4, tp0=0, tpos=8, th=1, ns=3, n7=0, rcs=8, epk=1, fk=0, ost=0, pae=-1, wsk=0, afs=0, ab=0, afp=0, pa=20, pb=6, wr=1, owna=0, rb=4, skipw=0, m16=0, rtm=0, po="", rsaux="sc1", emu="", emv=1, fs=128, dw=8, eq=0, ec=4, epre=16, eil="h12w9", pfm=3, stamps=0, rot=1, rot2=1, pf=1, outaux="", map=2, raux="nt", xaux="", haux="sc1", hsaux="sc1", hs2="", wb=0, wso=0, sp=0, spg="", nord=0, nomf1=0, norp=0, pk=1, tail=1, b1=4, b2=4, madd=8, pt=0, fst=0, tab="x037", nost=0, novalu=0, nomf2=0, noh=0, hj=1, w2aux="sc1", w1aux="",
           sa=0, ma=10, sb=0, mb=10, mx=0, n8=8, n9=8, nb=0, post=0, pollq=8, hpre=8, sep=0, sts=0, rpos=0, rls=0, rjs=2, rpp=0, rps=7, rck=0, nopoll=0, rfs=4, sl=0, head=50, nf0=4, pre3=0, rt=0, own2=2, ntst=10, mid=2, xlin=0, nor=0)
for a in sys.argv[2:]:
    k, v = a.split("=")
    assert k in opt, k
    opt[k] = int(v) if v.lstrip("-").isdigit() else v.replace("_", " ")
if opt["own"]: opt["dfw"] = 1; opt["ne"] = 12; assert opt["fb"] and opt["own2"] == 2
D1 = opt['d1']
RPW = opt['rfs'] >= 10
if RPW: assert D1 and opt['rpk']
R2 = '2' in str(opt['rtab'])
if R2: assert D1 and opt['rpk'] and not RPW and not opt['ow']
OW = opt['ow']
if OW: assert D1 and opt['own2'] == 2 and opt['post'] <= 12 and not opt['c5'] and not opt['w5d'] and not opt['smd'] and str(opt['nb']) == '0'
if D1: assert not (opt['own'] or opt['ab'] or opt['dfw'] or opt['spec'] or opt['eq'] or opt['tch'] or opt['po']) and opt['fb'] and opt['ns'] == 3
O = []
def e(s): O.append(s)
NST = [0]
def stamp(rt=False, k=0):
    if not opt["stamps"]: return
    if not rt and NST[0] > 1 and k != opt["sts"] and k != -1: return
    i = NST[0]; NST[0] += 1
    e(f"s_memrealtime s[{72+2*i}:{73+2*i}]" if rt or opt["rt"] or opt["rtm"] else f"s_memtime s[{72+2*i}:{73+2*i}]")

class Q:
    def __init__(s, name, mx): s.name = name; s.mx = mx; s.q = []
    def issue(s, tag): s.q.append(tag)
    def wait(s, tag):
        if tag not in s.q: return
        i = len(s.q) - 1 - s.q[::-1].index(tag)
        n = min(len(s.q) - 1 - i, s.mx)
        e(f"s_waitcnt {s.name}({n})")
        s.q = s.q[len(s.q)-n:] if n else []
    def drain(s):
        e(f"s_waitcnt {s.name}(0)"); s.q = []
VM = Q("vmcnt", 63); LG = Q("lgkmcnt", 15)

FL = 0x600000; EP = 0x608000; RFL = 0x610000; W2F = 0x620000; HREC = 0x800000
if opt['spec']: FL = 0x800000; HREC = 0x820000
FS = opt["fs"]
if FS > 128: FL = 0x800000; HREC = FL + 256 * FS
FLB = 0x200000
if opt["ab"]: HREC = 0x808000
RED = 98304; RB = 98304 if opt['ns'] == 3 else 131072; CNT = 159744
NSL = opt['ns']
sX, sW1, sW2, sOUT, sH = 16, 20, 24, 28, 32
(sW, sMT, sFT, sKX, sKW, sXB, sWB, sXE, sM0, sT0, sT1, sE, sTAG, sHS, sHS2, sFLG, sPOL, sW2B, sOWN, sROT,
 sRS, sRD, sWO, sL2E) = range(36, 60)
sSIG = 60
sPK = 4; sOB = 3; sRFL = 14; sSPIN = 15
vL16 = 1; vL16b = 2; vOUT = 3; vOUT2 = 4; vRW = 5; vRP = 6; vHS = 7
vPOLL = 8; vL4 = 9; vPA = 19
vRR = 10
vHB = 13
vT = 17
vCN = 20; vONE = 21; vAV = 22; vAC = 23
vDX = 24; vDW = 26; vDR = 32
vA = 34; vB = 36
vRA = 44
vTM = 46
vACC1 = 64; vAF = 112; vBF = 160; vS = 176; vRF = 192
vWD = 56; vWT = 60; sW5B = 6; sOB2 = 7; vRW2 = 20
vH = 64; vACC2 = 24; vOW = 240; OWN = 32768; sHS1 = 6
def mf2(d, n, j, b, c):
    a = ar(n*20+4*j, 4)
    if j == 4 and opt["t4"]: a, b = b, a
    e(f"v_mfma_f32_16x16x32_bf16 {d}, {a}, {b}, {c}")
def srd(r): return f"s[{r}:{r+3}]"
def vr(r, n): return f"v[{r}:{r+n-1}]"
def ar(r, n): return f"a[{r}:{r+n-1}]"
def capture(fn):
    global O
    sv = O; O = []; fn(); r = O; O = sv; return r

e("s_cmp_ge_u32 s2, 256")
e("s_cbranch_scc1 L_end")
stamp(True); stamp()
e("s_load_dwordx8 s[4:11], s[0:1], 0")
e("s_load_dwordx2 s[12:13], s[0:1], 40")
L, Wv = vTM, vTM+1
t0, t1, t2, t3 = vTM+2, vTM+3, vTM+4, vTM+5
e(f"v_and_b32 v{L}, 63, v0")
e(f"v_lshrrev_b32 v{Wv}, 6, v0")
e(f"v_lshlrev_b32 v{vL16}, 4, v{L}")
e(f"v_readfirstlane_b32 s{sW}, v{Wv}")
if opt["pf"]:
    e("s_getpc_b64 s[14:15]")
    e("L_pc:")
    if opt["pfs"]:
        tb = (str(opt["pfs"]).lstrip("x") + "0" * 32)[:32]
        tv = sum(int(c) << (2*i) for i, c in enumerate(tb))
        e(f"s_lshr_b32 s{sT0}, s2, 2")
        e(f"s_and_b32 s{sT0}, s{sT0}, 62")
        if tv >> 32:
            e(f"s_mov_b32 s{sSIG}, {tv & 0xffffffff}")
            e(f"s_mov_b32 s{sSIG+1}, {tv >> 32}")
            e(f"s_lshr_b64 s[{sSIG}:{sSIG+1}], s[{sSIG}:{sSIG+1}], s{sT0}")
        else:
            e(f"s_lshr_b64 s[{sSIG}:{sSIG+1}], {tv}, s{sT0}")
        e(f"s_and_b32 s{sT0}, s{sSIG}, 3")
    else:
        e(f"s_lshr_b32 s{sT0}, s2, 3")
        e(f"s_and_b32 s{sT0}, s{sT0}, {opt['pfm']}")
    e(f"s_lshl_b32 s{sT0}, s{sT0}, 12")
    e(f"v_lshl_add_u32 v{t0}, v0, 4, s{sT0}")
    e(f"v_min_u32 v{t0}, L_end-L_pc-16, v{t0}")
    e(f"global_load_dwordx4 v[252:255], v{t0}, s[14:15]")
    VM.issue("pf")
fa = opt["map"]
e(f"s_and_b32 s{sT0}, s2, 7")
e(f"s_lshr_b32 s{sT1}, s2, 3")
e(f"s_and_b32 s{sFT}, s{sT1}, {(1<<fa)-1}")
e(f"s_lshr_b32 s{sMT}, s{sT1}, {fa}")
if opt["rot"] == 3:
    tb = str(opt["tab"]).lstrip("x")
    tv = sum(int(c) << (4*i) for i, c in enumerate((tb * 16)[:16]))
    e(f"s_mul_i32 s{sKX}, s{sMT}, {opt['ma']}")
    e(f"s_mul_i32 s{sT1}, s{sFT}, {opt['mb']}")
    e(f"s_add_u32 s{sKX}, s{sKX}, s{sT1}")
    e(f"s_lshl_b32 s{sKX}, s{sKX}, 2")
    e(f"s_mov_b32 s{sSIG}, {tv & 0xffffffff}")
    e(f"s_mov_b32 s{sSIG+1}, {tv >> 32}")
    e(f"s_lshr_b64 s[{sSIG}:{sSIG+1}], s[{sSIG}:{sSIG+1}], s{sKX}")
    e(f"s_and_b32 s{sKX}, s{sSIG}, 15")
elif opt["rot"]:
    e(f"s_lshr_b32 s{sKX}, s{sMT}, {opt['sa']}")
    e(f"s_mul_i32 s{sKX}, s{sKX}, {opt['ma']}")
    e(f"s_lshr_b32 s{sT1}, s{sFT}, {opt['sb']}")
    e(f"s_mul_i32 s{sT1}, s{sT1}, {opt['mb']}")
    e(f"s_add_u32 s{sKX}, s{sKX}, s{sT1}")
    if opt['mx']:
        e(f"s_mul_i32 s{sT1}, s{sT0}, {opt['mx']}")
        e(f"s_add_u32 s{sKX}, s{sKX}, s{sT1}")
    e(f"s_lshr_b32 s{sKX}, s{sKX}, 2")
    e(f"s_mul_i32 s{sT1}, s{sKX}, 205")
    e(f"s_lshr_b32 s{sT1}, s{sT1}, 11")
    e(f"s_mul_i32 s{sT1}, s{sT1}, 10")
    e(f"s_sub_u32 s{sKX}, s{sKX}, s{sT1}")
else:
    e(f"s_mov_b32 s{sKX}, 0")
if opt["ab"]:
    e(f"s_lshl_b32 s{sROT}, s{sMT}, 2")
elif opt["rot2"] == 3:
    e(f"s_and_b32 s{sROT}, s{sMT}, 1")
    e(f"s_mul_i32 s{sROT}, s{sROT}, 6")
elif opt["rot2"] == 4:
    e(f"s_lshr_b32 s{sROT}, s{sMT}, 1")
    e(f"s_mul_i32 s{sROT}, s{sROT}, 3")
elif opt["rot2"] == 5:
    e(f"s_and_b32 s{sROT}, s{sMT}, 3")
elif opt["rot2"] == 6:
    e(f"s_mul_i32 s{sROT}, s{sMT}, 3")
    e(f"s_lshr_b32 s{sROT}, s{sROT}, 3")
    e(f"s_lshl_b32 s{sROT}, s{sROT}, 2")
elif opt["rot2"] == 7:
    e(f"s_mul_i32 s{sROT}, s{sMT}, 12")
    e(f"s_lshr_b32 s{sROT}, s{sROT}, 3")
    e(f"s_bitcmp1_b32 s2, 1")
    e(f"s_addc_u32 s{sROT}, s{sROT}, 0")
elif opt["rot2"] == 2:
    e(f"s_and_b32 s{sROT}, s{sMT}, 3")
    e(f"s_mul_i32 s{sROT}, s{sROT}, 3")
elif opt["rot2"]:
    e(f"s_mul_i32 s{sROT}, s{sMT}, 12")
    e(f"s_lshr_b32 s{sROT}, s{sROT}, {5-fa}")
else:
    e(f"s_mov_b32 s{sROT}, 0")
e(f"s_and_b32 s{sT1}, s{sT0}, {(8>>fa)-1}")
e(f"s_lshl_b32 s{sT1}, s{sT1}, {fa}")
e(f"s_add_u32 s{sFT}, s{sFT}, s{sT1}")
e(f"s_lshr_b32 s{sT1}, s{sT0}, {3-fa}")
e(f"s_lshl_b32 s{sT1}, s{sT1}, {5-fa}")
e(f"s_add_u32 s{sMT}, s{sMT}, s{sT1}")
e(f"s_mul_i32 s{sXB}, s{sMT}, 81920")
e(f"s_mul_i32 s{sWB}, s{sFT}, 384")
e(f"s_add_u32 s{sXE}, s{sXB}, 1280")
e(f"s_mul_i32 s{sKW}, s{sKX}, {64*3072}")
e(f"s_add_u32 s{sKW}, s{sKW}, s{sWB}")
e(f"s_lshl_b32 s{sKX}, s{sKX}, 7")
e(f"s_add_u32 s{sKX}, s{sKX}, s{sXB}")
G = vTM+6
e(f"v_lshrrev_b32 v{G}, 4, v{L}")
e(f"v_lshrrev_b32 v{t0}, 3, v{L}")
e(f"v_lshl_add_u32 v{t0}, v{Wv}, 4, v{t0}")
e(f"v_mul_u32_u24 v{t0}, 1280, v{t0}")
e(f"v_and_b32 v{t1}, 7, v{L}")
e(f"v_xor_b32 v{t1}, v{t1}, v{G}")
e(f"v_lshl_add_u32 v{vDX}, v{t1}, 4, v{t0}")
e(f"v_xor_b32 v{t1}, 4, v{t1}")
e(f"v_lshl_add_u32 v{vDX+1}, v{t1}, 4, v{t0}")
e(f"v_add_u32 v{vDX+1}, {8*1280-1024}, v{vDX+1}")
if opt["xlin"]:
    e(f"v_lshl_add_u32 v{vDX}, v{Wv}, 11, v{vL16}")
    e(f"v_mov_b32 v{vDX+1}, v{vDX}")
    e(f"s_and_b32 s{sT0}, s{sFT}, 3")
    e(f"s_mul_i32 s{sT0}, s{sT0}, {opt['xlin']}")
    e(f"s_lshr_b32 s{sT0}, s{sT0}, 2")
    e(f"s_lshl_b32 s100, s{sT0}, 13")
    e(f"s_add_u32 s100, s100, s{sXB}")
    e(f"s_add_u32 s101, s{sXB}, 81920")
e(f"v_mul_u32_u24 v{t3}, {16*3072}, v{Wv}")
for i in range(3):
    if i: e(f"v_add_u32 v{t0}, {64*i}, v{L}")
    src = t0 if i else L
    e(f"v_mul_u32_u24 v{t1}, 2731, v{src}")
    e(f"v_lshrrev_b32 v{t1}, 16, v{t1}")
    e(f"v_mul_u32_u24 v{t2}, 24, v{t1}")
    e(f"v_sub_u32 v{t0}, v{src}, v{t2}")
    e(f"v_and_b32 v{t2}, 2, v{t1}")
    e(f"v_lshlrev_b32 v{t2}, 1, v{t2}")
    e(f"v_xor_b32 v{t0}, v{t0}, v{t2}")
    e(f"v_mul_u32_u24 v{t1}, 3072, v{t1}")
    e(f"v_lshl_add_u32 v{t0}, v{t0}, 4, v{t1}")
    e(f"v_add_u32 v{t0}, v{t0}, v{t3}")
    if i: e(f"v_subrev_u32 v{vDW+i}, {i*1024}, v{t0}")
    else: e(f"v_mov_b32 v{vDW}, v{t0}")
    if opt["r16"]: e(f"v_xor_b32 v{t0}, 16, v{t0}")
    e(f"v_add_u32 v{vDW+3+i}, {8*3072 - ((i+3)%4)*1024}, v{t0}")
if opt["e7"]:
    e(f"s_lshr_b32 s{sT0}, s{sMT}, 1")
    e(f"s_and_b32 s{sT1}, s{sMT}, 1")
    e(f"s_lshl1_add_u32 s{sT1}, s{sFT}, s{sT1}")
    e(f"s_mul_i32 s{sXB}, s{sT0}, 163840")
    e(f"s_mul_i32 s{sWB}, s{sT1}, {192 if opt['e7'] == 1 else 128}")
    e(f"s_and_b32 s{sT0}, s{sT0}, 3")
    e(f"s_and_b32 s{sT1}, s{sT1}, 7")
    e(f"s_mul_i32 s{sT0}, s{sT0}, {opt['e7a']}")
    e(f"s_mul_i32 s{sT1}, s{sT1}, {opt['e7b']}")
    e(f"s_add_u32 s{sKX}, s{sT0}, s{sT1}")
    e(f"s_lshr_b32 s{sKX}, s{sKX}, 2")
    e(f"s_mul_i32 s{sT1}, s{sKX}, 205")
    e(f"s_lshr_b32 s{sT1}, s{sT1}, 11")
    e(f"s_mul_i32 s{sT1}, s{sT1}, 10")
    e(f"s_sub_u32 s{sKX}, s{sKX}, s{sT1}")
    e(f"s_add_u32 s{sXE}, s{sXB}, 1280")
    e(f"s_mul_i32 s{sKW}, s{sKX}, {64*3072}")
    e(f"s_add_u32 s{sKW}, s{sKW}, s{sWB}")
    e(f"s_lshl_b32 s{sKX}, s{sKX}, 7")
    e(f"s_add_u32 s{sKX}, s{sKX}, s{sXB}")
    e(f"v_mul_u32_u24 v{t0}, {16*1280}, v{Wv}")
    e(f"v_add_u32 v{vDX}, v{vDX}, v{t0}")
    e(f"v_add_u32 v{vDX+1}, v{vDX+1}, v{t0}")
    e(f"v_add_u32 v{vDW+4}, {16*1280}, v{vDX}")
    e(f"v_add_u32 v{vDW+5}, {16*1280}, v{vDX+1}")
    for i in range(3):
        e(f"v_add_u32 v{t0}, {64*i}, v{L}")
        if opt["e7"] == 1:
            e(f"v_mul_u32_u24 v{t1}, 5462, v{t0}")
            e(f"v_lshrrev_b32 v{t1}, 16, v{t1}")
            e(f"v_mul_u32_u24 v{t1}, {3072 - 192}, v{t1}")
        else:
            e(f"v_lshrrev_b32 v{t1}, 3, v{t0}")
            e(f"v_mul_u32_u24 v{t1}, {2048 - 128}, v{t1}")
        e(f"v_lshl_add_u32 v{t0}, v{t0}, 4, v{t1}")
        e(f"v_add_u32 v{t0}, v{t0}, v{t3}")
        e(f"v_subrev_u32 v{vDW+i}, {i*1024}, v{t0}")
vTC = 250
if opt["tch"]:
    e(f"v_lshrrev_b32 v{t0}, 1, v{L}")
    e(f"v_mul_u32_u24 v{t1}, 1280, v{t0}")
    e(f"v_mul_u32_u24 v{t2}, 43, v{t0}")
    e(f"v_lshrrev_b32 v{t2}, 7, v{t2}")
    e(f"v_mul_u32_u24 v{t2}, {3072-384}, v{t2}")
    e(f"v_lshl_add_u32 v{t2}, v{t0}, 7, v{t2}")
    e(f"s_and_b32 s{sT0}, s{sFT}, 3")
    e(f"s_lshl_b32 s{sT0}, s{sT0}, 1")
    e(f"s_lshr_b32 s{sT1}, s{sW}, 1")
    e(f"s_add_u32 s{sT0}, s{sT0}, s{sT1}")
    e(f"s_mul_i32 s{sT0}, s{sT0}, {8*1280}")
    e(f"s_and_b32 s{sWO}, s{sMT}, 7")
    e(f"s_lshl_b32 s{sWO}, s{sWO}, 1")
    e(f"s_add_u32 s{sWO}, s{sWO}, s{sT1}")
    e(f"s_mul_i32 s{sWO}, s{sWO}, {4*3072}")
    e(f"s_add_u32 s{sT1}, s{sWB}, {640*3072}")
    e(f"s_bitcmp1_b32 s{sW}, 0")
    e(f"s_cselect_b64 vcc, -1, 0")
    e(f"v_cndmask_b32 v{vTC}, v{t1}, v{t2}, vcc")
    e(f"s_cselect_b32 s{sT0}, s{sWO}, s{sT0}")
    e(f"s_mov_b32 s{sWO}, {0xffff if opt['th'] else 0x5555}")
    e(f"s_cselect_b32 s{sWO}, {0xffffff if opt['th'] else 0x555555}, s{sWO}")
    e(f"s_cselect_b32 s{sHS}, s{sKW}, s{sKX}")
    e(f"s_movk_i32 s{sHS2}, 128")
    e(f"s_cselect_b32 s{sHS2}, {64*3072}, s{sHS2}")
    e(f"v_and_b32 v{t0}, 1, v{L}")
    e(f"v_lshl_add_u32 v{vTC}, v{t0}, 6, v{vTC}")
    e(f"v_add_u32 v{vTC}, s{sT0}, v{vTC}")
    e(f"s_cselect_b32 vcc_lo, s{sT1}, s{sXE}")
    e(f"s_cselect_b32 vcc_hi, s{sWB}, s{sXB}")
e(f"s_lshl_b32 s{sM0}, s{sW}, 13")
CLR = opt["clr"] >= 0 or opt["clrs"]
sCL = sHS
vNAN = 244
if CLR:
    e(f"s_lshl_b32 s{sT0}, s{sMT}, 2")
    e(f"s_lshr_b32 s{sT1}, s{sFT}, 1")
    e(f"s_add_u32 s{sT0}, s{sT0}, s{sT1}")
    e(f"s_lshl_b32 s{sT0}, s{sT0}, 2")
    e(f"s_add_u32 s{sT0}, s{sT0}, s{sW}")
    e(f"s_lshl_b32 s{sT0}, s{sT0}, 1")
    e(f"s_and_b32 s{sT1}, s{sFT}, 1")
    e(f"s_add_u32 s{sT0}, s{sT0}, s{sT1}")
    e(f"s_mul_i32 s{sT0}, s{sT0}, 6144")
    e(f"v_add_u32 v248, s{sT0}, v{vL16}")
    e(f"v_add_u32 v249, 3072, v248")
    for r in range(4): e(f"v_mov_b32 v{vNAN+r}, -1")
def clr_ops():
    def mk(i):
        def f():
            e(f"buffer_store_dwordx4 {vr(vNAN,4)}, v{248 + i//3}, {srd(sH)}, 0 offen offset:{(i%3)*1024} sc1"); VM.issue("clr")
        return f
    return [mk(i) for i in range(6)]
CLO = clr_ops()
e(f"s_mov_b32 s{sSPIN}, {EP}")
for r, n in ((sX, 2621440), (sW1, 1966080), (sW2, 1966080), (sOUT, 2621440), (sH, HREC)):
    e(f"s_mov_b32 s{r+2}, {n}"); e(f"s_mov_b32 s{r+3}, 0x20000")
e("s_waitcnt lgkmcnt(0)")
if opt["wso"]:
    e(f"s_add_u32 s12, s12, {opt['wso'] << 20}"); e("s_addc_u32 s13, s13, 0")
for r, p in ((sW2, 8), (sX, 4), (sW1, 6), (sOUT, 10), (sH, 12)):
    e(f"s_mov_b64 s[{r}:{r+1}], s[{p}:{p+1}]")
if opt["tch"]:
    e(f"s_bitcmp1_b32 s{sW}, 0")
    e(f"s_cselect_b64 s[8:9], s[6:7], s[4:5]")
    e(f"s_cselect_b32 s10, s{sW1+2}, s{sX+2}")
    e("s_mov_b32 s11, 0x20000")
    e(f"s_mov_b32 s6, s{sHS}")
    e(f"s_mov_b32 s7, s{sHS2}")
def touch():
    e("s_add_u32 s6, s6, s7")
    e("s_cmp_eq_u32 s6, vcc_lo")
    e("s_cselect_b32 s6, vcc_hi, s6")
    e(f"s_mov_b32 exec_lo, s{sWO}")
    e("s_mov_b32 exec_hi, 0")
    e(f"buffer_load_dword v251, v{vTC}, s[8:11], s6 offen"); VM.issue("tch")
    e("s_mov_b64 exec, -1")
stamp()
e(f"s_load_dword s{sE}, s[12:13], s{sSPIN}")

def adv_k():
    if opt["xlin"]:
        e(f"s_add_u32 s100, s100, 8192")
        e(f"s_cmp_eq_u32 s100, s101")
        e(f"s_cselect_b32 s100, s{sXB}, s100")
    e(f"s_add_u32 s{sKX}, s{sKX}, 128")
    e(f"s_add_u32 s{sKW}, s{sKW}, {64*3072}")
    e(f"s_cmp_eq_u32 s{sKX}, s{sXE}")
    e(f"s_cselect_b32 s{sKX}, s{sXB}, s{sKX}")
    e(f"s_cselect_b32 s{sKW}, s{sWB}, s{sKW}")
def dma_ops(st):
    base = (st % NSL) * 32768
    def mk(i):
        def f():
            if i == 0: e(f"s_add_u32 m0, s{sM0}, {base+6144}"); e("s_nop 0")
            if i < 2:
                e(f"buffer_load_dwordx4 v{vDX+i}, {srd(sX)}, s{100 if opt['xlin'] else sKX} offen offset:{i*1024} {opt['xaux'] if st < opt['ntst'] else ''} lds")
            elif opt["e7"] and i >= 5:
                if i == 5: e(f"s_add_u32 m0, s{sM0}, {base+4096}"); e("s_nop 0"); return
                e(f"buffer_load_dwordx4 v{vDW+i-2}, {srd(sX)}, s{sKX} offen offset:{(i-6)*1024} lds")
            else:
                j = i - 2
                e(f"buffer_load_dwordx4 v{vDW+j}, {srd(sW1)}, s{sKW} offen offset:{(j%4)*1024} {opt['w1aux'] if st < opt['ntst'] else ''} lds")
            VM.issue(f"st{st}")
            if i == 1: e(f"s_add_u32 m0, s{sM0}, {base}"); e("s_nop 0")
            if i == 5: e(f"s_add_u32 m0, s{sM0}, {base+4096}"); e("s_nop 0")
            if i == 7 and st < 9: adv_k()
        return f
    return [mk(i) for i in range(8)]

def setup2():
    R, C = t0, t1
    u0, u1, u2 = vTM+7, vTM+8, vTM+9
    if D1:
        RJ = 2
        if opt["rtab"]:
            RJ = 9
            tb = str(opt["rtab"]).lstrip("x"); assert len(tb) == 32 and sum(map(int, tb)) == 12
            m1_ = sum((c == "1") << i for i, c in enumerate(tb)); m2_ = sum((c == "2") << i for i, c in enumerate(tb))
            e(f"s_lshr_b32 s{sT0}, s2, 3")
            e(f"s_bfm_b32 s9, s{sT0}, 0")
            if R2:
                e(f"s_mov_b32 s8, {m2_}")
                e(f"s_bitcmp1_b32 s8, s{sT0}")
                e(f"s_cselect_b32 s8, s8, {m1_}")
                e(f"s_cselect_b32 s10, 1, 0")
                e(f"s_cselect_b32 s11, 0, {16 * tb.count('2')}")
                e(f"s_and_b32 s9, s9, s8")
            else: e(f"s_and_b32 s9, s9, {m1_}")
            e(f"s_bcnt1_i32_b32 s9, s9")
            e(f"s_and_b32 s{sT1}, s2, 7")
            e(f"s_lshl3_add_u32 s9, s9, s{sT1}")
            if R2:
                e(f"s_lshl_b32 s9, s9, s10")
                e(f"s_add_u32 s9, s9, s11")
            e(f"s_bitcmp1_b32 {'s8' if R2 else m1_}, s{sT0}")
            e(f"s_cselect_b32 s9, s9, 255")
        elif opt["rmap"]:
            RJ = 9
            e(f"s_lshr_b32 s9, s2, 4")
            e(f"s_lshl_b32 s9, s9, 3")
            e(f"s_and_b32 s{sT0}, s2, 7")
            e(f"s_add_u32 s9, s9, s{sT0}")
            if opt["rmap"] > 2: e(f"s_xor_b32 s9, s9, {0x60}")
            e(f"s_lshr_b32 s{sT0}, s2, 2")
            e(f"s_xor_b32 s{sT0}, s{sT0}, s2")
            e(f"s_bitcmp{(opt['rmap'] - 1) % 2}_b32 s{sT0}, 3")
            e(f"s_cselect_b32 s9, s9, 255")
        e(f"s_lshr_b32 s{sT1}, s{RJ}, 1")
        e(f"s_and_b32 s{sT0}, s{RJ}, 1")
        if opt["rpk"]:
            e(f"s_mul_i32 s{sRFL}, s{sT1}, 43")
            e(f"s_lshr_b32 s{sRFL}, s{sRFL}, 9")
            e(f"s_mul_i32 s{sRFL}, s{sRFL}, {128 // opt['rpk'] - 12}")
            e(f"s_add_u32 s{sRFL}, s{sRFL}, s{sT1}")
            e(f"s_mul_i32 s{sRFL}, s{sRFL}, {opt['rpk']}")
            if RPW: e(f"s_lshl2_add_u32 s{sRS}, s{sT0}, s{sW}")
            e(f"s_lshl_b32 s{sRS}, s{sRS if RPW else sT0}, 9")
            e(f"s_add_u32 s{sRFL}, s{sRFL}, s{sRS}")
        else:
            e(f"s_mul_i32 s{sRFL}, s{sT0}, 48")
            e(f"s_add_u32 s{sRFL}, s{sRFL}, s{sT1}")
            e(f"s_lshl_b32 s{sRFL}, s{sRFL}, 7")
        if OW:
            e(f"s_mul_i32 s{sRS}, s{sT1}, 43")
            e(f"s_lshr_b32 s{sRS}, s{sRS}, 9")
            e(f"s_mul_i32 s{sRS}, s{sRS}, 47")
            e(f"s_lshl_b32 s{sT1}, s{sT1}, 2")
            e(f"s_sub_u32 s{sT1}, s{sT1}, s{sRS}")
        e(f"s_lshl_b32 s{sRS}, s{sT1}, 2")
        e(f"s_add_u32 s{sRS}, s{sRS}, s{sW}")
        e(f"s_mul_i32 s{sRS}, s{sRS}, 10240")
        e(f"s_lshl_b32 s{sT0}, s{sT0}, 7")
        e(f"s_add_u32 s{sRS}, s{sRS}, s{sT0}")
        e(f"s_add_u32 s{sRS}, s{sRS}, 1024")
        e(f"s_lshl_b32 s{sRD}, s{RJ}, 2")
        e(f"s_add_u32 s{sRD}, s{sRD}, s{sW}")
        e(f"s_lshl_b32 s{sRD}, s{sRD}, 10")
        e(f"s_add_u32 s{sRD}, s{sRD}, {W2F}")
        e(f"s_cmp_lt_u32 s{RJ}, {0 if opt['nor'] else 96}")
        e(f"s_cselect_b32 s{sRS}, s{sRS}, 1966080")
        e(f"s_cselect_b32 s{sRD}, s{sRD}, {HREC}")
        e(f"s_cselect_b32 s{sRFL}, s{sRFL}, {HREC - RFL}")
    else:
        e(f"s_and_b32 s{sT0}, s2, 63")
        e(f"s_mul_i32 s{sT1}, s{sT0}, 205")
        e(f"s_lshr_b32 s{sT1}, s{sT1}, 10")
        e(f"s_mul_i32 s{sRS}, s{sT1}, 5")
        e(f"s_sub_u32 s{sRS}, s{sT0}, s{sRS}")
        e(f"s_lshr_b32 s{sRD}, s2, 6")
        e(f"s_mul_i32 s{sRFL}, s{sRD}, 5")
        e(f"s_add_u32 s{sRFL}, s{sRFL}, s{sRS}")
        e(f"s_lshl_b32 s{sRFL}, s{sRFL}, 4")
        e(f"s_add_u32 s{sRFL}, s{sRFL}, s{sT1}")
        e(f"s_lshl_b32 s{sRFL}, s{sRFL}, 7")
        if opt["own"]:
            e(f"s_mul_i32 s6, s{sT1}, 6")
            e(f"s_add_u32 s6, s6, s{sRD}")
            e(f"s_lshr_b32 s7, s{sT1}, 1")
            e(f"s_mul_i32 s7, s7, 6")
            e(f"s_and_b32 s8, s{sT1}, 1")
            e(f"s_add_u32 s7, s7, s8")
            e(f"s_mul_i32 s8, s{sRD}, 12")
            e(f"s_add_u32 s7, s7, s8")
            e(f"s_sub_u32 s7, s7, 20")
            e(f"s_cmp_lt_u32 s{sT1}, 8")
            e(f"s_cselect_b32 s6, s6, s7")
            e(f"s_mul_i32 s6, s6, 40960")
        e(f"s_mul_i32 s{sRD}, s{sRD}, 12")
        e(f"s_add_u32 s{sT1}, s{sT1}, s{sRD}")
        e(f"s_mul_i32 s{sT1}, s{sT1}, 40960")
        e(f"s_lshl_b32 s{sRD}, s{sRS}, 13")
        e(f"s_add_u32 s{sRD}, s{sRD}, s{sT1}")
        e(f"s_lshl_b32 s{sRS}, s{sRS}, 8")
        e(f"s_add_u32 s{sRS}, s{sRS}, s{6 if opt['own'] else sT1}")
        e(f"s_lshl_b32 s{sT1}, s{sW}, 11")
        e(f"s_add_u32 s{sRD}, s{sRD}, s{sT1}")
        e(f"s_add_u32 s{sRD}, s{sRD}, {W2F}")
        e(f"s_cmp_lt_u32 s{sT0}, {0 if opt['nor'] else 60}")
        e(f"s_cselect_b32 s{sRS}, s{sRS}, 1966080")
        e(f"s_cselect_b32 s{sRD}, s{sRD}, {HREC}")
    if opt["pt"] & 1:
        e(f"s_min_u32 s{sT1}, s{sRS}, {1966080-4}")
        e(f"s_load_dword s101, s[8:9], s{sT1}")
    if opt["pt"] & 2:
        e(f"s_mul_i32 s{sT1}, s{sMT}, {64*3072}")
        e(f"s_load_dword s101, s[12:13], s{sT1}")
    if opt["pt"] & 4:
        e(f"s_load_dword s101, s[10:11], s{sXB}")
    if opt["pt"] & 8:
        e(f"s_load_dword s101, s[12:13], s{sRD}")
    if D1:
        e(f"v_lshrrev_b32 v{t0}, 3, v{L}")
        e(f"v_mul_u32_u24 v{t0}, 1280, v{t0}")
        e(f"v_and_b32 v{t1}, 7, v{L}")
        e(f"v_lshlrev_b32 v{t2}, 1, v{G}")
        e(f"v_xor_b32 v{t1}, v{t1}, v{t2}")
        e(f"v_lshl_add_u32 v{vWD}, v{t1}, 4, v{t0}")
        for i in range(1, 4): e(f"v_add_u32 v{vWD+i}, {i*(10240-1024)}, v{vWD}")
    else:
        e(f"v_lshl_add_u32 v{t0}, v{Wv}, 3, v{G}")
        e(f"v_mul_u32_u24 v{t0}, 1280, v{t0}")
        e(f"v_and_b32 v{t1}, 15, v{L}")
        e(f"v_lshlrev_b32 v{t2}, 1, v{G}")
        e(f"v_xor_b32 v{t1}, v{t1}, v{t2}")
        e(f"v_lshl_add_u32 v{vDR}, v{t1}, 4, v{t0}")
        e(f"v_xor_b32 v{t1}, 8, v{t1}")
        e(f"v_lshl_add_u32 v{vDR+1}, v{t1}, 4, v{t0}")
        e(f"v_add_u32 v{vDR+1}, {4*1280-1024}, v{vDR+1}")
    e(f"v_bfe_u32 v{R}, v{L}, 2, 2")
    e(f"v_and_b32 v{C}, 3, v{L}")
    if opt["r16"]:
        e(f"v_and_b32 v{u1}, 1, v{G}")
        e(f"v_lshl_add_u32 v{u0}, v{u1}, 3, v{R}")
        e(f"v_mul_u32_u24 v{u0}, 384, v{u0}")
        e(f"v_lshl_add_u32 v{u0}, v{u1}, 4, v{u0}")
        e(f"v_lshrrev_b32 v{t2}, 5, v{L}")
        e(f"v_lshl_add_u32 v{u0}, v{t2}, 13, v{u0}")
        e(f"v_lshrrev_b32 v{u1}, 1, v{R}")
        e(f"v_xor_b32 v{u1}, v{u1}, v{Wv}")
        e(f"v_and_b32 v{u1}, 1, v{u1}")
        e(f"v_lshl_add_u32 v{u0}, v{u1}, 6, v{u0}")
        e(f"v_lshrrev_b32 v{u1}, 1, v{C}")
        e(f"v_lshl_add_u32 v{u0}, v{u1}, 5, v{u0}")
        e(f"v_and_b32 v{u1}, 1, v{C}")
        e(f"v_lshl_add_u32 v{vA}, v{u1}, 3, v{u0}")
        e(f"v_xor_b32 v{vA+1}, 16, v{vA}")
        for k in range(2): e(f"v_add_u32 v{vA+2+k}, 65536, v{vA+k}")
        e(f"v_and_b32 v{u0}, 2, v{Wv}")
        e(f"v_lshlrev_b32 v{u0}, 13, v{u0}")
        e(f"v_and_b32 v{u2}, 15, v{L}")
        e(f"v_lshl_add_u32 v{u0}, v{u2}, 7, v{u0}")
        e(f"v_add_u32 v{u0}, 6144, v{u0}")
        e(f"v_lshrrev_b32 v{u1}, 1, v{u2}")
        e(f"v_xor_b32 v{u1}, v{u1}, v{G}")
        e(f"v_lshl_add_u32 v{vB+4}, v{u1}, 4, v{u0}")
        e(f"v_xor_b32 v{vB+5}, 64, v{vB+4}")
        for k in range(2): e(f"v_add_u32 v{vB+6+k}, 65536, v{vB+4+k}")
    else:
        e(f"v_lshrrev_b32 v{u0}, 1, v{G}")
        e(f"v_lshl_add_u32 v{u0}, v{u0}, 3, v{R}")
        e(f"v_mul_u32_u24 v{u0}, 384, v{u0}")
        e(f"v_lshrrev_b32 v{u1}, 1, v{R}")
        e(f"v_xor_b32 v{u1}, v{u1}, v{Wv}")
        e(f"v_and_b32 v{u1}, 1, v{u1}")
        e(f"v_lshl_add_u32 v{u0}, v{u1}, 6, v{u0}")
        e(f"v_and_b32 v{u1}, 1, v{G}")
        e(f"v_lshl_add_u32 v{u0}, v{u1}, 5, v{u0}")
        e(f"v_lshl_add_u32 v{vA}, v{C}, 3, v{u0}")
        e(f"v_add_u32 v{vA+1}, 65536, v{vA}")
        e(f"v_and_b32 v{u0}, 2, v{Wv}")
        e(f"v_add_u32 v{u0}, v{u0}, v{u1}")
        e(f"v_lshlrev_b32 v{u0}, 13, v{u0}")
        e(f"v_and_b32 v{u2}, 15, v{L}")
        e(f"v_lshl_add_u32 v{u0}, v{u2}, 7, v{u0}")
        e(f"v_add_u32 v{u0}, 6144, v{u0}")
        e(f"v_lshrrev_b32 v{u1}, 1, v{u2}")
        e(f"v_lshrrev_b32 v{t2}, 5, v{L}")
        e(f"v_xor_b32 v{u1}, v{u1}, v{t2}")
        e(f"v_lshl_add_u32 v{vB}, v{u1}, 4, v{u0}")
        for k in range(1, 4): e(f"v_xor_b32 v{vB+k}, {32*k}, v{vB}")
        for k in range(4): e(f"v_add_u32 v{vB+4+k}, 65536, v{vB+k}")
    if D1:
        e(f"v_and_b32 v{u1}, 1, v{G}")
        e(f"v_lshl_add_u32 v{u1}, v{u1}, 2, v{R}")
        e(f"v_lshlrev_b32 v{u0}, 11, v{t2}")
        e(f"v_lshl_add_u32 v{u0}, v{u1}, 7, v{u0}")
        e(f"v_lshrrev_b32 v{u1}, 1, v{u1}")
        e(f"v_lshl_add_u32 v{u0}, v{u1}, 5, v{u0}")
        e(f"v_and_b32 v{u1}, 1, v{C}")
        e(f"v_lshl_add_u32 v{u0}, v{u1}, 4, v{u0}")
        e(f"v_lshrrev_b32 v{u1}, 1, v{C}")
        e(f"v_lshl_add_u32 v{u0}, v{u1}, 3, v{u0}")
        e(f"v_add_u32 v{u0}, {RB}, v{u0}")
        e(f"v_lshlrev_b32 v{t3}, 5, v{Wv}")
        e(f"v_xor_b32 v{vRA}, v{u0}, v{t3}")
        e(f"v_add_u32 v{vWT}, s{sM0}, v{u0}")
        for j in range(1, 4): e(f"v_xor_b32 v{vWT+j}, {32*j}, v{vWT}")
    else:
        e(f"v_and_b32 v{u1}, 1, v{G}")
        e(f"v_lshl_add_u32 v{u1}, v{u1}, 2, v{R}")
        e(f"v_lshlrev_b32 v{u0}, 12, v{t2}")
        e(f"v_lshl_add_u32 v{u0}, v{u1}, 8, v{u0}")
        e(f"v_lshlrev_b32 v{t3}, 1, v{Wv}")
        e(f"v_xor_b32 v{u1}, v{u1}, v{t3}")
        e(f"v_lshl_add_u32 v{u0}, v{u1}, 5, v{u0}")
        e(f"v_and_b32 v{u1}, 1, v{C}")
        e(f"v_lshl_add_u32 v{u0}, v{u1}, 4, v{u0}")
        e(f"v_lshrrev_b32 v{u1}, 1, v{C}")
        e(f"v_lshl_add_u32 v{u0}, v{u1}, 3, v{u0}")
        e(f"v_add_u32 v{vRA}, {RB}, v{u0}")
        e(f"v_xor_b32 v{vRA+1}, 32, v{vRA}")
    if not D1:
        e(f"v_mov_b32 v{vCN}, {CNT}")
        e(f"v_mov_b32 v{vONE}, 0")
        e(f"ds_write_b32 v{vCN}, v{vONE}"); LG.issue("cnt")
    if opt["ab"]: e(f"ds_write_b32 v{vCN}, v{vONE} offset:4"); LG.issue("cnt")
    for i in range(48): e(f"v_mov_b32 v{vACC1+i}, 0")
    if not D1: e(f"v_mov_b32 v{vONE}, 1")
    e(f"v_and_b32 v{u1}, 1, v{G}")
    if opt["r16"]: e(f"v_add_u32 v{vHS}, 12288, v{vL16}")
    else:
        e(f"v_mul_u32_u24 v{u0}, 12288, v{u1}")
        e(f"v_lshl_add_u32 v{u0}, v{t2}, 8, v{u0}")
        e(f"v_lshl_add_u32 v{vHS}, v{u2}, 4, v{u0}")
    if opt["own"]:
        e(f"s_and_b32 s{sT0}, s{sW}, 1")
        e(f"s_and_b32 s{sT1}, s{sW}, 2")
        e(f"s_sub_u32 s{sT1}, s{sT1}, s{sT0}")
        e(f"s_add_u32 s{sT1}, s{sT1}, 3")
        e(f"v_add_u32 v{u0}, s{sT1}, v{u1}")
        e(f"v_and_b32 v{u0}, 3, v{u0}")
        e(f"s_lshl_b32 s{sT0}, s{sT0}, 12")
        e(f"s_add_u32 s{sT0}, s{sT0}, {OWN}")
        e(f"v_lshl_add_u32 v{u0}, v{u0}, 10, s{sT0}")
        e(f"v_lshl_add_u32 v{u0}, v{t2}, 8, v{u0}")
        e(f"v_lshl_add_u32 v{vOW}, v{u2}, 4, v{u0}")
        e(f"v_xor_b32 v{vOW+1}, 2048, v{vOW}")
        e(f"s_lshl_b32 s{sT0}, s{sW}, 12")
        e(f"s_add_u32 s{sT0}, s{sT0}, {OWN}")
        e(f"v_add_u32 v{vOW+2}, s{sT0}, v{vL16}")
    if OW:
        e(f"s_and_b32 s{sT0}, s{sW}, 1")
        e(f"s_lshl1_add_u32 s{sT0}, s{sFT}, s{sT0}")
        e(f"s_and_b32 s{sT0}, s{sT0}, 3")
        e(f"s_and_b32 s{sT1}, s{sW}, 2")
        e(f"s_sub_u32 s{sT1}, s{sT1}, s{sT0}")
        e(f"s_add_u32 s{sT1}, s{sT1}, 7")
        e(f"v_add_u32 v{u0}, s{sT1}, v{u1}")
        e(f"v_and_b32 v{u0}, 3, v{u0}")
        e(f"s_lshl_b32 s{sT0}, s{sT0}, 13")
        e(f"s_add_u32 s{sT0}, s{sT0}, {65536+4096}")
        e(f"v_lshl_add_u32 v{u0}, v{u0}, 10, s{sT0}")
        e(f"v_lshl_add_u32 v{u0}, v{t2}, 8, v{u0}")
        e(f"v_lshl_add_u32 v{vOW}, v{u2}, 4, v{u0}")
        e(f"v_xor_b32 v{vOW+1}, {16384+2048}, v{vOW}")
    e(f"v_mul_u32_u24 v{u0}, 1280, v{u2}")
    e(f"v_lshl_add_u32 v{vOUT}, v{G}, 4, v{u0}")
    e(f"v_lshl_add_u32 v{u0}, v{u1}, 4, v{u0}")
    e(f"v_lshl_add_u32 v{vOUT2}, v{t2}, 3, v{u0}")
    if opt["bp"]:
        e(f"v_lshrrev_b32 v{vL16b}, 2, v{L}")
        e(f"v_mul_u32_u24 v{u0}, 1280, v{vL16b}")
        e(f"v_lshl_add_u32 v{vOUT}, v{C}, 4, v{u0}")
        e(f"v_lshl_add_u32 v{vL16b}, v{C}, 4, v{vL16b}")
        e(f"v_lshlrev_b32 v{vL16b}, 2, v{vL16b}")
        e(f"v_and_b32 v{vOUT2}, 1, v{C}")
        e(f"v_lshl_add_u32 v{u0}, v{vOUT2}, 4, v{u0}")
        e(f"v_lshrrev_b32 v{vOUT2}, 1, v{C}")
        e(f"v_lshl_add_u32 v{vOUT2}, v{vOUT2}, 3, v{u0}")
    if opt["t4"]:
        e(f"v_mul_u32_u24 v{u0}, {4*1280}, v{G}")
        e(f"v_lshl_add_u32 v{u0}, v{C}, 1, v{u0}")
        e(f"v_and_b32 v{vOUT2}, 1, v{R}")
        e(f"v_lshl_add_u32 v{u0}, v{vOUT2}, 4, v{u0}")
        e(f"v_lshrrev_b32 v{vOUT2}, 1, v{R}")
        e(f"v_lshl_add_u32 v{vOUT2}, v{vOUT2}, 3, v{u0}")
    if opt["ofk"]:
        sh = 1 + opt["ofk"]
        e(f"v_lshrrev_b32 v{u0}, {sh}, v{L}")
        e(f"v_mul_u32_u24 v{u0}, 1280, v{u0}")
        e(f"v_and_b32 v{vOUT}, {(1 << sh) - 1}, v{L}")
        e(f"v_lshl_add_u32 v{vOUT}, v{vOUT}, 4, v{u0}")
        e(f"v_add_u32 v{vL16b}, {64 if sh == 2 else 10240}, v{vOUT}")
        e(f"v_lshrrev_b32 v{u0}, 2, v{L}")
        e(f"v_mul_u32_u24 v{u0}, 1280, v{u0}")
        e(f"v_and_b32 v{vOUT2}, 3, v{L}")
        e(f"v_lshl_add_u32 v{vOUT2}, v{vOUT2}, 3, v{u0}")
    if not D1: e(f"v_add_u32 v{vL16b}, 4096, v{vL16}")
    if D1:
        if RPW: e(f"s_lshl2_add_u32 s{sT0}, s{sFT}, s{sW}")
        else:
            e(f"s_lshr_b32 s{sT0}, s{sFT}, 2")
            e(f"s_lshl_b32 s{sT0}, s{sT0}, 2")
            e(f"s_add_u32 s{sT0}, s{sT0}, s{sW}")
        e(f"s_mul_i32 s{sT0}, s{sT0}, {128 if opt['rpk'] else 12*128}")
        e(f"v_min_u32 v{vRP}, 11, v{u2}")
        e(f"v_lshl_add_u32 v{vRP}, v{vRP}, {dict([(0,7),(4,2),(8,3)])[opt['rpk']]}, s{sT0}")
    else:
        e(f"s_mul_i32 s{sT0}, s{sFT}, 5")
        e(f"v_lshl_add_u32 v{u0}, v{u1}, 2, s{sT0}")
        e(f"v_lshrrev_b32 v{u0}, 3, v{u0}")
        e(f"v_mad_u32_u24 v{u0}, v{Wv}, 5, v{u0}")
        e(f"v_min_u32 v{vRP}, 11, v{u2}")
        e(f"v_lshlrev_b32 v{vRP}, 7, v{vRP}")
        e(f"v_lshl_add_u32 v{vRP}, v{u0}, 11, v{vRP}")
    e(f"v_lshlrev_b32 v{vL4}, 2, v{L}")
    if opt["own"] or OW:
        e(f"v_and_b32 v{vPA}, {opt['pl2']}, v{L}")
        e(f"v_lshlrev_b32 v{vPA}, 7, v{vPA}")
    else: e(f"v_mul_u32_u24 v{vPA}, {FS}, v{u1}")
    if D1:
        assert FS == 128
        e(f"v_lshlrev_b32 v{vAC}, 7, v0")
        e(f"s_add_u32 s{sT0}, s{sM0}, 32768")
        e(f"v_add_u32 v{vRW}, s{sT0}, v{vL16}")
        e(f"v_add_u32 v{vRW2}, 65536, v{vRW}")
        for p in range(3):
            e(f"s_sub_u32 s{sT0}, s{sW}, {1+p}")
            e(f"s_and_b32 s{sT0}, s{sT0}, 3")
            e(f"s_lshl_b32 s{sT0}, s{sT0}, 13")
            e(f"s_add_u32 s{sT0}, s{sT0}, {32768*(p+1)}")
            e(f"v_add_u32 v{vRR+p}, s{sT0}, v{vL16}")
        e(f"s_mul_i32 s{sW2B}, s{sW}, {40960 if OW else 12*40960}")
        e(f"s_lshl_b32 s{sT0}, s{sFT}, 7")
        e(f"s_add_u32 s{sW2B}, s{sW2B}, s{sT0}")
        e(f"s_mul_i32 s{sW5B}, s{sW}, 96")
        e(f"s_add_u32 s{sW5B}, s{sW5B}, s{sFT}")
        e(f"s_lshl_b32 s{sW5B}, s{sW5B}, 10")
        e(f"s_add_u32 s{sW5B}, s{sW5B}, {W2F}")
    else:
        e(f"v_mul_u32_u24 v{u0}, 205, v{L}")
        e(f"v_lshrrev_b32 v{u0}, 10, v{u0}")
        e(f"v_sub_u32 v{vAC}, v{Wv}, v{u0}")
        e(f"v_mad_i32_i24 v{vAC}, v{vAC}, 5, v{L}")
        e(f"v_lshlrev_b32 v{vAC}, 11, v{vAC}")
        e(f"v_lshl_add_u32 v{vAC}, v{u0}, 7, v{vAC}")
        e(f"s_mul_i32 s{sT0}, s{sW}, 15360")
        e(f"s_add_u32 s{sT0}, s{sT0}, {RED}")
        e(f"v_add_u32 v{vRW}, s{sT0}, v{vL16}")
        for p in range(3):
            e(f"s_sub_u32 s{sT0}, s{sW}, {1+p}")
            e(f"s_and_b32 s{sT0}, s{sT0}, 3")
            e(f"s_mul_i32 s{sT0}, s{sT0}, 15360")
            e(f"s_add_u32 s{sT0}, s{sT0}, {RED + p*5120}")
            e(f"v_add_u32 v{vRR+p}, s{sT0}, v{vL16}")
        e(f"s_mul_i32 s{sW2B}, s{sW}, {12*40960}")
        e(f"s_mul_i32 s{sT0}, s{sFT}, 5120")
        e(f"s_add_u32 s{sW2B}, s{sW2B}, s{sT0}")
        e(f"s_add_u32 s{sW2B}, s{sW2B}, {W2F}")
    if opt["ab"]:
        e(f"s_mov_b32 s{sSIG+6}, 0x98763210"); e(f"s_mov_b32 s{sSIG+7}, 0x98763210")
        e(f"s_lshr_b64 s[{sSIG+6}:{sSIG+7}], s[{sSIG+6}:{sSIG+7}], s{sROT}")
        e(f"s_mov_b32 s{sSIG+7}, s{sSIG+6}")
        e(f"s_and_b32 s{sROT}, s{sROT}, 12")
        e(f"s_lshr_b32 s{sSIG+11}, 0xba54ba54, s{sROT}")
        for n in range(12):
            src = sSIG+7 if n < 8 else sSIG+11
            e(f"s_bfe_u32 s{sSIG+n}, s{src}, {0x40000 + 4*(n%8)}")
            e(f"s_lshl_b32 s{sSIG+n}, s{sSIG+n}, 10")
    if opt["own"]:
        e(f"s_lshl_b32 s{sSIG}, s{sFT}, 10")
        for n in range(1, 12):
            e(f"s_cmp_eq_u32 s{sROT}, s{sFT}")
            e(f"s_addc_u32 s{sROT}, s{sROT}, 0")
            e(f"s_lshl_b32 s{sSIG+n}, s{sROT}, 10")
            if n < 11:
                e(f"s_add_u32 s{sROT}, s{sROT}, 1")
                e(f"s_cmp_ge_u32 s{sROT}, 12")
                e(f"s_cselect_b32 s{sROT}, 0, s{sROT}")
    if OW:
        e(f"s_lshl_b32 s{sT0}, s{sFT}, 1")
        e(f"s_sub_u32 s{sT0}, s{sW}, s{sT0}")
        e(f"s_and_b32 s{sT0}, s{sT0}, 3")
        e(f"s_mul_i32 s{sT1}, s{sFT}, 6")
        e(f"s_add_u32 s{sT0}, s{sT0}, s{sT1}")
        e(f"s_lshr_b32 s{sT0}, s{sT0}, 2")
        e(f"s_lshl_b32 s{sSIG}, s{sT0}, 10")
        for n in range(1, 12):
            e(f"s_cmp_ge_u32 s{sROT}, s{sT0}")
            e(f"s_addc_u32 s{sT1}, s{sROT}, 0")
            e(f"s_lshl_b32 s{sSIG+n}, s{sT1}, 10")
            if n < 11:
                e(f"s_add_u32 s{sROT}, s{sROT}, 1")
                e(f"s_cmp_ge_u32 s{sROT}, 11")
                e(f"s_cselect_b32 s{sROT}, 0, s{sROT}")
    for n in range(12 if not opt["ab"] and not opt["own"] and not OW else 0):
        e(f"s_lshl_b32 s{sSIG+n}, s{sROT}, 10")
        if n < 11:
            e(f"s_add_u32 s{sROT}, s{sROT}, 1")
            e(f"s_cmp_ge_u32 s{sROT}, 12")
            e(f"s_cselect_b32 s{sROT}, 0, s{sROT}")
    if opt["own2"] == 2:
        e(f"s_mov_b32 s{sOWN}, s{sW}")
    elif opt["own2"] == 3:
        e(f"s_and_b32 s{sOWN}, s{sFT}, 1")
        e(f"s_add_u32 s{sOWN}, s{sW}, s{sOWN}")
    elif opt["own2"]:
        e(f"s_lshl_b32 s{sOWN}, s{sFT}, 1")
        e(f"s_add_u32 s{sOWN}, s{sW}, s{sOWN}")
    else: e(f"s_add_u32 s{sOWN}, s{sW}, s{sFT}")
    e(f"s_and_b32 s{sOWN}, s{sOWN}, 3")
    e(f"s_lshl_b32 s{sT1}, s{sMT}, 2")
    e(f"s_add_u32 s{sT1}, s{sT1}, s{sW}")
    if opt["own"] or OW: e(f"s_lshl_b32 s{sPOL}, s{sMT}, 10")
    else: e(f"s_mul_i32 s{sPOL}, s{sT1}, {2*FS}")
    e(f"s_add_u32 s{sPOL}, s{sPOL}, {FL}")
    e(f"s_lshl_b32 s{sT1}, s{sT1}, 2")
    for p in range(4):
        e(f"s_add_u32 s{sT0}, s{sOWN}, {1+p}")
        e(f"s_and_b32 s{sT0}, s{sT0}, 3")
        e(f"s_add_u32 s{sT0}, s{sT0}, s{sT1}")
        e(f"s_mul_i32 s{sT0}, s{sT0}, 12288")
        e(f"v_add_u32 v{vHB+p}, s{sT0}, v{vL16}")
    e(f"s_lshl_b32 s{sOB}, s{sMT}, 2")
    e(f"s_add_u32 s{sOB}, s{sOB}, s{sOWN}")
    e(f"s_mul_i32 s{sOB}, s{sOB}, {16*1280}")
    if D1:
        e(f"s_lshl_b32 s{sT0}, s{sFT}, 5")
        e(f"s_add_u32 s{sOB2}, s{sOB}, s{sT0}")
        e(f"s_add_u32 s{sOB2}, s{sOB2}, {1024-128}")
    e(f"s_mul_i32 s{sT0}, s{sFT}, {128 if D1 else 160}")
    e(f"s_add_u32 s{sOB}, s{sOB}, s{sT0}")
    if opt["ost"]:
        e(f"s_cmp_ge_u32 s{sW}, {opt['ost']}")
        e(f"s_cselect_b32 s{sOB}, s{sOB}, 2621440")
    e(f"s_lshl_b32 s{sT0}, s{sMT}, 2")
    e(f"s_lshr_b32 s{sT1}, s{sFT}, 1")
    e(f"s_add_u32 s{sT0}, s{sT0}, s{sT1}")
    e(f"s_mul_i32 s{sFLG}, s{sT0}, {2*FS}")
    e(f"s_lshl_b32 s{sT0}, s{sT0}, 2")
    e(f"s_and_b32 s{sT1}, s{sW}, 2")
    e(f"s_add_u32 s{sT0}, s{sT0}, s{sT1}")
    e(f"s_mul_i32 s{sHS}, s{sT0}, 12288")
    e(f"s_and_b32 s{sT0}, s{sFT}, 1")
    e(f"s_mul_i32 s{sT1}, s{sT0}, {FS}")
    e(f"s_add_u32 s{sFLG}, s{sFLG}, s{sT1}")
    e(f"s_add_u32 s{sFLG}, s{sFLG}, {FL}")
    e(f"s_mul_i32 s{sT0}, s{sT0}, 6")
    e(f"s_and_b32 s{sT1}, s{sW}, 1")
    e(f"s_add_u32 s{sT0}, s{sT0}, s{sT1}")
    e(f"s_lshl_b32 s{sT0}, s{sT0}, 10")
    e(f"s_add_u32 s{sHS}, s{sHS}, s{sT0}")
    e(f"s_add_u32 s{sHS2}, s{sHS}, 4096")
    if opt["own"]:
        e(f"s_and_b32 s{sT0}, s{sFT}, 1")
        e(f"s_lshl_b32 s{sT0}, s{sT0}, 12")
        e(f"s_sub_u32 s{sHS2}, s{sHS}, s{sT0}")
        e(f"s_add_u32 s{sHS2}, s{sHS2}, 8192")
        e(f"s_lshl_b32 s{sT0}, s{sMT}, 2")
        e(f"s_add_u32 s{sT0}, s{sT0}, s{sT1}")
        e(f"s_lshl_b32 s{sT0}, s{sT0}, 2")
        e(f"s_and_b32 s{sT1}, s{sW}, 2")
        e(f"s_add_u32 s{sT0}, s{sT0}, s{sT1}")
        e(f"s_mul_i32 s{sT0}, s{sT0}, 12")
        e(f"s_add_u32 s{sT0}, s{sT0}, s{sFT}")
        e(f"s_lshl_b32 s{sHS}, s{sT0}, 10")
        e(f"s_add_u32 s{sHS1}, s{sHS}, 98304")
    if OW:
        for q, r in enumerate((sHS, 10, sHS2)):
            e(f"s_mul_i32 s{sT0}, s{sFT}, 6")
            e(f"s_and_b32 s{sT1}, s{sW}, 1")
            e(f"s_add_u32 s{sT0}, s{sT0}, s{sT1}")
            if q: e(f"s_add_u32 s{sT0}, s{sT0}, {2*q}")
            e(f"s_and_b32 s{sT1}, s{sT0}, 3")
            e(f"s_lshl2_add_u32 s{sT1}, s{sMT}, s{sT1}")
            e(f"s_and_b32 s{r}, s{sW}, 2")
            e(f"s_lshl2_add_u32 s{sT1}, s{sT1}, s{r}")
            e(f"s_mul_i32 s{sT1}, s{sT1}, 12")
            e(f"s_lshr_b32 s{sT0}, s{sT0}, 2")
            e(f"s_add_u32 s{sT0}, s{sT0}, s{sT1}")
            e(f"s_lshl_b32 s{r}, s{sT0}, 10")
    e(f"s_add_u32 s{sRFL}, s{sRFL}, {RFL}")
    if opt["tpre"]:
        tb = str(opt["ttab"]).lstrip("x"); assert len(tb) == 32
        nn = tb.count("1"); assert 48 % nn == 0 and 48 // nn <= 8
        rw = 48 // nn
        mk_ = sum(int(c) << i for i, c in enumerate(tb))
        e(f"s_lshr_b32 s9, s2, 3")
        e(f"s_bfm_b32 s8, s9, 0")
        e(f"s_and_b32 s8, s8, {mk_}")
        e(f"s_bcnt1_i32_b32 s8, s8")
        e(f"s_and_b32 s{sT0}, s2, 7")
        e(f"s_lshl3_add_u32 s8, s8, s{sT0}")
        e(f"s_lshl2_add_u32 s8, s8, s{sW}")
        e(f"s_mul_i32 s8, s8, {rw*1280}")
        e(f"s_bitcmp1_b32 {mk_}, s9")
        e(f"s_cselect_b32 s8, s8, 1966080")
        e(f"v_lshrrev_b32 v251, 3, v{L}")
        e(f"v_lshl_add_u32 v250, v251, 8, s8")
        e(f"v_lshl_add_u32 v250, v{L}, 7, v250")
        if rw < 8:
            e(f"v_add_u32 v251, {8 - rw}, v251")
            e(f"v_lshrrev_b32 v251, 3, v251")
            e(f"v_lshl_add_u32 v250, v251, 21, v250")
    if R2:
        e(f"s_lshl_b32 s{sT0}, s{sW}, 9")
        e(f"s_add_u32 s{sRFL}, s{sRFL}, s{sT0}")
        e(f"s_cmp_le_u32 s{sW}, s10")
        e(f"s_cselect_b32 s{sRFL}, s{sRFL}, {HREC}")
    elif not RPW:
        e(f"s_cmp_eq_u32 s{sW}, 0")
        e(f"s_cselect_b32 s{sRFL}, s{sRFL}, {HREC}")
    if opt["fpre"]:
        assert opt["fb"] and opt["fk"] == 0 and not RPW
        e(f"s_cmp_eq_u32 s{sW}, 0")
        e(f"s_cselect_b32 s{sFLG}, s{sFLG}, {HREC}")
        assert HREC == 1 << 23 and opt["rpk"] == 8
        e(f"v_lshrrev_b32 v249, 1, v{L}")
        e(f"v_lshl_add_u32 v249, v249, 23, v{vL4}")
        e(f"v_lshrrev_b32 v248, 5, v{L}")
        e(f"v_lshl_add_u32 v248, v248, 23, v{vL4}")
    e(f"s_mov_b32 s{sL2E}, 0xbfb8aa3b")
    if opt["pk"]:
        e(f"s_mov_b32 s{sPK}, 0xbfb8aa3b"); e(f"s_mov_b32 s{sPK+1}, 0xbfb8aa3b")
def r_loads():
    if D1:
        e(f"s_lshr_b32 m0, s{sM0}, 3")
        e(f"s_add_u32 m0, m0, {RB}")
        e("s_nop 0")
        e(f"buffer_load_dwordx4 v{vWD}, {srd(sW2)}, s{sRS} offen {opt['raux']} lds"); VM.issue("rld")
        if R2:
            e(f"s_add_u32 m0, m0, {4096 - 128}")
            e(f"s_cmp_eq_u32 s10, 1")
            e(f"s_cselect_b32 s{sRS}, s{sRS}, 1966080")
            e(f"buffer_load_dwordx4 v{vWD}, {srd(sW2)}, s{sRS} offen offset:128 {opt['raux']} lds"); VM.issue("rld")
        return
    e(f"s_lshr_b32 m0, s{sM0}, 2")
    e(f"s_add_u32 m0, m0, {RB}")
    e("s_nop 0")
    for i in range(2):
        e(f"buffer_load_dwordx4 v{vDR+i}, {srd(sW2)}, s{sRS} offen offset:{i*1024} {opt['raux']} lds"); VM.issue("rld")
def r_reads():
    if D1:
        for t in range(4 if R2 else 2):
            e(f"ds_read_b64_tr_b16 {vr(vRF + 2*t, 2)}, v{vRA} offset:{(t % 2)*1024 + (t // 2)*4096}"); LG.issue("rrd")
        return
    for ee in range(2):
        for t in range(2):
            e(f"ds_read_b64_tr_b16 {vr(vRF + 4*ee + 2*t, 2)}, v{vRA+ee} offset:{t*2048}"); LG.issue("rrd")
def r_stores():
    LG.wait("rrd")
    for ee in range(1 if D1 else 2):
        e(f"buffer_store_dwordx4 {vr(vRF+4*ee,4)}, v{vL16}, {srd(sH)}, s{sRD} offen offset:{ee*1024} {opt['rsaux']}"); VM.issue("rst")
    if R2:
        e(f"s_add_u32 s{sRD}, s{sRD}, 4096")
        e(f"s_cmp_eq_u32 s10, 1")
        e(f"s_cselect_b32 s{sRD}, s{sRD}, {HREC}")
        e(f"buffer_store_dwordx4 {vr(vRF+4,4)}, v{vL16}, {srd(sH)}, s{sRD} offen {opt['rsaux']}"); VM.issue("rst")
S2 = capture(setup2)
groups = []
for l in S2:
    if l.startswith("s_cselect") or (groups and groups[-1][-1].startswith(("s_cmp", "s_bitcmp"))): groups[-1].append(l)
    else: groups.append([l])
ST0 = []
def pre_order(spec):
    kx, kw = (sKX, 6, 8), (sKW, 7, 9)
    def nxt(i):
        a, b = (i + 1) % 3, i
        e(f"s_add_u32 s{kx[a]}, s{kx[b]}, 128")
        e(f"s_add_u32 s{kw[a]}, s{kw[b]}, {64*3072}")
        e(f"s_cmp_eq_u32 s{kx[a]}, s{sXE}")
        e(f"s_cselect_b32 s{kx[a]}, s{sXB}, s{kx[a]}")
        e(f"s_cselect_b32 s{kw[a]}, s{sWB}, s{kw[a]}")
    ops = []
    for ch in spec:
        if ch in "abc":
            st = "abc".index(ch)
            for i in range(2):
                def f(st=st, i=i):
                    if i == 0: e(f"s_add_u32 m0, s{sM0}, {st*32768+6144}"); e("s_nop 0")
                    e(f"buffer_load_dwordx4 v{vDX+i}, {srd(sX)}, s{kx[st]} offen offset:{i*1024} {opt['xaux']} lds"); VM.issue(f"st{st}")
                    if st == 0 and i == 1: nxt(0); nxt(1)
                ops.append(f)
        elif ch in "ABC":
            st = "ABC".index(ch)
            for j in range(6):
                def f(st=st, j=j):
                    if j % 4 == 0: e(f"s_add_u32 m0, s{sM0}, {st*32768+j*1024}"); e("s_nop 0")
                    e(f"buffer_load_dwordx4 v{vDW+j}, {srd(sW1)}, s{kw[st]} offen offset:{(j%4)*1024} {opt['w1aux']} lds"); VM.issue(f"st{st}")
                ops.append(f)
        elif ch == "R": ops.append(r_loads)
        elif ch == ".": ops.append(None)
        elif ch == "P":
            def f():
                e(f"s_bfe_u32 s10, s{sMT}, 0x10002")
                e(f"s_mul_i32 s10, s10, 320")
                e(f"s_and_b32 s11, s{sMT}, 3")
                e(f"s_lshl_b32 s11, s11, 4")
                e(f"s_add_u32 s10, s10, s11")
                e(f"s_mul_i32 s11, s{sW}, 12")
                e(f"s_sub_u32 s10, s10, s11")
                e(f"s_add_u32 s10, s10, 256")
                e(f"s_mul_i32 s10, s10, 3072")
                e(f"s_add_u32 s10, s10, s{sWB}")
                e(f"buffer_load_dwordx4 v[244:247], v{vDW}, {srd(sW1)}, s10 offen"); VM.issue("pp")
                e("s_mov_b32 exec_hi, 0")
                e(f"buffer_load_dwordx4 v[248:251], v{vDW+1}, {srd(sW1)}, s10 offen offset:1024"); VM.issue("pp")
                e("s_mov_b32 exec_hi, -1")
            ops.append(f)
    assert spec[0] == "a" and all(c in spec for c in "abcABC")
    last = ops[-1]
    def fin(): last(); nxt(2)
    ops[-1] = fin
    return ops
if opt["po"]:
    first = pre_order(opt["po"]); opt["pre3"] = 1
    if None in first:
        k = first.index(None); first, ST0 = first[:k], first[k+1:]
    if "R" in opt["po"]: opt["rls"] = -1
else:
    first = dma_ops(0) + dma_ops(1) + (dma_ops(2) if opt["pre3"] else [])
    if opt["rls"] < 0: first.append(r_loads)
    if opt["tch"]: first[opt["tp0"]:opt["tp0"]] = [touch] * (opt["la"] - 1)
def wxtouch(k, n):
    def f():
        if k == 0:
            e(f"s_lshr_b32 s8, s2, 3")
            e(f"s_lshl_b32 s8, s8, 2")
            e(f"s_add_u32 s8, s8, s{sW}")
            e(f"s_mul_i32 s8, s8, {12*1280}")
            e(f"s_lshr_b32 s9, s{sFT}, 2")
            e(f"s_lshl_b32 s9, s9, 9")
            e(f"s_add_u32 s8, s8, s9")
            e(f"v_lshrrev_b32 v250, 6, v{vL16}")
            e(f"v_mul_u32_u24 v250, {1280-512}, v250")
            e(f"v_lshl_add_u32 v250, v{vL16}, 3, v250")
        m = ((1 << (48 // n)) - 1) << (k * 48 // n)
        e(f"s_mov_b32 exec_lo, {m & 0xffffffff}")
        e(f"s_mov_b32 exec_hi, {m >> 32}")
        e(f"buffer_load_dword v251, v250, {srd(sW2)}, s8 offen {opt['wtaux']}"); VM.issue("wt")
        e("s_mov_b64 exec, -1")
    return f
def wtouch():
    if opt["tpre"]:
        e(f"buffer_load_dword v251, v250, {srd(sW2)}, 0 offen {opt['wtaux']}"); VM.issue("wt")
        return
    if opt["wtx"]:
        e(f"s_lshr_b32 s8, s2, 3")
        e(f"s_lshl_b32 s8, s8, 2")
        e(f"s_add_u32 s8, s8, s{sW}")
        e(f"s_mul_i32 s8, s8, {12*1280}")
        e(f"s_lshr_b32 s9, s{sFT}, 2")
        e(f"s_lshl_b32 s9, s9, 9")
        e(f"s_add_u32 s8, s8, s9")
        e(f"v_lshrrev_b32 v250, 6, v{vL16}")
        e(f"v_mul_u32_u24 v250, {1280-512}, v250")
        e(f"v_lshl_add_u32 v250, v{vL16}, 3, v250")
        e(f"s_mov_b32 exec_hi, 0xffff")
        e(f"buffer_load_dword v251, v250, {srd(sW2)}, s8 offen {opt['wtaux']}"); VM.issue("wt")
        e("s_mov_b64 exec, -1")
        return
    if opt["ttab"]:
        tb = str(opt["ttab"]).lstrip("x"); assert len(tb) == 32
        nn = tb.count("1"); assert 48 % nn == 0 and 48 // nn <= 8
        rw = 48 // nn
        mk_ = sum(int(c) << i for i, c in enumerate(tb))
        e(f"s_lshr_b32 s9, s2, 3")
        e(f"s_bfm_b32 s8, s9, 0")
        e(f"s_and_b32 s8, s8, {mk_}")
        e(f"s_bcnt1_i32_b32 s8, s8")
        e(f"s_and_b32 m0, s2, 7") if False else None
        e(f"s_lshl_b32 s8, s8, 3")
        e(f"s_bitcmp1_b32 {mk_}, s9")
        e(f"s_cselect_b32 s8, s8, 0x10000")
        e(f"s_and_b32 s9, s2, 7")
        e(f"s_add_u32 s8, s8, s9")
        e(f"s_lshl2_add_u32 s8, s8, s{sW}")
        e(f"s_mul_i32 s8, s8, {rw*1280}")
        e(f"s_min_u32 s8, s8, 1966080")
        e(f"v_lshrrev_b32 v250, 7, v{vL16}")
        e(f"v_lshlrev_b32 v250, 8, v250")
        e(f"v_lshl_add_u32 v250, v{vL16}, 3, v250")
        if rw < 8:
            m = (1 << (8*rw)) - 1
            e(f"s_mov_b32 exec_lo, {m & 0xffffffff}")
            e(f"s_mov_b32 exec_hi, {m >> 32}")
        e(f"buffer_load_dword v251, v250, {srd(sW2)}, s8 offen {opt['wtaux']}"); VM.issue("wt")
        if rw < 8: e("s_mov_b64 exec, -1")
        return
    if opt["wtc"]:
        e(f"s_lshr_b32 s8, s2, 4")
        e(f"s_lshl_b32 s8, s8, 3")
        e(f"s_and_b32 s9, s2, 7")
        e(f"s_add_u32 s8, s8, s9")
        e(f"s_lshl2_add_u32 s8, s8, s{sW}")
        e(f"s_mul_i32 s8, s8, {3*1280}")
        e(f"v_lshrrev_b32 v250, 7, v{vL16}")
        e(f"v_lshlrev_b32 v250, 8, v250")
        e(f"v_lshl_add_u32 v250, v{vL16}, 3, v250")
        e(f"s_lshr_b32 s9, s2, 2")
        e(f"s_xor_b32 s9, s9, s2")
        e(f"s_bitcmp{opt['wtc'] - 1}_b32 s9, 3")
        e(f"s_cselect_b32 s8, s8, 1966080")
        e(f"s_mov_b64 exec, {(1 << 24) - 1}")
        e(f"buffer_load_dword v251, v250, {srd(sW2)}, s8 offen {opt['wtaux']}"); VM.issue("wt")
        e("s_mov_b64 exec, -1")
        return
    e(f"s_lshl_b32 s8, s2, 2")
    e(f"s_add_u32 s8, s8, s{sW}")
    e(f"s_mul_i32 s8, s8, {15*128}")
    e(f"v_lshlrev_b32 v250, {2 if opt['wth'] else 3}, v{vL16}")
    e(f"s_mov_b64 exec, {(1 << (30 if opt['wth'] else 15)) - 1}")
    e(f"buffer_load_dword v251, v250, {srd(sW2)}, s8 offen {opt['wtaux']}"); VM.issue("wt")
    e("s_mov_b64 exec, -1")
if opt["wt"] >= 0: first.insert(opt["wt"], wtouch)
def stouch():
    e(f"s_lshl_b32 s100, s2, 2")
    e(f"s_add_u32 s100, s100, s{sW}")
    e(f"s_mul_i32 s100, s100, {15*128}")
    for i in range(opt["swn"]):
        e(f"s_load_dword s101, s[{sW2}:{sW2+1}], s100 offset:{i*128}")
if opt["sw"] >= 0: first.insert(opt["sw"], stouch)
if opt["clr"] >= 0: first[opt["clr"]:opt["clr"]] = CLO
NF0 = opt["nf0"]
for f in first[:NF0]: f()
if opt["fst"]:
    e(f"s_waitcnt vmcnt({NF0-1})"); stamp(k=5)
    e(f"s_waitcnt vmcnt({NF0-3})"); stamp(k=5)
rest = first[NF0:]
per = (len(groups) + len(rest) - 1) // len(rest)
head = len(groups) * opt["head"] // 100
for g in groups[:head]: O.extend(g)
groups = groups[head:]
per = (len(groups) + len(rest) - 1) // len(rest)
for f in rest:
    f()
    for g in groups[:per]: O.extend(g)
    groups = groups[per:]
assert not groups
stamp()

def w2_ops():
    ops = []
    order = list(range(1, 12)); order.insert(opt["w0p"], 0)
    for n in order:
        for j in range(5):
            def f(n=n, j=j):
                if j == 0:
                    e(f"s_mul_i32 s{sWO}, s{sSIG+n}, 40")
                    e(f"s_add_u32 s{sWO}, s{sWO}, s{sW2B}")
                va = vL16 if j < 4 else vL16b
                e(f"buffer_load_dwordx4 {ar(n*20+4*j, 4)}, v{va}, {srd(sH)}, s{sWO} offen offset:{(j%4)*1024} {opt['w2aux'].replace('-','')}")
                VM.issue(f"w{n}")
            ops.append(f)
    return ops
WREG = [3, 3, 4, 4, 1, 1, 2, 2, 3, 3, 4, 4]
WHF = [n % 2 for n in range(12)]
WDEP = [None] * 8 + ["t0", "t1", "t2", "t3"]
if OW:
    WREG = [3, 3, 4, 4, 1, 1, 2, 3, 3, 4, 4, 2]
    WHF = [0, 1, 0, 1, 0, 1, 0, 0, 1, 0, 1, 1]
    WDEP = [None] * 7 + ["t0", "t1", "t2", "t3", "or3"]
def wd_ops():
    ops = []
    for n in range(12):
        for i in range(4):
            def f(n=n, i=i):
                if i == 0:
                    if WDEP[n]: assert WDEP[n] in TDONE + ORD and WDEP[n] not in LG.q, n
                    e(f"s_mul_i32 s{sWO}, s{sSIG+n}, {160 if OW else 40}")
                    e(f"s_add_u32 m0, s{sM0}, {WREG[n]*32768 + WHF[n]*4096}")
                    e(f"s_add_u32 s{sWO}, s{sWO}, s{sW2B}")
                if n >= 12 - opt["skd"]: return
                e(f"buffer_load_dwordx4 v{vWD+i}, {srd(sW2)}, s{sWO} offen offset:{i*1024} {opt['waux']} lds")
                VM.issue(f"d{n}")
            ops.append(f)
    return ops
def w5_ops():
    ops = []
    for n in range(12):
        def f(n=n):
            if n >= 12 - opt["sk5"]: return
            e(f"s_lshl3_add_u32 s{sT1}, s{sSIG+n}, s{sW5B}")
            e(f"buffer_load_dwordx4 {ar(n*20+16, 4)}, v{vL16}, {srd(sH)}, s{sT1} offen {opt['w5aux'].replace('-','')}")
            VM.issue(f"w{n}")
        ops.append(f)
    return ops
TDONE = []; TWIN = [3]; ORD = []
def tgroup_ops(n):
    def head():
        assert not any(f.__defaults__[0] == n and len(f.__defaults__) == 2 for f in W2L), n
        VM.wait(f"d{n}")
        win = 3 if WREG[n] >= 3 else 1
        if win != TWIN[0]:
            for j in range(4): e(f"v_add_u32 v{vWT+j}, {(win - TWIN[0]) * 32768}, v{vWT+j}")
            TWIN[0] = win
        if len(LG.q) > 7:
            e("s_waitcnt lgkmcnt(7)"); LG.q = LG.q[-7:]
    ops = []
    for j in range(4):
        def f(j=j):
            if j == 0: head()
            win = TWIN[0]
            for t in range(2):
                e(f"ds_read_b64_tr_b16 {ar(n*20+4*j+2*t, 2)}, v{vWT+j} offset:{(WREG[n]-win)*32768 + WHF[n]*4096 + t*1024}"); LG.issue(f"t{n}")
        ops.append(f)
    TDONE.append(f"t{n}")
    return ops
def tgroup(n):
    for f in tgroup_ops(n): f()
W2L = wd_ops() if D1 else w2_ops()
def take(n):
    r = W2L[:n]; del W2L[:n]; return r

def rd_ops(st, half):
    slot = st % NSL
    sb = (slot % 2) * 32768
    hi = slot // 2
    ops = []
    if opt["nord"]: return ops
    if opt["r16"]:
        def b(rt):
            def f(): e(f"ds_read_b128 {vr(vBF + (half*2+rt)*4, 4)}, v{vB + 4 + 2*hi + half} offset:{sb + rt*8192}"); LG.issue(f"B{half}{rt}")
            return f
        def a(j, t):
            def f():
                e(f"ds_read_b64_tr_b16 {vr(vAF + half*24 + j*4 + 2*t, 2)}, v{vA + 2*hi + j%2} offset:{sb + half*16384 + t*1536 + (j//2)*128}")
                LG.issue(f"A{half}{j}")
            return f
        A = [a(j, t) for j in range(6) for t in range(2)]
        return [b(0)] + A[:2] + [b(1)] + A[2:]
    for kk in range(2):
        ks = 2*half + kk
        def b(ks=ks, kk=kk):
            e(f"ds_read_b128 {vr(vBF + (half*2+kk)*4, 4)}, v{vB + 4*hi + ks} offset:{sb}"); LG.issue(f"B{ks}")
        ops.append(b)
        for q in range(3):
            for t in range(2):
                def a(ks=ks, kk=kk, q=q, t=t):
                    e(f"ds_read_b64_tr_b16 {vr(vAF + half*24 + (kk*3+q)*4 + 2*t, 2)}, v{vA+hi} offset:{sb + ks*8192 + t*1536 + q*128}")
                    LG.issue(f"A{ks}{q}")
                ops.append(a)
    if opt["qm"] in (1, 2):
        qs = (0, 1, 2) if opt["qm"] == 1 or half == 0 else (2, 1, 0)
        ops = [ops[0], ops[7]] + [ops[7*kk + 1 + 2*q + t] for q in qs for kk in range(2) for t in range(2)]
    if opt["qm"] == 3: ops = ops[:8] + [ops[8 + 2*q + t] for q in (2, 1, 0) for t in range(2)]
    return ops
def i16(kk, q): return kk == 1
def mfma1(half, kk, q, zz=None):
    ks = 2*half + kk
    LG.wait(f"A{ks}{q}")
    if opt["nomf1"]: return
    if opt["m16"]:
        for z in (range(2) if zz is None else [zz]):
            c = vr(vACC1+16*q+8*kk+4*z, 4)
            e(f"v_mfma_f32_16x16x32_bf16 {c}, {vr(vAF + half*24 + (kk*3+q)*4, 4)}, {vr(vBF + (half*2+(kk^z if i16(kk, q) else kk))*4, 4)}, {c}")
        return
    a, b = vr(vAF + half*24 + (kk*3+q)*4, 4), vr(vBF + (half*2+kk)*4, 4)
    if opt["swab"]: a, b = b, a
    e(f"v_mfma_f32_32x32x16_bf16 {vr(vACC1+16*q,16)}, {a}, {b}, {vr(vACC1+16*q,16)}")
def mfma16(half, i):
    j, rt = i // 2, i % 2
    if opt["ro"] == 1 and j % 2: rt ^= 1
    LG.wait(f"A{half}{j}"); LG.wait(f"B{half}{rt}")
    if opt["nomf1"]: return
    c = vr(vACC1 + (j//2)*16 + rt*8 + (j%2)*4, 4)
    e(f"v_mfma_f32_16x16x32_bf16 {c}, {vr(vAF + half*24 + j*4, 4)}, {vr(vBF + (half*2+rt)*4, 4)}, {c}")
def half_body(mf_half, rds, fill, cnt=None):
    rds = list(rds); fill = list(fill)
    if (opt["m16"] >= 2 or opt["r16"]) and mf_half is not None:
        for i in range(12):
            if opt["r16"]: mfma16(mf_half, i)
            else: mfma1(mf_half, i // 6, (i // 2) % 3, i % 2)
            left = 12 - i
            if opt["pat"]:
                P = opt["pat1"] if opt["pat1"] and mf_half == 0 else opt["pat"]
                ch = P[i]
                for _ in range(dict(a=2, b=1, c=3, M=1, N=2).get(ch, 0)):
                    if rds: rds.pop(0)()
                if ch in "LMN":
                    nl = sum(c in "LMN" for c in P[i:])
                    for _ in range((len(fill) + nl - 1) // nl): fill.pop(0)()
            elif opt["m16"] == 2 or opt["r16"] == 2:
                for _ in range((len(rds) + left - 1) // left if i else 2):
                    if rds: rds.pop(0)()
                if i % 2 == 1:
                    for _ in range((len(fill) + left // 2) // (left // 2 + 1)):
                        if fill: fill.pop(0)()
            else:
                if i % 3 == 2 and fill:
                    for _ in range((len(fill) + left // 3) // (left // 3 + 1)): fill.pop(0)()
                else:
                    for _ in range(2):
                        if rds: rds.pop(0)()
        assert not rds and not fill, (len(rds), len(fill))
        return
    for i in range(6):
        if mf_half is not None:
            if opt["qm"] == 1: mfma1(mf_half, i % 2, i // 2)
            elif opt["qm"] == 2: mfma1(mf_half, i % 2, (i // 2) if mf_half == 0 else 2 - i // 2)
            elif opt["qm"] == 3: mfma1(mf_half, i // 3, (i % 3) if i < 3 else 5 - i)
            else: mfma1(mf_half, i // 3, i % 3)
        left = 6 - i
        for _ in range((len(rds) + left - 1) // left if i else min(len(rds), 4)):
            if rds: rds.pop(0)()
        if cnt is not None:
            for _ in range(cnt[i]):
                if fill: fill.pop(0)()
            if i == 5:
                while fill: fill.pop(0)()
            continue
        for _ in range((len(fill) + left - 1) // left):
            if fill: fill.pop(0)()
    assert not rds and not fill

def flag_store(off, lanes=0):
    fk = opt["fk"]
    if opt["fpre"]:
        e(f"buffer_store_dword v{vT}, v{249 if lanes else 248}, {srd(sH)}, s{off} offen sc1"); VM.issue("flag")
        return
    if fk in (1, 3, 4):
        for r in range(4): e(f"v_mov_b32 v{vTM+12+r}, s{sTAG}")
        e(f"s_mov_b64 exec, {dict([(1,255),(3,1),(4,15)])[fk]}")
        e(f"buffer_store_dwordx4 {vr(vTM+12,4)}, v{vL16}, {srd(sH)}, s{off} offen sc1"); VM.issue("flag")
        e("s_mov_b64 exec, -1")
        return
    e(f"v_mov_b32 v{vT}, s{sTAG}")
    e(f"s_mov_b64 exec, {(1 << lanes) - 1}" if lanes else "s_mov_b32 exec_hi, 0" if fk == 0 else "s_mov_b64 exec, 1")
    e(f"buffer_store_dword v{vT}, v{vL4}, {srd(sH)}, s{off} offen sc1"); VM.issue("flag")
    e("s_mov_b64 exec, -1")
def r_poll():
    e(f"s_mov_b32 s{sT0}, {HREC if opt['norp'] else RFL}")
    e(f"buffer_load_dword v{vPOLL}, v{vRP}, {srd(sH)}, s{sT0} offen sc1"); VM.issue("rpoll")

def spin_slow(lab, vv, va, so):
    e(f"L_{lab}_s:")
    e(f"s_mov_b32 s{sSPIN}, 20000")
    e(f"L_{lab}:")
    e(f"buffer_load_dword v{vv}, v{va}, {srd(sH)}, s{so} offen sc1")
    e(f"s_sub_u32 s{sSPIN}, s{sSPIN}, 1")
    e("s_waitcnt vmcnt(0)")
    e(f"v_cmp_ne_u32 vcc, s{sTAG}, v{vv}")
    e(f"s_cbranch_scc1 L_{lab}_go")
    e(f"s_cbranch_vccnz L_{lab}")
    e(f"s_branch L_{lab}_go")
def spin_fast(lab, vv, tag):
    VM.wait(tag)
    e(f"v_cmp_ne_u32 vcc, s{sTAG}, v{vv}")
    e(f"s_cbranch_vccnz L_{lab}_s")
    e(f"L_{lab}_go:")
def spin_check(lab, vv, va, tag, so=None, fake=False):
    VM.wait(tag)
    e(f"s_mov_b32 s{sSPIN}, 20000")
    e(f"L_{lab}:")
    e(f"v_cmp_ne_u32 vcc, s{sTAG}, v{vv}")
    e("s_cmp_eq_u64 vcc, 0" if not fake else "s_cmp_eq_u32 s2, s2")
    e(f"s_cbranch_scc1 L_{lab}_go")
    e(f"s_sub_u32 s{sSPIN}, s{sSPIN}, 1")
    e(f"s_cmp_eq_u32 s{sSPIN}, 0")
    e(f"s_cbranch_scc1 L_{lab}_go")
    if so is None: e(f"s_mov_b32 s{sT0}, {RFL}")
    e(f"buffer_load_dword v{vv}, v{va}, {srd(sH)}, s{sT0 if so is None else so} offen sc1")
    e("s_waitcnt vmcnt(0)")
    e(f"s_branch L_{lab}")
    e(f"L_{lab}_go:")
def r_check(): spin_check("rp", vPOLL, vRP, "rpoll", None, opt["norp"])

PEND = []
EMU = [int(c) for c in str(opt["emu"]).lstrip("x")]
def emu_ops(bi):
    q, g2 = bi // 2, bi % 2
    a0 = (vACC1 + 16*q + 8*g2) if opt['emv'] == 2 else 216; tt = vS + (bi % 2) * 8; pk = vRF + 8 + bi * 4
    ops = []
    if opt["emv"] and not opt["epk"]:
        for r in range(8): ops.append(f"v_mul_f32 v{tt+r}, s{sL2E}, v{a0+r}")
        for r in range(8): ops.append(f"v_exp_f32 v{tt+r}, v{tt+r}")
        for r in range(8): ops.append(f"v_add_f32 v{tt+r}, 1.0, v{tt+r}")
        for r in range(8): ops.append(f"v_rcp_f32 v{tt+r}, v{tt+r}")
        for r in range(8): ops.append(f"v_mul_f32 v{tt+r}, v{a0+r}, v{tt+r}")
        for r in range(4): ops.append(f"v_cvt_pk_bf16_f32 v{pk+r}, v{tt+2*r}, v{tt+2*r+1}")
    elif opt["emv"]:
        for r in range(0, 8, 2): ops.append(f"v_pk_mul_f32 {vr(tt+r,2)}, {vr(a0+r,2)}, s[{sPK}:{sPK+1}]")
        for r in range(8): ops.append(f"v_exp_f32 v{tt+r}, v{tt+r}")
        for r in range(0, 8, 2): ops.append(f"v_pk_add_f32 {vr(tt+r,2)}, {vr(tt+r,2)}, 1.0 op_sel_hi:[1,0]")
        for r in range(8): ops.append(f"v_rcp_f32 v{tt+r}, v{tt+r}")
        for r in range(0, 8, 2): ops.append(f"v_pk_mul_f32 {vr(tt+r,2)}, {vr(a0+r,2)}, {vr(tt+r,2)}")
        for r in range(4): ops.append(f"v_cvt_pk_bf16_f32 v{pk+r}, v{tt+2*r}, v{tt+2*r+1}")
    fs = [(lambda l=l: e(l)) for l in ops]
    def st_():
        if opt["r16"]:
            e(f"buffer_store_dwordx4 {vr(pk,4)}, v{vHS if g2 else vL16}, {srd(sH)}, s{(sHS if q < 2 else sHS2) if opt['emo'] == 0 else sH+2} offen offset:{(q%2)*2048} {opt['emaux'].replace('-','')}"); VM.issue("hst")
            return
        e(f"buffer_store_dwordx4 {vr(pk,4)}, v{vHS}, {srd(sH)}, s{sHS} offen offset:{g2*512 + (q%2)*2048} sc1"); VM.issue("hstA" if opt["ab"] else "hst")
    if not opt['ems']: PEND.append(st_); return fs
    return fs + [st_]
def merge(a, b):
    r = []; a = list(a); b = list(b); na, nb_ = len(a), len(b)
    while a or b:
        if a and (not b or len(a) * nb_ >= len(b) * na): r.append(a.pop(0))
        else: r.append(b.pop(0))
    return r
if EMU:
    for r in range(8): e(f"v_cvt_f32_u32 v{216+r}, v{vL16}"); e(f"v_mul_f32 v{216+r}, 0x3a000000, v{216+r}")
for st in range(10):
    if st == 1 and opt["fpre"]:
        e(f"s_mul_i32 s{sTAG}, s{sE}, 0x9E3779B1")
        e(f"s_add_u32 s{sTAG}, s{sTAG}, 0x7F4A7C15")
        e(f"v_mov_b32 v{vT}, s{sTAG}")
    if st == opt["wu"]:
        e("s_mov_b64 exec, 0")
        for k in range(1, 4):
            e(f"s_cmp_eq_u32 s{sW}, {k}")
            e(f"s_cbranch_scc1 L_w{k}")
        e("L_wr:")
        e("s_mov_b64 exec, -1")
    if st != opt["nw"]: VM.wait(f"st{st}")
    if st == opt["rjs"]: VM.wait("rld")
    if st == opt["rfs"]: VM.wait("rst"); VM.wait("clr")
    if st == opt["afs"] and st: VM.wait("hstA")
    LG.drain()
    e("s_barrier")
    if st == opt["afs"] and st:
        e(f"s_cmp_eq_u32 s{sW}, 0")
        e(f"s_cselect_b32 s{sT1}, s{sFLG}, {HREC}")
        flag_store(sT1); stamp(k=7)
    if st == 9: stamp()
    stamp(k=1)
    if st >= 8: stamp(k=4)
    if st == opt["rfs"] or (RPW and st == 1):
        if not opt["fpre"]:
            e(f"s_mul_i32 s{sTAG}, s{sE}, 0x9E3779B1")
            e(f"s_add_u32 s{sTAG}, s{sTAG}, 0x7F4A7C15")
        if not RPW and opt["fpre"] < 2: flag_store(sRFL, opt["rpk"] // 4)
    if not D1 and ((st == opt["rcs"] and opt["rck"] == 0) or (st == 9 and opt["rck"] == 2)): r_check()
    if NSL == 4:
        if st == 0: fill = ([] if opt["pre3"] else dma_ops(2)) + dma_ops(3)
        elif st < 7: fill = dma_ops(st + 3)
        else: fill = take(opt[f"n{st}"])
    elif st == 0 and opt["pre3"]: fill = list(ST0)
    elif st < 8: fill = dma_ops(st + 2) + (take(opt["d7"]) if st == 7 else [])
    else: fill = take(opt["n8"] if st == 8 else opt["n9"])
    if st == opt["dst"]: fill = fill + take(opt["dn"])
    if opt["tch"] and st + opt["la"] < 10: fill.insert(opt["tpos"], touch)
    if st == opt["rls"]: fill = [r_loads] + fill if opt["rpos"] == 0 else fill + [r_loads]
    if st == opt["rjs"]:
        fill.insert(min(opt["rsp"], len(fill)), r_stores)
        fill = [r_reads] + fill
    if st == opt["rps"] and not D1: fill.insert(opt["rpp"], r_poll)
    if st == opt["rfs"] and opt["fpre"] >= 2: fill.insert(min(opt["fpre"] - 2, len(fill)), lambda: flag_store(sRFL, opt["rpk"] // 4))
    if st == opt["wts"]: fill.insert(min(opt["wtp"], len(fill)), wtouch)
    WX = [int(c) for c in str(opt["wx"]).lstrip("x")]
    for k, c in enumerate(WX):
        if c == st: fill.insert(min(opt["wxp"], len(fill)), wxtouch(k, len(WX)))
    if st == opt['sws']: fill.insert(min(opt['swp'], len(fill)), stouch)
    if st == opt["ot"]:
        def otch():
            if opt["otm"] == 1: e("s_mov_b64 exec, 1")
            e(f"buffer_load_dword v251, v{vOUT}, {srd(sOUT)}, s{sOB} offen"); VM.issue("ot")
            if opt["otm"] == 3: e(f"buffer_load_dword v251, v{vOUT2}, {srd(sOUT)}, s{sOB} offen offset:128"); VM.issue("ot")
            e("s_mov_b64 exec, -1")
        fill.append(otch)
    ex = [CLO[i] for i, c in enumerate(str(opt["clrs"]).lstrip("x")) if int(c) == st]
    for bi, es in enumerate(EMU):
        if es == st: ex += emu_ops(bi)
    if ex: fill = merge(fill, ex)
    h = (len(fill) + 1) // 2
    f0, f1 = fill[:h], fill[h:]
    if st == 8 and opt["rck"] == 1:
        k = 1 if opt["rps"] == 8 else 0
        f0, f1 = fill[:k], [r_check] + fill[k:]
    if opt["fp"] and st:
        c = [int(z) for z in str(opt["fp"]).lstrip("x")]
        assert sum(c) == 8
        if st == opt["rjs"]: c[-12] += 1
        if len(c) == 13:
            k = c.pop(0)
            pre, fill = fill[:k + (st == opt["rjs"])], fill[k + (st == opt["rjs"]):]
            if st == opt["rjs"]: fill.insert(0, pre.pop(0))
            for f in pre: f()
        h = sum(c[:6])
        half_body(1, rd_ops(st, 0), fill[:h], c[:6])
        half_body(0, rd_ops(st, 1), fill[h:], c[6:])
        continue
    half_body(1 if st else None, rd_ops(st, 0), f0)
    half_body(0, rd_ops(st, 1), f1)
stamp()
def silu_block(q, g2):
    a0 = vACC1 + 16*q + 8*g2
    bi = 2*q + g2
    tt = vS + (bi % 2) * 8
    pk = vRF + bi * 4
    ops = []
    if opt["pk"]:
        for r in range(0, 8, 2): ops.append(f"v_pk_mul_f32 {vr(tt+r,2)}, {vr(a0+r,2)}, s[{sPK}:{sPK+1}]")
        for r in range(8): ops.append(f"v_exp_f32 v{tt+r}, v{tt+r}")
        for r in range(0, 8, 2): ops.append(f"v_pk_add_f32 {vr(tt+r,2)}, {vr(tt+r,2)}, 1.0 op_sel_hi:[1,0]")
        for r in range(8): ops.append(f"v_rcp_f32 v{tt+r}, v{tt+r}")
        for r in range(0, 8, 2): ops.append(f"v_pk_mul_f32 {vr(tt+r,2)}, {vr(a0+r,2)}, {vr(tt+r,2)}")
    else:
        for r in range(8): ops.append(f"v_mul_f32 v{tt+r}, s{sL2E}, v{a0+r}")
        for r in range(8): ops.append(f"v_exp_f32 v{tt+r}, v{tt+r}")
        for r in range(8): ops.append(f"v_add_f32 v{tt+r}, 1.0, v{tt+r}")
        for r in range(8): ops.append(f"v_rcp_f32 v{tt+r}, v{tt+r}")
        for r in range(8): ops.append(f"v_mul_f32 v{tt+r}, v{a0+r}, v{tt+r}")
    for r in range(4): ops.append(f"v_cvt_pk_bf16_f32 v{pk+r}, v{tt+2*r}, v{tt+2*r+1}")
    nbs = str(opt["nb"]).lstrip("x")
    fill = take(int(nbs[bi] if len(nbs) > 1 else nbs))
    if opt["tsil"] and bi >= 6 - opt["tsil"]: fill = fill + tgroup_ops(len(TDONE))
    step = len(ops) // (len(fill) + 1) if fill else 0
    for i, l in enumerate(ops):
        if not opt["novalu"]: e(l)
        if fill and step and (i + 1) % step == 0: fill.pop(0)()
    for f in fill: f()
    so = sHS if q < 2 else sHS2
    def st_():
        if opt["nost"]: return
        if OW:
            e(f"buffer_store_dwordx4 {vr(pk,4)}, v{vHS}, {srd(sH)}, s{(sHS, 10, sHS2)[q]} offen offset:{g2*512} sc1"); VM.issue("hst")
            if q < 2: e(f"ds_write_b128 v{vOW+q}, {vr(pk,4)} offset:{g2*512}"); LG.issue("ow")
            return
        if opt["own"]:
            e(f"buffer_store_dwordx4 {vr(pk,4)}, v{vHS}, {srd(sH)}, s{(sHS, sHS1, sHS2)[q]} offen offset:{g2*512} sc1"); VM.issue("hst")
            if q < 2: e(f"ds_write_b128 v{vOW+q}, {vr(pk,4)} offset:{q*8192 + g2*512}"); LG.issue("ow")
            return
        if opt["r16"]:
            e(f"buffer_store_dwordx4 {vr(pk,4)}, v{vHS if g2 else vL16}, {srd(sH)}, s{so} offen offset:{(q%2)*2048} {opt['hsaux'].replace('-','')}"); VM.issue("hst")
            return
        e(f"buffer_store_dwordx4 {vr(pk,4)}, v{vHS}, {srd(sH)}, s{so} offen offset:{g2*512 + (q%2)*2048} {opt['hsaux'].replace('-','')}"); VM.issue("hstA" if opt["ab"] and q < 2 else "hst")
        if opt["hs2"]:
            e(f"buffer_store_dwordx4 {vr(pk,4)}, v{vHS}, {srd(sH)}, s{so} offen offset:{g2*512 + (q%2)*2048} {opt['hs2'].replace('-','')}"); VM.issue("hst")
    PEND.append(st_)
    if bi >= opt["sl"]:
        while PEND: PEND.pop(0)()
if opt["st0"]:
    e(f"s_cmp_lt_u32 s{sW}, {opt['st0']}")
    e(f"s_cselect_b32 s{sHS}, s{sHS}, {HREC}")
    e(f"s_cselect_b32 s{sHS2}, s{sHS2}, {HREC}")
if opt["r16"]:
    for i in range(12):
        mfma16(1, i)
        if opt["rfs"] == 10 and i == 4: VM.wait("rst"); flag_store(sRFL, opt["rpk"] // 4)
else:
    for q in range(3):
        for kk in range(2): mfma1(1, kk, q)
    e("s_nop 7")
stamp(k=4)
if opt["sts"] == 4: VM.drain(); stamp(k=4)
def cnt_add(tag, off):
    VM.wait(tag)
    e("s_mov_b64 exec, 1")
    e(f"ds_add_rtn_u32 v{vT+1}, v{vCN}, v{vONE} offset:{off}")
    e("s_mov_b64 exec, -1")
def cnt_flag(add):
    e("s_waitcnt lgkmcnt(0)"); LG.q = []
    e(f"v_readfirstlane_b32 s{sT0}, v{vT+1}")
    e(f"s_add_u32 s{sT1}, s{sFLG}, {add}")
    e(f"s_cmp_eq_u32 s{sT0}, 3")
    e(f"s_cselect_b32 s{sT1}, s{sT1}, {HREC}")
    flag_store(sT1)
def silu_mix():
    P = opt["sil"] == 1
    T = []; N = []
    def ln(t): return lambda: e(t)
    def mulA(b):
        a0 = vACC1 + 8*b; tt = vS + (b % 2) * 8
        if P: return [(f"m{b}{r}", [], ln(f"v_pk_mul_f32 {vr(tt+r,2)}, {vr(a0+r,2)}, s[{sPK}:{sPK+1}]")) for r in range(0, 8, 2)]
        return [(f"m{b}{r}", [], ln(f"v_mul_f32 v{tt+r}, s{sL2E}, v{a0+r}")) for r in range(8)]
    def add(b):
        tt = vS + (b % 2) * 8
        if P: return [(f"a{b}{r}", [f"e{b}{r+1}"], ln(f"v_pk_add_f32 {vr(tt+r,2)}, {vr(tt+r,2)}, 1.0 op_sel_hi:[1,0]")) for r in range(0, 8, 2)]
        return [(f"a{b}{r}", [f"e{b}{r}"], ln(f"v_add_f32 v{tt+r}, 1.0, v{tt+r}")) for r in range(8)]
    def fin(b):
        a0 = vACC1 + 8*b; tt = vS + (b % 2) * 8; pk = vRF + b * 4
        q, g2 = b // 2, b % 2
        m = []
        for r in range(0, 8, 2):
            if P: m.append([(f"f{b}{r}", [f"r{b}{r+1}"], ln(f"v_pk_mul_f32 {vr(tt+r,2)}, {vr(a0+r,2)}, {vr(tt+r,2)}"))])
            else: m.append([(f"f{b}{r+1-z}", [f"r{b}{r+z}"], ln(f"v_mul_f32 v{tt+r+z}, v{a0+r+z}, v{tt+r+z}")) for z in range(2)])
        c = [(f"c{b}{r}", [f"f{b}{2*r}"], ln(f"v_cvt_pk_bf16_f32 v{pk+r}, v{tt+2*r}, v{tt+2*r+1}")) for r in range(4)]
        def st_():
            e(f"buffer_store_dwordx4 {vr(pk,4)}, v{vHS}, {srd(sH)}, s{sHS if q < 2 else sHS2} offen offset:{g2*512 + (q%2)*2048} {opt['hsaux'].replace('-','')}"); VM.issue("hst")
        return m[0] + m[1] + [c[0]] + m[2] + [c[1]] + m[3] + [c[2], c[3], (f"s{b}", [], st_)]
    N += mulA(0)
    for b in range(6):
        tt = vS + (b % 2) * 8
        T += [(f"e{b}{r}", [f"m{b}{r & ~1 if P else r}"], ln(f"v_exp_f32 v{tt+r}, v{tt+r}")) for r in range(8)]
        T += [(f"r{b}{r}", [f"a{b}{r & ~1 if P else r}"], ln(f"v_rcp_f32 v{tt+r}, v{tt+r}")) for r in range(8)]
        N += add(b)
        if b < 5: N += mulA(b + 1)
        N += fin(b)
    done = {}
    I0 = len(O)
    def emit(x): x[2](); done[x[0]] = len(done)
    K = [int(c) for c in str(opt["silk"]).lstrip("x")]
    for i, t in enumerate(T):
        while not all(d in done for d in t[1]): emit(N.pop(0))
        emit(t)
        k = K[i % len(K)]
        while N and all(d in done and len(done) - done[d] >= opt["sild"] for d in N[0][1]) and (k > 0 or N[0][0][0] == "s"):
            if N[0][0][0] != "s": k -= 1
            emit(N.pop(0))
    for x in N: emit(x)
    O[I0-8:] = fix(O[I0-8:])
if opt["sil"]: silu_mix()
for q in range(3 if not opt["sil"] else 0):
    for g2 in range(2):
        bi = 2*q + g2
        if opt["ab"] and not opt["afs"] and bi == 4 + opt["afp"]: cnt_add("hstA", 0); stamp(k=7)
        if opt["rfs"] == 11 + bi: VM.wait("rst"); flag_store(sRFL, opt["rpk"] // 4)
        if bi >= len(EMU): silu_block(q, g2)
        if opt["ab"] and not opt["afs"] and bi == 4 + opt["afp"]: cnt_flag(0); stamp(k=7)
stamp(); stamp(k=4); stamp(k=8)
if not opt["spec"]:
    NT = (48 - len(W2L)) // 4
    PL = take(opt["post"])
    if opt["tpm"]:
        TL = []
        while len(TDONE) < NT: TL += tgroup_ops(len(TDONE))
        PL = merge(PL, TL) if opt["tpm"] == 1 else TL + PL
    for i, f in enumerate(PL):
        if D1 and i == opt["rpq"] and opt["rpl"] < 0: r_poll()
        if i == opt["pae"]:
            e(f"buffer_load_dword v{vPOLL}, v{vPA}, {srd(sH)}, s{sPOL} offen sc1"); VM.issue("poll")
        f()
    if opt["wb"]:
        VM.wait("hst")
        e("buffer_wbl2 sc1"); VM.issue("hst")
    if D1:
        while len(TDONE) < NT: tgroup(len(TDONE))
    stamp(k=8)
    if not opt["nhw"]: VM.wait("hst")
    stamp(k=8)
    stamp(k=4)
    if opt["sts"] == 4: VM.drain(); stamp(k=4)
    if opt["fb"]:
        if not opt["fpre"]:
            e(f"s_cmp_eq_u32 s{sW}, 0")
            e(f"s_cselect_b32 s{sFLG}, s{sFLG}, {HREC}")
        if opt["own"]: LG.drain()
        if OW: LG.drain()
        e("s_barrier")
    else:
        e("s_mov_b64 exec, 1")
        e(f"ds_add_rtn_u32 v{vT+1}, v{vCN}, v{vONE} offset:{4 if opt['ab'] else 0}")
        e("s_mov_b64 exec, -1")
        if opt["ab"]: e(f"s_add_u32 s{sFLG}, s{sFLG}, {FLB}")
        for f in take(opt["mid"]): f()
        e("s_waitcnt lgkmcnt(0)")
        e(f"v_readfirstlane_b32 s{sT0}, v{vT+1}")
        e(f"s_cmp_eq_u32 s{sT0}, {3 if opt['nopoll'] < 2 else 9}")
        e(f"s_cselect_b32 s{sFLG}, s{sFLG}, {HREC}")
    if opt["nopoll"] == 3: e(f"s_mov_b32 s{sPOL}, {HREC}")
    flag_store(sFLG)
    if opt["fb"] == 2: e("s_barrier")
    stamp(); stamp(k=3)
else:
    for f in take(opt["fw"]): f()
    VM.wait("hst")
    e(f"s_lshl_b32 s{sT0}, s{sW}, 15")
    e(f"s_add_u32 s{sFLG}, s{sFLG}, s{sT0}")
    flag_store(sFLG)
    stamp()
N0 = 1 if OW else 0
HL = [(p, n) for p in range(4) for n in range(N0, 12)]
def hreg(p, n): return vH + (p*(12-N0) + n - N0)*4
def park(p, j): return [vACC2, 196, 216, 240][p] + 4*j if (p, j) != (3, 4) else 236
def ofr(p): return vr(152+4*p, 4) if opt['owv'] else ar(240+4*p, 4)
def own_reads():
    for p in range(4):
        e(f"ds_read_b128 {ofr(p)}, v{vRW} offset:{32768 + 4096 + p*1024}"); LG.issue(f"or{p}"); ORD.append(f"or{p}")
def own_ops(js):
    def mk(p, j):
        def f():
            LG.wait(f"or{p}"); LG.wait("t0")
            if j == 4: VM.wait("w0")
            if opt["nom"]: return
            mf2(vr(park(p, j), 4), 0, j, ofr(p), '0')
        return f
    return [mk(p, j) for p in range(4) for j in js]
def hload():
    if HL:
        p, n = HL.pop(0)
        if opt["noh"] and (p*12+n) % opt["noh"]: return
        e(f"buffer_load_dwordx4 {vr(hreg(p, n), 4)}, v{vHB+p}, {srd(sH)}, s{sSIG+n} offen {opt['haux'].replace('-','')}"); VM.issue(f"h{p}_{n}")
def mark(v):
    if not opt["stamps"] or opt["sts"]: return
    i = NST[0]; NST[0] += 1
    e(f"s_add_u32 s{72+2*i}, s74, {v}"); e(f"s_addc_u32 s{73+2*i}, s75, 0")
ACI = []; OOL = []
def allc_load(late=False):
    if opt["acb"] == 2 or (opt["acp"] >= 0) != late: return
    if opt["acb"] == 3:
        e("s_cmp_eq_u32 s2, 0")
        e("s_cbranch_scc1 L_aclo")
        e("L_acl:")
        OOL.extend(["L_aclo:", f"s_mov_b32 s{sT0}, {FL}", f"buffer_load_dword v{vAV}, v{vAC}, {srd(sH)}, s{sT0} offen sc1", "s_branch L_acl"])
        return
    if opt["acb"]:
        e("s_cmp_lg_u32 s2, 0")
        e("s_cbranch_scc1 L_acl")
        e(f"s_mov_b32 s{sT0}, {FL}")
        e(f"buffer_load_dword v{vAV}, v{vAC}, {srd(sH)}, s{sT0} offen sc1")
        e("L_acl:")
        VM.q.insert(0, "allc") if False else None
        ACI.append(len(VM.q))
        return
    e("s_cmp_eq_u32 s2, 0")
    e(f"s_cselect_b32 s{sT0}, {FL if D1 else RFL}, s{sH+2}")
    e(f"buffer_load_dword v{vAV}, v{vAC}, {srd(sH)}, s{sT0} offen sc1"); VM.issue("allc")
def p0_block(ML, pre):
    ML = list(ML)
    TL = []
    while D1 and len(TDONE) < 12 - opt["tin"]: TL += tgroup_ops(len(TDONE))
    for f in (merge(ML[:pre], TL) if opt["tmix"] else ML[:pre] + TL): f()
    if OW:
        for f in own_ops([4]): f()
    del ML[:pre]
    if D1 and not opt["tin"]: LG.drain()
    stamp()
    for n in range(N0, 12):
        assert (0, n) not in HL and not any(getattr(f, "__defaults__", None) and f.__defaults__[0] == n for f in ML), n
        late = max((f"h0_{n}", f"w{n}"), key=lambda t: len(VM.q) - 1 - VM.q[::-1].index(t) if t in VM.q else -1)
        VM.wait(late)
        TL = []
        if D1:
            assert f"t{n}" in TDONE
            LG.wait(f"t{n}")
            if len(TDONE) < 12: TL = tgroup_ops(len(TDONE))
        if n == N0 or n == 6: stamp(k=2)
        cnt = (len(ML) + 11 - n) // (12 - n)
        pos = {1: [opt["hj"]], 2: [1, 3], 3: [0, 2, 4], 4: [0, 1, 2, 3], 5: [0, 1, 2, 3, 4], 0: []}[cnt]
        for j in range(5):
            c = "0" if n == 0 else vr(vACC2+4*j, 4)
            mf2(vr(vACC2+4*j,4), n, j, vr(hreg(0, n),4), c)
            if j in pos: ML.pop(0)()
            elif TL: TL.pop(0)()
        for f in TL: f()
    assert not ML and not W2L
TP = []
def tstep(n):
    if not opt["tfm"]: return
    if not TP and len(TDONE) <= n - opt["tfm"] and len(TDONE) < 12 - opt["tlate"]: TP.extend(tgroup_ops(len(TDONE)))
    if TP: TP.pop(0)()
def late_d1():
    W5 = w5_ops()
    cnt = 0
    vP2 = vAV if opt["pqd"] or opt["rcl"] else vPOLL
    def poll():
        stamp(k=3)
        e(f"buffer_load_dword v{vP2}, v{vPA}, {srd(sH)}, s{sPOL} offen sc1"); VM.issue("poll")
    OM = []
    if OW: own_reads(); OM = own_ops(range(4))
    while W2L:
        n = W2L[0].__defaults__[0]
        if W2L[0].__defaults__[1] == 0 and WDEP[n]:
            while WDEP[n] not in TDONE + ORD: tgroup(len(TDONE))
            LG.wait(WDEP[n])
        if len(W2L) == opt["pqd"]: poll()
        if cnt == opt["rpl"]: r_poll()
        take(1)[0](); cnt += 1
        if OM and cnt > opt["owp"]: OM.pop(0)()
        if opt["tfm"]: tstep(n)
        elif cnt % opt["tl"] == 0 and len(TDONE) < n - 2: tgroup(len(TDONE))
    if opt["owp"] < 50:
        for f in OM: f()
        OM = []
    if not opt["rcl"]: r_check()
    else: assert opt["w5d"] == 12
    WD = W5[12-opt["w5d"]:]; del W5[12-opt["w5d"]:]
    def om(i):
        if 50 <= opt["owp"] < 90 and i >= opt["owp"] - 50:
            for _ in range(2):
                if OM: OM.pop(0)()
    for i, f in enumerate(W5[:opt["w5p"]]): f(); tstep(12 + i // 4); om(i)
    if not opt["pqd"]: poll()
    for i, f in enumerate(W5[opt["w5p"]:]): f(); tstep(12 + (i + opt["w5p"]) // 4); om(i + opt["w5p"])
    for f in TP: f()
    for f in OM: f()
    stamp(k=3)
    while len(TDONE) < 12 - opt['tlate']: tgroup(len(TDONE))
    if opt["hid"]:
        e("s_branch L_hid")
        spin_slow("hp", vP2, vPA, sPOL)
        if opt["hid"] & 2:
            e("L_ac_c:")
            e(f"s_mov_b32 s{sT1}, {FL}")
            e(f"v_cmp_ne_u32 vcc, s{sTAG}, v{vAV}")
            e("s_cmp_eq_u64 vcc, 0")
            e(f"s_cbranch_scc1 L_ac_go")
            spin_slow("ac", vAV, vAC, sT1)
        if opt["al"]: e(".p2align 12")
        e("L_hid:")
    VM.wait("poll")
    stamp(k=3)
    stamp()
    if opt["hid"]: spin_fast("hp", vP2, "poll")
    else: spin_check("hp", vP2, vPA, "poll", sPOL, opt["nopoll"])
    stamp(); stamp(k=2); stamp(k=3)
    mark(1000)
    allc_load()
    if opt["c5"]:
        WDL.extend(WD); return
    ML = []; pre = 0
    for i in range(opt["hpre"] + 12 - N0):
        ML.append(hload)
        if WD and WD[0].__defaults__[0] == i: ML.append(WD.pop(0))
        if i == opt["hpre"] - 1: pre = len(ML)
    p0_block(ML, pre)
WDL = []
def late_path():
    if D1: return late_d1()
    if opt['skipw']: del W2L[-opt['skipw']:]
    if opt["sts"] == 6:
        stamp(k=6)
        i = 0
        while len(W2L) > opt["pollq"]:
            take(1)[0](); i += 1
            if i % 4 == 0 and i >= opt["dw"]:
                e(f"s_waitcnt vmcnt({opt['dw']})"); stamp(k=6)
    for f in take(max(0, len(W2L) - opt["pollq"])): f()
    stamp(k=3)
    if opt["sts"] == 3: VM.drain(); stamp(k=3)
    if opt["sts"] == 4: stamp(k=4); VM.drain(); stamp(k=4)
    if opt["sp"]:
        e(f"s_load_dword s6, s[12:13], s{sPOL} {opt['spg']}")
        e(f"s_add_u32 s{sT0}, s{sPOL}, 128")
        e(f"s_load_dword s7, s[12:13], s{sT0} {opt['spg']}")
        for f in take(len(W2L)): f()
        stamp(k=3)
        e("s_waitcnt lgkmcnt(0)")
        stamp(k=3)
        stamp()
        e(f"s_cmp_eq_u32 s6, s{sTAG}")
        e(f"s_cselect_b32 s6, s7, s6")
        e(f"s_cmp_eq_u32 s6, s{sTAG}")
        e("s_cbranch_scc1 L_hp_go")
        e(f"v_mov_b32 v{vPOLL}, s6")
        spin_check("hp", vPOLL, vPA, "poll", sPOL, opt["nopoll"])
    else:
        e(f"buffer_load_dword v{vPOLL}, v{vPA}, {srd(sH)}, s{sPOL} offen sc1"); VM.issue("poll")
        for f in take(len(W2L)): f()
        stamp(k=3)
        VM.wait("poll")
        stamp(k=3)
        stamp()
        spin_check("hp", vPOLL, vPA, "poll", sPOL, opt["nopoll"])
    stamp(); stamp(k=2); stamp(k=3)
    mark(1000)
    allc_load()
    p0_block([hload] * (opt["hpre"] + 12), opt["hpre"])
LATE = []
if opt["eq"]:
    import re
    for f in take(len(W2L) - opt["eq"]): f()
    e(f"buffer_load_dword v{vPOLL}, v{vPA}, {srd(sH)}, s{sPOL} offen sc1"); VM.issue("poll")
    for f in take(opt["ec"]): f()
    VM.wait("poll")
    e(f"v_cmp_ne_u32 vcc, s{sTAG}, v{vPOLL}")
    e("s_cmp_eq_u64 vcc, 0" if not opt["nopoll"] else "s_cmp_eq_u32 s2, s2")
    e("s_cbranch_scc0 L_late")
    sv = (list(VM.q), list(W2L), list(HL), NST[0])
    LATE = ["L_late:"] + capture(late_path) + ["s_branch L_p1"]
    endq, endn = list(VM.q), NST[0]
    VM.q, W2L[:], HL[:], NST[0] = sv
    stamp(); stamp(); stamp(k=2); mark(0)
    allc_load()
    m = re.match(r"h(\d+)w(\d+)", opt["eil"])
    ML = []; nh = 12; ws = take(len(W2L))
    while nh or ws:
        k = min(nh, int(m.group(1))); ML += [hload] * k; nh -= k
        k = int(m.group(2)); ML += ws[:k]; del ws[:k]
    ML += [hload] * opt["hpre"]
    p0_block(ML, opt["epre"])
    assert NST[0] == endn, (NST[0], endn)
    k = min(len(VM.q), len(endq))
    assert VM.q[-k:] == endq[-k:] and all(t.startswith("h1") for t in VM.q + endq), (VM.q, endq)
    if len(endq) > len(VM.q): VM.q = endq
    e("L_p1:")
elif opt["spec"]:
    allc_load()
    for f in take(len(W2L) - opt["wl"]): f()
    stamp(); stamp(); stamp(k=2); mark(1000)
    ws = take(len(W2L))
    p0_block([hload] * opt["hpre"] + merge(ws, [hload] * 12) if ws else [hload] * (opt["hpre"] + 12), opt["hpre"])
elif not opt["ab"] and not opt["dfw"]:
    late_path()
def allc_check():
    if opt["acb"] == 2: return
    if opt["hid"] & 2:
        assert "allc" not in VM.q
        e("s_cmp_eq_u32 s2, 0")
        e("s_cbranch_scc1 L_ac_c")
        e("L_ac_go:")
        return
    if opt["acb"] == 3:
        e("s_cmp_eq_u32 s2, 0")
        e("s_cbranch_scc1 L_aco")
        e("L_acb:")
        def body():
            e(f"s_mov_b32 s{sT1}, {FL}")
            spin_check("ac", vAV, vAC, "allc", sT1)
        OOL.extend(["L_aco:"] + capture(body) + ["s_branch L_acb"])
        return
    e("s_cmp_lg_u32 s2, 0")
    e("s_cbranch_scc1 L_ac_go")
    assert "allc" not in VM.q
    if D1: e(f"s_mov_b32 s{sT1}, {FL}")
    spin_check("ac", vAV, vAC, "allc", sT1 if D1 else None)
def phase2_new():
    B1, B2, MA = opt["b1"], opt["b2"], opt["madd"]
    for p in range(1, 4):
        ac = vACC2 + (p % 2) * 20
        pa = vACC2 + ((p-1) % 2) * 20
        slots = {(n, j): [] for n in range(12) for j in range(5)}
        if opt["wb64"]:
            for k in range(10):
                def w(k=k):
                    e(f"ds_write_b64 v{vRW if p < 3 else vRW2}, {vr(pa+2*k,2)} offset:{((p-1)%2)*32768 + (k//2)*1024 + (k%2)*8}")
                    LG.issue("red")
                i = 5*N0 + opt["wg0"] + k * opt["wgs"]
                assert i < 5 * min(B1, B2)
                slots[(i // 5, i % 5)].append(w)
        elif p > 0:
            PW = [(1, 0), (1, 2), (1, 4), (2, 1), (2, 3)]
            if opt["wq"]:
                q = str(opt["wq"]).lstrip("x")
                i0, di = int(q[2*p-2], 36), int(q[2*p-1], 36)
                PW = [((i0 + k*di) // 5, (i0 + k*di) % 5) for k in range(5)]
            for jj, pos in enumerate(PW):
                def w(jj=jj):
                    if D1: e(f"ds_write_b128 v{vRW if p < 3 else vRW2}, {vr(pa+4*jj,4)} offset:{((p-1)%2)*32768 + jj*1024}")
                    else: e(f"ds_write_b128 v{vRW}, {vr(pa+4*jj,4)} offset:{(p-1)*5120 + jj*1024}")
                    LG.issue("red")
                slots[(pos[0] + N0, pos[1])].append(w)
                assert pos[0] + N0 < (12, B1, B2)[p-1]
        def rd(pp, j, dst):
            def f():
                e(f"ds_read_b128 {vr(dst, 4)}, v{vRR+pp} offset:{j*1024}"); LG.issue(f"rr{pp}{j}")
            return f
        if p == 2:
            k = 0
            for j in range(5):
                for pp in range(2):
                    slots[(B1 + k // 5, k % 5)].append(rd(pp, j, vH + pp*20 + 4*j)); k += opt["rds"]
            assert B1 + 3 <= 8 or opt["wq"]
            for i in range(20):
                def a(i=i):
                    LG.wait(f"rr1{i//4}")
                    if OW and opt["ada"] == 7:
                        e(f"v_add_f32 v{pa+i}, v{vH+i}, v{vH+20+i}")
                        if i: e(f"v_add_f32 v{pa+i-1}, v{pa+i-1}, v{park(3, (i-1)//4) + (i-1)%4}")
                        if i == 19: e(f"v_add_f32 v{pa+i}, v{pa+i}, v{park(3, 4) + 3}")
                        return
                    if OW:
                        jt, r = i // 4, (i % 2) * 2
                        d = vr(pa + 4*jt + r, 2)
                        if i % 4 < 2: e(f"v_pk_add_f32 {d}, {vr(vH + 4*jt + r, 2)}, {vr(vH + 20 + 4*jt + r, 2)}")
                        else: e(f"v_pk_add_f32 {d}, {d}, {vr(park(3, jt) + r, 2)}")
                        return
                    e(f"v_add_f32 v{pa+i}, v{vH+i}, v{vH+20+i}")
                i2 = 5*opt["ad0"] + i * (60 - 5*opt["ad0"]) // 20
                assert i2 > 5*B1 + (2*(i//4) + 1)*opt["rds"]
                slots[(i2 // 5, i2 % 5)].append(a)
        if p == 3:
            for j in range(5): slots[(B2, j)].append(rd(2, j, vH + 4*j))
            if opt["smd"]:
                MA = -1
                for j in range(5):
                    for r in range(4):
                        def a(j=j, r=r):
                            LG.wait(f"rr2{j}")
                            e(f"v_add_f32 v{ac+4*j+r}, v{ac+4*j+r}, v{vH+4*j+r}")
                        i = (opt["smd"] + j) * 5 + j + 2 + r // 2 if opt["smd"] + 5 < 12 else opt["smd"] * 5 + 3 * j + (2*j) % 5 * 0 + 99
                        slots[(i // 5, i % 5)].append(a)
        K4 = opt["k4"] if p == 3 else 0
        if K4: MA = -1; I0 = len(O)
        for n in range(N0, 12 - (opt["k2"] if K4 else 0)):
            if (p == 2 and n == B1) or (p == 3 and n == B2):
                if p == 3: allc_check(); stamp(k=2)
                LG.drain(); e("s_barrier")
                if p == 3: stamp(k=2)
            VM.wait(f"h{p}_{n}")
            if p * 12 + n == opt["acp"]: allc_load(True)
            if p * 12 + n == opt["es"]:
                e(f"s_lshl_b32 s6, s{sMT}, 2")
                e(f"s_add_u32 s6, s6, s{sOWN}")
                e(f"s_mul_i32 s6, s6, {16*1280}")
                e(f"s_mul_i32 s7, s{sFT}, 160")
                e(f"s_add_u32 s6, s6, s7")
                e(f"s_cmp_lt_u32 s{sW}, {opt['ost']}")
                e(f"s_cselect_b32 s6, s6, 2621440")
                ax = opt['esaux'].replace('-', '')
                for b in range(2):
                    e(f"buffer_store_dwordx4 {vr(vH+40+4*b,4)}, v{vOUT}, {srd(sOUT)}, s6 offen offset:{64*b} {ax}"); VM.issue("es")
                e(f"buffer_store_dwordx2 {vr(vH+40,2)}, v{vOUT2}, {srd(sOUT)}, s6 offen offset:128 {ax}"); VM.issue("es")
            if n == N0 or (n == 6 and p < 3): stamp(k=2)
            def madd(j):
                LG.wait(f"rr2{j}")
                for r in range(4): e(f"v_add_f32 v{ac+4*j+r}, v{ac+4*j+r}, v{vH+4*j+r}")
            mid = p == 3 and n == MA
            if mid: e("s_nop 3"); madd(0)
            for j in range(5):
                c = "0" if n == 0 and p < 3 else vr(ac+4*j, 4)
                if OW and n == 1 and p < 3: c = vr(park(p, j), 4)
                if mid:
                    if j < 4: madd(j+1)
                    else: e("s_nop 0")
                if j < 4 or n < 12 - K4: mf2(vr(ac+4*j,4), n, j, vr(hreg(p, n),4), c)
                if j == opt["hj"]: hload()
                for f in slots[(n, j)]: f()
                if K4 and opt["a4"] and n == opt["a4"] and j < 4:
                    assert n > 12 - K4 and n > B2
                    LG.wait("rr24"); e(f"v_add_f32 v{ac+16+j}, v{ac+16+j}, v{vH+16+j}")
    if opt["k4"]:
        tile_tail()
        O[I0:] = fix(O[I0:])
    else: out_tail()
def tile_tail():
    K2, K4 = opt["k2"], opt["k4"]
    assert opt["bp"] and opt["t4"] and not HL
    ac = vACC2 + 20; pk = vH + 64
    ML = [(n, j) for g in ((0, 1), (2, 3)) for n in range(12 - K2, 12) for j in g] + [(n, 4) for n in range(12 - K4, 12)]
    def add(j):
        def mk(r):
            def f(): LG.wait(f"rr2{j}"); e(f"v_add_f32 v{ac+4*j+r}, v{ac+4*j+r}, v{vH+4*j+r}")
            return f
        return [mk(r) for r in range(4)]
    def ln(t): return lambda: e(t)
    def cvt(j): return [ln(f"v_cvt_pk_bf16_f32 v{pk+2*j+r}, v{ac+4*j+2*r}, v{ac+4*j+2*r+1}") for r in range(2)]
    def sw(b): return [ln(f"v_permlane32_swap_b32 v{pk+4*b+r}, v{pk+4*b+2+r}") for r in range(2)]
    def bp(b):
        def mk(r):
            def f(): e(f"ds_bpermute_b32 v{pk+16+4*b+r}, v{vL16b}, v{pk+4*b+r}"); LG.issue(f"bp{b}")
            return f
        return [mk(r) for r in (0, 2, 1, 3)]
    def st(b):
        def f():
            LG.wait(f"bp{b}")
            e(f"buffer_store_dwordx4 {vr(pk+16+4*b,4)}, v{vOUT}, {srd(sOUT)}, s{sOB} offen offset:{64*b} {opt['outaux']}")
        return [f]
    fd = opt["fd"]
    Qo = [(0, f) for f in ([] if opt["a4"] else add(4))] + [(fd - 1, f) for f in add(2) + add(3)]
    n23 = len(Qo)
    Qo += [(2*K2 + fd - 1, f) for f in add(0) + add(1) + cvt(0) + cvt(1) + sw(0) + bp(0)]
    Qo += [(4*K2 + fd - 1, f) for f in cvt(2) + cvt(3) + sw(1) + bp(1) + st(0)]
    done = 0
    for i, (n, j) in enumerate(ML):
        if i == 2*K2:
            while done < n23: Qo.pop(0)[1](); done += 1
        VM.wait(f"h3_{n}")
        mf2(vr(ac+4*j,4), n, j, vr(hreg(3, n),4), vr(ac+4*j,4))
        for _ in range(opt["fr"]):
            if Qo and Qo[0][0] <= i: Qo.pop(0)[1](); done += 1
    stamp(); stamp(k=2)
    for _, f in Qo: f()
    for f in cvt(4): f()
    for r in range(4):
        e(f"buffer_store_short{'_d16_hi' if r % 2 else ''} v{pk+8+r//2}, v{vOUT2}, {srd(sOUT)}, s{sOB2} offen offset:{128 + r*1280} {opt['outaux']}")
    st(1)[0]()
def out_tail():
    stamp(); stamp(k=2)
    if opt["enc"]: stamp(True)
    ac = vACC2 + 20
    pk = vH + 64
    def cvt(j):
        for r in range(2): e(f"v_cvt_pk_bf16_f32 v{pk+2*j+r}, v{ac+4*j+2*r}, v{ac+4*j+2*r+1}")
    def swp(b):
        e(f"v_permlane32_swap_b32 v{pk+4*b}, v{pk+4*b+2}")
        e(f"v_permlane32_swap_b32 v{pk+4*b+1}, v{pk+4*b+3}")
        if opt["enc"]:
            e("s_waitcnt lgkmcnt(0)")
            e(f"v_lshrrev_b32 v{vT+1}, 4, v{vL16}")
            for r in range(4):
                i = 4*b + r
                e(f"v_mov_b32 v{vT}, s{72+2*i}")
                e("s_mov_b32 exec_lo, 0")
                e(f"v_mov_b32 v{vT}, s{72+2*min(i+8, 14)}")
                e("s_mov_b32 exec_lo, -1")
                e(f"v_lshrrev_b32 v{vT}, v{vT+1}, v{vT}")
                e(f"v_bfi_b32 v{pk+4*b+r}, 1, v{vT}, v{pk+4*b+r}")
        if opt["ofk"]:
            e(f"buffer_store_dwordx4 {vr(pk+4*b,4)}, v{vL16b if b else vOUT}, {srd(sOUT)}, s{sOB} offen {opt['outaux']}"); return
        e(f"buffer_store_dwordx4 {vr(pk+4*b,4)}, v{vOUT}, {srd(sOUT)}, s{sOB} offen offset:{64*b} {opt['outaux']}")
    if opt["bp"]:
        assert not opt["enc"]
        def sw(b):
            e(f"v_permlane32_swap_b32 v{pk+4*b}, v{pk+4*b+2}")
            e(f"v_permlane32_swap_b32 v{pk+4*b+1}, v{pk+4*b+3}")
        def bp(b, n):
            for r in range(n):
                e(f"ds_bpermute_b32 v{pk+16+4*b+r}, v{vL16b}, v{pk+4*b+r}"); LG.issue(f"bp{b}")
        def st(b):
            LG.wait(f"bp{b}")
            if b < 2: e(f"buffer_store_dwordx4 {vr(pk+16+4*b,4)}, v{vOUT}, {srd(sOUT)}, s{sOB} offen offset:{64*b} {opt['outaux']}")
            else: e(f"buffer_store_dwordx2 {vr(pk+24,2)}, v{vOUT2}, {srd(sOUT)}, s{sOB2} offen offset:128 {opt['outaux']}")
        e("s_nop 3")
        if opt["t4"]:
            cvt(0); cvt(1); cvt(2); sw(0); cvt(3); bp(0, 4); sw(1); cvt(4); bp(1, 4)
            for r in range(4):
                e(f"buffer_store_short{'_d16_hi' if r % 2 else ''} v{pk+8+r//2}, v{vOUT2}, {srd(sOUT)}, s{sOB2} offen offset:{128 + r*1280} {opt['outaux']}")
            st(0); st(1)
            return
        cvt(0); cvt(1); cvt(2); sw(0); cvt(3); bp(0, 4); cvt(4); sw(1); bp(2, 2); bp(1, 4); st(0); st(2); st(1)
        return
    e("s_nop 3")
    cvt(0); cvt(1); cvt(2); swp(0); cvt(3); cvt(4); swp(1)
    e(f"buffer_store_dwordx2 {vr(pk+8,2)}, v{vOUT2}, {srd(sOUT)}, s{sOB2 if D1 else sOB} offen offset:128 {opt['outaux']}")
def phase2_c():
    B1, B2, MA = opt["b1"], opt["b2"], opt["madd"]
    hp = opt["hpre"]
    ML = []
    WD = list(WDL)
    for i in range(48):
        g = [hload]
        k = 12 - len(WD)
        if WD and (i >= opt["w5s"] + (k - (12 - len(WDL))) * opt["w5k"] or i >= 24 + k): g.append(WD.pop(0))
        ML.append(g)
    assert not WD
    TL = []
    while len(TDONE) < 12: TL += tgroup_ops(len(TDONE))
    pre = [f for g in ML[:hp] for f in g]
    if opt["rcl"]:
        assert len(pre) == hp
        pre.append(r_check)
    for f in merge(pre, TL): f()
    del ML[:hp]
    LG.drain()
    stamp()
    A5 = 240
    def wr(blk, jj, src):
        def f():
            e(f"ds_write_b128 v{vRW if blk < 2 else vRW2}, {src} offset:{(blk%2)*32768 + jj*1024}"); LG.issue("red")
        return f
    def rd(pp, j, dst):
        def f():
            e(f"ds_read_b128 {vr(dst, 4)}, v{vRR+pp} offset:{j*1024}"); LG.issue(f"rr{pp}{j}")
        return f
    for p in range(4):
        ac = vACC2 + (p % 2) * 20
        pa = vACC2 + ((p-1) % 2) * 20
        NM = [4, 4, 7, 5][p]
        slots = {(n, j): [] for n in range(12) for j in range(NM)}
        def put(i0, step, fs):
            for k, f in enumerate(fs):
                i = i0 + k * step
                slots[(i // NM, i % NM)].append(f)
        if p > 0:
            ws = [wr(p-1, jj, vr(pa+4*jj, 4)) for jj in range(4)]
            if p == 3: ws += [wr(b, 4, ar(A5+4*b, 4)) for b in range(3)]
            put(NM, 2, ws)
            if p == 3: assert NM + 2*6 < B2 * NM
        if p == 2:
            assert B1 >= 4
            put(B1 * NM, 1, [rd(pp, j, vH + pp*48 + 4*j) for j in range(4) for pp in range(2)])
            def mk(i):
                def a():
                    LG.wait(f"rr1{i//4}")
                    e(f"v_add_f32 v{pa+i}, v{vH+i}, v{vH+48+i}")
                return a
            put(8 * NM, 1, [mk(i) for i in range(16)])
        if p == 3:
            put(B2 * NM, 1, [rd(pp, 4, vH + 16 + 4*pp) for pp in range(3)] + [rd(2, j, vH + 4*j) for j in range(4)])
            def mk(i):
                def a():
                    LG.wait(f"rr{1 + i//4}4")
                    e(f"v_add_f32 v{vH+16+i%4}, v{vH+16+i%4}, v{vH+20+i}")
                return a
            put((MA - 2) * NM, 1, [mk(i) for i in range(8)])
            assert MA - 2 >= B2 + 2
        for n in range(12):
            if (p == 2 and n == B1) or (p == 3 and n == B2):
                if p == 3: allc_check(); stamp(k=2)
                LG.drain(); e("s_barrier")
                if p == 3: stamp(k=2)
            VM.wait(f"h{p}_{n}")
            if n == 0 or (n == 6 and p < 3): stamp(k=2)
            def madd(j):
                LG.wait(f"rr2{j}")
                for r in range(4): e(f"v_add_f32 v{ac+4*j+r}, v{ac+4*j+r}, v{vH+4*j+r}")
            mid = p == 3 and n == MA
            if mid: e("s_nop 3"); madd(0)
            g = ML.pop(0) if ML else []
            for j in range(NM):
                if j < 4 or p == 3:
                    d = vr(ac+4*j, 4); b = p
                    c = "0" if n == 0 and (p < 3 or j == 4) else d
                else:
                    b = (j - 2) % 3
                    d = ar(A5+4*b, 4); c = "0" if n == 0 else d
                    assert not any(f is not hload and f.__defaults__[0] == n for gg in ML + [g] for f in gg), n
                    VM.wait(f"w{n}")
                if mid:
                    if j < 4: madd(j+1)
                    else: e("s_nop 0")
                e(f"v_mfma_f32_16x16x32_bf16 {d}, {ar(n*20+4*min(j,4),4)}, {vr(vH+(b*12+n)*4,4)}, {c}")
                if g and j in (opt["hj"], 3): g.pop(0)()
                for f in slots[(n, j)]: f()
            assert not g
    out_tail()
def phase2_ab():
    OA = opt["owna"]
    NE = opt["ne"]; NL = 12 - NE
    items = [(p, n) for p in range(3) for n in range(NE)] + [(3, n) for n in range(OA)]
    NA = len(items)
    items += [(p, n) for p in range(3) for n in range(NE, 12)] + [(3, n) for n in range(OA, 12)]
    NS = 36; vH2 = 112
    acc = lambda p, j: 24 + 20*p + 4*j
    hp = opt["hpre"]
    HI = list(range(48))
    seen = set()
    I0 = 0
    def own_mf(k):
        if not opt["own"] or k != opt["omp"]: return
        VM.wait("w0")
        for p in range(4):
            LG.wait(f"or{p}")
            for j in range(5):
                e(f"v_mfma_f32_16x16x32_bf16 {vr(acc(p,j),4)}, {ar(4*j,4)}, {vr(vH2+p*4,4)}, 0")
    if opt["own"]:
        items = [(p, 0) for p in range(4)] + [(p, n) for p in range(4) for n in range(1, 12)]
        HI = HI[4:]; I0 = 4; seen = {0, 1, 2, 3}
        for p in range(4):
            e(f"ds_read_b128 {vr(vH2+p*4, 4)}, v{vOW+2} offset:{p*1024}"); LG.issue(f"or{p}")
    def hl():
        if not HI: return
        i = HI.pop(0); p, n = items[i]
        if i == NA and not opt["dfw"]:
            spin_check("hpb", vPOLL, vPA, "pollB", sPOL, opt["nopoll"]); stamp(k=7)
        e(f"buffer_load_dwordx4 {vr(vH2 + (i % NS)*4, 4)}, v{vHB+p}, {srd(sH)}, s{sSIG+n} offen {opt['haux'].replace('-','')}"); VM.issue(f"h{i}")
    if opt["pae"] < 0:
        for f in take(max(0, len(W2L) - opt["pa"])): f()
        e(f"buffer_load_dword v{vPOLL}, v{vPA}, {srd(sH)}, s{sPOL} offen sc1"); VM.issue("poll")
        for f in take(opt["ec"]): f()
    own_mf(0)
    VM.wait("poll")
    stamp(); stamp(k=7)
    spin_check("hp", vPOLL, vPA, "poll", sPOL, opt["nopoll"])
    stamp(); stamp(k=2); stamp(k=7)
    e(f"s_add_u32 s{sPOL}, s{sPOL}, {FLB}")
    allc_load()
    for _ in range(hp): hl()
    for f in take(opt["wsk"]): f()
    own_mf(1)
    stamp()
    slots = {(i, j): [] for i in range(48) for j in range(5)}
    if opt["own"]: NA = 37
    L3 = NA + 3*NL
    for p in range(3):
        i0 = NA + NL*(p+1) if NL else NE*(p+1)
        if opt["own"]: i0 = 4 + 11*(p+1)
        for jj, (di, j) in enumerate([(1, 0), (1, 2), (1, 4), (2, 1), (2, 3)]):
            def w(jj=jj, p=p):
                e(f"ds_write_b128 v{vRW}, {vr(acc(p,jj),4)} offset:{p*5120 + jj*1024}"); LG.issue("red")
            slots[(i0 + di, j)].append(w)
    IB = L3 + opt["rb"]
    k = 0
    rest = 48 - IB
    assert rest >= 1
    rds = []
    for j in range(5):
        for pp in range(3):
            def f(pp=pp, j=j):
                e(f"ds_read_b128 {vr(acc(pp,j), 4)}, v{vRR+pp} offset:{j*1024}"); LG.issue(f"rr{j}")
            rds.append(f)
    per = 1 if rest >= 7 else 3
    for k, f in enumerate(rds): slots[(IB + k // per // 5, k // per % 5)].append(f)
    adds = []
    for j in range(5):
        for pp in (1, 2):
            for r in (0, 2):
                def a(j=j, pp=pp, r=r):
                    LG.wait(f"rr{j}")
                    if opt["epk"]: e(f"v_pk_add_f32 {vr(acc(0,j)+r,2)}, {vr(acc(0,j)+r,2)}, {vr(acc(pp,j)+r,2)}")
                    else:
                        for z in range(2): e(f"v_add_f32 v{acc(0,j)+r+z}, v{acc(0,j)+r+z}, v{acc(pp,j)+r+z}")
                adds.append(a)
    MA = 47 if rest >= 7 else None
    if MA:
        a0 = (MA - 3) * 5 - 5
        for k, f in enumerate(adds): slots[((a0 + k) // 5, (a0 + k) % 5)].append(f)
    for i, (p, n) in enumerate(items):
        if i < I0: continue
        if i == IB:
            allc_check(); stamp(k=2)
            LG.drain(); e("s_barrier")
            stamp(k=2)
        assert i not in HI and not any(f.__defaults__[0] == n for f in W2L), (i, n)
        late = max((f"h{i}", f"w{n}"), key=lambda t: len(VM.q) - 1 - VM.q[::-1].index(t) if t in VM.q else -1)
        VM.wait(late)
        if i % 8 == 0: stamp(k=2)
        def madd(j):
            if opt["epk"]:
                for r in (0, 2): e(f"v_pk_add_f32 {vr(acc(3,j)+r,2)}, {vr(acc(3,j)+r,2)}, {vr(acc(0,j)+r,2)}")
            else:
                for r in range(4): e(f"v_add_f32 v{acc(3,j)+r}, v{acc(3,j)+r}, v{acc(0,j)+r}")
        mid = i == MA
        if mid: e("s_nop 3"); madd(0)
        for j in range(5):
            c = vr(acc(p,j), 4) if p in seen else "0"
            if mid:
                if j < 4: madd(j+1)
                else: e("s_nop 1")
            e(f"v_mfma_f32_16x16x32_bf16 {vr(acc(p,j),4)}, {ar(n*20+4*j,4)}, {vr(vH2+(i % NS)*4,4)}, {c}")
            if j == opt["hj"]: hl()
            if j == 3 and i % opt["wr"] == 0:
                for f in take(1): f()
            if j == 4 and i == opt["pb"] and not opt["dfw"]:
                e(f"buffer_load_dword v{vPOLL}, v{vPA}, {srd(sH)}, s{sPOL} offen sc1"); VM.issue("pollB")
            for f in slots[(i, j)]: f()
        seen.add(p)
    stamp(); stamp(k=2); stamp(k=7)
    if opt["enc"]: stamp(True)
    ac = acc(3, 0)
    pk = vH2 + 64
    if not MA:
        for f in adds: f()
        for j in range(5): madd(j)
    def cvt(j):
        for r in range(2): e(f"v_cvt_pk_bf16_f32 v{pk+2*j+r}, v{ac+4*j+2*r}, v{ac+4*j+2*r+1}")
    def swp(b):
        e(f"v_permlane32_swap_b32 v{pk+4*b}, v{pk+4*b+2}")
        e(f"v_permlane32_swap_b32 v{pk+4*b+1}, v{pk+4*b+3}")
        if opt["enc"]:
            e("s_waitcnt lgkmcnt(0)")
            e(f"v_lshrrev_b32 v{vT+1}, 4, v{vL16}")
            for r in range(4):
                i = 4*b + r
                e(f"v_mov_b32 v{vT}, s{72+2*i}")
                e("s_mov_b32 exec_lo, 0")
                e(f"v_mov_b32 v{vT}, s{72+2*min(i+8, 14)}")
                e("s_mov_b32 exec_lo, -1")
                e(f"v_lshrrev_b32 v{vT}, v{vT+1}, v{vT}")
                e(f"v_bfi_b32 v{pk+4*b+r}, 1, v{vT}, v{pk+4*b+r}")
        e(f"buffer_store_dwordx4 {vr(pk+4*b,4)}, v{vOUT}, {srd(sOUT)}, s{sOB} offen offset:{64*b} {opt['outaux']}")
    e("s_nop 3")
    cvt(0); cvt(1); cvt(2); swp(0); cvt(3); cvt(4); swp(1)
    e(f"buffer_store_dwordx2 {vr(pk+8,2)}, v{vOUT2}, {srd(sOUT)}, s{sOB} offen offset:128 {opt['outaux']}")
assert opt["tail"]
if opt["ab"] or opt["dfw"]: phase2_ab()
elif opt["c5"]: phase2_c()
else: phase2_new()
e(f"s_or_b32 s{sT0}, s{sW}, s2")
e(f"s_cmp_lg_u32 s{sT0}, 0")
e("s_cbranch_scc1 L_nobump")
e(f"s_add_u32 s{sE}, s{sE}, 1")
e(f"v_mov_b32 v{vT}, s{sE}")
e(f"s_mov_b32 s{sT0}, {EP}")
e("s_mov_b64 exec, 1")
e(f"buffer_store_dword v{vT}, off, {srd(sH)}, s{sT0}")
e("s_mov_b64 exec, -1")
e("L_nobump:")
if opt["enc"]: sys.stderr.write(f"enc stamps {NST[0]}\n")
if opt["stamps"] and not opt["enc"]:
    e("s_waitcnt vmcnt(0)")
    stamp(k=-1); stamp(True)
    ns = NST[0]
    assert 72 + 2*ns <= 102
    e("s_waitcnt lgkmcnt(0)")
    if opt["amp"] >= 0 and opt["ampa"]:
        a = opt["amp"] if opt["amp"] < ns else ns - 2
        e("s_load_dwordx2 s[64:65], s[0:1], 32")
        e("s_not_b32 s60, s74")
        e("v_mov_b32 v24, s60")
        e("v_mov_b32 v25, 0")
        e("s_mov_b64 exec, 1")
        e("s_waitcnt lgkmcnt(0)")
        e("s_lshr_b32 s60, s2, 3")
        e(f"s_or_b32 s60, s60, s{sW}")
        e("s_cbranch_scc1 L_ampn")
        e("global_atomic_umax v25, v24, s[64:65] sc1")
        e("s_waitcnt vmcnt(0)")
        e("L_ampn:")
        if opt["ampw"] >= 0:
            e(f"s_cmp_lg_u32 s2, {opt['ampw']}")
            e("s_cbranch_scc1 L_end")
        if opt["ampx"] >= 0:
            e("s_and_b32 s60, s2, 7")
            e(f"s_cmp_lg_u32 s60, {opt['ampx']}")
            e("s_cbranch_scc1 L_end")
        if opt["ampl"] >= 0:
            e("s_lshr_b32 s60, s2, 3")
            e(f"s_cmp_lg_u32 s60, {opt['ampl']}")
            e("s_cbranch_scc1 L_end")
        e("s_mov_b32 s61, 200000")
        e("L_amp0:")
        e("s_memrealtime s[62:63]")
        e("s_sub_u32 s61, s61, 1")
        e("s_cbranch_scc1 L_end")
        e("s_waitcnt lgkmcnt(0)")
        e("s_sub_u32 s62, s62, s74")
        e("s_cmp_lt_u32 s62, 1500")
        e("s_cbranch_scc1 L_amp0")
        e("global_load_dword v24, v25, s[64:65] sc0 sc1")
        e("s_waitcnt vmcnt(0)")
        e("v_readfirstlane_b32 s66, v24")
        e("s_not_b32 s66, s66")
        e(f"s_sub_u32 s60, s{72+2*a}, s66")
        e(f"s_min_u32 s60, s60, 5000")
        e(f"s_mul_i32 s60, s60, {opt['ampk']}")
        e(f"s_add_u32 s60, s60, {opt['ampc']}")
        e(f"s_min_u32 s60, s60, 50000")
        e(f"s_mov_b32 s61, 200000")
        e("L_amp:")
        e("s_memrealtime s[62:63]")
        e("s_sub_u32 s61, s61, 1")
        e("s_cbranch_scc1 L_end")
        e("s_waitcnt lgkmcnt(0)")
        e("s_sub_u32 s62, s62, s66")
        e("s_cmp_lt_u32 s62, s60")
        e("s_cbranch_scc1 L_amp")
        e("s_branch L_end")
    elif opt["amp"] >= 0:
        if opt["ampw"] >= 0:
            e(f"s_cmp_lg_u32 s2, {opt['ampw']}")
            e("s_cbranch_scc1 L_end")
        a = opt["amp"] if opt["amp"] < ns else ns - 2
        e(f"s_sub_u32 s60, s{72+2*a}, s{72+2*opt['ampb']}")
        e(f"s_mul_i32 s60, s60, {opt['ampk']}")
        e(f"s_lshr_b32 s60, s60, {opt['amps']}")
        e(f"s_min_u32 s60, s60, 50000")
        e(f"s_mov_b32 s61, 200000")
        e("L_amp:")
        e("s_memrealtime s[62:63]")
        e("s_sub_u32 s61, s61, 1")
        e("s_cbranch_scc1 L_end")
        e("s_waitcnt lgkmcnt(0)")
        e(f"s_sub_u32 s62, s62, s{72+2*(ns-1)}")
        e("s_cmp_lt_u32 s62, s60")
        e("s_cbranch_scc1 L_amp")
        e("s_branch L_end")
    if opt["rt"]:
        e(f"s_lshl_b32 s{sT0}, s2, 2")
        e(f"s_add_u32 s{sT0}, s{sT0}, s{sW}")
        e(f"s_mul_i32 s{sT0}, s{sT0}, {ns*8}")
    else:
        e(f"s_cmp_lg_u32 s{sW}, {opt['stamps']-1}")
        e("s_cbranch_scc1 L_end")
        e(f"s_mul_i32 s{sT0}, s2, {ns*8}")
    e("s_mov_b64 exec, 1")
    e(f"s_add_u32 s{sT0}, s{sT0}, {0x8000000 - (opt['wso'] << 20)}")
    e(f"v_mov_b32 v{vT}, s{sT0}")
    for i in range(ns):
        e(f"v_mov_b32 v24, s{72+2*i}"); e(f"v_mov_b32 v25, s{73+2*i}")
        e(f"global_store_dwordx2 v{vT}, v[24:25], s[12:13] offset:{i*8}"); e("s_nop 1")
    sys.stderr.write(f"nstamps {ns}\n")
LATE += OOL
if LATE:
    e("s_endpgm")
    O.extend(LATE)
e("L_end:")

hdr = f"""; FFN out = silu(x @ w1) @ w2, one launch, 256 workgroups (one per CU).
; @launch grid=(256,1,1) block=(256,1,1) lds=163840
.amdgcn_target "amdgcn-amd-amdhsa--gfx950"
.text
.globl {NAME}
.p2align 8
.type {NAME},@function
{NAME}:
"""
ftr = f"""s_endpgm
.section .rodata,"a"
.p2align 6
.amdhsa_kernel {NAME}
  .amdhsa_next_free_vgpr 512
  .amdhsa_next_free_sgpr 102
  .amdhsa_accum_offset 256
  .amdhsa_group_segment_fixed_size 0
  .amdhsa_kernarg_size 48
  .amdhsa_user_sgpr_count 2
  .amdhsa_user_sgpr_kernarg_segment_ptr 1
  .amdhsa_system_sgpr_workgroup_id_x 1
.end_amdhsa_kernel
"""
def sizes(lines):
    import subprocess, tempfile, os, re
    d = tempfile.mkdtemp()
    t = hdr + "\n".join(f"Z{i}:\n{l}" for i, l in enumerate(lines)) + "\nL_w1x:\n" + ftr
    for k in range(1, 4):
        if f"L_w{k}:" not in lines: t = t.replace(f"L_w{k}\n", "L_w1x\n")
    open(d + "/a.s", "w").write(t)
    r = subprocess.run(["clang", "-x", "assembler", "-target", "amdgcn-amd-amdhsa", "-mcpu=gfx950", "-c", d + "/a.s", "-o", d + "/a.o"], capture_output=True, text=True)
    assert r.returncode == 0, r.stderr
    import struct
    b = open(d + "/a.o", "rb").read()
    shoff = struct.unpack_from("<Q", b, 0x28)[0]; shn = struct.unpack_from("<H", b, 0x3c)[0]
    sec = [struct.unpack_from("<IIQQQQIIQQ", b, shoff + 64*i) for i in range(shn)]
    sy = [x for x in sec if x[1] == 2][0]; st = sec[sy[6]]
    ad = {}
    for i in range(sy[5] // 24):
        n, _, _, _, v, _ = struct.unpack_from("<IBBHQQ", b, sy[4] + 24*i)
        nm = b[st[4]+n:b.index(b"\0", st[4]+n)].decode()
        if re.fullmatch(r"Z\d+", nm): ad[int(nm[1:])] = v
    return ad
if opt["wu"] >= 0:
    assert opt["al"]
    for k in range(1, 4):
        ad = sizes(O)
        i = min(j for j in range(len(O)) if ad[j] >= 4096*k and not O[j].startswith(".") and not O[j].endswith(":"))
        O[i:i] = [f"L_w{k}:", "s_cbranch_execz L_wr"]
        sys.stderr.write(f"page {k}: {O[i-1]} | {O[i+2]}\n")
    if opt["stamps"]: sys.stderr.write(f"nstamps {NST[0]}\n")
body = "\n".join(("" if l.endswith(":") else "    ") + l.rstrip() for l in O)
open(sys.argv[1], "w").write(hdr + body + "\n" + ftr)
```

```python
import sys
from haz import fix
NAME = "standalone__dense_activation_silu__prompt_kernel"
opt = dict(sw1=0, sw2=0, emo=0, emaux='sc1', ampc=2000, ampa=0, ampx=-1, ampl=-1, amp=-1, ampb=1, ampk=4, amps=0, ampw=-1, tpre=0, fpre=0, rpl=-1, rtab='', ttab='', pfs='', skd=0, sk5=0, al=0, wu=-1, pat='', pat1='', hid=0, r16=0, ro=0, sil=0, sild=2, silk='1', e7=0, e7a=10, e7b=10, fp='', qm=0, swab=0, wtc=0, rmap=0, nw=-1, wx='', wxp=99, acb=0, acp=-1, wq='', rds=1, ad0=8, t4=0, k4=0, k2=3, fr=3, fd=2, a4=0, bp=0, ofk=0, w5aux='sc1', rpk=0, pl2=7, nom=0, owv=1, ow=0, owp=2, ada=7, wb64=0, wg0=3, wgs=2, smd=0, dst=-1, dn=4, st0=0, nhw=0, wtx=0, tfm=0, tpm=0, tsil=0, c5=0, w5s=8, w5k=2, rcl=0, w5d=0, tin=0, sw=-1, sws=-1, swp=0, swn=15, ems=1, pqd=0, tlate=0, tmix=1, wt=-1, wts=-1, wtp=99, wth=0, wtaux='', d1=0, d7=0, w5p=4, tl=8, rpq=0, waux='', es=-1, esaux='sc1', ot=-1, otm=1, enc=0, w0p=0, own=0, omp=0, dfw=0, ne=8, clr=-1, clrs='', spec=0, fw=12, wl=0, rsp=99, rrp=0, fb=0, tch=0, la=4, tp0=0, tpos=8, th=1, ns=3, n7=0, rcs=8, epk=1, fk=0, ost=0, pae=-1, wsk=0, afs=0, ab=0, afp=0, pa=20, pb=6, wr=1, owna=0, rb=4, skipw=0, m16=0, rtm=0, po="", rsaux="sc1", emu="", emv=1, fs=128, dw=8, eq=0, ec=4, epre=16, eil="h12w9", pfm=3, stamps=0, rot=1, rot2=1, pf=1, outaux="", map=2, raux="nt", xaux="", haux="sc1", hsaux="sc1", hs2="", wb=0, wso=0, sp=0, spg="", nord=0, nomf1=0, norp=0, pk=1, tail=1, b1=4, b2=4, madd=8, pt=0, fst=0, tab="x037", nost=0, novalu=0, nomf2=0, noh=0, hj=1, w2aux="sc1", w1aux="",
           sa=0, ma=10, sb=0, mb=10, mx=0, n8=8, n9=8, nb=0, post=0, pollq=8, hpre=8, sep=0, sts=0, rpos=0, rls=0, rjs=2, rpp=0, rps=7, rck=0, nopoll=0, rfs=4, sl=0, head=50, nf0=4, pre3=0, rt=0, own2=2, ntst=10, mid=2, xlin=0, nor=0)
for a in sys.argv[2:]:
    k, v = a.split("=")
    assert k in opt, k
    opt[k] = int(v) if v.lstrip("-").isdigit() else v.replace("_", " ")
if opt["own"]: opt["dfw"] = 1; opt["ne"] = 12; assert opt["fb"] and opt["own2"] == 2
D1 = opt['d1']
RPW = opt['rfs'] >= 10
if RPW: assert D1 and opt['rpk']
R2 = '2' in str(opt['rtab'])
if R2: assert D1 and opt['rpk'] and not RPW and not opt['ow']
OW = opt['ow']
if OW: assert D1 and opt['own2'] == 2 and opt['post'] <= 12 and not opt['c5'] and not opt['w5d'] and not opt['smd'] and str(opt['nb']) == '0'
if D1: assert not (opt['own'] or opt['ab'] or opt['dfw'] or opt['spec'] or opt['eq'] or opt['tch'] or opt['po']) and opt['fb'] and opt['ns'] == 3
O = []
def e(s): O.append(s)
NST = [0]
def stamp(rt=False, k=0):
    if not opt["stamps"]: return
    if not rt and NST[0] > 1 and k != opt["sts"] and k != -1: return
    i = NST[0]; NST[0] += 1
    e(f"s_memrealtime s[{72+2*i}:{73+2*i}]" if rt or opt["rt"] or opt["rtm"] else f"s_memtime s[{72+2*i}:{73+2*i}]")

class Q:
    def __init__(s, name, mx): s.name = name; s.mx = mx; s.q = []
    def issue(s, tag): s.q.append(tag)
    def wait(s, tag):
        if tag not in s.q: return
        i = len(s.q) - 1 - s.q[::-1].index(tag)
        n = min(len(s.q) - 1 - i, s.mx)
        e(f"s_waitcnt {s.name}({n})")
        s.q = s.q[len(s.q)-n:] if n else []
    def drain(s):
        e(f"s_waitcnt {s.name}(0)"); s.q = []
VM = Q("vmcnt", 63); LG = Q("lgkmcnt", 15)

FL = 0x600000; EP = 0x608000; RFL = 0x610000; W2F = 0x620000; HREC = 0x800000
if opt['spec']: FL = 0x800000; HREC = 0x820000
FS = opt["fs"]
if FS > 128: FL = 0x800000; HREC = FL + 256 * FS
FLB = 0x200000
if opt["ab"]: HREC = 0x808000
RED = 98304; RB = 98304 if opt['ns'] == 3 else 131072; CNT = 159744
NSL = opt['ns']
sX, sW1, sW2, sOUT, sH = 16, 20, 24, 28, 32
(sW, sMT, sFT, sKX, sKW, sXB, sWB, sXE, sM0, sT0, sT1, sE, sTAG, sHS, sHS2, sFLG, sPOL, sW2B, sOWN, sROT,
 sRS, sRD, sWO, sL2E) = range(36, 60)
sSIG = 60
sPK = 4; sOB = 3; sRFL = 14; sSPIN = 15
vL16 = 1; vL16b = 2; vOUT = 3; vOUT2 = 4; vRW = 5; vRP = 6; vHS = 7
vPOLL = 8; vL4 = 9; vPA = 19
vRR = 10
vHB = 13
vT = 17
vCN = 20; vONE = 21; vAV = 22; vAC = 23
vDX = 24; vDW = 26; vDR = 32
vA = 34; vB = 36
vRA = 44
vTM = 46
vACC1 = 64; vAF = 112; vBF = 160; vS = 176; vRF = 192
vWD = 56; vWT = 60; sW5B = 6; sOB2 = 7; vRW2 = 20
vH = 64; vACC2 = 24; vOW = 240; OWN = 32768; sHS1 = 6
def mf2(d, n, j, b, c):
    a = ar(n*20+4*j, 4)
    if j == 4 and opt["t4"]: a, b = b, a
    if opt["sw2"] == 1 and j < 4: a, b = b, a
    if opt["sw2"] == 2 and j == 4: a, b = b, a
    e(f"v_mfma_f32_16x16x32_bf16 {d}, {a}, {b}, {c}")
def srd(r): return f"s[{r}:{r+3}]"
def vr(r, n): return f"v[{r}:{r+n-1}]"
def ar(r, n): return f"a[{r}:{r+n-1}]"
def capture(fn):
    global O
    sv = O; O = []; fn(); r = O; O = sv; return r

e("s_cmp_ge_u32 s2, 256")
e("s_cbranch_scc1 L_end")
stamp(True); stamp()
e("s_load_dwordx8 s[4:11], s[0:1], 0")
e("s_load_dwordx2 s[12:13], s[0:1], 40")
L, Wv = vTM, vTM+1
t0, t1, t2, t3 = vTM+2, vTM+3, vTM+4, vTM+5
e(f"v_and_b32 v{L}, 63, v0")
e(f"v_lshrrev_b32 v{Wv}, 6, v0")
e(f"v_lshlrev_b32 v{vL16}, 4, v{L}")
e(f"v_readfirstlane_b32 s{sW}, v{Wv}")
if opt["pf"]:
    e("s_getpc_b64 s[14:15]")
    e("L_pc:")
    if opt["pfs"]:
        tb = (str(opt["pfs"]).lstrip("x") + "0" * 32)[:32]
        tv = sum(int(c) << (2*i) for i, c in enumerate(tb))
        e(f"s_lshr_b32 s{sT0}, s2, 2")
        e(f"s_and_b32 s{sT0}, s{sT0}, 62")
        if tv >> 32:
            e(f"s_mov_b32 s{sSIG}, {tv & 0xffffffff}")
            e(f"s_mov_b32 s{sSIG+1}, {tv >> 32}")
            e(f"s_lshr_b64 s[{sSIG}:{sSIG+1}], s[{sSIG}:{sSIG+1}], s{sT0}")
        else:
            e(f"s_lshr_b64 s[{sSIG}:{sSIG+1}], {tv}, s{sT0}")
        e(f"s_and_b32 s{sT0}, s{sSIG}, 3")
    else:
        e(f"s_lshr_b32 s{sT0}, s2, 3")
        e(f"s_and_b32 s{sT0}, s{sT0}, {opt['pfm']}")
    e(f"s_lshl_b32 s{sT0}, s{sT0}, 12")
    e(f"v_lshl_add_u32 v{t0}, v0, 4, s{sT0}")
    e(f"v_min_u32 v{t0}, L_end-L_pc-16, v{t0}")
    e(f"global_load_dwordx4 v[252:255], v{t0}, s[14:15]")
    VM.issue("pf")
fa = opt["map"]
e(f"s_and_b32 s{sT0}, s2, 7")
e(f"s_lshr_b32 s{sT1}, s2, 3")
e(f"s_and_b32 s{sFT}, s{sT1}, {(1<<fa)-1}")
e(f"s_lshr_b32 s{sMT}, s{sT1}, {fa}")
if opt["rot"] == 3:
    tb = str(opt["tab"]).lstrip("x")
    tv = sum(int(c) << (4*i) for i, c in enumerate((tb * 16)[:16]))
    e(f"s_mul_i32 s{sKX}, s{sMT}, {opt['ma']}")
    e(f"s_mul_i32 s{sT1}, s{sFT}, {opt['mb']}")
    e(f"s_add_u32 s{sKX}, s{sKX}, s{sT1}")
    e(f"s_lshl_b32 s{sKX}, s{sKX}, 2")
    e(f"s_mov_b32 s{sSIG}, {tv & 0xffffffff}")
    e(f"s_mov_b32 s{sSIG+1}, {tv >> 32}")
    e(f"s_lshr_b64 s[{sSIG}:{sSIG+1}], s[{sSIG}:{sSIG+1}], s{sKX}")
    e(f"s_and_b32 s{sKX}, s{sSIG}, 15")
elif opt["rot"]:
    e(f"s_lshr_b32 s{sKX}, s{sMT}, {opt['sa']}")
    e(f"s_mul_i32 s{sKX}, s{sKX}, {opt['ma']}")
    e(f"s_lshr_b32 s{sT1}, s{sFT}, {opt['sb']}")
    e(f"s_mul_i32 s{sT1}, s{sT1}, {opt['mb']}")
    e(f"s_add_u32 s{sKX}, s{sKX}, s{sT1}")
    if opt['mx']:
        e(f"s_mul_i32 s{sT1}, s{sT0}, {opt['mx']}")
        e(f"s_add_u32 s{sKX}, s{sKX}, s{sT1}")
    e(f"s_lshr_b32 s{sKX}, s{sKX}, 2")
    e(f"s_mul_i32 s{sT1}, s{sKX}, 205")
    e(f"s_lshr_b32 s{sT1}, s{sT1}, 11")
    e(f"s_mul_i32 s{sT1}, s{sT1}, 10")
    e(f"s_sub_u32 s{sKX}, s{sKX}, s{sT1}")
else:
    e(f"s_mov_b32 s{sKX}, 0")
if opt["ab"]:
    e(f"s_lshl_b32 s{sROT}, s{sMT}, 2")
elif opt["rot2"] == 3:
    e(f"s_and_b32 s{sROT}, s{sMT}, 1")
    e(f"s_mul_i32 s{sROT}, s{sROT}, 6")
elif opt["rot2"] == 4:
    e(f"s_lshr_b32 s{sROT}, s{sMT}, 1")
    e(f"s_mul_i32 s{sROT}, s{sROT}, 3")
elif opt["rot2"] == 5:
    e(f"s_and_b32 s{sROT}, s{sMT}, 3")
elif opt["rot2"] == 6:
    e(f"s_mul_i32 s{sROT}, s{sMT}, 3")
    e(f"s_lshr_b32 s{sROT}, s{sROT}, 3")
    e(f"s_lshl_b32 s{sROT}, s{sROT}, 2")
elif opt["rot2"] == 7:
    e(f"s_mul_i32 s{sROT}, s{sMT}, 12")
    e(f"s_lshr_b32 s{sROT}, s{sROT}, 3")
    e(f"s_bitcmp1_b32 s2, 1")
    e(f"s_addc_u32 s{sROT}, s{sROT}, 0")
elif opt["rot2"] == 2:
    e(f"s_and_b32 s{sROT}, s{sMT}, 3")
    e(f"s_mul_i32 s{sROT}, s{sROT}, 3")
elif opt["rot2"]:
    e(f"s_mul_i32 s{sROT}, s{sMT}, 12")
    e(f"s_lshr_b32 s{sROT}, s{sROT}, {5-fa}")
else:
    e(f"s_mov_b32 s{sROT}, 0")
e(f"s_and_b32 s{sT1}, s{sT0}, {(8>>fa)-1}")
e(f"s_lshl_b32 s{sT1}, s{sT1}, {fa}")
e(f"s_add_u32 s{sFT}, s{sFT}, s{sT1}")
e(f"s_lshr_b32 s{sT1}, s{sT0}, {3-fa}")
e(f"s_lshl_b32 s{sT1}, s{sT1}, {5-fa}")
e(f"s_add_u32 s{sMT}, s{sMT}, s{sT1}")
e(f"s_mul_i32 s{sXB}, s{sMT}, 81920")
e(f"s_mul_i32 s{sWB}, s{sFT}, 384")
e(f"s_add_u32 s{sXE}, s{sXB}, 1280")
e(f"s_mul_i32 s{sKW}, s{sKX}, {64*3072}")
e(f"s_add_u32 s{sKW}, s{sKW}, s{sWB}")
e(f"s_lshl_b32 s{sKX}, s{sKX}, 7")
e(f"s_add_u32 s{sKX}, s{sKX}, s{sXB}")
G = vTM+6
e(f"v_lshrrev_b32 v{G}, 4, v{L}")
e(f"v_lshrrev_b32 v{t0}, 3, v{L}")
e(f"v_lshl_add_u32 v{t0}, v{Wv}, 4, v{t0}")
e(f"v_mul_u32_u24 v{t0}, 1280, v{t0}")
e(f"v_and_b32 v{t1}, 7, v{L}")
e(f"v_xor_b32 v{t1}, v{t1}, v{G}")
e(f"v_lshl_add_u32 v{vDX}, v{t1}, 4, v{t0}")
e(f"v_xor_b32 v{t1}, 4, v{t1}")
e(f"v_lshl_add_u32 v{vDX+1}, v{t1}, 4, v{t0}")
e(f"v_add_u32 v{vDX+1}, {8*1280-1024}, v{vDX+1}")
if opt["xlin"]:
    e(f"v_lshl_add_u32 v{vDX}, v{Wv}, 11, v{vL16}")
    e(f"v_mov_b32 v{vDX+1}, v{vDX}")
    e(f"s_and_b32 s{sT0}, s{sFT}, 3")
    e(f"s_mul_i32 s{sT0}, s{sT0}, {opt['xlin']}")
    e(f"s_lshr_b32 s{sT0}, s{sT0}, 2")
    e(f"s_lshl_b32 s100, s{sT0}, 13")
    e(f"s_add_u32 s100, s100, s{sXB}")
    e(f"s_add_u32 s101, s{sXB}, 81920")
e(f"v_mul_u32_u24 v{t3}, {16*3072}, v{Wv}")
for i in range(3):
    if i: e(f"v_add_u32 v{t0}, {64*i}, v{L}")
    src = t0 if i else L
    e(f"v_mul_u32_u24 v{t1}, 2731, v{src}")
    e(f"v_lshrrev_b32 v{t1}, 16, v{t1}")
    e(f"v_mul_u32_u24 v{t2}, 24, v{t1}")
    e(f"v_sub_u32 v{t0}, v{src}, v{t2}")
    e(f"v_and_b32 v{t2}, 2, v{t1}")
    e(f"v_lshlrev_b32 v{t2}, 1, v{t2}")
    e(f"v_xor_b32 v{t0}, v{t0}, v{t2}")
    e(f"v_mul_u32_u24 v{t1}, 3072, v{t1}")
    e(f"v_lshl_add_u32 v{t0}, v{t0}, 4, v{t1}")
    e(f"v_add_u32 v{t0}, v{t0}, v{t3}")
    if i: e(f"v_subrev_u32 v{vDW+i}, {i*1024}, v{t0}")
    else: e(f"v_mov_b32 v{vDW}, v{t0}")
    if opt["r16"]: e(f"v_xor_b32 v{t0}, 16, v{t0}")
    e(f"v_add_u32 v{vDW+3+i}, {8*3072 - ((i+3)%4)*1024}, v{t0}")
if opt["e7"]:
    e(f"s_lshr_b32 s{sT0}, s{sMT}, 1")
    e(f"s_and_b32 s{sT1}, s{sMT}, 1")
    e(f"s_lshl1_add_u32 s{sT1}, s{sFT}, s{sT1}")
    e(f"s_mul_i32 s{sXB}, s{sT0}, 163840")
    e(f"s_mul_i32 s{sWB}, s{sT1}, {192 if opt['e7'] == 1 else 128}")
    e(f"s_and_b32 s{sT0}, s{sT0}, 3")
    e(f"s_and_b32 s{sT1}, s{sT1}, 7")
    e(f"s_mul_i32 s{sT0}, s{sT0}, {opt['e7a']}")
    e(f"s_mul_i32 s{sT1}, s{sT1}, {opt['e7b']}")
    e(f"s_add_u32 s{sKX}, s{sT0}, s{sT1}")
    e(f"s_lshr_b32 s{sKX}, s{sKX}, 2")
    e(f"s_mul_i32 s{sT1}, s{sKX}, 205")
    e(f"s_lshr_b32 s{sT1}, s{sT1}, 11")
    e(f"s_mul_i32 s{sT1}, s{sT1}, 10")
    e(f"s_sub_u32 s{sKX}, s{sKX}, s{sT1}")
    e(f"s_add_u32 s{sXE}, s{sXB}, 1280")
    e(f"s_mul_i32 s{sKW}, s{sKX}, {64*3072}")
    e(f"s_add_u32 s{sKW}, s{sKW}, s{sWB}")
    e(f"s_lshl_b32 s{sKX}, s{sKX}, 7")
    e(f"s_add_u32 s{sKX}, s{sKX}, s{sXB}")
    e(f"v_mul_u32_u24 v{t0}, {16*1280}, v{Wv}")
    e(f"v_add_u32 v{vDX}, v{vDX}, v{t0}")
    e(f"v_add_u32 v{vDX+1}, v{vDX+1}, v{t0}")
    e(f"v_add_u32 v{vDW+4}, {16*1280}, v{vDX}")
    e(f"v_add_u32 v{vDW+5}, {16*1280}, v{vDX+1}")
    for i in range(3):
        e(f"v_add_u32 v{t0}, {64*i}, v{L}")
        if opt["e7"] == 1:
            e(f"v_mul_u32_u24 v{t1}, 5462, v{t0}")
            e(f"v_lshrrev_b32 v{t1}, 16, v{t1}")
            e(f"v_mul_u32_u24 v{t1}, {3072 - 192}, v{t1}")
        else:
            e(f"v_lshrrev_b32 v{t1}, 3, v{t0}")
            e(f"v_mul_u32_u24 v{t1}, {2048 - 128}, v{t1}")
        e(f"v_lshl_add_u32 v{t0}, v{t0}, 4, v{t1}")
        e(f"v_add_u32 v{t0}, v{t0}, v{t3}")
        e(f"v_subrev_u32 v{vDW+i}, {i*1024}, v{t0}")
vTC = 250
if opt["tch"]:
    e(f"v_lshrrev_b32 v{t0}, 1, v{L}")
    e(f"v_mul_u32_u24 v{t1}, 1280, v{t0}")
    e(f"v_mul_u32_u24 v{t2}, 43, v{t0}")
    e(f"v_lshrrev_b32 v{t2}, 7, v{t2}")
    e(f"v_mul_u32_u24 v{t2}, {3072-384}, v{t2}")
    e(f"v_lshl_add_u32 v{t2}, v{t0}, 7, v{t2}")
    e(f"s_and_b32 s{sT0}, s{sFT}, 3")
    e(f"s_lshl_b32 s{sT0}, s{sT0}, 1")
    e(f"s_lshr_b32 s{sT1}, s{sW}, 1")
    e(f"s_add_u32 s{sT0}, s{sT0}, s{sT1}")
    e(f"s_mul_i32 s{sT0}, s{sT0}, {8*1280}")
    e(f"s_and_b32 s{sWO}, s{sMT}, 7")
    e(f"s_lshl_b32 s{sWO}, s{sWO}, 1")
    e(f"s_add_u32 s{sWO}, s{sWO}, s{sT1}")
    e(f"s_mul_i32 s{sWO}, s{sWO}, {4*3072}")
    e(f"s_add_u32 s{sT1}, s{sWB}, {640*3072}")
    e(f"s_bitcmp1_b32 s{sW}, 0")
    e(f"s_cselect_b64 vcc, -1, 0")
    e(f"v_cndmask_b32 v{vTC}, v{t1}, v{t2}, vcc")
    e(f"s_cselect_b32 s{sT0}, s{sWO}, s{sT0}")
    e(f"s_mov_b32 s{sWO}, {0xffff if opt['th'] else 0x5555}")
    e(f"s_cselect_b32 s{sWO}, {0xffffff if opt['th'] else 0x555555}, s{sWO}")
    e(f"s_cselect_b32 s{sHS}, s{sKW}, s{sKX}")
    e(f"s_movk_i32 s{sHS2}, 128")
    e(f"s_cselect_b32 s{sHS2}, {64*3072}, s{sHS2}")
    e(f"v_and_b32 v{t0}, 1, v{L}")
    e(f"v_lshl_add_u32 v{vTC}, v{t0}, 6, v{vTC}")
    e(f"v_add_u32 v{vTC}, s{sT0}, v{vTC}")
    e(f"s_cselect_b32 vcc_lo, s{sT1}, s{sXE}")
    e(f"s_cselect_b32 vcc_hi, s{sWB}, s{sXB}")
e(f"s_lshl_b32 s{sM0}, s{sW}, 13")
CLR = opt["clr"] >= 0 or opt["clrs"]
sCL = sHS
vNAN = 244
if CLR:
    e(f"s_lshl_b32 s{sT0}, s{sMT}, 2")
    e(f"s_lshr_b32 s{sT1}, s{sFT}, 1")
    e(f"s_add_u32 s{sT0}, s{sT0}, s{sT1}")
    e(f"s_lshl_b32 s{sT0}, s{sT0}, 2")
    e(f"s_add_u32 s{sT0}, s{sT0}, s{sW}")
    e(f"s_lshl_b32 s{sT0}, s{sT0}, 1")
    e(f"s_and_b32 s{sT1}, s{sFT}, 1")
    e(f"s_add_u32 s{sT0}, s{sT0}, s{sT1}")
    e(f"s_mul_i32 s{sT0}, s{sT0}, 6144")
    e(f"v_add_u32 v248, s{sT0}, v{vL16}")
    e(f"v_add_u32 v249, 3072, v248")
    for r in range(4): e(f"v_mov_b32 v{vNAN+r}, -1")
def clr_ops():
    def mk(i):
        def f():
            e(f"buffer_store_dwordx4 {vr(vNAN,4)}, v{248 + i//3}, {srd(sH)}, 0 offen offset:{(i%3)*1024} sc1"); VM.issue("clr")
        return f
    return [mk(i) for i in range(6)]
CLO = clr_ops()
e(f"s_mov_b32 s{sSPIN}, {EP}")
for r, n in ((sX, 2621440), (sW1, 1966080), (sW2, 1966080), (sOUT, 2621440), (sH, HREC)):
    e(f"s_mov_b32 s{r+2}, {n}"); e(f"s_mov_b32 s{r+3}, 0x20000")
e("s_waitcnt lgkmcnt(0)")
if opt["wso"]:
    e(f"s_add_u32 s12, s12, {opt['wso'] << 20}"); e("s_addc_u32 s13, s13, 0")
for r, p in ((sW2, 8), (sX, 4), (sW1, 6), (sOUT, 10), (sH, 12)):
    e(f"s_mov_b64 s[{r}:{r+1}], s[{p}:{p+1}]")
if opt["tch"]:
    e(f"s_bitcmp1_b32 s{sW}, 0")
    e(f"s_cselect_b64 s[8:9], s[6:7], s[4:5]")
    e(f"s_cselect_b32 s10, s{sW1+2}, s{sX+2}")
    e("s_mov_b32 s11, 0x20000")
    e(f"s_mov_b32 s6, s{sHS}")
    e(f"s_mov_b32 s7, s{sHS2}")
def touch():
    e("s_add_u32 s6, s6, s7")
    e("s_cmp_eq_u32 s6, vcc_lo")
    e("s_cselect_b32 s6, vcc_hi, s6")
    e(f"s_mov_b32 exec_lo, s{sWO}")
    e("s_mov_b32 exec_hi, 0")
    e(f"buffer_load_dword v251, v{vTC}, s[8:11], s6 offen"); VM.issue("tch")
    e("s_mov_b64 exec, -1")
stamp()
e(f"s_load_dword s{sE}, s[12:13], s{sSPIN}")

def adv_k():
    if opt["xlin"]:
        e(f"s_add_u32 s100, s100, 8192")
        e(f"s_cmp_eq_u32 s100, s101")
        e(f"s_cselect_b32 s100, s{sXB}, s100")
    e(f"s_add_u32 s{sKX}, s{sKX}, 128")
    e(f"s_add_u32 s{sKW}, s{sKW}, {64*3072}")
    e(f"s_cmp_eq_u32 s{sKX}, s{sXE}")
    e(f"s_cselect_b32 s{sKX}, s{sXB}, s{sKX}")
    e(f"s_cselect_b32 s{sKW}, s{sWB}, s{sKW}")
def dma_ops(st):
    base = (st % NSL) * 32768
    def mk(i):
        def f():
            if i == 0: e(f"s_add_u32 m0, s{sM0}, {base+6144}"); e("s_nop 0")
            if i < 2:
                e(f"buffer_load_dwordx4 v{vDX+i}, {srd(sX)}, s{100 if opt['xlin'] else sKX} offen offset:{i*1024} {opt['xaux'] if st < opt['ntst'] else ''} lds")
            elif opt["e7"] and i >= 5:
                if i == 5: e(f"s_add_u32 m0, s{sM0}, {base+4096}"); e("s_nop 0"); return
                e(f"buffer_load_dwordx4 v{vDW+i-2}, {srd(sX)}, s{sKX} offen offset:{(i-6)*1024} lds")
            else:
                j = i - 2
                e(f"buffer_load_dwordx4 v{vDW+j}, {srd(sW1)}, s{sKW} offen offset:{(j%4)*1024} {opt['w1aux'] if st < opt['ntst'] else ''} lds")
            VM.issue(f"st{st}")
            if i == 1: e(f"s_add_u32 m0, s{sM0}, {base}"); e("s_nop 0")
            if i == 5: e(f"s_add_u32 m0, s{sM0}, {base+4096}"); e("s_nop 0")
            if i == 7 and st < 9: adv_k()
        return f
    return [mk(i) for i in range(8)]

def setup2():
    R, C = t0, t1
    u0, u1, u2 = vTM+7, vTM+8, vTM+9
    if D1:
        RJ = 2
        if opt["rtab"]:
            RJ = 9
            tb = str(opt["rtab"]).lstrip("x"); assert len(tb) == 32 and sum(map(int, tb)) == 12
            m1_ = sum((c == "1") << i for i, c in enumerate(tb)); m2_ = sum((c == "2") << i for i, c in enumerate(tb))
            e(f"s_lshr_b32 s{sT0}, s2, 3")
            e(f"s_bfm_b32 s9, s{sT0}, 0")
            if R2:
                e(f"s_mov_b32 s8, {m2_}")
                e(f"s_bitcmp1_b32 s8, s{sT0}")
                e(f"s_cselect_b32 s8, s8, {m1_}")
                e(f"s_cselect_b32 s10, 1, 0")
                e(f"s_cselect_b32 s11, 0, {16 * tb.count('2')}")
                e(f"s_and_b32 s9, s9, s8")
            else: e(f"s_and_b32 s9, s9, {m1_}")
            e(f"s_bcnt1_i32_b32 s9, s9")
            e(f"s_and_b32 s{sT1}, s2, 7")
            e(f"s_lshl3_add_u32 s9, s9, s{sT1}")
            if R2:
                e(f"s_lshl_b32 s9, s9, s10")
                e(f"s_add_u32 s9, s9, s11")
            e(f"s_bitcmp1_b32 {'s8' if R2 else m1_}, s{sT0}")
            e(f"s_cselect_b32 s9, s9, 255")
        elif opt["rmap"]:
            RJ = 9
            e(f"s_lshr_b32 s9, s2, 4")
            e(f"s_lshl_b32 s9, s9, 3")
            e(f"s_and_b32 s{sT0}, s2, 7")
            e(f"s_add_u32 s9, s9, s{sT0}")
            if opt["rmap"] > 2: e(f"s_xor_b32 s9, s9, {0x60}")
            e(f"s_lshr_b32 s{sT0}, s2, 2")
            e(f"s_xor_b32 s{sT0}, s{sT0}, s2")
            e(f"s_bitcmp{(opt['rmap'] - 1) % 2}_b32 s{sT0}, 3")
            e(f"s_cselect_b32 s9, s9, 255")
        e(f"s_lshr_b32 s{sT1}, s{RJ}, 1")
        e(f"s_and_b32 s{sT0}, s{RJ}, 1")
        if opt["rpk"]:
            e(f"s_mul_i32 s{sRFL}, s{sT1}, 43")
            e(f"s_lshr_b32 s{sRFL}, s{sRFL}, 9")
            e(f"s_mul_i32 s{sRFL}, s{sRFL}, {128 // opt['rpk'] - 12}")
            e(f"s_add_u32 s{sRFL}, s{sRFL}, s{sT1}")
            e(f"s_mul_i32 s{sRFL}, s{sRFL}, {opt['rpk']}")
            if RPW: e(f"s_lshl2_add_u32 s{sRS}, s{sT0}, s{sW}")
            e(f"s_lshl_b32 s{sRS}, s{sRS if RPW else sT0}, 9")
            e(f"s_add_u32 s{sRFL}, s{sRFL}, s{sRS}")
        else:
            e(f"s_mul_i32 s{sRFL}, s{sT0}, 48")
            e(f"s_add_u32 s{sRFL}, s{sRFL}, s{sT1}")
            e(f"s_lshl_b32 s{sRFL}, s{sRFL}, 7")
        if OW:
            e(f"s_mul_i32 s{sRS}, s{sT1}, 43")
            e(f"s_lshr_b32 s{sRS}, s{sRS}, 9")
            e(f"s_mul_i32 s{sRS}, s{sRS}, 47")
            e(f"s_lshl_b32 s{sT1}, s{sT1}, 2")
            e(f"s_sub_u32 s{sT1}, s{sT1}, s{sRS}")
        e(f"s_lshl_b32 s{sRS}, s{sT1}, 2")
        e(f"s_add_u32 s{sRS}, s{sRS}, s{sW}")
        e(f"s_mul_i32 s{sRS}, s{sRS}, 10240")
        e(f"s_lshl_b32 s{sT0}, s{sT0}, 7")
        e(f"s_add_u32 s{sRS}, s{sRS}, s{sT0}")
        e(f"s_add_u32 s{sRS}, s{sRS}, 1024")
        e(f"s_lshl_b32 s{sRD}, s{RJ}, 2")
        e(f"s_add_u32 s{sRD}, s{sRD}, s{sW}")
        e(f"s_lshl_b32 s{sRD}, s{sRD}, 10")
        e(f"s_add_u32 s{sRD}, s{sRD}, {W2F}")
        e(f"s_cmp_lt_u32 s{RJ}, {0 if opt['nor'] else 96}")
        e(f"s_cselect_b32 s{sRS}, s{sRS}, 1966080")
        e(f"s_cselect_b32 s{sRD}, s{sRD}, {HREC}")
        e(f"s_cselect_b32 s{sRFL}, s{sRFL}, {HREC - RFL}")
    else:
        e(f"s_and_b32 s{sT0}, s2, 63")
        e(f"s_mul_i32 s{sT1}, s{sT0}, 205")
        e(f"s_lshr_b32 s{sT1}, s{sT1}, 10")
        e(f"s_mul_i32 s{sRS}, s{sT1}, 5")
        e(f"s_sub_u32 s{sRS}, s{sT0}, s{sRS}")
        e(f"s_lshr_b32 s{sRD}, s2, 6")
        e(f"s_mul_i32 s{sRFL}, s{sRD}, 5")
        e(f"s_add_u32 s{sRFL}, s{sRFL}, s{sRS}")
        e(f"s_lshl_b32 s{sRFL}, s{sRFL}, 4")
        e(f"s_add_u32 s{sRFL}, s{sRFL}, s{sT1}")
        e(f"s_lshl_b32 s{sRFL}, s{sRFL}, 7")
        if opt["own"]:
            e(f"s_mul_i32 s6, s{sT1}, 6")
            e(f"s_add_u32 s6, s6, s{sRD}")
            e(f"s_lshr_b32 s7, s{sT1}, 1")
            e(f"s_mul_i32 s7, s7, 6")
            e(f"s_and_b32 s8, s{sT1}, 1")
            e(f"s_add_u32 s7, s7, s8")
            e(f"s_mul_i32 s8, s{sRD}, 12")
            e(f"s_add_u32 s7, s7, s8")
            e(f"s_sub_u32 s7, s7, 20")
            e(f"s_cmp_lt_u32 s{sT1}, 8")
            e(f"s_cselect_b32 s6, s6, s7")
            e(f"s_mul_i32 s6, s6, 40960")
        e(f"s_mul_i32 s{sRD}, s{sRD}, 12")
        e(f"s_add_u32 s{sT1}, s{sT1}, s{sRD}")
        e(f"s_mul_i32 s{sT1}, s{sT1}, 40960")
        e(f"s_lshl_b32 s{sRD}, s{sRS}, 13")
        e(f"s_add_u32 s{sRD}, s{sRD}, s{sT1}")
        e(f"s_lshl_b32 s{sRS}, s{sRS}, 8")
        e(f"s_add_u32 s{sRS}, s{sRS}, s{6 if opt['own'] else sT1}")
        e(f"s_lshl_b32 s{sT1}, s{sW}, 11")
        e(f"s_add_u32 s{sRD}, s{sRD}, s{sT1}")
        e(f"s_add_u32 s{sRD}, s{sRD}, {W2F}")
        e(f"s_cmp_lt_u32 s{sT0}, {0 if opt['nor'] else 60}")
        e(f"s_cselect_b32 s{sRS}, s{sRS}, 1966080")
        e(f"s_cselect_b32 s{sRD}, s{sRD}, {HREC}")
    if opt["pt"] & 1:
        e(f"s_min_u32 s{sT1}, s{sRS}, {1966080-4}")
        e(f"s_load_dword s101, s[8:9], s{sT1}")
    if opt["pt"] & 2:
        e(f"s_mul_i32 s{sT1}, s{sMT}, {64*3072}")
        e(f"s_load_dword s101, s[12:13], s{sT1}")
    if opt["pt"] & 4:
        e(f"s_load_dword s101, s[10:11], s{sXB}")
    if opt["pt"] & 8:
        e(f"s_load_dword s101, s[12:13], s{sRD}")
    if D1:
        e(f"v_lshrrev_b32 v{t0}, 3, v{L}")
        e(f"v_mul_u32_u24 v{t0}, 1280, v{t0}")
        e(f"v_and_b32 v{t1}, 7, v{L}")
        e(f"v_lshlrev_b32 v{t2}, 1, v{G}")
        e(f"v_xor_b32 v{t1}, v{t1}, v{t2}")
        e(f"v_lshl_add_u32 v{vWD}, v{t1}, 4, v{t0}")
        for i in range(1, 4): e(f"v_add_u32 v{vWD+i}, {i*(10240-1024)}, v{vWD}")
    else:
        e(f"v_lshl_add_u32 v{t0}, v{Wv}, 3, v{G}")
        e(f"v_mul_u32_u24 v{t0}, 1280, v{t0}")
        e(f"v_and_b32 v{t1}, 15, v{L}")
        e(f"v_lshlrev_b32 v{t2}, 1, v{G}")
        e(f"v_xor_b32 v{t1}, v{t1}, v{t2}")
        e(f"v_lshl_add_u32 v{vDR}, v{t1}, 4, v{t0}")
        e(f"v_xor_b32 v{t1}, 8, v{t1}")
        e(f"v_lshl_add_u32 v{vDR+1}, v{t1}, 4, v{t0}")
        e(f"v_add_u32 v{vDR+1}, {4*1280-1024}, v{vDR+1}")
    e(f"v_bfe_u32 v{R}, v{L}, 2, 2")
    e(f"v_and_b32 v{C}, 3, v{L}")
    if opt["r16"]:
        e(f"v_and_b32 v{u1}, 1, v{G}")
        e(f"v_lshl_add_u32 v{u0}, v{u1}, 3, v{R}")
        e(f"v_mul_u32_u24 v{u0}, 384, v{u0}")
        e(f"v_lshl_add_u32 v{u0}, v{u1}, 4, v{u0}")
        e(f"v_lshrrev_b32 v{t2}, 5, v{L}")
        e(f"v_lshl_add_u32 v{u0}, v{t2}, 13, v{u0}")
        e(f"v_lshrrev_b32 v{u1}, 1, v{R}")
        e(f"v_xor_b32 v{u1}, v{u1}, v{Wv}")
        e(f"v_and_b32 v{u1}, 1, v{u1}")
        e(f"v_lshl_add_u32 v{u0}, v{u1}, 6, v{u0}")
        e(f"v_lshrrev_b32 v{u1}, 1, v{C}")
        e(f"v_lshl_add_u32 v{u0}, v{u1}, 5, v{u0}")
        e(f"v_and_b32 v{u1}, 1, v{C}")
        e(f"v_lshl_add_u32 v{vA}, v{u1}, 3, v{u0}")
        e(f"v_xor_b32 v{vA+1}, 16, v{vA}")
        for k in range(2): e(f"v_add_u32 v{vA+2+k}, 65536, v{vA+k}")
        e(f"v_and_b32 v{u0}, 2, v{Wv}")
        e(f"v_lshlrev_b32 v{u0}, 13, v{u0}")
        e(f"v_and_b32 v{u2}, 15, v{L}")
        e(f"v_lshl_add_u32 v{u0}, v{u2}, 7, v{u0}")
        e(f"v_add_u32 v{u0}, 6144, v{u0}")
        e(f"v_lshrrev_b32 v{u1}, 1, v{u2}")
        e(f"v_xor_b32 v{u1}, v{u1}, v{G}")
        e(f"v_lshl_add_u32 v{vB+4}, v{u1}, 4, v{u0}")
        e(f"v_xor_b32 v{vB+5}, 64, v{vB+4}")
        for k in range(2): e(f"v_add_u32 v{vB+6+k}, 65536, v{vB+4+k}")
    else:
        e(f"v_lshrrev_b32 v{u0}, 1, v{G}")
        e(f"v_lshl_add_u32 v{u0}, v{u0}, 3, v{R}")
        e(f"v_mul_u32_u24 v{u0}, 384, v{u0}")
        e(f"v_lshrrev_b32 v{u1}, 1, v{R}")
        e(f"v_xor_b32 v{u1}, v{u1}, v{Wv}")
        e(f"v_and_b32 v{u1}, 1, v{u1}")
        e(f"v_lshl_add_u32 v{u0}, v{u1}, 6, v{u0}")
        e(f"v_and_b32 v{u1}, 1, v{G}")
        e(f"v_lshl_add_u32 v{u0}, v{u1}, 5, v{u0}")
        e(f"v_lshl_add_u32 v{vA}, v{C}, 3, v{u0}")
        e(f"v_add_u32 v{vA+1}, 65536, v{vA}")
        e(f"v_and_b32 v{u0}, 2, v{Wv}")
        e(f"v_add_u32 v{u0}, v{u0}, v{u1}")
        e(f"v_lshlrev_b32 v{u0}, 13, v{u0}")
        e(f"v_and_b32 v{u2}, 15, v{L}")
        e(f"v_lshl_add_u32 v{u0}, v{u2}, 7, v{u0}")
        e(f"v_add_u32 v{u0}, 6144, v{u0}")
        e(f"v_lshrrev_b32 v{u1}, 1, v{u2}")
        e(f"v_lshrrev_b32 v{t2}, 5, v{L}")
        e(f"v_xor_b32 v{u1}, v{u1}, v{t2}")
        e(f"v_lshl_add_u32 v{vB}, v{u1}, 4, v{u0}")
        for k in range(1, 4): e(f"v_xor_b32 v{vB+k}, {32*k}, v{vB}")
        for k in range(4): e(f"v_add_u32 v{vB+4+k}, 65536, v{vB+k}")
    if D1:
        e(f"v_and_b32 v{u1}, 1, v{G}")
        e(f"v_lshl_add_u32 v{u1}, v{u1}, 2, v{R}")
        e(f"v_lshlrev_b32 v{u0}, 11, v{t2}")
        e(f"v_lshl_add_u32 v{u0}, v{u1}, 7, v{u0}")
        e(f"v_lshrrev_b32 v{u1}, 1, v{u1}")
        e(f"v_lshl_add_u32 v{u0}, v{u1}, 5, v{u0}")
        e(f"v_and_b32 v{u1}, 1, v{C}")
        e(f"v_lshl_add_u32 v{u0}, v{u1}, 4, v{u0}")
        e(f"v_lshrrev_b32 v{u1}, 1, v{C}")
        e(f"v_lshl_add_u32 v{u0}, v{u1}, 3, v{u0}")
        e(f"v_add_u32 v{u0}, {RB}, v{u0}")
        e(f"v_lshlrev_b32 v{t3}, 5, v{Wv}")
        e(f"v_xor_b32 v{vRA}, v{u0}, v{t3}")
        e(f"v_add_u32 v{vWT}, s{sM0}, v{u0}")
        for j in range(1, 4): e(f"v_xor_b32 v{vWT+j}, {32*j}, v{vWT}")
    else:
        e(f"v_and_b32 v{u1}, 1, v{G}")
        e(f"v_lshl_add_u32 v{u1}, v{u1}, 2, v{R}")
        e(f"v_lshlrev_b32 v{u0}, 12, v{t2}")
        e(f"v_lshl_add_u32 v{u0}, v{u1}, 8, v{u0}")
        e(f"v_lshlrev_b32 v{t3}, 1, v{Wv}")
        e(f"v_xor_b32 v{u1}, v{u1}, v{t3}")
        e(f"v_lshl_add_u32 v{u0}, v{u1}, 5, v{u0}")
        e(f"v_and_b32 v{u1}, 1, v{C}")
        e(f"v_lshl_add_u32 v{u0}, v{u1}, 4, v{u0}")
        e(f"v_lshrrev_b32 v{u1}, 1, v{C}")
        e(f"v_lshl_add_u32 v{u0}, v{u1}, 3, v{u0}")
        e(f"v_add_u32 v{vRA}, {RB}, v{u0}")
        e(f"v_xor_b32 v{vRA+1}, 32, v{vRA}")
    if not D1:
        e(f"v_mov_b32 v{vCN}, {CNT}")
        e(f"v_mov_b32 v{vONE}, 0")
        e(f"ds_write_b32 v{vCN}, v{vONE}"); LG.issue("cnt")
    if opt["ab"]: e(f"ds_write_b32 v{vCN}, v{vONE} offset:4"); LG.issue("cnt")
    for i in range(48): e(f"v_mov_b32 v{vACC1+i}, 0")
    if not D1: e(f"v_mov_b32 v{vONE}, 1")
    e(f"v_and_b32 v{u1}, 1, v{G}")
    if opt["r16"]: e(f"v_add_u32 v{vHS}, 12288, v{vL16}")
    else:
        e(f"v_mul_u32_u24 v{u0}, 12288, v{u1}")
        e(f"v_lshl_add_u32 v{u0}, v{t2}, 8, v{u0}")
        e(f"v_lshl_add_u32 v{vHS}, v{u2}, 4, v{u0}")
    if opt["own"]:
        e(f"s_and_b32 s{sT0}, s{sW}, 1")
        e(f"s_and_b32 s{sT1}, s{sW}, 2")
        e(f"s_sub_u32 s{sT1}, s{sT1}, s{sT0}")
        e(f"s_add_u32 s{sT1}, s{sT1}, 3")
        e(f"v_add_u32 v{u0}, s{sT1}, v{u1}")
        e(f"v_and_b32 v{u0}, 3, v{u0}")
        e(f"s_lshl_b32 s{sT0}, s{sT0}, 12")
        e(f"s_add_u32 s{sT0}, s{sT0}, {OWN}")
        e(f"v_lshl_add_u32 v{u0}, v{u0}, 10, s{sT0}")
        e(f"v_lshl_add_u32 v{u0}, v{t2}, 8, v{u0}")
        e(f"v_lshl_add_u32 v{vOW}, v{u2}, 4, v{u0}")
        e(f"v_xor_b32 v{vOW+1}, 2048, v{vOW}")
        e(f"s_lshl_b32 s{sT0}, s{sW}, 12")
        e(f"s_add_u32 s{sT0}, s{sT0}, {OWN}")
        e(f"v_add_u32 v{vOW+2}, s{sT0}, v{vL16}")
    if OW:
        e(f"s_and_b32 s{sT0}, s{sW}, 1")
        e(f"s_lshl1_add_u32 s{sT0}, s{sFT}, s{sT0}")
        e(f"s_and_b32 s{sT0}, s{sT0}, 3")
        e(f"s_and_b32 s{sT1}, s{sW}, 2")
        e(f"s_sub_u32 s{sT1}, s{sT1}, s{sT0}")
        e(f"s_add_u32 s{sT1}, s{sT1}, 7")
        e(f"v_add_u32 v{u0}, s{sT1}, v{u1}")
        e(f"v_and_b32 v{u0}, 3, v{u0}")
        e(f"s_lshl_b32 s{sT0}, s{sT0}, 13")
        e(f"s_add_u32 s{sT0}, s{sT0}, {65536+4096}")
        e(f"v_lshl_add_u32 v{u0}, v{u0}, 10, s{sT0}")
        e(f"v_lshl_add_u32 v{u0}, v{t2}, 8, v{u0}")
        e(f"v_lshl_add_u32 v{vOW}, v{u2}, 4, v{u0}")
        e(f"v_xor_b32 v{vOW+1}, {16384+2048}, v{vOW}")
    e(f"v_mul_u32_u24 v{u0}, 1280, v{u2}")
    e(f"v_lshl_add_u32 v{vOUT}, v{G}, 4, v{u0}")
    e(f"v_lshl_add_u32 v{u0}, v{u1}, 4, v{u0}")
    e(f"v_lshl_add_u32 v{vOUT2}, v{t2}, 3, v{u0}")
    if opt["bp"]:
        e(f"v_lshrrev_b32 v{vL16b}, 2, v{L}")
        e(f"v_mul_u32_u24 v{u0}, 1280, v{vL16b}")
        e(f"v_lshl_add_u32 v{vOUT}, v{C}, 4, v{u0}")
        e(f"v_lshl_add_u32 v{vL16b}, v{C}, 4, v{vL16b}")
        e(f"v_lshlrev_b32 v{vL16b}, 2, v{vL16b}")
        e(f"v_and_b32 v{vOUT2}, 1, v{C}")
        e(f"v_lshl_add_u32 v{u0}, v{vOUT2}, 4, v{u0}")
        e(f"v_lshrrev_b32 v{vOUT2}, 1, v{C}")
        e(f"v_lshl_add_u32 v{vOUT2}, v{vOUT2}, 3, v{u0}")
    if opt["t4"]:
        e(f"v_mul_u32_u24 v{u0}, {4*1280}, v{G}")
        e(f"v_lshl_add_u32 v{u0}, v{C}, 1, v{u0}")
        e(f"v_and_b32 v{vOUT2}, 1, v{R}")
        e(f"v_lshl_add_u32 v{u0}, v{vOUT2}, 4, v{u0}")
        e(f"v_lshrrev_b32 v{vOUT2}, 1, v{R}")
        e(f"v_lshl_add_u32 v{vOUT2}, v{vOUT2}, 3, v{u0}")
    if opt["ofk"]:
        sh = 1 + opt["ofk"]
        e(f"v_lshrrev_b32 v{u0}, {sh}, v{L}")
        e(f"v_mul_u32_u24 v{u0}, 1280, v{u0}")
        e(f"v_and_b32 v{vOUT}, {(1 << sh) - 1}, v{L}")
        e(f"v_lshl_add_u32 v{vOUT}, v{vOUT}, 4, v{u0}")
        e(f"v_add_u32 v{vL16b}, {64 if sh == 2 else 10240}, v{vOUT}")
        e(f"v_lshrrev_b32 v{u0}, 2, v{L}")
        e(f"v_mul_u32_u24 v{u0}, 1280, v{u0}")
        e(f"v_and_b32 v{vOUT2}, 3, v{L}")
        e(f"v_lshl_add_u32 v{vOUT2}, v{vOUT2}, 3, v{u0}")
    if not D1: e(f"v_add_u32 v{vL16b}, 4096, v{vL16}")
    if D1:
        if RPW: e(f"s_lshl2_add_u32 s{sT0}, s{sFT}, s{sW}")
        else:
            e(f"s_lshr_b32 s{sT0}, s{sFT}, 2")
            e(f"s_lshl_b32 s{sT0}, s{sT0}, 2")
            e(f"s_add_u32 s{sT0}, s{sT0}, s{sW}")
        e(f"s_mul_i32 s{sT0}, s{sT0}, {128 if opt['rpk'] else 12*128}")
        e(f"v_min_u32 v{vRP}, 11, v{u2}")
        e(f"v_lshl_add_u32 v{vRP}, v{vRP}, {dict([(0,7),(4,2),(8,3)])[opt['rpk']]}, s{sT0}")
    else:
        e(f"s_mul_i32 s{sT0}, s{sFT}, 5")
        e(f"v_lshl_add_u32 v{u0}, v{u1}, 2, s{sT0}")
        e(f"v_lshrrev_b32 v{u0}, 3, v{u0}")
        e(f"v_mad_u32_u24 v{u0}, v{Wv}, 5, v{u0}")
        e(f"v_min_u32 v{vRP}, 11, v{u2}")
        e(f"v_lshlrev_b32 v{vRP}, 7, v{vRP}")
        e(f"v_lshl_add_u32 v{vRP}, v{u0}, 11, v{vRP}")
    e(f"v_lshlrev_b32 v{vL4}, 2, v{L}")
    if opt["own"] or OW:
        e(f"v_and_b32 v{vPA}, {opt['pl2']}, v{L}")
        e(f"v_lshlrev_b32 v{vPA}, 7, v{vPA}")
    else: e(f"v_mul_u32_u24 v{vPA}, {FS}, v{u1}")
    if D1:
        assert FS == 128
        e(f"v_lshlrev_b32 v{vAC}, 7, v0")
        e(f"s_add_u32 s{sT0}, s{sM0}, 32768")
        e(f"v_add_u32 v{vRW}, s{sT0}, v{vL16}")
        e(f"v_add_u32 v{vRW2}, 65536, v{vRW}")
        for p in range(3):
            e(f"s_sub_u32 s{sT0}, s{sW}, {1+p}")
            e(f"s_and_b32 s{sT0}, s{sT0}, 3")
            e(f"s_lshl_b32 s{sT0}, s{sT0}, 13")
            e(f"s_add_u32 s{sT0}, s{sT0}, {32768*(p+1)}")
            e(f"v_add_u32 v{vRR+p}, s{sT0}, v{vL16}")
        e(f"s_mul_i32 s{sW2B}, s{sW}, {40960 if OW else 12*40960}")
        e(f"s_lshl_b32 s{sT0}, s{sFT}, 7")
        e(f"s_add_u32 s{sW2B}, s{sW2B}, s{sT0}")
        e(f"s_mul_i32 s{sW5B}, s{sW}, 96")
        e(f"s_add_u32 s{sW5B}, s{sW5B}, s{sFT}")
        e(f"s_lshl_b32 s{sW5B}, s{sW5B}, 10")
        e(f"s_add_u32 s{sW5B}, s{sW5B}, {W2F}")
    else:
        e(f"v_mul_u32_u24 v{u0}, 205, v{L}")
        e(f"v_lshrrev_b32 v{u0}, 10, v{u0}")
        e(f"v_sub_u32 v{vAC}, v{Wv}, v{u0}")
        e(f"v_mad_i32_i24 v{vAC}, v{vAC}, 5, v{L}")
        e(f"v_lshlrev_b32 v{vAC}, 11, v{vAC}")
        e(f"v_lshl_add_u32 v{vAC}, v{u0}, 7, v{vAC}")
        e(f"s_mul_i32 s{sT0}, s{sW}, 15360")
        e(f"s_add_u32 s{sT0}, s{sT0}, {RED}")
        e(f"v_add_u32 v{vRW}, s{sT0}, v{vL16}")
        for p in range(3):
            e(f"s_sub_u32 s{sT0}, s{sW}, {1+p}")
            e(f"s_and_b32 s{sT0}, s{sT0}, 3")
            e(f"s_mul_i32 s{sT0}, s{sT0}, 15360")
            e(f"s_add_u32 s{sT0}, s{sT0}, {RED + p*5120}")
            e(f"v_add_u32 v{vRR+p}, s{sT0}, v{vL16}")
        e(f"s_mul_i32 s{sW2B}, s{sW}, {12*40960}")
        e(f"s_mul_i32 s{sT0}, s{sFT}, 5120")
        e(f"s_add_u32 s{sW2B}, s{sW2B}, s{sT0}")
        e(f"s_add_u32 s{sW2B}, s{sW2B}, {W2F}")
    if opt["ab"]:
        e(f"s_mov_b32 s{sSIG+6}, 0x98763210"); e(f"s_mov_b32 s{sSIG+7}, 0x98763210")
        e(f"s_lshr_b64 s[{sSIG+6}:{sSIG+7}], s[{sSIG+6}:{sSIG+7}], s{sROT}")
        e(f"s_mov_b32 s{sSIG+7}, s{sSIG+6}")
        e(f"s_and_b32 s{sROT}, s{sROT}, 12")
        e(f"s_lshr_b32 s{sSIG+11}, 0xba54ba54, s{sROT}")
        for n in range(12):
            src = sSIG+7 if n < 8 else sSIG+11
            e(f"s_bfe_u32 s{sSIG+n}, s{src}, {0x40000 + 4*(n%8)}")
            e(f"s_lshl_b32 s{sSIG+n}, s{sSIG+n}, 10")
    if opt["own"]:
        e(f"s_lshl_b32 s{sSIG}, s{sFT}, 10")
        for n in range(1, 12):
            e(f"s_cmp_eq_u32 s{sROT}, s{sFT}")
            e(f"s_addc_u32 s{sROT}, s{sROT}, 0")
            e(f"s_lshl_b32 s{sSIG+n}, s{sROT}, 10")
            if n < 11:
                e(f"s_add_u32 s{sROT}, s{sROT}, 1")
                e(f"s_cmp_ge_u32 s{sROT}, 12")
                e(f"s_cselect_b32 s{sROT}, 0, s{sROT}")
    if OW:
        e(f"s_lshl_b32 s{sT0}, s{sFT}, 1")
        e(f"s_sub_u32 s{sT0}, s{sW}, s{sT0}")
        e(f"s_and_b32 s{sT0}, s{sT0}, 3")
        e(f"s_mul_i32 s{sT1}, s{sFT}, 6")
        e(f"s_add_u32 s{sT0}, s{sT0}, s{sT1}")
        e(f"s_lshr_b32 s{sT0}, s{sT0}, 2")
        e(f"s_lshl_b32 s{sSIG}, s{sT0}, 10")
        for n in range(1, 12):
            e(f"s_cmp_ge_u32 s{sROT}, s{sT0}")
            e(f"s_addc_u32 s{sT1}, s{sROT}, 0")
            e(f"s_lshl_b32 s{sSIG+n}, s{sT1}, 10")
            if n < 11:
                e(f"s_add_u32 s{sROT}, s{sROT}, 1")
                e(f"s_cmp_ge_u32 s{sROT}, 11")
                e(f"s_cselect_b32 s{sROT}, 0, s{sROT}")
    for n in range(12 if not opt["ab"] and not opt["own"] and not OW else 0):
        e(f"s_lshl_b32 s{sSIG+n}, s{sROT}, 10")
        if n < 11:
            e(f"s_add_u32 s{sROT}, s{sROT}, 1")
            e(f"s_cmp_ge_u32 s{sROT}, 12")
            e(f"s_cselect_b32 s{sROT}, 0, s{sROT}")
    if opt["own2"] == 2:
        e(f"s_mov_b32 s{sOWN}, s{sW}")
    elif opt["own2"] == 3:
        e(f"s_and_b32 s{sOWN}, s{sFT}, 1")
        e(f"s_add_u32 s{sOWN}, s{sW}, s{sOWN}")
    elif opt["own2"]:
        e(f"s_lshl_b32 s{sOWN}, s{sFT}, 1")
        e(f"s_add_u32 s{sOWN}, s{sW}, s{sOWN}")
    else: e(f"s_add_u32 s{sOWN}, s{sW}, s{sFT}")
    e(f"s_and_b32 s{sOWN}, s{sOWN}, 3")
    e(f"s_lshl_b32 s{sT1}, s{sMT}, 2")
    e(f"s_add_u32 s{sT1}, s{sT1}, s{sW}")
    if opt["own"] or OW: e(f"s_lshl_b32 s{sPOL}, s{sMT}, 10")
    else: e(f"s_mul_i32 s{sPOL}, s{sT1}, {2*FS}")
    e(f"s_add_u32 s{sPOL}, s{sPOL}, {FL}")
    e(f"s_lshl_b32 s{sT1}, s{sT1}, 2")
    for p in range(4):
        e(f"s_add_u32 s{sT0}, s{sOWN}, {1+p}")
        e(f"s_and_b32 s{sT0}, s{sT0}, 3")
        e(f"s_add_u32 s{sT0}, s{sT0}, s{sT1}")
        e(f"s_mul_i32 s{sT0}, s{sT0}, 12288")
        e(f"v_add_u32 v{vHB+p}, s{sT0}, v{vL16}")
    e(f"s_lshl_b32 s{sOB}, s{sMT}, 2")
    e(f"s_add_u32 s{sOB}, s{sOB}, s{sOWN}")
    e(f"s_mul_i32 s{sOB}, s{sOB}, {16*1280}")
    if D1:
        e(f"s_lshl_b32 s{sT0}, s{sFT}, 5")
        e(f"s_add_u32 s{sOB2}, s{sOB}, s{sT0}")
        e(f"s_add_u32 s{sOB2}, s{sOB2}, {1024-128}")
    e(f"s_mul_i32 s{sT0}, s{sFT}, {128 if D1 else 160}")
    e(f"s_add_u32 s{sOB}, s{sOB}, s{sT0}")
    if opt["ost"]:
        e(f"s_cmp_ge_u32 s{sW}, {opt['ost']}")
        e(f"s_cselect_b32 s{sOB}, s{sOB}, 2621440")
    e(f"s_lshl_b32 s{sT0}, s{sMT}, 2")
    e(f"s_lshr_b32 s{sT1}, s{sFT}, 1")
    e(f"s_add_u32 s{sT0}, s{sT0}, s{sT1}")
    e(f"s_mul_i32 s{sFLG}, s{sT0}, {2*FS}")
    e(f"s_lshl_b32 s{sT0}, s{sT0}, 2")
    e(f"s_and_b32 s{sT1}, s{sW}, 2")
    e(f"s_add_u32 s{sT0}, s{sT0}, s{sT1}")
    e(f"s_mul_i32 s{sHS}, s{sT0}, 12288")
    e(f"s_and_b32 s{sT0}, s{sFT}, 1")
    e(f"s_mul_i32 s{sT1}, s{sT0}, {FS}")
    e(f"s_add_u32 s{sFLG}, s{sFLG}, s{sT1}")
    e(f"s_add_u32 s{sFLG}, s{sFLG}, {FL}")
    e(f"s_mul_i32 s{sT0}, s{sT0}, 6")
    e(f"s_and_b32 s{sT1}, s{sW}, 1")
    e(f"s_add_u32 s{sT0}, s{sT0}, s{sT1}")
    e(f"s_lshl_b32 s{sT0}, s{sT0}, 10")
    e(f"s_add_u32 s{sHS}, s{sHS}, s{sT0}")
    e(f"s_add_u32 s{sHS2}, s{sHS}, 4096")
    if opt["own"]:
        e(f"s_and_b32 s{sT0}, s{sFT}, 1")
        e(f"s_lshl_b32 s{sT0}, s{sT0}, 12")
        e(f"s_sub_u32 s{sHS2}, s{sHS}, s{sT0}")
        e(f"s_add_u32 s{sHS2}, s{sHS2}, 8192")
        e(f"s_lshl_b32 s{sT0}, s{sMT}, 2")
        e(f"s_add_u32 s{sT0}, s{sT0}, s{sT1}")
        e(f"s_lshl_b32 s{sT0}, s{sT0}, 2")
        e(f"s_and_b32 s{sT1}, s{sW}, 2")
        e(f"s_add_u32 s{sT0}, s{sT0}, s{sT1}")
        e(f"s_mul_i32 s{sT0}, s{sT0}, 12")
        e(f"s_add_u32 s{sT0}, s{sT0}, s{sFT}")
        e(f"s_lshl_b32 s{sHS}, s{sT0}, 10")
        e(f"s_add_u32 s{sHS1}, s{sHS}, 98304")
    if OW:
        for q, r in enumerate((sHS, 10, sHS2)):
            e(f"s_mul_i32 s{sT0}, s{sFT}, 6")
            e(f"s_and_b32 s{sT1}, s{sW}, 1")
            e(f"s_add_u32 s{sT0}, s{sT0}, s{sT1}")
            if q: e(f"s_add_u32 s{sT0}, s{sT0}, {2*q}")
            e(f"s_and_b32 s{sT1}, s{sT0}, 3")
            e(f"s_lshl2_add_u32 s{sT1}, s{sMT}, s{sT1}")
            e(f"s_and_b32 s{r}, s{sW}, 2")
            e(f"s_lshl2_add_u32 s{sT1}, s{sT1}, s{r}")
            e(f"s_mul_i32 s{sT1}, s{sT1}, 12")
            e(f"s_lshr_b32 s{sT0}, s{sT0}, 2")
            e(f"s_add_u32 s{sT0}, s{sT0}, s{sT1}")
            e(f"s_lshl_b32 s{r}, s{sT0}, 10")
    e(f"s_add_u32 s{sRFL}, s{sRFL}, {RFL}")
    if opt["tpre"]:
        tb = str(opt["ttab"]).lstrip("x"); assert len(tb) == 32
        nn = tb.count("1"); assert 48 % nn == 0 and 48 // nn <= 8
        rw = 48 // nn
        mk_ = sum(int(c) << i for i, c in enumerate(tb))
        e(f"s_lshr_b32 s9, s2, 3")
        e(f"s_bfm_b32 s8, s9, 0")
        e(f"s_and_b32 s8, s8, {mk_}")
        e(f"s_bcnt1_i32_b32 s8, s8")
        e(f"s_and_b32 s{sT0}, s2, 7")
        e(f"s_lshl3_add_u32 s8, s8, s{sT0}")
        e(f"s_lshl2_add_u32 s8, s8, s{sW}")
        e(f"s_mul_i32 s8, s8, {rw*1280}")
        e(f"s_bitcmp1_b32 {mk_}, s9")
        e(f"s_cselect_b32 s8, s8, 1966080")
        e(f"v_lshrrev_b32 v251, 3, v{L}")
        e(f"v_lshl_add_u32 v250, v251, 8, s8")
        e(f"v_lshl_add_u32 v250, v{L}, 7, v250")
        if rw < 8:
            e(f"v_add_u32 v251, {8 - rw}, v251")
            e(f"v_lshrrev_b32 v251, 3, v251")
            e(f"v_lshl_add_u32 v250, v251, 21, v250")
    if R2:
        e(f"s_lshl_b32 s{sT0}, s{sW}, 9")
        e(f"s_add_u32 s{sRFL}, s{sRFL}, s{sT0}")
        e(f"s_cmp_le_u32 s{sW}, s10")
        e(f"s_cselect_b32 s{sRFL}, s{sRFL}, {HREC}")
    elif not RPW:
        e(f"s_cmp_eq_u32 s{sW}, 0")
        e(f"s_cselect_b32 s{sRFL}, s{sRFL}, {HREC}")
    if opt["fpre"]:
        assert opt["fb"] and opt["fk"] == 0 and not RPW
        e(f"s_cmp_eq_u32 s{sW}, 0")
        e(f"s_cselect_b32 s{sFLG}, s{sFLG}, {HREC}")
        assert HREC == 1 << 23 and opt["rpk"] == 8
        e(f"v_lshrrev_b32 v249, 1, v{L}")
        e(f"v_lshl_add_u32 v249, v249, 23, v{vL4}")
        e(f"v_lshrrev_b32 v248, 5, v{L}")
        e(f"v_lshl_add_u32 v248, v248, 23, v{vL4}")
    e(f"s_mov_b32 s{sL2E}, 0xbfb8aa3b")
    if opt["pk"]:
        e(f"s_mov_b32 s{sPK}, 0xbfb8aa3b"); e(f"s_mov_b32 s{sPK+1}, 0xbfb8aa3b")
def r_loads():
    if D1:
        e(f"s_lshr_b32 m0, s{sM0}, 3")
        e(f"s_add_u32 m0, m0, {RB}")
        e("s_nop 0")
        e(f"buffer_load_dwordx4 v{vWD}, {srd(sW2)}, s{sRS} offen {opt['raux']} lds"); VM.issue("rld")
        if R2:
            e(f"s_add_u32 m0, m0, {4096 - 128}")
            e(f"s_cmp_eq_u32 s10, 1")
            e(f"s_cselect_b32 s{sRS}, s{sRS}, 1966080")
            e(f"buffer_load_dwordx4 v{vWD}, {srd(sW2)}, s{sRS} offen offset:128 {opt['raux']} lds"); VM.issue("rld")
        return
    e(f"s_lshr_b32 m0, s{sM0}, 2")
    e(f"s_add_u32 m0, m0, {RB}")
    e("s_nop 0")
    for i in range(2):
        e(f"buffer_load_dwordx4 v{vDR+i}, {srd(sW2)}, s{sRS} offen offset:{i*1024} {opt['raux']} lds"); VM.issue("rld")
def r_reads():
    if D1:
        for t in range(4 if R2 else 2):
            e(f"ds_read_b64_tr_b16 {vr(vRF + 2*t, 2)}, v{vRA} offset:{(t % 2)*1024 + (t // 2)*4096}"); LG.issue("rrd")
        return
    for ee in range(2):
        for t in range(2):
            e(f"ds_read_b64_tr_b16 {vr(vRF + 4*ee + 2*t, 2)}, v{vRA+ee} offset:{t*2048}"); LG.issue("rrd")
def r_stores():
    LG.wait("rrd")
    for ee in range(1 if D1 else 2):
        e(f"buffer_store_dwordx4 {vr(vRF+4*ee,4)}, v{vL16}, {srd(sH)}, s{sRD} offen offset:{ee*1024} {opt['rsaux']}"); VM.issue("rst")
    if R2:
        e(f"s_add_u32 s{sRD}, s{sRD}, 4096")
        e(f"s_cmp_eq_u32 s10, 1")
        e(f"s_cselect_b32 s{sRD}, s{sRD}, {HREC}")
        e(f"buffer_store_dwordx4 {vr(vRF+4,4)}, v{vL16}, {srd(sH)}, s{sRD} offen {opt['rsaux']}"); VM.issue("rst")
S2 = capture(setup2)
groups = []
for l in S2:
    if l.startswith("s_cselect") or (groups and groups[-1][-1].startswith(("s_cmp", "s_bitcmp"))): groups[-1].append(l)
    else: groups.append([l])
ST0 = []
def pre_order(spec):
    kx, kw = (sKX, 6, 8), (sKW, 7, 9)
    def nxt(i):
        a, b = (i + 1) % 3, i
        e(f"s_add_u32 s{kx[a]}, s{kx[b]}, 128")
        e(f"s_add_u32 s{kw[a]}, s{kw[b]}, {64*3072}")
        e(f"s_cmp_eq_u32 s{kx[a]}, s{sXE}")
        e(f"s_cselect_b32 s{kx[a]}, s{sXB}, s{kx[a]}")
        e(f"s_cselect_b32 s{kw[a]}, s{sWB}, s{kw[a]}")
    ops = []
    for ch in spec:
        if ch in "abc":
            st = "abc".index(ch)
            for i in range(2):
                def f(st=st, i=i):
                    if i == 0: e(f"s_add_u32 m0, s{sM0}, {st*32768+6144}"); e("s_nop 0")
                    e(f"buffer_load_dwordx4 v{vDX+i}, {srd(sX)}, s{kx[st]} offen offset:{i*1024} {opt['xaux']} lds"); VM.issue(f"st{st}")
                    if st == 0 and i == 1: nxt(0); nxt(1)
                ops.append(f)
        elif ch in "ABC":
            st = "ABC".index(ch)
            for j in range(6):
                def f(st=st, j=j):
                    if j % 4 == 0: e(f"s_add_u32 m0, s{sM0}, {st*32768+j*1024}"); e("s_nop 0")
                    e(f"buffer_load_dwordx4 v{vDW+j}, {srd(sW1)}, s{kw[st]} offen offset:{(j%4)*1024} {opt['w1aux']} lds"); VM.issue(f"st{st}")
                ops.append(f)
        elif ch == "R": ops.append(r_loads)
        elif ch == ".": ops.append(None)
        elif ch == "P":
            def f():
                e(f"s_bfe_u32 s10, s{sMT}, 0x10002")
                e(f"s_mul_i32 s10, s10, 320")
                e(f"s_and_b32 s11, s{sMT}, 3")
                e(f"s_lshl_b32 s11, s11, 4")
                e(f"s_add_u32 s10, s10, s11")
                e(f"s_mul_i32 s11, s{sW}, 12")
                e(f"s_sub_u32 s10, s10, s11")
                e(f"s_add_u32 s10, s10, 256")
                e(f"s_mul_i32 s10, s10, 3072")
                e(f"s_add_u32 s10, s10, s{sWB}")
                e(f"buffer_load_dwordx4 v[244:247], v{vDW}, {srd(sW1)}, s10 offen"); VM.issue("pp")
                e("s_mov_b32 exec_hi, 0")
                e(f"buffer_load_dwordx4 v[248:251], v{vDW+1}, {srd(sW1)}, s10 offen offset:1024"); VM.issue("pp")
                e("s_mov_b32 exec_hi, -1")
            ops.append(f)
    assert spec[0] == "a" and all(c in spec for c in "abcABC")
    last = ops[-1]
    def fin(): last(); nxt(2)
    ops[-1] = fin
    return ops
if opt["po"]:
    first = pre_order(opt["po"]); opt["pre3"] = 1
    if None in first:
        k = first.index(None); first, ST0 = first[:k], first[k+1:]
    if "R" in opt["po"]: opt["rls"] = -1
else:
    first = dma_ops(0) + dma_ops(1) + (dma_ops(2) if opt["pre3"] else [])
    if opt["rls"] < 0: first.append(r_loads)
    if opt["tch"]: first[opt["tp0"]:opt["tp0"]] = [touch] * (opt["la"] - 1)
def wxtouch(k, n):
    def f():
        if k == 0:
            e(f"s_lshr_b32 s8, s2, 3")
            e(f"s_lshl_b32 s8, s8, 2")
            e(f"s_add_u32 s8, s8, s{sW}")
            e(f"s_mul_i32 s8, s8, {12*1280}")
            e(f"s_lshr_b32 s9, s{sFT}, 2")
            e(f"s_lshl_b32 s9, s9, 9")
            e(f"s_add_u32 s8, s8, s9")
            e(f"v_lshrrev_b32 v250, 6, v{vL16}")
            e(f"v_mul_u32_u24 v250, {1280-512}, v250")
            e(f"v_lshl_add_u32 v250, v{vL16}, 3, v250")
        m = ((1 << (48 // n)) - 1) << (k * 48 // n)
        e(f"s_mov_b32 exec_lo, {m & 0xffffffff}")
        e(f"s_mov_b32 exec_hi, {m >> 32}")
        e(f"buffer_load_dword v251, v250, {srd(sW2)}, s8 offen {opt['wtaux']}"); VM.issue("wt")
        e("s_mov_b64 exec, -1")
    return f
def wtouch():
    if opt["tpre"]:
        e(f"buffer_load_dword v251, v250, {srd(sW2)}, 0 offen {opt['wtaux']}"); VM.issue("wt")
        return
    if opt["wtx"]:
        e(f"s_lshr_b32 s8, s2, 3")
        e(f"s_lshl_b32 s8, s8, 2")
        e(f"s_add_u32 s8, s8, s{sW}")
        e(f"s_mul_i32 s8, s8, {12*1280}")
        e(f"s_lshr_b32 s9, s{sFT}, 2")
        e(f"s_lshl_b32 s9, s9, 9")
        e(f"s_add_u32 s8, s8, s9")
        e(f"v_lshrrev_b32 v250, 6, v{vL16}")
        e(f"v_mul_u32_u24 v250, {1280-512}, v250")
        e(f"v_lshl_add_u32 v250, v{vL16}, 3, v250")
        e(f"s_mov_b32 exec_hi, 0xffff")
        e(f"buffer_load_dword v251, v250, {srd(sW2)}, s8 offen {opt['wtaux']}"); VM.issue("wt")
        e("s_mov_b64 exec, -1")
        return
    if opt["ttab"]:
        tb = str(opt["ttab"]).lstrip("x"); assert len(tb) == 32
        nn = tb.count("1"); assert 48 % nn == 0 and 48 // nn <= 8
        rw = 48 // nn
        mk_ = sum(int(c) << i for i, c in enumerate(tb))
        e(f"s_lshr_b32 s9, s2, 3")
        e(f"s_bfm_b32 s8, s9, 0")
        e(f"s_and_b32 s8, s8, {mk_}")
        e(f"s_bcnt1_i32_b32 s8, s8")
        e(f"s_and_b32 m0, s2, 7") if False else None
        e(f"s_lshl_b32 s8, s8, 3")
        e(f"s_bitcmp1_b32 {mk_}, s9")
        e(f"s_cselect_b32 s8, s8, 0x10000")
        e(f"s_and_b32 s9, s2, 7")
        e(f"s_add_u32 s8, s8, s9")
        e(f"s_lshl2_add_u32 s8, s8, s{sW}")
        e(f"s_mul_i32 s8, s8, {rw*1280}")
        e(f"s_min_u32 s8, s8, 1966080")
        e(f"v_lshrrev_b32 v250, 7, v{vL16}")
        e(f"v_lshlrev_b32 v250, 8, v250")
        e(f"v_lshl_add_u32 v250, v{vL16}, 3, v250")
        if rw < 8:
            m = (1 << (8*rw)) - 1
            e(f"s_mov_b32 exec_lo, {m & 0xffffffff}")
            e(f"s_mov_b32 exec_hi, {m >> 32}")
        e(f"buffer_load_dword v251, v250, {srd(sW2)}, s8 offen {opt['wtaux']}"); VM.issue("wt")
        if rw < 8: e("s_mov_b64 exec, -1")
        return
    if opt["wtc"]:
        e(f"s_lshr_b32 s8, s2, 4")
        e(f"s_lshl_b32 s8, s8, 3")
        e(f"s_and_b32 s9, s2, 7")
        e(f"s_add_u32 s8, s8, s9")
        e(f"s_lshl2_add_u32 s8, s8, s{sW}")
        e(f"s_mul_i32 s8, s8, {3*1280}")
        e(f"v_lshrrev_b32 v250, 7, v{vL16}")
        e(f"v_lshlrev_b32 v250, 8, v250")
        e(f"v_lshl_add_u32 v250, v{vL16}, 3, v250")
        e(f"s_lshr_b32 s9, s2, 2")
        e(f"s_xor_b32 s9, s9, s2")
        e(f"s_bitcmp{opt['wtc'] - 1}_b32 s9, 3")
        e(f"s_cselect_b32 s8, s8, 1966080")
        e(f"s_mov_b64 exec, {(1 << 24) - 1}")
        e(f"buffer_load_dword v251, v250, {srd(sW2)}, s8 offen {opt['wtaux']}"); VM.issue("wt")
        e("s_mov_b64 exec, -1")
        return
    e(f"s_lshl_b32 s8, s2, 2")
    e(f"s_add_u32 s8, s8, s{sW}")
    e(f"s_mul_i32 s8, s8, {15*128}")
    e(f"v_lshlrev_b32 v250, {2 if opt['wth'] else 3}, v{vL16}")
    e(f"s_mov_b64 exec, {(1 << (30 if opt['wth'] else 15)) - 1}")
    e(f"buffer_load_dword v251, v250, {srd(sW2)}, s8 offen {opt['wtaux']}"); VM.issue("wt")
    e("s_mov_b64 exec, -1")
if opt["wt"] >= 0: first.insert(opt["wt"], wtouch)
def stouch():
    e(f"s_lshl_b32 s100, s2, 2")
    e(f"s_add_u32 s100, s100, s{sW}")
    e(f"s_mul_i32 s100, s100, {15*128}")
    for i in range(opt["swn"]):
        e(f"s_load_dword s101, s[{sW2}:{sW2+1}], s100 offset:{i*128}")
if opt["sw"] >= 0: first.insert(opt["sw"], stouch)
if opt["clr"] >= 0: first[opt["clr"]:opt["clr"]] = CLO
NF0 = opt["nf0"]
for f in first[:NF0]: f()
if opt["fst"]:
    e(f"s_waitcnt vmcnt({NF0-1})"); stamp(k=5)
    e(f"s_waitcnt vmcnt({NF0-3})"); stamp(k=5)
rest = first[NF0:]
per = (len(groups) + len(rest) - 1) // len(rest)
head = len(groups) * opt["head"] // 100
for g in groups[:head]: O.extend(g)
groups = groups[head:]
per = (len(groups) + len(rest) - 1) // len(rest)
for f in rest:
    f()
    for g in groups[:per]: O.extend(g)
    groups = groups[per:]
assert not groups
stamp()

def w2_ops():
    ops = []
    order = list(range(1, 12)); order.insert(opt["w0p"], 0)
    for n in order:
        for j in range(5):
            def f(n=n, j=j):
                if j == 0:
                    e(f"s_mul_i32 s{sWO}, s{sSIG+n}, 40")
                    e(f"s_add_u32 s{sWO}, s{sWO}, s{sW2B}")
                va = vL16 if j < 4 else vL16b
                e(f"buffer_load_dwordx4 {ar(n*20+4*j, 4)}, v{va}, {srd(sH)}, s{sWO} offen offset:{(j%4)*1024} {opt['w2aux'].replace('-','')}")
                VM.issue(f"w{n}")
            ops.append(f)
    return ops
WREG = [3, 3, 4, 4, 1, 1, 2, 2, 3, 3, 4, 4]
WHF = [n % 2 for n in range(12)]
WDEP = [None] * 8 + ["t0", "t1", "t2", "t3"]
if OW:
    WREG = [3, 3, 4, 4, 1, 1, 2, 3, 3, 4, 4, 2]
    WHF = [0, 1, 0, 1, 0, 1, 0, 0, 1, 0, 1, 1]
    WDEP = [None] * 7 + ["t0", "t1", "t2", "t3", "or3"]
def wd_ops():
    ops = []
    for n in range(12):
        for i in range(4):
            def f(n=n, i=i):
                if i == 0:
                    if WDEP[n]: assert WDEP[n] in TDONE + ORD and WDEP[n] not in LG.q, n
                    e(f"s_mul_i32 s{sWO}, s{sSIG+n}, {160 if OW else 40}")
                    e(f"s_add_u32 m0, s{sM0}, {WREG[n]*32768 + WHF[n]*4096}")
                    e(f"s_add_u32 s{sWO}, s{sWO}, s{sW2B}")
                if n >= 12 - opt["skd"]: return
                e(f"buffer_load_dwordx4 v{vWD+i}, {srd(sW2)}, s{sWO} offen offset:{i*1024} {opt['waux']} lds")
                VM.issue(f"d{n}")
            ops.append(f)
    return ops
def w5_ops():
    ops = []
    for n in range(12):
        def f(n=n):
            if n >= 12 - opt["sk5"]: return
            e(f"s_lshl3_add_u32 s{sT1}, s{sSIG+n}, s{sW5B}")
            e(f"buffer_load_dwordx4 {ar(n*20+16, 4)}, v{vL16}, {srd(sH)}, s{sT1} offen {opt['w5aux'].replace('-','')}")
            VM.issue(f"w{n}")
        ops.append(f)
    return ops
TDONE = []; TWIN = [3]; ORD = []
def tgroup_ops(n):
    def head():
        assert not any(f.__defaults__[0] == n and len(f.__defaults__) == 2 for f in W2L), n
        VM.wait(f"d{n}")
        win = 3 if WREG[n] >= 3 else 1
        if win != TWIN[0]:
            for j in range(4): e(f"v_add_u32 v{vWT+j}, {(win - TWIN[0]) * 32768}, v{vWT+j}")
            TWIN[0] = win
        if len(LG.q) > 7:
            e("s_waitcnt lgkmcnt(7)"); LG.q = LG.q[-7:]
    ops = []
    for j in range(4):
        def f(j=j):
            if j == 0: head()
            win = TWIN[0]
            for t in range(2):
                e(f"ds_read_b64_tr_b16 {ar(n*20+4*j+2*t, 2)}, v{vWT+j} offset:{(WREG[n]-win)*32768 + WHF[n]*4096 + t*1024}"); LG.issue(f"t{n}")
        ops.append(f)
    TDONE.append(f"t{n}")
    return ops
def tgroup(n):
    for f in tgroup_ops(n): f()
W2L = wd_ops() if D1 else w2_ops()
def take(n):
    r = W2L[:n]; del W2L[:n]; return r

def rd_ops(st, half):
    slot = st % NSL
    sb = (slot % 2) * 32768
    hi = slot // 2
    ops = []
    if opt["nord"]: return ops
    if opt["r16"]:
        def b(rt):
            def f(): e(f"ds_read_b128 {vr(vBF + (half*2+rt)*4, 4)}, v{vB + 4 + 2*hi + half} offset:{sb + rt*8192}"); LG.issue(f"B{half}{rt}")
            return f
        def a(j, t):
            def f():
                e(f"ds_read_b64_tr_b16 {vr(vAF + half*24 + j*4 + 2*t, 2)}, v{vA + 2*hi + j%2} offset:{sb + half*16384 + t*1536 + (j//2)*128}")
                LG.issue(f"A{half}{j}")
            return f
        A = [a(j, t) for j in range(6) for t in range(2)]
        return [b(0)] + A[:2] + [b(1)] + A[2:]
    for kk in range(2):
        ks = 2*half + kk
        def b(ks=ks, kk=kk):
            e(f"ds_read_b128 {vr(vBF + (half*2+kk)*4, 4)}, v{vB + 4*hi + ks} offset:{sb}"); LG.issue(f"B{ks}")
        ops.append(b)
        for q in range(3):
            for t in range(2):
                def a(ks=ks, kk=kk, q=q, t=t):
                    e(f"ds_read_b64_tr_b16 {vr(vAF + half*24 + (kk*3+q)*4 + 2*t, 2)}, v{vA+hi} offset:{sb + ks*8192 + t*1536 + q*128}")
                    LG.issue(f"A{ks}{q}")
                ops.append(a)
    if opt["qm"] in (1, 2):
        qs = (0, 1, 2) if opt["qm"] == 1 or half == 0 else (2, 1, 0)
        ops = [ops[0], ops[7]] + [ops[7*kk + 1 + 2*q + t] for q in qs for kk in range(2) for t in range(2)]
    if opt["qm"] == 3: ops = ops[:8] + [ops[8 + 2*q + t] for q in (2, 1, 0) for t in range(2)]
    return ops
def i16(kk, q): return kk == 1
def mfma1(half, kk, q, zz=None):
    ks = 2*half + kk
    LG.wait(f"A{ks}{q}")
    if opt["nomf1"]: return
    if opt["m16"]:
        for z in (range(2) if zz is None else [zz]):
            c = vr(vACC1+16*q+8*kk+4*z, 4)
            e(f"v_mfma_f32_16x16x32_bf16 {c}, {vr(vAF + half*24 + (kk*3+q)*4, 4)}, {vr(vBF + (half*2+(kk^z if i16(kk, q) else kk))*4, 4)}, {c}")
        return
    a, b = vr(vAF + half*24 + (kk*3+q)*4, 4), vr(vBF + (half*2+kk)*4, 4)
    if opt["swab"]: a, b = b, a
    e(f"v_mfma_f32_32x32x16_bf16 {vr(vACC1+16*q,16)}, {a}, {b}, {vr(vACC1+16*q,16)}")
def mfma16(half, i):
    j, rt = i // 2, i % 2
    if opt["ro"] == 1 and j % 2: rt ^= 1
    LG.wait(f"A{half}{j}"); LG.wait(f"B{half}{rt}")
    if opt["nomf1"]: return
    c = vr(vACC1 + (j//2)*16 + rt*8 + (j%2)*4, 4)
    a_, b_ = vr(vAF + half*24 + j*4, 4), vr(vBF + (half*2+rt)*4, 4)
    if opt["sw1"]: a_, b_ = b_, a_
    e(f"v_mfma_f32_16x16x32_bf16 {c}, {a_}, {b_}, {c}")
def half_body(mf_half, rds, fill, cnt=None):
    rds = list(rds); fill = list(fill)
    if (opt["m16"] >= 2 or opt["r16"]) and mf_half is not None:
        for i in range(12):
            if opt["r16"]: mfma16(mf_half, i)
            else: mfma1(mf_half, i // 6, (i // 2) % 3, i % 2)
            left = 12 - i
            if opt["pat"]:
                P = opt["pat1"] if opt["pat1"] and mf_half == 0 else opt["pat"]
                ch = P[i]
                for _ in range(dict(a=2, b=1, c=3, M=1, N=2).get(ch, 0)):
                    if rds: rds.pop(0)()
                if ch in "LMN":
                    nl = sum(c in "LMN" for c in P[i:])
                    for _ in range((len(fill) + nl - 1) // nl): fill.pop(0)()
            elif opt["m16"] == 2 or opt["r16"] == 2:
                for _ in range((len(rds) + left - 1) // left if i else 2):
                    if rds: rds.pop(0)()
                if i % 2 == 1:
                    for _ in range((len(fill) + left // 2) // (left // 2 + 1)):
                        if fill: fill.pop(0)()
            else:
                if i % 3 == 2 and fill:
                    for _ in range((len(fill) + left // 3) // (left // 3 + 1)): fill.pop(0)()
                else:
                    for _ in range(2):
                        if rds: rds.pop(0)()
        assert not rds and not fill, (len(rds), len(fill))
        return
    for i in range(6):
        if mf_half is not None:
            if opt["qm"] == 1: mfma1(mf_half, i % 2, i // 2)
            elif opt["qm"] == 2: mfma1(mf_half, i % 2, (i // 2) if mf_half == 0 else 2 - i // 2)
            elif opt["qm"] == 3: mfma1(mf_half, i // 3, (i % 3) if i < 3 else 5 - i)
            else: mfma1(mf_half, i // 3, i % 3)
        left = 6 - i
        for _ in range((len(rds) + left - 1) // left if i else min(len(rds), 4)):
            if rds: rds.pop(0)()
        if cnt is not None:
            for _ in range(cnt[i]):
                if fill: fill.pop(0)()
            if i == 5:
                while fill: fill.pop(0)()
            continue
        for _ in range((len(fill) + left - 1) // left):
            if fill: fill.pop(0)()
    assert not rds and not fill

def flag_store(off, lanes=0):
    fk = opt["fk"]
    if opt["fpre"]:
        e(f"buffer_store_dword v{vT}, v{249 if lanes else 248}, {srd(sH)}, s{off} offen sc1"); VM.issue("flag")
        return
    if fk in (1, 3, 4):
        for r in range(4): e(f"v_mov_b32 v{vTM+12+r}, s{sTAG}")
        e(f"s_mov_b64 exec, {dict([(1,255),(3,1),(4,15)])[fk]}")
        e(f"buffer_store_dwordx4 {vr(vTM+12,4)}, v{vL16}, {srd(sH)}, s{off} offen sc1"); VM.issue("flag")
        e("s_mov_b64 exec, -1")
        return
    e(f"v_mov_b32 v{vT}, s{sTAG}")
    e(f"s_mov_b64 exec, {(1 << lanes) - 1}" if lanes else "s_mov_b32 exec_hi, 0" if fk == 0 else "s_mov_b64 exec, 1")
    e(f"buffer_store_dword v{vT}, v{vL4}, {srd(sH)}, s{off} offen sc1"); VM.issue("flag")
    e("s_mov_b64 exec, -1")
def r_poll():
    e(f"s_mov_b32 s{sT0}, {HREC if opt['norp'] else RFL}")
    e(f"buffer_load_dword v{vPOLL}, v{vRP}, {srd(sH)}, s{sT0} offen sc1"); VM.issue("rpoll")

def spin_slow(lab, vv, va, so):
    e(f"L_{lab}_s:")
    e(f"s_mov_b32 s{sSPIN}, 20000")
    e(f"L_{lab}:")
    e(f"buffer_load_dword v{vv}, v{va}, {srd(sH)}, s{so} offen sc1")
    e(f"s_sub_u32 s{sSPIN}, s{sSPIN}, 1")
    e("s_waitcnt vmcnt(0)")
    e(f"v_cmp_ne_u32 vcc, s{sTAG}, v{vv}")
    e(f"s_cbranch_scc1 L_{lab}_go")
    e(f"s_cbranch_vccnz L_{lab}")
    e(f"s_branch L_{lab}_go")
def spin_fast(lab, vv, tag):
    VM.wait(tag)
    e(f"v_cmp_ne_u32 vcc, s{sTAG}, v{vv}")
    e(f"s_cbranch_vccnz L_{lab}_s")
    e(f"L_{lab}_go:")
def spin_check(lab, vv, va, tag, so=None, fake=False):
    VM.wait(tag)
    e(f"s_mov_b32 s{sSPIN}, 20000")
    e(f"L_{lab}:")
    e(f"v_cmp_ne_u32 vcc, s{sTAG}, v{vv}")
    e("s_cmp_eq_u64 vcc, 0" if not fake else "s_cmp_eq_u32 s2, s2")
    e(f"s_cbranch_scc1 L_{lab}_go")
    e(f"s_sub_u32 s{sSPIN}, s{sSPIN}, 1")
    e(f"s_cmp_eq_u32 s{sSPIN}, 0")
    e(f"s_cbranch_scc1 L_{lab}_go")
    if so is None: e(f"s_mov_b32 s{sT0}, {RFL}")
    e(f"buffer_load_dword v{vv}, v{va}, {srd(sH)}, s{sT0 if so is None else so} offen sc1")
    e("s_waitcnt vmcnt(0)")
    e(f"s_branch L_{lab}")
    e(f"L_{lab}_go:")
def r_check(): spin_check("rp", vPOLL, vRP, "rpoll", None, opt["norp"])

PEND = []
EMU = [int(c) for c in str(opt["emu"]).lstrip("x")]
def emu_ops(bi):
    q, g2 = bi // 2, bi % 2
    a0 = (vACC1 + 16*q + 8*g2) if opt['emv'] == 2 else 216; tt = vS + (bi % 2) * 8; pk = vRF + 8 + bi * 4
    ops = []
    if opt["emv"] and not opt["epk"]:
        for r in range(8): ops.append(f"v_mul_f32 v{tt+r}, s{sL2E}, v{a0+r}")
        for r in range(8): ops.append(f"v_exp_f32 v{tt+r}, v{tt+r}")
        for r in range(8): ops.append(f"v_add_f32 v{tt+r}, 1.0, v{tt+r}")
        for r in range(8): ops.append(f"v_rcp_f32 v{tt+r}, v{tt+r}")
        for r in range(8): ops.append(f"v_mul_f32 v{tt+r}, v{a0+r}, v{tt+r}")
        for r in range(4): ops.append(f"v_cvt_pk_bf16_f32 v{pk+r}, v{tt+2*r}, v{tt+2*r+1}")
    elif opt["emv"]:
        for r in range(0, 8, 2): ops.append(f"v_pk_mul_f32 {vr(tt+r,2)}, {vr(a0+r,2)}, s[{sPK}:{sPK+1}]")
        for r in range(8): ops.append(f"v_exp_f32 v{tt+r}, v{tt+r}")
        for r in range(0, 8, 2): ops.append(f"v_pk_add_f32 {vr(tt+r,2)}, {vr(tt+r,2)}, 1.0 op_sel_hi:[1,0]")
        for r in range(8): ops.append(f"v_rcp_f32 v{tt+r}, v{tt+r}")
        for r in range(0, 8, 2): ops.append(f"v_pk_mul_f32 {vr(tt+r,2)}, {vr(a0+r,2)}, {vr(tt+r,2)}")
        for r in range(4): ops.append(f"v_cvt_pk_bf16_f32 v{pk+r}, v{tt+2*r}, v{tt+2*r+1}")
    fs = [(lambda l=l: e(l)) for l in ops]
    def st_():
        if opt["r16"]:
            e(f"buffer_store_dwordx4 {vr(pk,4)}, v{vHS if g2 else vL16}, {srd(sH)}, s{(sHS if q < 2 else sHS2) if opt['emo'] == 0 else sH+2} offen offset:{(q%2)*2048} {opt['emaux'].replace('-','')}"); VM.issue("hst")
            return
        e(f"buffer_store_dwordx4 {vr(pk,4)}, v{vHS}, {srd(sH)}, s{sHS} offen offset:{g2*512 + (q%2)*2048} sc1"); VM.issue("hstA" if opt["ab"] else "hst")
    if not opt['ems']: PEND.append(st_); return fs
    return fs + [st_]
def merge(a, b):
    r = []; a = list(a); b = list(b); na, nb_ = len(a), len(b)
    while a or b:
        if a and (not b or len(a) * nb_ >= len(b) * na): r.append(a.pop(0))
        else: r.append(b.pop(0))
    return r
if EMU:
    for r in range(8): e(f"v_cvt_f32_u32 v{216+r}, v{vL16}"); e(f"v_mul_f32 v{216+r}, 0x3a000000, v{216+r}")
for st in range(10):
    if st == 1 and opt["fpre"]:
        e(f"s_mul_i32 s{sTAG}, s{sE}, 0x9E3779B1")
        e(f"s_add_u32 s{sTAG}, s{sTAG}, 0x7F4A7C15")
        e(f"v_mov_b32 v{vT}, s{sTAG}")
    if st == opt["wu"]:
        e("s_mov_b64 exec, 0")
        for k in range(1, 4):
            e(f"s_cmp_eq_u32 s{sW}, {k}")
            e(f"s_cbranch_scc1 L_w{k}")
        e("L_wr:")
        e("s_mov_b64 exec, -1")
    if st != opt["nw"]: VM.wait(f"st{st}")
    if st == opt["rjs"]: VM.wait("rld")
    if st == opt["rfs"]: VM.wait("rst"); VM.wait("clr")
    if st == opt["afs"] and st: VM.wait("hstA")
    LG.drain()
    e("s_barrier")
    if st == opt["afs"] and st:
        e(f"s_cmp_eq_u32 s{sW}, 0")
        e(f"s_cselect_b32 s{sT1}, s{sFLG}, {HREC}")
        flag_store(sT1); stamp(k=7)
    if st == 9: stamp()
    stamp(k=1)
    if st >= 8: stamp(k=4)
    if st == opt["rfs"] or (RPW and st == 1):
        if not opt["fpre"]:
            e(f"s_mul_i32 s{sTAG}, s{sE}, 0x9E3779B1")
            e(f"s_add_u32 s{sTAG}, s{sTAG}, 0x7F4A7C15")
        if not RPW and opt["fpre"] < 2: flag_store(sRFL, opt["rpk"] // 4)
    if not D1 and ((st == opt["rcs"] and opt["rck"] == 0) or (st == 9 and opt["rck"] == 2)): r_check()
    if NSL == 4:
        if st == 0: fill = ([] if opt["pre3"] else dma_ops(2)) + dma_ops(3)
        elif st < 7: fill = dma_ops(st + 3)
        else: fill = take(opt[f"n{st}"])
    elif st == 0 and opt["pre3"]: fill = list(ST0)
    elif st < 8: fill = dma_ops(st + 2) + (take(opt["d7"]) if st == 7 else [])
    else: fill = take(opt["n8"] if st == 8 else opt["n9"])
    if st == opt["dst"]: fill = fill + take(opt["dn"])
    if opt["tch"] and st + opt["la"] < 10: fill.insert(opt["tpos"], touch)
    if st == opt["rls"]: fill = [r_loads] + fill if opt["rpos"] == 0 else fill + [r_loads]
    if st == opt["rjs"]:
        fill.insert(min(opt["rsp"], len(fill)), r_stores)
        fill = [r_reads] + fill
    if st == opt["rps"] and not D1: fill.insert(opt["rpp"], r_poll)
    if st == opt["rfs"] and opt["fpre"] >= 2: fill.insert(min(opt["fpre"] - 2, len(fill)), lambda: flag_store(sRFL, opt["rpk"] // 4))
    if st == opt["wts"]: fill.insert(min(opt["wtp"], len(fill)), wtouch)
    WX = [int(c) for c in str(opt["wx"]).lstrip("x")]
    for k, c in enumerate(WX):
        if c == st: fill.insert(min(opt["wxp"], len(fill)), wxtouch(k, len(WX)))
    if st == opt['sws']: fill.insert(min(opt['swp'], len(fill)), stouch)
    if st == opt["ot"]:
        def otch():
            if opt["otm"] == 1: e("s_mov_b64 exec, 1")
            e(f"buffer_load_dword v251, v{vOUT}, {srd(sOUT)}, s{sOB} offen"); VM.issue("ot")
            if opt["otm"] == 3: e(f"buffer_load_dword v251, v{vOUT2}, {srd(sOUT)}, s{sOB} offen offset:128"); VM.issue("ot")
            e("s_mov_b64 exec, -1")
        fill.append(otch)
    ex = [CLO[i] for i, c in enumerate(str(opt["clrs"]).lstrip("x")) if int(c) == st]
    for bi, es in enumerate(EMU):
        if es == st: ex += emu_ops(bi)
    if ex: fill = merge(fill, ex)
    h = (len(fill) + 1) // 2
    f0, f1 = fill[:h], fill[h:]
    if st == 8 and opt["rck"] == 1:
        k = 1 if opt["rps"] == 8 else 0
        f0, f1 = fill[:k], [r_check] + fill[k:]
    if opt["fp"] and st:
        c = [int(z) for z in str(opt["fp"]).lstrip("x")]
        assert sum(c) == 8
        if st == opt["rjs"]: c[-12] += 1
        if len(c) == 13:
            k = c.pop(0)
            pre, fill = fill[:k + (st == opt["rjs"])], fill[k + (st == opt["rjs"]):]
            if st == opt["rjs"]: fill.insert(0, pre.pop(0))
            for f in pre: f()
        h = sum(c[:6])
        half_body(1, rd_ops(st, 0), fill[:h], c[:6])
        half_body(0, rd_ops(st, 1), fill[h:], c[6:])
        continue
    half_body(1 if st else None, rd_ops(st, 0), f0)
    half_body(0, rd_ops(st, 1), f1)
stamp()
def silu_block(q, g2):
    a0 = vACC1 + 16*q + 8*g2
    bi = 2*q + g2
    tt = vS + (bi % 2) * 8
    pk = vRF + bi * 4
    ops = []
    if opt["pk"]:
        for r in range(0, 8, 2): ops.append(f"v_pk_mul_f32 {vr(tt+r,2)}, {vr(a0+r,2)}, s[{sPK}:{sPK+1}]")
        for r in range(8): ops.append(f"v_exp_f32 v{tt+r}, v{tt+r}")
        for r in range(0, 8, 2): ops.append(f"v_pk_add_f32 {vr(tt+r,2)}, {vr(tt+r,2)}, 1.0 op_sel_hi:[1,0]")
        for r in range(8): ops.append(f"v_rcp_f32 v{tt+r}, v{tt+r}")
        for r in range(0, 8, 2): ops.append(f"v_pk_mul_f32 {vr(tt+r,2)}, {vr(a0+r,2)}, {vr(tt+r,2)}")
    else:
        for r in range(8): ops.append(f"v_mul_f32 v{tt+r}, s{sL2E}, v{a0+r}")
        for r in range(8): ops.append(f"v_exp_f32 v{tt+r}, v{tt+r}")
        for r in range(8): ops.append(f"v_add_f32 v{tt+r}, 1.0, v{tt+r}")
        for r in range(8): ops.append(f"v_rcp_f32 v{tt+r}, v{tt+r}")
        for r in range(8): ops.append(f"v_mul_f32 v{tt+r}, v{a0+r}, v{tt+r}")
    for r in range(4): ops.append(f"v_cvt_pk_bf16_f32 v{pk+r}, v{tt+2*r}, v{tt+2*r+1}")
    nbs = str(opt["nb"]).lstrip("x")
    fill = take(int(nbs[bi] if len(nbs) > 1 else nbs))
    if opt["tsil"] and bi >= 6 - opt["tsil"]: fill = fill + tgroup_ops(len(TDONE))
    step = len(ops) // (len(fill) + 1) if fill else 0
    for i, l in enumerate(ops):
        if not opt["novalu"]: e(l)
        if fill and step and (i + 1) % step == 0: fill.pop(0)()
    for f in fill: f()
    so = sHS if q < 2 else sHS2
    def st_():
        if opt["nost"]: return
        if OW:
            e(f"buffer_store_dwordx4 {vr(pk,4)}, v{vHS}, {srd(sH)}, s{(sHS, 10, sHS2)[q]} offen offset:{g2*512} sc1"); VM.issue("hst")
            if q < 2: e(f"ds_write_b128 v{vOW+q}, {vr(pk,4)} offset:{g2*512}"); LG.issue("ow")
            return
        if opt["own"]:
            e(f"buffer_store_dwordx4 {vr(pk,4)}, v{vHS}, {srd(sH)}, s{(sHS, sHS1, sHS2)[q]} offen offset:{g2*512} sc1"); VM.issue("hst")
            if q < 2: e(f"ds_write_b128 v{vOW+q}, {vr(pk,4)} offset:{q*8192 + g2*512}"); LG.issue("ow")
            return
        if opt["r16"]:
            e(f"buffer_store_dwordx4 {vr(pk,4)}, v{vHS if g2 else vL16}, {srd(sH)}, s{so} offen offset:{(q%2)*2048} {opt['hsaux'].replace('-','')}"); VM.issue("hst")
            return
        e(f"buffer_store_dwordx4 {vr(pk,4)}, v{vHS}, {srd(sH)}, s{so} offen offset:{g2*512 + (q%2)*2048} {opt['hsaux'].replace('-','')}"); VM.issue("hstA" if opt["ab"] and q < 2 else "hst")
        if opt["hs2"]:
            e(f"buffer_store_dwordx4 {vr(pk,4)}, v{vHS}, {srd(sH)}, s{so} offen offset:{g2*512 + (q%2)*2048} {opt['hs2'].replace('-','')}"); VM.issue("hst")
    PEND.append(st_)
    if bi >= opt["sl"]:
        while PEND: PEND.pop(0)()
if opt["st0"]:
    e(f"s_cmp_lt_u32 s{sW}, {opt['st0']}")
    e(f"s_cselect_b32 s{sHS}, s{sHS}, {HREC}")
    e(f"s_cselect_b32 s{sHS2}, s{sHS2}, {HREC}")
if opt["r16"]:
    for i in range(12):
        mfma16(1, i)
        if opt["rfs"] == 10 and i == 4: VM.wait("rst"); flag_store(sRFL, opt["rpk"] // 4)
else:
    for q in range(3):
        for kk in range(2): mfma1(1, kk, q)
    e("s_nop 7")
stamp(k=4)
if opt["sts"] == 4: VM.drain(); stamp(k=4)
def cnt_add(tag, off):
    VM.wait(tag)
    e("s_mov_b64 exec, 1")
    e(f"ds_add_rtn_u32 v{vT+1}, v{vCN}, v{vONE} offset:{off}")
    e("s_mov_b64 exec, -1")
def cnt_flag(add):
    e("s_waitcnt lgkmcnt(0)"); LG.q = []
    e(f"v_readfirstlane_b32 s{sT0}, v{vT+1}")
    e(f"s_add_u32 s{sT1}, s{sFLG}, {add}")
    e(f"s_cmp_eq_u32 s{sT0}, 3")
    e(f"s_cselect_b32 s{sT1}, s{sT1}, {HREC}")
    flag_store(sT1)
def silu_mix():
    P = opt["sil"] == 1
    T = []; N = []
    def ln(t): return lambda: e(t)
    def mulA(b):
        a0 = vACC1 + 8*b; tt = vS + (b % 2) * 8
        if P: return [(f"m{b}{r}", [], ln(f"v_pk_mul_f32 {vr(tt+r,2)}, {vr(a0+r,2)}, s[{sPK}:{sPK+1}]")) for r in range(0, 8, 2)]
        return [(f"m{b}{r}", [], ln(f"v_mul_f32 v{tt+r}, s{sL2E}, v{a0+r}")) for r in range(8)]
    def add(b):
        tt = vS + (b % 2) * 8
        if P: return [(f"a{b}{r}", [f"e{b}{r+1}"], ln(f"v_pk_add_f32 {vr(tt+r,2)}, {vr(tt+r,2)}, 1.0 op_sel_hi:[1,0]")) for r in range(0, 8, 2)]
        return [(f"a{b}{r}", [f"e{b}{r}"], ln(f"v_add_f32 v{tt+r}, 1.0, v{tt+r}")) for r in range(8)]
    def fin(b):
        a0 = vACC1 + 8*b; tt = vS + (b % 2) * 8; pk = vRF + b * 4
        q, g2 = b // 2, b % 2
        m = []
        for r in range(0, 8, 2):
            if P: m.append([(f"f{b}{r}", [f"r{b}{r+1}"], ln(f"v_pk_mul_f32 {vr(tt+r,2)}, {vr(a0+r,2)}, {vr(tt+r,2)}"))])
            else: m.append([(f"f{b}{r+1-z}", [f"r{b}{r+z}"], ln(f"v_mul_f32 v{tt+r+z}, v{a0+r+z}, v{tt+r+z}")) for z in range(2)])
        c = [(f"c{b}{r}", [f"f{b}{2*r}"], ln(f"v_cvt_pk_bf16_f32 v{pk+r}, v{tt+2*r}, v{tt+2*r+1}")) for r in range(4)]
        def st_():
            e(f"buffer_store_dwordx4 {vr(pk,4)}, v{vHS}, {srd(sH)}, s{sHS if q < 2 else sHS2} offen offset:{g2*512 + (q%2)*2048} {opt['hsaux'].replace('-','')}"); VM.issue("hst")
        return m[0] + m[1] + [c[0]] + m[2] + [c[1]] + m[3] + [c[2], c[3], (f"s{b}", [], st_)]
    N += mulA(0)
    for b in range(6):
        tt = vS + (b % 2) * 8
        T += [(f"e{b}{r}", [f"m{b}{r & ~1 if P else r}"], ln(f"v_exp_f32 v{tt+r}, v{tt+r}")) for r in range(8)]
        T += [(f"r{b}{r}", [f"a{b}{r & ~1 if P else r}"], ln(f"v_rcp_f32 v{tt+r}, v{tt+r}")) for r in range(8)]
        N += add(b)
        if b < 5: N += mulA(b + 1)
        N += fin(b)
    done = {}
    I0 = len(O)
    def emit(x): x[2](); done[x[0]] = len(done)
    K = [int(c) for c in str(opt["silk"]).lstrip("x")]
    for i, t in enumerate(T):
        while not all(d in done for d in t[1]): emit(N.pop(0))
        emit(t)
        k = K[i % len(K)]
        while N and all(d in done and len(done) - done[d] >= opt["sild"] for d in N[0][1]) and (k > 0 or N[0][0][0] == "s"):
            if N[0][0][0] != "s": k -= 1
            emit(N.pop(0))
    for x in N: emit(x)
    O[I0-8:] = fix(O[I0-8:])
if opt["sil"]: silu_mix()
for q in range(3 if not opt["sil"] else 0):
    for g2 in range(2):
        bi = 2*q + g2
        if opt["ab"] and not opt["afs"] and bi == 4 + opt["afp"]: cnt_add("hstA", 0); stamp(k=7)
        if opt["rfs"] == 11 + bi: VM.wait("rst"); flag_store(sRFL, opt["rpk"] // 4)
        if bi >= len(EMU): silu_block(q, g2)
        if opt["ab"] and not opt["afs"] and bi == 4 + opt["afp"]: cnt_flag(0); stamp(k=7)
stamp(); stamp(k=4); stamp(k=8)
if not opt["spec"]:
    NT = (48 - len(W2L)) // 4
    PL = take(opt["post"])
    if opt["tpm"]:
        TL = []
        while len(TDONE) < NT: TL += tgroup_ops(len(TDONE))
        PL = merge(PL, TL) if opt["tpm"] == 1 else TL + PL
    for i, f in enumerate(PL):
        if D1 and i == opt["rpq"] and opt["rpl"] < 0: r_poll()
        if i == opt["pae"]:
            e(f"buffer_load_dword v{vPOLL}, v{vPA}, {srd(sH)}, s{sPOL} offen sc1"); VM.issue("poll")
        f()
    if opt["wb"]:
        VM.wait("hst")
        e("buffer_wbl2 sc1"); VM.issue("hst")
    if D1:
        while len(TDONE) < NT: tgroup(len(TDONE))
    stamp(k=8)
    if not opt["nhw"]: VM.wait("hst")
    stamp(k=8)
    stamp(k=4)
    if opt["sts"] == 4: VM.drain(); stamp(k=4)
    if opt["fb"]:
        if not opt["fpre"]:
            e(f"s_cmp_eq_u32 s{sW}, 0")
            e(f"s_cselect_b32 s{sFLG}, s{sFLG}, {HREC}")
        if opt["own"]: LG.drain()
        if OW: LG.drain()
        e("s_barrier")
    else:
        e("s_mov_b64 exec, 1")
        e(f"ds_add_rtn_u32 v{vT+1}, v{vCN}, v{vONE} offset:{4 if opt['ab'] else 0}")
        e("s_mov_b64 exec, -1")
        if opt["ab"]: e(f"s_add_u32 s{sFLG}, s{sFLG}, {FLB}")
        for f in take(opt["mid"]): f()
        e("s_waitcnt lgkmcnt(0)")
        e(f"v_readfirstlane_b32 s{sT0}, v{vT+1}")
        e(f"s_cmp_eq_u32 s{sT0}, {3 if opt['nopoll'] < 2 else 9}")
        e(f"s_cselect_b32 s{sFLG}, s{sFLG}, {HREC}")
    if opt["nopoll"] == 3: e(f"s_mov_b32 s{sPOL}, {HREC}")
    flag_store(sFLG)
    if opt["fb"] == 2: e("s_barrier")
    stamp(); stamp(k=3)
else:
    for f in take(opt["fw"]): f()
    VM.wait("hst")
    e(f"s_lshl_b32 s{sT0}, s{sW}, 15")
    e(f"s_add_u32 s{sFLG}, s{sFLG}, s{sT0}")
    flag_store(sFLG)
    stamp()
N0 = 1 if OW else 0
HL = [(p, n) for p in range(4) for n in range(N0, 12)]
def hreg(p, n): return vH + (p*(12-N0) + n - N0)*4
def park(p, j): return [vACC2, 196, 216, 240][p] + 4*j if (p, j) != (3, 4) else 236
def ofr(p): return vr(152+4*p, 4) if opt['owv'] else ar(240+4*p, 4)
def own_reads():
    for p in range(4):
        e(f"ds_read_b128 {ofr(p)}, v{vRW} offset:{32768 + 4096 + p*1024}"); LG.issue(f"or{p}"); ORD.append(f"or{p}")
def own_ops(js):
    def mk(p, j):
        def f():
            LG.wait(f"or{p}"); LG.wait("t0")
            if j == 4: VM.wait("w0")
            if opt["nom"]: return
            mf2(vr(park(p, j), 4), 0, j, ofr(p), '0')
        return f
    return [mk(p, j) for p in range(4) for j in js]
def hload():
    if HL:
        p, n = HL.pop(0)
        if opt["noh"] and (p*12+n) % opt["noh"]: return
        e(f"buffer_load_dwordx4 {vr(hreg(p, n), 4)}, v{vHB+p}, {srd(sH)}, s{sSIG+n} offen {opt['haux'].replace('-','')}"); VM.issue(f"h{p}_{n}")
def mark(v):
    if not opt["stamps"] or opt["sts"]: return
    i = NST[0]; NST[0] += 1
    e(f"s_add_u32 s{72+2*i}, s74, {v}"); e(f"s_addc_u32 s{73+2*i}, s75, 0")
ACI = []; OOL = []
def allc_load(late=False):
    if opt["acb"] == 2 or (opt["acp"] >= 0) != late: return
    if opt["acb"] == 3:
        e("s_cmp_eq_u32 s2, 0")
        e("s_cbranch_scc1 L_aclo")
        e("L_acl:")
        OOL.extend(["L_aclo:", f"s_mov_b32 s{sT0}, {FL}", f"buffer_load_dword v{vAV}, v{vAC}, {srd(sH)}, s{sT0} offen sc1", "s_branch L_acl"])
        return
    if opt["acb"]:
        e("s_cmp_lg_u32 s2, 0")
        e("s_cbranch_scc1 L_acl")
        e(f"s_mov_b32 s{sT0}, {FL}")
        e(f"buffer_load_dword v{vAV}, v{vAC}, {srd(sH)}, s{sT0} offen sc1")
        e("L_acl:")
        VM.q.insert(0, "allc") if False else None
        ACI.append(len(VM.q))
        return
    e("s_cmp_eq_u32 s2, 0")
    e(f"s_cselect_b32 s{sT0}, {FL if D1 else RFL}, s{sH+2}")
    e(f"buffer_load_dword v{vAV}, v{vAC}, {srd(sH)}, s{sT0} offen sc1"); VM.issue("allc")
def p0_block(ML, pre):
    ML = list(ML)
    TL = []
    while D1 and len(TDONE) < 12 - opt["tin"]: TL += tgroup_ops(len(TDONE))
    for f in (merge(ML[:pre], TL) if opt["tmix"] else ML[:pre] + TL): f()
    if OW:
        for f in own_ops([4]): f()
    del ML[:pre]
    if D1 and not opt["tin"]: LG.drain()
    stamp()
    for n in range(N0, 12):
        assert (0, n) not in HL and not any(getattr(f, "__defaults__", None) and f.__defaults__[0] == n for f in ML), n
        late = max((f"h0_{n}", f"w{n}"), key=lambda t: len(VM.q) - 1 - VM.q[::-1].index(t) if t in VM.q else -1)
        VM.wait(late)
        TL = []
        if D1:
            assert f"t{n}" in TDONE
            LG.wait(f"t{n}")
            if len(TDONE) < 12: TL = tgroup_ops(len(TDONE))
        if n == N0 or n == 6: stamp(k=2)
        cnt = (len(ML) + 11 - n) // (12 - n)
        pos = {1: [opt["hj"]], 2: [1, 3], 3: [0, 2, 4], 4: [0, 1, 2, 3], 5: [0, 1, 2, 3, 4], 0: []}[cnt]
        for j in range(5):
            c = "0" if n == 0 else vr(vACC2+4*j, 4)
            mf2(vr(vACC2+4*j,4), n, j, vr(hreg(0, n),4), c)
            if j in pos: ML.pop(0)()
            elif TL: TL.pop(0)()
        for f in TL: f()
    assert not ML and not W2L
TP = []
def tstep(n):
    if not opt["tfm"]: return
    if not TP and len(TDONE) <= n - opt["tfm"] and len(TDONE) < 12 - opt["tlate"]: TP.extend(tgroup_ops(len(TDONE)))
    if TP: TP.pop(0)()
def late_d1():
    W5 = w5_ops()
    cnt = 0
    vP2 = vAV if opt["pqd"] or opt["rcl"] else vPOLL
    def poll():
        stamp(k=3)
        e(f"buffer_load_dword v{vP2}, v{vPA}, {srd(sH)}, s{sPOL} offen sc1"); VM.issue("poll")
    OM = []
    if OW: own_reads(); OM = own_ops(range(4))
    while W2L:
        n = W2L[0].__defaults__[0]
        if W2L[0].__defaults__[1] == 0 and WDEP[n]:
            while WDEP[n] not in TDONE + ORD: tgroup(len(TDONE))
            LG.wait(WDEP[n])
        if len(W2L) == opt["pqd"]: poll()
        if cnt == opt["rpl"]: r_poll()
        take(1)[0](); cnt += 1
        if OM and cnt > opt["owp"]: OM.pop(0)()
        if opt["tfm"]: tstep(n)
        elif cnt % opt["tl"] == 0 and len(TDONE) < n - 2: tgroup(len(TDONE))
    if opt["owp"] < 50:
        for f in OM: f()
        OM = []
    if not opt["rcl"]: r_check()
    else: assert opt["w5d"] == 12
    WD = W5[12-opt["w5d"]:]; del W5[12-opt["w5d"]:]
    def om(i):
        if 50 <= opt["owp"] < 90 and i >= opt["owp"] - 50:
            for _ in range(2):
                if OM: OM.pop(0)()
    for i, f in enumerate(W5[:opt["w5p"]]): f(); tstep(12 + i // 4); om(i)
    if not opt["pqd"]: poll()
    for i, f in enumerate(W5[opt["w5p"]:]): f(); tstep(12 + (i + opt["w5p"]) // 4); om(i + opt["w5p"])
    for f in TP: f()
    for f in OM: f()
    stamp(k=3)
    while len(TDONE) < 12 - opt['tlate']: tgroup(len(TDONE))
    if opt["hid"]:
        e("s_branch L_hid")
        spin_slow("hp", vP2, vPA, sPOL)
        if opt["hid"] & 2:
            e("L_ac_c:")
            e(f"s_mov_b32 s{sT1}, {FL}")
            e(f"v_cmp_ne_u32 vcc, s{sTAG}, v{vAV}")
            e("s_cmp_eq_u64 vcc, 0")
            e(f"s_cbranch_scc1 L_ac_go")
            spin_slow("ac", vAV, vAC, sT1)
        if opt["al"]: e(".p2align 12")
        e("L_hid:")
    VM.wait("poll")
    stamp(k=3)
    stamp()
    if opt["hid"]: spin_fast("hp", vP2, "poll")
    else: spin_check("hp", vP2, vPA, "poll", sPOL, opt["nopoll"])
    stamp(); stamp(k=2); stamp(k=3)
    mark(1000)
    allc_load()
    if opt["c5"]:
        WDL.extend(WD); return
    ML = []; pre = 0
    for i in range(opt["hpre"] + 12 - N0):
        ML.append(hload)
        if WD and WD[0].__defaults__[0] == i: ML.append(WD.pop(0))
        if i == opt["hpre"] - 1: pre = len(ML)
    p0_block(ML, pre)
WDL = []
def late_path():
    if D1: return late_d1()
    if opt['skipw']: del W2L[-opt['skipw']:]
    if opt["sts"] == 6:
        stamp(k=6)
        i = 0
        while len(W2L) > opt["pollq"]:
            take(1)[0](); i += 1
            if i % 4 == 0 and i >= opt["dw"]:
                e(f"s_waitcnt vmcnt({opt['dw']})"); stamp(k=6)
    for f in take(max(0, len(W2L) - opt["pollq"])): f()
    stamp(k=3)
    if opt["sts"] == 3: VM.drain(); stamp(k=3)
    if opt["sts"] == 4: stamp(k=4); VM.drain(); stamp(k=4)
    if opt["sp"]:
        e(f"s_load_dword s6, s[12:13], s{sPOL} {opt['spg']}")
        e(f"s_add_u32 s{sT0}, s{sPOL}, 128")
        e(f"s_load_dword s7, s[12:13], s{sT0} {opt['spg']}")
        for f in take(len(W2L)): f()
        stamp(k=3)
        e("s_waitcnt lgkmcnt(0)")
        stamp(k=3)
        stamp()
        e(f"s_cmp_eq_u32 s6, s{sTAG}")
        e(f"s_cselect_b32 s6, s7, s6")
        e(f"s_cmp_eq_u32 s6, s{sTAG}")
        e("s_cbranch_scc1 L_hp_go")
        e(f"v_mov_b32 v{vPOLL}, s6")
        spin_check("hp", vPOLL, vPA, "poll", sPOL, opt["nopoll"])
    else:
        e(f"buffer_load_dword v{vPOLL}, v{vPA}, {srd(sH)}, s{sPOL} offen sc1"); VM.issue("poll")
        for f in take(len(W2L)): f()
        stamp(k=3)
        VM.wait("poll")
        stamp(k=3)
        stamp()
        spin_check("hp", vPOLL, vPA, "poll", sPOL, opt["nopoll"])
    stamp(); stamp(k=2); stamp(k=3)
    mark(1000)
    allc_load()
    p0_block([hload] * (opt["hpre"] + 12), opt["hpre"])
LATE = []
if opt["eq"]:
    import re
    for f in take(len(W2L) - opt["eq"]): f()
    e(f"buffer_load_dword v{vPOLL}, v{vPA}, {srd(sH)}, s{sPOL} offen sc1"); VM.issue("poll")
    for f in take(opt["ec"]): f()
    VM.wait("poll")
    e(f"v_cmp_ne_u32 vcc, s{sTAG}, v{vPOLL}")
    e("s_cmp_eq_u64 vcc, 0" if not opt["nopoll"] else "s_cmp_eq_u32 s2, s2")
    e("s_cbranch_scc0 L_late")
    sv = (list(VM.q), list(W2L), list(HL), NST[0])
    LATE = ["L_late:"] + capture(late_path) + ["s_branch L_p1"]
    endq, endn = list(VM.q), NST[0]
    VM.q, W2L[:], HL[:], NST[0] = sv
    stamp(); stamp(); stamp(k=2); mark(0)
    allc_load()
    m = re.match(r"h(\d+)w(\d+)", opt["eil"])
    ML = []; nh = 12; ws = take(len(W2L))
    while nh or ws:
        k = min(nh, int(m.group(1))); ML += [hload] * k; nh -= k
        k = int(m.group(2)); ML += ws[:k]; del ws[:k]
    ML += [hload] * opt["hpre"]
    p0_block(ML, opt["epre"])
    assert NST[0] == endn, (NST[0], endn)
    k = min(len(VM.q), len(endq))
    assert VM.q[-k:] == endq[-k:] and all(t.startswith("h1") for t in VM.q + endq), (VM.q, endq)
    if len(endq) > len(VM.q): VM.q = endq
    e("L_p1:")
elif opt["spec"]:
    allc_load()
    for f in take(len(W2L) - opt["wl"]): f()
    stamp(); stamp(); stamp(k=2); mark(1000)
    ws = take(len(W2L))
    p0_block([hload] * opt["hpre"] + merge(ws, [hload] * 12) if ws else [hload] * (opt["hpre"] + 12), opt["hpre"])
elif not opt["ab"] and not opt["dfw"]:
    late_path()
def allc_check():
    if opt["acb"] == 2: return
    if opt["hid"] & 2:
        assert "allc" not in VM.q
        e("s_cmp_eq_u32 s2, 0")
        e("s_cbranch_scc1 L_ac_c")
        e("L_ac_go:")
        return
    if opt["acb"] == 3:
        e("s_cmp_eq_u32 s2, 0")
        e("s_cbranch_scc1 L_aco")
        e("L_acb:")
        def body():
            e(f"s_mov_b32 s{sT1}, {FL}")
            spin_check("ac", vAV, vAC, "allc", sT1)
        OOL.extend(["L_aco:"] + capture(body) + ["s_branch L_acb"])
        return
    e("s_cmp_lg_u32 s2, 0")
    e("s_cbranch_scc1 L_ac_go")
    assert "allc" not in VM.q
    if D1: e(f"s_mov_b32 s{sT1}, {FL}")
    spin_check("ac", vAV, vAC, "allc", sT1 if D1 else None)
def phase2_new():
    B1, B2, MA = opt["b1"], opt["b2"], opt["madd"]
    for p in range(1, 4):
        ac = vACC2 + (p % 2) * 20
        pa = vACC2 + ((p-1) % 2) * 20
        slots = {(n, j): [] for n in range(12) for j in range(5)}
        if opt["wb64"]:
            for k in range(10):
                def w(k=k):
                    e(f"ds_write_b64 v{vRW if p < 3 else vRW2}, {vr(pa+2*k,2)} offset:{((p-1)%2)*32768 + (k//2)*1024 + (k%2)*8}")
                    LG.issue("red")
                i = 5*N0 + opt["wg0"] + k * opt["wgs"]
                assert i < 5 * min(B1, B2)
                slots[(i // 5, i % 5)].append(w)
        elif p > 0:
            PW = [(1, 0), (1, 2), (1, 4), (2, 1), (2, 3)]
            if opt["wq"]:
                q = str(opt["wq"]).lstrip("x")
                i0, di = int(q[2*p-2], 36), int(q[2*p-1], 36)
                PW = [((i0 + k*di) // 5, (i0 + k*di) % 5) for k in range(5)]
            for jj, pos in enumerate(PW):
                def w(jj=jj):
                    if D1: e(f"ds_write_b128 v{vRW if p < 3 else vRW2}, {vr(pa+4*jj,4)} offset:{((p-1)%2)*32768 + jj*1024}")
                    else: e(f"ds_write_b128 v{vRW}, {vr(pa+4*jj,4)} offset:{(p-1)*5120 + jj*1024}")
                    LG.issue("red")
                slots[(pos[0] + N0, pos[1])].append(w)
                assert pos[0] + N0 < (12, B1, B2)[p-1]
        def rd(pp, j, dst):
            def f():
                e(f"ds_read_b128 {vr(dst, 4)}, v{vRR+pp} offset:{j*1024}"); LG.issue(f"rr{pp}{j}")
            return f
        if p == 2:
            k = 0
            for j in range(5):
                for pp in range(2):
                    slots[(B1 + k // 5, k % 5)].append(rd(pp, j, vH + pp*20 + 4*j)); k += opt["rds"]
            assert B1 + 3 <= 8 or opt["wq"]
            for i in range(20):
                def a(i=i):
                    LG.wait(f"rr1{i//4}")
                    if OW and opt["ada"] == 7:
                        e(f"v_add_f32 v{pa+i}, v{vH+i}, v{vH+20+i}")
                        if i: e(f"v_add_f32 v{pa+i-1}, v{pa+i-1}, v{park(3, (i-1)//4) + (i-1)%4}")
                        if i == 19: e(f"v_add_f32 v{pa+i}, v{pa+i}, v{park(3, 4) + 3}")
                        return
                    if OW:
                        jt, r = i // 4, (i % 2) * 2
                        d = vr(pa + 4*jt + r, 2)
                        if i % 4 < 2: e(f"v_pk_add_f32 {d}, {vr(vH + 4*jt + r, 2)}, {vr(vH + 20 + 4*jt + r, 2)}")
                        else: e(f"v_pk_add_f32 {d}, {d}, {vr(park(3, jt) + r, 2)}")
                        return
                    e(f"v_add_f32 v{pa+i}, v{vH+i}, v{vH+20+i}")
                i2 = 5*opt["ad0"] + i * (60 - 5*opt["ad0"]) // 20
                assert i2 > 5*B1 + (2*(i//4) + 1)*opt["rds"]
                slots[(i2 // 5, i2 % 5)].append(a)
        if p == 3:
            for j in range(5): slots[(B2, j)].append(rd(2, j, vH + 4*j))
            if opt["smd"]:
                MA = -1
                for j in range(5):
                    for r in range(4):
                        def a(j=j, r=r):
                            LG.wait(f"rr2{j}")
                            e(f"v_add_f32 v{ac+4*j+r}, v{ac+4*j+r}, v{vH+4*j+r}")
                        i = (opt["smd"] + j) * 5 + j + 2 + r // 2 if opt["smd"] + 5 < 12 else opt["smd"] * 5 + 3 * j + (2*j) % 5 * 0 + 99
                        slots[(i // 5, i % 5)].append(a)
        K4 = opt["k4"] if p == 3 else 0
        if K4: MA = -1; I0 = len(O)
        for n in range(N0, 12 - (opt["k2"] if K4 else 0)):
            if (p == 2 and n == B1) or (p == 3 and n == B2):
                if p == 3: allc_check(); stamp(k=2)
                LG.drain(); e("s_barrier")
                if p == 3: stamp(k=2)
            VM.wait(f"h{p}_{n}")
            if p * 12 + n == opt["acp"]: allc_load(True)
            if p * 12 + n == opt["es"]:
                e(f"s_lshl_b32 s6, s{sMT}, 2")
                e(f"s_add_u32 s6, s6, s{sOWN}")
                e(f"s_mul_i32 s6, s6, {16*1280}")
                e(f"s_mul_i32 s7, s{sFT}, 160")
                e(f"s_add_u32 s6, s6, s7")
                e(f"s_cmp_lt_u32 s{sW}, {opt['ost']}")
                e(f"s_cselect_b32 s6, s6, 2621440")
                ax = opt['esaux'].replace('-', '')
                for b in range(2):
                    e(f"buffer_store_dwordx4 {vr(vH+40+4*b,4)}, v{vOUT}, {srd(sOUT)}, s6 offen offset:{64*b} {ax}"); VM.issue("es")
                e(f"buffer_store_dwordx2 {vr(vH+40,2)}, v{vOUT2}, {srd(sOUT)}, s6 offen offset:128 {ax}"); VM.issue("es")
            if n == N0 or (n == 6 and p < 3): stamp(k=2)
            def madd(j):
                LG.wait(f"rr2{j}")
                for r in range(4): e(f"v_add_f32 v{ac+4*j+r}, v{ac+4*j+r}, v{vH+4*j+r}")
            mid = p == 3 and n == MA
            if mid: e("s_nop 3"); madd(0)
            for j in range(5):
                c = "0" if n == 0 and p < 3 else vr(ac+4*j, 4)
                if OW and n == 1 and p < 3: c = vr(park(p, j), 4)
                if mid:
                    if j < 4: madd(j+1)
                    else: e("s_nop 0")
                if j < 4 or n < 12 - K4: mf2(vr(ac+4*j,4), n, j, vr(hreg(p, n),4), c)
                if j == opt["hj"]: hload()
                for f in slots[(n, j)]: f()
                if K4 and opt["a4"] and n == opt["a4"] and j < 4:
                    assert n > 12 - K4 and n > B2
                    LG.wait("rr24"); e(f"v_add_f32 v{ac+16+j}, v{ac+16+j}, v{vH+16+j}")
    if opt["k4"]:
        tile_tail()
        O[I0:] = fix(O[I0:])
    else: out_tail()
def tile_tail():
    K2, K4 = opt["k2"], opt["k4"]
    assert opt["bp"] and opt["t4"] and not HL
    ac = vACC2 + 20; pk = vH + 64
    ML = [(n, j) for g in ((0, 1), (2, 3)) for n in range(12 - K2, 12) for j in g] + [(n, 4) for n in range(12 - K4, 12)]
    def add(j):
        def mk(r):
            def f(): LG.wait(f"rr2{j}"); e(f"v_add_f32 v{ac+4*j+r}, v{ac+4*j+r}, v{vH+4*j+r}")
            return f
        return [mk(r) for r in range(4)]
    def ln(t): return lambda: e(t)
    def cvt(j): return [ln(f"v_cvt_pk_bf16_f32 v{pk+2*j+r}, v{ac+4*j+2*r}, v{ac+4*j+2*r+1}") for r in range(2)]
    def sw(b): return [ln(f"v_permlane32_swap_b32 v{pk+4*b+r}, v{pk+4*b+2+r}") for r in range(2)]
    def bp(b):
        def mk(r):
            def f(): e(f"ds_bpermute_b32 v{pk+16+4*b+r}, v{vL16b}, v{pk+4*b+r}"); LG.issue(f"bp{b}")
            return f
        return [mk(r) for r in (0, 2, 1, 3)]
    def st(b):
        def f():
            LG.wait(f"bp{b}")
            e(f"buffer_store_dwordx4 {vr(pk+16+4*b,4)}, v{vOUT}, {srd(sOUT)}, s{sOB} offen offset:{64*b} {opt['outaux']}")
        return [f]
    fd = opt["fd"]
    Qo = [(0, f) for f in ([] if opt["a4"] else add(4))] + [(fd - 1, f) for f in add(2) + add(3)]
    n23 = len(Qo)
    Qo += [(2*K2 + fd - 1, f) for f in add(0) + add(1) + cvt(0) + cvt(1) + sw(0) + bp(0)]
    Qo += [(4*K2 + fd - 1, f) for f in cvt(2) + cvt(3) + sw(1) + bp(1) + st(0)]
    done = 0
    for i, (n, j) in enumerate(ML):
        if i == 2*K2:
            while done < n23: Qo.pop(0)[1](); done += 1
        VM.wait(f"h3_{n}")
        mf2(vr(ac+4*j,4), n, j, vr(hreg(3, n),4), vr(ac+4*j,4))
        for _ in range(opt["fr"]):
            if Qo and Qo[0][0] <= i: Qo.pop(0)[1](); done += 1
    stamp(); stamp(k=2)
    for _, f in Qo: f()
    for f in cvt(4): f()
    for r in range(4):
        e(f"buffer_store_short{'_d16_hi' if r % 2 else ''} v{pk+8+r//2}, v{vOUT2}, {srd(sOUT)}, s{sOB2} offen offset:{128 + r*1280} {opt['outaux']}")
    st(1)[0]()
def out_tail():
    stamp(); stamp(k=2)
    if opt["enc"]: stamp(True)
    ac = vACC2 + 20
    pk = vH + 64
    def cvt(j):
        for r in range(2): e(f"v_cvt_pk_bf16_f32 v{pk+2*j+r}, v{ac+4*j+2*r}, v{ac+4*j+2*r+1}")
    def swp(b):
        e(f"v_permlane32_swap_b32 v{pk+4*b}, v{pk+4*b+2}")
        e(f"v_permlane32_swap_b32 v{pk+4*b+1}, v{pk+4*b+3}")
        if opt["enc"]:
            e("s_waitcnt lgkmcnt(0)")
            e(f"v_lshrrev_b32 v{vT+1}, 4, v{vL16}")
            for r in range(4):
                i = 4*b + r
                e(f"v_mov_b32 v{vT}, s{72+2*i}")
                e("s_mov_b32 exec_lo, 0")
                e(f"v_mov_b32 v{vT}, s{72+2*min(i+8, 14)}")
                e("s_mov_b32 exec_lo, -1")
                e(f"v_lshrrev_b32 v{vT}, v{vT+1}, v{vT}")
                e(f"v_bfi_b32 v{pk+4*b+r}, 1, v{vT}, v{pk+4*b+r}")
        if opt["ofk"]:
            e(f"buffer_store_dwordx4 {vr(pk+4*b,4)}, v{vL16b if b else vOUT}, {srd(sOUT)}, s{sOB} offen {opt['outaux']}"); return
        e(f"buffer_store_dwordx4 {vr(pk+4*b,4)}, v{vOUT}, {srd(sOUT)}, s{sOB} offen offset:{64*b} {opt['outaux']}")
    if opt["bp"]:
        assert not opt["enc"]
        def sw(b):
            e(f"v_permlane32_swap_b32 v{pk+4*b}, v{pk+4*b+2}")
            e(f"v_permlane32_swap_b32 v{pk+4*b+1}, v{pk+4*b+3}")
        def bp(b, n):
            for r in range(n):
                e(f"ds_bpermute_b32 v{pk+16+4*b+r}, v{vL16b}, v{pk+4*b+r}"); LG.issue(f"bp{b}")
        def st(b):
            LG.wait(f"bp{b}")
            if b < 2: e(f"buffer_store_dwordx4 {vr(pk+16+4*b,4)}, v{vOUT}, {srd(sOUT)}, s{sOB} offen offset:{64*b} {opt['outaux']}")
            else: e(f"buffer_store_dwordx2 {vr(pk+24,2)}, v{vOUT2}, {srd(sOUT)}, s{sOB2} offen offset:128 {opt['outaux']}")
        e("s_nop 3")
        if opt["t4"]:
            cvt(0); cvt(1); cvt(2); sw(0); cvt(3); bp(0, 4); sw(1); cvt(4); bp(1, 4)
            for r in range(4):
                e(f"buffer_store_short{'_d16_hi' if r % 2 else ''} v{pk+8+r//2}, v{vOUT2}, {srd(sOUT)}, s{sOB2} offen offset:{128 + r*1280} {opt['outaux']}")
            st(0); st(1)
            return
        cvt(0); cvt(1); cvt(2); sw(0); cvt(3); bp(0, 4); cvt(4); sw(1); bp(2, 2); bp(1, 4); st(0); st(2); st(1)
        return
    e("s_nop 3")
    cvt(0); cvt(1); cvt(2); swp(0); cvt(3); cvt(4); swp(1)
    e(f"buffer_store_dwordx2 {vr(pk+8,2)}, v{vOUT2}, {srd(sOUT)}, s{sOB2 if D1 else sOB} offen offset:128 {opt['outaux']}")
def phase2_c():
    B1, B2, MA = opt["b1"], opt["b2"], opt["madd"]
    hp = opt["hpre"]
    ML = []
    WD = list(WDL)
    for i in range(48):
        g = [hload]
        k = 12 - len(WD)
        if WD and (i >= opt["w5s"] + (k - (12 - len(WDL))) * opt["w5k"] or i >= 24 + k): g.append(WD.pop(0))
        ML.append(g)
    assert not WD
    TL = []
    while len(TDONE) < 12: TL += tgroup_ops(len(TDONE))
    pre = [f for g in ML[:hp] for f in g]
    if opt["rcl"]:
        assert len(pre) == hp
        pre.append(r_check)
    for f in merge(pre, TL): f()
    del ML[:hp]
    LG.drain()
    stamp()
    A5 = 240
    def wr(blk, jj, src):
        def f():
            e(f"ds_write_b128 v{vRW if blk < 2 else vRW2}, {src} offset:{(blk%2)*32768 + jj*1024}"); LG.issue("red")
        return f
    def rd(pp, j, dst):
        def f():
            e(f"ds_read_b128 {vr(dst, 4)}, v{vRR+pp} offset:{j*1024}"); LG.issue(f"rr{pp}{j}")
        return f
    for p in range(4):
        ac = vACC2 + (p % 2) * 20
        pa = vACC2 + ((p-1) % 2) * 20
        NM = [4, 4, 7, 5][p]
        slots = {(n, j): [] for n in range(12) for j in range(NM)}
        def put(i0, step, fs):
            for k, f in enumerate(fs):
                i = i0 + k * step
                slots[(i // NM, i % NM)].append(f)
        if p > 0:
            ws = [wr(p-1, jj, vr(pa+4*jj, 4)) for jj in range(4)]
            if p == 3: ws += [wr(b, 4, ar(A5+4*b, 4)) for b in range(3)]
            put(NM, 2, ws)
            if p == 3: assert NM + 2*6 < B2 * NM
        if p == 2:
            assert B1 >= 4
            put(B1 * NM, 1, [rd(pp, j, vH + pp*48 + 4*j) for j in range(4) for pp in range(2)])
            def mk(i):
                def a():
                    LG.wait(f"rr1{i//4}")
                    e(f"v_add_f32 v{pa+i}, v{vH+i}, v{vH+48+i}")
                return a
            put(8 * NM, 1, [mk(i) for i in range(16)])
        if p == 3:
            put(B2 * NM, 1, [rd(pp, 4, vH + 16 + 4*pp) for pp in range(3)] + [rd(2, j, vH + 4*j) for j in range(4)])
            def mk(i):
                def a():
                    LG.wait(f"rr{1 + i//4}4")
                    e(f"v_add_f32 v{vH+16+i%4}, v{vH+16+i%4}, v{vH+20+i}")
                return a
            put((MA - 2) * NM, 1, [mk(i) for i in range(8)])
            assert MA - 2 >= B2 + 2
        for n in range(12):
            if (p == 2 and n == B1) or (p == 3 and n == B2):
                if p == 3: allc_check(); stamp(k=2)
                LG.drain(); e("s_barrier")
                if p == 3: stamp(k=2)
            VM.wait(f"h{p}_{n}")
            if n == 0 or (n == 6 and p < 3): stamp(k=2)
            def madd(j):
                LG.wait(f"rr2{j}")
                for r in range(4): e(f"v_add_f32 v{ac+4*j+r}, v{ac+4*j+r}, v{vH+4*j+r}")
            mid = p == 3 and n == MA
            if mid: e("s_nop 3"); madd(0)
            g = ML.pop(0) if ML else []
            for j in range(NM):
                if j < 4 or p == 3:
                    d = vr(ac+4*j, 4); b = p
                    c = "0" if n == 0 and (p < 3 or j == 4) else d
                else:
                    b = (j - 2) % 3
                    d = ar(A5+4*b, 4); c = "0" if n == 0 else d
                    assert not any(f is not hload and f.__defaults__[0] == n for gg in ML + [g] for f in gg), n
                    VM.wait(f"w{n}")
                if mid:
                    if j < 4: madd(j+1)
                    else: e("s_nop 0")
                e(f"v_mfma_f32_16x16x32_bf16 {d}, {ar(n*20+4*min(j,4),4)}, {vr(vH+(b*12+n)*4,4)}, {c}")
                if g and j in (opt["hj"], 3): g.pop(0)()
                for f in slots[(n, j)]: f()
            assert not g
    out_tail()
def phase2_ab():
    OA = opt["owna"]
    NE = opt["ne"]; NL = 12 - NE
    items = [(p, n) for p in range(3) for n in range(NE)] + [(3, n) for n in range(OA)]
    NA = len(items)
    items += [(p, n) for p in range(3) for n in range(NE, 12)] + [(3, n) for n in range(OA, 12)]
    NS = 36; vH2 = 112
    acc = lambda p, j: 24 + 20*p + 4*j
    hp = opt["hpre"]
    HI = list(range(48))
    seen = set()
    I0 = 0
    def own_mf(k):
        if not opt["own"] or k != opt["omp"]: return
        VM.wait("w0")
        for p in range(4):
            LG.wait(f"or{p}")
            for j in range(5):
                e(f"v_mfma_f32_16x16x32_bf16 {vr(acc(p,j),4)}, {ar(4*j,4)}, {vr(vH2+p*4,4)}, 0")
    if opt["own"]:
        items = [(p, 0) for p in range(4)] + [(p, n) for p in range(4) for n in range(1, 12)]
        HI = HI[4:]; I0 = 4; seen = {0, 1, 2, 3}
        for p in range(4):
            e(f"ds_read_b128 {vr(vH2+p*4, 4)}, v{vOW+2} offset:{p*1024}"); LG.issue(f"or{p}")
    def hl():
        if not HI: return
        i = HI.pop(0); p, n = items[i]
        if i == NA and not opt["dfw"]:
            spin_check("hpb", vPOLL, vPA, "pollB", sPOL, opt["nopoll"]); stamp(k=7)
        e(f"buffer_load_dwordx4 {vr(vH2 + (i % NS)*4, 4)}, v{vHB+p}, {srd(sH)}, s{sSIG+n} offen {opt['haux'].replace('-','')}"); VM.issue(f"h{i}")
    if opt["pae"] < 0:
        for f in take(max(0, len(W2L) - opt["pa"])): f()
        e(f"buffer_load_dword v{vPOLL}, v{vPA}, {srd(sH)}, s{sPOL} offen sc1"); VM.issue("poll")
        for f in take(opt["ec"]): f()
    own_mf(0)
    VM.wait("poll")
    stamp(); stamp(k=7)
    spin_check("hp", vPOLL, vPA, "poll", sPOL, opt["nopoll"])
    stamp(); stamp(k=2); stamp(k=7)
    e(f"s_add_u32 s{sPOL}, s{sPOL}, {FLB}")
    allc_load()
    for _ in range(hp): hl()
    for f in take(opt["wsk"]): f()
    own_mf(1)
    stamp()
    slots = {(i, j): [] for i in range(48) for j in range(5)}
    if opt["own"]: NA = 37
    L3 = NA + 3*NL
    for p in range(3):
        i0 = NA + NL*(p+1) if NL else NE*(p+1)
        if opt["own"]: i0 = 4 + 11*(p+1)
        for jj, (di, j) in enumerate([(1, 0), (1, 2), (1, 4), (2, 1), (2, 3)]):
            def w(jj=jj, p=p):
                e(f"ds_write_b128 v{vRW}, {vr(acc(p,jj),4)} offset:{p*5120 + jj*1024}"); LG.issue("red")
            slots[(i0 + di, j)].append(w)
    IB = L3 + opt["rb"]
    k = 0
    rest = 48 - IB
    assert rest >= 1
    rds = []
    for j in range(5):
        for pp in range(3):
            def f(pp=pp, j=j):
                e(f"ds_read_b128 {vr(acc(pp,j), 4)}, v{vRR+pp} offset:{j*1024}"); LG.issue(f"rr{j}")
            rds.append(f)
    per = 1 if rest >= 7 else 3
    for k, f in enumerate(rds): slots[(IB + k // per // 5, k // per % 5)].append(f)
    adds = []
    for j in range(5):
        for pp in (1, 2):
            for r in (0, 2):
                def a(j=j, pp=pp, r=r):
                    LG.wait(f"rr{j}")
                    if opt["epk"]: e(f"v_pk_add_f32 {vr(acc(0,j)+r,2)}, {vr(acc(0,j)+r,2)}, {vr(acc(pp,j)+r,2)}")
                    else:
                        for z in range(2): e(f"v_add_f32 v{acc(0,j)+r+z}, v{acc(0,j)+r+z}, v{acc(pp,j)+r+z}")
                adds.append(a)
    MA = 47 if rest >= 7 else None
    if MA:
        a0 = (MA - 3) * 5 - 5
        for k, f in enumerate(adds): slots[((a0 + k) // 5, (a0 + k) % 5)].append(f)
    for i, (p, n) in enumerate(items):
        if i < I0: continue
        if i == IB:
            allc_check(); stamp(k=2)
            LG.drain(); e("s_barrier")
            stamp(k=2)
        assert i not in HI and not any(f.__defaults__[0] == n for f in W2L), (i, n)
        late = max((f"h{i}", f"w{n}"), key=lambda t: len(VM.q) - 1 - VM.q[::-1].index(t) if t in VM.q else -1)
        VM.wait(late)
        if i % 8 == 0: stamp(k=2)
        def madd(j):
            if opt["epk"]:
                for r in (0, 2): e(f"v_pk_add_f32 {vr(acc(3,j)+r,2)}, {vr(acc(3,j)+r,2)}, {vr(acc(0,j)+r,2)}")
            else:
                for r in range(4): e(f"v_add_f32 v{acc(3,j)+r}, v{acc(3,j)+r}, v{acc(0,j)+r}")
        mid = i == MA
        if mid: e("s_nop 3"); madd(0)
        for j in range(5):
            c = vr(acc(p,j), 4) if p in seen else "0"
            if mid:
                if j < 4: madd(j+1)
                else: e("s_nop 1")
            e(f"v_mfma_f32_16x16x32_bf16 {vr(acc(p,j),4)}, {ar(n*20+4*j,4)}, {vr(vH2+(i % NS)*4,4)}, {c}")
            if j == opt["hj"]: hl()
            if j == 3 and i % opt["wr"] == 0:
                for f in take(1): f()
            if j == 4 and i == opt["pb"] and not opt["dfw"]:
                e(f"buffer_load_dword v{vPOLL}, v{vPA}, {srd(sH)}, s{sPOL} offen sc1"); VM.issue("pollB")
            for f in slots[(i, j)]: f()
        seen.add(p)
    stamp(); stamp(k=2); stamp(k=7)
    if opt["enc"]: stamp(True)
    ac = acc(3, 0)
    pk = vH2 + 64
    if not MA:
        for f in adds: f()
        for j in range(5): madd(j)
    def cvt(j):
        for r in range(2): e(f"v_cvt_pk_bf16_f32 v{pk+2*j+r}, v{ac+4*j+2*r}, v{ac+4*j+2*r+1}")
    def swp(b):
        e(f"v_permlane32_swap_b32 v{pk+4*b}, v{pk+4*b+2}")
        e(f"v_permlane32_swap_b32 v{pk+4*b+1}, v{pk+4*b+3}")
        if opt["enc"]:
            e("s_waitcnt lgkmcnt(0)")
            e(f"v_lshrrev_b32 v{vT+1}, 4, v{vL16}")
            for r in range(4):
                i = 4*b + r
                e(f"v_mov_b32 v{vT}, s{72+2*i}")
                e("s_mov_b32 exec_lo, 0")
                e(f"v_mov_b32 v{vT}, s{72+2*min(i+8, 14)}")
                e("s_mov_b32 exec_lo, -1")
                e(f"v_lshrrev_b32 v{vT}, v{vT+1}, v{vT}")
                e(f"v_bfi_b32 v{pk+4*b+r}, 1, v{vT}, v{pk+4*b+r}")
        e(f"buffer_store_dwordx4 {vr(pk+4*b,4)}, v{vOUT}, {srd(sOUT)}, s{sOB} offen offset:{64*b} {opt['outaux']}")
    e("s_nop 3")
    cvt(0); cvt(1); cvt(2); swp(0); cvt(3); cvt(4); swp(1)
    e(f"buffer_store_dwordx2 {vr(pk+8,2)}, v{vOUT2}, {srd(sOUT)}, s{sOB} offen offset:128 {opt['outaux']}")
assert opt["tail"]
if opt["ab"] or opt["dfw"]: phase2_ab()
elif opt["c5"]: phase2_c()
else: phase2_new()
e(f"s_or_b32 s{sT0}, s{sW}, s2")
e(f"s_cmp_lg_u32 s{sT0}, 0")
e("s_cbranch_scc1 L_nobump")
e(f"s_add_u32 s{sE}, s{sE}, 1")
e(f"v_mov_b32 v{vT}, s{sE}")
e(f"s_mov_b32 s{sT0}, {EP}")
e("s_mov_b64 exec, 1")
e(f"buffer_store_dword v{vT}, off, {srd(sH)}, s{sT0}")
e("s_mov_b64 exec, -1")
e("L_nobump:")
if opt["enc"]: sys.stderr.write(f"enc stamps {NST[0]}\n")
if opt["stamps"] and not opt["enc"]:
    e("s_waitcnt vmcnt(0)")
    stamp(k=-1); stamp(True)
    ns = NST[0]
    assert 72 + 2*ns <= 102
    e("s_waitcnt lgkmcnt(0)")
    if opt["amp"] >= 0 and opt["ampa"]:
        a = opt["amp"] if opt["amp"] < ns else ns - 2
        e("s_load_dwordx2 s[64:65], s[0:1], 32")
        e("s_not_b32 s60, s74")
        e("v_mov_b32 v24, s60")
        e("v_mov_b32 v25, 0")
        e("s_mov_b64 exec, 1")
        e("s_waitcnt lgkmcnt(0)")
        e("s_lshr_b32 s60, s2, 3")
        e(f"s_or_b32 s60, s60, s{sW}")
        e("s_cbranch_scc1 L_ampn")
        e("global_atomic_umax v25, v24, s[64:65] sc1")
        e("s_waitcnt vmcnt(0)")
        e("L_ampn:")
        if opt["ampw"] >= 0:
            e(f"s_cmp_lg_u32 s2, {opt['ampw']}")
            e("s_cbranch_scc1 L_end")
        if opt["ampx"] >= 0:
            e("s_and_b32 s60, s2, 7")
            e(f"s_cmp_lg_u32 s60, {opt['ampx']}")
            e("s_cbranch_scc1 L_end")
        if opt["ampl"] >= 0:
            e("s_lshr_b32 s60, s2, 3")
            e(f"s_cmp_lg_u32 s60, {opt['ampl']}")
            e("s_cbranch_scc1 L_end")
        e("s_mov_b32 s61, 200000")
        e("L_amp0:")
        e("s_memrealtime s[62:63]")
        e("s_sub_u32 s61, s61, 1")
        e("s_cbranch_scc1 L_end")
        e("s_waitcnt lgkmcnt(0)")
        e("s_sub_u32 s62, s62, s74")
        e("s_cmp_lt_u32 s62, 1500")
        e("s_cbranch_scc1 L_amp0")
        e("global_load_dword v24, v25, s[64:65] sc0 sc1")
        e("s_waitcnt vmcnt(0)")
        e("v_readfirstlane_b32 s66, v24")
        e("s_not_b32 s66, s66")
        e(f"s_sub_u32 s60, s{72+2*a}, s66")
        e(f"s_min_u32 s60, s60, 5000")
        e(f"s_mul_i32 s60, s60, {opt['ampk']}")
        e(f"s_add_u32 s60, s60, {opt['ampc']}")
        e(f"s_min_u32 s60, s60, 50000")
        e(f"s_mov_b32 s61, 200000")
        e("L_amp:")
        e("s_memrealtime s[62:63]")
        e("s_sub_u32 s61, s61, 1")
        e("s_cbranch_scc1 L_end")
        e("s_waitcnt lgkmcnt(0)")
        e("s_sub_u32 s62, s62, s66")
        e("s_cmp_lt_u32 s62, s60")
        e("s_cbranch_scc1 L_amp")
        e("s_branch L_end")
    elif opt["amp"] >= 0:
        if opt["ampw"] >= 0:
            e(f"s_cmp_lg_u32 s2, {opt['ampw']}")
            e("s_cbranch_scc1 L_end")
        a = opt["amp"] if opt["amp"] < ns else ns - 2
        e(f"s_sub_u32 s60, s{72+2*a}, s{72+2*opt['ampb']}")
        e(f"s_mul_i32 s60, s60, {opt['ampk']}")
        e(f"s_lshr_b32 s60, s60, {opt['amps']}")
        e(f"s_min_u32 s60, s60, 50000")
        e(f"s_mov_b32 s61, 200000")
        e("L_amp:")
        e("s_memrealtime s[62:63]")
        e("s_sub_u32 s61, s61, 1")
        e("s_cbranch_scc1 L_end")
        e("s_waitcnt lgkmcnt(0)")
        e(f"s_sub_u32 s62, s62, s{72+2*(ns-1)}")
        e("s_cmp_lt_u32 s62, s60")
        e("s_cbranch_scc1 L_amp")
        e("s_branch L_end")
    if opt["rt"]:
        e(f"s_lshl_b32 s{sT0}, s2, 2")
        e(f"s_add_u32 s{sT0}, s{sT0}, s{sW}")
        e(f"s_mul_i32 s{sT0}, s{sT0}, {ns*8}")
    else:
        e(f"s_cmp_lg_u32 s{sW}, {opt['stamps']-1}")
        e("s_cbranch_scc1 L_end")
        e(f"s_mul_i32 s{sT0}, s2, {ns*8}")
    e("s_mov_b64 exec, 1")
    e(f"s_add_u32 s{sT0}, s{sT0}, {0x8000000 - (opt['wso'] << 20)}")
    e(f"v_mov_b32 v{vT}, s{sT0}")
    for i in range(ns):
        e(f"v_mov_b32 v24, s{72+2*i}"); e(f"v_mov_b32 v25, s{73+2*i}")
        e(f"global_store_dwordx2 v{vT}, v[24:25], s[12:13] offset:{i*8}"); e("s_nop 1")
    sys.stderr.write(f"nstamps {ns}\n")
LATE += OOL
if LATE:
    e("s_endpgm")
    O.extend(LATE)
e("L_end:")

hdr = f"""; FFN out = silu(x @ w1) @ w2, one launch, 256 workgroups (one per CU).
; @launch grid=(256,1,1) block=(256,1,1) lds=163840
.amdgcn_target "amdgcn-amd-amdhsa--gfx950"
.text
.globl {NAME}
.p2align 8
.type {NAME},@function
{NAME}:
"""
ftr = f"""s_endpgm
.section .rodata,"a"
.p2align 6
.amdhsa_kernel {NAME}
  .amdhsa_next_free_vgpr 512
  .amdhsa_next_free_sgpr 102
  .amdhsa_accum_offset 256
  .amdhsa_group_segment_fixed_size 0
  .amdhsa_kernarg_size 48
  .amdhsa_user_sgpr_count 2
  .amdhsa_user_sgpr_kernarg_segment_ptr 1
  .amdhsa_system_sgpr_workgroup_id_x 1
.end_amdhsa_kernel
"""
def sizes(lines):
    import subprocess, tempfile, os, re
    d = tempfile.mkdtemp()
    t = hdr + "\n".join(f"Z{i}:\n{l}" for i, l in enumerate(lines)) + "\nL_w1x:\n" + ftr
    for k in range(1, 4):
        if f"L_w{k}:" not in lines: t = t.replace(f"L_w{k}\n", "L_w1x\n")
    open(d + "/a.s", "w").write(t)
    r = subprocess.run(["clang", "-x", "assembler", "-target", "amdgcn-amd-amdhsa", "-mcpu=gfx950", "-c", d + "/a.s", "-o", d + "/a.o"], capture_output=True, text=True)
    assert r.returncode == 0, r.stderr
    import struct
    b = open(d + "/a.o", "rb").read()
    shoff = struct.unpack_from("<Q", b, 0x28)[0]; shn = struct.unpack_from("<H", b, 0x3c)[0]
    sec = [struct.unpack_from("<IIQQQQIIQQ", b, shoff + 64*i) for i in range(shn)]
    sy = [x for x in sec if x[1] == 2][0]; st = sec[sy[6]]
    ad = {}
    for i in range(sy[5] // 24):
        n, _, _, _, v, _ = struct.unpack_from("<IBBHQQ", b, sy[4] + 24*i)
        nm = b[st[4]+n:b.index(b"\0", st[4]+n)].decode()
        if re.fullmatch(r"Z\d+", nm): ad[int(nm[1:])] = v
    return ad
if opt["wu"] >= 0:
    assert opt["al"]
    for k in range(1, 4):
        ad = sizes(O)
        i = min(j for j in range(len(O)) if ad[j] >= 4096*k and not O[j].startswith(".") and not O[j].endswith(":"))
        O[i:i] = [f"L_w{k}:", "s_cbranch_execz L_wr"]
        sys.stderr.write(f"page {k}: {O[i-1]} | {O[i+2]}\n")
    if opt["stamps"]: sys.stderr.write(f"nstamps {NST[0]}\n")
body = "\n".join(("" if l.endswith(":") else "    ") + l.rstrip() for l in O)
open(sys.argv[1], "w").write(hdr + body + "\n" + ftr)
```

```python
import sys
from haz import fix
NAME = "standalone__dense_activation_silu__prompt_kernel"
opt = dict(hm=0, xt=-1, xr0=4, xts=-1, xtp=0, wss=0, pv=-1, pvm=1, pvs=-1, wtn=15, wst='', wsh=3, wsb=0, r48=0, o48=0, q48=0, l48=0, ab2=0, fa=0, fas=-1, pab=0, xb=0, qa=4, oa=0, wr2='1', ws0=0, pb2=8, rb2=3, fake=0, fb2=2, erp=1, sw1=0, sw2=0, emo=0, emaux='sc1', ampc=2000, ampa=0, ampx=-1, ampl=-1, amp=-1, ampb=1, ampk=4, amps=0, ampw=-1, tpre=0, fpre=0, rpl=-1, rtab='', ttab='', pfs='', skd=0, sk5=0, al=0, wu=-1, pat='', pat1='', hid=0, r16=0, ro=0, sil=0, sild=2, silk='1', e7=0, e7a=10, e7b=10, fp='', qm=0, swab=0, wtc=0, rmap=0, nw=-1, wx='', wxp=99, acb=0, acp=-1, wq='', rds=1, ad0=8, t4=0, k4=0, k2=3, fr=3, fd=2, a4=0, bp=0, ofk=0, w5aux='sc1', rpk=0, pl2=7, nom=0, owv=1, ow=0, owp=2, ada=7, wb64=0, wg0=3, wgs=2, smd=0, dst=-1, dn=4, st0=0, nhw=0, wtx=0, tfm=0, tpm=0, tsil=0, c5=0, w5s=8, w5k=2, rcl=0, w5d=0, tin=0, sw=-1, sws=-1, swp=0, swn=15, ems=1, pqd=0, tlate=0, tmix=1, wt=-1, wts=-1, wtp=99, wth=0, wtaux='', d1=0, d7=0, w5p=4, tl=8, rpq=0, waux='', es=-1, esaux='sc1', ot=-1, otm=1, enc=0, w0p=0, own=0, omp=0, dfw=0, ne=8, clr=-1, clrs='', spec=0, fw=12, wl=0, rsp=99, rrp=0, fb=0, tch=0, la=4, tp0=0, tpos=8, th=1, ns=3, n7=0, rcs=8, epk=1, fk=0, ost=0, pae=-1, wsk=0, afs=0, ab=0, afp=0, pa=20, pb=6, wr=1, owna=0, rb=4, skipw=0, m16=0, rtm=0, po="", rsaux="sc1", emu="", emv=1, fs=128, dw=8, eq=0, ec=4, epre=16, eil="h12w9", pfm=3, stamps=0, rot=1, rot2=1, pf=1, outaux="", map=2, raux="nt", xaux="", haux="sc1", hsaux="sc1", hs2="", wb=0, wso=0, sp=0, spg="", nord=0, nomf1=0, norp=0, pk=1, tail=1, b1=4, b2=4, madd=8, pt=0, fst=0, tab="x037", nost=0, novalu=0, nomf2=0, noh=0, hj=1, w2aux="sc1", w1aux="",
           sa=0, ma=10, sb=0, mb=10, mx=0, n8=8, n9=8, nb=0, post=0, pollq=8, hpre=8, sep=0, sts=0, rpos=0, rls=0, rjs=2, rpp=0, rps=7, rck=0, nopoll=0, rfs=4, sl=0, head=50, nf0=4, pre3=0, rt=0, own2=2, ntst=10, mid=2, xlin=0, nor=0)
for a in sys.argv[2:]:
    k, v = a.split("=")
    assert k in opt, k
    opt[k] = int(v) if v.lstrip("-").isdigit() else v.replace("_", " ")
if opt["own"]: opt["dfw"] = 1; opt["ne"] = 12; assert opt["fb"] and opt["own2"] == 2
D1 = opt['d1']
RPW = opt['rfs'] >= 10
if RPW: assert D1 and opt['rpk']
R2 = '2' in str(opt['rtab'])
if R2: assert D1 and opt['rpk'] and not RPW and not opt['ow']
OW = opt['ow']
if OW: assert D1 and opt['own2'] == 2 and opt['post'] <= 12 and not opt['c5'] and not opt['w5d'] and not opt['smd'] and str(opt['nb']) == '0'
if D1: assert not (opt['own'] or opt['ab'] or opt['dfw'] or opt['spec'] or opt['eq'] or opt['tch'] or opt['po']) and opt['fb'] and opt['ns'] == 3
O = []
def e(s): O.append(s)
NST = [0]
def stamp(rt=False, k=0):
    if not opt["stamps"]: return
    if not rt and NST[0] > 1 and k != opt["sts"] and k != -1: return
    i = NST[0]; NST[0] += 1
    e(f"s_memrealtime s[{72+2*i}:{73+2*i}]" if rt or opt["rt"] or opt["rtm"] else f"s_memtime s[{72+2*i}:{73+2*i}]")

class Q:
    def __init__(s, name, mx): s.name = name; s.mx = mx; s.q = []
    def issue(s, tag): s.q.append(tag)
    def wait(s, tag):
        if tag not in s.q: return
        i = len(s.q) - 1 - s.q[::-1].index(tag)
        n = min(len(s.q) - 1 - i, s.mx)
        e(f"s_waitcnt {s.name}({n})")
        s.q = s.q[len(s.q)-n:] if n else []
    def drain(s):
        e(f"s_waitcnt {s.name}(0)"); s.q = []
VM = Q("vmcnt", 63); LG = Q("lgkmcnt", 15)

FL = 0x600000; EP = 0x608000; RFL = 0x610000; W2F = 0x620000; HREC = 0x800000
if opt['spec']: FL = 0x800000; HREC = 0x820000
FS = opt["fs"]
if FS > 128: FL = 0x800000; HREC = FL + 256 * FS
FLB = 0x200000
if opt["ab"]: HREC = 0x808000
RED = 98304; RB = 98304 if opt['ns'] == 3 else 131072; CNT = 159744
NSL = opt['ns']
sX, sW1, sW2, sOUT, sH = 16, 20, 24, 28, 32
(sW, sMT, sFT, sKX, sKW, sXB, sWB, sXE, sM0, sT0, sT1, sE, sTAG, sHS, sHS2, sFLG, sPOL, sW2B, sOWN, sROT,
 sRS, sRD, sWO, sL2E) = range(36, 60)
sSIG = 60
sPK = 4; sOB = 3; sRFL = 14; sSPIN = 15
vL16 = 1; vL16b = 2; vOUT = 3; vOUT2 = 4; vRW = 5; vRP = 6; vHS = 7
vPOLL = 8; vL4 = 9; vPA = 19
vRR = 10
vHB = 13
vT = 17
vCN = 20; vONE = 21; vAV = 22; vAC = 23
vDX = 24; vDW = 26; vDR = 32
vA = 34; vB = 36
vRA = 44
vTM = 46
vACC1 = 64; vAF = 112; vBF = 160; vS = 176; vRF = 192
vWD = 56; vWT = 60; sW5B = 6; sOB2 = 7; vRW2 = 20
vH = 64; vACC2 = 24; vOW = 240; OWN = 32768; sHS1 = 6
def mf2(d, n, j, b, c):
    a = ar(n*20+4*j, 4)
    if j == 4 and opt["t4"]: a, b = b, a
    if opt["sw2"] == 1 and j < 4: a, b = b, a
    if opt["sw2"] == 2 and j == 4: a, b = b, a
    e(f"v_mfma_f32_16x16x32_bf16 {d}, {a}, {b}, {c}")
def srd(r): return f"s[{r}:{r+3}]"
def vr(r, n): return f"v[{r}:{r+n-1}]"
def ar(r, n): return f"a[{r}:{r+n-1}]"
def capture(fn):
    global O
    sv = O; O = []; fn(); r = O; O = sv; return r

e("s_cmp_ge_u32 s2, 256")
e("s_cbranch_scc1 L_end")
stamp(True); stamp()
e("s_load_dwordx8 s[4:11], s[0:1], 0")
e("s_load_dwordx2 s[12:13], s[0:1], 40")
L, Wv = vTM, vTM+1
t0, t1, t2, t3 = vTM+2, vTM+3, vTM+4, vTM+5
e(f"v_and_b32 v{L}, 63, v0")
e(f"v_lshrrev_b32 v{Wv}, 6, v0")
e(f"v_lshlrev_b32 v{vL16}, 4, v{L}")
e(f"v_readfirstlane_b32 s{sW}, v{Wv}")
if opt["pf"]:
    e("s_getpc_b64 s[14:15]")
    e("L_pc:")
    if opt["pfs"]:
        tb = (str(opt["pfs"]).lstrip("x") + "0" * 32)[:32]
        tv = sum(int(c) << (2*i) for i, c in enumerate(tb))
        e(f"s_lshr_b32 s{sT0}, s2, 2")
        e(f"s_and_b32 s{sT0}, s{sT0}, 62")
        if tv >> 32:
            e(f"s_mov_b32 s{sSIG}, {tv & 0xffffffff}")
            e(f"s_mov_b32 s{sSIG+1}, {tv >> 32}")
            e(f"s_lshr_b64 s[{sSIG}:{sSIG+1}], s[{sSIG}:{sSIG+1}], s{sT0}")
        else:
            e(f"s_lshr_b64 s[{sSIG}:{sSIG+1}], {tv}, s{sT0}")
        e(f"s_and_b32 s{sT0}, s{sSIG}, 3")
    else:
        e(f"s_lshr_b32 s{sT0}, s2, 3")
        e(f"s_and_b32 s{sT0}, s{sT0}, {opt['pfm']}")
    e(f"s_lshl_b32 s{sT0}, s{sT0}, 12")
    e(f"v_lshl_add_u32 v{t0}, v0, 4, s{sT0}")
    e(f"v_min_u32 v{t0}, L_end-L_pc-16, v{t0}")
    e(f"global_load_dwordx4 v[252:255], v{t0}, s[14:15]")
    VM.issue("pf")
fa = opt["map"]
e(f"s_and_b32 s{sT0}, s2, 7")
e(f"s_lshr_b32 s{sT1}, s2, 3")
e(f"s_and_b32 s{sFT}, s{sT1}, {(1<<fa)-1}")
e(f"s_lshr_b32 s{sMT}, s{sT1}, {fa}")
if opt["rot"] == 3:
    tb = str(opt["tab"]).lstrip("x")
    tv = sum(int(c) << (4*i) for i, c in enumerate((tb * 16)[:16]))
    e(f"s_mul_i32 s{sKX}, s{sMT}, {opt['ma']}")
    e(f"s_mul_i32 s{sT1}, s{sFT}, {opt['mb']}")
    e(f"s_add_u32 s{sKX}, s{sKX}, s{sT1}")
    e(f"s_lshl_b32 s{sKX}, s{sKX}, 2")
    e(f"s_mov_b32 s{sSIG}, {tv & 0xffffffff}")
    e(f"s_mov_b32 s{sSIG+1}, {tv >> 32}")
    e(f"s_lshr_b64 s[{sSIG}:{sSIG+1}], s[{sSIG}:{sSIG+1}], s{sKX}")
    e(f"s_and_b32 s{sKX}, s{sSIG}, 15")
elif opt["rot"]:
    e(f"s_lshr_b32 s{sKX}, s{sMT}, {opt['sa']}")
    e(f"s_mul_i32 s{sKX}, s{sKX}, {opt['ma']}")
    e(f"s_lshr_b32 s{sT1}, s{sFT}, {opt['sb']}")
    e(f"s_mul_i32 s{sT1}, s{sT1}, {opt['mb']}")
    e(f"s_add_u32 s{sKX}, s{sKX}, s{sT1}")
    if opt['mx']:
        e(f"s_mul_i32 s{sT1}, s{sT0}, {opt['mx']}")
        e(f"s_add_u32 s{sKX}, s{sKX}, s{sT1}")
    e(f"s_lshr_b32 s{sKX}, s{sKX}, 2")
    e(f"s_mul_i32 s{sT1}, s{sKX}, 205")
    e(f"s_lshr_b32 s{sT1}, s{sT1}, 11")
    e(f"s_mul_i32 s{sT1}, s{sT1}, 10")
    e(f"s_sub_u32 s{sKX}, s{sKX}, s{sT1}")
else:
    e(f"s_mov_b32 s{sKX}, 0")
if opt["ab"]:
    e(f"s_lshl_b32 s{sROT}, s{sMT}, 2")
elif opt["rot2"] == 3:
    e(f"s_and_b32 s{sROT}, s{sMT}, 1")
    e(f"s_mul_i32 s{sROT}, s{sROT}, 6")
elif opt["rot2"] == 4:
    e(f"s_lshr_b32 s{sROT}, s{sMT}, 1")
    e(f"s_mul_i32 s{sROT}, s{sROT}, 3")
elif opt["rot2"] == 5:
    e(f"s_and_b32 s{sROT}, s{sMT}, 3")
elif opt["rot2"] == 6:
    e(f"s_mul_i32 s{sROT}, s{sMT}, 3")
    e(f"s_lshr_b32 s{sROT}, s{sROT}, 3")
    e(f"s_lshl_b32 s{sROT}, s{sROT}, 2")
elif opt["rot2"] == 7:
    e(f"s_mul_i32 s{sROT}, s{sMT}, 12")
    e(f"s_lshr_b32 s{sROT}, s{sROT}, 3")
    e(f"s_bitcmp1_b32 s2, 1")
    e(f"s_addc_u32 s{sROT}, s{sROT}, 0")
elif opt["rot2"] == 2:
    e(f"s_and_b32 s{sROT}, s{sMT}, 3")
    e(f"s_mul_i32 s{sROT}, s{sROT}, 3")
elif opt["rot2"]:
    e(f"s_mul_i32 s{sROT}, s{sMT}, 12")
    e(f"s_lshr_b32 s{sROT}, s{sROT}, {5-fa}")
else:
    e(f"s_mov_b32 s{sROT}, 0")
e(f"s_and_b32 s{sT1}, s{sT0}, {(8>>fa)-1}")
e(f"s_lshl_b32 s{sT1}, s{sT1}, {fa}")
e(f"s_add_u32 s{sFT}, s{sFT}, s{sT1}")
e(f"s_lshr_b32 s{sT1}, s{sT0}, {3-fa}")
e(f"s_lshl_b32 s{sT1}, s{sT1}, {5-fa}")
e(f"s_add_u32 s{sMT}, s{sMT}, s{sT1}")
e(f"s_mul_i32 s{sXB}, s{sMT}, 81920")
e(f"s_mul_i32 s{sWB}, s{sFT}, 384")
e(f"s_add_u32 s{sXE}, s{sXB}, 1280")
e(f"s_mul_i32 s{sKW}, s{sKX}, {64*3072}")
e(f"s_add_u32 s{sKW}, s{sKW}, s{sWB}")
e(f"s_lshl_b32 s{sKX}, s{sKX}, 7")
e(f"s_add_u32 s{sKX}, s{sKX}, s{sXB}")
G = vTM+6
e(f"v_lshrrev_b32 v{G}, 4, v{L}")
e(f"v_lshrrev_b32 v{t0}, 3, v{L}")
e(f"v_lshl_add_u32 v{t0}, v{Wv}, 4, v{t0}")
e(f"v_mul_u32_u24 v{t0}, 1280, v{t0}")
e(f"v_and_b32 v{t1}, 7, v{L}")
e(f"v_xor_b32 v{t1}, v{t1}, v{G}")
e(f"v_lshl_add_u32 v{vDX}, v{t1}, 4, v{t0}")
e(f"v_xor_b32 v{t1}, 4, v{t1}")
e(f"v_lshl_add_u32 v{vDX+1}, v{t1}, 4, v{t0}")
e(f"v_add_u32 v{vDX+1}, {8*1280-1024}, v{vDX+1}")
if opt["xlin"]:
    e(f"v_lshl_add_u32 v{vDX}, v{Wv}, 11, v{vL16}")
    e(f"v_mov_b32 v{vDX+1}, v{vDX}")
    e(f"s_and_b32 s{sT0}, s{sFT}, 3")
    e(f"s_mul_i32 s{sT0}, s{sT0}, {opt['xlin']}")
    e(f"s_lshr_b32 s{sT0}, s{sT0}, 2")
    e(f"s_lshl_b32 s100, s{sT0}, 13")
    e(f"s_add_u32 s100, s100, s{sXB}")
    e(f"s_add_u32 s101, s{sXB}, 81920")
e(f"v_mul_u32_u24 v{t3}, {16*3072}, v{Wv}")
for i in range(3):
    if i: e(f"v_add_u32 v{t0}, {64*i}, v{L}")
    src = t0 if i else L
    e(f"v_mul_u32_u24 v{t1}, 2731, v{src}")
    e(f"v_lshrrev_b32 v{t1}, 16, v{t1}")
    e(f"v_mul_u32_u24 v{t2}, 24, v{t1}")
    e(f"v_sub_u32 v{t0}, v{src}, v{t2}")
    e(f"v_and_b32 v{t2}, 2, v{t1}")
    e(f"v_lshlrev_b32 v{t2}, 1, v{t2}")
    e(f"v_xor_b32 v{t0}, v{t0}, v{t2}")
    if opt["r48"]:
        e(f"v_and_b32 v{t2}, 16, v{t0}")
        e(f"v_add_u32 v{t2}, 16, v{t2}")
    e(f"v_mul_u32_u24 v{t1}, 3072, v{t1}")
    e(f"v_lshl_add_u32 v{t0}, v{t0}, 4, v{t1}")
    e(f"v_add_u32 v{t0}, v{t0}, v{t3}")
    if i: e(f"v_subrev_u32 v{vDW+i}, {i*1024}, v{t0}")
    else: e(f"v_mov_b32 v{vDW}, v{t0}")
    if opt["r48"]: e(f"v_xor_b32 v{t0}, v{t2}, v{t0}")
    elif opt["r16"]: e(f"v_xor_b32 v{t0}, 16, v{t0}")
    e(f"v_add_u32 v{vDW+3+i}, {8*3072 - ((i+3)%4)*1024}, v{t0}")
if opt["e7"]:
    e(f"s_lshr_b32 s{sT0}, s{sMT}, 1")
    e(f"s_and_b32 s{sT1}, s{sMT}, 1")
    e(f"s_lshl1_add_u32 s{sT1}, s{sFT}, s{sT1}")
    e(f"s_mul_i32 s{sXB}, s{sT0}, 163840")
    e(f"s_mul_i32 s{sWB}, s{sT1}, {192 if opt['e7'] == 1 else 128}")
    e(f"s_and_b32 s{sT0}, s{sT0}, 3")
    e(f"s_and_b32 s{sT1}, s{sT1}, 7")
    e(f"s_mul_i32 s{sT0}, s{sT0}, {opt['e7a']}")
    e(f"s_mul_i32 s{sT1}, s{sT1}, {opt['e7b']}")
    e(f"s_add_u32 s{sKX}, s{sT0}, s{sT1}")
    e(f"s_lshr_b32 s{sKX}, s{sKX}, 2")
    e(f"s_mul_i32 s{sT1}, s{sKX}, 205")
    e(f"s_lshr_b32 s{sT1}, s{sT1}, 11")
    e(f"s_mul_i32 s{sT1}, s{sT1}, 10")
    e(f"s_sub_u32 s{sKX}, s{sKX}, s{sT1}")
    e(f"s_add_u32 s{sXE}, s{sXB}, 1280")
    e(f"s_mul_i32 s{sKW}, s{sKX}, {64*3072}")
    e(f"s_add_u32 s{sKW}, s{sKW}, s{sWB}")
    e(f"s_lshl_b32 s{sKX}, s{sKX}, 7")
    e(f"s_add_u32 s{sKX}, s{sKX}, s{sXB}")
    e(f"v_mul_u32_u24 v{t0}, {16*1280}, v{Wv}")
    e(f"v_add_u32 v{vDX}, v{vDX}, v{t0}")
    e(f"v_add_u32 v{vDX+1}, v{vDX+1}, v{t0}")
    e(f"v_add_u32 v{vDW+4}, {16*1280}, v{vDX}")
    e(f"v_add_u32 v{vDW+5}, {16*1280}, v{vDX+1}")
    for i in range(3):
        e(f"v_add_u32 v{t0}, {64*i}, v{L}")
        if opt["e7"] == 1:
            e(f"v_mul_u32_u24 v{t1}, 5462, v{t0}")
            e(f"v_lshrrev_b32 v{t1}, 16, v{t1}")
            e(f"v_mul_u32_u24 v{t1}, {3072 - 192}, v{t1}")
        else:
            e(f"v_lshrrev_b32 v{t1}, 3, v{t0}")
            e(f"v_mul_u32_u24 v{t1}, {2048 - 128}, v{t1}")
        e(f"v_lshl_add_u32 v{t0}, v{t0}, 4, v{t1}")
        e(f"v_add_u32 v{t0}, v{t0}, v{t3}")
        e(f"v_subrev_u32 v{vDW+i}, {i*1024}, v{t0}")
vTC = 250
if opt["tch"]:
    e(f"v_lshrrev_b32 v{t0}, 1, v{L}")
    e(f"v_mul_u32_u24 v{t1}, 1280, v{t0}")
    e(f"v_mul_u32_u24 v{t2}, 43, v{t0}")
    e(f"v_lshrrev_b32 v{t2}, 7, v{t2}")
    e(f"v_mul_u32_u24 v{t2}, {3072-384}, v{t2}")
    e(f"v_lshl_add_u32 v{t2}, v{t0}, 7, v{t2}")
    e(f"s_and_b32 s{sT0}, s{sFT}, 3")
    e(f"s_lshl_b32 s{sT0}, s{sT0}, 1")
    e(f"s_lshr_b32 s{sT1}, s{sW}, 1")
    e(f"s_add_u32 s{sT0}, s{sT0}, s{sT1}")
    e(f"s_mul_i32 s{sT0}, s{sT0}, {8*1280}")
    e(f"s_and_b32 s{sWO}, s{sMT}, 7")
    e(f"s_lshl_b32 s{sWO}, s{sWO}, 1")
    e(f"s_add_u32 s{sWO}, s{sWO}, s{sT1}")
    e(f"s_mul_i32 s{sWO}, s{sWO}, {4*3072}")
    e(f"s_add_u32 s{sT1}, s{sWB}, {640*3072}")
    e(f"s_bitcmp1_b32 s{sW}, 0")
    e(f"s_cselect_b64 vcc, -1, 0")
    e(f"v_cndmask_b32 v{vTC}, v{t1}, v{t2}, vcc")
    e(f"s_cselect_b32 s{sT0}, s{sWO}, s{sT0}")
    e(f"s_mov_b32 s{sWO}, {0xffff if opt['th'] else 0x5555}")
    e(f"s_cselect_b32 s{sWO}, {0xffffff if opt['th'] else 0x555555}, s{sWO}")
    e(f"s_cselect_b32 s{sHS}, s{sKW}, s{sKX}")
    e(f"s_movk_i32 s{sHS2}, 128")
    e(f"s_cselect_b32 s{sHS2}, {64*3072}, s{sHS2}")
    e(f"v_and_b32 v{t0}, 1, v{L}")
    e(f"v_lshl_add_u32 v{vTC}, v{t0}, 6, v{vTC}")
    e(f"v_add_u32 v{vTC}, s{sT0}, v{vTC}")
    e(f"s_cselect_b32 vcc_lo, s{sT1}, s{sXE}")
    e(f"s_cselect_b32 vcc_hi, s{sWB}, s{sXB}")
e(f"s_lshl_b32 s{sM0}, s{sW}, 13")
CLR = opt["clr"] >= 0 or opt["clrs"]
sCL = sHS
vNAN = 244
if CLR:
    e(f"s_lshl_b32 s{sT0}, s{sMT}, 2")
    e(f"s_lshr_b32 s{sT1}, s{sFT}, 1")
    e(f"s_add_u32 s{sT0}, s{sT0}, s{sT1}")
    e(f"s_lshl_b32 s{sT0}, s{sT0}, 2")
    e(f"s_add_u32 s{sT0}, s{sT0}, s{sW}")
    e(f"s_lshl_b32 s{sT0}, s{sT0}, 1")
    e(f"s_and_b32 s{sT1}, s{sFT}, 1")
    e(f"s_add_u32 s{sT0}, s{sT0}, s{sT1}")
    e(f"s_mul_i32 s{sT0}, s{sT0}, 6144")
    e(f"v_add_u32 v248, s{sT0}, v{vL16}")
    e(f"v_add_u32 v249, 3072, v248")
    for r in range(4): e(f"v_mov_b32 v{vNAN+r}, -1")
def clr_ops():
    def mk(i):
        def f():
            e(f"buffer_store_dwordx4 {vr(vNAN,4)}, v{248 + i//3}, {srd(sH)}, 0 offen offset:{(i%3)*1024} sc1"); VM.issue("clr")
        return f
    return [mk(i) for i in range(6)]
CLO = clr_ops()
e(f"s_mov_b32 s{sSPIN}, {EP}")
for r, n in ((sX, 2621440), (sW1, 1966080), (sW2, 1966080), (sOUT, 2621440), (sH, HREC)):
    e(f"s_mov_b32 s{r+2}, {n}"); e(f"s_mov_b32 s{r+3}, 0x20000")
e("s_waitcnt lgkmcnt(0)")
if opt["wso"]:
    e(f"s_add_u32 s12, s12, {opt['wso'] << 20}"); e("s_addc_u32 s13, s13, 0")
for r, p in ((sW2, 8), (sX, 4), (sW1, 6), (sOUT, 10), (sH, 12)):
    e(f"s_mov_b64 s[{r}:{r+1}], s[{p}:{p+1}]")
if opt["tch"]:
    e(f"s_bitcmp1_b32 s{sW}, 0")
    e(f"s_cselect_b64 s[8:9], s[6:7], s[4:5]")
    e(f"s_cselect_b32 s10, s{sW1+2}, s{sX+2}")
    e("s_mov_b32 s11, 0x20000")
    e(f"s_mov_b32 s6, s{sHS}")
    e(f"s_mov_b32 s7, s{sHS2}")
def touch():
    e("s_add_u32 s6, s6, s7")
    e("s_cmp_eq_u32 s6, vcc_lo")
    e("s_cselect_b32 s6, vcc_hi, s6")
    e(f"s_mov_b32 exec_lo, s{sWO}")
    e("s_mov_b32 exec_hi, 0")
    e(f"buffer_load_dword v251, v{vTC}, s[8:11], s6 offen"); VM.issue("tch")
    e("s_mov_b64 exec, -1")
stamp()
e(f"s_load_dword s{sE}, s[12:13], s{sSPIN}")

def adv_k():
    if opt["xlin"]:
        e(f"s_add_u32 s100, s100, 8192")
        e(f"s_cmp_eq_u32 s100, s101")
        e(f"s_cselect_b32 s100, s{sXB}, s100")
    e(f"s_add_u32 s{sKX}, s{sKX}, 128")
    e(f"s_add_u32 s{sKW}, s{sKW}, {64*3072}")
    e(f"s_cmp_eq_u32 s{sKX}, s{sXE}")
    e(f"s_cselect_b32 s{sKX}, s{sXB}, s{sKX}")
    e(f"s_cselect_b32 s{sKW}, s{sWB}, s{sKW}")
def dma_ops(st):
    base = (st % NSL) * 32768
    def mk(i):
        def f():
            if i == 0: e(f"s_add_u32 m0, s{sM0}, {base+6144}"); e("s_nop 0")
            if i < 2:
                e(f"buffer_load_dwordx4 v{vDX+i}, {srd(sX)}, s{100 if opt['xlin'] else sKX} offen offset:{i*1024} {opt['xaux'] if st < opt['ntst'] else ''} lds")
            elif opt["e7"] and i >= 5:
                if i == 5: e(f"s_add_u32 m0, s{sM0}, {base+4096}"); e("s_nop 0"); return
                e(f"buffer_load_dwordx4 v{vDW+i-2}, {srd(sX)}, s{sKX} offen offset:{(i-6)*1024} lds")
            else:
                j = i - 2
                e(f"buffer_load_dwordx4 v{vDW+j}, {srd(sW1)}, s{sKW} offen offset:{(j%4)*1024} {opt['w1aux'] if st < opt['ntst'] else ''} lds")
            VM.issue(f"st{st}")
            if i == 1: e(f"s_add_u32 m0, s{sM0}, {base}"); e("s_nop 0")
            if i == 5: e(f"s_add_u32 m0, s{sM0}, {base+4096}"); e("s_nop 0")
            if i == 7 and st < 9: adv_k()
        return f
    return [mk(i) for i in range(8)]

def setup2():
    R, C = t0, t1
    u0, u1, u2 = vTM+7, vTM+8, vTM+9
    if D1:
        RJ = 2
        if opt["rtab"]:
            RJ = 9
            tb = str(opt["rtab"]).lstrip("x"); assert len(tb) == 32 and sum(map(int, tb)) == 12
            m1_ = sum((c == "1") << i for i, c in enumerate(tb)); m2_ = sum((c == "2") << i for i, c in enumerate(tb))
            e(f"s_lshr_b32 s{sT0}, s2, 3")
            e(f"s_bfm_b32 s9, s{sT0}, 0")
            if R2:
                e(f"s_mov_b32 s8, {m2_}")
                e(f"s_bitcmp1_b32 s8, s{sT0}")
                e(f"s_cselect_b32 s8, s8, {m1_}")
                e(f"s_cselect_b32 s10, 1, 0")
                e(f"s_cselect_b32 s11, 0, {16 * tb.count('2')}")
                e(f"s_and_b32 s9, s9, s8")
            else: e(f"s_and_b32 s9, s9, {m1_}")
            e(f"s_bcnt1_i32_b32 s9, s9")
            e(f"s_and_b32 s{sT1}, s2, 7")
            e(f"s_lshl3_add_u32 s9, s9, s{sT1}")
            if R2:
                e(f"s_lshl_b32 s9, s9, s10")
                e(f"s_add_u32 s9, s9, s11")
            e(f"s_bitcmp1_b32 {'s8' if R2 else m1_}, s{sT0}")
            e(f"s_cselect_b32 s9, s9, 255")
        elif opt["rmap"]:
            RJ = 9
            e(f"s_lshr_b32 s9, s2, 4")
            e(f"s_lshl_b32 s9, s9, 3")
            e(f"s_and_b32 s{sT0}, s2, 7")
            e(f"s_add_u32 s9, s9, s{sT0}")
            if opt["rmap"] > 2: e(f"s_xor_b32 s9, s9, {0x60}")
            e(f"s_lshr_b32 s{sT0}, s2, 2")
            e(f"s_xor_b32 s{sT0}, s{sT0}, s2")
            e(f"s_bitcmp{(opt['rmap'] - 1) % 2}_b32 s{sT0}, 3")
            e(f"s_cselect_b32 s9, s9, 255")
        e(f"s_lshr_b32 s{sT1}, s{RJ}, 1")
        e(f"s_and_b32 s{sT0}, s{RJ}, 1")
        if opt["rpk"]:
            e(f"s_mul_i32 s{sRFL}, s{sT1}, 43")
            e(f"s_lshr_b32 s{sRFL}, s{sRFL}, 9")
            e(f"s_mul_i32 s{sRFL}, s{sRFL}, {128 // opt['rpk'] - 12}")
            e(f"s_add_u32 s{sRFL}, s{sRFL}, s{sT1}")
            e(f"s_mul_i32 s{sRFL}, s{sRFL}, {opt['rpk']}")
            if RPW: e(f"s_lshl2_add_u32 s{sRS}, s{sT0}, s{sW}")
            e(f"s_lshl_b32 s{sRS}, s{sRS if RPW else sT0}, 9")
            e(f"s_add_u32 s{sRFL}, s{sRFL}, s{sRS}")
        else:
            e(f"s_mul_i32 s{sRFL}, s{sT0}, 48")
            e(f"s_add_u32 s{sRFL}, s{sRFL}, s{sT1}")
            e(f"s_lshl_b32 s{sRFL}, s{sRFL}, 7")
        if OW:
            e(f"s_mul_i32 s{sRS}, s{sT1}, 43")
            e(f"s_lshr_b32 s{sRS}, s{sRS}, 9")
            e(f"s_mul_i32 s{sRS}, s{sRS}, 47")
            e(f"s_lshl_b32 s{sT1}, s{sT1}, 2")
            e(f"s_sub_u32 s{sT1}, s{sT1}, s{sRS}")
        e(f"s_lshl_b32 s{sRS}, s{sT1}, 2")
        e(f"s_add_u32 s{sRS}, s{sRS}, s{sW}")
        e(f"s_mul_i32 s{sRS}, s{sRS}, 10240")
        e(f"s_lshl_b32 s{sT0}, s{sT0}, 7")
        e(f"s_add_u32 s{sRS}, s{sRS}, s{sT0}")
        e(f"s_add_u32 s{sRS}, s{sRS}, 1024")
        e(f"s_lshl_b32 s{sRD}, s{RJ}, 2")
        e(f"s_add_u32 s{sRD}, s{sRD}, s{sW}")
        e(f"s_lshl_b32 s{sRD}, s{sRD}, 10")
        e(f"s_add_u32 s{sRD}, s{sRD}, {W2F}")
        e(f"s_cmp_lt_u32 s{RJ}, {0 if opt['nor'] else 96}")
        e(f"s_cselect_b32 s{sRS}, s{sRS}, 1966080")
        e(f"s_cselect_b32 s{sRD}, s{sRD}, {HREC}")
        e(f"s_cselect_b32 s{sRFL}, s{sRFL}, {HREC - RFL}")
    else:
        e(f"s_and_b32 s{sT0}, s2, 63")
        e(f"s_mul_i32 s{sT1}, s{sT0}, 205")
        e(f"s_lshr_b32 s{sT1}, s{sT1}, 10")
        e(f"s_mul_i32 s{sRS}, s{sT1}, 5")
        e(f"s_sub_u32 s{sRS}, s{sT0}, s{sRS}")
        e(f"s_lshr_b32 s{sRD}, s2, 6")
        e(f"s_mul_i32 s{sRFL}, s{sRD}, 5")
        e(f"s_add_u32 s{sRFL}, s{sRFL}, s{sRS}")
        e(f"s_lshl_b32 s{sRFL}, s{sRFL}, 4")
        e(f"s_add_u32 s{sRFL}, s{sRFL}, s{sT1}")
        e(f"s_lshl_b32 s{sRFL}, s{sRFL}, 7")
        if opt["own"]:
            e(f"s_mul_i32 s6, s{sT1}, 6")
            e(f"s_add_u32 s6, s6, s{sRD}")
            e(f"s_lshr_b32 s7, s{sT1}, 1")
            e(f"s_mul_i32 s7, s7, 6")
            e(f"s_and_b32 s8, s{sT1}, 1")
            e(f"s_add_u32 s7, s7, s8")
            e(f"s_mul_i32 s8, s{sRD}, 12")
            e(f"s_add_u32 s7, s7, s8")
            e(f"s_sub_u32 s7, s7, 20")
            e(f"s_cmp_lt_u32 s{sT1}, 8")
            e(f"s_cselect_b32 s6, s6, s7")
            e(f"s_mul_i32 s6, s6, 40960")
        e(f"s_mul_i32 s{sRD}, s{sRD}, 12")
        e(f"s_add_u32 s{sT1}, s{sT1}, s{sRD}")
        e(f"s_mul_i32 s{sT1}, s{sT1}, 40960")
        e(f"s_lshl_b32 s{sRD}, s{sRS}, 13")
        e(f"s_add_u32 s{sRD}, s{sRD}, s{sT1}")
        e(f"s_lshl_b32 s{sRS}, s{sRS}, 8")
        e(f"s_add_u32 s{sRS}, s{sRS}, s{6 if opt['own'] else sT1}")
        e(f"s_lshl_b32 s{sT1}, s{sW}, 11")
        e(f"s_add_u32 s{sRD}, s{sRD}, s{sT1}")
        e(f"s_add_u32 s{sRD}, s{sRD}, {W2F}")
        e(f"s_cmp_lt_u32 s{sT0}, {0 if opt['nor'] else 60}")
        e(f"s_cselect_b32 s{sRS}, s{sRS}, 1966080")
        e(f"s_cselect_b32 s{sRD}, s{sRD}, {HREC}")
    if opt["pt"] & 1:
        e(f"s_min_u32 s{sT1}, s{sRS}, {1966080-4}")
        e(f"s_load_dword s101, s[8:9], s{sT1}")
    if opt["pt"] & 2:
        e(f"s_mul_i32 s{sT1}, s{sMT}, {64*3072}")
        e(f"s_load_dword s101, s[12:13], s{sT1}")
    if opt["pt"] & 4:
        e(f"s_load_dword s101, s[10:11], s{sXB}")
    if opt["pt"] & 8:
        e(f"s_load_dword s101, s[12:13], s{sRD}")
    if D1:
        e(f"v_lshrrev_b32 v{t0}, 3, v{L}")
        e(f"v_mul_u32_u24 v{t0}, 1280, v{t0}")
        e(f"v_and_b32 v{t1}, 7, v{L}")
        e(f"v_lshlrev_b32 v{t2}, 1, v{G}")
        e(f"v_xor_b32 v{t1}, v{t1}, v{t2}")
        e(f"v_lshl_add_u32 v{vWD}, v{t1}, 4, v{t0}")
        for i in range(1, 4): e(f"v_add_u32 v{vWD+i}, {i*(10240-1024)}, v{vWD}")
    else:
        e(f"v_lshl_add_u32 v{t0}, v{Wv}, 3, v{G}")
        e(f"v_mul_u32_u24 v{t0}, 1280, v{t0}")
        e(f"v_and_b32 v{t1}, 15, v{L}")
        e(f"v_lshlrev_b32 v{t2}, 1, v{G}")
        e(f"v_xor_b32 v{t1}, v{t1}, v{t2}")
        e(f"v_lshl_add_u32 v{vDR}, v{t1}, 4, v{t0}")
        e(f"v_xor_b32 v{t1}, 8, v{t1}")
        e(f"v_lshl_add_u32 v{vDR+1}, v{t1}, 4, v{t0}")
        e(f"v_add_u32 v{vDR+1}, {4*1280-1024}, v{vDR+1}")
    e(f"v_bfe_u32 v{R}, v{L}, 2, 2")
    e(f"v_and_b32 v{C}, 3, v{L}")
    if opt["r48"]:
        e(f"v_and_b32 v{u1}, 1, v{G}")
        e(f"v_lshl_add_u32 v{u0}, v{u1}, 3, v{R}")
        e(f"v_mul_u32_u24 v{u0}, 384, v{u0}")
        e(f"v_lshrrev_b32 v{t2}, 5, v{L}")
        e(f"v_lshl_add_u32 v{u0}, v{t2}, 13, v{u0}")
        e(f"v_lshl_add_u32 v{u2}, v{C}, 3, v{u0}")
        e(f"v_lshl_add_u32 v{u0}, v{u1}, 4, v{u0}")
        e(f"v_xor_b32 v{u1}, v{G}, v{Wv}")
        e(f"v_and_b32 v{u1}, 1, v{u1}")
        e(f"v_lshl_add_u32 v{u2}, v{u1}, 5, v{u2}")
        e(f"v_xor_b32 v{u1}, v{R}, v{Wv}")
        e(f"v_and_b32 v{u1}, 2, v{u1}")
        e(f"v_lshl_add_u32 v{u2}, v{u1}, 5, v{u2}")
        e(f"v_add_u32 v{vA+4}, 256, v{u2}")
        e(f"v_add_u32 v{vA+5}, {65536+256}, v{u2}")
        e(f"v_lshrrev_b32 v{u1}, 1, v{R}")
        e(f"v_xor_b32 v{u1}, v{u1}, v{Wv}")
        e(f"v_lshl_add_u32 v{u0}, v{u1}, 6, v{u0}")
        e(f"v_lshrrev_b32 v{u1}, 1, v{C}")
        e(f"v_lshl_add_u32 v{u0}, v{u1}, 5, v{u0}")
        e(f"v_and_b32 v{u1}, 1, v{C}")
        e(f"v_lshl_add_u32 v{vA}, v{u1}, 3, v{u0}")
        e(f"v_xor_b32 v{vA+1}, 16, v{vA}")
        for k in range(2): e(f"v_add_u32 v{vA+2+k}, 65536, v{vA+k}")
        e(f"v_and_b32 v{u2}, 15, v{L}")
        e(f"v_lshlrev_b32 v{u0}, 7, v{u2}")
        e(f"v_add_u32 v{u0}, 6144, v{u0}")
        e(f"v_lshrrev_b32 v{u1}, 1, v{u2}")
        e(f"v_xor_b32 v{u1}, v{u1}, v{G}")
        e(f"v_lshl_add_u32 v{vB+4}, v{u1}, 4, v{u0}")
        e(f"v_xor_b32 v{vB+5}, 64, v{vB+4}")
        for k in range(2): e(f"v_add_u32 v{vB+6+k}, 65536, v{vB+4+k}")
    elif opt["r16"]:
        e(f"v_and_b32 v{u1}, 1, v{G}")
        e(f"v_lshl_add_u32 v{u0}, v{u1}, 3, v{R}")
        e(f"v_mul_u32_u24 v{u0}, 384, v{u0}")
        e(f"v_lshl_add_u32 v{u0}, v{u1}, 4, v{u0}")
        e(f"v_lshrrev_b32 v{t2}, 5, v{L}")
        e(f"v_lshl_add_u32 v{u0}, v{t2}, 13, v{u0}")
        e(f"v_lshrrev_b32 v{u1}, 1, v{R}")
        e(f"v_xor_b32 v{u1}, v{u1}, v{Wv}")
        e(f"v_and_b32 v{u1}, 1, v{u1}")
        e(f"v_lshl_add_u32 v{u0}, v{u1}, 6, v{u0}")
        e(f"v_lshrrev_b32 v{u1}, 1, v{C}")
        e(f"v_lshl_add_u32 v{u0}, v{u1}, 5, v{u0}")
        e(f"v_and_b32 v{u1}, 1, v{C}")
        e(f"v_lshl_add_u32 v{vA}, v{u1}, 3, v{u0}")
        e(f"v_xor_b32 v{vA+1}, 16, v{vA}")
        for k in range(2): e(f"v_add_u32 v{vA+2+k}, 65536, v{vA+k}")
        e(f"v_and_b32 v{u0}, 2, v{Wv}")
        e(f"v_lshlrev_b32 v{u0}, 13, v{u0}")
        e(f"v_and_b32 v{u2}, 15, v{L}")
        e(f"v_lshl_add_u32 v{u0}, v{u2}, 7, v{u0}")
        e(f"v_add_u32 v{u0}, 6144, v{u0}")
        e(f"v_lshrrev_b32 v{u1}, 1, v{u2}")
        e(f"v_xor_b32 v{u1}, v{u1}, v{G}")
        e(f"v_lshl_add_u32 v{vB+4}, v{u1}, 4, v{u0}")
        e(f"v_xor_b32 v{vB+5}, 64, v{vB+4}")
        for k in range(2): e(f"v_add_u32 v{vB+6+k}, 65536, v{vB+4+k}")
    else:
        e(f"v_lshrrev_b32 v{u0}, 1, v{G}")
        e(f"v_lshl_add_u32 v{u0}, v{u0}, 3, v{R}")
        e(f"v_mul_u32_u24 v{u0}, 384, v{u0}")
        e(f"v_lshrrev_b32 v{u1}, 1, v{R}")
        e(f"v_xor_b32 v{u1}, v{u1}, v{Wv}")
        e(f"v_and_b32 v{u1}, 1, v{u1}")
        e(f"v_lshl_add_u32 v{u0}, v{u1}, 6, v{u0}")
        e(f"v_and_b32 v{u1}, 1, v{G}")
        e(f"v_lshl_add_u32 v{u0}, v{u1}, 5, v{u0}")
        e(f"v_lshl_add_u32 v{vA}, v{C}, 3, v{u0}")
        e(f"v_add_u32 v{vA+1}, 65536, v{vA}")
        e(f"v_and_b32 v{u0}, 2, v{Wv}")
        e(f"v_add_u32 v{u0}, v{u0}, v{u1}")
        e(f"v_lshlrev_b32 v{u0}, 13, v{u0}")
        e(f"v_and_b32 v{u2}, 15, v{L}")
        e(f"v_lshl_add_u32 v{u0}, v{u2}, 7, v{u0}")
        e(f"v_add_u32 v{u0}, 6144, v{u0}")
        e(f"v_lshrrev_b32 v{u1}, 1, v{u2}")
        e(f"v_lshrrev_b32 v{t2}, 5, v{L}")
        e(f"v_xor_b32 v{u1}, v{u1}, v{t2}")
        e(f"v_lshl_add_u32 v{vB}, v{u1}, 4, v{u0}")
        for k in range(1, 4): e(f"v_xor_b32 v{vB+k}, {32*k}, v{vB}")
        for k in range(4): e(f"v_add_u32 v{vB+4+k}, 65536, v{vB+k}")
    if D1:
        e(f"v_and_b32 v{u1}, 1, v{G}")
        e(f"v_lshl_add_u32 v{u1}, v{u1}, 2, v{R}")
        e(f"v_lshlrev_b32 v{u0}, 11, v{t2}")
        e(f"v_lshl_add_u32 v{u0}, v{u1}, 7, v{u0}")
        e(f"v_lshrrev_b32 v{u1}, 1, v{u1}")
        e(f"v_lshl_add_u32 v{u0}, v{u1}, 5, v{u0}")
        e(f"v_and_b32 v{u1}, 1, v{C}")
        e(f"v_lshl_add_u32 v{u0}, v{u1}, 4, v{u0}")
        e(f"v_lshrrev_b32 v{u1}, 1, v{C}")
        e(f"v_lshl_add_u32 v{u0}, v{u1}, 3, v{u0}")
        e(f"v_add_u32 v{u0}, {RB}, v{u0}")
        e(f"v_lshlrev_b32 v{t3}, 5, v{Wv}")
        e(f"v_xor_b32 v{vRA}, v{u0}, v{t3}")
        e(f"v_add_u32 v{vWT}, s{sM0}, v{u0}")
        for j in range(1, 4): e(f"v_xor_b32 v{vWT+j}, {32*j}, v{vWT}")
    else:
        e(f"v_and_b32 v{u1}, 1, v{G}")
        e(f"v_lshl_add_u32 v{u1}, v{u1}, 2, v{R}")
        e(f"v_lshlrev_b32 v{u0}, 12, v{t2}")
        e(f"v_lshl_add_u32 v{u0}, v{u1}, 8, v{u0}")
        e(f"v_lshlrev_b32 v{t3}, 1, v{Wv}")
        e(f"v_xor_b32 v{u1}, v{u1}, v{t3}")
        e(f"v_lshl_add_u32 v{u0}, v{u1}, 5, v{u0}")
        e(f"v_and_b32 v{u1}, 1, v{C}")
        e(f"v_lshl_add_u32 v{u0}, v{u1}, 4, v{u0}")
        e(f"v_lshrrev_b32 v{u1}, 1, v{C}")
        e(f"v_lshl_add_u32 v{u0}, v{u1}, 3, v{u0}")
        e(f"v_add_u32 v{vRA}, {RB}, v{u0}")
        e(f"v_xor_b32 v{vRA+1}, 32, v{vRA}")
    if not D1:
        e(f"v_mov_b32 v{vCN}, {CNT}")
        e(f"v_mov_b32 v{vONE}, 0")
        e(f"ds_write_b32 v{vCN}, v{vONE}"); LG.issue("cnt")
    if opt["ab"]: e(f"ds_write_b32 v{vCN}, v{vONE} offset:4"); LG.issue("cnt")
    for i in range(48): e(f"v_mov_b32 v{vACC1+i}, 0")
    if not D1: e(f"v_mov_b32 v{vONE}, 1")
    e(f"v_and_b32 v{u1}, 1, v{G}")
    if opt["r48"]:
        e(f"v_mul_u32_u24 v{u0}, {12288-512}, v{t2}")
        e(f"v_add_u32 v{u0}, v{u0}, v{vL16}")
        e(f"v_lshlrev_b32 v{vONE}, 9, v{Wv}")
        e(f"v_sub_u32 v{u0}, v{u0}, v{vONE}")
        e(f"v_add_u32 v{vONE}, 4096, v{u0}")
    if opt["r16"]: e(f"v_add_u32 v{vHS}, 12288, v{vL16}")
    else:
        e(f"v_mul_u32_u24 v{u0}, 12288, v{u1}")
        e(f"v_lshl_add_u32 v{u0}, v{t2}, 8, v{u0}")
        e(f"v_lshl_add_u32 v{vHS}, v{u2}, 4, v{u0}")
    if opt["own"]:
        e(f"s_and_b32 s{sT0}, s{sW}, 1")
        e(f"s_and_b32 s{sT1}, s{sW}, 2")
        e(f"s_sub_u32 s{sT1}, s{sT1}, s{sT0}")
        e(f"s_add_u32 s{sT1}, s{sT1}, 3")
        e(f"v_add_u32 v{u0}, s{sT1}, v{u1}")
        e(f"v_and_b32 v{u0}, 3, v{u0}")
        e(f"s_lshl_b32 s{sT0}, s{sT0}, 12")
        e(f"s_add_u32 s{sT0}, s{sT0}, {OWN}")
        e(f"v_lshl_add_u32 v{u0}, v{u0}, 10, s{sT0}")
        e(f"v_lshl_add_u32 v{u0}, v{t2}, 8, v{u0}")
        e(f"v_lshl_add_u32 v{vOW}, v{u2}, 4, v{u0}")
        e(f"v_xor_b32 v{vOW+1}, 2048, v{vOW}")
        e(f"s_lshl_b32 s{sT0}, s{sW}, 12")
        e(f"s_add_u32 s{sT0}, s{sT0}, {OWN}")
        e(f"v_add_u32 v{vOW+2}, s{sT0}, v{vL16}")
    if OW:
        e(f"s_and_b32 s{sT0}, s{sW}, 1")
        e(f"s_lshl1_add_u32 s{sT0}, s{sFT}, s{sT0}")
        e(f"s_and_b32 s{sT0}, s{sT0}, 3")
        e(f"s_and_b32 s{sT1}, s{sW}, 2")
        e(f"s_sub_u32 s{sT1}, s{sT1}, s{sT0}")
        e(f"s_add_u32 s{sT1}, s{sT1}, 7")
        e(f"v_add_u32 v{u0}, s{sT1}, v{u1}")
        e(f"v_and_b32 v{u0}, 3, v{u0}")
        e(f"s_lshl_b32 s{sT0}, s{sT0}, 13")
        e(f"s_add_u32 s{sT0}, s{sT0}, {65536+4096}")
        e(f"v_lshl_add_u32 v{u0}, v{u0}, 10, s{sT0}")
        e(f"v_lshl_add_u32 v{u0}, v{t2}, 8, v{u0}")
        e(f"v_lshl_add_u32 v{vOW}, v{u2}, 4, v{u0}")
        e(f"v_xor_b32 v{vOW+1}, {16384+2048}, v{vOW}")
    e(f"v_mul_u32_u24 v{u0}, 1280, v{u2}")
    e(f"v_lshl_add_u32 v{vOUT}, v{G}, 4, v{u0}")
    e(f"v_lshl_add_u32 v{u0}, v{u1}, 4, v{u0}")
    e(f"v_lshl_add_u32 v{vOUT2}, v{t2}, 3, v{u0}")
    if opt["bp"]:
        e(f"v_lshrrev_b32 v{vL16b}, 2, v{L}")
        e(f"v_mul_u32_u24 v{u0}, 1280, v{vL16b}")
        e(f"v_lshl_add_u32 v{vOUT}, v{C}, 4, v{u0}")
        e(f"v_lshl_add_u32 v{vL16b}, v{C}, 4, v{vL16b}")
        e(f"v_lshlrev_b32 v{vL16b}, 2, v{vL16b}")
        e(f"v_and_b32 v{vOUT2}, 1, v{C}")
        e(f"v_lshl_add_u32 v{u0}, v{vOUT2}, 4, v{u0}")
        e(f"v_lshrrev_b32 v{vOUT2}, 1, v{C}")
        e(f"v_lshl_add_u32 v{vOUT2}, v{vOUT2}, 3, v{u0}")
    if opt["t4"]:
        e(f"v_mul_u32_u24 v{u0}, {4*1280}, v{G}")
        e(f"v_lshl_add_u32 v{u0}, v{C}, 1, v{u0}")
        e(f"v_and_b32 v{vOUT2}, 1, v{R}")
        e(f"v_lshl_add_u32 v{u0}, v{vOUT2}, 4, v{u0}")
        e(f"v_lshrrev_b32 v{vOUT2}, 1, v{R}")
        e(f"v_lshl_add_u32 v{vOUT2}, v{vOUT2}, 3, v{u0}")
    if opt["ofk"]:
        sh = 1 + opt["ofk"]
        e(f"v_lshrrev_b32 v{u0}, {sh}, v{L}")
        e(f"v_mul_u32_u24 v{u0}, 1280, v{u0}")
        e(f"v_and_b32 v{vOUT}, {(1 << sh) - 1}, v{L}")
        e(f"v_lshl_add_u32 v{vOUT}, v{vOUT}, 4, v{u0}")
        e(f"v_add_u32 v{vL16b}, {64 if sh == 2 else 10240}, v{vOUT}")
        e(f"v_lshrrev_b32 v{u0}, 2, v{L}")
        e(f"v_mul_u32_u24 v{u0}, 1280, v{u0}")
        e(f"v_and_b32 v{vOUT2}, 3, v{L}")
        e(f"v_lshl_add_u32 v{vOUT2}, v{vOUT2}, 3, v{u0}")
    if not D1: e(f"v_add_u32 v{vL16b}, 4096, v{vL16}")
    if D1:
        if RPW: e(f"s_lshl2_add_u32 s{sT0}, s{sFT}, s{sW}")
        else:
            e(f"s_lshr_b32 s{sT0}, s{sFT}, 2")
            e(f"s_lshl_b32 s{sT0}, s{sT0}, 2")
            e(f"s_add_u32 s{sT0}, s{sT0}, s{sW}")
        e(f"s_mul_i32 s{sT0}, s{sT0}, {128 if opt['rpk'] else 12*128}")
        e(f"v_min_u32 v{vRP}, 11, v{u2}")
        e(f"v_lshl_add_u32 v{vRP}, v{vRP}, {dict([(0,7),(4,2),(8,3)])[opt['rpk']]}, s{sT0}")
    else:
        e(f"s_mul_i32 s{sT0}, s{sFT}, 5")
        e(f"v_lshl_add_u32 v{u0}, v{u1}, 2, s{sT0}")
        e(f"v_lshrrev_b32 v{u0}, 3, v{u0}")
        e(f"v_mad_u32_u24 v{u0}, v{Wv}, 5, v{u0}")
        e(f"v_min_u32 v{vRP}, 11, v{u2}")
        e(f"v_lshlrev_b32 v{vRP}, 7, v{vRP}")
        e(f"v_lshl_add_u32 v{vRP}, v{u0}, 11, v{vRP}")
    e(f"v_lshlrev_b32 v{vL4}, 2, v{L}")
    if opt["own"] or OW:
        e(f"v_and_b32 v{vPA}, {opt['pl2']}, v{L}")
        e(f"v_lshlrev_b32 v{vPA}, 7, v{vPA}")
    else: e(f"v_mul_u32_u24 v{vPA}, {FS}, v{u1}")
    if D1:
        assert FS == 128
        e(f"v_lshlrev_b32 v{vAC}, 7, v0")
        e(f"s_add_u32 s{sT0}, s{sM0}, 32768")
        e(f"v_add_u32 v{vRW}, s{sT0}, v{vL16}")
        e(f"v_add_u32 v{vRW2}, 65536, v{vRW}")
        for p in range(3):
            e(f"s_sub_u32 s{sT0}, s{sW}, {1+p}")
            e(f"s_and_b32 s{sT0}, s{sT0}, 3")
            e(f"s_lshl_b32 s{sT0}, s{sT0}, 13")
            e(f"s_add_u32 s{sT0}, s{sT0}, {32768*(p+1)}")
            e(f"v_add_u32 v{vRR+p}, s{sT0}, v{vL16}")
        e(f"s_mul_i32 s{sW2B}, s{sW}, {40960 if OW else 12*40960}")
        e(f"s_lshl_b32 s{sT0}, s{sFT}, 7")
        e(f"s_add_u32 s{sW2B}, s{sW2B}, s{sT0}")
        e(f"s_mul_i32 s{sW5B}, s{sW}, 96")
        e(f"s_add_u32 s{sW5B}, s{sW5B}, s{sFT}")
        e(f"s_lshl_b32 s{sW5B}, s{sW5B}, 10")
        e(f"s_add_u32 s{sW5B}, s{sW5B}, {W2F}")
    else:
        e(f"v_mul_u32_u24 v{u0}, 205, v{L}")
        e(f"v_lshrrev_b32 v{u0}, 10, v{u0}")
        e(f"v_sub_u32 v{vAC}, v{Wv}, v{u0}")
        e(f"v_mad_i32_i24 v{vAC}, v{vAC}, 5, v{L}")
        e(f"v_lshlrev_b32 v{vAC}, 11, v{vAC}")
        e(f"v_lshl_add_u32 v{vAC}, v{u0}, 7, v{vAC}")
        e(f"s_mul_i32 s{sT0}, s{sW}, 15360")
        e(f"s_add_u32 s{sT0}, s{sT0}, {RED}")
        e(f"v_add_u32 v{vRW}, s{sT0}, v{vL16}")
        for p in range(3):
            e(f"s_sub_u32 s{sT0}, s{sW}, {1+p}")
            e(f"s_and_b32 s{sT0}, s{sT0}, 3")
            e(f"s_mul_i32 s{sT0}, s{sT0}, 15360")
            e(f"s_add_u32 s{sT0}, s{sT0}, {RED + p*5120}")
            e(f"v_add_u32 v{vRR+p}, s{sT0}, v{vL16}")
        e(f"s_mul_i32 s{sW2B}, s{sW}, {12*40960}")
        e(f"s_mul_i32 s{sT0}, s{sFT}, 5120")
        e(f"s_add_u32 s{sW2B}, s{sW2B}, s{sT0}")
        e(f"s_add_u32 s{sW2B}, s{sW2B}, {W2F}")
    if opt["ab"]:
        e(f"s_mov_b32 s{sSIG+6}, 0x98763210"); e(f"s_mov_b32 s{sSIG+7}, 0x98763210")
        e(f"s_lshr_b64 s[{sSIG+6}:{sSIG+7}], s[{sSIG+6}:{sSIG+7}], s{sROT}")
        e(f"s_mov_b32 s{sSIG+7}, s{sSIG+6}")
        e(f"s_and_b32 s{sROT}, s{sROT}, 12")
        e(f"s_lshr_b32 s{sSIG+11}, 0xba54ba54, s{sROT}")
        for n in range(12):
            src = sSIG+7 if n < 8 else sSIG+11
            e(f"s_bfe_u32 s{sSIG+n}, s{src}, {0x40000 + 4*(n%8)}")
            e(f"s_lshl_b32 s{sSIG+n}, s{sSIG+n}, 10")
    if opt["own"]:
        e(f"s_lshl_b32 s{sSIG}, s{sFT}, 10")
        for n in range(1, 12):
            e(f"s_cmp_eq_u32 s{sROT}, s{sFT}")
            e(f"s_addc_u32 s{sROT}, s{sROT}, 0")
            e(f"s_lshl_b32 s{sSIG+n}, s{sROT}, 10")
            if n < 11:
                e(f"s_add_u32 s{sROT}, s{sROT}, 1")
                e(f"s_cmp_ge_u32 s{sROT}, 12")
                e(f"s_cselect_b32 s{sROT}, 0, s{sROT}")
    if OW:
        e(f"s_lshl_b32 s{sT0}, s{sFT}, 1")
        e(f"s_sub_u32 s{sT0}, s{sW}, s{sT0}")
        e(f"s_and_b32 s{sT0}, s{sT0}, 3")
        e(f"s_mul_i32 s{sT1}, s{sFT}, 6")
        e(f"s_add_u32 s{sT0}, s{sT0}, s{sT1}")
        e(f"s_lshr_b32 s{sT0}, s{sT0}, 2")
        e(f"s_lshl_b32 s{sSIG}, s{sT0}, 10")
        for n in range(1, 12):
            e(f"s_cmp_ge_u32 s{sROT}, s{sT0}")
            e(f"s_addc_u32 s{sT1}, s{sROT}, 0")
            e(f"s_lshl_b32 s{sSIG+n}, s{sT1}, 10")
            if n < 11:
                e(f"s_add_u32 s{sROT}, s{sROT}, 1")
                e(f"s_cmp_ge_u32 s{sROT}, 11")
                e(f"s_cselect_b32 s{sROT}, 0, s{sROT}")
    for n in range(12 if not opt["ab"] and not opt["own"] and not OW else 0):
        e(f"s_lshl_b32 s{sSIG+n}, s{sROT}, 10")
        if n < 11:
            e(f"s_add_u32 s{sROT}, s{sROT}, 1")
            e(f"s_cmp_ge_u32 s{sROT}, 12")
            e(f"s_cselect_b32 s{sROT}, 0, s{sROT}")
    if opt["own2"] == 2:
        e(f"s_mov_b32 s{sOWN}, s{sW}")
    elif opt["own2"] == 3:
        e(f"s_and_b32 s{sOWN}, s{sFT}, 1")
        e(f"s_add_u32 s{sOWN}, s{sW}, s{sOWN}")
    elif opt["own2"]:
        e(f"s_lshl_b32 s{sOWN}, s{sFT}, 1")
        e(f"s_add_u32 s{sOWN}, s{sW}, s{sOWN}")
    else: e(f"s_add_u32 s{sOWN}, s{sW}, s{sFT}")
    e(f"s_and_b32 s{sOWN}, s{sOWN}, 3")
    e(f"s_lshl_b32 s{sT1}, s{sMT}, 2")
    e(f"s_add_u32 s{sT1}, s{sT1}, s{sW}")
    if opt["own"] or OW: e(f"s_lshl_b32 s{sPOL}, s{sMT}, 10")
    else: e(f"s_mul_i32 s{sPOL}, s{sT1}, {2*FS}")
    e(f"s_add_u32 s{sPOL}, s{sPOL}, {FL}")
    e(f"s_lshl_b32 s{sT1}, s{sT1}, 2")
    for p in range(4):
        e(f"s_add_u32 s{sT0}, s{sOWN}, {1+p}")
        e(f"s_and_b32 s{sT0}, s{sT0}, 3")
        e(f"s_add_u32 s{sT0}, s{sT0}, s{sT1}")
        e(f"s_mul_i32 s{sT0}, s{sT0}, 12288")
        e(f"v_add_u32 v{vHB+p}, s{sT0}, v{vL16}")
    e(f"s_lshl_b32 s{sOB}, s{sMT}, 2")
    e(f"s_add_u32 s{sOB}, s{sOB}, s{sOWN}")
    e(f"s_mul_i32 s{sOB}, s{sOB}, {16*1280}")
    if D1:
        e(f"s_lshl_b32 s{sT0}, s{sFT}, 5")
        e(f"s_add_u32 s{sOB2}, s{sOB}, s{sT0}")
        e(f"s_add_u32 s{sOB2}, s{sOB2}, {1024-128}")
    e(f"s_mul_i32 s{sT0}, s{sFT}, {128 if D1 else 160}")
    e(f"s_add_u32 s{sOB}, s{sOB}, s{sT0}")
    if opt["ost"]:
        e(f"s_cmp_ge_u32 s{sW}, {opt['ost']}")
        e(f"s_cselect_b32 s{sOB}, s{sOB}, 2621440")
    e(f"s_lshl_b32 s{sT0}, s{sMT}, 2")
    e(f"s_lshr_b32 s{sT1}, s{sFT}, 1")
    e(f"s_add_u32 s{sT0}, s{sT0}, s{sT1}")
    e(f"s_mul_i32 s{sFLG}, s{sT0}, {2*FS}")
    if opt["r48"]: e(f"s_mul_i32 s{sHS}, s{sT0}, {4*12288}")
    else:
        e(f"s_lshl_b32 s{sT0}, s{sT0}, 2")
        e(f"s_and_b32 s{sT1}, s{sW}, 2")
        e(f"s_add_u32 s{sT0}, s{sT0}, s{sT1}")
        e(f"s_mul_i32 s{sHS}, s{sT0}, 12288")
    e(f"s_and_b32 s{sT0}, s{sFT}, 1")
    e(f"s_mul_i32 s{sT1}, s{sT0}, {FS}")
    e(f"s_add_u32 s{sFLG}, s{sFLG}, s{sT1}")
    e(f"s_add_u32 s{sFLG}, s{sFLG}, {FL}")
    e(f"s_mul_i32 s{sT0}, s{sT0}, 6")
    if opt["r48"]: e(f"s_add_u32 s{sT0}, s{sT0}, s{sW}")
    else:
        e(f"s_and_b32 s{sT1}, s{sW}, 1")
        e(f"s_add_u32 s{sT0}, s{sT0}, s{sT1}")
    e(f"s_lshl_b32 s{sT0}, s{sT0}, 10")
    e(f"s_add_u32 s{sHS}, s{sHS}, s{sT0}")
    e(f"s_add_u32 s{sHS2}, s{sHS}, {24576 if opt['r48'] else 4096}")
    if opt["own"]:
        e(f"s_and_b32 s{sT0}, s{sFT}, 1")
        e(f"s_lshl_b32 s{sT0}, s{sT0}, 12")
        e(f"s_sub_u32 s{sHS2}, s{sHS}, s{sT0}")
        e(f"s_add_u32 s{sHS2}, s{sHS2}, 8192")
        e(f"s_lshl_b32 s{sT0}, s{sMT}, 2")
        e(f"s_add_u32 s{sT0}, s{sT0}, s{sT1}")
        e(f"s_lshl_b32 s{sT0}, s{sT0}, 2")
        e(f"s_and_b32 s{sT1}, s{sW}, 2")
        e(f"s_add_u32 s{sT0}, s{sT0}, s{sT1}")
        e(f"s_mul_i32 s{sT0}, s{sT0}, 12")
        e(f"s_add_u32 s{sT0}, s{sT0}, s{sFT}")
        e(f"s_lshl_b32 s{sHS}, s{sT0}, 10")
        e(f"s_add_u32 s{sHS1}, s{sHS}, 98304")
    if OW:
        for q, r in enumerate((sHS, 10, sHS2)):
            e(f"s_mul_i32 s{sT0}, s{sFT}, 6")
            e(f"s_and_b32 s{sT1}, s{sW}, 1")
            e(f"s_add_u32 s{sT0}, s{sT0}, s{sT1}")
            if q: e(f"s_add_u32 s{sT0}, s{sT0}, {2*q}")
            e(f"s_and_b32 s{sT1}, s{sT0}, 3")
            e(f"s_lshl2_add_u32 s{sT1}, s{sMT}, s{sT1}")
            e(f"s_and_b32 s{r}, s{sW}, 2")
            e(f"s_lshl2_add_u32 s{sT1}, s{sT1}, s{r}")
            e(f"s_mul_i32 s{sT1}, s{sT1}, 12")
            e(f"s_lshr_b32 s{sT0}, s{sT0}, 2")
            e(f"s_add_u32 s{sT0}, s{sT0}, s{sT1}")
            e(f"s_lshl_b32 s{r}, s{sT0}, 10")
    e(f"s_add_u32 s{sRFL}, s{sRFL}, {RFL}")
    if opt["tpre"]:
        tb = str(opt["ttab"]).lstrip("x"); assert len(tb) == 32
        nn = tb.count("1"); assert 48 % nn == 0 and 48 // nn <= 8
        rw = 48 // nn
        mk_ = sum(int(c) << i for i, c in enumerate(tb))
        e(f"s_lshr_b32 s9, s2, 3")
        e(f"s_bfm_b32 s8, s9, 0")
        e(f"s_and_b32 s8, s8, {mk_}")
        e(f"s_bcnt1_i32_b32 s8, s8")
        e(f"s_and_b32 s{sT0}, s2, 7")
        e(f"s_lshl3_add_u32 s8, s8, s{sT0}")
        e(f"s_lshl2_add_u32 s8, s8, s{sW}")
        e(f"s_mul_i32 s8, s8, {rw*1280}")
        e(f"s_bitcmp1_b32 {mk_}, s9")
        e(f"s_cselect_b32 s8, s8, 1966080")
        e(f"v_lshrrev_b32 v251, 3, v{L}")
        e(f"v_lshl_add_u32 v250, v251, 8, s8")
        e(f"v_lshl_add_u32 v250, v{L}, 7, v250")
        if rw < 8:
            e(f"v_add_u32 v251, {8 - rw}, v251")
            e(f"v_lshrrev_b32 v251, 3, v251")
            e(f"v_lshl_add_u32 v250, v251, 21, v250")
    if R2:
        e(f"s_lshl_b32 s{sT0}, s{sW}, 9")
        e(f"s_add_u32 s{sRFL}, s{sRFL}, s{sT0}")
        e(f"s_cmp_le_u32 s{sW}, s10")
        e(f"s_cselect_b32 s{sRFL}, s{sRFL}, {HREC}")
    elif not RPW:
        e(f"s_cmp_eq_u32 s{sW}, 0")
        e(f"s_cselect_b32 s{sRFL}, s{sRFL}, {HREC}")
    if opt["fpre"]:
        assert opt["fb"] and opt["fk"] == 0 and not RPW
        e(f"s_cmp_eq_u32 s{sW}, 0")
        e(f"s_cselect_b32 s{sFLG}, s{sFLG}, {HREC}")
        assert HREC == 1 << 23 and opt["rpk"] == 8
        e(f"v_lshrrev_b32 v249, 1, v{L}")
        e(f"v_lshl_add_u32 v249, v249, 23, v{vL4}")
        e(f"v_lshrrev_b32 v248, 5, v{L}")
        e(f"v_lshl_add_u32 v248, v248, 23, v{vL4}")
    e(f"s_mov_b32 s{sL2E}, 0xbfb8aa3b")
    if opt["pk"]:
        e(f"s_mov_b32 s{sPK}, 0xbfb8aa3b"); e(f"s_mov_b32 s{sPK+1}, 0xbfb8aa3b")
def r_loads():
    if D1:
        e(f"s_lshr_b32 m0, s{sM0}, 3")
        e(f"s_add_u32 m0, m0, {RB}")
        e("s_nop 0")
        e(f"buffer_load_dwordx4 v{vWD}, {srd(sW2)}, s{sRS} offen {opt['raux']} lds"); VM.issue("rld")
        if R2:
            e(f"s_add_u32 m0, m0, {4096 - 128}")
            e(f"s_cmp_eq_u32 s10, 1")
            e(f"s_cselect_b32 s{sRS}, s{sRS}, 1966080")
            e(f"buffer_load_dwordx4 v{vWD}, {srd(sW2)}, s{sRS} offen offset:128 {opt['raux']} lds"); VM.issue("rld")
        return
    e(f"s_lshr_b32 m0, s{sM0}, 2")
    e(f"s_add_u32 m0, m0, {RB}")
    e("s_nop 0")
    for i in range(2):
        e(f"buffer_load_dwordx4 v{vDR+i}, {srd(sW2)}, s{sRS} offen offset:{i*1024} {opt['raux']} lds"); VM.issue("rld")
def r_reads():
    if D1:
        for t in range(4 if R2 else 2):
            e(f"ds_read_b64_tr_b16 {vr(vRF + 2*t, 2)}, v{vRA} offset:{(t % 2)*1024 + (t // 2)*4096}"); LG.issue("rrd")
        return
    for ee in range(2):
        for t in range(2):
            e(f"ds_read_b64_tr_b16 {vr(vRF + 4*ee + 2*t, 2)}, v{vRA+ee} offset:{t*2048}"); LG.issue("rrd")
def r_stores():
    LG.wait("rrd")
    for ee in range(1 if D1 else 2):
        e(f"buffer_store_dwordx4 {vr(vRF+4*ee,4)}, v{vL16}, {srd(sH)}, s{sRD} offen offset:{ee*1024} {opt['rsaux']}"); VM.issue("rst")
    if R2:
        e(f"s_add_u32 s{sRD}, s{sRD}, 4096")
        e(f"s_cmp_eq_u32 s10, 1")
        e(f"s_cselect_b32 s{sRD}, s{sRD}, {HREC}")
        e(f"buffer_store_dwordx4 {vr(vRF+4,4)}, v{vL16}, {srd(sH)}, s{sRD} offen {opt['rsaux']}"); VM.issue("rst")
S2 = capture(setup2)
groups = []
for l in S2:
    if l.startswith("s_cselect") or (groups and groups[-1][-1].startswith(("s_cmp", "s_bitcmp"))): groups[-1].append(l)
    else: groups.append([l])
ST0 = []
def pre_order(spec):
    kx, kw = (sKX, 6, 8), (sKW, 7, 9)
    def nxt(i):
        a, b = (i + 1) % 3, i
        e(f"s_add_u32 s{kx[a]}, s{kx[b]}, 128")
        e(f"s_add_u32 s{kw[a]}, s{kw[b]}, {64*3072}")
        e(f"s_cmp_eq_u32 s{kx[a]}, s{sXE}")
        e(f"s_cselect_b32 s{kx[a]}, s{sXB}, s{kx[a]}")
        e(f"s_cselect_b32 s{kw[a]}, s{sWB}, s{kw[a]}")
    ops = []
    for ch in spec:
        if ch in "abc":
            st = "abc".index(ch)
            for i in range(2):
                def f(st=st, i=i):
                    if i == 0: e(f"s_add_u32 m0, s{sM0}, {st*32768+6144}"); e("s_nop 0")
                    e(f"buffer_load_dwordx4 v{vDX+i}, {srd(sX)}, s{kx[st]} offen offset:{i*1024} {opt['xaux']} lds"); VM.issue(f"st{st}")
                    if st == 0 and i == 1: nxt(0); nxt(1)
                ops.append(f)
        elif ch in "ABC":
            st = "ABC".index(ch)
            for j in range(6):
                def f(st=st, j=j):
                    if j % 4 == 0: e(f"s_add_u32 m0, s{sM0}, {st*32768+j*1024}"); e("s_nop 0")
                    e(f"buffer_load_dwordx4 v{vDW+j}, {srd(sW1)}, s{kw[st]} offen offset:{(j%4)*1024} {opt['w1aux']} lds"); VM.issue(f"st{st}")
                ops.append(f)
        elif ch == "R": ops.append(r_loads)
        elif ch == ".": ops.append(None)
        elif ch == "P":
            def f():
                e(f"s_bfe_u32 s10, s{sMT}, 0x10002")
                e(f"s_mul_i32 s10, s10, 320")
                e(f"s_and_b32 s11, s{sMT}, 3")
                e(f"s_lshl_b32 s11, s11, 4")
                e(f"s_add_u32 s10, s10, s11")
                e(f"s_mul_i32 s11, s{sW}, 12")
                e(f"s_sub_u32 s10, s10, s11")
                e(f"s_add_u32 s10, s10, 256")
                e(f"s_mul_i32 s10, s10, 3072")
                e(f"s_add_u32 s10, s10, s{sWB}")
                e(f"buffer_load_dwordx4 v[244:247], v{vDW}, {srd(sW1)}, s10 offen"); VM.issue("pp")
                e("s_mov_b32 exec_hi, 0")
                e(f"buffer_load_dwordx4 v[248:251], v{vDW+1}, {srd(sW1)}, s10 offen offset:1024"); VM.issue("pp")
                e("s_mov_b32 exec_hi, -1")
            ops.append(f)
    assert spec[0] == "a" and all(c in spec for c in "abcABC")
    last = ops[-1]
    def fin(): last(); nxt(2)
    ops[-1] = fin
    return ops
if opt["po"]:
    first = pre_order(opt["po"]); opt["pre3"] = 1
    if None in first:
        k = first.index(None); first, ST0 = first[:k], first[k+1:]
    if "R" in opt["po"]: opt["rls"] = -1
else:
    first = dma_ops(0) + dma_ops(1) + (dma_ops(2) if opt["pre3"] else [])
    if opt["rls"] < 0: first.append(r_loads)
    if opt["tch"]: first[opt["tp0"]:opt["tp0"]] = [touch] * (opt["la"] - 1)
def wxtouch(k, n):
    def f():
        if k == 0:
            e(f"s_lshr_b32 s8, s2, 3")
            e(f"s_lshl_b32 s8, s8, 2")
            e(f"s_add_u32 s8, s8, s{sW}")
            e(f"s_mul_i32 s8, s8, {12*1280}")
            e(f"s_lshr_b32 s9, s{sFT}, 2")
            e(f"s_lshl_b32 s9, s9, 9")
            e(f"s_add_u32 s8, s8, s9")
            e(f"v_lshrrev_b32 v250, 6, v{vL16}")
            e(f"v_mul_u32_u24 v250, {1280-512}, v250")
            e(f"v_lshl_add_u32 v250, v{vL16}, 3, v250")
        m = ((1 << (48 // n)) - 1) << (k * 48 // n)
        e(f"s_mov_b32 exec_lo, {m & 0xffffffff}")
        e(f"s_mov_b32 exec_hi, {m >> 32}")
        e(f"buffer_load_dword v251, v250, {srd(sW2)}, s8 offen {opt['wtaux']}"); VM.issue("wt")
        e("s_mov_b64 exec, -1")
    return f
def wtouch():
    if opt["tpre"]:
        e(f"buffer_load_dword v251, v250, {srd(sW2)}, 0 offen {opt['wtaux']}"); VM.issue("wt")
        return
    if opt["wtx"]:
        e(f"s_lshr_b32 s8, s2, 3")
        e(f"s_lshl_b32 s8, s8, 2")
        e(f"s_add_u32 s8, s8, s{sW}")
        e(f"s_mul_i32 s8, s8, {12*1280}")
        e(f"s_lshr_b32 s9, s{sFT}, 2")
        e(f"s_lshl_b32 s9, s9, 9")
        e(f"s_add_u32 s8, s8, s9")
        e(f"v_lshrrev_b32 v250, 6, v{vL16}")
        e(f"v_mul_u32_u24 v250, {1280-512}, v250")
        e(f"v_lshl_add_u32 v250, v{vL16}, 3, v250")
        e(f"s_mov_b32 exec_hi, 0xffff")
        e(f"buffer_load_dword v251, v250, {srd(sW2)}, s8 offen {opt['wtaux']}"); VM.issue("wt")
        e("s_mov_b64 exec, -1")
        return
    if opt["ttab"]:
        tb = str(opt["ttab"]).lstrip("x"); assert len(tb) == 32
        nn = tb.count("1"); assert 48 % nn == 0 and 48 // nn <= 8
        rw = 48 // nn
        mk_ = sum(int(c) << i for i, c in enumerate(tb))
        e(f"s_lshr_b32 s9, s2, 3")
        e(f"s_bfm_b32 s8, s9, 0")
        e(f"s_and_b32 s8, s8, {mk_}")
        e(f"s_bcnt1_i32_b32 s8, s8")
        e(f"s_and_b32 m0, s2, 7") if False else None
        e(f"s_lshl_b32 s8, s8, 3")
        e(f"s_bitcmp1_b32 {mk_}, s9")
        e(f"s_cselect_b32 s8, s8, 0x10000")
        e(f"s_and_b32 s9, s2, 7")
        e(f"s_add_u32 s8, s8, s9")
        e(f"s_lshl2_add_u32 s8, s8, s{sW}")
        e(f"s_mul_i32 s8, s8, {rw*1280}")
        e(f"s_min_u32 s8, s8, 1966080")
        e(f"v_lshrrev_b32 v250, 7, v{vL16}")
        e(f"v_lshlrev_b32 v250, 8, v250")
        e(f"v_lshl_add_u32 v250, v{vL16}, 3, v250")
        if rw < 8:
            m = (1 << (8*rw)) - 1
            e(f"s_mov_b32 exec_lo, {m & 0xffffffff}")
            e(f"s_mov_b32 exec_hi, {m >> 32}")
        e(f"buffer_load_dword v251, v250, {srd(sW2)}, s8 offen {opt['wtaux']}"); VM.issue("wt")
        if rw < 8: e("s_mov_b64 exec, -1")
        return
    if opt["wtc"]:
        e(f"s_lshr_b32 s8, s2, 4")
        e(f"s_lshl_b32 s8, s8, 3")
        e(f"s_and_b32 s9, s2, 7")
        e(f"s_add_u32 s8, s8, s9")
        e(f"s_lshl2_add_u32 s8, s8, s{sW}")
        e(f"s_mul_i32 s8, s8, {3*1280}")
        e(f"v_lshrrev_b32 v250, 7, v{vL16}")
        e(f"v_lshlrev_b32 v250, 8, v250")
        e(f"v_lshl_add_u32 v250, v{vL16}, 3, v250")
        e(f"s_lshr_b32 s9, s2, 2")
        e(f"s_xor_b32 s9, s9, s2")
        e(f"s_bitcmp{opt['wtc'] - 1}_b32 s9, 3")
        e(f"s_cselect_b32 s8, s8, 1966080")
        e(f"s_mov_b64 exec, {(1 << 24) - 1}")
        e(f"buffer_load_dword v251, v250, {srd(sW2)}, s8 offen {opt['wtaux']}"); VM.issue("wt")
        e("s_mov_b64 exec, -1")
        return
    e(f"s_lshl_b32 s8, s2, 2")
    e(f"s_add_u32 s8, s8, s{sW}")
    e(f"s_mul_i32 s8, s8, {15*128}")
    e(f"v_lshlrev_b32 v250, {2 if opt['wth'] else 3}, v{vL16}")
    e(f"s_mov_b64 exec, {(1 << (30 if opt['wth'] else opt['wtn'])) - 1}")
    e(f"buffer_load_dword v251, v250, {srd(sW2)}, s8 offen {opt['wtaux']}"); VM.issue("wt")
    e("s_mov_b64 exec, -1")
if opt["wt"] >= 0: first.insert(opt["wt"], wtouch)
def xtouch():
    e(f"s_lshr_b32 s8, s2, 5")
    e(f"s_add_u32 s8, s8, {opt['xr0']}")
    e(f"s_mul_i32 s9, s8, 52")
    e(f"s_lshr_b32 s9, s9, 8")
    e(f"s_mul_i32 s9, s9, 5")
    e(f"s_sub_u32 s8, s8, s9")
    e(f"s_lshl_b32 s8, s8, 8")
    e(f"s_bfe_u32 s9, s2, 0x20003")
    e(f"s_lshl2_add_u32 s9, s9, s{sW}")
    e(f"s_mul_i32 s9, s9, 5120")
    e(f"s_add_u32 s8, s8, s9")
    e(f"s_add_u32 s8, s8, s{sXB}")
    e(f"v_lshrrev_b32 v249, 5, v{vL16}")
    e(f"v_mul_u32_u24 v249, {1280-256}, v249")
    e(f"v_lshl_add_u32 v249, v{vL16}, 3, v249")
    e(f"s_mov_b64 exec, 255")
    e(f"buffer_load_dword v248, v249, {srd(sX)}, s8 offen"); VM.issue("xt")
    e("s_mov_b64 exec, -1")
if opt["xt"] >= 0: first.insert(opt["xt"], xtouch)
def pvtouch():
    e(f"s_lshl_b32 s8, s2, 2")
    e(f"s_add_u32 s8, s8, s{sW}")
    e(f"s_mul_i32 s8, s8, {15*128}")
    e(f"v_lshlrev_b32 v250, 3, v{vL16}")
    e(f"s_mov_b64 exec, {opt['pvm']}")
    e(f"buffer_load_dword v251, v250, {srd(sW2)}, s8 offen"); VM.issue("wt")
    e("s_mov_b64 exec, -1")
if opt["pv"] >= 0: first.insert(opt["pv"], pvtouch)
def stouch():
    e(f"s_lshl_b32 s100, s2, 2")
    e(f"s_add_u32 s100, s100, s{sW}")
    e(f"s_mul_i32 s100, s100, {15*128}")
    for i in range(opt["swn"]):
        e(f"s_load_dword s101, s[{sW2}:{sW2+1}], s100 offset:{i*128}")
if opt["sw"] >= 0: first.insert(opt["sw"], stouch)
if opt["clr"] >= 0: first[opt["clr"]:opt["clr"]] = CLO
NF0 = opt["nf0"]
for f in first[:NF0]: f()
if opt["fst"]:
    e(f"s_waitcnt vmcnt({NF0-1})"); stamp(k=5)
    e(f"s_waitcnt vmcnt({NF0-3})"); stamp(k=5)
rest = first[NF0:]
per = (len(groups) + len(rest) - 1) // len(rest)
head = len(groups) * opt["head"] // 100
for g in groups[:head]: O.extend(g)
groups = groups[head:]
per = (len(groups) + len(rest) - 1) // len(rest)
for f in rest:
    f()
    for g in groups[:per]: O.extend(g)
    groups = groups[per:]
assert not groups
stamp()

def w2_ops():
    ops = []
    order = list(range(1, 12)); order.insert(opt["w0p"], 0)
    for n in order:
        for j in range(5):
            def f(n=n, j=j):
                if j == 0:
                    e(f"s_mul_i32 s{sWO}, s{sSIG+n}, 40")
                    e(f"s_add_u32 s{sWO}, s{sWO}, s{sW2B}")
                va = vL16 if j < 4 else vL16b
                e(f"buffer_load_dwordx4 {ar(n*20+4*j, 4)}, v{va}, {srd(sH)}, s{sWO} offen offset:{(j%4)*1024} {opt['w2aux'].replace('-','')}")
                VM.issue(f"w{n}")
            ops.append(f)
    return ops
WREG = [3, 3, 4, 4, 1, 1, 2, 2, 3, 3, 4, 4]
WHF = [n % 2 for n in range(12)]
WDEP = [None] * 8 + ["t0", "t1", "t2", "t3"]
if OW:
    WREG = [3, 3, 4, 4, 1, 1, 2, 3, 3, 4, 4, 2]
    WHF = [0, 1, 0, 1, 0, 1, 0, 0, 1, 0, 1, 1]
    WDEP = [None] * 7 + ["t0", "t1", "t2", "t3", "or3"]
def wd_ops():
    ops = []
    for n in range(12):
        for i in range(4):
            def f(n=n, i=i):
                if i == 0:
                    if WDEP[n]: assert WDEP[n] in TDONE + ORD and WDEP[n] not in LG.q, n
                    e(f"s_mul_i32 s{sWO}, s{sSIG+n}, {160 if OW else 40}")
                    e(f"s_add_u32 m0, s{sM0}, {WREG[n]*32768 + WHF[n]*4096}")
                    e(f"s_add_u32 s{sWO}, s{sWO}, s{sW2B}")
                if n >= 12 - opt["skd"]: return
                e(f"buffer_load_dwordx4 v{vWD+i}, {srd(sW2)}, s{sWO} offen offset:{i*1024} {opt['waux']} lds")
                VM.issue(f"d{n}")
            ops.append(f)
    return ops
def w5_ops():
    ops = []
    for n in range(12):
        def f(n=n):
            if n >= 12 - opt["sk5"]: return
            e(f"s_lshl3_add_u32 s{sT1}, s{sSIG+n}, s{sW5B}")
            e(f"buffer_load_dwordx4 {ar(n*20+16, 4)}, v{vL16}, {srd(sH)}, s{sT1} offen {opt['w5aux'].replace('-','')}")
            VM.issue(f"w{n}")
        ops.append(f)
    return ops
TDONE = []; TWIN = [3]; ORD = []
def tgroup_ops(n):
    def head():
        assert not any(f.__defaults__[0] == n and len(f.__defaults__) == 2 for f in W2L), n
        VM.wait(f"d{n}")
        win = 3 if WREG[n] >= 3 else 1
        if win != TWIN[0]:
            for j in range(4): e(f"v_add_u32 v{vWT+j}, {(win - TWIN[0]) * 32768}, v{vWT+j}")
            TWIN[0] = win
        if len(LG.q) > 7:
            e("s_waitcnt lgkmcnt(7)"); LG.q = LG.q[-7:]
    ops = []
    for j in range(4):
        def f(j=j):
            if j == 0: head()
            win = TWIN[0]
            for t in range(2):
                e(f"ds_read_b64_tr_b16 {ar(n*20+4*j+2*t, 2)}, v{vWT+j} offset:{(WREG[n]-win)*32768 + WHF[n]*4096 + t*1024}"); LG.issue(f"t{n}")
        ops.append(f)
    TDONE.append(f"t{n}")
    return ops
def tgroup(n):
    for f in tgroup_ops(n): f()
W2L = wd_ops() if D1 else w2_ops()
def take(n):
    r = W2L[:n]; del W2L[:n]; return r

def ord48(last=False):
    o = opt["l48"] if last else opt["o48"]
    if o == 0: return [(j, rt) for rt in range(4) for j in range(2)] + [(2, rt) for rt in range(4)]
    if o == 1: return [(j, rt) for j in range(3) for rt in range(4)]
    if o == 2: return [(j, rt) for rt in range(4) for j in range(3)]
    if o == 3: return [(j, rt if j % 2 == 0 else 3 - rt) for j in range(3) for rt in range(4)]
    if o == 4: return [(j if rt % 2 == 0 else 2 - j, rt) for rt in range(4) for j in range(3)]
    if o == 5: return [(0,0),(0,1),(1,0),(1,1),(2,0),(2,1),(0,2),(0,3),(1,2),(1,3),(2,2),(2,3)]
def rd_ops(st, half):
    slot = st % NSL
    sb = (slot % 2) * 32768
    hi = slot // 2
    ops = []
    if opt["nord"]: return ops
    if opt["r48"]:
        def b(rt):
            def f(): e(f"ds_read_b128 {vr(vAF + half*32 + 12 + rt*4, 4)}, v{vB + 4 + 2*hi + half} offset:{sb + rt*8192}"); LG.issue(f"B{half}{rt}")
            return f
        def a(j, t):
            def f():
                e(f"ds_read_b64_tr_b16 {vr(vAF + half*32 + j*4 + 2*t, 2)}, v{vA + (2*hi + j if j < 2 else 4 + hi)} offset:{sb + half*16384 + t*1536}")
                LG.issue(f"A{half}{j}")
            return f
        seen = []; r = []
        for j, rt in ord48(st == 9 and half == 1):
            for k in (f"B{rt}", f"A{j}") if opt["q48"] else (f"A{j}", f"B{rt}"):
                if k in seen: continue
                seen.append(k)
                r += [b(rt)] if k[0] == "B" else [a(j, 0), a(j, 1)]
        return r
    if opt["r16"]:
        def b(rt):
            def f(): e(f"ds_read_b128 {vr(vBF + (half*2+rt)*4, 4)}, v{vB + 4 + 2*hi + half} offset:{sb + rt*8192}"); LG.issue(f"B{half}{rt}")
            return f
        def a(j, t):
            def f():
                e(f"ds_read_b64_tr_b16 {vr(vAF + half*24 + j*4 + 2*t, 2)}, v{vA + 2*hi + j%2} offset:{sb + half*16384 + t*1536 + (j//2)*128}")
                LG.issue(f"A{half}{j}")
            return f
        A = [a(j, t) for j in range(6) for t in range(2)]
        return [b(0)] + A[:2] + [b(1)] + A[2:]
    for kk in range(2):
        ks = 2*half + kk
        def b(ks=ks, kk=kk):
            e(f"ds_read_b128 {vr(vBF + (half*2+kk)*4, 4)}, v{vB + 4*hi + ks} offset:{sb}"); LG.issue(f"B{ks}")
        ops.append(b)
        for q in range(3):
            for t in range(2):
                def a(ks=ks, kk=kk, q=q, t=t):
                    e(f"ds_read_b64_tr_b16 {vr(vAF + half*24 + (kk*3+q)*4 + 2*t, 2)}, v{vA+hi} offset:{sb + ks*8192 + t*1536 + q*128}")
                    LG.issue(f"A{ks}{q}")
                ops.append(a)
    if opt["qm"] in (1, 2):
        qs = (0, 1, 2) if opt["qm"] == 1 or half == 0 else (2, 1, 0)
        ops = [ops[0], ops[7]] + [ops[7*kk + 1 + 2*q + t] for q in qs for kk in range(2) for t in range(2)]
    if opt["qm"] == 3: ops = ops[:8] + [ops[8 + 2*q + t] for q in (2, 1, 0) for t in range(2)]
    return ops
def i16(kk, q): return kk == 1
def mfma1(half, kk, q, zz=None):
    ks = 2*half + kk
    LG.wait(f"A{ks}{q}")
    if opt["nomf1"]: return
    if opt["m16"]:
        for z in (range(2) if zz is None else [zz]):
            c = vr(vACC1+16*q+8*kk+4*z, 4)
            e(f"v_mfma_f32_16x16x32_bf16 {c}, {vr(vAF + half*24 + (kk*3+q)*4, 4)}, {vr(vBF + (half*2+(kk^z if i16(kk, q) else kk))*4, 4)}, {c}")
        return
    a, b = vr(vAF + half*24 + (kk*3+q)*4, 4), vr(vBF + (half*2+kk)*4, 4)
    if opt["swab"]: a, b = b, a
    e(f"v_mfma_f32_32x32x16_bf16 {vr(vACC1+16*q,16)}, {a}, {b}, {vr(vACC1+16*q,16)}")
def mfma16(half, i, last=False):
    if opt["r48"]:
        j, rt = ord48(last)[i]
        late = max((f"A{half}{j}", f"B{half}{rt}"), key=lambda t: len(LG.q) - 1 - LG.q[::-1].index(t) if t in LG.q else -1)
        LG.wait(late)
        if opt["nomf1"]: return
        c = vr(vACC1 + (rt*8 + j*4 if j < 2 else 32 + rt*4), 4)
        e(f"v_mfma_f32_16x16x32_bf16 {c}, {vr(vAF + half*32 + j*4, 4)}, {vr(vAF + half*32 + 12 + rt*4, 4)}, {c}")
        return
    j, rt = i // 2, i % 2
    if opt["ro"] == 1 and j % 2: rt ^= 1
    LG.wait(f"A{half}{j}"); LG.wait(f"B{half}{rt}")
    if opt["nomf1"]: return
    if opt["hm"] and i % 4 < opt["hm"]: return
    c = vr(vACC1 + (j//2)*16 + rt*8 + (j%2)*4, 4)
    a_, b_ = vr(vAF + half*24 + j*4, 4), vr(vBF + (half*2+rt)*4, 4)
    if opt["sw1"]: a_, b_ = b_, a_
    e(f"v_mfma_f32_16x16x32_bf16 {c}, {a_}, {b_}, {c}")
def half_body(mf_half, rds, fill, cnt=None):
    rds = list(rds); fill = list(fill)
    if (opt["m16"] >= 2 or opt["r16"]) and mf_half is not None:
        for i in range(12):
            if opt["r16"]: mfma16(mf_half, i)
            else: mfma1(mf_half, i // 6, (i // 2) % 3, i % 2)
            left = 12 - i
            if opt["pat"]:
                P = opt["pat1"] if opt["pat1"] and mf_half == 0 else opt["pat"]
                ch = P[i]
                for _ in range(dict(a=2, b=1, c=3, M=1, N=2).get(ch, 0)):
                    if rds: rds.pop(0)()
                if ch in "LMN":
                    nl = sum(c in "LMN" for c in P[i:])
                    for _ in range((len(fill) + nl - 1) // nl): fill.pop(0)()
            elif opt["m16"] == 2 or opt["r16"] == 2:
                for _ in range((len(rds) + left - 1) // left if i else 2):
                    if rds: rds.pop(0)()
                if i % 2 == 1:
                    for _ in range((len(fill) + left // 2) // (left // 2 + 1)):
                        if fill: fill.pop(0)()
            else:
                if i % 3 == 2 and fill:
                    for _ in range((len(fill) + left // 3) // (left // 3 + 1)): fill.pop(0)()
                else:
                    for _ in range(2):
                        if rds: rds.pop(0)()
        assert not rds and not fill, (len(rds), len(fill))
        return
    for i in range(6):
        if mf_half is not None:
            if opt["qm"] == 1: mfma1(mf_half, i % 2, i // 2)
            elif opt["qm"] == 2: mfma1(mf_half, i % 2, (i // 2) if mf_half == 0 else 2 - i // 2)
            elif opt["qm"] == 3: mfma1(mf_half, i // 3, (i % 3) if i < 3 else 5 - i)
            else: mfma1(mf_half, i // 3, i % 3)
        left = 6 - i
        for _ in range((len(rds) + left - 1) // left if i else min(len(rds), 4)):
            if rds: rds.pop(0)()
        if cnt is not None:
            for _ in range(cnt[i]):
                if fill: fill.pop(0)()
            if i == 5:
                while fill: fill.pop(0)()
            continue
        for _ in range((len(fill) + left - 1) // left):
            if fill: fill.pop(0)()
    assert not rds and not fill

def flag_store(off, lanes=0):
    fk = opt["fk"]
    if opt["fpre"]:
        e(f"buffer_store_dword v{vT}, v{249 if lanes else 248}, {srd(sH)}, s{off} offen sc1"); VM.issue("flag")
        return
    if fk in (1, 3, 4):
        for r in range(4): e(f"v_mov_b32 v{vTM+12+r}, s{sTAG}")
        e(f"s_mov_b64 exec, {dict([(1,255),(3,1),(4,15)])[fk]}")
        e(f"buffer_store_dwordx4 {vr(vTM+12,4)}, v{vL16}, {srd(sH)}, s{off} offen sc1"); VM.issue("flag")
        e("s_mov_b64 exec, -1")
        return
    e(f"v_mov_b32 v{vT}, s{sTAG}")
    e(f"s_mov_b64 exec, {(1 << lanes) - 1}" if lanes else "s_mov_b32 exec_hi, 0" if fk == 0 else "s_mov_b64 exec, 1")
    e(f"buffer_store_dword v{vT}, v{vL4}, {srd(sH)}, s{off} offen sc1"); VM.issue("flag")
    e("s_mov_b64 exec, -1")
def r_poll():
    e(f"s_mov_b32 s{sT0}, {HREC if opt['norp'] else RFL}")
    e(f"buffer_load_dword v{vPOLL}, v{vRP}, {srd(sH)}, s{sT0} offen sc1"); VM.issue("rpoll")

def spin_slow(lab, vv, va, so):
    e(f"L_{lab}_s:")
    e(f"s_mov_b32 s{sSPIN}, 20000")
    e(f"L_{lab}:")
    e(f"buffer_load_dword v{vv}, v{va}, {srd(sH)}, s{so} offen sc1")
    e(f"s_sub_u32 s{sSPIN}, s{sSPIN}, 1")
    e("s_waitcnt vmcnt(0)")
    e(f"v_cmp_ne_u32 vcc, s{sTAG}, v{vv}")
    e(f"s_cbranch_scc1 L_{lab}_go")
    e(f"s_cbranch_vccnz L_{lab}")
    e(f"s_branch L_{lab}_go")
def spin_fast(lab, vv, tag):
    VM.wait(tag)
    e(f"v_cmp_ne_u32 vcc, s{sTAG}, v{vv}")
    e(f"s_cbranch_vccnz L_{lab}_s")
    e(f"L_{lab}_go:")
def spin_check(lab, vv, va, tag, so=None, fake=False):
    VM.wait(tag)
    e(f"s_mov_b32 s{sSPIN}, 20000")
    e(f"L_{lab}:")
    e(f"v_cmp_ne_u32 vcc, s{sTAG}, v{vv}")
    e("s_cmp_eq_u64 vcc, 0" if not fake else "s_cmp_eq_u32 s2, s2")
    e(f"s_cbranch_scc1 L_{lab}_go")
    e(f"s_sub_u32 s{sSPIN}, s{sSPIN}, 1")
    e(f"s_cmp_eq_u32 s{sSPIN}, 0")
    e(f"s_cbranch_scc1 L_{lab}_go")
    if so is None: e(f"s_mov_b32 s{sT0}, {RFL}")
    e(f"buffer_load_dword v{vv}, v{va}, {srd(sH)}, s{sT0 if so is None else so} offen sc1")
    e("s_waitcnt vmcnt(0)")
    e(f"s_branch L_{lab}")
    e(f"L_{lab}_go:")
def r_check(): spin_check("rp", vPOLL, vRP, "rpoll", None, opt["norp"])

FLB2 = 0x100000
def flagA(bar=True):
    if bar: VM.wait("hstA")
    e(f"s_cmp_eq_u32 s{sW}, 0")
    e(f"s_cselect_b32 s{sFLG}, s{sFLG}, {HREC}")
    if bar: e("s_barrier")
    flag_store(sFLG)
    if bar and opt["fb2"] == 2: e("s_barrier")
    e(f"s_add_u32 s{sFLG}, s{sFLG}, {FLB2}")
    stamp(k=9)
PEND = []
EMU = [int(c) for c in str(opt["emu"]).lstrip("x")]
def emu_ops(bi):
    q, g2 = bi // 2, bi % 2
    a0 = (vACC1 + 16*q + 8*g2) if opt['emv'] == 2 else 216; tt = vS + (bi % 2) * 8; pk = vRF + 8 + bi * 4
    ops = []
    if opt["emv"] and not opt["epk"]:
        for r in range(8): ops.append(f"v_mul_f32 v{tt+r}, s{sL2E}, v{a0+r}")
        for r in range(8): ops.append(f"v_exp_f32 v{tt+r}, v{tt+r}")
        for r in range(8): ops.append(f"v_add_f32 v{tt+r}, 1.0, v{tt+r}")
        for r in range(8): ops.append(f"v_rcp_f32 v{tt+r}, v{tt+r}")
        for r in range(8): ops.append(f"v_mul_f32 v{tt+r}, v{a0+r}, v{tt+r}")
        for r in range(4): ops.append(f"v_cvt_pk_bf16_f32 v{pk+r}, v{tt+2*r}, v{tt+2*r+1}")
    elif opt["emv"]:
        for r in range(0, 8, 2): ops.append(f"v_pk_mul_f32 {vr(tt+r,2)}, {vr(a0+r,2)}, s[{sPK}:{sPK+1}]")
        for r in range(8): ops.append(f"v_exp_f32 v{tt+r}, v{tt+r}")
        for r in range(0, 8, 2): ops.append(f"v_pk_add_f32 {vr(tt+r,2)}, {vr(tt+r,2)}, 1.0 op_sel_hi:[1,0]")
        for r in range(8): ops.append(f"v_rcp_f32 v{tt+r}, v{tt+r}")
        for r in range(0, 8, 2): ops.append(f"v_pk_mul_f32 {vr(tt+r,2)}, {vr(a0+r,2)}, {vr(tt+r,2)}")
        for r in range(4): ops.append(f"v_cvt_pk_bf16_f32 v{pk+r}, v{tt+2*r}, v{tt+2*r+1}")
    fs = [(lambda l=l: e(l)) for l in ops]
    def st_():
        if opt["r16"]:
            e(f"buffer_store_dwordx4 {vr(pk,4)}, v{vHS if g2 else vL16}, {srd(sH)}, s{(sHS if q < 2 else sHS2) if opt['emo'] == 0 else sH+2} offen offset:{(q%2)*2048} {opt['emaux'].replace('-','')}"); VM.issue("hstA" if opt["ab2"] else "hst")
            return
        e(f"buffer_store_dwordx4 {vr(pk,4)}, v{vHS}, {srd(sH)}, s{sHS} offen offset:{g2*512 + (q%2)*2048} sc1"); VM.issue("hstA" if opt["ab"] else "hst")
    if not opt['ems']: PEND.append(st_); return fs
    return fs + [st_]
def merge(a, b):
    r = []; a = list(a); b = list(b); na, nb_ = len(a), len(b)
    while a or b:
        if a and (not b or len(a) * nb_ >= len(b) * na): r.append(a.pop(0))
        else: r.append(b.pop(0))
    return r
if EMU:
    for r in range(8): e(f"v_cvt_f32_u32 v{216+r}, v{vL16}"); e(f"v_mul_f32 v{216+r}, 0x3a000000, v{216+r}")
for st in range(10):
    if st == 1 and opt["fpre"]:
        e(f"s_mul_i32 s{sTAG}, s{sE}, 0x9E3779B1")
        e(f"s_add_u32 s{sTAG}, s{sTAG}, 0x7F4A7C15")
        e(f"v_mov_b32 v{vT}, s{sTAG}")
    if st == opt["wu"]:
        e("s_mov_b64 exec, 0")
        for k in range(1, 4):
            e(f"s_cmp_eq_u32 s{sW}, {k}")
            e(f"s_cbranch_scc1 L_w{k}")
        e("L_wr:")
        e("s_mov_b64 exec, -1")
    if st != opt["nw"]: VM.wait(f"st{st}")
    if st == opt["rjs"]: VM.wait("rld")
    if st == opt["rfs"]: VM.wait("rst"); VM.wait("clr")
    if st == opt["afs"] and st: VM.wait("hstA")
    if st == opt["fas"]: VM.wait("hstA")
    LG.drain()
    e("s_barrier")
    if st == opt["fas"]: flagA(False)
    if st == opt["afs"] and st:
        e(f"s_cmp_eq_u32 s{sW}, 0")
        e(f"s_cselect_b32 s{sT1}, s{sFLG}, {HREC}")
        flag_store(sT1); stamp(k=7)
    if st == 9: stamp()
    stamp(k=1)
    if st >= 8: stamp(k=4)
    if st == opt["rfs"] or (RPW and st == 1):
        if not opt["fpre"]:
            e(f"s_mul_i32 s{sTAG}, s{sE}, 0x9E3779B1")
            e(f"s_add_u32 s{sTAG}, s{sTAG}, 0x7F4A7C15")
        if not RPW and opt["fpre"] < 2: flag_store(sRFL, opt["rpk"] // 4)
    if not D1 and ((st == opt["rcs"] and opt["rck"] == 0) or (st == 9 and opt["rck"] == 2)): r_check()
    if NSL == 4:
        if st == 0: fill = ([] if opt["pre3"] else dma_ops(2)) + dma_ops(3)
        elif st < 7: fill = dma_ops(st + 3)
        else: fill = take(opt[f"n{st}"])
    elif st == 0 and opt["pre3"]: fill = list(ST0)
    elif st < 8: fill = dma_ops(st + 2) + (take(opt["d7"]) if st == 7 else [])
    else: fill = take(opt["n8"] if st == 8 else opt["n9"])
    if st == opt["dst"]: fill = fill + take(opt["dn"])
    if opt["tch"] and st + opt["la"] < 10: fill.insert(opt["tpos"], touch)
    if st == opt["rls"]: fill = [r_loads] + fill if opt["rpos"] == 0 else fill + [r_loads]
    if st == opt["rjs"]:
        fill.insert(min(opt["rsp"], len(fill)), r_stores)
        fill = [r_reads] + fill
    if st == opt["rps"] and not D1: fill.insert(opt["rpp"], r_poll)
    if st == opt["rfs"] and opt["fpre"] >= 2: fill.insert(min(opt["fpre"] - 2, len(fill)), lambda: flag_store(sRFL, opt["rpk"] // 4))
    if st == opt["wts"]: fill.insert(min(opt["wtp"], len(fill)), wtouch)
    if st == opt["pvs"]: fill.append(pvtouch)
    if st == opt["xts"]: fill.insert(min(opt["xtp"], len(fill)), xtouch)
    WS_ = [int(c) for c in str(opt["wst"]).lstrip("x")]
    if st in WS_:
        def stag(st=st):
            m = sum(1 << k for k, c in enumerate(WS_) if c == st)
            if st == min(WS_):
                e(f"s_lshl_b32 s8, s2, 2")
                e(f"s_add_u32 s8, s8, s{sW}")
                if opt["wss"] == 1:
                    e(f"s_lshl_b32 s8, s8, 7")
                    e(f"v_lshlrev_b32 v250, 13, v{vL16}")
                elif opt["wss"] == 2:
                    e(f"v_lshl_add_u32 v251, v{vL16}, 1, s8")
                    e(f"v_and_b32 v251, 1023, v251")
                    e(f"v_lshlrev_b32 v251, 7, v251")
                    e(f"v_lshl_add_u32 v250, v{vL16}, 13, v251")
                    e(f"s_mov_b32 s8, 0")
                elif opt["wss"] == 3:
                    e(f"v_mul_u32_u24 v251, 37, v{vL16}")
                    e(f"v_lshrrev_b32 v251, 2, v251")
                    e(f"v_add_u32 v251, s8, v251")
                    e(f"v_and_b32 v251, 1023, v251")
                    e(f"v_lshlrev_b32 v251, 7, v251")
                    e(f"v_lshl_add_u32 v250, v{vL16}, 13, v251")
                    e(f"s_mov_b32 s8, 0")
                else:
                    e(f"s_mul_i32 s8, s8, {15*128}")
                    e(f"v_lshlrev_b32 v250, 3, v{vL16}")
                e(f"s_lshr_b32 s9, s2, {opt['wsh']}")
                e(f"s_and_b32 s9, s9, {len(WS_)-1}")
            e(f"s_bitcmp1_b32 {m}, s9")
            if opt["wsb"]:
                e(f"s_cbranch_scc0 L_ws{st}")
                e(f"s_mov_b64 exec, {(1 << 15) - 1}")
                e(f"buffer_load_dword v251, v250, {srd(sW2)}, s8 offen {opt['wtaux']}")
                e("s_mov_b64 exec, -1")
                e(f"L_ws{st}:")
                return
            e(f"s_cselect_b32 s10, s8, 1966080")
            e(f"s_mov_b64 exec, {(1 << 15) - 1}")
            e(f"buffer_load_dword v251, v250, {srd(sW2)}, s10 offen {opt['wtaux']}"); VM.issue("wt")
            e("s_mov_b64 exec, -1")
        fill.insert(min(opt["wtp"], len(fill)), stag)
    WX = [int(c) for c in str(opt["wx"]).lstrip("x")]
    for k, c in enumerate(WX):
        if c == st: fill.insert(min(opt["wxp"], len(fill)), wxtouch(k, len(WX)))
    if st == opt['sws']: fill.insert(min(opt['swp'], len(fill)), stouch)
    if st == opt["ot"]:
        def otch():
            if opt["otm"] == 1: e("s_mov_b64 exec, 1")
            e(f"buffer_load_dword v251, v{vOUT}, {srd(sOUT)}, s{sOB} offen"); VM.issue("ot")
            if opt["otm"] == 3: e(f"buffer_load_dword v251, v{vOUT2}, {srd(sOUT)}, s{sOB} offen offset:128"); VM.issue("ot")
            e("s_mov_b64 exec, -1")
        fill.append(otch)
    ex = [CLO[i] for i, c in enumerate(str(opt["clrs"]).lstrip("x")) if int(c) == st]
    for bi, es in enumerate(EMU):
        if es == st: ex += emu_ops(bi)
    if ex: fill = merge(fill, ex)
    h = (len(fill) + 1) // 2
    f0, f1 = fill[:h], fill[h:]
    if st == 8 and opt["rck"] == 1:
        k = 1 if opt["rps"] == 8 else 0
        f0, f1 = fill[:k], [r_check] + fill[k:]
    if opt["fp"] and st:
        c = [int(z) for z in str(opt["fp"]).lstrip("x")]
        assert sum(c) == 8
        if st == opt["rjs"]: c[-12] += 1
        if len(c) == 13:
            k = c.pop(0)
            pre, fill = fill[:k + (st == opt["rjs"])], fill[k + (st == opt["rjs"]):]
            if st == opt["rjs"]: fill.insert(0, pre.pop(0))
            for f in pre: f()
        h = sum(c[:6])
        half_body(1, rd_ops(st, 0), fill[:h], c[:6])
        half_body(0, rd_ops(st, 1), fill[h:], c[6:])
        continue
    half_body(1 if st else None, rd_ops(st, 0), f0)
    half_body(0, rd_ops(st, 1), f1)
stamp()
def silu_block(q, g2):
    a0 = vACC1 + 16*q + 8*g2
    bi = 2*q + g2
    tt = vS + (bi % 2) * 8
    pk = vRF + bi * 4
    ops = []
    if opt["pk"]:
        for r in range(0, 8, 2): ops.append(f"v_pk_mul_f32 {vr(tt+r,2)}, {vr(a0+r,2)}, s[{sPK}:{sPK+1}]")
        for r in range(8): ops.append(f"v_exp_f32 v{tt+r}, v{tt+r}")
        for r in range(0, 8, 2): ops.append(f"v_pk_add_f32 {vr(tt+r,2)}, {vr(tt+r,2)}, 1.0 op_sel_hi:[1,0]")
        for r in range(8): ops.append(f"v_rcp_f32 v{tt+r}, v{tt+r}")
        for r in range(0, 8, 2): ops.append(f"v_pk_mul_f32 {vr(tt+r,2)}, {vr(a0+r,2)}, {vr(tt+r,2)}")
    else:
        for r in range(8): ops.append(f"v_mul_f32 v{tt+r}, s{sL2E}, v{a0+r}")
        for r in range(8): ops.append(f"v_exp_f32 v{tt+r}, v{tt+r}")
        for r in range(8): ops.append(f"v_add_f32 v{tt+r}, 1.0, v{tt+r}")
        for r in range(8): ops.append(f"v_rcp_f32 v{tt+r}, v{tt+r}")
        for r in range(8): ops.append(f"v_mul_f32 v{tt+r}, v{a0+r}, v{tt+r}")
    if opt["r48"] and bi >= 4:
        for r in (0, 2, 1, 3): ops.append(f"v_cvt_pk_bf16_f32 v{pk+r}, v{tt+2*r}, v{tt+2*r+1}")
        ops.append(f"v_permlane32_swap_b32 v{pk}, v{pk+2}")
        ops.append("s_nop 0")
        ops.append(f"v_permlane32_swap_b32 v{pk+1}, v{pk+3}")
    else:
        for r in range(4): ops.append(f"v_cvt_pk_bf16_f32 v{pk+r}, v{tt+2*r}, v{tt+2*r+1}")
    nbs = str(opt["nb"]).lstrip("x")
    fill = take(int(nbs[bi] if len(nbs) > 1 else nbs))
    if opt["tsil"] and bi >= 6 - opt["tsil"]: fill = fill + tgroup_ops(len(TDONE))
    step = len(ops) // (len(fill) + 1) if fill else 0
    for i, l in enumerate(ops):
        if not opt["novalu"]: e(l)
        if fill and step and (i + 1) % step == 0: fill.pop(0)()
    for f in fill: f()
    so = sHS if q < 2 else sHS2
    def st_():
        if opt["nost"]: return
        if OW:
            e(f"buffer_store_dwordx4 {vr(pk,4)}, v{vHS}, {srd(sH)}, s{(sHS, 10, sHS2)[q]} offen offset:{g2*512} sc1"); VM.issue("hst")
            if q < 2: e(f"ds_write_b128 v{vOW+q}, {vr(pk,4)} offset:{g2*512}"); LG.issue("ow")
            return
        if opt["own"]:
            e(f"buffer_store_dwordx4 {vr(pk,4)}, v{vHS}, {srd(sH)}, s{(sHS, sHS1, sHS2)[q]} offen offset:{g2*512} sc1"); VM.issue("hst")
            if q < 2: e(f"ds_write_b128 v{vOW+q}, {vr(pk,4)} offset:{q*8192 + g2*512}"); LG.issue("ow")
            return
        if opt["r48"]:
            e(f"buffer_store_dwordx4 {vr(pk,4)}, v{vONE if q == 2 else vHS if g2 else vL16}, {srd(sH)}, s{sHS2 if bi in (2, 3, 5) else sHS} offen {opt['hsaux'].replace('-','')}"); VM.issue("hst")
            return
        if opt["r16"]:
            e(f"buffer_store_dwordx4 {vr(pk,4)}, v{vHS if g2 else vL16}, {srd(sH)}, s{so} offen offset:{(q%2)*2048} {opt['hsaux'].replace('-','')}"); VM.issue("hstA" if opt["ab2"] and bi < opt["fa"] and not EMU else "hst")
            return
        e(f"buffer_store_dwordx4 {vr(pk,4)}, v{vHS}, {srd(sH)}, s{so} offen offset:{g2*512 + (q%2)*2048} {opt['hsaux'].replace('-','')}"); VM.issue("hstA" if opt["ab"] and q < 2 else "hst")
        if opt["hs2"]:
            e(f"buffer_store_dwordx4 {vr(pk,4)}, v{vHS}, {srd(sH)}, s{so} offen offset:{g2*512 + (q%2)*2048} {opt['hs2'].replace('-','')}"); VM.issue("hst")
    PEND.append(st_)
    if bi >= opt["sl"]:
        while PEND: PEND.pop(0)()
if opt["st0"]:
    e(f"s_cmp_lt_u32 s{sW}, {opt['st0']}")
    e(f"s_cselect_b32 s{sHS}, s{sHS}, {HREC}")
    e(f"s_cselect_b32 s{sHS2}, s{sHS2}, {HREC}")
if opt["r16"]:
    for i in range(12):
        mfma16(1, i, True)
        if opt["rfs"] == 10 and i == 4: VM.wait("rst"); flag_store(sRFL, opt["rpk"] // 4)
else:
    for q in range(3):
        for kk in range(2): mfma1(1, kk, q)
    e("s_nop 7")
stamp(k=4)
if opt["sts"] == 4: VM.drain(); stamp(k=4)
def cnt_add(tag, off):
    VM.wait(tag)
    e("s_mov_b64 exec, 1")
    e(f"ds_add_rtn_u32 v{vT+1}, v{vCN}, v{vONE} offset:{off}")
    e("s_mov_b64 exec, -1")
def cnt_flag(add):
    e("s_waitcnt lgkmcnt(0)"); LG.q = []
    e(f"v_readfirstlane_b32 s{sT0}, v{vT+1}")
    e(f"s_add_u32 s{sT1}, s{sFLG}, {add}")
    e(f"s_cmp_eq_u32 s{sT0}, 3")
    e(f"s_cselect_b32 s{sT1}, s{sT1}, {HREC}")
    flag_store(sT1)
def silu_mix():
    P = opt["sil"] == 1
    T = []; N = []
    def ln(t): return lambda: e(t)
    def mulA(b):
        a0 = vACC1 + 8*b; tt = vS + (b % 2) * 8
        if P: return [(f"m{b}{r}", [], ln(f"v_pk_mul_f32 {vr(tt+r,2)}, {vr(a0+r,2)}, s[{sPK}:{sPK+1}]")) for r in range(0, 8, 2)]
        return [(f"m{b}{r}", [], ln(f"v_mul_f32 v{tt+r}, s{sL2E}, v{a0+r}")) for r in range(8)]
    def add(b):
        tt = vS + (b % 2) * 8
        if P: return [(f"a{b}{r}", [f"e{b}{r+1}"], ln(f"v_pk_add_f32 {vr(tt+r,2)}, {vr(tt+r,2)}, 1.0 op_sel_hi:[1,0]")) for r in range(0, 8, 2)]
        return [(f"a{b}{r}", [f"e{b}{r}"], ln(f"v_add_f32 v{tt+r}, 1.0, v{tt+r}")) for r in range(8)]
    def fin(b):
        a0 = vACC1 + 8*b; tt = vS + (b % 2) * 8; pk = vRF + b * 4
        q, g2 = b // 2, b % 2
        m = []
        for r in range(0, 8, 2):
            if P: m.append([(f"f{b}{r}", [f"r{b}{r+1}"], ln(f"v_pk_mul_f32 {vr(tt+r,2)}, {vr(a0+r,2)}, {vr(tt+r,2)}"))])
            else: m.append([(f"f{b}{r+1-z}", [f"r{b}{r+z}"], ln(f"v_mul_f32 v{tt+r+z}, v{a0+r+z}, v{tt+r+z}")) for z in range(2)])
        c = [(f"c{b}{r}", [f"f{b}{2*r}"], ln(f"v_cvt_pk_bf16_f32 v{pk+r}, v{tt+2*r}, v{tt+2*r+1}")) for r in range(4)]
        def st_():
            e(f"buffer_store_dwordx4 {vr(pk,4)}, v{vHS}, {srd(sH)}, s{sHS if q < 2 else sHS2} offen offset:{g2*512 + (q%2)*2048} {opt['hsaux'].replace('-','')}"); VM.issue("hst")
        return m[0] + m[1] + [c[0]] + m[2] + [c[1]] + m[3] + [c[2], c[3], (f"s{b}", [], st_)]
    N += mulA(0)
    for b in range(6):
        tt = vS + (b % 2) * 8
        T += [(f"e{b}{r}", [f"m{b}{r & ~1 if P else r}"], ln(f"v_exp_f32 v{tt+r}, v{tt+r}")) for r in range(8)]
        T += [(f"r{b}{r}", [f"a{b}{r & ~1 if P else r}"], ln(f"v_rcp_f32 v{tt+r}, v{tt+r}")) for r in range(8)]
        N += add(b)
        if b < 5: N += mulA(b + 1)
        N += fin(b)
    done = {}
    I0 = len(O)
    def emit(x): x[2](); done[x[0]] = len(done)
    K = [int(c) for c in str(opt["silk"]).lstrip("x")]
    for i, t in enumerate(T):
        while not all(d in done for d in t[1]): emit(N.pop(0))
        emit(t)
        k = K[i % len(K)]
        while N and all(d in done and len(done) - done[d] >= opt["sild"] for d in N[0][1]) and (k > 0 or N[0][0][0] == "s"):
            if N[0][0][0] != "s": k -= 1
            emit(N.pop(0))
    for x in N: emit(x)
    O[I0-8:] = fix(O[I0-8:])
if opt["sil"]: silu_mix()
for q in range(3 if not opt["sil"] else 0):
    for g2 in range(2):
        bi = 2*q + g2
        if opt["ab"] and not opt["afs"] and bi == 4 + opt["afp"]: cnt_add("hstA", 0); stamp(k=7)
        if opt["rfs"] == 11 + bi: VM.wait("rst"); flag_store(sRFL, opt["rpk"] // 4)
        if opt["ab2"] and opt["fas"] < 0 and bi == opt["fa"]: flagA()
        if bi >= len(EMU): silu_block(q, g2)
        if opt["ab"] and not opt["afs"] and bi == 4 + opt["afp"]: cnt_flag(0); stamp(k=7)
stamp(); stamp(k=4); stamp(k=8); stamp(k=9)
if opt["ab2"]:
    if opt["fas"] < 0 and opt["fa"] == 6: flagA()
elif not opt["spec"]:
    NT = (48 - len(W2L)) // 4
    PL = take(opt["post"])
    if opt["tpm"]:
        TL = []
        while len(TDONE) < NT: TL += tgroup_ops(len(TDONE))
        PL = merge(PL, TL) if opt["tpm"] == 1 else TL + PL
    for i, f in enumerate(PL):
        if D1 and i == opt["rpq"] and opt["rpl"] < 0: r_poll()
        if i == opt["pae"]:
            e(f"buffer_load_dword v{vPOLL}, v{vPA}, {srd(sH)}, s{sPOL} offen sc1"); VM.issue("poll")
        f()
    if opt["wb"]:
        VM.wait("hst")
        e("buffer_wbl2 sc1"); VM.issue("hst")
    if D1:
        while len(TDONE) < NT: tgroup(len(TDONE))
    stamp(k=8)
    if not opt["nhw"]: VM.wait("hst")
    stamp(k=8)
    stamp(k=4)
    if opt["sts"] == 4: VM.drain(); stamp(k=4)
    if opt["fb"]:
        if not opt["fpre"]:
            e(f"s_cmp_eq_u32 s{sW}, 0")
            e(f"s_cselect_b32 s{sFLG}, s{sFLG}, {HREC}")
        if opt["own"]: LG.drain()
        if OW: LG.drain()
        e("s_barrier")
    else:
        e("s_mov_b64 exec, 1")
        e(f"ds_add_rtn_u32 v{vT+1}, v{vCN}, v{vONE} offset:{4 if opt['ab'] else 0}")
        e("s_mov_b64 exec, -1")
        if opt["ab"]: e(f"s_add_u32 s{sFLG}, s{sFLG}, {FLB}")
        for f in take(opt["mid"]): f()
        e("s_waitcnt lgkmcnt(0)")
        e(f"v_readfirstlane_b32 s{sT0}, v{vT+1}")
        e(f"s_cmp_eq_u32 s{sT0}, {3 if opt['nopoll'] < 2 else 9}")
        e(f"s_cselect_b32 s{sFLG}, s{sFLG}, {HREC}")
    if opt["nopoll"] == 3: e(f"s_mov_b32 s{sPOL}, {HREC}")
    flag_store(sFLG)
    if opt["fb"] == 2: e("s_barrier")
    stamp(); stamp(k=3)
else:
    for f in take(opt["fw"]): f()
    VM.wait("hst")
    e(f"s_lshl_b32 s{sT0}, s{sW}, 15")
    e(f"s_add_u32 s{sFLG}, s{sFLG}, s{sT0}")
    flag_store(sFLG)
    stamp()
N0 = 1 if OW else 0
HL = [(p, n) for p in range(4) for n in range(N0, 12)]
def hreg(p, n): return vH + (p*(12-N0) + n - N0)*4
def park(p, j): return [vACC2, 196, 216, 240][p] + 4*j if (p, j) != (3, 4) else 236
def ofr(p): return vr(152+4*p, 4) if opt['owv'] else ar(240+4*p, 4)
def own_reads():
    for p in range(4):
        e(f"ds_read_b128 {ofr(p)}, v{vRW} offset:{32768 + 4096 + p*1024}"); LG.issue(f"or{p}"); ORD.append(f"or{p}")
def own_ops(js):
    def mk(p, j):
        def f():
            LG.wait(f"or{p}"); LG.wait("t0")
            if j == 4: VM.wait("w0")
            if opt["nom"]: return
            mf2(vr(park(p, j), 4), 0, j, ofr(p), '0')
        return f
    return [mk(p, j) for p in range(4) for j in js]
def hload():
    if HL:
        p, n = HL.pop(0)
        if opt["noh"] and (p*12+n) % opt["noh"]: return
        e(f"buffer_load_dwordx4 {vr(hreg(p, n), 4)}, v{vHB+p}, {srd(sH)}, s{sSIG+n} offen {opt['haux'].replace('-','')}"); VM.issue(f"h{p}_{n}")
def mark(v):
    if not opt["stamps"] or opt["sts"]: return
    i = NST[0]; NST[0] += 1
    e(f"s_add_u32 s{72+2*i}, s74, {v}"); e(f"s_addc_u32 s{73+2*i}, s75, 0")
ACI = []; OOL = []
def allc_load(late=False):
    if opt["acb"] == 2 or (opt["acp"] >= 0) != late: return
    if opt["acb"] == 3:
        e("s_cmp_eq_u32 s2, 0")
        e("s_cbranch_scc1 L_aclo")
        e("L_acl:")
        OOL.extend(["L_aclo:", f"s_mov_b32 s{sT0}, {FL}", f"buffer_load_dword v{vAV}, v{vAC}, {srd(sH)}, s{sT0} offen sc1", "s_branch L_acl"])
        return
    if opt["acb"]:
        e("s_cmp_lg_u32 s2, 0")
        e("s_cbranch_scc1 L_acl")
        e(f"s_mov_b32 s{sT0}, {FL}")
        e(f"buffer_load_dword v{vAV}, v{vAC}, {srd(sH)}, s{sT0} offen sc1")
        e("L_acl:")
        VM.q.insert(0, "allc") if False else None
        ACI.append(len(VM.q))
        return
    e("s_cmp_eq_u32 s2, 0")
    e(f"s_cselect_b32 s{sT0}, {FL if D1 else RFL}, s{sH+2}")
    e(f"buffer_load_dword v{vAV}, v{vAC}, {srd(sH)}, s{sT0} offen sc1"); VM.issue("allc")
def p0_block(ML, pre):
    ML = list(ML)
    TL = []
    while D1 and len(TDONE) < 12 - opt["tin"]: TL += tgroup_ops(len(TDONE))
    for f in (merge(ML[:pre], TL) if opt["tmix"] else ML[:pre] + TL): f()
    if OW:
        for f in own_ops([4]): f()
    del ML[:pre]
    if D1 and not opt["tin"]: LG.drain()
    stamp()
    for n in range(N0, 12):
        assert (0, n) not in HL and not any(getattr(f, "__defaults__", None) and f.__defaults__[0] == n for f in ML), n
        late = max((f"h0_{n}", f"w{n}"), key=lambda t: len(VM.q) - 1 - VM.q[::-1].index(t) if t in VM.q else -1)
        VM.wait(late)
        TL = []
        if D1:
            assert f"t{n}" in TDONE
            LG.wait(f"t{n}")
            if len(TDONE) < 12: TL = tgroup_ops(len(TDONE))
        if n == N0 or n == 6: stamp(k=2)
        cnt = (len(ML) + 11 - n) // (12 - n)
        pos = {1: [opt["hj"]], 2: [1, 3], 3: [0, 2, 4], 4: [0, 1, 2, 3], 5: [0, 1, 2, 3, 4], 0: []}[cnt]
        for j in range(5):
            c = "0" if n == 0 else vr(vACC2+4*j, 4)
            mf2(vr(vACC2+4*j,4), n, j, vr(hreg(0, n),4), c)
            if j in pos: ML.pop(0)()
            elif TL: TL.pop(0)()
        for f in TL: f()
    assert not ML and not W2L
TP = []
def tstep(n):
    if not opt["tfm"]: return
    if not TP and len(TDONE) <= n - opt["tfm"] and len(TDONE) < 12 - opt["tlate"]: TP.extend(tgroup_ops(len(TDONE)))
    if TP: TP.pop(0)()
def late_d1():
    W5 = w5_ops()
    cnt = 0
    vP2 = vAV if opt["pqd"] or opt["rcl"] else vPOLL
    def poll():
        stamp(k=3)
        e(f"buffer_load_dword v{vP2}, v{vPA}, {srd(sH)}, s{sPOL} offen sc1"); VM.issue("poll")
    OM = []
    if OW: own_reads(); OM = own_ops(range(4))
    while W2L:
        n = W2L[0].__defaults__[0]
        if W2L[0].__defaults__[1] == 0 and WDEP[n]:
            while WDEP[n] not in TDONE + ORD: tgroup(len(TDONE))
            LG.wait(WDEP[n])
        if len(W2L) == opt["pqd"]: poll()
        if cnt == opt["rpl"]: r_poll()
        take(1)[0](); cnt += 1
        if OM and cnt > opt["owp"]: OM.pop(0)()
        if opt["tfm"]: tstep(n)
        elif cnt % opt["tl"] == 0 and len(TDONE) < n - 2: tgroup(len(TDONE))
    if opt["owp"] < 50:
        for f in OM: f()
        OM = []
    if not opt["rcl"]: r_check()
    else: assert opt["w5d"] == 12
    WD = W5[12-opt["w5d"]:]; del W5[12-opt["w5d"]:]
    def om(i):
        if 50 <= opt["owp"] < 90 and i >= opt["owp"] - 50:
            for _ in range(2):
                if OM: OM.pop(0)()
    for i, f in enumerate(W5[:opt["w5p"]]): f(); tstep(12 + i // 4); om(i)
    if not opt["pqd"]: poll()
    for i, f in enumerate(W5[opt["w5p"]:]): f(); tstep(12 + (i + opt["w5p"]) // 4); om(i + opt["w5p"])
    for f in TP: f()
    for f in OM: f()
    stamp(k=3)
    while len(TDONE) < 12 - opt['tlate']: tgroup(len(TDONE))
    if opt["hid"]:
        e("s_branch L_hid")
        spin_slow("hp", vP2, vPA, sPOL)
        if opt["hid"] & 2:
            e("L_ac_c:")
            e(f"s_mov_b32 s{sT1}, {FL}")
            e(f"v_cmp_ne_u32 vcc, s{sTAG}, v{vAV}")
            e("s_cmp_eq_u64 vcc, 0")
            e(f"s_cbranch_scc1 L_ac_go")
            spin_slow("ac", vAV, vAC, sT1)
        if opt["al"]: e(".p2align 12")
        e("L_hid:")
    VM.wait("poll")
    stamp(k=3)
    stamp()
    if opt["hid"]: spin_fast("hp", vP2, "poll")
    else: spin_check("hp", vP2, vPA, "poll", sPOL, opt["nopoll"])
    stamp(); stamp(k=2); stamp(k=3)
    mark(1000)
    allc_load()
    if opt["c5"]:
        WDL.extend(WD); return
    ML = []; pre = 0
    for i in range(opt["hpre"] + 12 - N0):
        ML.append(hload)
        if WD and WD[0].__defaults__[0] == i: ML.append(WD.pop(0))
        if i == opt["hpre"] - 1: pre = len(ML)
    p0_block(ML, pre)
WDL = []
def late_path():
    if D1: return late_d1()
    if opt['skipw']: del W2L[-opt['skipw']:]
    if opt["sts"] == 6:
        stamp(k=6)
        i = 0
        while len(W2L) > opt["pollq"]:
            take(1)[0](); i += 1
            if i % 4 == 0 and i >= opt["dw"]:
                e(f"s_waitcnt vmcnt({opt['dw']})"); stamp(k=6)
    for f in take(max(0, len(W2L) - opt["pollq"])): f()
    stamp(k=3)
    if opt["sts"] == 3: VM.drain(); stamp(k=3)
    if opt["sts"] == 4: stamp(k=4); VM.drain(); stamp(k=4)
    if opt["sp"]:
        e(f"s_load_dword s6, s[12:13], s{sPOL} {opt['spg']}")
        e(f"s_add_u32 s{sT0}, s{sPOL}, 128")
        e(f"s_load_dword s7, s[12:13], s{sT0} {opt['spg']}")
        for f in take(len(W2L)): f()
        stamp(k=3)
        e("s_waitcnt lgkmcnt(0)")
        stamp(k=3)
        stamp()
        e(f"s_cmp_eq_u32 s6, s{sTAG}")
        e(f"s_cselect_b32 s6, s7, s6")
        e(f"s_cmp_eq_u32 s6, s{sTAG}")
        e("s_cbranch_scc1 L_hp_go")
        e(f"v_mov_b32 v{vPOLL}, s6")
        spin_check("hp", vPOLL, vPA, "poll", sPOL, opt["nopoll"])
    else:
        e(f"buffer_load_dword v{vPOLL}, v{vPA}, {srd(sH)}, s{sPOL} offen sc1"); VM.issue("poll")
        for f in take(len(W2L)): f()
        stamp(k=3)
        VM.wait("poll")
        stamp(k=3)
        stamp()
        spin_check("hp", vPOLL, vPA, "poll", sPOL, opt["nopoll"])
    stamp(); stamp(k=2); stamp(k=3)
    mark(1000)
    allc_load()
    p0_block([hload] * (opt["hpre"] + 12), opt["hpre"])
LATE = []
if opt["eq"]:
    import re
    for f in take(len(W2L) - opt["eq"]): f()
    e(f"buffer_load_dword v{vPOLL}, v{vPA}, {srd(sH)}, s{sPOL} offen sc1"); VM.issue("poll")
    for f in take(opt["ec"]): f()
    VM.wait("poll")
    e(f"v_cmp_ne_u32 vcc, s{sTAG}, v{vPOLL}")
    e("s_cmp_eq_u64 vcc, 0" if not opt["nopoll"] else "s_cmp_eq_u32 s2, s2")
    e("s_cbranch_scc0 L_late")
    sv = (list(VM.q), list(W2L), list(HL), NST[0])
    LATE = ["L_late:"] + capture(late_path) + ["s_branch L_p1"]
    endq, endn = list(VM.q), NST[0]
    VM.q, W2L[:], HL[:], NST[0] = sv
    stamp(); stamp(); stamp(k=2); mark(0)
    allc_load()
    m = re.match(r"h(\d+)w(\d+)", opt["eil"])
    ML = []; nh = 12; ws = take(len(W2L))
    while nh or ws:
        k = min(nh, int(m.group(1))); ML += [hload] * k; nh -= k
        k = int(m.group(2)); ML += ws[:k]; del ws[:k]
    ML += [hload] * opt["hpre"]
    p0_block(ML, opt["epre"])
    assert NST[0] == endn, (NST[0], endn)
    k = min(len(VM.q), len(endq))
    assert VM.q[-k:] == endq[-k:] and all(t.startswith("h1") for t in VM.q + endq), (VM.q, endq)
    if len(endq) > len(VM.q): VM.q = endq
    e("L_p1:")
elif opt["spec"]:
    allc_load()
    for f in take(len(W2L) - opt["wl"]): f()
    stamp(); stamp(); stamp(k=2); mark(1000)
    ws = take(len(W2L))
    p0_block([hload] * opt["hpre"] + merge(ws, [hload] * 12) if ws else [hload] * (opt["hpre"] + 12), opt["hpre"])
elif not opt["ab"] and not opt["dfw"] and not opt["ab2"]:
    late_path()
def allc_check():
    if opt["acb"] == 2: return
    if opt["hid"] & 2:
        assert "allc" not in VM.q
        e("s_cmp_eq_u32 s2, 0")
        e("s_cbranch_scc1 L_ac_c")
        e("L_ac_go:")
        return
    if opt["acb"] == 3:
        e("s_cmp_eq_u32 s2, 0")
        e("s_cbranch_scc1 L_aco")
        e("L_acb:")
        def body():
            e(f"s_mov_b32 s{sT1}, {FL}")
            spin_check("ac", vAV, vAC, "allc", sT1)
        OOL.extend(["L_aco:"] + capture(body) + ["s_branch L_acb"])
        return
    e("s_cmp_lg_u32 s2, 0")
    e("s_cbranch_scc1 L_ac_go")
    assert "allc" not in VM.q
    if D1: e(f"s_mov_b32 s{sT1}, {FL}")
    spin_check("ac", vAV, vAC, "allc", sT1 if D1 else None)
def phase2_new():
    B1, B2, MA = opt["b1"], opt["b2"], opt["madd"]
    for p in range(1, 4):
        ac = vACC2 + (p % 2) * 20
        pa = vACC2 + ((p-1) % 2) * 20
        slots = {(n, j): [] for n in range(12) for j in range(5)}
        if opt["wb64"]:
            for k in range(10):
                def w(k=k):
                    e(f"ds_write_b64 v{vRW if p < 3 else vRW2}, {vr(pa+2*k,2)} offset:{((p-1)%2)*32768 + (k//2)*1024 + (k%2)*8}")
                    LG.issue("red")
                i = 5*N0 + opt["wg0"] + k * opt["wgs"]
                assert i < 5 * min(B1, B2)
                slots[(i // 5, i % 5)].append(w)
        elif p > 0:
            PW = [(1, 0), (1, 2), (1, 4), (2, 1), (2, 3)]
            if opt["wq"]:
                q = str(opt["wq"]).lstrip("x")
                i0, di = int(q[2*p-2], 36), int(q[2*p-1], 36)
                PW = [((i0 + k*di) // 5, (i0 + k*di) % 5) for k in range(5)]
            for jj, pos in enumerate(PW):
                def w(jj=jj):
                    if D1: e(f"ds_write_b128 v{vRW if p < 3 else vRW2}, {vr(pa+4*jj,4)} offset:{((p-1)%2)*32768 + jj*1024}")
                    else: e(f"ds_write_b128 v{vRW}, {vr(pa+4*jj,4)} offset:{(p-1)*5120 + jj*1024}")
                    LG.issue("red")
                slots[(pos[0] + N0, pos[1])].append(w)
                assert pos[0] + N0 < (12, B1, B2)[p-1]
        def rd(pp, j, dst):
            def f():
                e(f"ds_read_b128 {vr(dst, 4)}, v{vRR+pp} offset:{j*1024}"); LG.issue(f"rr{pp}{j}")
            return f
        if p == 2:
            k = 0
            for j in range(5):
                for pp in range(2):
                    slots[(B1 + k // 5, k % 5)].append(rd(pp, j, vH + pp*20 + 4*j)); k += opt["rds"]
            assert B1 + 3 <= 8 or opt["wq"]
            for i in range(20):
                def a(i=i):
                    LG.wait(f"rr1{i//4}")
                    if OW and opt["ada"] == 7:
                        e(f"v_add_f32 v{pa+i}, v{vH+i}, v{vH+20+i}")
                        if i: e(f"v_add_f32 v{pa+i-1}, v{pa+i-1}, v{park(3, (i-1)//4) + (i-1)%4}")
                        if i == 19: e(f"v_add_f32 v{pa+i}, v{pa+i}, v{park(3, 4) + 3}")
                        return
                    if OW:
                        jt, r = i // 4, (i % 2) * 2
                        d = vr(pa + 4*jt + r, 2)
                        if i % 4 < 2: e(f"v_pk_add_f32 {d}, {vr(vH + 4*jt + r, 2)}, {vr(vH + 20 + 4*jt + r, 2)}")
                        else: e(f"v_pk_add_f32 {d}, {d}, {vr(park(3, jt) + r, 2)}")
                        return
                    e(f"v_add_f32 v{pa+i}, v{vH+i}, v{vH+20+i}")
                i2 = 5*opt["ad0"] + i * (60 - 5*opt["ad0"]) // 20
                assert i2 > 5*B1 + (2*(i//4) + 1)*opt["rds"]
                slots[(i2 // 5, i2 % 5)].append(a)
        if p == 3:
            for j in range(5): slots[(B2, j)].append(rd(2, j, vH + 4*j))
            if opt["smd"]:
                MA = -1
                for j in range(5):
                    for r in range(4):
                        def a(j=j, r=r):
                            LG.wait(f"rr2{j}")
                            e(f"v_add_f32 v{ac+4*j+r}, v{ac+4*j+r}, v{vH+4*j+r}")
                        i = (opt["smd"] + j) * 5 + j + 2 + r // 2 if opt["smd"] + 5 < 12 else opt["smd"] * 5 + 3 * j + (2*j) % 5 * 0 + 99
                        slots[(i // 5, i % 5)].append(a)
        K4 = opt["k4"] if p == 3 else 0
        if K4: MA = -1; I0 = len(O)
        for n in range(N0, 12 - (opt["k2"] if K4 else 0)):
            if (p == 2 and n == B1) or (p == 3 and n == B2):
                if p == 3: allc_check(); stamp(k=2)
                LG.drain(); e("s_barrier")
                if p == 3: stamp(k=2)
            VM.wait(f"h{p}_{n}")
            if p * 12 + n == opt["acp"]: allc_load(True)
            if p * 12 + n == opt["es"]:
                e(f"s_lshl_b32 s6, s{sMT}, 2")
                e(f"s_add_u32 s6, s6, s{sOWN}")
                e(f"s_mul_i32 s6, s6, {16*1280}")
                e(f"s_mul_i32 s7, s{sFT}, 160")
                e(f"s_add_u32 s6, s6, s7")
                e(f"s_cmp_lt_u32 s{sW}, {opt['ost']}")
                e(f"s_cselect_b32 s6, s6, 2621440")
                ax = opt['esaux'].replace('-', '')
                for b in range(2):
                    e(f"buffer_store_dwordx4 {vr(vH+40+4*b,4)}, v{vOUT}, {srd(sOUT)}, s6 offen offset:{64*b} {ax}"); VM.issue("es")
                e(f"buffer_store_dwordx2 {vr(vH+40,2)}, v{vOUT2}, {srd(sOUT)}, s6 offen offset:128 {ax}"); VM.issue("es")
            if n == N0 or (n == 6 and p < 3): stamp(k=2)
            def madd(j):
                LG.wait(f"rr2{j}")
                for r in range(4): e(f"v_add_f32 v{ac+4*j+r}, v{ac+4*j+r}, v{vH+4*j+r}")
            mid = p == 3 and n == MA
            if mid: e("s_nop 3"); madd(0)
            for j in range(5):
                c = "0" if n == 0 and p < 3 else vr(ac+4*j, 4)
                if OW and n == 1 and p < 3: c = vr(park(p, j), 4)
                if mid:
                    if j < 4: madd(j+1)
                    else: e("s_nop 0")
                if j < 4 or n < 12 - K4: mf2(vr(ac+4*j,4), n, j, vr(hreg(p, n),4), c)
                if j == opt["hj"]: hload()
                for f in slots[(n, j)]: f()
                if K4 and opt["a4"] and n == opt["a4"] and j < 4:
                    assert n > 12 - K4 and n > B2
                    LG.wait("rr24"); e(f"v_add_f32 v{ac+16+j}, v{ac+16+j}, v{vH+16+j}")
    if opt["k4"]:
        tile_tail()
        O[I0:] = fix(O[I0:])
    else: out_tail()
def tile_tail():
    K2, K4 = opt["k2"], opt["k4"]
    assert opt["bp"] and opt["t4"] and not HL
    ac = vACC2 + 20; pk = vH + 64
    ML = [(n, j) for g in ((0, 1), (2, 3)) for n in range(12 - K2, 12) for j in g] + [(n, 4) for n in range(12 - K4, 12)]
    def add(j):
        def mk(r):
            def f(): LG.wait(f"rr2{j}"); e(f"v_add_f32 v{ac+4*j+r}, v{ac+4*j+r}, v{vH+4*j+r}")
            return f
        return [mk(r) for r in range(4)]
    def ln(t): return lambda: e(t)
    def cvt(j): return [ln(f"v_cvt_pk_bf16_f32 v{pk+2*j+r}, v{ac+4*j+2*r}, v{ac+4*j+2*r+1}") for r in range(2)]
    def sw(b): return [ln(f"v_permlane32_swap_b32 v{pk+4*b+r}, v{pk+4*b+2+r}") for r in range(2)]
    def bp(b):
        def mk(r):
            def f(): e(f"ds_bpermute_b32 v{pk+16+4*b+r}, v{vL16b}, v{pk+4*b+r}"); LG.issue(f"bp{b}")
            return f
        return [mk(r) for r in (0, 2, 1, 3)]
    def st(b):
        def f():
            LG.wait(f"bp{b}")
            e(f"buffer_store_dwordx4 {vr(pk+16+4*b,4)}, v{vOUT}, {srd(sOUT)}, s{sOB} offen offset:{64*b} {opt['outaux']}")
        return [f]
    fd = opt["fd"]
    Qo = [(0, f) for f in ([] if opt["a4"] else add(4))] + [(fd - 1, f) for f in add(2) + add(3)]
    n23 = len(Qo)
    Qo += [(2*K2 + fd - 1, f) for f in add(0) + add(1) + cvt(0) + cvt(1) + sw(0) + bp(0)]
    Qo += [(4*K2 + fd - 1, f) for f in cvt(2) + cvt(3) + sw(1) + bp(1) + st(0)]
    done = 0
    for i, (n, j) in enumerate(ML):
        if i == 2*K2:
            while done < n23: Qo.pop(0)[1](); done += 1
        VM.wait(f"h3_{n}")
        mf2(vr(ac+4*j,4), n, j, vr(hreg(3, n),4), vr(ac+4*j,4))
        for _ in range(opt["fr"]):
            if Qo and Qo[0][0] <= i: Qo.pop(0)[1](); done += 1
    stamp(); stamp(k=2)
    for _, f in Qo: f()
    for f in cvt(4): f()
    for r in range(4):
        e(f"buffer_store_short{'_d16_hi' if r % 2 else ''} v{pk+8+r//2}, v{vOUT2}, {srd(sOUT)}, s{sOB2} offen offset:{128 + r*1280} {opt['outaux']}")
    st(1)[0]()
def out_tail():
    stamp(); stamp(k=2)
    if opt["enc"]: stamp(True)
    ac = vACC2 + 20
    pk = vH + 64
    def cvt(j):
        for r in range(2): e(f"v_cvt_pk_bf16_f32 v{pk+2*j+r}, v{ac+4*j+2*r}, v{ac+4*j+2*r+1}")
    def swp(b):
        e(f"v_permlane32_swap_b32 v{pk+4*b}, v{pk+4*b+2}")
        e(f"v_permlane32_swap_b32 v{pk+4*b+1}, v{pk+4*b+3}")
        if opt["enc"]:
            e("s_waitcnt lgkmcnt(0)")
            e(f"v_lshrrev_b32 v{vT+1}, 4, v{vL16}")
            for r in range(4):
                i = 4*b + r
                e(f"v_mov_b32 v{vT}, s{72+2*i}")
                e("s_mov_b32 exec_lo, 0")
                e(f"v_mov_b32 v{vT}, s{72+2*min(i+8, 14)}")
                e("s_mov_b32 exec_lo, -1")
                e(f"v_lshrrev_b32 v{vT}, v{vT+1}, v{vT}")
                e(f"v_bfi_b32 v{pk+4*b+r}, 1, v{vT}, v{pk+4*b+r}")
        if opt["ofk"]:
            e(f"buffer_store_dwordx4 {vr(pk+4*b,4)}, v{vL16b if b else vOUT}, {srd(sOUT)}, s{sOB} offen {opt['outaux']}"); return
        e(f"buffer_store_dwordx4 {vr(pk+4*b,4)}, v{vOUT}, {srd(sOUT)}, s{sOB} offen offset:{64*b} {opt['outaux']}")
    if opt["bp"]:
        assert not opt["enc"]
        def sw(b):
            e(f"v_permlane32_swap_b32 v{pk+4*b}, v{pk+4*b+2}")
            e(f"v_permlane32_swap_b32 v{pk+4*b+1}, v{pk+4*b+3}")
        def bp(b, n):
            for r in range(n):
                e(f"ds_bpermute_b32 v{pk+16+4*b+r}, v{vL16b}, v{pk+4*b+r}"); LG.issue(f"bp{b}")
        def st(b):
            LG.wait(f"bp{b}")
            if b < 2: e(f"buffer_store_dwordx4 {vr(pk+16+4*b,4)}, v{vOUT}, {srd(sOUT)}, s{sOB} offen offset:{64*b} {opt['outaux']}")
            else: e(f"buffer_store_dwordx2 {vr(pk+24,2)}, v{vOUT2}, {srd(sOUT)}, s{sOB2} offen offset:128 {opt['outaux']}")
        e("s_nop 3")
        if opt["t4"]:
            cvt(0); cvt(1); cvt(2); sw(0); cvt(3); bp(0, 4); sw(1); cvt(4); bp(1, 4)
            for r in range(4):
                e(f"buffer_store_short{'_d16_hi' if r % 2 else ''} v{pk+8+r//2}, v{vOUT2}, {srd(sOUT)}, s{sOB2} offen offset:{128 + r*1280} {opt['outaux']}")
            st(0); st(1)
            return
        cvt(0); cvt(1); cvt(2); sw(0); cvt(3); bp(0, 4); cvt(4); sw(1); bp(2, 2); bp(1, 4); st(0); st(2); st(1)
        return
    e("s_nop 3")
    cvt(0); cvt(1); cvt(2); swp(0); cvt(3); cvt(4); swp(1)
    e(f"buffer_store_dwordx2 {vr(pk+8,2)}, v{vOUT2}, {srd(sOUT)}, s{sOB2 if D1 else sOB} offen offset:128 {opt['outaux']}")
def phase2_c():
    B1, B2, MA = opt["b1"], opt["b2"], opt["madd"]
    hp = opt["hpre"]
    ML = []
    WD = list(WDL)
    for i in range(48):
        g = [hload]
        k = 12 - len(WD)
        if WD and (i >= opt["w5s"] + (k - (12 - len(WDL))) * opt["w5k"] or i >= 24 + k): g.append(WD.pop(0))
        ML.append(g)
    assert not WD
    TL = []
    while len(TDONE) < 12: TL += tgroup_ops(len(TDONE))
    pre = [f for g in ML[:hp] for f in g]
    if opt["rcl"]:
        assert len(pre) == hp
        pre.append(r_check)
    for f in merge(pre, TL): f()
    del ML[:hp]
    LG.drain()
    stamp()
    A5 = 240
    def wr(blk, jj, src):
        def f():
            e(f"ds_write_b128 v{vRW if blk < 2 else vRW2}, {src} offset:{(blk%2)*32768 + jj*1024}"); LG.issue("red")
        return f
    def rd(pp, j, dst):
        def f():
            e(f"ds_read_b128 {vr(dst, 4)}, v{vRR+pp} offset:{j*1024}"); LG.issue(f"rr{pp}{j}")
        return f
    for p in range(4):
        ac = vACC2 + (p % 2) * 20
        pa = vACC2 + ((p-1) % 2) * 20
        NM = [4, 4, 7, 5][p]
        slots = {(n, j): [] for n in range(12) for j in range(NM)}
        def put(i0, step, fs):
            for k, f in enumerate(fs):
                i = i0 + k * step
                slots[(i // NM, i % NM)].append(f)
        if p > 0:
            ws = [wr(p-1, jj, vr(pa+4*jj, 4)) for jj in range(4)]
            if p == 3: ws += [wr(b, 4, ar(A5+4*b, 4)) for b in range(3)]
            put(NM, 2, ws)
            if p == 3: assert NM + 2*6 < B2 * NM
        if p == 2:
            assert B1 >= 4
            put(B1 * NM, 1, [rd(pp, j, vH + pp*48 + 4*j) for j in range(4) for pp in range(2)])
            def mk(i):
                def a():
                    LG.wait(f"rr1{i//4}")
                    e(f"v_add_f32 v{pa+i}, v{vH+i}, v{vH+48+i}")
                return a
            put(8 * NM, 1, [mk(i) for i in range(16)])
        if p == 3:
            put(B2 * NM, 1, [rd(pp, 4, vH + 16 + 4*pp) for pp in range(3)] + [rd(2, j, vH + 4*j) for j in range(4)])
            def mk(i):
                def a():
                    LG.wait(f"rr{1 + i//4}4")
                    e(f"v_add_f32 v{vH+16+i%4}, v{vH+16+i%4}, v{vH+20+i}")
                return a
            put((MA - 2) * NM, 1, [mk(i) for i in range(8)])
            assert MA - 2 >= B2 + 2
        for n in range(12):
            if (p == 2 and n == B1) or (p == 3 and n == B2):
                if p == 3: allc_check(); stamp(k=2)
                LG.drain(); e("s_barrier")
                if p == 3: stamp(k=2)
            VM.wait(f"h{p}_{n}")
            if n == 0 or (n == 6 and p < 3): stamp(k=2)
            def madd(j):
                LG.wait(f"rr2{j}")
                for r in range(4): e(f"v_add_f32 v{ac+4*j+r}, v{ac+4*j+r}, v{vH+4*j+r}")
            mid = p == 3 and n == MA
            if mid: e("s_nop 3"); madd(0)
            g = ML.pop(0) if ML else []
            for j in range(NM):
                if j < 4 or p == 3:
                    d = vr(ac+4*j, 4); b = p
                    c = "0" if n == 0 and (p < 3 or j == 4) else d
                else:
                    b = (j - 2) % 3
                    d = ar(A5+4*b, 4); c = "0" if n == 0 else d
                    assert not any(f is not hload and f.__defaults__[0] == n for gg in ML + [g] for f in gg), n
                    VM.wait(f"w{n}")
                if mid:
                    if j < 4: madd(j+1)
                    else: e("s_nop 0")
                e(f"v_mfma_f32_16x16x32_bf16 {d}, {ar(n*20+4*min(j,4),4)}, {vr(vH+(b*12+n)*4,4)}, {c}")
                if g and j in (opt["hj"], 3): g.pop(0)()
                for f in slots[(n, j)]: f()
            assert not g
    out_tail()
def phase2_ab():
    OA = opt["owna"]
    NE = opt["ne"]; NL = 12 - NE
    items = [(p, n) for p in range(3) for n in range(NE)] + [(3, n) for n in range(OA)]
    NA = len(items)
    items += [(p, n) for p in range(3) for n in range(NE, 12)] + [(3, n) for n in range(OA, 12)]
    NS = 36; vH2 = 112
    acc = lambda p, j: 24 + 20*p + 4*j
    hp = opt["hpre"]
    HI = list(range(48))
    seen = set()
    I0 = 0
    def own_mf(k):
        if not opt["own"] or k != opt["omp"]: return
        VM.wait("w0")
        for p in range(4):
            LG.wait(f"or{p}")
            for j in range(5):
                e(f"v_mfma_f32_16x16x32_bf16 {vr(acc(p,j),4)}, {ar(4*j,4)}, {vr(vH2+p*4,4)}, 0")
    if opt["own"]:
        items = [(p, 0) for p in range(4)] + [(p, n) for p in range(4) for n in range(1, 12)]
        HI = HI[4:]; I0 = 4; seen = {0, 1, 2, 3}
        for p in range(4):
            e(f"ds_read_b128 {vr(vH2+p*4, 4)}, v{vOW+2} offset:{p*1024}"); LG.issue(f"or{p}")
    def hl():
        if not HI: return
        i = HI.pop(0); p, n = items[i]
        if i == NA and not opt["dfw"]:
            spin_check("hpb", vPOLL, vPA, "pollB", sPOL, opt["nopoll"]); stamp(k=7)
        e(f"buffer_load_dwordx4 {vr(vH2 + (i % NS)*4, 4)}, v{vHB+p}, {srd(sH)}, s{sSIG+n} offen {opt['haux'].replace('-','')}"); VM.issue(f"h{i}")
    if opt["pae"] < 0:
        for f in take(max(0, len(W2L) - opt["pa"])): f()
        e(f"buffer_load_dword v{vPOLL}, v{vPA}, {srd(sH)}, s{sPOL} offen sc1"); VM.issue("poll")
        for f in take(opt["ec"]): f()
    own_mf(0)
    VM.wait("poll")
    stamp(); stamp(k=7)
    spin_check("hp", vPOLL, vPA, "poll", sPOL, opt["nopoll"])
    stamp(); stamp(k=2); stamp(k=7)
    e(f"s_add_u32 s{sPOL}, s{sPOL}, {FLB}")
    allc_load()
    for _ in range(hp): hl()
    for f in take(opt["wsk"]): f()
    own_mf(1)
    stamp()
    slots = {(i, j): [] for i in range(48) for j in range(5)}
    if opt["own"]: NA = 37
    L3 = NA + 3*NL
    for p in range(3):
        i0 = NA + NL*(p+1) if NL else NE*(p+1)
        if opt["own"]: i0 = 4 + 11*(p+1)
        for jj, (di, j) in enumerate([(1, 0), (1, 2), (1, 4), (2, 1), (2, 3)]):
            def w(jj=jj, p=p):
                e(f"ds_write_b128 v{vRW}, {vr(acc(p,jj),4)} offset:{p*5120 + jj*1024}"); LG.issue("red")
            slots[(i0 + di, j)].append(w)
    IB = L3 + opt["rb"]
    k = 0
    rest = 48 - IB
    assert rest >= 1
    rds = []
    for j in range(5):
        for pp in range(3):
            def f(pp=pp, j=j):
                e(f"ds_read_b128 {vr(acc(pp,j), 4)}, v{vRR+pp} offset:{j*1024}"); LG.issue(f"rr{j}")
            rds.append(f)
    per = 1 if rest >= 7 else 3
    for k, f in enumerate(rds): slots[(IB + k // per // 5, k // per % 5)].append(f)
    adds = []
    for j in range(5):
        for pp in (1, 2):
            for r in (0, 2):
                def a(j=j, pp=pp, r=r):
                    LG.wait(f"rr{j}")
                    if opt["epk"]: e(f"v_pk_add_f32 {vr(acc(0,j)+r,2)}, {vr(acc(0,j)+r,2)}, {vr(acc(pp,j)+r,2)}")
                    else:
                        for z in range(2): e(f"v_add_f32 v{acc(0,j)+r+z}, v{acc(0,j)+r+z}, v{acc(pp,j)+r+z}")
                adds.append(a)
    MA = 47 if rest >= 7 else None
    if MA:
        a0 = (MA - 3) * 5 - 5
        for k, f in enumerate(adds): slots[((a0 + k) // 5, (a0 + k) % 5)].append(f)
    for i, (p, n) in enumerate(items):
        if i < I0: continue
        if i == IB:
            allc_check(); stamp(k=2)
            LG.drain(); e("s_barrier")
            stamp(k=2)
        assert i not in HI and not any(f.__defaults__[0] == n for f in W2L), (i, n)
        late = max((f"h{i}", f"w{n}"), key=lambda t: len(VM.q) - 1 - VM.q[::-1].index(t) if t in VM.q else -1)
        VM.wait(late)
        if i % 8 == 0: stamp(k=2)
        def madd(j):
            if opt["epk"]:
                for r in (0, 2): e(f"v_pk_add_f32 {vr(acc(3,j)+r,2)}, {vr(acc(3,j)+r,2)}, {vr(acc(0,j)+r,2)}")
            else:
                for r in range(4): e(f"v_add_f32 v{acc(3,j)+r}, v{acc(3,j)+r}, v{acc(0,j)+r}")
        mid = i == MA
        if mid: e("s_nop 3"); madd(0)
        for j in range(5):
            c = vr(acc(p,j), 4) if p in seen else "0"
            if mid:
                if j < 4: madd(j+1)
                else: e("s_nop 1")
            e(f"v_mfma_f32_16x16x32_bf16 {vr(acc(p,j),4)}, {ar(n*20+4*j,4)}, {vr(vH2+(i % NS)*4,4)}, {c}")
            if j == opt["hj"]: hl()
            if j == 3 and i % opt["wr"] == 0:
                for f in take(1): f()
            if j == 4 and i == opt["pb"] and not opt["dfw"]:
                e(f"buffer_load_dword v{vPOLL}, v{vPA}, {srd(sH)}, s{sPOL} offen sc1"); VM.issue("pollB")
            for f in slots[(i, j)]: f()
        seen.add(p)
    stamp(); stamp(k=2); stamp(k=7)
    if opt["enc"]: stamp(True)
    ac = acc(3, 0)
    pk = vH2 + 64
    if not MA:
        for f in adds: f()
        for j in range(5): madd(j)
    def cvt(j):
        for r in range(2): e(f"v_cvt_pk_bf16_f32 v{pk+2*j+r}, v{ac+4*j+2*r}, v{ac+4*j+2*r+1}")
    def swp(b):
        e(f"v_permlane32_swap_b32 v{pk+4*b}, v{pk+4*b+2}")
        e(f"v_permlane32_swap_b32 v{pk+4*b+1}, v{pk+4*b+3}")
        if opt["enc"]:
            e("s_waitcnt lgkmcnt(0)")
            e(f"v_lshrrev_b32 v{vT+1}, 4, v{vL16}")
            for r in range(4):
                i = 4*b + r
                e(f"v_mov_b32 v{vT}, s{72+2*i}")
                e("s_mov_b32 exec_lo, 0")
                e(f"v_mov_b32 v{vT}, s{72+2*min(i+8, 14)}")
                e("s_mov_b32 exec_lo, -1")
                e(f"v_lshrrev_b32 v{vT}, v{vT+1}, v{vT}")
                e(f"v_bfi_b32 v{pk+4*b+r}, 1, v{vT}, v{pk+4*b+r}")
        e(f"buffer_store_dwordx4 {vr(pk+4*b,4)}, v{vOUT}, {srd(sOUT)}, s{sOB} offen offset:{64*b} {opt['outaux']}")
    e("s_nop 3")
    cvt(0); cvt(1); cvt(2); swp(0); cvt(3); cvt(4); swp(1)
    e(f"buffer_store_dwordx2 {vr(pk+8,2)}, v{vOUT2}, {srd(sOUT)}, s{sOB} offen offset:128 {opt['outaux']}")
def phase2_ab2():
    NA = opt["ab2"]; OA = opt["oa"]
    RING = 24; vR = 64; PK = 24
    vPB = 18
    acc = lambda p, j=0: 160 + 20*p + 4*j
    W5 = w5_ops()
    def nof(f): return f.__defaults__[0]
    def pollA():
        stamp(k=9)
        e(f"buffer_load_dword v{vPB}, v{vPA}, {srd(sH)}, s{sPOL} offen sc1"); VM.issue("poll")
    def dep(f):
        if len(f.__defaults__) == 2 and f.__defaults__[1] == 0 and WDEP[nof(f)]:
            while WDEP[nof(f)] not in TDONE: tgroup(len(TDONE))
            LG.wait(WDEP[nof(f)])
    LA = [f for f in W2L if nof(f) < NA]
    LB = [f for f in W2L if nof(f) >= NA]
    X = LA + [r_check] + W5[:NA]
    R = []
    for n in range(NA, 12): R += [f for f in LB if nof(f) == n] + [W5[n]]
    X += R[:opt["xb"]]; R = R[opt["xb"]:]
    X.insert(len(X) - opt["qa"], pollA)
    def run(f):
        if f in W2L: dep(f); W2L.remove(f)
        f()
    r_poll()
    NT = sum(1 for n in range(12) if not any(nof(f) == n for f in W2L))
    TL = []
    while len(TDONE) < NT: TL += tgroup_ops(len(TDONE))
    PL = X[:opt["post"]]; X = X[opt["post"]:]
    if opt["fas"] < 0 and opt["fa"] > 6: PL.insert(opt["fa"] - 6, flagA)
    for f in merge(PL, TL):
        run(f)
    stamp(k=9)
    VM.wait("hst")
    stamp(k=9)
    e("s_barrier")
    flag_store(sFLG)
    if opt["fb"] == 2: e("s_barrier")
    stamp()
    cnt = 0
    for f in X:
        run(f); cnt += 1
        n = len(TDONE)
        if cnt % opt["tl"] == 0 and n < NA - opt["tlate"] and not any(nof(g) <= n + 1 for g in W2L): tgroup(n)
    while len(TDONE) < NA - opt["tlate"]: tgroup(len(TDONE))
    e("s_branch L_hid")
    spin_slow("hp", vPB, vPA, sPOL)
    spin_slow("hq", vPB, vPA, sPOL)
    e("L_ac_c:")
    e(f"s_mov_b32 s{sT1}, {FL}")
    e(f"v_cmp_ne_u32 vcc, s{sTAG}, v{vAV}")
    e("s_cmp_eq_u64 vcc, 0")
    e(f"s_cbranch_scc1 L_ac_go")
    spin_slow("ac", vAV, vAC, sT1)
    if opt["al"]: e(".p2align 12")
    e("L_hid:")
    VM.wait("poll")
    stamp(); stamp(k=9)
    if opt["fake"] & 1: e("L_hp_go:")
    else: spin_fast("hp", vPB, "poll")
    stamp(); stamp(k=2); stamp(k=9)
    mark(1000)
    e(f"s_add_u32 s{sPOL}, s{sPOL}, {FLB2}")
    allc_load()
    items = [(p, n) for p in range(3) for n in range(NA)] + [(3, n) for n in range(OA)]
    IA = len(items)
    items += [(p, n) for p in range(3) for n in range(NA, 12)]
    IL = len(items)
    items += [(3, n) for n in range(OA, 12)]
    HI = list(range(48))
    hr = lambda i: vr(vR + (i % RING)*4, 4)
    def hl():
        if not HI: return
        i = HI.pop(0); p, n = items[i]
        if i == IA:
            assert not R
            stamp(k=9)
            if opt["fake"] & 2: VM.wait("pollB"); e("L_hq_go:")
            else: spin_fast("hq", vPB, "pollB")
            stamp(k=9)
        e(f"buffer_load_dwordx4 {hr(i)}, v{vHB+p}, {srd(sH)}, s{sSIG+n} offen {opt['haux'].replace('-','')}"); VM.issue(f"h{i}")
    TL = []
    while len(TDONE) < NA: TL += tgroup_ops(len(TDONE))
    for f in merge([hl] * opt["hpre"], TL): f()
    LG.drain()
    stamp()
    slots = {(i, j): [] for i in range(48) for j in range(5)}
    NBl = 12 - NA
    for p in range(3):
        i0 = IA + NBl*(p+1)
        for jj in range(5):
            def w(jj=jj, p=p):
                e(f"ds_write_b128 v{vRW if p < 2 else vRW2}, {vr(acc(p,jj),4)} offset:{(p%2)*32768 + jj*1024}"); LG.issue("red")
            k = 3 + (2 if p == 2 else 3) * jj
            slots[(i0 + k // 5, k % 5)].append(w)
    IB = IL + opt["rb2"]
    K2, K4 = opt["k2"], opt["k4"]
    k = 0
    for j in (4, 2, 3, 0, 1):
        for pp in range(3):
            def f(pp=pp, j=j):
                e(f"ds_read_b128 {vr(acc(pp,j), 4)}, v{vRR+pp} offset:{j*1024}"); LG.issue(f"rr{j}")
            slots[(IB + k // 5, k % 5)].append(f); k += 1
    adds = []
    for j in (4, 2, 3, 0, 1):
        for pp in (1, 2):
            for r in (0, 2):
                def a(j=j, pp=pp, r=r):
                    LG.wait(f"rr{j}")
                    e(f"v_pk_add_f32 {vr(acc(0,j)+r,2)}, {vr(acc(0,j)+r,2)}, {vr(acc(pp,j)+r,2)}")
                adds.append(a)
    a0 = IB*5 + 8
    AQ = []
    for k, f in enumerate(adds):
        if a0 + k < (48 - K2) * 5: slots[((a0 + k) // 5, (a0 + k) % 5)].append(f)
        else: AQ.append(f)
    WR = [int(c) for c in str(opt["wr2"]).lstrip("x")]
    seen = set(); TL = []
    I0 = len(O)
    for i, (p, n) in enumerate(items[:48-K2]):
        if i == IB:
            allc_check()
            LG.drain(); e("s_barrier")
            stamp(k=2)
        assert i not in HI
        VM.wait(f"h{i}"); VM.wait(f"w{n}")
        m = len(TDONE)
        if not TL and m < 12 and not any(nof(g) == m for g in W2L) and f"d{m}" not in VM.q: TL = tgroup_ops(m)
        if n >= NA and p == 0:
            while TL: TL.pop(0)()
            while f"t{n}" not in TDONE: tgroup(len(TDONE))
            LG.wait(f"t{n}")
        if i % 6 == 0 and i < 42: stamp(k=2)
        nx = WR[i % len(WR)] if i >= opt["ws0"] else 0
        for j in range(5):
            c = vr(acc(p,j), 4) if (p, j) in seen else "0"
            if j < 4 or i < 48 - K4:
                mf2(vr(acc(p,j),4), n, j, hr(i), c); seen.add((p, j))
            if j == opt["hj"]:
                if HI and HI[0] == IA:
                    while R: run(R.pop(0))
                hl()
            elif j in (3, 4, 0)[:nx] and R: run(R.pop(0))
            elif TL: TL.pop(0)()
            if j == 4 and i == opt["pb2"]:
                e(f"buffer_load_dword v{vPB}, v{vPA}, {srd(sH)}, s{sPOL} offen sc1"); VM.issue("pollB")
            for f in slots[(i, j)]: f()
    assert not HI and not TL and len(TDONE) == 12
    ac = acc(3); pk = PK
    ML = [(i, j) for g in ((0, 1), (2, 3)) for i in range(48 - K2, 48) for j in g] + [(i, 4) for i in range(48 - K4, 48)]
    def add(j):
        def mk(r):
            def f(): e(f"v_add_f32 v{ac+4*j+r}, v{ac+4*j+r}, v{acc(0,j)+r}")
            return f
        return [mk(r) for r in range(4)]
    def ln(t): return lambda: e(t)
    def cvt(j): return [ln(f"v_cvt_pk_bf16_f32 v{pk+2*j+r}, v{ac+4*j+2*r}, v{ac+4*j+2*r+1}") for r in range(2)]
    def sw(b): return [ln(f"v_permlane32_swap_b32 v{pk+4*b+r}, v{pk+4*b+2+r}") for r in range(2)]
    def bp(b):
        def mk(r):
            def f(): e(f"ds_bpermute_b32 v{pk+16+4*b+r}, v{vL16b}, v{pk+4*b+r}"); LG.issue(f"bp{b}")
            return f
        return [mk(r) for r in (0, 2, 1, 3)]
    def st(b):
        def f():
            LG.wait(f"bp{b}")
            e(f"buffer_store_dwordx4 {vr(pk+16+4*b,4)}, v{vOUT}, {srd(sOUT)}, s{sOB} offen offset:{64*b} {opt['outaux']}")
        return [f]
    fd = opt["fd"]
    assert len(AQ) <= 8, len(AQ)
    Qo = [(0, f) for f in add(4)] + [(fd - 1, f) for f in add(2) + add(3)]
    n23 = len(Qo)
    Qo += [(0, f) for f in AQ]
    Qo += [(2*K2 + fd - 1, f) for f in add(0) + add(1) + cvt(0) + cvt(1) + sw(0) + bp(0)]
    Qo += [(4*K2 + fd - 1, f) for f in cvt(2) + cvt(3) + sw(1) + bp(1) + st(0)]
    done = 0
    for k, (i, j) in enumerate(ML):
        if k == 2*K2:
            while done < n23: Qo.pop(0)[1](); done += 1
        VM.wait(f"h{i}")
        assert (3, j) in seen
        mf2(vr(ac+4*j,4), items[i][1], j, hr(i), vr(ac+4*j,4))
        for _ in range(opt["fr"]):
            if Qo and Qo[0][0] <= k: Qo.pop(0)[1](); done += 1
    stamp(); stamp(k=2); stamp(k=9)
    for _, f in Qo: f()
    for f in cvt(4): f()
    for r in range(4):
        e(f"buffer_store_short{'_d16_hi' if r % 2 else ''} v{pk+8+r//2}, v{vOUT2}, {srd(sOUT)}, s{sOB2} offen offset:{128 + r*1280} {opt['outaux']}")
    st(1)[0]()
    O[I0:] = fix(O[I0:])
assert opt["tail"]
if opt["ab2"]: phase2_ab2()
elif opt["ab"] or opt["dfw"]: phase2_ab()
elif opt["c5"]: phase2_c()
else: phase2_new()
e(f"s_or_b32 s{sT0}, s{sW}, s2")
e(f"s_cmp_lg_u32 s{sT0}, 0")
e("s_cbranch_scc1 L_nobump")
e(f"s_add_u32 s{sE}, s{sE}, 1")
e(f"v_mov_b32 v{vT}, s{sE}")
e(f"s_mov_b32 s{sT0}, {EP}")
e("s_mov_b64 exec, 1")
e(f"buffer_store_dword v{vT}, off, {srd(sH)}, s{sT0}")
e("s_mov_b64 exec, -1")
e("L_nobump:")
if opt["enc"]: sys.stderr.write(f"enc stamps {NST[0]}\n")
if opt["stamps"] and not opt["enc"]:
    e("s_waitcnt vmcnt(0)")
    stamp(k=-1); stamp(True)
    ns = NST[0]
    assert 72 + 2*ns <= 102
    e("s_waitcnt lgkmcnt(0)")
    if opt["amp"] >= 0 and opt["ampa"]:
        a = opt["amp"] if opt["amp"] < ns else ns - 2
        e("s_load_dwordx2 s[64:65], s[0:1], 32")
        e("s_not_b32 s60, s74")
        e("v_mov_b32 v24, s60")
        e("v_mov_b32 v25, 0")
        e("s_mov_b64 exec, 1")
        e("s_waitcnt lgkmcnt(0)")
        e("s_lshr_b32 s60, s2, 3")
        e(f"s_or_b32 s60, s60, s{sW}")
        e("s_cbranch_scc1 L_ampn")
        e("global_atomic_umax v25, v24, s[64:65] sc1")
        e("s_waitcnt vmcnt(0)")
        e("L_ampn:")
        if opt["ampw"] >= 0:
            e(f"s_cmp_lg_u32 s2, {opt['ampw']}")
            e("s_cbranch_scc1 L_end")
        if opt["ampx"] >= 0:
            e("s_and_b32 s60, s2, 7")
            e(f"s_cmp_lg_u32 s60, {opt['ampx']}")
            e("s_cbranch_scc1 L_end")
        if opt["ampl"] >= 0:
            e("s_lshr_b32 s60, s2, 3")
            e(f"s_cmp_lg_u32 s60, {opt['ampl']}")
            e("s_cbranch_scc1 L_end")
        e("s_mov_b32 s61, 200000")
        e("L_amp0:")
        e("s_memrealtime s[62:63]")
        e("s_sub_u32 s61, s61, 1")
        e("s_cbranch_scc1 L_end")
        e("s_waitcnt lgkmcnt(0)")
        e("s_sub_u32 s62, s62, s74")
        e("s_cmp_lt_u32 s62, 1500")
        e("s_cbranch_scc1 L_amp0")
        e("global_load_dword v24, v25, s[64:65] sc0 sc1")
        e("s_waitcnt vmcnt(0)")
        e("v_readfirstlane_b32 s66, v24")
        e("s_not_b32 s66, s66")
        e(f"s_sub_u32 s60, s{72+2*a}, s66")
        e(f"s_min_u32 s60, s60, 5000")
        e(f"s_mul_i32 s60, s60, {opt['ampk']}")
        e(f"s_add_u32 s60, s60, {opt['ampc']}")
        e(f"s_min_u32 s60, s60, 50000")
        e(f"s_mov_b32 s61, 200000")
        e("L_amp:")
        e("s_memrealtime s[62:63]")
        e("s_sub_u32 s61, s61, 1")
        e("s_cbranch_scc1 L_end")
        e("s_waitcnt lgkmcnt(0)")
        e("s_sub_u32 s62, s62, s66")
        e("s_cmp_lt_u32 s62, s60")
        e("s_cbranch_scc1 L_amp")
        e("s_branch L_end")
    elif opt["amp"] >= 0:
        if opt["ampw"] >= 0:
            e(f"s_cmp_lg_u32 s2, {opt['ampw']}")
            e("s_cbranch_scc1 L_end")
        a = opt["amp"] if opt["amp"] < ns else ns - 2
        e(f"s_sub_u32 s60, s{72+2*a}, s{72+2*opt['ampb']}")
        e(f"s_mul_i32 s60, s60, {opt['ampk']}")
        e(f"s_lshr_b32 s60, s60, {opt['amps']}")
        e(f"s_min_u32 s60, s60, 50000")
        e(f"s_mov_b32 s61, 200000")
        e("L_amp:")
        e("s_memrealtime s[62:63]")
        e("s_sub_u32 s61, s61, 1")
        e("s_cbranch_scc1 L_end")
        e("s_waitcnt lgkmcnt(0)")
        e(f"s_sub_u32 s62, s62, s{72+2*(ns-1)}")
        e("s_cmp_lt_u32 s62, s60")
        e("s_cbranch_scc1 L_amp")
        e("s_branch L_end")
    if opt["rt"]:
        e(f"s_lshl_b32 s{sT0}, s2, 2")
        e(f"s_add_u32 s{sT0}, s{sT0}, s{sW}")
        e(f"s_mul_i32 s{sT0}, s{sT0}, {ns*8}")
    else:
        e(f"s_cmp_lg_u32 s{sW}, {opt['stamps']-1}")
        e("s_cbranch_scc1 L_end")
        e(f"s_mul_i32 s{sT0}, s2, {ns*8}")
    e("s_mov_b64 exec, 1")
    e(f"s_add_u32 s{sT0}, s{sT0}, {0x8000000 - (opt['wso'] << 20)}")
    e(f"v_mov_b32 v{vT}, s{sT0}")
    for i in range(ns):
        e(f"v_mov_b32 v24, s{72+2*i}"); e(f"v_mov_b32 v25, s{73+2*i}")
        e(f"global_store_dwordx2 v{vT}, v[24:25], s[12:13] offset:{i*8}"); e("s_nop 1")
    sys.stderr.write(f"nstamps {ns}\n")
LATE += OOL
if LATE:
    e("s_endpgm")
    O.extend(LATE)
e("L_end:")

hdr = f"""; FFN out = silu(x @ w1) @ w2, one launch, 256 workgroups (one per CU).
; @launch grid=(256,1,1) block=(256,1,1) lds=163840
.amdgcn_target "amdgcn-amd-amdhsa--gfx950"
.text
.globl {NAME}
.p2align 8
.type {NAME},@function
{NAME}:
"""
ftr = f"""s_endpgm
.section .rodata,"a"
.p2align 6
.amdhsa_kernel {NAME}
  .amdhsa_next_free_vgpr 512
  .amdhsa_next_free_sgpr 102
  .amdhsa_accum_offset 256
  .amdhsa_group_segment_fixed_size 0
  .amdhsa_kernarg_size 48
  .amdhsa_user_sgpr_count 2
  .amdhsa_user_sgpr_kernarg_segment_ptr 1
  .amdhsa_system_sgpr_workgroup_id_x 1
.end_amdhsa_kernel
"""
def sizes(lines):
    import subprocess, tempfile, os, re
    d = tempfile.mkdtemp()
    t = hdr + "\n".join(f"Z{i}:\n{l}" for i, l in enumerate(lines)) + "\nL_w1x:\n" + ftr
    for k in range(1, 4):
        if f"L_w{k}:" not in lines: t = t.replace(f"L_w{k}\n", "L_w1x\n")
    open(d + "/a.s", "w").write(t)
    r = subprocess.run(["clang", "-x", "assembler", "-target", "amdgcn-amd-amdhsa", "-mcpu=gfx950", "-c", d + "/a.s", "-o", d + "/a.o"], capture_output=True, text=True)
    assert r.returncode == 0, r.stderr
    import struct
    b = open(d + "/a.o", "rb").read()
    shoff = struct.unpack_from("<Q", b, 0x28)[0]; shn = struct.unpack_from("<H", b, 0x3c)[0]
    sec = [struct.unpack_from("<IIQQQQIIQQ", b, shoff + 64*i) for i in range(shn)]
    sy = [x for x in sec if x[1] == 2][0]; st = sec[sy[6]]
    ad = {}
    for i in range(sy[5] // 24):
        n, _, _, _, v, _ = struct.unpack_from("<IBBHQQ", b, sy[4] + 24*i)
        nm = b[st[4]+n:b.index(b"\0", st[4]+n)].decode()
        if re.fullmatch(r"Z\d+", nm): ad[int(nm[1:])] = v
    return ad
if opt["wu"] >= 0:
    assert opt["al"]
    for k in range(1, 4):
        ad = sizes(O)
        i = min(j for j in range(len(O)) if ad[j] >= 4096*k and not O[j].startswith(".") and not O[j].endswith(":"))
        O[i:i] = [f"L_w{k}:", "s_cbranch_execz L_wr"]
        sys.stderr.write(f"page {k}: {O[i-1]} | {O[i+2]}\n")
    if opt["stamps"]: sys.stderr.write(f"nstamps {NST[0]}\n")
body = "\n".join(("" if l.endswith(":") else "    ") + l.rstrip() for l in O)
open(sys.argv[1], "w").write(hdr + body + "\n" + ftr)
```

```python
import sys
from haz import fix
NAME = "standalone__dense_activation_silu__prompt_kernel"
opt = dict(hloc=0, rpb=-1, tpk=99, ntp=99, rs=0, fap=0, pbn=0, rsf=0, outa2='=', hm=0, xt=-1, xr0=4, xts=-1, xtp=0, wss=0, pv=-1, pvm=1, pvs=-1, wtn=15, wst='', wsh=3, wsb=0, r48=0, o48=0, q48=0, l48=0, ab2=0, fa=0, fas=-1, pab=0, xb=0, qa=4, oa=0, wr2='1', ws0=0, pb2=8, rb2=3, fake=0, fb2=2, erp=1, sw1=0, sw2=0, emo=0, emaux='sc1', ampc=2000, ampa=0, ampx=-1, ampl=-1, amp=-1, ampb=1, ampk=4, amps=0, ampw=-1, tpre=0, fpre=0, rpl=-1, rtab='', ttab='', pfs='', skd=0, sk5=0, al=0, wu=-1, pat='', pat1='', hid=0, r16=0, ro=0, sil=0, sild=2, silk='1', e7=0, e7a=10, e7b=10, fp='', qm=0, swab=0, wtc=0, rmap=0, nw=-1, wx='', wxp=99, acb=0, acp=-1, wq='', rds=1, ad0=8, t4=0, k4=0, k2=3, fr=3, fd=2, a4=0, bp=0, ofk=0, w5aux='sc1', rpk=0, pl2=7, nom=0, owv=1, ow=0, owp=2, ada=7, wb64=0, wg0=3, wgs=2, smd=0, dst=-1, dn=4, st0=0, nhw=0, wtx=0, tfm=0, tpm=0, tsil=0, c5=0, w5s=8, w5k=2, rcl=0, w5d=0, tin=0, sw=-1, sws=-1, swp=0, swn=15, ems=1, pqd=0, tlate=0, tmix=1, wt=-1, wts=-1, wtp=99, wth=0, wtaux='', d1=0, d7=0, w5p=4, tl=8, rpq=0, waux='', es=-1, esaux='sc1', ot=-1, otm=1, enc=0, w0p=0, own=0, omp=0, dfw=0, ne=8, clr=-1, clrs='', spec=0, fw=12, wl=0, rsp=99, rrp=0, fb=0, tch=0, la=4, tp0=0, tpos=8, th=1, ns=3, n7=0, rcs=8, epk=1, fk=0, ost=0, pae=-1, wsk=0, afs=0, ab=0, afp=0, pa=20, pb=6, wr=1, owna=0, rb=4, skipw=0, m16=0, rtm=0, po="", rsaux="sc1", emu="", emv=1, fs=128, dw=8, eq=0, ec=4, epre=16, eil="h12w9", pfm=3, stamps=0, rot=1, rot2=1, pf=1, outaux="", map=2, raux="nt", xaux="", haux="sc1", hsaux="sc1", hs2="", wb=0, wso=0, sp=0, spg="", nord=0, nomf1=0, norp=0, pk=1, tail=1, b1=4, b2=4, madd=8, pt=0, fst=0, tab="x037", nost=0, novalu=0, nomf2=0, noh=0, hj=1, w2aux="sc1", w1aux="",
           sa=0, ma=10, sb=0, mb=10, mx=0, n8=8, n9=8, nb=0, post=0, pollq=8, hpre=8, sep=0, sts=0, rpos=0, rls=0, rjs=2, rpp=0, rps=7, rck=0, nopoll=0, rfs=4, sl=0, head=50, nf0=4, pre3=0, rt=0, own2=2, ntst=10, mid=2, xlin=0, nor=0)
for a in sys.argv[2:]:
    k, v = a.split("=")
    assert k in opt, k
    opt[k] = int(v) if v.lstrip("-").isdigit() else v.replace("_", " ")
if opt["own"]: opt["dfw"] = 1; opt["ne"] = 12; assert opt["fb"] and opt["own2"] == 2
D1 = opt['d1']
RPW = opt['rfs'] >= 10
if RPW: assert D1 and opt['rpk']
R2 = '2' in str(opt['rtab'])
if R2: assert D1 and opt['rpk'] and not RPW and not opt['ow']
OW = opt['ow']
if OW: assert D1 and opt['own2'] == 2 and opt['post'] <= 12 and not opt['c5'] and not opt['w5d'] and not opt['smd'] and str(opt['nb']) == '0'
if D1: assert not (opt['own'] or opt['ab'] or opt['dfw'] or opt['spec'] or opt['eq'] or opt['tch'] or opt['po']) and opt['fb'] and opt['ns'] == 3
RSO = [[2,1,3,0],[0,3,2,1],[0,3,1,2],[2,1,0,3]]
if opt['rs']: assert opt['own2'] == 2 and opt['r16'] and not opt['r48'] and D1 and not OW and not opt['ab2'] and opt['hid']
O = []
def e(s): O.append(s)
NST = [0]
def stamp(rt=False, k=0):
    if not opt["stamps"]: return
    if not rt and NST[0] > 1 and k != opt["sts"] and k != -1: return
    i = NST[0]; NST[0] += 1
    e(f"s_memrealtime s[{72+2*i}:{73+2*i}]" if rt or opt["rt"] or opt["rtm"] else f"s_memtime s[{72+2*i}:{73+2*i}]")

class Q:
    def __init__(s, name, mx): s.name = name; s.mx = mx; s.q = []
    def issue(s, tag): s.q.append(tag)
    def wait(s, tag):
        if tag not in s.q: return
        i = len(s.q) - 1 - s.q[::-1].index(tag)
        n = min(len(s.q) - 1 - i, s.mx)
        e(f"s_waitcnt {s.name}({n})")
        s.q = s.q[len(s.q)-n:] if n else []
    def drain(s):
        e(f"s_waitcnt {s.name}(0)"); s.q = []
VM = Q("vmcnt", 63); LG = Q("lgkmcnt", 15)

FL = 0x600000; EP = 0x608000; RFL = 0x610000; W2F = 0x620000; HREC = 0x800000
if opt['spec']: FL = 0x800000; HREC = 0x820000
FS = opt["fs"]
if FS > 128: FL = 0x800000; HREC = FL + 256 * FS
FLB = 0x200000
if opt["ab"]: HREC = 0x808000
RED = 98304; RB = 98304 if opt['ns'] == 3 else 131072; CNT = 159744
NSL = opt['ns']
sX, sW1, sW2, sOUT, sH = 16, 20, 24, 28, 32
(sW, sMT, sFT, sKX, sKW, sXB, sWB, sXE, sM0, sT0, sT1, sE, sTAG, sHS, sHS2, sFLG, sPOL, sW2B, sOWN, sROT,
 sRS, sRD, sWO, sL2E) = range(36, 60)
sSIG = 60
sPK = 4; sOB = 3; sRFL = 14; sSPIN = 15
vL16 = 1; vL16b = 2; vOUT = 3; vOUT2 = 4; vRW = 5; vRP = 6; vHS = 7
vPOLL = 8; vL4 = 9; vPA = 19
vRR = 10
vHB = 13
vT = 17
vCN = 20; vONE = 21; vAV = 22; vAC = 23
vDX = 24; vDW = 26; vDR = 32
vA = 34; vB = 36
vRA = 44
vTM = 46
vACC1 = 64; vAF = 112; vBF = 160; vS = 176; vRF = 192
vWD = 56; vWT = 60; sW5B = 6; sOB2 = 7; vRW2 = 20
vH = 64; vACC2 = 24; vOW = 240; OWN = 32768; sHS1 = 6
def mf2(d, n, j, b, c):
    a = ar(n*20+4*j, 4)
    if j == 4 and opt["t4"]: a, b = b, a
    if opt["sw2"] == 1 and j < 4: a, b = b, a
    if opt["sw2"] == 2 and j == 4: a, b = b, a
    e(f"v_mfma_f32_16x16x32_bf16 {d}, {a}, {b}, {c}")
def srd(r): return f"s[{r}:{r+3}]"
def vr(r, n): return f"v[{r}:{r+n-1}]"
def ar(r, n): return f"a[{r}:{r+n-1}]"
def capture(fn):
    global O
    sv = O; O = []; fn(); r = O; O = sv; return r

e("s_cmp_ge_u32 s2, 256")
e("s_cbranch_scc1 L_end")
stamp(True); stamp()
e("s_load_dwordx8 s[4:11], s[0:1], 0")
e("s_load_dwordx2 s[12:13], s[0:1], 40")
L, Wv = vTM, vTM+1
t0, t1, t2, t3 = vTM+2, vTM+3, vTM+4, vTM+5
e(f"v_and_b32 v{L}, 63, v0")
e(f"v_lshrrev_b32 v{Wv}, 6, v0")
e(f"v_lshlrev_b32 v{vL16}, 4, v{L}")
e(f"v_readfirstlane_b32 s{sW}, v{Wv}")
if opt["pf"]:
    e("s_getpc_b64 s[14:15]")
    e("L_pc:")
    if opt["pfs"]:
        tb = (str(opt["pfs"]).lstrip("x") + "0" * 32)[:32]
        tv = sum(int(c) << (2*i) for i, c in enumerate(tb))
        e(f"s_lshr_b32 s{sT0}, s2, 2")
        e(f"s_and_b32 s{sT0}, s{sT0}, 62")
        if tv >> 32:
            e(f"s_mov_b32 s{sSIG}, {tv & 0xffffffff}")
            e(f"s_mov_b32 s{sSIG+1}, {tv >> 32}")
            e(f"s_lshr_b64 s[{sSIG}:{sSIG+1}], s[{sSIG}:{sSIG+1}], s{sT0}")
        else:
            e(f"s_lshr_b64 s[{sSIG}:{sSIG+1}], {tv}, s{sT0}")
        e(f"s_and_b32 s{sT0}, s{sSIG}, 3")
    else:
        e(f"s_lshr_b32 s{sT0}, s2, 3")
        e(f"s_and_b32 s{sT0}, s{sT0}, {opt['pfm']}")
    e(f"s_lshl_b32 s{sT0}, s{sT0}, 12")
    e(f"v_lshl_add_u32 v{t0}, v0, 4, s{sT0}")
    e(f"v_min_u32 v{t0}, L_end-L_pc-16, v{t0}")
    e(f"global_load_dwordx4 v[252:255], v{t0}, s[14:15]")
    VM.issue("pf")
fa = opt["map"]
e(f"s_and_b32 s{sT0}, s2, 7")
e(f"s_lshr_b32 s{sT1}, s2, 3")
e(f"s_and_b32 s{sFT}, s{sT1}, {(1<<fa)-1}")
e(f"s_lshr_b32 s{sMT}, s{sT1}, {fa}")
if opt["rot"] == 3:
    tb = str(opt["tab"]).lstrip("x")
    tv = sum(int(c) << (4*i) for i, c in enumerate((tb * 16)[:16]))
    e(f"s_mul_i32 s{sKX}, s{sMT}, {opt['ma']}")
    e(f"s_mul_i32 s{sT1}, s{sFT}, {opt['mb']}")
    e(f"s_add_u32 s{sKX}, s{sKX}, s{sT1}")
    e(f"s_lshl_b32 s{sKX}, s{sKX}, 2")
    e(f"s_mov_b32 s{sSIG}, {tv & 0xffffffff}")
    e(f"s_mov_b32 s{sSIG+1}, {tv >> 32}")
    e(f"s_lshr_b64 s[{sSIG}:{sSIG+1}], s[{sSIG}:{sSIG+1}], s{sKX}")
    e(f"s_and_b32 s{sKX}, s{sSIG}, 15")
elif opt["rot"]:
    e(f"s_lshr_b32 s{sKX}, s{sMT}, {opt['sa']}")
    e(f"s_mul_i32 s{sKX}, s{sKX}, {opt['ma']}")
    e(f"s_lshr_b32 s{sT1}, s{sFT}, {opt['sb']}")
    e(f"s_mul_i32 s{sT1}, s{sT1}, {opt['mb']}")
    e(f"s_add_u32 s{sKX}, s{sKX}, s{sT1}")
    if opt['mx']:
        e(f"s_mul_i32 s{sT1}, s{sT0}, {opt['mx']}")
        e(f"s_add_u32 s{sKX}, s{sKX}, s{sT1}")
    e(f"s_lshr_b32 s{sKX}, s{sKX}, 2")
    e(f"s_mul_i32 s{sT1}, s{sKX}, 205")
    e(f"s_lshr_b32 s{sT1}, s{sT1}, 11")
    e(f"s_mul_i32 s{sT1}, s{sT1}, 10")
    e(f"s_sub_u32 s{sKX}, s{sKX}, s{sT1}")
else:
    e(f"s_mov_b32 s{sKX}, 0")
if opt["ab"]:
    e(f"s_lshl_b32 s{sROT}, s{sMT}, 2")
elif opt["rot2"] == 3:
    e(f"s_and_b32 s{sROT}, s{sMT}, 1")
    e(f"s_mul_i32 s{sROT}, s{sROT}, 6")
elif opt["rot2"] == 4:
    e(f"s_lshr_b32 s{sROT}, s{sMT}, 1")
    e(f"s_mul_i32 s{sROT}, s{sROT}, 3")
elif opt["rot2"] == 5:
    e(f"s_and_b32 s{sROT}, s{sMT}, 3")
elif opt["rot2"] == 6:
    e(f"s_mul_i32 s{sROT}, s{sMT}, 3")
    e(f"s_lshr_b32 s{sROT}, s{sROT}, 3")
    e(f"s_lshl_b32 s{sROT}, s{sROT}, 2")
elif opt["rot2"] == 7:
    e(f"s_mul_i32 s{sROT}, s{sMT}, 12")
    e(f"s_lshr_b32 s{sROT}, s{sROT}, 3")
    e(f"s_bitcmp1_b32 s2, 1")
    e(f"s_addc_u32 s{sROT}, s{sROT}, 0")
elif opt["rot2"] == 2:
    e(f"s_and_b32 s{sROT}, s{sMT}, 3")
    e(f"s_mul_i32 s{sROT}, s{sROT}, 3")
elif opt["rot2"]:
    e(f"s_mul_i32 s{sROT}, s{sMT}, 12")
    e(f"s_lshr_b32 s{sROT}, s{sROT}, {5-fa}")
else:
    e(f"s_mov_b32 s{sROT}, 0")
e(f"s_and_b32 s{sT1}, s{sT0}, {(8>>fa)-1}")
e(f"s_lshl_b32 s{sT1}, s{sT1}, {fa}")
e(f"s_add_u32 s{sFT}, s{sFT}, s{sT1}")
e(f"s_lshr_b32 s{sT1}, s{sT0}, {3-fa}")
e(f"s_lshl_b32 s{sT1}, s{sT1}, {5-fa}")
e(f"s_add_u32 s{sMT}, s{sMT}, s{sT1}")
e(f"s_mul_i32 s{sXB}, s{sMT}, 81920")
e(f"s_mul_i32 s{sWB}, s{sFT}, 384")
e(f"s_add_u32 s{sXE}, s{sXB}, 1280")
e(f"s_mul_i32 s{sKW}, s{sKX}, {64*3072}")
e(f"s_add_u32 s{sKW}, s{sKW}, s{sWB}")
e(f"s_lshl_b32 s{sKX}, s{sKX}, 7")
e(f"s_add_u32 s{sKX}, s{sKX}, s{sXB}")
G = vTM+6
e(f"v_lshrrev_b32 v{G}, 4, v{L}")
e(f"v_lshrrev_b32 v{t0}, 3, v{L}")
e(f"v_lshl_add_u32 v{t0}, v{Wv}, 4, v{t0}")
e(f"v_mul_u32_u24 v{t0}, 1280, v{t0}")
e(f"v_and_b32 v{t1}, 7, v{L}")
e(f"v_xor_b32 v{t1}, v{t1}, v{G}")
e(f"v_lshl_add_u32 v{vDX}, v{t1}, 4, v{t0}")
e(f"v_xor_b32 v{t1}, 4, v{t1}")
e(f"v_lshl_add_u32 v{vDX+1}, v{t1}, 4, v{t0}")
e(f"v_add_u32 v{vDX+1}, {8*1280-1024}, v{vDX+1}")
if opt["xlin"]:
    e(f"v_lshl_add_u32 v{vDX}, v{Wv}, 11, v{vL16}")
    e(f"v_mov_b32 v{vDX+1}, v{vDX}")
    e(f"s_and_b32 s{sT0}, s{sFT}, 3")
    e(f"s_mul_i32 s{sT0}, s{sT0}, {opt['xlin']}")
    e(f"s_lshr_b32 s{sT0}, s{sT0}, 2")
    e(f"s_lshl_b32 s100, s{sT0}, 13")
    e(f"s_add_u32 s100, s100, s{sXB}")
    e(f"s_add_u32 s101, s{sXB}, 81920")
e(f"v_mul_u32_u24 v{t3}, {16*3072}, v{Wv}")
for i in range(3):
    if i: e(f"v_add_u32 v{t0}, {64*i}, v{L}")
    src = t0 if i else L
    e(f"v_mul_u32_u24 v{t1}, 2731, v{src}")
    e(f"v_lshrrev_b32 v{t1}, 16, v{t1}")
    e(f"v_mul_u32_u24 v{t2}, 24, v{t1}")
    e(f"v_sub_u32 v{t0}, v{src}, v{t2}")
    e(f"v_and_b32 v{t2}, 2, v{t1}")
    e(f"v_lshlrev_b32 v{t2}, 1, v{t2}")
    e(f"v_xor_b32 v{t0}, v{t0}, v{t2}")
    if opt["r48"]:
        e(f"v_and_b32 v{t2}, 16, v{t0}")
        e(f"v_add_u32 v{t2}, 16, v{t2}")
    e(f"v_mul_u32_u24 v{t1}, 3072, v{t1}")
    e(f"v_lshl_add_u32 v{t0}, v{t0}, 4, v{t1}")
    e(f"v_add_u32 v{t0}, v{t0}, v{t3}")
    if i: e(f"v_subrev_u32 v{vDW+i}, {i*1024}, v{t0}")
    else: e(f"v_mov_b32 v{vDW}, v{t0}")
    if opt["r48"]: e(f"v_xor_b32 v{t0}, v{t2}, v{t0}")
    elif opt["r16"]: e(f"v_xor_b32 v{t0}, 16, v{t0}")
    e(f"v_add_u32 v{vDW+3+i}, {8*3072 - ((i+3)%4)*1024}, v{t0}")
if opt["e7"]:
    e(f"s_lshr_b32 s{sT0}, s{sMT}, 1")
    e(f"s_and_b32 s{sT1}, s{sMT}, 1")
    e(f"s_lshl1_add_u32 s{sT1}, s{sFT}, s{sT1}")
    e(f"s_mul_i32 s{sXB}, s{sT0}, 163840")
    e(f"s_mul_i32 s{sWB}, s{sT1}, {192 if opt['e7'] == 1 else 128}")
    e(f"s_and_b32 s{sT0}, s{sT0}, 3")
    e(f"s_and_b32 s{sT1}, s{sT1}, 7")
    e(f"s_mul_i32 s{sT0}, s{sT0}, {opt['e7a']}")
    e(f"s_mul_i32 s{sT1}, s{sT1}, {opt['e7b']}")
    e(f"s_add_u32 s{sKX}, s{sT0}, s{sT1}")
    e(f"s_lshr_b32 s{sKX}, s{sKX}, 2")
    e(f"s_mul_i32 s{sT1}, s{sKX}, 205")
    e(f"s_lshr_b32 s{sT1}, s{sT1}, 11")
    e(f"s_mul_i32 s{sT1}, s{sT1}, 10")
    e(f"s_sub_u32 s{sKX}, s{sKX}, s{sT1}")
    e(f"s_add_u32 s{sXE}, s{sXB}, 1280")
    e(f"s_mul_i32 s{sKW}, s{sKX}, {64*3072}")
    e(f"s_add_u32 s{sKW}, s{sKW}, s{sWB}")
    e(f"s_lshl_b32 s{sKX}, s{sKX}, 7")
    e(f"s_add_u32 s{sKX}, s{sKX}, s{sXB}")
    e(f"v_mul_u32_u24 v{t0}, {16*1280}, v{Wv}")
    e(f"v_add_u32 v{vDX}, v{vDX}, v{t0}")
    e(f"v_add_u32 v{vDX+1}, v{vDX+1}, v{t0}")
    e(f"v_add_u32 v{vDW+4}, {16*1280}, v{vDX}")
    e(f"v_add_u32 v{vDW+5}, {16*1280}, v{vDX+1}")
    for i in range(3):
        e(f"v_add_u32 v{t0}, {64*i}, v{L}")
        if opt["e7"] == 1:
            e(f"v_mul_u32_u24 v{t1}, 5462, v{t0}")
            e(f"v_lshrrev_b32 v{t1}, 16, v{t1}")
            e(f"v_mul_u32_u24 v{t1}, {3072 - 192}, v{t1}")
        else:
            e(f"v_lshrrev_b32 v{t1}, 3, v{t0}")
            e(f"v_mul_u32_u24 v{t1}, {2048 - 128}, v{t1}")
        e(f"v_lshl_add_u32 v{t0}, v{t0}, 4, v{t1}")
        e(f"v_add_u32 v{t0}, v{t0}, v{t3}")
        e(f"v_subrev_u32 v{vDW+i}, {i*1024}, v{t0}")
vTC = 250
if opt["tch"]:
    e(f"v_lshrrev_b32 v{t0}, 1, v{L}")
    e(f"v_mul_u32_u24 v{t1}, 1280, v{t0}")
    e(f"v_mul_u32_u24 v{t2}, 43, v{t0}")
    e(f"v_lshrrev_b32 v{t2}, 7, v{t2}")
    e(f"v_mul_u32_u24 v{t2}, {3072-384}, v{t2}")
    e(f"v_lshl_add_u32 v{t2}, v{t0}, 7, v{t2}")
    e(f"s_and_b32 s{sT0}, s{sFT}, 3")
    e(f"s_lshl_b32 s{sT0}, s{sT0}, 1")
    e(f"s_lshr_b32 s{sT1}, s{sW}, 1")
    e(f"s_add_u32 s{sT0}, s{sT0}, s{sT1}")
    e(f"s_mul_i32 s{sT0}, s{sT0}, {8*1280}")
    e(f"s_and_b32 s{sWO}, s{sMT}, 7")
    e(f"s_lshl_b32 s{sWO}, s{sWO}, 1")
    e(f"s_add_u32 s{sWO}, s{sWO}, s{sT1}")
    e(f"s_mul_i32 s{sWO}, s{sWO}, {4*3072}")
    e(f"s_add_u32 s{sT1}, s{sWB}, {640*3072}")
    e(f"s_bitcmp1_b32 s{sW}, 0")
    e(f"s_cselect_b64 vcc, -1, 0")
    e(f"v_cndmask_b32 v{vTC}, v{t1}, v{t2}, vcc")
    e(f"s_cselect_b32 s{sT0}, s{sWO}, s{sT0}")
    e(f"s_mov_b32 s{sWO}, {0xffff if opt['th'] else 0x5555}")
    e(f"s_cselect_b32 s{sWO}, {0xffffff if opt['th'] else 0x555555}, s{sWO}")
    e(f"s_cselect_b32 s{sHS}, s{sKW}, s{sKX}")
    e(f"s_movk_i32 s{sHS2}, 128")
    e(f"s_cselect_b32 s{sHS2}, {64*3072}, s{sHS2}")
    e(f"v_and_b32 v{t0}, 1, v{L}")
    e(f"v_lshl_add_u32 v{vTC}, v{t0}, 6, v{vTC}")
    e(f"v_add_u32 v{vTC}, s{sT0}, v{vTC}")
    e(f"s_cselect_b32 vcc_lo, s{sT1}, s{sXE}")
    e(f"s_cselect_b32 vcc_hi, s{sWB}, s{sXB}")
e(f"s_lshl_b32 s{sM0}, s{sW}, 13")
CLR = opt["clr"] >= 0 or opt["clrs"]
sCL = sHS
vNAN = 244
if CLR:
    e(f"s_lshl_b32 s{sT0}, s{sMT}, 2")
    e(f"s_lshr_b32 s{sT1}, s{sFT}, 1")
    e(f"s_add_u32 s{sT0}, s{sT0}, s{sT1}")
    e(f"s_lshl_b32 s{sT0}, s{sT0}, 2")
    e(f"s_add_u32 s{sT0}, s{sT0}, s{sW}")
    e(f"s_lshl_b32 s{sT0}, s{sT0}, 1")
    e(f"s_and_b32 s{sT1}, s{sFT}, 1")
    e(f"s_add_u32 s{sT0}, s{sT0}, s{sT1}")
    e(f"s_mul_i32 s{sT0}, s{sT0}, 6144")
    e(f"v_add_u32 v248, s{sT0}, v{vL16}")
    e(f"v_add_u32 v249, 3072, v248")
    for r in range(4): e(f"v_mov_b32 v{vNAN+r}, -1")
def clr_ops():
    def mk(i):
        def f():
            e(f"buffer_store_dwordx4 {vr(vNAN,4)}, v{248 + i//3}, {srd(sH)}, 0 offen offset:{(i%3)*1024} sc1"); VM.issue("clr")
        return f
    return [mk(i) for i in range(6)]
CLO = clr_ops()
e(f"s_mov_b32 s{sSPIN}, {EP}")
for r, n in ((sX, 2621440), (sW1, 1966080), (sW2, 1966080), (sOUT, 2621440), (sH, HREC)):
    e(f"s_mov_b32 s{r+2}, {n}"); e(f"s_mov_b32 s{r+3}, 0x20000")
e("s_waitcnt lgkmcnt(0)")
if opt["wso"]:
    e(f"s_add_u32 s12, s12, {opt['wso'] << 20}"); e("s_addc_u32 s13, s13, 0")
for r, p in ((sW2, 8), (sX, 4), (sW1, 6), (sOUT, 10), (sH, 12)):
    e(f"s_mov_b64 s[{r}:{r+1}], s[{p}:{p+1}]")
if opt["tch"]:
    e(f"s_bitcmp1_b32 s{sW}, 0")
    e(f"s_cselect_b64 s[8:9], s[6:7], s[4:5]")
    e(f"s_cselect_b32 s10, s{sW1+2}, s{sX+2}")
    e("s_mov_b32 s11, 0x20000")
    e(f"s_mov_b32 s6, s{sHS}")
    e(f"s_mov_b32 s7, s{sHS2}")
def touch():
    e("s_add_u32 s6, s6, s7")
    e("s_cmp_eq_u32 s6, vcc_lo")
    e("s_cselect_b32 s6, vcc_hi, s6")
    e(f"s_mov_b32 exec_lo, s{sWO}")
    e("s_mov_b32 exec_hi, 0")
    e(f"buffer_load_dword v251, v{vTC}, s[8:11], s6 offen"); VM.issue("tch")
    e("s_mov_b64 exec, -1")
stamp()
e(f"s_load_dword s{sE}, s[12:13], s{sSPIN}")

def adv_k():
    if opt["xlin"]:
        e(f"s_add_u32 s100, s100, 8192")
        e(f"s_cmp_eq_u32 s100, s101")
        e(f"s_cselect_b32 s100, s{sXB}, s100")
    e(f"s_add_u32 s{sKX}, s{sKX}, 128")
    e(f"s_add_u32 s{sKW}, s{sKW}, {64*3072}")
    e(f"s_cmp_eq_u32 s{sKX}, s{sXE}")
    e(f"s_cselect_b32 s{sKX}, s{sXB}, s{sKX}")
    e(f"s_cselect_b32 s{sKW}, s{sWB}, s{sKW}")
def dma_ops(st):
    base = (st % NSL) * 32768
    def mk(i):
        def f():
            if i == 0: e(f"s_add_u32 m0, s{sM0}, {base+6144}"); e("s_nop 0")
            if i < 2:
                e(f"buffer_load_dwordx4 v{vDX+i}, {srd(sX)}, s{100 if opt['xlin'] else sKX} offen offset:{i*1024} {opt['xaux'] if st < opt['ntst'] else ''} lds")
            elif opt["e7"] and i >= 5:
                if i == 5: e(f"s_add_u32 m0, s{sM0}, {base+4096}"); e("s_nop 0"); return
                e(f"buffer_load_dwordx4 v{vDW+i-2}, {srd(sX)}, s{sKX} offen offset:{(i-6)*1024} lds")
            else:
                j = i - 2
                e(f"buffer_load_dwordx4 v{vDW+j}, {srd(sW1)}, s{sKW} offen offset:{(j%4)*1024} {opt['w1aux'] if st < opt['ntst'] else ''} lds")
            VM.issue(f"st{st}")
            if i == 1: e(f"s_add_u32 m0, s{sM0}, {base}"); e("s_nop 0")
            if i == 5: e(f"s_add_u32 m0, s{sM0}, {base+4096}"); e("s_nop 0")
            if i == 7 and st < 9: adv_k()
        return f
    return [mk(i) for i in range(8)]

def setup2():
    R, C = t0, t1
    u0, u1, u2 = vTM+7, vTM+8, vTM+9
    if D1:
        RJ = 2
        if opt["rtab"]:
            RJ = 9
            tb = str(opt["rtab"]).lstrip("x"); assert len(tb) == 32 and sum(map(int, tb)) == 12
            m1_ = sum((c == "1") << i for i, c in enumerate(tb)); m2_ = sum((c == "2") << i for i, c in enumerate(tb))
            e(f"s_lshr_b32 s{sT0}, s2, 3")
            e(f"s_bfm_b32 s9, s{sT0}, 0")
            if R2:
                e(f"s_mov_b32 s8, {m2_}")
                e(f"s_bitcmp1_b32 s8, s{sT0}")
                e(f"s_cselect_b32 s8, s8, {m1_}")
                e(f"s_cselect_b32 s10, 1, 0")
                e(f"s_cselect_b32 s11, 0, {16 * tb.count('2')}")
                e(f"s_and_b32 s9, s9, s8")
            else: e(f"s_and_b32 s9, s9, {m1_}")
            e(f"s_bcnt1_i32_b32 s9, s9")
            e(f"s_and_b32 s{sT1}, s2, 7")
            e(f"s_lshl3_add_u32 s9, s9, s{sT1}")
            if R2:
                e(f"s_lshl_b32 s9, s9, s10")
                e(f"s_add_u32 s9, s9, s11")
            e(f"s_bitcmp1_b32 {'s8' if R2 else m1_}, s{sT0}")
            e(f"s_cselect_b32 s9, s9, 255")
        elif opt["rmap"]:
            RJ = 9
            e(f"s_lshr_b32 s9, s2, 4")
            e(f"s_lshl_b32 s9, s9, 3")
            e(f"s_and_b32 s{sT0}, s2, 7")
            e(f"s_add_u32 s9, s9, s{sT0}")
            if opt["rmap"] > 2: e(f"s_xor_b32 s9, s9, {0x60}")
            e(f"s_lshr_b32 s{sT0}, s2, 2")
            e(f"s_xor_b32 s{sT0}, s{sT0}, s2")
            e(f"s_bitcmp{(opt['rmap'] - 1) % 2}_b32 s{sT0}, 3")
            e(f"s_cselect_b32 s9, s9, 255")
        e(f"s_lshr_b32 s{sT1}, s{RJ}, 1")
        e(f"s_and_b32 s{sT0}, s{RJ}, 1")
        if opt["rpk"]:
            e(f"s_mul_i32 s{sRFL}, s{sT1}, 43")
            e(f"s_lshr_b32 s{sRFL}, s{sRFL}, 9")
            e(f"s_mul_i32 s{sRFL}, s{sRFL}, {128 // opt['rpk'] - 12}")
            e(f"s_add_u32 s{sRFL}, s{sRFL}, s{sT1}")
            e(f"s_mul_i32 s{sRFL}, s{sRFL}, {opt['rpk']}")
            if RPW: e(f"s_lshl2_add_u32 s{sRS}, s{sT0}, s{sW}")
            e(f"s_lshl_b32 s{sRS}, s{sRS if RPW else sT0}, 9")
            e(f"s_add_u32 s{sRFL}, s{sRFL}, s{sRS}")
        else:
            e(f"s_mul_i32 s{sRFL}, s{sT0}, 48")
            e(f"s_add_u32 s{sRFL}, s{sRFL}, s{sT1}")
            e(f"s_lshl_b32 s{sRFL}, s{sRFL}, 7")
        if OW:
            e(f"s_mul_i32 s{sRS}, s{sT1}, 43")
            e(f"s_lshr_b32 s{sRS}, s{sRS}, 9")
            e(f"s_mul_i32 s{sRS}, s{sRS}, 47")
            e(f"s_lshl_b32 s{sT1}, s{sT1}, 2")
            e(f"s_sub_u32 s{sT1}, s{sT1}, s{sRS}")
        e(f"s_lshl_b32 s{sRS}, s{sT1}, 2")
        e(f"s_add_u32 s{sRS}, s{sRS}, s{sW}")
        e(f"s_mul_i32 s{sRS}, s{sRS}, 10240")
        e(f"s_lshl_b32 s{sT0}, s{sT0}, 7")
        e(f"s_add_u32 s{sRS}, s{sRS}, s{sT0}")
        e(f"s_add_u32 s{sRS}, s{sRS}, 1024")
        e(f"s_lshl_b32 s{sRD}, s{RJ}, 2")
        e(f"s_add_u32 s{sRD}, s{sRD}, s{sW}")
        e(f"s_lshl_b32 s{sRD}, s{sRD}, 10")
        e(f"s_add_u32 s{sRD}, s{sRD}, {W2F}")
        e(f"s_cmp_lt_u32 s{RJ}, {0 if opt['nor'] else 96}")
        e(f"s_cselect_b32 s{sRS}, s{sRS}, 1966080")
        e(f"s_cselect_b32 s{sRD}, s{sRD}, {HREC}")
        e(f"s_cselect_b32 s{sRFL}, s{sRFL}, {HREC - RFL}")
    else:
        e(f"s_and_b32 s{sT0}, s2, 63")
        e(f"s_mul_i32 s{sT1}, s{sT0}, 205")
        e(f"s_lshr_b32 s{sT1}, s{sT1}, 10")
        e(f"s_mul_i32 s{sRS}, s{sT1}, 5")
        e(f"s_sub_u32 s{sRS}, s{sT0}, s{sRS}")
        e(f"s_lshr_b32 s{sRD}, s2, 6")
        e(f"s_mul_i32 s{sRFL}, s{sRD}, 5")
        e(f"s_add_u32 s{sRFL}, s{sRFL}, s{sRS}")
        e(f"s_lshl_b32 s{sRFL}, s{sRFL}, 4")
        e(f"s_add_u32 s{sRFL}, s{sRFL}, s{sT1}")
        e(f"s_lshl_b32 s{sRFL}, s{sRFL}, 7")
        if opt["own"]:
            e(f"s_mul_i32 s6, s{sT1}, 6")
            e(f"s_add_u32 s6, s6, s{sRD}")
            e(f"s_lshr_b32 s7, s{sT1}, 1")
            e(f"s_mul_i32 s7, s7, 6")
            e(f"s_and_b32 s8, s{sT1}, 1")
            e(f"s_add_u32 s7, s7, s8")
            e(f"s_mul_i32 s8, s{sRD}, 12")
            e(f"s_add_u32 s7, s7, s8")
            e(f"s_sub_u32 s7, s7, 20")
            e(f"s_cmp_lt_u32 s{sT1}, 8")
            e(f"s_cselect_b32 s6, s6, s7")
            e(f"s_mul_i32 s6, s6, 40960")
        e(f"s_mul_i32 s{sRD}, s{sRD}, 12")
        e(f"s_add_u32 s{sT1}, s{sT1}, s{sRD}")
        e(f"s_mul_i32 s{sT1}, s{sT1}, 40960")
        e(f"s_lshl_b32 s{sRD}, s{sRS}, 13")
        e(f"s_add_u32 s{sRD}, s{sRD}, s{sT1}")
        e(f"s_lshl_b32 s{sRS}, s{sRS}, 8")
        e(f"s_add_u32 s{sRS}, s{sRS}, s{6 if opt['own'] else sT1}")
        e(f"s_lshl_b32 s{sT1}, s{sW}, 11")
        e(f"s_add_u32 s{sRD}, s{sRD}, s{sT1}")
        e(f"s_add_u32 s{sRD}, s{sRD}, {W2F}")
        e(f"s_cmp_lt_u32 s{sT0}, {0 if opt['nor'] else 60}")
        e(f"s_cselect_b32 s{sRS}, s{sRS}, 1966080")
        e(f"s_cselect_b32 s{sRD}, s{sRD}, {HREC}")
    if opt["pt"] & 1:
        e(f"s_min_u32 s{sT1}, s{sRS}, {1966080-4}")
        e(f"s_load_dword s101, s[8:9], s{sT1}")
    if opt["pt"] & 2:
        e(f"s_mul_i32 s{sT1}, s{sMT}, {64*3072}")
        e(f"s_load_dword s101, s[12:13], s{sT1}")
    if opt["pt"] & 4:
        e(f"s_load_dword s101, s[10:11], s{sXB}")
    if opt["pt"] & 8:
        e(f"s_load_dword s101, s[12:13], s{sRD}")
    if D1:
        e(f"v_lshrrev_b32 v{t0}, 3, v{L}")
        e(f"v_mul_u32_u24 v{t0}, 1280, v{t0}")
        e(f"v_and_b32 v{t1}, 7, v{L}")
        e(f"v_lshlrev_b32 v{t2}, 1, v{G}")
        e(f"v_xor_b32 v{t1}, v{t1}, v{t2}")
        e(f"v_lshl_add_u32 v{vWD}, v{t1}, 4, v{t0}")
        for i in range(1, 4): e(f"v_add_u32 v{vWD+i}, {i*(10240-1024)}, v{vWD}")
    else:
        e(f"v_lshl_add_u32 v{t0}, v{Wv}, 3, v{G}")
        e(f"v_mul_u32_u24 v{t0}, 1280, v{t0}")
        e(f"v_and_b32 v{t1}, 15, v{L}")
        e(f"v_lshlrev_b32 v{t2}, 1, v{G}")
        e(f"v_xor_b32 v{t1}, v{t1}, v{t2}")
        e(f"v_lshl_add_u32 v{vDR}, v{t1}, 4, v{t0}")
        e(f"v_xor_b32 v{t1}, 8, v{t1}")
        e(f"v_lshl_add_u32 v{vDR+1}, v{t1}, 4, v{t0}")
        e(f"v_add_u32 v{vDR+1}, {4*1280-1024}, v{vDR+1}")
    e(f"v_bfe_u32 v{R}, v{L}, 2, 2")
    e(f"v_and_b32 v{C}, 3, v{L}")
    if opt["r48"]:
        e(f"v_and_b32 v{u1}, 1, v{G}")
        e(f"v_lshl_add_u32 v{u0}, v{u1}, 3, v{R}")
        e(f"v_mul_u32_u24 v{u0}, 384, v{u0}")
        e(f"v_lshrrev_b32 v{t2}, 5, v{L}")
        e(f"v_lshl_add_u32 v{u0}, v{t2}, 13, v{u0}")
        e(f"v_lshl_add_u32 v{u2}, v{C}, 3, v{u0}")
        e(f"v_lshl_add_u32 v{u0}, v{u1}, 4, v{u0}")
        e(f"v_xor_b32 v{u1}, v{G}, v{Wv}")
        e(f"v_and_b32 v{u1}, 1, v{u1}")
        e(f"v_lshl_add_u32 v{u2}, v{u1}, 5, v{u2}")
        e(f"v_xor_b32 v{u1}, v{R}, v{Wv}")
        e(f"v_and_b32 v{u1}, 2, v{u1}")
        e(f"v_lshl_add_u32 v{u2}, v{u1}, 5, v{u2}")
        e(f"v_add_u32 v{vA+4}, 256, v{u2}")
        e(f"v_add_u32 v{vA+5}, {65536+256}, v{u2}")
        e(f"v_lshrrev_b32 v{u1}, 1, v{R}")
        e(f"v_xor_b32 v{u1}, v{u1}, v{Wv}")
        e(f"v_lshl_add_u32 v{u0}, v{u1}, 6, v{u0}")
        e(f"v_lshrrev_b32 v{u1}, 1, v{C}")
        e(f"v_lshl_add_u32 v{u0}, v{u1}, 5, v{u0}")
        e(f"v_and_b32 v{u1}, 1, v{C}")
        e(f"v_lshl_add_u32 v{vA}, v{u1}, 3, v{u0}")
        e(f"v_xor_b32 v{vA+1}, 16, v{vA}")
        for k in range(2): e(f"v_add_u32 v{vA+2+k}, 65536, v{vA+k}")
        e(f"v_and_b32 v{u2}, 15, v{L}")
        e(f"v_lshlrev_b32 v{u0}, 7, v{u2}")
        e(f"v_add_u32 v{u0}, 6144, v{u0}")
        e(f"v_lshrrev_b32 v{u1}, 1, v{u2}")
        e(f"v_xor_b32 v{u1}, v{u1}, v{G}")
        e(f"v_lshl_add_u32 v{vB+4}, v{u1}, 4, v{u0}")
        e(f"v_xor_b32 v{vB+5}, 64, v{vB+4}")
        for k in range(2): e(f"v_add_u32 v{vB+6+k}, 65536, v{vB+4+k}")
    elif opt["r16"]:
        e(f"v_and_b32 v{u1}, 1, v{G}")
        e(f"v_lshl_add_u32 v{u0}, v{u1}, 3, v{R}")
        e(f"v_mul_u32_u24 v{u0}, 384, v{u0}")
        e(f"v_lshl_add_u32 v{u0}, v{u1}, 4, v{u0}")
        e(f"v_lshrrev_b32 v{t2}, 5, v{L}")
        e(f"v_lshl_add_u32 v{u0}, v{t2}, 13, v{u0}")
        e(f"v_lshrrev_b32 v{u1}, 1, v{R}")
        e(f"v_xor_b32 v{u1}, v{u1}, v{Wv}")
        e(f"v_and_b32 v{u1}, 1, v{u1}")
        e(f"v_lshl_add_u32 v{u0}, v{u1}, 6, v{u0}")
        e(f"v_lshrrev_b32 v{u1}, 1, v{C}")
        e(f"v_lshl_add_u32 v{u0}, v{u1}, 5, v{u0}")
        e(f"v_and_b32 v{u1}, 1, v{C}")
        e(f"v_lshl_add_u32 v{vA}, v{u1}, 3, v{u0}")
        e(f"v_xor_b32 v{vA+1}, 16, v{vA}")
        for k in range(2): e(f"v_add_u32 v{vA+2+k}, 65536, v{vA+k}")
        e(f"v_and_b32 v{u0}, 2, v{Wv}")
        e(f"v_lshlrev_b32 v{u0}, 13, v{u0}")
        e(f"v_and_b32 v{u2}, 15, v{L}")
        e(f"v_lshl_add_u32 v{u0}, v{u2}, 7, v{u0}")
        e(f"v_add_u32 v{u0}, 6144, v{u0}")
        e(f"v_lshrrev_b32 v{u1}, 1, v{u2}")
        e(f"v_xor_b32 v{u1}, v{u1}, v{G}")
        e(f"v_lshl_add_u32 v{vB+4}, v{u1}, 4, v{u0}")
        e(f"v_xor_b32 v{vB+5}, 64, v{vB+4}")
        for k in range(2): e(f"v_add_u32 v{vB+6+k}, 65536, v{vB+4+k}")
    else:
        e(f"v_lshrrev_b32 v{u0}, 1, v{G}")
        e(f"v_lshl_add_u32 v{u0}, v{u0}, 3, v{R}")
        e(f"v_mul_u32_u24 v{u0}, 384, v{u0}")
        e(f"v_lshrrev_b32 v{u1}, 1, v{R}")
        e(f"v_xor_b32 v{u1}, v{u1}, v{Wv}")
        e(f"v_and_b32 v{u1}, 1, v{u1}")
        e(f"v_lshl_add_u32 v{u0}, v{u1}, 6, v{u0}")
        e(f"v_and_b32 v{u1}, 1, v{G}")
        e(f"v_lshl_add_u32 v{u0}, v{u1}, 5, v{u0}")
        e(f"v_lshl_add_u32 v{vA}, v{C}, 3, v{u0}")
        e(f"v_add_u32 v{vA+1}, 65536, v{vA}")
        e(f"v_and_b32 v{u0}, 2, v{Wv}")
        e(f"v_add_u32 v{u0}, v{u0}, v{u1}")
        e(f"v_lshlrev_b32 v{u0}, 13, v{u0}")
        e(f"v_and_b32 v{u2}, 15, v{L}")
        e(f"v_lshl_add_u32 v{u0}, v{u2}, 7, v{u0}")
        e(f"v_add_u32 v{u0}, 6144, v{u0}")
        e(f"v_lshrrev_b32 v{u1}, 1, v{u2}")
        e(f"v_lshrrev_b32 v{t2}, 5, v{L}")
        e(f"v_xor_b32 v{u1}, v{u1}, v{t2}")
        e(f"v_lshl_add_u32 v{vB}, v{u1}, 4, v{u0}")
        for k in range(1, 4): e(f"v_xor_b32 v{vB+k}, {32*k}, v{vB}")
        for k in range(4): e(f"v_add_u32 v{vB+4+k}, 65536, v{vB+k}")
    if D1:
        e(f"v_and_b32 v{u1}, 1, v{G}")
        e(f"v_lshl_add_u32 v{u1}, v{u1}, 2, v{R}")
        e(f"v_lshlrev_b32 v{u0}, 11, v{t2}")
        e(f"v_lshl_add_u32 v{u0}, v{u1}, 7, v{u0}")
        e(f"v_lshrrev_b32 v{u1}, 1, v{u1}")
        e(f"v_lshl_add_u32 v{u0}, v{u1}, 5, v{u0}")
        e(f"v_and_b32 v{u1}, 1, v{C}")
        e(f"v_lshl_add_u32 v{u0}, v{u1}, 4, v{u0}")
        e(f"v_lshrrev_b32 v{u1}, 1, v{C}")
        e(f"v_lshl_add_u32 v{u0}, v{u1}, 3, v{u0}")
        e(f"v_add_u32 v{u0}, {RB}, v{u0}")
        e(f"v_lshlrev_b32 v{t3}, 5, v{Wv}")
        e(f"v_xor_b32 v{vRA}, v{u0}, v{t3}")
        e(f"v_add_u32 v{vWT}, s{sM0}, v{u0}")
        for j in range(1, 4): e(f"v_xor_b32 v{vWT+j}, {32*j}, v{vWT}")
    else:
        e(f"v_and_b32 v{u1}, 1, v{G}")
        e(f"v_lshl_add_u32 v{u1}, v{u1}, 2, v{R}")
        e(f"v_lshlrev_b32 v{u0}, 12, v{t2}")
        e(f"v_lshl_add_u32 v{u0}, v{u1}, 8, v{u0}")
        e(f"v_lshlrev_b32 v{t3}, 1, v{Wv}")
        e(f"v_xor_b32 v{u1}, v{u1}, v{t3}")
        e(f"v_lshl_add_u32 v{u0}, v{u1}, 5, v{u0}")
        e(f"v_and_b32 v{u1}, 1, v{C}")
        e(f"v_lshl_add_u32 v{u0}, v{u1}, 4, v{u0}")
        e(f"v_lshrrev_b32 v{u1}, 1, v{C}")
        e(f"v_lshl_add_u32 v{u0}, v{u1}, 3, v{u0}")
        e(f"v_add_u32 v{vRA}, {RB}, v{u0}")
        e(f"v_xor_b32 v{vRA+1}, 32, v{vRA}")
    if not D1:
        e(f"v_mov_b32 v{vCN}, {CNT}")
        e(f"v_mov_b32 v{vONE}, 0")
        e(f"ds_write_b32 v{vCN}, v{vONE}"); LG.issue("cnt")
    if opt["ab"]: e(f"ds_write_b32 v{vCN}, v{vONE} offset:4"); LG.issue("cnt")
    for i in range(48): e(f"v_mov_b32 v{vACC1+i}, 0")
    if not D1: e(f"v_mov_b32 v{vONE}, 1")
    e(f"v_and_b32 v{u1}, 1, v{G}")
    if opt["r48"]:
        e(f"v_mul_u32_u24 v{u0}, {12288-512}, v{t2}")
        e(f"v_add_u32 v{u0}, v{u0}, v{vL16}")
        e(f"v_lshlrev_b32 v{vONE}, 9, v{Wv}")
        e(f"v_sub_u32 v{u0}, v{u0}, v{vONE}")
        e(f"v_add_u32 v{vONE}, 4096, v{u0}")
    if opt["r16"]: e(f"v_add_u32 v{vHS}, 12288, v{vL16}")
    else:
        e(f"v_mul_u32_u24 v{u0}, 12288, v{u1}")
        e(f"v_lshl_add_u32 v{u0}, v{t2}, 8, v{u0}")
        e(f"v_lshl_add_u32 v{vHS}, v{u2}, 4, v{u0}")
    if opt["own"]:
        e(f"s_and_b32 s{sT0}, s{sW}, 1")
        e(f"s_and_b32 s{sT1}, s{sW}, 2")
        e(f"s_sub_u32 s{sT1}, s{sT1}, s{sT0}")
        e(f"s_add_u32 s{sT1}, s{sT1}, 3")
        e(f"v_add_u32 v{u0}, s{sT1}, v{u1}")
        e(f"v_and_b32 v{u0}, 3, v{u0}")
        e(f"s_lshl_b32 s{sT0}, s{sT0}, 12")
        e(f"s_add_u32 s{sT0}, s{sT0}, {OWN}")
        e(f"v_lshl_add_u32 v{u0}, v{u0}, 10, s{sT0}")
        e(f"v_lshl_add_u32 v{u0}, v{t2}, 8, v{u0}")
        e(f"v_lshl_add_u32 v{vOW}, v{u2}, 4, v{u0}")
        e(f"v_xor_b32 v{vOW+1}, 2048, v{vOW}")
        e(f"s_lshl_b32 s{sT0}, s{sW}, 12")
        e(f"s_add_u32 s{sT0}, s{sT0}, {OWN}")
        e(f"v_add_u32 v{vOW+2}, s{sT0}, v{vL16}")
    if OW:
        e(f"s_and_b32 s{sT0}, s{sW}, 1")
        e(f"s_lshl1_add_u32 s{sT0}, s{sFT}, s{sT0}")
        e(f"s_and_b32 s{sT0}, s{sT0}, 3")
        e(f"s_and_b32 s{sT1}, s{sW}, 2")
        e(f"s_sub_u32 s{sT1}, s{sT1}, s{sT0}")
        e(f"s_add_u32 s{sT1}, s{sT1}, 7")
        e(f"v_add_u32 v{u0}, s{sT1}, v{u1}")
        e(f"v_and_b32 v{u0}, 3, v{u0}")
        e(f"s_lshl_b32 s{sT0}, s{sT0}, 13")
        e(f"s_add_u32 s{sT0}, s{sT0}, {65536+4096}")
        e(f"v_lshl_add_u32 v{u0}, v{u0}, 10, s{sT0}")
        e(f"v_lshl_add_u32 v{u0}, v{t2}, 8, v{u0}")
        e(f"v_lshl_add_u32 v{vOW}, v{u2}, 4, v{u0}")
        e(f"v_xor_b32 v{vOW+1}, {16384+2048}, v{vOW}")
    e(f"v_mul_u32_u24 v{u0}, 1280, v{u2}")
    e(f"v_lshl_add_u32 v{vOUT}, v{G}, 4, v{u0}")
    e(f"v_lshl_add_u32 v{u0}, v{u1}, 4, v{u0}")
    e(f"v_lshl_add_u32 v{vOUT2}, v{t2}, 3, v{u0}")
    if opt["bp"]:
        e(f"v_lshrrev_b32 v{vL16b}, 2, v{L}")
        e(f"v_mul_u32_u24 v{u0}, 1280, v{vL16b}")
        e(f"v_lshl_add_u32 v{vOUT}, v{C}, 4, v{u0}")
        e(f"v_lshl_add_u32 v{vL16b}, v{C}, 4, v{vL16b}")
        e(f"v_lshlrev_b32 v{vL16b}, 2, v{vL16b}")
        e(f"v_and_b32 v{vOUT2}, 1, v{C}")
        e(f"v_lshl_add_u32 v{u0}, v{vOUT2}, 4, v{u0}")
        e(f"v_lshrrev_b32 v{vOUT2}, 1, v{C}")
        e(f"v_lshl_add_u32 v{vOUT2}, v{vOUT2}, 3, v{u0}")
    if opt["t4"]:
        e(f"v_mul_u32_u24 v{u0}, {4*1280}, v{G}")
        e(f"v_lshl_add_u32 v{u0}, v{C}, 1, v{u0}")
        e(f"v_and_b32 v{vOUT2}, 1, v{R}")
        e(f"v_lshl_add_u32 v{u0}, v{vOUT2}, 4, v{u0}")
        e(f"v_lshrrev_b32 v{vOUT2}, 1, v{R}")
        e(f"v_lshl_add_u32 v{vOUT2}, v{vOUT2}, 3, v{u0}")
    if opt["ofk"]:
        sh = 1 + opt["ofk"]
        e(f"v_lshrrev_b32 v{u0}, {sh}, v{L}")
        e(f"v_mul_u32_u24 v{u0}, 1280, v{u0}")
        e(f"v_and_b32 v{vOUT}, {(1 << sh) - 1}, v{L}")
        e(f"v_lshl_add_u32 v{vOUT}, v{vOUT}, 4, v{u0}")
        e(f"v_add_u32 v{vL16b}, {64 if sh == 2 else 10240}, v{vOUT}")
        e(f"v_lshrrev_b32 v{u0}, 2, v{L}")
        e(f"v_mul_u32_u24 v{u0}, 1280, v{u0}")
        e(f"v_and_b32 v{vOUT2}, 3, v{L}")
        e(f"v_lshl_add_u32 v{vOUT2}, v{vOUT2}, 3, v{u0}")
    if not D1: e(f"v_add_u32 v{vL16b}, 4096, v{vL16}")
    if D1:
        if RPW: e(f"s_lshl2_add_u32 s{sT0}, s{sFT}, s{sW}")
        else:
            e(f"s_lshr_b32 s{sT0}, s{sFT}, 2")
            e(f"s_lshl_b32 s{sT0}, s{sT0}, 2")
            e(f"s_add_u32 s{sT0}, s{sT0}, s{sW}")
        e(f"s_mul_i32 s{sT0}, s{sT0}, {128 if opt['rpk'] else 12*128}")
        e(f"v_min_u32 v{vRP}, 11, v{u2}")
        e(f"v_lshl_add_u32 v{vRP}, v{vRP}, {dict([(0,7),(4,2),(8,3)])[opt['rpk']]}, s{sT0}")
    else:
        e(f"s_mul_i32 s{sT0}, s{sFT}, 5")
        e(f"v_lshl_add_u32 v{u0}, v{u1}, 2, s{sT0}")
        e(f"v_lshrrev_b32 v{u0}, 3, v{u0}")
        e(f"v_mad_u32_u24 v{u0}, v{Wv}, 5, v{u0}")
        e(f"v_min_u32 v{vRP}, 11, v{u2}")
        e(f"v_lshlrev_b32 v{vRP}, 7, v{vRP}")
        e(f"v_lshl_add_u32 v{vRP}, v{u0}, 11, v{vRP}")
    e(f"v_lshlrev_b32 v{vL4}, 2, v{L}")
    if opt["own"] or OW:
        e(f"v_and_b32 v{vPA}, {opt['pl2']}, v{L}")
        e(f"v_lshlrev_b32 v{vPA}, 7, v{vPA}")
    else: e(f"v_mul_u32_u24 v{vPA}, {FS}, v{u1}")
    if D1:
        assert FS == 128
        e(f"v_lshlrev_b32 v{vAC}, 7, v0")
        e(f"s_add_u32 s{sT0}, s{sM0}, 32768")
        e(f"v_add_u32 v{vRW}, s{sT0}, v{vL16}")
        e(f"v_add_u32 v{vRW2}, 65536, v{vRW}")
        for p in range(3):
            if opt["rs"]:
                src = [sorted((st_, w_) for w_ in range(4) for st_ in range(3) if RSO[w_][st_] == b_) for b_ in range(4)]
                tv = sum((4*(src[b_][p][0]+1) + src[b_][p][1]) << (4*b_) for b_ in range(4))
                assert all(src[b_][2][0] == 2 and src[b_][1][0] < 2 for b_ in range(4))
                e(f"s_lshl_b32 s{sT0}, s{sW}, 2")
                e(f"s_lshr_b32 s{sT0}, {tv}, s{sT0}")
                e(f"s_and_b32 s{sT0}, s{sT0}, 15")
                e(f"s_lshl_b32 s{sT0}, s{sT0}, 13")
            else:
                e(f"s_sub_u32 s{sT0}, s{sW}, {1+p}")
                e(f"s_and_b32 s{sT0}, s{sT0}, 3")
                e(f"s_lshl_b32 s{sT0}, s{sT0}, 13")
                e(f"s_add_u32 s{sT0}, s{sT0}, {32768*(p+1)}")
            e(f"v_add_u32 v{vRR+p}, s{sT0}, v{vL16}")
        e(f"s_mul_i32 s{sW2B}, s{sW}, {40960 if OW else 12*40960}")
        e(f"s_lshl_b32 s{sT0}, s{sFT}, 7")
        e(f"s_add_u32 s{sW2B}, s{sW2B}, s{sT0}")
        e(f"s_mul_i32 s{sW5B}, s{sW}, 96")
        e(f"s_add_u32 s{sW5B}, s{sW5B}, s{sFT}")
        e(f"s_lshl_b32 s{sW5B}, s{sW5B}, 10")
        e(f"s_add_u32 s{sW5B}, s{sW5B}, {W2F}")
    else:
        e(f"v_mul_u32_u24 v{u0}, 205, v{L}")
        e(f"v_lshrrev_b32 v{u0}, 10, v{u0}")
        e(f"v_sub_u32 v{vAC}, v{Wv}, v{u0}")
        e(f"v_mad_i32_i24 v{vAC}, v{vAC}, 5, v{L}")
        e(f"v_lshlrev_b32 v{vAC}, 11, v{vAC}")
        e(f"v_lshl_add_u32 v{vAC}, v{u0}, 7, v{vAC}")
        e(f"s_mul_i32 s{sT0}, s{sW}, 15360")
        e(f"s_add_u32 s{sT0}, s{sT0}, {RED}")
        e(f"v_add_u32 v{vRW}, s{sT0}, v{vL16}")
        for p in range(3):
            e(f"s_sub_u32 s{sT0}, s{sW}, {1+p}")
            e(f"s_and_b32 s{sT0}, s{sT0}, 3")
            e(f"s_mul_i32 s{sT0}, s{sT0}, 15360")
            e(f"s_add_u32 s{sT0}, s{sT0}, {RED + p*5120}")
            e(f"v_add_u32 v{vRR+p}, s{sT0}, v{vL16}")
        e(f"s_mul_i32 s{sW2B}, s{sW}, {12*40960}")
        e(f"s_mul_i32 s{sT0}, s{sFT}, 5120")
        e(f"s_add_u32 s{sW2B}, s{sW2B}, s{sT0}")
        e(f"s_add_u32 s{sW2B}, s{sW2B}, {W2F}")
    if opt["ab"]:
        e(f"s_mov_b32 s{sSIG+6}, 0x98763210"); e(f"s_mov_b32 s{sSIG+7}, 0x98763210")
        e(f"s_lshr_b64 s[{sSIG+6}:{sSIG+7}], s[{sSIG+6}:{sSIG+7}], s{sROT}")
        e(f"s_mov_b32 s{sSIG+7}, s{sSIG+6}")
        e(f"s_and_b32 s{sROT}, s{sROT}, 12")
        e(f"s_lshr_b32 s{sSIG+11}, 0xba54ba54, s{sROT}")
        for n in range(12):
            src = sSIG+7 if n < 8 else sSIG+11
            e(f"s_bfe_u32 s{sSIG+n}, s{src}, {0x40000 + 4*(n%8)}")
            e(f"s_lshl_b32 s{sSIG+n}, s{sSIG+n}, 10")
    if opt["own"]:
        e(f"s_lshl_b32 s{sSIG}, s{sFT}, 10")
        for n in range(1, 12):
            e(f"s_cmp_eq_u32 s{sROT}, s{sFT}")
            e(f"s_addc_u32 s{sROT}, s{sROT}, 0")
            e(f"s_lshl_b32 s{sSIG+n}, s{sROT}, 10")
            if n < 11:
                e(f"s_add_u32 s{sROT}, s{sROT}, 1")
                e(f"s_cmp_ge_u32 s{sROT}, 12")
                e(f"s_cselect_b32 s{sROT}, 0, s{sROT}")
    if OW:
        e(f"s_lshl_b32 s{sT0}, s{sFT}, 1")
        e(f"s_sub_u32 s{sT0}, s{sW}, s{sT0}")
        e(f"s_and_b32 s{sT0}, s{sT0}, 3")
        e(f"s_mul_i32 s{sT1}, s{sFT}, 6")
        e(f"s_add_u32 s{sT0}, s{sT0}, s{sT1}")
        e(f"s_lshr_b32 s{sT0}, s{sT0}, 2")
        e(f"s_lshl_b32 s{sSIG}, s{sT0}, 10")
        for n in range(1, 12):
            e(f"s_cmp_ge_u32 s{sROT}, s{sT0}")
            e(f"s_addc_u32 s{sT1}, s{sROT}, 0")
            e(f"s_lshl_b32 s{sSIG+n}, s{sT1}, 10")
            if n < 11:
                e(f"s_add_u32 s{sROT}, s{sROT}, 1")
                e(f"s_cmp_ge_u32 s{sROT}, 11")
                e(f"s_cselect_b32 s{sROT}, 0, s{sROT}")
    for n in range(12 if not opt["ab"] and not opt["own"] and not OW else 0):
        e(f"s_lshl_b32 s{sSIG+n}, s{sROT}, 10")
        if n < 11:
            e(f"s_add_u32 s{sROT}, s{sROT}, 1")
            e(f"s_cmp_ge_u32 s{sROT}, 12")
            e(f"s_cselect_b32 s{sROT}, 0, s{sROT}")
    if opt["own2"] == 2:
        e(f"s_mov_b32 s{sOWN}, s{sW}")
    elif opt["own2"] == 3:
        e(f"s_and_b32 s{sOWN}, s{sFT}, 1")
        e(f"s_add_u32 s{sOWN}, s{sW}, s{sOWN}")
    elif opt["own2"]:
        e(f"s_lshl_b32 s{sOWN}, s{sFT}, 1")
        e(f"s_add_u32 s{sOWN}, s{sW}, s{sOWN}")
    else: e(f"s_add_u32 s{sOWN}, s{sW}, s{sFT}")
    e(f"s_and_b32 s{sOWN}, s{sOWN}, 3")
    e(f"s_lshl_b32 s{sT1}, s{sMT}, 2")
    e(f"s_add_u32 s{sT1}, s{sT1}, s{sW}")
    if opt["own"] or OW: e(f"s_lshl_b32 s{sPOL}, s{sMT}, 10")
    else: e(f"s_mul_i32 s{sPOL}, s{sT1}, {2*FS}")
    e(f"s_add_u32 s{sPOL}, s{sPOL}, {FL}")
    if opt["hloc"]:
        e(f"s_and_b32 s{sT1}, s{sT1}, {~2 & 0xffffffff}")
        e(f"s_lshr_b32 s{sT0}, s{sFT}, 1")
        e(f"s_and_b32 s{sT0}, s{sT0}, 2")
        if opt["hloc"] == 2: e(f"s_xor_b32 s{sT0}, s{sT0}, 2")
        e(f"s_or_b32 s{sT1}, s{sT1}, s{sT0}")
    e(f"s_lshl_b32 s{sT1}, s{sT1}, 2")
    for p in range(4):
        if opt["rs"]:
            tv = sum(RSO[w_][p] << (2*w_) for w_ in range(4))
            e(f"s_lshl_b32 s{sT0}, s{sW}, 1")
            e(f"s_lshr_b32 s{sT0}, {tv}, s{sT0}")
        else: e(f"s_add_u32 s{sT0}, s{sOWN}, {1+p}")
        e(f"s_and_b32 s{sT0}, s{sT0}, 3")
        e(f"s_add_u32 s{sT0}, s{sT0}, s{sT1}")
        e(f"s_mul_i32 s{sT0}, s{sT0}, 12288")
        e(f"v_add_u32 v{vHB+p}, s{sT0}, v{vL16}")
    e(f"s_lshl_b32 s{sOB}, s{sMT}, 2")
    e(f"s_add_u32 s{sOB}, s{sOB}, s{sOWN}")
    e(f"s_mul_i32 s{sOB}, s{sOB}, {16*1280}")
    if D1:
        e(f"s_lshl_b32 s{sT0}, s{sFT}, 5")
        e(f"s_add_u32 s{sOB2}, s{sOB}, s{sT0}")
        e(f"s_add_u32 s{sOB2}, s{sOB2}, {1024-128}")
    e(f"s_mul_i32 s{sT0}, s{sFT}, {128 if D1 else 160}")
    e(f"s_add_u32 s{sOB}, s{sOB}, s{sT0}")
    if opt["ost"]:
        e(f"s_cmp_ge_u32 s{sW}, {opt['ost']}")
        e(f"s_cselect_b32 s{sOB}, s{sOB}, 2621440")
    e(f"s_lshl_b32 s{sT0}, s{sMT}, 2")
    e(f"s_lshr_b32 s{sT1}, s{sFT}, 1")
    e(f"s_add_u32 s{sT0}, s{sT0}, s{sT1}")
    e(f"s_mul_i32 s{sFLG}, s{sT0}, {2*FS}")
    if opt["r48"]: e(f"s_mul_i32 s{sHS}, s{sT0}, {4*12288}")
    else:
        e(f"s_lshl_b32 s{sT0}, s{sT0}, 2")
        e(f"s_and_b32 s{sT1}, s{sW}, 2")
        e(f"s_add_u32 s{sT0}, s{sT0}, s{sT1}")
        e(f"s_mul_i32 s{sHS}, s{sT0}, 12288")
    e(f"s_and_b32 s{sT0}, s{sFT}, 1")
    e(f"s_mul_i32 s{sT1}, s{sT0}, {FS}")
    e(f"s_add_u32 s{sFLG}, s{sFLG}, s{sT1}")
    e(f"s_add_u32 s{sFLG}, s{sFLG}, {FL}")
    e(f"s_mul_i32 s{sT0}, s{sT0}, 6")
    if opt["r48"]: e(f"s_add_u32 s{sT0}, s{sT0}, s{sW}")
    else:
        e(f"s_and_b32 s{sT1}, s{sW}, 1")
        e(f"s_add_u32 s{sT0}, s{sT0}, s{sT1}")
    e(f"s_lshl_b32 s{sT0}, s{sT0}, 10")
    e(f"s_add_u32 s{sHS}, s{sHS}, s{sT0}")
    e(f"s_add_u32 s{sHS2}, s{sHS}, {24576 if opt['r48'] else 4096}")
    if opt["own"]:
        e(f"s_and_b32 s{sT0}, s{sFT}, 1")
        e(f"s_lshl_b32 s{sT0}, s{sT0}, 12")
        e(f"s_sub_u32 s{sHS2}, s{sHS}, s{sT0}")
        e(f"s_add_u32 s{sHS2}, s{sHS2}, 8192")
        e(f"s_lshl_b32 s{sT0}, s{sMT}, 2")
        e(f"s_add_u32 s{sT0}, s{sT0}, s{sT1}")
        e(f"s_lshl_b32 s{sT0}, s{sT0}, 2")
        e(f"s_and_b32 s{sT1}, s{sW}, 2")
        e(f"s_add_u32 s{sT0}, s{sT0}, s{sT1}")
        e(f"s_mul_i32 s{sT0}, s{sT0}, 12")
        e(f"s_add_u32 s{sT0}, s{sT0}, s{sFT}")
        e(f"s_lshl_b32 s{sHS}, s{sT0}, 10")
        e(f"s_add_u32 s{sHS1}, s{sHS}, 98304")
    if OW:
        for q, r in enumerate((sHS, 10, sHS2)):
            e(f"s_mul_i32 s{sT0}, s{sFT}, 6")
            e(f"s_and_b32 s{sT1}, s{sW}, 1")
            e(f"s_add_u32 s{sT0}, s{sT0}, s{sT1}")
            if q: e(f"s_add_u32 s{sT0}, s{sT0}, {2*q}")
            e(f"s_and_b32 s{sT1}, s{sT0}, 3")
            e(f"s_lshl2_add_u32 s{sT1}, s{sMT}, s{sT1}")
            e(f"s_and_b32 s{r}, s{sW}, 2")
            e(f"s_lshl2_add_u32 s{sT1}, s{sT1}, s{r}")
            e(f"s_mul_i32 s{sT1}, s{sT1}, 12")
            e(f"s_lshr_b32 s{sT0}, s{sT0}, 2")
            e(f"s_add_u32 s{sT0}, s{sT0}, s{sT1}")
            e(f"s_lshl_b32 s{r}, s{sT0}, 10")
    e(f"s_add_u32 s{sRFL}, s{sRFL}, {RFL}")
    if opt["tpre"]:
        tb = str(opt["ttab"]).lstrip("x"); assert len(tb) == 32
        nn = tb.count("1"); assert 48 % nn == 0 and 48 // nn <= 8
        rw = 48 // nn
        mk_ = sum(int(c) << i for i, c in enumerate(tb))
        e(f"s_lshr_b32 s9, s2, 3")
        e(f"s_bfm_b32 s8, s9, 0")
        e(f"s_and_b32 s8, s8, {mk_}")
        e(f"s_bcnt1_i32_b32 s8, s8")
        e(f"s_and_b32 s{sT0}, s2, 7")
        e(f"s_lshl3_add_u32 s8, s8, s{sT0}")
        e(f"s_lshl2_add_u32 s8, s8, s{sW}")
        e(f"s_mul_i32 s8, s8, {rw*1280}")
        e(f"s_bitcmp1_b32 {mk_}, s9")
        e(f"s_cselect_b32 s8, s8, 1966080")
        e(f"v_lshrrev_b32 v251, 3, v{L}")
        e(f"v_lshl_add_u32 v250, v251, 8, s8")
        e(f"v_lshl_add_u32 v250, v{L}, 7, v250")
        if rw < 8:
            e(f"v_add_u32 v251, {8 - rw}, v251")
            e(f"v_lshrrev_b32 v251, 3, v251")
            e(f"v_lshl_add_u32 v250, v251, 21, v250")
    if R2:
        e(f"s_lshl_b32 s{sT0}, s{sW}, 9")
        e(f"s_add_u32 s{sRFL}, s{sRFL}, s{sT0}")
        e(f"s_cmp_le_u32 s{sW}, s10")
        e(f"s_cselect_b32 s{sRFL}, s{sRFL}, {HREC}")
    elif not RPW:
        e(f"s_cmp_eq_u32 s{sW}, 0")
        e(f"s_cselect_b32 s{sRFL}, s{sRFL}, {HREC}")
    if opt["fpre"]:
        assert opt["fb"] and opt["fk"] == 0 and not RPW
        e(f"s_cmp_eq_u32 s{sW}, 0")
        e(f"s_cselect_b32 s{sFLG}, s{sFLG}, {HREC}")
        assert HREC == 1 << 23 and opt["rpk"] == 8
        e(f"v_lshrrev_b32 v249, 1, v{L}")
        e(f"v_lshl_add_u32 v249, v249, 23, v{vL4}")
        e(f"v_lshrrev_b32 v248, 5, v{L}")
        e(f"v_lshl_add_u32 v248, v248, 23, v{vL4}")
    e(f"s_mov_b32 s{sL2E}, 0xbfb8aa3b")
    if opt["pk"]:
        e(f"s_mov_b32 s{sPK}, 0xbfb8aa3b"); e(f"s_mov_b32 s{sPK+1}, 0xbfb8aa3b")
def r_loads():
    if D1:
        e(f"s_lshr_b32 m0, s{sM0}, 3")
        e(f"s_add_u32 m0, m0, {RB}")
        e("s_nop 0")
        e(f"buffer_load_dwordx4 v{vWD}, {srd(sW2)}, s{sRS} offen {opt['raux']} lds"); VM.issue("rld")
        if R2:
            e(f"s_add_u32 m0, m0, {4096 - 128}")
            e(f"s_cmp_eq_u32 s10, 1")
            e(f"s_cselect_b32 s{sRS}, s{sRS}, 1966080")
            e(f"buffer_load_dwordx4 v{vWD}, {srd(sW2)}, s{sRS} offen offset:128 {opt['raux']} lds"); VM.issue("rld")
        return
    e(f"s_lshr_b32 m0, s{sM0}, 2")
    e(f"s_add_u32 m0, m0, {RB}")
    e("s_nop 0")
    for i in range(2):
        e(f"buffer_load_dwordx4 v{vDR+i}, {srd(sW2)}, s{sRS} offen offset:{i*1024} {opt['raux']} lds"); VM.issue("rld")
def r_reads():
    if D1:
        for t in range(4 if R2 else 2):
            e(f"ds_read_b64_tr_b16 {vr(vRF + 2*t, 2)}, v{vRA} offset:{(t % 2)*1024 + (t // 2)*4096}"); LG.issue("rrd")
        return
    for ee in range(2):
        for t in range(2):
            e(f"ds_read_b64_tr_b16 {vr(vRF + 4*ee + 2*t, 2)}, v{vRA+ee} offset:{t*2048}"); LG.issue("rrd")
def r_stores():
    LG.wait("rrd")
    for ee in range(1 if D1 else 2):
        e(f"buffer_store_dwordx4 {vr(vRF+4*ee,4)}, v{vL16}, {srd(sH)}, s{sRD} offen offset:{ee*1024} {opt['rsaux']}"); VM.issue("rst")
    if R2:
        e(f"s_add_u32 s{sRD}, s{sRD}, 4096")
        e(f"s_cmp_eq_u32 s10, 1")
        e(f"s_cselect_b32 s{sRD}, s{sRD}, {HREC}")
        e(f"buffer_store_dwordx4 {vr(vRF+4,4)}, v{vL16}, {srd(sH)}, s{sRD} offen {opt['rsaux']}"); VM.issue("rst")
S2 = capture(setup2)
groups = []
for l in S2:
    if l.startswith("s_cselect") or (groups and groups[-1][-1].startswith(("s_cmp", "s_bitcmp"))): groups[-1].append(l)
    else: groups.append([l])
ST0 = []
def pre_order(spec):
    kx, kw = (sKX, 6, 8), (sKW, 7, 9)
    def nxt(i):
        a, b = (i + 1) % 3, i
        e(f"s_add_u32 s{kx[a]}, s{kx[b]}, 128")
        e(f"s_add_u32 s{kw[a]}, s{kw[b]}, {64*3072}")
        e(f"s_cmp_eq_u32 s{kx[a]}, s{sXE}")
        e(f"s_cselect_b32 s{kx[a]}, s{sXB}, s{kx[a]}")
        e(f"s_cselect_b32 s{kw[a]}, s{sWB}, s{kw[a]}")
    ops = []
    for ch in spec:
        if ch in "abc":
            st = "abc".index(ch)
            for i in range(2):
                def f(st=st, i=i):
                    if i == 0: e(f"s_add_u32 m0, s{sM0}, {st*32768+6144}"); e("s_nop 0")
                    e(f"buffer_load_dwordx4 v{vDX+i}, {srd(sX)}, s{kx[st]} offen offset:{i*1024} {opt['xaux']} lds"); VM.issue(f"st{st}")
                    if st == 0 and i == 1: nxt(0); nxt(1)
                ops.append(f)
        elif ch in "ABC":
            st = "ABC".index(ch)
            for j in range(6):
                def f(st=st, j=j):
                    if j % 4 == 0: e(f"s_add_u32 m0, s{sM0}, {st*32768+j*1024}"); e("s_nop 0")
                    e(f"buffer_load_dwordx4 v{vDW+j}, {srd(sW1)}, s{kw[st]} offen offset:{(j%4)*1024} {opt['w1aux']} lds"); VM.issue(f"st{st}")
                ops.append(f)
        elif ch == "R": ops.append(r_loads)
        elif ch == ".": ops.append(None)
        elif ch == "P":
            def f():
                e(f"s_bfe_u32 s10, s{sMT}, 0x10002")
                e(f"s_mul_i32 s10, s10, 320")
                e(f"s_and_b32 s11, s{sMT}, 3")
                e(f"s_lshl_b32 s11, s11, 4")
                e(f"s_add_u32 s10, s10, s11")
                e(f"s_mul_i32 s11, s{sW}, 12")
                e(f"s_sub_u32 s10, s10, s11")
                e(f"s_add_u32 s10, s10, 256")
                e(f"s_mul_i32 s10, s10, 3072")
                e(f"s_add_u32 s10, s10, s{sWB}")
                e(f"buffer_load_dwordx4 v[244:247], v{vDW}, {srd(sW1)}, s10 offen"); VM.issue("pp")
                e("s_mov_b32 exec_hi, 0")
                e(f"buffer_load_dwordx4 v[248:251], v{vDW+1}, {srd(sW1)}, s10 offen offset:1024"); VM.issue("pp")
                e("s_mov_b32 exec_hi, -1")
            ops.append(f)
    assert spec[0] == "a" and all(c in spec for c in "abcABC")
    last = ops[-1]
    def fin(): last(); nxt(2)
    ops[-1] = fin
    return ops
if opt["po"]:
    first = pre_order(opt["po"]); opt["pre3"] = 1
    if None in first:
        k = first.index(None); first, ST0 = first[:k], first[k+1:]
    if "R" in opt["po"]: opt["rls"] = -1
else:
    first = dma_ops(0) + dma_ops(1) + (dma_ops(2) if opt["pre3"] else [])
    if opt["rls"] < 0: first.append(r_loads)
    if opt["tch"]: first[opt["tp0"]:opt["tp0"]] = [touch] * (opt["la"] - 1)
def wxtouch(k, n):
    def f():
        if k == 0:
            e(f"s_lshr_b32 s8, s2, 3")
            e(f"s_lshl_b32 s8, s8, 2")
            e(f"s_add_u32 s8, s8, s{sW}")
            e(f"s_mul_i32 s8, s8, {12*1280}")
            e(f"s_lshr_b32 s9, s{sFT}, 2")
            e(f"s_lshl_b32 s9, s9, 9")
            e(f"s_add_u32 s8, s8, s9")
            e(f"v_lshrrev_b32 v250, 6, v{vL16}")
            e(f"v_mul_u32_u24 v250, {1280-512}, v250")
            e(f"v_lshl_add_u32 v250, v{vL16}, 3, v250")
        m = ((1 << (48 // n)) - 1) << (k * 48 // n)
        e(f"s_mov_b32 exec_lo, {m & 0xffffffff}")
        e(f"s_mov_b32 exec_hi, {m >> 32}")
        e(f"buffer_load_dword v251, v250, {srd(sW2)}, s8 offen {opt['wtaux']}"); VM.issue("wt")
        e("s_mov_b64 exec, -1")
    return f
def wtouch():
    if opt["tpre"]:
        e(f"buffer_load_dword v251, v250, {srd(sW2)}, 0 offen {opt['wtaux']}"); VM.issue("wt")
        return
    if opt["wtx"]:
        e(f"s_lshr_b32 s8, s2, 3")
        e(f"s_lshl_b32 s8, s8, 2")
        e(f"s_add_u32 s8, s8, s{sW}")
        e(f"s_mul_i32 s8, s8, {12*1280}")
        e(f"s_lshr_b32 s9, s{sFT}, 2")
        e(f"s_lshl_b32 s9, s9, 9")
        e(f"s_add_u32 s8, s8, s9")
        e(f"v_lshrrev_b32 v250, 6, v{vL16}")
        e(f"v_mul_u32_u24 v250, {1280-512}, v250")
        e(f"v_lshl_add_u32 v250, v{vL16}, 3, v250")
        e(f"s_mov_b32 exec_hi, 0xffff")
        e(f"buffer_load_dword v251, v250, {srd(sW2)}, s8 offen {opt['wtaux']}"); VM.issue("wt")
        e("s_mov_b64 exec, -1")
        return
    if opt["ttab"]:
        tb = str(opt["ttab"]).lstrip("x"); assert len(tb) == 32
        nn = tb.count("1"); assert 48 % nn == 0 and 48 // nn <= 8
        rw = 48 // nn
        mk_ = sum(int(c) << i for i, c in enumerate(tb))
        e(f"s_lshr_b32 s9, s2, 3")
        e(f"s_bfm_b32 s8, s9, 0")
        e(f"s_and_b32 s8, s8, {mk_}")
        e(f"s_bcnt1_i32_b32 s8, s8")
        e(f"s_and_b32 m0, s2, 7") if False else None
        e(f"s_lshl_b32 s8, s8, 3")
        e(f"s_bitcmp1_b32 {mk_}, s9")
        e(f"s_cselect_b32 s8, s8, 0x10000")
        e(f"s_and_b32 s9, s2, 7")
        e(f"s_add_u32 s8, s8, s9")
        e(f"s_lshl2_add_u32 s8, s8, s{sW}")
        e(f"s_mul_i32 s8, s8, {rw*1280}")
        e(f"s_min_u32 s8, s8, 1966080")
        e(f"v_lshrrev_b32 v250, 7, v{vL16}")
        e(f"v_lshlrev_b32 v250, 8, v250")
        e(f"v_lshl_add_u32 v250, v{vL16}, 3, v250")
        if rw < 8:
            m = (1 << (8*rw)) - 1
            e(f"s_mov_b32 exec_lo, {m & 0xffffffff}")
            e(f"s_mov_b32 exec_hi, {m >> 32}")
        e(f"buffer_load_dword v251, v250, {srd(sW2)}, s8 offen {opt['wtaux']}"); VM.issue("wt")
        if rw < 8: e("s_mov_b64 exec, -1")
        return
    if opt["wtc"]:
        e(f"s_lshr_b32 s8, s2, 4")
        e(f"s_lshl_b32 s8, s8, 3")
        e(f"s_and_b32 s9, s2, 7")
        e(f"s_add_u32 s8, s8, s9")
        e(f"s_lshl2_add_u32 s8, s8, s{sW}")
        e(f"s_mul_i32 s8, s8, {3*1280}")
        e(f"v_lshrrev_b32 v250, 7, v{vL16}")
        e(f"v_lshlrev_b32 v250, 8, v250")
        e(f"v_lshl_add_u32 v250, v{vL16}, 3, v250")
        e(f"s_lshr_b32 s9, s2, 2")
        e(f"s_xor_b32 s9, s9, s2")
        e(f"s_bitcmp{opt['wtc'] - 1}_b32 s9, 3")
        e(f"s_cselect_b32 s8, s8, 1966080")
        e(f"s_mov_b64 exec, {(1 << 24) - 1}")
        e(f"buffer_load_dword v251, v250, {srd(sW2)}, s8 offen {opt['wtaux']}"); VM.issue("wt")
        e("s_mov_b64 exec, -1")
        return
    e(f"s_lshl_b32 s8, s2, 2")
    e(f"s_add_u32 s8, s8, s{sW}")
    e(f"s_mul_i32 s8, s8, {15*128}")
    e(f"v_lshlrev_b32 v250, {2 if opt['wth'] else 3}, v{vL16}")
    e(f"s_mov_b64 exec, {(1 << (30 if opt['wth'] else opt['wtn'])) - 1}")
    e(f"buffer_load_dword v251, v250, {srd(sW2)}, s8 offen {opt['wtaux']}"); VM.issue("wt")
    e("s_mov_b64 exec, -1")
if opt["wt"] >= 0: first.insert(opt["wt"], wtouch)
def xtouch():
    e(f"s_lshr_b32 s8, s2, 5")
    e(f"s_add_u32 s8, s8, {opt['xr0']}")
    e(f"s_mul_i32 s9, s8, 52")
    e(f"s_lshr_b32 s9, s9, 8")
    e(f"s_mul_i32 s9, s9, 5")
    e(f"s_sub_u32 s8, s8, s9")
    e(f"s_lshl_b32 s8, s8, 8")
    e(f"s_bfe_u32 s9, s2, 0x20003")
    e(f"s_lshl2_add_u32 s9, s9, s{sW}")
    e(f"s_mul_i32 s9, s9, 5120")
    e(f"s_add_u32 s8, s8, s9")
    e(f"s_add_u32 s8, s8, s{sXB}")
    e(f"v_lshrrev_b32 v249, 5, v{vL16}")
    e(f"v_mul_u32_u24 v249, {1280-256}, v249")
    e(f"v_lshl_add_u32 v249, v{vL16}, 3, v249")
    e(f"s_mov_b64 exec, 255")
    e(f"buffer_load_dword v248, v249, {srd(sX)}, s8 offen"); VM.issue("xt")
    e("s_mov_b64 exec, -1")
if opt["xt"] >= 0: first.insert(opt["xt"], xtouch)
def pvtouch():
    e(f"s_lshl_b32 s8, s2, 2")
    e(f"s_add_u32 s8, s8, s{sW}")
    e(f"s_mul_i32 s8, s8, {15*128}")
    e(f"v_lshlrev_b32 v250, 3, v{vL16}")
    e(f"s_mov_b64 exec, {opt['pvm']}")
    e(f"buffer_load_dword v251, v250, {srd(sW2)}, s8 offen"); VM.issue("wt")
    e("s_mov_b64 exec, -1")
if opt["pv"] >= 0: first.insert(opt["pv"], pvtouch)
def stouch():
    e(f"s_lshl_b32 s100, s2, 2")
    e(f"s_add_u32 s100, s100, s{sW}")
    e(f"s_mul_i32 s100, s100, {15*128}")
    for i in range(opt["swn"]):
        e(f"s_load_dword s101, s[{sW2}:{sW2+1}], s100 offset:{i*128}")
if opt["sw"] >= 0: first.insert(opt["sw"], stouch)
if opt["clr"] >= 0: first[opt["clr"]:opt["clr"]] = CLO
NF0 = opt["nf0"]
for f in first[:NF0]: f()
if opt["fst"]:
    e(f"s_waitcnt vmcnt({NF0-1})"); stamp(k=5)
    e(f"s_waitcnt vmcnt({NF0-3})"); stamp(k=5)
rest = first[NF0:]
per = (len(groups) + len(rest) - 1) // len(rest)
head = len(groups) * opt["head"] // 100
for g in groups[:head]: O.extend(g)
groups = groups[head:]
per = (len(groups) + len(rest) - 1) // len(rest)
for f in rest:
    f()
    for g in groups[:per]: O.extend(g)
    groups = groups[per:]
assert not groups
stamp()

def w2_ops():
    ops = []
    order = list(range(1, 12)); order.insert(opt["w0p"], 0)
    for n in order:
        for j in range(5):
            def f(n=n, j=j):
                if j == 0:
                    e(f"s_mul_i32 s{sWO}, s{sSIG+n}, 40")
                    e(f"s_add_u32 s{sWO}, s{sWO}, s{sW2B}")
                va = vL16 if j < 4 else vL16b
                e(f"buffer_load_dwordx4 {ar(n*20+4*j, 4)}, v{va}, {srd(sH)}, s{sWO} offen offset:{(j%4)*1024} {opt['w2aux'].replace('-','')}")
                VM.issue(f"w{n}")
            ops.append(f)
    return ops
WREG = [3, 3, 4, 4, 1, 1, 2, 2, 3, 3, 4, 4]
WHF = [n % 2 for n in range(12)]
WDEP = [None] * 8 + ["t0", "t1", "t2", "t3"]
if OW:
    WREG = [3, 3, 4, 4, 1, 1, 2, 3, 3, 4, 4, 2]
    WHF = [0, 1, 0, 1, 0, 1, 0, 0, 1, 0, 1, 1]
    WDEP = [None] * 7 + ["t0", "t1", "t2", "t3", "or3"]
def wd_ops():
    ops = []
    for n in range(12):
        for i in range(4):
            def f(n=n, i=i):
                if i == 0:
                    if WDEP[n]: assert WDEP[n] in TDONE + ORD and WDEP[n] not in LG.q, n
                    e(f"s_mul_i32 s{sWO}, s{sSIG+n}, {160 if OW else 40}")
                    e(f"s_add_u32 m0, s{sM0}, {WREG[n]*32768 + WHF[n]*4096}")
                    e(f"s_add_u32 s{sWO}, s{sWO}, s{sW2B}")
                if n >= 12 - opt["skd"]: return
                e(f"buffer_load_dwordx4 v{vWD+i}, {srd(sW2)}, s{sWO} offen offset:{i*1024} {opt['waux']} lds")
                VM.issue(f"d{n}")
            ops.append(f)
    return ops
def w5_ops():
    ops = []
    for n in range(12):
        def f(n=n):
            if n >= 12 - opt["sk5"]: return
            e(f"s_lshl3_add_u32 s{sT1}, s{sSIG+n}, s{sW5B}")
            e(f"buffer_load_dwordx4 {ar(n*20+16, 4)}, v{vL16}, {srd(sH)}, s{sT1} offen {opt['w5aux'].replace('-','')}")
            VM.issue(f"w{n}")
        ops.append(f)
    return ops
TDONE = []; TWIN = [3]; ORD = []
def tgroup_ops(n):
    def head():
        assert not any(f.__defaults__[0] == n and len(f.__defaults__) == 2 for f in W2L), n
        VM.wait(f"d{n}")
        win = 3 if WREG[n] >= 3 else 1
        if win != TWIN[0]:
            for j in range(4): e(f"v_add_u32 v{vWT+j}, {(win - TWIN[0]) * 32768}, v{vWT+j}")
            TWIN[0] = win
        if len(LG.q) > 7:
            e("s_waitcnt lgkmcnt(7)"); LG.q = LG.q[-7:]
    ops = []
    for j in range(4):
        def f(j=j):
            if j == 0: head()
            win = TWIN[0]
            for t in range(2):
                e(f"ds_read_b64_tr_b16 {ar(n*20+4*j+2*t, 2)}, v{vWT+j} offset:{(WREG[n]-win)*32768 + WHF[n]*4096 + t*1024}"); LG.issue(f"t{n}")
        ops.append(f)
    TDONE.append(f"t{n}")
    return ops
def tgroup(n):
    for f in tgroup_ops(n): f()
W2L = wd_ops() if D1 else w2_ops()
def take(n):
    r = W2L[:n]; del W2L[:n]; return r

def ord48(last=False):
    o = opt["l48"] if last else opt["o48"]
    if o == 0: return [(j, rt) for rt in range(4) for j in range(2)] + [(2, rt) for rt in range(4)]
    if o == 1: return [(j, rt) for j in range(3) for rt in range(4)]
    if o == 2: return [(j, rt) for rt in range(4) for j in range(3)]
    if o == 3: return [(j, rt if j % 2 == 0 else 3 - rt) for j in range(3) for rt in range(4)]
    if o == 4: return [(j if rt % 2 == 0 else 2 - j, rt) for rt in range(4) for j in range(3)]
    if o == 5: return [(0,0),(0,1),(1,0),(1,1),(2,0),(2,1),(0,2),(0,3),(1,2),(1,3),(2,2),(2,3)]
def rd_ops(st, half):
    slot = st % NSL
    sb = (slot % 2) * 32768
    hi = slot // 2
    ops = []
    if opt["nord"]: return ops
    if opt["r48"]:
        def b(rt):
            def f(): e(f"ds_read_b128 {vr(vAF + half*32 + 12 + rt*4, 4)}, v{vB + 4 + 2*hi + half} offset:{sb + rt*8192}"); LG.issue(f"B{half}{rt}")
            return f
        def a(j, t):
            def f():
                e(f"ds_read_b64_tr_b16 {vr(vAF + half*32 + j*4 + 2*t, 2)}, v{vA + (2*hi + j if j < 2 else 4 + hi)} offset:{sb + half*16384 + t*1536}")
                LG.issue(f"A{half}{j}")
            return f
        seen = []; r = []
        for j, rt in ord48(st == 9 and half == 1):
            for k in (f"B{rt}", f"A{j}") if opt["q48"] else (f"A{j}", f"B{rt}"):
                if k in seen: continue
                seen.append(k)
                r += [b(rt)] if k[0] == "B" else [a(j, 0), a(j, 1)]
        return r
    if opt["r16"]:
        def b(rt):
            def f(): e(f"ds_read_b128 {vr(vBF + (half*2+rt)*4, 4)}, v{vB + 4 + 2*hi + half} offset:{sb + rt*8192}"); LG.issue(f"B{half}{rt}")
            return f
        def a(j, t):
            def f():
                e(f"ds_read_b64_tr_b16 {vr(vAF + half*24 + j*4 + 2*t, 2)}, v{vA + 2*hi + j%2} offset:{sb + half*16384 + t*1536 + (j//2)*128}")
                LG.issue(f"A{half}{j}")
            return f
        A = [a(j, t) for j in range(6) for t in range(2)]
        return [b(0)] + A[:2] + [b(1)] + A[2:]
    for kk in range(2):
        ks = 2*half + kk
        def b(ks=ks, kk=kk):
            e(f"ds_read_b128 {vr(vBF + (half*2+kk)*4, 4)}, v{vB + 4*hi + ks} offset:{sb}"); LG.issue(f"B{ks}")
        ops.append(b)
        for q in range(3):
            for t in range(2):
                def a(ks=ks, kk=kk, q=q, t=t):
                    e(f"ds_read_b64_tr_b16 {vr(vAF + half*24 + (kk*3+q)*4 + 2*t, 2)}, v{vA+hi} offset:{sb + ks*8192 + t*1536 + q*128}")
                    LG.issue(f"A{ks}{q}")
                ops.append(a)
    if opt["qm"] in (1, 2):
        qs = (0, 1, 2) if opt["qm"] == 1 or half == 0 else (2, 1, 0)
        ops = [ops[0], ops[7]] + [ops[7*kk + 1 + 2*q + t] for q in qs for kk in range(2) for t in range(2)]
    if opt["qm"] == 3: ops = ops[:8] + [ops[8 + 2*q + t] for q in (2, 1, 0) for t in range(2)]
    return ops
def i16(kk, q): return kk == 1
def mfma1(half, kk, q, zz=None):
    ks = 2*half + kk
    LG.wait(f"A{ks}{q}")
    if opt["nomf1"]: return
    if opt["m16"]:
        for z in (range(2) if zz is None else [zz]):
            c = vr(vACC1+16*q+8*kk+4*z, 4)
            e(f"v_mfma_f32_16x16x32_bf16 {c}, {vr(vAF + half*24 + (kk*3+q)*4, 4)}, {vr(vBF + (half*2+(kk^z if i16(kk, q) else kk))*4, 4)}, {c}")
        return
    a, b = vr(vAF + half*24 + (kk*3+q)*4, 4), vr(vBF + (half*2+kk)*4, 4)
    if opt["swab"]: a, b = b, a
    e(f"v_mfma_f32_32x32x16_bf16 {vr(vACC1+16*q,16)}, {a}, {b}, {vr(vACC1+16*q,16)}")
def mfma16(half, i, last=False):
    if opt["r48"]:
        j, rt = ord48(last)[i]
        late = max((f"A{half}{j}", f"B{half}{rt}"), key=lambda t: len(LG.q) - 1 - LG.q[::-1].index(t) if t in LG.q else -1)
        LG.wait(late)
        if opt["nomf1"]: return
        c = vr(vACC1 + (rt*8 + j*4 if j < 2 else 32 + rt*4), 4)
        e(f"v_mfma_f32_16x16x32_bf16 {c}, {vr(vAF + half*32 + j*4, 4)}, {vr(vAF + half*32 + 12 + rt*4, 4)}, {c}")
        return
    j, rt = i // 2, i % 2
    if opt["ro"] == 1 and j % 2: rt ^= 1
    LG.wait(f"A{half}{j}"); LG.wait(f"B{half}{rt}")
    if opt["nomf1"]: return
    if opt["hm"] and i % 4 < opt["hm"]: return
    c = vr(vACC1 + (j//2)*16 + rt*8 + (j%2)*4, 4)
    a_, b_ = vr(vAF + half*24 + j*4, 4), vr(vBF + (half*2+rt)*4, 4)
    if opt["sw1"]: a_, b_ = b_, a_
    e(f"v_mfma_f32_16x16x32_bf16 {c}, {a_}, {b_}, {c}")
def half_body(mf_half, rds, fill, cnt=None):
    rds = list(rds); fill = list(fill)
    if (opt["m16"] >= 2 or opt["r16"]) and mf_half is not None:
        for i in range(12):
            if opt["r16"]: mfma16(mf_half, i)
            else: mfma1(mf_half, i // 6, (i // 2) % 3, i % 2)
            left = 12 - i
            if opt["pat"]:
                P = opt["pat1"] if opt["pat1"] and mf_half == 0 else opt["pat"]
                ch = P[i]
                for _ in range(dict(a=2, b=1, c=3, M=1, N=2).get(ch, 0)):
                    if rds: rds.pop(0)()
                if ch in "LMN":
                    nl = sum(c in "LMN" for c in P[i:])
                    for _ in range((len(fill) + nl - 1) // nl): fill.pop(0)()
            elif opt["m16"] == 2 or opt["r16"] == 2:
                for _ in range((len(rds) + left - 1) // left if i else 2):
                    if rds: rds.pop(0)()
                if i % 2 == 1:
                    for _ in range((len(fill) + left // 2) // (left // 2 + 1)):
                        if fill: fill.pop(0)()
            else:
                if i % 3 == 2 and fill:
                    for _ in range((len(fill) + left // 3) // (left // 3 + 1)): fill.pop(0)()
                else:
                    for _ in range(2):
                        if rds: rds.pop(0)()
        assert not rds and not fill, (len(rds), len(fill))
        return
    for i in range(6):
        if mf_half is not None:
            if opt["qm"] == 1: mfma1(mf_half, i % 2, i // 2)
            elif opt["qm"] == 2: mfma1(mf_half, i % 2, (i // 2) if mf_half == 0 else 2 - i // 2)
            elif opt["qm"] == 3: mfma1(mf_half, i // 3, (i % 3) if i < 3 else 5 - i)
            else: mfma1(mf_half, i // 3, i % 3)
        left = 6 - i
        for _ in range((len(rds) + left - 1) // left if i else min(len(rds), 4)):
            if rds: rds.pop(0)()
        if cnt is not None:
            for _ in range(cnt[i]):
                if fill: fill.pop(0)()
            if i == 5:
                while fill: fill.pop(0)()
            continue
        for _ in range((len(fill) + left - 1) // left):
            if fill: fill.pop(0)()
    assert not rds and not fill

def flag_store(off, lanes=0):
    fk = opt["fk"]
    if opt["fpre"]:
        e(f"buffer_store_dword v{vT}, v{249 if lanes else 248}, {srd(sH)}, s{off} offen sc1"); VM.issue("flag")
        return
    if fk in (1, 3, 4):
        for r in range(4): e(f"v_mov_b32 v{vTM+12+r}, s{sTAG}")
        e(f"s_mov_b64 exec, {dict([(1,255),(3,1),(4,15)])[fk]}")
        e(f"buffer_store_dwordx4 {vr(vTM+12,4)}, v{vL16}, {srd(sH)}, s{off} offen sc1"); VM.issue("flag")
        e("s_mov_b64 exec, -1")
        return
    e(f"v_mov_b32 v{vT}, s{sTAG}")
    e(f"s_mov_b64 exec, {(1 << lanes) - 1}" if lanes else "s_mov_b32 exec_hi, 0" if fk == 0 else "s_mov_b64 exec, 1")
    e(f"buffer_store_dword v{vT}, v{vL4}, {srd(sH)}, s{off} offen sc1"); VM.issue("flag")
    e("s_mov_b64 exec, -1")
def r_poll():
    e(f"s_mov_b32 s{sT0}, {HREC if opt['norp'] else RFL}")
    e(f"buffer_load_dword v{vPOLL}, v{vRP}, {srd(sH)}, s{sT0} offen sc1"); VM.issue("rpoll")

def spin_slow(lab, vv, va, so):
    e(f"L_{lab}_s:")
    e(f"s_mov_b32 s{sSPIN}, 20000")
    e(f"L_{lab}:")
    e(f"buffer_load_dword v{vv}, v{va}, {srd(sH)}, s{so} offen sc1")
    e(f"s_sub_u32 s{sSPIN}, s{sSPIN}, 1")
    e("s_waitcnt vmcnt(0)")
    e(f"v_cmp_ne_u32 vcc, s{sTAG}, v{vv}")
    e(f"s_cbranch_scc1 L_{lab}_go")
    e(f"s_cbranch_vccnz L_{lab}")
    e(f"s_branch L_{lab}_go")
def spin_fast(lab, vv, tag):
    VM.wait(tag)
    e(f"v_cmp_ne_u32 vcc, s{sTAG}, v{vv}")
    e(f"s_cbranch_vccnz L_{lab}_s")
    e(f"L_{lab}_go:")
def spin_check(lab, vv, va, tag, so=None, fake=False):
    VM.wait(tag)
    e(f"s_mov_b32 s{sSPIN}, 20000")
    e(f"L_{lab}:")
    e(f"v_cmp_ne_u32 vcc, s{sTAG}, v{vv}")
    e("s_cmp_eq_u64 vcc, 0" if not fake else "s_cmp_eq_u32 s2, s2")
    e(f"s_cbranch_scc1 L_{lab}_go")
    e(f"s_sub_u32 s{sSPIN}, s{sSPIN}, 1")
    e(f"s_cmp_eq_u32 s{sSPIN}, 0")
    e(f"s_cbranch_scc1 L_{lab}_go")
    if so is None: e(f"s_mov_b32 s{sT0}, {RFL}")
    e(f"buffer_load_dword v{vv}, v{va}, {srd(sH)}, s{sT0 if so is None else so} offen sc1")
    e("s_waitcnt vmcnt(0)")
    e(f"s_branch L_{lab}")
    e(f"L_{lab}_go:")
def r_check(): spin_check("rp", vPOLL, vRP, "rpoll", None, opt["norp"])

FLB2 = 0x100000
def flagA(bar=True):
    if bar: VM.wait("hstA")
    e(f"s_cmp_eq_u32 s{sW}, 0")
    e(f"s_cselect_b32 s{sFLG}, s{sFLG}, {HREC}")
    if bar: e("s_barrier")
    flag_store(sFLG)
    if bar and opt["fb2"] == 2: e("s_barrier")
    e(f"s_add_u32 s{sFLG}, s{sFLG}, {FLB2}")
    stamp(k=9)
PEND = []
EMU = [int(c) for c in str(opt["emu"]).lstrip("x")]
def emu_ops(bi):
    q, g2 = bi // 2, bi % 2
    a0 = (vACC1 + 16*q + 8*g2) if opt['emv'] == 2 else 216; tt = vS + (bi % 2) * 8; pk = vRF + 8 + bi * 4
    ops = []
    if opt["emv"] and not opt["epk"]:
        for r in range(8): ops.append(f"v_mul_f32 v{tt+r}, s{sL2E}, v{a0+r}")
        for r in range(8): ops.append(f"v_exp_f32 v{tt+r}, v{tt+r}")
        for r in range(8): ops.append(f"v_add_f32 v{tt+r}, 1.0, v{tt+r}")
        for r in range(8): ops.append(f"v_rcp_f32 v{tt+r}, v{tt+r}")
        for r in range(8): ops.append(f"v_mul_f32 v{tt+r}, v{a0+r}, v{tt+r}")
        for r in range(4): ops.append(f"v_cvt_pk_bf16_f32 v{pk+r}, v{tt+2*r}, v{tt+2*r+1}")
    elif opt["emv"]:
        for r in range(0, 8, 2): ops.append(f"v_pk_mul_f32 {vr(tt+r,2)}, {vr(a0+r,2)}, s[{sPK}:{sPK+1}]")
        for r in range(8): ops.append(f"v_exp_f32 v{tt+r}, v{tt+r}")
        for r in range(0, 8, 2): ops.append(f"v_pk_add_f32 {vr(tt+r,2)}, {vr(tt+r,2)}, 1.0 op_sel_hi:[1,0]")
        for r in range(8): ops.append(f"v_rcp_f32 v{tt+r}, v{tt+r}")
        for r in range(0, 8, 2): ops.append(f"v_pk_mul_f32 {vr(tt+r,2)}, {vr(a0+r,2)}, {vr(tt+r,2)}")
        for r in range(4): ops.append(f"v_cvt_pk_bf16_f32 v{pk+r}, v{tt+2*r}, v{tt+2*r+1}")
    fs = [(lambda l=l: e(l)) for l in ops]
    def st_():
        if opt["r16"]:
            e(f"buffer_store_dwordx4 {vr(pk,4)}, v{vHS if g2 else vL16}, {srd(sH)}, s{(sHS if q < 2 else sHS2) if opt['emo'] == 0 else sH+2} offen offset:{(q%2)*2048} {opt['emaux'].replace('-','')}"); VM.issue("hstA" if opt["ab2"] else "hst")
            return
        e(f"buffer_store_dwordx4 {vr(pk,4)}, v{vHS}, {srd(sH)}, s{sHS} offen offset:{g2*512 + (q%2)*2048} sc1"); VM.issue("hstA" if opt["ab"] else "hst")
    if not opt['ems']: PEND.append(st_); return fs
    return fs + [st_]
def merge(a, b):
    r = []; a = list(a); b = list(b); na, nb_ = len(a), len(b)
    while a or b:
        if a and (not b or len(a) * nb_ >= len(b) * na): r.append(a.pop(0))
        else: r.append(b.pop(0))
    return r
if EMU:
    for r in range(8): e(f"v_cvt_f32_u32 v{216+r}, v{vL16}"); e(f"v_mul_f32 v{216+r}, 0x3a000000, v{216+r}")
for st in range(10):
    if st == 1 and opt["fpre"]:
        e(f"s_mul_i32 s{sTAG}, s{sE}, 0x9E3779B1")
        e(f"s_add_u32 s{sTAG}, s{sTAG}, 0x7F4A7C15")
        e(f"v_mov_b32 v{vT}, s{sTAG}")
    if st == opt["wu"]:
        e("s_mov_b64 exec, 0")
        for k in range(1, 4):
            e(f"s_cmp_eq_u32 s{sW}, {k}")
            e(f"s_cbranch_scc1 L_w{k}")
        e("L_wr:")
        e("s_mov_b64 exec, -1")
    if st != opt["nw"]: VM.wait(f"st{st}")
    if st == opt["rjs"]: VM.wait("rld")
    if st == opt["rfs"]: VM.wait("rst"); VM.wait("clr")
    if st == opt["afs"] and st: VM.wait("hstA")
    if st == opt["fas"]: VM.wait("hstA")
    LG.drain()
    e("s_barrier")
    if st == opt["fas"]: flagA(False)
    if st == opt["afs"] and st:
        e(f"s_cmp_eq_u32 s{sW}, 0")
        e(f"s_cselect_b32 s{sT1}, s{sFLG}, {HREC}")
        flag_store(sT1); stamp(k=7)
    if st == 9: stamp()
    stamp(k=1)
    if st >= 8: stamp(k=4)
    if st == opt["rfs"] or (RPW and st == 1):
        if not opt["fpre"]:
            e(f"s_mul_i32 s{sTAG}, s{sE}, 0x9E3779B1")
            e(f"s_add_u32 s{sTAG}, s{sTAG}, 0x7F4A7C15")
        if not RPW and opt["fpre"] < 2: flag_store(sRFL, opt["rpk"] // 4)
    if not D1 and ((st == opt["rcs"] and opt["rck"] == 0) or (st == 9 and opt["rck"] == 2)): r_check()
    if NSL == 4:
        if st == 0: fill = ([] if opt["pre3"] else dma_ops(2)) + dma_ops(3)
        elif st < 7: fill = dma_ops(st + 3)
        else: fill = take(opt[f"n{st}"])
    elif st == 0 and opt["pre3"]: fill = list(ST0)
    elif st < 8: fill = dma_ops(st + 2) + (take(opt["d7"]) if st == 7 else [])
    else: fill = take(opt["n8"] if st == 8 else opt["n9"])
    if st == opt["dst"]: fill = fill + take(opt["dn"])
    if opt["tch"] and st + opt["la"] < 10: fill.insert(opt["tpos"], touch)
    if st == opt["rls"]: fill = [r_loads] + fill if opt["rpos"] == 0 else fill + [r_loads]
    if st == opt["rjs"]:
        fill.insert(min(opt["rsp"], len(fill)), r_stores)
        fill = [r_reads] + fill
    if st == opt["rps"] and not D1: fill.insert(opt["rpp"], r_poll)
    if st == opt["rfs"] and opt["fpre"] >= 2: fill.insert(min(opt["fpre"] - 2, len(fill)), lambda: flag_store(sRFL, opt["rpk"] // 4))
    if st == opt["wts"]: fill.insert(min(opt["wtp"], len(fill)), wtouch)
    if st == opt["pvs"]: fill.append(pvtouch)
    if st == opt["xts"]: fill.insert(min(opt["xtp"], len(fill)), xtouch)
    WS_ = [int(c) for c in str(opt["wst"]).lstrip("x")]
    if st in WS_:
        def stag(st=st):
            m = sum(1 << k for k, c in enumerate(WS_) if c == st)
            if st == min(WS_):
                e(f"s_lshl_b32 s8, s2, 2")
                e(f"s_add_u32 s8, s8, s{sW}")
                if opt["wss"] == 1:
                    e(f"s_lshl_b32 s8, s8, 7")
                    e(f"v_lshlrev_b32 v250, 13, v{vL16}")
                elif opt["wss"] == 2:
                    e(f"v_lshl_add_u32 v251, v{vL16}, 1, s8")
                    e(f"v_and_b32 v251, 1023, v251")
                    e(f"v_lshlrev_b32 v251, 7, v251")
                    e(f"v_lshl_add_u32 v250, v{vL16}, 13, v251")
                    e(f"s_mov_b32 s8, 0")
                elif opt["wss"] == 3:
                    e(f"v_mul_u32_u24 v251, 37, v{vL16}")
                    e(f"v_lshrrev_b32 v251, 2, v251")
                    e(f"v_add_u32 v251, s8, v251")
                    e(f"v_and_b32 v251, 1023, v251")
                    e(f"v_lshlrev_b32 v251, 7, v251")
                    e(f"v_lshl_add_u32 v250, v{vL16}, 13, v251")
                    e(f"s_mov_b32 s8, 0")
                else:
                    e(f"s_mul_i32 s8, s8, {15*128}")
                    e(f"v_lshlrev_b32 v250, 3, v{vL16}")
                e(f"s_lshr_b32 s9, s2, {opt['wsh']}")
                e(f"s_and_b32 s9, s9, {len(WS_)-1}")
            e(f"s_bitcmp1_b32 {m}, s9")
            if opt["wsb"]:
                e(f"s_cbranch_scc0 L_ws{st}")
                e(f"s_mov_b64 exec, {(1 << 15) - 1}")
                e(f"buffer_load_dword v251, v250, {srd(sW2)}, s8 offen {opt['wtaux']}")
                e("s_mov_b64 exec, -1")
                e(f"L_ws{st}:")
                return
            e(f"s_cselect_b32 s10, s8, 1966080")
            e(f"s_mov_b64 exec, {(1 << 15) - 1}")
            e(f"buffer_load_dword v251, v250, {srd(sW2)}, s10 offen {opt['wtaux']}"); VM.issue("wt")
            e("s_mov_b64 exec, -1")
        fill.insert(min(opt["wtp"], len(fill)), stag)
    WX = [int(c) for c in str(opt["wx"]).lstrip("x")]
    for k, c in enumerate(WX):
        if c == st: fill.insert(min(opt["wxp"], len(fill)), wxtouch(k, len(WX)))
    if st == opt['sws']: fill.insert(min(opt['swp'], len(fill)), stouch)
    if st == opt["ot"]:
        def otch():
            if opt["otm"] == 1: e("s_mov_b64 exec, 1")
            e(f"buffer_load_dword v251, v{vOUT}, {srd(sOUT)}, s{sOB} offen"); VM.issue("ot")
            if opt["otm"] == 3: e(f"buffer_load_dword v251, v{vOUT2}, {srd(sOUT)}, s{sOB} offen offset:128"); VM.issue("ot")
            e("s_mov_b64 exec, -1")
        fill.append(otch)
    ex = [CLO[i] for i, c in enumerate(str(opt["clrs"]).lstrip("x")) if int(c) == st]
    for bi, es in enumerate(EMU):
        if es == st: ex += emu_ops(bi)
    if ex: fill = merge(fill, ex)
    h = (len(fill) + 1) // 2
    f0, f1 = fill[:h], fill[h:]
    if st == 8 and opt["rck"] == 1:
        k = 1 if opt["rps"] == 8 else 0
        f0, f1 = fill[:k], [r_check] + fill[k:]
    if opt["fp"] and st:
        c = [int(z) for z in str(opt["fp"]).lstrip("x")]
        assert sum(c) == 8
        if st == opt["rjs"]: c[-12] += 1
        if len(c) == 13:
            k = c.pop(0)
            pre, fill = fill[:k + (st == opt["rjs"])], fill[k + (st == opt["rjs"]):]
            if st == opt["rjs"]: fill.insert(0, pre.pop(0))
            for f in pre: f()
        h = sum(c[:6])
        half_body(1, rd_ops(st, 0), fill[:h], c[:6])
        half_body(0, rd_ops(st, 1), fill[h:], c[6:])
        continue
    half_body(1 if st else None, rd_ops(st, 0), f0)
    half_body(0, rd_ops(st, 1), f1)
stamp()
def silu_block(q, g2):
    a0 = vACC1 + 16*q + 8*g2
    bi = 2*q + g2
    if opt["rs"]: bi = 3*g2 + q
    tt = vS + (bi % 2) * 8
    pk = vRF + bi * 4
    ops = []
    if opt["pk"]:
        for r in range(0, 8, 2): ops.append(f"v_pk_mul_f32 {vr(tt+r,2)}, {vr(a0+r,2)}, s[{sPK}:{sPK+1}]")
        for r in range(8): ops.append(f"v_exp_f32 v{tt+r}, v{tt+r}")
        for r in range(0, 8, 2): ops.append(f"v_pk_add_f32 {vr(tt+r,2)}, {vr(tt+r,2)}, 1.0 op_sel_hi:[1,0]")
        for r in range(8): ops.append(f"v_rcp_f32 v{tt+r}, v{tt+r}")
        for r in range(0, 8, 2): ops.append(f"v_pk_mul_f32 {vr(tt+r,2)}, {vr(a0+r,2)}, {vr(tt+r,2)}")
    else:
        for r in range(8): ops.append(f"v_mul_f32 v{tt+r}, s{sL2E}, v{a0+r}")
        for r in range(8): ops.append(f"v_exp_f32 v{tt+r}, v{tt+r}")
        for r in range(8): ops.append(f"v_add_f32 v{tt+r}, 1.0, v{tt+r}")
        for r in range(8): ops.append(f"v_rcp_f32 v{tt+r}, v{tt+r}")
        for r in range(8): ops.append(f"v_mul_f32 v{tt+r}, v{a0+r}, v{tt+r}")
    if opt["r48"] and bi >= 4:
        for r in (0, 2, 1, 3): ops.append(f"v_cvt_pk_bf16_f32 v{pk+r}, v{tt+2*r}, v{tt+2*r+1}")
        ops.append(f"v_permlane32_swap_b32 v{pk}, v{pk+2}")
        ops.append("s_nop 0")
        ops.append(f"v_permlane32_swap_b32 v{pk+1}, v{pk+3}")
    else:
        for r in range(4): ops.append(f"v_cvt_pk_bf16_f32 v{pk+r}, v{tt+2*r}, v{tt+2*r+1}")
    nbs = str(opt["nb"]).lstrip("x")
    fill = take(int(nbs[bi] if len(nbs) > 1 else nbs))
    if opt["tsil"] and bi >= 6 - opt["tsil"]: fill = fill + tgroup_ops(len(TDONE))
    step = len(ops) // (len(fill) + 1) if fill else 0
    for i, l in enumerate(ops):
        if not opt["novalu"]: e(l)
        if fill and step and (i + 1) % step == 0: fill.pop(0)()
    for f in fill: f()
    so = sHS if q < 2 else sHS2
    def st_():
        if opt["nost"]: return
        if OW:
            e(f"buffer_store_dwordx4 {vr(pk,4)}, v{vHS}, {srd(sH)}, s{(sHS, 10, sHS2)[q]} offen offset:{g2*512} sc1"); VM.issue("hst")
            if q < 2: e(f"ds_write_b128 v{vOW+q}, {vr(pk,4)} offset:{g2*512}"); LG.issue("ow")
            return
        if opt["own"]:
            e(f"buffer_store_dwordx4 {vr(pk,4)}, v{vHS}, {srd(sH)}, s{(sHS, sHS1, sHS2)[q]} offen offset:{g2*512} sc1"); VM.issue("hst")
            if q < 2: e(f"ds_write_b128 v{vOW+q}, {vr(pk,4)} offset:{q*8192 + g2*512}"); LG.issue("ow")
            return
        if opt["r48"]:
            e(f"buffer_store_dwordx4 {vr(pk,4)}, v{vONE if q == 2 else vHS if g2 else vL16}, {srd(sH)}, s{sHS2 if bi in (2, 3, 5) else sHS} offen {opt['hsaux'].replace('-','')}"); VM.issue("hst")
            return
        if opt["r16"]:
            e(f"buffer_store_dwordx4 {vr(pk,4)}, v{vHS if g2 else vL16}, {srd(sH)}, s{so} offen offset:{(q%2)*2048} {opt['hsaux'].replace('-','')}"); VM.issue("hstA" if (opt["ab2"] and bi < opt["fa"] and not EMU) or (opt["rs"] == 1 and g2 == 0) else "hst")
            return
        e(f"buffer_store_dwordx4 {vr(pk,4)}, v{vHS}, {srd(sH)}, s{so} offen offset:{g2*512 + (q%2)*2048} {opt['hsaux'].replace('-','')}"); VM.issue("hstA" if opt["ab"] and q < 2 else "hst")
        if opt["hs2"]:
            e(f"buffer_store_dwordx4 {vr(pk,4)}, v{vHS}, {srd(sH)}, s{so} offen offset:{g2*512 + (q%2)*2048} {opt['hs2'].replace('-','')}"); VM.issue("hst")
    PEND.append(st_)
    if bi >= opt["sl"]:
        while PEND: PEND.pop(0)()
if opt["st0"]:
    e(f"s_cmp_lt_u32 s{sW}, {opt['st0']}")
    e(f"s_cselect_b32 s{sHS}, s{sHS}, {HREC}")
    e(f"s_cselect_b32 s{sHS2}, s{sHS2}, {HREC}")
if opt["r16"]:
    for i in range(12):
        mfma16(1, i, True)
        if opt["rfs"] == 10 and i == 4: VM.wait("rst"); flag_store(sRFL, opt["rpk"] // 4)
else:
    for q in range(3):
        for kk in range(2): mfma1(1, kk, q)
    e("s_nop 7")
stamp(k=4)
if opt["sts"] == 4: VM.drain(); stamp(k=4)
def cnt_add(tag, off):
    VM.wait(tag)
    e("s_mov_b64 exec, 1")
    e(f"ds_add_rtn_u32 v{vT+1}, v{vCN}, v{vONE} offset:{off}")
    e("s_mov_b64 exec, -1")
def cnt_flag(add):
    e("s_waitcnt lgkmcnt(0)"); LG.q = []
    e(f"v_readfirstlane_b32 s{sT0}, v{vT+1}")
    e(f"s_add_u32 s{sT1}, s{sFLG}, {add}")
    e(f"s_cmp_eq_u32 s{sT0}, 3")
    e(f"s_cselect_b32 s{sT1}, s{sT1}, {HREC}")
    flag_store(sT1)
def silu_mix():
    P = opt["sil"] == 1
    T = []; N = []
    def ln(t): return lambda: e(t)
    def mulA(b):
        a0 = vACC1 + 8*b; tt = vS + (b % 2) * 8
        if P: return [(f"m{b}{r}", [], ln(f"v_pk_mul_f32 {vr(tt+r,2)}, {vr(a0+r,2)}, s[{sPK}:{sPK+1}]")) for r in range(0, 8, 2)]
        return [(f"m{b}{r}", [], ln(f"v_mul_f32 v{tt+r}, s{sL2E}, v{a0+r}")) for r in range(8)]
    def add(b):
        tt = vS + (b % 2) * 8
        if P: return [(f"a{b}{r}", [f"e{b}{r+1}"], ln(f"v_pk_add_f32 {vr(tt+r,2)}, {vr(tt+r,2)}, 1.0 op_sel_hi:[1,0]")) for r in range(0, 8, 2)]
        return [(f"a{b}{r}", [f"e{b}{r}"], ln(f"v_add_f32 v{tt+r}, 1.0, v{tt+r}")) for r in range(8)]
    def fin(b):
        a0 = vACC1 + 8*b; tt = vS + (b % 2) * 8; pk = vRF + b * 4
        q, g2 = b // 2, b % 2
        m = []
        for r in range(0, 8, 2):
            if P: m.append([(f"f{b}{r}", [f"r{b}{r+1}"], ln(f"v_pk_mul_f32 {vr(tt+r,2)}, {vr(a0+r,2)}, {vr(tt+r,2)}"))])
            else: m.append([(f"f{b}{r+1-z}", [f"r{b}{r+z}"], ln(f"v_mul_f32 v{tt+r+z}, v{a0+r+z}, v{tt+r+z}")) for z in range(2)])
        c = [(f"c{b}{r}", [f"f{b}{2*r}"], ln(f"v_cvt_pk_bf16_f32 v{pk+r}, v{tt+2*r}, v{tt+2*r+1}")) for r in range(4)]
        def st_():
            e(f"buffer_store_dwordx4 {vr(pk,4)}, v{vHS}, {srd(sH)}, s{sHS if q < 2 else sHS2} offen offset:{g2*512 + (q%2)*2048} {opt['hsaux'].replace('-','')}"); VM.issue("hst")
        return m[0] + m[1] + [c[0]] + m[2] + [c[1]] + m[3] + [c[2], c[3], (f"s{b}", [], st_)]
    N += mulA(0)
    for b in range(6):
        tt = vS + (b % 2) * 8
        T += [(f"e{b}{r}", [f"m{b}{r & ~1 if P else r}"], ln(f"v_exp_f32 v{tt+r}, v{tt+r}")) for r in range(8)]
        T += [(f"r{b}{r}", [f"a{b}{r & ~1 if P else r}"], ln(f"v_rcp_f32 v{tt+r}, v{tt+r}")) for r in range(8)]
        N += add(b)
        if b < 5: N += mulA(b + 1)
        N += fin(b)
    done = {}
    I0 = len(O)
    def emit(x): x[2](); done[x[0]] = len(done)
    K = [int(c) for c in str(opt["silk"]).lstrip("x")]
    for i, t in enumerate(T):
        while not all(d in done for d in t[1]): emit(N.pop(0))
        emit(t)
        k = K[i % len(K)]
        while N and all(d in done and len(done) - done[d] >= opt["sild"] for d in N[0][1]) and (k > 0 or N[0][0][0] == "s"):
            if N[0][0][0] != "s": k -= 1
            emit(N.pop(0))
    for x in N: emit(x)
    O[I0-8:] = fix(O[I0-8:])
if opt["sil"]: silu_mix()
if opt["rs"]:
    for bi in range(6):
        if opt["rs"] == 1 and opt["fap"] == bi - 6: flagA()
        if bi == opt["rpb"]: assert opt["rpq"] < 0; r_poll()
        silu_block(bi % 3, bi // 3)
for q in range(3 if not opt["sil"] and not opt["rs"] else 0):
    for g2 in range(2):
        bi = 2*q + g2
        if opt["ab"] and not opt["afs"] and bi == 4 + opt["afp"]: cnt_add("hstA", 0); stamp(k=7)
        if opt["rfs"] == 11 + bi: VM.wait("rst"); flag_store(sRFL, opt["rpk"] // 4)
        if opt["ab2"] and opt["fas"] < 0 and bi == opt["fa"]: flagA()
        if bi >= len(EMU): silu_block(q, g2)
        if opt["ab"] and not opt["afs"] and bi == 4 + opt["afp"]: cnt_flag(0); stamp(k=7)
stamp(); stamp(k=4); stamp(k=8); stamp(k=9)
if opt["ab2"]:
    if opt["fas"] < 0 and opt["fa"] == 6: flagA()
elif not opt["spec"]:
    NT = min((48 - len(W2L)) // 4, opt["ntp"])
    PL = take(opt["post"])
    if opt["tpm"]:
        TL = []; TG = {}
        while len(TDONE) < NT:
            g = tgroup_ops(len(TDONE)); TL += g; TG[TDONE[-1]] = g
        PL = merge(PL[:opt["tpk"]], TL) + PL[opt["tpk"]:] if opt["tpm"] == 1 else TL + PL
        k = 0
        while k < len(PL):
            d = PL[k].__defaults__
            if len(d) == 2 and d[1] == 0 and WDEP[d[0]]:
                g = TG[WDEP[d[0]]]
                last = PL.index(g[-1])
                if last > k:
                    mv = [f for f in PL[k:last+1] if f in TL]
                    for f in mv: PL.remove(f)
                    PL[k:k] = mv; k += len(mv)
                def wt(t=WDEP[d[0]], z=0, y=0): LG.wait(t)
                PL.insert(k, wt); k += 1
            k += 1
    for i, f in enumerate(PL):
        if opt["rs"] == 1 and i == opt["fap"]: flagA()
        if D1 and i == opt["rpq"] and opt["rpl"] < 0: r_poll()
        if i == opt["pae"]:
            e(f"buffer_load_dword v{vPOLL}, v{vPA}, {srd(sH)}, s{sPOL} offen sc1"); VM.issue("poll")
        f()
    if opt["wb"]:
        VM.wait("hst")
        e("buffer_wbl2 sc1"); VM.issue("hst")
    if D1:
        while len(TDONE) < NT: tgroup(len(TDONE))
    stamp(k=8)
    if not opt["nhw"]: VM.wait("hst")
    stamp(k=8)
    stamp(k=4)
    if opt["sts"] == 4: VM.drain(); stamp(k=4)
    if opt["fb"]:
        if not opt["fpre"] and opt["rs"] != 1:
            e(f"s_cmp_eq_u32 s{sW}, 0")
            e(f"s_cselect_b32 s{sFLG}, s{sFLG}, {HREC}")
        if opt["own"]: LG.drain()
        if OW: LG.drain()
        e("s_barrier")
    else:
        e("s_mov_b64 exec, 1")
        e(f"ds_add_rtn_u32 v{vT+1}, v{vCN}, v{vONE} offset:{4 if opt['ab'] else 0}")
        e("s_mov_b64 exec, -1")
        if opt["ab"]: e(f"s_add_u32 s{sFLG}, s{sFLG}, {FLB}")
        for f in take(opt["mid"]): f()
        e("s_waitcnt lgkmcnt(0)")
        e(f"v_readfirstlane_b32 s{sT0}, v{vT+1}")
        e(f"s_cmp_eq_u32 s{sT0}, {3 if opt['nopoll'] < 2 else 9}")
        e(f"s_cselect_b32 s{sFLG}, s{sFLG}, {HREC}")
    if opt["nopoll"] == 3: e(f"s_mov_b32 s{sPOL}, {HREC}")
    flag_store(sFLG)
    if opt["fb"] == 2: e("s_barrier")
    stamp(); stamp(k=3); stamp(k=9)
else:
    for f in take(opt["fw"]): f()
    VM.wait("hst")
    e(f"s_lshl_b32 s{sT0}, s{sW}, 15")
    e(f"s_add_u32 s{sFLG}, s{sFLG}, s{sT0}")
    flag_store(sFLG)
    stamp()
N0 = 1 if OW else 0
HL = [(p, n) for p in range(4) for n in range(N0, 12)]
def hreg(p, n): return vH + (p*(12-N0) + n - N0)*4
def park(p, j): return [vACC2, 196, 216, 240][p] + 4*j if (p, j) != (3, 4) else 236
def ofr(p): return vr(152+4*p, 4) if opt['owv'] else ar(240+4*p, 4)
def own_reads():
    for p in range(4):
        e(f"ds_read_b128 {ofr(p)}, v{vRW} offset:{32768 + 4096 + p*1024}"); LG.issue(f"or{p}"); ORD.append(f"or{p}")
def own_ops(js):
    def mk(p, j):
        def f():
            LG.wait(f"or{p}"); LG.wait("t0")
            if j == 4: VM.wait("w0")
            if opt["nom"]: return
            mf2(vr(park(p, j), 4), 0, j, ofr(p), '0')
        return f
    return [mk(p, j) for p in range(4) for j in js]
def hload():
    if HL:
        p, n = HL.pop(0)
        if opt["rs"] == 1 and p == 0 and n == opt["pbn"]:
            e(f"buffer_load_dword v18, v{vPA}, {srd(sH)}, s{sPOL} offen sc1"); VM.issue("pollB")
        if opt["rs"] == 1 and (p, n) == (1, 0):
            stamp(k=9)
            if opt["rsf"]: VM.wait("pollB"); e("L_hq_go:")
            else: spin_fast("hq", 18, "pollB")
            stamp(k=9)
        if opt["noh"] and (p*12+n) % opt["noh"]: return
        e(f"buffer_load_dwordx4 {vr(hreg(p, n), 4)}, v{vHB+p}, {srd(sH)}, s{sSIG+n} offen {opt['haux'].replace('-','')}"); VM.issue(f"h{p}_{n}")
def mark(v):
    if not opt["stamps"] or opt["sts"]: return
    i = NST[0]; NST[0] += 1
    e(f"s_add_u32 s{72+2*i}, s74, {v}"); e(f"s_addc_u32 s{73+2*i}, s75, 0")
ACI = []; OOL = []
def allc_load(late=False):
    if opt["acb"] == 2 or (opt["acp"] >= 0) != late: return
    if opt["acb"] == 3:
        e("s_cmp_eq_u32 s2, 0")
        e("s_cbranch_scc1 L_aclo")
        e("L_acl:")
        OOL.extend(["L_aclo:", f"s_mov_b32 s{sT0}, {FL}", f"buffer_load_dword v{vAV}, v{vAC}, {srd(sH)}, s{sT0} offen sc1", "s_branch L_acl"])
        return
    if opt["acb"]:
        e("s_cmp_lg_u32 s2, 0")
        e("s_cbranch_scc1 L_acl")
        e(f"s_mov_b32 s{sT0}, {FL}")
        e(f"buffer_load_dword v{vAV}, v{vAC}, {srd(sH)}, s{sT0} offen sc1")
        e("L_acl:")
        VM.q.insert(0, "allc") if False else None
        ACI.append(len(VM.q))
        return
    e("s_cmp_eq_u32 s2, 0")
    e(f"s_cselect_b32 s{sT0}, {FL if D1 else RFL}, s{sH+2}")
    e(f"buffer_load_dword v{vAV}, v{vAC}, {srd(sH)}, s{sT0} offen sc1"); VM.issue("allc")
def p0_block(ML, pre):
    ML = list(ML)
    TL = []
    while D1 and len(TDONE) < 12 - opt["tin"]: TL += tgroup_ops(len(TDONE))
    for f in (merge(ML[:pre], TL) if opt["tmix"] else ML[:pre] + TL): f()
    if OW:
        for f in own_ops([4]): f()
    del ML[:pre]
    if D1 and not opt["tin"]: LG.drain()
    stamp()
    for n in range(N0, 12):
        assert (0, n) not in HL and not any(getattr(f, "__defaults__", None) and f.__defaults__[0] == n for f in ML), n
        late = max((f"h0_{n}", f"w{n}"), key=lambda t: len(VM.q) - 1 - VM.q[::-1].index(t) if t in VM.q else -1)
        VM.wait(late)
        TL = []
        if D1:
            assert f"t{n}" in TDONE
            LG.wait(f"t{n}")
            if len(TDONE) < 12: TL = tgroup_ops(len(TDONE))
        if n == N0 or n == 6: stamp(k=2)
        cnt = (len(ML) + 11 - n) // (12 - n)
        pos = {1: [opt["hj"]], 2: [1, 3], 3: [0, 2, 4], 4: [0, 1, 2, 3], 5: [0, 1, 2, 3, 4], 0: []}[cnt]
        for j in range(5):
            c = "0" if n == 0 else vr(vACC2+4*j, 4)
            mf2(vr(vACC2+4*j,4), n, j, vr(hreg(0, n),4), c)
            if j in pos: ML.pop(0)()
            elif TL: TL.pop(0)()
        for f in TL: f()
    assert not ML and not W2L
TP = []
def tstep(n):
    if not opt["tfm"]: return
    if not TP and len(TDONE) <= n - opt["tfm"] and len(TDONE) < 12 - opt["tlate"]: TP.extend(tgroup_ops(len(TDONE)))
    if TP: TP.pop(0)()
def late_d1():
    W5 = w5_ops()
    cnt = 0
    vP2 = vAV if opt["pqd"] or opt["rcl"] else vPOLL
    def poll():
        stamp(k=3)
        e(f"buffer_load_dword v{vP2}, v{vPA}, {srd(sH)}, s{sPOL} offen sc1"); VM.issue("poll")
    OM = []
    if OW: own_reads(); OM = own_ops(range(4))
    while W2L:
        n = W2L[0].__defaults__[0]
        if W2L[0].__defaults__[1] == 0 and WDEP[n]:
            while WDEP[n] not in TDONE + ORD: tgroup(len(TDONE))
            LG.wait(WDEP[n])
        if len(W2L) == opt["pqd"]: poll()
        if cnt == opt["rpl"]: r_poll()
        take(1)[0](); cnt += 1
        if OM and cnt > opt["owp"]: OM.pop(0)()
        if opt["tfm"]: tstep(n)
        elif cnt % opt["tl"] == 0 and len(TDONE) < n - 2: tgroup(len(TDONE))
    if opt["owp"] < 50:
        for f in OM: f()
        OM = []
    if not opt["rcl"]: r_check()
    else: assert opt["w5d"] == 12
    WD = W5[12-opt["w5d"]:]; del W5[12-opt["w5d"]:]
    def om(i):
        if 50 <= opt["owp"] < 90 and i >= opt["owp"] - 50:
            for _ in range(2):
                if OM: OM.pop(0)()
    for i, f in enumerate(W5[:opt["w5p"]]): f(); tstep(12 + i // 4); om(i)
    if not opt["pqd"]: poll()
    for i, f in enumerate(W5[opt["w5p"]:]): f(); tstep(12 + (i + opt["w5p"]) // 4); om(i + opt["w5p"])
    for f in TP: f()
    for f in OM: f()
    stamp(k=3)
    while len(TDONE) < 12 - opt['tlate']: tgroup(len(TDONE))
    if opt["hid"]:
        e("s_branch L_hid")
        spin_slow("hp", vP2, vPA, sPOL)
        if opt["rs"] == 1: spin_slow("hq", 18, vPA, sPOL)
        if opt["hid"] & 2:
            e("L_ac_c:")
            e(f"s_mov_b32 s{sT1}, {FL}")
            e(f"v_cmp_ne_u32 vcc, s{sTAG}, v{vAV}")
            e("s_cmp_eq_u64 vcc, 0")
            e(f"s_cbranch_scc1 L_ac_go")
            spin_slow("ac", vAV, vAC, sT1)
        if opt["al"]: e(".p2align 12")
        e("L_hid:")
    VM.wait("poll")
    stamp(k=3); stamp(k=9)
    stamp()
    if opt["hid"]: spin_fast("hp", vP2, "poll")
    else: spin_check("hp", vP2, vPA, "poll", sPOL, opt["nopoll"])
    stamp(); stamp(k=2); stamp(k=3); stamp(k=9)
    mark(1000)
    if opt["rs"] == 1: e(f"s_add_u32 s{sPOL}, s{sPOL}, {FLB2}")
    allc_load()
    if opt["c5"]:
        WDL.extend(WD); return
    ML = []; pre = 0
    for i in range(opt["hpre"] + 12 - N0):
        ML.append(hload)
        if WD and WD[0].__defaults__[0] == i: ML.append(WD.pop(0))
        if i == opt["hpre"] - 1: pre = len(ML)
    p0_block(ML, pre)
WDL = []
def late_path():
    if D1: return late_d1()
    if opt['skipw']: del W2L[-opt['skipw']:]
    if opt["sts"] == 6:
        stamp(k=6)
        i = 0
        while len(W2L) > opt["pollq"]:
            take(1)[0](); i += 1
            if i % 4 == 0 and i >= opt["dw"]:
                e(f"s_waitcnt vmcnt({opt['dw']})"); stamp(k=6)
    for f in take(max(0, len(W2L) - opt["pollq"])): f()
    stamp(k=3)
    if opt["sts"] == 3: VM.drain(); stamp(k=3)
    if opt["sts"] == 4: stamp(k=4); VM.drain(); stamp(k=4)
    if opt["sp"]:
        e(f"s_load_dword s6, s[12:13], s{sPOL} {opt['spg']}")
        e(f"s_add_u32 s{sT0}, s{sPOL}, 128")
        e(f"s_load_dword s7, s[12:13], s{sT0} {opt['spg']}")
        for f in take(len(W2L)): f()
        stamp(k=3)
        e("s_waitcnt lgkmcnt(0)")
        stamp(k=3)
        stamp()
        e(f"s_cmp_eq_u32 s6, s{sTAG}")
        e(f"s_cselect_b32 s6, s7, s6")
        e(f"s_cmp_eq_u32 s6, s{sTAG}")
        e("s_cbranch_scc1 L_hp_go")
        e(f"v_mov_b32 v{vPOLL}, s6")
        spin_check("hp", vPOLL, vPA, "poll", sPOL, opt["nopoll"])
    else:
        e(f"buffer_load_dword v{vPOLL}, v{vPA}, {srd(sH)}, s{sPOL} offen sc1"); VM.issue("poll")
        for f in take(len(W2L)): f()
        stamp(k=3)
        VM.wait("poll")
        stamp(k=3)
        stamp()
        spin_check("hp", vPOLL, vPA, "poll", sPOL, opt["nopoll"])
    stamp(); stamp(k=2); stamp(k=3)
    mark(1000)
    allc_load()
    p0_block([hload] * (opt["hpre"] + 12), opt["hpre"])
LATE = []
if opt["eq"]:
    import re
    for f in take(len(W2L) - opt["eq"]): f()
    e(f"buffer_load_dword v{vPOLL}, v{vPA}, {srd(sH)}, s{sPOL} offen sc1"); VM.issue("poll")
    for f in take(opt["ec"]): f()
    VM.wait("poll")
    e(f"v_cmp_ne_u32 vcc, s{sTAG}, v{vPOLL}")
    e("s_cmp_eq_u64 vcc, 0" if not opt["nopoll"] else "s_cmp_eq_u32 s2, s2")
    e("s_cbranch_scc0 L_late")
    sv = (list(VM.q), list(W2L), list(HL), NST[0])
    LATE = ["L_late:"] + capture(late_path) + ["s_branch L_p1"]
    endq, endn = list(VM.q), NST[0]
    VM.q, W2L[:], HL[:], NST[0] = sv
    stamp(); stamp(); stamp(k=2); mark(0)
    allc_load()
    m = re.match(r"h(\d+)w(\d+)", opt["eil"])
    ML = []; nh = 12; ws = take(len(W2L))
    while nh or ws:
        k = min(nh, int(m.group(1))); ML += [hload] * k; nh -= k
        k = int(m.group(2)); ML += ws[:k]; del ws[:k]
    ML += [hload] * opt["hpre"]
    p0_block(ML, opt["epre"])
    assert NST[0] == endn, (NST[0], endn)
    k = min(len(VM.q), len(endq))
    assert VM.q[-k:] == endq[-k:] and all(t.startswith("h1") for t in VM.q + endq), (VM.q, endq)
    if len(endq) > len(VM.q): VM.q = endq
    e("L_p1:")
elif opt["spec"]:
    allc_load()
    for f in take(len(W2L) - opt["wl"]): f()
    stamp(); stamp(); stamp(k=2); mark(1000)
    ws = take(len(W2L))
    p0_block([hload] * opt["hpre"] + merge(ws, [hload] * 12) if ws else [hload] * (opt["hpre"] + 12), opt["hpre"])
elif not opt["ab"] and not opt["dfw"] and not opt["ab2"]:
    late_path()
def allc_check():
    if opt["acb"] == 2: return
    if opt["hid"] & 2:
        assert "allc" not in VM.q
        e("s_cmp_eq_u32 s2, 0")
        e("s_cbranch_scc1 L_ac_c")
        e("L_ac_go:")
        return
    if opt["acb"] == 3:
        e("s_cmp_eq_u32 s2, 0")
        e("s_cbranch_scc1 L_aco")
        e("L_acb:")
        def body():
            e(f"s_mov_b32 s{sT1}, {FL}")
            spin_check("ac", vAV, vAC, "allc", sT1)
        OOL.extend(["L_aco:"] + capture(body) + ["s_branch L_acb"])
        return
    e("s_cmp_lg_u32 s2, 0")
    e("s_cbranch_scc1 L_ac_go")
    assert "allc" not in VM.q
    if D1: e(f"s_mov_b32 s{sT1}, {FL}")
    spin_check("ac", vAV, vAC, "allc", sT1 if D1 else None)
def phase2_new():
    B1, B2, MA = opt["b1"], opt["b2"], opt["madd"]
    for p in range(1, 4):
        ac = vACC2 + (p % 2) * 20
        pa = vACC2 + ((p-1) % 2) * 20
        slots = {(n, j): [] for n in range(12) for j in range(5)}
        if opt["wb64"]:
            for k in range(10):
                def w(k=k):
                    e(f"ds_write_b64 v{vRW if p < 3 else vRW2}, {vr(pa+2*k,2)} offset:{((p-1)%2)*32768 + (k//2)*1024 + (k%2)*8}")
                    LG.issue("red")
                i = 5*N0 + opt["wg0"] + k * opt["wgs"]
                assert i < 5 * min(B1, B2)
                slots[(i // 5, i % 5)].append(w)
        elif p > 0:
            PW = [(1, 0), (1, 2), (1, 4), (2, 1), (2, 3)]
            if opt["wq"]:
                q = str(opt["wq"]).lstrip("x")
                i0, di = int(q[2*p-2], 36), int(q[2*p-1], 36)
                PW = [((i0 + k*di) // 5, (i0 + k*di) % 5) for k in range(5)]
            for jj, pos in enumerate(PW):
                def w(jj=jj):
                    if D1: e(f"ds_write_b128 v{vRW if p < 3 else vRW2}, {vr(pa+4*jj,4)} offset:{((p-1)%2)*32768 + jj*1024}")
                    else: e(f"ds_write_b128 v{vRW}, {vr(pa+4*jj,4)} offset:{(p-1)*5120 + jj*1024}")
                    LG.issue("red")
                slots[(pos[0] + N0, pos[1])].append(w)
                assert pos[0] + N0 < (12, B1, B2)[p-1]
        def rd(pp, j, dst):
            def f():
                e(f"ds_read_b128 {vr(dst, 4)}, v{vRR+pp} offset:{j*1024}"); LG.issue(f"rr{pp}{j}")
            return f
        if p == 2:
            k = 0
            for j in range(5):
                for pp in range(2):
                    slots[(B1 + k // 5, k % 5)].append(rd(pp, j, vH + pp*20 + 4*j)); k += opt["rds"]
            assert B1 + 3 <= 8 or opt["wq"]
            for i in range(20):
                def a(i=i):
                    LG.wait(f"rr1{i//4}")
                    if OW and opt["ada"] == 7:
                        e(f"v_add_f32 v{pa+i}, v{vH+i}, v{vH+20+i}")
                        if i: e(f"v_add_f32 v{pa+i-1}, v{pa+i-1}, v{park(3, (i-1)//4) + (i-1)%4}")
                        if i == 19: e(f"v_add_f32 v{pa+i}, v{pa+i}, v{park(3, 4) + 3}")
                        return
                    if OW:
                        jt, r = i // 4, (i % 2) * 2
                        d = vr(pa + 4*jt + r, 2)
                        if i % 4 < 2: e(f"v_pk_add_f32 {d}, {vr(vH + 4*jt + r, 2)}, {vr(vH + 20 + 4*jt + r, 2)}")
                        else: e(f"v_pk_add_f32 {d}, {d}, {vr(park(3, jt) + r, 2)}")
                        return
                    e(f"v_add_f32 v{pa+i}, v{vH+i}, v{vH+20+i}")
                i2 = 5*opt["ad0"] + i * (60 - 5*opt["ad0"]) // 20
                assert i2 > 5*B1 + (2*(i//4) + 1)*opt["rds"]
                slots[(i2 // 5, i2 % 5)].append(a)
        if p == 3:
            for j in range(5): slots[(B2, j)].append(rd(2, j, vH + 4*j))
            if opt["smd"]:
                MA = -1
                for j in range(5):
                    for r in range(4):
                        def a(j=j, r=r):
                            LG.wait(f"rr2{j}")
                            e(f"v_add_f32 v{ac+4*j+r}, v{ac+4*j+r}, v{vH+4*j+r}")
                        i = (opt["smd"] + j) * 5 + j + 2 + r // 2 if opt["smd"] + 5 < 12 else opt["smd"] * 5 + 3 * j + (2*j) % 5 * 0 + 99
                        slots[(i // 5, i % 5)].append(a)
        K4 = opt["k4"] if p == 3 else 0
        if K4: MA = -1; I0 = len(O)
        for n in range(N0, 12 - (opt["k2"] if K4 else 0)):
            if (p == 2 and n == B1) or (p == 3 and n == B2):
                if p == 3: allc_check(); stamp(k=2)
                LG.drain(); e("s_barrier")
                if p == 3: stamp(k=2)
            VM.wait(f"h{p}_{n}")
            if p * 12 + n == opt["acp"]: allc_load(True)
            if p * 12 + n == opt["es"]:
                e(f"s_lshl_b32 s6, s{sMT}, 2")
                e(f"s_add_u32 s6, s6, s{sOWN}")
                e(f"s_mul_i32 s6, s6, {16*1280}")
                e(f"s_mul_i32 s7, s{sFT}, 160")
                e(f"s_add_u32 s6, s6, s7")
                e(f"s_cmp_lt_u32 s{sW}, {opt['ost']}")
                e(f"s_cselect_b32 s6, s6, 2621440")
                ax = opt['esaux'].replace('-', '')
                for b in range(2):
                    e(f"buffer_store_dwordx4 {vr(vH+40+4*b,4)}, v{vOUT}, {srd(sOUT)}, s6 offen offset:{64*b} {ax}"); VM.issue("es")
                e(f"buffer_store_dwordx2 {vr(vH+40,2)}, v{vOUT2}, {srd(sOUT)}, s6 offen offset:128 {ax}"); VM.issue("es")
            if n == N0 or (n == 6 and p < 3): stamp(k=2)
            def madd(j):
                LG.wait(f"rr2{j}")
                for r in range(4): e(f"v_add_f32 v{ac+4*j+r}, v{ac+4*j+r}, v{vH+4*j+r}")
            mid = p == 3 and n == MA
            if mid: e("s_nop 3"); madd(0)
            for j in range(5):
                c = "0" if n == 0 and p < 3 else vr(ac+4*j, 4)
                if OW and n == 1 and p < 3: c = vr(park(p, j), 4)
                if mid:
                    if j < 4: madd(j+1)
                    else: e("s_nop 0")
                if j < 4 or n < 12 - K4: mf2(vr(ac+4*j,4), n, j, vr(hreg(p, n),4), c)
                if j == opt["hj"]: hload()
                for f in slots[(n, j)]: f()
                if K4 and opt["a4"] and n == opt["a4"] and j < 4:
                    assert n > 12 - K4 and n > B2
                    LG.wait("rr24"); e(f"v_add_f32 v{ac+16+j}, v{ac+16+j}, v{vH+16+j}")
    if opt["k4"]:
        tile_tail()
        O[I0:] = fix(O[I0:])
    else: out_tail()
def tile_tail():
    K2, K4 = opt["k2"], opt["k4"]
    assert opt["bp"] and opt["t4"] and not HL
    ac = vACC2 + 20; pk = vH + 64
    ML = [(n, j) for g in ((0, 1), (2, 3)) for n in range(12 - K2, 12) for j in g] + [(n, 4) for n in range(12 - K4, 12)]
    def add(j):
        def mk(r):
            def f(): LG.wait(f"rr2{j}"); e(f"v_add_f32 v{ac+4*j+r}, v{ac+4*j+r}, v{vH+4*j+r}")
            return f
        return [mk(r) for r in range(4)]
    def ln(t): return lambda: e(t)
    def cvt(j): return [ln(f"v_cvt_pk_bf16_f32 v{pk+2*j+r}, v{ac+4*j+2*r}, v{ac+4*j+2*r+1}") for r in range(2)]
    def sw(b): return [ln(f"v_permlane32_swap_b32 v{pk+4*b+r}, v{pk+4*b+2+r}") for r in range(2)]
    def bp(b):
        def mk(r):
            def f(): e(f"ds_bpermute_b32 v{pk+16+4*b+r}, v{vL16b}, v{pk+4*b+r}"); LG.issue(f"bp{b}")
            return f
        return [mk(r) for r in (0, 2, 1, 3)]
    def st(b):
        def f():
            LG.wait(f"bp{b}")
            e(f"buffer_store_dwordx4 {vr(pk+16+4*b,4)}, v{vOUT}, {srd(sOUT)}, s{sOB} offen offset:{64*b} {opt['outaux']}")
        return [f]
    fd = opt["fd"]
    Qo = [(0, f) for f in ([] if opt["a4"] else add(4))] + [(fd - 1, f) for f in add(2) + add(3)]
    n23 = len(Qo)
    Qo += [(2*K2 + fd - 1, f) for f in add(0) + add(1) + cvt(0) + cvt(1) + sw(0) + bp(0)]
    Qo += [(4*K2 + fd - 1, f) for f in cvt(2) + cvt(3) + sw(1) + bp(1) + st(0)]
    done = 0
    for i, (n, j) in enumerate(ML):
        if i == 2*K2:
            while done < n23: Qo.pop(0)[1](); done += 1
        VM.wait(f"h3_{n}")
        mf2(vr(ac+4*j,4), n, j, vr(hreg(3, n),4), vr(ac+4*j,4))
        for _ in range(opt["fr"]):
            if Qo and Qo[0][0] <= i: Qo.pop(0)[1](); done += 1
    stamp(); stamp(k=2)
    for _, f in Qo: f()
    for f in cvt(4): f()
    for r in range(4):
        e(f"buffer_store_short{'_d16_hi' if r % 2 else ''} v{pk+8+r//2}, v{vOUT2}, {srd(sOUT)}, s{sOB2} offen offset:{128 + r*1280} {opt['outaux'] if opt['outa2'] == '=' else opt['outa2'].replace('-','')}")
    st(1)[0]()
def out_tail():
    stamp(); stamp(k=2)
    if opt["enc"]: stamp(True)
    ac = vACC2 + 20
    pk = vH + 64
    def cvt(j):
        for r in range(2): e(f"v_cvt_pk_bf16_f32 v{pk+2*j+r}, v{ac+4*j+2*r}, v{ac+4*j+2*r+1}")
    def swp(b):
        e(f"v_permlane32_swap_b32 v{pk+4*b}, v{pk+4*b+2}")
        e(f"v_permlane32_swap_b32 v{pk+4*b+1}, v{pk+4*b+3}")
        if opt["enc"]:
            e("s_waitcnt lgkmcnt(0)")
            e(f"v_lshrrev_b32 v{vT+1}, 4, v{vL16}")
            for r in range(4):
                i = 4*b + r
                e(f"v_mov_b32 v{vT}, s{72+2*i}")
                e("s_mov_b32 exec_lo, 0")
                e(f"v_mov_b32 v{vT}, s{72+2*min(i+8, 14)}")
                e("s_mov_b32 exec_lo, -1")
                e(f"v_lshrrev_b32 v{vT}, v{vT+1}, v{vT}")
                e(f"v_bfi_b32 v{pk+4*b+r}, 1, v{vT}, v{pk+4*b+r}")
        if opt["ofk"]:
            e(f"buffer_store_dwordx4 {vr(pk+4*b,4)}, v{vL16b if b else vOUT}, {srd(sOUT)}, s{sOB} offen {opt['outaux']}"); return
        e(f"buffer_store_dwordx4 {vr(pk+4*b,4)}, v{vOUT}, {srd(sOUT)}, s{sOB} offen offset:{64*b} {opt['outaux']}")
    if opt["bp"]:
        assert not opt["enc"]
        def sw(b):
            e(f"v_permlane32_swap_b32 v{pk+4*b}, v{pk+4*b+2}")
            e(f"v_permlane32_swap_b32 v{pk+4*b+1}, v{pk+4*b+3}")
        def bp(b, n):
            for r in range(n):
                e(f"ds_bpermute_b32 v{pk+16+4*b+r}, v{vL16b}, v{pk+4*b+r}"); LG.issue(f"bp{b}")
        def st(b):
            LG.wait(f"bp{b}")
            if b < 2: e(f"buffer_store_dwordx4 {vr(pk+16+4*b,4)}, v{vOUT}, {srd(sOUT)}, s{sOB} offen offset:{64*b} {opt['outaux']}")
            else: e(f"buffer_store_dwordx2 {vr(pk+24,2)}, v{vOUT2}, {srd(sOUT)}, s{sOB2} offen offset:128 {opt['outaux']}")
        e("s_nop 3")
        if opt["t4"]:
            cvt(0); cvt(1); cvt(2); sw(0); cvt(3); bp(0, 4); sw(1); cvt(4); bp(1, 4)
            for r in range(4):
                e(f"buffer_store_short{'_d16_hi' if r % 2 else ''} v{pk+8+r//2}, v{vOUT2}, {srd(sOUT)}, s{sOB2} offen offset:{128 + r*1280} {opt['outaux'] if opt['outa2'] == '=' else opt['outa2'].replace('-','')}")
            st(0); st(1)
            return
        cvt(0); cvt(1); cvt(2); sw(0); cvt(3); bp(0, 4); cvt(4); sw(1); bp(2, 2); bp(1, 4); st(0); st(2); st(1)
        return
    e("s_nop 3")
    cvt(0); cvt(1); cvt(2); swp(0); cvt(3); cvt(4); swp(1)
    e(f"buffer_store_dwordx2 {vr(pk+8,2)}, v{vOUT2}, {srd(sOUT)}, s{sOB2 if D1 else sOB} offen offset:128 {opt['outaux']}")
def phase2_c():
    B1, B2, MA = opt["b1"], opt["b2"], opt["madd"]
    hp = opt["hpre"]
    ML = []
    WD = list(WDL)
    for i in range(48):
        g = [hload]
        k = 12 - len(WD)
        if WD and (i >= opt["w5s"] + (k - (12 - len(WDL))) * opt["w5k"] or i >= 24 + k): g.append(WD.pop(0))
        ML.append(g)
    assert not WD
    TL = []
    while len(TDONE) < 12: TL += tgroup_ops(len(TDONE))
    pre = [f for g in ML[:hp] for f in g]
    if opt["rcl"]:
        assert len(pre) == hp
        pre.append(r_check)
    for f in merge(pre, TL): f()
    del ML[:hp]
    LG.drain()
    stamp()
    A5 = 240
    def wr(blk, jj, src):
        def f():
            e(f"ds_write_b128 v{vRW if blk < 2 else vRW2}, {src} offset:{(blk%2)*32768 + jj*1024}"); LG.issue("red")
        return f
    def rd(pp, j, dst):
        def f():
            e(f"ds_read_b128 {vr(dst, 4)}, v{vRR+pp} offset:{j*1024}"); LG.issue(f"rr{pp}{j}")
        return f
    for p in range(4):
        ac = vACC2 + (p % 2) * 20
        pa = vACC2 + ((p-1) % 2) * 20
        NM = [4, 4, 7, 5][p]
        slots = {(n, j): [] for n in range(12) for j in range(NM)}
        def put(i0, step, fs):
            for k, f in enumerate(fs):
                i = i0 + k * step
                slots[(i // NM, i % NM)].append(f)
        if p > 0:
            ws = [wr(p-1, jj, vr(pa+4*jj, 4)) for jj in range(4)]
            if p == 3: ws += [wr(b, 4, ar(A5+4*b, 4)) for b in range(3)]
            put(NM, 2, ws)
            if p == 3: assert NM + 2*6 < B2 * NM
        if p == 2:
            assert B1 >= 4
            put(B1 * NM, 1, [rd(pp, j, vH + pp*48 + 4*j) for j in range(4) for pp in range(2)])
            def mk(i):
                def a():
                    LG.wait(f"rr1{i//4}")
                    e(f"v_add_f32 v{pa+i}, v{vH+i}, v{vH+48+i}")
                return a
            put(8 * NM, 1, [mk(i) for i in range(16)])
        if p == 3:
            put(B2 * NM, 1, [rd(pp, 4, vH + 16 + 4*pp) for pp in range(3)] + [rd(2, j, vH + 4*j) for j in range(4)])
            def mk(i):
                def a():
                    LG.wait(f"rr{1 + i//4}4")
                    e(f"v_add_f32 v{vH+16+i%4}, v{vH+16+i%4}, v{vH+20+i}")
                return a
            put((MA - 2) * NM, 1, [mk(i) for i in range(8)])
            assert MA - 2 >= B2 + 2
        for n in range(12):
            if (p == 2 and n == B1) or (p == 3 and n == B2):
                if p == 3: allc_check(); stamp(k=2)
                LG.drain(); e("s_barrier")
                if p == 3: stamp(k=2)
            VM.wait(f"h{p}_{n}")
            if n == 0 or (n == 6 and p < 3): stamp(k=2)
            def madd(j):
                LG.wait(f"rr2{j}")
                for r in range(4): e(f"v_add_f32 v{ac+4*j+r}, v{ac+4*j+r}, v{vH+4*j+r}")
            mid = p == 3 and n == MA
            if mid: e("s_nop 3"); madd(0)
            g = ML.pop(0) if ML else []
            for j in range(NM):
                if j < 4 or p == 3:
                    d = vr(ac+4*j, 4); b = p
                    c = "0" if n == 0 and (p < 3 or j == 4) else d
                else:
                    b = (j - 2) % 3
                    d = ar(A5+4*b, 4); c = "0" if n == 0 else d
                    assert not any(f is not hload and f.__defaults__[0] == n for gg in ML + [g] for f in gg), n
                    VM.wait(f"w{n}")
                if mid:
                    if j < 4: madd(j+1)
                    else: e("s_nop 0")
                e(f"v_mfma_f32_16x16x32_bf16 {d}, {ar(n*20+4*min(j,4),4)}, {vr(vH+(b*12+n)*4,4)}, {c}")
                if g and j in (opt["hj"], 3): g.pop(0)()
                for f in slots[(n, j)]: f()
            assert not g
    out_tail()
def phase2_ab():
    OA = opt["owna"]
    NE = opt["ne"]; NL = 12 - NE
    items = [(p, n) for p in range(3) for n in range(NE)] + [(3, n) for n in range(OA)]
    NA = len(items)
    items += [(p, n) for p in range(3) for n in range(NE, 12)] + [(3, n) for n in range(OA, 12)]
    NS = 36; vH2 = 112
    acc = lambda p, j: 24 + 20*p + 4*j
    hp = opt["hpre"]
    HI = list(range(48))
    seen = set()
    I0 = 0
    def own_mf(k):
        if not opt["own"] or k != opt["omp"]: return
        VM.wait("w0")
        for p in range(4):
            LG.wait(f"or{p}")
            for j in range(5):
                e(f"v_mfma_f32_16x16x32_bf16 {vr(acc(p,j),4)}, {ar(4*j,4)}, {vr(vH2+p*4,4)}, 0")
    if opt["own"]:
        items = [(p, 0) for p in range(4)] + [(p, n) for p in range(4) for n in range(1, 12)]
        HI = HI[4:]; I0 = 4; seen = {0, 1, 2, 3}
        for p in range(4):
            e(f"ds_read_b128 {vr(vH2+p*4, 4)}, v{vOW+2} offset:{p*1024}"); LG.issue(f"or{p}")
    def hl():
        if not HI: return
        i = HI.pop(0); p, n = items[i]
        if i == NA and not opt["dfw"]:
            spin_check("hpb", vPOLL, vPA, "pollB", sPOL, opt["nopoll"]); stamp(k=7)
        e(f"buffer_load_dwordx4 {vr(vH2 + (i % NS)*4, 4)}, v{vHB+p}, {srd(sH)}, s{sSIG+n} offen {opt['haux'].replace('-','')}"); VM.issue(f"h{i}")
    if opt["pae"] < 0:
        for f in take(max(0, len(W2L) - opt["pa"])): f()
        e(f"buffer_load_dword v{vPOLL}, v{vPA}, {srd(sH)}, s{sPOL} offen sc1"); VM.issue("poll")
        for f in take(opt["ec"]): f()
    own_mf(0)
    VM.wait("poll")
    stamp(); stamp(k=7)
    spin_check("hp", vPOLL, vPA, "poll", sPOL, opt["nopoll"])
    stamp(); stamp(k=2); stamp(k=7)
    e(f"s_add_u32 s{sPOL}, s{sPOL}, {FLB}")
    allc_load()
    for _ in range(hp): hl()
    for f in take(opt["wsk"]): f()
    own_mf(1)
    stamp()
    slots = {(i, j): [] for i in range(48) for j in range(5)}
    if opt["own"]: NA = 37
    L3 = NA + 3*NL
    for p in range(3):
        i0 = NA + NL*(p+1) if NL else NE*(p+1)
        if opt["own"]: i0 = 4 + 11*(p+1)
        for jj, (di, j) in enumerate([(1, 0), (1, 2), (1, 4), (2, 1), (2, 3)]):
            def w(jj=jj, p=p):
                e(f"ds_write_b128 v{vRW}, {vr(acc(p,jj),4)} offset:{p*5120 + jj*1024}"); LG.issue("red")
            slots[(i0 + di, j)].append(w)
    IB = L3 + opt["rb"]
    k = 0
    rest = 48 - IB
    assert rest >= 1
    rds = []
    for j in range(5):
        for pp in range(3):
            def f(pp=pp, j=j):
                e(f"ds_read_b128 {vr(acc(pp,j), 4)}, v{vRR+pp} offset:{j*1024}"); LG.issue(f"rr{j}")
            rds.append(f)
    per = 1 if rest >= 7 else 3
    for k, f in enumerate(rds): slots[(IB + k // per // 5, k // per % 5)].append(f)
    adds = []
    for j in range(5):
        for pp in (1, 2):
            for r in (0, 2):
                def a(j=j, pp=pp, r=r):
                    LG.wait(f"rr{j}")
                    if opt["epk"]: e(f"v_pk_add_f32 {vr(acc(0,j)+r,2)}, {vr(acc(0,j)+r,2)}, {vr(acc(pp,j)+r,2)}")
                    else:
                        for z in range(2): e(f"v_add_f32 v{acc(0,j)+r+z}, v{acc(0,j)+r+z}, v{acc(pp,j)+r+z}")
                adds.append(a)
    MA = 47 if rest >= 7 else None
    if MA:
        a0 = (MA - 3) * 5 - 5
        for k, f in enumerate(adds): slots[((a0 + k) // 5, (a0 + k) % 5)].append(f)
    for i, (p, n) in enumerate(items):
        if i < I0: continue
        if i == IB:
            allc_check(); stamp(k=2)
            LG.drain(); e("s_barrier")
            stamp(k=2)
        assert i not in HI and not any(f.__defaults__[0] == n for f in W2L), (i, n)
        late = max((f"h{i}", f"w{n}"), key=lambda t: len(VM.q) - 1 - VM.q[::-1].index(t) if t in VM.q else -1)
        VM.wait(late)
        if i % 8 == 0: stamp(k=2)
        def madd(j):
            if opt["epk"]:
                for r in (0, 2): e(f"v_pk_add_f32 {vr(acc(3,j)+r,2)}, {vr(acc(3,j)+r,2)}, {vr(acc(0,j)+r,2)}")
            else:
                for r in range(4): e(f"v_add_f32 v{acc(3,j)+r}, v{acc(3,j)+r}, v{acc(0,j)+r}")
        mid = i == MA
        if mid: e("s_nop 3"); madd(0)
        for j in range(5):
            c = vr(acc(p,j), 4) if p in seen else "0"
            if mid:
                if j < 4: madd(j+1)
                else: e("s_nop 1")
            e(f"v_mfma_f32_16x16x32_bf16 {vr(acc(p,j),4)}, {ar(n*20+4*j,4)}, {vr(vH2+(i % NS)*4,4)}, {c}")
            if j == opt["hj"]: hl()
            if j == 3 and i % opt["wr"] == 0:
                for f in take(1): f()
            if j == 4 and i == opt["pb"] and not opt["dfw"]:
                e(f"buffer_load_dword v{vPOLL}, v{vPA}, {srd(sH)}, s{sPOL} offen sc1"); VM.issue("pollB")
            for f in slots[(i, j)]: f()
        seen.add(p)
    stamp(); stamp(k=2); stamp(k=7)
    if opt["enc"]: stamp(True)
    ac = acc(3, 0)
    pk = vH2 + 64
    if not MA:
        for f in adds: f()
        for j in range(5): madd(j)
    def cvt(j):
        for r in range(2): e(f"v_cvt_pk_bf16_f32 v{pk+2*j+r}, v{ac+4*j+2*r}, v{ac+4*j+2*r+1}")
    def swp(b):
        e(f"v_permlane32_swap_b32 v{pk+4*b}, v{pk+4*b+2}")
        e(f"v_permlane32_swap_b32 v{pk+4*b+1}, v{pk+4*b+3}")
        if opt["enc"]:
            e("s_waitcnt lgkmcnt(0)")
            e(f"v_lshrrev_b32 v{vT+1}, 4, v{vL16}")
            for r in range(4):
                i = 4*b + r
                e(f"v_mov_b32 v{vT}, s{72+2*i}")
                e("s_mov_b32 exec_lo, 0")
                e(f"v_mov_b32 v{vT}, s{72+2*min(i+8, 14)}")
                e("s_mov_b32 exec_lo, -1")
                e(f"v_lshrrev_b32 v{vT}, v{vT+1}, v{vT}")
                e(f"v_bfi_b32 v{pk+4*b+r}, 1, v{vT}, v{pk+4*b+r}")
        e(f"buffer_store_dwordx4 {vr(pk+4*b,4)}, v{vOUT}, {srd(sOUT)}, s{sOB} offen offset:{64*b} {opt['outaux']}")
    e("s_nop 3")
    cvt(0); cvt(1); cvt(2); swp(0); cvt(3); cvt(4); swp(1)
    e(f"buffer_store_dwordx2 {vr(pk+8,2)}, v{vOUT2}, {srd(sOUT)}, s{sOB} offen offset:128 {opt['outaux']}")
def phase2_ab2():
    NA = opt["ab2"]; OA = opt["oa"]
    RING = 24; vR = 64; PK = 24
    vPB = 18
    acc = lambda p, j=0: 160 + 20*p + 4*j
    W5 = w5_ops()
    def nof(f): return f.__defaults__[0]
    def pollA():
        stamp(k=9)
        e(f"buffer_load_dword v{vPB}, v{vPA}, {srd(sH)}, s{sPOL} offen sc1"); VM.issue("poll")
    def dep(f):
        if len(f.__defaults__) == 2 and f.__defaults__[1] == 0 and WDEP[nof(f)]:
            while WDEP[nof(f)] not in TDONE: tgroup(len(TDONE))
            LG.wait(WDEP[nof(f)])
    LA = [f for f in W2L if nof(f) < NA]
    LB = [f for f in W2L if nof(f) >= NA]
    X = LA + [r_check] + W5[:NA]
    R = []
    for n in range(NA, 12): R += [f for f in LB if nof(f) == n] + [W5[n]]
    X += R[:opt["xb"]]; R = R[opt["xb"]:]
    X.insert(len(X) - opt["qa"], pollA)
    def run(f):
        if f in W2L: dep(f); W2L.remove(f)
        f()
    r_poll()
    NT = sum(1 for n in range(12) if not any(nof(f) == n for f in W2L))
    TL = []
    while len(TDONE) < NT: TL += tgroup_ops(len(TDONE))
    PL = X[:opt["post"]]; X = X[opt["post"]:]
    if opt["fas"] < 0 and opt["fa"] > 6: PL.insert(opt["fa"] - 6, flagA)
    for f in merge(PL, TL):
        run(f)
    stamp(k=9)
    VM.wait("hst")
    stamp(k=9)
    e("s_barrier")
    flag_store(sFLG)
    if opt["fb"] == 2: e("s_barrier")
    stamp()
    cnt = 0
    for f in X:
        run(f); cnt += 1
        n = len(TDONE)
        if cnt % opt["tl"] == 0 and n < NA - opt["tlate"] and not any(nof(g) <= n + 1 for g in W2L): tgroup(n)
    while len(TDONE) < NA - opt["tlate"]: tgroup(len(TDONE))
    e("s_branch L_hid")
    spin_slow("hp", vPB, vPA, sPOL)
    spin_slow("hq", vPB, vPA, sPOL)
    e("L_ac_c:")
    e(f"s_mov_b32 s{sT1}, {FL}")
    e(f"v_cmp_ne_u32 vcc, s{sTAG}, v{vAV}")
    e("s_cmp_eq_u64 vcc, 0")
    e(f"s_cbranch_scc1 L_ac_go")
    spin_slow("ac", vAV, vAC, sT1)
    if opt["al"]: e(".p2align 12")
    e("L_hid:")
    VM.wait("poll")
    stamp(); stamp(k=9)
    if opt["fake"] & 1: e("L_hp_go:")
    else: spin_fast("hp", vPB, "poll")
    stamp(); stamp(k=2); stamp(k=9)
    mark(1000)
    e(f"s_add_u32 s{sPOL}, s{sPOL}, {FLB2}")
    allc_load()
    items = [(p, n) for p in range(3) for n in range(NA)] + [(3, n) for n in range(OA)]
    IA = len(items)
    items += [(p, n) for p in range(3) for n in range(NA, 12)]
    IL = len(items)
    items += [(3, n) for n in range(OA, 12)]
    HI = list(range(48))
    hr = lambda i: vr(vR + (i % RING)*4, 4)
    def hl():
        if not HI: return
        i = HI.pop(0); p, n = items[i]
        if i == IA:
            assert not R
            stamp(k=9)
            if opt["fake"] & 2: VM.wait("pollB"); e("L_hq_go:")
            else: spin_fast("hq", vPB, "pollB")
            stamp(k=9)
        e(f"buffer_load_dwordx4 {hr(i)}, v{vHB+p}, {srd(sH)}, s{sSIG+n} offen {opt['haux'].replace('-','')}"); VM.issue(f"h{i}")
    TL = []
    while len(TDONE) < NA: TL += tgroup_ops(len(TDONE))
    for f in merge([hl] * opt["hpre"], TL): f()
    LG.drain()
    stamp()
    slots = {(i, j): [] for i in range(48) for j in range(5)}
    NBl = 12 - NA
    for p in range(3):
        i0 = IA + NBl*(p+1)
        for jj in range(5):
            def w(jj=jj, p=p):
                e(f"ds_write_b128 v{vRW if p < 2 else vRW2}, {vr(acc(p,jj),4)} offset:{(p%2)*32768 + jj*1024}"); LG.issue("red")
            k = 3 + (2 if p == 2 else 3) * jj
            slots[(i0 + k // 5, k % 5)].append(w)
    IB = IL + opt["rb2"]
    K2, K4 = opt["k2"], opt["k4"]
    k = 0
    for j in (4, 2, 3, 0, 1):
        for pp in range(3):
            def f(pp=pp, j=j):
                e(f"ds_read_b128 {vr(acc(pp,j), 4)}, v{vRR+pp} offset:{j*1024}"); LG.issue(f"rr{j}")
            slots[(IB + k // 5, k % 5)].append(f); k += 1
    adds = []
    for j in (4, 2, 3, 0, 1):
        for pp in (1, 2):
            for r in (0, 2):
                def a(j=j, pp=pp, r=r):
                    LG.wait(f"rr{j}")
                    e(f"v_pk_add_f32 {vr(acc(0,j)+r,2)}, {vr(acc(0,j)+r,2)}, {vr(acc(pp,j)+r,2)}")
                adds.append(a)
    a0 = IB*5 + 8
    AQ = []
    for k, f in enumerate(adds):
        if a0 + k < (48 - K2) * 5: slots[((a0 + k) // 5, (a0 + k) % 5)].append(f)
        else: AQ.append(f)
    WR = [int(c) for c in str(opt["wr2"]).lstrip("x")]
    seen = set(); TL = []
    I0 = len(O)
    for i, (p, n) in enumerate(items[:48-K2]):
        if i == IB:
            allc_check()
            LG.drain(); e("s_barrier")
            stamp(k=2)
        assert i not in HI
        VM.wait(f"h{i}"); VM.wait(f"w{n}")
        m = len(TDONE)
        if not TL and m < 12 and not any(nof(g) == m for g in W2L) and f"d{m}" not in VM.q: TL = tgroup_ops(m)
        if n >= NA and p == 0:
            while TL: TL.pop(0)()
            while f"t{n}" not in TDONE: tgroup(len(TDONE))
            LG.wait(f"t{n}")
        if i % 6 == 0 and i < 42: stamp(k=2)
        nx = WR[i % len(WR)] if i >= opt["ws0"] else 0
        for j in range(5):
            c = vr(acc(p,j), 4) if (p, j) in seen else "0"
            if j < 4 or i < 48 - K4:
                mf2(vr(acc(p,j),4), n, j, hr(i), c); seen.add((p, j))
            if j == opt["hj"]:
                if HI and HI[0] == IA:
                    while R: run(R.pop(0))
                hl()
            elif j in (3, 4, 0)[:nx] and R: run(R.pop(0))
            elif TL: TL.pop(0)()
            if j == 4 and i == opt["pb2"]:
                e(f"buffer_load_dword v{vPB}, v{vPA}, {srd(sH)}, s{sPOL} offen sc1"); VM.issue("pollB")
            for f in slots[(i, j)]: f()
    assert not HI and not TL and len(TDONE) == 12
    ac = acc(3); pk = PK
    ML = [(i, j) for g in ((0, 1), (2, 3)) for i in range(48 - K2, 48) for j in g] + [(i, 4) for i in range(48 - K4, 48)]
    def add(j):
        def mk(r):
            def f(): e(f"v_add_f32 v{ac+4*j+r}, v{ac+4*j+r}, v{acc(0,j)+r}")
            return f
        return [mk(r) for r in range(4)]
    def ln(t): return lambda: e(t)
    def cvt(j): return [ln(f"v_cvt_pk_bf16_f32 v{pk+2*j+r}, v{ac+4*j+2*r}, v{ac+4*j+2*r+1}") for r in range(2)]
    def sw(b): return [ln(f"v_permlane32_swap_b32 v{pk+4*b+r}, v{pk+4*b+2+r}") for r in range(2)]
    def bp(b):
        def mk(r):
            def f(): e(f"ds_bpermute_b32 v{pk+16+4*b+r}, v{vL16b}, v{pk+4*b+r}"); LG.issue(f"bp{b}")
            return f
        return [mk(r) for r in (0, 2, 1, 3)]
    def st(b):
        def f():
            LG.wait(f"bp{b}")
            e(f"buffer_store_dwordx4 {vr(pk+16+4*b,4)}, v{vOUT}, {srd(sOUT)}, s{sOB} offen offset:{64*b} {opt['outaux']}")
        return [f]
    fd = opt["fd"]
    assert len(AQ) <= 8, len(AQ)
    Qo = [(0, f) for f in add(4)] + [(fd - 1, f) for f in add(2) + add(3)]
    n23 = len(Qo)
    Qo += [(0, f) for f in AQ]
    Qo += [(2*K2 + fd - 1, f) for f in add(0) + add(1) + cvt(0) + cvt(1) + sw(0) + bp(0)]
    Qo += [(4*K2 + fd - 1, f) for f in cvt(2) + cvt(3) + sw(1) + bp(1) + st(0)]
    done = 0
    for k, (i, j) in enumerate(ML):
        if k == 2*K2:
            while done < n23: Qo.pop(0)[1](); done += 1
        VM.wait(f"h{i}")
        assert (3, j) in seen
        mf2(vr(ac+4*j,4), items[i][1], j, hr(i), vr(ac+4*j,4))
        for _ in range(opt["fr"]):
            if Qo and Qo[0][0] <= k: Qo.pop(0)[1](); done += 1
    stamp(); stamp(k=2); stamp(k=9)
    for _, f in Qo: f()
    for f in cvt(4): f()
    for r in range(4):
        e(f"buffer_store_short{'_d16_hi' if r % 2 else ''} v{pk+8+r//2}, v{vOUT2}, {srd(sOUT)}, s{sOB2} offen offset:{128 + r*1280} {opt['outaux'] if opt['outa2'] == '=' else opt['outa2'].replace('-','')}")
    st(1)[0]()
    O[I0:] = fix(O[I0:])
assert opt["tail"]
if opt["ab2"]: phase2_ab2()
elif opt["ab"] or opt["dfw"]: phase2_ab()
elif opt["c5"]: phase2_c()
else: phase2_new()
e(f"s_or_b32 s{sT0}, s{sW}, s2")
e(f"s_cmp_lg_u32 s{sT0}, 0")
e("s_cbranch_scc1 L_nobump")
e(f"s_add_u32 s{sE}, s{sE}, 1")
e(f"v_mov_b32 v{vT}, s{sE}")
e(f"s_mov_b32 s{sT0}, {EP}")
e("s_mov_b64 exec, 1")
e(f"buffer_store_dword v{vT}, off, {srd(sH)}, s{sT0}")
e("s_mov_b64 exec, -1")
e("L_nobump:")
if opt["enc"]: sys.stderr.write(f"enc stamps {NST[0]}\n")
if opt["stamps"] and not opt["enc"]:
    e("s_waitcnt vmcnt(0)")
    stamp(k=-1); stamp(True)
    ns = NST[0]
    assert 72 + 2*ns <= 102
    e("s_waitcnt lgkmcnt(0)")
    if opt["amp"] >= 0 and opt["ampa"]:
        a = opt["amp"] if opt["amp"] < ns else ns - 2
        e("s_load_dwordx2 s[64:65], s[0:1], 32")
        e("s_not_b32 s60, s74")
        e("v_mov_b32 v24, s60")
        e("v_mov_b32 v25, 0")
        e("s_mov_b64 exec, 1")
        e("s_waitcnt lgkmcnt(0)")
        e("s_lshr_b32 s60, s2, 3")
        e(f"s_or_b32 s60, s60, s{sW}")
        e("s_cbranch_scc1 L_ampn")
        e("global_atomic_umax v25, v24, s[64:65] sc1")
        e("s_waitcnt vmcnt(0)")
        e("L_ampn:")
        if opt["ampw"] >= 0:
            e(f"s_cmp_lg_u32 s2, {opt['ampw']}")
            e("s_cbranch_scc1 L_end")
        if opt["ampx"] >= 0:
            e("s_and_b32 s60, s2, 7")
            e(f"s_cmp_lg_u32 s60, {opt['ampx']}")
            e("s_cbranch_scc1 L_end")
        if opt["ampl"] >= 0:
            e("s_lshr_b32 s60, s2, 3")
            e(f"s_cmp_lg_u32 s60, {opt['ampl']}")
            e("s_cbranch_scc1 L_end")
        e("s_mov_b32 s61, 200000")
        e("L_amp0:")
        e("s_memrealtime s[62:63]")
        e("s_sub_u32 s61, s61, 1")
        e("s_cbranch_scc1 L_end")
        e("s_waitcnt lgkmcnt(0)")
        e("s_sub_u32 s62, s62, s74")
        e("s_cmp_lt_u32 s62, 1500")
        e("s_cbranch_scc1 L_amp0")
        e("global_load_dword v24, v25, s[64:65] sc0 sc1")
        e("s_waitcnt vmcnt(0)")
        e("v_readfirstlane_b32 s66, v24")
        e("s_not_b32 s66, s66")
        e(f"s_sub_u32 s60, s{72+2*a}, s66")
        e(f"s_min_u32 s60, s60, 5000")
        e(f"s_mul_i32 s60, s60, {opt['ampk']}")
        e(f"s_add_u32 s60, s60, {opt['ampc']}")
        e(f"s_min_u32 s60, s60, 50000")
        e(f"s_mov_b32 s61, 200000")
        e("L_amp:")
        e("s_memrealtime s[62:63]")
        e("s_sub_u32 s61, s61, 1")
        e("s_cbranch_scc1 L_end")
        e("s_waitcnt lgkmcnt(0)")
        e("s_sub_u32 s62, s62, s66")
        e("s_cmp_lt_u32 s62, s60")
        e("s_cbranch_scc1 L_amp")
        e("s_branch L_end")
    elif opt["amp"] >= 0:
        if opt["ampw"] >= 0:
            e(f"s_cmp_lg_u32 s2, {opt['ampw']}")
            e("s_cbranch_scc1 L_end")
        a = opt["amp"] if opt["amp"] < ns else ns - 2
        e(f"s_sub_u32 s60, s{72+2*a}, s{72+2*opt['ampb']}")
        e(f"s_mul_i32 s60, s60, {opt['ampk']}")
        e(f"s_lshr_b32 s60, s60, {opt['amps']}")
        e(f"s_min_u32 s60, s60, 50000")
        e(f"s_mov_b32 s61, 200000")
        e("L_amp:")
        e("s_memrealtime s[62:63]")
        e("s_sub_u32 s61, s61, 1")
        e("s_cbranch_scc1 L_end")
        e("s_waitcnt lgkmcnt(0)")
        e(f"s_sub_u32 s62, s62, s{72+2*(ns-1)}")
        e("s_cmp_lt_u32 s62, s60")
        e("s_cbranch_scc1 L_amp")
        e("s_branch L_end")
    if opt["rt"]:
        e(f"s_lshl_b32 s{sT0}, s2, 2")
        e(f"s_add_u32 s{sT0}, s{sT0}, s{sW}")
        e(f"s_mul_i32 s{sT0}, s{sT0}, {ns*8}")
    else:
        e(f"s_cmp_lg_u32 s{sW}, {opt['stamps']-1}")
        e("s_cbranch_scc1 L_end")
        e(f"s_mul_i32 s{sT0}, s2, {ns*8}")
    e("s_mov_b64 exec, 1")
    e(f"s_add_u32 s{sT0}, s{sT0}, {0x8000000 - (opt['wso'] << 20)}")
    e(f"v_mov_b32 v{vT}, s{sT0}")
    for i in range(ns):
        e(f"v_mov_b32 v24, s{72+2*i}"); e(f"v_mov_b32 v25, s{73+2*i}")
        e(f"global_store_dwordx2 v{vT}, v[24:25], s[12:13] offset:{i*8}"); e("s_nop 1")
    sys.stderr.write(f"nstamps {ns}\n")
LATE += OOL
if LATE:
    e("s_endpgm")
    O.extend(LATE)
e("L_end:")

hdr = f"""; FFN out = silu(x @ w1) @ w2, one launch, 256 workgroups (one per CU).
; @launch grid=(256,1,1) block=(256,1,1) lds=163840
.amdgcn_target "amdgcn-amd-amdhsa--gfx950"
.text
.globl {NAME}
.p2align 8
.type {NAME},@function
{NAME}:
"""
ftr = f"""s_endpgm
.section .rodata,"a"
.p2align 6
.amdhsa_kernel {NAME}
  .amdhsa_next_free_vgpr 512
  .amdhsa_next_free_sgpr 102
  .amdhsa_accum_offset 256
  .amdhsa_group_segment_fixed_size 0
  .amdhsa_kernarg_size 48
  .amdhsa_user_sgpr_count 2
  .amdhsa_user_sgpr_kernarg_segment_ptr 1
  .amdhsa_system_sgpr_workgroup_id_x 1
.end_amdhsa_kernel
"""
def sizes(lines):
    import subprocess, tempfile, os, re
    d = tempfile.mkdtemp()
    t = hdr + "\n".join(f"Z{i}:\n{l}" for i, l in enumerate(lines)) + "\nL_w1x:\n" + ftr
    for k in range(1, 4):
        if f"L_w{k}:" not in lines: t = t.replace(f"L_w{k}\n", "L_w1x\n")
    open(d + "/a.s", "w").write(t)
    r = subprocess.run(["clang", "-x", "assembler", "-target", "amdgcn-amd-amdhsa", "-mcpu=gfx950", "-c", d + "/a.s", "-o", d + "/a.o"], capture_output=True, text=True)
    assert r.returncode == 0, r.stderr
    import struct
    b = open(d + "/a.o", "rb").read()
    shoff = struct.unpack_from("<Q", b, 0x28)[0]; shn = struct.unpack_from("<H", b, 0x3c)[0]
    sec = [struct.unpack_from("<IIQQQQIIQQ", b, shoff + 64*i) for i in range(shn)]
    sy = [x for x in sec if x[1] == 2][0]; st = sec[sy[6]]
    ad = {}
    for i in range(sy[5] // 24):
        n, _, _, _, v, _ = struct.unpack_from("<IBBHQQ", b, sy[4] + 24*i)
        nm = b[st[4]+n:b.index(b"\0", st[4]+n)].decode()
        if re.fullmatch(r"Z\d+", nm): ad[int(nm[1:])] = v
    return ad
if opt["wu"] >= 0:
    assert opt["al"]
    for k in range(1, 4):
        ad = sizes(O)
        i = min(j for j in range(len(O)) if ad[j] >= 4096*k and not O[j].startswith(".") and not O[j].endswith(":"))
        O[i:i] = [f"L_w{k}:", "s_cbranch_execz L_wr"]
        sys.stderr.write(f"page {k}: {O[i-1]} | {O[i+2]}\n")
    if opt["stamps"]: sys.stderr.write(f"nstamps {NST[0]}\n")
body = "\n".join(("" if l.endswith(":") else "    ") + l.rstrip() for l in O)
open(sys.argv[1], "w").write(hdr + body + "\n" + ftr)
```
